```python
import torch

def _softmax(x, axis=-1):
    return torch.softmax(x, dim=axis)
def _gelu(x):
    return torch.nn.functional.gelu(x, approximate="tanh")
def _silu(x):
    return torch.nn.functional.silu(x)
def _sigmoid(x):
    return torch.sigmoid(x)
def _layernorm(x, axis=-1, eps=1e-5):
    m = x.mean(dim=axis, keepdim=True)
    v = x.var(dim=axis, keepdim=True, unbiased=False)
    return (x - m) / torch.sqrt(v + eps)
def _scatter_add(tgt, idx, src, axis=0):
    return tgt.clone().index_add_(axis, idx, src)
def _segment_sum(src, seg, n):
    out = torch.zeros((n,) + src.shape[1:], dtype=src.dtype)
    return out.index_add_(0, seg, src)
def _pad(x, pw):
    flat = tuple(v for pair in reversed(pw) for v in pair)
    return torch.nn.functional.pad(x, flat)

kernel_name = 'gated_mix__ssm_conv_h3__swiglu_ffn__prompt'

def setup_inputs():

    _w = (lambda a: (lambda t: t.to(torch.bfloat16) if t.is_floating_point() else t)(torch.as_tensor(a)))
    def _A_setup():
        B, S, D = 1, 2048, 448
        ks = 4
        return {
            "q": _w((lambda *s: torch.randn(*s, dtype=torch.bfloat16) * 0.05)(B, S, D)),
            "k": _w((lambda *s: torch.randn(*s, dtype=torch.bfloat16) * 0.2)(B, S, D)),
            "v": _w((lambda *s: torch.randn(*s, dtype=torch.bfloat16) * 0.2)(B, S, D)),
            "shift_k": _w((lambda *s: torch.randn(*s, dtype=torch.bfloat16) * 0.2)(D, ks) * 0.5),
            "ssm_k": _w((lambda *s: torch.randn(*s, dtype=torch.bfloat16) * 0.8)(D, S) * (1.0 / S ** 0.5)),
            "ssm_D": _w((lambda *s: torch.randn(*s, dtype=torch.bfloat16) * 0.2)(D)),
        }
    _A_in = _A_setup()

    def _B_setup():
        B, S, D, F = 1, 2048, 448, 1792
        return {
            "x": _w((lambda *s: torch.randn(*s, dtype=torch.bfloat16) * 0.05)(B, S, D)),
            "w_gate": _w((lambda *s: torch.randn(*s, dtype=torch.bfloat16) * 0.05)(D, F)),
            "w_up": _w((lambda *s: torch.randn(*s, dtype=torch.bfloat16) * 0.05)(D, F)),
            "w_down": _w((lambda *s: torch.randn(*s, dtype=torch.bfloat16) * 0.05)(F, D)),
        }
    _B_in = _B_setup()

    return {
        "A_q": _A_in["q"],
        "A_k": _A_in["k"],
        "A_v": _A_in["v"],
        "A_shift_k": _A_in["shift_k"],
        "A_ssm_k": _A_in["ssm_k"],
        "A_ssm_D": _A_in["ssm_D"],
        "B_x": _B_in["x"],
        "B_w_gate": _B_in["w_gate"],
        "B_w_up": _B_in["w_up"],
        "B_w_down": _B_in["w_down"],
        "gate_w": _w((lambda *s: torch.randn(*s, dtype=torch.bfloat16) * 0.05)(448) * 16.0),
    }

def reference(A_q, A_k, A_v, A_shift_k, A_ssm_k, A_ssm_D, B_x, B_w_gate, B_w_up, B_w_down, gate_w):
    def _A_ref(q, k, v, shift_k, ssm_k, ssm_D):
        B, S, D = q.shape
        ks = shift_k.shape[-1]
        k_pad = _pad(k, ((0, 0), (ks - 1, 0), (0, 0)))
        k_shift = torch.zeros_like(k)
        for t in range(ks):
            k_shift = k_shift + k_pad[:, t:t + S, :] * shift_k[:, ks - 1 - t][None, None, :]
        kv = k_shift * v
        L = 2 * S
        kv_pad = _pad(kv, ((0, 0), (0, S), (0, 0)))
        kf_pad = _pad(ssm_k, ((0, 0), (0, S)))
        kv_f = (lambda x, axes=(-2,-1): torch.fft.rfft2(x.float(), dim=axes))(kv_pad[:, None, :, :], axes=(1, 2))
        kf_f = (lambda x, axes=(-2,-1): torch.fft.rfft2(x.float(), dim=axes))(kf_pad[:, None, :], axes=(1, 2))
        kf_f = (lambda x, *d: x.permute(*d))(kf_f, 1, 2, 0)
        y_f = kv_f * kf_f[None, :, :, :]
        y = (lambda x, s, axes=(-2,-1): torch.fft.irfft2(x, s=s, dim=axes).to(torch.bfloat16))(y_f, (1, L), axes=(1, 2))[:, 0, :S, :]
        y = y + kv * ssm_D[None, None, :]
        return q * y

    def _B_ref(x, w_gate, w_up, w_down):
        g = _silu(x @ w_gate)
        u = x @ w_up
        return (g * u) @ w_down

    x = A_q
    g = _sigmoid((x * gate_w).sum(-1, keepdims=True))
    a = _A_ref(x, A_k, A_v, A_shift_k, A_ssm_k, A_ssm_D)
    b = _B_ref(x, B_w_gate, B_w_up, B_w_down)
    return g * a + (1 - g) * b
```

```python
import re

REG = re.compile(r'\b([vas])(?:\[(\d+):(\d+)\]|(\d+))(?![\w])')
def regs_of(tok):
    tok = tok.strip()
    out = set()
    m = REG.search(tok)
    if m:
        k = m.group(1)
        if m.group(2) is not None:
            out |= {(k, i) for i in range(int(m.group(2)), int(m.group(3)) + 1)}
        else:
            out.add((k, int(m.group(4))))
    elif re.match(r'^-?\|?vcc', tok): out |= {('s', 'vcc')}
    elif tok == 'exec': out |= {('s', 'exec')}
    elif tok == 'm0': out |= {('s', 'm0')}
    return out

TRANS = ('v_exp_f32', 'v_rcp_f32', 'v_log_f32', 'v_rsq_f32', 'v_sqrt_f32')

class Ins:
    __slots__ = ('text', 'op', 'w', 'r', 'kind', 'tag', 'passes', 'srcc', 'ab', 'wide', 'nocount', 'n')
    def __init__(s, text, tag=None, nocount=False):
        s.text = text; s.tag = tag; s.nocount = nocount
        s.w = set(); s.r = set(); s.kind = 'other'; s.passes = 0; s.srcc = set(); s.ab = set(); s.wide = False; s.n = 1
        t = text.split(';')[0].strip()
        if t.endswith(':') or t.startswith('.') or not t:
            s.kind = 'label'; s.op = t; s.n = 0; return
        parts = t.split(None, 1)
        op = s.op = parts[0]
        rest = parts[1] if len(parts) > 1 else ''
        ops = [o.strip() for o in rest.split(',')] if rest else []
        mods = ''
        if ops:
            lp = ops[-1].split(None, 1)
            if len(lp) > 1: ops[-1] = lp[0]; mods = lp[1]
        if 'quad_perm' in rest:
            base = rest.split('quad_perm')[0]
            ops = [o.strip() for o in base.split(',')]
            mods = 'dpp'
        R = [regs_of(o) for o in ops]
        allr = lambda lst: set().union(*lst) if lst else set()
        if op.startswith('v_mfma'):
            s.kind = 'mfma'; s.passes = 8 if '32x32' in op else 4
            s.w = R[0]; s.ab = R[1] | R[2]; s.srcc = R[3]; s.r = s.ab | s.srcc
        elif op.startswith('ds_read'):
            s.kind = 'dsr'; s.w = R[0]; s.r = allr(R[1:])
        elif op.startswith('ds_write'):
            s.kind = 'dsw'; s.r = allr(R)
        elif op.startswith('buffer_load') or op.startswith('global_load'):
            if re.search(r'\blds\b', mods):
                s.kind = 'dma'; s.r = allr(R) | {('s', 'm0')}
            else:
                s.kind = 'vml'; s.w = R[0]; s.r = allr(R[1:])
        elif op.startswith('buffer_store') or op.startswith('buffer_atomic') or op.startswith('global_store'):
            s.kind = 'vms'; s.r = allr(R); s.wide = ('x4' in op or 'x3' in op)
            s.srcc = R[0] if op.startswith('buffer') else R[1]
        elif op.startswith('v_'):
            s.kind = 'trans' if op.startswith(TRANS) else 'valu'
            if op.startswith(('v_permlane', 'v_swap')):
                s.w = R[0] | R[1]; s.r = R[0] | R[1]
                if op.startswith('v_permlane'): s.kind = 'perml'
            else:
                s.w = R[0]; s.r = allr(R[1:])
                if op.startswith(('v_fmac', 'v_dot2c')): s.r |= R[0]
                if op.startswith('v_cndmask') and len(ops) == 3: s.r |= {('s', 'vcc')}
                if op.startswith(('v_add_co', 'v_addc_co')): s.w |= R[1]
                if op.startswith(('v_readfirstlane', 'v_readlane')): s.kind = 'rfl'
                if 'dpp' in op or 'dpp' in mods or 'row_' in mods:
                    s.kind = 'dpp'; s.r |= R[0]
        elif op == 's_nop':
            s.kind = 'nop'; s.n = int(ops[0]) + 1
        elif op == 's_waitcnt':
            s.kind = 'wait'
        elif op.startswith(('s_load', 's_memtime', 's_memrealtime')):
            s.kind = 'smem'; s.w = R[0]; s.r = allr(R[1:])
        elif op.startswith(('s_cbranch', 's_branch', 's_barrier', 's_endpgm', 's_sleep', 's_setprio')):
            s.kind = 'ctl'
        elif op.startswith('s_cmp'):
            s.kind = 'salu'; s.r = allr(R)
        elif op.startswith('s_'):
            s.kind = 'salu'; s.w = R[0]; s.r = allr(R[1:])
        else:
            raise Exception('unparsed: ' + text)
    def isvalu(s): return s.kind in ('valu', 'trans', 'perml', 'rfl', 'dpp')
    def cost(s):
        if s.kind == 'label': return 0
        if s.kind == 'trans': return 8
        if s.kind == 'mfma': return 8
        if s.kind == 'nop': return 4 * s.n
        return 4

class WaitTag:
    def __init__(s, cls, tag): s.cls = cls; s.tag = tag
    def cost(s): return 4
class Fence:
    def __init__(s, cls): s.cls = cls
    def cost(s): return 0

class Prog:
    def __init__(s): s.items = []
    def e(s, text, tag=None, nocount=False):
        for line in text.split('\n'):
            line = line.strip()
            if line: s.items.append(Ins(line, tag, nocount))
    def add(s, it):
        if isinstance(it, str): s.e(it)
        elif isinstance(it, (list, tuple)):
            for x in it: s.add(x)
        else: s.items.append(it)
    def vmwait(s, tag): s.items.append(WaitTag('vm', tag))
    def lgwait(s, tag): s.items.append(WaitTag('lgkm', tag))
    def finalize(s, verbose=False):
        out = []
        q = {'vm': [], 'lgkm': []}
        done = {'vm': -1, 'lgkm': -1}
        pend = {}
        tags = {}
        MAXC = {'vm': 63, 'lgkm': 15}
        def need(cls, idx, acc):
            if idx > done[cls]: acc[cls] = max(acc.get(cls, -1), idx)
        def emit_wait(acc):
            if not acc: return
            parts = []
            for cls, idx in acc.items():
                n = len(q[cls]) - 1 - idx
                n = min(n, MAXC[cls])
                done[cls] = max(done[cls], len(q[cls]) - 1 - n)
                parts.append(('vmcnt(%d)' if cls == 'vm' else 'lgkmcnt(%d)') % n)
            out.append(Ins('s_waitcnt ' + ' '.join(sorted(parts, reverse=True))))
        for it in s.items:
            if isinstance(it, WaitTag):
                acc = {}
                assert it.tag in tags, 'unknown tag %s' % it.tag
                cls, idx = tags[it.tag]; assert cls == it.cls
                need(cls, idx, acc); emit_wait(acc); continue
            if isinstance(it, Fence):
                done[it.cls] = len(q[it.cls]) - 1; continue
            if it.kind == 'wait':
                m = re.search(r'vmcnt\((\d+)\)', it.text)
                if m: done['vm'] = max(done['vm'], len(q['vm']) - 1 - int(m.group(1)))
                m = re.search(r'lgkmcnt\((\d+)\)', it.text)
                if m: done['lgkm'] = max(done['lgkm'], len(q['lgkm']) - 1 - int(m.group(1)))
                out.append(it); continue
            acc = {}
            for r in (it.r | it.w):
                if r in pend: need(pend[r][0], pend[r][1], acc)
            emit_wait(acc)
            cls = {'dsr': 'lgkm', 'dsw': 'lgkm', 'vml': 'vm', 'dma': 'vm', 'vms': 'vm'}.get(it.kind)
            if cls and not it.nocount:
                outst = len(q[cls]) - 1 - done[cls]
                if cls == 'vm' and outst >= 62:
                    emit_wait({'vm': done['vm'] + 1})
                q[cls].append(it.tag)
                idx = len(q[cls]) - 1
                if it.tag is not None: tags[it.tag] = (cls, idx)
                for r in it.w: pend[r] = (cls, idx)
            out.append(it)
        out = s.pad(out, verbose)
        return out
    def pad(s, lst, verbose):
        out = []; nn = 0
        for it in lst:
            if it.kind == 'label': out.append(it); continue
            req = 0; dist = 0
            for j in range(len(out) - 1, -1, -1):
                p = out[j]
                if p.kind == 'label': continue
                n = s.hazard(p, it)
                if n > dist: req = max(req, n - dist)
                dist += p.n
                if dist >= 20: break
            if req > 0:
                out.append(Ins('s_nop %d' % (req - 1))); nn += req
                if verbose: print('; pad %d before %s' % (req, it.text))
            out.append(it)
        s.nops = nn
        return out
    @staticmethod
    def hazard(p, c):
        n = 0
        vreg = lambda S: {r for r in S if r[0] in 'va'}
        sreg = lambda S: {r for r in S if r[0] == 's'}
        if p.isvalu():
            pw = vreg(p.w)
            if c.kind == 'mfma' and pw & c.r: n = max(n, 2)
            if c.kind in ('perml', 'dpp') and pw & c.r: n = max(n, 2)
            if c.kind == 'rfl' and pw & c.r: n = max(n, 1)
            if p.kind == 'trans' and c.isvalu() and c.kind != 'trans' and pw & c.r: n = max(n, 1)
            if p.op.startswith('v_dot2') and c.isvalu() and pw & (c.r | c.w):
                same = (c.op == p.op)
                n = max(n, 3) if not (same and not (pw & (c.r - s_last(c)))) else n
            if p.op.startswith('v_dot2') and c.kind in ('dsw', 'vms', 'mfma') and pw & c.r: n = max(n, 3)
            sw = sreg(p.w)
            if sw:
                if c.isvalu() and sw & c.r: n = max(n, 2)
                if c.kind in ('vml', 'vms', 'dma') and sw & c.r: n = max(n, 5)
                if c.kind in ('salu',) and sw & c.r: n = max(n, 4)
        if p.kind == 'mfma':
            big = p.passes == 8
            if c.kind == 'mfma':
                if p.w & c.ab: n = max(n, 12 if big else 8)
                if p.w & c.srcc and not (p.w == c.srcc and p.passes == c.passes): n = max(n, 10 if big else 6)
                if p.w & c.w and not (p.w & c.srcc): n = max(n, 10 if big else 6)
            elif c.isvalu() or c.kind in ('dsw', 'dsr', 'vml', 'vms', 'dma'):
                if p.w & (c.r | c.w): n = max(n, 12 if big else 8)
                if c.isvalu() and p.srcc & c.w: n = max(n, 7 if big else 3)
        if p.kind == 'salu' and ('s', 'm0') in p.w and c.kind == 'dma': n = max(n, 1)
        if p.kind == 'vms' and p.wide and (c.isvalu() or c.kind in ('dsr', 'vml')) and p.srcc & c.w: n = max(n, 2)
        return n
def s_last(c):
    t = c.text.split(';')[0].strip().split(None, 1)[1].split(',')
    return regs_of(t[-1].split()[0])

def text_of(lst):
    return '\n'.join((x.text if x.kind == 'label' else '    ' + x.text) for x in lst)

class Gaps:
    def __init__(s, n): s.m = [None] * n; s.f = [[] for _ in range(n)]; s.n = n
    def put(s, g, item): s.f[min(max(g, 0), s.n - 1)].append(item)
    def spread(s, items, g0, g1):
        n = len(items)
        for i, it in enumerate(items):
            s.put(g0 + (i * (g1 - g0)) // max(n, 1), it)
    @staticmethod
    def icost(it):
        if isinstance(it, str): return sum(Ins(l).cost() for l in it.split('\n') if l.strip())
        if isinstance(it, (list, tuple)): return sum(Gaps.icost(x) for x in it)
        return it.cost()
    def costs(s): return [sum(Gaps.icost(x) for x in f) for f in s.f]
    def pour(s, items, g0, g1, budget):
        n = len(items); tot = sum(Gaps.icost(x) for x in items); acc = 0; g = g0
        c = s.costs()
        for it in items:
            k = Gaps.icost(it)
            tgt = g0 + (acc * (g1 - g0)) // max(tot, 1)
            g = max(g, tgt)
            while g < s.n - 1 and c[g] + k > budget: g += 1
            s.f[g].append(it); c[g] += k; acc += k
        return g
    def emit(s, P):
        for g in range(s.n):
            P.add(s.m[g])
            for it in s.f[g]: P.add(it)
```

```python
import sys, math
from fw import *
KNAME = "gated_mix__ssm_conv_h3__swiglu_ffn__prompt_kernel"

class Cfg:
    stamps = False
    PD = 4
    sc_h_load = "sc1"
    code_pf = True
cfg = Cfg()

WS_FLAG = 0x0; WS_G = 0x8000; WS_UR = 0x100000; WS_YT = 0x300000; WS_H = 0x500000
WS_STAMP = 0xC00000; WS_SIZE = 0xD00000
NQ = 1835008; NW = 1605632
SLOT = 28672; PIECE = 7168
HC = 4 * SLOT; CPY = 4160; HCCH = 4 * CPY
UL = HC + 2 * HCCH; UCH = 4608
LDS_BYTES = 163840
YL = HC; QL = HC + 8192
assert UL + 2 * UCH <= LDS_BYTES
X, WG, WU, WD, SK, WS, OUT, DBG = ["s[%d:%d]" % (b, b + 3) for b in (4, 8, 12, 16, 20, 24, 28, 32)]
sW = "s36"; sT0 = "s37"; sT1 = "s38"; sT2 = "s39"
sM0P = "s68"
sXB = "s69"
sWB = "s70"
sDB = "s71"
sHS = "s72"
sHL = ["s73", "s74"]
sNL2E = "s75"
sSO = "s76"; sSO2 = "s77"
sD = "s78"; sI2 = "s79"; sCT = "s80"; sKH = "s81"; sCNT = "s82"; sM = "s83"; sMASK = "s84"
sSTAMP = 86
NSTAMP = 7

def v(i, n=1): return "v%d" % i if n == 1 else "v[%d:%d]" % (i, i + n - 1)
def a(i, n=1): return "a%d" % i if n == 1 else "a[%d:%d]" % (i, i + n - 1)

stamp_names = []
def stamp(name):
    if not cfg.stamps: return []
    i = len(stamp_names); stamp_names.append(name)
    assert i < NSTAMP
    return [Ins("s_memtime s[%d:%d]" % (sSTAMP + 2 * i, sSTAMP + 2 * i + 1))]

slow_paths = []
def poll_check(name, vdst, vaddr, srd, want):
    slow_paths.append((name, vdst, vaddr, srd, want))
    return [Ins("v_cmp_ne_u32 vcc, %d, %s" % (want, vdst)), Ins("s_cbranch_vccnz L_slow_%s" % name), Ins("L_back_%s:" % name)]
def emit_slow_paths():
    t = []
    for name, vdst, vaddr, srd, want in slow_paths:
        t += ["L_slow_%s:" % name, "s_mov_b32 %s, 0" % sCNT, "L_spin_%s:" % name,
              "buffer_load_dword %s, %s, %s, 0 offen sc1" % (vdst, vaddr, srd),
              "s_add_u32 %s, %s, 1" % (sCNT, sCNT), "s_waitcnt vmcnt(0)",
              "v_cmp_ne_u32 vcc, %d, %s" % (want, vdst),
              "s_cmp_gt_u32 %s, 0x40000" % sCNT, "s_cbranch_scc1 L_back_%s" % name,
              "s_cbranch_vccz L_back_%s" % name, "s_sleep 2", "s_branch L_spin_%s" % name]
    return "\n".join(l if l.endswith(":") else "    " + l for l in t)

def srd(P, reg, lo, size):
    b = int(reg[2:reg.index(':')])
    P.e("s_mov_b32 s%d, s%d" % (b, lo)); P.e("s_mov_b32 s%d, s%d" % (b + 1, lo + 1))
    P.e("s_mov_b32 s%d, 0x%x" % (b + 2, size)); P.e("s_mov_b32 s%d, 0x20000" % (b + 3))

def gen_main(P):
    PD = cfg.PD
    VL = 1
    VXa = [2, 3, 4]; VWg = [5, 6]; VWu = [7, 8]; VXb = [9, 10, 11, 12]; VD = [13, 14, 15, 16]
    XR = [[17, 18, 19, 20], [21, 22, 23, 24]]; WR = [25, 26, 27]; DR = [[28, 29], [30, 31]]
    V16 = 32; T0 = 33; T1 = 34; T2 = 35; T3 = 36
    VPOLL = 37; VFLAG = 38; VPV = 39; CA = 40; CB = 41; VHW = 42; VZ = 44
    ACC = [48, 64, 80, 96]; XRING = 112; NXR = 6; ET = 136; PK = [140, 144]
    HR = 160
    P.e(f"""
    s_and_b32 {sT0}, s2, 7
    s_lshr_b32 {sT1}, s2, 3
    s_mul_i32 {sT2}, {sT1}, 37
    s_lshr_b32 {sT2}, {sT2}, 8
    s_mul_i32 s3, {sT2}, 7
    s_sub_u32 {sCT}, {sT1}, s3
    s_lshl_b32 s3, {sT0}, 2
    s_add_u32 {sI2}, s3, {sT2}
    s_lshr_b32 s3, {sT0}, 2
    s_lshl_b32 s3, s3, 2
    s_add_u32 {sT2}, s3, {sT2}
    s_and_b32 {sT0}, {sT0}, 3
    s_mul_i32 {sT1}, {sT0}, 7
    s_add_u32 {sT1}, {sT1}, {sCT}
    """)
    P.e(f"""
    s_mul_i32 {sM0P}, {sW}, {PIECE}
    s_mul_i32 {sXB}, {sT2}, {256*896}
    s_add_u32 {sXB}, {sXB}, {sM0P}
    s_mul_i32 {sWB}, {sW}, {16*3584}
    s_lshl_b32 s3, {sT1}, 7
    s_add_u32 {sWB}, {sWB}, s3
    """)
    P.e(f"""
    v_lshrrev_b32 {v(T0)}, 3, {v(VL)}
    v_and_b32 {v(T1)}, 7, {v(VL)}
    v_lshrrev_b32 {v(T2)}, 4, {v(VL)}
    s_lshl_b32 s3, {sW}, 2
    v_add_u32 {v(T3)}, s3, {v(T2)}
    v_and_b32 {v(T3)}, 7, {v(T3)}
    v_xor_b32 {v(T3)}, {v(T1)}, {v(T3)}
    v_lshlrev_b32 {v(T3)}, 4, {v(T3)}
    v_mul_u32_u24 {v(VXa[0])}, 896, {v(T0)}
    v_add_u32 {v(VXa[0])}, {v(VXa[0])}, {v(T3)}
    v_add_u32 {v(VXa[1])}, {28672-1024}, {v(VXa[0])}
    v_add_u32 {v(VXa[2])}, {2*(28672-1024)}, {v(VXa[0])}
    v_and_b32 {v(T2)}, 1, {v(T2)}
    v_lshlrev_b32 {v(T2)}, 1, {v(T2)}
    v_xor_b32 {v(T3)}, {v(T1)}, {v(T2)}
    v_lshlrev_b32 {v(T3)}, 4, {v(T3)}
    v_mul_u32_u24 {v(VWg[0])}, 3584, {v(T0)}
    v_add_u32 {v(VWg[0])}, {v(VWg[0])}, {v(T3)}
    v_add_u32 {v(VWg[1])}, {28672-1024}, {v(VWg[0])}
    v_xor_b32 {v(VWu[0])}, 64, {v(VWg[0])}
    v_add_u32 {v(VWu[1])}, {28672-1024}, {v(VWu[0])}
    """)
    P.e("s_waitcnt lgkmcnt(0)")
    srd(P, X, 40, NQ); srd(P, WG, 54, NW); srd(P, WU, 56, NW)

    def dma_item(i):
        sl = (i % 5) * SLOT; tag = "it%d" % i; L = []
        if i < 7:
            L.append(f"s_add_u32 m0, {sM0P}, {sl}\n s_add_u32 {sSO}, {sXB}, {128*i}")
            for rt in range(3): L.append(Ins(f"buffer_load_dwordx4 {v(VXa[rt])}, {X}, {sSO} offen offset:{1024*rt} lds", tag))
            L.append(f"s_add_u32 m0, {sM0P}, {sl+3072}\n s_add_u32 {sSO}, {sWB}, {64*3584*i}")
            for j in range(2): L.append(Ins(f"buffer_load_dwordx4 {v(VWg[j])}, {WG}, {sSO} offen offset:{1024*j} lds", tag))
            L.append(f"s_add_u32 m0, {sM0P}, {sl+5120}")
            for j in range(2): L.append(Ins(f"buffer_load_dwordx4 {v(VWu[j])}, {WU}, {sSO} offen offset:{1024*j} lds", tag))
        else:
            T = i - 4
            L.append(f"s_add_u32 m0, {sM0P}, {sl}\n s_add_u32 {sSO}, {sXB}, {28672*T-3072}")
            for k in range(4): L.append(Ins(f"buffer_load_dwordx4 {v(VXb[k])}, {X}, {sSO} offen offset:{1024*k} lds", tag))
            L.append(f"s_add_u32 m0, {sM0P}, {sl+4096}\n s_add_u32 {sSO}, {sXB}, {28672*T-3072+512}")
            for k in range(3): L.append(Ins(f"buffer_load_dwordx4 {v(VXb[k])}, {X}, {sSO} offen offset:{1024*k} lds", tag))
        return L
    for i in range(5): P.add(dma_item(i))
    P.add(stamp("issued"))
    srd(P, WD, 58, NW); srd(P, WS, 66, WS_SIZE); srd(P, OUT, 62, NQ); srd(P, DBG, 64, 256)
    P.e(f"""
    s_lshr_b32 s3, {sW}, 1
    s_and_b32 {sKH}, {sW}, 1
    s_lshl_b32 {sM}, s2, 1
    s_add_u32 {sM}, {sM}, s3
    s_lshl_b32 s3, {sM}, 12
    s_add_u32 s20, s48, s3
    s_addc_u32 s21, s49, 0
    s_mov_b32 s22, 4096
    s_mov_b32 s23, 0x20000
    s_lshl_b32 s3, s2, 2
    s_load_dword {sD}, s[50:51], s3
    s_mov_b32 {sNL2E}, 0xbfb8aa3b
    s_mov_b32 {sMASK}, 0xffff0000
    s_mul_i32 {sHS}, {sT2}, {8*112}
    s_lshl_b32 s3, {sT1}, 2
    s_add_u32 {sHS}, {sHS}, s3
    s_add_u32 {sHS}, {sHS}, {sW}
    s_lshl_b32 {sHS}, {sHS}, 10
    s_add_u32 {sHS}, {sHS}, {WS_H}
    s_mul_i32 {sDB}, {sW}, {448*896}
    s_lshl_b32 s3, {sCT}, 7
    s_add_u32 {sDB}, {sDB}, s3
    v_lshlrev_b32 {v(V16)}, 4, {v(VL)}
    """)
    P.e(f"""
    s_lshl_b32 s3, {sT2}, 2
    s_add_u32 s3, s3, {sT0}
    s_lshl_b32 s3, s3, 8
    v_mov_b32 {v(VFLAG)}, s3
    v_mov_b32 {v(T3)}, -16
    v_cmp_eq_u32 vcc, 0, v0
    v_cndmask_b32 {v(VFLAG)}, {v(T3)}, {v(VFLAG)}, vcc
    v_mov_b32 {v(VPOLL)}, 0
    """)
    for k in range(4): P.e(f"v_add_u32 {v(VXb[k])}, {3072-896*k}, {v(VXa[0])}")
    P.e(f"""
    v_lshlrev_b32 {v(T3)}, 1, {v(T2)}
    v_xor_b32 {v(T3)}, {v(T1)}, {v(T3)}
    v_lshlrev_b32 {v(T3)}, 4, {v(T3)}
    v_mul_u32_u24 {v(VD[0])}, 896, {v(T0)}
    v_add_u32 {v(VD[0])}, {v(VD[0])}, {v(T3)}
    """)
    for k in range(1, 4): P.e(f"v_add_u32 {v(VD[k])}, {6144*k}, {v(VD[0])}")
    P.e(f"""
    v_and_b32 {v(T0)}, 31, {v(VL)}
    v_lshrrev_b32 {v(T1)}, 3, {v(T0)}
    v_mul_u32_u24 {v(T1)}, {PIECE}, {v(T1)}
    v_and_b32 {v(T2)}, 7, {v(T0)}
    v_lshl_add_u32 {v(T1)}, {v(T2)}, 7, {v(T1)}
    v_lshrrev_b32 {v(T2)}, 1, {v(T0)}
    v_and_b32 {v(T2)}, 7, {v(T2)}
    v_lshrrev_b32 {v(T3)}, 5, {v(VL)}
    v_xor_b32 {v(T2)}, {v(T2)}, {v(T3)}
    v_lshl_add_u32 {v(XR[0][0])}, {v(T2)}, 4, {v(T1)}
    """)
    for k in range(1, 4): P.e(f"v_xor_b32 {v(XR[0][k])}, {32*k}, {v(XR[0][0])}")
    for k in range(4): P.e(f"v_add_u32 {v(XR[1][k])}, {3*SLOT}, {v(XR[0][k])}")
    P.e(f"""
    v_bfe_u32 {v(T0)}, {v(VL)}, 2, 2
    v_lshl_add_u32 {v(T1)}, {v(T3)}, 3, {v(T0)}
    v_lshlrev_b32 {v(T1)}, 7, {v(T1)}
    v_bfe_u32 {v(T2)}, {v(VL)}, 1, 1
    v_lshl_add_u32 {v(T1)}, {v(T2)}, 11, {v(T1)}
    v_lshlrev_b32 {v(T2)}, 1, {v(T2)}
    v_lshrrev_b32 {v(T0)}, 1, {v(T0)}
    v_add_u32 {v(T2)}, {v(T2)}, {v(T0)}
    v_xor_b32 {v(T2)}, {sW}, {v(T2)}
    v_lshl_add_u32 {v(T1)}, {v(T2)}, 5, {v(T1)}
    v_bfe_u32 {v(T2)}, {v(VL)}, 4, 1
    v_lshl_add_u32 {v(T1)}, {v(T2)}, 4, {v(T1)}
    v_and_b32 {v(T2)}, 1, {v(VL)}
    v_lshl_add_u32 {v(T1)}, {v(T2)}, 3, {v(T1)}
    v_add_u32 {v(WR[0])}, 3072, {v(T1)}
    v_add_u32 {v(WR[1])}, {2*SLOT}, {v(WR[0])}
    v_add_u32 {v(WR[2])}, {4*SLOT}, {v(WR[0])}
    """)
    P.e(f"""
    v_bfe_u32 {v(T1)}, {v(VL)}, 2, 2
    v_lshl_add_u32 {v(T1)}, {v(T3)}, 2, {v(T1)}
    v_lshlrev_b32 {v(T1)}, 7, {v(T1)}
    s_lshr_b32 s3, {sW}, 1
    v_xor_b32 {v(T2)}, s3, {v(T0)}
    v_lshl_add_u32 {v(T1)}, {v(T2)}, 6, {v(T1)}
    v_bfe_u32 {v(T2)}, {v(VL)}, 4, 1
    v_lshl_add_u32 {v(T1)}, {v(T2)}, 5, {v(T1)}
    v_and_b32 {v(T2)}, 3, {v(VL)}
    v_lshl_add_u32 {v(T1)}, {v(T2)}, 3, {v(T1)}
    v_add_u32 {v(DR[0][0])}, {sM0P}, {v(T1)}
    v_xor_b32 {v(DR[0][1])}, 64, {v(DR[0][0])}
    v_add_u32 {v(DR[1][0])}, {2*SLOT}, {v(DR[0][0])}
    v_add_u32 {v(DR[1][1])}, {2*SLOT}, {v(DR[0][1])}
    """)
    P.e(f"""
    s_lshl_b32 s3, {sKH}, 11
    v_add_u32 {v(T0)}, s3, {v(V16)}
    v_add_u32 {v(T1)}, -16, {v(T0)}
    v_add_u32 {v(T2)}, 1008, {v(T0)}
    buffer_load_dwordx4 {v(HR,4)}, {v(T1)}, {SK}, 0 offen
    buffer_load_dwordx4 {v(HR+4,4)}, {v(T0)}, {SK}, 0 offen
    buffer_load_dwordx4 {v(HR+8,4)}, {v(T2)}, {SK}, 0 offen
    buffer_load_dwordx4 {v(HR+12,4)}, {v(T0)}, {SK}, 0 offen offset:1024
    """)
    P.e(f"""
    s_lshr_b32 s3, {sW}, 1
    s_mul_i32 {sT0}, s3, {HCCH}
    s_add_u32 {sT0}, {sT0}, {HC}
    s_mul_i32 {sT1}, s3, {UCH}
    s_add_u32 {sT1}, {sT1}, {UL}
    s_lshl_b32 s3, {sKH}, 11
    s_add_u32 s3, s3, {sT0}
    s_add_u32 s3, s3, 32
    v_add_u32 {v(VHW)}, s3, {v(V16)}
    v_and_b32 {v(T0)}, 15, {v(VL)}
    v_lshrrev_b32 {v(T1)}, 4, {v(VL)}
    v_sub_u32 {v(T2)}, 3, {v(T0)}
    v_and_b32 {v(T2)}, 3, {v(T2)}
    v_add3_u32 {v(T3)}, {v(T0)}, {v(T2)}, 1
    v_lshl_add_u32 {v(T3)}, {v(T1)}, 3, {v(T3)}
    v_lshlrev_b32 {v(T3)}, 1, {v(T3)}
    v_mul_u32_u24 {v(T2)}, {CPY}, {v(T2)}
    s_lshl_b32 s3, {sKH}, 8
    s_add_u32 {sT0}, {sT0}, s3
    v_add3_u32 {v(CA)}, {v(T2)}, {v(T3)}, {sT0}
    v_lshlrev_b32 {v(T0)}, 5, {v(T0)}
    v_lshlrev_b32 {v(T1)}, 4, {v(T1)}
    v_sub_u32 {v(T1)}, {v(T1)}, {v(T0)}
    s_add_u32 s3, s3, {sT1}
    s_add_u32 s3, s3, 480
    v_add_u32 {v(CB)}, s3, {v(T1)}
    """)
    for k in range(4): P.e(f"v_mov_b32 {v(VZ+k)}, 0")
    P.e(f"""
    v_lshrrev_b32 {v(T0)}, 5, {v(VL)}
    v_mul_u32_u24 {v(T0)}, {UCH}, {v(T0)}
    v_and_b32 {v(T1)}, 31, {v(VL)}
    v_lshl_add_u32 {v(T0)}, {v(T1)}, 4, {v(T0)}
    v_add_u32 {v(T0)}, {UL+4096}, {v(T0)}
    ds_write_b128 {v(T0)}, {v(VZ,4)}
    v_and_b32 {v(T0)}, 15, {v(VL)}
    v_lshrrev_b32 {v(T1)}, 1, {v(T0)}
    v_mul_u32_u24 {v(T1)}, {CPY}, {v(T1)}
    v_and_b32 {v(T0)}, 1, {v(T0)}
    v_lshl_add_u32 {v(T0)}, {v(T0)}, 4, {v(T1)}
    v_add_u32 {v(T3)}, {HC}, {v(T0)}
    s_waitcnt lgkmcnt(0)
    s_lshl_b32 s3, {sD}, 16
    s_and_b32 {sD}, {sD}, {sMASK}
    s_cmp_lt_u32 {sW}, 2
    s_cselect_b32 {sD}, s3, {sD}
    """)
    VHZ = T3

    NG = 224
    G = Gaps(NG)
    def item_start(i): return 12 * i if i <= 7 else 84 + 28 * (i - 7)
    def xread(g):
        if g < 84: c = g // 12; ks = (g % 12) // 3; unit = g % 3; it = c
        else: it = 7 + (g - 84) // 28; k = (g - 84) % 28; ks = k % 4; unit = k // 4
        sl = it % 5; hi = 1 if sl >= 3 else 0
        off = (sl - 3 * hi) * SLOT + 1024 * unit
        r = XRING + 4 * (g % NXR)
        return f"ds_read_b128 {v(r,4)}, {v(XR[hi][ks])} offset:{off}"
    def wread(c, ks):
        sl = c % 5; var = sl // 2; off = (sl - 2 * var) * SLOT + PIECE * ks; f = 4 * (4 * c + ks)
        return [f"ds_read_b64_tr_b16 {a(f+2*rd,2)}, {v(WR[var])} offset:{off+512*rd}" for rd in range(2)]
    tile_acc = {0: 0, 1: 1, 2: 2, 3: 3, 4: 0, 5: 1, 6: 2, 7: 3}
    for g in range(NG):
        if g < 84: c = g // 12; ks = 4 * c + (g % 12) // 3; T = g % 3
        else: T = 3 + (g - 84) // 28; ks = (g - 84) % 28
        A = v(ACC[tile_acc[T]], 16)
        G.m[g] = f"v_mfma_f32_32x32x16_bf16 {A}, {a(4*ks,4)}, {v(XRING+4*(g%NXR),4)}, {'0' if ks == 0 else A}"
    pre = []
    def at(g, item):
        if g < 0: pre.append(item)
        else: G.put(g, item)
    for i in range(12):
        g0 = item_start(i) - PD - 1
        at(g0, [WaitTag('vm', "it%d" % i), Ins("s_barrier")])
    for g in range(NG):
        if g < 84 and g % 3 == 0:
            for s_ in wread(g // 12, (g % 12) // 3): at(g - PD - 1, s_)
        at(g - PD - 1, xread(g))
    for i in range(2, 9):
        g0 = item_start(i) - PD
        span = 11 if i < 7 else 24
        G.spread(dma_item(i + 3), g0, g0 + span)
    hv = []
    for rho in range(2):
        R = HR + 8 * rho; C = 176 + 12 * rho
        for k in range(4): hv.append(f"v_alignbit_b32 {v(C+k)}, {v(R+4+k)}, {v(R+3+k)}, 16")
        for k in range(4): hv.append(f"v_mov_b32 {v(C+4+k)}, {v(R+3+k)}")
        for k in range(4): hv.append(f"v_alignbit_b32 {v(C+8+k)}, {v(R+3+k)}, {v(R+2+k)}, 16")
    G.spread(hv, 50, 78)
    hw = [Ins(f"ds_write_b128 {v(VHZ)}, {v(VZ,4)}", "hcw")]
    for rho in range(2):
        R = HR + 8 * rho; C = 176 + 12 * rho
        for cpy, src in enumerate((R + 4, C, C + 4, C + 8)):
            hw.append(Ins(f"ds_write_b128 {v(VHW)}, {v(src,4)} offset:{cpy*CPY+1024*rho}", "hcw"))
    def epi(T):
        A = ACC[tile_acc[T]]; Pk = PK[T % 2]; L = []
        for grp in range(2):
            g_ = A + 8 * grp; u_ = g_ + 4
            L += [f"v_mul_f32 {v(ET+i)}, {sNL2E}, {v(g_+i)}" for i in range(4)]
            L += [f"v_exp_f32 {v(ET+i)}, {v(ET+i)}" for i in range(4)]
            L += [f"v_mul_f32 {v(u_+i)}, {v(g_+i)}, {v(u_+i)}" for i in range(2)]
            L += [f"v_add_f32 {v(ET+i)}, 1.0, {v(ET+i)}" for i in range(4)]
            L += [f"v_rcp_f32 {v(ET+i)}, {v(ET+i)}" for i in range(4)]
            L += [f"v_mul_f32 {v(u_+i)}, {v(g_+i)}, {v(u_+i)}" for i in range(2, 4)]
            L += [f"v_mul_f32 {v(u_+i)}, {v(u_+i)}, {v(ET+i)}" for i in range(4)]
            L += [f"v_cvt_pk_bf16_f32 {v(Pk+2*grp+i)}, {v(u_+2*i)}, {v(u_+2*i+1)}" for i in range(2)]
        L.append(f"s_add_u32 {sSO2}, {sHS}, {T*112*1024}")
        L.append(Ins(f"buffer_store_dwordx4 {v(Pk,4)}, {v(V16)}, {WS}, {sSO2} offen sc1", "hst"))
        return L
    page_slot = [2, 3, 0, 1]
    def wd_page(n):
        if n < 28: return n % 14
        if n < 42: return 14 + (n - 28)
        return n - 42
    def wd_dma(n0, n1):
        L = []; n = n0
        while n < n1:
            p = wd_page(n); cnt = min(4, n1 - n, 7 - p % 7)
            lds = page_slot[p // 7] * SLOT + 1024 * (p % 7)
            L.append(f"s_add_u32 m0, {sM0P}, {lds}\n s_add_u32 {sSO}, {sDB}, {7168*n}")
            for k in range(cnt):
                it = [Ins(f"buffer_load_dwordx4 {v(VD[k])}, {WD}, {sSO} offen offset:{1024*k} lds", "wd%d" % (n + k))]
                prev = mm_prev(n + k)
                if prev is not None: it = [WaitTag('lgkm', "wr%d" % prev)] + it
                L.append(it)
            n += cnt
        return L
    def mm_prev(n):
        if 14 <= n < 28: return n - 14
        if n >= 42: return n - 28
        return None
    def wd_read(n, dst):
        p = wd_page(n); sl = page_slot[p // 7]; hi = 1 if sl >= 2 else 0
        off = (sl - 2 * hi) * SLOT + 1024 * (p % 7)
        return [[WaitTag('vm', "wd%d" % n)] * (dt == 0) + [Ins(f"ds_read_b64_tr_b16 {dst(dt)}, {v(DR[hi][dt])} offset:{off}", "wr%d" % n)] for dt in range(2)]
    WD1 = 112
    def wd1(n): return lambda dt: a(WD1 + 8 * (n >> 1) + 4 * dt + 2 * (n & 1), 2)
    gT = lambda T: item_start(T + 4)
    G.spread(wd_dma(0, 7), gT(5) - PD, gT(5) + 16)
    G.spread(wd_dma(7, 14), gT(6) - PD, gT(6) + 8)
    rd = []
    for n in range(0, 7): rd += wd_read(n, wd1(n))
    G.spread(rd, gT(6) + 2, gT(6) + 14)
    G.spread(wd_dma(14, 21), gT(6) + 16, gT(6) + 27)
    rd = []
    for n in range(7, 14): rd += wd_read(n, wd1(n))
    G.spread(rd, gT(7) + 2, gT(7) + 14)
    G.spread(wd_dma(21, 28), gT(7) + 16, gT(7) + 27)
    G.spread(hw, gT(7) - PD, gT(7) + 20)
    G.put(gT(6) + 4, Ins(f"buffer_load_dword {v(VPV)}, {v(VPOLL)}, {DBG}, 0 offen sc1"))
    G.put(gT(7), poll_check("p", v(VPV), v(VPOLL), DBG, 32))
    ud = [f"""s_lshr_b32 s3, {sW}, 1
              s_mul_i32 s3, s3, {UCH}""", f"""s_lshl_b32 {sT0}, {sKH}, 11
              s_add_u32 s3, s3, {sT0}""", f"""s_add_u32 m0, s3, {UL}
              s_lshl_b32 s3, {sM}, 12""", f"""s_add_u32 {sT0}, {sT0}, s3
              s_add_u32 {sT0}, {sT0}, {WS_UR}"""]
    G.put(gT(7) + 1, ud + [Ins(f"buffer_load_dwordx4 {v(V16)}, {WS}, {sT0} offen offset:{1024*j} sc1 lds", "u") for j in range(2)])
    bounds = [84 + 2 + (140 - 4) * k // 7 for k in range(8)]
    last = 0
    for T in range(7):
        g0 = max(bounds[T], (84 if T < 3 else gT(T + 1)) + 2, last)
        last = G.pour(epi(T), g0, max(bounds[T + 1], g0 + 1), 24)
        nxt = [t for t in range(T + 1, 8) if tile_acc[t] == tile_acc[T]]
        if nxt: assert last < (gT(nxt[0])), (T, last)
    check_m0(G)
    P.add(pre)
    P.add(stamp("g1start"))
    G.emit(P)
    if cfg.verbose: print("G1 gap costs", G.costs())
    P.add(stamp("g1end"))
    P.vmwait("u"); P.lgwait("hcw"); P.e("s_barrier")
    CACC = 48
    def cA(buf, a_): return (0 if buf == 0 else 64) + 4 * a_
    def cB(buf, b_):
        i = 32 + 4 * b_ if buf == 0 else 96 + 4 * b_
        return i if i < 112 else 224 + (i - 112)
    def creads(st):
        buf = st & 1; L = []
        for k in range(8):
            L.append(f"ds_read_b128 {a(cB(buf,k),4)}, {v(CB)} offset:{64*st+512*(7-k)}")
            for rd in range(2): L.append(f"ds_read_b64 {a(cA(buf,k)+2*rd,2)}, {v(CA)} offset:{512*k+64*st+8*rd}")
        return L
    e7 = epi(7)
    d2 = wd_dma(28, 42); c0 = creads(0)
    P.add(c0[:12])
    k = 0; rest = c0[12:] + d2
    for j, it in enumerate(e7):
        P.add(it)
        if j % 2 == 1 and k < len(rest) and j < len(e7) - 3: P.add(rest[k]); k += 1
    P.add(rest[k:])
    P.e(f"""
    s_lshr_b32 s3, {sI2}, 2
    s_lshl_b32 s3, s3, 2
    s_add_u32 s3, s3, {sW}
    s_lshl_b32 s3, s3, 8
    v_mov_b32 {v(VPOLL)}, s3
    s_lshl_b32 s3, {sI2}, 1
    s_add_u32 {sT0}, s3, {sKH}
    s_xor_b32 {sT1}, {sT0}, 1
    s_mul_i32 {sT0}, {sT0}, 112
    s_mul_i32 {sT1}, {sT1}, 112
    s_mul_i32 s3, {sW}, 28
    s_add_u32 {sT0}, {sT0}, s3
    s_add_u32 {sT1}, {sT1}, s3
    s_lshl_b32 {sT0}, {sT0}, 10
    s_lshl_b32 {sT1}, {sT1}, 10
    s_add_u32 {sHL[0]}, {sT0}, {WS_H}
    s_add_u32 {sHL[1]}, {sT1}, {WS_H}
    v_mov_b32 {v(T0)}, 1
    """)
    P.add(stamp("cstart"))
    C = Gaps(144)
    pairs = [(t, a_) for t in range(8) for a_ in range(t + 1)]
    for st in range(4):
        for j, (t, a_) in enumerate(pairs):
            A = v(CACC + 4 * t, 4)
            first = (st == 0 and a_ == 0)
            C.m[36 * st + j] = f"v_mfma_f32_16x16x32_bf16 {A}, {a(cA(st&1,a_),4)}, {a(cB(st&1,t-a_),4)}, {'0' if first else A}"
        if st < 3: C.spread(creads(st + 1), 36 * st + 1, 36 * st + 30)
    HRING = 96; NHR = 40
    def hload(n):
        ks = n >> 1; stl = n & 1; L = []
        if ks % 4 == 0 and ks > 0: L.append(f"s_add_u32 {sHL[stl]}, {sHL[stl]}, 4096")
        L.append(f"buffer_load_dwordx4 {v(HRING+4*(n%NHR),4)}, {v(V16)}, {WS}, {sHL[stl]} offen offset:{1024*(ks%4)} {cfg.sc_h_load}")
        return L
    rd = []
    for n in range(14, 28): rd += wd_read(n, wd1(n))
    C.pour(rd, 4, 60, 12)
    C.put(cfg.g_arrive, [WaitTag('vm', "hst"), Ins("s_barrier"), Ins(f"buffer_atomic_add {v(T0)}, {v(VFLAG)}, {WS}, 0 offen sc1")])
    gl = C.pour(wd_dma(42, 56), 62, 90, 12)
    C.put(cfg.g_poll, Ins(f"buffer_load_dword {v(VPV)}, {v(VPOLL)}, {WS}, 0 offen sc1"))
    C.put(cfg.g_chk, poll_check("h", v(VPV), v(VPOLL), WS, 7))
    NH_C = cfg.nh_c
    C.pour([hload(n) for n in range(NH_C)], cfg.g_chk + 1, 143, 12)
    check_m0(C)
    C.emit(P)
    if cfg.verbose: print("C gap costs", C.costs())
    Y = 80
    RR = 2
    RR = 2; UU = 18
    P.e(f"""
    s_lshl_b32 s3, {sW}, 12
    s_add_u32 s3, s3, {HC}
    v_add_u32 {v(T1)}, s3, {v(V16)}
    v_xor_b32 {v(T2)}, 4096, {v(T1)}
    v_and_b32 {v(T3)}, 15, {v(VL)}
    v_lshlrev_b32 {v(T3)}, 5, {v(T3)}
    v_lshrrev_b32 {v(26)}, 4, {v(VL)}
    v_lshl_add_u32 {v(T3)}, {v(26)}, 3, {v(T3)}
    s_lshr_b32 s3, {sW}, 1
    s_mul_i32 s3, s3, {UCH}
    s_lshl_b32 {sT0}, {sKH}, 11
    s_sub_u32 s3, s3, {sT0}
    s_add_u32 s3, s3, {UL+504+2048}
    v_sub_u32 {v(T3)}, s3, {v(T3)}
    s_barrier
    """)
    for tau in range(4): P.e(f"ds_read_b64 {v(UU+2*tau,2)}, {v(T3)} offset:{512*(3-tau)}")
    P.e(f"s_cmp_eq_u32 {sKH}, 0\n s_cbranch_scc1 L_cw0")
    for tau in range(4): P.e(f"ds_write_b128 {v(T1)}, {v(CACC+4*tau,4)} offset:{1024*tau}", nocount=True)
    P.e("s_branch L_cw1\n L_cw0:")
    for tau in range(4): P.e(f"ds_write_b128 {v(T1)}, {v(CACC+16+4*tau,4)} offset:{1024*tau}")
    P.e("L_cw1:\n s_waitcnt lgkmcnt(0)\n s_barrier")
    for tau in range(4): P.e(f"ds_read_b128 {v(RR+4*tau,4)}, {v(T2)} offset:{1024*tau}")
    P.e(f"""
    v_and_b32 {v(T1)}, 3, {v(VL)}
    v_lshlrev_b32 {v(T1)}, 4, {v(T1)}
    v_bfe_u32 {v(T3)}, {v(VL)}, 2, 2
    v_lshl_add_u32 {v(T1)}, {v(T3)}, 7, {v(T1)}
    v_bfe_u32 {v(T3)}, {v(VL)}, 4, 1
    v_lshl_add_u32 {v(T1)}, {v(T3)}, 9, {v(T1)}
    v_lshrrev_b32 {v(T3)}, 5, {v(VL)}
    v_lshl_add_u32 {v(T1)}, {v(T3)}, 6, {v(T1)}
    s_lshl_b32 s3, {sM}, 12
    s_add_u32 s3, s3, {sT0}
    s_add_u32 {sSO}, s3, {WS_YT}
    s_waitcnt lgkmcnt(0)
    s_cmp_eq_u32 {sKH}, 0
    s_cbranch_scc1 L_ca0
    """)
    for k in range(16): P.e(f"v_add_f32 {v(Y+k)}, {v(CACC+16+k)}, {v(RR+k)}")
    P.e("s_branch L_ca1\n L_ca0:")
    for k in range(16): P.e(f"v_add_f32 {v(Y+k)}, {v(CACC+k)}, {v(RR+k)}")
    P.e("L_ca1:")
    for tau in range(4):
        P.e(f"""
        v_and_b32 {v(RR+4*tau+0)}, {sMASK}, {v(UU+2*tau+1)}
        v_lshlrev_b32 {v(RR+4*tau+1)}, 16, {v(UU+2*tau+1)}
        v_and_b32 {v(RR+4*tau+2)}, {sMASK}, {v(UU+2*tau)}
        v_lshlrev_b32 {v(RR+4*tau+3)}, 16, {v(UU+2*tau)}
        """)
    for k in range(16): P.e(f"v_fmac_f32 {v(Y+k)}, {sD}, {v(RR+k)}")
    for k in range(8): P.e(f"v_cvt_pk_bf16_f32 {v(RR+k)}, {v(Y+2*k)}, {v(Y+2*k+1)}")
    for pi in range(2):
        P.e(f"v_permlane16_swap_b32 {v(RR+4*pi)}, {v(RR+4*pi+2)}\n v_permlane16_swap_b32 {v(RR+4*pi+1)}, {v(RR+4*pi+3)}")
    for pi in range(2):
        P.e(f"buffer_store_dwordx4 {v(RR+4*pi,4)}, {v(T1)}, {WS}, {sSO} offen offset:{1024*pi} sc1", tag="yst")
    VY = [10, 11]; VQ = [12, 13]; VG = 14; VGA = 15; VFY = 16; VPY = 17
    P.e(f"""
    v_lshrrev_b32 {v(T1)}, 3, {v(VL)}
    v_and_b32 {v(T2)}, 7, {v(VL)}
    v_lshlrev_b32 {v(T3)}, 12, {v(T1)}
    v_lshl_add_u32 {v(VY[0])}, {v(T2)}, 4, {v(T3)}
    v_add_u32 {v(VY[1])}, {32768-1024}, {v(VY[0])}
    v_lshrrev_b32 {v(T3)}, 4, {v(VL)}
    v_xor_b32 {v(T2)}, {v(T2)}, {v(T3)}
    v_lshlrev_b32 {v(T2)}, 4, {v(T2)}
    v_mul_u32_u24 {v(T1)}, 896, {v(T1)}
    v_add_u32 {v(VQ[0])}, {v(T1)}, {v(T2)}
    v_xor_b32 {v(T2)}, 64, {v(T2)}
    v_add_u32 {v(T1)}, {7168-1024}, {v(T1)}
    v_add_u32 {v(VQ[1])}, {v(T1)}, {v(T2)}
    s_lshl_b32 s3, {sI2}, 1
    s_add_u32 s3, s3, {sKH}
    s_lshl_b32 s3, s3, 7
    s_add_u32 s3, s3, {WS_G}
    v_and_b32 {v(T1)}, 31, {v(VL)}
    v_lshl_add_u32 {v(VGA)}, {v(T1)}, 2, s3
    s_lshr_b32 s3, s2, 5
    s_lshl_b32 s3, s3, 8
    s_add_u32 s3, s3, {32*256}
    v_mov_b32 {v(VFY)}, s3
    v_mov_b32 {v(T1)}, -16
    v_cmp_eq_u32 vcc, 0, v0
    v_cndmask_b32 {v(VFY)}, {v(T1)}, {v(VFY)}, vcc
    s_lshl_b32 s3, {sCT}, 8
    s_add_u32 s3, s3, {32*256}
    v_mov_b32 {v(VPY)}, s3
    """)
    P.add(stamp("g2start"))
    GA = 32 + 16
    GACC = 0
    JIT = 64; NJ = 6
    G2 = Gaps(112)
    def wfrag(ks, dt):
        if ks < 14: return a(WD1 + 8 * ks + 4 * dt, 4)
        return a(JIT + 4 * ((2 * (ks - 14) + dt) % NJ), 4)
    for ks in range(28):
        for sg in range(4):
            A = a(GACC + 16 * sg, 16)
            G2.m[4 * ks + sg] = f"v_mfma_f32_32x32x16_bf16 {A}, {wfrag(ks, sg>>1)}, {v(HRING+4*((2*ks+(sg&1))%NHR),4)}, {'0' if ks == 0 else A}"
    for ks in range(14, 28):
        for rd in range(2):
            n = 2 * ks + rd
            its = wd_read(n, lambda dt, ks=ks, rd=rd: a(JIT + 4 * ((2 * (ks - 14) + dt) % NJ) + 2 * rd, 2))
            for dt in range(2): G2.put(4 * ks - 6 + 2 * rd + dt, its[dt])
    for n in range(NH_C, 56):
        if n < NHR: g = (n - NH_C)
        else: g = max(4 * ((n - NHR) >> 1) + 4, n - NH_C)
        G2.put(g, hload(n))
    G2.put(cfg.g2_arrive, [WaitTag('vm', "yst"), Ins("s_barrier"), Ins(f"buffer_atomic_add {v(T0)}, {v(VFY)}, {WS}, 0 offen sc1")])
    qd = [f"""s_lshl_b32 s3, {sW}, 11
              s_add_u32 m0, s3, {QL}""", f"""s_lshl_b32 s3, {sI2}, 2
              s_add_u32 s3, s3, {sW}""", f"""s_mul_i32 s3, s3, {16*896}
              s_lshl_b32 {sSO}, {sCT}, 7""", f"s_add_u32 {sSO}, {sSO}, s3"]
    qd += [Ins(f"buffer_load_dwordx4 {v(VQ[j])}, {X}, {sSO} offen offset:{1024*j} lds", "qy") for j in range(2)]
    qd += [f"buffer_load_dword {v(VG)}, {v(VGA)}, {WS}, 0 offen sc1"]
    G2.spread(qd, cfg.g2_arrive + 2, cfg.g2_arrive + 9)
    G2.put(cfg.g2_poll, Ins(f"buffer_load_dword {v(VPV)}, {v(VPY)}, {WS}, 0 offen sc1"))
    G2.put(cfg.g2_chk, poll_check("y", v(VPV), v(VPY), WS, 32))
    yd = [f"""s_lshl_b32 s3, {sW}, 11
              s_add_u32 m0, s3, {YL}""", f"""s_lshl_b32 s3, {sCT}, 2
              s_add_u32 s3, s3, {sW}""", f"""s_lshl_b32 s3, s3, 16
              s_lshl_b32 {sSO}, {sI2}, 7""", f"""s_add_u32 {sSO}, {sSO}, s3
              s_add_u32 {sSO}, {sSO}, {WS_YT}"""]
    yd += [Ins(f"buffer_load_dwordx4 {v(VY[j])}, {WS}, {sSO} offen offset:{1024*j} sc1 lds", "qy") for j in range(2)]
    G2.spread(yd, cfg.g2_chk + 1, cfg.g2_chk + 7)
    EW = 18; ER = [19, 20, 21]; EY = 22; EQ = [23, 24, 25, 26]; EO = 27
    red_slot = [None, 2, 3, 0]
    ea = [f"v_add_u32 {v(EW)}, {sM0P}, {v(V16)}"]
    for sg in range(1, 4):
        ea += [f"s_xor_b32 s3, {sW}, {sg}", f"s_mul_i32 s3, s3, {PIECE}", f"s_add_u32 s3, s3, {red_slot[sg]*SLOT}", f"v_add_u32 {v(ER[sg-1])}, s3, {v(V16)}"]
    ea += f"""s_lshr_b32 {sT0}, {sW}, 1
    v_bfe_u32 {v(T1)}, {v(VL)}, 2, 2
    v_lshrrev_b32 {v(T2)}, 5, {v(VL)}
    v_lshl_add_u32 {v(T1)}, {v(T2)}, 2, {v(T1)}
    v_lshlrev_b32 {v(T1)}, 7, {v(T1)}
    v_bfe_u32 {v(T3)}, {v(VL)}, 1, 1
    v_lshl_add_u32 {v(T1)}, {v(T3)}, 6, {v(T1)}
    v_bfe_u32 {v(T3)}, {v(VL)}, 4, 1
    v_lshl_add_u32 {v(T1)}, {v(T3)}, 4, {v(T1)}
    v_and_b32 {v(T3)}, 1, {v(VL)}
    v_lshl_add_u32 {v(T1)}, {v(T3)}, 3, {v(T1)}
    s_lshl_b32 s3, {sT0}, 12
    s_lshl_b32 {sT1}, {sKH}, 5
    s_add_u32 s3, s3, {sT1}
    s_add_u32 s3, s3, {YL}
    v_add_u32 {v(EY)}, s3, {v(T1)}
    v_and_b32 {v(T1)}, 31, {v(VL)}
    v_bfe_u32 {v(T3)}, {v(VL)}, 1, 3
    s_lshl_b32 s3, {sT0}, 2
    v_xor_b32 {v(T3)}, s3, {v(T3)}
    v_lshlrev_b32 {v(T3)}, 4, {v(T3)}
    v_lshl_add_u32 {v(T3)}, {v(T1)}, 7, {v(T3)}
    v_lshl_add_u32 {v(T3)}, {v(T2)}, 3, {v(T3)}
    s_lshl_b32 s3, {sKH}, 12
    s_add_u32 s3, s3, {QL}
    v_add_u32 {v(EQ[0])}, s3, {v(T3)}
    v_xor_b32 {v(EQ[1])}, 16, {v(EQ[0])}
    v_xor_b32 {v(EQ[2])}, 32, {v(EQ[0])}
    v_xor_b32 {v(EQ[3])}, 48, {v(EQ[0])}
    v_mul_u32_u24 {v(T1)}, 896, {v(T1)}
    v_lshl_add_u32 {v(EO)}, {v(T2)}, 4, {v(T1)}
    s_lshl_b32 s3, {sI2}, 1
    s_add_u32 s3, s3, {sKH}
    s_mul_i32 {sSO2}, s3, {32*896}
    s_lshl_b32 s3, {sCT}, 1
    s_add_u32 s3, s3, {sT0}
    s_lshl_b32 s3, s3, 6
    s_add_u32 {sSO2}, {sSO2}, s3""".split("\n")
    G2.spread(ea, cfg.g2_chk + 8, 108)
    check_m0(G2)
    G2.emit(P)
    if cfg.verbose: print("G2 gap costs", G2.costs())
    P.add(stamp("g2end"))
    B = 48; R1 = 64; YY = 112; QQ = 120; O = 128
    for sg in range(1, 4):
        off = red_slot[sg] * SLOT
        for J in range(4):
            if off + 1024 * J < 65536: P.e(f"ds_write_b128 {v(EW)}, {a(GACC+16*sg+4*J,4)} offset:{off+1024*J}")
            else:
                if J == 0: P.e(f"v_add_u32 {v(T1)}, {off}, {v(EW)}")
                P.e(f"ds_write_b128 {v(T1)}, {a(GACC+16*sg+4*J,4)} offset:{1024*J}")
    for k in range(16): P.e(f"v_accvgpr_read_b32 {v(B+k)}, {a(GACC+k)}")
    P.e(f"v_sub_f32 {v(T2)}, 1.0, {v(VG)}")
    P.vmwait("qy")
    P.e("s_waitcnt lgkmcnt(0)\n s_barrier")
    for J in range(4):
        P.e(f"ds_read_b64_tr_b16 {v(YY+2*J,2)}, {v(EY)} offset:{1024*J}")
        P.e(f"ds_read_b64 {v(QQ+2*J,2)}, {v(EQ[J])}")
    for J in range(4):
        for sg in range(1, 4): P.e(f"ds_read_b128 {v(R1+16*(sg-1)+4*J,4)}, {v(ER[sg-1])} offset:{1024*J}")
    TT = 136
    for J in range(4):
        for i in range(4):
            src = 2 * J + (i >> 1)
            un = (lambda d, s_: f"v_lshlrev_b32 {d}, 16, {s_}") if i % 2 == 0 else (lambda d, s_: f"v_and_b32 {d}, {sMASK}, {s_}")
            P.e(un(v(TT + 4 * J + i), v(YY + src))); P.e(un(v(TT + 16 + i), v(QQ + src)))
        for i in range(4): P.e(f"v_mul_f32 {v(TT+4*J+i)}, {v(TT+4*J+i)}, {v(TT+16+i)}")
        for i in range(4): P.e(f"v_mul_f32 {v(TT+4*J+i)}, {v(TT+4*J+i)}, {v(VG)}")
    for J in range(4):
        for sg in range(3):
            for i in range(4): P.e(f"v_add_f32 {v(B+4*J+i)}, {v(B+4*J+i)}, {v(R1+16*sg+4*J+i)}")
        for i in range(4): P.e(f"v_fmac_f32 {v(TT+4*J+i)}, {v(B+4*J+i)}, {v(T2)}")
        for i in range(2): P.e(f"v_cvt_pk_bf16_f32 {v(O+2*J+i)}, {v(TT+4*J+2*i)}, {v(TT+4*J+2*i+1)}")
        if J % 2 == 1:
            o = O + 2 * J - 2
            P.e(f"v_permlane32_swap_b32 {v(o)}, {v(o+2)}\n v_permlane32_swap_b32 {v(o+1)}, {v(o+3)}")
            P.e(f"buffer_store_dwordx4 {v(o,4)}, {v(EO)}, {OUT}, {sSO2} offen offset:{32*(J>>1)}")
    if cfg.stamps: emit_stamps(P)
    P.e("s_endpgm")

def check_m0(G):
    flat = []
    def fl(it):
        if isinstance(it, str):
            for l in it.split("\n"):
                if l.strip(): flat.append(Ins(l.strip()))
        elif isinstance(it, (list, tuple)):
            for x in it: fl(x)
        elif isinstance(it, Ins): flat.append(it)
    for f in G.f:
        for it in f: fl(it)
    last_off = None
    for it in flat:
        if it.kind == 'salu' and ('s', 'm0') in it.w: last_off = -1024
        if it.kind == 'dma':
            m = re.search(r'offset:(\d+)', it.text); off = int(m.group(1)) if m else 0
            assert last_off is not None and off == last_off + 1024, ("m0 group interleaved", it.text)
            last_off = off

def emit_stamps(P):
    P.e("s_waitcnt vmcnt(0)")
    i = NSTAMP
    P.e(f"s_memtime s[{sSTAMP+2*i}:{sSTAMP+2*i+1}]\n s_waitcnt lgkmcnt(0)")
    for k in range(NSTAMP + 1):
        P.e(f"s_sub_u32 s3, s{sSTAMP+2*k}, s84_T0".replace("s84_T0", "s85")); P.e(f"v_mov_b32 v{200+k}, s3")
    P.e(f"""s_lshl_b32 s3, s2, 2
    s_add_u32 s3, s3, {sW}
    s_lshl_b32 s3, s3, 6
    s_add_u32 s3, s3, {WS_STAMP}
    v_mov_b32 v208, s52
    v_mov_b32 v209, s53
    v_mov_b32 v2, 0
    s_mov_b64 exec, 1
    buffer_store_dwordx4 v[200:203], v2, {WS}, s3 offen
    buffer_store_dwordx4 v[204:207], v2, {WS}, s3 offen offset:16
    buffer_store_dwordx2 v[208:209], v2, {WS}, s3 offen offset:32""")

def gen_aux(P):
    K, V_, SH, GW = WG, WU, WD, SK
    sA = "s68"; sTAU = "s69"; sLO = "s70"; sHI = "s71"; sUB = "s72"
    VL = 1; VB = 2; VB2 = 3; VN = 4; VS = 5; VTW = 6; VTR = 7; VST = 8; T0 = 9; T1 = 10; VF = 11
    SET = [12, 104]; PP = 196; KS = 206; VV = 214; OO = 222; RB = 12
    P.e(f"""
    s_sub_u32 {sA}, s2, 224
    v_and_b32 {v(T0)}, 7, {v(VL)}
    v_lshrrev_b32 {v(T1)}, 3, {v(VL)}
    v_mul_u32_u24 {v(VB)}, {8*896}, {v(T1)}
    v_lshl_add_u32 {v(VB)}, {v(T0)}, 4, {v(VB)}
    s_mul_i32 s3, {sA}, {64*896}
    v_add_u32 {v(VB)}, s3, {v(VB)}
    v_add_u32 {v(VB2)}, {5*896}, {v(VB)}
    v_add_u32 {v(VN)}, {-3*896}, {v(VB)}
    v_lshlrev_b32 {v(VS)}, 6, {v(T0)}
    v_sub_u32 {v(VTW)}, 7, {v(T1)}
    v_xor_b32 {v(VTW)}, {v(VTW)}, {v(T0)}
    v_lshlrev_b32 {v(VTW)}, 4, {v(VTW)}
    v_lshl_add_u32 {v(VTW)}, {v(T0)}, 10, {v(VTW)}
    s_lshl_b32 s3, {sW}, 13
    v_add_u32 {v(VTW)}, s3, {v(VTW)}
    v_lshlrev_b32 {v(VTR)}, 4, {v(VL)}
    v_add_u32 {v(VTR)}, s3, {v(VTR)}
    v_lshlrev_b32 {v(VST)}, 12, {v(T1)}
    v_lshl_add_u32 {v(VST)}, {v(T0)}, 4, {v(VST)}
    s_mov_b32 {sLO}, 0x05040100
    s_mov_b32 {sHI}, 0x07060302
    s_mov_b32 {sMASK}, 0xffff0000
    s_mov_b32 {sNL2E}, 0xbfb8aa3b
    s_sub_u32 {sUB}, 31, {sA}
    s_lshl_b32 {sUB}, {sUB}, 7
    s_add_u32 {sUB}, {sUB}, {WS_UR}
    s_waitcnt lgkmcnt(0)
    """)
    srd(P, K, 42, NQ); srd(P, V_, 44, NQ); srd(P, SH, 46, 3584); srd(P, X, 40, NQ); srd(P, GW, 60, 896)
    srd(P, WS, 66, WS_SIZE); srd(P, DBG, 64, 256)
    def rowload(dst, srd_, rho, so):
        if rho < 0: return f"buffer_load_dwordx4 {v(dst,4)}, {v(VN)}, {srd_}, {so} offen offset:{896*(rho+3)}"
        if rho < 5: return f"buffer_load_dwordx4 {v(dst,4)}, {v(VB)}, {srd_}, {so} offen offset:{896*rho}"
        return f"buffer_load_dwordx4 {v(dst,4)}, {v(VB2)}, {srd_}, {so} offen offset:{896*(rho-5)}"
    def loads(S_, tau_expr):
        P.e(tau_expr)
        P.e(f"s_lshl_b32 {sSO}, {sTAU}, 7\n s_lshl_b32 {sSO2}, {sTAU}, 9")
        for k in range(4): P.e(f"buffer_load_dwordx4 {v(S_+76+4*k,4)}, {v(VS)}, {SH}, {sSO2} offen offset:{16*k}")
        for rho in range(-3, 8): P.e(rowload(S_ + 4 * (rho + 3), K, rho, sSO))
        for rho in range(8): P.e(rowload(S_ + 44 + 4 * rho, V_, rho, sSO))
    def compute(S_, tau_expr):
        for i in range(8):
            p = i >> 1; sel = sHI if i & 1 else sLO
            kreg = lambda rho: S_ + 4 * (rho + 3) + p
            for rho in range(-2, 8): P.e(f"v_perm_b32 {v(PP+rho+2)}, {v(kreg(rho-1))}, {v(kreg(rho))}, {sel}")
            for rho in range(8): P.e(f"v_dot2_f32_bf16 {v(KS+rho)}, {v(PP+rho+2)}, {v(S_+76+2*i)}, 0")
            for rho in range(8):
                src = v(S_ + 44 + 4 * rho + p)
                P.e(f"v_and_b32 {v(VV+rho)}, {sMASK}, {src}" if i & 1 else f"v_lshlrev_b32 {v(VV+rho)}, 16, {src}")
            for rho in range(8): P.e(f"v_dot2_f32_bf16 {v(KS+rho)}, {v(PP+rho)}, {v(S_+76+2*i+1)}, {v(KS+rho)}")
            for rho in range(8): P.e(f"v_mul_f32 {v(VV+rho)}, {v(VV+rho)}, {v(KS+rho)}")
            o = OO + 4 * (i & 1)
            for e_ in range(4): P.e(f"v_cvt_pk_bf16_f32 {v(o+e_)}, {v(VV+7-2*e_)}, {v(VV+6-2*e_)}")
            P.e(f"ds_write_b128 {v(VTW)}, {v(o,4)} offset:{128*i}")
        P.e(tau_expr)
        P.e(f"s_lshl_b32 {sSO}, {sTAU}, 18\n s_add_u32 {sSO}, {sSO}, {sUB}\n s_waitcnt lgkmcnt(0)")
        for j in range(8):
            P.e(f"v_xor_b32 {v(T0)}, {16*j}, {v(VTR)}\n ds_read_b128 {v(S_+4*j,4)}, {v(T0)} offset:{1024*j}")
        for j in range(8):
            P.e(f"buffer_store_dwordx4 {v(S_+4*j,4)}, {v(VST)}, {WS}, {sSO} offen sc1")
            if j < 7: P.e(f"s_add_u32 {sSO}, {sSO}, 32768")
    t1 = f"s_mov_b32 {sTAU}, {sW}"; t2 = f"s_add_u32 {sTAU}, {sW}, 4"
    loads(SET[0], t1)
    P.e(f"""
    s_lshl_b32 s3, {sA}, 8
    v_lshlrev_b32 {v(T0)}, 13, {v(VL)}
    v_add_u32 {v(T0)}, s3, {v(T0)}
    v_mov_b32 {v(T1)}, -16
    v_cmp_gt_u32 vcc, 2, {v(VL)}
    v_cndmask_b32 {v(T0)}, {v(T1)}, {v(T0)}, vcc
    v_mov_b32 {v(231)}, 0
    buffer_store_dword {v(231)}, {v(T0)}, {WS}, 0 offen sc1
    v_mov_b32 {v(VF)}, 0
    v_cmp_eq_u32 vcc, 0, v0
    v_cndmask_b32 {v(VF)}, {v(T1)}, {v(VF)}, vcc
    s_cmp_eq_u32 {sW}, 3
    s_cbranch_scc1 L_gate
    """)
    Pa = Prog(); Pa.items = list(P.items); n0 = len(P.items)
    loads(SET[1], t2)
    compute(SET[0], t1)
    compute(SET[1], t2)
    P.e("s_branch L_auxdone")
    tail_a = P
    Pg = Pa
    P_save = P
    def with_prog(pg, fn):
        nonlocal P
        old = P; P = pg; fn(); P = old
    QB = 104; GWB = 232; AC = 232 + 16
    def gate():
        P.e("L_gate:")
        def qloads(tau):
            b = QB + 32 * (tau % 4)
            P.e(f"s_mov_b32 {sSO}, {128*tau}")
            P.e(f"buffer_load_dwordx4 {v(GWB+4*(tau%4),4)}, {v(T0)}, {GW}, {sSO} offen")
            for rho in range(8): P.e(rowload(b + 4 * rho, X, rho, sSO))
        P.e(f"v_and_b32 {v(T0)}, 7, {v(VL)}\n v_lshlrev_b32 {v(T0)}, 4, {v(T0)}")
        for tau in range(2): qloads(tau)
        P.e(f"v_mov_b32 {v(230)}, {v(T0)}")
        compute_g()
        P.e(f"v_mov_b32 {v(T0)}, {v(230)}")
        for tau in range(2, 4): qloads(tau)
        for tau in range(7):
            b = QB + 32 * (tau % 4)
            for p in range(4):
                for rho in range(8):
                    c = '0' if (tau == 0 and p == 0) else v(AC + rho)
                    P.e(f"v_dot2_f32_bf16 {v(AC+rho)}, {v(b+4*rho+p)}, {v(GWB+4*(tau%4)+p)}, {c}")
            if tau + 4 < 7: qloads(tau + 4)
        for mod in ("row_half_mirror", "quad_perm:[3,2,1,0]", "quad_perm:[1,0,3,2]"):
            for rho in range(8): P.e(f"v_add_f32_dpp {v(AC+rho)}, {v(AC+rho)}, {v(AC+rho)} {mod} row_mask:0xf bank_mask:0xf")
        P.e("s_mov_b32 s74, 0xaaaaaaaa\n s_mov_b32 s75, 0xaaaaaaaa")
        for k in range(4): P.e(f"v_cndmask_b32 {v(AC+k)}, {v(AC+2*k)}, {v(AC+2*k+1)}, s[74:75]")
        P.e("s_mov_b32 s74, 0xcccccccc\n s_mov_b32 s75, 0xcccccccc")
        for k in range(2): P.e(f"v_cndmask_b32 {v(AC+k)}, {v(AC+2*k)}, {v(AC+2*k+1)}, s[74:75]")
        P.e("s_mov_b32 s74, 0xf0f0f0f0\n s_mov_b32 s75, 0xf0f0f0f0")
        P.e(f"""v_cndmask_b32 {v(AC)}, {v(AC)}, {v(AC+1)}, s[74:75]
        v_mul_f32 {v(AC)}, 0xbfb8aa3b, {v(AC)}
        v_exp_f32 {v(AC)}, {v(AC)}
        v_add_f32 {v(AC)}, 1.0, {v(AC)}
        v_rcp_f32 {v(AC)}, {v(AC)}
        s_lshl_b32 s3, {sA}, 8
        s_add_u32 s3, s3, {WS_G}
        v_lshlrev_b32 {v(T0)}, 2, {v(VL)}
        buffer_store_dword {v(AC)}, {v(T0)}, {WS}, s3 offen sc1""")
    def compute_g(): compute(SET[0], t1)
    with_prog(Pg, gate)
    return n0, Pg, VF

def build():
    global slow_paths, stamp_names
    slow_paths = []; stamp_names = []
    pro = Prog()
    pro.e(f"""
    s_load_dwordx16 s[40:55], s[0:1], 0
    s_load_dwordx8 s[56:63], s[0:1], 64
    s_load_dwordx4 s[64:67], s[0:1], 96
    s_cmp_lt_u32 s2, 256
    s_cbranch_scc1 L_go
    s_endpgm
    L_go:
    """)
    if cfg.stamps: pro.e("s_memtime s[84:85]\n s_waitcnt lgkmcnt(0)\n s_mov_b32 s85, s84\n s_memrealtime s[52:53]")
    pro.e(f"""
    v_lshrrev_b32 v2, 6, v0
    v_and_b32 v1, 63, v0
    v_readfirstlane_b32 {sW}, v2
    """)
    if cfg.code_pf:
        pro.e(f"""
        s_getpc_b64 s[38:39]
        L_pc:
        s_lshr_b32 s3, s2, 3
        s_lshl_b32 s3, s3, 2
        s_add_u32 s3, s3, {sW}
        s_mul_i32 s3, s3, {cfg.pf_n}
        v_min_u32 v2, {cfg.pf_n-1}, v1
        v_add_u32 v2, s3, v2
        v_min_u32 v2, {cfg.pf_last}, v2
        v_lshlrev_b32 v2, 7, v2
        v_mov_b32 v3, s39
        v_add_co_u32 v2, vcc, s38, v2
        v_addc_co_u32 v3, vcc, 0, v3, vcc
        global_load_dword v255, v[2:3], off
        """)
    pro.e("s_cmp_ge_u32 s2, 224\n s_cbranch_scc1 L_aux")
    Pm = Prog(); Pm.items = list(pro.items); npro = len(pro.items)
    gen_main(Pm)
    main = Pm.finalize(cfg.verbose)
    Px = Prog(); Px.items = list(pro.items); Px.e("L_aux:")
    n0, Pg, VF = gen_aux(Px)
    ax = Px.finalize(); gx = Pg.finalize()
    cut = lambda lst, lab: lst[[i for i, x in enumerate(lst) if x.kind == 'label' and x.text == lab][0]:]
    tail = f"""L_auxdone:
    s_waitcnt vmcnt(0)
    s_barrier
    v_mov_b32 v9, 1
    buffer_atomic_add v9, v{VF}, {DBG}, 0 offen sc1
    s_endpgm"""
    body = text_of(main) + "\n" + emit_slow_paths() + "\n" + text_of(cut(ax, "L_aux:")) + "\n" + text_of(cut(gx, "L_gate:")) + "\n" + tail + "\nL_codeend:"
    hdr = open("gated_mix__ssm_conv_h3__swiglu_ffn__prompt.s.ref").read().split("; Override launch")[0] if cfg.header else ""
    pf = ""
    return f"""{hdr}; @launch grid=(256,1,1) block=(256,1,1) lds={LDS_BYTES}
.amdgcn_target "amdgcn-amd-amdhsa--gfx950"
.text
.globl {KNAME}
.p2align 8
.type {KNAME},@function
{KNAME}:
{body}
{pf}.section .rodata,"a"
.p2align 6
.amdhsa_kernel {KNAME}
  .amdhsa_next_free_vgpr 512
  .amdhsa_next_free_sgpr 102
  .amdhsa_accum_offset 256
  .amdhsa_group_segment_fixed_size 0
  .amdhsa_kernarg_size 112
  .amdhsa_user_sgpr_count 2
  .amdhsa_user_sgpr_kernarg_segment_ptr 1
  .amdhsa_system_sgpr_workgroup_id_x 1
.end_amdhsa_kernel
"""

cfg.verbose = False; cfg.header = True
cfg.g_arrive = 50; cfg.g_poll = 92; cfg.g_chk = 112; cfg.nh_c = 16
cfg.g2_arrive = 20; cfg.g2_poll = 44; cfg.g2_chk = 60
if __name__ == "__main__":
    out = sys.argv[1]
    for kv in sys.argv[2:]:
        k_, v_ = kv.split("=")
        setattr(cfg, k_, eval(v_))
    import subprocess, os
    cfg.pf_n = 1; cfg.pf_last = 100
    vb = cfg.verbose; cfg.verbose = False
    open(out, "w").write(build())
    subprocess.check_call(["clang", "-x", "assembler", "-target", "amdgcn-amd-amdhsa", "-mcpu=gfx950", "-c", out, "-o", "_gen.o"])
    sym = subprocess.check_output(["llvm-objdump", "-t", "_gen.o"], text=True)
    ad = {l.split()[-1]: int(l.split()[0], 16) for l in sym.splitlines() if " L_" in l}
    if cfg.code_pf:
        cfg.pf_last = (ad["L_codeend"] - ad["L_pc"] - 64) // 128
        cfg.pf_n = (cfg.pf_last + 128) // 128
    cfg.verbose = vb
    open(out, "w").write(build())
    print("code bytes", ad["L_codeend"], "aux at", ad["L_aux"])
    print("stamps:", stamp_names)
```

```python
import sys, math
from fw import *
KNAME = "gated_mix__ssm_conv_h3__swiglu_ffn__prompt_kernel"

class Cfg:
    stamps = False
    PD = 4
    sc_h_load = "sc1"
    code_pf = True
cfg = Cfg()

WS_FLAG = 0x0; WS_G = 0x8000; WS_UR = 0x100000; WS_YT = 0x300000; WS_H = 0x500000
WS_STAMP = 0xC00000; WS_SIZE = 0xD00000
NQ = 1835008; NW = 1605632
SLOT = 28672; PIECE = 7168
HC = 4 * SLOT; CPY = 4160; HCCH = 4 * CPY
UL = HC + 2 * HCCH; UCH = 4608
LDS_BYTES = 163840
YL = HC; QL = HC + 8192
assert UL + 2 * UCH <= LDS_BYTES
X, WG, WU, WD, SK, WS, OUT, DBG = ["s[%d:%d]" % (b, b + 3) for b in (4, 8, 12, 16, 20, 24, 28, 32)]
sW = "s36"; sT0 = "s37"; sT1 = "s38"; sT2 = "s39"
sM0P = "s68"
sXB = "s69"
sWB = "s70"
sDB = "s71"
sHS = "s72"
sHL = ["s73", "s74"]
sNL2E = "s75"
sSO = "s76"; sSO2 = "s77"
sD = "s78"; sI2 = "s79"; sCT = "s80"; sKH = "s81"; sCNT = "s82"; sM = "s83"; sMASK = "s84"
STAMP_REGS = [86, 88, 90, 92, 94, 96, 40, 42, 44, 46, 54, 56, 58, 60, 62, 64, 66, 48, 50]
NSTAMP = len(STAMP_REGS)

def v(i, n=1): return "v%d" % i if n == 1 else "v[%d:%d]" % (i, i + n - 1)
def a(i, n=1): return "a%d" % i if n == 1 else "a[%d:%d]" % (i, i + n - 1)

stamp_names = []
def stamp(name):
    if not cfg.stamps: return []
    i = len(stamp_names); stamp_names.append(name)
    assert i < NSTAMP
    return [Ins("s_memtime s[%d:%d]" % (STAMP_REGS[i], STAMP_REGS[i] + 1))]

slow_paths = []
def poll_check(name, vdst, vaddr, srd, want):
    slow_paths.append((name, vdst, vaddr, srd, want))
    return [Ins("v_cmp_gt_u32 vcc, %d, %s" % (want, vdst)), Ins("s_cbranch_vccnz L_slow_%s" % name), Ins("L_back_%s:" % name)]
def emit_slow_paths():
    t = []
    for name, vdst, vaddr, srd, want in slow_paths:
        t += ["L_slow_%s:" % name, "s_mov_b32 %s, 0" % sCNT, "L_spin_%s:" % name,
              "buffer_load_dword %s, %s, %s, 0 offen sc1" % (vdst, vaddr, srd),
              "s_add_u32 %s, %s, 1" % (sCNT, sCNT), "s_waitcnt vmcnt(0)",
              "v_cmp_gt_u32 vcc, %d, %s" % (want, vdst),
              "s_cmp_gt_u32 %s, 0x40000" % sCNT, "s_cbranch_scc1 L_back_%s" % name,
              "s_cbranch_vccz L_back_%s" % name, "s_sleep 2", "s_branch L_spin_%s" % name]
    return "\n".join(l if l.endswith(":") else "    " + l for l in t)

def srd(P, reg, lo, size):
    b = int(reg[2:reg.index(':')])
    P.e("s_mov_b32 s%d, s%d" % (b, lo)); P.e("s_mov_b32 s%d, s%d" % (b + 1, lo + 1))
    P.e("s_mov_b32 s%d, 0x%x" % (b + 2, size)); P.e("s_mov_b32 s%d, 0x20000" % (b + 3))

def gen_main(P):
    PD = cfg.PD
    VL = 1
    VXa = [2, 3, 4]; VWg = [5, 6]; VWu = [7, 8]; VXb = [9, 10, 11, 12]; VD = [13, 14, 15, 16]
    XR = [[17, 18, 19, 20], [21, 22, 23, 24]]; WR = [25, 26, 27]; DR = [[28, 29], [30, 31]]
    V16 = 32; T0 = 33; T1 = 34; T2 = 35; T3 = 36
    VPOLL = 37; VFLAG = 38; VPV = 39; CA = 40; CB = 41; VHW = 42; VZ = 44
    ACC = [48, 64, 80, 96]; XRING = 112; NXR = 6; ET = 136; PK = [140, 144]
    HR = 160
    P.e(f"""
    s_and_b32 {sT0}, s2, 7
    s_lshr_b32 {sT1}, s2, 3
    s_mul_i32 {sT2}, {sT1}, 37
    s_lshr_b32 {sT2}, {sT2}, 8
    s_mul_i32 s3, {sT2}, 7
    s_sub_u32 {sCT}, {sT1}, s3
    s_lshl_b32 s3, {sT0}, 2
    s_add_u32 {sI2}, s3, {sT2}
    s_lshr_b32 s3, {sT0}, 2
    s_lshl_b32 s3, s3, 2
    s_add_u32 {sT2}, s3, {sT2}
    s_and_b32 {sT0}, {sT0}, 3
    s_mul_i32 {sT1}, {sT0}, 7
    s_add_u32 {sT1}, {sT1}, {sCT}
    """)
    P.e(f"""
    s_mul_i32 {sM0P}, {sW}, {PIECE}
    s_mul_i32 {sXB}, {sT2}, {256*896}
    s_add_u32 {sXB}, {sXB}, {sM0P}
    s_mul_i32 {sWB}, {sW}, {16*3584}
    s_lshl_b32 s3, {sT1}, 7
    s_add_u32 {sWB}, {sWB}, s3
    """)
    P.e(f"""
    v_lshrrev_b32 {v(T0)}, 3, {v(VL)}
    v_and_b32 {v(T1)}, 7, {v(VL)}
    v_lshrrev_b32 {v(T2)}, 4, {v(VL)}
    s_lshl_b32 s3, {sW}, 2
    v_add_u32 {v(T3)}, s3, {v(T2)}
    v_and_b32 {v(T3)}, 7, {v(T3)}
    v_xor_b32 {v(T3)}, {v(T1)}, {v(T3)}
    v_lshlrev_b32 {v(T3)}, 4, {v(T3)}
    v_mul_u32_u24 {v(VXa[0])}, 896, {v(T0)}
    v_add_u32 {v(VXa[0])}, {v(VXa[0])}, {v(T3)}
    v_add_u32 {v(VXa[1])}, {28672-1024}, {v(VXa[0])}
    v_add_u32 {v(VXa[2])}, {2*(28672-1024)}, {v(VXa[0])}
    v_and_b32 {v(T2)}, 1, {v(T2)}
    v_lshlrev_b32 {v(T2)}, 1, {v(T2)}
    v_xor_b32 {v(T3)}, {v(T1)}, {v(T2)}
    v_lshlrev_b32 {v(T3)}, 4, {v(T3)}
    v_mul_u32_u24 {v(VWg[0])}, 3584, {v(T0)}
    v_add_u32 {v(VWg[0])}, {v(VWg[0])}, {v(T3)}
    v_add_u32 {v(VWg[1])}, {28672-1024}, {v(VWg[0])}
    v_xor_b32 {v(VWu[0])}, 64, {v(VWg[0])}
    v_add_u32 {v(VWu[1])}, {28672-1024}, {v(VWu[0])}
    """)
    P.e("s_waitcnt lgkmcnt(0)")
    srd(P, X, 40, NQ); srd(P, WG, 54, NW); srd(P, WU, 56, NW)

    def dma_item(i):
        sl = (i % 5) * SLOT; tag = "it%d" % i; L = []
        if i < 7:
            L.append(f"s_add_u32 m0, {sM0P}, {sl}\n s_add_u32 {sSO}, {sXB}, {128*i}")
            for rt in range(3): L.append(Ins(f"buffer_load_dwordx4 {v(VXa[rt])}, {X}, {sSO} offen offset:{1024*rt} lds", tag))
            L.append(f"s_add_u32 m0, {sM0P}, {sl+3072}\n s_add_u32 {sSO}, {sWB}, {64*3584*i}")
            for j in range(2): L.append(Ins(f"buffer_load_dwordx4 {v(VWg[j])}, {WG}, {sSO} offen offset:{1024*j} lds", tag))
            L.append(f"s_add_u32 m0, {sM0P}, {sl+5120}")
            for j in range(2): L.append(Ins(f"buffer_load_dwordx4 {v(VWu[j])}, {WU}, {sSO} offen offset:{1024*j} lds", tag))
        else:
            T = i - 4
            L.append(f"s_add_u32 m0, {sM0P}, {sl}\n s_add_u32 {sSO}, {sXB}, {28672*T-3072}")
            for k in range(4): L.append(Ins(f"buffer_load_dwordx4 {v(VXb[k])}, {X}, {sSO} offen offset:{1024*k} lds", tag))
            L.append(f"s_add_u32 m0, {sM0P}, {sl+4096}\n s_add_u32 {sSO}, {sXB}, {28672*T-3072+512}")
            for k in range(3): L.append(Ins(f"buffer_load_dwordx4 {v(VXb[k])}, {X}, {sSO} offen offset:{1024*k} lds", tag))
        return L
    for i in range(5): P.add(dma_item(i))
    P.add(stamp("issued"))
    srd(P, WD, 58, NW); srd(P, WS, 66, WS_SIZE); srd(P, OUT, 62, NQ); srd(P, DBG, 64, 256)
    P.e(f"""
    s_lshr_b32 s3, {sW}, 1
    s_and_b32 {sKH}, {sW}, 1
    s_lshl_b32 {sM}, s2, 1
    s_add_u32 {sM}, {sM}, s3
    s_lshl_b32 s3, {sM}, 12
    s_add_u32 s20, s48, s3
    s_addc_u32 s21, s49, 0
    s_mov_b32 s22, 4096
    s_mov_b32 s23, 0x20000
    s_lshl_b32 s3, s2, 2
    s_load_dword {sD}, s[50:51], s3
    s_mov_b32 {sNL2E}, 0xbfb8aa3b
    s_mov_b32 {sMASK}, 0xffff0000
    s_mul_i32 {sHS}, {sT2}, {8*112}
    s_lshl_b32 s3, {sT1}, 2
    s_add_u32 {sHS}, {sHS}, s3
    s_add_u32 {sHS}, {sHS}, {sW}
    s_lshl_b32 {sHS}, {sHS}, 10
    s_add_u32 {sHS}, {sHS}, {WS_H}
    s_mul_i32 {sDB}, {sW}, {448*896}
    s_lshl_b32 s3, {sCT}, 7
    s_add_u32 {sDB}, {sDB}, s3
    v_lshlrev_b32 {v(V16)}, 4, {v(VL)}
    """)
    P.e(f"""
    s_lshl_b32 s3, {sT2}, 2
    s_add_u32 s3, s3, {sT0}
    s_lshl_b32 s3, s3, 8
    v_mov_b32 {v(VFLAG)}, s3
    v_mov_b32 {v(T3)}, -16
    v_cmp_eq_u32 vcc, 0, v0
    v_cndmask_b32 {v(VFLAG)}, {v(T3)}, {v(VFLAG)}, vcc
    v_mov_b32 {v(VPOLL)}, 0
    """)
    for k in range(4): P.e(f"v_add_u32 {v(VXb[k])}, {3072-896*k}, {v(VXa[0])}")
    P.e(f"""
    v_lshlrev_b32 {v(T3)}, 1, {v(T2)}
    v_xor_b32 {v(T3)}, {v(T1)}, {v(T3)}
    v_lshlrev_b32 {v(T3)}, 4, {v(T3)}
    v_mul_u32_u24 {v(VD[0])}, 896, {v(T0)}
    v_add_u32 {v(VD[0])}, {v(VD[0])}, {v(T3)}
    """)
    for k in range(1, 4): P.e(f"v_add_u32 {v(VD[k])}, {6144*k}, {v(VD[0])}")
    P.e(f"""
    v_and_b32 {v(T0)}, 31, {v(VL)}
    v_lshrrev_b32 {v(T1)}, 3, {v(T0)}
    v_mul_u32_u24 {v(T1)}, {PIECE}, {v(T1)}
    v_and_b32 {v(T2)}, 7, {v(T0)}
    v_lshl_add_u32 {v(T1)}, {v(T2)}, 7, {v(T1)}
    v_lshrrev_b32 {v(T2)}, 1, {v(T0)}
    v_and_b32 {v(T2)}, 7, {v(T2)}
    v_lshrrev_b32 {v(T3)}, 5, {v(VL)}
    v_xor_b32 {v(T2)}, {v(T2)}, {v(T3)}
    v_lshl_add_u32 {v(XR[0][0])}, {v(T2)}, 4, {v(T1)}
    """)
    for k in range(1, 4): P.e(f"v_xor_b32 {v(XR[0][k])}, {32*k}, {v(XR[0][0])}")
    for k in range(4): P.e(f"v_add_u32 {v(XR[1][k])}, {3*SLOT}, {v(XR[0][k])}")
    P.e(f"""
    v_bfe_u32 {v(T0)}, {v(VL)}, 2, 2
    v_lshl_add_u32 {v(T1)}, {v(T3)}, 3, {v(T0)}
    v_lshlrev_b32 {v(T1)}, 7, {v(T1)}
    v_bfe_u32 {v(T2)}, {v(VL)}, 1, 1
    v_lshl_add_u32 {v(T1)}, {v(T2)}, 11, {v(T1)}
    v_lshlrev_b32 {v(T2)}, 1, {v(T2)}
    v_lshrrev_b32 {v(T0)}, 1, {v(T0)}
    v_add_u32 {v(T2)}, {v(T2)}, {v(T0)}
    v_xor_b32 {v(T2)}, {sW}, {v(T2)}
    v_lshl_add_u32 {v(T1)}, {v(T2)}, 5, {v(T1)}
    v_bfe_u32 {v(T2)}, {v(VL)}, 4, 1
    v_lshl_add_u32 {v(T1)}, {v(T2)}, 4, {v(T1)}
    v_and_b32 {v(T2)}, 1, {v(VL)}
    v_lshl_add_u32 {v(T1)}, {v(T2)}, 3, {v(T1)}
    v_add_u32 {v(WR[0])}, 3072, {v(T1)}
    v_add_u32 {v(WR[1])}, {2*SLOT}, {v(WR[0])}
    v_add_u32 {v(WR[2])}, {4*SLOT}, {v(WR[0])}
    """)
    P.e(f"""
    v_bfe_u32 {v(T1)}, {v(VL)}, 2, 2
    v_lshl_add_u32 {v(T1)}, {v(T3)}, 2, {v(T1)}
    v_lshlrev_b32 {v(T1)}, 7, {v(T1)}
    s_lshr_b32 s3, {sW}, 1
    v_xor_b32 {v(T2)}, s3, {v(T0)}
    v_lshl_add_u32 {v(T1)}, {v(T2)}, 6, {v(T1)}
    v_bfe_u32 {v(T2)}, {v(VL)}, 4, 1
    v_lshl_add_u32 {v(T1)}, {v(T2)}, 5, {v(T1)}
    v_and_b32 {v(T2)}, 3, {v(VL)}
    v_lshl_add_u32 {v(T1)}, {v(T2)}, 3, {v(T1)}
    v_add_u32 {v(DR[0][0])}, {sM0P}, {v(T1)}
    v_xor_b32 {v(DR[0][1])}, 64, {v(DR[0][0])}
    v_add_u32 {v(DR[1][0])}, {2*SLOT}, {v(DR[0][0])}
    v_add_u32 {v(DR[1][1])}, {2*SLOT}, {v(DR[0][1])}
    """)
    P.e(f"""
    s_lshl_b32 s3, {sKH}, 11
    v_add_u32 {v(T0)}, s3, {v(V16)}
    v_add_u32 {v(T1)}, -16, {v(T0)}
    v_add_u32 {v(T2)}, 1008, {v(T0)}
    buffer_load_dwordx4 {v(HR,4)}, {v(T1)}, {SK}, 0 offen
    buffer_load_dwordx4 {v(HR+4,4)}, {v(T0)}, {SK}, 0 offen
    buffer_load_dwordx4 {v(HR+8,4)}, {v(T2)}, {SK}, 0 offen
    buffer_load_dwordx4 {v(HR+12,4)}, {v(T0)}, {SK}, 0 offen offset:1024
    """)
    P.e(f"""
    s_lshr_b32 s3, {sW}, 1
    s_mul_i32 {sT0}, s3, {HCCH}
    s_add_u32 {sT0}, {sT0}, {HC}
    s_mul_i32 {sT1}, s3, {UCH}
    s_add_u32 {sT1}, {sT1}, {UL}
    s_lshl_b32 s3, {sKH}, 11
    s_add_u32 s3, s3, {sT0}
    s_add_u32 s3, s3, 32
    v_add_u32 {v(VHW)}, s3, {v(V16)}
    v_and_b32 {v(T0)}, 15, {v(VL)}
    v_lshrrev_b32 {v(T1)}, 4, {v(VL)}
    v_sub_u32 {v(T2)}, 3, {v(T0)}
    v_and_b32 {v(T2)}, 3, {v(T2)}
    v_add3_u32 {v(T3)}, {v(T0)}, {v(T2)}, 1
    v_lshl_add_u32 {v(T3)}, {v(T1)}, 3, {v(T3)}
    v_lshlrev_b32 {v(T3)}, 1, {v(T3)}
    v_mul_u32_u24 {v(T2)}, {CPY}, {v(T2)}
    s_lshl_b32 s3, {sKH}, 8
    s_add_u32 {sT0}, {sT0}, s3
    v_add3_u32 {v(CA)}, {v(T2)}, {v(T3)}, {sT0}
    v_lshlrev_b32 {v(T0)}, 5, {v(T0)}
    v_lshlrev_b32 {v(T1)}, 4, {v(T1)}
    v_sub_u32 {v(T1)}, {v(T1)}, {v(T0)}
    s_add_u32 s3, s3, {sT1}
    s_add_u32 s3, s3, 480
    v_add_u32 {v(CB)}, s3, {v(T1)}
    """)
    for k in range(4): P.e(f"v_mov_b32 {v(VZ+k)}, 0")
    P.e(f"""
    v_lshrrev_b32 {v(T0)}, 5, {v(VL)}
    v_mul_u32_u24 {v(T0)}, {UCH}, {v(T0)}
    v_and_b32 {v(T1)}, 31, {v(VL)}
    v_lshl_add_u32 {v(T0)}, {v(T1)}, 4, {v(T0)}
    v_add_u32 {v(T0)}, {UL+4096}, {v(T0)}
    ds_write_b128 {v(T0)}, {v(VZ,4)}
    v_and_b32 {v(T0)}, 15, {v(VL)}
    v_lshrrev_b32 {v(T1)}, 1, {v(T0)}
    v_mul_u32_u24 {v(T1)}, {CPY}, {v(T1)}
    v_and_b32 {v(T0)}, 1, {v(T0)}
    v_lshl_add_u32 {v(T0)}, {v(T0)}, 4, {v(T1)}
    v_add_u32 {v(T3)}, {HC}, {v(T0)}
    s_waitcnt lgkmcnt(0)
    s_lshl_b32 s3, {sD}, 16
    s_and_b32 {sD}, {sD}, {sMASK}
    s_cmp_lt_u32 {sW}, 2
    s_cselect_b32 {sD}, s3, {sD}
    """)
    VHZ = T3

    NG = 224
    G = Gaps(NG)
    def item_start(i): return 12 * i if i <= 7 else 84 + 28 * (i - 7)
    def xread(g):
        if g < 84: c = g // 12; ks = (g % 12) // 3; unit = g % 3; it = c
        else: it = 7 + (g - 84) // 28; k = (g - 84) % 28; ks = k % 4; unit = k // 4
        sl = it % 5; hi = 1 if sl >= 3 else 0
        off = (sl - 3 * hi) * SLOT + 1024 * unit
        r = XRING + 4 * (g % NXR)
        return f"ds_read_b128 {v(r,4)}, {v(XR[hi][ks])} offset:{off}"
    def wread(c, ks):
        sl = c % 5; var = sl // 2; off = (sl - 2 * var) * SLOT + PIECE * ks; f = 4 * (4 * c + ks)
        return [f"ds_read_b64_tr_b16 {a(f+2*rd,2)}, {v(WR[var])} offset:{off+512*rd}" for rd in range(2)]
    tile_acc = {0: 0, 1: 1, 2: 2, 3: 3, 4: 0, 5: 1, 6: 2, 7: 3}
    for g in range(NG):
        if g < 84: c = g // 12; ks = 4 * c + (g % 12) // 3; T = g % 3
        else: T = 3 + (g - 84) // 28; ks = (g - 84) % 28
        A = v(ACC[tile_acc[T]], 16)
        G.m[g] = f"v_mfma_f32_32x32x16_bf16 {A}, {a(4*ks,4)}, {v(XRING+4*(g%NXR),4)}, {'0' if ks == 0 else A}"
    pre = []
    def at(g, item):
        if g < 0: pre.append(item)
        else: G.put(g, item)
    for i in range(12):
        g0 = item_start(i) - PD - 1
        at(g0, [WaitTag('vm', "it%d" % i), Ins("s_barrier")])
    for g in range(NG):
        if g < 84 and g % 3 == 0:
            for s_ in wread(g // 12, (g % 12) // 3): at(g - PD - 1, s_)
        at(g - PD - 1, xread(g))
    for i in range(2, 9):
        g0 = item_start(i) - PD
        span = 11 if i < 7 else 24
        G.spread(dma_item(i + 3), g0, g0 + span)
    hv = []
    for rho in range(2):
        R = HR + 8 * rho; C = 176 + 12 * rho
        for k in range(4): hv.append(f"v_alignbit_b32 {v(C+k)}, {v(R+4+k)}, {v(R+3+k)}, 16")
        for k in range(4): hv.append(f"v_mov_b32 {v(C+4+k)}, {v(R+3+k)}")
        for k in range(4): hv.append(f"v_alignbit_b32 {v(C+8+k)}, {v(R+3+k)}, {v(R+2+k)}, 16")
    G.spread(hv, 50, 78)
    hw = [Ins(f"ds_write_b128 {v(VHZ)}, {v(VZ,4)}", "hcw")]
    for rho in range(2):
        R = HR + 8 * rho; C = 176 + 12 * rho
        for cpy, src in enumerate((R + 4, C, C + 4, C + 8)):
            hw.append(Ins(f"ds_write_b128 {v(VHW)}, {v(src,4)} offset:{cpy*CPY+1024*rho}", "hcw"))
    def epi(T):
        A = ACC[tile_acc[T]]; Pk = PK[T % 2]; L = []
        for grp in range(2):
            g_ = A + 8 * grp; u_ = g_ + 4
            L += [f"v_mul_f32 {v(ET+i)}, {sNL2E}, {v(g_+i)}" for i in range(4)]
            L += [f"v_exp_f32 {v(ET+i)}, {v(ET+i)}" for i in range(4)]
            L += [f"v_mul_f32 {v(u_+i)}, {v(g_+i)}, {v(u_+i)}" for i in range(2)]
            L += [f"v_add_f32 {v(ET+i)}, 1.0, {v(ET+i)}" for i in range(4)]
            L += [f"v_rcp_f32 {v(ET+i)}, {v(ET+i)}" for i in range(4)]
            L += [f"v_mul_f32 {v(u_+i)}, {v(g_+i)}, {v(u_+i)}" for i in range(2, 4)]
            L += [f"v_mul_f32 {v(u_+i)}, {v(u_+i)}, {v(ET+i)}" for i in range(4)]
            L += [f"v_cvt_pk_bf16_f32 {v(Pk+2*grp+i)}, {v(u_+2*i)}, {v(u_+2*i+1)}" for i in range(2)]
        L.append(f"s_add_u32 {sSO2}, {sHS}, {T*112*1024}")
        L.append(Ins(f"buffer_store_dwordx4 {v(Pk,4)}, {v(V16)}, {WS}, {sSO2} offen sc1", "hst"))
        return L
    page_slot = [2, 3, 0, 1]
    def wd_page(n):
        if n < 28: return n % 14
        if n < 42: return 14 + (n - 28)
        return n - 42
    def wd_dma(n0, n1):
        L = []; n = n0
        while n < n1:
            p = wd_page(n); cnt = min(4, n1 - n, 7 - p % 7)
            lds = page_slot[p // 7] * SLOT + 1024 * (p % 7)
            L.append(f"s_add_u32 m0, {sM0P}, {lds}\n s_add_u32 {sSO}, {sDB}, {7168*n}")
            for k in range(cnt):
                it = [Ins(f"buffer_load_dwordx4 {v(VD[k])}, {WD}, {sSO} offen offset:{1024*k} lds", "wd%d" % (n + k))]
                prev = mm_prev(n + k)
                if prev is not None: it = [WaitTag('lgkm', "wr%d" % prev)] + it
                L.append(it)
            n += cnt
        return L
    def mm_prev(n):
        if 14 <= n < 28: return n - 14
        if n >= 42: return n - 28
        return None
    def wd_read(n, dst):
        p = wd_page(n); sl = page_slot[p // 7]; hi = 1 if sl >= 2 else 0
        off = (sl - 2 * hi) * SLOT + 1024 * (p % 7)
        return [[WaitTag('vm', "wd%d" % n)] * (dt == 0) + [Ins(f"ds_read_b64_tr_b16 {dst(dt)}, {v(DR[hi][dt])} offset:{off}", "wr%d" % n)] for dt in range(2)]
    WD1 = 112
    def wd1(n): return lambda dt: a(WD1 + 8 * (n >> 1) + 4 * dt + 2 * (n & 1), 2)
    gT = lambda T: item_start(T + 4)
    G.spread(wd_dma(0, 7), gT(5) - PD, gT(5) + 16)
    G.spread(wd_dma(7, 14), gT(6) - PD, gT(6) + 8)
    rd = []
    for n in range(0, 7): rd += wd_read(n, wd1(n))
    G.spread(rd, gT(6) + 2, gT(6) + 14)
    G.spread(wd_dma(14, 21), gT(6) + 16, gT(6) + 27)
    rd = []
    for n in range(7, 14): rd += wd_read(n, wd1(n))
    G.spread(rd, gT(7) + 2, gT(7) + 14)
    G.spread(wd_dma(21, 28), gT(7) + 16, gT(7) + 27)
    G.spread(hw, gT(7) - PD, gT(7) + 20)
    G.put(gT(6) + 4, Ins(f"buffer_load_dword {v(VPV)}, {v(VPOLL)}, {DBG}, 0 offen sc1"))
    G.put(gT(7), poll_check("p", v(VPV), v(VPOLL), DBG, 32))
    ud = [f"""s_lshr_b32 s3, {sW}, 1
              s_mul_i32 s3, s3, {UCH}""", f"""s_lshl_b32 {sT0}, {sKH}, 11
              s_add_u32 s3, s3, {sT0}""", f"""s_add_u32 m0, s3, {UL}
              s_lshl_b32 s3, {sM}, 12""", f"""s_add_u32 {sT0}, {sT0}, s3
              s_add_u32 {sT0}, {sT0}, {WS_UR}"""]
    G.put(gT(7) + 1, ud + [Ins(f"buffer_load_dwordx4 {v(V16)}, {WS}, {sT0} offen offset:{1024*j} sc1 lds", "u") for j in range(2)])
    bounds = [84 + 2 + (140 - 4) * k // 7 for k in range(8)]
    last = 0
    for T in range(7):
        g0 = max(bounds[T], (84 if T < 3 else gT(T + 1)) + 2, last)
        last = G.pour(epi(T), g0, max(bounds[T + 1], g0 + 1), 24)
        nxt = [t for t in range(T + 1, 8) if tile_acc[t] == tile_acc[T]]
        if nxt: assert last < (gT(nxt[0])), (T, last)
    check_m0(G)
    P.add(pre)
    P.add(stamp("g1start"))
    G.emit(P)
    if cfg.verbose: print("G1 gap costs", G.costs())
    P.add(stamp("g1end"))
    P.vmwait("u"); P.lgwait("hcw"); P.e("s_barrier")
    CACC = 48
    def cA(buf, a_): return (0 if buf == 0 else 64) + 4 * a_
    def cB(buf, b_):
        i = 32 + 4 * b_ if buf == 0 else 96 + 4 * b_
        return i if i < 112 else 224 + (i - 112)
    def creads(st):
        buf = st & 1; L = []
        for k in range(8):
            L.append(f"ds_read_b128 {a(cB(buf,k),4)}, {v(CB)} offset:{64*st+512*(7-k)}")
            for rd in range(2): L.append(f"ds_read_b64 {a(cA(buf,k)+2*rd,2)}, {v(CA)} offset:{512*k+64*st+8*rd}")
        return L
    e7 = epi(7)
    d2 = wd_dma(28, 42); c0 = creads(0)
    P.add(c0[:12])
    k = 0; rest = c0[12:] + d2
    for j, it in enumerate(e7):
        P.add(it)
        if j % 2 == 1 and k < len(rest) and j < len(e7) - 3: P.add(rest[k]); k += 1
    P.add(rest[k:])
    P.e(f"""
    s_lshr_b32 s3, {sI2}, 2
    s_lshl_b32 s3, s3, 2
    s_add_u32 s3, s3, {sW}
    s_lshl_b32 s3, s3, 8
    v_mov_b32 {v(VPOLL)}, s3
    s_lshl_b32 s3, {sI2}, 1
    s_add_u32 {sT0}, s3, {sKH}
    s_xor_b32 {sT1}, {sT0}, 1
    s_mul_i32 {sT0}, {sT0}, 112
    s_mul_i32 {sT1}, {sT1}, 112
    s_mul_i32 s3, {sW}, 28
    s_add_u32 {sT0}, {sT0}, s3
    s_add_u32 {sT1}, {sT1}, s3
    s_lshl_b32 {sT0}, {sT0}, 10
    s_lshl_b32 {sT1}, {sT1}, 10
    s_add_u32 {sHL[0]}, {sT0}, {WS_H}
    s_add_u32 {sHL[1]}, {sT1}, {WS_H}
    v_mov_b32 {v(T0)}, 1
    """)
    P.add(stamp("cstart"))
    C = Gaps(144)
    pairs = [(t, a_) for t in range(8) for a_ in range(t + 1)]
    for st in range(4):
        for j, (t, a_) in enumerate(pairs):
            A = v(CACC + 4 * t, 4)
            first = (st == 0 and a_ == 0)
            C.m[36 * st + j] = f"v_mfma_f32_16x16x32_bf16 {A}, {a(cA(st&1,a_),4)}, {a(cB(st&1,t-a_),4)}, {'0' if first else A}"
        if st < 3: C.spread(creads(st + 1), 36 * st + 1, 36 * st + 30)
    HRING = 96; NHR = 40
    def hload(n):
        ks = n >> 1; stl = n & 1; L = []
        if ks % 4 == 0 and ks > 0: L.append(f"s_add_u32 {sHL[stl]}, {sHL[stl]}, 4096")
        L.append(f"buffer_load_dwordx4 {v(HRING+4*(n%NHR),4)}, {v(V16)}, {WS}, {sHL[stl]} offen offset:{1024*(ks%4)} {cfg.sc_h_load}")
        return L
    rd = []
    for n in range(14, 28): rd += wd_read(n, wd1(n))
    C.pour(rd, 4, 60, 12)
    C.put(cfg.g_arrive, [WaitTag('vm', "hst"), Ins("s_barrier"), Ins(f"buffer_atomic_add {v(T0)}, {v(VFLAG)}, {WS}, 0 offen sc1")])
    gl = C.pour(wd_dma(42, 56), 62, 90, 12)
    C.put(cfg.g_poll, Ins(f"buffer_load_dword {v(VPV)}, {v(VPOLL)}, {WS}, 0 offen sc1"))
    C.put(cfg.g_chk, poll_check("h", v(VPV), v(VPOLL), WS, 7))
    NH_C = cfg.nh_c
    C.pour([hload(n) for n in range(NH_C)], cfg.g_chk + 1, 143, 12)
    check_m0(C)
    C.emit(P)
    if cfg.verbose: print("C gap costs", C.costs())
    Y = 80
    RR = 2
    RR = 2; UU = 18
    P.e(f"""
    s_lshl_b32 s3, {sW}, 12
    s_add_u32 s3, s3, {HC}
    v_add_u32 {v(T1)}, s3, {v(V16)}
    v_xor_b32 {v(T2)}, 4096, {v(T1)}
    v_and_b32 {v(T3)}, 15, {v(VL)}
    v_lshlrev_b32 {v(T3)}, 5, {v(T3)}
    v_lshrrev_b32 {v(26)}, 4, {v(VL)}
    v_lshl_add_u32 {v(T3)}, {v(26)}, 3, {v(T3)}
    s_lshr_b32 s3, {sW}, 1
    s_mul_i32 s3, s3, {UCH}
    s_lshl_b32 {sT0}, {sKH}, 11
    s_sub_u32 s3, s3, {sT0}
    s_add_u32 s3, s3, {UL+504+2048}
    v_sub_u32 {v(T3)}, s3, {v(T3)}
    s_barrier
    """)
    for tau in range(4): P.e(f"ds_read_b64 {v(UU+2*tau,2)}, {v(T3)} offset:{512*(3-tau)}")
    P.e(f"s_cmp_eq_u32 {sKH}, 0\n s_cbranch_scc1 L_cw0")
    for tau in range(4): P.e(f"ds_write_b128 {v(T1)}, {v(CACC+4*tau,4)} offset:{1024*tau}", nocount=True)
    P.e("s_branch L_cw1\n L_cw0:")
    for tau in range(4): P.e(f"ds_write_b128 {v(T1)}, {v(CACC+16+4*tau,4)} offset:{1024*tau}")
    P.e("L_cw1:\n s_waitcnt lgkmcnt(0)\n s_barrier")
    for tau in range(4): P.e(f"ds_read_b128 {v(RR+4*tau,4)}, {v(T2)} offset:{1024*tau}")
    P.e(f"""
    v_and_b32 {v(T1)}, 3, {v(VL)}
    v_lshlrev_b32 {v(T1)}, 4, {v(T1)}
    v_bfe_u32 {v(T3)}, {v(VL)}, 2, 2
    v_lshl_add_u32 {v(T1)}, {v(T3)}, 7, {v(T1)}
    v_bfe_u32 {v(T3)}, {v(VL)}, 4, 1
    v_lshl_add_u32 {v(T1)}, {v(T3)}, 9, {v(T1)}
    v_lshrrev_b32 {v(T3)}, 5, {v(VL)}
    v_lshl_add_u32 {v(T1)}, {v(T3)}, 6, {v(T1)}
    s_lshl_b32 s3, {sM}, 12
    s_add_u32 s3, s3, {sT0}
    s_add_u32 {sSO}, s3, {WS_YT}
    s_waitcnt lgkmcnt(0)
    s_cmp_eq_u32 {sKH}, 0
    s_cbranch_scc1 L_ca0
    """)
    for k in range(16): P.e(f"v_add_f32 {v(Y+k)}, {v(CACC+16+k)}, {v(RR+k)}")
    P.e("s_branch L_ca1\n L_ca0:")
    for k in range(16): P.e(f"v_add_f32 {v(Y+k)}, {v(CACC+k)}, {v(RR+k)}")
    P.e("L_ca1:")
    for tau in range(4):
        P.e(f"""
        v_and_b32 {v(RR+4*tau+0)}, {sMASK}, {v(UU+2*tau+1)}
        v_lshlrev_b32 {v(RR+4*tau+1)}, 16, {v(UU+2*tau+1)}
        v_and_b32 {v(RR+4*tau+2)}, {sMASK}, {v(UU+2*tau)}
        v_lshlrev_b32 {v(RR+4*tau+3)}, 16, {v(UU+2*tau)}
        """)
    for k in range(16): P.e(f"v_fmac_f32 {v(Y+k)}, {sD}, {v(RR+k)}")
    for k in range(8): P.e(f"v_cvt_pk_bf16_f32 {v(RR+k)}, {v(Y+2*k)}, {v(Y+2*k+1)}")
    for pi in range(2):
        P.e(f"v_permlane16_swap_b32 {v(RR+4*pi)}, {v(RR+4*pi+2)}\n v_permlane16_swap_b32 {v(RR+4*pi+1)}, {v(RR+4*pi+3)}")
    for pi in range(2):
        P.e(f"buffer_store_dwordx4 {v(RR+4*pi,4)}, {v(T1)}, {WS}, {sSO} offen offset:{1024*pi} sc1", tag="yst")
    VY = [10, 11]; VQ = [12, 13]; VG = 14; VGA = 15; VFY = 16; VPY = 17
    P.e(f"""
    v_lshrrev_b32 {v(T1)}, 3, {v(VL)}
    v_and_b32 {v(T2)}, 7, {v(VL)}
    v_lshlrev_b32 {v(T3)}, 12, {v(T1)}
    v_lshl_add_u32 {v(VY[0])}, {v(T2)}, 4, {v(T3)}
    v_add_u32 {v(VY[1])}, {32768-1024}, {v(VY[0])}
    v_lshrrev_b32 {v(T3)}, 4, {v(VL)}
    v_xor_b32 {v(T2)}, {v(T2)}, {v(T3)}
    v_lshlrev_b32 {v(T2)}, 4, {v(T2)}
    v_mul_u32_u24 {v(T1)}, 896, {v(T1)}
    v_add_u32 {v(VQ[0])}, {v(T1)}, {v(T2)}
    v_xor_b32 {v(T2)}, 64, {v(T2)}
    v_add_u32 {v(T1)}, {7168-1024}, {v(T1)}
    v_add_u32 {v(VQ[1])}, {v(T1)}, {v(T2)}
    s_lshl_b32 s3, {sI2}, 1
    s_add_u32 s3, s3, {sKH}
    s_lshl_b32 s3, s3, 7
    s_add_u32 s3, s3, {WS_G}
    v_and_b32 {v(T1)}, 31, {v(VL)}
    v_lshl_add_u32 {v(VGA)}, {v(T1)}, 2, s3
    s_lshr_b32 s3, s2, 5
    s_lshl_b32 s3, s3, 8
    s_add_u32 s3, s3, {32*256}
    v_mov_b32 {v(VFY)}, s3
    v_mov_b32 {v(T1)}, -16
    v_cmp_eq_u32 vcc, 0, v0
    v_cndmask_b32 {v(VFY)}, {v(T1)}, {v(VFY)}, vcc
    s_lshl_b32 s3, {sCT}, 8
    s_add_u32 s3, s3, {32*256}
    v_mov_b32 {v(VPY)}, s3
    """)
    P.add(stamp("g2start"))
    GA = 32 + 16
    GACC = 0
    JIT = 64; NJ = 6
    G2 = Gaps(112)
    def wfrag(ks, dt):
        if ks < 14: return a(WD1 + 8 * ks + 4 * dt, 4)
        return a(JIT + 4 * ((2 * (ks - 14) + dt) % NJ), 4)
    for ks in range(28):
        for sg in range(4):
            A = a(GACC + 16 * sg, 16)
            G2.m[4 * ks + sg] = f"v_mfma_f32_32x32x16_bf16 {A}, {wfrag(ks, sg>>1)}, {v(HRING+4*((2*ks+(sg&1))%NHR),4)}, {'0' if ks == 0 else A}"
    for ks in range(14, 28):
        for rd in range(2):
            n = 2 * ks + rd
            its = wd_read(n, lambda dt, ks=ks, rd=rd: a(JIT + 4 * ((2 * (ks - 14) + dt) % NJ) + 2 * rd, 2))
            for dt in range(2): G2.put(4 * ks - 6 + 2 * rd + dt, its[dt])
    for n in range(NH_C, 56):
        if n < NHR: g = (n - NH_C)
        else: g = max(4 * ((n - NHR) >> 1) + 4, n - NH_C)
        G2.put(g, hload(n))
    G2.put(cfg.g2_arrive, [WaitTag('vm', "yst"), Ins("s_barrier"), Ins(f"buffer_atomic_add {v(T0)}, {v(VFY)}, {WS}, 0 offen sc1")])
    qd = [f"""s_lshl_b32 s3, {sW}, 11
              s_add_u32 m0, s3, {QL}""", f"""s_lshl_b32 s3, {sI2}, 2
              s_add_u32 s3, s3, {sW}""", f"""s_mul_i32 s3, s3, {16*896}
              s_lshl_b32 {sSO}, {sCT}, 7""", f"s_add_u32 {sSO}, {sSO}, s3"]
    qd += [Ins(f"buffer_load_dwordx4 {v(VQ[j])}, {X}, {sSO} offen offset:{1024*j} lds", "qy") for j in range(2)]
    qd += [f"buffer_load_dword {v(VG)}, {v(VGA)}, {WS}, 0 offen sc1"]
    G2.spread(qd, cfg.g2_arrive + 2, cfg.g2_arrive + 9)
    G2.put(cfg.g2_poll, Ins(f"buffer_load_dword {v(VPV)}, {v(VPY)}, {WS}, 0 offen sc1"))
    G2.put(cfg.g2_chk, poll_check("y", v(VPV), v(VPY), WS, 32))
    yd = [f"""s_lshl_b32 s3, {sW}, 11
              s_add_u32 m0, s3, {YL}""", f"""s_lshl_b32 s3, {sCT}, 2
              s_add_u32 s3, s3, {sW}""", f"""s_lshl_b32 s3, s3, 16
              s_lshl_b32 {sSO}, {sI2}, 7""", f"""s_add_u32 {sSO}, {sSO}, s3
              s_add_u32 {sSO}, {sSO}, {WS_YT}"""]
    yd += [Ins(f"buffer_load_dwordx4 {v(VY[j])}, {WS}, {sSO} offen offset:{1024*j} sc1 lds", "qy") for j in range(2)]
    G2.spread(yd, cfg.g2_chk + 1, cfg.g2_chk + 7)
    EW = 18; ER = [19, 20, 21]; EY = 22; EQ = [23, 24, 25, 26]; EO = 27
    red_slot = [None, 2, 3, 0]
    ea = [f"v_add_u32 {v(EW)}, {sM0P}, {v(V16)}"]
    for sg in range(1, 4):
        ea += [f"s_xor_b32 s3, {sW}, {sg}", f"s_mul_i32 s3, s3, {PIECE}", f"s_add_u32 s3, s3, {red_slot[sg]*SLOT}", f"v_add_u32 {v(ER[sg-1])}, s3, {v(V16)}"]
    ea += f"""s_lshr_b32 {sT0}, {sW}, 1
    v_bfe_u32 {v(T1)}, {v(VL)}, 2, 2
    v_lshrrev_b32 {v(T2)}, 5, {v(VL)}
    v_lshl_add_u32 {v(T1)}, {v(T2)}, 2, {v(T1)}
    v_lshlrev_b32 {v(T1)}, 7, {v(T1)}
    v_bfe_u32 {v(T3)}, {v(VL)}, 1, 1
    v_lshl_add_u32 {v(T1)}, {v(T3)}, 6, {v(T1)}
    v_bfe_u32 {v(T3)}, {v(VL)}, 4, 1
    v_lshl_add_u32 {v(T1)}, {v(T3)}, 4, {v(T1)}
    v_and_b32 {v(T3)}, 1, {v(VL)}
    v_lshl_add_u32 {v(T1)}, {v(T3)}, 3, {v(T1)}
    s_lshl_b32 s3, {sT0}, 12
    s_lshl_b32 {sT1}, {sKH}, 5
    s_add_u32 s3, s3, {sT1}
    s_add_u32 s3, s3, {YL}
    v_add_u32 {v(EY)}, s3, {v(T1)}
    v_and_b32 {v(T1)}, 31, {v(VL)}
    v_bfe_u32 {v(T3)}, {v(VL)}, 1, 3
    s_lshl_b32 s3, {sT0}, 2
    v_xor_b32 {v(T3)}, s3, {v(T3)}
    v_lshlrev_b32 {v(T3)}, 4, {v(T3)}
    v_lshl_add_u32 {v(T3)}, {v(T1)}, 7, {v(T3)}
    v_lshl_add_u32 {v(T3)}, {v(T2)}, 3, {v(T3)}
    s_lshl_b32 s3, {sKH}, 12
    s_add_u32 s3, s3, {QL}
    v_add_u32 {v(EQ[0])}, s3, {v(T3)}
    v_xor_b32 {v(EQ[1])}, 16, {v(EQ[0])}
    v_xor_b32 {v(EQ[2])}, 32, {v(EQ[0])}
    v_xor_b32 {v(EQ[3])}, 48, {v(EQ[0])}
    v_mul_u32_u24 {v(T1)}, 896, {v(T1)}
    v_lshl_add_u32 {v(EO)}, {v(T2)}, 4, {v(T1)}
    s_lshl_b32 s3, {sI2}, 1
    s_add_u32 s3, s3, {sKH}
    s_mul_i32 {sSO2}, s3, {32*896}
    s_lshl_b32 s3, {sCT}, 1
    s_add_u32 s3, s3, {sT0}
    s_lshl_b32 s3, s3, 6
    s_add_u32 {sSO2}, {sSO2}, s3""".split("\n")
    G2.spread(ea, cfg.g2_chk + 8, 108)
    check_m0(G2)
    G2.emit(P)
    if cfg.verbose: print("G2 gap costs", G2.costs())
    P.add(stamp("g2end"))
    B = 48; R1 = 64; YY = 112; QQ = 120; O = 128
    for sg in range(1, 4):
        off = red_slot[sg] * SLOT
        for J in range(4):
            if off + 1024 * J < 65536: P.e(f"ds_write_b128 {v(EW)}, {a(GACC+16*sg+4*J,4)} offset:{off+1024*J}")
            else:
                if J == 0: P.e(f"v_add_u32 {v(T1)}, {off}, {v(EW)}")
                P.e(f"ds_write_b128 {v(T1)}, {a(GACC+16*sg+4*J,4)} offset:{1024*J}")
    for k in range(16): P.e(f"v_accvgpr_read_b32 {v(B+k)}, {a(GACC+k)}")
    P.e(f"v_sub_f32 {v(T2)}, 1.0, {v(VG)}")
    P.vmwait("qy")
    P.e("s_waitcnt lgkmcnt(0)\n s_barrier")
    for J in range(4):
        P.e(f"ds_read_b64_tr_b16 {v(YY+2*J,2)}, {v(EY)} offset:{1024*J}")
        P.e(f"ds_read_b64 {v(QQ+2*J,2)}, {v(EQ[J])}")
    for J in range(4):
        for sg in range(1, 4): P.e(f"ds_read_b128 {v(R1+16*(sg-1)+4*J,4)}, {v(ER[sg-1])} offset:{1024*J}")
    TT = 136
    for J in range(4):
        for i in range(4):
            src = 2 * J + (i >> 1)
            un = (lambda d, s_: f"v_lshlrev_b32 {d}, 16, {s_}") if i % 2 == 0 else (lambda d, s_: f"v_and_b32 {d}, {sMASK}, {s_}")
            P.e(un(v(TT + 4 * J + i), v(YY + src))); P.e(un(v(TT + 16 + i), v(QQ + src)))
        for i in range(4): P.e(f"v_mul_f32 {v(TT+4*J+i)}, {v(TT+4*J+i)}, {v(TT+16+i)}")
        for i in range(4): P.e(f"v_mul_f32 {v(TT+4*J+i)}, {v(TT+4*J+i)}, {v(VG)}")
    for J in range(4):
        for sg in range(3):
            for i in range(4): P.e(f"v_add_f32 {v(B+4*J+i)}, {v(B+4*J+i)}, {v(R1+16*sg+4*J+i)}")
        for i in range(4): P.e(f"v_fmac_f32 {v(TT+4*J+i)}, {v(B+4*J+i)}, {v(T2)}")
        for i in range(2): P.e(f"v_cvt_pk_bf16_f32 {v(O+2*J+i)}, {v(TT+4*J+2*i)}, {v(TT+4*J+2*i+1)}")
        if J % 2 == 1:
            o = O + 2 * J - 2
            P.e(f"v_permlane32_swap_b32 {v(o)}, {v(o+2)}\n v_permlane32_swap_b32 {v(o+1)}, {v(o+3)}")
            P.e(f"buffer_store_dwordx4 {v(o,4)}, {v(EO)}, {OUT}, {sSO2} offen offset:{32*(J>>1)}")
    if cfg.stamps: emit_stamps(P)
    if cfg.fixdur:
        P.e(f"""L_fix:
        s_memrealtime s[100:101]
        s_waitcnt lgkmcnt(0)
        s_sub_u32 s100, s100, s52
        s_cmp_lt_u32 s100, {cfg.fixdur}
        s_cbranch_scc1 L_fix""")
    P.e("s_endpgm")

def check_m0(G):
    flat = []
    def fl(it):
        if isinstance(it, str):
            for l in it.split("\n"):
                if l.strip(): flat.append(Ins(l.strip()))
        elif isinstance(it, (list, tuple)):
            for x in it: fl(x)
        elif isinstance(it, Ins): flat.append(it)
    for f in G.f:
        for it in f: fl(it)
    last_off = None
    for it in flat:
        if it.kind == 'salu' and ('s', 'm0') in it.w: last_off = -1024
        if it.kind == 'dma':
            m = re.search(r'offset:(\d+)', it.text); off = int(m.group(1)) if m else 0
            assert last_off is not None and off == last_off + 1024, ("m0 group interleaved", it.text)
            last_off = off

def emit_stamps(P):
    P.e("s_waitcnt vmcnt(0)")
    P.e("s_memtime s[98:99]\n s_memrealtime s[100:101]\n s_waitcnt lgkmcnt(0)")
    n = len(stamp_names)
    for k in range(n):
        P.e(f"s_sub_u32 s3, s{STAMP_REGS[k]}, s85"); P.e(f"v_mov_b32 v{200+k}, s3")
    P.e(f"s_sub_u32 s3, s98, s85\n v_mov_b32 v{200+n}, s3")
    P.e(f"""s_lshl_b32 s3, s2, 2
    s_add_u32 s3, s3, {sW}
    s_lshl_b32 s3, s3, 7
    s_add_u32 s3, s3, {WS_STAMP}
    v_mov_b32 v230, s52
    v_mov_b32 v231, s100
    v_mov_b32 v2, 0
    s_mov_b64 exec, 1""")
    for k in range(8): P.e(f"buffer_store_dwordx4 v[{200+4*k}:{203+4*k}], v2, {WS}, s3 offen offset:{16*k}")

def gen_aux(P):
    K, V_, SH, GW = WG, WU, WD, SK
    sA = "s68"; sTAU = "s69"; sLO = "s70"; sHI = "s71"; sUB = "s72"
    VL = 1; VB = 2; VB2 = 3; VN = 4; VS = 5; VTW = 6; VTR = 7; VST = 8; T0 = 9; T1 = 10; VF = 11
    SET = [12, 104]; PP = 196; KS = 206; VV = 214; OO = 222; RB = 12
    P.e(f"""
    s_sub_u32 {sA}, s2, 224
    v_and_b32 {v(T0)}, 7, {v(VL)}
    v_lshrrev_b32 {v(T1)}, 3, {v(VL)}
    v_mul_u32_u24 {v(VB)}, {8*896}, {v(T1)}
    v_lshl_add_u32 {v(VB)}, {v(T0)}, 4, {v(VB)}
    s_mul_i32 s3, {sA}, {64*896}
    v_add_u32 {v(VB)}, s3, {v(VB)}
    v_add_u32 {v(VB2)}, {5*896}, {v(VB)}
    v_add_u32 {v(VN)}, {-3*896}, {v(VB)}
    v_lshlrev_b32 {v(VS)}, 6, {v(T0)}
    v_sub_u32 {v(VTW)}, 7, {v(T1)}
    v_xor_b32 {v(VTW)}, {v(VTW)}, {v(T0)}
    v_lshlrev_b32 {v(VTW)}, 4, {v(VTW)}
    v_lshl_add_u32 {v(VTW)}, {v(T0)}, 10, {v(VTW)}
    s_lshl_b32 s3, {sW}, 13
    v_add_u32 {v(VTW)}, s3, {v(VTW)}
    v_lshlrev_b32 {v(VTR)}, 4, {v(VL)}
    v_add_u32 {v(VTR)}, s3, {v(VTR)}
    v_lshlrev_b32 {v(VST)}, 12, {v(T1)}
    v_lshl_add_u32 {v(VST)}, {v(T0)}, 4, {v(VST)}
    s_mov_b32 {sLO}, 0x05040100
    s_mov_b32 {sHI}, 0x07060302
    s_mov_b32 {sMASK}, 0xffff0000
    s_mov_b32 {sNL2E}, 0xbfb8aa3b
    s_sub_u32 {sUB}, 31, {sA}
    s_lshl_b32 {sUB}, {sUB}, 7
    s_add_u32 {sUB}, {sUB}, {WS_UR}
    s_waitcnt lgkmcnt(0)
    """)
    srd(P, K, 42, NQ); srd(P, V_, 44, NQ); srd(P, SH, 46, 3584); srd(P, X, 40, NQ); srd(P, GW, 60, 896)
    srd(P, WS, 66, WS_SIZE); srd(P, DBG, 64, 256)
    def rowload(dst, srd_, rho, so):
        if rho < 0: return f"buffer_load_dwordx4 {v(dst,4)}, {v(VN)}, {srd_}, {so} offen offset:{896*(rho+3)}"
        if rho < 5: return f"buffer_load_dwordx4 {v(dst,4)}, {v(VB)}, {srd_}, {so} offen offset:{896*rho}"
        return f"buffer_load_dwordx4 {v(dst,4)}, {v(VB2)}, {srd_}, {so} offen offset:{896*(rho-5)}"
    def loads(S_, tau_expr):
        P.e(tau_expr)
        P.e(f"s_lshl_b32 {sSO}, {sTAU}, 7\n s_lshl_b32 {sSO2}, {sTAU}, 9")
        for k in range(4): P.e(f"buffer_load_dwordx4 {v(S_+76+4*k,4)}, {v(VS)}, {SH}, {sSO2} offen offset:{16*k}")
        for rho in range(-3, 8): P.e(rowload(S_ + 4 * (rho + 3), K, rho, sSO))
        for rho in range(8): P.e(rowload(S_ + 44 + 4 * rho, V_, rho, sSO))
    def compute(S_, tau_expr):
        for i in range(8):
            p = i >> 1; sel = sHI if i & 1 else sLO
            kreg = lambda rho: S_ + 4 * (rho + 3) + p
            for rho in range(-2, 8): P.e(f"v_perm_b32 {v(PP+rho+2)}, {v(kreg(rho-1))}, {v(kreg(rho))}, {sel}")
            for rho in range(8): P.e(f"v_dot2_f32_bf16 {v(KS+rho)}, {v(PP+rho+2)}, {v(S_+76+2*i)}, 0")
            for rho in range(8):
                src = v(S_ + 44 + 4 * rho + p)
                P.e(f"v_and_b32 {v(VV+rho)}, {sMASK}, {src}" if i & 1 else f"v_lshlrev_b32 {v(VV+rho)}, 16, {src}")
            for rho in range(8): P.e(f"v_dot2_f32_bf16 {v(KS+rho)}, {v(PP+rho)}, {v(S_+76+2*i+1)}, {v(KS+rho)}")
            for rho in range(8): P.e(f"v_mul_f32 {v(VV+rho)}, {v(VV+rho)}, {v(KS+rho)}")
            o = OO + 4 * (i & 1)
            for e_ in range(4): P.e(f"v_cvt_pk_bf16_f32 {v(o+e_)}, {v(VV+7-2*e_)}, {v(VV+6-2*e_)}")
            P.e(f"ds_write_b128 {v(VTW)}, {v(o,4)} offset:{128*i}")
        P.e(tau_expr)
        P.e(f"s_lshl_b32 {sSO}, {sTAU}, 18\n s_add_u32 {sSO}, {sSO}, {sUB}\n s_waitcnt lgkmcnt(0)")
        for j in range(8):
            P.e(f"v_xor_b32 {v(T0)}, {16*j}, {v(VTR)}\n ds_read_b128 {v(S_+4*j,4)}, {v(T0)} offset:{1024*j}")
        for j in range(8):
            P.e(f"buffer_store_dwordx4 {v(S_+4*j,4)}, {v(VST)}, {WS}, {sSO} offen sc1")
            if j < 7: P.e(f"s_add_u32 {sSO}, {sSO}, 32768")
    t1 = f"s_mov_b32 {sTAU}, {sW}"; t2 = f"s_add_u32 {sTAU}, {sW}, 4"
    loads(SET[0], t1)
    P.e(f"""
    s_lshl_b32 s3, {sA}, 8
    v_lshlrev_b32 {v(T0)}, 13, {v(VL)}
    v_add_u32 {v(T0)}, s3, {v(T0)}
    v_mov_b32 {v(T1)}, -16
    v_cmp_gt_u32 vcc, 2, {v(VL)}
    v_cndmask_b32 {v(T0)}, {v(T1)}, {v(T0)}, vcc
    v_mov_b32 {v(231)}, 0
    buffer_store_dword {v(231)}, {v(T0)}, {WS}, 0 offen sc1
    v_mov_b32 {v(VF)}, 0
    v_cmp_eq_u32 vcc, 0, v0
    v_cndmask_b32 {v(VF)}, {v(T1)}, {v(VF)}, vcc
    s_cmp_eq_u32 {sW}, 3
    s_cbranch_scc1 L_gate
    """)
    Pa = Prog(); Pa.items = list(P.items); n0 = len(P.items)
    loads(SET[1], t2)
    compute(SET[0], t1)
    compute(SET[1], t2)
    P.e("s_branch L_auxdone")
    tail_a = P
    Pg = Pa
    P_save = P
    def with_prog(pg, fn):
        nonlocal P
        old = P; P = pg; fn(); P = old
    QB = 104; GWB = 232; AC = 232 + 16
    def gate():
        P.e("L_gate:")
        def qloads(tau):
            b = QB + 32 * (tau % 4)
            P.e(f"s_mov_b32 {sSO}, {128*tau}")
            P.e(f"buffer_load_dwordx4 {v(GWB+4*(tau%4),4)}, {v(T0)}, {GW}, {sSO} offen")
            for rho in range(8): P.e(rowload(b + 4 * rho, X, rho, sSO))
        P.e(f"v_and_b32 {v(T0)}, 7, {v(VL)}\n v_lshlrev_b32 {v(T0)}, 4, {v(T0)}")
        for tau in range(2): qloads(tau)
        P.e(f"v_mov_b32 {v(230)}, {v(T0)}")
        compute_g()
        P.e(f"v_mov_b32 {v(T0)}, {v(230)}")
        for tau in range(2, 4): qloads(tau)
        for tau in range(7):
            b = QB + 32 * (tau % 4)
            for p in range(4):
                for rho in range(8):
                    c = '0' if (tau == 0 and p == 0) else v(AC + rho)
                    P.e(f"v_dot2_f32_bf16 {v(AC+rho)}, {v(b+4*rho+p)}, {v(GWB+4*(tau%4)+p)}, {c}")
            if tau + 4 < 7: qloads(tau + 4)
        for mod in ("row_half_mirror", "quad_perm:[3,2,1,0]", "quad_perm:[1,0,3,2]"):
            for rho in range(8): P.e(f"v_add_f32_dpp {v(AC+rho)}, {v(AC+rho)}, {v(AC+rho)} {mod} row_mask:0xf bank_mask:0xf")
        P.e("s_mov_b32 s74, 0xaaaaaaaa\n s_mov_b32 s75, 0xaaaaaaaa")
        for k in range(4): P.e(f"v_cndmask_b32 {v(AC+k)}, {v(AC+2*k)}, {v(AC+2*k+1)}, s[74:75]")
        P.e("s_mov_b32 s74, 0xcccccccc\n s_mov_b32 s75, 0xcccccccc")
        for k in range(2): P.e(f"v_cndmask_b32 {v(AC+k)}, {v(AC+2*k)}, {v(AC+2*k+1)}, s[74:75]")
        P.e("s_mov_b32 s74, 0xf0f0f0f0\n s_mov_b32 s75, 0xf0f0f0f0")
        P.e(f"""v_cndmask_b32 {v(AC)}, {v(AC)}, {v(AC+1)}, s[74:75]
        v_mul_f32 {v(AC)}, 0xbfb8aa3b, {v(AC)}
        v_exp_f32 {v(AC)}, {v(AC)}
        v_add_f32 {v(AC)}, 1.0, {v(AC)}
        v_rcp_f32 {v(AC)}, {v(AC)}
        s_lshl_b32 s3, {sA}, 8
        s_add_u32 s3, s3, {WS_G}
        v_lshlrev_b32 {v(T0)}, 2, {v(VL)}
        buffer_store_dword {v(AC)}, {v(T0)}, {WS}, s3 offen sc1""")
    def compute_g(): compute(SET[0], t1)
    with_prog(Pg, gate)
    return n0, Pg, VF

def build():
    global slow_paths, stamp_names
    slow_paths = []; stamp_names = []
    pro = Prog()
    pro.e(f"""
    s_load_dwordx16 s[40:55], s[0:1], 0
    s_load_dwordx8 s[56:63], s[0:1], 64
    s_load_dwordx4 s[64:67], s[0:1], 96
    s_cmp_lt_u32 s2, 256
    s_cbranch_scc1 L_go
    s_endpgm
    L_go:
    """)
    if cfg.stamps or cfg.fixdur: pro.e("s_memtime s[84:85]\n s_waitcnt lgkmcnt(0)\n s_mov_b32 s85, s84\n s_memrealtime s[52:53]")
    pro.e(f"""
    v_lshrrev_b32 v2, 6, v0
    v_and_b32 v1, 63, v0
    v_readfirstlane_b32 {sW}, v2
    """)
    if cfg.code_pf:
        pro.e(f"""
        s_getpc_b64 s[38:39]
        L_pc:
        s_lshr_b32 s3, s2, 3
        s_lshl_b32 s3, s3, 2
        s_add_u32 s3, s3, {sW}
        s_mul_i32 s3, s3, {cfg.pf_n}
        v_min_u32 v2, {cfg.pf_n-1}, v1
        v_add_u32 v2, s3, v2
        v_min_u32 v2, {cfg.pf_last}, v2
        v_lshlrev_b32 v2, 7, v2
        v_mov_b32 v3, s39
        v_add_co_u32 v2, vcc, s38, v2
        v_addc_co_u32 v3, vcc, 0, v3, vcc
        global_load_dword v255, v[2:3], off
        """)
    pro.e("s_cmp_ge_u32 s2, 224\n s_cbranch_scc1 L_aux")
    Pm = Prog(); Pm.items = list(pro.items); npro = len(pro.items)
    gen_main(Pm)
    main = Pm.finalize(cfg.verbose)
    Px = Prog(); Px.items = list(pro.items); Px.e("L_aux:")
    n0, Pg, VF = gen_aux(Px)
    ax = Px.finalize(); gx = Pg.finalize()
    cut = lambda lst, lab: lst[[i for i, x in enumerate(lst) if x.kind == 'label' and x.text == lab][0]:]
    tail = f"""L_auxdone:
    s_waitcnt vmcnt(0)
    s_barrier
    v_mov_b32 v9, 1
    buffer_atomic_add v9, v{VF}, {DBG}, 0 offen sc1
    s_endpgm"""
    body = text_of(main) + "\n" + emit_slow_paths() + "\n" + text_of(cut(ax, "L_aux:")) + "\n" + text_of(cut(gx, "L_gate:")) + "\n" + tail + "\nL_codeend:"
    hdr = open("gated_mix__ssm_conv_h3__swiglu_ffn__prompt.s.ref").read().split("; Override launch")[0] if cfg.header else ""
    pf = ""
    return f"""{hdr}; @launch grid=(256,1,1) block=(256,1,1) lds={LDS_BYTES}
.amdgcn_target "amdgcn-amd-amdhsa--gfx950"
.text
.globl {KNAME}
.p2align 8
.type {KNAME},@function
{KNAME}:
{body}
{pf}.section .rodata,"a"
.p2align 6
.amdhsa_kernel {KNAME}
  .amdhsa_next_free_vgpr 512
  .amdhsa_next_free_sgpr 102
  .amdhsa_accum_offset 256
  .amdhsa_group_segment_fixed_size 0
  .amdhsa_kernarg_size 112
  .amdhsa_user_sgpr_count 2
  .amdhsa_user_sgpr_kernarg_segment_ptr 1
  .amdhsa_system_sgpr_workgroup_id_x 1
.end_amdhsa_kernel
"""

cfg.verbose = False; cfg.header = True; cfg.fixdur = 0
cfg.g_arrive = 50; cfg.g_poll = 92; cfg.g_chk = 112; cfg.nh_c = 16
cfg.g2_arrive = 20; cfg.g2_poll = 44; cfg.g2_chk = 60
if __name__ == "__main__":
    out = sys.argv[1]
    for kv in sys.argv[2:]:
        k_, v_ = kv.split("=")
        setattr(cfg, k_, eval(v_))
    import subprocess, os
    cfg.pf_n = 1; cfg.pf_last = 100
    vb = cfg.verbose; cfg.verbose = False
    open(out, "w").write(build())
    subprocess.check_call(["clang", "-x", "assembler", "-target", "amdgcn-amd-amdhsa", "-mcpu=gfx950", "-c", out, "-o", "_gen.o"])
    sym = subprocess.check_output(["llvm-objdump", "-t", "_gen.o"], text=True)
    ad = {l.split()[-1]: int(l.split()[0], 16) for l in sym.splitlines() if " L_" in l}
    if cfg.code_pf:
        cfg.pf_last = (ad["L_codeend"] - ad["L_pc"] - 64) // 128
        cfg.pf_n = (cfg.pf_last + 128) // 128
    cfg.verbose = vb
    open(out, "w").write(build())
    print("code bytes", ad["L_codeend"], "aux at", ad["L_aux"])
    print("stamps:", stamp_names)
```

```python
import sys, math
from fw import *
KNAME = "gated_mix__ssm_conv_h3__swiglu_ffn__prompt_kernel"

class Cfg:
    stamps = False
    PD = 4
    sc_h_load = "sc1"
    code_pf = True
cfg = Cfg()

WS_FLAG = 0x0; WS_G = 0x8000; WS_UR = 0x100000; WS_YT = 0x300000; WS_H = 0x500000
WS_STAMP = 0xC00000; WS_SIZE = 0xD00000
NQ = 1835008; NW = 1605632
SLOT = 28672; PIECE = 7168
HC = 4 * SLOT; CPY = 4160; HCCH = 4 * CPY
UL = HC + 2 * HCCH; UCH = 4608
LDS_BYTES = 163840
YL = HC; QL = HC + 8192
assert UL + 2 * UCH <= LDS_BYTES
X, WG, WU, WD, SK, WS, OUT, DBG = ["s[%d:%d]" % (b, b + 3) for b in (4, 8, 12, 16, 20, 24, 28, 32)]
sW = "s36"; sT0 = "s37"; sT1 = "s38"; sT2 = "s39"
sM0P = "s68"
sXB = "s69"
sWB = "s70"
sDB = "s71"
sHS = "s72"
sHL = ["s73", "s74"]
sNL2E = "s75"
sSO = "s76"; sSO2 = "s77"
sD = "s78"; sI2 = "s79"; sCT = "s80"; sKH = "s81"; sCNT = "s82"; sM = "s83"; sMASK = "s84"
STAMP_REGS = [86, 88, 90, 92, 94, 96, 40, 42, 44, 46, 54, 56, 58, 60, 62, 64, 66, 48, 50]
NSTAMP = len(STAMP_REGS)

def v(i, n=1): return "v%d" % i if n == 1 else "v[%d:%d]" % (i, i + n - 1)
def a(i, n=1): return "a%d" % i if n == 1 else "a[%d:%d]" % (i, i + n - 1)

stamp_names = []
def stamp(name):
    if not cfg.stamps: return []
    i = len(stamp_names); stamp_names.append(name)
    assert i < NSTAMP
    return [Ins("s_memtime s[%d:%d]" % (STAMP_REGS[i], STAMP_REGS[i] + 1))]

slow_paths = []
def poll_check(name, vdst, vaddr, srd, want):
    slow_paths.append((name, vdst, vaddr, srd, want))
    return [Ins("v_cmp_gt_u32 vcc, %d, %s" % (want, vdst)), Ins("s_cbranch_vccnz L_slow_%s" % name), Ins("L_back_%s:" % name)]
def emit_slow_paths():
    t = []
    for name, vdst, vaddr, srd, want in slow_paths:
        t += ["L_slow_%s:" % name, "s_mov_b32 %s, 0" % sCNT, "L_spin_%s:" % name,
              "buffer_load_dword %s, %s, %s, 0 offen sc1" % (vdst, vaddr, srd),
              "s_add_u32 %s, %s, 1" % (sCNT, sCNT), "s_waitcnt vmcnt(0)",
              "v_cmp_gt_u32 vcc, %d, %s" % (want, vdst),
              "s_cmp_gt_u32 %s, 0x40000" % sCNT, "s_cbranch_scc1 L_back_%s" % name,
              "s_cbranch_vccz L_back_%s" % name, "s_sleep 2", "s_branch L_spin_%s" % name]
    return "\n".join(l if l.endswith(":") else "    " + l for l in t)

def srd(P, reg, lo, size):
    b = int(reg[2:reg.index(':')])
    P.e("s_mov_b32 s%d, s%d" % (b, lo)); P.e("s_mov_b32 s%d, s%d" % (b + 1, lo + 1))
    P.e("s_mov_b32 s%d, 0x%x" % (b + 2, size)); P.e("s_mov_b32 s%d, 0x20000" % (b + 3))

def gen_main(P):
    PD = cfg.PD
    VL = 1
    VXa = [2, 3, 4]; VWg = [5, 6]; VWu = [7, 8]; VXb = [9, 10, 11, 12]; VD = [13, 14, 15, 16]
    XR = [[17, 18, 19, 20], [21, 22, 23, 24]]; WR = [25, 26, 27]; DR = [[28, 29], [30, 31]]
    V16 = 32; T0 = 33; T1 = 34; T2 = 35; T3 = 36
    VPOLL = 37; VFLAG = 38; VPV = 39; CA = 40; CB = 41; VHW = 42; VZ = 44
    ACC = [48, 64, 80, 96]; XRING = 112; NXR = 6; ET = 136; PK = [140, 144]
    HR = 160
    P.e(f"""
    s_and_b32 {sT0}, s2, 7
    s_lshr_b32 {sT1}, s2, 3
    s_mul_i32 {sT2}, {sT1}, 37
    s_lshr_b32 {sT2}, {sT2}, 8
    s_mul_i32 s3, {sT2}, 7
    s_sub_u32 {sCT}, {sT1}, s3
    s_lshl_b32 s3, {sT0}, 2
    s_add_u32 {sI2}, s3, {sT2}
    s_lshr_b32 s3, {sT0}, 2
    s_lshl_b32 s3, s3, 2
    s_add_u32 {sT2}, s3, {sT2}
    s_and_b32 {sT0}, {sT0}, 3
    s_mul_i32 {sT1}, {sT0}, 7
    s_add_u32 {sT1}, {sT1}, {sCT}
    """)
    P.e(f"""
    s_mul_i32 {sM0P}, {sW}, {PIECE}
    s_mul_i32 {sXB}, {sT2}, {256*896}
    s_add_u32 {sXB}, {sXB}, {sM0P}
    s_mul_i32 {sWB}, {sW}, {16*3584}
    s_lshl_b32 s3, {sT1}, 7
    s_add_u32 {sWB}, {sWB}, s3
    """)
    P.e(f"""
    v_lshrrev_b32 {v(T0)}, 3, {v(VL)}
    v_and_b32 {v(T1)}, 7, {v(VL)}
    v_lshrrev_b32 {v(T2)}, 4, {v(VL)}
    s_lshl_b32 s3, {sW}, 2
    v_add_u32 {v(T3)}, s3, {v(T2)}
    v_and_b32 {v(T3)}, 7, {v(T3)}
    v_xor_b32 {v(T3)}, {v(T1)}, {v(T3)}
    v_lshlrev_b32 {v(T3)}, 4, {v(T3)}
    v_mul_u32_u24 {v(VXa[0])}, 896, {v(T0)}
    v_add_u32 {v(VXa[0])}, {v(VXa[0])}, {v(T3)}
    v_add_u32 {v(VXa[1])}, {28672-1024}, {v(VXa[0])}
    v_add_u32 {v(VXa[2])}, {2*(28672-1024)}, {v(VXa[0])}
    v_and_b32 {v(T2)}, 1, {v(T2)}
    v_lshlrev_b32 {v(T2)}, 1, {v(T2)}
    v_xor_b32 {v(T3)}, {v(T1)}, {v(T2)}
    v_lshlrev_b32 {v(T3)}, 4, {v(T3)}
    v_mul_u32_u24 {v(VWg[0])}, 3584, {v(T0)}
    v_add_u32 {v(VWg[0])}, {v(VWg[0])}, {v(T3)}
    v_add_u32 {v(VWg[1])}, {28672-1024}, {v(VWg[0])}
    v_xor_b32 {v(VWu[0])}, 64, {v(VWg[0])}
    v_add_u32 {v(VWu[1])}, {28672-1024}, {v(VWu[0])}
    """)
    P.e("s_waitcnt lgkmcnt(0)")
    srd(P, X, 40, NQ); srd(P, WG, 54, NW); srd(P, WU, 56, NW)

    def dma_item(i):
        sl = (i % 5) * SLOT; tag = "it%d" % i; L = []
        if i < 7:
            L.append(f"s_add_u32 m0, {sM0P}, {sl}\n s_add_u32 {sSO}, {sXB}, {128*i}")
            for rt in range(3): L.append(Ins(f"buffer_load_dwordx4 {v(VXa[rt])}, {X}, {sSO} offen offset:{1024*rt} lds", tag))
            L.append(f"s_add_u32 m0, {sM0P}, {sl+3072}\n s_add_u32 {sSO}, {sWB}, {64*3584*i}")
            for j in range(2): L.append(Ins(f"buffer_load_dwordx4 {v(VWg[j])}, {WG}, {sSO} offen offset:{1024*j} lds", tag))
            L.append(f"s_add_u32 m0, {sM0P}, {sl+5120}")
            for j in range(2): L.append(Ins(f"buffer_load_dwordx4 {v(VWu[j])}, {WU}, {sSO} offen offset:{1024*j} lds", tag))
        else:
            T = i - 4
            L.append(f"s_add_u32 m0, {sM0P}, {sl}\n s_add_u32 {sSO}, {sXB}, {28672*T-3072}")
            for k in range(4): L.append(Ins(f"buffer_load_dwordx4 {v(VXb[k])}, {X}, {sSO} offen offset:{1024*k} lds", tag))
            L.append(f"s_add_u32 m0, {sM0P}, {sl+4096}\n s_add_u32 {sSO}, {sXB}, {28672*T-3072+512}")
            for k in range(3): L.append(Ins(f"buffer_load_dwordx4 {v(VXb[k])}, {X}, {sSO} offen offset:{1024*k} lds", tag))
        return L
    for i in range(5): P.add(dma_item(i))
    P.add(stamp("issued"))
    srd(P, WD, 58, NW); srd(P, WS, 66, WS_SIZE); srd(P, OUT, 62, NQ); srd(P, DBG, 64, 256)
    P.e(f"""
    s_lshr_b32 s3, {sW}, 1
    s_and_b32 {sKH}, {sW}, 1
    s_lshl_b32 {sM}, s2, 1
    s_add_u32 {sM}, {sM}, s3
    s_lshl_b32 s3, {sM}, 12
    s_add_u32 s20, s48, s3
    s_addc_u32 s21, s49, 0
    s_mov_b32 s22, 4096
    s_mov_b32 s23, 0x20000
    s_lshl_b32 s3, s2, 2
    s_load_dword {sD}, s[50:51], s3
    s_mov_b32 {sNL2E}, 0xbfb8aa3b
    s_mov_b32 {sMASK}, 0xffff0000
    s_mul_i32 {sHS}, {sT2}, {8*112}
    s_lshl_b32 s3, {sT1}, 2
    s_add_u32 {sHS}, {sHS}, s3
    s_add_u32 {sHS}, {sHS}, {sW}
    s_lshl_b32 {sHS}, {sHS}, 10
    s_add_u32 {sHS}, {sHS}, {WS_H}
    s_mul_i32 {sDB}, {sW}, {448*896}
    s_lshl_b32 s3, {sCT}, 7
    s_add_u32 {sDB}, {sDB}, s3
    v_lshlrev_b32 {v(V16)}, 4, {v(VL)}
    """)
    P.e(f"""
    s_lshl_b32 s3, {sT2}, 2
    s_add_u32 s3, s3, {sT0}
    s_lshl_b32 s3, s3, 8
    v_mov_b32 {v(VFLAG)}, s3
    v_mov_b32 {v(T3)}, -16
    v_cmp_eq_u32 vcc, 0, v0
    v_cndmask_b32 {v(VFLAG)}, {v(T3)}, {v(VFLAG)}, vcc
    v_mov_b32 {v(VPOLL)}, 0
    """)
    for k in range(4): P.e(f"v_add_u32 {v(VXb[k])}, {3072-896*k}, {v(VXa[0])}")
    P.e(f"""
    v_lshlrev_b32 {v(T3)}, 1, {v(T2)}
    v_xor_b32 {v(T3)}, {v(T1)}, {v(T3)}
    v_lshlrev_b32 {v(T3)}, 4, {v(T3)}
    v_mul_u32_u24 {v(VD[0])}, 896, {v(T0)}
    v_add_u32 {v(VD[0])}, {v(VD[0])}, {v(T3)}
    """)
    for k in range(1, 4): P.e(f"v_add_u32 {v(VD[k])}, {6144*k}, {v(VD[0])}")
    P.e(f"""
    v_and_b32 {v(T0)}, 31, {v(VL)}
    v_lshrrev_b32 {v(T1)}, 3, {v(T0)}
    v_mul_u32_u24 {v(T1)}, {PIECE}, {v(T1)}
    v_and_b32 {v(T2)}, 7, {v(T0)}
    v_lshl_add_u32 {v(T1)}, {v(T2)}, 7, {v(T1)}
    v_lshrrev_b32 {v(T2)}, 1, {v(T0)}
    v_and_b32 {v(T2)}, 7, {v(T2)}
    v_lshrrev_b32 {v(T3)}, 5, {v(VL)}
    v_xor_b32 {v(T2)}, {v(T2)}, {v(T3)}
    v_lshl_add_u32 {v(XR[0][0])}, {v(T2)}, 4, {v(T1)}
    """)
    for k in range(1, 4): P.e(f"v_xor_b32 {v(XR[0][k])}, {32*k}, {v(XR[0][0])}")
    for k in range(4): P.e(f"v_add_u32 {v(XR[1][k])}, {3*SLOT}, {v(XR[0][k])}")
    P.e(f"""
    v_bfe_u32 {v(T0)}, {v(VL)}, 2, 2
    v_lshl_add_u32 {v(T1)}, {v(T3)}, 3, {v(T0)}
    v_lshlrev_b32 {v(T1)}, 7, {v(T1)}
    v_bfe_u32 {v(T2)}, {v(VL)}, 1, 1
    v_lshl_add_u32 {v(T1)}, {v(T2)}, 11, {v(T1)}
    v_lshlrev_b32 {v(T2)}, 1, {v(T2)}
    v_lshrrev_b32 {v(T0)}, 1, {v(T0)}
    v_add_u32 {v(T2)}, {v(T2)}, {v(T0)}
    v_xor_b32 {v(T2)}, {sW}, {v(T2)}
    v_lshl_add_u32 {v(T1)}, {v(T2)}, 5, {v(T1)}
    v_bfe_u32 {v(T2)}, {v(VL)}, 4, 1
    v_lshl_add_u32 {v(T1)}, {v(T2)}, 4, {v(T1)}
    v_and_b32 {v(T2)}, 1, {v(VL)}
    v_lshl_add_u32 {v(T1)}, {v(T2)}, 3, {v(T1)}
    v_add_u32 {v(WR[0])}, 3072, {v(T1)}
    v_add_u32 {v(WR[1])}, {2*SLOT}, {v(WR[0])}
    v_add_u32 {v(WR[2])}, {4*SLOT}, {v(WR[0])}
    """)
    P.e(f"""
    v_bfe_u32 {v(T1)}, {v(VL)}, 2, 2
    v_lshl_add_u32 {v(T1)}, {v(T3)}, 2, {v(T1)}
    v_lshlrev_b32 {v(T1)}, 7, {v(T1)}
    s_lshr_b32 s3, {sW}, 1
    v_xor_b32 {v(T2)}, s3, {v(T0)}
    v_lshl_add_u32 {v(T1)}, {v(T2)}, 6, {v(T1)}
    v_bfe_u32 {v(T2)}, {v(VL)}, 4, 1
    v_lshl_add_u32 {v(T1)}, {v(T2)}, 5, {v(T1)}
    v_and_b32 {v(T2)}, 3, {v(VL)}
    v_lshl_add_u32 {v(T1)}, {v(T2)}, 3, {v(T1)}
    v_add_u32 {v(DR[0][0])}, {sM0P}, {v(T1)}
    v_xor_b32 {v(DR[0][1])}, 64, {v(DR[0][0])}
    v_add_u32 {v(DR[1][0])}, {2*SLOT}, {v(DR[0][0])}
    v_add_u32 {v(DR[1][1])}, {2*SLOT}, {v(DR[0][1])}
    """)
    P.e(f"""
    s_lshl_b32 s3, {sKH}, 11
    v_add_u32 {v(T0)}, s3, {v(V16)}
    v_add_u32 {v(T1)}, -16, {v(T0)}
    v_add_u32 {v(T2)}, 1008, {v(T0)}
    buffer_load_dwordx4 {v(HR,4)}, {v(T1)}, {SK}, 0 offen
    buffer_load_dwordx4 {v(HR+4,4)}, {v(T0)}, {SK}, 0 offen
    buffer_load_dwordx4 {v(HR+8,4)}, {v(T2)}, {SK}, 0 offen
    buffer_load_dwordx4 {v(HR+12,4)}, {v(T0)}, {SK}, 0 offen offset:1024
    """)
    P.e(f"""
    s_lshr_b32 s3, {sW}, 1
    s_mul_i32 {sT0}, s3, {HCCH}
    s_add_u32 {sT0}, {sT0}, {HC}
    s_mul_i32 {sT1}, s3, {UCH}
    s_add_u32 {sT1}, {sT1}, {UL}
    s_lshl_b32 s3, {sKH}, 11
    s_add_u32 s3, s3, {sT0}
    s_add_u32 s3, s3, 32
    v_add_u32 {v(VHW)}, s3, {v(V16)}
    v_and_b32 {v(T0)}, 15, {v(VL)}
    v_lshrrev_b32 {v(T1)}, 4, {v(VL)}
    v_sub_u32 {v(T2)}, 3, {v(T0)}
    v_and_b32 {v(T2)}, 3, {v(T2)}
    v_add3_u32 {v(T3)}, {v(T0)}, {v(T2)}, 1
    v_lshl_add_u32 {v(T3)}, {v(T1)}, 3, {v(T3)}
    v_lshlrev_b32 {v(T3)}, 1, {v(T3)}
    v_mul_u32_u24 {v(T2)}, {CPY}, {v(T2)}
    s_lshl_b32 s3, {sKH}, 8
    s_add_u32 {sT0}, {sT0}, s3
    v_add3_u32 {v(CA)}, {v(T2)}, {v(T3)}, {sT0}
    v_lshlrev_b32 {v(T0)}, 5, {v(T0)}
    v_lshlrev_b32 {v(T1)}, 4, {v(T1)}
    v_sub_u32 {v(T1)}, {v(T1)}, {v(T0)}
    s_add_u32 s3, s3, {sT1}
    s_add_u32 s3, s3, 480
    v_add_u32 {v(CB)}, s3, {v(T1)}
    """)
    for k in range(4): P.e(f"v_mov_b32 {v(VZ+k)}, 0")
    P.e(f"""
    v_lshrrev_b32 {v(T0)}, 5, {v(VL)}
    v_mul_u32_u24 {v(T0)}, {UCH}, {v(T0)}
    v_and_b32 {v(T1)}, 31, {v(VL)}
    v_lshl_add_u32 {v(T0)}, {v(T1)}, 4, {v(T0)}
    v_add_u32 {v(T0)}, {UL+4096}, {v(T0)}
    ds_write_b128 {v(T0)}, {v(VZ,4)}
    v_and_b32 {v(T0)}, 15, {v(VL)}
    v_lshrrev_b32 {v(T1)}, 1, {v(T0)}
    v_mul_u32_u24 {v(T1)}, {CPY}, {v(T1)}
    v_and_b32 {v(T0)}, 1, {v(T0)}
    v_lshl_add_u32 {v(T0)}, {v(T0)}, 4, {v(T1)}
    v_add_u32 {v(T3)}, {HC}, {v(T0)}
    s_waitcnt lgkmcnt(0)
    s_lshl_b32 s3, {sD}, 16
    s_and_b32 {sD}, {sD}, {sMASK}
    s_cmp_lt_u32 {sW}, 2
    s_cselect_b32 {sD}, s3, {sD}
    """)
    VHZ = T3

    NG = 224
    G = Gaps(NG)
    def item_start(i): return 12 * i if i <= 7 else 84 + 28 * (i - 7)
    def xread(g):
        if g < 84: c = g // 12; ks = (g % 12) // 3; unit = g % 3; it = c
        else: it = 7 + (g - 84) // 28; k = (g - 84) % 28; ks = k % 4; unit = k // 4
        sl = it % 5; hi = 1 if sl >= 3 else 0
        off = (sl - 3 * hi) * SLOT + 1024 * unit
        r = XRING + 4 * (g % NXR)
        return f"ds_read_b128 {v(r,4)}, {v(XR[hi][ks])} offset:{off}"
    def wread(c, ks):
        sl = c % 5; var = sl // 2; off = (sl - 2 * var) * SLOT + PIECE * ks; f = 4 * (4 * c + ks)
        return [f"ds_read_b64_tr_b16 {a(f+2*rd,2)}, {v(WR[var])} offset:{off+512*rd}" for rd in range(2)]
    tile_acc = {0: 0, 1: 1, 2: 2, 3: 3, 4: 0, 5: 1, 6: 2, 7: 3}
    for g in range(NG):
        if g < 84: c = g // 12; ks = 4 * c + (g % 12) // 3; T = g % 3
        else: T = 3 + (g - 84) // 28; ks = (g - 84) % 28
        A = v(ACC[tile_acc[T]], 16)
        G.m[g] = f"v_mfma_f32_32x32x16_bf16 {A}, {a(4*ks,4)}, {v(XRING+4*(g%NXR),4)}, {'0' if ks == 0 else A}"
    pre = []
    def at(g, item):
        if g < 0: pre.append(item)
        else: G.put(g, item)
    for i in range(12):
        g0 = item_start(i) - PD - 1
        at(g0, [WaitTag('vm', "it%d" % i), Ins("s_barrier")])
    for g in range(NG):
        if g < 84 and g % 3 == 0:
            for s_ in wread(g // 12, (g % 12) // 3): at(g - PD - 1, s_)
        at(g - PD - 1, xread(g))
    for i in range(2, 9):
        g0 = item_start(i) - PD
        span = 11 if i < 7 else 24
        G.spread(dma_item(i + 3), g0, g0 + span)
    hv = []
    for rho in range(2):
        R = HR + 8 * rho; C = 176 + 12 * rho
        for k in range(4): hv.append(f"v_alignbit_b32 {v(C+k)}, {v(R+4+k)}, {v(R+3+k)}, 16")
        for k in range(4): hv.append(f"v_mov_b32 {v(C+4+k)}, {v(R+3+k)}")
        for k in range(4): hv.append(f"v_alignbit_b32 {v(C+8+k)}, {v(R+3+k)}, {v(R+2+k)}, 16")
    G.spread(hv, 50, 78)
    hw = [Ins(f"ds_write_b128 {v(VHZ)}, {v(VZ,4)}", "hcw")]
    for rho in range(2):
        R = HR + 8 * rho; C = 176 + 12 * rho
        for cpy, src in enumerate((R + 4, C, C + 4, C + 8)):
            hw.append(Ins(f"ds_write_b128 {v(VHW)}, {v(src,4)} offset:{cpy*CPY+1024*rho}", "hcw"))
    def epi(T):
        A = ACC[tile_acc[T]]; Pk = PK[T % 2]; L = []
        for grp in range(2):
            g_ = A + 8 * grp; u_ = g_ + 4
            L += [f"v_mul_f32 {v(ET+i)}, {sNL2E}, {v(g_+i)}" for i in range(4)]
            L += [f"v_exp_f32 {v(ET+i)}, {v(ET+i)}" for i in range(4)]
            L += [f"v_mul_f32 {v(u_+i)}, {v(g_+i)}, {v(u_+i)}" for i in range(2)]
            L += [f"v_add_f32 {v(ET+i)}, 1.0, {v(ET+i)}" for i in range(4)]
            L += [f"v_rcp_f32 {v(ET+i)}, {v(ET+i)}" for i in range(4)]
            L += [f"v_mul_f32 {v(u_+i)}, {v(g_+i)}, {v(u_+i)}" for i in range(2, 4)]
            L += [f"v_mul_f32 {v(u_+i)}, {v(u_+i)}, {v(ET+i)}" for i in range(4)]
            L += [f"v_cvt_pk_bf16_f32 {v(Pk+2*grp+i)}, {v(u_+2*i)}, {v(u_+2*i+1)}" for i in range(2)]
        L.append(f"s_add_u32 {sSO2}, {sHS}, {T*112*1024}")
        L.append(Ins(f"buffer_store_dwordx4 {v(Pk,4)}, {v(V16)}, {WS}, {sSO2} offen sc1", "hst"))
        return L
    page_slot = [2, 3, 0, 1]
    def wd_page(n):
        if n < 28: return n % 14
        if n < 42: return 14 + (n - 28)
        return n - 42
    def wd_dma(n0, n1):
        L = []; n = n0
        while n < n1:
            p = wd_page(n); cnt = min(4, n1 - n, 7 - p % 7)
            lds = page_slot[p // 7] * SLOT + 1024 * (p % 7)
            L.append(f"s_add_u32 m0, {sM0P}, {lds}\n s_add_u32 {sSO}, {sDB}, {7168*n}")
            for k in range(cnt):
                it = [Ins(f"buffer_load_dwordx4 {v(VD[k])}, {WD}, {sSO} offen offset:{1024*k} lds", "wd%d" % (n + k))]
                prev = mm_prev(n + k)
                if prev is not None: it = [WaitTag('lgkm', "wr%d" % prev)] + it
                L.append(it)
            n += cnt
        return L
    def mm_prev(n):
        if 14 <= n < 28: return n - 14
        if n >= 42: return n - 28
        return None
    def wd_read(n, dst):
        p = wd_page(n); sl = page_slot[p // 7]; hi = 1 if sl >= 2 else 0
        off = (sl - 2 * hi) * SLOT + 1024 * (p % 7)
        return [[WaitTag('vm', "wd%d" % n)] * (dt == 0) + [Ins(f"ds_read_b64_tr_b16 {dst(dt)}, {v(DR[hi][dt])} offset:{off}", "wr%d" % n)] for dt in range(2)]
    WD1 = 112
    def wd1(n): return lambda dt: a(WD1 + 8 * (n >> 1) + 4 * dt + 2 * (n & 1), 2)
    gT = lambda T: item_start(T + 4)
    G.spread(wd_dma(0, 7), gT(5) - PD, gT(5) + 16)
    G.spread(wd_dma(7, 14), gT(6) - PD, gT(6) + 8)
    rd = []
    for n in range(0, 7): rd += wd_read(n, wd1(n))
    G.spread(rd, gT(6) + 2, gT(6) + 14)
    G.spread(wd_dma(14, 21), gT(6) + 16, gT(6) + 27)
    rd = []
    for n in range(7, 14): rd += wd_read(n, wd1(n))
    G.spread(rd, gT(7) + 2, gT(7) + 14)
    G.spread(wd_dma(21, 28), gT(7) + 16, gT(7) + 27)
    G.spread(hw, gT(7) - PD, gT(7) + 20)
    G.put(gT(6) + 4, Ins(f"buffer_load_dword {v(VPV)}, {v(VPOLL)}, {DBG}, 0 offen sc1"))
    G.put(gT(7), poll_check("p", v(VPV), v(VPOLL), DBG, 32))
    ud = [f"""s_lshr_b32 s3, {sW}, 1
              s_mul_i32 s3, s3, {UCH}""", f"""s_lshl_b32 {sT0}, {sKH}, 11
              s_add_u32 s3, s3, {sT0}""", f"""s_add_u32 m0, s3, {UL}
              s_lshl_b32 s3, {sM}, 12""", f"""s_add_u32 {sT0}, {sT0}, s3
              s_add_u32 {sT0}, {sT0}, {WS_UR}"""]
    G.put(gT(7) + 1, ud + [Ins(f"buffer_load_dwordx4 {v(V16)}, {WS}, {sT0} offen offset:{1024*j} sc1 lds", "u") for j in range(2)])
    bounds = [84 + 2 + (140 - 4) * k // 7 for k in range(8)]
    last = 0
    for T in range(7):
        g0 = max(bounds[T], (84 if T < 3 else gT(T + 1)) + 2, last)
        last = G.pour(epi(T), g0, max(bounds[T + 1], g0 + 1), 24)
        nxt = [t for t in range(T + 1, 8) if tile_acc[t] == tile_acc[T]]
        if nxt: assert last < (gT(nxt[0])), (T, last)
    check_m0(G)
    P.add(pre)
    P.add(stamp("g1start"))
    G.emit(P)
    if cfg.verbose: print("G1 gap costs", G.costs())
    P.add(stamp("g1end"))
    P.vmwait("u"); P.lgwait("hcw"); P.e("s_barrier")
    CACC = 48
    def cA(buf, a_): return (0 if buf == 0 else 64) + 4 * a_
    def cB(buf, b_):
        i = 32 + 4 * b_ if buf == 0 else 96 + 4 * b_
        return i if i < 112 else 224 + (i - 112)
    def creads(st):
        buf = st & 1; L = []
        for k in range(8):
            L.append(f"ds_read_b128 {a(cB(buf,k),4)}, {v(CB)} offset:{64*st+512*(7-k)}")
            for rd in range(2): L.append(f"ds_read_b64 {a(cA(buf,k)+2*rd,2)}, {v(CA)} offset:{512*k+64*st+8*rd}")
        return L
    e7 = epi(7)
    d2 = wd_dma(28, 42); c0 = creads(0)
    P.add(c0[:12])
    k = 0; rest = c0[12:] + d2
    for j, it in enumerate(e7):
        P.add(it)
        if j % 2 == 1 and k < len(rest) and j < len(e7) - 3: P.add(rest[k]); k += 1
    P.add(rest[k:])
    P.e(f"""
    s_lshr_b32 s3, {sI2}, 2
    s_lshl_b32 s3, s3, 2
    s_add_u32 s3, s3, {sW}
    s_lshl_b32 s3, s3, 8
    v_mov_b32 {v(VPOLL)}, s3
    s_lshl_b32 s3, {sI2}, 1
    s_add_u32 {sT0}, s3, {sKH}
    s_xor_b32 {sT1}, {sT0}, 1
    s_mul_i32 {sT0}, {sT0}, 112
    s_mul_i32 {sT1}, {sT1}, 112
    s_mul_i32 s3, {sW}, 28
    s_add_u32 {sT0}, {sT0}, s3
    s_add_u32 {sT1}, {sT1}, s3
    s_lshl_b32 {sT0}, {sT0}, 10
    s_lshl_b32 {sT1}, {sT1}, 10
    s_add_u32 {sHL[0]}, {sT0}, {WS_H}
    s_add_u32 {sHL[1]}, {sT1}, {WS_H}
    v_mov_b32 {v(T0)}, 1
    """)
    P.add(stamp("cstart"))
    C = Gaps(144)
    pairs = [(t, a_) for t in range(8) for a_ in range(t + 1)]
    for st in range(4):
        for j, (t, a_) in enumerate(pairs):
            A = v(CACC + 4 * t, 4)
            first = (st == 0 and a_ == 0)
            C.m[36 * st + j] = f"v_mfma_f32_16x16x32_bf16 {A}, {a(cA(st&1,a_),4)}, {a(cB(st&1,t-a_),4)}, {'0' if first else A}"
        if st < 3: C.spread(creads(st + 1), 36 * st + 1, 36 * st + 30)
    HRING = 96; NHR = 40
    def hload(n):
        ks = n >> 1; stl = n & 1; L = []
        if ks % 4 == 0 and ks > 0: L.append(f"s_add_u32 {sHL[stl]}, {sHL[stl]}, 4096")
        L.append(f"buffer_load_dwordx4 {v(HRING+4*(n%NHR),4)}, {v(V16)}, {WS}, {sHL[stl]} offen offset:{1024*(ks%4)} {cfg.sc_h_load}")
        return L
    rd = []
    for n in range(14, 28): rd += wd_read(n, wd1(n))
    C.pour(rd, 4, 60, 12)
    C.put(cfg.g_arrive, [WaitTag('vm', "hst"), Ins("s_barrier"), Ins(f"buffer_atomic_add {v(T0)}, {v(VFLAG)}, {WS}, 0 offen sc1")])
    gl = C.pour(wd_dma(42, 56), 62, 90, 12)
    C.put(cfg.g_poll, Ins(f"buffer_load_dword {v(VPV)}, {v(VPOLL)}, {WS}, 0 offen sc1"))
    C.put(cfg.g_chk, poll_check("h", v(VPV), v(VPOLL), WS, 7))
    NH_C = cfg.nh_c
    C.pour([hload(n) for n in range(NH_C)], cfg.g_chk + 1, 143, 12)
    check_m0(C)
    C.emit(P)
    if cfg.verbose: print("C gap costs", C.costs())
    Y = 80
    RR = 2
    RR = 2; UU = 18
    P.e(f"""
    s_lshl_b32 s3, {sW}, 12
    s_add_u32 s3, s3, {HC}
    v_add_u32 {v(T1)}, s3, {v(V16)}
    v_xor_b32 {v(T2)}, 4096, {v(T1)}
    v_and_b32 {v(T3)}, 15, {v(VL)}
    v_lshlrev_b32 {v(T3)}, 5, {v(T3)}
    v_lshrrev_b32 {v(26)}, 4, {v(VL)}
    v_lshl_add_u32 {v(T3)}, {v(26)}, 3, {v(T3)}
    s_lshr_b32 s3, {sW}, 1
    s_mul_i32 s3, s3, {UCH}
    s_lshl_b32 {sT0}, {sKH}, 11
    s_sub_u32 s3, s3, {sT0}
    s_add_u32 s3, s3, {UL+504+2048}
    v_sub_u32 {v(T3)}, s3, {v(T3)}
    s_barrier
    """)
    for tau in range(4): P.e(f"ds_read_b64 {v(UU+2*tau,2)}, {v(T3)} offset:{512*(3-tau)}")
    P.e(f"s_cmp_eq_u32 {sKH}, 0\n s_cbranch_scc1 L_cw0")
    for tau in range(4): P.e(f"ds_write_b128 {v(T1)}, {v(CACC+4*tau,4)} offset:{1024*tau}", nocount=True)
    P.e("s_branch L_cw1\n L_cw0:")
    for tau in range(4): P.e(f"ds_write_b128 {v(T1)}, {v(CACC+16+4*tau,4)} offset:{1024*tau}")
    P.e("L_cw1:\n s_waitcnt lgkmcnt(0)\n s_barrier")
    for tau in range(4): P.e(f"ds_read_b128 {v(RR+4*tau,4)}, {v(T2)} offset:{1024*tau}")
    P.e(f"""
    v_and_b32 {v(T1)}, 3, {v(VL)}
    v_lshlrev_b32 {v(T1)}, 4, {v(T1)}
    v_bfe_u32 {v(T3)}, {v(VL)}, 2, 2
    v_lshl_add_u32 {v(T1)}, {v(T3)}, 7, {v(T1)}
    v_bfe_u32 {v(T3)}, {v(VL)}, 4, 1
    v_lshl_add_u32 {v(T1)}, {v(T3)}, 9, {v(T1)}
    v_lshrrev_b32 {v(T3)}, 5, {v(VL)}
    v_lshl_add_u32 {v(T1)}, {v(T3)}, 6, {v(T1)}
    s_lshl_b32 s3, {sM}, 12
    s_add_u32 s3, s3, {sT0}
    s_add_u32 {sSO}, s3, {WS_YT}
    s_waitcnt lgkmcnt(0)
    s_cmp_eq_u32 {sKH}, 0
    s_cbranch_scc1 L_ca0
    """)
    for k in range(16): P.e(f"v_add_f32 {v(Y+k)}, {v(CACC+16+k)}, {v(RR+k)}")
    P.e("s_branch L_ca1\n L_ca0:")
    for k in range(16): P.e(f"v_add_f32 {v(Y+k)}, {v(CACC+k)}, {v(RR+k)}")
    P.e("L_ca1:")
    for tau in range(4):
        P.e(f"""
        v_and_b32 {v(RR+4*tau+0)}, {sMASK}, {v(UU+2*tau+1)}
        v_lshlrev_b32 {v(RR+4*tau+1)}, 16, {v(UU+2*tau+1)}
        v_and_b32 {v(RR+4*tau+2)}, {sMASK}, {v(UU+2*tau)}
        v_lshlrev_b32 {v(RR+4*tau+3)}, 16, {v(UU+2*tau)}
        """)
    for k in range(16): P.e(f"v_fmac_f32 {v(Y+k)}, {sD}, {v(RR+k)}")
    for k in range(8): P.e(f"v_cvt_pk_bf16_f32 {v(RR+k)}, {v(Y+2*k)}, {v(Y+2*k+1)}")
    for pi in range(2):
        P.e(f"v_permlane16_swap_b32 {v(RR+4*pi)}, {v(RR+4*pi+2)}\n v_permlane16_swap_b32 {v(RR+4*pi+1)}, {v(RR+4*pi+3)}")
    for pi in range(2):
        P.e(f"buffer_store_dwordx4 {v(RR+4*pi,4)}, {v(T1)}, {WS}, {sSO} offen offset:{1024*pi} sc1", tag="yst")
    VY = [10, 11]; VQ = [12, 13]; VG = 14; VGA = 15; VFY = 16; VPY = 17
    P.e(f"""
    v_lshrrev_b32 {v(T1)}, 3, {v(VL)}
    v_and_b32 {v(T2)}, 7, {v(VL)}
    v_lshlrev_b32 {v(T3)}, 12, {v(T1)}
    v_lshl_add_u32 {v(VY[0])}, {v(T2)}, 4, {v(T3)}
    v_add_u32 {v(VY[1])}, {32768-1024}, {v(VY[0])}
    v_lshrrev_b32 {v(T3)}, 4, {v(VL)}
    v_xor_b32 {v(T2)}, {v(T2)}, {v(T3)}
    v_lshlrev_b32 {v(T2)}, 4, {v(T2)}
    v_mul_u32_u24 {v(T1)}, 896, {v(T1)}
    v_add_u32 {v(VQ[0])}, {v(T1)}, {v(T2)}
    v_xor_b32 {v(T2)}, 64, {v(T2)}
    v_add_u32 {v(T1)}, {7168-1024}, {v(T1)}
    v_add_u32 {v(VQ[1])}, {v(T1)}, {v(T2)}
    s_lshl_b32 s3, {sI2}, 1
    s_add_u32 s3, s3, {sKH}
    s_lshl_b32 s3, s3, 7
    s_add_u32 s3, s3, {WS_G}
    v_and_b32 {v(T1)}, 31, {v(VL)}
    v_lshl_add_u32 {v(VGA)}, {v(T1)}, 2, s3
    s_lshr_b32 s3, s2, 5
    s_lshl_b32 s3, s3, 8
    s_add_u32 s3, s3, {32*256}
    v_mov_b32 {v(VFY)}, s3
    v_mov_b32 {v(T1)}, -16
    v_cmp_eq_u32 vcc, 0, v0
    v_cndmask_b32 {v(VFY)}, {v(T1)}, {v(VFY)}, vcc
    s_lshl_b32 s3, {sCT}, 8
    s_add_u32 s3, s3, {32*256}
    v_mov_b32 {v(VPY)}, s3
    """)
    P.add(stamp("g2start"))
    GA = 32 + 16
    GACC = 0
    JIT = 64; NJ = 6
    G2 = Gaps(112)
    def wfrag(ks, dt):
        if ks < 14: return a(WD1 + 8 * ks + 4 * dt, 4)
        return a(JIT + 4 * ((2 * (ks - 14) + dt) % NJ), 4)
    for ks in range(28):
        for sg in range(4):
            A = a(GACC + 16 * sg, 16)
            G2.m[4 * ks + sg] = f"v_mfma_f32_32x32x16_bf16 {A}, {wfrag(ks, sg>>1)}, {v(HRING+4*((2*ks+(sg&1))%NHR),4)}, {'0' if ks == 0 else A}"
    for ks in range(14, 28):
        for rd in range(2):
            n = 2 * ks + rd
            its = wd_read(n, lambda dt, ks=ks, rd=rd: a(JIT + 4 * ((2 * (ks - 14) + dt) % NJ) + 2 * rd, 2))
            for dt in range(2): G2.put(4 * ks - 6 + 2 * rd + dt, its[dt])
    for n in range(NH_C, 56):
        if n < NHR: g = (n - NH_C)
        else: g = max(4 * ((n - NHR) >> 1) + 4, n - NH_C)
        G2.put(g, hload(n))
    G2.put(cfg.g2_arrive, [WaitTag('vm', "yst"), Ins("s_barrier"), Ins(f"buffer_atomic_add {v(T0)}, {v(VFY)}, {WS}, 0 offen sc1")])
    qd = [f"""s_lshl_b32 s3, {sW}, 11
              s_add_u32 m0, s3, {QL}""", f"""s_lshl_b32 s3, {sI2}, 2
              s_add_u32 s3, s3, {sW}""", f"""s_mul_i32 s3, s3, {16*896}
              s_lshl_b32 {sSO}, {sCT}, 7""", f"s_add_u32 {sSO}, {sSO}, s3"]
    qd += [Ins(f"buffer_load_dwordx4 {v(VQ[j])}, {X}, {sSO} offen offset:{1024*j} lds", "qy") for j in range(2)]
    qd += [f"buffer_load_dword {v(VG)}, {v(VGA)}, {WS}, 0 offen sc1"]
    G2.spread(qd, cfg.g2_arrive + 2, cfg.g2_arrive + 9)
    G2.put(cfg.g2_poll, Ins(f"buffer_load_dword {v(VPV)}, {v(VPY)}, {WS}, 0 offen sc1"))
    G2.put(cfg.g2_chk, poll_check("y", v(VPV), v(VPY), WS, 32))
    yd = [f"""s_lshl_b32 s3, {sW}, 11
              s_add_u32 m0, s3, {YL}""", f"""s_lshl_b32 s3, {sCT}, 2
              s_add_u32 s3, s3, {sW}""", f"""s_lshl_b32 s3, s3, 16
              s_lshl_b32 {sSO}, {sI2}, 7""", f"""s_add_u32 {sSO}, {sSO}, s3
              s_add_u32 {sSO}, {sSO}, {WS_YT}"""]
    yd += [Ins(f"buffer_load_dwordx4 {v(VY[j])}, {WS}, {sSO} offen offset:{1024*j} sc1 lds", "qy") for j in range(2)]
    G2.spread(yd, cfg.g2_chk + 1, cfg.g2_chk + 7)
    EW = 18; ER = [19, 20, 21]; EY = 22; EQ = [23, 24, 25, 26]; EO = 27
    red_slot = [None, 2, 3, 0]
    ea = [f"v_add_u32 {v(EW)}, {sM0P}, {v(V16)}"]
    for sg in range(1, 4):
        ea += [f"s_xor_b32 s3, {sW}, {sg}", f"s_mul_i32 s3, s3, {PIECE}", f"s_add_u32 s3, s3, {red_slot[sg]*SLOT}", f"v_add_u32 {v(ER[sg-1])}, s3, {v(V16)}"]
    ea += f"""s_lshr_b32 {sT0}, {sW}, 1
    v_bfe_u32 {v(T1)}, {v(VL)}, 2, 2
    v_lshrrev_b32 {v(T2)}, 5, {v(VL)}
    v_lshl_add_u32 {v(T1)}, {v(T2)}, 2, {v(T1)}
    v_lshlrev_b32 {v(T1)}, 7, {v(T1)}
    v_bfe_u32 {v(T3)}, {v(VL)}, 1, 1
    v_lshl_add_u32 {v(T1)}, {v(T3)}, 6, {v(T1)}
    v_bfe_u32 {v(T3)}, {v(VL)}, 4, 1
    v_lshl_add_u32 {v(T1)}, {v(T3)}, 4, {v(T1)}
    v_and_b32 {v(T3)}, 1, {v(VL)}
    v_lshl_add_u32 {v(T1)}, {v(T3)}, 3, {v(T1)}
    s_lshl_b32 s3, {sT0}, 12
    s_lshl_b32 {sT1}, {sKH}, 5
    s_add_u32 s3, s3, {sT1}
    s_add_u32 s3, s3, {YL}
    v_add_u32 {v(EY)}, s3, {v(T1)}
    v_and_b32 {v(T1)}, 31, {v(VL)}
    v_bfe_u32 {v(T3)}, {v(VL)}, 1, 3
    s_lshl_b32 s3, {sT0}, 2
    v_xor_b32 {v(T3)}, s3, {v(T3)}
    v_lshlrev_b32 {v(T3)}, 4, {v(T3)}
    v_lshl_add_u32 {v(T3)}, {v(T1)}, 7, {v(T3)}
    v_lshl_add_u32 {v(T3)}, {v(T2)}, 3, {v(T3)}
    s_lshl_b32 s3, {sKH}, 12
    s_add_u32 s3, s3, {QL}
    v_add_u32 {v(EQ[0])}, s3, {v(T3)}
    v_xor_b32 {v(EQ[1])}, 16, {v(EQ[0])}
    v_xor_b32 {v(EQ[2])}, 32, {v(EQ[0])}
    v_xor_b32 {v(EQ[3])}, 48, {v(EQ[0])}
    v_mul_u32_u24 {v(T1)}, 896, {v(T1)}
    v_lshl_add_u32 {v(EO)}, {v(T2)}, 4, {v(T1)}
    s_lshl_b32 s3, {sI2}, 1
    s_add_u32 s3, s3, {sKH}
    s_mul_i32 {sSO2}, s3, {32*896}
    s_lshl_b32 s3, {sCT}, 1
    s_add_u32 s3, s3, {sT0}
    s_lshl_b32 s3, s3, 6
    s_add_u32 {sSO2}, {sSO2}, s3""".split("\n")
    G2.spread(ea, cfg.g2_chk + 8, 108)
    check_m0(G2)
    G2.emit(P)
    if cfg.verbose: print("G2 gap costs", G2.costs())
    P.add(stamp("g2end"))
    B = 48; R1 = 64; YY = 112; QQ = 120; O = 128
    for sg in range(1, 4):
        off = red_slot[sg] * SLOT
        for J in range(4):
            if off + 1024 * J < 65536: P.e(f"ds_write_b128 {v(EW)}, {a(GACC+16*sg+4*J,4)} offset:{off+1024*J}")
            else:
                if J == 0: P.e(f"v_add_u32 {v(T1)}, {off}, {v(EW)}")
                P.e(f"ds_write_b128 {v(T1)}, {a(GACC+16*sg+4*J,4)} offset:{1024*J}")
    for k in range(16): P.e(f"v_accvgpr_read_b32 {v(B+k)}, {a(GACC+k)}")
    P.e(f"v_sub_f32 {v(T2)}, 1.0, {v(VG)}")
    P.vmwait("qy")
    P.e("s_waitcnt lgkmcnt(0)\n s_barrier")
    for J in range(4):
        P.e(f"ds_read_b64_tr_b16 {v(YY+2*J,2)}, {v(EY)} offset:{1024*J}")
        P.e(f"ds_read_b64 {v(QQ+2*J,2)}, {v(EQ[J])}")
    for J in range(4):
        for sg in range(1, 4): P.e(f"ds_read_b128 {v(R1+16*(sg-1)+4*J,4)}, {v(ER[sg-1])} offset:{1024*J}")
    TT = 136
    for J in range(4):
        for i in range(4):
            src = 2 * J + (i >> 1)
            un = (lambda d, s_: f"v_lshlrev_b32 {d}, 16, {s_}") if i % 2 == 0 else (lambda d, s_: f"v_and_b32 {d}, {sMASK}, {s_}")
            P.e(un(v(TT + 4 * J + i), v(YY + src))); P.e(un(v(TT + 16 + i), v(QQ + src)))
        for i in range(4): P.e(f"v_mul_f32 {v(TT+4*J+i)}, {v(TT+4*J+i)}, {v(TT+16+i)}")
        for i in range(4): P.e(f"v_mul_f32 {v(TT+4*J+i)}, {v(TT+4*J+i)}, {v(VG)}")
    for J in range(4):
        for sg in range(3):
            for i in range(4): P.e(f"v_add_f32 {v(B+4*J+i)}, {v(B+4*J+i)}, {v(R1+16*sg+4*J+i)}")
        for i in range(4): P.e(f"v_fmac_f32 {v(TT+4*J+i)}, {v(B+4*J+i)}, {v(T2)}")
        for i in range(2): P.e(f"v_cvt_pk_bf16_f32 {v(O+2*J+i)}, {v(TT+4*J+2*i)}, {v(TT+4*J+2*i+1)}")
        if J % 2 == 1:
            o = O + 2 * J - 2
            P.e(f"v_permlane32_swap_b32 {v(o)}, {v(o+2)}\n v_permlane32_swap_b32 {v(o+1)}, {v(o+3)}")
            P.e(f"buffer_store_dwordx4 {v(o,4)}, {v(EO)}, {OUT}, {sSO2} offen offset:{32*(J>>1)}")
    if cfg.stamps: emit_stamps(P)
    if cfg.fixdur:
        P.e(f"""L_fix:
        s_memrealtime s[100:101]
        s_waitcnt lgkmcnt(0)
        s_sub_u32 s100, s100, s52
        {"s_sub_u32 s100, s100, s53" if cfg.probe else ""}
        s_cmp_lt_i32 s100, {cfg.fixdur}
        s_cbranch_scc1 L_fix""")
    P.e("s_endpgm")

def check_m0(G):
    flat = []
    def fl(it):
        if isinstance(it, str):
            for l in it.split("\n"):
                if l.strip(): flat.append(Ins(l.strip()))
        elif isinstance(it, (list, tuple)):
            for x in it: fl(x)
        elif isinstance(it, Ins): flat.append(it)
    for f in G.f:
        for it in f: fl(it)
    last_off = None
    for it in flat:
        if it.kind == 'salu' and ('s', 'm0') in it.w: last_off = -1024
        if it.kind == 'dma':
            m = re.search(r'offset:(\d+)', it.text); off = int(m.group(1)) if m else 0
            assert last_off is not None and off == last_off + 1024, ("m0 group interleaved", it.text)
            last_off = off

def emit_stamps(P):
    P.e("s_waitcnt vmcnt(0)")
    P.e("s_memtime s[98:99]\n s_memrealtime s[100:101]\n s_waitcnt lgkmcnt(0)")
    n = len(stamp_names)
    for k in range(n):
        P.e(f"s_sub_u32 s3, s{STAMP_REGS[k]}, s85"); P.e(f"v_mov_b32 v{200+k}, s3")
    P.e(f"s_sub_u32 s3, s98, s85\n v_mov_b32 v{200+n}, s3")
    P.e(f"""s_lshl_b32 s3, s2, 2
    s_add_u32 s3, s3, {sW}
    s_lshl_b32 s3, s3, 7
    s_add_u32 s3, s3, {WS_STAMP}
    v_mov_b32 v229, s53
    v_mov_b32 v230, s52
    v_mov_b32 v231, s100
    v_mov_b32 v2, 0
    s_mov_b64 exec, 1""")
    for k in range(8): P.e(f"buffer_store_dwordx4 v[{200+4*k}:{203+4*k}], v2, {WS}, s3 offen offset:{16*k}")

def gen_aux(P):
    K, V_, SH, GW = WG, WU, WD, SK
    sA = "s68"; sTAU = "s69"; sLO = "s70"; sHI = "s71"; sUB = "s72"
    VL = 1; VB = 2; VB2 = 3; VN = 4; VS = 5; VTW = 6; VTR = 7; VST = 8; T0 = 9; T1 = 10; VF = 11
    SET = [12, 104]; PP = 196; KS = 206; VV = 214; OO = 222; RB = 12
    P.e(f"""
    s_sub_u32 {sA}, s2, 224
    v_and_b32 {v(T0)}, 7, {v(VL)}
    v_lshrrev_b32 {v(T1)}, 3, {v(VL)}
    v_mul_u32_u24 {v(VB)}, {8*896}, {v(T1)}
    v_lshl_add_u32 {v(VB)}, {v(T0)}, 4, {v(VB)}
    s_mul_i32 s3, {sA}, {64*896}
    v_add_u32 {v(VB)}, s3, {v(VB)}
    v_add_u32 {v(VB2)}, {5*896}, {v(VB)}
    v_add_u32 {v(VN)}, {-3*896}, {v(VB)}
    v_lshlrev_b32 {v(VS)}, 6, {v(T0)}
    v_sub_u32 {v(VTW)}, 7, {v(T1)}
    v_xor_b32 {v(VTW)}, {v(VTW)}, {v(T0)}
    v_lshlrev_b32 {v(VTW)}, 4, {v(VTW)}
    v_lshl_add_u32 {v(VTW)}, {v(T0)}, 10, {v(VTW)}
    s_lshl_b32 s3, {sW}, 13
    v_add_u32 {v(VTW)}, s3, {v(VTW)}
    v_lshlrev_b32 {v(VTR)}, 4, {v(VL)}
    v_add_u32 {v(VTR)}, s3, {v(VTR)}
    v_lshlrev_b32 {v(VST)}, 12, {v(T1)}
    v_lshl_add_u32 {v(VST)}, {v(T0)}, 4, {v(VST)}
    s_mov_b32 {sLO}, 0x05040100
    s_mov_b32 {sHI}, 0x07060302
    s_mov_b32 {sMASK}, 0xffff0000
    s_mov_b32 {sNL2E}, 0xbfb8aa3b
    s_sub_u32 {sUB}, 31, {sA}
    s_lshl_b32 {sUB}, {sUB}, 7
    s_add_u32 {sUB}, {sUB}, {WS_UR}
    s_waitcnt lgkmcnt(0)
    """)
    srd(P, K, 42, NQ); srd(P, V_, 44, NQ); srd(P, SH, 46, 3584); srd(P, X, 40, NQ); srd(P, GW, 60, 896)
    srd(P, WS, 66, WS_SIZE); srd(P, DBG, 64, 256)
    def rowload(dst, srd_, rho, so):
        if rho < 0: return f"buffer_load_dwordx4 {v(dst,4)}, {v(VN)}, {srd_}, {so} offen offset:{896*(rho+3)}"
        if rho < 5: return f"buffer_load_dwordx4 {v(dst,4)}, {v(VB)}, {srd_}, {so} offen offset:{896*rho}"
        return f"buffer_load_dwordx4 {v(dst,4)}, {v(VB2)}, {srd_}, {so} offen offset:{896*(rho-5)}"
    def loads(S_, tau_expr):
        P.e(tau_expr)
        P.e(f"s_lshl_b32 {sSO}, {sTAU}, 7\n s_lshl_b32 {sSO2}, {sTAU}, 9")
        for k in range(4): P.e(f"buffer_load_dwordx4 {v(S_+76+4*k,4)}, {v(VS)}, {SH}, {sSO2} offen offset:{16*k}")
        for rho in range(-3, 8): P.e(rowload(S_ + 4 * (rho + 3), K, rho, sSO))
        for rho in range(8): P.e(rowload(S_ + 44 + 4 * rho, V_, rho, sSO))
    def compute(S_, tau_expr):
        for i in range(8):
            p = i >> 1; sel = sHI if i & 1 else sLO
            kreg = lambda rho: S_ + 4 * (rho + 3) + p
            for rho in range(-2, 8): P.e(f"v_perm_b32 {v(PP+rho+2)}, {v(kreg(rho-1))}, {v(kreg(rho))}, {sel}")
            for rho in range(8): P.e(f"v_dot2_f32_bf16 {v(KS+rho)}, {v(PP+rho+2)}, {v(S_+76+2*i)}, 0")
            for rho in range(8):
                src = v(S_ + 44 + 4 * rho + p)
                P.e(f"v_and_b32 {v(VV+rho)}, {sMASK}, {src}" if i & 1 else f"v_lshlrev_b32 {v(VV+rho)}, 16, {src}")
            for rho in range(8): P.e(f"v_dot2_f32_bf16 {v(KS+rho)}, {v(PP+rho)}, {v(S_+76+2*i+1)}, {v(KS+rho)}")
            for rho in range(8): P.e(f"v_mul_f32 {v(VV+rho)}, {v(VV+rho)}, {v(KS+rho)}")
            o = OO + 4 * (i & 1)
            for e_ in range(4): P.e(f"v_cvt_pk_bf16_f32 {v(o+e_)}, {v(VV+7-2*e_)}, {v(VV+6-2*e_)}")
            P.e(f"ds_write_b128 {v(VTW)}, {v(o,4)} offset:{128*i}")
        P.e(tau_expr)
        P.e(f"s_lshl_b32 {sSO}, {sTAU}, 18\n s_add_u32 {sSO}, {sSO}, {sUB}\n s_waitcnt lgkmcnt(0)")
        for j in range(8):
            P.e(f"v_xor_b32 {v(T0)}, {16*j}, {v(VTR)}\n ds_read_b128 {v(S_+4*j,4)}, {v(T0)} offset:{1024*j}")
        for j in range(8):
            P.e(f"buffer_store_dwordx4 {v(S_+4*j,4)}, {v(VST)}, {WS}, {sSO} offen sc1")
            if j < 7: P.e(f"s_add_u32 {sSO}, {sSO}, 32768")
    t1 = f"s_mov_b32 {sTAU}, {sW}"; t2 = f"s_add_u32 {sTAU}, {sW}, 4"
    loads(SET[0], t1)
    P.e(f"""
    s_lshl_b32 s3, {sA}, 8
    v_lshlrev_b32 {v(T0)}, 13, {v(VL)}
    v_add_u32 {v(T0)}, s3, {v(T0)}
    v_mov_b32 {v(T1)}, -16
    v_cmp_gt_u32 vcc, 2, {v(VL)}
    v_cndmask_b32 {v(T0)}, {v(T1)}, {v(T0)}, vcc
    v_mov_b32 {v(231)}, 0
    buffer_store_dword {v(231)}, {v(T0)}, {WS}, 0 offen sc1
    v_mov_b32 {v(VF)}, 0
    v_cmp_eq_u32 vcc, 0, v0
    v_cndmask_b32 {v(VF)}, {v(T1)}, {v(VF)}, vcc
    s_cmp_eq_u32 {sW}, 3
    s_cbranch_scc1 L_gate
    """)
    Pa = Prog(); Pa.items = list(P.items); n0 = len(P.items)
    loads(SET[1], t2)
    compute(SET[0], t1)
    compute(SET[1], t2)
    P.e("s_branch L_auxdone")
    tail_a = P
    Pg = Pa
    P_save = P
    def with_prog(pg, fn):
        nonlocal P
        old = P; P = pg; fn(); P = old
    QB = 104; GWB = 232; AC = 232 + 16
    def gate():
        P.e("L_gate:")
        def qloads(tau):
            b = QB + 32 * (tau % 4)
            P.e(f"s_mov_b32 {sSO}, {128*tau}")
            P.e(f"buffer_load_dwordx4 {v(GWB+4*(tau%4),4)}, {v(T0)}, {GW}, {sSO} offen")
            for rho in range(8): P.e(rowload(b + 4 * rho, X, rho, sSO))
        P.e(f"v_and_b32 {v(T0)}, 7, {v(VL)}\n v_lshlrev_b32 {v(T0)}, 4, {v(T0)}")
        for tau in range(2): qloads(tau)
        P.e(f"v_mov_b32 {v(230)}, {v(T0)}")
        compute_g()
        P.e(f"v_mov_b32 {v(T0)}, {v(230)}")
        for tau in range(2, 4): qloads(tau)
        for tau in range(7):
            b = QB + 32 * (tau % 4)
            for p in range(4):
                for rho in range(8):
                    c = '0' if (tau == 0 and p == 0) else v(AC + rho)
                    P.e(f"v_dot2_f32_bf16 {v(AC+rho)}, {v(b+4*rho+p)}, {v(GWB+4*(tau%4)+p)}, {c}")
            if tau + 4 < 7: qloads(tau + 4)
        for mod in ("row_half_mirror", "quad_perm:[3,2,1,0]", "quad_perm:[1,0,3,2]"):
            for rho in range(8): P.e(f"v_add_f32_dpp {v(AC+rho)}, {v(AC+rho)}, {v(AC+rho)} {mod} row_mask:0xf bank_mask:0xf")
        P.e("s_mov_b32 s74, 0xaaaaaaaa\n s_mov_b32 s75, 0xaaaaaaaa")
        for k in range(4): P.e(f"v_cndmask_b32 {v(AC+k)}, {v(AC+2*k)}, {v(AC+2*k+1)}, s[74:75]")
        P.e("s_mov_b32 s74, 0xcccccccc\n s_mov_b32 s75, 0xcccccccc")
        for k in range(2): P.e(f"v_cndmask_b32 {v(AC+k)}, {v(AC+2*k)}, {v(AC+2*k+1)}, s[74:75]")
        P.e("s_mov_b32 s74, 0xf0f0f0f0\n s_mov_b32 s75, 0xf0f0f0f0")
        P.e(f"""v_cndmask_b32 {v(AC)}, {v(AC)}, {v(AC+1)}, s[74:75]
        v_mul_f32 {v(AC)}, 0xbfb8aa3b, {v(AC)}
        v_exp_f32 {v(AC)}, {v(AC)}
        v_add_f32 {v(AC)}, 1.0, {v(AC)}
        v_rcp_f32 {v(AC)}, {v(AC)}
        s_lshl_b32 s3, {sA}, 8
        s_add_u32 s3, s3, {WS_G}
        v_lshlrev_b32 {v(T0)}, 2, {v(VL)}
        buffer_store_dword {v(AC)}, {v(T0)}, {WS}, s3 offen sc1""")
    def compute_g(): compute(SET[0], t1)
    with_prog(Pg, gate)
    return n0, Pg, VF

def gen_probe(P):
    P.e("s_waitcnt vmcnt(0) lgkmcnt(0)")
    P.e(f"s_lshl_b32 s68, s2, 2\n s_add_u32 s68, s68, {sW}\n v_lshlrev_b32 v2, 4, v1\n v_mov_b32 v3, 0")
    ptr = dict(q=40, k=42, v=44, sk=48, wg=54, wu=56, wd=58, out=62, ws=66)
    kind = cfg.probe
    if kind.startswith("lat"):
        srd(P, X, ptr[kind.split("_")[1]], NW)
        P.e("s_mul_i32 s69, s68, 1792")
        if kind.startswith("lat2"):
            P.e(f"buffer_load_dword v4, v3, {X}, s69 offen\n s_waitcnt vmcnt(0)\n s_add_u32 s69, s69, 896")
        P.e(f"s_memtime s[70:71]\n s_waitcnt lgkmcnt(0)\n buffer_load_dword v4, v3, {X}, s69 offen\n s_waitcnt vmcnt(0)\n s_memtime s[72:73]\n s_waitcnt lgkmcnt(0)")
    else:
        names = kind.split("_")[1:]
        P.e("s_lshl_b32 s69, s68, 11\n s_mul_i32 s74, s68, 1792\n s_memtime s[70:71]\n s_waitcnt lgkmcnt(0)")
        r = 4
        for nm in names:
            big = nm in ("q", "k", "v", "sk", "out", "ws")
            srd(P, X, ptr[nm], NQ if big else NW)
            for j in range(2):
                P.e(f"buffer_load_dwordx4 v[{r}:{r+3}], v2, {X}, {'s69' if big else 's74'} offen offset:{1024*j}"); r += 4
        P.e("s_waitcnt vmcnt(0)\n s_memtime s[72:73]\n s_waitcnt lgkmcnt(0)")
    P.e(f"s_sub_u32 s53, s72, s70\n s_lshr_b32 s53, s53, 2")

def build():
    global slow_paths, stamp_names
    slow_paths = []; stamp_names = []
    pro = Prog()
    pro.e(f"""
    s_load_dwordx16 s[40:55], s[0:1], 0
    s_load_dwordx8 s[56:63], s[0:1], 64
    s_load_dwordx4 s[64:67], s[0:1], 96
    s_cmp_lt_u32 s2, 256
    s_cbranch_scc1 L_go
    s_endpgm
    L_go:
    """)
    if cfg.stamps or cfg.fixdur: pro.e("s_memtime s[84:85]\n s_waitcnt lgkmcnt(0)\n s_mov_b32 s85, s84\n s_memrealtime s[52:53]")
    pro.e(f"""
    v_lshrrev_b32 v2, 6, v0
    v_and_b32 v1, 63, v0
    v_readfirstlane_b32 {sW}, v2
    """)
    if cfg.code_pf:
        pro.e(f"""
        s_getpc_b64 s[38:39]
        L_pc:
        s_lshr_b32 s3, s2, 3
        s_lshl_b32 s3, s3, 2
        s_add_u32 s3, s3, {sW}
        s_mul_i32 s3, s3, {cfg.pf_n}
        v_min_u32 v2, {cfg.pf_n-1}, v1
        v_add_u32 v2, s3, v2
        v_min_u32 v2, {cfg.pf_last}, v2
        v_lshlrev_b32 v2, 7, v2
        v_mov_b32 v3, s39
        v_add_co_u32 v2, vcc, s38, v2
        v_addc_co_u32 v3, vcc, 0, v3, vcc
        global_load_dword v255, v[2:3], off
        """)
    pro.e("s_cmp_ge_u32 s2, 224\n s_cbranch_scc1 L_aux")
    if cfg.probe: gen_probe(pro)
    Pm = Prog(); Pm.items = list(pro.items); npro = len(pro.items)
    gen_main(Pm)
    main = Pm.finalize(cfg.verbose)
    Px = Prog(); Px.items = list(pro.items); Px.e("L_aux:")
    n0, Pg, VF = gen_aux(Px)
    ax = Px.finalize(); gx = Pg.finalize()
    cut = lambda lst, lab: lst[[i for i, x in enumerate(lst) if x.kind == 'label' and x.text == lab][0]:]
    tail = f"""L_auxdone:
    s_waitcnt vmcnt(0)
    s_barrier
    v_mov_b32 v9, 1
    buffer_atomic_add v9, v{VF}, {DBG}, 0 offen sc1
    s_endpgm"""
    body = text_of(main) + "\n" + emit_slow_paths() + "\n" + text_of(cut(ax, "L_aux:")) + "\n" + text_of(cut(gx, "L_gate:")) + "\n" + tail + "\nL_codeend:"
    hdr = open("gated_mix__ssm_conv_h3__swiglu_ffn__prompt.s.ref").read().split("; Override launch")[0] if cfg.header else ""
    pf = ""
    return f"""{hdr}; @launch grid=(256,1,1) block=(256,1,1) lds={LDS_BYTES}
.amdgcn_target "amdgcn-amd-amdhsa--gfx950"
.text
.globl {KNAME}
.p2align 8
.type {KNAME},@function
{KNAME}:
{body}
{pf}.section .rodata,"a"
.p2align 6
.amdhsa_kernel {KNAME}
  .amdhsa_next_free_vgpr 512
  .amdhsa_next_free_sgpr 102
  .amdhsa_accum_offset 256
  .amdhsa_group_segment_fixed_size 0
  .amdhsa_kernarg_size 112
  .amdhsa_user_sgpr_count 2
  .amdhsa_user_sgpr_kernarg_segment_ptr 1
  .amdhsa_system_sgpr_workgroup_id_x 1
.end_amdhsa_kernel
"""

cfg.verbose = False; cfg.header = True; cfg.fixdur = 0; cfg.probe = None
cfg.g_arrive = 50; cfg.g_poll = 92; cfg.g_chk = 112; cfg.nh_c = 16
cfg.g2_arrive = 20; cfg.g2_poll = 44; cfg.g2_chk = 60
if __name__ == "__main__":
    out = sys.argv[1]
    for kv in sys.argv[2:]:
        k_, v_ = kv.split("=")
        setattr(cfg, k_, eval(v_))
    import subprocess, os
    cfg.pf_n = 1; cfg.pf_last = 100
    vb = cfg.verbose; cfg.verbose = False
    open(out, "w").write(build())
    subprocess.check_call(["clang", "-x", "assembler", "-target", "amdgcn-amd-amdhsa", "-mcpu=gfx950", "-c", out, "-o", "_gen.o"])
    sym = subprocess.check_output(["llvm-objdump", "-t", "_gen.o"], text=True)
    ad = {l.split()[-1]: int(l.split()[0], 16) for l in sym.splitlines() if " L_" in l}
    if cfg.code_pf:
        cfg.pf_last = (ad["L_codeend"] - ad["L_pc"] - 64) // 128
        cfg.pf_n = (cfg.pf_last + 128) // 128
    cfg.verbose = vb
    open(out, "w").write(build())
    print("code bytes", ad["L_codeend"], "aux at", ad["L_aux"])
    print("stamps:", stamp_names)
```

```python
import re
LENIENT = False

REG = re.compile(r'\b([vas])(?:\[(\d+):(\d+)\]|(\d+))(?![\w])')
def regs_of(tok):
    tok = tok.strip()
    out = set()
    m = REG.search(tok)
    if m:
        k = m.group(1)
        if m.group(2) is not None:
            out |= {(k, i) for i in range(int(m.group(2)), int(m.group(3)) + 1)}
        else:
            out.add((k, int(m.group(4))))
    elif re.match(r'^-?\|?vcc', tok): out |= {('s', 'vcc')}
    elif tok == 'exec': out |= {('s', 'exec')}
    elif tok == 'm0': out |= {('s', 'm0')}
    return out

TRANS = ('v_exp_f32', 'v_rcp_f32', 'v_log_f32', 'v_rsq_f32', 'v_sqrt_f32')

class Ins:
    __slots__ = ('text', 'op', 'w', 'r', 'kind', 'tag', 'passes', 'srcc', 'ab', 'wide', 'nocount', 'n')
    def __init__(s, text, tag=None, nocount=False):
        s.text = text; s.tag = tag; s.nocount = nocount
        s.w = set(); s.r = set(); s.kind = 'other'; s.passes = 0; s.srcc = set(); s.ab = set(); s.wide = False; s.n = 1
        t = text.split(';')[0].strip()
        if t.endswith(':') or t.startswith('.') or not t:
            s.kind = 'label'; s.op = t; s.n = 0; return
        parts = t.split(None, 1)
        op = s.op = parts[0]
        rest = parts[1] if len(parts) > 1 else ''
        ops = [o.strip() for o in rest.split(',')] if rest else []
        mods = ''
        if ops:
            lp = ops[-1].split(None, 1)
            if len(lp) > 1: ops[-1] = lp[0]; mods = lp[1]
        if 'quad_perm' in rest:
            base = rest.split('quad_perm')[0]
            ops = [o.strip() for o in base.split(',')]
            mods = 'dpp'
        R = [regs_of(o) for o in ops]
        allr = lambda lst: set().union(*lst) if lst else set()
        if op.startswith('v_mfma'):
            s.kind = 'mfma'; s.passes = 8 if '32x32' in op else 4
            s.w = R[0]; s.ab = R[1] | R[2]; s.srcc = R[3]; s.r = s.ab | s.srcc
        elif op.startswith('ds_read'):
            s.kind = 'dsr'; s.w = R[0]; s.r = allr(R[1:])
        elif op.startswith("ds_write"):
            s.kind = 'dsw'; s.r = allr(R)
        elif op.startswith('buffer_load') or op.startswith('global_load'):
            if re.search(r'\blds\b', mods) or '_lds_' in op:
                s.kind = 'dma'; s.r = allr(R) | {('s', 'm0')}
            else:
                s.kind = 'vml'; s.w = R[0]; s.r = allr(R[1:])
        elif op.startswith('buffer_store') or op.startswith('buffer_atomic') or op.startswith('global_store'):
            s.kind = 'vms'; s.r = allr(R); s.wide = ('x4' in op or 'x3' in op)
            s.srcc = R[0] if op.startswith('buffer') else R[1]
        elif op.startswith('v_'):
            s.kind = 'trans' if op.startswith(TRANS) else 'valu'
            if op.startswith(('v_permlane', 'v_swap')):
                s.w = R[0] | R[1]; s.r = R[0] | R[1]
                if op.startswith('v_permlane'): s.kind = 'perml'
            else:
                s.w = R[0]; s.r = allr(R[1:])
                if op.startswith(('v_fmac', 'v_dot2c', 'v_writelane')): s.r |= R[0]
                if op.startswith('v_cndmask') and len(ops) == 3: s.r |= {('s', 'vcc')}
                if op.startswith(('v_add_co', 'v_addc_co')): s.w |= R[1]
                if op.startswith(('v_readfirstlane', 'v_readlane')): s.kind = 'rfl'
                if 'dpp' in op or 'dpp' in mods or 'row_' in mods:
                    s.kind = 'dpp'; s.r |= R[0]
        elif op == 's_nop':
            s.kind = 'nop'; s.n = int(ops[0]) + 1
        elif op == 's_waitcnt':
            s.kind = 'wait'
        elif op.startswith(('s_load', 's_memtime', 's_memrealtime', 's_atomic')):
            s.kind = 'smem'; s.w = R[0]; s.r = allr(R[1:])
        elif op.startswith(('s_cbranch', 's_branch', 's_barrier', 's_endpgm', 's_sleep', 's_setprio')):
            s.kind = 'ctl'
        elif op.startswith('s_cmp'):
            s.kind = 'salu'; s.r = allr(R)
        elif op.startswith('s_'):
            s.kind = 'salu'; s.w = R[0]; s.r = allr(R[1:])
        else:
            raise Exception('unparsed: ' + text)
    def isvalu(s): return s.kind in ('valu', 'trans', 'perml', 'rfl', 'dpp')
    def cost(s):
        if s.kind == 'label': return 0
        if s.kind == 'trans': return 8
        if s.kind == 'mfma': return 8
        if s.kind == 'nop': return 4 * s.n
        return 4

class WaitTag:
    def __init__(s, cls, tag): s.cls = cls; s.tag = tag
    def cost(s): return 4
class WaitRegs:
    def __init__(s, text): s.regs = regs_of(text)
    def cost(s): return 0
class Fence:
    def __init__(s, cls): s.cls = cls
    def cost(s): return 0

class Prog:
    def __init__(s): s.items = []
    def e(s, text, tag=None, nocount=False):
        for line in text.split('\n'):
            line = line.strip()
            if line: s.items.append(Ins(line, tag, nocount))
    def add(s, it):
        if isinstance(it, str): s.e(it)
        elif isinstance(it, (list, tuple)):
            for x in it: s.add(x)
        else: s.items.append(it)
    def vmwait(s, tag): s.items.append(WaitTag('vm', tag))
    def lgwait(s, tag): s.items.append(WaitTag('lgkm', tag))
    def finalize(s, verbose=False):
        out = []
        q = {'vm': [], 'lgkm': []}
        done = {'vm': -1, 'lgkm': -1}
        pend = {}
        tags = {}
        MAXC = {'vm': 63, 'lgkm': 15}
        def need(cls, idx, acc):
            if idx > done[cls]: acc[cls] = max(acc.get(cls, -1), idx)
        def emit_wait(acc):
            if not acc: return
            parts = []
            for cls, idx in acc.items():
                n = len(q[cls]) - 1 - idx
                n = min(n, MAXC[cls])
                done[cls] = max(done[cls], len(q[cls]) - 1 - n)
                parts.append(('vmcnt(%d)' if cls == 'vm' else 'lgkmcnt(%d)') % n)
            out.append(Ins('s_waitcnt ' + ' '.join(sorted(parts, reverse=True))))
        for it in s.items:
            if isinstance(it, WaitTag):
                acc = {}
                if it.tag not in tags and LENIENT: continue
                assert it.tag in tags, 'unknown tag %s' % it.tag
                cls, idx = tags[it.tag]; assert cls == it.cls
                need(cls, idx, acc); emit_wait(acc); continue
            if isinstance(it, WaitRegs):
                acc = {}
                for r in it.regs:
                    if r in pend: need(pend[r][0], pend[r][1], acc)
                emit_wait(acc); continue
            if isinstance(it, Fence):
                done[it.cls] = len(q[it.cls]) - 1; continue
            if it.kind == 'wait':
                m = re.search(r'vmcnt\((\d+)\)', it.text)
                if m: done['vm'] = max(done['vm'], len(q['vm']) - 1 - int(m.group(1)))
                m = re.search(r'lgkmcnt\((\d+)\)', it.text)
                if m: done['lgkm'] = max(done['lgkm'], len(q['lgkm']) - 1 - int(m.group(1)))
                out.append(it); continue
            acc = {}
            for r in (it.r | it.w):
                if r in pend: need(pend[r][0], pend[r][1], acc)
            emit_wait(acc)
            cls = {'dsr': 'lgkm', 'dsw': 'lgkm', 'vml': 'vm', 'dma': 'vm', 'vms': 'vm'}.get(it.kind)
            if cls and not it.nocount:
                outst = len(q[cls]) - 1 - done[cls]
                if cls == 'vm' and outst >= 62:
                    emit_wait({'vm': done['vm'] + 1})
                q[cls].append(it.tag)
                idx = len(q[cls]) - 1
                if it.tag is not None: tags[it.tag] = (cls, idx)
                for r in it.w: pend[r] = (cls, idx)
            out.append(it)
        out = s.pad(out, verbose)
        return out
    def pad(s, lst, verbose):
        out = []; nn = 0
        for it in lst:
            if it.kind == 'label': out.append(it); continue
            req = 0; dist = 0
            for j in range(len(out) - 1, -1, -1):
                p = out[j]
                if p.kind == 'label': continue
                n = s.hazard(p, it)
                if n > dist: req = max(req, n - dist)
                dist += p.n
                if dist >= 20: break
            if req > 0:
                out.append(Ins('s_nop %d' % (req - 1))); nn += req
                if verbose: print('; pad %d before %s' % (req, it.text))
            out.append(it)
        s.nops = nn
        return out
    @staticmethod
    def hazard(p, c):
        n = 0
        vreg = lambda S: {r for r in S if r[0] in 'va'}
        sreg = lambda S: {r for r in S if r[0] == 's'}
        if p.isvalu():
            pw = vreg(p.w)
            if c.kind == 'mfma' and pw & c.r: n = max(n, 2)
            if c.kind in ('perml', 'dpp') and pw & c.r: n = max(n, 2)
            if c.kind == 'rfl' and pw & c.r: n = max(n, 1)
            if p.kind == 'trans' and c.isvalu() and c.kind != 'trans' and pw & c.r: n = max(n, 1)
            if p.op.startswith('v_dot2') and c.isvalu() and pw & (c.r | c.w):
                same = (c.op == p.op)
                n = max(n, 3) if not (same and not (pw & (c.r - s_last(c)))) else n
            if p.op.startswith('v_dot2') and c.kind in ('dsw', 'vms', 'mfma') and pw & c.r: n = max(n, 3)
            sw = sreg(p.w)
            if sw:
                if c.isvalu() and sw & c.r: n = max(n, 2)
                if c.kind in ('vml', 'vms', 'dma') and sw & c.r: n = max(n, 5)
                if c.kind in ('salu',) and sw & c.r: n = max(n, 4)
        if p.kind == 'mfma':
            big = p.passes == 8
            if c.kind == 'mfma':
                if p.w & c.ab: n = max(n, 12 if big else 8)
                if p.w & c.srcc and not (p.w == c.srcc and p.passes == c.passes): n = max(n, 10 if big else 6)
                if p.w & c.w and not (p.w & c.srcc): n = max(n, 10 if big else 6)
            elif c.isvalu() or c.kind in ('dsw', 'dsr', 'vml', 'vms', 'dma'):
                if p.w & (c.r | c.w): n = max(n, 12 if big else 8)
                if c.isvalu() and p.srcc & c.w: n = max(n, 7 if big else 3)
        if p.kind == 'salu' and ('s', 'm0') in p.w and c.kind == 'dma': n = max(n, 1)
        if p.kind == 'vms' and p.wide and (c.isvalu() or c.kind in ('dsr', 'vml')) and p.srcc & c.w: n = max(n, 2)
        return n
def s_last(c):
    t = c.text.split(';')[0].strip().split(None, 1)[1].split(',')
    return regs_of(t[-1].split()[0])

def text_of(lst):
    return '\n'.join((x.text if x.kind == 'label' else '    ' + x.text) for x in lst)

class Gaps:
    def __init__(s, n): s.m = [None] * n; s.f = [[] for _ in range(n)]; s.n = n
    def put(s, g, item): s.f[min(max(g, 0), s.n - 1)].append(item)
    def spread(s, items, g0, g1):
        n = len(items)
        for i, it in enumerate(items):
            s.put(g0 + (i * (g1 - g0)) // max(n, 1), it)
    @staticmethod
    def icost(it):
        if isinstance(it, str): return sum(Ins(l).cost() for l in it.split('\n') if l.strip())
        if isinstance(it, (list, tuple)): return sum(Gaps.icost(x) for x in it)
        return it.cost()
    def costs(s): return [sum(Gaps.icost(x) for x in f) for f in s.f]
    def pour(s, items, g0, g1, budget):
        n = len(items); tot = sum(Gaps.icost(x) for x in items); acc = 0; g = g0
        c = s.costs()
        for it in items:
            k = Gaps.icost(it)
            tgt = g0 + (acc * (g1 - g0)) // max(tot, 1)
            g = max(g, tgt)
            while g < s.n - 1 and c[g] + k > budget: g += 1
            s.f[g].append(it); c[g] += k; acc += k
        return g
    def emit(s, P, pair=0):
        for g in range(s.n):
            if pair and g % pair == 0:
                for k in range(min(pair, s.n - g) - 1, -1, -1):
                    i = Ins(s.m[g + k]); w = WaitRegs(''); w.regs = set(i.ab); P.add(w)
            P.add(s.m[g])
            for it in s.f[g]: P.add(it)
```

```python
import sys, math, re
from fw import *
import fw
KNAME = "gated_mix__ssm_conv_h3__swiglu_ffn__prompt_kernel"

class Cfg: pass
cfg = Cfg()
cfg.stamps = False; cfg.pass_stamps = False; cfg.verbose = False; cfg.header = True; cfg.fixdur = 0
cfg.PD = 5; cfg.NXR = 8; cfg.pair = 2; cfg.bud = 24
cfg.code_pf = True; cfg.n_pre = 9; cfg.nosync = False
cfg.rot_c = True; cfg.rot_t = True; cfg.rot_g = True
cfg.pl_at = -1; cfg.pc0 = 26; cfg.pc1 = 62; cfg.bud1 = 36; cfg.z_load = 108; cfg.z_chk = 130; cfg.p_arr = 9; cfg.sleep = 8
cfg.p_load = -20
cfg.g_arrive = 44; cfg.g_poll = 92; cfg.g_chk = 112; cfg.nh_c = 7; cfg.nh_e = 6; cfg.nwd_t = 5; cfg.g_wd_end = 104
cfg.g2_hpace = 2.0; cfg.g2_arrive = 16; cfg.g2_poll = 44; cfg.g2_chk = 60; cfg.g2_pre = 84
cfg.sc_out = ""; cfg.aux_pf = True; cfg.touch = False; cfg.s_early = True

WS_FLAG = 0x0; WS_G = 0x20000; WS_UR = 0x100000; WS_YT = 0x300000; WS_H = 0x500000
WS_STAMP = 0xC00000; WS_SIZE = 0xD00000
NQ = 1835008; NW = 1605632
XB = 4096
SLOT = 28672; PIECE = 7168
HC = 4 * SLOT; CPY = 4160; HCCH = 4 * CPY
UL = HC + 2 * HCCH; UCH = 4608
LDS_BYTES = 163840
YL = HC; QL = HC + 8192
assert UL + 2 * UCH <= LDS_BYTES
X, WG, WU, WD, SK, WS, OUT = ["s[%d:%d]" % (b, b + 3) for b in (4, 8, 12, 16, 20, 24, 28)]
pWS = "s[24:25]"; pDBG = "s[32:33]"; pD = "s[34:35]"; pOUT = "s[62:63]"; pV = "s[94:95]"; pSH = "s[96:97]"; KK = OUT
PT = 143360
sW = "s36"; sT0 = "s37"; sT1 = "s38"; sT2 = "s39"
sCH = ["s%d" % (40 + i) for i in range(7)]
sWC = ["s%d" % (47 + i) for i in range(7)]
sTO = ["s%d" % (54 + i) for i in range(8)]
sHG = sWC
sM0P = "s68"; sXB = "s69"; sWB = "s70"; sDB = "s71"; sHS = "s72"; sHL = ["s73", "s74"]
sNL2E = "s75"; sSO = "s76"; sSO2 = "s77"; sD = "s78"; sI2 = "s79"; sCT = "s80"; sKH = "s81"
sCNT = "s82"; sM = "s83"; sMASK = "s84"; sRG = "s85"
sDG = ["s%d" % (86 + i) for i in range(7)]
sPV = "s93"; sFL = "s67"; sONE = "s66"; sU = "s65"; sPA = "s64"
STAMP_REGS = {'issued': 0, 'g1start': 34, 'p1end': 94, 'T5': 96, 'T6': 8, 'T7': 10, 'prepoll': 12, 'zpre': 96, 'zpost': 8, 'g1end': 14, 'cstart': 40, 'c_pre': 42, 'c_post': 44, 'g2start': 54, 'g2_pre': 56, 'g2_post': 58, 'g2end': 60}

def v(i, n=1): return "v%d" % i if n == 1 else "v[%d:%d]" % (i, i + n - 1)
def a(i, n=1): return "a%d" % i if n == 1 else "a[%d:%d]" % (i, i + n - 1)
def lines(t): return [l.strip() for l in t.split("\n") if l.strip()]

stamp_names = []
def stamp(name):
    if not cfg.stamps: return []
    stamp_names.append(name); r = STAMP_REGS[name]
    return [Ins("s_memtime s[%d:%d]" % (r, r + 1))]

slow_paths = []
vARR = 43; vONE = 0; vP8 = 38; vP7 = 39; vPV = 33; vZERO = 44
def poll_text(kind, off):
    if kind == "z": return f"global_load_dword {v(vPV)}, {v(vZERO)}, {pDBG} sc1"
    return f"buffer_load_dword {v(vPV)}, {v(vP7 if kind == 'h' else vP8)}, {WS}, {off} offen sc1"
def poll_load(kind, off):
    return [] if cfg.nosync else [poll_text(kind, off)]
def poll_check(kind, off):
    if cfg.nosync: return []
    slow_paths.append((kind, off))
    return [f"v_cmp_gt_u32 vcc, {32 if kind == 'z' else 1}, {v(vPV)}", f"s_cbranch_vccnz L_slow_{kind}\n L_back_{kind}:"]
def emit_slow_paths():
    t = []
    for kind, off in slow_paths:
        t += [f"L_slow_{kind}:", f"s_mov_b32 {sCNT}, 0", f"L_spin_{kind}:", f"s_sleep {cfg.sleep}", poll_text(kind, off),
              f"s_add_u32 {sCNT}, {sCNT}, 1", f"s_cmp_gt_u32 {sCNT}, 0x40000", "s_waitcnt vmcnt(0)", f"s_cbranch_scc1 L_back_{kind}",
              f"v_cmp_gt_u32 vcc, {32 if kind == 'z' else 1}, {v(vPV)}", f"s_cbranch_vccnz L_spin_{kind}", f"s_branch L_back_{kind}"]
    return "\n".join(l if l.endswith(":") else "    " + l for l in t)
arr_n = [0]
def arrive(tag, off, bar=True):
    pre = [Ins("s_barrier")] if bar else []
    if cfg.nosync: return pre
    return ([WaitTag('vm', tag)] if bar else []) + pre + [f"buffer_store_dword {v(vONE)}, {v(vARR)}, {WS}, {off} offen sc1"]

def sb(reg): return int(reg[2:reg.index(':')])
def srd_hi(reg, size): return ["s_mov_b32 s%d, 0x%x" % (sb(reg) + 2, size), "s_mov_b32 s%d, 0x20000" % (sb(reg) + 3)]
def ldptr(reg, off): return "s_load_dwordx2 s[%d:%d], s[0:1], %d" % (sb(reg), sb(reg) + 1, off)
def rot_next(r): return [f"s_add_u32 {r}, {r}, 1", f"s_cmp_eq_u32 {r}, 7\n s_cselect_b32 {r}, 0, {r}"]
def mod7(r): return lines(f"s_mul_i32 s3, {r}, 37\n s_lshr_b32 s3, s3, 8\n s_mul_i32 s3, s3, 7\n s_sub_u32 {r}, {r}, s3")

def code_prefetch(P):
    if not cfg.code_pf: return
    P.e(f"""
        s_getpc_b64 s[38:39]
        L_pc:
        s_lshr_b32 s3, s2, 3
        s_lshl_b32 s3, s3, 2
        s_add_u32 s3, s3, {sW}
        s_mul_i32 s3, s3, {cfg.pf_n}
        v_min_u32 v2, {cfg.pf_n-1}, v1
        v_add_u32 v2, s3, v2
        v_min_u32 v2, {cfg.pf_last}, v2
        v_lshlrev_b32 v2, 7, v2
        v_mov_b32 v3, s39
        v_add_co_u32 v2, vcc, s38, v2
        v_addc_co_u32 v3, vcc, 0, v3, vcc
        global_load_dword v255, v[2:3], off
        """)

def gen_main(P):
    PD = cfg.PD; NXR = cfg.NXR
    VL = 1
    VX = [2, 3, 4, 9]; VWg = [5, 6]; VWu = [7, 8]; VSK = [10, 11, 12]; VD = [13, 14, 15, 16]
    XR = [[17, 18, 19, 20], [21, 22, 23, 24]]; WR = [25, 26, 27]; DR = [[28, 29], [30, 31]]
    V16 = 32; T0 = 33; T1 = 34; T2 = 35; T3 = 36; VHZ = 37; CA = 40; CB = 41; VHW = 42; VZ = 44
    ACC = [48, 64, 80, 96]; XRING = 112; ET = 144; PK = [148, 152]; HR = 160; HCP = 176
    assert XRING + 4 * NXR <= ET
    sX = sSO; sQ7 = sSO2; sR = sCNT
    code_prefetch(P)
    P.e(f"""
    s_and_b32 {sX}, s2, 7
    s_lshr_b32 {sT1}, s2, 3
    s_mul_i32 {sQ7}, {sT1}, 37
    s_lshr_b32 {sQ7}, {sQ7}, 8
    s_mul_i32 s3, {sQ7}, 7
    s_sub_u32 {sCT}, {sT1}, s3
    s_lshl_b32 s3, {sX}, 2
    s_add_u32 {sI2}, s3, {sQ7}
    s_and_b32 s3, {sX}, 4
    s_add_u32 {sT2}, s3, {sQ7}
    s_and_b32 {sT0}, {sX}, 3
    s_mul_i32 {sT1}, {sT0}, 7
    s_add_u32 {sT1}, {sT1}, {sCT}
    s_mul_i32 {sM0P}, {sW}, {PIECE}
    s_mul_i32 {sXB}, {sT2}, {256*896}
    s_add_u32 {sXB}, {sXB}, {sM0P}
    s_mul_i32 {sWB}, {sW}, {16*3584}
    s_lshl_b32 s3, {sT1}, 7
    s_add_u32 {sWB}, {sWB}, s3
    s_lshl_b32 {sRG}, {sQ7}, 1
    s_add_u32 {sRG}, {sRG}, {sCT}
    s_lshr_b32 s3, {sX}, 2
    s_add_u32 {sR}, {sRG}, s3
    """)
    P.add(mod7(sR) if cfg.rot_c else f"s_mov_b32 {sR}, 0")
    def ch_tab(i):
        L = lines(f"s_lshl_b32 s3, {sR}, 7\n s_add_u32 {sCH[i]}, s3, {sXB}\n s_mul_i32 s3, {sR}, {64*3584}\n s_add_u32 {sWC[i]}, s3, {sWB}")
        return L + (rot_next(sR) if i < 6 else [])
    def to_tab(t):
        if cfg.rot_t: return lines(f"s_lshl_b32 s3, {sT0}, 1\n s_add_u32 s3, s3, {t}\n s_and_b32 s3, s3, 7\n s_mul_i32 {sTO[t]}, s3, 28672")
        return [f"s_mov_b32 {sTO[t]}, {28672*t}"]
    for i in range(2): P.add(ch_tab(i))
    for t in range(3): P.add(to_tab(t))
    P.add(srd_hi(X, NQ + XB) + srd_hi(WG, NW) + srd_hi(WU, NW))
    P.e(f"""
    v_lshrrev_b32 {v(T0)}, 3, {v(VL)}
    v_and_b32 {v(T1)}, 7, {v(VL)}
    v_lshrrev_b32 {v(T2)}, 4, {v(VL)}
    s_lshl_b32 s3, {sW}, 2
    v_add_u32 {v(T3)}, s3, {v(T2)}
    v_and_b32 {v(T3)}, 7, {v(T3)}
    v_xor_b32 {v(T3)}, {v(T1)}, {v(T3)}
    v_lshlrev_b32 {v(T3)}, 4, {v(T3)}
    v_mul_u32_u24 {v(VX[0])}, 896, {v(T0)}
    v_add_u32 {v(T3)}, {XB}, {v(T3)}
    v_add_u32 {v(VX[0])}, {v(VX[0])}, {v(T3)}
    v_add_u32 {v(VX[1])}, -1024, {v(VX[0])}
    v_add_u32 {v(VX[2])}, -2048, {v(VX[0])}
    v_and_b32 {v(T2)}, 1, {v(T2)}
    v_lshlrev_b32 {v(T2)}, 1, {v(T2)}
    v_xor_b32 {v(T3)}, {v(T1)}, {v(T2)}
    v_lshlrev_b32 {v(T3)}, 4, {v(T3)}
    v_mul_u32_u24 {v(VWg[0])}, 3584, {v(T0)}
    v_add_u32 {v(VWg[0])}, {v(VWg[0])}, {v(T3)}
    v_add_u32 {v(VWg[1])}, {28672-1024}, {v(VWg[0])}
    v_xor_b32 {v(VWu[0])}, 64, {v(VWg[0])}
    v_add_u32 {v(VWu[1])}, {28672-1024}, {v(VWu[0])}
    s_waitcnt lgkmcnt(0)
    s_sub_u32 s4, s4, {XB}
    s_subb_u32 s5, s5, 0
    """)
    def dma_item(i):
        sl = (i % 5) * SLOT; tag = "it%d" % i; L = []
        xl = lambda T, c, u, pre="": [pre + f"s_add_u32 {sSO}, {sCH[c]}, {sTO[T]}", Ins(f"buffer_load_dwordx4 {v(VX[u])}, {X}, {sSO} offen offset:{1024*u} lds", tag)]
        if i < 7:
            L.append([f"s_add_u32 m0, {sM0P}, {sl+3072}", Ins(f"buffer_load_dwordx4 {v(VWg[0])}, {WG}, {sWC[i]} offen offset:0 lds", tag)])
            L.append(Ins(f"buffer_load_dwordx4 {v(VWg[1])}, {WG}, {sWC[i]} offen offset:1024 lds", tag))
            L.append([f"s_add_u32 m0, {sM0P}, {sl+5120}", Ins(f"buffer_load_dwordx4 {v(VWu[0])}, {WU}, {sWC[i]} offen offset:0 lds", tag)])
            L.append(Ins(f"buffer_load_dwordx4 {v(VWu[1])}, {WU}, {sWC[i]} offen offset:1024 lds", tag))
            for rt in range(3): L.append(xl(rt, i, rt, f"s_add_u32 m0, {sM0P}, {sl}\n" if rt == 0 else ""))
        else:
            T = i - 4
            for k in range(7): L.append(xl(T, k, k % 4, f"s_add_u32 m0, {sM0P}, {sl+1024*k}\n" if k % 4 == 0 else ""))
        return L
    PKr = 200; PVr = 214; PWr = 224; PP = 232; KS = 238; VV = 242; OO = 246; VPK = 248; VPV = 249; VPW = 250; VPT = 251; VPR = 252; VPS = 253
    sPA2 = 's101'; sPTau = 's99'; sPS = sPV
    psetup = lines(f"""
    s_mul_i32 {sPA2}, s2, 9363
    s_lshr_b32 {sPA2}, {sPA2}, 16
    s_mul_i32 s3, {sPA2}, 7
    s_sub_u32 {sPTau}, s2, s3
    s_lshl_b32 s3, {sPA2}, 2
    s_add_u32 s3, s3, {sW}
    s_mul_i32 s3, s3, {16*896}
    s_lshl_b32 {sPS}, {sPTau}, 7
    s_add_u32 s3, s3, {sPS}
    v_and_b32 {v(VPT)}, 15, {v(VL)}
    v_lshrrev_b32 {v(VPR)}, 4, {v(VL)}
    v_mul_u32_u24 {v(VPV)}, {4*896}, {v(VPR)}
    v_lshl_add_u32 {v(VPV)}, {v(VPT)}, 3, {v(VPV)}
    v_add_u32 {v(VPV)}, s3, {v(VPV)}
    v_add_u32 {v(VPK)}, {-3*896}, {v(VPV)}
    s_lshl_b32 s3, {sPTau}, 9
    v_lshl_add_u32 {v(VPW)}, {v(VPT)}, 5, s3
    """) + srd_hi(KK, NQ)
    ploads = [f"buffer_load_dwordx2 {v(PKr+2*r,2)}, {v(VPK)}, {KK}, 0 offen offset:{896*r}" for r in range(3)]
    ploads += [f"buffer_load_dwordx2 {v(PKr+6+2*r,2)}, {v(VPV)}, {KK}, 0 offen offset:{896*r}" for r in range(4)]
    ploads += [f"global_load_dwordx4 {v(PWr+4*k,4)}, {v(VPW)}, {pSH} offset:{16*k}" for k in range(2)]
    ploads += [f"global_load_dwordx2 {v(PVr+2*r,2)}, {v(VPV)}, {pV} offset:{896*r}" for r in range(4)]
    sLO = 'v199'; sHI = 'v254'
    pcomp = lines(f"""
    v_mov_b32 {sLO}, 0x05040100
    v_mov_b32 {sHI}, 0x07060302
    s_lshl_b32 s3, {sW}, 2
    v_add_u32 {v(VPR)}, s3, {v(VPR)}
    v_sub_u32 {v(VPR)}, 15, {v(VPR)}
    v_lshrrev_b32 {v(VPS)}, 1, {v(VPR)}
    v_and_b32 {v(VPR)}, 1, {v(VPR)}
    v_xor_b32 {v(VPS)}, {v(VPS)}, {v(VPT)}
    v_and_b32 {v(VPS)}, 7, {v(VPS)}
    v_lshlrev_b32 {v(VPS)}, 4, {v(VPS)}
    v_lshl_add_u32 {v(VPS)}, {v(VPR)}, 3, {v(VPS)}
    v_lshl_add_u32 {v(VPT)}, {v(VPT)}, 9, {v(VPS)}
    v_add_u32 {v(VPT)}, {PT}, {v(VPT)}
    """)
    for i in range(4):
        p = i >> 1; sel = sHI if i & 1 else sLO
        kreg = lambda rho: PKr + 2 * (rho + 3) + p
        pcomp += [f"v_perm_b32 {v(PP+rho+2)}, {v(kreg(rho-1))}, {v(kreg(rho))}, {sel}" for rho in range(-2, 4)]
        pcomp += [f"v_dot2_f32_bf16 {v(KS+rho)}, {v(PP+rho+2)}, {v(PWr+2*i)}, 0" for rho in range(4)]
        pcomp += [(f"v_and_b32 {v(VV+rho)}, 0xffff0000, {v(PVr+2*rho+p)}" if i & 1 else f"v_lshlrev_b32 {v(VV+rho)}, 16, {v(PVr+2*rho+p)}") for rho in range(4)]
        pcomp += [f"v_dot2_f32_bf16 {v(KS+rho)}, {v(PP+rho)}, {v(PWr+2*i+1)}, {v(KS+rho)}" for rho in range(4)]
        pcomp += [f"v_mul_f32 {v(VV+rho)}, {v(VV+rho)}, {v(KS+rho)}" for rho in range(4)]
        pcomp += [f"v_cvt_pk_bf16_f32 {v(OO+e_)}, {v(VV+3-2*e_)}, {v(VV+2-2*e_)}" for e_ in range(2)]
        pcomp += [Ins(f"ds_write_b64 {v(VPT)}, {v(OO,2)} offset:{128*i}", "ptw")]
    pcomp += lines(f"""
    v_lshrrev_b32 {v(VPS)}, 3, {v(VL)}
    v_lshrrev_b32 {v(VPR)}, 5, {v(VL)}
    s_lshl_b32 s3, {sW}, 2
    v_add_u32 {v(VPR)}, s3, {v(VPR)}
    v_xor_b32 {v(VPR)}, {v(VPR)}, {v(VL)}
    v_and_b32 {v(VPR)}, 7, {v(VPR)}
    v_lshlrev_b32 {v(VPR)}, 4, {v(VPR)}
    v_lshl_add_u32 {v(VPR)}, {v(VPS)}, 7, {v(VPR)}
    s_lshl_b32 s3, {sW}, 11
    s_add_u32 s3, s3, {PT}
    v_add_u32 {v(VPR)}, s3, {v(VPR)}
    v_xor_b32 {v(VPK)}, 32, {v(VPR)}
    v_and_b32 {v(VPT)}, 7, {v(VL)}
    v_lshlrev_b32 {v(VPT)}, 4, {v(VPT)}
    v_lshl_add_u32 {v(VPS)}, {v(VPS)}, 12, {v(VPT)}
    s_lshl_b32 s3, {sPTau}, 2
    s_add_u32 s3, s3, {sW}
    s_lshl_b32 s3, s3, 16
    s_sub_u32 {sPS}, 31, {sPA2}
    s_lshl_b32 {sPS}, {sPS}, 7
    s_add_u32 {sPS}, {sPS}, s3
    s_add_u32 {sPV}, {sPS}, {WS_UR}
    s_lshl_b32 s3, {sPTau}, 5
    s_add_u32 s3, s3, {sPA2}
    s_lshl_b32 {sFL}, s3, 7
    """)
    pstore = [f"ds_read_b128 {v(PKr,4)}, {v(VPR)}", f"ds_read_b128 {v(PKr+4,4)}, {v(VPK)} offset:1024", [], [], [],
              Ins(f"buffer_store_dwordx4 {v(PKr,4)}, {v(VPS)}, {WS}, {sPV} offen sc1", "pst"),
              f"s_add_u32 {sPV}, {sPV}, 32768", Ins(f"buffer_store_dwordx4 {v(PKr+4,4)}, {v(VPS)}, {WS}, {sPV} offen sc1", "pst")]
    first = dma_item(0) + dma_item(1)
    P.add(first[:cfg.n_pre]); late_first = first[cfg.n_pre:]
    if not cfg.pass_stamps: P.add(stamp("issued"))
    P.e(f"""
    s_lshl_b32 s3, s2, 2
    s_load_dword {sD}, {pD}, s3
    v_lshlrev_b32 {v(T3)}, 1, {v(T2)}
    v_xor_b32 {v(T3)}, {v(T1)}, {v(T3)}
    v_lshlrev_b32 {v(T3)}, 4, {v(T3)}
    v_mul_u32_u24 {v(VD[0])}, 896, {v(T0)}
    v_add_u32 {v(VD[0])}, {v(VD[0])}, {v(T3)}
    v_add_u32 {v(VX[3])}, -3072, {v(VX[0])}
    v_and_b32 {v(T0)}, 31, {v(VL)}
    v_lshrrev_b32 {v(T1)}, 3, {v(T0)}
    v_mul_u32_u24 {v(T1)}, {PIECE}, {v(T1)}
    v_and_b32 {v(T2)}, 7, {v(T0)}
    v_lshl_add_u32 {v(T1)}, {v(T2)}, 7, {v(T1)}
    v_lshrrev_b32 {v(T2)}, 1, {v(T0)}
    v_and_b32 {v(T2)}, 7, {v(T2)}
    v_lshrrev_b32 {v(T3)}, 5, {v(VL)}
    v_xor_b32 {v(T2)}, {v(T2)}, {v(T3)}
    v_lshl_add_u32 {v(XR[0][0])}, {v(T2)}, 4, {v(T1)}
    """)
    for k in range(1, 4): P.e(f"v_xor_b32 {v(XR[0][k])}, {32*k}, {v(XR[0][0])}")
    for k in range(4): P.e(f"v_add_u32 {v(XR[1][k])}, {3*SLOT}, {v(XR[0][k])}")
    P.e(f"""
    v_bfe_u32 {v(T0)}, {v(VL)}, 2, 2
    v_lshl_add_u32 {v(T1)}, {v(T3)}, 3, {v(T0)}
    v_lshlrev_b32 {v(T1)}, 7, {v(T1)}
    v_bfe_u32 {v(T2)}, {v(VL)}, 1, 1
    v_lshl_add_u32 {v(T1)}, {v(T2)}, 11, {v(T1)}
    v_lshlrev_b32 {v(T2)}, 1, {v(T2)}
    v_lshrrev_b32 {v(T0)}, 1, {v(T0)}
    v_add_u32 {v(T2)}, {v(T2)}, {v(T0)}
    v_xor_b32 {v(T2)}, {sW}, {v(T2)}
    v_lshl_add_u32 {v(T1)}, {v(T2)}, 5, {v(T1)}
    v_bfe_u32 {v(T2)}, {v(VL)}, 4, 1
    v_lshl_add_u32 {v(T1)}, {v(T2)}, 4, {v(T1)}
    v_and_b32 {v(T2)}, 1, {v(VL)}
    v_lshl_add_u32 {v(T1)}, {v(T2)}, 3, {v(T1)}
    v_add_u32 {v(WR[0])}, 3072, {v(T1)}
    v_add_u32 {v(WR[1])}, {2*SLOT}, {v(WR[0])}
    v_add_u32 {v(WR[2])}, {4*SLOT}, {v(WR[0])}
    """)
    P.add(psetup)
    if cfg.touch:
        P.add(srd_hi(WS, WS_SIZE))
        P.e(f"""v_min_u32 {v(254)}, 12, {v(VL)}
        v_lshlrev_b32 {v(254)}, 20, {v(254)}
        v_add_u32 {v(254)}, 0xf000, {v(254)}
        v_mov_b32 {v(198)}, 0
        buffer_load_dword {v(190)}, {v(254)}, {WS}, 0 offen
        global_load_dword {v(191)}, {v(198)}, s[28:29]
        global_load_dword {v(192)}, {v(198)}, {pV}
        global_load_dword {v(193)}, {v(198)}, {pSH}
        global_load_dword {v(194)}, {v(198)}, s[20:21]
        global_load_dword {v(195)}, {v(198)}, s[16:17]
        global_load_dword {v(196)}, {v(198)}, {pOUT}
        global_load_dword {v(197)}, {v(198)}, {pDBG}""")
    for i in range(2, 7): P.add(ch_tab(i))
    for t in range(3, 8): P.add(to_tab(t))
    S = []
    S += lines(f"""
    v_bfe_u32 {v(T1)}, {v(VL)}, 2, 2
    v_lshl_add_u32 {v(T1)}, {v(T3)}, 2, {v(T1)}
    v_lshlrev_b32 {v(T1)}, 7, {v(T1)}
    s_lshr_b32 s3, {sW}, 1
    v_xor_b32 {v(T2)}, s3, {v(T0)}
    v_lshl_add_u32 {v(T1)}, {v(T2)}, 6, {v(T1)}
    v_bfe_u32 {v(T2)}, {v(VL)}, 4, 1
    v_lshl_add_u32 {v(T1)}, {v(T2)}, 5, {v(T1)}
    v_and_b32 {v(T2)}, 3, {v(VL)}
    v_lshl_add_u32 {v(T1)}, {v(T2)}, 3, {v(T1)}
    v_add_u32 {v(DR[0][0])}, {sM0P}, {v(T1)}
    v_xor_b32 {v(DR[0][1])}, 64, {v(DR[0][0])}
    v_add_u32 {v(DR[1][0])}, {2*SLOT}, {v(DR[0][0])}
    v_add_u32 {v(DR[1][1])}, {2*SLOT}, {v(DR[0][1])}
    v_add_u32 {v(VD[1])}, 6144, {v(VD[0])}
    v_add_u32 {v(VD[2])}, {2*6144}, {v(VD[0])}
    v_add_u32 {v(VD[3])}, {3*6144}, {v(VD[0])}
    v_lshlrev_b32 {v(V16)}, 4, {v(VL)}
    s_mul_i32 s3, {sT2}, 28
    s_add_u32 s3, s3, {sT1}
    s_add_u32 s3, s3, 256
    s_lshl_b32 {sXB}, s3, 7
    v_mov_b32 {v(vARR)}, -16
    v_cmp_eq_u32 vcc, 0, v0
    v_min_u32 {v(vP8)}, 7, {v(VL)}
    v_min_u32 {v(vP7)}, 6, {v(VL)}
    v_cndmask_b32 {v(vARR)}, {v(vARR)}, 0, vcc
    v_mov_b32 {v(vONE)}, 1
    s_lshl_b32 s3, {sW}, 3
    v_add_lshl_u32 {v(vP8)}, {v(vP8)}, s3, 7
    s_mul_i32 s3, {sW}, 7
    v_add_lshl_u32 {v(vP7)}, {v(vP7)}, s3, 7
    s_mul_i32 {sWB}, {sT2}, {8*112}
    s_lshl_b32 s3, {sT1}, 2
    s_add_u32 {sWB}, {sWB}, s3
    s_add_u32 {sWB}, {sWB}, {sW}
    s_lshl_b32 {sWB}, {sWB}, 10
    s_add_u32 {sWB}, {sWB}, {WS_H}
    s_mul_i32 {sDB}, {sW}, {448*896}
    s_lshl_b32 s3, {sCT}, 7
    s_add_u32 {sDB}, {sDB}, s3
    s_and_b32 s3, s2, 7
    s_add_u32 {sRG}, {sRG}, s3
    """)
    S += mod7(sRG) if cfg.rot_g else [f"s_mov_b32 {sRG}, 0"]
    S += [f"s_mov_b32 {sR}, {sRG}"]
    for i in range(7):
        S += [f"s_mul_i32 s3, {sR}, 57344", f"s_add_u32 {sDG[i]}, s3, {sDB}"] + (rot_next(sR) if i < 6 else [])
    S += srd_hi(WD, NW) + srd_hi(WS, WS_SIZE) + srd_hi(SK, 4096)
    S += lines(f"""
    s_lshr_b32 {sT2}, {sW}, 1
    s_and_b32 {sKH}, {sW}, 1
    s_lshl_b32 {sM}, s2, 1
    s_add_u32 {sM}, {sM}, {sT2}
    s_lshl_b32 s3, {sM}, 12""") + [f"s_add_u32 s20, s20, s3\n s_addc_u32 s21, s21, 0"] + lines(f"""
    s_mov_b32 {sNL2E}, 0xbfb8aa3b
    s_mov_b32 {sMASK}, 0xffff0000
    s_mov_b32 {sONE}, 1
    """)
    S2 = lines(f"""
    s_mov_b32 {sHS}, {sWB}
    s_lshl_b32 {sU}, {sKH}, 11
    v_add_u32 {v(VSK[0])}, {sU}, {v(V16)}
    v_add_u32 {v(VSK[1])}, -16, {v(VSK[0])}
    v_add_u32 {v(VSK[2])}, 1008, {v(VSK[0])}
    s_mul_i32 {sT0}, {sT2}, {HCCH}
    s_add_u32 {sT0}, {sT0}, {HC}
    s_mul_i32 {sT1}, {sT2}, {UCH}
    s_add_u32 {sT1}, {sT1}, {UL}
    s_add_u32 s3, {sU}, {sT0}
    s_add_u32 s3, s3, 32
    v_add_u32 {v(VHW)}, s3, {v(V16)}
    v_and_b32 {v(T0)}, 15, {v(VL)}
    v_lshrrev_b32 {v(T1)}, 4, {v(VL)}
    v_sub_u32 {v(T2)}, 3, {v(T0)}
    v_and_b32 {v(T2)}, 3, {v(T2)}
    v_add3_u32 {v(T3)}, {v(T0)}, {v(T2)}, 1
    v_lshl_add_u32 {v(T3)}, {v(T1)}, 3, {v(T3)}
    v_lshlrev_b32 {v(T3)}, 1, {v(T3)}
    v_mul_u32_u24 {v(T2)}, {CPY}, {v(T2)}
    s_lshl_b32 s3, {sKH}, 8
    s_add_u32 {sT0}, {sT0}, s3
    v_add3_u32 {v(CA)}, {v(T2)}, {v(T3)}, {sT0}
    v_lshlrev_b32 {v(T0)}, 5, {v(T0)}
    v_lshlrev_b32 {v(T1)}, 4, {v(T1)}
    v_sub_u32 {v(T1)}, {v(T1)}, {v(T0)}
    s_add_u32 s3, s3, {sT1}
    s_add_u32 s3, s3, 480
    v_add_u32 {v(CB)}, s3, {v(T1)}
    s_add_u32 {sPA}, {sT1}, {sU}
    s_lshl_b32 s3, {sM}, 12
    s_add_u32 {sU}, {sU}, s3
    v_mov_b32 {v(VZ)}, 0
    v_mov_b32 {v(VZ+1)}, 0
    v_mov_b32 {v(VZ+2)}, 0
    v_mov_b32 {v(VZ+3)}, 0
    v_lshrrev_b32 {v(T0)}, 5, {v(VL)}
    v_mul_u32_u24 {v(T0)}, {UCH}, {v(T0)}
    v_and_b32 {v(T1)}, 31, {v(VL)}
    v_lshl_add_u32 {v(T0)}, {v(T1)}, 4, {v(T0)}
    v_add_u32 {v(T0)}, {UL+4096}, {v(T0)}
    ds_write_b128 {v(T0)}, {v(VZ,4)}
    v_and_b32 {v(T0)}, 15, {v(VL)}
    v_lshrrev_b32 {v(T1)}, 1, {v(T0)}
    v_mul_u32_u24 {v(T1)}, {CPY}, {v(T1)}
    v_and_b32 {v(T0)}, 1, {v(T0)}
    v_lshl_add_u32 {v(T0)}, {v(T0)}, 4, {v(T1)}
    v_add_u32 {v(VHZ)}, {HC}, {v(T0)}
    s_lshl_b32 s3, {sI2}, 1
    s_add_u32 {sT0}, s3, {sKH}
    s_xor_b32 {sT1}, {sT0}, 1
    s_mul_i32 {sT0}, {sT0}, 112
    s_mul_i32 {sT1}, {sT1}, 112
    s_mul_i32 s3, {sW}, 28
    s_add_u32 {sT0}, {sT0}, s3
    s_add_u32 {sT1}, {sT1}, s3
    s_lshl_b32 {sT0}, {sT0}, 10
    s_lshl_b32 {sT1}, {sT1}, 10
    s_add_u32 {sHL[0]}, {sT0}, {WS_H}
    s_add_u32 {sHL[1]}, {sT1}, {WS_H}
    """)
    skl = [f"buffer_load_dwordx4 {v(HR,4)}, {v(VSK[1])}, {SK}, 0 offen", f"buffer_load_dwordx4 {v(HR+4,4)}, {v(VSK[0])}, {SK}, 0 offen",
           f"buffer_load_dwordx4 {v(HR+8,4)}, {v(VSK[2])}, {SK}, 0 offen", f"buffer_load_dwordx4 {v(HR+12,4)}, {v(VSK[0])}, {SK}, 0 offen offset:1024"]

    NG = 224
    G = Gaps(NG)
    def item_start(i): return 12 * i if i <= 7 else 84 + 28 * (i - 7)
    gT = lambda T: item_start(T + 4)
    def xread(g):
        if g < 84: c = g // 12; ks = (g % 12) // 3; unit = g % 3; it = c
        else: it = 7 + (g - 84) // 28; k = (g - 84) % 28; ks = k % 4; unit = k // 4
        sl = it % 5; hi = 1 if sl >= 3 else 0
        off = (sl - 3 * hi) * SLOT + 1024 * unit
        return f"ds_read_b128 {v(XRING+4*(g%NXR),4)}, {v(XR[hi][ks])} offset:{off}"
    def wread(c, ks):
        sl = c % 5; var = sl // 2; off = (sl - 2 * var) * SLOT + PIECE * ks; f = 4 * (4 * c + ks)
        return [f"ds_read_b64_tr_b16 {a(f+2*rd,2)}, {v(WR[var])} offset:{off+512*rd}" for rd in range(2)]
    tile_acc = {0: 0, 1: 1, 2: 2, 3: 3, 4: 0, 5: 1, 6: 2, 7: 3}
    for g in range(NG):
        if g < 84: c = g // 12; ks = 4 * c + (g % 12) // 3; T = g % 3
        else: T = 3 + (g - 84) // 28; ks = (g - 84) % 28
        A = v(ACC[tile_acc[T]], 16)
        G.m[g] = f"v_mfma_f32_32x32x16_bf16 {A}, {a(4*ks,4)}, {v(XRING+4*(g%NXR),4)}, {'0' if ks == 0 else A}"
    pre = []
    def at(g, item):
        if g < 0: pre.append(item)
        else: G.put(g, item)
    gB = lambda i: item_start(i) - PD - 1
    sPF = sDB
    G.put(gB(11) + cfg.p_load - 1, f"s_lshr_b32 {sPF}, s2, 5\n s_lshl_b32 {sPF}, {sPF}, 12")
    G.put(gB(11) + cfg.p_load, poll_load("p", sPF))
    for i in range(12):
        if i == 11: at(gB(i), [stamp("prepoll") if not cfg.pass_stamps else [], poll_check("p", sPF)])
        if i == 7: at(gB(i), WaitTag('lgkm', "ptw"))
        if i == cfg.p_arr and not cfg.nosync: at(gB(i), WaitTag('vm', "pst"))
        at(gB(i), [WaitTag('vm', "it%d" % i), Ins("s_barrier")])
        if i == cfg.p_arr: at(gB(i), [arrive("pst", sFL, False), f"s_mov_b32 {sFL}, {sXB}"])
    assert cfg.z_chk <= gB(cfg.p_arr)
    G.put(cfg.z_load, poll_load("z", None))
    G.f[cfg.z_chk].insert(0, [stamp("zpre") if not cfg.pass_stamps else [], poll_check("z", None), stamp("zpost") if not cfg.pass_stamps else []])
    for g in range(NG):
        if g < 84 and g % 3 == 0:
            for s_ in wread(g // 12, (g % 12) // 3): at(g - PD - 1, s_)
        at(g - PD - 1, xread(g))
    for c in range(7): G.spread(dma_item(c + 2), max(gB(c) + 1, 0), gB(c + 1) + 1)
    G.spread(dma_item(9) + dma_item(10), gB(7) + 1, gB(8) + 1)
    G.spread(skl + dma_item(11), gB(8) + 1, gB(8) + 25)
    if cfg.pl_at >= 0: G.spread(ploads, cfg.pl_at, cfg.pl_at + 13)
    lastS = 0 if cfg.s_early else G.pour(S + S2, 0, cfg.pc0, cfg.bud1)
    lastP = G.pour(pcomp, max(lastS, cfg.pc0), cfg.pc1, cfg.bud1)
    assert lastP < gB(7), lastP
    G.spread(pstore, gB(7) + 1, gB(7) + 9)
    hv = []
    for rho in range(2):
        R = HR + 8 * rho; C_ = HCP + 12 * rho
        for k in range(4): hv.append(f"v_alignbit_b32 {v(C_+k)}, {v(R+4+k)}, {v(R+3+k)}, 16")
        for k in range(4): hv.append(f"v_mov_b32 {v(C_+4+k)}, {v(R+3+k)}")
        for k in range(4): hv.append(f"v_alignbit_b32 {v(C_+8+k)}, {v(R+3+k)}, {v(R+2+k)}, 16")
    hw = [Ins(f"ds_write_b128 {v(VHZ)}, {v(VZ,4)}", "hcw")]
    for rho in range(2):
        R = HR + 8 * rho; C_ = HCP + 12 * rho
        for cpy, src in enumerate((R + 4, C_, C_ + 4, C_ + 8)):
            hw.append(Ins(f"ds_write_b128 {v(VHW)}, {v(src,4)} offset:{cpy*CPY+1024*rho}", "hcw"))
    def epi(T, packed=False):
        A = ACC[tile_acc[T]]; Pk = PK[T % 2]; L = []
        for grp in range(2):
            g_ = A + 8 * grp; u_ = g_ + 4; E = ET
            if packed:
                E = ET if grp == 0 else HR
                L += [f"v_mul_f32 {v(E+i)}, {sNL2E}, {v(g_+i)}" for i in range(4)]
                L += [f"v_exp_f32 {v(E+i)}, {v(E+i)}" for i in range(4)]
                L += [f"v_pk_mul_f32 {v(u_+2*i,2)}, {v(g_+2*i,2)}, {v(u_+2*i,2)}" for i in range(2)]
                L += [f"v_pk_add_f32 {v(E+2*i,2)}, {v(E+2*i,2)}, 1.0 op_sel_hi:[1,0]" for i in range(2)]
                L += [f"v_rcp_f32 {v(E+i)}, {v(E+i)}" for i in range(4)]
                L += [f"v_pk_mul_f32 {v(u_+2*i,2)}, {v(u_+2*i,2)}, {v(E+2*i,2)}" for i in range(2)]
            else:
                L += [f"v_mul_f32 {v(E+i)}, {sNL2E}, {v(g_+i)}" for i in range(4)]
                L += [f"v_exp_f32 {v(E+i)}, {v(E+i)}" for i in range(4)]
                L += [f"v_mul_f32 {v(u_+i)}, {v(g_+i)}, {v(u_+i)}" for i in range(2)]
                L += [f"v_add_f32 {v(E+i)}, 1.0, {v(E+i)}" for i in range(4)]
                L += [f"v_rcp_f32 {v(E+i)}, {v(E+i)}" for i in range(4)]
                L += [f"v_mul_f32 {v(u_+i)}, {v(g_+i)}, {v(u_+i)}" for i in range(2, 4)]
                L += [f"v_mul_f32 {v(u_+i)}, {v(u_+i)}, {v(E+i)}" for i in range(4)]
            L += [f"v_cvt_pk_bf16_f32 {v(Pk+2*grp+i)}, {v(u_+2*i)}, {v(u_+2*i+1)}" for i in range(2)]
        L.append(f"s_lshl2_add_u32 {sSO2}, {sTO[T]}, {sHS}")
        L.append(Ins(f"buffer_store_dwordx4 {v(Pk,4)}, {v(V16)}, {WS}, {sSO2} offen sc1", "hst"))
        return L
    page_slot = [2, 3, 0, 1]
    def wd_page(n): return n % 14 if n < 28 else (14 + (n - 28) if n < 42 else n - 42)
    def wd_prev(n): return n - 14 if 14 <= n < 28 else (n - 28 if n >= 42 else None)
    def wd_dma(n0, n1):
        L = []; n = n0
        while n < n1:
            p = wd_page(n); cnt = min(4, n1 - n, 7 - p % 7, 8 - n % 8)
            lds = page_slot[p // 7] * SLOT + 1024 * (p % 7)
            for k in range(cnt):
                it = [Ins(f"buffer_load_dwordx4 {v(VD[k])}, {WD}, {sSO} offen offset:{1024*k} lds", "wd%d" % (n + k))]
                if wd_prev(n + k) is not None: it = [WaitTag('lgkm', "wr%d" % wd_prev(n + k))] + it
                if k == 0: L.append(f"s_add_u32 m0, {sM0P}, {lds}\n s_add_u32 {sSO}, {sDG[n >> 3]}, {7168*(n % 8)}")
                L.append(it)
            n += cnt
        return L
    def wd_read(n, dst):
        p = wd_page(n); sl = page_slot[p // 7]; hi = 1 if sl >= 2 else 0
        off = (sl - 2 * hi) * SLOT + 1024 * (p % 7)
        return [[WaitTag('vm', "wd%d" % n)] * (dt == 0) + [Ins(f"ds_read_b64_tr_b16 {dst(dt)}, {v(DR[hi][dt])} offset:{off}", "wr%d" % n)] for dt in range(2)]
    WD1 = 112
    def wd1(n): return lambda dt: a(WD1 + 8 * (n >> 1) + 4 * dt + 2 * (n & 1), 2)
    def wd_reads(n0, n1): return [x for n in range(n0, n1) for x in wd_read(n, wd1(n))]
    G.spread(wd_dma(0, 7), gB(9) + 1, gB(9) + 20)
    G.spread(hv, gB(9) + 1, gB(9) + 26)
    G.spread(wd_dma(7, 14), gB(10) + 1, gB(10) + 15)
    G.spread(wd_reads(0, 7), gB(10) + 2, gB(10) + 14)
    G.spread(wd_dma(14, 21), gB(10) + 16, gB(11))
    G.put(gB(11) + 1, [f"s_mov_b32 m0, {sPA}\n s_add_u32 {sSO}, {sU}, {WS_UR}"] + [Ins(f"buffer_load_dwordx4 {v(V16)}, {WS}, {sSO} offen offset:{1024*j} sc1 lds", "u") for j in range(2)])
    G.spread(wd_reads(7, 14), gB(11) + 3, gB(11) + 15)
    G.spread(wd_dma(21, 28), gB(11) + 16, NG - 1)
    G.spread(hw, gB(11) + 2, gB(11) + 24)
    bounds = [84 + 2 + (140 - 4) * k // 7 for k in range(8)]
    last = 0
    for T in range(7):
        g0 = max(bounds[T], (84 if T < 3 else gT(T + 1)) + 2, last)
        last = G.pour(epi(T), g0, max(bounds[T + 1], g0 + 1), cfg.bud)
        nxt = [t for t in range(T + 1, 8) if tile_acc[t] == tile_acc[T]]
        if nxt: assert last < gT(nxt[0]), (T, last)
    check_m0(G)
    if cfg.s_early: P.add(S + S2)
    P.add(late_first)
    if cfg.pl_at < 0: P.add(ploads)
    P.e(f"""s_waitcnt lgkmcnt(0)
    s_lshl_b32 s3, {sD}, 16
    s_and_b32 {sD}, {sD}, 0xffff0000
    s_cmp_lt_u32 {sW}, 2
    s_cselect_b32 {sD}, s3, {sD}""")
    P.add(pre)
    P.add(stamp("g1start"))
    G.put(83, stamp("p1end"))
    if cfg.pass_stamps:
        for T in (5, 6, 7): G.put(gT(T) - 1, stamp("T%d" % T))
    G.emit(P, cfg.pair)
    if cfg.verbose: print("G1 gap costs", G.costs())
    P.add(stamp("g1end"))
    P.vmwait("u"); P.lgwait("hcw"); P.e("s_barrier")
    CACC = 48
    def cA(buf, a_): return (0 if buf == 0 else 64) + 4 * a_
    def cB(buf, b_):
        i = 32 + 4 * b_ if buf == 0 else 96 + 4 * b_
        return i if i < 112 else 224 + (i - 112)
    def creads(st):
        buf = st & 1; L = []
        for k in range(8):
            L.append(f"ds_read_b128 {a(cB(buf,k),4)}, {v(CB)} offset:{64*st+512*(7-k)}")
            for rd in range(2): L.append(f"ds_read_b64 {a(cA(buf,k)+2*rd,2)}, {v(CA)} offset:{512*k+64*st+8*rd}")
        return L
    e7 = epi(7, True); c0 = creads(0)
    P.add(c0[:9])
    k = 0; rest = c0[9:15]; d2 = wd_dma(28, 28 + cfg.nwd_t); k2 = 0
    for j, it in enumerate(e7):
        P.add(it)
        if j % 5 == 4 and k < len(rest): P.add(rest[k]); k += 1
        if j % 5 == 1 and k2 < len(d2) and j < len(e7) - 3: P.add(d2[k2]); k2 += 1
    P.add(rest[k:]); P.add(d2[k2:])
    hg = [f"s_lshr_b32 s3, {sI2}, 2", "s_mul_i32 s3, s3, 28", f"s_add_u32 s3, s3, 256", f"s_lshl_b32 {sPA}, s3, 7"]
    for i in range(7): hg += [f"s_lshl_b32 {sHG[i]}, {sRG}, 12"] + (rot_next(sRG) if i < 6 else [])
    P.add(stamp("cstart"))
    C = Gaps(144)
    pairs = [(t, a_) for t in range(8) for a_ in range(t + 1)]
    C.spread(c0[15:], 0, 6)
    for st in range(4):
        for j, (t, a_) in enumerate(pairs):
            A = v(CACC + 4 * t, 4)
            C.m[36 * st + j] = f"v_mfma_f32_16x16x32_bf16 {A}, {a(cA(st&1,a_),4)}, {a(cB(st&1,t-a_),4)}, {'0' if (st == 0 and a_ == 0) else A}"
        if st < 3: C.spread(creads(st + 1), 36 * st + (6 if st == 0 else 1), 36 * st + 31)
    HRING = 96; NHR = 40
    sHT = [sXB, sWB]
    def hload(n):
        ks = n >> 1; stl = n & 1; L = []
        if ks % 4 == 0: L.append(f"s_add_u32 {sHT[stl]}, {sHL[stl]}, {sHG[ks >> 2]}")
        L.append(f"buffer_load_dwordx4 {v(HRING+4*(n%NHR),4)}, {v(V16)}, {WS}, {sHT[stl]} offen offset:{1024*(ks%4)} sc1")
        return L
    C.pour(wd_reads(14, 28), 6, 44, 12)
    C.spread(wd_dma(28 + cfg.nwd_t, 56), 0, cfg.g_wd_end)
    C.put(cfg.g_arrive, arrive("hst", sFL))
    C.pour(hg, 46, 84, 12)
    C.put(cfg.g_poll, poll_load("h", sPA))
    C.put(cfg.g_chk, [stamp("c_pre"), poll_check("h", sPA), stamp("c_post")])
    NH = cfg.nh_c
    C.spread([hload(n) for n in range(NH)], cfg.g_chk + 1, 144)
    Y = 80; RR = 2; UU = 18; VRW = 26; VRR = 27; VUR = 37; VYS = 42
    ce = lines(f"""
    s_lshl_b32 s3, {sW}, 12
    s_add_u32 s3, s3, {HC}
    v_add_u32 {v(VRW)}, s3, {v(V16)}
    v_xor_b32 {v(VRR)}, 4096, {v(VRW)}
    v_and_b32 {v(T3)}, 15, {v(VL)}
    v_lshlrev_b32 {v(T3)}, 5, {v(T3)}
    v_lshrrev_b32 {v(T2)}, 4, {v(VL)}
    v_lshl_add_u32 {v(T3)}, {v(T2)}, 3, {v(T3)}
    s_lshr_b32 s3, {sW}, 1
    s_mul_i32 s3, s3, {UCH}
    s_lshl_b32 {sT0}, {sKH}, 11
    s_sub_u32 s3, s3, {sT0}
    s_add_u32 s3, s3, {UL+504+2048}
    v_sub_u32 {v(VUR)}, s3, {v(T3)}
    v_and_b32 {v(T1)}, 3, {v(VL)}
    v_lshlrev_b32 {v(T1)}, 4, {v(T1)}
    v_bfe_u32 {v(T3)}, {v(VL)}, 2, 2
    v_lshl_add_u32 {v(T1)}, {v(T3)}, 7, {v(T1)}
    v_bfe_u32 {v(T3)}, {v(VL)}, 4, 1
    v_lshl_add_u32 {v(T1)}, {v(T3)}, 9, {v(T1)}
    v_lshrrev_b32 {v(T3)}, 5, {v(VL)}
    v_lshl_add_u32 {v(VYS)}, {v(T3)}, 6, {v(T1)}
    s_add_u32 {sU}, {sU}, {WS_YT}
    """)
    ce += [f"ds_read_b64 {v(UU+2*tau,2)}, {v(VUR)} offset:{512*(3-tau)}" for tau in range(4)]
    DU = 80
    for tau in range(4):
        ce += lines(f"""
        v_and_b32 {v(DU+4*tau+0)}, {sMASK}, {v(UU+2*tau+1)}
        v_lshlrev_b32 {v(DU+4*tau+1)}, 16, {v(UU+2*tau+1)}
        v_and_b32 {v(DU+4*tau+2)}, {sMASK}, {v(UU+2*tau)}
        v_lshlrev_b32 {v(DU+4*tau+3)}, 16, {v(UU+2*tau)}""")
    lc = C.pour(ce, 100, 142, 8)
    check_m0(C)
    C.emit(P)
    if cfg.verbose: print("C gap costs", C.costs())
    hq = [hload(n) for n in range(NH, NH + cfg.nh_e)]; NH += cfg.nh_e
    def hnext():
        if hq: P.add(hq.pop(0))
    P.e("s_barrier")
    hnext()
    P.e(f"s_cmp_eq_u32 {sKH}, 0\n s_nop 3\n s_cbranch_scc1 L_cw0")
    for tau in range(4): P.e(f"ds_write_b128 {v(VRW)}, {v(CACC+4*tau,4)} offset:{1024*tau}", nocount=True)
    for k in range(16): P.e(f"v_fma_f32 {v(DU+k)}, {sD}, {v(DU+k)}, {v(CACC+16+k)}")
    P.e("s_branch L_cw1\n L_cw0:")
    for tau in range(4): P.e(f"ds_write_b128 {v(VRW)}, {v(CACC+16+4*tau,4)} offset:{1024*tau}")
    for k in range(16): P.e(f"v_fma_f32 {v(DU+k)}, {sD}, {v(DU+k)}, {v(CACC+k)}")
    P.e("L_cw1:"); hnext()
    P.e("s_waitcnt lgkmcnt(0)\n s_barrier")
    for tau in range(4): P.e(f"ds_read_b128 {v(RR+4*tau,4)}, {v(VRR)} offset:{1024*tau}")
    hnext(); hnext()
    for pi in range(2):
        for k in range(4): P.e(f"v_pk_add_f32 {v(DU+8*pi+2*k,2)}, {v(DU+8*pi+2*k,2)}, {v(RR+8*pi+2*k,2)}")
        for k in range(4): P.e(f"v_cvt_pk_bf16_f32 {v(UU+4*pi+k)}, {v(DU+8*pi+2*k)}, {v(DU+8*pi+2*k+1)}")
        hnext()
        P.e(f"v_permlane16_swap_b32 {v(UU+4*pi)}, {v(UU+4*pi+2)}\n v_permlane16_swap_b32 {v(UU+4*pi+1)}, {v(UU+4*pi+3)}")
        P.e(f"buffer_store_dwordx4 {v(UU+4*pi,4)}, {v(VYS)}, {WS}, {sU} offen offset:{1024*pi} sc1", tag="yst")
    while hq: hnext()
    P.add(stamp("g2start"))
    GACC = 0; JIT = 64; NJ = 6
    G2 = Gaps(112)
    def wfrag(ks, dt):
        if ks < 14: return a(WD1 + 8 * ks + 4 * dt, 4)
        return a(JIT + 4 * ((2 * (ks - 14) + dt) % NJ), 4)
    for ks in range(28):
        for sg in range(4):
            A = a(GACC + 16 * sg, 16)
            G2.m[4 * ks + sg] = f"v_mfma_f32_32x32x16_bf16 {A}, {wfrag(ks, sg>>1)}, {v(HRING+4*((2*ks+(sg&1))%NHR),4)}, {'0' if ks == 0 else A}"
    for ks in range(14, 28):
        for rd in range(2):
            its = wd_read(2 * ks + rd, lambda dt, ks=ks, rd=rd: a(JIT + 4 * ((2 * (ks - 14) + dt) % NJ) + 2 * rd, 2))
            for dt in range(2): G2.put(4 * ks - 7 + 2 * rd + dt, its[dt])
    gprev = 0
    for n in range(NH, 56):
        g = int((n - NH) * cfg.g2_hpace)
        if n >= NHR: g = max(4 * ((n - NHR) >> 1) + 4, g)
        g = max(g, gprev); gprev = g
        assert g < 4 * (n >> 1), (n, g)
        G2.put(g, hload(n))
    VY = [10, 11]; VQ = [12, 13]; VG = 14; VGA = 15; OMG = 16
    EW = [2, 3]; ER = [4, 5, 6]; EY = 7; EQ = [8, 9, 26, 27]; EO = 17
    red_slot = [None, 2, 3, 0]
    e1 = lines(f"""
    s_mov_b32 s28, s62
    s_mov_b32 s29, s63
    s_lshl_b32 s3, s2, 7
    s_add_u32 {sFL}, s3, {512*128}
    s_lshl_b32 s3, {sCT}, 12
    s_add_u32 {sPA}, s3, {512*128}
    v_lshrrev_b32 {v(T1)}, 3, {v(VL)}
    v_and_b32 {v(T2)}, 7, {v(VL)}
    v_lshlrev_b32 {v(T3)}, 12, {v(T1)}
    v_lshl_add_u32 {v(VY[0])}, {v(T2)}, 4, {v(T3)}
    v_add_u32 {v(VY[1])}, {32768-1024}, {v(VY[0])}
    v_lshrrev_b32 {v(T3)}, 4, {v(VL)}
    v_xor_b32 {v(T2)}, {v(T2)}, {v(T3)}
    v_lshlrev_b32 {v(T2)}, 4, {v(T2)}
    v_mul_u32_u24 {v(T1)}, 896, {v(T1)}
    v_add_u32 {v(VQ[0])}, {v(T1)}, {v(T2)}
    v_xor_b32 {v(T2)}, 64, {v(T2)}
    v_add_u32 {v(T1)}, {7168-1024}, {v(T1)}
    v_add_u32 {v(VQ[1])}, {v(T1)}, {v(T2)}
    s_lshl_b32 s3, {sI2}, 1
    s_add_u32 s3, s3, {sKH}
    s_lshl_b32 s3, s3, 7
    s_add_u32 s3, s3, {WS_G}
    v_and_b32 {v(T1)}, 31, {v(VL)}
    v_lshl_add_u32 {v(VGA)}, {v(T1)}, 2, s3
    s_lshl_b32 s3, {sI2}, 2
    s_add_u32 s3, s3, {sW}
    s_mul_i32 s3, s3, {16*896}
    s_lshl_b32 {sSO}, {sCT}, 7
    s_add_u32 {sSO}, {sSO}, s3
    s_add_u32 {sSO}, {sSO}, {XB}
    """)
    l1 = G2.pour(e1, 0, cfg.g2_arrive - 1, 20); assert l1 <= cfg.g2_arrive
    G2.put(cfg.g2_arrive, arrive("yst", sFL))
    qd = [f"s_lshl_b32 s3, {sW}, 11\n s_add_u32 m0, s3, {QL}"]
    qd += [Ins(f"buffer_load_dwordx4 {v(VQ[j])}, {X}, {sSO} offen offset:{1024*j} lds", "qy") for j in range(2)]
    qd += [f"buffer_load_dword {v(VG)}, {v(VGA)}, {WS}, 0 offen sc1"]
    G2.spread(qd, cfg.g2_arrive + 1, cfg.g2_arrive + 9)
    ea = [f"v_add_u32 {v(EW[0])}, {sM0P}, {v(V16)}", f"v_add_u32 {v(EW[1])}, {3*SLOT}, {v(EW[0])}"]
    for sg in range(1, 4):
        ea += [f"s_xor_b32 s3, {sW}, {sg}", f"s_mul_i32 s3, s3, {PIECE}", f"s_add_u32 s3, s3, {red_slot[sg]*SLOT}", f"v_add_u32 {v(ER[sg-1])}, s3, {v(V16)}"]
    ea += lines(f"""s_lshr_b32 {sT0}, {sW}, 1
    v_bfe_u32 {v(T1)}, {v(VL)}, 2, 2
    v_lshrrev_b32 {v(T2)}, 5, {v(VL)}
    v_lshl_add_u32 {v(T1)}, {v(T2)}, 2, {v(T1)}
    v_lshlrev_b32 {v(T1)}, 7, {v(T1)}
    v_bfe_u32 {v(T3)}, {v(VL)}, 1, 1
    v_lshl_add_u32 {v(T1)}, {v(T3)}, 6, {v(T1)}
    v_bfe_u32 {v(T3)}, {v(VL)}, 4, 1
    v_lshl_add_u32 {v(T1)}, {v(T3)}, 4, {v(T1)}
    v_and_b32 {v(T3)}, 1, {v(VL)}
    v_lshl_add_u32 {v(T1)}, {v(T3)}, 3, {v(T1)}
    s_lshl_b32 s3, {sT0}, 12
    s_lshl_b32 {sT1}, {sKH}, 5
    s_add_u32 s3, s3, {sT1}
    s_add_u32 s3, s3, {YL}
    v_add_u32 {v(EY)}, s3, {v(T1)}
    v_and_b32 {v(T1)}, 31, {v(VL)}
    v_bfe_u32 {v(T3)}, {v(VL)}, 1, 3
    s_lshl_b32 s3, {sT0}, 2
    v_xor_b32 {v(T3)}, s3, {v(T3)}
    v_lshlrev_b32 {v(T3)}, 4, {v(T3)}
    v_lshl_add_u32 {v(T3)}, {v(T1)}, 7, {v(T3)}
    v_lshl_add_u32 {v(T3)}, {v(T2)}, 3, {v(T3)}
    s_lshl_b32 s3, {sKH}, 12
    s_add_u32 s3, s3, {QL}
    v_add_u32 {v(EQ[0])}, s3, {v(T3)}
    v_xor_b32 {v(EQ[1])}, 16, {v(EQ[0])}
    v_xor_b32 {v(EQ[2])}, 32, {v(EQ[0])}
    v_xor_b32 {v(EQ[3])}, 48, {v(EQ[0])}
    v_mul_u32_u24 {v(T1)}, 896, {v(T1)}
    v_lshl_add_u32 {v(EO)}, {v(T2)}, 4, {v(T1)}
    s_lshl_b32 s3, {sI2}, 1
    s_add_u32 s3, s3, {sKH}
    s_mul_i32 {sSO2}, s3, {32*896}
    s_lshl_b32 s3, {sCT}, 1
    s_add_u32 s3, s3, {sT0}
    s_lshl_b32 s3, s3, 6
    s_add_u32 {sSO2}, {sSO2}, s3
    s_lshl_b32 s3, {sCT}, 2
    s_add_u32 s3, s3, {sW}
    s_lshl_b32 s3, s3, 16
    s_lshl_b32 {sSO}, {sI2}, 7
    s_add_u32 {sSO}, {sSO}, s3
    s_add_u32 {sSO}, {sSO}, {WS_YT}""")
    l2 = G2.pour(ea, cfg.g2_arrive + 10, cfg.g2_chk - 1, 20); assert l2 <= cfg.g2_chk
    G2.put(cfg.g2_poll, poll_load("y", sPA))
    G2.put(cfg.g2_chk, [stamp("g2_pre"), poll_check("y", sPA), Ins("s_barrier"), [] if cfg.pass_stamps else stamp("g2_post")])
    yd = [f"s_lshl_b32 s3, {sW}, 11\n s_add_u32 m0, s3, {YL}"]
    yd += [Ins(f"buffer_load_dwordx4 {v(VY[j])}, {WS}, {sSO} offen offset:{1024*j} sc1 lds", "qy") for j in range(2)]
    G2.spread(yd, cfg.g2_chk + 1, cfg.g2_chk + 4)
    YY = 48; QQ = 56; TT = 64; TQ = 80
    pe = [[WaitTag('vm', "qy"), Ins("s_barrier")]]
    for J in range(4):
        pe += [f"ds_read_b64_tr_b16 {v(YY+2*J,2)}, {v(EY)} offset:{1024*J}", f"ds_read_b64 {v(QQ+2*J,2)}, {v(EQ[J])}"]
    pe += [f"v_sub_f32 {v(OMG)}, 1.0, {v(VG)}"]
    for J in range(4):
        for i in range(4):
            src = 2 * J + (i >> 1)
            un = (lambda d, s_: f"v_lshlrev_b32 {d}, 16, {s_}") if i % 2 == 0 else (lambda d, s_: f"v_and_b32 {d}, {sMASK}, {s_}")
            pe += [un(v(TT + 4 * J + i), v(YY + src)), un(v(TQ + i), v(QQ + src))]
        pe += [f"v_mul_f32 {v(TT+4*J+i)}, {v(TT+4*J+i)}, {v(TQ+i)}" for i in range(4)]
        pe += [f"v_mul_f32 {v(TT+4*J+i)}, {v(TT+4*J+i)}, {v(VG)}" for i in range(4)]
    G2.pour(pe, cfg.g2_pre, 111, 24)
    check_m0(G2)
    G2.emit(P)
    if cfg.verbose: print("G2 gap costs", G2.costs())
    P.add(stamp("g2end"))
    B = 96; R1 = 112; O = 48
    for sg in range(1, 4):
        for J in range(4):
            if red_slot[sg] == 3: P.e(f"ds_write_b128 {v(EW[1])}, {a(GACC+16*sg+4*J,4)} offset:{1024*J}")
            else: P.e(f"ds_write_b128 {v(EW[0])}, {a(GACC+16*sg+4*J,4)} offset:{red_slot[sg]*SLOT+1024*J}")
    for k in range(16): P.e(f"v_accvgpr_read_b32 {v(B+k)}, {a(GACC+k)}")
    P.e(f"v_mov_b32 {v(T1)}, {v(OMG)}")
    P.e("s_waitcnt lgkmcnt(0)\n s_barrier")
    for J in range(4):
        for sg in range(1, 4): P.e(f"ds_read_b128 {v(R1+16*(sg-1)+4*J,4)}, {v(ER[sg-1])} offset:{1024*J}")
    OM2 = 34
    P.e(f"v_mov_b32 {v(T2)}, {v(OMG)}")
    for J in range(4):
        for sg in range(3):
            for i in range(2): P.e(f"v_pk_add_f32 {v(B+4*J+2*i,2)}, {v(B+4*J+2*i,2)}, {v(R1+16*sg+4*J+2*i,2)}")
        for i in range(2): P.e(f"v_pk_fma_f32 {v(TT+4*J+2*i,2)}, {v(B+4*J+2*i,2)}, {v(OM2,2)}, {v(TT+4*J+2*i,2)}")
        for i in range(2): P.e(f"v_cvt_pk_bf16_f32 {v(O+2*J+i)}, {v(TT+4*J+2*i)}, {v(TT+4*J+2*i+1)}")
        if J % 2 == 1:
            o = O + 2 * J - 2
            P.e(f"v_permlane32_swap_b32 {v(o)}, {v(o+2)}\n v_permlane32_swap_b32 {v(o+1)}, {v(o+3)}")
            P.e(f"buffer_store_dwordx4 {v(o,4)}, {v(EO)}, {OUT}, {sSO2} offen offset:{32*(J>>1)} {cfg.sc_out}")
    if cfg.stamps: emit_stamps(P)
    if cfg.fixdur:
        P.e(f"""L_fix:
        s_memrealtime s[4:5]
        s_waitcnt lgkmcnt(0)
        s_sub_u32 s4, s4, s100
        s_cmp_lt_i32 s4, {cfg.fixdur}
        s_cbranch_scc1 L_fix""")
    P.e("s_endpgm")

def check_m0(G):
    flat = []
    def fl(it):
        if isinstance(it, str):
            for l in lines(it): flat.append(Ins(l))
        elif isinstance(it, (list, tuple)):
            for x in it: fl(x)
        elif isinstance(it, Ins): flat.append(it)
    for f in G.f:
        for it in f: fl(it)
    last_off = None
    for it in flat:
        if it.kind == 'salu' and ('s', 'm0') in it.w: last_off = -1024
        if it.kind == 'dma':
            m = re.search(r'offset:(\d+)', it.text); off = int(m.group(1)) if m else 0
            assert last_off is not None and off == last_off + 1024, ("m0 group interleaved", it.text)
            last_off = off

def emit_stamps(P):
    P.e("s_waitcnt vmcnt(0)")
    P.e("s_memtime s[4:5]\n s_memrealtime s[6:7]\n s_waitcnt lgkmcnt(0)")
    n = len(stamp_names)
    for k in range(n):
        P.e(f"s_sub_u32 s3, s{STAMP_REGS[stamp_names[k]]}, s98"); P.e(f"v_mov_b32 v{200+k}, s3")
    P.e(f"s_sub_u32 s3, s4, s98\n v_mov_b32 v{200+n}, s3")
    P.e(f"""s_lshl_b32 s3, s2, 2
    s_add_u32 s3, s3, {sW}
    s_lshl_b32 s3, s3, 7
    s_add_u32 s3, s3, {WS_STAMP}
    v_mov_b32 v229, 0
    v_mov_b32 v230, s100
    v_mov_b32 v231, s6
    v_mov_b32 v2, 0
    s_mov_b64 exec, 1""")
    for k in range(8): P.e(f"buffer_store_dwordx4 v[{200+4*k}:{203+4*k}], v2, {WS}, s3 offen offset:{16*k}")

def gen_aux(P):
    GW = "s[52:55]"; sA = "s68"
    VL = 1; VB = 2; VGW = 3; T0 = 4; T1 = 5; VZA = 6; VZ = 7; AC = 8; QB = 16; GWB = 80; PF = 112
    P.e("s_cmp_lt_u32 s2, 256\n s_cbranch_scc1 L_auxgo\n s_endpgm\n L_auxgo:")
    P.e(ldptr(GW, 80))
    P.add(srd_hi(X, NQ) + srd_hi(GW, 896) + srd_hi(WS, WS_SIZE) + srd_hi(WD, NW) + srd_hi(SK, NQ))
    P.e(f"""
    s_sub_u32 {sA}, s2, 224
    v_and_b32 {v(T0)}, 7, {v(VL)}
    v_lshrrev_b32 {v(T1)}, 3, {v(VL)}
    v_mul_u32_u24 {v(VB)}, {2*896}, {v(T1)}
    v_lshlrev_b32 {v(VGW)}, 4, {v(T0)}
    v_add_u32 {v(VB)}, {v(VB)}, {v(VGW)}
    s_lshl_b32 {sT0}, {sA}, 2
    s_add_u32 {sT0}, {sT0}, {sW}
    s_mul_i32 {sSO}, {sT0}, {16*896}
    s_mul_i32 s3, {sA}, {24*128}
    v_lshlrev_b32 {v(VZA)}, 7, {v(VL)}
    v_add_u32 {v(VZA)}, s3, {v(VZA)}
    v_mov_b32 {v(VZ)}, -16
    v_cmp_gt_u32 vcc, 24, v0
    v_cndmask_b32 {v(VZA)}, {v(VZ)}, {v(VZA)}, vcc
    v_mov_b32 {v(VZ)}, 0
    s_mov_b32 {sONE}, 1
    s_waitcnt lgkmcnt(0)
    """)
    for tau in range(7):
        for rho in range(2): P.e(f"buffer_load_dwordx4 {v(QB+8*tau+4*rho,4)}, {v(VB)}, {X}, {sSO} offen offset:{896*rho+128*tau}")
        P.e(f"buffer_load_dwordx4 {v(GWB+4*tau,4)}, {v(VGW)}, {GW}, 0 offen offset:{128*tau}")
    P.e(f"buffer_store_dword {v(VZ)}, {v(VZA)}, {WS}, 0 offen sc1")
    for tau in range(7):
        for p in range(4):
            for rho in range(2):
                d = AC + 2 * (p & 1) + rho
                c = '0' if (tau == 0 and p < 2) else v(d)
                P.e(f"v_dot2_f32_bf16 {v(d)}, {v(QB+8*tau+4*rho+p)}, {v(GWB+4*tau+p)}, {c}")
    for rho in range(2): P.e(f"v_add_f32 {v(AC+rho)}, {v(AC+rho)}, {v(AC+2+rho)}")
    for mod in ("row_half_mirror", "quad_perm:[3,2,1,0]", "quad_perm:[1,0,3,2]"):
        for rho in range(2): P.e(f"v_add_f32_dpp {v(AC+rho)}, {v(AC+rho)}, {v(AC+rho)} {mod} row_mask:0xf bank_mask:0xf")
    P.e(f"""s_mov_b32 s74, 0xaaaaaaaa
    s_mov_b32 s75, 0xaaaaaaaa
    v_cndmask_b32 {v(AC)}, {v(AC)}, {v(AC+1)}, s[74:75]
    v_mul_f32 {v(AC)}, 0xbfb8aa3b, {v(AC)}
    v_exp_f32 {v(AC)}, {v(AC)}
    v_lshl_add_u32 {v(T1)}, {v(T1)}, 1, {v(T0)}
    v_add_f32 {v(AC)}, 1.0, {v(AC)}
    v_rcp_f32 {v(AC)}, {v(AC)}
    v_lshlrev_b32 {v(T1)}, 2, {v(T1)}
    v_mov_b32 {v(VZA)}, -16
    v_cmp_gt_u32 vcc, 2, {v(T0)}
    v_cndmask_b32 {v(T1)}, {v(VZA)}, {v(T1)}, vcc
    s_lshl_b32 s3, {sT0}, 6
    s_add_u32 s3, s3, {WS_G}
    buffer_store_dword {v(AC)}, {v(T1)}, {WS}, s3 offen sc1""", tag="gst")
    if cfg.stamps: P.e("s_memtime s[86:87]")
    P.e(f"""s_waitcnt vmcnt(0)
    s_barrier
    s_cmp_lg_u32 {sW}, 0
    s_cbranch_scc1 L_auxpf
    s_atomic_add {sONE}, {pDBG}, 0
    L_auxpf:""")
    if cfg.stamps: P.e("s_memtime s[88:89]")
    if cfg.aux_pf:
        P.e(f"v_lshlrev_b32 {v(T0)}, 7, {v(VL)}\n s_mul_i32 {sSO}, {sT0}, {112*128}\n s_mul_i32 {sSO2}, {sT0}, {98*128}\n v_add_u32 {v(T1)}, {48*128}, {v(T0)}\n v_add_u32 {v(VZA)}, {34*128}, {v(T0)}")
        P.e(f"""buffer_load_dword {v(PF)}, {v(T0)}, {SK}, {sSO} offen
        buffer_load_dword {v(PF+1)}, {v(T1)}, {SK}, {sSO} offen
        buffer_load_dword {v(PF+2)}, {v(T0)}, {WD}, {sSO2} offen
        buffer_load_dword {v(PF+3)}, {v(VZA)}, {WD}, {sSO2} offen""")
    if cfg.stamps:
        P.e(f"""s_waitcnt vmcnt(0)
        s_memtime s[4:5]
        s_memrealtime s[6:7]
        s_waitcnt lgkmcnt(0)
        s_sub_u32 s3, s86, s98
        v_mov_b32 v200, s3
        s_sub_u32 s3, s88, s98
        v_mov_b32 v201, s3
        v_mov_b32 v202, s3
        s_sub_u32 s3, s4, s98
        v_mov_b32 v203, s3
        v_mov_b32 v204, s100
        v_mov_b32 v205, s6
        s_lshl_b32 s3, s2, 2
        s_add_u32 s3, s3, {sW}
        s_lshl_b32 s3, s3, 7
        s_add_u32 s3, s3, {WS_STAMP}
        v_mov_b32 v2, 0
        s_mov_b64 exec, 1
        buffer_store_dwordx4 v[200:203], v2, {WS}, s3 offen
        buffer_store_dwordx2 v[204:205], v2, {WS}, s3 offen offset:120""")
    P.e("s_waitcnt vmcnt(0) lgkmcnt(0)\n s_endpgm")

def build():
    global slow_paths, stamp_names
    slow_paths = []; stamp_names = []; arr_n[0] = 0
    pro = Prog()
    for reg, off in ((X, 0), (WG, 56), (WU, 64), (WD, 72), (SK, 32), (WS, 104), (KK, 8), (pV, 16), (pSH, 24), (pOUT, 88), (pDBG, 96), (pD, 40)): pro.e(ldptr(reg, off))
    if cfg.stamps or cfg.fixdur: pro.e("s_memtime s[98:99]\n s_memrealtime s[100:101]")
    pro.e(f"""
    v_lshrrev_b32 v2, 6, v0
    v_and_b32 v1, 63, v0
    s_cmp_ge_u32 s2, 224
    v_readfirstlane_b32 {sW}, v2
    s_cbranch_scc1 L_aux
    """)
    Pm = Prog(); Pm.items = list(pro.items)
    gen_main(Pm)
    main = Pm.finalize(cfg.verbose)
    Px = Prog(); Px.items = list(pro.items); Px.e("L_aux:")
    gen_aux(Px)
    ax = Px.finalize()
    cut = lambda lst, lab: lst[[i for i, x in enumerate(lst) if x.kind == 'label' and x.text == lab][0]:]
    body = text_of(main) + "\n" + emit_slow_paths() + "\n" + text_of(cut(ax, "L_aux:")) + "\nL_codeend:"
    hdr = open("gated_mix__ssm_conv_h3__swiglu_ffn__prompt.s.ref").read().split("; Override launch")[0] if cfg.header else ""
    return f"""{hdr}; @launch grid=(256,1,1) block=(256,1,1) lds={LDS_BYTES}
.amdgcn_target "amdgcn-amd-amdhsa--gfx950"
.text
.globl {KNAME}
.p2align 8
.type {KNAME},@function
{KNAME}:
{body}
.section .rodata,"a"
.p2align 6
.amdhsa_kernel {KNAME}
  .amdhsa_next_free_vgpr 512
  .amdhsa_next_free_sgpr 102
  .amdhsa_accum_offset 256
  .amdhsa_group_segment_fixed_size 0
  .amdhsa_kernarg_size 112
  .amdhsa_user_sgpr_count 2
  .amdhsa_user_sgpr_kernarg_segment_ptr 1
  .amdhsa_system_sgpr_workgroup_id_x 1
.end_amdhsa_kernel
"""

if __name__ == "__main__":
    import subprocess
    out = sys.argv[1]
    for kv in sys.argv[2:]:
        k_, v_ = kv.split("=", 1)
        assert hasattr(cfg, k_), k_
        setattr(cfg, k_, eval(v_))
    cfg.pf_n = 1; cfg.pf_last = 100
    vb = cfg.verbose; cfg.verbose = False
    open(out, "w").write(build())
    subprocess.check_call(["clang", "-x", "assembler", "-target", "amdgcn-amd-amdhsa", "-mcpu=gfx950", "-c", out, "-o", "_gen.o"])
    sym = subprocess.check_output(["llvm-objdump", "-t", "_gen.o"], text=True)
    ad = {l.split()[-1]: int(l.split()[0], 16) for l in sym.splitlines() if " L_" in l}
    if cfg.code_pf:
        cfg.pf_last = (ad["L_codeend"] - ad["L_pc"] - 64) // 128
        cfg.pf_n = (cfg.pf_last + 112) // 112
    cfg.verbose = vb
    open(out, "w").write(build())
    print(out, "code bytes", ad["L_codeend"], "aux at", ad["L_aux"], "stamps:", stamp_names)
```

```python
import sys, math, re
from fw import *
import fw
KNAME = "gated_mix__ssm_conv_h3__swiglu_ffn__prompt_kernel"

class Cfg: pass
cfg = Cfg()
cfg.stamps = False; cfg.pass_stamps = False; cfg.verbose = False; cfg.header = True; cfg.fixdur = 0
cfg.PD = 5; cfg.NXR = 8; cfg.pair = 2; cfg.bud = 24
cfg.code_pf = True; cfg.n_pre = 9; cfg.nosync = False
cfg.rot_c = True; cfg.rot_t = True; cfg.rot_g = True
cfg.pl_at = -1; cfg.pc0 = 10; cfg.pc1 = 70; cfg.bud1 = 28; cfg.z_load = 108; cfg.z_chk = 130; cfg.p_arr = 9; cfg.sleep = 8
cfg.p_load = -20
cfg.g_arrive = 44; cfg.g_poll = 92; cfg.g_chk = 112; cfg.nh_c = 7; cfg.nh_e = 6; cfg.nwd_t = 5; cfg.g_wd_end = 104
cfg.g2_hpace = 2.0; cfg.g2_arrive = 16; cfg.g2_poll = 44; cfg.g2_chk = 60; cfg.g2_pre = 84
cfg.sc_out = ""; cfg.aux_pf = True; cfg.touch = False; cfg.s_early = True; cfg.rt = False

WS_FLAG = 0x0; WS_G = 0x20000; WS_UR = 0x100000; WS_YT = 0x300000; WS_H = 0x500000
WS_STAMP = 0xC00000; WS_SIZE = 0xD00000
NQ = 1835008; NW = 1605632
XB = 4096
SLOT = 28672; PIECE = 7168
HC = 4 * SLOT; CPY = 4160; HCCH = 4 * CPY
UL = HC + 2 * HCCH; UCH = 4608
LDS_BYTES = 163840
YL = HC; QL = HC + 8192
assert UL + 2 * UCH <= LDS_BYTES
X, WG, WU, WD, SK, WS, OUT = ["s[%d:%d]" % (b, b + 3) for b in (4, 8, 12, 16, 20, 24, 28)]
pWS = "s[24:25]"; pDBG = "s[32:33]"; pD = "s[34:35]"; pOUT = "s[62:63]"; pV = "s[94:95]"; pSH = "s[96:97]"; KK = OUT
PT = 143360
sW = "s36"; sT0 = "s37"; sT1 = "s38"; sT2 = "s39"
sCH = ["s%d" % (40 + i) for i in range(7)]
sWC = ["s%d" % (47 + i) for i in range(7)]
sTO = ["s%d" % (54 + i) for i in range(8)]
sHG = sWC
sM0P = "s68"; sXB = "s69"; sWB = "s70"; sDB = "s71"; sHS = "s72"; sHL = ["s73", "s74"]
sNL2E = "s75"; sSO = "s76"; sSO2 = "s77"; sD = "s78"; sI2 = "s79"; sCT = "s80"; sKH = "s81"
sCNT = "s82"; sM = "s83"; sMASK = "s84"; sRG = "s85"
sDG = ["s%d" % (86 + i) for i in range(7)]
sPV = "s93"; sFL = "s67"; sONE = "s66"; sU = "s65"; sPA = "s64"
STAMP_REGS = {'issued': 0, 'g1start': 34, 'p1end': 94, 'T5': 96, 'T6': 8, 'T7': 10, 'prepoll': 12, 'zpre': 96, 'zpost': 8, 'g1end': 14, 'cstart': 40, 'c_pre': 42, 'c_post': 44, 'g2start': 54, 'g2_pre': 56, 'g2_post': 58, 'g2end': 60}

def v(i, n=1): return "v%d" % i if n == 1 else "v[%d:%d]" % (i, i + n - 1)
def a(i, n=1): return "a%d" % i if n == 1 else "a[%d:%d]" % (i, i + n - 1)
def lines(t): return [l.strip() for l in t.split("\n") if l.strip()]

stamp_names = []
def stamp(name):
    if not cfg.stamps: return []
    stamp_names.append(name); r = STAMP_REGS[name]
    return [Ins("%s s[%d:%d]" % ("s_memrealtime" if cfg.rt else "s_memtime", r, r + 1))]

slow_paths = []
vARR = 43; vONE = 0; vP8 = 38; vP7 = 39; vPV = 33; vZERO = 44
def poll_text(kind, off):
    if kind == "z": return f"global_load_dword {v(vPV)}, {v(vZERO)}, {pDBG} sc1"
    return f"buffer_load_dword {v(vPV)}, {v(vP7 if kind == 'h' else vP8)}, {WS}, {off} offen sc1"
def poll_load(kind, off):
    return [] if cfg.nosync else [poll_text(kind, off)]
def poll_check(kind, off):
    if cfg.nosync: return []
    slow_paths.append((kind, off))
    return [f"v_cmp_gt_u32 vcc, {32 if kind == 'z' else 1}, {v(vPV)}", f"s_cbranch_vccnz L_slow_{kind}\n L_back_{kind}:"]
def emit_slow_paths():
    t = []
    for kind, off in slow_paths:
        t += [f"L_slow_{kind}:", f"s_mov_b32 {sCNT}, 0", f"L_spin_{kind}:", f"s_sleep {cfg.sleep}", poll_text(kind, off),
              f"s_add_u32 {sCNT}, {sCNT}, 1", f"s_cmp_gt_u32 {sCNT}, 0x40000", "s_waitcnt vmcnt(0)", f"s_cbranch_scc1 L_back_{kind}",
              f"v_cmp_gt_u32 vcc, {32 if kind == 'z' else 1}, {v(vPV)}", f"s_cbranch_vccnz L_spin_{kind}", f"s_branch L_back_{kind}"]
    return "\n".join(l if l.endswith(":") else "    " + l for l in t)
arr_n = [0]
def arrive(tag, off, bar=True):
    pre = [Ins("s_barrier")] if bar else []
    if cfg.nosync: return pre
    return ([WaitTag('vm', tag)] if bar else []) + pre + [f"buffer_store_dword {v(vONE)}, {v(vARR)}, {WS}, {off} offen sc1"]

def sb(reg): return int(reg[2:reg.index(':')])
def srd_hi(reg, size): return ["s_mov_b32 s%d, 0x%x" % (sb(reg) + 2, size), "s_mov_b32 s%d, 0x20000" % (sb(reg) + 3)]
def ldptr(reg, off): return "s_load_dwordx2 s[%d:%d], s[0:1], %d" % (sb(reg), sb(reg) + 1, off)
def rot_next(r): return [f"s_add_u32 {r}, {r}, 1", f"s_cmp_eq_u32 {r}, 7\n s_cselect_b32 {r}, 0, {r}"]
def mod7(r): return lines(f"s_mul_i32 s3, {r}, 37\n s_lshr_b32 s3, s3, 8\n s_mul_i32 s3, s3, 7\n s_sub_u32 {r}, {r}, s3")

def code_prefetch(P):
    if not cfg.code_pf: return
    P.e(f"""
        s_getpc_b64 s[38:39]
        L_pc:
        s_lshr_b32 s3, s2, 3
        s_lshl_b32 s3, s3, 2
        s_add_u32 s3, s3, {sW}
        s_mul_i32 s3, s3, {cfg.pf_n}
        v_min_u32 v2, {cfg.pf_n-1}, v1
        v_add_u32 v2, s3, v2
        v_min_u32 v2, {cfg.pf_last}, v2
        v_lshlrev_b32 v2, 7, v2
        v_mov_b32 v3, s39
        v_add_co_u32 v2, vcc, s38, v2
        v_addc_co_u32 v3, vcc, 0, v3, vcc
        global_load_dword v255, v[2:3], off
        """)

def gen_main(P):
    PD = cfg.PD; NXR = cfg.NXR
    VL = 1
    VX = [2, 3, 4, 9]; VWg = [5, 6]; VWu = [7, 8]; VSK = [10, 11, 12]; VD = [13, 14, 15, 16]
    XR = [[17, 18, 19, 20], [21, 22, 23, 24]]; WR = [25, 26, 27]; DR = [[28, 29], [30, 31]]
    V16 = 32; T0 = 33; T1 = 34; T2 = 35; T3 = 36; VHZ = 37; CA = 40; CB = 41; VHW = 42; VZ = 44
    ACC = [48, 64, 80, 96]; XRING = 112; ET = 144; PK = [148, 152]; HR = 160; HCP = 176
    assert XRING + 4 * NXR <= ET
    sX = sSO; sQ7 = sSO2; sR = sCNT
    code_prefetch(P)
    P.e(f"""
    s_and_b32 {sX}, s2, 7
    s_lshr_b32 {sT1}, s2, 3
    s_mul_i32 {sQ7}, {sT1}, 37
    s_lshr_b32 {sQ7}, {sQ7}, 8
    s_mul_i32 s3, {sQ7}, 7
    s_sub_u32 {sCT}, {sT1}, s3
    s_lshl_b32 s3, {sX}, 2
    s_add_u32 {sI2}, s3, {sQ7}
    s_and_b32 s3, {sX}, 4
    s_add_u32 {sT2}, s3, {sQ7}
    s_and_b32 {sT0}, {sX}, 3
    s_mul_i32 {sT1}, {sT0}, 7
    s_add_u32 {sT1}, {sT1}, {sCT}
    s_mul_i32 {sM0P}, {sW}, {PIECE}
    s_mul_i32 {sXB}, {sT2}, {256*896}
    s_add_u32 {sXB}, {sXB}, {sM0P}
    s_mul_i32 {sWB}, {sW}, {16*3584}
    s_lshl_b32 s3, {sT1}, 7
    s_add_u32 {sWB}, {sWB}, s3
    s_lshl_b32 {sRG}, {sQ7}, 1
    s_add_u32 {sRG}, {sRG}, {sCT}
    s_lshr_b32 s3, {sX}, 2
    s_add_u32 {sR}, {sRG}, s3
    """)
    P.add(mod7(sR) if cfg.rot_c else f"s_mov_b32 {sR}, 0")
    def ch_tab(i):
        L = lines(f"s_lshl_b32 s3, {sR}, 7\n s_add_u32 {sCH[i]}, s3, {sXB}\n s_mul_i32 s3, {sR}, {64*3584}\n s_add_u32 {sWC[i]}, s3, {sWB}")
        return L + (rot_next(sR) if i < 6 else [])
    def to_tab(t):
        if cfg.rot_t: return lines(f"s_lshl_b32 s3, {sT0}, 1\n s_add_u32 s3, s3, {t}\n s_and_b32 s3, s3, 7\n s_mul_i32 {sTO[t]}, s3, 28672")
        return [f"s_mov_b32 {sTO[t]}, {28672*t}"]
    for i in range(2): P.add(ch_tab(i))
    for t in range(3): P.add(to_tab(t))
    P.add(srd_hi(X, NQ + XB) + srd_hi(WG, NW) + srd_hi(WU, NW))
    P.e(f"""
    v_lshrrev_b32 {v(T0)}, 3, {v(VL)}
    v_and_b32 {v(T1)}, 7, {v(VL)}
    v_lshrrev_b32 {v(T2)}, 4, {v(VL)}
    s_lshl_b32 s3, {sW}, 2
    v_add_u32 {v(T3)}, s3, {v(T2)}
    v_and_b32 {v(T3)}, 7, {v(T3)}
    v_xor_b32 {v(T3)}, {v(T1)}, {v(T3)}
    v_lshlrev_b32 {v(T3)}, 4, {v(T3)}
    v_mul_u32_u24 {v(VX[0])}, 896, {v(T0)}
    v_add_u32 {v(T3)}, {XB}, {v(T3)}
    v_add_u32 {v(VX[0])}, {v(VX[0])}, {v(T3)}
    v_add_u32 {v(VX[1])}, -1024, {v(VX[0])}
    v_add_u32 {v(VX[2])}, -2048, {v(VX[0])}
    v_and_b32 {v(T2)}, 1, {v(T2)}
    v_lshlrev_b32 {v(T2)}, 1, {v(T2)}
    v_xor_b32 {v(T3)}, {v(T1)}, {v(T2)}
    v_lshlrev_b32 {v(T3)}, 4, {v(T3)}
    v_mul_u32_u24 {v(VWg[0])}, 3584, {v(T0)}
    v_add_u32 {v(VWg[0])}, {v(VWg[0])}, {v(T3)}
    v_add_u32 {v(VWg[1])}, {28672-1024}, {v(VWg[0])}
    v_xor_b32 {v(VWu[0])}, 64, {v(VWg[0])}
    v_add_u32 {v(VWu[1])}, {28672-1024}, {v(VWu[0])}
    s_waitcnt lgkmcnt(0)
    s_sub_u32 s4, s4, {XB}
    s_subb_u32 s5, s5, 0
    """)
    def dma_item(i):
        sl = (i % 5) * SLOT; tag = "it%d" % i; L = []
        xl = lambda T, c, u, pre="": [pre + f"s_add_u32 {sSO}, {sCH[c]}, {sTO[T]}", Ins(f"buffer_load_dwordx4 {v(VX[u])}, {X}, {sSO} offen offset:{1024*u} lds", tag)]
        if i < 7:
            L.append([f"s_add_u32 m0, {sM0P}, {sl+3072}", Ins(f"buffer_load_dwordx4 {v(VWg[0])}, {WG}, {sWC[i]} offen offset:0 lds", tag)])
            L.append(Ins(f"buffer_load_dwordx4 {v(VWg[1])}, {WG}, {sWC[i]} offen offset:1024 lds", tag))
            L.append([f"s_add_u32 m0, {sM0P}, {sl+5120}", Ins(f"buffer_load_dwordx4 {v(VWu[0])}, {WU}, {sWC[i]} offen offset:0 lds", tag)])
            L.append(Ins(f"buffer_load_dwordx4 {v(VWu[1])}, {WU}, {sWC[i]} offen offset:1024 lds", tag))
            for rt in range(3): L.append(xl(rt, i, rt, f"s_add_u32 m0, {sM0P}, {sl}\n" if rt == 0 else ""))
        else:
            T = i - 4
            for k in range(7): L.append(xl(T, k, k % 4, f"s_add_u32 m0, {sM0P}, {sl+1024*k}\n" if k % 4 == 0 else ""))
        return L
    PKr = 200; PVr = 214; PWr = 224; PP = 232; KS = 238; VV = 242; OO = 246; VPK = 248; VPV = 249; VPW = 250; VPT = 251; VPR = 252; VPS = 253
    sPA2 = 's101'; sPTau = 's99'; sPS = sPV
    psetup = lines(f"""
    s_mul_i32 {sPA2}, s2, 9363
    s_lshr_b32 {sPA2}, {sPA2}, 16
    s_mul_i32 s3, {sPA2}, 7
    s_sub_u32 {sPTau}, s2, s3
    s_lshl_b32 s3, {sPA2}, 2
    s_add_u32 s3, s3, {sW}
    s_mul_i32 s3, s3, {16*896}
    s_lshl_b32 {sPS}, {sPTau}, 7
    s_add_u32 s3, s3, {sPS}
    v_and_b32 {v(VPT)}, 15, {v(VL)}
    v_lshrrev_b32 {v(VPR)}, 4, {v(VL)}
    v_mul_u32_u24 {v(VPV)}, {4*896}, {v(VPR)}
    v_lshl_add_u32 {v(VPV)}, {v(VPT)}, 3, {v(VPV)}
    v_add_u32 {v(VPV)}, s3, {v(VPV)}
    v_add_u32 {v(VPK)}, {-3*896}, {v(VPV)}
    s_lshl_b32 s3, {sPTau}, 9
    v_lshl_add_u32 {v(VPW)}, {v(VPT)}, 5, s3
    """) + srd_hi(KK, NQ)
    ploads = [f"buffer_load_dwordx2 {v(PKr+2*r,2)}, {v(VPK)}, {KK}, 0 offen offset:{896*r}" for r in range(3)]
    ploads += [f"buffer_load_dwordx2 {v(PKr+6+2*r,2)}, {v(VPV)}, {KK}, 0 offen offset:{896*r}" for r in range(4)]
    ploads += [f"global_load_dwordx4 {v(PWr+4*k,4)}, {v(VPW)}, {pSH} offset:{16*k}" for k in range(2)]
    ploads += [f"global_load_dwordx2 {v(PVr+2*r,2)}, {v(VPV)}, {pV} offset:{896*r}" for r in range(4)]
    sLO = 'v199'; sHI = 'v254'
    pcomp = lines(f"""
    v_mov_b32 {sLO}, 0x05040100
    v_mov_b32 {sHI}, 0x07060302
    s_lshl_b32 s3, {sW}, 2
    v_add_u32 {v(VPR)}, s3, {v(VPR)}
    v_sub_u32 {v(VPR)}, 15, {v(VPR)}
    v_lshrrev_b32 {v(VPS)}, 1, {v(VPR)}
    v_and_b32 {v(VPR)}, 1, {v(VPR)}
    v_xor_b32 {v(VPS)}, {v(VPS)}, {v(VPT)}
    v_and_b32 {v(VPS)}, 7, {v(VPS)}
    v_lshlrev_b32 {v(VPS)}, 4, {v(VPS)}
    v_lshl_add_u32 {v(VPS)}, {v(VPR)}, 3, {v(VPS)}
    v_lshl_add_u32 {v(VPT)}, {v(VPT)}, 9, {v(VPS)}
    v_add_u32 {v(VPT)}, {PT}, {v(VPT)}
    """)
    for i in range(4):
        p = i >> 1; sel = sHI if i & 1 else sLO
        kreg = lambda rho: PKr + 2 * (rho + 3) + p
        pcomp += [f"v_perm_b32 {v(PP+rho+2)}, {v(kreg(rho-1))}, {v(kreg(rho))}, {sel}" for rho in range(-2, 4)]
        pcomp += [f"v_dot2_f32_bf16 {v(KS+rho)}, {v(PP+rho+2)}, {v(PWr+2*i)}, 0" for rho in range(4)]
        pcomp += [(f"v_and_b32 {v(VV+rho)}, 0xffff0000, {v(PVr+2*rho+p)}" if i & 1 else f"v_lshlrev_b32 {v(VV+rho)}, 16, {v(PVr+2*rho+p)}") for rho in range(4)]
        pcomp += [f"v_dot2_f32_bf16 {v(KS+rho)}, {v(PP+rho)}, {v(PWr+2*i+1)}, {v(KS+rho)}" for rho in range(4)]
        pcomp += [f"v_mul_f32 {v(VV+rho)}, {v(VV+rho)}, {v(KS+rho)}" for rho in range(4)]
        pcomp += [f"v_cvt_pk_bf16_f32 {v(OO+e_)}, {v(VV+3-2*e_)}, {v(VV+2-2*e_)}" for e_ in range(2)]
        pcomp += [Ins(f"ds_write_b64 {v(VPT)}, {v(OO,2)} offset:{128*i}", "ptw")]
    pcomp += lines(f"""
    v_lshrrev_b32 {v(VPS)}, 3, {v(VL)}
    v_lshrrev_b32 {v(VPR)}, 5, {v(VL)}
    s_lshl_b32 s3, {sW}, 2
    v_add_u32 {v(VPR)}, s3, {v(VPR)}
    v_xor_b32 {v(VPR)}, {v(VPR)}, {v(VL)}
    v_and_b32 {v(VPR)}, 7, {v(VPR)}
    v_lshlrev_b32 {v(VPR)}, 4, {v(VPR)}
    v_lshl_add_u32 {v(VPR)}, {v(VPS)}, 7, {v(VPR)}
    s_lshl_b32 s3, {sW}, 11
    s_add_u32 s3, s3, {PT}
    v_add_u32 {v(VPR)}, s3, {v(VPR)}
    v_xor_b32 {v(VPK)}, 32, {v(VPR)}
    v_and_b32 {v(VPT)}, 7, {v(VL)}
    v_lshlrev_b32 {v(VPT)}, 4, {v(VPT)}
    v_lshl_add_u32 {v(VPS)}, {v(VPS)}, 12, {v(VPT)}
    s_lshl_b32 s3, {sPTau}, 2
    s_add_u32 s3, s3, {sW}
    s_lshl_b32 s3, s3, 16
    s_sub_u32 {sPS}, 31, {sPA2}
    s_lshl_b32 {sPS}, {sPS}, 7
    s_add_u32 {sPS}, {sPS}, s3
    s_add_u32 {sPV}, {sPS}, {WS_UR}
    s_lshl_b32 s3, {sPTau}, 5
    s_add_u32 s3, s3, {sPA2}
    s_lshl_b32 {sFL}, s3, 7
    """)
    pstore = [f"ds_read_b128 {v(PKr,4)}, {v(VPR)}", f"ds_read_b128 {v(PKr+4,4)}, {v(VPK)} offset:1024", [], [], [],
              Ins(f"buffer_store_dwordx4 {v(PKr,4)}, {v(VPS)}, {WS}, {sPV} offen sc1", "pst"),
              f"s_add_u32 {sPV}, {sPV}, 32768", Ins(f"buffer_store_dwordx4 {v(PKr+4,4)}, {v(VPS)}, {WS}, {sPV} offen sc1", "pst")]
    first = dma_item(0) + dma_item(1)
    P.add(first[:cfg.n_pre]); late_first = first[cfg.n_pre:]
    if not cfg.pass_stamps: P.add(stamp("issued"))
    P.e(f"""
    s_lshl_b32 s3, s2, 2
    s_load_dword {sD}, {pD}, s3
    v_lshlrev_b32 {v(T3)}, 1, {v(T2)}
    v_xor_b32 {v(T3)}, {v(T1)}, {v(T3)}
    v_lshlrev_b32 {v(T3)}, 4, {v(T3)}
    v_mul_u32_u24 {v(VD[0])}, 896, {v(T0)}
    v_add_u32 {v(VD[0])}, {v(VD[0])}, {v(T3)}
    v_add_u32 {v(VX[3])}, -3072, {v(VX[0])}
    v_and_b32 {v(T0)}, 31, {v(VL)}
    v_lshrrev_b32 {v(T1)}, 3, {v(T0)}
    v_mul_u32_u24 {v(T1)}, {PIECE}, {v(T1)}
    v_and_b32 {v(T2)}, 7, {v(T0)}
    v_lshl_add_u32 {v(T1)}, {v(T2)}, 7, {v(T1)}
    v_lshrrev_b32 {v(T2)}, 1, {v(T0)}
    v_and_b32 {v(T2)}, 7, {v(T2)}
    v_lshrrev_b32 {v(T3)}, 5, {v(VL)}
    v_xor_b32 {v(T2)}, {v(T2)}, {v(T3)}
    v_lshl_add_u32 {v(XR[0][0])}, {v(T2)}, 4, {v(T1)}
    """)
    for k in range(1, 4): P.e(f"v_xor_b32 {v(XR[0][k])}, {32*k}, {v(XR[0][0])}")
    for k in range(4): P.e(f"v_add_u32 {v(XR[1][k])}, {3*SLOT}, {v(XR[0][k])}")
    P.e(f"""
    v_bfe_u32 {v(T0)}, {v(VL)}, 2, 2
    v_lshl_add_u32 {v(T1)}, {v(T3)}, 3, {v(T0)}
    v_lshlrev_b32 {v(T1)}, 7, {v(T1)}
    v_bfe_u32 {v(T2)}, {v(VL)}, 1, 1
    v_lshl_add_u32 {v(T1)}, {v(T2)}, 11, {v(T1)}
    v_lshlrev_b32 {v(T2)}, 1, {v(T2)}
    v_lshrrev_b32 {v(T0)}, 1, {v(T0)}
    v_add_u32 {v(T2)}, {v(T2)}, {v(T0)}
    v_xor_b32 {v(T2)}, {sW}, {v(T2)}
    v_lshl_add_u32 {v(T1)}, {v(T2)}, 5, {v(T1)}
    v_bfe_u32 {v(T2)}, {v(VL)}, 4, 1
    v_lshl_add_u32 {v(T1)}, {v(T2)}, 4, {v(T1)}
    v_and_b32 {v(T2)}, 1, {v(VL)}
    v_lshl_add_u32 {v(T1)}, {v(T2)}, 3, {v(T1)}
    v_add_u32 {v(WR[0])}, 3072, {v(T1)}
    v_add_u32 {v(WR[1])}, {2*SLOT}, {v(WR[0])}
    v_add_u32 {v(WR[2])}, {4*SLOT}, {v(WR[0])}
    """)
    P.add(psetup)
    if cfg.touch:
        P.add(srd_hi(WS, WS_SIZE))
        P.e(f"""v_min_u32 {v(254)}, 12, {v(VL)}
        v_lshlrev_b32 {v(254)}, 20, {v(254)}
        v_add_u32 {v(254)}, 0xf000, {v(254)}
        v_mov_b32 {v(198)}, 0
        buffer_load_dword {v(190)}, {v(254)}, {WS}, 0 offen
        global_load_dword {v(191)}, {v(198)}, s[28:29]
        global_load_dword {v(192)}, {v(198)}, {pV}
        global_load_dword {v(193)}, {v(198)}, {pSH}
        global_load_dword {v(194)}, {v(198)}, s[20:21]
        global_load_dword {v(195)}, {v(198)}, s[16:17]
        global_load_dword {v(196)}, {v(198)}, {pOUT}
        global_load_dword {v(197)}, {v(198)}, {pDBG}""")
    for i in range(2, 7): P.add(ch_tab(i))
    for t in range(3, 8): P.add(to_tab(t))
    S = []
    S += lines(f"""
    v_bfe_u32 {v(T1)}, {v(VL)}, 2, 2
    v_lshl_add_u32 {v(T1)}, {v(T3)}, 2, {v(T1)}
    v_lshlrev_b32 {v(T1)}, 7, {v(T1)}
    s_lshr_b32 s3, {sW}, 1
    v_xor_b32 {v(T2)}, s3, {v(T0)}
    v_lshl_add_u32 {v(T1)}, {v(T2)}, 6, {v(T1)}
    v_bfe_u32 {v(T2)}, {v(VL)}, 4, 1
    v_lshl_add_u32 {v(T1)}, {v(T2)}, 5, {v(T1)}
    v_and_b32 {v(T2)}, 3, {v(VL)}
    v_lshl_add_u32 {v(T1)}, {v(T2)}, 3, {v(T1)}
    v_add_u32 {v(DR[0][0])}, {sM0P}, {v(T1)}
    v_xor_b32 {v(DR[0][1])}, 64, {v(DR[0][0])}
    v_add_u32 {v(DR[1][0])}, {2*SLOT}, {v(DR[0][0])}
    v_add_u32 {v(DR[1][1])}, {2*SLOT}, {v(DR[0][1])}
    v_add_u32 {v(VD[1])}, 6144, {v(VD[0])}
    v_add_u32 {v(VD[2])}, {2*6144}, {v(VD[0])}
    v_add_u32 {v(VD[3])}, {3*6144}, {v(VD[0])}
    v_lshlrev_b32 {v(V16)}, 4, {v(VL)}
    s_mul_i32 s3, {sT2}, 28
    s_add_u32 s3, s3, {sT1}
    s_add_u32 s3, s3, 256
    s_lshl_b32 {sXB}, s3, 7
    v_mov_b32 {v(vARR)}, -16
    v_cmp_eq_u32 vcc, 0, v0
    v_min_u32 {v(vP8)}, 7, {v(VL)}
    v_min_u32 {v(vP7)}, 6, {v(VL)}
    v_cndmask_b32 {v(vARR)}, {v(vARR)}, 0, vcc
    v_mov_b32 {v(vONE)}, 1
    s_lshl_b32 s3, {sW}, 3
    v_add_lshl_u32 {v(vP8)}, {v(vP8)}, s3, 7
    s_mul_i32 s3, {sW}, 7
    v_add_lshl_u32 {v(vP7)}, {v(vP7)}, s3, 7
    s_mul_i32 {sWB}, {sT2}, {8*112}
    s_lshl_b32 s3, {sT1}, 2
    s_add_u32 {sWB}, {sWB}, s3
    s_add_u32 {sWB}, {sWB}, {sW}
    s_lshl_b32 {sWB}, {sWB}, 10
    s_add_u32 {sWB}, {sWB}, {WS_H}
    s_mul_i32 {sDB}, {sW}, {448*896}
    s_lshl_b32 s3, {sCT}, 7
    s_add_u32 {sDB}, {sDB}, s3
    s_and_b32 s3, s2, 7
    s_add_u32 {sRG}, {sRG}, s3
    """)
    S += mod7(sRG) if cfg.rot_g else [f"s_mov_b32 {sRG}, 0"]
    S += [f"s_mov_b32 {sR}, {sRG}"]
    for i in range(7):
        S += [f"s_mul_i32 s3, {sR}, 57344", f"s_add_u32 {sDG[i]}, s3, {sDB}"] + (rot_next(sR) if i < 6 else [])
    S += srd_hi(WD, NW) + srd_hi(WS, WS_SIZE) + srd_hi(SK, 4096)
    S += lines(f"""
    s_lshr_b32 {sT2}, {sW}, 1
    s_and_b32 {sKH}, {sW}, 1
    s_lshl_b32 {sM}, s2, 1
    s_add_u32 {sM}, {sM}, {sT2}
    s_lshl_b32 s3, {sM}, 12""") + [f"s_add_u32 s20, s20, s3\n s_addc_u32 s21, s21, 0"] + lines(f"""
    s_mov_b32 {sNL2E}, 0xbfb8aa3b
    s_mov_b32 {sMASK}, 0xffff0000
    s_mov_b32 {sONE}, 1
    """)
    S2 = lines(f"""
    s_mov_b32 {sHS}, {sWB}
    s_lshl_b32 {sU}, {sKH}, 11
    v_add_u32 {v(VSK[0])}, {sU}, {v(V16)}
    v_add_u32 {v(VSK[1])}, -16, {v(VSK[0])}
    v_add_u32 {v(VSK[2])}, 1008, {v(VSK[0])}
    s_mul_i32 {sT0}, {sT2}, {HCCH}
    s_add_u32 {sT0}, {sT0}, {HC}
    s_mul_i32 {sT1}, {sT2}, {UCH}
    s_add_u32 {sT1}, {sT1}, {UL}
    s_add_u32 s3, {sU}, {sT0}
    s_add_u32 s3, s3, 32
    v_add_u32 {v(VHW)}, s3, {v(V16)}
    v_and_b32 {v(T0)}, 15, {v(VL)}
    v_lshrrev_b32 {v(T1)}, 4, {v(VL)}
    v_sub_u32 {v(T2)}, 3, {v(T0)}
    v_and_b32 {v(T2)}, 3, {v(T2)}
    v_add3_u32 {v(T3)}, {v(T0)}, {v(T2)}, 1
    v_lshl_add_u32 {v(T3)}, {v(T1)}, 3, {v(T3)}
    v_lshlrev_b32 {v(T3)}, 1, {v(T3)}
    v_mul_u32_u24 {v(T2)}, {CPY}, {v(T2)}
    s_lshl_b32 s3, {sKH}, 8
    s_add_u32 {sT0}, {sT0}, s3
    v_add3_u32 {v(CA)}, {v(T2)}, {v(T3)}, {sT0}
    v_lshlrev_b32 {v(T0)}, 5, {v(T0)}
    v_lshlrev_b32 {v(T1)}, 4, {v(T1)}
    v_sub_u32 {v(T1)}, {v(T1)}, {v(T0)}
    s_add_u32 s3, s3, {sT1}
    s_add_u32 s3, s3, 480
    v_add_u32 {v(CB)}, s3, {v(T1)}
    s_add_u32 {sPA}, {sT1}, {sU}
    s_lshl_b32 s3, {sM}, 12
    s_add_u32 {sU}, {sU}, s3
    v_mov_b32 {v(VZ)}, 0
    v_mov_b32 {v(VZ+1)}, 0
    v_mov_b32 {v(VZ+2)}, 0
    v_mov_b32 {v(VZ+3)}, 0
    v_lshrrev_b32 {v(T0)}, 5, {v(VL)}
    v_mul_u32_u24 {v(T0)}, {UCH}, {v(T0)}
    v_and_b32 {v(T1)}, 31, {v(VL)}
    v_lshl_add_u32 {v(T0)}, {v(T1)}, 4, {v(T0)}
    v_add_u32 {v(T0)}, {UL+4096}, {v(T0)}
    ds_write_b128 {v(T0)}, {v(VZ,4)}
    v_and_b32 {v(T0)}, 15, {v(VL)}
    v_lshrrev_b32 {v(T1)}, 1, {v(T0)}
    v_mul_u32_u24 {v(T1)}, {CPY}, {v(T1)}
    v_and_b32 {v(T0)}, 1, {v(T0)}
    v_lshl_add_u32 {v(T0)}, {v(T0)}, 4, {v(T1)}
    v_add_u32 {v(VHZ)}, {HC}, {v(T0)}
    s_lshl_b32 s3, {sI2}, 1
    s_add_u32 {sT0}, s3, {sKH}
    s_xor_b32 {sT1}, {sT0}, 1
    s_mul_i32 {sT0}, {sT0}, 112
    s_mul_i32 {sT1}, {sT1}, 112
    s_mul_i32 s3, {sW}, 28
    s_add_u32 {sT0}, {sT0}, s3
    s_add_u32 {sT1}, {sT1}, s3
    s_lshl_b32 {sT0}, {sT0}, 10
    s_lshl_b32 {sT1}, {sT1}, 10
    s_add_u32 {sHL[0]}, {sT0}, {WS_H}
    s_add_u32 {sHL[1]}, {sT1}, {WS_H}
    """)
    skl = [f"buffer_load_dwordx4 {v(HR,4)}, {v(VSK[1])}, {SK}, 0 offen", f"buffer_load_dwordx4 {v(HR+4,4)}, {v(VSK[0])}, {SK}, 0 offen",
           f"buffer_load_dwordx4 {v(HR+8,4)}, {v(VSK[2])}, {SK}, 0 offen", f"buffer_load_dwordx4 {v(HR+12,4)}, {v(VSK[0])}, {SK}, 0 offen offset:1024"]

    NG = 224
    G = Gaps(NG)
    def item_start(i): return 12 * i if i <= 7 else 84 + 28 * (i - 7)
    gT = lambda T: item_start(T + 4)
    def xread(g):
        if g < 84: c = g // 12; ks = (g % 12) // 3; unit = g % 3; it = c
        else: it = 7 + (g - 84) // 28; k = (g - 84) % 28; ks = k % 4; unit = k // 4
        sl = it % 5; hi = 1 if sl >= 3 else 0
        off = (sl - 3 * hi) * SLOT + 1024 * unit
        return f"ds_read_b128 {v(XRING+4*(g%NXR),4)}, {v(XR[hi][ks])} offset:{off}"
    def wread(c, ks):
        sl = c % 5; var = sl // 2; off = (sl - 2 * var) * SLOT + PIECE * ks; f = 4 * (4 * c + ks)
        return [f"ds_read_b64_tr_b16 {a(f+2*rd,2)}, {v(WR[var])} offset:{off+512*rd}" for rd in range(2)]
    tile_acc = {0: 0, 1: 1, 2: 2, 3: 3, 4: 0, 5: 1, 6: 2, 7: 3}
    for g in range(NG):
        if g < 84: c = g // 12; ks = 4 * c + (g % 12) // 3; T = g % 3
        else: T = 3 + (g - 84) // 28; ks = (g - 84) % 28
        A = v(ACC[tile_acc[T]], 16)
        G.m[g] = f"v_mfma_f32_32x32x16_bf16 {A}, {a(4*ks,4)}, {v(XRING+4*(g%NXR),4)}, {'0' if ks == 0 else A}"
    pre = []
    def at(g, item):
        if g < 0: pre.append(item)
        else: G.put(g, item)
    gB = lambda i: item_start(i) - PD - 1
    sPF = sDB
    G.put(gB(11) + cfg.p_load - 1, f"s_lshr_b32 {sPF}, s2, 5\n s_lshl_b32 {sPF}, {sPF}, 12")
    G.put(gB(11) + cfg.p_load, poll_load("p", sPF))
    for i in range(12):
        if i == 11: at(gB(i), [stamp("prepoll") if not cfg.pass_stamps else [], poll_check("p", sPF)])
        if i == 7: at(gB(i), WaitTag('lgkm', "ptw"))
        if i == cfg.p_arr and not cfg.nosync: at(gB(i), WaitTag('vm', "pst"))
        at(gB(i), [WaitTag('vm', "it%d" % i), Ins("s_barrier")])
        if i == cfg.p_arr: at(gB(i), [arrive("pst", sFL, False), f"s_mov_b32 {sFL}, {sXB}"])
    assert cfg.z_chk <= gB(cfg.p_arr)
    G.put(cfg.z_load, poll_load("z", None))
    G.f[cfg.z_chk].insert(0, [stamp("zpre") if not cfg.pass_stamps else [], poll_check("z", None), stamp("zpost") if not cfg.pass_stamps else []])
    for g in range(NG):
        if g < 84 and g % 3 == 0:
            for s_ in wread(g // 12, (g % 12) // 3): at(g - PD - 1, s_)
        at(g - PD - 1, xread(g))
    for c in range(7): G.spread(dma_item(c + 2), max(gB(c) + 1, 0), gB(c + 1) + 1)
    G.spread(dma_item(9) + dma_item(10), gB(7) + 1, gB(8) + 1)
    G.spread(skl + dma_item(11), gB(8) + 1, gB(8) + 25)
    if cfg.pl_at >= 0: G.spread(ploads, cfg.pl_at, cfg.pl_at + 13)
    lastS = 0 if cfg.s_early else G.pour(S + S2, 0, cfg.pc0, cfg.bud1)
    lastP = G.pour(pcomp, max(lastS, cfg.pc0), cfg.pc1, cfg.bud1)
    assert lastP < gB(7), lastP
    G.spread(pstore, gB(7) + 1, gB(7) + 9)
    hv = []
    for rho in range(2):
        R = HR + 8 * rho; C_ = HCP + 12 * rho
        for k in range(4): hv.append(f"v_alignbit_b32 {v(C_+k)}, {v(R+4+k)}, {v(R+3+k)}, 16")
        for k in range(4): hv.append(f"v_mov_b32 {v(C_+4+k)}, {v(R+3+k)}")
        for k in range(4): hv.append(f"v_alignbit_b32 {v(C_+8+k)}, {v(R+3+k)}, {v(R+2+k)}, 16")
    hw = [Ins(f"ds_write_b128 {v(VHZ)}, {v(VZ,4)}", "hcw")]
    for rho in range(2):
        R = HR + 8 * rho; C_ = HCP + 12 * rho
        for cpy, src in enumerate((R + 4, C_, C_ + 4, C_ + 8)):
            hw.append(Ins(f"ds_write_b128 {v(VHW)}, {v(src,4)} offset:{cpy*CPY+1024*rho}", "hcw"))
    def epi(T, packed=False):
        A = ACC[tile_acc[T]]; Pk = PK[T % 2]; L = []
        for grp in range(2):
            g_ = A + 8 * grp; u_ = g_ + 4; E = ET
            if packed:
                E = ET if grp == 0 else HR
                L += [f"v_mul_f32 {v(E+i)}, {sNL2E}, {v(g_+i)}" for i in range(4)]
                L += [f"v_exp_f32 {v(E+i)}, {v(E+i)}" for i in range(4)]
                L += [f"v_pk_mul_f32 {v(u_+2*i,2)}, {v(g_+2*i,2)}, {v(u_+2*i,2)}" for i in range(2)]
                L += [f"v_pk_add_f32 {v(E+2*i,2)}, {v(E+2*i,2)}, 1.0 op_sel_hi:[1,0]" for i in range(2)]
                L += [f"v_rcp_f32 {v(E+i)}, {v(E+i)}" for i in range(4)]
                L += [f"v_pk_mul_f32 {v(u_+2*i,2)}, {v(u_+2*i,2)}, {v(E+2*i,2)}" for i in range(2)]
            else:
                L += [f"v_mul_f32 {v(E+i)}, {sNL2E}, {v(g_+i)}" for i in range(4)]
                L += [f"v_exp_f32 {v(E+i)}, {v(E+i)}" for i in range(4)]
                L += [f"v_mul_f32 {v(u_+i)}, {v(g_+i)}, {v(u_+i)}" for i in range(2)]
                L += [f"v_add_f32 {v(E+i)}, 1.0, {v(E+i)}" for i in range(4)]
                L += [f"v_rcp_f32 {v(E+i)}, {v(E+i)}" for i in range(4)]
                L += [f"v_mul_f32 {v(u_+i)}, {v(g_+i)}, {v(u_+i)}" for i in range(2, 4)]
                L += [f"v_mul_f32 {v(u_+i)}, {v(u_+i)}, {v(E+i)}" for i in range(4)]
            L += [f"v_cvt_pk_bf16_f32 {v(Pk+2*grp+i)}, {v(u_+2*i)}, {v(u_+2*i+1)}" for i in range(2)]
        L.append(f"s_lshl2_add_u32 {sSO2}, {sTO[T]}, {sHS}")
        L.append(Ins(f"buffer_store_dwordx4 {v(Pk,4)}, {v(V16)}, {WS}, {sSO2} offen sc1", "hst"))
        return L
    page_slot = [2, 3, 0, 1]
    def wd_page(n): return n % 14 if n < 28 else (14 + (n - 28) if n < 42 else n - 42)
    def wd_prev(n): return n - 14 if 14 <= n < 28 else (n - 28 if n >= 42 else None)
    def wd_dma(n0, n1):
        L = []; n = n0
        while n < n1:
            p = wd_page(n); cnt = min(4, n1 - n, 7 - p % 7, 8 - n % 8)
            lds = page_slot[p // 7] * SLOT + 1024 * (p % 7)
            for k in range(cnt):
                it = [Ins(f"buffer_load_dwordx4 {v(VD[k])}, {WD}, {sSO} offen offset:{1024*k} lds", "wd%d" % (n + k))]
                if wd_prev(n + k) is not None: it = [WaitTag('lgkm', "wr%d" % wd_prev(n + k))] + it
                if k == 0: L.append(f"s_add_u32 m0, {sM0P}, {lds}\n s_add_u32 {sSO}, {sDG[n >> 3]}, {7168*(n % 8)}")
                L.append(it)
            n += cnt
        return L
    def wd_read(n, dst):
        p = wd_page(n); sl = page_slot[p // 7]; hi = 1 if sl >= 2 else 0
        off = (sl - 2 * hi) * SLOT + 1024 * (p % 7)
        return [[WaitTag('vm', "wd%d" % n)] * (dt == 0) + [Ins(f"ds_read_b64_tr_b16 {dst(dt)}, {v(DR[hi][dt])} offset:{off}", "wr%d" % n)] for dt in range(2)]
    WD1 = 112
    def wd1(n): return lambda dt: a(WD1 + 8 * (n >> 1) + 4 * dt + 2 * (n & 1), 2)
    def wd_reads(n0, n1): return [x for n in range(n0, n1) for x in wd_read(n, wd1(n))]
    G.spread(wd_dma(0, 7), gB(9) + 1, gB(9) + 20)
    G.spread(hv, gB(9) + 1, gB(9) + 26)
    G.spread(wd_dma(7, 14), gB(10) + 1, gB(10) + 15)
    G.spread(wd_reads(0, 7), gB(10) + 2, gB(10) + 14)
    G.spread(wd_dma(14, 21), gB(10) + 16, gB(11))
    G.put(gB(11) + 1, [f"s_mov_b32 m0, {sPA}\n s_add_u32 {sSO}, {sU}, {WS_UR}"] + [Ins(f"buffer_load_dwordx4 {v(V16)}, {WS}, {sSO} offen offset:{1024*j} sc1 lds", "u") for j in range(2)])
    G.spread(wd_reads(7, 14), gB(11) + 3, gB(11) + 15)
    G.spread(wd_dma(21, 28), gB(11) + 16, NG - 1)
    G.spread(hw, gB(11) + 2, gB(11) + 24)
    bounds = [84 + 2 + (140 - 4) * k // 7 for k in range(8)]
    last = 0
    for T in range(7):
        g0 = max(bounds[T], (84 if T < 3 else gT(T + 1)) + 2, last)
        last = G.pour(epi(T), g0, max(bounds[T + 1], g0 + 1), cfg.bud)
        nxt = [t for t in range(T + 1, 8) if tile_acc[t] == tile_acc[T]]
        if nxt: assert last < gT(nxt[0]), (T, last)
    check_m0(G)
    if cfg.s_early: P.add(S + S2)
    P.add(late_first)
    if cfg.pl_at < 0: P.add(ploads)
    P.e(f"""s_waitcnt lgkmcnt(0)
    s_lshl_b32 s3, {sD}, 16
    s_and_b32 {sD}, {sD}, 0xffff0000
    s_cmp_lt_u32 {sW}, 2
    s_cselect_b32 {sD}, s3, {sD}""")
    P.add(pre)
    P.add(stamp("g1start"))
    G.put(83, stamp("p1end"))
    if cfg.pass_stamps:
        for T in (5, 6, 7): G.put(gT(T) - 1, stamp("T%d" % T))
    G.emit(P, cfg.pair)
    if cfg.verbose: print("G1 gap costs", G.costs())
    P.add(stamp("g1end"))
    P.vmwait("u"); P.lgwait("hcw"); P.e("s_barrier")
    CACC = 48
    def cA(buf, a_): return (0 if buf == 0 else 64) + 4 * a_
    def cB(buf, b_):
        i = 32 + 4 * b_ if buf == 0 else 96 + 4 * b_
        return i if i < 112 else 224 + (i - 112)
    def creads(st):
        buf = st & 1; L = []
        for k in range(8):
            L.append(f"ds_read_b128 {a(cB(buf,k),4)}, {v(CB)} offset:{64*st+512*(7-k)}")
            for rd in range(2): L.append(f"ds_read_b64 {a(cA(buf,k)+2*rd,2)}, {v(CA)} offset:{512*k+64*st+8*rd}")
        return L
    e7 = epi(7, True); c0 = creads(0)
    P.add(c0[:9])
    k = 0; rest = c0[9:15]; d2 = wd_dma(28, 28 + cfg.nwd_t); k2 = 0
    for j, it in enumerate(e7):
        P.add(it)
        if j % 5 == 4 and k < len(rest): P.add(rest[k]); k += 1
        if j % 5 == 1 and k2 < len(d2) and j < len(e7) - 3: P.add(d2[k2]); k2 += 1
    P.add(rest[k:]); P.add(d2[k2:])
    hg = [f"s_lshr_b32 s3, {sI2}, 2", "s_mul_i32 s3, s3, 28", f"s_add_u32 s3, s3, 256", f"s_lshl_b32 {sPA}, s3, 7"]
    for i in range(7): hg += [f"s_lshl_b32 {sHG[i]}, {sRG}, 12"] + (rot_next(sRG) if i < 6 else [])
    P.add(stamp("cstart"))
    C = Gaps(144)
    pairs = [(t, a_) for t in range(8) for a_ in range(t + 1)]
    C.spread(c0[15:], 0, 6)
    for st in range(4):
        for j, (t, a_) in enumerate(pairs):
            A = v(CACC + 4 * t, 4)
            C.m[36 * st + j] = f"v_mfma_f32_16x16x32_bf16 {A}, {a(cA(st&1,a_),4)}, {a(cB(st&1,t-a_),4)}, {'0' if (st == 0 and a_ == 0) else A}"
        if st < 3: C.spread(creads(st + 1), 36 * st + (6 if st == 0 else 1), 36 * st + 31)
    HRING = 96; NHR = 40
    sHT = [sXB, sWB]
    def hload(n):
        ks = n >> 1; stl = n & 1; L = []
        if ks % 4 == 0: L.append(f"s_add_u32 {sHT[stl]}, {sHL[stl]}, {sHG[ks >> 2]}")
        L.append(f"buffer_load_dwordx4 {v(HRING+4*(n%NHR),4)}, {v(V16)}, {WS}, {sHT[stl]} offen offset:{1024*(ks%4)} sc1")
        return L
    C.pour(wd_reads(14, 28), 6, 44, 12)
    C.spread(wd_dma(28 + cfg.nwd_t, 56), 0, cfg.g_wd_end)
    C.put(cfg.g_arrive, arrive("hst", sFL))
    C.pour(hg, 46, 84, 12)
    C.put(cfg.g_poll, poll_load("h", sPA))
    C.put(cfg.g_chk, [stamp("c_pre"), poll_check("h", sPA), stamp("c_post")])
    NH = cfg.nh_c
    C.spread([hload(n) for n in range(NH)], cfg.g_chk + 1, 144)
    Y = 80; RR = 2; UU = 18; VRW = 26; VRR = 27; VUR = 37; VYS = 42
    ce = lines(f"""
    s_lshl_b32 s3, {sW}, 12
    s_add_u32 s3, s3, {HC}
    v_add_u32 {v(VRW)}, s3, {v(V16)}
    v_xor_b32 {v(VRR)}, 4096, {v(VRW)}
    v_and_b32 {v(T3)}, 15, {v(VL)}
    v_lshlrev_b32 {v(T3)}, 5, {v(T3)}
    v_lshrrev_b32 {v(T2)}, 4, {v(VL)}
    v_lshl_add_u32 {v(T3)}, {v(T2)}, 3, {v(T3)}
    s_lshr_b32 s3, {sW}, 1
    s_mul_i32 s3, s3, {UCH}
    s_lshl_b32 {sT0}, {sKH}, 11
    s_sub_u32 s3, s3, {sT0}
    s_add_u32 s3, s3, {UL+504+2048}
    v_sub_u32 {v(VUR)}, s3, {v(T3)}
    v_and_b32 {v(T1)}, 3, {v(VL)}
    v_lshlrev_b32 {v(T1)}, 4, {v(T1)}
    v_bfe_u32 {v(T3)}, {v(VL)}, 2, 2
    v_lshl_add_u32 {v(T1)}, {v(T3)}, 7, {v(T1)}
    v_bfe_u32 {v(T3)}, {v(VL)}, 4, 1
    v_lshl_add_u32 {v(T1)}, {v(T3)}, 9, {v(T1)}
    v_lshrrev_b32 {v(T3)}, 5, {v(VL)}
    v_lshl_add_u32 {v(VYS)}, {v(T3)}, 6, {v(T1)}
    s_add_u32 {sU}, {sU}, {WS_YT}
    """)
    ce += [f"ds_read_b64 {v(UU+2*tau,2)}, {v(VUR)} offset:{512*(3-tau)}" for tau in range(4)]
    DU = 80
    for tau in range(4):
        ce += lines(f"""
        v_and_b32 {v(DU+4*tau+0)}, {sMASK}, {v(UU+2*tau+1)}
        v_lshlrev_b32 {v(DU+4*tau+1)}, 16, {v(UU+2*tau+1)}
        v_and_b32 {v(DU+4*tau+2)}, {sMASK}, {v(UU+2*tau)}
        v_lshlrev_b32 {v(DU+4*tau+3)}, 16, {v(UU+2*tau)}""")
    lc = C.pour(ce, 100, 142, 8)
    check_m0(C)
    C.emit(P)
    if cfg.verbose: print("C gap costs", C.costs())
    hq = [hload(n) for n in range(NH, NH + cfg.nh_e)]; NH += cfg.nh_e
    def hnext():
        if hq: P.add(hq.pop(0))
    P.e("s_barrier")
    hnext()
    P.e(f"s_cmp_eq_u32 {sKH}, 0\n s_nop 3\n s_cbranch_scc1 L_cw0")
    for tau in range(4): P.e(f"ds_write_b128 {v(VRW)}, {v(CACC+4*tau,4)} offset:{1024*tau}", nocount=True)
    for k in range(16): P.e(f"v_fma_f32 {v(DU+k)}, {sD}, {v(DU+k)}, {v(CACC+16+k)}")
    P.e("s_branch L_cw1\n L_cw0:")
    for tau in range(4): P.e(f"ds_write_b128 {v(VRW)}, {v(CACC+16+4*tau,4)} offset:{1024*tau}")
    for k in range(16): P.e(f"v_fma_f32 {v(DU+k)}, {sD}, {v(DU+k)}, {v(CACC+k)}")
    P.e("L_cw1:"); hnext()
    P.e("s_waitcnt lgkmcnt(0)\n s_barrier")
    for tau in range(4): P.e(f"ds_read_b128 {v(RR+4*tau,4)}, {v(VRR)} offset:{1024*tau}")
    hnext(); hnext()
    for pi in range(2):
        for k in range(4): P.e(f"v_pk_add_f32 {v(DU+8*pi+2*k,2)}, {v(DU+8*pi+2*k,2)}, {v(RR+8*pi+2*k,2)}")
        for k in range(4): P.e(f"v_cvt_pk_bf16_f32 {v(UU+4*pi+k)}, {v(DU+8*pi+2*k)}, {v(DU+8*pi+2*k+1)}")
        hnext()
        P.e(f"v_permlane16_swap_b32 {v(UU+4*pi)}, {v(UU+4*pi+2)}\n v_permlane16_swap_b32 {v(UU+4*pi+1)}, {v(UU+4*pi+3)}")
        P.e(f"buffer_store_dwordx4 {v(UU+4*pi,4)}, {v(VYS)}, {WS}, {sU} offen offset:{1024*pi} sc1", tag="yst")
    while hq: hnext()
    P.add(stamp("g2start"))
    GACC = 0; JIT = 64; NJ = 6
    G2 = Gaps(112)
    def wfrag(ks, dt):
        if ks < 14: return a(WD1 + 8 * ks + 4 * dt, 4)
        return a(JIT + 4 * ((2 * (ks - 14) + dt) % NJ), 4)
    for ks in range(28):
        for sg in range(4):
            A = a(GACC + 16 * sg, 16)
            G2.m[4 * ks + sg] = f"v_mfma_f32_32x32x16_bf16 {A}, {wfrag(ks, sg>>1)}, {v(HRING+4*((2*ks+(sg&1))%NHR),4)}, {'0' if ks == 0 else A}"
    for ks in range(14, 28):
        for rd in range(2):
            its = wd_read(2 * ks + rd, lambda dt, ks=ks, rd=rd: a(JIT + 4 * ((2 * (ks - 14) + dt) % NJ) + 2 * rd, 2))
            for dt in range(2): G2.put(4 * ks - 7 + 2 * rd + dt, its[dt])
    gprev = 0
    for n in range(NH, 56):
        g = int((n - NH) * cfg.g2_hpace)
        if n >= NHR: g = max(4 * ((n - NHR) >> 1) + 4, g)
        g = max(g, gprev); gprev = g
        assert g < 4 * (n >> 1), (n, g)
        G2.put(g, hload(n))
    VY = [10, 11]; VQ = [12, 13]; VG = 14; VGA = 15; OMG = 16
    EW = [2, 3]; ER = [4, 5, 6]; EY = 7; EQ = [8, 9, 26, 27]; EO = 17
    red_slot = [None, 2, 3, 0]
    e1 = lines(f"""
    s_mov_b32 s28, s62
    s_mov_b32 s29, s63
    s_lshl_b32 s3, s2, 7
    s_add_u32 {sFL}, s3, {512*128}
    s_lshl_b32 s3, {sCT}, 12
    s_add_u32 {sPA}, s3, {512*128}
    v_lshrrev_b32 {v(T1)}, 3, {v(VL)}
    v_and_b32 {v(T2)}, 7, {v(VL)}
    v_lshlrev_b32 {v(T3)}, 12, {v(T1)}
    v_lshl_add_u32 {v(VY[0])}, {v(T2)}, 4, {v(T3)}
    v_add_u32 {v(VY[1])}, {32768-1024}, {v(VY[0])}
    v_lshrrev_b32 {v(T3)}, 4, {v(VL)}
    v_xor_b32 {v(T2)}, {v(T2)}, {v(T3)}
    v_lshlrev_b32 {v(T2)}, 4, {v(T2)}
    v_mul_u32_u24 {v(T1)}, 896, {v(T1)}
    v_add_u32 {v(VQ[0])}, {v(T1)}, {v(T2)}
    v_xor_b32 {v(T2)}, 64, {v(T2)}
    v_add_u32 {v(T1)}, {7168-1024}, {v(T1)}
    v_add_u32 {v(VQ[1])}, {v(T1)}, {v(T2)}
    s_lshl_b32 s3, {sI2}, 1
    s_add_u32 s3, s3, {sKH}
    s_lshl_b32 s3, s3, 7
    s_add_u32 s3, s3, {WS_G}
    v_and_b32 {v(T1)}, 31, {v(VL)}
    v_lshl_add_u32 {v(VGA)}, {v(T1)}, 2, s3
    s_lshl_b32 s3, {sI2}, 2
    s_add_u32 s3, s3, {sW}
    s_mul_i32 s3, s3, {16*896}
    s_lshl_b32 {sSO}, {sCT}, 7
    s_add_u32 {sSO}, {sSO}, s3
    s_add_u32 {sSO}, {sSO}, {XB}
    """)
    l1 = G2.pour(e1, 0, cfg.g2_arrive - 1, 20); assert l1 <= cfg.g2_arrive
    G2.put(cfg.g2_arrive, arrive("yst", sFL))
    qd = [f"s_lshl_b32 s3, {sW}, 11\n s_add_u32 m0, s3, {QL}"]
    qd += [Ins(f"buffer_load_dwordx4 {v(VQ[j])}, {X}, {sSO} offen offset:{1024*j} lds", "qy") for j in range(2)]
    qd += [f"buffer_load_dword {v(VG)}, {v(VGA)}, {WS}, 0 offen sc1"]
    G2.spread(qd, cfg.g2_arrive + 1, cfg.g2_arrive + 9)
    ea = [f"v_add_u32 {v(EW[0])}, {sM0P}, {v(V16)}", f"v_add_u32 {v(EW[1])}, {3*SLOT}, {v(EW[0])}"]
    for sg in range(1, 4):
        ea += [f"s_xor_b32 s3, {sW}, {sg}", f"s_mul_i32 s3, s3, {PIECE}", f"s_add_u32 s3, s3, {red_slot[sg]*SLOT}", f"v_add_u32 {v(ER[sg-1])}, s3, {v(V16)}"]
    ea += lines(f"""s_lshr_b32 {sT0}, {sW}, 1
    v_bfe_u32 {v(T1)}, {v(VL)}, 2, 2
    v_lshrrev_b32 {v(T2)}, 5, {v(VL)}
    v_lshl_add_u32 {v(T1)}, {v(T2)}, 2, {v(T1)}
    v_lshlrev_b32 {v(T1)}, 7, {v(T1)}
    v_bfe_u32 {v(T3)}, {v(VL)}, 1, 1
    v_lshl_add_u32 {v(T1)}, {v(T3)}, 6, {v(T1)}
    v_bfe_u32 {v(T3)}, {v(VL)}, 4, 1
    v_lshl_add_u32 {v(T1)}, {v(T3)}, 4, {v(T1)}
    v_and_b32 {v(T3)}, 1, {v(VL)}
    v_lshl_add_u32 {v(T1)}, {v(T3)}, 3, {v(T1)}
    s_lshl_b32 s3, {sT0}, 12
    s_lshl_b32 {sT1}, {sKH}, 5
    s_add_u32 s3, s3, {sT1}
    s_add_u32 s3, s3, {YL}
    v_add_u32 {v(EY)}, s3, {v(T1)}
    v_and_b32 {v(T1)}, 31, {v(VL)}
    v_bfe_u32 {v(T3)}, {v(VL)}, 1, 3
    s_lshl_b32 s3, {sT0}, 2
    v_xor_b32 {v(T3)}, s3, {v(T3)}
    v_lshlrev_b32 {v(T3)}, 4, {v(T3)}
    v_lshl_add_u32 {v(T3)}, {v(T1)}, 7, {v(T3)}
    v_lshl_add_u32 {v(T3)}, {v(T2)}, 3, {v(T3)}
    s_lshl_b32 s3, {sKH}, 12
    s_add_u32 s3, s3, {QL}
    v_add_u32 {v(EQ[0])}, s3, {v(T3)}
    v_xor_b32 {v(EQ[1])}, 16, {v(EQ[0])}
    v_xor_b32 {v(EQ[2])}, 32, {v(EQ[0])}
    v_xor_b32 {v(EQ[3])}, 48, {v(EQ[0])}
    v_mul_u32_u24 {v(T1)}, 896, {v(T1)}
    v_lshl_add_u32 {v(EO)}, {v(T2)}, 4, {v(T1)}
    s_lshl_b32 s3, {sI2}, 1
    s_add_u32 s3, s3, {sKH}
    s_mul_i32 {sSO2}, s3, {32*896}
    s_lshl_b32 s3, {sCT}, 1
    s_add_u32 s3, s3, {sT0}
    s_lshl_b32 s3, s3, 6
    s_add_u32 {sSO2}, {sSO2}, s3
    s_lshl_b32 s3, {sCT}, 2
    s_add_u32 s3, s3, {sW}
    s_lshl_b32 s3, s3, 16
    s_lshl_b32 {sSO}, {sI2}, 7
    s_add_u32 {sSO}, {sSO}, s3
    s_add_u32 {sSO}, {sSO}, {WS_YT}""")
    l2 = G2.pour(ea, cfg.g2_arrive + 10, cfg.g2_chk - 1, 20); assert l2 <= cfg.g2_chk
    G2.put(cfg.g2_poll, poll_load("y", sPA))
    G2.put(cfg.g2_chk, [stamp("g2_pre"), poll_check("y", sPA), Ins("s_barrier"), [] if cfg.pass_stamps else stamp("g2_post")])
    yd = [f"s_lshl_b32 s3, {sW}, 11\n s_add_u32 m0, s3, {YL}"]
    yd += [Ins(f"buffer_load_dwordx4 {v(VY[j])}, {WS}, {sSO} offen offset:{1024*j} sc1 lds", "qy") for j in range(2)]
    G2.spread(yd, cfg.g2_chk + 1, cfg.g2_chk + 4)
    YY = 48; QQ = 56; TT = 64; TQ = 80
    pe = [[WaitTag('vm', "qy"), Ins("s_barrier")]]
    for J in range(4):
        pe += [f"ds_read_b64_tr_b16 {v(YY+2*J,2)}, {v(EY)} offset:{1024*J}", f"ds_read_b64 {v(QQ+2*J,2)}, {v(EQ[J])}"]
    pe += [f"v_sub_f32 {v(OMG)}, 1.0, {v(VG)}"]
    for J in range(4):
        for i in range(4):
            src = 2 * J + (i >> 1)
            un = (lambda d, s_: f"v_lshlrev_b32 {d}, 16, {s_}") if i % 2 == 0 else (lambda d, s_: f"v_and_b32 {d}, {sMASK}, {s_}")
            pe += [un(v(TT + 4 * J + i), v(YY + src)), un(v(TQ + i), v(QQ + src))]
        pe += [f"v_mul_f32 {v(TT+4*J+i)}, {v(TT+4*J+i)}, {v(TQ+i)}" for i in range(4)]
        pe += [f"v_mul_f32 {v(TT+4*J+i)}, {v(TT+4*J+i)}, {v(VG)}" for i in range(4)]
    G2.pour(pe, cfg.g2_pre, 111, 24)
    check_m0(G2)
    G2.emit(P)
    if cfg.verbose: print("G2 gap costs", G2.costs())
    P.add(stamp("g2end"))
    B = 96; R1 = 112; O = 48
    for sg in range(1, 4):
        for J in range(4):
            if red_slot[sg] == 3: P.e(f"ds_write_b128 {v(EW[1])}, {a(GACC+16*sg+4*J,4)} offset:{1024*J}")
            else: P.e(f"ds_write_b128 {v(EW[0])}, {a(GACC+16*sg+4*J,4)} offset:{red_slot[sg]*SLOT+1024*J}")
    for k in range(16): P.e(f"v_accvgpr_read_b32 {v(B+k)}, {a(GACC+k)}")
    P.e(f"v_mov_b32 {v(T1)}, {v(OMG)}")
    P.e("s_waitcnt lgkmcnt(0)\n s_barrier")
    for J in range(4):
        for sg in range(1, 4): P.e(f"ds_read_b128 {v(R1+16*(sg-1)+4*J,4)}, {v(ER[sg-1])} offset:{1024*J}")
    OM2 = 34
    P.e(f"v_mov_b32 {v(T2)}, {v(OMG)}")
    for J in range(4):
        for sg in range(3):
            for i in range(2): P.e(f"v_pk_add_f32 {v(B+4*J+2*i,2)}, {v(B+4*J+2*i,2)}, {v(R1+16*sg+4*J+2*i,2)}")
        for i in range(2): P.e(f"v_pk_fma_f32 {v(TT+4*J+2*i,2)}, {v(B+4*J+2*i,2)}, {v(OM2,2)}, {v(TT+4*J+2*i,2)}")
        for i in range(2): P.e(f"v_cvt_pk_bf16_f32 {v(O+2*J+i)}, {v(TT+4*J+2*i)}, {v(TT+4*J+2*i+1)}")
        if J % 2 == 1:
            o = O + 2 * J - 2
            P.e(f"v_permlane32_swap_b32 {v(o)}, {v(o+2)}\n v_permlane32_swap_b32 {v(o+1)}, {v(o+3)}")
            P.e(f"buffer_store_dwordx4 {v(o,4)}, {v(EO)}, {OUT}, {sSO2} offen offset:{32*(J>>1)} {cfg.sc_out}")
    if cfg.stamps: emit_stamps(P)
    if cfg.fixdur:
        P.e(f"""L_fix:
        s_memrealtime s[4:5]
        s_waitcnt lgkmcnt(0)
        s_sub_u32 s4, s4, s100
        s_cmp_lt_i32 s4, {cfg.fixdur}
        s_cbranch_scc1 L_fix""")
    P.e("s_endpgm")

def check_m0(G):
    flat = []
    def fl(it):
        if isinstance(it, str):
            for l in lines(it): flat.append(Ins(l))
        elif isinstance(it, (list, tuple)):
            for x in it: fl(x)
        elif isinstance(it, Ins): flat.append(it)
    for f in G.f:
        for it in f: fl(it)
    last_off = None
    for it in flat:
        if it.kind == 'salu' and ('s', 'm0') in it.w: last_off = -1024
        if it.kind == 'dma':
            m = re.search(r'offset:(\d+)', it.text); off = int(m.group(1)) if m else 0
            assert last_off is not None and off == last_off + 1024, ("m0 group interleaved", it.text)
            last_off = off

def emit_stamps(P):
    P.e("s_waitcnt vmcnt(0)")
    P.e("s_memtime s[4:5]\n s_memrealtime s[6:7]\n s_waitcnt lgkmcnt(0)")
    n = len(stamp_names)
    for k in range(n):
        P.e(f"s_sub_u32 s3, s{STAMP_REGS[stamp_names[k]]}, {'s100' if cfg.rt else 's98'}"); P.e(f"v_mov_b32 v{200+k}, s3")
    P.e(f"s_sub_u32 s3, {'s6, s100' if cfg.rt else 's4, s98'}\n v_mov_b32 v{200+n}, s3")
    P.e(f"""s_lshl_b32 s3, s2, 2
    s_add_u32 s3, s3, {sW}
    s_lshl_b32 s3, s3, 7
    s_add_u32 s3, s3, {WS_STAMP}
    v_mov_b32 v229, 0
    v_mov_b32 v230, s100
    v_mov_b32 v231, s6
    v_mov_b32 v2, 0
    s_mov_b64 exec, 1""")
    for k in range(8): P.e(f"buffer_store_dwordx4 v[{200+4*k}:{203+4*k}], v2, {WS}, s3 offen offset:{16*k}")

def gen_aux(P):
    GW = "s[52:55]"; sA = "s68"
    VL = 1; VB = 2; VGW = 3; T0 = 4; T1 = 5; VZA = 6; VZ = 7; AC = 8; QB = 16; GWB = 80; PF = 112
    P.e("s_cmp_lt_u32 s2, 256\n s_cbranch_scc1 L_auxgo\n s_endpgm\n L_auxgo:")
    P.e(ldptr(GW, 80))
    P.add(srd_hi(X, NQ) + srd_hi(GW, 896) + srd_hi(WS, WS_SIZE) + srd_hi(WD, NW) + srd_hi(SK, NQ))
    P.e(f"""
    s_sub_u32 {sA}, s2, 224
    v_and_b32 {v(T0)}, 7, {v(VL)}
    v_lshrrev_b32 {v(T1)}, 3, {v(VL)}
    v_mul_u32_u24 {v(VB)}, {2*896}, {v(T1)}
    v_lshlrev_b32 {v(VGW)}, 4, {v(T0)}
    v_add_u32 {v(VB)}, {v(VB)}, {v(VGW)}
    s_lshl_b32 {sT0}, {sA}, 2
    s_add_u32 {sT0}, {sT0}, {sW}
    s_mul_i32 {sSO}, {sT0}, {16*896}
    s_mul_i32 s3, {sA}, {24*128}
    v_lshlrev_b32 {v(VZA)}, 7, {v(VL)}
    v_add_u32 {v(VZA)}, s3, {v(VZA)}
    v_mov_b32 {v(VZ)}, -16
    v_cmp_gt_u32 vcc, 24, v0
    v_cndmask_b32 {v(VZA)}, {v(VZ)}, {v(VZA)}, vcc
    v_mov_b32 {v(VZ)}, 0
    s_mov_b32 {sONE}, 1
    s_waitcnt lgkmcnt(0)
    """)
    for tau in range(7):
        for rho in range(2): P.e(f"buffer_load_dwordx4 {v(QB+8*tau+4*rho,4)}, {v(VB)}, {X}, {sSO} offen offset:{896*rho+128*tau}")
        P.e(f"buffer_load_dwordx4 {v(GWB+4*tau,4)}, {v(VGW)}, {GW}, 0 offen offset:{128*tau}")
    P.e(f"buffer_store_dword {v(VZ)}, {v(VZA)}, {WS}, 0 offen sc1")
    for tau in range(7):
        for p in range(4):
            for rho in range(2):
                d = AC + 2 * (p & 1) + rho
                c = '0' if (tau == 0 and p < 2) else v(d)
                P.e(f"v_dot2_f32_bf16 {v(d)}, {v(QB+8*tau+4*rho+p)}, {v(GWB+4*tau+p)}, {c}")
    for rho in range(2): P.e(f"v_add_f32 {v(AC+rho)}, {v(AC+rho)}, {v(AC+2+rho)}")
    for mod in ("row_half_mirror", "quad_perm:[3,2,1,0]", "quad_perm:[1,0,3,2]"):
        for rho in range(2): P.e(f"v_add_f32_dpp {v(AC+rho)}, {v(AC+rho)}, {v(AC+rho)} {mod} row_mask:0xf bank_mask:0xf")
    P.e(f"""s_mov_b32 s74, 0xaaaaaaaa
    s_mov_b32 s75, 0xaaaaaaaa
    v_cndmask_b32 {v(AC)}, {v(AC)}, {v(AC+1)}, s[74:75]
    v_mul_f32 {v(AC)}, 0xbfb8aa3b, {v(AC)}
    v_exp_f32 {v(AC)}, {v(AC)}
    v_lshl_add_u32 {v(T1)}, {v(T1)}, 1, {v(T0)}
    v_add_f32 {v(AC)}, 1.0, {v(AC)}
    v_rcp_f32 {v(AC)}, {v(AC)}
    v_lshlrev_b32 {v(T1)}, 2, {v(T1)}
    v_mov_b32 {v(VZA)}, -16
    v_cmp_gt_u32 vcc, 2, {v(T0)}
    v_cndmask_b32 {v(T1)}, {v(VZA)}, {v(T1)}, vcc
    s_lshl_b32 s3, {sT0}, 6
    s_add_u32 s3, s3, {WS_G}
    buffer_store_dword {v(AC)}, {v(T1)}, {WS}, s3 offen sc1""", tag="gst")
    if cfg.stamps: P.e("s_memtime s[86:87]")
    P.e(f"""s_waitcnt vmcnt(0)
    s_barrier
    s_cmp_lg_u32 {sW}, 0
    s_cbranch_scc1 L_auxpf
    s_atomic_add {sONE}, {pDBG}, 0
    L_auxpf:""")
    if cfg.stamps: P.e("s_memtime s[88:89]")
    if cfg.aux_pf:
        P.e(f"v_lshlrev_b32 {v(T0)}, 7, {v(VL)}\n s_mul_i32 {sSO}, {sT0}, {112*128}\n s_mul_i32 {sSO2}, {sT0}, {98*128}\n v_add_u32 {v(T1)}, {48*128}, {v(T0)}\n v_add_u32 {v(VZA)}, {34*128}, {v(T0)}")
        P.e(f"""buffer_load_dword {v(PF)}, {v(T0)}, {SK}, {sSO} offen
        buffer_load_dword {v(PF+1)}, {v(T1)}, {SK}, {sSO} offen
        buffer_load_dword {v(PF+2)}, {v(T0)}, {WD}, {sSO2} offen
        buffer_load_dword {v(PF+3)}, {v(VZA)}, {WD}, {sSO2} offen""")
    if cfg.stamps:
        P.e(f"""s_waitcnt vmcnt(0)
        s_memtime s[4:5]
        s_memrealtime s[6:7]
        s_waitcnt lgkmcnt(0)
        s_sub_u32 s3, s86, s98
        v_mov_b32 v200, s3
        s_sub_u32 s3, s88, s98
        v_mov_b32 v201, s3
        v_mov_b32 v202, s3
        s_sub_u32 s3, s4, s98
        v_mov_b32 v203, s3
        v_mov_b32 v204, s100
        v_mov_b32 v205, s6
        s_lshl_b32 s3, s2, 2
        s_add_u32 s3, s3, {sW}
        s_lshl_b32 s3, s3, 7
        s_add_u32 s3, s3, {WS_STAMP}
        v_mov_b32 v2, 0
        s_mov_b64 exec, 1
        buffer_store_dwordx4 v[200:203], v2, {WS}, s3 offen
        buffer_store_dwordx2 v[204:205], v2, {WS}, s3 offen offset:120""")
    P.e("s_waitcnt vmcnt(0) lgkmcnt(0)\n s_endpgm")

def build():
    global slow_paths, stamp_names
    slow_paths = []; stamp_names = []; arr_n[0] = 0
    pro = Prog()
    for reg, off in ((X, 0), (WG, 56), (WU, 64), (WD, 72), (SK, 32), (WS, 104), (KK, 8), (pV, 16), (pSH, 24), (pOUT, 88), (pDBG, 96), (pD, 40)): pro.e(ldptr(reg, off))
    if cfg.stamps or cfg.fixdur: pro.e("s_memtime s[98:99]\n s_memrealtime s[100:101]")
    pro.e(f"""
    v_lshrrev_b32 v2, 6, v0
    v_and_b32 v1, 63, v0
    s_cmp_ge_u32 s2, 224
    v_readfirstlane_b32 {sW}, v2
    s_cbranch_scc1 L_aux
    """)
    Pm = Prog(); Pm.items = list(pro.items)
    gen_main(Pm)
    main = Pm.finalize(cfg.verbose)
    Px = Prog(); Px.items = list(pro.items); Px.e("L_aux:")
    gen_aux(Px)
    ax = Px.finalize()
    cut = lambda lst, lab: lst[[i for i, x in enumerate(lst) if x.kind == 'label' and x.text == lab][0]:]
    body = text_of(main) + "\n" + emit_slow_paths() + "\n" + text_of(cut(ax, "L_aux:")) + "\nL_codeend:"
    hdr = open("gated_mix__ssm_conv_h3__swiglu_ffn__prompt.s.ref").read().split("; Override launch")[0] if cfg.header else ""
    return f"""{hdr}; @launch grid=(256,1,1) block=(256,1,1) lds={LDS_BYTES}
.amdgcn_target "amdgcn-amd-amdhsa--gfx950"
.text
.globl {KNAME}
.p2align 8
.type {KNAME},@function
{KNAME}:
{body}
.section .rodata,"a"
.p2align 6
.amdhsa_kernel {KNAME}
  .amdhsa_next_free_vgpr 512
  .amdhsa_next_free_sgpr 102
  .amdhsa_accum_offset 256
  .amdhsa_group_segment_fixed_size 0
  .amdhsa_kernarg_size 112
  .amdhsa_user_sgpr_count 2
  .amdhsa_user_sgpr_kernarg_segment_ptr 1
  .amdhsa_system_sgpr_workgroup_id_x 1
.end_amdhsa_kernel
"""

if __name__ == "__main__":
    import subprocess
    out = sys.argv[1]
    for kv in sys.argv[2:]:
        k_, v_ = kv.split("=", 1)
        assert hasattr(cfg, k_), k_
        setattr(cfg, k_, eval(v_))
    cfg.pf_n = 1; cfg.pf_last = 100
    vb = cfg.verbose; cfg.verbose = False
    open(out, "w").write(build())
    subprocess.check_call(["clang", "-x", "assembler", "-target", "amdgcn-amd-amdhsa", "-mcpu=gfx950", "-c", out, "-o", "_gen.o"])
    sym = subprocess.check_output(["llvm-objdump", "-t", "_gen.o"], text=True)
    ad = {l.split()[-1]: int(l.split()[0], 16) for l in sym.splitlines() if " L_" in l}
    if cfg.code_pf:
        cfg.pf_last = (ad["L_codeend"] - ad["L_pc"] - 64) // 128
        cfg.pf_n = (cfg.pf_last + 112) // 112
    cfg.verbose = vb
    open(out, "w").write(build())
    print(out, "code bytes", ad["L_codeend"], "aux at", ad["L_aux"], "stamps:", stamp_names)
```

```python
import sys, math, re
from fw import *
import fw
KNAME = "gated_mix__ssm_conv_h3__swiglu_ffn__prompt_kernel"

class Cfg: pass
cfg = Cfg()
cfg.stamps = False; cfg.pass_stamps = False; cfg.verbose = False; cfg.header = True; cfg.fixdur = 0
cfg.PD = 5; cfg.NXR = 8; cfg.pair = 2; cfg.bud = 24
cfg.code_pf = True; cfg.n_pre = 9; cfg.nosync = False
cfg.rot_c = True; cfg.rot_t = True; cfg.rot_g = True
cfg.pl_at = -1; cfg.pc0 = 10; cfg.pc1 = 70; cfg.bud1 = 28; cfg.z_load = 80; cfg.z_chk = 104; cfg.x_touch = 0; cfg.align = True; cfg.sync_start = False; cfg.gq_sh = 0; cfg.gq_mul = 2; cfg.wd_touch = -2; cfg.warm = True; cfg.stub_at = []; cfg.late_pos = 50; cfg.p_arr = 9; cfg.pst_at = 80; cfg.aux_sk = False; cfg.p_first = True; cfg.sk_at = -1; cfg.hv_at = 50; cfg.c_rd_end = 66; cfg.sleep = 2
cfg.p_load = 188; cfg.p_chk = 208; cfg.hw0 = 100; cfg.hw1 = 186
cfg.g_arrive = 44; cfg.g_poll = 92; cfg.g_chk = 112; cfg.nh_c = 7; cfg.nh_e = 6; cfg.nwd_t = 5; cfg.g_wd_end = 104
cfg.g2_hpace = 2.0; cfg.g2_arrive = 16; cfg.g2_poll = 44; cfg.g2_chk = 60; cfg.g2_pre = 84
cfg.sc_out = ""; cfg.aux_pf = False; cfg.touch = False; cfg.s_early = True; cfg.rt = False; cfg.trace = False; cfg.start_stamps = False

WS_FLAG = 0x0; WS_G = 0x20000; WS_UR = 0x100000; WS_YT = 0x300000; WS_H = 0x500000
WS_STAMP = 0xC00000; WS_SIZE = 0xD00000
NQ = 1835008; NW = 1605632
XB = 4096
SLOT = 28672; PIECE = 7168
HC = 4 * SLOT; CPY = 4160; HCCH = 4 * CPY
UL = HC + 2 * HCCH; UCH = 4608
LDS_BYTES = 163840
YL = HC; QL = HC + 8192
assert UL + 2 * UCH <= LDS_BYTES
X, WG, WU, WD, SK, WS, OUT = ["s[%d:%d]" % (b, b + 3) for b in (4, 8, 12, 16, 20, 24, 28)]
pWS = "s[24:25]"; pDBG = "s[32:33]"; pD = "s[34:35]"
sW = "s36"; sT0 = "s37"; sT1 = "s38"; sT2 = "s39"
sCH = ["s%d" % (40 + i) for i in range(7)]
sWC = ["s%d" % (47 + i) for i in range(7)]
sTO = ["s%d" % (54 + i) for i in range(8)]
sHG = sWC
sM0P = "s68"; sXB = "s69"; sWB = "s70"; sDB = "s71"; sHS = "s72"; sHL = ["s73", "s74"]
sNL2E = "s75"; sSO = "s76"; sSO2 = "s77"; sD = "s78"; sI2 = "s79"; sCT = "s80"; sKH = "s81"
sCNT = "s82"; sM = "s83"; sMASK = "s84"; sRG = "s85"
sDG = ["s%d" % (86 + i) for i in range(7)]
sPV = "s93"; sFQ = "s62"; sXBc = "s63"; sFL = "s67"; sONE = "s66"; sU = "s65"; sPA = "s64"
STAMP_REGS = {'issued': 0, 'setup': 96, 'pdone': 94, 'prewait': 74, 'karg': 72, 'g1start': 34, 'p1end': 12, 'T5': 96, 'T6': 8, 'T7': 10, 'prepoll': 94, 'zpre': 96, 'zpost': 8, 'g1end': 14, 'cstart': 40, 'c_pre': 42, 'c_post': 44, 'g2start': 54, 'g2_pre': 56, 'g2_post': 58, 'g2end': 60}

def v(i, n=1): return "v%d" % i if n == 1 else "v[%d:%d]" % (i, i + n - 1)
def a(i, n=1): return "a%d" % i if n == 1 else "a[%d:%d]" % (i, i + n - 1)
def lines(t): return [l.strip() for l in t.split("\n") if l.strip()]

stamp_names = []
def stamp(name):
    if not cfg.stamps or cfg.stamps == 'min': return []
    if cfg.trace and STAMP_REGS[name] in (94, 96): return []
    stamp_names.append(name); r = STAMP_REGS[name]
    return [Ins("%s s[%d:%d]" % ("s_memrealtime" if cfg.rt else "s_memtime", r, r + 1))]

slow_paths = []
trace_names = []
TR_S = [94, 96, 8, 12]
def add_trace(G, every, name, regs):
    if not cfg.trace: return
    k = 0
    for g in range(0, G.n - 3, every):
        i = len(trace_names); trace_names.append("%s%d" % (name, g)); r = regs[k % len(regs)]; k += 1
        G.f[g].insert(0, Ins("s_memtime s[%d:%d]" % (r, r + 1)))
        G.f[min(g + (3 if G.n != 144 else 6), G.n - 1)].append("v_writelane_b32 v%d, s%d, %d" % (254 + i // 64, r, i % 64))
vARR = 43; vONE = 0; vP8 = 38; vP7 = 39; vPV = 33; vZERO = 44
def poll_text(kind, off):
    if kind == "z": return f"global_load_dword {v(vPV)}, {v(vZERO)}, {pDBG} sc1"
    if kind == "za": return f"global_load_dword {v(vPV)}, {v(vZERO)}, {pDBG} sc1"
    return f"buffer_load_dword {v(vPV)}, {v(vP7 if kind == 'h' else vP8)}, {WS}, {off} offen sc1"
def poll_load(kind, off):
    return [] if cfg.nosync else [poll_text(kind, off)]
def poll_check(kind, off):
    if cfg.nosync: return []
    slow_paths.append((kind, off))
    return [f"v_cmp_gt_u32 vcc, {32 if kind[0] == 'z' else 1}, {v(vPV)}", f"s_cbranch_vccnz L_slow_{kind}\n L_back_{kind}:"]
def emit_slow_paths():
    t = []
    for kind, off in slow_paths:
        t += [f"L_slow_{kind}:", f"s_mov_b32 {sCNT}, 0", f"L_spin_{kind}:", f"s_sleep {cfg.sleep}", poll_text(kind, off),
              f"s_add_u32 {sCNT}, {sCNT}, 1", f"s_cmp_gt_u32 {sCNT}, 0x40000", "s_waitcnt vmcnt(0)", f"s_cbranch_scc1 L_back_{kind}",
              f"v_cmp_gt_u32 vcc, {32 if kind[0] == 'z' else 1}, {v(vPV)}", f"s_cbranch_vccnz L_spin_{kind}", f"s_branch L_back_{kind}"]
    return "\n".join(l if l.endswith(":") else "    " + l for l in t)
arr_n = [0]
def arrive(tag, off, bar=True):
    pre = [Ins("s_barrier")] if bar else []
    if cfg.nosync: return pre
    return ([WaitTag('vm', tag)] if bar else []) + pre + [f"buffer_store_dword {v(vONE)}, {v(vARR)}, {WS}, {off} offen sc1"]

def sb(reg): return int(reg[2:reg.index(':')])
def srd_hi(reg, size): return ["s_mov_b32 s%d, 0x%x" % (sb(reg) + 2, size), "s_mov_b32 s%d, 0x20000" % (sb(reg) + 3)]
def ldptr(reg, off): return "s_load_dwordx2 s[%d:%d], s[0:1], %d" % (sb(reg), sb(reg) + 1, off)
def rot_next(r): return [f"s_add_u32 {r}, {r}, 1", f"s_cmp_eq_u32 {r}, 7\n s_cselect_b32 {r}, 0, {r}"]
def mod7(r): return lines(f"s_mul_i32 s3, {r}, 37\n s_lshr_b32 s3, s3, 8\n s_mul_i32 s3, s3, 7\n s_sub_u32 {r}, {r}, s3")

def code_prefetch(P):
    if not cfg.code_pf: return
    P.e(f"""
        s_getpc_b64 s[38:39]
        L_pc:
        s_lshr_b32 s3, s2, 3
        s_lshl_b32 s3, s3, 2
        s_add_u32 s3, s3, {sW}
        s_mul_i32 s3, s3, {cfg.pf_n}
        v_min_u32 v2, {cfg.pf_n-1}, v1
        v_add_u32 v2, s3, v2
        v_min_u32 v2, {cfg.pf_last}, v2
        v_lshlrev_b32 v2, 7, v2
        v_mov_b32 v3, s39
        v_add_co_u32 v2, vcc, s38, v2
        v_addc_co_u32 v3, vcc, 0, v3, vcc
        global_load_dword v255, v[2:3], off
        """)

def gen_main(P):
    PD = cfg.PD; NXR = cfg.NXR
    VL = 1
    VX = [2, 3, 4, 9]; VWg = [5, 6]; VWu = [7, 8]; VSK = [10, 11, 12]; VD = [13, 14, 15, 16]
    XR = [[17, 18, 19, 20], [21, 22, 23, 24]]; WR = [25, 26, 27]; DR = [[28, 29], [30, 31]]
    V16 = 32; T0 = 33; T1 = 34; T2 = 35; T3 = 36; VHZ = 37; CA = 40; CB = 41; VHW = 42; VZ = 44
    ACC = [48, 64, 80, 96]; XRING = 112; ET = 144; PK = [148, 152]; HR = 160; HCP = 176
    assert XRING + 4 * NXR <= ET
    sX = sSO; sQ7 = sSO2; sR = sCNT
    code_prefetch(P)
    P.e(f"""
    s_and_b32 {sX}, s2, 7
    s_lshr_b32 {sT1}, s2, 3
    s_mul_i32 {sQ7}, {sT1}, 37
    s_lshr_b32 {sQ7}, {sQ7}, 8
    s_mul_i32 s3, {sQ7}, 7
    s_sub_u32 {sCT}, {sT1}, s3
    s_lshl_b32 s3, {sX}, 2
    s_add_u32 {sI2}, s3, {sQ7}
    s_and_b32 s3, {sX}, 4
    s_add_u32 {sT2}, s3, {sQ7}
    s_and_b32 {sT0}, {sX}, 3
    s_mul_i32 {sT1}, {sT0}, 7
    s_add_u32 {sT1}, {sT1}, {sCT}
    s_mul_i32 {sM0P}, {sW}, {PIECE}
    s_mul_i32 {sXB}, {sT2}, {256*896}
    s_add_u32 {sXB}, {sXB}, {sM0P}
    s_mul_i32 {sWB}, {sW}, {16*3584}
    s_lshl_b32 s3, {sT1}, 7
    s_add_u32 {sWB}, {sWB}, s3
    s_lshl_b32 {sRG}, {sQ7}, 1
    s_add_u32 {sRG}, {sRG}, {sCT}
    s_lshr_b32 s3, {sX}, 2
    s_add_u32 {sR}, {sRG}, s3
    """)
    P.add(mod7(sR) if cfg.rot_c else f"s_mov_b32 {sR}, 0")
    def ch_tab(i):
        L = lines(f"s_lshl_b32 s3, {sR}, 7\n s_add_u32 {sCH[i]}, s3, {sXB}\n s_mul_i32 s3, {sR}, {64*3584}\n s_add_u32 {sWC[i]}, s3, {sWB}")
        return L + (rot_next(sR) if i < 6 else [])
    def to_tab(t):
        if cfg.rot_t: return lines(f"s_lshl_b32 s3, {sT0}, 1\n s_add_u32 s3, s3, {t}\n s_and_b32 s3, s3, 7\n s_mul_i32 {sTO[t]}, s3, 28672")
        return [f"s_mov_b32 {sTO[t]}, {28672*t}"]
    for i in range(2): P.add(ch_tab(i))
    for t in range(3): P.add(to_tab(t))
    P.add(srd_hi(X, NQ + XB) + srd_hi(WG, NW) + srd_hi(WU, NW))
    P.e(f"""
    v_lshrrev_b32 {v(T0)}, 3, {v(VL)}
    v_and_b32 {v(T1)}, 7, {v(VL)}
    v_lshrrev_b32 {v(T2)}, 4, {v(VL)}
    s_lshl_b32 s3, {sW}, 2
    v_add_u32 {v(T3)}, s3, {v(T2)}
    v_and_b32 {v(T3)}, 7, {v(T3)}
    v_xor_b32 {v(T3)}, {v(T1)}, {v(T3)}
    v_lshlrev_b32 {v(T3)}, 4, {v(T3)}
    v_mul_u32_u24 {v(VX[0])}, 896, {v(T0)}
    v_add_u32 {v(T3)}, {XB}, {v(T3)}
    v_add_u32 {v(VX[0])}, {v(VX[0])}, {v(T3)}
    v_add_u32 {v(VX[1])}, -1024, {v(VX[0])}
    v_add_u32 {v(VX[2])}, -2048, {v(VX[0])}
    v_and_b32 {v(T2)}, 1, {v(T2)}
    v_lshlrev_b32 {v(T2)}, 1, {v(T2)}
    v_xor_b32 {v(T3)}, {v(T1)}, {v(T2)}
    v_lshlrev_b32 {v(T3)}, 4, {v(T3)}
    v_mul_u32_u24 {v(VWg[0])}, 3584, {v(T0)}
    v_add_u32 {v(VWg[0])}, {v(VWg[0])}, {v(T3)}
    v_add_u32 {v(VWg[1])}, {28672-1024}, {v(VWg[0])}
    v_xor_b32 {v(VWu[0])}, 64, {v(VWg[0])}
    v_add_u32 {v(VWu[1])}, {28672-1024}, {v(VWu[0])}
    """)
    if cfg.start_stamps: P.add(stamp("prewait"))
    P.e("s_waitcnt lgkmcnt(0)")
    if cfg.start_stamps: P.add(stamp("karg")); P.e("s_waitcnt lgkmcnt(0)\n v_mov_b32 v156, s74\n v_mov_b32 v157, s72")
    P.e(f"""
    s_sub_u32 s4, s4, {XB}
    s_subb_u32 s5, s5, 0
    """)
    def dma_item(i):
        sl = (i % 4) * SLOT; tag = "it%d" % i; L = []
        xl = lambda T, c, u, pre="": [pre + f"s_add_u32 {sSO}, {sCH[c]}, {sTO[T]}", Ins(f"buffer_load_dwordx4 {v(VX[u])}, {X}, {sSO} offen offset:{1024*u} lds", tag)]
        if i < 7:
            L.append([f"s_add_u32 m0, {sM0P}, {sl+3072}", Ins(f"buffer_load_dwordx4 {v(VWg[0])}, {WG}, {sWC[i]} offen offset:0 lds", tag)])
            L.append(Ins(f"buffer_load_dwordx4 {v(VWg[1])}, {WG}, {sWC[i]} offen offset:1024 lds", tag))
            L.append([f"s_add_u32 m0, {sM0P}, {sl+5120}", Ins(f"buffer_load_dwordx4 {v(VWu[0])}, {WU}, {sWC[i]} offen offset:0 lds", tag)])
            L.append(Ins(f"buffer_load_dwordx4 {v(VWu[1])}, {WU}, {sWC[i]} offen offset:1024 lds", tag))
            for rt in range(3): L.append(xl(rt, i, rt, f"s_add_u32 m0, {sM0P}, {sl}\n" if rt == 0 else ""))
        else:
            T = i - 4
            for k in range(7): L.append(xl(T, k, k % 4, f"s_add_u32 m0, {sM0P}, {sl+1024*k}\n" if k % 4 == 0 else ""))
        return L
    first = dma_item(0) + dma_item(1)
    P.add(first[:cfg.n_pre]); late_first = first[cfg.n_pre:]
    if not cfg.pass_stamps: P.add(stamp("issued"))
    P.e(f"""
    s_lshl_b32 s3, s2, 2
    s_load_dword {sD}, {pD}, s3
    v_lshlrev_b32 {v(T3)}, 1, {v(T2)}
    v_xor_b32 {v(T3)}, {v(T1)}, {v(T3)}
    v_lshlrev_b32 {v(T3)}, 4, {v(T3)}
    v_mul_u32_u24 {v(VD[0])}, 896, {v(T0)}
    v_add_u32 {v(VD[0])}, {v(VD[0])}, {v(T3)}
    v_add_u32 {v(VX[3])}, -3072, {v(VX[0])}
    v_and_b32 {v(T0)}, 31, {v(VL)}
    v_lshrrev_b32 {v(T1)}, 3, {v(T0)}
    v_mul_u32_u24 {v(T1)}, {PIECE}, {v(T1)}
    v_and_b32 {v(T2)}, 7, {v(T0)}
    v_lshl_add_u32 {v(T1)}, {v(T2)}, 7, {v(T1)}
    v_lshrrev_b32 {v(T2)}, 1, {v(T0)}
    v_and_b32 {v(T2)}, 7, {v(T2)}
    v_lshrrev_b32 {v(T3)}, 5, {v(VL)}
    v_xor_b32 {v(T2)}, {v(T2)}, {v(T3)}
    v_lshl_add_u32 {v(XR[0][0])}, {v(T2)}, 4, {v(T1)}
    """)
    for k in range(1, 4): P.e(f"v_xor_b32 {v(XR[0][k])}, {32*k}, {v(XR[0][0])}")
    for k in range(4): P.e(f"v_add_u32 {v(XR[1][k])}, {3*SLOT}, {v(XR[0][k])}")
    P.e(f"""
    v_bfe_u32 {v(T0)}, {v(VL)}, 2, 2
    v_lshl_add_u32 {v(T1)}, {v(T3)}, 3, {v(T0)}
    v_lshlrev_b32 {v(T1)}, 7, {v(T1)}
    v_bfe_u32 {v(T2)}, {v(VL)}, 1, 1
    v_lshl_add_u32 {v(T1)}, {v(T2)}, 11, {v(T1)}
    v_lshlrev_b32 {v(T2)}, 1, {v(T2)}
    v_lshrrev_b32 {v(T0)}, 1, {v(T0)}
    v_add_u32 {v(T2)}, {v(T2)}, {v(T0)}
    v_xor_b32 {v(T2)}, {sW}, {v(T2)}
    v_lshl_add_u32 {v(T1)}, {v(T2)}, 5, {v(T1)}
    v_bfe_u32 {v(T2)}, {v(VL)}, 4, 1
    v_lshl_add_u32 {v(T1)}, {v(T2)}, 4, {v(T1)}
    v_and_b32 {v(T2)}, 1, {v(VL)}
    v_lshl_add_u32 {v(T1)}, {v(T2)}, 3, {v(T1)}
    v_add_u32 {v(WR[0])}, 3072, {v(T1)}
    v_add_u32 {v(WR[1])}, {2*SLOT}, {v(WR[0])}
    """)
    for i in range(2, 7): P.add(ch_tab(i))
    for t in range(3, 8): P.add(to_tab(t))
    S = []
    S += lines(f"""
    v_bfe_u32 {v(T1)}, {v(VL)}, 2, 2
    v_lshl_add_u32 {v(T1)}, {v(T3)}, 2, {v(T1)}
    v_lshlrev_b32 {v(T1)}, 7, {v(T1)}
    s_lshr_b32 s3, {sW}, 1
    v_xor_b32 {v(T2)}, s3, {v(T0)}
    v_lshl_add_u32 {v(T1)}, {v(T2)}, 6, {v(T1)}
    v_bfe_u32 {v(T2)}, {v(VL)}, 4, 1
    v_lshl_add_u32 {v(T1)}, {v(T2)}, 5, {v(T1)}
    v_and_b32 {v(T2)}, 3, {v(VL)}
    v_lshl_add_u32 {v(T1)}, {v(T2)}, 3, {v(T1)}
    v_add_u32 {v(DR[0][0])}, {sM0P}, {v(T1)}
    v_xor_b32 {v(DR[0][1])}, 64, {v(DR[0][0])}
    v_add_u32 {v(DR[1][0])}, {2*SLOT}, {v(DR[0][0])}
    v_add_u32 {v(DR[1][1])}, {2*SLOT}, {v(DR[0][1])}
    v_add_u32 {v(VD[1])}, 6144, {v(VD[0])}
    v_add_u32 {v(VD[2])}, {2*6144}, {v(VD[0])}
    v_add_u32 {v(VD[3])}, {3*6144}, {v(VD[0])}
    v_lshlrev_b32 {v(V16)}, 4, {v(VL)}
    s_mul_i32 s3, {sT2}, 28
    s_add_u32 s3, s3, {sT1}
    s_add_u32 s3, s3, 256
    s_lshl_b32 {sFL}, s3, 7
    v_mov_b32 {v(vARR)}, -16
    v_cmp_eq_u32 vcc, 0, v0
    v_min_u32 {v(vP8)}, 7, {v(VL)}
    v_min_u32 {v(vP7)}, 6, {v(VL)}
    v_cndmask_b32 {v(vARR)}, {v(vARR)}, 0, vcc
    v_mov_b32 {v(vONE)}, 1
    s_lshl_b32 s3, {sW}, 3
    v_add_lshl_u32 {v(vP8)}, {v(vP8)}, s3, 7
    s_mul_i32 s3, {sW}, 7
    v_add_lshl_u32 {v(vP7)}, {v(vP7)}, s3, 7
    s_mul_i32 {sWB}, {sT2}, {8*112}
    s_lshl_b32 s3, {sT1}, 2
    s_add_u32 {sWB}, {sWB}, s3
    s_add_u32 {sWB}, {sWB}, {sW}
    s_lshl_b32 {sWB}, {sWB}, 10
    s_add_u32 {sWB}, {sWB}, {WS_H}
    s_mul_i32 {sDB}, {sW}, {448*896}
    s_lshl_b32 s3, {sCT}, 7
    s_add_u32 {sDB}, {sDB}, s3
    s_and_b32 s3, s2, 7
    s_add_u32 {sRG}, {sCT}, s3
    s_and_b32 s3, {sI2}, 3
    s_lshr_b32 s3, s3, {cfg.gq_sh}
    s_mul_i32 s3, s3, {cfg.gq_mul}
    s_add_u32 {sRG}, {sRG}, s3
    """)
    S += mod7(sRG) if cfg.rot_g else [f"s_mov_b32 {sRG}, 0"]
    S += [f"s_mov_b32 {sR}, {sRG}"]
    for i in range(7):
        S += [f"s_mul_i32 s3, {sR}, 57344", f"s_add_u32 {sDG[i]}, s3, {sDB}"] + (rot_next(sR) if i < 6 else [])
    S += srd_hi(WD, NW) + srd_hi(WS, WS_SIZE) + srd_hi(SK, 4096) + srd_hi(OUT, NQ)
    S += lines(f"""
    s_lshr_b32 {sT2}, {sW}, 1
    s_and_b32 {sKH}, {sW}, 1
    s_lshl_b32 {sM}, s2, 1
    s_add_u32 {sM}, {sM}, {sT2}
    s_lshl_b32 s3, {sM}, 12""") + [f"s_add_u32 s20, s20, s3\n s_addc_u32 s21, s21, 0"] + lines(f"""
    s_mov_b32 {sNL2E}, 0xbfb8aa3b
    s_mov_b32 {sMASK}, 0xffff0000
    s_mov_b32 {sONE}, 1
    """)
    S2 = lines(f"""
    s_mov_b32 {sHS}, {sWB}
    s_lshl_b32 {sU}, {sKH}, 11
    v_add_u32 {v(VSK[0])}, {sU}, {v(V16)}
    v_add_u32 {v(VSK[1])}, -16, {v(VSK[0])}
    v_add_u32 {v(VSK[2])}, 1008, {v(VSK[0])}
    s_mul_i32 {sT0}, {sT2}, {HCCH}
    s_add_u32 {sT0}, {sT0}, {HC}
    s_mul_i32 {sT1}, {sT2}, {UCH}
    s_add_u32 {sT1}, {sT1}, {UL}
    s_add_u32 s3, {sU}, {sT0}
    s_add_u32 s3, s3, 32
    v_add_u32 {v(VHW)}, s3, {v(V16)}
    v_and_b32 {v(T0)}, 15, {v(VL)}
    v_lshrrev_b32 {v(T1)}, 4, {v(VL)}
    v_sub_u32 {v(T2)}, 3, {v(T0)}
    v_and_b32 {v(T2)}, 3, {v(T2)}
    v_add3_u32 {v(T3)}, {v(T0)}, {v(T2)}, 1
    v_lshl_add_u32 {v(T3)}, {v(T1)}, 3, {v(T3)}
    v_lshlrev_b32 {v(T3)}, 1, {v(T3)}
    v_mul_u32_u24 {v(T2)}, {CPY}, {v(T2)}
    s_lshl_b32 s3, {sKH}, 8
    s_add_u32 {sT0}, {sT0}, s3
    v_add3_u32 {v(CA)}, {v(T2)}, {v(T3)}, {sT0}
    v_lshlrev_b32 {v(T0)}, 5, {v(T0)}
    v_lshlrev_b32 {v(T1)}, 4, {v(T1)}
    v_sub_u32 {v(T1)}, {v(T1)}, {v(T0)}
    s_add_u32 s3, s3, {sT1}
    s_add_u32 s3, s3, 480
    v_add_u32 {v(CB)}, s3, {v(T1)}
    s_add_u32 {sPA}, {sT1}, {sU}
    s_lshl_b32 s3, {sM}, 12
    s_add_u32 {sU}, {sU}, s3
    v_mov_b32 {v(VZ)}, 0
    v_mov_b32 {v(VZ+1)}, 0
    v_mov_b32 {v(VZ+2)}, 0
    v_mov_b32 {v(VZ+3)}, 0
    v_lshrrev_b32 {v(T0)}, 5, {v(VL)}
    v_mul_u32_u24 {v(T0)}, {UCH}, {v(T0)}
    v_and_b32 {v(T1)}, 31, {v(VL)}
    v_lshl_add_u32 {v(T0)}, {v(T1)}, 4, {v(T0)}
    v_add_u32 {v(T0)}, {UL+4096}, {v(T0)}
    ds_write_b128 {v(T0)}, {v(VZ,4)}
    v_and_b32 {v(T0)}, 15, {v(VL)}
    v_lshrrev_b32 {v(T1)}, 1, {v(T0)}
    v_mul_u32_u24 {v(T1)}, {CPY}, {v(T1)}
    v_and_b32 {v(T0)}, 1, {v(T0)}
    v_lshl_add_u32 {v(T0)}, {v(T0)}, 4, {v(T1)}
    v_add_u32 {v(VHZ)}, {HC}, {v(T0)}
    s_lshl_b32 s3, {sI2}, 1
    s_add_u32 {sT0}, s3, {sKH}
    s_xor_b32 {sT1}, {sT0}, 1
    s_mul_i32 {sT0}, {sT0}, 112
    s_mul_i32 {sT1}, {sT1}, 112
    s_mul_i32 s3, {sW}, 28
    s_add_u32 {sT0}, {sT0}, s3
    s_add_u32 {sT1}, {sT1}, s3
    s_lshl_b32 {sT0}, {sT0}, 10
    s_lshl_b32 {sT1}, {sT1}, 10
    s_add_u32 {sHL[0]}, {sT0}, {WS_H}
    s_add_u32 {sHL[1]}, {sT1}, {WS_H}
    """)
    skl = [f"buffer_load_dwordx4 {v(HR,4)}, {v(VSK[1])}, {SK}, 0 offen", f"buffer_load_dwordx4 {v(HR+4,4)}, {v(VSK[0])}, {SK}, 0 offen",
           f"buffer_load_dwordx4 {v(HR+8,4)}, {v(VSK[2])}, {SK}, 0 offen", f"buffer_load_dwordx4 {v(HR+12,4)}, {v(VSK[0])}, {SK}, 0 offen offset:1024"]

    NG = 224
    G = Gaps(NG)
    def item_start(i): return 12 * i if i <= 7 else 84 + 28 * (i - 7)
    gT = lambda T: item_start(T + 4)
    def xread(g):
        if g < 84: c = g // 12; ks = (g % 12) // 3; unit = g % 3; it = c
        else: it = 7 + (g - 84) // 28; k = (g - 84) % 28; ks = k % 4; unit = k // 4
        sl = it % 4; hi = 1 if sl >= 3 else 0
        off = (sl - 3 * hi) * SLOT + 1024 * unit
        return f"ds_read_b128 {v(XRING+4*(g%NXR),4)}, {v(XR[hi][ks])} offset:{off}"
    def wread(c, ks):
        sl = c % 4; var = sl // 2; off = (sl - 2 * var) * SLOT + PIECE * ks; f = 4 * (4 * c + ks)
        return [f"ds_read_b64_tr_b16 {a(f+2*rd,2)}, {v(WR[var])} offset:{off+512*rd}" for rd in range(2)]
    tile_acc = {0: 0, 1: 1, 2: 2, 3: 3, 4: 0, 5: 1, 6: 2, 7: 3}
    for g in range(NG):
        if g < 84: c = g // 12; ks = 4 * c + (g % 12) // 3; T = g % 3
        else: T = 3 + (g - 84) // 28; ks = (g - 84) % 28
        A = v(ACC[tile_acc[T]], 16)
        G.m[g] = f"v_mfma_f32_32x32x16_bf16 {A}, {a(4*ks,4)}, {v(XRING+4*(g%NXR),4)}, {'0' if ks == 0 else A}"
    pre = []
    def at(g, item):
        if g < 0: pre.append(item)
        else: G.put(g, item)
    gB = lambda i: item_start(i) - PD - 1
    G.put(cfg.p_load, poll_load("p", "0"))
    G.put(cfg.p_chk, [stamp("prepoll") if not (cfg.pass_stamps or cfg.start_stamps) else [], poll_check("p", "0"), Ins("s_barrier")])
    for i in range(12):
        at(gB(i), [WaitTag('vm', "it%d" % i), Ins("s_barrier")])
    assert cfg.z_chk < cfg.p_load
    if cfg.wd_touch >= 0: G.put(cfg.wd_touch, f"buffer_load_dword {v(202)}, {v(200)}, {WD}, 0 offen")
    G.put(cfg.z_load, poll_load("z", None))
    G.f[cfg.z_chk].insert(0, [stamp("zpre") if not (cfg.pass_stamps or cfg.start_stamps) else [], poll_check("z", None), stamp("zpost") if not (cfg.pass_stamps or cfg.start_stamps) else []])
    for g in range(NG):
        if g < 84 and g % 3 == 0:
            for s_ in wread(g // 12, (g % 12) // 3): at(g - PD - 1, s_)
        at(g - PD - 1, xread(g))
    for c in range(7): G.spread(dma_item(c + 2), max(gB(c) + 1, 0), gB(c + 1) + 1)
    for T in range(3, 8): G.put(gT(T), Ins("s_barrier"))
    G.spread(dma_item(9) + dma_item(10), gB(7) + 1, gB(8) + 1)
    G.spread(dma_item(11), gT(4) + 1, gT(4) + 20)
    if cfg.sk_at >= 0: G.spread(skl, cfg.sk_at, cfg.sk_at + 8)
    hv = []
    for rho in range(2):
        R = HR + 8 * rho; C_ = HCP + 12 * rho
        for k in range(4): hv.append(f"v_alignbit_b32 {v(C_+k)}, {v(R+4+k)}, {v(R+3+k)}, 16")
        for k in range(4): hv.append(f"v_mov_b32 {v(C_+4+k)}, {v(R+3+k)}")
        for k in range(4): hv.append(f"v_alignbit_b32 {v(C_+8+k)}, {v(R+3+k)}, {v(R+2+k)}, 16")
    hw = [Ins(f"ds_write_b128 {v(VHZ)}, {v(VZ,4)}", "hcw")]
    for rho in range(2):
        R = HR + 8 * rho; C_ = HCP + 12 * rho
        for cpy, src in enumerate((R + 4, C_, C_ + 4, C_ + 8)):
            hw.append(Ins(f"ds_write_b128 {v(VHW)}, {v(src,4)} offset:{cpy*CPY+1024*rho}", "hcw"))
    def epi(T, packed=False):
        A = ACC[tile_acc[T]]; Pk = PK[T % 2]; L = []
        for grp in range(2):
            g_ = A + 8 * grp; u_ = g_ + 4; E = ET
            if packed:
                E = ET if grp == 0 else HR
                L += [f"v_mul_f32 {v(E+i)}, {sNL2E}, {v(g_+i)}" for i in range(4)]
                L += [f"v_exp_f32 {v(E+i)}, {v(E+i)}" for i in range(4)]
                L += [f"v_pk_mul_f32 {v(u_+2*i,2)}, {v(g_+2*i,2)}, {v(u_+2*i,2)}" for i in range(2)]
                L += [f"v_pk_add_f32 {v(E+2*i,2)}, {v(E+2*i,2)}, 1.0 op_sel_hi:[1,0]" for i in range(2)]
                L += [f"v_rcp_f32 {v(E+i)}, {v(E+i)}" for i in range(4)]
                L += [f"v_pk_mul_f32 {v(u_+2*i,2)}, {v(u_+2*i,2)}, {v(E+2*i,2)}" for i in range(2)]
            else:
                L += [f"v_mul_f32 {v(E+i)}, {sNL2E}, {v(g_+i)}" for i in range(4)]
                L += [f"v_exp_f32 {v(E+i)}, {v(E+i)}" for i in range(4)]
                L += [f"v_mul_f32 {v(u_+i)}, {v(g_+i)}, {v(u_+i)}" for i in range(2)]
                L += [f"v_add_f32 {v(E+i)}, 1.0, {v(E+i)}" for i in range(4)]
                L += [f"v_rcp_f32 {v(E+i)}, {v(E+i)}" for i in range(4)]
                L += [f"v_mul_f32 {v(u_+i)}, {v(g_+i)}, {v(u_+i)}" for i in range(2, 4)]
                L += [f"v_mul_f32 {v(u_+i)}, {v(u_+i)}, {v(E+i)}" for i in range(4)]
            L += [f"v_cvt_pk_bf16_f32 {v(Pk+2*grp+i)}, {v(u_+2*i)}, {v(u_+2*i+1)}" for i in range(2)]
        L.append(f"s_lshl2_add_u32 {sSO2}, {sTO[T]}, {sHS}")
        L.append(Ins(f"buffer_store_dwordx4 {v(Pk,4)}, {v(V16)}, {WS}, {sSO2} offen sc1", "hst"))
        return L
    page_slot = [0, 1, 2, 3]
    def wd_page(n): return n if n < 21 else (n - 21 if n < 28 else (n - 7 if n < 35 else (n - 28 if n < 49 else n - 49)))
    def wd_prev(n): return n - 21 if 21 <= n < 28 else (n - 28 if n >= 35 else None)
    def wd_dma(n0, n1):
        L = []; n = n0
        while n < n1:
            p = wd_page(n); cnt = min(4, n1 - n, 7 - p % 7, 8 - n % 8)
            lds = page_slot[p // 7] * SLOT + 1024 * (p % 7)
            for k in range(cnt):
                it = [Ins(f"buffer_load_dwordx4 {v(VD[k])}, {WD}, {sSO} offen offset:{1024*k} lds", "wd%d" % (n + k))]
                if wd_prev(n + k) is not None: it = [WaitTag('lgkm', "wr%d" % wd_prev(n + k))] + it
                if k == 0: L.append(f"s_add_u32 m0, {sM0P}, {lds}\n s_add_u32 {sSO}, {sDG[n >> 3]}, {7168*(n % 8)}")
                L.append(it)
            n += cnt
        return L
    def wd_read(n, dst):
        p = wd_page(n); sl = page_slot[p // 7]; hi = 1 if sl >= 2 else 0
        off = (sl - 2 * hi) * SLOT + 1024 * (p % 7)
        return [[WaitTag('vm', "wd%d" % n)] * (dt == 0) + [Ins(f"ds_read_b64_tr_b16 {dst(dt)}, {v(DR[hi][dt])} offset:{off}", "wr%d" % n)] for dt in range(2)]
    WD1 = 112
    def wd1(n): return lambda dt: a(WD1 + 8 * (n >> 1) + 4 * dt + 2 * (n & 1), 2)
    def wd_reads(n0, n1): return [x for n in range(n0, n1) for x in wd_read(n, wd1(n))]
    lh = G.pour(hv, cfg.hv_at, 80, cfg.bud1); assert lh < 84
    G.spread(hw, cfg.hw0, cfg.hw1)
    G.spread(wd_dma(0, 7), gT(5) + 1, gT(5) + 24)
    G.spread(wd_dma(7, 14), gT(6) + 1, gT(6) + 20)
    UD = ([f"s_mov_b32 m0, {sPA}\n s_add_u32 {sSO}, {sU}, {WS_UR}"] + [Ins(f"buffer_load_dwordx4 {v(V16)}, {WS}, {sSO} offen offset:{1024*j} sc1 lds", "u") for j in range(2)])
    G.spread(wd_reads(0, 7), gB(11) + 2, gT(7) + 12)
    G.spread(wd_dma(14, 21), gT(7) + 1, cfg.p_chk)
    G.put(cfg.p_chk + 1, UD)
    G.spread(wd_dma(21, 28), cfg.p_chk + 2, NG - 1)
    bounds = [84 + 2 + (140 - 4) * k // 7 for k in range(8)]
    last = 0
    for T in range(7):
        g0 = max(bounds[T], (84 if T < 3 else gT(T + 1)) + 2, last)
        last = G.pour(epi(T), g0, max(bounds[T + 1], g0 + 1), cfg.bud)
        nxt = [t for t in range(T + 1, 8) if tile_acc[t] == tile_acc[T]]
        if nxt: assert last < gT(nxt[0]), (T, last)
    check_m0(G)
    SS = S + S2; k0 = len(SS) * cfg.late_pos // 100
    touch = []
    if cfg.x_touch:
        touch = lines(f"""v_min_u32 {v(200)}, {8*cfg.x_touch-1}, {v(VL)}
        v_lshrrev_b32 {v(201)}, 3, {v(200)}
        s_lshl_b32 s3, {sFQ}, 1
        s_add_u32 s3, s3, 3
        v_add_u32 {v(201)}, {'s3' if cfg.rot_t else '3'}, {v(201)}
        v_and_b32 {v(201)}, 7, {v(201)}
        v_mul_u32_u24 {v(201)}, 28672, {v(201)}
        v_and_b32 {v(200)}, 7, {v(200)}
        v_mul_u32_u24 {v(200)}, 896, {v(200)}
        v_add3_u32 {v(200)}, {v(200)}, {v(201)}, {sXBc}
        buffer_load_dword {v(202)}, {v(200)}, {X}, {sCH[0]} offen""")
    P.e(f"s_mov_b32 {sFQ}, {sT0}\n s_mov_b32 {sXBc}, {XB}")
    P.add(SS[:k0]); P.add(late_first)
    P.add(SS[k0:])
    P.add(touch)
    P.e(f"""s_lshl_b32 s3, s2, 2
    s_add_u32 s3, s3, {sW}
    s_mul_i32 s3, s3, 14
    v_min_u32 {v(200)}, 13, {v(VL)}
    v_add_lshl_u32 {v(200)}, {v(200)}, s3, 7""")
    if cfg.sk_at < 0: P.add(skl)
    if cfg.wd_touch == -2: P.e(f"buffer_load_dword {v(202)}, {v(200)}, {WD}, 0 offen")
    if cfg.warm and cfg.stub_at:
        P.e("s_mov_b64 exec, 0")
        for k in range(min(4, len(cfg.stub_at))): P.e(f"s_cmp_eq_u32 {sW}, {k}\n s_cbranch_scc1 L_pg{k}")
        P.e("L_pgback:\n s_mov_b64 exec, -1")
    if cfg.start_stamps: P.add(stamp("setup"))
    P.e(f"""s_waitcnt lgkmcnt(0)
    s_lshl_b32 s3, {sD}, 16
    s_and_b32 {sD}, {sD}, 0xffff0000
    s_cmp_lt_u32 {sW}, 2
    s_cselect_b32 {sD}, s3, {sD}""")
    P.add(pre)
    P.add(stamp("g1start"))
    G.put(83, stamp("p1end"))
    if cfg.pass_stamps:
        for T in (5, 6, 7): G.put(gT(T) - 1, stamp("T%d" % T))
    add_trace(G, 6, 'g', [94, 96])
    G.emit(P, cfg.pair)
    if cfg.verbose: print("G1 gap costs", G.costs())
    if cfg.start_stamps: P.e("v_readfirstlane_b32 s8, v156\n v_readfirstlane_b32 s10, v157"); STAMP_REGS['prewait'] = 8; STAMP_REGS['karg'] = 10
    P.add(stamp("g1end"))
    P.vmwait("u"); P.lgwait("hcw"); P.e("s_barrier")
    CACC = 48
    def cA(buf, a_): return (0 if buf == 0 else 64) + 4 * a_
    def cB(buf, b_):
        i = 32 + 4 * b_ if buf == 0 else 96 + 4 * b_
        return i if i < 112 else 224 + (i - 112)
    def creads(st):
        buf = st & 1; L = []
        for k in range(8):
            L.append(f"ds_read_b128 {a(cB(buf,k),4)}, {v(CB)} offset:{64*st+512*(7-k)}")
            for rd in range(2): L.append(f"ds_read_b64 {a(cA(buf,k)+2*rd,2)}, {v(CA)} offset:{512*k+64*st+8*rd}")
        return L
    e7 = epi(7, True); c0 = creads(0)
    P.add(c0[:9])
    k = 0; rest = c0[9:15]; d2 = wd_dma(28, 28 + cfg.nwd_t); k2 = 0
    for j, it in enumerate(e7):
        P.add(it)
        if j % 5 == 4 and k < len(rest): P.add(rest[k]); k += 1
        if j % 5 == 1 and k2 < len(d2) and j < len(e7) - 3: P.add(d2[k2]); k2 += 1
    P.add(rest[k:]); P.add(d2[k2:])
    hg = [f"s_lshr_b32 s3, {sI2}, 2", "s_mul_i32 s3, s3, 28", f"s_add_u32 s3, s3, 256", f"s_lshl_b32 {sPA}, s3, 7"]
    for i in range(7): hg += [f"s_lshl_b32 {sHG[i]}, {sRG}, 12"] + (rot_next(sRG) if i < 6 else [])
    P.add(stamp("cstart"))
    C = Gaps(144)
    pairs = [(t, a_) for t in range(8) for a_ in range(t + 1)]
    C.spread(c0[15:], 0, 6)
    for st in range(4):
        for j, (t, a_) in enumerate(pairs):
            A = v(CACC + 4 * t, 4)
            C.m[36 * st + j] = f"v_mfma_f32_16x16x32_bf16 {A}, {a(cA(st&1,a_),4)}, {a(cB(st&1,t-a_),4)}, {'0' if (st == 0 and a_ == 0) else A}"
        if st < 3: C.spread(creads(st + 1), 36 * st + (6 if st == 0 else 1), 36 * st + 31)
    HRING = 96; NHR = 39 if cfg.trace else 40
    sHT = [sXB, sWB]
    def hload(n):
        ks = n >> 1; stl = n & 1; L = []
        if ks % 4 == 0: L.append(f"s_add_u32 {sHT[stl]}, {sHL[stl]}, {sHG[ks >> 2]}")
        L.append(f"buffer_load_dwordx4 {v(HRING+4*(n%NHR),4)}, {v(V16)}, {WS}, {sHT[stl]} offen offset:{1024*(ks%4)} sc1")
        return L
    C.pour(wd_reads(7, 28), 2, cfg.c_rd_end, 12)
    C.spread(wd_dma(28 + cfg.nwd_t, 56), 0, cfg.g_wd_end)
    C.put(cfg.g_arrive, arrive("hst", sFL))
    C.pour(hg, 46, 84, 12)
    C.put(cfg.g_poll, poll_load("h", sPA))
    C.put(cfg.g_chk, [stamp("c_pre"), poll_check("h", sPA), stamp("c_post")])
    NH = cfg.nh_c
    C.spread([hload(n) for n in range(NH)], cfg.g_chk + 1, 144)
    Y = 80; RR = 2; UU = 18; VRW = 26; VRR = 27; VUR = 37; VYS = 42
    ce = lines(f"""
    s_lshl_b32 s3, {sW}, 12
    s_add_u32 s3, s3, {HC}
    v_add_u32 {v(VRW)}, s3, {v(V16)}
    v_xor_b32 {v(VRR)}, 4096, {v(VRW)}
    v_and_b32 {v(T3)}, 15, {v(VL)}
    v_lshlrev_b32 {v(T3)}, 5, {v(T3)}
    v_lshrrev_b32 {v(T2)}, 4, {v(VL)}
    v_lshl_add_u32 {v(T3)}, {v(T2)}, 3, {v(T3)}
    s_lshr_b32 s3, {sW}, 1
    s_mul_i32 s3, s3, {UCH}
    s_lshl_b32 {sT0}, {sKH}, 11
    s_sub_u32 s3, s3, {sT0}
    s_add_u32 s3, s3, {UL+504+2048}
    v_sub_u32 {v(VUR)}, s3, {v(T3)}
    v_and_b32 {v(T1)}, 3, {v(VL)}
    v_lshlrev_b32 {v(T1)}, 4, {v(T1)}
    v_bfe_u32 {v(T3)}, {v(VL)}, 2, 2
    v_lshl_add_u32 {v(T1)}, {v(T3)}, 7, {v(T1)}
    v_bfe_u32 {v(T3)}, {v(VL)}, 4, 1
    v_lshl_add_u32 {v(T1)}, {v(T3)}, 9, {v(T1)}
    v_lshrrev_b32 {v(T3)}, 5, {v(VL)}
    v_lshl_add_u32 {v(VYS)}, {v(T3)}, 6, {v(T1)}
    s_add_u32 {sU}, {sU}, {WS_YT}
    """)
    ce += [f"ds_read_b64 {v(UU+2*tau,2)}, {v(VUR)} offset:{512*(3-tau)}" for tau in range(4)]
    DU = 80
    for tau in range(4):
        ce += lines(f"""
        v_and_b32 {v(DU+4*tau+0)}, {sMASK}, {v(UU+2*tau+1)}
        v_lshlrev_b32 {v(DU+4*tau+1)}, 16, {v(UU+2*tau+1)}
        v_and_b32 {v(DU+4*tau+2)}, {sMASK}, {v(UU+2*tau)}
        v_lshlrev_b32 {v(DU+4*tau+3)}, 16, {v(UU+2*tau)}""")
    lc = C.pour(ce, 100, 142, 8)
    check_m0(C)
    add_trace(C, 12, 'c', [94, 96])
    C.emit(P)
    if cfg.verbose: print("C gap costs", C.costs())
    hq = [hload(n) for n in range(NH, NH + cfg.nh_e)]; NH += cfg.nh_e
    def hnext():
        if hq: P.add(hq.pop(0))
    P.e("s_barrier")
    hnext()
    P.e(f"s_cmp_eq_u32 {sKH}, 0\n s_nop 3\n s_cbranch_scc1 L_cw0")
    for tau in range(4): P.e(f"ds_write_b128 {v(VRW)}, {v(CACC+4*tau,4)} offset:{1024*tau}", nocount=True)
    for k in range(16): P.e(f"v_fma_f32 {v(DU+k)}, {sD}, {v(DU+k)}, {v(CACC+16+k)}")
    P.e("s_branch L_cw1\n L_cw0:")
    for tau in range(4): P.e(f"ds_write_b128 {v(VRW)}, {v(CACC+16+4*tau,4)} offset:{1024*tau}")
    for k in range(16): P.e(f"v_fma_f32 {v(DU+k)}, {sD}, {v(DU+k)}, {v(CACC+k)}")
    P.e("L_cw1:"); hnext()
    P.e("s_waitcnt lgkmcnt(0)\n s_barrier")
    for tau in range(4): P.e(f"ds_read_b128 {v(RR+4*tau,4)}, {v(VRR)} offset:{1024*tau}")
    hnext(); hnext()
    for pi in range(2):
        for k in range(4): P.e(f"v_pk_add_f32 {v(DU+8*pi+2*k,2)}, {v(DU+8*pi+2*k,2)}, {v(RR+8*pi+2*k,2)}")
        for k in range(4): P.e(f"v_cvt_pk_bf16_f32 {v(UU+4*pi+k)}, {v(DU+8*pi+2*k)}, {v(DU+8*pi+2*k+1)}")
        hnext()
        P.e(f"v_permlane16_swap_b32 {v(UU+4*pi)}, {v(UU+4*pi+2)}\n v_permlane16_swap_b32 {v(UU+4*pi+1)}, {v(UU+4*pi+3)}")
        P.e(f"buffer_store_dwordx4 {v(UU+4*pi,4)}, {v(VYS)}, {WS}, {sU} offen offset:{1024*pi} sc1", tag="yst")
    while hq: hnext()
    P.add(stamp("g2start"))
    GACC = 0; JIT = 64; NJ = 6
    G2 = Gaps(112)
    def wfrag(ks, dt):
        if ks < 14: return a(WD1 + 8 * ks + 4 * dt, 4)
        return a(JIT + 4 * ((2 * (ks - 14) + dt) % NJ), 4)
    for ks in range(28):
        for sg in range(4):
            A = a(GACC + 16 * sg, 16)
            G2.m[4 * ks + sg] = f"v_mfma_f32_32x32x16_bf16 {A}, {wfrag(ks, sg>>1)}, {v(HRING+4*((2*ks+(sg&1))%NHR),4)}, {'0' if ks == 0 else A}"
    for ks in range(14, 28):
        for rd in range(2):
            its = wd_read(2 * ks + rd, lambda dt, ks=ks, rd=rd: a(JIT + 4 * ((2 * (ks - 14) + dt) % NJ) + 2 * rd, 2))
            for dt in range(2): G2.put(4 * ks - 7 + 2 * rd + dt, its[dt])
    gprev = 0
    for n in range(NH, 56):
        g = int((n - NH) * cfg.g2_hpace)
        if n >= NHR: g = max(4 * ((n - NHR) >> 1) + 4, g)
        g = max(g, gprev); gprev = g
        assert g < 4 * (n >> 1), (n, g)
        G2.put(g, hload(n))
    VY = [10, 11]; VQ = [12, 13]; VG = 14; VGA = 15; OMG = 16
    EW = [2, 3]; ER = [4, 5, 6]; EY = 7; EQ = [8, 9, 26, 27]; EO = 17
    red_slot = [None, 0, 1, 2]
    e1 = lines(f"""
    s_lshl_b32 s3, s2, 7
    s_add_u32 {sFL}, s3, {512*128}
    s_lshl_b32 s3, {sCT}, 12
    s_add_u32 {sPA}, s3, {512*128}
    v_lshrrev_b32 {v(T1)}, 3, {v(VL)}
    v_and_b32 {v(T2)}, 7, {v(VL)}
    v_lshlrev_b32 {v(T3)}, 12, {v(T1)}
    v_lshl_add_u32 {v(VY[0])}, {v(T2)}, 4, {v(T3)}
    v_add_u32 {v(VY[1])}, {32768-1024}, {v(VY[0])}
    v_lshrrev_b32 {v(T3)}, 4, {v(VL)}
    v_xor_b32 {v(T2)}, {v(T2)}, {v(T3)}
    v_lshlrev_b32 {v(T2)}, 4, {v(T2)}
    v_mul_u32_u24 {v(T1)}, 896, {v(T1)}
    v_add_u32 {v(VQ[0])}, {v(T1)}, {v(T2)}
    v_xor_b32 {v(T2)}, 64, {v(T2)}
    v_add_u32 {v(T1)}, {7168-1024}, {v(T1)}
    v_add_u32 {v(VQ[1])}, {v(T1)}, {v(T2)}
    s_lshl_b32 s3, {sI2}, 1
    s_add_u32 s3, s3, {sKH}
    s_lshl_b32 s3, s3, 7
    s_add_u32 s3, s3, {WS_G}
    v_and_b32 {v(T1)}, 31, {v(VL)}
    v_lshl_add_u32 {v(VGA)}, {v(T1)}, 2, s3
    s_lshl_b32 s3, {sI2}, 2
    s_add_u32 s3, s3, {sW}
    s_mul_i32 s3, s3, {16*896}
    s_lshl_b32 {sSO}, {sCT}, 7
    s_add_u32 {sSO}, {sSO}, s3
    s_add_u32 {sSO}, {sSO}, {XB}
    """)
    l1 = G2.pour(e1, 0, cfg.g2_arrive - 1, 20); assert l1 <= cfg.g2_arrive
    G2.put(cfg.g2_arrive, arrive("yst", sFL))
    qd = [f"s_lshl_b32 s3, {sW}, 11\n s_add_u32 m0, s3, {QL}"]
    qd += [Ins(f"buffer_load_dwordx4 {v(VQ[j])}, {X}, {sSO} offen offset:{1024*j} lds", "qy") for j in range(2)]
    qd += [f"buffer_load_dword {v(VG)}, {v(VGA)}, {WS}, 0 offen sc1"]
    G2.spread(qd, cfg.g2_arrive + 1, cfg.g2_arrive + 9)
    ea = [f"v_add_u32 {v(EW[0])}, {sM0P}, {v(V16)}", f"v_add_u32 {v(EW[1])}, {3*SLOT}, {v(EW[0])}"]
    for sg in range(1, 4):
        ea += [f"s_xor_b32 s3, {sW}, {sg}", f"s_mul_i32 s3, s3, {PIECE}", f"s_add_u32 s3, s3, {red_slot[sg]*SLOT}", f"v_add_u32 {v(ER[sg-1])}, s3, {v(V16)}"]
    ea += lines(f"""s_lshr_b32 {sT0}, {sW}, 1
    v_bfe_u32 {v(T1)}, {v(VL)}, 2, 2
    v_lshrrev_b32 {v(T2)}, 5, {v(VL)}
    v_lshl_add_u32 {v(T1)}, {v(T2)}, 2, {v(T1)}
    v_lshlrev_b32 {v(T1)}, 7, {v(T1)}
    v_bfe_u32 {v(T3)}, {v(VL)}, 1, 1
    v_lshl_add_u32 {v(T1)}, {v(T3)}, 6, {v(T1)}
    v_bfe_u32 {v(T3)}, {v(VL)}, 4, 1
    v_lshl_add_u32 {v(T1)}, {v(T3)}, 4, {v(T1)}
    v_and_b32 {v(T3)}, 1, {v(VL)}
    v_lshl_add_u32 {v(T1)}, {v(T3)}, 3, {v(T1)}
    s_lshl_b32 s3, {sT0}, 12
    s_lshl_b32 {sT1}, {sKH}, 5
    s_add_u32 s3, s3, {sT1}
    s_add_u32 s3, s3, {YL}
    v_add_u32 {v(EY)}, s3, {v(T1)}
    v_and_b32 {v(T1)}, 31, {v(VL)}
    v_bfe_u32 {v(T3)}, {v(VL)}, 1, 3
    s_lshl_b32 s3, {sT0}, 2
    v_xor_b32 {v(T3)}, s3, {v(T3)}
    v_lshlrev_b32 {v(T3)}, 4, {v(T3)}
    v_lshl_add_u32 {v(T3)}, {v(T1)}, 7, {v(T3)}
    v_lshl_add_u32 {v(T3)}, {v(T2)}, 3, {v(T3)}
    s_lshl_b32 s3, {sKH}, 12
    s_add_u32 s3, s3, {QL}
    v_add_u32 {v(EQ[0])}, s3, {v(T3)}
    v_xor_b32 {v(EQ[1])}, 16, {v(EQ[0])}
    v_xor_b32 {v(EQ[2])}, 32, {v(EQ[0])}
    v_xor_b32 {v(EQ[3])}, 48, {v(EQ[0])}
    v_mul_u32_u24 {v(T1)}, 896, {v(T1)}
    v_lshl_add_u32 {v(EO)}, {v(T2)}, 4, {v(T1)}
    s_lshl_b32 s3, {sI2}, 1
    s_add_u32 s3, s3, {sKH}
    s_mul_i32 {sSO2}, s3, {32*896}
    s_lshl_b32 s3, {sCT}, 1
    s_add_u32 s3, s3, {sT0}
    s_lshl_b32 s3, s3, 6
    s_add_u32 {sSO2}, {sSO2}, s3
    s_lshl_b32 s3, {sCT}, 2
    s_add_u32 s3, s3, {sW}
    s_lshl_b32 s3, s3, 16
    s_lshl_b32 {sSO}, {sI2}, 7
    s_add_u32 {sSO}, {sSO}, s3
    s_add_u32 {sSO}, {sSO}, {WS_YT}""")
    l2 = G2.pour(ea, cfg.g2_arrive + 10, cfg.g2_chk - 1, 20); assert l2 <= cfg.g2_chk
    G2.put(cfg.g2_poll, poll_load("y", sPA))
    G2.put(cfg.g2_chk, [stamp("g2_pre"), poll_check("y", sPA), Ins("s_barrier"), [] if cfg.pass_stamps else stamp("g2_post")])
    yd = [f"s_lshl_b32 s3, {sW}, 11\n s_add_u32 m0, s3, {YL}"]
    yd += [Ins(f"buffer_load_dwordx4 {v(VY[j])}, {WS}, {sSO} offen offset:{1024*j} sc1 lds", "qy") for j in range(2)]
    G2.spread(yd, cfg.g2_chk + 1, cfg.g2_chk + 4)
    YY = 48; QQ = 56; TT = 64; TQ = 80
    pe = [[WaitTag('vm', "qy"), Ins("s_barrier")]]
    for J in range(4):
        pe += [f"ds_read_b64_tr_b16 {v(YY+2*J,2)}, {v(EY)} offset:{1024*J}", f"ds_read_b64 {v(QQ+2*J,2)}, {v(EQ[J])}"]
    pe += [f"v_sub_f32 {v(OMG)}, 1.0, {v(VG)}"]
    for J in range(4):
        for i in range(4):
            src = 2 * J + (i >> 1)
            un = (lambda d, s_: f"v_lshlrev_b32 {d}, 16, {s_}") if i % 2 == 0 else (lambda d, s_: f"v_and_b32 {d}, {sMASK}, {s_}")
            pe += [un(v(TT + 4 * J + i), v(YY + src)), un(v(TQ + i), v(QQ + src))]
        pe += [f"v_mul_f32 {v(TT+4*J+i)}, {v(TT+4*J+i)}, {v(TQ+i)}" for i in range(4)]
        pe += [f"v_mul_f32 {v(TT+4*J+i)}, {v(TT+4*J+i)}, {v(VG)}" for i in range(4)]
    G2.pour(pe, cfg.g2_pre, 111, 24)
    check_m0(G2)
    add_trace(G2, 8, 'h', [94, 96])
    G2.emit(P)
    if cfg.verbose: print("G2 gap costs", G2.costs())
    P.add(stamp("g2end"))
    B = 96; R1 = 112; O = 48
    for sg in range(1, 4):
        for J in range(4):
            if red_slot[sg] == 3: P.e(f"ds_write_b128 {v(EW[1])}, {a(GACC+16*sg+4*J,4)} offset:{1024*J}")
            else: P.e(f"ds_write_b128 {v(EW[0])}, {a(GACC+16*sg+4*J,4)} offset:{red_slot[sg]*SLOT+1024*J}")
    for k in range(16): P.e(f"v_accvgpr_read_b32 {v(B+k)}, {a(GACC+k)}")
    P.e(f"v_mov_b32 {v(T1)}, {v(OMG)}")
    P.e("s_waitcnt lgkmcnt(0)\n s_barrier")
    for J in range(4):
        for sg in range(1, 4): P.e(f"ds_read_b128 {v(R1+16*(sg-1)+4*J,4)}, {v(ER[sg-1])} offset:{1024*J}")
    OM2 = 34
    P.e(f"v_mov_b32 {v(T2)}, {v(OMG)}")
    for J in range(4):
        for sg in range(3):
            for i in range(2): P.e(f"v_pk_add_f32 {v(B+4*J+2*i,2)}, {v(B+4*J+2*i,2)}, {v(R1+16*sg+4*J+2*i,2)}")
        for i in range(2): P.e(f"v_pk_fma_f32 {v(TT+4*J+2*i,2)}, {v(B+4*J+2*i,2)}, {v(OM2,2)}, {v(TT+4*J+2*i,2)}")
        for i in range(2): P.e(f"v_cvt_pk_bf16_f32 {v(O+2*J+i)}, {v(TT+4*J+2*i)}, {v(TT+4*J+2*i+1)}")
        if J % 2 == 1:
            o = O + 2 * J - 2
            P.e(f"v_permlane32_swap_b32 {v(o)}, {v(o+2)}\n v_permlane32_swap_b32 {v(o+1)}, {v(o+3)}")
            P.e(f"buffer_store_dwordx4 {v(o,4)}, {v(EO)}, {OUT}, {sSO2} offen offset:{32*(J>>1)} {cfg.sc_out}")
    if cfg.stamps: emit_stamps(P)
    if cfg.fixdur:
        P.e(f"""L_fix:
        s_memrealtime s[4:5]
        s_waitcnt lgkmcnt(0)
        s_sub_u32 s4, s4, s100
        s_cmp_lt_i32 s4, {cfg.fixdur}
        s_cbranch_scc1 L_fix""")
    P.e("s_endpgm")

def check_m0(G):
    flat = []
    def fl(it):
        if isinstance(it, str):
            for l in lines(it): flat.append(Ins(l))
        elif isinstance(it, (list, tuple)):
            for x in it: fl(x)
        elif isinstance(it, Ins): flat.append(it)
    for f in G.f:
        for it in f: fl(it)
    last_off = None
    for it in flat:
        if it.kind == 'salu' and ('s', 'm0') in it.w: last_off = -1024
        if it.kind == 'dma':
            m = re.search(r'offset:(\d+)', it.text); off = int(m.group(1)) if m else 0
            assert last_off is not None and off == last_off + 1024, ("m0 group interleaved", it.text)
            last_off = off

def emit_stamps(P):
    P.e("s_waitcnt vmcnt(0)")
    P.e("s_memtime s[4:5]\n s_memrealtime s[6:7]\n s_waitcnt lgkmcnt(0)")
    n = len(stamp_names)
    for k in range(n):
        P.e(f"s_sub_u32 s3, s{STAMP_REGS[stamp_names[k]]}, {'s100' if cfg.rt else 's98'}"); P.e(f"v_mov_b32 v{200+k}, s3")
    P.e(f"s_sub_u32 s3, {'s6, s100' if cfg.rt else 's4, s98'}\n v_mov_b32 v{200+n}, s3")
    P.e(f"""s_lshl_b32 s3, s2, 2
    s_add_u32 s3, s3, {sW}
    s_lshl_b32 s3, s3, 7
    s_add_u32 s3, s3, {WS_STAMP}
    v_mov_b32 v229, 0
    v_mov_b32 v230, s100
    v_mov_b32 v231, s6
    v_mov_b32 v2, 0
    s_mov_b64 exec, 1""")
    for k in range(8): P.e(f"buffer_store_dwordx4 v[{200+4*k}:{203+4*k}], v2, {WS}, s3 offen offset:{16*k}")
    if cfg.trace:
        P.e(f"""s_mov_b64 exec, -1
        v_subrev_u32 v254, s98, v254
        v_subrev_u32 v255, s98, v255
        s_lshl_b32 s3, s2, 2
        s_add_u32 s3, s3, {sW}
        s_lshl_b32 s3, s3, 9
        s_add_u32 s3, s3, {WS_STAMP + 0x40000}
        v_lshlrev_b32 v2, 2, v1
        buffer_store_dword v254, v2, {WS}, s3 offen
        buffer_store_dword v255, v2, {WS}, s3 offen offset:256""")

def gen_aux(P0):
    P = P0
    K, V_, SH, GW = "s[40:43]", "s[44:47]", "s[48:51]", "s[52:55]"
    sA = "s68"; sST = "s69"; sUS = "s70"; sLO = "s71"; sHI = "s72"; sC = "s73"; sC2 = "s74"; sTA = ["s56", "s57"]; sTW = ["s58", "s59"]
    VL = 1; T0 = 2; T1 = 3; VZA = 4; VB = 5; VB2 = 6; VM = 7; VX = 8; VR = 9; VS = 11; VW = 12; VWt = [13, 14]; VRB = 16; VQ = 20; VQ2 = 21; VGW = 22
    KP = [48, 58]; VP = [68, 76]; WR_ = [84, 86]; WT = [88, 94]; OO = 100; UV = 108; OUT_ = 124; RB = 160; PF = 24
    TS = 17408
    P.e("s_cmp_lt_u32 s2, 256\n s_cbranch_scc1 L_auxgo\n s_endpgm\n L_auxgo:")
    for reg, off in ((K, 8), (V_, 16), (SH, 24), (GW, 80)): P.e(ldptr(reg, off))
    P.add(srd_hi(K, NQ) + srd_hi(V_, NQ) + srd_hi(SH, 3584) + srd_hi(X, NQ) + srd_hi(GW, 896) + srd_hi(WS, WS_SIZE) + srd_hi(WD, NW))
    P.e(f"""
    s_sub_u32 {sA}, s2, 224
    s_mul_i32 {sSO}, {sA}, {64*896}
    s_mul_i32 {sST}, {sW}, 40960
    s_lshl_b32 {sTA[0]}, {sW}, 7
    s_add_u32 {sTA[1]}, {sTA[0]}, 512
    s_lshl_b32 {sTW[0]}, {sW}, 9
    s_add_u32 {sTW[1]}, {sTW[0]}, 2048
    v_lshrrev_b32 {v(T0)}, 3, {v(VL)}
    v_and_b32 {v(T1)}, 7, {v(VL)}
    v_mul_u32_u24 {v(VB)}, 896, {v(T0)}
    v_lshl_add_u32 {v(VB)}, {v(T1)}, 4, {v(VB)}
    v_add_u32 {v(VB)}, {sSO}, {v(VB)}
    v_add_u32 {v(VB2)}, 6144, {v(VB)}
    v_add_u32 {v(VM)}, -7168, {v(VB)}
    v_lshlrev_b32 {v(VX)}, 3, {v(VL)}
    s_mul_i32 s3, {sA}, {24*128}
    v_lshlrev_b32 {v(VZA)}, 7, {v(VL)}
    v_add_u32 {v(VZA)}, s3, {v(VZA)}
    v_mov_b32 {v(vARR)}, -16
    v_cmp_gt_u32 vcc, 24, v0
    v_mov_b32 {v(vZERO)}, 0
    v_cndmask_b32 {v(VZA)}, {v(vARR)}, {v(VZA)}, vcc
    v_cmp_eq_u32 vcc, 0, v0
    v_mov_b32 {v(vONE)}, 1
    s_waitcnt lgkmcnt(0)
    v_cndmask_b32 {v(vARR)}, {v(vARR)}, 0, vcc
    s_mov_b32 s34, 256
    s_mov_b32 s35, 0x20000
    """)
    def dset(k, j):
        b = TS * k; tag = "pin%d%d" % (k, j); L = []
        L.append([f"s_add_u32 {sC}, {sTA[k]}, {14336*j}\n s_add_u32 m0, {sST}, {b+1024+2048*j}", Ins(f"buffer_load_dwordx4 {v(VB)}, {K}, {sC} offen lds", tag)])
        L.append(Ins(f"buffer_load_dwordx4 {v(VB2)}, {K}, {sC} offen offset:1024 lds", tag))
        if j == 0:
            L.append([f"s_add_u32 m0, {sST}, {b}", Ins(f"buffer_load_dwordx4 {v(VM)}, {K}, {sC} offen lds", tag)])
            L.append(f"buffer_load_dwordx2 {v(WR_[k],2)}, {v(VX)}, {SH}, {sTW[k]} offen")
        L.append([f"s_add_u32 m0, {sST}, {b+9216+2048*j}", Ins(f"buffer_load_dwordx4 {v(VB)}, {V_}, {sC} offen lds", tag)])
        L.append(Ins(f"buffer_load_dwordx4 {v(VB2)}, {V_}, {sC} offen offset:1024 lds", tag))
        return L
    P.add(dset(0, 0))
    P.e(f"buffer_store_dword {v(vZERO)}, {v(VZA)}, {WS}, 0 offen sc1", tag="zst")
    P.add(dset(0, 1))
    P.e(f"""
    v_bfe_u32 {v(VR)}, {v(VL)}, 2, 2
    v_lshlrev_b32 {v(VR)}, 7, {v(VR)}
    v_lshrrev_b32 {v(VS)}, 4, {v(VL)}
    v_lshl_add_u32 {v(VR)}, {v(VS)}, 5, {v(VR)}
    v_and_b32 {v(VS)}, 3, {v(VL)}
    v_lshl_add_u32 {v(VR)}, {v(VS)}, 3, {v(VR)}
    v_add_u32 {v(VR)}, {sST}, {v(VR)}
    s_mov_b32 {sLO}, 0xffff
    s_mov_b32 {sMASK}, 0xffff0000
    v_lshlrev_b32 {v(VW)}, 4, {v(T1)}
    v_lshl_add_u32 {v(VW)}, {v(VL)}, 7, {v(VW)}
    v_add_u32 {v(VW)}, {sST}, {v(VW)}
    v_xor_b32 {v(VRB)}, {v(T0)}, {v(T1)}
    v_lshlrev_b32 {v(VRB)}, 4, {v(VRB)}
    v_lshl_add_u32 {v(VRB)}, {v(T0)}, 7, {v(VRB)}
    v_add_u32 {v(VRB)}, {sST}, {v(VRB)}
    v_lshlrev_b32 {v(VGW)}, 4, {v(T1)}
    v_lshl_add_u32 {v(VS)}, {v(T0)}, 12, {v(VGW)}
    v_mul_u32_u24 {v(VQ)}, {8*896}, {v(T0)}
    v_add_u32 {v(VQ)}, {v(VQ)}, {v(VGW)}
    v_add_u32 {v(VQ)}, {sSO}, {v(VQ)}
    v_add_u32 {v(VQ2)}, {4*896}, {v(VQ)}
    s_lshl_b32 s3, {sW}, 18
    s_sub_u32 {sUS}, 31, {sA}
    s_lshl_b32 {sUS}, {sUS}, 7
    s_add_u32 {sUS}, {sUS}, s3
    s_add_u32 {sUS}, {sUS}, {WS_UR}
    """)
    P.add(dset(0, 2))
    P.vmwait("zst")
    P.e(f"buffer_atomic_add {v(vONE)}, {v(vARR)}, s[32:35], 0 offen sc1")
    P.add(dset(0, 3))
    def reads(k, j):
        b = TS * k; K_ = KP[j & 1]; V2 = VP[j & 1]
        L = [WaitTag('vm', "pin%d%d" % (k, j))]
        L += [f"ds_read_b64_tr_b16 {v(K_+2*m,2)}, {v(VR)} offset:{b+512+2048*j+512*m}" for m in range(5)]
        L += [f"ds_read_b64_tr_b16 {v(V2+2*m,2)}, {v(VR)} offset:{b+9216+2048*j+512*m}" for m in range(4)]
        return L
    def wprep(k):
        W = WR_[k]; T_ = WT[k]
        return lines(f"""v_alignbit_b32 {v(T_)}, {v(W)}, {v(W)}, 16
        v_alignbit_b32 {v(T_+1)}, {v(W+1)}, {v(W+1)}, 16
        v_and_b32 {v(T_+2)}, {sLO}, {v(W)}
        v_bfi_b32 {v(T_+3)}, {sLO}, {v(W+1)}, {v(W)}
        v_and_b32 {v(T_+4)}, {sMASK}, {v(W+1)}""")
    def owrites(k, j):
        return [[f"v_xor_b32 {v(VWt[q&1])}, {16*q}, {v(VW)}", Ins(f"ds_write_b128 {v(VWt[q&1])}, {v(OUT_+4*q,4)} offset:{TS*k}", "ow")] for q in (7 - 2 * j, 6 - 2 * j)]
    def readback(k): return [f"ds_read_b128 {v(RB+4*q,4)}, {v(VRB)} offset:{TS*k+1024*q}" for q in range(8)]
    def stores(k): return [[f"s_add_u32 {sC2}, {sUS}, {(k << 20) + 32768*q}", Ins(f"buffer_store_dwordx4 {v(RB+4*q,4)}, {v(VS)}, {WS}, {sC2} offen sc1", "pst")] for q in range(8)]
    def step(P, k, j, fill):
        K_ = KP[j & 1]; V2 = VP[j & 1]; T_ = WT[k]; fill = list(fill); per = (len(fill) + 9) // 10
        def nx():
            for _ in range(per):
                if fill: P.add(fill.pop(0))
        P.add(WaitRegs(v(V2 + 6, 2)))
        for h in range(2):
            J = range(4 * h, 4 * h + 4)
            for i in J: P.e(f"v_dot2_f32_bf16 {v(OO+2*(i%4))}, {v(K_+i+2)}, {v(T_+2)}, 0\n v_dot2_f32_bf16 {v(OO+2*(i%4)+1)}, {v(K_+i+2)}, {v(T_)}, 0")
            nx()
            for i in J: P.e(f"v_dot2_f32_bf16 {v(OO+2*(i%4))}, {v(K_+i+1)}, {v(T_+3)}, {v(OO+2*(i%4))}\n v_dot2_f32_bf16 {v(OO+2*(i%4)+1)}, {v(K_+i+1)}, {v(T_+1)}, {v(OO+2*(i%4)+1)}")
            nx()
            for i in J: P.e(f"v_dot2_f32_bf16 {v(OO+2*(i%4))}, {v(K_+i)}, {v(T_+4)}, {v(OO+2*(i%4))}")
            nx()
            for i in J: P.e(f"v_lshlrev_b32 {v(UV+2*(i%4))}, 16, {v(V2+i)}\n v_and_b32 {v(UV+2*(i%4)+1)}, {sMASK}, {v(V2+i)}")
            nx()
            for i in J: P.e(f"v_pk_mul_f32 {v(UV+2*(i%4),2)}, {v(UV+2*(i%4),2)}, {v(OO+2*(i%4),2)}")
            nx()
            for i in J: P.e(f"v_cvt_pk_bf16_f32 {v(OUT_+31-8*j-i)}, {v(UV+2*(i%4)+1)}, {v(UV+2*(i%4))}")
        while fill: nx()
    P.add(reads(0, 0)); P.add(wprep(0))
    if cfg.stamps: P.e("s_waitcnt lgkmcnt(0)\n s_memtime s[86:87]")
    P.e(f"s_cmp_eq_u32 {sW}, 3\n s_cbranch_scc1 L_gate")
    Pg = Prog(); Pg.items = list(P.items)
    step(P, 0, 0, dset(1, 0) + reads(0, 1))
    step(P, 0, 1, dset(1, 1) + reads(0, 2))
    step(P, 0, 2, dset(1, 2) + reads(0, 3))
    step(P, 0, 3, dset(1, 3) + reads(1, 0) + wprep(1) + owrites(0, 0) + owrites(0, 1) + owrites(0, 2))
    P.add(owrites(0, 3))
    step(P, 1, 0, reads(1, 1) + readback(0))
    step(P, 1, 1, reads(1, 2) + stores(0))
    step(P, 1, 2, poll_load("za", None) + reads(1, 3))
    step(P, 1, 3, owrites(1, 0) + owrites(1, 1) + owrites(1, 2))
    P.add(owrites(1, 3)); P.add(readback(1)); P.add(stores(1))
    P.e("s_branch L_auxdone")
    P = Pg; P.e("L_gate:")
    QB = [192, 224, 48, 80]; GWS = [24, 28, 34, 38]
    def ql(tau):
        b = QB[tau % 4]
        L = [f"buffer_load_dwordx4 {v(b+4*rho,4)}, {v(VQ if rho < 4 else VQ2)}, {X}, 0 offen offset:{896*(rho%4)+128*tau}" for rho in range(8)]
        return L + [f"buffer_load_dwordx4 {v(GWS[tau%4],4)}, {v(VGW)}, {GW}, 0 offen offset:{128*tau}"]
    step(P, 0, 0, reads(0, 1))
    step(P, 0, 1, reads(0, 2) + ql(0))
    step(P, 0, 2, reads(0, 3) + ql(1))
    step(P, 0, 3, owrites(0, 0) + owrites(0, 1) + owrites(0, 2))
    P.add(owrites(0, 3)); P.add(ql(2)); P.add(readback(0)); P.add(ql(3)); P.add(stores(0)); P.add(poll_load("za", None))
    for tau in range(7):
        b = QB[tau % 4]
        for p in range(4):
            for rho in range(8):
                P.e(f"v_dot2_f32_bf16 {v(112+rho)}, {v(b+4*rho+p)}, {v(GWS[tau%4]+p)}, {'0' if (tau == 0 and p == 0) else v(112+rho)}")
        if tau + 4 < 7: P.add(ql(tau + 4))
    AC = 112
    for mod in ("row_half_mirror", "quad_perm:[3,2,1,0]", "quad_perm:[1,0,3,2]"):
        for rho in range(8): P.e(f"v_add_f32_dpp {v(AC+rho)}, {v(AC+rho)}, {v(AC+rho)} {mod} row_mask:0xf bank_mask:0xf")
    P.e("s_mov_b32 s74, 0xaaaaaaaa\n s_mov_b32 s75, 0xaaaaaaaa")
    for k in range(4): P.e(f"v_cndmask_b32 {v(AC+k)}, {v(AC+2*k)}, {v(AC+2*k+1)}, s[74:75]")
    P.e("s_mov_b32 s74, 0xcccccccc\n s_mov_b32 s75, 0xcccccccc")
    for k in range(2): P.e(f"v_cndmask_b32 {v(AC+k)}, {v(AC+2*k)}, {v(AC+2*k+1)}, s[74:75]")
    P.e("s_mov_b32 s74, 0xf0f0f0f0\n s_mov_b32 s75, 0xf0f0f0f0")
    P.e(f"""v_cndmask_b32 {v(AC)}, {v(AC)}, {v(AC+1)}, s[74:75]
    v_mul_f32 {v(AC)}, 0xbfb8aa3b, {v(AC)}
    v_exp_f32 {v(AC)}, {v(AC)}
    v_add_f32 {v(AC)}, 1.0, {v(AC)}
    v_rcp_f32 {v(AC)}, {v(AC)}
    s_lshl_b32 s3, {sA}, 8
    s_add_u32 s3, s3, {WS_G}
    v_lshlrev_b32 {v(T0)}, 2, {v(VL)}
    buffer_store_dword {v(AC)}, {v(T0)}, {WS}, s3 offen sc1""")
    T = Prog(); T.e("L_auxdone:")
    if cfg.stamps: T.e("s_memtime s[88:89]")
    T.e(f"""s_lshl_b32 {sC}, {sA}, 7
    s_lshl_b32 s3, {sA}, 2
    s_add_u32 s3, s3, {sW}
    s_mul_i32 {sSO2}, s3, {98*128}
    v_lshlrev_b32 {v(PF)}, 7, {v(VL)}
    v_add_u32 {v(PF+1)}, {34*128}, {v(PF)}
    s_waitcnt vmcnt(0)""")
    T.add(poll_check("za", None))
    T.e("s_barrier")
    if not cfg.nosync: T.e(f"buffer_store_dword {v(vONE)}, {v(vARR)}, {WS}, {sC} offen sc1")
    if cfg.stamps: T.e("s_memtime s[90:91]")
    if cfg.aux_pf: T.e(f"buffer_load_dword {v(PF+2)}, {v(PF)}, {WD}, {sSO2} offen\n buffer_load_dword {v(PF+3)}, {v(PF+1)}, {WD}, {sSO2} offen")
    if cfg.stamps:
        T.e(f"""s_waitcnt vmcnt(0)
        s_memtime s[4:5]
        s_memrealtime s[6:7]
        s_waitcnt lgkmcnt(0)
        s_sub_u32 s3, s86, s98
        v_mov_b32 v200, s3
        s_sub_u32 s3, s88, s98
        v_mov_b32 v201, s3
        s_sub_u32 s3, s90, s98
        v_mov_b32 v202, s3
        s_sub_u32 s3, s4, s98
        v_mov_b32 v203, s3
        v_mov_b32 v204, s100
        v_mov_b32 v205, s6
        s_lshl_b32 s3, s2, 2
        s_add_u32 s3, s3, {sW}
        s_lshl_b32 s3, s3, 7
        s_add_u32 s3, s3, {WS_STAMP}
        v_mov_b32 v2, 0
        s_mov_b64 exec, 1
        buffer_store_dwordx4 v[200:203], v2, {WS}, s3 offen
        buffer_store_dwordx2 v[204:205], v2, {WS}, s3 offen offset:120""")
    T.e("s_endpgm")
    return Pg, T

def build():
    global slow_paths, stamp_names, trace_names
    slow_paths = []; stamp_names = []; trace_names = []; arr_n[0] = 0; STAMP_REGS['prewait'] = 74; STAMP_REGS['karg'] = 72
    pro = Prog()
    for reg, off in ((X, 0), (WG, 56), (WU, 64), (WD, 72), (SK, 32), (WS, 104), (OUT, 88), (pDBG, 96), (pD, 40)): pro.e(ldptr(reg, off))
    if cfg.sync_start:
        pro.e("""s_memrealtime s[100:101]
        s_waitcnt lgkmcnt(0)
        s_add_u32 s3, s100, 400
        s_and_b32 s3, s3, 0xffffff00
        L_ss:
        s_memrealtime s[100:101]
        s_waitcnt lgkmcnt(0)
        s_sub_u32 s99, s100, s3
        s_cmp_lt_i32 s99, 0
        s_cbranch_scc1 L_ss""")
    if cfg.stamps or cfg.fixdur: pro.e("s_memtime s[98:99]\n s_memrealtime s[100:101]")
    pro.e(f"""
    v_lshrrev_b32 v2, 6, v0
    v_and_b32 v1, 63, v0
    s_cmp_ge_u32 s2, 224
    v_readfirstlane_b32 {sW}, v2
    s_cbranch_scc1 L_aux
    """)
    Pm = Prog(); Pm.items = list(pro.items)
    gen_main(Pm)
    main = Pm.finalize(cfg.verbose)
    if cfg.warm:
        real = [i for i, x in enumerate(main) if x.kind != 'label']
        for k, n in reversed(list(enumerate(cfg.stub_at[:4]))):
            main[real[n]:real[n]] = [Ins("L_pg%d:" % k), Ins("s_cbranch_execz L_pgback")]
    Px = Prog(); Px.items = list(pro.items); Px.e("L_aux:")
    Pg, Pt = gen_aux(Px)
    ax = Px.finalize(); gx = Pg.finalize(); tx = Pt.finalize()
    cut = lambda lst, lab: lst[[i for i, x in enumerate(lst) if x.kind == 'label' and x.text == lab][0]:]
    body = text_of(main) + "\n" + text_of(cut(ax, "L_aux:")) + "\n" + text_of(cut(gx, "L_gate:")) + "\n" + text_of(tx) + "\n" + emit_slow_paths() + "\nL_codeend:"
    hdr = open("gated_mix__ssm_conv_h3__swiglu_ffn__prompt.s.ref").read().split("; Override launch")[0] if cfg.header else ""
    return f"""{hdr}; @launch grid=(256,1,1) block=(256,1,1) lds={LDS_BYTES}
; TRACE={trace_names}
.amdgcn_target "amdgcn-amd-amdhsa--gfx950"
.text
.globl {KNAME}
{'.p2align 12' if cfg.align else ''}
.p2align 8
.type {KNAME},@function
{KNAME}:
{body}
.section .rodata,"a"
.p2align 6
.amdhsa_kernel {KNAME}
  .amdhsa_next_free_vgpr 512
  .amdhsa_next_free_sgpr 102
  .amdhsa_accum_offset 256
  .amdhsa_group_segment_fixed_size 0
  .amdhsa_kernarg_size 112
  .amdhsa_user_sgpr_count 2
  .amdhsa_user_sgpr_kernarg_segment_ptr 1
  .amdhsa_system_sgpr_workgroup_id_x 1
.end_amdhsa_kernel
"""

if __name__ == "__main__":
    import subprocess
    out = sys.argv[1]
    for kv in sys.argv[2:]:
        k_, v_ = kv.split("=", 1)
        assert hasattr(cfg, k_), k_
        setattr(cfg, k_, eval(v_))
    cfg.pf_n = 1; cfg.pf_last = 100
    vb = cfg.verbose; cfg.verbose = False
    open(out, "w").write(build())
    subprocess.check_call(["clang", "-x", "assembler", "-target", "amdgcn-amd-amdhsa", "-mcpu=gfx950", "-c", out, "-o", "_gen.o"])
    sym = subprocess.check_output(["llvm-objdump", "-t", "_gen.o"], text=True)
    ad = {l.split()[-1]: int(l.split()[0], 16) for l in sym.splitlines() if " L_" in l}
    if cfg.code_pf:
        cfg.pf_last = (ad["L_codeend"] - ad["L_pc"] - 64) // 128
        cfg.pf_n = (cfg.pf_last + 112) // 112
    if cfg.warm:
        cfg.stub_at = [600, 1200, 1800, 2300]
        for it in range(3):
            open(out, "w").write(build())
            subprocess.check_call(["clang", "-x", "assembler", "-target", "amdgcn-amd-amdhsa", "-mcpu=gfx950", "-c", out, "-o", "_gen.o"])
            dis = subprocess.check_output(["llvm-objdump", "-d", "--mcpu=gfx950", "_gen.o"], text=True)
            ins = [(int(l.split("//")[1].split(":")[0], 16), l) for l in dis.splitlines() if "//" in l]
            end = [i for i, (a_, l) in enumerate(ins) if "s_endpgm" in l][0]
            a0 = []; ns_ = 0
            for a_, l in ins[:end]:
                if "s_cbranch_execz" in l: ns_ += 1
                else: a0.append(a_ - 4 * ns_)
            new_at = []
            for k in range(1, 5):
                c = [i for i, a_ in enumerate(a0) if a_ + 4 * (k - 1) + 0x300 >= 4096 * k]
                if c: new_at.append(c[0])
            if new_at == cfg.stub_at: break
            cfg.stub_at = new_at
    cfg.verbose = vb
    open(out, "w").write(build())
    print(out, "code bytes", ad["L_codeend"], "aux at", ad["L_aux"], "stubs", cfg.stub_at, "stamps:", stamp_names)
```

```python
import sys, math, re
from fw import *
import fw
KNAME = "gated_mix__ssm_conv_h3__swiglu_ffn__prompt_kernel"

class Cfg: pass
cfg = Cfg()
cfg.stamps = False; cfg.pass_stamps = False; cfg.verbose = False; cfg.header = True; cfg.fixdur = 0
cfg.PD = 5; cfg.NXR = 8; cfg.pair = 2; cfg.bud = 24
cfg.code_pf = True; cfg.n_pre = 9; cfg.nosync = False
cfg.rot_c = True; cfg.rot_t = True; cfg.rot_g = True
cfg.pl_at = -1; cfg.pc0 = 10; cfg.pc1 = 70; cfg.bud1 = 28; cfg.z_load = 80; cfg.z_chk = 104; cfg.x_touch = 0; cfg.align = True; cfg.tlb = False; cfg.sync_start = False; cfg.skew = (0, 0); cfg.gq_sh = 0; cfg.gq_mul = 0; cfg.wd_touch = -1; cfg.warm = True; cfg.stub_at = []; cfg.late_pos = 50; cfg.p_arr = 9; cfg.pst_at = 80; cfg.aux_sk = False; cfg.p_first = True; cfg.sk_at = -1; cfg.hv_at = 50; cfg.c_rd_end = 66; cfg.sleep = 2
cfg.p_load = 188; cfg.p_chk = 208; cfg.hw0 = 100; cfg.hw1 = 186
cfg.g_arrive = 44; cfg.g_poll = 92; cfg.g_chk = 112; cfg.nh_c = 7; cfg.nh_e = 6; cfg.nwd_t = 5; cfg.g_wd_end = 104
cfg.g2_hpace = 2.0; cfg.g2_arrive = 16; cfg.g2_poll = 44; cfg.g2_chk = 60; cfg.g2_pre = 84
cfg.sc_out = ""; cfg.aux_pf = False; cfg.touch = False; cfg.s_early = True; cfg.rt = False; cfg.trace = False; cfg.start_stamps = False

WS_FLAG = 0x0; WS_G = 0x20000; WS_UR = 0x100000; WS_YT = 0x300000; WS_H = 0x500000
WS_STAMP = 0xC00000; WS_SIZE = 0xD00000
NQ = 1835008; NW = 1605632
XB = 4096
SLOT = 28672; PIECE = 7168
HC = 4 * SLOT; CPY = 4160; HCCH = 4 * CPY
UL = HC + 2 * HCCH; UCH = 4608
LDS_BYTES = 163840
YL = HC; QL = HC + 8192
assert UL + 2 * UCH <= LDS_BYTES
X, WG, WU, WD, SK, WS, OUT = ["s[%d:%d]" % (b, b + 3) for b in (4, 8, 12, 16, 20, 24, 28)]
pWS = "s[24:25]"; pDBG = "s[32:33]"; pD = "s[34:35]"
sW = "s36"; sT0 = "s37"; sT1 = "s38"; sT2 = "s39"
sCH = ["s%d" % (40 + i) for i in range(7)]
sWC = ["s%d" % (47 + i) for i in range(7)]
sTO = ["s%d" % (54 + i) for i in range(8)]
sHG = sWC
sM0P = "s68"; sXB = "s69"; sWB = "s70"; sDB = "s71"; sHS = "s72"; sHL = ["s73", "s74"]
sNL2E = "s75"; sSO = "s76"; sSO2 = "s77"; sD = "s78"; sI2 = "s79"; sCT = "s80"; sKH = "s81"
sCNT = "s82"; sM = "s83"; sMASK = "s84"; sRG = "s85"
sDG = ["s%d" % (86 + i) for i in range(7)]
sPV = "s93"; sFQ = "s62"; sXBc = "s63"; sFL = "s67"; sONE = "s66"; sU = "s65"; sPA = "s64"
STAMP_REGS = {'issued': 0, 'setup': 96, 'pdone': 94, 'prewait': 74, 'karg': 72, 'g1start': 34, 'p1end': 12, 'T5': 96, 'T6': 8, 'T7': 10, 'prepoll': 94, 'zpre': 96, 'zpost': 8, 'g1end': 14, 'cstart': 40, 'c_pre': 42, 'c_post': 44, 'g2start': 54, 'g2_pre': 56, 'g2_post': 58, 'g2end': 60}

def v(i, n=1): return "v%d" % i if n == 1 else "v[%d:%d]" % (i, i + n - 1)
def a(i, n=1): return "a%d" % i if n == 1 else "a[%d:%d]" % (i, i + n - 1)
def lines(t): return [l.strip() for l in t.split("\n") if l.strip()]

stamp_names = []
def stamp(name):
    if not cfg.stamps or cfg.stamps == 'min': return []
    if cfg.trace and STAMP_REGS[name] in (94, 96): return []
    stamp_names.append(name); r = STAMP_REGS[name]
    return [Ins("%s s[%d:%d]" % ("s_memrealtime" if cfg.rt else "s_memtime", r, r + 1))]

slow_paths = []
trace_names = []
TR_S = [94, 96, 8, 12]
def add_trace(G, every, name, regs):
    if not cfg.trace: return
    k = 0
    for g in range(0, G.n - 3, every):
        i = len(trace_names); trace_names.append("%s%d" % (name, g)); r = regs[k % len(regs)]; k += 1
        G.f[g].insert(0, Ins("s_memtime s[%d:%d]" % (r, r + 1)))
        G.f[min(g + (3 if G.n != 144 else 6), G.n - 1)].append("v_writelane_b32 v%d, s%d, %d" % (254 + i // 64, r, i % 64))
vARR = 43; vONE = 0; vP8 = 38; vP7 = 39; vPV = 33; vZERO = 44
def poll_text(kind, off):
    if kind == "z": return f"global_load_dword {v(vPV)}, {v(vZERO)}, {pDBG} sc1"
    if kind == "za": return f"global_load_dword {v(vPV)}, {v(vZERO)}, {pDBG} sc1"
    return f"buffer_load_dword {v(vPV)}, {v(vP7 if kind == 'h' else vP8)}, {WS}, {off} offen sc1"
def poll_load(kind, off):
    return [] if cfg.nosync else [poll_text(kind, off)]
def poll_check(kind, off):
    if cfg.nosync: return []
    slow_paths.append((kind, off))
    return [f"v_cmp_gt_u32 vcc, {32 if kind[0] == 'z' else 1}, {v(vPV)}", f"s_cbranch_vccnz L_slow_{kind}\n L_back_{kind}:"]
def emit_slow_paths():
    t = []
    for kind, off in slow_paths:
        t += [f"L_slow_{kind}:", f"s_mov_b32 {sCNT}, 0", f"L_spin_{kind}:", f"s_sleep {cfg.sleep}", poll_text(kind, off),
              f"s_add_u32 {sCNT}, {sCNT}, 1", f"s_cmp_gt_u32 {sCNT}, 0x40000", "s_waitcnt vmcnt(0)", f"s_cbranch_scc1 L_back_{kind}",
              f"v_cmp_gt_u32 vcc, {32 if kind[0] == 'z' else 1}, {v(vPV)}", f"s_cbranch_vccnz L_spin_{kind}", f"s_branch L_back_{kind}"]
    return "\n".join(l if l.endswith(":") else "    " + l for l in t)
arr_n = [0]
def arrive(tag, off, bar=True):
    pre = [Ins("s_barrier")] if bar else []
    if cfg.nosync: return pre
    return ([WaitTag('vm', tag)] if bar else []) + pre + [f"buffer_store_dword {v(vONE)}, {v(vARR)}, {WS}, {off} offen sc1"]

def sb(reg): return int(reg[2:reg.index(':')])
def srd_hi(reg, size): return ["s_mov_b32 s%d, 0x%x" % (sb(reg) + 2, size), "s_mov_b32 s%d, 0x20000" % (sb(reg) + 3)]
def ldptr(reg, off): return "s_load_dwordx2 s[%d:%d], s[0:1], %d" % (sb(reg), sb(reg) + 1, off)
def rot_next(r): return [f"s_add_u32 {r}, {r}, 1", f"s_cmp_eq_u32 {r}, 7\n s_cselect_b32 {r}, 0, {r}"]
def mod7(r): return lines(f"s_mul_i32 s3, {r}, 37\n s_lshr_b32 s3, s3, 8\n s_mul_i32 s3, s3, 7\n s_sub_u32 {r}, {r}, s3")

def code_prefetch(P):
    if not cfg.code_pf: return
    P.e(f"""
        s_getpc_b64 s[38:39]
        L_pc:
        s_lshr_b32 s3, s2, 3
        s_lshl_b32 s3, s3, 2
        s_add_u32 s3, s3, {sW}
        s_mul_i32 s3, s3, {cfg.pf_n}
        v_min_u32 v2, {cfg.pf_n-1}, v1
        v_add_u32 v2, s3, v2
        v_min_u32 v2, {cfg.pf_last}, v2
        v_lshlrev_b32 v2, 7, v2
        v_mov_b32 v3, s39
        v_add_co_u32 v2, vcc, s38, v2
        v_addc_co_u32 v3, vcc, 0, v3, vcc
        global_load_dword v255, v[2:3], off
        """)

def gen_main(P):
    PD = cfg.PD; NXR = cfg.NXR
    VL = 1
    VX = [2, 3, 4, 9]; VWg = [5, 6]; VWu = [7, 8]; VSK = [10, 11, 12]; VD = [13, 14, 15, 16]
    XR = [[17, 18, 19, 20], [21, 22, 23, 24]]; WR = [25, 26, 27]; DR = [[28, 29], [30, 31]]
    V16 = 32; T0 = 33; T1 = 34; T2 = 35; T3 = 36; VHZ = 37; CA = 40; CB = 41; VHW = 42; VZ = 44
    ACC = [48, 64, 80, 96]; XRING = 112; ET = 144; PK = [148, 152]; HR = 160; HCP = 176
    assert XRING + 4 * NXR <= ET
    sX = sSO; sQ7 = sSO2; sR = sCNT
    code_prefetch(P)
    P.e(f"""
    s_and_b32 {sX}, s2, 7
    s_lshr_b32 {sT1}, s2, 3
    s_mul_i32 {sQ7}, {sT1}, 37
    s_lshr_b32 {sQ7}, {sQ7}, 8
    s_mul_i32 s3, {sQ7}, 7
    s_sub_u32 {sCT}, {sT1}, s3
    s_lshl_b32 s3, {sX}, 2
    s_add_u32 {sI2}, s3, {sQ7}
    s_and_b32 s3, {sX}, 4
    s_add_u32 {sT2}, s3, {sQ7}
    s_and_b32 {sT0}, {sX}, 3
    s_mul_i32 {sT1}, {sT0}, 7
    s_add_u32 {sT1}, {sT1}, {sCT}
    s_mul_i32 {sM0P}, {sW}, {PIECE}
    s_mul_i32 {sXB}, {sT2}, {256*896}
    s_add_u32 {sXB}, {sXB}, {sM0P}
    s_mul_i32 {sWB}, {sW}, {16*3584}
    s_lshl_b32 s3, {sT1}, 7
    s_add_u32 {sWB}, {sWB}, s3
    s_lshl_b32 {sRG}, {sQ7}, 1
    s_add_u32 {sRG}, {sRG}, {sCT}
    s_lshr_b32 s3, {sX}, 2
    s_add_u32 {sR}, {sRG}, s3
    """)
    P.add(mod7(sR) if cfg.rot_c else f"s_mov_b32 {sR}, 0")
    def ch_tab(i):
        L = lines(f"s_lshl_b32 s3, {sR}, 7\n s_add_u32 {sCH[i]}, s3, {sXB}\n s_mul_i32 s3, {sR}, {64*3584}\n s_add_u32 {sWC[i]}, s3, {sWB}")
        return L + (rot_next(sR) if i < 6 else [])
    def to_tab(t):
        if cfg.rot_t: return lines(f"s_lshl_b32 s3, {sT0}, 1\n s_add_u32 s3, s3, {t}\n s_and_b32 s3, s3, 7\n s_mul_i32 {sTO[t]}, s3, 28672")
        return [f"s_mov_b32 {sTO[t]}, {28672*t}"]
    for i in range(2): P.add(ch_tab(i))
    for t in range(3): P.add(to_tab(t))
    P.add(srd_hi(X, NQ + XB) + srd_hi(WG, NW) + srd_hi(WU, NW))
    P.e(f"""
    v_lshrrev_b32 {v(T0)}, 3, {v(VL)}
    v_and_b32 {v(T1)}, 7, {v(VL)}
    v_lshrrev_b32 {v(T2)}, 4, {v(VL)}
    s_lshl_b32 s3, {sW}, 2
    v_add_u32 {v(T3)}, s3, {v(T2)}
    v_and_b32 {v(T3)}, 7, {v(T3)}
    v_xor_b32 {v(T3)}, {v(T1)}, {v(T3)}
    v_lshlrev_b32 {v(T3)}, 4, {v(T3)}
    v_mul_u32_u24 {v(VX[0])}, 896, {v(T0)}
    v_add_u32 {v(T3)}, {XB}, {v(T3)}
    v_add_u32 {v(VX[0])}, {v(VX[0])}, {v(T3)}
    v_add_u32 {v(VX[1])}, -1024, {v(VX[0])}
    v_add_u32 {v(VX[2])}, -2048, {v(VX[0])}
    v_and_b32 {v(T2)}, 1, {v(T2)}
    v_lshlrev_b32 {v(T2)}, 1, {v(T2)}
    v_xor_b32 {v(T3)}, {v(T1)}, {v(T2)}
    v_lshlrev_b32 {v(T3)}, 4, {v(T3)}
    v_mul_u32_u24 {v(VWg[0])}, 3584, {v(T0)}
    v_add_u32 {v(VWg[0])}, {v(VWg[0])}, {v(T3)}
    v_add_u32 {v(VWg[1])}, {28672-1024}, {v(VWg[0])}
    v_xor_b32 {v(VWu[0])}, 64, {v(VWg[0])}
    v_add_u32 {v(VWu[1])}, {28672-1024}, {v(VWu[0])}
    """)
    if cfg.start_stamps: P.add(stamp("prewait"))
    P.e("s_waitcnt lgkmcnt(0)")
    if cfg.start_stamps: P.add(stamp("karg")); P.e("s_waitcnt lgkmcnt(0)\n v_mov_b32 v156, s74\n v_mov_b32 v157, s72")
    P.e(f"""
    s_sub_u32 s4, s4, {XB}
    s_subb_u32 s5, s5, 0
    """)
    def dma_item(i):
        sl = (i % 4) * SLOT; tag = "it%d" % i; L = []
        xl = lambda T, c, u, pre="": [pre + f"s_add_u32 {sSO}, {sCH[c]}, {sTO[T]}", Ins(f"buffer_load_dwordx4 {v(VX[u])}, {X}, {sSO} offen offset:{1024*u} lds", tag)]
        if i < 7:
            L.append([f"s_add_u32 m0, {sM0P}, {sl+3072}", Ins(f"buffer_load_dwordx4 {v(VWg[0])}, {WG}, {sWC[i]} offen offset:0 lds", tag)])
            L.append(Ins(f"buffer_load_dwordx4 {v(VWg[1])}, {WG}, {sWC[i]} offen offset:1024 lds", tag))
            L.append([f"s_add_u32 m0, {sM0P}, {sl+5120}", Ins(f"buffer_load_dwordx4 {v(VWu[0])}, {WU}, {sWC[i]} offen offset:0 lds", tag)])
            L.append(Ins(f"buffer_load_dwordx4 {v(VWu[1])}, {WU}, {sWC[i]} offen offset:1024 lds", tag))
            for rt in range(3): L.append(xl(rt, i, rt, f"s_add_u32 m0, {sM0P}, {sl}\n" if rt == 0 else ""))
        else:
            T = i - 4
            for k in range(7): L.append(xl(T, k, k % 4, f"s_add_u32 m0, {sM0P}, {sl+1024*k}\n" if k % 4 == 0 else ""))
        return L
    first = dma_item(0) + dma_item(1)
    P.add(first[:cfg.n_pre]); late_first = first[cfg.n_pre:]
    if not cfg.pass_stamps: P.add(stamp("issued"))
    P.e(f"""
    s_lshl_b32 s3, s2, 2
    s_load_dword {sD}, {pD}, s3
    v_lshlrev_b32 {v(T3)}, 1, {v(T2)}
    v_xor_b32 {v(T3)}, {v(T1)}, {v(T3)}
    v_lshlrev_b32 {v(T3)}, 4, {v(T3)}
    v_mul_u32_u24 {v(VD[0])}, 896, {v(T0)}
    v_add_u32 {v(VD[0])}, {v(VD[0])}, {v(T3)}
    v_add_u32 {v(VX[3])}, -3072, {v(VX[0])}
    v_and_b32 {v(T0)}, 31, {v(VL)}
    v_lshrrev_b32 {v(T1)}, 3, {v(T0)}
    v_mul_u32_u24 {v(T1)}, {PIECE}, {v(T1)}
    v_and_b32 {v(T2)}, 7, {v(T0)}
    v_lshl_add_u32 {v(T1)}, {v(T2)}, 7, {v(T1)}
    v_lshrrev_b32 {v(T2)}, 1, {v(T0)}
    v_and_b32 {v(T2)}, 7, {v(T2)}
    v_lshrrev_b32 {v(T3)}, 5, {v(VL)}
    v_xor_b32 {v(T2)}, {v(T2)}, {v(T3)}
    v_lshl_add_u32 {v(XR[0][0])}, {v(T2)}, 4, {v(T1)}
    """)
    for k in range(1, 4): P.e(f"v_xor_b32 {v(XR[0][k])}, {32*k}, {v(XR[0][0])}")
    for k in range(4): P.e(f"v_add_u32 {v(XR[1][k])}, {3*SLOT}, {v(XR[0][k])}")
    P.e(f"""
    v_bfe_u32 {v(T0)}, {v(VL)}, 2, 2
    v_lshl_add_u32 {v(T1)}, {v(T3)}, 3, {v(T0)}
    v_lshlrev_b32 {v(T1)}, 7, {v(T1)}
    v_bfe_u32 {v(T2)}, {v(VL)}, 1, 1
    v_lshl_add_u32 {v(T1)}, {v(T2)}, 11, {v(T1)}
    v_lshlrev_b32 {v(T2)}, 1, {v(T2)}
    v_lshrrev_b32 {v(T0)}, 1, {v(T0)}
    v_add_u32 {v(T2)}, {v(T2)}, {v(T0)}
    v_xor_b32 {v(T2)}, {sW}, {v(T2)}
    v_lshl_add_u32 {v(T1)}, {v(T2)}, 5, {v(T1)}
    v_bfe_u32 {v(T2)}, {v(VL)}, 4, 1
    v_lshl_add_u32 {v(T1)}, {v(T2)}, 4, {v(T1)}
    v_and_b32 {v(T2)}, 1, {v(VL)}
    v_lshl_add_u32 {v(T1)}, {v(T2)}, 3, {v(T1)}
    v_add_u32 {v(WR[0])}, 3072, {v(T1)}
    v_add_u32 {v(WR[1])}, {2*SLOT}, {v(WR[0])}
    """)
    for i in range(2, 7): P.add(ch_tab(i))
    for t in range(3, 8): P.add(to_tab(t))
    S = []
    S += lines(f"""
    v_bfe_u32 {v(T1)}, {v(VL)}, 2, 2
    v_lshl_add_u32 {v(T1)}, {v(T3)}, 2, {v(T1)}
    v_lshlrev_b32 {v(T1)}, 7, {v(T1)}
    s_lshr_b32 s3, {sW}, 1
    v_xor_b32 {v(T2)}, s3, {v(T0)}
    v_lshl_add_u32 {v(T1)}, {v(T2)}, 6, {v(T1)}
    v_bfe_u32 {v(T2)}, {v(VL)}, 4, 1
    v_lshl_add_u32 {v(T1)}, {v(T2)}, 5, {v(T1)}
    v_and_b32 {v(T2)}, 3, {v(VL)}
    v_lshl_add_u32 {v(T1)}, {v(T2)}, 3, {v(T1)}
    v_add_u32 {v(DR[0][0])}, {sM0P}, {v(T1)}
    v_xor_b32 {v(DR[0][1])}, 64, {v(DR[0][0])}
    v_add_u32 {v(DR[1][0])}, {2*SLOT}, {v(DR[0][0])}
    v_add_u32 {v(DR[1][1])}, {2*SLOT}, {v(DR[0][1])}
    v_add_u32 {v(VD[1])}, 6144, {v(VD[0])}
    v_add_u32 {v(VD[2])}, {2*6144}, {v(VD[0])}
    v_add_u32 {v(VD[3])}, {3*6144}, {v(VD[0])}
    v_lshlrev_b32 {v(V16)}, 4, {v(VL)}
    s_mul_i32 s3, {sT2}, 28
    s_add_u32 s3, s3, {sT1}
    s_add_u32 s3, s3, 256
    s_lshl_b32 {sFL}, s3, 7
    v_mov_b32 {v(vARR)}, -16
    v_cmp_eq_u32 vcc, 0, v0
    v_min_u32 {v(vP8)}, 7, {v(VL)}
    v_min_u32 {v(vP7)}, 6, {v(VL)}
    v_cndmask_b32 {v(vARR)}, {v(vARR)}, 0, vcc
    v_mov_b32 {v(vONE)}, 1
    s_lshl_b32 s3, {sW}, 3
    v_add_lshl_u32 {v(vP8)}, {v(vP8)}, s3, 7
    s_mul_i32 s3, {sW}, 7
    v_add_lshl_u32 {v(vP7)}, {v(vP7)}, s3, 7
    s_mul_i32 {sWB}, {sT2}, {8*112}
    s_lshl_b32 s3, {sT1}, 2
    s_add_u32 {sWB}, {sWB}, s3
    s_add_u32 {sWB}, {sWB}, {sW}
    s_lshl_b32 {sWB}, {sWB}, 10
    s_add_u32 {sWB}, {sWB}, {WS_H}
    s_mul_i32 {sDB}, {sW}, {448*896}
    s_lshl_b32 s3, {sCT}, 7
    s_add_u32 {sDB}, {sDB}, s3
    s_and_b32 s3, s2, 7
    s_add_u32 {sRG}, {sCT}, s3
    s_and_b32 s3, {sI2}, 3
    s_lshr_b32 s3, s3, {cfg.gq_sh}
    s_mul_i32 s3, s3, {cfg.gq_mul}
    s_add_u32 {sRG}, {sRG}, s3
    """)
    S += mod7(sRG) if cfg.rot_g else [f"s_mov_b32 {sRG}, 0"]
    S += [f"s_mov_b32 {sR}, {sRG}"]
    for i in range(7):
        S += [f"s_mul_i32 s3, {sR}, 57344", f"s_add_u32 {sDG[i]}, s3, {sDB}"] + (rot_next(sR) if i < 6 else [])
    S += srd_hi(WD, NW) + srd_hi(WS, WS_SIZE) + srd_hi(SK, 4096) + srd_hi(OUT, NQ)
    S += lines(f"""
    s_lshr_b32 {sT2}, {sW}, 1
    s_and_b32 {sKH}, {sW}, 1
    s_lshl_b32 {sM}, s2, 1
    s_add_u32 {sM}, {sM}, {sT2}
    s_lshl_b32 s3, {sM}, 12""") + [f"s_add_u32 s20, s20, s3\n s_addc_u32 s21, s21, 0"] + lines(f"""
    s_mov_b32 {sNL2E}, 0xbfb8aa3b
    s_mov_b32 {sMASK}, 0xffff0000
    s_mov_b32 {sONE}, 1
    """)
    S2 = lines(f"""
    s_mov_b32 {sHS}, {sWB}
    s_lshl_b32 {sU}, {sKH}, 11
    v_add_u32 {v(VSK[0])}, {sU}, {v(V16)}
    v_add_u32 {v(VSK[1])}, -16, {v(VSK[0])}
    v_add_u32 {v(VSK[2])}, 1008, {v(VSK[0])}
    s_mul_i32 {sT0}, {sT2}, {HCCH}
    s_add_u32 {sT0}, {sT0}, {HC}
    s_mul_i32 {sT1}, {sT2}, {UCH}
    s_add_u32 {sT1}, {sT1}, {UL}
    s_add_u32 s3, {sU}, {sT0}
    s_add_u32 s3, s3, 32
    v_add_u32 {v(VHW)}, s3, {v(V16)}
    v_and_b32 {v(T0)}, 15, {v(VL)}
    v_lshrrev_b32 {v(T1)}, 4, {v(VL)}
    v_sub_u32 {v(T2)}, 3, {v(T0)}
    v_and_b32 {v(T2)}, 3, {v(T2)}
    v_add3_u32 {v(T3)}, {v(T0)}, {v(T2)}, 1
    v_lshl_add_u32 {v(T3)}, {v(T1)}, 3, {v(T3)}
    v_lshlrev_b32 {v(T3)}, 1, {v(T3)}
    v_mul_u32_u24 {v(T2)}, {CPY}, {v(T2)}
    s_lshl_b32 s3, {sKH}, 8
    s_add_u32 {sT0}, {sT0}, s3
    v_add3_u32 {v(CA)}, {v(T2)}, {v(T3)}, {sT0}
    v_lshlrev_b32 {v(T0)}, 5, {v(T0)}
    v_lshlrev_b32 {v(T1)}, 4, {v(T1)}
    v_sub_u32 {v(T1)}, {v(T1)}, {v(T0)}
    s_add_u32 s3, s3, {sT1}
    s_add_u32 s3, s3, 480
    v_add_u32 {v(CB)}, s3, {v(T1)}
    s_add_u32 {sPA}, {sT1}, {sU}
    s_lshl_b32 s3, {sM}, 12
    s_add_u32 {sU}, {sU}, s3
    v_mov_b32 {v(VZ)}, 0
    v_mov_b32 {v(VZ+1)}, 0
    v_mov_b32 {v(VZ+2)}, 0
    v_mov_b32 {v(VZ+3)}, 0
    v_lshrrev_b32 {v(T0)}, 5, {v(VL)}
    v_mul_u32_u24 {v(T0)}, {UCH}, {v(T0)}
    v_and_b32 {v(T1)}, 31, {v(VL)}
    v_lshl_add_u32 {v(T0)}, {v(T1)}, 4, {v(T0)}
    v_add_u32 {v(T0)}, {UL+4096}, {v(T0)}
    ds_write_b128 {v(T0)}, {v(VZ,4)}
    v_and_b32 {v(T0)}, 15, {v(VL)}
    v_lshrrev_b32 {v(T1)}, 1, {v(T0)}
    v_mul_u32_u24 {v(T1)}, {CPY}, {v(T1)}
    v_and_b32 {v(T0)}, 1, {v(T0)}
    v_lshl_add_u32 {v(T0)}, {v(T0)}, 4, {v(T1)}
    v_add_u32 {v(VHZ)}, {HC}, {v(T0)}
    s_lshl_b32 s3, {sI2}, 1
    s_add_u32 {sT0}, s3, {sKH}
    s_xor_b32 {sT1}, {sT0}, 1
    s_mul_i32 {sT0}, {sT0}, 112
    s_mul_i32 {sT1}, {sT1}, 112
    s_mul_i32 s3, {sW}, 28
    s_add_u32 {sT0}, {sT0}, s3
    s_add_u32 {sT1}, {sT1}, s3
    s_lshl_b32 {sT0}, {sT0}, 10
    s_lshl_b32 {sT1}, {sT1}, 10
    s_add_u32 {sHL[0]}, {sT0}, {WS_H}
    s_add_u32 {sHL[1]}, {sT1}, {WS_H}
    """)
    skl = [f"buffer_load_dwordx4 {v(HR,4)}, {v(VSK[1])}, {SK}, 0 offen", f"buffer_load_dwordx4 {v(HR+4,4)}, {v(VSK[0])}, {SK}, 0 offen",
           f"buffer_load_dwordx4 {v(HR+8,4)}, {v(VSK[2])}, {SK}, 0 offen", f"buffer_load_dwordx4 {v(HR+12,4)}, {v(VSK[0])}, {SK}, 0 offen offset:1024"]

    NG = 224
    G = Gaps(NG)
    def item_start(i): return 12 * i if i <= 7 else 84 + 28 * (i - 7)
    gT = lambda T: item_start(T + 4)
    def xread(g):
        if g < 84: c = g // 12; ks = (g % 12) // 3; unit = g % 3; it = c
        else: it = 7 + (g - 84) // 28; k = (g - 84) % 28; ks = k % 4; unit = k // 4
        sl = it % 4; hi = 1 if sl >= 3 else 0
        off = (sl - 3 * hi) * SLOT + 1024 * unit
        return f"ds_read_b128 {v(XRING+4*(g%NXR),4)}, {v(XR[hi][ks])} offset:{off}"
    def wread(c, ks):
        sl = c % 4; var = sl // 2; off = (sl - 2 * var) * SLOT + PIECE * ks; f = 4 * (4 * c + ks)
        return [f"ds_read_b64_tr_b16 {a(f+2*rd,2)}, {v(WR[var])} offset:{off+512*rd}" for rd in range(2)]
    tile_acc = {0: 0, 1: 1, 2: 2, 3: 3, 4: 0, 5: 1, 6: 2, 7: 3}
    for g in range(NG):
        if g < 84: c = g // 12; ks = 4 * c + (g % 12) // 3; T = g % 3
        else: T = 3 + (g - 84) // 28; ks = (g - 84) % 28
        A = v(ACC[tile_acc[T]], 16)
        G.m[g] = f"v_mfma_f32_32x32x16_bf16 {A}, {a(4*ks,4)}, {v(XRING+4*(g%NXR),4)}, {'0' if ks == 0 else A}"
    pre = []
    def at(g, item):
        if g < 0: pre.append(item)
        else: G.put(g, item)
    gB = lambda i: item_start(i) - PD - 1
    G.put(cfg.p_load, poll_load("p", "0"))
    G.put(cfg.p_chk, [stamp("prepoll") if not (cfg.pass_stamps or cfg.start_stamps) else [], poll_check("p", "0"), Ins("s_barrier")])
    for i in range(12):
        at(gB(i), [WaitTag('vm', "it%d" % i), Ins("s_barrier")])
    assert cfg.z_chk < cfg.p_load
    if cfg.wd_touch >= 0: G.put(cfg.wd_touch, f"buffer_load_dword {v(202)}, {v(200)}, {WD}, 0 offen")
    G.put(cfg.z_load, poll_load("z", None))
    G.f[cfg.z_chk].insert(0, [stamp("zpre") if not (cfg.pass_stamps or cfg.start_stamps) else [], poll_check("z", None), stamp("zpost") if not (cfg.pass_stamps or cfg.start_stamps) else []])
    for g in range(NG):
        if g < 84 and g % 3 == 0:
            for s_ in wread(g // 12, (g % 12) // 3): at(g - PD - 1, s_)
        at(g - PD - 1, xread(g))
    for c in range(7): G.spread(dma_item(c + 2), max(gB(c) + 1, 0), gB(c + 1) + 1)
    for T in range(3, 8): G.put(gT(T), Ins("s_barrier"))
    G.spread(dma_item(9) + dma_item(10), gB(7) + 1, gB(8) + 1)
    G.spread(dma_item(11), gT(4) + 1, gT(4) + 20)
    if cfg.sk_at >= 0: G.spread(skl, cfg.sk_at, cfg.sk_at + 8)
    hv = []
    for rho in range(2):
        R = HR + 8 * rho; C_ = HCP + 12 * rho
        for k in range(4): hv.append(f"v_alignbit_b32 {v(C_+k)}, {v(R+4+k)}, {v(R+3+k)}, 16")
        for k in range(4): hv.append(f"v_mov_b32 {v(C_+4+k)}, {v(R+3+k)}")
        for k in range(4): hv.append(f"v_alignbit_b32 {v(C_+8+k)}, {v(R+3+k)}, {v(R+2+k)}, 16")
    hw = [Ins(f"ds_write_b128 {v(VHZ)}, {v(VZ,4)}", "hcw")]
    for rho in range(2):
        R = HR + 8 * rho; C_ = HCP + 12 * rho
        for cpy, src in enumerate((R + 4, C_, C_ + 4, C_ + 8)):
            hw.append(Ins(f"ds_write_b128 {v(VHW)}, {v(src,4)} offset:{cpy*CPY+1024*rho}", "hcw"))
    def epi(T, packed=False):
        A = ACC[tile_acc[T]]; Pk = PK[T % 2]; L = []
        for grp in range(2):
            g_ = A + 8 * grp; u_ = g_ + 4; E = ET
            if packed:
                E = ET if grp == 0 else HR
                L += [f"v_mul_f32 {v(E+i)}, {sNL2E}, {v(g_+i)}" for i in range(4)]
                L += [f"v_exp_f32 {v(E+i)}, {v(E+i)}" for i in range(4)]
                L += [f"v_pk_mul_f32 {v(u_+2*i,2)}, {v(g_+2*i,2)}, {v(u_+2*i,2)}" for i in range(2)]
                L += [f"v_pk_add_f32 {v(E+2*i,2)}, {v(E+2*i,2)}, 1.0 op_sel_hi:[1,0]" for i in range(2)]
                L += [f"v_rcp_f32 {v(E+i)}, {v(E+i)}" for i in range(4)]
                L += [f"v_pk_mul_f32 {v(u_+2*i,2)}, {v(u_+2*i,2)}, {v(E+2*i,2)}" for i in range(2)]
            else:
                L += [f"v_mul_f32 {v(E+i)}, {sNL2E}, {v(g_+i)}" for i in range(4)]
                L += [f"v_exp_f32 {v(E+i)}, {v(E+i)}" for i in range(4)]
                L += [f"v_mul_f32 {v(u_+i)}, {v(g_+i)}, {v(u_+i)}" for i in range(2)]
                L += [f"v_add_f32 {v(E+i)}, 1.0, {v(E+i)}" for i in range(4)]
                L += [f"v_rcp_f32 {v(E+i)}, {v(E+i)}" for i in range(4)]
                L += [f"v_mul_f32 {v(u_+i)}, {v(g_+i)}, {v(u_+i)}" for i in range(2, 4)]
                L += [f"v_mul_f32 {v(u_+i)}, {v(u_+i)}, {v(E+i)}" for i in range(4)]
            L += [f"v_cvt_pk_bf16_f32 {v(Pk+2*grp+i)}, {v(u_+2*i)}, {v(u_+2*i+1)}" for i in range(2)]
        L.append(f"s_lshl2_add_u32 {sSO2}, {sTO[T]}, {sHS}")
        L.append(Ins(f"buffer_store_dwordx4 {v(Pk,4)}, {v(V16)}, {WS}, {sSO2} offen sc1", "hst"))
        return L
    page_slot = [0, 1, 2, 3]
    def wd_page(n): return n if n < 21 else (n - 21 if n < 28 else (n - 7 if n < 35 else (n - 28 if n < 49 else n - 49)))
    def wd_prev(n): return n - 21 if 21 <= n < 28 else (n - 28 if n >= 35 else None)
    def wd_dma(n0, n1):
        L = []; n = n0
        while n < n1:
            p = wd_page(n); cnt = min(4, n1 - n, 7 - p % 7, 8 - n % 8)
            lds = page_slot[p // 7] * SLOT + 1024 * (p % 7)
            for k in range(cnt):
                it = [Ins(f"buffer_load_dwordx4 {v(VD[k])}, {WD}, {sSO} offen offset:{1024*k} lds", "wd%d" % (n + k))]
                if wd_prev(n + k) is not None: it = [WaitTag('lgkm', "wr%d" % wd_prev(n + k))] + it
                if k == 0: L.append(f"s_add_u32 m0, {sM0P}, {lds}\n s_add_u32 {sSO}, {sDG[n >> 3]}, {7168*(n % 8)}")
                L.append(it)
            n += cnt
        return L
    def wd_read(n, dst):
        p = wd_page(n); sl = page_slot[p // 7]; hi = 1 if sl >= 2 else 0
        off = (sl - 2 * hi) * SLOT + 1024 * (p % 7)
        return [[WaitTag('vm', "wd%d" % n)] * (dt == 0) + [Ins(f"ds_read_b64_tr_b16 {dst(dt)}, {v(DR[hi][dt])} offset:{off}", "wr%d" % n)] for dt in range(2)]
    WD1 = 112
    def wd1(n): return lambda dt: a(WD1 + 8 * (n >> 1) + 4 * dt + 2 * (n & 1), 2)
    def wd_reads(n0, n1): return [x for n in range(n0, n1) for x in wd_read(n, wd1(n))]
    lh = G.pour(hv, cfg.hv_at, 80, cfg.bud1); assert lh < 84
    G.spread(hw, cfg.hw0, cfg.hw1)
    G.spread(wd_dma(0, 7), gT(5) + 1, gT(5) + 24)
    G.spread(wd_dma(7, 14), gT(6) + 1, gT(6) + 20)
    UD = ([f"s_mov_b32 m0, {sPA}\n s_add_u32 {sSO}, {sU}, {WS_UR}"] + [Ins(f"buffer_load_dwordx4 {v(V16)}, {WS}, {sSO} offen offset:{1024*j} sc1 lds", "u") for j in range(2)])
    G.spread(wd_reads(0, 7), gB(11) + 2, gT(7) + 12)
    G.spread(wd_dma(14, 21), gT(7) + 1, cfg.p_chk)
    G.put(cfg.p_chk + 1, UD)
    G.spread(wd_dma(21, 28), cfg.p_chk + 2, NG - 1)
    bounds = [84 + 2 + (140 - 4) * k // 7 for k in range(8)]
    last = 0
    for T in range(7):
        g0 = max(bounds[T], (84 if T < 3 else gT(T + 1)) + 2, last)
        last = G.pour(epi(T), g0, max(bounds[T + 1], g0 + 1), cfg.bud)
        nxt = [t for t in range(T + 1, 8) if tile_acc[t] == tile_acc[T]]
        if nxt: assert last < gT(nxt[0]), (T, last)
    check_m0(G)
    SS = S + S2; k0 = len(SS) * cfg.late_pos // 100
    touch = []
    if cfg.x_touch:
        touch = lines(f"""v_min_u32 {v(200)}, {8*cfg.x_touch-1}, {v(VL)}
        v_lshrrev_b32 {v(201)}, 3, {v(200)}
        s_lshl_b32 s3, {sFQ}, 1
        s_add_u32 s3, s3, 3
        v_add_u32 {v(201)}, {'s3' if cfg.rot_t else '3'}, {v(201)}
        v_and_b32 {v(201)}, 7, {v(201)}
        v_mul_u32_u24 {v(201)}, 28672, {v(201)}
        v_and_b32 {v(200)}, 7, {v(200)}
        v_mul_u32_u24 {v(200)}, 896, {v(200)}
        v_add3_u32 {v(200)}, {v(200)}, {v(201)}, {sXBc}
        buffer_load_dword {v(202)}, {v(200)}, {X}, {sCH[0]} offen""")
    P.e(f"s_mov_b32 {sFQ}, {sT0}\n s_mov_b32 {sXBc}, {XB}")
    P.add(SS[:k0]); P.add(late_first)
    P.add(SS[k0:])
    P.add(touch)
    P.e(f"""s_lshl_b32 s3, s2, 2
    s_add_u32 s3, s3, {sW}
    s_mul_i32 s3, s3, 14
    v_min_u32 {v(200)}, 13, {v(VL)}
    v_add_lshl_u32 {v(200)}, {v(200)}, s3, 7""")
    if cfg.sk_at < 0: P.add(skl)
    if cfg.tlb:
        P.e(f"""v_min_u32 {v(203)}, 12, {v(VL)}
        v_lshlrev_b32 {v(203)}, 20, {v(203)}
        v_add_u32 {v(203)}, 0x1f000, {v(203)}
        buffer_load_dword {v(204)}, {v(203)}, {WS}, 0 offen
        buffer_load_dword {v(205)}, {v(VZ)}, {OUT}, 0 offen
        buffer_load_dword {v(206)}, {v(VZ)}, {WD}, 0 offen""")
    if cfg.wd_touch == -2: P.e(f"buffer_load_dword {v(202)}, {v(200)}, {WD}, 0 offen")
    if cfg.warm and cfg.stub_at:
        P.e("s_mov_b64 exec, 0")
        for k in range(min(4, len(cfg.stub_at))): P.e(f"s_cmp_eq_u32 {sW}, {k}\n s_cbranch_scc1 L_pg{k}")
        P.e("L_pgback:\n s_mov_b64 exec, -1")
    if cfg.start_stamps: P.add(stamp("setup"))
    P.e(f"""s_waitcnt lgkmcnt(0)
    s_lshl_b32 s3, {sD}, 16
    s_and_b32 {sD}, {sD}, 0xffff0000
    s_cmp_lt_u32 {sW}, 2
    s_cselect_b32 {sD}, s3, {sD}""")
    P.add(pre)
    P.add(stamp("g1start"))
    G.put(83, stamp("p1end"))
    if cfg.pass_stamps:
        for T in (5, 6, 7): G.put(gT(T) - 1, stamp("T%d" % T))
    add_trace(G, 6, 'g', [94, 96])
    G.emit(P, cfg.pair)
    if cfg.verbose: print("G1 gap costs", G.costs())
    if cfg.start_stamps: P.e("v_readfirstlane_b32 s8, v156\n v_readfirstlane_b32 s10, v157"); STAMP_REGS['prewait'] = 8; STAMP_REGS['karg'] = 10
    P.add(stamp("g1end"))
    P.vmwait("u"); P.lgwait("hcw"); P.e("s_barrier")
    CACC = 48
    def cA(buf, a_): return (0 if buf == 0 else 64) + 4 * a_
    def cB(buf, b_):
        i = 32 + 4 * b_ if buf == 0 else 96 + 4 * b_
        return i if i < 112 else 224 + (i - 112)
    def creads(st):
        buf = st & 1; L = []
        for k in range(8):
            L.append(f"ds_read_b128 {a(cB(buf,k),4)}, {v(CB)} offset:{64*st+512*(7-k)}")
            for rd in range(2): L.append(f"ds_read_b64 {a(cA(buf,k)+2*rd,2)}, {v(CA)} offset:{512*k+64*st+8*rd}")
        return L
    e7 = epi(7, True); c0 = creads(0)
    P.add(c0[:9])
    k = 0; rest = c0[9:15]; d2 = wd_dma(28, 28 + cfg.nwd_t); k2 = 0
    for j, it in enumerate(e7):
        P.add(it)
        if j % 5 == 4 and k < len(rest): P.add(rest[k]); k += 1
        if j % 5 == 1 and k2 < len(d2) and j < len(e7) - 3: P.add(d2[k2]); k2 += 1
    P.add(rest[k:]); P.add(d2[k2:])
    hg = [f"s_lshr_b32 s3, {sI2}, 2", "s_mul_i32 s3, s3, 28", f"s_add_u32 s3, s3, 256", f"s_lshl_b32 {sPA}, s3, 7"]
    for i in range(7): hg += [f"s_lshl_b32 {sHG[i]}, {sRG}, 12"] + (rot_next(sRG) if i < 6 else [])
    P.add(stamp("cstart"))
    C = Gaps(144)
    pairs = [(t, a_) for t in range(8) for a_ in range(t + 1)]
    C.spread(c0[15:], 0, 6)
    for st in range(4):
        for j, (t, a_) in enumerate(pairs):
            A = v(CACC + 4 * t, 4)
            C.m[36 * st + j] = f"v_mfma_f32_16x16x32_bf16 {A}, {a(cA(st&1,a_),4)}, {a(cB(st&1,t-a_),4)}, {'0' if (st == 0 and a_ == 0) else A}"
        if st < 3: C.spread(creads(st + 1), 36 * st + (6 if st == 0 else 1), 36 * st + 31)
    HRING = 96; NHR = 39 if cfg.trace else 40
    sHT = [sXB, sWB]
    def hload(n):
        ks = n >> 1; stl = n & 1; L = []
        if ks % 4 == 0: L.append(f"s_add_u32 {sHT[stl]}, {sHL[stl]}, {sHG[ks >> 2]}")
        L.append(f"buffer_load_dwordx4 {v(HRING+4*(n%NHR),4)}, {v(V16)}, {WS}, {sHT[stl]} offen offset:{1024*(ks%4)} sc1")
        return L
    C.pour(wd_reads(7, 28), 2, cfg.c_rd_end, 12)
    C.spread(wd_dma(28 + cfg.nwd_t, 56), 0, cfg.g_wd_end)
    C.put(cfg.g_arrive, arrive("hst", sFL))
    C.pour(hg, 46, 84, 12)
    C.put(cfg.g_poll, poll_load("h", sPA))
    C.put(cfg.g_chk, [stamp("c_pre"), poll_check("h", sPA), stamp("c_post")])
    NH = cfg.nh_c
    C.spread([hload(n) for n in range(NH)], cfg.g_chk + 1, 144)
    Y = 80; RR = 2; UU = 18; VRW = 26; VRR = 27; VUR = 37; VYS = 42
    ce = lines(f"""
    s_lshl_b32 s3, {sW}, 12
    s_add_u32 s3, s3, {HC}
    v_add_u32 {v(VRW)}, s3, {v(V16)}
    v_xor_b32 {v(VRR)}, 4096, {v(VRW)}
    v_and_b32 {v(T3)}, 15, {v(VL)}
    v_lshlrev_b32 {v(T3)}, 5, {v(T3)}
    v_lshrrev_b32 {v(T2)}, 4, {v(VL)}
    v_lshl_add_u32 {v(T3)}, {v(T2)}, 3, {v(T3)}
    s_lshr_b32 s3, {sW}, 1
    s_mul_i32 s3, s3, {UCH}
    s_lshl_b32 {sT0}, {sKH}, 11
    s_sub_u32 s3, s3, {sT0}
    s_add_u32 s3, s3, {UL+504+2048}
    v_sub_u32 {v(VUR)}, s3, {v(T3)}
    v_and_b32 {v(T1)}, 3, {v(VL)}
    v_lshlrev_b32 {v(T1)}, 4, {v(T1)}
    v_bfe_u32 {v(T3)}, {v(VL)}, 2, 2
    v_lshl_add_u32 {v(T1)}, {v(T3)}, 7, {v(T1)}
    v_bfe_u32 {v(T3)}, {v(VL)}, 4, 1
    v_lshl_add_u32 {v(T1)}, {v(T3)}, 9, {v(T1)}
    v_lshrrev_b32 {v(T3)}, 5, {v(VL)}
    v_lshl_add_u32 {v(VYS)}, {v(T3)}, 6, {v(T1)}
    s_add_u32 {sU}, {sU}, {WS_YT}
    """)
    ce += [f"ds_read_b64 {v(UU+2*tau,2)}, {v(VUR)} offset:{512*(3-tau)}" for tau in range(4)]
    DU = 80
    for tau in range(4):
        ce += lines(f"""
        v_and_b32 {v(DU+4*tau+0)}, {sMASK}, {v(UU+2*tau+1)}
        v_lshlrev_b32 {v(DU+4*tau+1)}, 16, {v(UU+2*tau+1)}
        v_and_b32 {v(DU+4*tau+2)}, {sMASK}, {v(UU+2*tau)}
        v_lshlrev_b32 {v(DU+4*tau+3)}, 16, {v(UU+2*tau)}""")
    lc = C.pour(ce, 100, 142, 8)
    check_m0(C)
    add_trace(C, 12, 'c', [94, 96])
    C.emit(P)
    if cfg.verbose: print("C gap costs", C.costs())
    hq = [hload(n) for n in range(NH, NH + cfg.nh_e)]; NH += cfg.nh_e
    def hnext():
        if hq: P.add(hq.pop(0))
    P.e("s_barrier")
    hnext()
    P.e(f"s_cmp_eq_u32 {sKH}, 0\n s_nop 3\n s_cbranch_scc1 L_cw0")
    for tau in range(4): P.e(f"ds_write_b128 {v(VRW)}, {v(CACC+4*tau,4)} offset:{1024*tau}", nocount=True)
    for k in range(16): P.e(f"v_fma_f32 {v(DU+k)}, {sD}, {v(DU+k)}, {v(CACC+16+k)}")
    P.e("s_branch L_cw1\n L_cw0:")
    for tau in range(4): P.e(f"ds_write_b128 {v(VRW)}, {v(CACC+16+4*tau,4)} offset:{1024*tau}")
    for k in range(16): P.e(f"v_fma_f32 {v(DU+k)}, {sD}, {v(DU+k)}, {v(CACC+k)}")
    P.e("L_cw1:"); hnext()
    P.e("s_waitcnt lgkmcnt(0)\n s_barrier")
    for tau in range(4): P.e(f"ds_read_b128 {v(RR+4*tau,4)}, {v(VRR)} offset:{1024*tau}")
    hnext(); hnext()
    for pi in range(2):
        for k in range(4): P.e(f"v_pk_add_f32 {v(DU+8*pi+2*k,2)}, {v(DU+8*pi+2*k,2)}, {v(RR+8*pi+2*k,2)}")
        for k in range(4): P.e(f"v_cvt_pk_bf16_f32 {v(UU+4*pi+k)}, {v(DU+8*pi+2*k)}, {v(DU+8*pi+2*k+1)}")
        hnext()
        P.e(f"v_permlane16_swap_b32 {v(UU+4*pi)}, {v(UU+4*pi+2)}\n v_permlane16_swap_b32 {v(UU+4*pi+1)}, {v(UU+4*pi+3)}")
        P.e(f"buffer_store_dwordx4 {v(UU+4*pi,4)}, {v(VYS)}, {WS}, {sU} offen offset:{1024*pi} sc1", tag="yst")
    while hq: hnext()
    P.add(stamp("g2start"))
    GACC = 0; JIT = 64; NJ = 6
    G2 = Gaps(112)
    def wfrag(ks, dt):
        if ks < 14: return a(WD1 + 8 * ks + 4 * dt, 4)
        return a(JIT + 4 * ((2 * (ks - 14) + dt) % NJ), 4)
    for ks in range(28):
        for sg in range(4):
            A = a(GACC + 16 * sg, 16)
            G2.m[4 * ks + sg] = f"v_mfma_f32_32x32x16_bf16 {A}, {wfrag(ks, sg>>1)}, {v(HRING+4*((2*ks+(sg&1))%NHR),4)}, {'0' if ks == 0 else A}"
    for ks in range(14, 28):
        for rd in range(2):
            its = wd_read(2 * ks + rd, lambda dt, ks=ks, rd=rd: a(JIT + 4 * ((2 * (ks - 14) + dt) % NJ) + 2 * rd, 2))
            for dt in range(2): G2.put(4 * ks - 7 + 2 * rd + dt, its[dt])
    gprev = 0
    for n in range(NH, 56):
        g = int((n - NH) * cfg.g2_hpace)
        if n >= NHR: g = max(4 * ((n - NHR) >> 1) + 4, g)
        g = max(g, gprev); gprev = g
        assert g < 4 * (n >> 1), (n, g)
        G2.put(g, hload(n))
    VY = [10, 11]; VQ = [12, 13]; VG = 14; VGA = 15; OMG = 16
    EW = [2, 3]; ER = [4, 5, 6]; EY = 7; EQ = [8, 9, 26, 27]; EO = 17
    red_slot = [None, 0, 1, 2]
    e1 = lines(f"""
    s_lshl_b32 s3, s2, 7
    s_add_u32 {sFL}, s3, {512*128}
    s_lshl_b32 s3, {sCT}, 12
    s_add_u32 {sPA}, s3, {512*128}
    v_lshrrev_b32 {v(T1)}, 3, {v(VL)}
    v_and_b32 {v(T2)}, 7, {v(VL)}
    v_lshlrev_b32 {v(T3)}, 12, {v(T1)}
    v_lshl_add_u32 {v(VY[0])}, {v(T2)}, 4, {v(T3)}
    v_add_u32 {v(VY[1])}, {32768-1024}, {v(VY[0])}
    v_lshrrev_b32 {v(T3)}, 4, {v(VL)}
    v_xor_b32 {v(T2)}, {v(T2)}, {v(T3)}
    v_lshlrev_b32 {v(T2)}, 4, {v(T2)}
    v_mul_u32_u24 {v(T1)}, 896, {v(T1)}
    v_add_u32 {v(VQ[0])}, {v(T1)}, {v(T2)}
    v_xor_b32 {v(T2)}, 64, {v(T2)}
    v_add_u32 {v(T1)}, {7168-1024}, {v(T1)}
    v_add_u32 {v(VQ[1])}, {v(T1)}, {v(T2)}
    s_lshl_b32 s3, {sI2}, 1
    s_add_u32 s3, s3, {sKH}
    s_lshl_b32 s3, s3, 7
    s_add_u32 s3, s3, {WS_G}
    v_and_b32 {v(T1)}, 31, {v(VL)}
    v_lshl_add_u32 {v(VGA)}, {v(T1)}, 2, s3
    s_lshl_b32 s3, {sI2}, 2
    s_add_u32 s3, s3, {sW}
    s_mul_i32 s3, s3, {16*896}
    s_lshl_b32 {sSO}, {sCT}, 7
    s_add_u32 {sSO}, {sSO}, s3
    s_add_u32 {sSO}, {sSO}, {XB}
    """)
    l1 = G2.pour(e1, 0, cfg.g2_arrive - 1, 20); assert l1 <= cfg.g2_arrive
    G2.put(cfg.g2_arrive, arrive("yst", sFL))
    qd = [f"s_lshl_b32 s3, {sW}, 11\n s_add_u32 m0, s3, {QL}"]
    qd += [Ins(f"buffer_load_dwordx4 {v(VQ[j])}, {X}, {sSO} offen offset:{1024*j} lds", "qy") for j in range(2)]
    qd += [f"buffer_load_dword {v(VG)}, {v(VGA)}, {WS}, 0 offen sc1"]
    G2.spread(qd, cfg.g2_arrive + 1, cfg.g2_arrive + 9)
    ea = [f"v_add_u32 {v(EW[0])}, {sM0P}, {v(V16)}", f"v_add_u32 {v(EW[1])}, {3*SLOT}, {v(EW[0])}"]
    for sg in range(1, 4):
        ea += [f"s_xor_b32 s3, {sW}, {sg}", f"s_mul_i32 s3, s3, {PIECE}", f"s_add_u32 s3, s3, {red_slot[sg]*SLOT}", f"v_add_u32 {v(ER[sg-1])}, s3, {v(V16)}"]
    ea += lines(f"""s_lshr_b32 {sT0}, {sW}, 1
    v_bfe_u32 {v(T1)}, {v(VL)}, 2, 2
    v_lshrrev_b32 {v(T2)}, 5, {v(VL)}
    v_lshl_add_u32 {v(T1)}, {v(T2)}, 2, {v(T1)}
    v_lshlrev_b32 {v(T1)}, 7, {v(T1)}
    v_bfe_u32 {v(T3)}, {v(VL)}, 1, 1
    v_lshl_add_u32 {v(T1)}, {v(T3)}, 6, {v(T1)}
    v_bfe_u32 {v(T3)}, {v(VL)}, 4, 1
    v_lshl_add_u32 {v(T1)}, {v(T3)}, 4, {v(T1)}
    v_and_b32 {v(T3)}, 1, {v(VL)}
    v_lshl_add_u32 {v(T1)}, {v(T3)}, 3, {v(T1)}
    s_lshl_b32 s3, {sT0}, 12
    s_lshl_b32 {sT1}, {sKH}, 5
    s_add_u32 s3, s3, {sT1}
    s_add_u32 s3, s3, {YL}
    v_add_u32 {v(EY)}, s3, {v(T1)}
    v_and_b32 {v(T1)}, 31, {v(VL)}
    v_bfe_u32 {v(T3)}, {v(VL)}, 1, 3
    s_lshl_b32 s3, {sT0}, 2
    v_xor_b32 {v(T3)}, s3, {v(T3)}
    v_lshlrev_b32 {v(T3)}, 4, {v(T3)}
    v_lshl_add_u32 {v(T3)}, {v(T1)}, 7, {v(T3)}
    v_lshl_add_u32 {v(T3)}, {v(T2)}, 3, {v(T3)}
    s_lshl_b32 s3, {sKH}, 12
    s_add_u32 s3, s3, {QL}
    v_add_u32 {v(EQ[0])}, s3, {v(T3)}
    v_xor_b32 {v(EQ[1])}, 16, {v(EQ[0])}
    v_xor_b32 {v(EQ[2])}, 32, {v(EQ[0])}
    v_xor_b32 {v(EQ[3])}, 48, {v(EQ[0])}
    v_mul_u32_u24 {v(T1)}, 896, {v(T1)}
    v_lshl_add_u32 {v(EO)}, {v(T2)}, 4, {v(T1)}
    s_lshl_b32 s3, {sI2}, 1
    s_add_u32 s3, s3, {sKH}
    s_mul_i32 {sSO2}, s3, {32*896}
    s_lshl_b32 s3, {sCT}, 1
    s_add_u32 s3, s3, {sT0}
    s_lshl_b32 s3, s3, 6
    s_add_u32 {sSO2}, {sSO2}, s3
    s_lshl_b32 s3, {sCT}, 2
    s_add_u32 s3, s3, {sW}
    s_lshl_b32 s3, s3, 16
    s_lshl_b32 {sSO}, {sI2}, 7
    s_add_u32 {sSO}, {sSO}, s3
    s_add_u32 {sSO}, {sSO}, {WS_YT}""")
    l2 = G2.pour(ea, cfg.g2_arrive + 10, cfg.g2_chk - 1, 20); assert l2 <= cfg.g2_chk
    G2.put(cfg.g2_poll, poll_load("y", sPA))
    G2.put(cfg.g2_chk, [stamp("g2_pre"), poll_check("y", sPA), Ins("s_barrier"), [] if cfg.pass_stamps else stamp("g2_post")])
    yd = [f"s_lshl_b32 s3, {sW}, 11\n s_add_u32 m0, s3, {YL}"]
    yd += [Ins(f"buffer_load_dwordx4 {v(VY[j])}, {WS}, {sSO} offen offset:{1024*j} sc1 lds", "qy") for j in range(2)]
    G2.spread(yd, cfg.g2_chk + 1, cfg.g2_chk + 4)
    YY = 48; QQ = 56; TT = 64; TQ = 80
    pe = [[WaitTag('vm', "qy"), Ins("s_barrier")]]
    for J in range(4):
        pe += [f"ds_read_b64_tr_b16 {v(YY+2*J,2)}, {v(EY)} offset:{1024*J}", f"ds_read_b64 {v(QQ+2*J,2)}, {v(EQ[J])}"]
    pe += [f"v_sub_f32 {v(OMG)}, 1.0, {v(VG)}"]
    for J in range(4):
        for i in range(4):
            src = 2 * J + (i >> 1)
            un = (lambda d, s_: f"v_lshlrev_b32 {d}, 16, {s_}") if i % 2 == 0 else (lambda d, s_: f"v_and_b32 {d}, {sMASK}, {s_}")
            pe += [un(v(TT + 4 * J + i), v(YY + src)), un(v(TQ + i), v(QQ + src))]
        pe += [f"v_mul_f32 {v(TT+4*J+i)}, {v(TT+4*J+i)}, {v(TQ+i)}" for i in range(4)]
        pe += [f"v_mul_f32 {v(TT+4*J+i)}, {v(TT+4*J+i)}, {v(VG)}" for i in range(4)]
    G2.pour(pe, cfg.g2_pre, 111, 24)
    check_m0(G2)
    add_trace(G2, 8, 'h', [94, 96])
    G2.emit(P)
    if cfg.verbose: print("G2 gap costs", G2.costs())
    P.add(stamp("g2end"))
    B = 96; R1 = 112; O = 48
    for sg in range(1, 4):
        for J in range(4):
            if red_slot[sg] == 3: P.e(f"ds_write_b128 {v(EW[1])}, {a(GACC+16*sg+4*J,4)} offset:{1024*J}")
            else: P.e(f"ds_write_b128 {v(EW[0])}, {a(GACC+16*sg+4*J,4)} offset:{red_slot[sg]*SLOT+1024*J}")
    for k in range(16): P.e(f"v_accvgpr_read_b32 {v(B+k)}, {a(GACC+k)}")
    P.e(f"v_mov_b32 {v(T1)}, {v(OMG)}")
    P.e("s_waitcnt lgkmcnt(0)\n s_barrier")
    for J in range(4):
        for sg in range(1, 4): P.e(f"ds_read_b128 {v(R1+16*(sg-1)+4*J,4)}, {v(ER[sg-1])} offset:{1024*J}")
    OM2 = 34
    P.e(f"v_mov_b32 {v(T2)}, {v(OMG)}")
    for J in range(4):
        for sg in range(3):
            for i in range(2): P.e(f"v_pk_add_f32 {v(B+4*J+2*i,2)}, {v(B+4*J+2*i,2)}, {v(R1+16*sg+4*J+2*i,2)}")
        for i in range(2): P.e(f"v_pk_fma_f32 {v(TT+4*J+2*i,2)}, {v(B+4*J+2*i,2)}, {v(OM2,2)}, {v(TT+4*J+2*i,2)}")
        for i in range(2): P.e(f"v_cvt_pk_bf16_f32 {v(O+2*J+i)}, {v(TT+4*J+2*i)}, {v(TT+4*J+2*i+1)}")
        if J % 2 == 1:
            o = O + 2 * J - 2
            P.e(f"v_permlane32_swap_b32 {v(o)}, {v(o+2)}\n v_permlane32_swap_b32 {v(o+1)}, {v(o+3)}")
            P.e(f"buffer_store_dwordx4 {v(o,4)}, {v(EO)}, {OUT}, {sSO2} offen offset:{32*(J>>1)} {cfg.sc_out}")
    if cfg.stamps: emit_stamps(P)
    if cfg.fixdur:
        P.e(f"""L_fix:
        s_memrealtime s[4:5]
        s_waitcnt lgkmcnt(0)
        s_sub_u32 s4, s4, s100
        s_cmp_lt_i32 s4, {cfg.fixdur}
        s_cbranch_scc1 L_fix""")
    P.e("s_endpgm")

def check_m0(G):
    flat = []
    def fl(it):
        if isinstance(it, str):
            for l in lines(it): flat.append(Ins(l))
        elif isinstance(it, (list, tuple)):
            for x in it: fl(x)
        elif isinstance(it, Ins): flat.append(it)
    for f in G.f:
        for it in f: fl(it)
    last_off = None
    for it in flat:
        if it.kind == 'salu' and ('s', 'm0') in it.w: last_off = -1024
        if it.kind == 'dma':
            m = re.search(r'offset:(\d+)', it.text); off = int(m.group(1)) if m else 0
            assert last_off is not None and off == last_off + 1024, ("m0 group interleaved", it.text)
            last_off = off

def emit_stamps(P):
    P.e("s_waitcnt vmcnt(0)")
    P.e("s_memtime s[4:5]\n s_memrealtime s[6:7]\n s_waitcnt lgkmcnt(0)")
    n = len(stamp_names)
    for k in range(n):
        P.e(f"s_sub_u32 s3, s{STAMP_REGS[stamp_names[k]]}, {'s100' if cfg.rt else 's98'}"); P.e(f"v_mov_b32 v{200+k}, s3")
    P.e(f"s_sub_u32 s3, {'s6, s100' if cfg.rt else 's4, s98'}\n v_mov_b32 v{200+n}, s3")
    P.e(f"""s_lshl_b32 s3, s2, 2
    s_add_u32 s3, s3, {sW}
    s_lshl_b32 s3, s3, 7
    s_add_u32 s3, s3, {WS_STAMP}
    v_mov_b32 v229, 0
    v_mov_b32 v230, s100
    v_mov_b32 v231, s6
    v_mov_b32 v2, 0
    s_mov_b64 exec, 1""")
    for k in range(8): P.e(f"buffer_store_dwordx4 v[{200+4*k}:{203+4*k}], v2, {WS}, s3 offen offset:{16*k}")
    if cfg.trace:
        P.e(f"""s_mov_b64 exec, -1
        v_subrev_u32 v254, s98, v254
        v_subrev_u32 v255, s98, v255
        s_lshl_b32 s3, s2, 2
        s_add_u32 s3, s3, {sW}
        s_lshl_b32 s3, s3, 9
        s_add_u32 s3, s3, {WS_STAMP + 0x40000}
        v_lshlrev_b32 v2, 2, v1
        buffer_store_dword v254, v2, {WS}, s3 offen
        buffer_store_dword v255, v2, {WS}, s3 offen offset:256""")

def gen_aux(P0):
    P = P0
    K, V_, SH, GW = "s[40:43]", "s[44:47]", "s[48:51]", "s[52:55]"
    sA = "s68"; sST = "s69"; sUS = "s70"; sLO = "s71"; sHI = "s72"; sC = "s73"; sC2 = "s74"; sTA = ["s56", "s57"]; sTW = ["s58", "s59"]
    VL = 1; T0 = 2; T1 = 3; VZA = 4; VB = 5; VB2 = 6; VM = 7; VX = 8; VR = 9; VS = 11; VW = 12; VWt = [13, 14]; VRB = 16; VQ = 20; VQ2 = 21; VGW = 22
    KP = [48, 58]; VP = [68, 76]; WR_ = [84, 86]; WT = [88, 94]; OO = 100; UV = 108; OUT_ = 124; RB = 160; PF = 24
    TS = 17408
    P.e("s_cmp_lt_u32 s2, 256\n s_cbranch_scc1 L_auxgo\n s_endpgm\n L_auxgo:")
    for reg, off in ((K, 8), (V_, 16), (SH, 24), (GW, 80)): P.e(ldptr(reg, off))
    P.add(srd_hi(K, NQ) + srd_hi(V_, NQ) + srd_hi(SH, 3584) + srd_hi(X, NQ) + srd_hi(GW, 896) + srd_hi(WS, WS_SIZE) + srd_hi(WD, NW))
    P.e(f"""
    s_sub_u32 {sA}, s2, 224
    s_mul_i32 {sSO}, {sA}, {64*896}
    s_mul_i32 {sST}, {sW}, 40960
    s_lshl_b32 {sTA[0]}, {sW}, 7
    s_add_u32 {sTA[1]}, {sTA[0]}, 512
    s_lshl_b32 {sTW[0]}, {sW}, 9
    s_add_u32 {sTW[1]}, {sTW[0]}, 2048
    v_lshrrev_b32 {v(T0)}, 3, {v(VL)}
    v_and_b32 {v(T1)}, 7, {v(VL)}
    v_mul_u32_u24 {v(VB)}, 896, {v(T0)}
    v_lshl_add_u32 {v(VB)}, {v(T1)}, 4, {v(VB)}
    v_add_u32 {v(VB)}, {sSO}, {v(VB)}
    v_add_u32 {v(VB2)}, 6144, {v(VB)}
    v_add_u32 {v(VM)}, -7168, {v(VB)}
    v_lshlrev_b32 {v(VX)}, 3, {v(VL)}
    s_mul_i32 s3, {sA}, {24*128}
    v_lshlrev_b32 {v(VZA)}, 7, {v(VL)}
    v_add_u32 {v(VZA)}, s3, {v(VZA)}
    v_mov_b32 {v(vARR)}, -16
    v_cmp_gt_u32 vcc, 24, v0
    v_mov_b32 {v(vZERO)}, 0
    v_cndmask_b32 {v(VZA)}, {v(vARR)}, {v(VZA)}, vcc
    v_cmp_eq_u32 vcc, 0, v0
    v_mov_b32 {v(vONE)}, 1
    s_waitcnt lgkmcnt(0)
    v_cndmask_b32 {v(vARR)}, {v(vARR)}, 0, vcc
    s_mov_b32 s34, 256
    s_mov_b32 s35, 0x20000
    """)
    def dset(k, j):
        b = TS * k; tag = "pin%d%d" % (k, j); L = []
        L.append([f"s_add_u32 {sC}, {sTA[k]}, {14336*j}\n s_add_u32 m0, {sST}, {b+1024+2048*j}", Ins(f"buffer_load_dwordx4 {v(VB)}, {K}, {sC} offen lds", tag)])
        L.append(Ins(f"buffer_load_dwordx4 {v(VB2)}, {K}, {sC} offen offset:1024 lds", tag))
        if j == 0:
            L.append([f"s_add_u32 m0, {sST}, {b}", Ins(f"buffer_load_dwordx4 {v(VM)}, {K}, {sC} offen lds", tag)])
            L.append(f"buffer_load_dwordx2 {v(WR_[k],2)}, {v(VX)}, {SH}, {sTW[k]} offen")
        L.append([f"s_add_u32 m0, {sST}, {b+9216+2048*j}", Ins(f"buffer_load_dwordx4 {v(VB)}, {V_}, {sC} offen lds", tag)])
        L.append(Ins(f"buffer_load_dwordx4 {v(VB2)}, {V_}, {sC} offen offset:1024 lds", tag))
        return L
    P.add(dset(0, 0))
    P.e(f"buffer_store_dword {v(vZERO)}, {v(VZA)}, {WS}, 0 offen sc1", tag="zst")
    P.add(dset(0, 1))
    P.e(f"""
    v_bfe_u32 {v(VR)}, {v(VL)}, 2, 2
    v_lshlrev_b32 {v(VR)}, 7, {v(VR)}
    v_lshrrev_b32 {v(VS)}, 4, {v(VL)}
    v_lshl_add_u32 {v(VR)}, {v(VS)}, 5, {v(VR)}
    v_and_b32 {v(VS)}, 3, {v(VL)}
    v_lshl_add_u32 {v(VR)}, {v(VS)}, 3, {v(VR)}
    v_add_u32 {v(VR)}, {sST}, {v(VR)}
    s_mov_b32 {sLO}, 0xffff
    s_mov_b32 {sMASK}, 0xffff0000
    v_lshlrev_b32 {v(VW)}, 4, {v(T1)}
    v_lshl_add_u32 {v(VW)}, {v(VL)}, 7, {v(VW)}
    v_add_u32 {v(VW)}, {sST}, {v(VW)}
    v_xor_b32 {v(VRB)}, {v(T0)}, {v(T1)}
    v_lshlrev_b32 {v(VRB)}, 4, {v(VRB)}
    v_lshl_add_u32 {v(VRB)}, {v(T0)}, 7, {v(VRB)}
    v_add_u32 {v(VRB)}, {sST}, {v(VRB)}
    v_lshlrev_b32 {v(VGW)}, 4, {v(T1)}
    v_lshl_add_u32 {v(VS)}, {v(T0)}, 12, {v(VGW)}
    v_mul_u32_u24 {v(VQ)}, {8*896}, {v(T0)}
    v_add_u32 {v(VQ)}, {v(VQ)}, {v(VGW)}
    v_add_u32 {v(VQ)}, {sSO}, {v(VQ)}
    v_add_u32 {v(VQ2)}, {4*896}, {v(VQ)}
    s_lshl_b32 s3, {sW}, 18
    s_sub_u32 {sUS}, 31, {sA}
    s_lshl_b32 {sUS}, {sUS}, 7
    s_add_u32 {sUS}, {sUS}, s3
    s_add_u32 {sUS}, {sUS}, {WS_UR}
    """)
    P.add(dset(0, 2))
    P.vmwait("zst")
    P.e(f"buffer_atomic_add {v(vONE)}, {v(vARR)}, s[32:35], 0 offen sc1")
    P.add(dset(0, 3))
    def reads(k, j):
        b = TS * k; K_ = KP[j & 1]; V2 = VP[j & 1]
        L = [WaitTag('vm', "pin%d%d" % (k, j))]
        L += [f"ds_read_b64_tr_b16 {v(K_+2*m,2)}, {v(VR)} offset:{b+512+2048*j+512*m}" for m in range(5)]
        L += [f"ds_read_b64_tr_b16 {v(V2+2*m,2)}, {v(VR)} offset:{b+9216+2048*j+512*m}" for m in range(4)]
        return L
    def wprep(k):
        W = WR_[k]; T_ = WT[k]
        return lines(f"""v_alignbit_b32 {v(T_)}, {v(W)}, {v(W)}, 16
        v_alignbit_b32 {v(T_+1)}, {v(W+1)}, {v(W+1)}, 16
        v_and_b32 {v(T_+2)}, {sLO}, {v(W)}
        v_bfi_b32 {v(T_+3)}, {sLO}, {v(W+1)}, {v(W)}
        v_and_b32 {v(T_+4)}, {sMASK}, {v(W+1)}""")
    def owrites(k, j):
        return [[f"v_xor_b32 {v(VWt[q&1])}, {16*q}, {v(VW)}", Ins(f"ds_write_b128 {v(VWt[q&1])}, {v(OUT_+4*q,4)} offset:{TS*k}", "ow")] for q in (7 - 2 * j, 6 - 2 * j)]
    def readback(k): return [f"ds_read_b128 {v(RB+4*q,4)}, {v(VRB)} offset:{TS*k+1024*q}" for q in range(8)]
    def stores(k): return [[f"s_add_u32 {sC2}, {sUS}, {(k << 20) + 32768*q}", Ins(f"buffer_store_dwordx4 {v(RB+4*q,4)}, {v(VS)}, {WS}, {sC2} offen sc1", "pst")] for q in range(8)]
    def step(P, k, j, fill):
        K_ = KP[j & 1]; V2 = VP[j & 1]; T_ = WT[k]; fill = list(fill); per = (len(fill) + 9) // 10
        def nx():
            for _ in range(per):
                if fill: P.add(fill.pop(0))
        P.add(WaitRegs(v(V2 + 6, 2)))
        for h in range(2):
            J = range(4 * h, 4 * h + 4)
            for i in J: P.e(f"v_dot2_f32_bf16 {v(OO+2*(i%4))}, {v(K_+i+2)}, {v(T_+2)}, 0\n v_dot2_f32_bf16 {v(OO+2*(i%4)+1)}, {v(K_+i+2)}, {v(T_)}, 0")
            nx()
            for i in J: P.e(f"v_dot2_f32_bf16 {v(OO+2*(i%4))}, {v(K_+i+1)}, {v(T_+3)}, {v(OO+2*(i%4))}\n v_dot2_f32_bf16 {v(OO+2*(i%4)+1)}, {v(K_+i+1)}, {v(T_+1)}, {v(OO+2*(i%4)+1)}")
            nx()
            for i in J: P.e(f"v_dot2_f32_bf16 {v(OO+2*(i%4))}, {v(K_+i)}, {v(T_+4)}, {v(OO+2*(i%4))}")
            nx()
            for i in J: P.e(f"v_lshlrev_b32 {v(UV+2*(i%4))}, 16, {v(V2+i)}\n v_and_b32 {v(UV+2*(i%4)+1)}, {sMASK}, {v(V2+i)}")
            nx()
            for i in J: P.e(f"v_pk_mul_f32 {v(UV+2*(i%4),2)}, {v(UV+2*(i%4),2)}, {v(OO+2*(i%4),2)}")
            nx()
            for i in J: P.e(f"v_cvt_pk_bf16_f32 {v(OUT_+31-8*j-i)}, {v(UV+2*(i%4)+1)}, {v(UV+2*(i%4))}")
        while fill: nx()
    P.add(reads(0, 0)); P.add(wprep(0))
    if cfg.stamps: P.e("s_waitcnt lgkmcnt(0)\n s_memtime s[86:87]")
    P.e(f"s_cmp_eq_u32 {sW}, 3\n s_cbranch_scc1 L_gate")
    Pg = Prog(); Pg.items = list(P.items)
    step(P, 0, 0, dset(1, 0) + reads(0, 1))
    step(P, 0, 1, dset(1, 1) + reads(0, 2))
    step(P, 0, 2, dset(1, 2) + reads(0, 3))
    step(P, 0, 3, dset(1, 3) + reads(1, 0) + wprep(1) + owrites(0, 0) + owrites(0, 1) + owrites(0, 2))
    P.add(owrites(0, 3))
    step(P, 1, 0, reads(1, 1) + readback(0))
    step(P, 1, 1, reads(1, 2) + stores(0))
    step(P, 1, 2, poll_load("za", None) + reads(1, 3))
    step(P, 1, 3, owrites(1, 0) + owrites(1, 1) + owrites(1, 2))
    P.add(owrites(1, 3)); P.add(readback(1)); P.add(stores(1))
    P.e("s_branch L_auxdone")
    P = Pg; P.e("L_gate:")
    QB = [192, 224, 48, 80]; GWS = [24, 28, 34, 38]
    def ql(tau):
        b = QB[tau % 4]
        L = [f"buffer_load_dwordx4 {v(b+4*rho,4)}, {v(VQ if rho < 4 else VQ2)}, {X}, 0 offen offset:{896*(rho%4)+128*tau}" for rho in range(8)]
        return L + [f"buffer_load_dwordx4 {v(GWS[tau%4],4)}, {v(VGW)}, {GW}, 0 offen offset:{128*tau}"]
    step(P, 0, 0, reads(0, 1))
    step(P, 0, 1, reads(0, 2) + ql(0))
    step(P, 0, 2, reads(0, 3) + ql(1))
    step(P, 0, 3, owrites(0, 0) + owrites(0, 1) + owrites(0, 2))
    P.add(owrites(0, 3)); P.add(ql(2)); P.add(readback(0)); P.add(ql(3)); P.add(stores(0)); P.add(poll_load("za", None))
    for tau in range(7):
        b = QB[tau % 4]
        for p in range(4):
            for rho in range(8):
                P.e(f"v_dot2_f32_bf16 {v(112+rho)}, {v(b+4*rho+p)}, {v(GWS[tau%4]+p)}, {'0' if (tau == 0 and p == 0) else v(112+rho)}")
        if tau + 4 < 7: P.add(ql(tau + 4))
    AC = 112
    for mod in ("row_half_mirror", "quad_perm:[3,2,1,0]", "quad_perm:[1,0,3,2]"):
        for rho in range(8): P.e(f"v_add_f32_dpp {v(AC+rho)}, {v(AC+rho)}, {v(AC+rho)} {mod} row_mask:0xf bank_mask:0xf")
    P.e("s_mov_b32 s74, 0xaaaaaaaa\n s_mov_b32 s75, 0xaaaaaaaa")
    for k in range(4): P.e(f"v_cndmask_b32 {v(AC+k)}, {v(AC+2*k)}, {v(AC+2*k+1)}, s[74:75]")
    P.e("s_mov_b32 s74, 0xcccccccc\n s_mov_b32 s75, 0xcccccccc")
    for k in range(2): P.e(f"v_cndmask_b32 {v(AC+k)}, {v(AC+2*k)}, {v(AC+2*k+1)}, s[74:75]")
    P.e("s_mov_b32 s74, 0xf0f0f0f0\n s_mov_b32 s75, 0xf0f0f0f0")
    P.e(f"""v_cndmask_b32 {v(AC)}, {v(AC)}, {v(AC+1)}, s[74:75]
    v_mul_f32 {v(AC)}, 0xbfb8aa3b, {v(AC)}
    v_exp_f32 {v(AC)}, {v(AC)}
    v_add_f32 {v(AC)}, 1.0, {v(AC)}
    v_rcp_f32 {v(AC)}, {v(AC)}
    s_lshl_b32 s3, {sA}, 8
    s_add_u32 s3, s3, {WS_G}
    v_lshlrev_b32 {v(T0)}, 2, {v(VL)}
    buffer_store_dword {v(AC)}, {v(T0)}, {WS}, s3 offen sc1""")
    T = Prog(); T.e("L_auxdone:")
    if cfg.stamps: T.e("s_memtime s[88:89]")
    T.e(f"""s_lshl_b32 {sC}, {sA}, 7
    s_lshl_b32 s3, {sA}, 2
    s_add_u32 s3, s3, {sW}
    s_mul_i32 {sSO2}, s3, {98*128}
    v_lshlrev_b32 {v(PF)}, 7, {v(VL)}
    v_add_u32 {v(PF+1)}, {34*128}, {v(PF)}
    s_waitcnt vmcnt(0)""")
    T.add(poll_check("za", None))
    T.e("s_barrier")
    if not cfg.nosync: T.e(f"buffer_store_dword {v(vONE)}, {v(vARR)}, {WS}, {sC} offen sc1")
    if cfg.stamps: T.e("s_memtime s[90:91]")
    if cfg.aux_pf: T.e(f"buffer_load_dword {v(PF+2)}, {v(PF)}, {WD}, {sSO2} offen\n buffer_load_dword {v(PF+3)}, {v(PF+1)}, {WD}, {sSO2} offen")
    if cfg.stamps:
        T.e(f"""s_waitcnt vmcnt(0)
        s_memtime s[4:5]
        s_memrealtime s[6:7]
        s_waitcnt lgkmcnt(0)
        s_sub_u32 s3, s86, s98
        v_mov_b32 v200, s3
        s_sub_u32 s3, s88, s98
        v_mov_b32 v201, s3
        s_sub_u32 s3, s90, s98
        v_mov_b32 v202, s3
        s_sub_u32 s3, s4, s98
        v_mov_b32 v203, s3
        v_mov_b32 v204, s100
        v_mov_b32 v205, s6
        s_lshl_b32 s3, s2, 2
        s_add_u32 s3, s3, {sW}
        s_lshl_b32 s3, s3, 7
        s_add_u32 s3, s3, {WS_STAMP}
        v_mov_b32 v2, 0
        s_mov_b64 exec, 1
        buffer_store_dwordx4 v[200:203], v2, {WS}, s3 offen
        buffer_store_dwordx2 v[204:205], v2, {WS}, s3 offen offset:120""")
    T.e("s_endpgm")
    return Pg, T

def build():
    global slow_paths, stamp_names, trace_names
    slow_paths = []; stamp_names = []; trace_names = []; arr_n[0] = 0; STAMP_REGS['prewait'] = 74; STAMP_REGS['karg'] = 72
    pro = Prog()
    for reg, off in ((X, 0), (WG, 56), (WU, 64), (WD, 72), (SK, 32), (WS, 104), (OUT, 88), (pDBG, 96), (pD, 40)): pro.e(ldptr(reg, off))
    if cfg.sync_start:
        pro.e("""s_memrealtime s[100:101]
        s_waitcnt lgkmcnt(0)
        s_add_u32 s3, s100, 400
        s_and_b32 s3, s3, 0xffffff00
        s_and_b32 s99, s2, %d
        s_mul_i32 s99, s99, %d
        s_add_u32 s3, s3, s99
        L_ss:
        s_memrealtime s[100:101]
        s_waitcnt lgkmcnt(0)
        s_sub_u32 s99, s100, s3
        s_cmp_lt_i32 s99, 0
        s_cbranch_scc1 L_ss""" % cfg.skew)
    if cfg.stamps or cfg.fixdur: pro.e("s_memtime s[98:99]\n s_memrealtime s[100:101]")
    pro.e(f"""
    v_lshrrev_b32 v2, 6, v0
    v_and_b32 v1, 63, v0
    s_cmp_ge_u32 s2, 224
    v_readfirstlane_b32 {sW}, v2
    s_cbranch_scc1 L_aux
    """)
    Pm = Prog(); Pm.items = list(pro.items)
    gen_main(Pm)
    main = Pm.finalize(cfg.verbose)
    if cfg.warm:
        real = [i for i, x in enumerate(main) if x.kind != 'label']
        for k, n in reversed(list(enumerate(cfg.stub_at[:4]))):
            main[real[n]:real[n]] = [Ins("L_pg%d:" % k), Ins("s_cbranch_execz L_pgback")]
    Px = Prog(); Px.items = list(pro.items); Px.e("L_aux:")
    Pg, Pt = gen_aux(Px)
    ax = Px.finalize(); gx = Pg.finalize(); tx = Pt.finalize()
    cut = lambda lst, lab: lst[[i for i, x in enumerate(lst) if x.kind == 'label' and x.text == lab][0]:]
    body = text_of(main) + "\n" + text_of(cut(ax, "L_aux:")) + "\n" + text_of(cut(gx, "L_gate:")) + "\n" + text_of(tx) + "\n" + emit_slow_paths() + "\nL_codeend:"
    hdr = open("gated_mix__ssm_conv_h3__swiglu_ffn__prompt.s.ref").read().split("; Override launch")[0] if cfg.header else ""
    return f"""{hdr}; @launch grid=(256,1,1) block=(256,1,1) lds={LDS_BYTES}
; TRACE={trace_names}
.amdgcn_target "amdgcn-amd-amdhsa--gfx950"
.text
.globl {KNAME}
{'.p2align 12' if cfg.align else ''}
.p2align 8
.type {KNAME},@function
{KNAME}:
{body}
.section .rodata,"a"
.p2align 6
.amdhsa_kernel {KNAME}
  .amdhsa_next_free_vgpr 512
  .amdhsa_next_free_sgpr 102
  .amdhsa_accum_offset 256
  .amdhsa_group_segment_fixed_size 0
  .amdhsa_kernarg_size 112
  .amdhsa_user_sgpr_count 2
  .amdhsa_user_sgpr_kernarg_segment_ptr 1
  .amdhsa_system_sgpr_workgroup_id_x 1
.end_amdhsa_kernel
"""

if __name__ == "__main__":
    import subprocess
    out = sys.argv[1]
    for kv in sys.argv[2:]:
        k_, v_ = kv.split("=", 1)
        assert hasattr(cfg, k_), k_
        setattr(cfg, k_, eval(v_))
    cfg.pf_n = 1; cfg.pf_last = 100
    vb = cfg.verbose; cfg.verbose = False
    open(out, "w").write(build())
    subprocess.check_call(["clang", "-x", "assembler", "-target", "amdgcn-amd-amdhsa", "-mcpu=gfx950", "-c", out, "-o", "_gen.o"])
    sym = subprocess.check_output(["llvm-objdump", "-t", "_gen.o"], text=True)
    ad = {l.split()[-1]: int(l.split()[0], 16) for l in sym.splitlines() if " L_" in l}
    if cfg.code_pf:
        cfg.pf_last = (ad["L_codeend"] - ad["L_pc"] - 64) // 128
        cfg.pf_n = (cfg.pf_last + 112) // 112
    if cfg.warm:
        cfg.stub_at = [600, 1200, 1800, 2300]
        for it in range(3):
            open(out, "w").write(build())
            subprocess.check_call(["clang", "-x", "assembler", "-target", "amdgcn-amd-amdhsa", "-mcpu=gfx950", "-c", out, "-o", "_gen.o"])
            dis = subprocess.check_output(["llvm-objdump", "-d", "--mcpu=gfx950", "_gen.o"], text=True)
            ins = [(int(l.split("//")[1].split(":")[0], 16), l) for l in dis.splitlines() if "//" in l]
            end = [i for i, (a_, l) in enumerate(ins) if "s_endpgm" in l][0]
            a0 = []; ns_ = 0
            for a_, l in ins[:end]:
                if "s_cbranch_execz" in l: ns_ += 1
                else: a0.append(a_ - 4 * ns_)
            new_at = []
            for k in range(1, 5):
                c = [i for i, a_ in enumerate(a0) if a_ + 4 * (k - 1) + 0x300 >= 4096 * k]
                if c: new_at.append(c[0])
            if new_at == cfg.stub_at: break
            cfg.stub_at = new_at
    cfg.verbose = vb
    open(out, "w").write(build())
    print(out, "code bytes", ad["L_codeend"], "aux at", ad["L_aux"], "stubs", cfg.stub_at, "stamps:", stamp_names)
```

```python
import sys, math, re
from fw import *
import fw
KNAME = "gated_mix__ssm_conv_h3__swiglu_ffn__prompt_kernel"

class Cfg: pass
cfg = Cfg()
cfg.stamps = False; cfg.pass_stamps = False; cfg.verbose = False; cfg.header = True; cfg.fixdur = 0
cfg.PD = 5; cfg.NXR = 8; cfg.pair = 2; cfg.bud = 24
cfg.code_pf = True; cfg.n_pre = 9; cfg.nosync = False
cfg.rot_c = True; cfg.rot_t = True; cfg.rot_g = True
cfg.pl_at = -1; cfg.pc0 = 10; cfg.pc1 = 70; cfg.bud1 = 28; cfg.z_load = 80; cfg.z_chk = 104; cfg.x_touch = 0; cfg.align = True; cfg.tlb = False; cfg.sync_start = False; cfg.skew = (0, 0); cfg.gq_sh = 0; cfg.gq_mul = 1; cfg.wd_touch = -2; cfg.warm = True; cfg.stub_at = []; cfg.late_pos = 50; cfg.p_arr = 9; cfg.pst_at = 80; cfg.aux_sk = False; cfg.p_first = True; cfg.sk_at = -1; cfg.hv_at = 50; cfg.c_rd_end = 66; cfg.sleep = 2
cfg.p_load = 196; cfg.p_chk = 214; cfg.hw0 = 100; cfg.hw1 = 186
cfg.g_arrive = 30; cfg.g_poll = 84; cfg.g_chk = 102; cfg.nh_c = 11; cfg.nh_e = 5; cfg.c_wd = (24, 48, 72, 96); cfg.c_tail_in_g2 = True; cfg.b_rev = False; cfg.n_raw = 0; cfg.kv_touch = None; cfg.aux_l2 = None; cfg.hack_wd = False; cfg.hack_p = False; cfg.sc_wd = ''; cfg.sc_g1 = ''; cfg.c_bar = 130; cfg.s3_at = -1; cfg.nwd_t = 5; cfg.g_wd_end = 104
cfg.g2_hpace = 2.1; cfg.q_at = (13, 15, 17, 19); cfg.g2_arrive = 34; cfg.g2_poll = 60; cfg.g2_chk = 74; cfg.g2_pre = 96
cfg.sc_out = ""; cfg.aux_pf = False; cfg.touch = False; cfg.s_early = True; cfg.rt = False; cfg.trace = False; cfg.start_stamps = False

WS_FLAG = 0x0; WS_G = 0x20000; WS_UR = 0x100000; WS_YT = 0x300000; WS_H = 0x500000
WS_STAMP = 0xC00000; WS_SIZE = 0xD00000
NQ = 1835008; NW = 1605632
XB = 4096
SLOT = 28672; PIECE = 7168
HC = 4 * SLOT; CPY = 4160; HCCH = 4 * CPY
UL = HC + 2 * HCCH; UCH = 4608
LDS_BYTES = 163840
YL = HC; QL = UL
assert UL + 2 * UCH <= LDS_BYTES
X, WG, WU, WD, SK, WS, OUT = ["s[%d:%d]" % (b, b + 3) for b in (4, 8, 12, 16, 20, 24, 28)]
pWS = "s[24:25]"; pDBG = "s[32:33]"; pD = "s[34:35]"
sW = "s36"; sT0 = "s37"; sT1 = "s38"; sT2 = "s39"
sCH = ["s%d" % (40 + i) for i in range(7)]
sWC = ["s%d" % (47 + i) for i in range(7)]
sTO = ["s%d" % (54 + i) for i in range(8)]
sHG = sWC
sM0P = "s68"; sXB = "s69"; sWB = "s70"; sDB = "s71"; sHS = "s72"; sHL = ["s73", "s74"]
sNL2E = "s75"; sSO = "s76"; sSO2 = "s77"; sD = "s78"; sI2 = "s79"; sCT = "s80"; sKH = "s81"
sCNT = "s82"; sM = "s83"; sMASK = "s84"; sRG = "s85"
sDG = ["s%d" % (86 + i) for i in range(7)]
sPV = "s93"; sHE = "s70"; sFL = "s67"; sONE = "s66"; sU = "s65"; sPA = "s64"
STAMP_REGS = {'issued': 0, 'setup': 96, 'pdone': 94, 'prewait': 74, 'karg': 72, 'g1start': 34, 'p1end': 12, 'T5': 96, 'T6': 8, 'T7': 10, 'prepoll': 94, 'zpre': 96, 'zpost': 8, 'g1end': 14, 'cstart': 40, 'c_pre': 42, 'c_post': 44, 'g2start': 54, 'g2_pre': 56, 'g2_post': 58, 'g2end': 60}

def v(i, n=1): return "v%d" % i if n == 1 else "v[%d:%d]" % (i, i + n - 1)
def a(i, n=1): return "a%d" % i if n == 1 else "a[%d:%d]" % (i, i + n - 1)
def lines(t): return [l.strip() for l in t.split("\n") if l.strip()]

stamp_names = []
def stamp(name):
    if not cfg.stamps or cfg.stamps == 'min': return []
    if cfg.trace and STAMP_REGS[name] in (94, 96): return []
    stamp_names.append(name); r = STAMP_REGS[name]
    return [Ins("%s s[%d:%d]" % ("s_memrealtime" if cfg.rt else "s_memtime", r, r + 1))]

slow_paths = []
trace_names = []
TR_S = [94, 96, 8, 12]
def add_trace(G, every, name, regs):
    if not cfg.trace: return
    k = 0
    for g in range(0, G.n - 3, every):
        i = len(trace_names); trace_names.append("%s%d" % (name, g)); r = regs[k % len(regs)]; k += 1
        G.f[g].insert(0, Ins("s_memtime s[%d:%d]" % (r, r + 1)))
        G.f[min(g + (3 if G.n != 144 else 6), G.n - 1)].append("v_writelane_b32 v%d, s%d, %d" % (254 + i // 64, r, i % 64))
vARR = 43; vONE = 0; vP8 = 38; vP7 = 39; vPV = 33; vZERO = 44
def poll_text(kind, off):
    if kind == "z": return f"global_load_dword {v(vPV)}, {v(vZERO)}, {pDBG} sc1"
    if kind == "za": return f"global_load_dword {v(vPV)}, {v(vZERO)}, {pDBG} sc1"
    return f"buffer_load_dword {v(vPV)}, {v(vP7 if kind == 'h' else vP8)}, {WS}, {off} offen sc1"
def poll_load(kind, off):
    return [] if cfg.nosync else [poll_text(kind, off)]
def poll_check(kind, off):
    if cfg.nosync: return []
    slow_paths.append((kind, off))
    return [f"v_cmp_gt_u32 vcc, {32 if kind[0] == 'z' else 1}, {v(vPV)}", f"s_cbranch_vccnz L_slow_{kind}\n L_back_{kind}:"]
def emit_slow_paths():
    t = []
    for kind, off in slow_paths:
        t += [f"L_slow_{kind}:", f"s_mov_b32 {sCNT}, 0", f"L_spin_{kind}:", f"s_sleep {cfg.sleep}", poll_text(kind, off),
              f"s_add_u32 {sCNT}, {sCNT}, 1", f"s_cmp_gt_u32 {sCNT}, 0x40000", "s_waitcnt vmcnt(0)", f"s_cbranch_scc1 L_back_{kind}",
              f"v_cmp_gt_u32 vcc, {32 if kind[0] == 'z' else 1}, {v(vPV)}", f"s_cbranch_vccnz L_spin_{kind}"] + ([f"v_writelane_b32 v253, {sCNT}, {'zphy'.index(kind)}"] if cfg.trace and kind != "za" else []) + [f"s_branch L_back_{kind}"]
    return "\n".join(l if l.endswith(":") else "    " + l for l in t)
arr_n = [0]
def arrive(tag, off, bar=True):
    pre = [Ins("s_barrier")] if bar else []
    if cfg.nosync: return pre
    return ([WaitTag('vm', tag)] if bar else []) + pre + [f"buffer_store_dword {v(vONE)}, {v(vARR)}, {WS}, {off} offen sc1"]

def sb(reg): return int(reg[2:reg.index(':')])
def srd_hi(reg, size): return ["s_mov_b32 s%d, 0x%x" % (sb(reg) + 2, size), "s_mov_b32 s%d, 0x20000" % (sb(reg) + 3)]
def ldptr(reg, off): return "s_load_dwordx2 s[%d:%d], s[0:1], %d" % (sb(reg), sb(reg) + 1, off)
def rot_next(r): return [f"s_add_u32 {r}, {r}, 1", f"s_cmp_eq_u32 {r}, 7\n s_cselect_b32 {r}, 0, {r}"]
def mod7(r): return lines(f"s_mul_i32 s3, {r}, 37\n s_lshr_b32 s3, s3, 8\n s_mul_i32 s3, s3, 7\n s_sub_u32 {r}, {r}, s3")

def code_prefetch(P):
    if not cfg.code_pf: return
    P.e(f"""
        s_getpc_b64 s[38:39]
        L_pc:
        s_lshr_b32 s3, s2, 3
        s_lshl_b32 s3, s3, 2
        s_add_u32 s3, s3, {sW}
        s_mul_i32 s3, s3, {cfg.pf_n}
        v_min_u32 v2, {cfg.pf_n-1}, v1
        v_add_u32 v2, s3, v2
        v_min_u32 v2, {cfg.pf_last}, v2
        v_lshlrev_b32 v2, 7, v2
        v_mov_b32 v3, s39
        v_add_co_u32 v2, vcc, s38, v2
        v_addc_co_u32 v3, vcc, 0, v3, vcc
        global_load_dword v255, v[2:3], off
        """)

def gen_main(P):
    PD = cfg.PD; NXR = cfg.NXR
    VL = 1
    VX = [2, 3, 4, 9]; VWg = [5, 6]; VWu = [7, 8]; VSK = [10, 11, 12]; VD = [13, 14, 15, 16]
    XR = [[17, 18, 19, 20], [21, 22, 23, 24]]; WR = [25, 26, 27]; DR = [[28, 29], [30, 31]]
    V16 = 32; T0 = 33; T1 = 34; T2 = 35; T3 = 36; VHZ = 37; CA = 40; CB = 41; VHW = 42; VZ = 44
    ACC = [48, 64, 80, 96]; XRING = 112; ET = 144; PK = [148, 152]; HR = 160; HCP = 176
    assert XRING + 4 * NXR <= ET
    sX = sSO; sQ7 = sSO2; sR = sCNT
    code_prefetch(P)
    P.e(f"""
    s_and_b32 {sX}, s2, 7
    s_lshr_b32 {sT1}, s2, 3
    s_mul_i32 {sQ7}, {sT1}, 37
    s_lshr_b32 {sQ7}, {sQ7}, 8
    s_mul_i32 s3, {sQ7}, 7
    s_sub_u32 {sCT}, {sT1}, s3
    s_lshl_b32 s3, {sX}, 2
    s_add_u32 {sI2}, s3, {sQ7}
    s_and_b32 s3, {sX}, 4
    s_add_u32 {sT2}, s3, {sQ7}
    s_and_b32 {sT0}, {sX}, 3
    s_mul_i32 {sT1}, {sT0}, 7
    s_add_u32 {sT1}, {sT1}, {sCT}
    s_mul_i32 {sM0P}, {sW}, {PIECE}
    s_mul_i32 {sXB}, {sT2}, {256*896}
    s_add_u32 {sXB}, {sXB}, {sM0P}
    s_mul_i32 {sWB}, {sW}, {16*3584}
    s_lshl_b32 s3, {sT1}, 7
    s_add_u32 {sWB}, {sWB}, s3
    s_lshl_b32 {sRG}, {sQ7}, 1
    s_add_u32 {sRG}, {sRG}, {sCT}
    s_lshr_b32 s3, {sX}, 2
    s_add_u32 {sR}, {sRG}, s3
    """)
    P.add(mod7(sR) if cfg.rot_c else f"s_mov_b32 {sR}, 0")
    def ch_tab(i):
        L = lines(f"s_lshl_b32 s3, {sR}, 7\n s_add_u32 {sCH[i]}, s3, {sXB}\n s_mul_i32 s3, {sR}, {64*3584}\n s_add_u32 {sWC[i]}, s3, {sWB}")
        return L + (rot_next(sR) if i < 6 else [])
    def to_tab(t):
        if cfg.rot_t: return lines(f"s_lshl_b32 s3, {sT0}, 1\n s_add_u32 s3, s3, {t}\n s_and_b32 s3, s3, 7\n s_mul_i32 {sTO[t]}, s3, 28672")
        return [f"s_mov_b32 {sTO[t]}, {28672*t}"]
    for i in range(2): P.add(ch_tab(i))
    for t in range(3): P.add(to_tab(t))
    P.add(srd_hi(X, NQ + XB) + srd_hi(WG, NW) + srd_hi(WU, NW))
    P.e(f"""
    v_lshrrev_b32 {v(T0)}, 3, {v(VL)}
    v_and_b32 {v(T1)}, 7, {v(VL)}
    v_lshrrev_b32 {v(T2)}, 4, {v(VL)}
    s_lshl_b32 s3, {sW}, 2
    v_add_u32 {v(T3)}, s3, {v(T2)}
    v_and_b32 {v(T3)}, 7, {v(T3)}
    v_xor_b32 {v(T3)}, {v(T1)}, {v(T3)}
    v_lshlrev_b32 {v(T3)}, 4, {v(T3)}
    v_mul_u32_u24 {v(VX[0])}, 896, {v(T0)}
    v_add_u32 {v(T3)}, {XB}, {v(T3)}
    v_add_u32 {v(VX[0])}, {v(VX[0])}, {v(T3)}
    v_add_u32 {v(VX[1])}, -1024, {v(VX[0])}
    v_add_u32 {v(VX[2])}, -2048, {v(VX[0])}
    v_and_b32 {v(T2)}, 1, {v(T2)}
    v_lshlrev_b32 {v(T2)}, 1, {v(T2)}
    v_xor_b32 {v(T3)}, {v(T1)}, {v(T2)}
    v_lshlrev_b32 {v(T3)}, 4, {v(T3)}
    v_mul_u32_u24 {v(VWg[0])}, 3584, {v(T0)}
    v_add_u32 {v(VWg[0])}, {v(VWg[0])}, {v(T3)}
    v_add_u32 {v(VWg[1])}, {28672-1024}, {v(VWg[0])}
    v_xor_b32 {v(VWu[0])}, 64, {v(VWg[0])}
    v_add_u32 {v(VWu[1])}, {28672-1024}, {v(VWu[0])}
    """)
    if cfg.start_stamps: P.add(stamp("prewait"))
    P.e("s_waitcnt lgkmcnt(0)")
    if cfg.start_stamps: P.add(stamp("karg")); P.e("s_waitcnt lgkmcnt(0)\n v_mov_b32 v156, s74\n v_mov_b32 v157, s72")
    P.e(f"""
    s_sub_u32 s4, s4, {XB}
    s_subb_u32 s5, s5, 0
    """)
    def dma_item(i):
        sl = (i % 4) * SLOT; tag = "it%d" % i; L = []
        xl = lambda T, c, u, pre="": [pre + f"s_add_u32 {sSO}, {sCH[c]}, {sTO[T]}", Ins(f"buffer_load_dwordx4 {v(VX[u])}, {X}, {sSO} offen offset:{1024*u} {cfg.sc_g1} lds", tag)]
        if i < 7:
            L.append([f"s_add_u32 m0, {sM0P}, {sl+3072}", Ins(f"buffer_load_dwordx4 {v(VWg[0])}, {WG}, {sWC[i]} offen offset:0 {cfg.sc_g1} lds", tag)])
            L.append(Ins(f"buffer_load_dwordx4 {v(VWg[1])}, {WG}, {sWC[i]} offen offset:1024 {cfg.sc_g1} lds", tag))
            L.append([f"s_add_u32 m0, {sM0P}, {sl+5120}", Ins(f"buffer_load_dwordx4 {v(VWu[0])}, {WU}, {sWC[i]} offen offset:0 {cfg.sc_g1} lds", tag)])
            L.append(Ins(f"buffer_load_dwordx4 {v(VWu[1])}, {WU}, {sWC[i]} offen offset:1024 {cfg.sc_g1} lds", tag))
            for rt in range(3): L.append(xl(rt, i, rt, f"s_add_u32 m0, {sM0P}, {sl}\n" if rt == 0 else ""))
        else:
            T = i - 4
            for k in range(7): L.append(xl(T, k, k % 4, f"s_add_u32 m0, {sM0P}, {sl+1024*k}\n" if k % 4 == 0 else ""))
        return L
    first = dma_item(0) + dma_item(1)
    P.add(first[:cfg.n_pre]); late_first = first[cfg.n_pre:]
    if not cfg.pass_stamps: P.add(stamp("issued"))
    P.e(f"""
    s_lshl_b32 s3, s2, 2
    s_load_dword {sD}, {pD}, s3
    v_lshlrev_b32 {v(T3)}, 1, {v(T2)}
    v_xor_b32 {v(T3)}, {v(T1)}, {v(T3)}
    v_lshlrev_b32 {v(T3)}, 4, {v(T3)}
    v_mul_u32_u24 {v(VD[0])}, 896, {v(T0)}
    v_add_u32 {v(VD[0])}, {v(VD[0])}, {v(T3)}
    v_add_u32 {v(VX[3])}, -3072, {v(VX[0])}
    v_and_b32 {v(T0)}, 31, {v(VL)}
    v_lshrrev_b32 {v(T1)}, 3, {v(T0)}
    v_mul_u32_u24 {v(T1)}, {PIECE}, {v(T1)}
    v_and_b32 {v(T2)}, 7, {v(T0)}
    v_lshl_add_u32 {v(T1)}, {v(T2)}, 7, {v(T1)}
    v_lshrrev_b32 {v(T2)}, 1, {v(T0)}
    v_and_b32 {v(T2)}, 7, {v(T2)}
    v_lshrrev_b32 {v(T3)}, 5, {v(VL)}
    v_xor_b32 {v(T2)}, {v(T2)}, {v(T3)}
    v_lshl_add_u32 {v(XR[0][0])}, {v(T2)}, 4, {v(T1)}
    """)
    for k in range(1, 4): P.e(f"v_xor_b32 {v(XR[0][k])}, {32*k}, {v(XR[0][0])}")
    for k in range(4): P.e(f"v_add_u32 {v(XR[1][k])}, {3*SLOT}, {v(XR[0][k])}")
    P.e(f"""
    v_bfe_u32 {v(T0)}, {v(VL)}, 2, 2
    v_lshl_add_u32 {v(T1)}, {v(T3)}, 3, {v(T0)}
    v_lshlrev_b32 {v(T1)}, 7, {v(T1)}
    v_bfe_u32 {v(T2)}, {v(VL)}, 1, 1
    v_lshl_add_u32 {v(T1)}, {v(T2)}, 11, {v(T1)}
    v_lshlrev_b32 {v(T2)}, 1, {v(T2)}
    v_lshrrev_b32 {v(T0)}, 1, {v(T0)}
    v_add_u32 {v(T2)}, {v(T2)}, {v(T0)}
    v_xor_b32 {v(T2)}, {sW}, {v(T2)}
    v_lshl_add_u32 {v(T1)}, {v(T2)}, 5, {v(T1)}
    v_bfe_u32 {v(T2)}, {v(VL)}, 4, 1
    v_lshl_add_u32 {v(T1)}, {v(T2)}, 4, {v(T1)}
    v_and_b32 {v(T2)}, 1, {v(VL)}
    v_lshl_add_u32 {v(T1)}, {v(T2)}, 3, {v(T1)}
    v_add_u32 {v(WR[0])}, 3072, {v(T1)}
    v_add_u32 {v(WR[1])}, {2*SLOT}, {v(WR[0])}
    """)
    for i in range(2, 7): P.add(ch_tab(i))
    for t in range(3, 8): P.add(to_tab(t))
    S = []
    S += lines(f"""
    v_bfe_u32 {v(T1)}, {v(VL)}, 2, 2
    v_lshl_add_u32 {v(T1)}, {v(T3)}, 2, {v(T1)}
    v_lshlrev_b32 {v(T1)}, 7, {v(T1)}
    s_lshr_b32 s3, {sW}, 1
    v_xor_b32 {v(T2)}, s3, {v(T0)}
    v_lshl_add_u32 {v(T1)}, {v(T2)}, 6, {v(T1)}
    v_bfe_u32 {v(T2)}, {v(VL)}, 4, 1
    v_lshl_add_u32 {v(T1)}, {v(T2)}, 5, {v(T1)}
    v_and_b32 {v(T2)}, 3, {v(VL)}
    v_lshl_add_u32 {v(T1)}, {v(T2)}, 3, {v(T1)}
    s_and_b32 s3, {sW}, 1
    s_lshl_b32 s3, s3, 5
    v_xor_b32 {v(T1)}, s3, {v(T1)}
    v_add_u32 {v(DR[0][0])}, {sM0P}, {v(T1)}
    v_xor_b32 {v(DR[0][1])}, 64, {v(DR[0][0])}
    v_add_u32 {v(DR[1][0])}, {2*SLOT}, {v(DR[0][0])}
    v_add_u32 {v(DR[1][1])}, {2*SLOT}, {v(DR[0][1])}
    v_add_u32 {v(VD[1])}, 6144, {v(VD[0])}
    v_add_u32 {v(VD[2])}, {2*6144}, {v(VD[0])}
    v_add_u32 {v(VD[3])}, {3*6144}, {v(VD[0])}
    v_lshlrev_b32 {v(V16)}, 4, {v(VL)}
    s_mul_i32 s3, {sT2}, 28
    s_add_u32 s3, s3, {sT1}
    s_add_u32 s3, s3, 256
    s_lshl_b32 {sFL}, s3, 7
    v_mov_b32 {v(vARR)}, -16
    v_cmp_eq_u32 vcc, 0, v0
    v_min_u32 {v(vP8)}, 7, {v(VL)}
    v_min_u32 {v(vP7)}, 6, {v(VL)}
    v_cndmask_b32 {v(vARR)}, {v(vARR)}, 0, vcc
    v_mov_b32 {v(vONE)}, 1
    s_lshl_b32 s3, {sW}, 3
    v_add_lshl_u32 {v(vP8)}, {v(vP8)}, s3, 7
    s_mul_i32 s3, {sW}, 7
    v_add_lshl_u32 {v(vP7)}, {v(vP7)}, s3, 7
    s_mul_i32 {sWB}, {sT2}, {8*112}
    s_lshl_b32 s3, {sT1}, 2
    s_add_u32 {sWB}, {sWB}, s3
    s_add_u32 {sWB}, {sWB}, {sW}
    s_lshl_b32 {sWB}, {sWB}, 10
    s_add_u32 {sWB}, {sWB}, {WS_H}
    s_mul_i32 {sDB}, {sW}, {448*896}
    s_lshl_b32 s3, {sCT}, 7
    s_add_u32 {sDB}, {sDB}, s3
    s_and_b32 s3, s2, 7
    s_add_u32 {sRG}, {sCT}, s3
    s_and_b32 s3, {sI2}, 3
    s_lshr_b32 s3, s3, {cfg.gq_sh}
    s_mul_i32 s3, s3, {cfg.gq_mul}
    s_add_u32 {sRG}, {sRG}, s3
    """)
    S += mod7(sRG) if cfg.rot_g else [f"s_mov_b32 {sRG}, 0"]
    S += [f"s_mov_b32 {sR}, {sRG}"]
    for i in range(7):
        S += [f"s_mul_i32 s3, {sR}, {0 if cfg.hack_wd else 57344}", f"s_add_u32 {sDG[i]}, s3, {sDB}"] + (rot_next(sR) if i < 6 else [])
    S += srd_hi(WD, NW) + srd_hi(WS, WS_SIZE) + srd_hi(SK, 4096) + srd_hi(OUT, NQ)
    S += lines(f"""
    s_lshr_b32 {sT2}, {sW}, 1
    s_and_b32 {sKH}, {sW}, 1
    s_lshl_b32 {sM}, s2, 1
    s_add_u32 {sM}, {sM}, {sT2}
    s_lshl_b32 s3, {sM}, 12""") + [f"s_add_u32 s20, s20, s3\n s_addc_u32 s21, s21, 0"] + lines(f"""
    s_mov_b32 {sNL2E}, 0xbfb8aa3b
    s_mov_b32 {sMASK}, 0xffff0000
    s_mov_b32 {sONE}, 1
    """)
    S2 = lines(f"""
    s_mov_b32 {sHS}, {sWB}
    s_lshl_b32 {sU}, {sKH}, 11
    v_add_u32 {v(VSK[0])}, {sU}, {v(V16)}
    v_add_u32 {v(VSK[1])}, -16, {v(VSK[0])}
    v_add_u32 {v(VSK[2])}, 1008, {v(VSK[0])}
    s_mul_i32 {sT0}, {sT2}, {HCCH}
    s_add_u32 {sT0}, {sT0}, {HC}
    s_mul_i32 {sT1}, {sT2}, {UCH}
    s_add_u32 {sT1}, {sT1}, {UL}
    s_add_u32 s3, {sU}, {sT0}
    s_add_u32 s3, s3, 32
    v_add_u32 {v(VHW)}, s3, {v(V16)}
    v_and_b32 {v(T0)}, 15, {v(VL)}
    v_lshrrev_b32 {v(T1)}, 4, {v(VL)}
    v_sub_u32 {v(T2)}, 3, {v(T0)}
    v_and_b32 {v(T2)}, 3, {v(T2)}
    v_add3_u32 {v(T3)}, {v(T0)}, {v(T2)}, 1
    v_lshl_add_u32 {v(T3)}, {v(T1)}, 3, {v(T3)}
    v_lshlrev_b32 {v(T3)}, 1, {v(T3)}
    v_mul_u32_u24 {v(T2)}, {CPY}, {v(T2)}
    s_lshl_b32 s3, {sKH}, 8
    s_add_u32 {sT0}, {sT0}, s3
    v_add3_u32 {v(CA)}, {v(T2)}, {v(T3)}, {sT0}
    v_lshlrev_b32 {v(T0)}, 5, {v(T0)}
    v_lshlrev_b32 {v(T1)}, 4, {v(T1)}
    v_sub_u32 {v(T1)}, {v(T1)}, {v(T0)}
    s_add_u32 s3, s3, {sT1}
    s_add_u32 s3, s3, 480
    v_add_u32 {v(CB)}, s3, {v(T1)}
    s_add_u32 {sPA}, {sT1}, {sU}
    s_lshl_b32 s3, {sM}, 12
    s_add_u32 {sU}, {sU}, s3
    v_mov_b32 {v(VZ)}, 0
    v_mov_b32 {v(VZ+1)}, 0
    v_mov_b32 {v(VZ+2)}, 0
    v_mov_b32 {v(VZ+3)}, 0
    v_lshrrev_b32 {v(T0)}, 5, {v(VL)}
    v_mul_u32_u24 {v(T0)}, {UCH}, {v(T0)}
    v_and_b32 {v(T1)}, 31, {v(VL)}
    v_lshl_add_u32 {v(T0)}, {v(T1)}, 4, {v(T0)}
    v_add_u32 {v(T0)}, {UL+4096}, {v(T0)}
    ds_write_b128 {v(T0)}, {v(VZ,4)}
    v_and_b32 {v(T0)}, 15, {v(VL)}
    v_lshrrev_b32 {v(T1)}, 1, {v(T0)}
    v_mul_u32_u24 {v(T1)}, {CPY}, {v(T1)}
    v_and_b32 {v(T0)}, 1, {v(T0)}
    v_lshl_add_u32 {v(T0)}, {v(T0)}, 4, {v(T1)}
    v_add_u32 {v(VHZ)}, {HC}, {v(T0)}
    s_mul_i32 {sT0}, {sI2}, 224
    s_mul_i32 s3, {sW}, 28
    s_add_u32 {sT0}, {sT0}, s3
    s_lshl_b32 {sT0}, {sT0}, 10
    s_add_u32 {sHL[0]}, {sT0}, {WS_H}
    s_add_u32 {sHL[1]}, {sT0}, {WS_H + 112*1024}
    """)
    skl = [f"buffer_load_dwordx4 {v(HR,4)}, {v(VSK[1])}, {SK}, 0 offen", f"buffer_load_dwordx4 {v(HR+4,4)}, {v(VSK[0])}, {SK}, 0 offen",
           f"buffer_load_dwordx4 {v(HR+8,4)}, {v(VSK[2])}, {SK}, 0 offen", f"buffer_load_dwordx4 {v(HR+12,4)}, {v(VSK[0])}, {SK}, 0 offen offset:1024"]

    VRW = 224; VRR = 225; VUR = 226; VYS = 227; VY = [228, 229]; VQ = [230, 231]; VGA = 232
    EWA = 233; ERA = [234, 235, 236]; EWB = 237; ERB = [238, 239, 240]; EY = 241; EQ = [242, 243]; EO = 244
    VG = [14, 15]; OMG = [8, 9]; RA = HC + 8192; sO = ["s62", "s63"]; sQS = "s66"; sYS = "s93"
    S3 = lines(f"""
    s_lshl_b32 s3, {sW}, 12
    s_add_u32 s3, s3, {HC}
    v_add_u32 {v(VRW)}, s3, {v(V16)}
    v_xor_b32 {v(VRR)}, 4096, {v(VRW)}
    v_and_b32 {v(T3)}, 15, {v(VL)}
    v_lshlrev_b32 {v(T3)}, 5, {v(T3)}
    v_lshrrev_b32 {v(T2)}, 4, {v(VL)}
    v_lshl_add_u32 {v(T3)}, {v(T2)}, 3, {v(T3)}
    s_lshr_b32 s3, {sW}, 1
    s_mul_i32 s3, s3, {UCH}
    s_lshl_b32 {sT0}, {sKH}, 11
    s_sub_u32 s3, s3, {sT0}
    s_add_u32 s3, s3, {UL+504+2048}
    v_sub_u32 {v(VUR)}, s3, {v(T3)}
    v_and_b32 {v(T1)}, 3, {v(VL)}
    v_lshlrev_b32 {v(T1)}, 4, {v(T1)}
    v_bfe_u32 {v(T3)}, {v(VL)}, 2, 2
    v_lshl_add_u32 {v(T1)}, {v(T3)}, 7, {v(T1)}
    v_bfe_u32 {v(T3)}, {v(VL)}, 4, 1
    v_lshl_add_u32 {v(T1)}, {v(T3)}, 9, {v(T1)}
    v_lshrrev_b32 {v(T3)}, 5, {v(VL)}
    v_lshl_add_u32 {v(VYS)}, {v(T3)}, 6, {v(T1)}
    """)
    S3 += lines(f"""
    v_lshrrev_b32 {v(T1)}, 3, {v(VL)}
    v_and_b32 {v(T2)}, 7, {v(VL)}
    v_lshlrev_b32 {v(T3)}, 12, {v(T1)}
    v_lshl_add_u32 {v(VY[0])}, {v(T2)}, 4, {v(T3)}
    v_add_u32 {v(VY[1])}, {32768-1024}, {v(VY[0])}
    v_lshrrev_b32 {v(T3)}, 4, {v(VL)}
    v_xor_b32 {v(T2)}, {v(T2)}, {v(T3)}
    v_lshlrev_b32 {v(T2)}, 4, {v(T2)}
    v_mul_u32_u24 {v(T1)}, 896, {v(T1)}
    v_add_u32 {v(VQ[0])}, {v(T1)}, {v(T2)}
    v_xor_b32 {v(T2)}, 64, {v(T2)}
    v_add_u32 {v(T1)}, {7168-1024}, {v(T1)}
    v_add_u32 {v(VQ[1])}, {v(T1)}, {v(T2)}
    s_lshl_b32 s3, {sI2}, 8
    s_add_u32 s3, s3, {WS_G}
    v_and_b32 {v(T1)}, 31, {v(VL)}
    v_lshl_add_u32 {v(VGA)}, {v(T1)}, 2, s3
    s_lshl_b32 s3, {sI2}, 2
    s_add_u32 s3, s3, {sW}
    s_mul_i32 s3, s3, {16*896}
    s_lshl_b32 {sQS}, {sCT}, 7
    s_add_u32 {sQS}, {sQS}, s3
    s_add_u32 {sQS}, {sQS}, {XB}
    """)
    ea = [f"s_mul_i32 {sT0}, {sW}, 6144", f"s_add_u32 s3, {sT0}, {RA}", f"v_add_u32 {v(EWA)}, s3, {v(V16)}", f"v_add_u32 {v(EWB)}, {sM0P}, {v(V16)}"]
    for sg in range(1, 4):
        ea += [f"s_xor_b32 {sT0}, {sW}, {sg}", f"s_mul_i32 s3, {sT0}, 6144", f"s_add_u32 s3, s3, {RA + 2048*(sg-1)}", f"v_add_u32 {v(ERA[sg-1])}, s3, {v(V16)}",
               f"s_mul_i32 s3, {sT0}, {PIECE}", f"s_add_u32 s3, s3, {(sg-1)*SLOT}", f"v_add_u32 {v(ERB[sg-1])}, s3, {v(V16)}"]
    ea += lines(f"""v_bfe_u32 {v(T1)}, {v(VL)}, 2, 2
    v_lshrrev_b32 {v(T2)}, 5, {v(VL)}
    v_lshl_add_u32 {v(T1)}, {v(T2)}, 2, {v(T1)}
    v_lshlrev_b32 {v(T1)}, 7, {v(T1)}
    v_bfe_u32 {v(T3)}, {v(VL)}, 1, 1
    v_lshl_add_u32 {v(T1)}, {v(T3)}, 6, {v(T1)}
    v_bfe_u32 {v(T3)}, {v(VL)}, 4, 1
    v_lshl_add_u32 {v(T1)}, {v(T3)}, 4, {v(T1)}
    v_and_b32 {v(T3)}, 1, {v(VL)}
    v_lshl_add_u32 {v(T1)}, {v(T3)}, 3, {v(T1)}
    s_lshl_b32 s3, {sW}, 11
    s_add_u32 s3, s3, {YL}
    v_add_u32 {v(EY)}, s3, {v(T1)}
    v_and_b32 {v(T1)}, 31, {v(VL)}
    v_bfe_u32 {v(T3)}, {v(VL)}, 1, 3
    s_lshl_b32 s3, {sW}, 1
    v_xor_b32 {v(T3)}, s3, {v(T3)}
    v_lshlrev_b32 {v(T3)}, 4, {v(T3)}
    v_lshl_add_u32 {v(T3)}, {v(T1)}, 7, {v(T3)}
    v_lshl_add_u32 {v(T3)}, {v(T2)}, 3, {v(T3)}
    v_add_u32 {v(EQ[0])}, {QL}, {v(T3)}
    v_xor_b32 {v(EQ[1])}, 16, {v(EQ[0])}
    v_mul_u32_u24 {v(T1)}, 896, {v(T1)}
    v_lshl_add_u32 {v(EO)}, {v(T2)}, 4, {v(T1)}
    s_mul_i32 {sO[0]}, {sI2}, {64*896}
    s_lshl_b32 s3, {sCT}, 2
    s_add_u32 s3, s3, {sW}
    s_lshl_b32 {sT0}, s3, 5
    s_add_u32 {sO[0]}, {sO[0]}, {sT0}
    s_add_u32 {sO[1]}, {sO[0]}, {32*896}
    s_lshl_b32 s3, s3, 16
    s_lshl_b32 {sYS}, {sI2}, 7
    s_add_u32 {sYS}, {sYS}, s3
    s_add_u32 {sYS}, {sYS}, {WS_YT}""")
    S3 += ea + [f"v_add_u32 {v(245)}, 57344, {v(EWB)}"]
    NG = 224
    G = Gaps(NG)
    def item_start(i): return 12 * i if i <= 7 else 84 + 28 * (i - 7)
    gT = lambda T: item_start(T + 4)
    def xread(g):
        if g < 84: c = g // 12; ks = (g % 12) // 3; unit = g % 3; it = c
        else: it = 7 + (g - 84) // 28; k = (g - 84) % 28; ks = k % 4; unit = k // 4
        sl = it % 4; hi = 1 if sl >= 3 else 0
        off = (sl - 3 * hi) * SLOT + 1024 * unit
        return f"ds_read_b128 {v(XRING+4*(g%NXR),4)}, {v(XR[hi][ks])} offset:{off}"
    def wread(c, ks):
        sl = c % 4; var = sl // 2; off = (sl - 2 * var) * SLOT + PIECE * ks; f = 4 * (4 * c + ks)
        return [f"ds_read_b64_tr_b16 {a(f+2*rd,2)}, {v(WR[var])} offset:{off+512*rd}" for rd in range(2)]
    tile_acc = {0: 0, 1: 1, 2: 2, 3: 3, 4: 0, 5: 1, 6: 2, 7: 3}
    for g in range(NG):
        if g < 84: c = g // 12; ks = 4 * c + (g % 12) // 3; T = g % 3
        else: T = 3 + (g - 84) // 28; ks = (g - 84) % 28
        A = v(ACC[tile_acc[T]], 16)
        G.m[g] = f"v_mfma_f32_32x32x16_bf16 {A}, {a(4*ks,4)}, {v(XRING+4*(g%NXR),4)}, {'0' if ks == 0 else A}"
    pre = []
    def at(g, item):
        if g < 0: pre.append(item)
        else: G.put(g, item)
    gB = lambda i: item_start(i) - PD - 1
    if not cfg.hack_p: G.put(cfg.p_load, poll_load("p", "0"))
    G.put(cfg.p_chk, [stamp("prepoll") if not (cfg.pass_stamps or cfg.start_stamps) else [], [] if cfg.hack_p else poll_check("p", "0"), [] if cfg.p_chk in (gB(10), gB(11)) else Ins("s_barrier")])
    for i in range(12):
        at(gB(i), [WaitTag('vm', "it%d" % i), Ins("s_barrier")])
    assert cfg.z_chk < cfg.p_load
    if cfg.wd_touch >= 0: G.put(cfg.wd_touch, f"buffer_load_dword {v(202)}, {v(200)}, {WD}, 0 offen {cfg.sc_wd}")
    G.put(cfg.z_load, poll_load("z", None))
    G.f[cfg.z_chk].insert(0, [stamp("zpre") if not (cfg.pass_stamps or cfg.start_stamps) else [], poll_check("z", None), stamp("zpost") if not (cfg.pass_stamps or cfg.start_stamps) else []])
    for g in range(NG):
        if g < 84 and g % 3 == 0:
            for s_ in wread(g // 12, (g % 12) // 3): at(g - PD - 1, s_)
        at(g - PD - 1, xread(g))
    for c in range(7): G.spread(dma_item(c + 2), max(gB(c) + 1, 0), gB(c + 1) + 1)
    for T in range(3, 8): G.put(gT(T), ([WaitTag('lgkm', "hcw")] if T == 7 else []) + [Ins("s_barrier")])
    assert cfg.hw1 < gT(7)
    G.spread(dma_item(9) + dma_item(10), gB(7) + 1, gB(8) + 1)
    G.spread(dma_item(11), gT(4) + 1, gT(4) + (9 if cfg.n_raw else 20))
    if cfg.sk_at >= 0: G.spread(skl, cfg.sk_at, cfg.sk_at + 8)
    hv = []
    for rho in range(2):
        R = HR + 8 * rho; C_ = HCP + 12 * rho
        for k in range(4): hv.append(f"v_alignbit_b32 {v(C_+k)}, {v(R+4+k)}, {v(R+3+k)}, 16")
        for k in range(4): hv.append(f"v_mov_b32 {v(C_+4+k)}, {v(R+3+k)}")
        for k in range(4): hv.append(f"v_alignbit_b32 {v(C_+8+k)}, {v(R+3+k)}, {v(R+2+k)}, 16")
    hw = [Ins(f"ds_write_b128 {v(VHZ)}, {v(VZ,4)}", "hcw")]
    for rho in range(2):
        R = HR + 8 * rho; C_ = HCP + 12 * rho
        for cpy, src in enumerate((R + 4, C_, C_ + 4, C_ + 8)):
            hw.append(Ins(f"ds_write_b128 {v(VHW)}, {v(src,4)} offset:{cpy*CPY+1024*rho}", "hcw"))
    def epi(T, packed=False):
        A = ACC[tile_acc[T]]; Pk = PK[T % 2]; L = []
        for grp in range(2):
            g_ = A + 8 * grp; u_ = g_ + 4; E = ET
            if packed:
                E = ET if grp == 0 else HR
                L += [f"v_mul_f32 {v(E+i)}, {sNL2E}, {v(g_+i)}" for i in range(4)]
                L += [f"v_exp_f32 {v(E+i)}, {v(E+i)}" for i in range(4)]
                L += [f"v_pk_mul_f32 {v(u_+2*i,2)}, {v(g_+2*i,2)}, {v(u_+2*i,2)}" for i in range(2)]
                L += [f"v_pk_add_f32 {v(E+2*i,2)}, {v(E+2*i,2)}, 1.0 op_sel_hi:[1,0]" for i in range(2)]
                L += [f"v_rcp_f32 {v(E+i)}, {v(E+i)}" for i in range(4)]
                L += [f"v_pk_mul_f32 {v(u_+2*i,2)}, {v(u_+2*i,2)}, {v(E+2*i,2)}" for i in range(2)]
            else:
                L += [f"v_mul_f32 {v(E+i)}, {sNL2E}, {v(g_+i)}" for i in range(4)]
                L += [f"v_exp_f32 {v(E+i)}, {v(E+i)}" for i in range(4)]
                L += [f"v_mul_f32 {v(u_+i)}, {v(g_+i)}, {v(u_+i)}" for i in range(2)]
                L += [f"v_add_f32 {v(E+i)}, 1.0, {v(E+i)}" for i in range(4)]
                L += [f"v_rcp_f32 {v(E+i)}, {v(E+i)}" for i in range(4)]
                L += [f"v_mul_f32 {v(u_+i)}, {v(g_+i)}, {v(u_+i)}" for i in range(2, 4)]
                L += [f"v_mul_f32 {v(u_+i)}, {v(u_+i)}, {v(E+i)}" for i in range(4)]
            L += [f"v_cvt_pk_bf16_f32 {v(Pk+2*grp+i)}, {v(u_+2*i)}, {v(u_+2*i+1)}" for i in range(2)]
        L.append(f"s_lshl2_add_u32 {sSO2}, {sTO[T]}, {sHS}")
        L.append(Ins(f"buffer_store_dwordx4 {v(Pk,4)}, {v(V16)}, {WS}, {sSO2} offen sc1", "hst"))
        return L
    page_slot = [0, 1, 2, 3]
    def wd_page(n): return n if n < 21 else (n - 21 if n < 28 else (n - 7 if n < 35 else (n - 28 if n < 49 else n - 49)))
    def wd_prev(n): return n - 21 if 21 <= n < 28 else (n - 28 if n >= 35 else None)
    def wd_dma(n0, n1):
        L = []; n = n0
        while n < n1:
            p = wd_page(n); cnt = min(4, n1 - n, 7 - p % 7, 8 - n % 8)
            lds = page_slot[p // 7] * SLOT + 1024 * (p % 7)
            for k in range(cnt):
                it = [Ins(f"buffer_load_dwordx4 {v(VD[k])}, {WD}, {sSO} offen offset:{1024*k} {cfg.sc_wd} lds", "wd%d" % (n + k))]
                if wd_prev(n + k) is not None: it = [WaitTag('lgkm', "wr%d" % wd_prev(n + k))] + it
                if k == 0: L.append(f"s_add_u32 m0, {sM0P}, {lds}\n s_add_u32 {sSO}, {sDG[n >> 3]}, {7168*(n % 8)}")
                L.append(it)
            n += cnt
        return L
    def wd_read(n, dst):
        p = wd_page(n); sl = page_slot[p // 7]; hi = 1 if sl >= 2 else 0
        off = (sl - 2 * hi) * SLOT + 1024 * (p % 7)
        return [[WaitTag('vm', "wd%d" % n)] * (dt == 0 and not 28 <= n < 28 + cfg.n_raw) + [Ins(f"ds_read_b64_tr_b16 {dst(dt)}, {v(DR[hi][dt])} offset:{off}", "wr%d" % n)] for dt in range(2)]
    WD1 = 112
    NR = cfg.n_raw; RAW0 = 224 - 4 * NR; EWH = 245
    def raw_reg(n): return RAW0 + 4 * (NR - 1 - (n - 28))
    def raw_loads(n0, n1):
        L = []; n = n0
        while n < n1:
            cnt = min(4, n1 - n, 8 - n % 8)
            L.append(f"s_add_u32 {sSO}, {sDG[n >> 3]}, {7168*(n % 8)}")
            L += [f"buffer_load_dwordx4 {v(raw_reg(n+k),4)}, {v(VD[k])}, {WD}, {sSO} offen offset:{1024*k}" for k in range(cnt)]
            n += cnt
        return L
    def raw_write(n):
        p = wd_page(n); off = page_slot[p // 7] * SLOT + 1024 * (p % 7)
        it = [Ins(f"ds_write_b128 {v(EWB if off < 57344 else EWH)}, {v(raw_reg(n),4)} offset:{off if off < 57344 else off - 57344}", "ww%d" % n)]
        return [it]
    def fill_units(n0, n1):
        m = min(max(28 + NR, n0), n1)
        return [x for n in range(n0, m) for x in raw_write(n)] + wd_dma(m, n1)
    def wd1(n): return lambda dt: a(WD1 + 8 * (n >> 1) + 4 * dt + 2 * (n & 1), 2)
    def wd_reads(n0, n1): return [x for n in range(n0, n1) for x in wd_read(n, wd1(n))]
    if cfg.s3_at >= 0: l3_ = G.pour(S3, cfg.s3_at, cfg.hv_at, cfg.bud1); assert l3_ < 80
    lh = G.pour(hv, cfg.hv_at, max(80, cfg.hv_at + 24), cfg.bud1 if cfg.hv_at < 70 else 20); assert lh < cfg.hw0
    G.spread(hw, cfg.hw0, cfg.hw1)
    if NR:
        r0, r1, r2 = 28, 28 + min(NR, 6), 28 + min(NR, 6 + (NR - 6 + 1) // 2)
        assert cfg.hw1 <= gT(5) + 8 or NR <= 6
        G.spread(raw_loads(r0, r1), gT(4) + 21 - 12, gT(5))
        G.spread(wd_dma(0, 7), gT(5) + 1, gT(5) + 15); G.spread(raw_loads(r1, r2), gT(5) + 15, gT(6))
        G.spread(wd_dma(7, 14), gT(6) + 1, gT(6) + 15); G.spread(raw_loads(r2, 28 + NR), gT(6) + 15, gT(7))
    else:
        G.spread(wd_dma(0, 7), gT(5) + 1, gT(5) + 22)
        G.spread(wd_dma(7, 14), gT(6) + 1, gT(6) + 20)
    UD = ([f"s_mov_b32 m0, {sPA}\n s_add_u32 {sSO}, {sU}, {WS_UR if not cfg.hack_p else 0x900000}"] + [Ins(f"buffer_load_dwordx4 {v(V16)}, {WS}, {sSO} offen offset:{1024*j} sc1 lds", "u") for j in range(2)])
    G.spread(wd_reads(0, 7), gB(11) + 2, gT(7) + 12)
    if cfg.p_chk > gT(7) + 8:
        G.spread(wd_dma(14, 21), gT(7) + 1, cfg.p_chk)
        G.put(cfg.p_chk + 1, UD)
        G.spread(wd_dma(21, 28), cfg.p_chk + 2, NG - 1)
    else:
        assert cfg.p_chk in (gB(10), gB(11))
        G.put(cfg.p_chk + 4, UD)
        G.spread(wd_dma(14, 28), gT(7) + 1, NG - 1)
    bounds = [84 + 2 + (140 - 4) * k // 7 for k in range(8)]
    last = 0
    for T in range(7):
        g0 = max(bounds[T], (84 if T < 3 else gT(T + 1)) + 2, last)
        last = G.pour(epi(T), g0, max(bounds[T + 1], g0 + 1), cfg.bud)
        nxt = [t for t in range(T + 1, 8) if tile_acc[t] == tile_acc[T]]
        if nxt: assert last < gT(nxt[0]), (T, last)
    check_m0(G)
    SS = S + S2; k0 = len(SS) * min(cfg.late_pos, 100) // 100
    touch = []
    if cfg.x_touch:
        touch = lines(f"""v_min_u32 {v(200)}, {8*cfg.x_touch-1}, {v(VL)}
        v_lshrrev_b32 {v(201)}, 3, {v(200)}
        s_lshl_b32 s3, {sFQ}, 1
        s_add_u32 s3, s3, 3
        v_add_u32 {v(201)}, {'s3' if cfg.rot_t else '3'}, {v(201)}
        v_and_b32 {v(201)}, 7, {v(201)}
        v_mul_u32_u24 {v(201)}, 28672, {v(201)}
        v_and_b32 {v(200)}, 7, {v(200)}
        v_mul_u32_u24 {v(200)}, 896, {v(200)}
        v_add3_u32 {v(200)}, {v(200)}, {v(201)}, {sXBc}
        buffer_load_dword {v(202)}, {v(200)}, {X}, {sCH[0]} offen""")
    kvt = lines(f"""s_lshl_b32 s3, s2, 2
    s_add_u32 s3, s3, {sW}
    s_lshl_b32 s3, s3, 4
    v_min_u32 {v(203)}, 15, {v(VL)}
    v_add_lshl_u32 {v(203)}, {v(203)}, s3, 7
    global_load_dword {v(204)}, {v(203)}, s[94:95]
    global_load_dword {v(205)}, {v(203)}, s[96:97]""")
    if cfg.kv_touch == 0: P.add(kvt)
    P.add(SS[:k0])
    if cfg.late_pos <= 100: P.add(late_first)
    P.add(SS[k0:])
    if cfg.kv_touch == 1: P.add(kvt)
    if cfg.s3_at < 0: P.add(S3)
    if cfg.late_pos > 100: P.add(late_first)
    if cfg.kv_touch == 2: P.add(kvt)
    if cfg.trace: P.e('v_mov_b32 v253, 0')
    P.e(f"""s_lshl_b32 s3, s2, 2
    s_add_u32 s3, s3, {sW}
    s_mul_i32 s3, s3, 14
    v_min_u32 {v(200)}, 13, {v(VL)}
    v_add_lshl_u32 {v(200)}, {v(200)}, s3, 7""")
    if cfg.sk_at < 0: P.add(skl)
    if cfg.tlb:
        P.e(f"""v_min_u32 {v(203)}, 12, {v(VL)}
        v_lshlrev_b32 {v(203)}, 20, {v(203)}
        v_add_u32 {v(203)}, 0x1f000, {v(203)}
        buffer_load_dword {v(204)}, {v(203)}, {WS}, 0 offen
        buffer_load_dword {v(205)}, {v(VZ)}, {OUT}, 0 offen
        buffer_load_dword {v(206)}, {v(VZ)}, {WD}, 0 offen""")
    if cfg.wd_touch == -2: P.e(f"buffer_load_dword {v(202)}, {v(200)}, {WD}, 0 offen {cfg.sc_wd}")
    if cfg.warm and cfg.stub_at:
        P.e("s_mov_b64 exec, 0")
        for k in range(min(4, len(cfg.stub_at))): P.e(f"s_cmp_eq_u32 {sW}, {k}\n s_cbranch_scc1 L_pg{k}")
        P.e("L_pgback:\n s_mov_b64 exec, -1")
    if cfg.start_stamps: P.add(stamp("setup"))
    P.e(f"""s_waitcnt lgkmcnt(0)
    s_lshl_b32 s3, {sD}, 16
    s_and_b32 {sD}, {sD}, 0xffff0000
    s_cmp_lt_u32 {sW}, 2
    s_cselect_b32 {sD}, s3, {sD}""")
    P.add(pre)
    P.add(stamp("g1start"))
    G.put(83, stamp("p1end"))
    if cfg.pass_stamps:
        for T in (5, 6, 7): G.put(gT(T) - 1, stamp("T%d" % T))
    add_trace(G, 6, 'g', [94, 96])
    G.emit(P, cfg.pair)
    if cfg.verbose: print("G1 gap costs", G.costs())
    if cfg.start_stamps: P.e("v_readfirstlane_b32 s8, v156\n v_readfirstlane_b32 s10, v157"); STAMP_REGS['prewait'] = 8; STAMP_REGS['karg'] = 10
    P.add(stamp("g1end"))
    CACC = 48
    def cA(buf, a_): return (0 if buf == 0 else 64) + 4 * a_
    def cB(buf, b_):
        i = 32 + 4 * b_ if buf == 0 else 96 + 4 * b_
        return i if i < 112 else 224 + (i - 112)
    def crA(st, k): return [f"ds_read_b64 {a(cA(st&1,k)+2*rd,2)}, {v(CA)} offset:{512*k+64*st+8*rd}" for rd in range(2)]
    def crB(st, k): return [f"ds_read_b128 {a(cB(st&1,k),4)}, {v(CB)} offset:{64*st+512*(7-k)}"]
    def creads(st): return [x for k in range(8) for x in crB(st, k) + crA(st, k)]
    e7 = epi(7, True); ra = [x for k in range(8) for x in crA(0, k)]
    P.add(ra[:10]); k = 10
    for j, it in enumerate(e7):
        P.add(it)
        if j % 6 == 5 and k < 16: P.add(ra[k]); k += 1
    P.add(ra[k:])
    P.vmwait("u"); P.e("s_barrier")
    for k in range(8): P.add(crB(0, k))
    hg = [f"s_lshr_b32 s3, {sI2}, 2", "s_mul_i32 s3, s3, 28", f"s_add_u32 s3, s3, 256", f"s_lshl_b32 {sPA}, s3, 7",
          f"s_lshl_b32 {sRG}, {sRG}, 12", f"s_add_u32 {sXB}, {sHL[0]}, {sRG}", f"s_add_u32 {sHE}, {sHL[0]}, {28*1024}"]
    d0 = fill_units(28, 35)
    npre = 0 if NR else 3
    P.add(d0[:npre])
    P.add(stamp("cstart"))
    C = Gaps(144)
    pairs = [(t, a_) for t in range(8) for a_ in range(t + 1)]
    for st in range(4):
        for j, (t, a_) in enumerate(pairs):
            A = v(CACC + 4 * t, 4)
            C.m[36 * st + j] = f"v_mfma_f32_16x16x32_bf16 {A}, {a(cA(st&1,a_),4)}, {a(cB(st&1,t-a_),4)}, {'0' if (st == 0 and a_ == 0) else A}"
        if st < 3: C.spread(creads(st + 1), 36 * st + 1, 36 * st + 33)
    HRING = 96; NHR = 32
    horder = [(0, ks) for ks in range(28)] + [(1, ks) for ks in (list(range(14, 28)) + list(range(14)) if cfg.b_rev else range(28))]
    def hload(n):
        st, ks = horder[n]; L = []
        if n == 28: L += [f"s_add_u32 {sXB}, {sHL[1]}, {sRG}", f"s_add_u32 {sHE}, {sHL[1]}, {28*1024}"]
        elif n > 0 and ks % 4 == 0: L += [f"s_add_u32 {sXB}, {sXB}, 4096", f"s_cmp_eq_u32 {sXB}, {sHE}\n s_cselect_b32 {sXB}, {sHL[st]}, {sXB}"]
        L.append(f"buffer_load_dwordx4 {v(HRING+4*(n%NHR),4)}, {v(V16)}, {WS}, {sXB} offen offset:{1024*(ks%4)} sc1")
        return L
    w0, w1, w2, w3 = cfg.c_wd
    C.spread(d0[npre:], 0, w0)
    C.spread(wd_reads(7, 14), 2, w0 - 2); C.spread(fill_units(35, 42), w0, w1)
    C.spread(wd_reads(14, 21), w0, w1 - 2); C.spread(fill_units(42, 49), w1, w2)
    C.spread(wd_reads(21, 28), w1, w2 - 2); C.spread(wd_dma(49, 56), w2, w3)
    C.put(cfg.g_arrive, arrive("hst", sFL))
    lh_ = C.pour(hg, 40, cfg.g_poll - 4, 10); assert lh_ < cfg.g_poll
    C.put(cfg.g_poll, poll_load("h", sPA))
    C.put(cfg.g_chk, [stamp("c_pre"), poll_check("h", sPA), stamp("c_post")])
    NH = cfg.nh_c
    C.spread([hload(n) for n in range(NH)], cfg.g_chk + 1, 144)
    RR = 48; UU = 18; DU = 80
    ce = [f"s_add_u32 {sU}, {sU}, {WS_YT}"]
    ce += [f"ds_read_b64 {v(UU+2*tau,2)}, {v(VUR)} offset:{512*(3-tau)}" for tau in range(4)]
    for tau in range(4):
        ce += lines(f"""
        v_and_b32 {v(DU+4*tau+0)}, {sMASK}, {v(UU+2*tau+1)}
        v_lshlrev_b32 {v(DU+4*tau+1)}, 16, {v(UU+2*tau+1)}
        v_and_b32 {v(DU+4*tau+2)}, {sMASK}, {v(UU+2*tau)}
        v_lshlrev_b32 {v(DU+4*tau+3)}, 16, {v(UU+2*tau)}""")
    lr = C.pour(ce[:5], max(lh_ + 1, 104), 112, 8); assert lr < cfg.c_bar - 4
    lc = C.pour(ce[5:], lr + 6, 140, 8)
    assert lc < 140
    C.put(cfg.c_bar, [WaitRegs(a(cA(1, 7), 4)), WaitRegs(v(UU, 8)), Ins("s_barrier")])
    check_m0(C, 1024)
    add_trace(C, 12, 'c', [94, 96])
    C.emit(P)
    if cfg.verbose: print("C gap costs", C.costs())
    hq = [hload(n) for n in range(NH, NH + cfg.nh_e)]; NH += cfg.nh_e
    def hnext():
        if hq: P.add(hq.pop(0))
    hnext()
    dfma = lambda base: [f"v_pk_fma_f32 {v(DU+2*k,2)}, s[78:79], {v(DU+2*k,2)}, {v(base+2*k,2)} op_sel_hi:[0,1,1]" for k in range(8)]
    P.e(f"s_cmp_eq_u32 {sKH}, 0\n s_cbranch_scc1 L_cw0")
    for tau in range(4): P.e(f"ds_write_b128 {v(VRW)}, {v(CACC+4*tau,4)} offset:{1024*tau}", nocount=True)
    P.add(dfma(CACC + 16))
    P.e("s_branch L_cw1\n L_cw0:\n s_nop 2")
    for tau in range(4): P.e(f"ds_write_b128 {v(VRW)}, {v(CACC+16+4*tau,4)} offset:{1024*tau}")
    P.add(dfma(CACC))
    P.e("L_cw1:")
    while hq: hnext()
    P.e("s_waitcnt lgkmcnt(0)\n s_barrier")
    ct_ = [f"ds_read_b128 {v(RR+4*tau,4)}, {v(VRR)} offset:{1024*tau}" for tau in range(4)]
    P.add(ct_); ct_ = []
    for pi in range(2):
        if cfg.c_tail_in_g2: ct_ += [f"v_add_f32 {v(DU+8*pi+k)}, {v(DU+8*pi+k)}, {v(RR+8*pi+k)}" for k in range(8)]
        else: ct_ += [f"v_pk_add_f32 {v(DU+8*pi+2*k,2)}, {v(DU+8*pi+2*k,2)}, {v(RR+8*pi+2*k,2)}" for k in range(4)]
        ct_ += [f"v_cvt_pk_bf16_f32 {v(UU+4*pi+k)}, {v(DU+8*pi+2*k)}, {v(DU+8*pi+2*k+1)}" for k in range(4)]
    for pi in range(2):
        ct_ += [f"v_permlane16_swap_b32 {v(UU+4*pi)}, {v(UU+4*pi+2)}", f"v_permlane16_swap_b32 {v(UU+4*pi+1)}, {v(UU+4*pi+3)}"]
        ct_ += [Ins(f"buffer_store_dwordx4 {v(UU+4*pi,4)}, {v(VYS)}, {WS}, {sU} offen offset:{1024*pi} sc1", "yst")]
    if not cfg.c_tail_in_g2: P.add(ct_); ct_ = []
    P.add(stamp("g2start"))
    GACC = 0; JIT = 64; NJ = 8
    G2 = Gaps(112)
    jn = 0
    for n in range(56):
        st, ks = horder[n]
        for dt in range(2):
            A = a(GACC + 32 * st + 16 * dt, 16)
            if ks < 14: W_ = a(WD1 + 8 * ks + 4 * dt, 4)
            else:
                r_ = JIT + 4 * (jn % NJ); jn += 1; W_ = a(r_, 4)
                for rd in range(2):
                    G2.put(2 * n + dt - 6, wd_read(2 * ks + rd, lambda d_, r_=r_, rd=rd: a(r_ + 2 * rd, 2))[dt])
            G2.m[2 * n + dt] = f"v_mfma_f32_32x32x16_bf16 {A}, {W_}, {v(HRING+4*(n%NHR),4)}, {'0' if n in (0, 28) else A}"
    reserved = sorted([8, 10] * bool(cfg.c_tail_in_g2) + list(cfg.q_at[:2]) + [cfg.g2_chk + 2, cfg.g2_chk + 4])
    t_ = 0.0; n = NH; la = []
    while n < 56:
        if reserved and reserved[0] <= t_ + cfg.g2_hpace / 2: reserved.pop(0); t_ += cfg.g2_hpace; continue
        g = int(t_)
        if n >= NHR: assert g >= 2 * (n - NHR) + 1
        la.append(2 * n - g); G2.put(g, hload(n)); n += 1; t_ += cfg.g2_hpace
    if cfg.verbose: print("H lookahead (gaps)", la)
    assert min(la) >= 8, la
    lt = G2.pour(ct_, 1, 10, 24) if ct_ else 0
    e1 = lines(f"""
    s_lshl_b32 s3, s2, 7
    s_add_u32 {sFL}, s3, {512*128}
    s_lshl_b32 s3, {sCT}, 12
    s_add_u32 {sPA}, s3, {512*128}
    """)
    l1 = G2.pour(e1, lt, lt + 8, 24); assert l1 <= cfg.g2_arrive
    G2.put(cfg.g2_arrive, [WaitTag('vm', "q"), arrive("yst", sFL)])
    qd = [f"s_lshl_b32 {sT1}, {sW}, 11\n s_add_u32 m0, {sT1}, {QL}"]
    qd += [Ins(f"buffer_load_dwordx4 {v(VQ[j])}, {X}, {sQS} offen offset:{1024*j} lds", "q") for j in range(2)]
    qd += [f"buffer_load_dword {v(VG[j])}, {v(VGA)}, {WS}, 0 offen offset:{128*j} sc1" for j in range(2)]
    G2.put(cfg.q_at[0] - 1, qd[0])
    for q_, g_ in zip(qd[1:], cfg.q_at): G2.put(g_, q_)
    def sends(st, addr):
        return [Ins(f"ds_write_b128 {addr(sg, jj)[0]}, {a(GACC+32*st+16*(sg>>1)+8*(sg&1)+4*jj,4)} offset:{addr(sg, jj)[1]}", "rw%d" % st) for sg in range(1, 4) for jj in range(2)]
    G2.spread(sends(0, lambda sg, jj: (v(EWA), 2048 * (sg - 1) + 1024 * jj)), 59, cfg.g2_chk - 1)
    G2.put(cfg.g2_poll, poll_load("y", sPA))
    G2.put(cfg.g2_chk, [stamp("g2_pre"), poll_check("y", sPA), WaitTag('lgkm', "rw0"), Ins("s_barrier"), [] if cfg.pass_stamps else stamp("g2_post")])
    yd = [f"s_add_u32 m0, {sT1}, {YL}"]
    yd += [Ins(f"buffer_load_dwordx4 {v(VY[j])}, {WS}, {sYS} offen offset:{1024*j} sc1 lds", "y") for j in range(2)]
    G2.put(cfg.g2_chk + 1, yd[0]); G2.put(cfg.g2_chk + 2, yd[1]); G2.put(cfg.g2_chk + 4, yd[2])
    QQ = 48; TT = 56; BB = 72; RX = 80; YY = 18; O = 48
    RP = [80, 84, 88, 92, 28 + 0, 28 + 0]
    un = lambda i, d, s_: (f"v_lshlrev_b32 {d}, 16, {s_}" if i % 2 == 0 else f"v_and_b32 {d}, {sMASK}, {s_}")
    p0 = [f"ds_read_b64 {v(QQ+4*st+2*J,2)}, {v(EQ[J])} offset:{4096*st}" for st in range(2) for J in range(2)]
    p0 += [f"v_sub_f32 {v(OMG[st])}, 1.0, {v(VG[st])}" for st in range(2)] + [[], []]
    p0 += [un(k, v(TT + k), v(QQ + (k >> 1))) for k in range(16)]
    p0 += [f"v_mul_f32 {v(TT+k)}, {v(TT+k)}, {v(VG[k>>3])}" for k in range(16)]
    l0 = G2.pour(p0, cfg.g2_arrive + 1, 60, 22); assert l0 < cfg.g2_chk
    p1 = [f"ds_read_b128 {v(RX+4*jj,4)}, {v(ERA[0])} offset:{1024*jj}" for jj in range(2)]
    p1 += [f"ds_read_b128 {v(RX+8+4*jj,4)}, {v(ERA[1])} offset:{1024*jj}" for jj in range(2)]
    p1 += [f"v_accvgpr_read_b32 {v(BB+k)}, {a(GACC+k)}" for k in range(8)]
    p1 += [f"v_add_f32 {v(BB+k)}, {v(BB+k)}, {v(RX+k)}" for k in range(8)]
    p1 += [f"ds_read_b128 {v(RX+4*jj,4)}, {v(ERA[2])} offset:{1024*jj}" for jj in range(2)]
    p1 += [f"v_add_f32 {v(BB+k)}, {v(BB+k)}, {v(RX+8+k)}" for k in range(8)]
    p1 += [f"v_add_f32 {v(BB+k)}, {v(BB+k)}, {v(RX+k)}" for k in range(8)]
    p1 += [f"v_mul_f32 {v(BB+k)}, {v(BB+k)}, {v(OMG[0])}" for k in range(8)]
    l3 = G2.pour(p1, cfg.g2_chk + 1, cfg.g2_pre - 1, 24); assert l3 <= cfg.g2_pre + 4, l3
    p2 = [[WaitTag('vm', "y"), Ins("s_barrier")]]
    p2 += [f"ds_read_b64_tr_b16 {v(YY+4*st+2*J,2)}, {v(EY)} offset:{1024*J+32*st}" for st in range(2) for J in range(2)]
    p2 += [[], [], []]
    p2 += [un(k, v(RX + k), v(YY + (k >> 1))) for k in range(8)]
    p2 += [f"v_fmac_f32 {v(BB+k)}, {v(TT+k)}, {v(RX+k)}" for k in range(8)]
    p2 += [f"v_cvt_pk_bf16_f32 {v(O+k)}, {v(BB+2*k)}, {v(BB+2*k+1)}" for k in range(4)]
    p2 += [un(k, v(RX + k), v(YY + (k >> 1))) for k in range(8, 16)]
    p2 += [f"v_permlane32_swap_b32 {v(O)}, {v(O+2)}", f"v_permlane32_swap_b32 {v(O+1)}, {v(O+3)}"]
    p2 += [f"buffer_store_dwordx4 {v(O,4)}, {v(EO)}, {OUT}, {sO[0]} offen {cfg.sc_out}"]
    p2 += [f"v_mul_f32 {v(TT+k)}, {v(TT+k)}, {v(RX+k)}" for k in range(8, 16)]
    p2 += [f"v_mov_b32 {v(T1)}, {v(OMG[1])}", f"v_mov_b32 {v(T2)}, {v(OMG[1])}"]
    G2.pour(p2, max(l3, cfg.g2_pre), 111, 24)
    check_m0(G2)
    add_trace(G2, 8, 'h', [94, 96])
    G2.emit(P, 2)
    if cfg.verbose: print("G2 gap costs", G2.costs())
    P.add(stamp("g2end"))
    R1 = 96; O2 = 52
    w_ = sends(1, lambda sg, jj: (v(EWB), (sg - 1) * SLOT + 1024 * jj))
    P.add(w_[:2])
    for k in range(8): P.e(f"v_accvgpr_read_b32 {v(BB+k)}, {a(GACC+32+k)}")
    P.add(w_[2:])
    P.e("s_waitcnt lgkmcnt(0)\n s_barrier")
    for jj in range(2):
        for sg in range(1, 4): P.e(f"ds_read_b128 {v(R1+8*(sg-1)+4*jj,4)}, {v(ERB[sg-1])} offset:{1024*jj}")
    for jj in range(2):
        for sg in range(3):
            for i in range(2): P.e(f"v_pk_add_f32 {v(BB+4*jj+2*i,2)}, {v(BB+4*jj+2*i,2)}, {v(R1+8*sg+4*jj+2*i,2)}")
        for i in range(2): P.e(f"v_pk_fma_f32 {v(BB+4*jj+2*i,2)}, {v(BB+4*jj+2*i,2)}, {v(T1,2)}, {v(TT+8+4*jj+2*i,2)}")
        for i in range(2): P.e(f"v_cvt_pk_bf16_f32 {v(O2+2*jj+i)}, {v(BB+4*jj+2*i)}, {v(BB+4*jj+2*i+1)}")
    P.e(f"v_permlane32_swap_b32 {v(O2)}, {v(O2+2)}\n v_permlane32_swap_b32 {v(O2+1)}, {v(O2+3)}")
    P.e(f"buffer_store_dwordx4 {v(O2,4)}, {v(EO)}, {OUT}, {sO[1]} offen {cfg.sc_out}")
    if cfg.stamps: emit_stamps(P)
    if cfg.fixdur:
        P.e(f"""L_fix:
        s_memrealtime s[4:5]
        s_waitcnt lgkmcnt(0)
        s_sub_u32 s4, s4, s100
        s_cmp_lt_i32 s4, {cfg.fixdur}
        s_cbranch_scc1 L_fix""")
    P.e("s_endpgm")

def check_m0(G, init=None):
    flat = []
    def fl(it):
        if isinstance(it, str):
            for l in lines(it): flat.append(Ins(l))
        elif isinstance(it, (list, tuple)):
            for x in it: fl(x)
        elif isinstance(it, Ins): flat.append(it)
    for f in G.f:
        for it in f: fl(it)
    last_off = init
    for it in flat:
        if it.kind == 'salu' and ('s', 'm0') in it.w: last_off = -1024
        if it.kind == 'dma':
            m = re.search(r'offset:(\d+)', it.text); off = int(m.group(1)) if m else 0
            assert last_off is not None and off == last_off + 1024, ("m0 group interleaved", it.text)
            last_off = off

def emit_stamps(P):
    P.e("s_waitcnt vmcnt(0)")
    P.e("s_memtime s[4:5]\n s_memrealtime s[6:7]\n s_waitcnt lgkmcnt(0)")
    n = len(stamp_names)
    for k in range(n):
        P.e(f"s_sub_u32 s3, s{STAMP_REGS[stamp_names[k]]}, {'s100' if cfg.rt else 's98'}"); P.e(f"v_mov_b32 v{200+k}, s3")
    P.e(f"s_sub_u32 s3, {'s6, s100' if cfg.rt else 's4, s98'}\n v_mov_b32 v{200+n}, s3")
    P.e(f"""s_lshl_b32 s3, s2, 2
    s_add_u32 s3, s3, {sW}
    s_lshl_b32 s3, s3, 7
    s_add_u32 s3, s3, {WS_STAMP}
    v_mov_b32 v229, 0
    v_mov_b32 v230, s100
    v_mov_b32 v231, s6
    v_mov_b32 v2, 0
    s_mov_b64 exec, 1""")
    for k in range(8): P.e(f"buffer_store_dwordx4 v[{200+4*k}:{203+4*k}], v2, {WS}, s3 offen offset:{16*k}")
    if cfg.trace:
        P.e(f"""s_mov_b64 exec, -1
        v_subrev_u32 v254, s98, v254
        v_subrev_u32 v255, s98, v255
        s_lshl_b32 s3, s2, 2
        s_add_u32 s3, s3, {sW}
        s_lshl_b32 s3, s3, 9
        s_add_u32 s3, s3, {WS_STAMP + 0x40000}
        v_lshlrev_b32 v2, 2, v1
        buffer_store_dword v254, v2, {WS}, s3 offen
        v_readlane_b32 s4, v253, 0
        v_readlane_b32 s5, v253, 1
        v_readlane_b32 s6, v253, 2
        v_readlane_b32 s7, v253, 3
        s_nop 3
        v_writelane_b32 v255, s4, 60
        v_writelane_b32 v255, s5, 61
        v_writelane_b32 v255, s6, 62
        v_writelane_b32 v255, s7, 63
        buffer_store_dword v255, v2, {WS}, s3 offen offset:256""")

def gen_aux(P0):
    P = P0
    K, V_, SH, GW = "s[40:43]", "s[44:47]", "s[48:51]", "s[52:55]"
    sA = "s68"; sST = "s69"; sUS = "s70"; sLO = "s71"; sHI = "s72"; sC = "s73"; sC2 = "s74"; sTA = ["s56", "s57"]; sTW = ["s58", "s59"]
    VL = 1; T0 = 2; T1 = 3; VZA = 4; VB = 5; VB2 = 6; VM = 7; VX = 8; VR = 9; VS = 11; VW = 12; VWt = [13, 14]; VRB = 16; VQ = 20; VQ2 = 21; VGW = 22
    KP = [48, 58]; VP = [68, 76]; WR_ = [84, 86]; WT = [88, 94]; OO = 100; UV = 108; OUT_ = 124; RB = 160; PF = 24
    TS = 17408
    P.e("s_cmp_lt_u32 s2, 256\n s_cbranch_scc1 L_auxgo\n s_endpgm\n L_auxgo:")
    for reg, off in ((K, 8), (V_, 16), (SH, 24), (GW, 80)): P.e(ldptr(reg, off))
    P.add(srd_hi(K, NQ) + srd_hi(V_, NQ) + srd_hi(SH, 3584) + srd_hi(X, NQ) + srd_hi(GW, 896) + srd_hi(WS, WS_SIZE) + srd_hi(WD, NW))
    P.e(f"""
    s_sub_u32 {sA}, s2, 224
    s_mul_i32 {sSO}, {sA}, {64*896}
    s_mul_i32 {sST}, {sW}, 40960
    s_lshl_b32 {sTA[0]}, {sW}, 7
    s_add_u32 {sTA[1]}, {sTA[0]}, 512
    s_lshl_b32 {sTW[0]}, {sW}, 9
    s_add_u32 {sTW[1]}, {sTW[0]}, 2048
    v_lshrrev_b32 {v(T0)}, 3, {v(VL)}
    v_and_b32 {v(T1)}, 7, {v(VL)}
    v_mul_u32_u24 {v(VB)}, 896, {v(T0)}
    v_lshl_add_u32 {v(VB)}, {v(T1)}, 4, {v(VB)}
    v_add_u32 {v(VB)}, {sSO}, {v(VB)}
    v_add_u32 {v(VB2)}, 6144, {v(VB)}
    v_add_u32 {v(VM)}, -7168, {v(VB)}
    v_lshlrev_b32 {v(VX)}, 3, {v(VL)}
    s_mul_i32 s3, {sA}, {24*128}
    v_lshlrev_b32 {v(VZA)}, 7, {v(VL)}
    v_add_u32 {v(VZA)}, s3, {v(VZA)}
    v_mov_b32 {v(vARR)}, -16
    v_cmp_gt_u32 vcc, 24, v0
    v_mov_b32 {v(vZERO)}, 0
    v_cndmask_b32 {v(VZA)}, {v(vARR)}, {v(VZA)}, vcc
    v_cmp_eq_u32 vcc, 0, v0
    v_mov_b32 {v(vONE)}, 1
    s_waitcnt lgkmcnt(0)
    v_cndmask_b32 {v(vARR)}, {v(vARR)}, 0, vcc
    s_mov_b32 s34, 256
    s_mov_b32 s35, 0x20000
    """)
    def dset(k, j):
        b = TS * k; tag = "pin%d%d" % (k, j); L = []
        L.append([f"s_add_u32 {sC}, {sTA[k]}, {14336*j}\n s_add_u32 m0, {sST}, {b+1024+2048*j}", Ins(f"buffer_load_dwordx4 {v(VB)}, {K}, {sC} offen lds", tag)])
        L.append(Ins(f"buffer_load_dwordx4 {v(VB2)}, {K}, {sC} offen offset:1024 lds", tag))
        if j == 0:
            L.append([f"s_add_u32 m0, {sST}, {b}", Ins(f"buffer_load_dwordx4 {v(VM)}, {K}, {sC} offen lds", tag)])
            L.append(f"buffer_load_dwordx2 {v(WR_[k],2)}, {v(VX)}, {SH}, {sTW[k]} offen")
        L.append([f"s_add_u32 m0, {sST}, {b+9216+2048*j}", Ins(f"buffer_load_dwordx4 {v(VB)}, {V_}, {sC} offen lds", tag)])
        L.append(Ins(f"buffer_load_dwordx4 {v(VB2)}, {V_}, {sC} offen offset:1024 lds", tag))
        return L
    P.add(dset(0, 0))
    P.e(f"buffer_store_dword {v(vZERO)}, {v(VZA)}, {WS}, 0 offen sc1", tag="zst")
    P.add(dset(0, 1))
    P.e(f"""
    v_bfe_u32 {v(VR)}, {v(VL)}, 2, 2
    v_lshlrev_b32 {v(VR)}, 7, {v(VR)}
    v_lshrrev_b32 {v(VS)}, 4, {v(VL)}
    v_lshl_add_u32 {v(VR)}, {v(VS)}, 5, {v(VR)}
    v_and_b32 {v(VS)}, 3, {v(VL)}
    v_lshl_add_u32 {v(VR)}, {v(VS)}, 3, {v(VR)}
    v_add_u32 {v(VR)}, {sST}, {v(VR)}
    s_mov_b32 {sLO}, 0xffff
    s_mov_b32 {sMASK}, 0xffff0000
    v_lshlrev_b32 {v(VW)}, 4, {v(T1)}
    v_lshl_add_u32 {v(VW)}, {v(VL)}, 7, {v(VW)}
    v_add_u32 {v(VW)}, {sST}, {v(VW)}
    v_xor_b32 {v(VRB)}, {v(T0)}, {v(T1)}
    v_lshlrev_b32 {v(VRB)}, 4, {v(VRB)}
    v_lshl_add_u32 {v(VRB)}, {v(T0)}, 7, {v(VRB)}
    v_add_u32 {v(VRB)}, {sST}, {v(VRB)}
    v_lshlrev_b32 {v(VGW)}, 4, {v(T1)}
    v_lshl_add_u32 {v(VS)}, {v(T0)}, 12, {v(VGW)}
    v_mul_u32_u24 {v(VQ)}, {8*896}, {v(T0)}
    v_add_u32 {v(VQ)}, {v(VQ)}, {v(VGW)}
    v_add_u32 {v(VQ)}, {sSO}, {v(VQ)}
    v_add_u32 {v(VQ2)}, {4*896}, {v(VQ)}
    s_lshl_b32 s3, {sW}, 18
    s_sub_u32 {sUS}, 31, {sA}
    s_lshl_b32 {sUS}, {sUS}, 7
    s_add_u32 {sUS}, {sUS}, s3
    s_add_u32 {sUS}, {sUS}, {WS_UR}
    """)
    P.add(dset(0, 2))
    P.vmwait("zst")
    P.e(f"buffer_atomic_add {v(vONE)}, {v(vARR)}, s[32:35], 0 offen sc1")
    P.add(dset(0, 3))
    def reads(k, j):
        b = TS * k; K_ = KP[j & 1]; V2 = VP[j & 1]
        L = [WaitTag('vm', "pin%d%d" % (k, j))]
        L += [f"ds_read_b64_tr_b16 {v(K_+2*m,2)}, {v(VR)} offset:{b+512+2048*j+512*m}" for m in range(5)]
        L += [f"ds_read_b64_tr_b16 {v(V2+2*m,2)}, {v(VR)} offset:{b+9216+2048*j+512*m}" for m in range(4)]
        return L
    def wprep(k):
        W = WR_[k]; T_ = WT[k]
        return lines(f"""v_alignbit_b32 {v(T_)}, {v(W)}, {v(W)}, 16
        v_alignbit_b32 {v(T_+1)}, {v(W+1)}, {v(W+1)}, 16
        v_and_b32 {v(T_+2)}, {sLO}, {v(W)}
        v_bfi_b32 {v(T_+3)}, {sLO}, {v(W+1)}, {v(W)}
        v_and_b32 {v(T_+4)}, {sMASK}, {v(W+1)}""")
    def owrites(k, j):
        return [[f"v_xor_b32 {v(VWt[q&1])}, {16*q}, {v(VW)}", Ins(f"ds_write_b128 {v(VWt[q&1])}, {v(OUT_+4*q,4)} offset:{TS*k}", "ow")] for q in (7 - 2 * j, 6 - 2 * j)]
    def readback(k): return [f"ds_read_b128 {v(RB+4*q,4)}, {v(VRB)} offset:{TS*k+1024*q}" for q in range(8)]
    def stores(k): return [[f"s_add_u32 {sC2}, {sUS}, {(k << 20) + 32768*q}", Ins(f"buffer_store_dwordx4 {v(RB+4*q,4)}, {v(VS)}, {WS}, {sC2} offen sc1", "pst")] for q in range(8)]
    def step(P, k, j, fill):
        K_ = KP[j & 1]; V2 = VP[j & 1]; T_ = WT[k]; fill = list(fill); per = (len(fill) + 9) // 10
        def nx():
            for _ in range(per):
                if fill: P.add(fill.pop(0))
        P.add(WaitRegs(v(V2 + 6, 2)))
        if cfg.stamps: r_ = [60, 62, 64, 66, 76, 78, 80, 92][4 * k + j]; P.e(f"s_memtime s[{r_}:{r_+1}]")
        for h in range(2):
            J = range(4 * h, 4 * h + 4)
            for i in J: P.e(f"v_dot2_f32_bf16 {v(OO+2*(i%4))}, {v(K_+i+2)}, {v(T_+2)}, 0\n v_dot2_f32_bf16 {v(OO+2*(i%4)+1)}, {v(K_+i+2)}, {v(T_)}, 0")
            nx()
            for i in J: P.e(f"v_dot2_f32_bf16 {v(OO+2*(i%4))}, {v(K_+i+1)}, {v(T_+3)}, {v(OO+2*(i%4))}\n v_dot2_f32_bf16 {v(OO+2*(i%4)+1)}, {v(K_+i+1)}, {v(T_+1)}, {v(OO+2*(i%4)+1)}")
            nx()
            for i in J: P.e(f"v_dot2_f32_bf16 {v(OO+2*(i%4))}, {v(K_+i)}, {v(T_+4)}, {v(OO+2*(i%4))}")
            nx()
            for i in J: P.e(f"v_lshlrev_b32 {v(UV+2*(i%4))}, 16, {v(V2+i)}\n v_and_b32 {v(UV+2*(i%4)+1)}, {sMASK}, {v(V2+i)}")
            nx()
            for i in J: P.e(f"v_pk_mul_f32 {v(UV+2*(i%4),2)}, {v(UV+2*(i%4),2)}, {v(OO+2*(i%4),2)}")
            nx()
            for i in J: P.e(f"v_cvt_pk_bf16_f32 {v(OUT_+31-8*j-i)}, {v(UV+2*(i%4)+1)}, {v(UV+2*(i%4))}")
        while fill: nx()
    P.add(reads(0, 0)); P.add(wprep(0))
    if cfg.stamps: P.e("s_waitcnt lgkmcnt(0)\n s_memtime s[86:87]")
    P.e(f"s_cmp_eq_u32 {sW}, 3\n s_cbranch_scc1 L_gate")
    Pg = Prog(); Pg.items = list(P.items)
    step(P, 0, 0, dset(1, 0) + reads(0, 1))
    step(P, 0, 1, dset(1, 1) + reads(0, 2))
    step(P, 0, 2, dset(1, 2) + reads(0, 3))
    step(P, 0, 3, dset(1, 3) + reads(1, 0) + wprep(1) + owrites(0, 0) + owrites(0, 1) + owrites(0, 2))
    P.add(owrites(0, 3))
    step(P, 1, 0, reads(1, 1) + readback(0))
    step(P, 1, 1, reads(1, 2) + stores(0))
    step(P, 1, 2, poll_load("za", None) + reads(1, 3))
    step(P, 1, 3, owrites(1, 0) + owrites(1, 1) + owrites(1, 2))
    P.add(owrites(1, 3)); P.add(readback(1)); P.add(stores(1))
    P.e("s_branch L_auxdone")
    P = Pg; P.e("L_gate:")
    QB = [192, 224, 48, 80]; GWS = [24, 28, 34, 38]
    def ql(tau):
        b = QB[tau % 4]
        L = [f"buffer_load_dwordx4 {v(b+4*rho,4)}, {v(VQ if rho < 4 else VQ2)}, {X}, 0 offen offset:{896*(rho%4)+128*tau}" for rho in range(8)]
        return L + [f"buffer_load_dwordx4 {v(GWS[tau%4],4)}, {v(VGW)}, {GW}, 0 offen offset:{128*tau}"]
    step(P, 0, 0, reads(0, 1))
    step(P, 0, 1, reads(0, 2) + ql(0))
    step(P, 0, 2, reads(0, 3) + ql(1))
    step(P, 0, 3, owrites(0, 0) + owrites(0, 1) + owrites(0, 2))
    P.add(owrites(0, 3)); P.add(ql(2)); P.add(readback(0)); P.add(ql(3)); P.add(stores(0)); P.add(poll_load("za", None))
    for tau in range(7):
        b = QB[tau % 4]
        for p in range(4):
            for rho in range(8):
                P.e(f"v_dot2_f32_bf16 {v(112+rho)}, {v(b+4*rho+p)}, {v(GWS[tau%4]+p)}, {'0' if (tau == 0 and p == 0) else v(112+rho)}")
        if tau + 4 < 7: P.add(ql(tau + 4))
    AC = 112
    for mod in ("row_half_mirror", "quad_perm:[3,2,1,0]", "quad_perm:[1,0,3,2]"):
        for rho in range(8): P.e(f"v_add_f32_dpp {v(AC+rho)}, {v(AC+rho)}, {v(AC+rho)} {mod} row_mask:0xf bank_mask:0xf")
    P.e("s_mov_b32 s74, 0xaaaaaaaa\n s_mov_b32 s75, 0xaaaaaaaa")
    for k in range(4): P.e(f"v_cndmask_b32 {v(AC+k)}, {v(AC+2*k)}, {v(AC+2*k+1)}, s[74:75]")
    P.e("s_mov_b32 s74, 0xcccccccc\n s_mov_b32 s75, 0xcccccccc")
    for k in range(2): P.e(f"v_cndmask_b32 {v(AC+k)}, {v(AC+2*k)}, {v(AC+2*k+1)}, s[74:75]")
    P.e("s_mov_b32 s74, 0xf0f0f0f0\n s_mov_b32 s75, 0xf0f0f0f0")
    P.e(f"""v_cndmask_b32 {v(AC)}, {v(AC)}, {v(AC+1)}, s[74:75]
    v_mul_f32 {v(AC)}, 0xbfb8aa3b, {v(AC)}
    v_exp_f32 {v(AC)}, {v(AC)}
    v_add_f32 {v(AC)}, 1.0, {v(AC)}
    v_rcp_f32 {v(AC)}, {v(AC)}
    s_lshl_b32 s3, {sA}, 8
    s_add_u32 s3, s3, {WS_G}
    v_lshlrev_b32 {v(T0)}, 2, {v(VL)}
    buffer_store_dword {v(AC)}, {v(T0)}, {WS}, s3 offen sc1""")
    T = Prog(); T.e("L_auxdone:")
    if cfg.stamps: T.e("s_memtime s[88:89]")
    T.e(f"""s_lshl_b32 {sC}, {sA}, 7
    s_lshl_b32 s3, {sA}, 2
    s_add_u32 s3, s3, {sW}
    s_mul_i32 {sSO2}, s3, {98*128}
    v_lshlrev_b32 {v(PF)}, 7, {v(VL)}
    v_add_u32 {v(PF+1)}, {34*128}, {v(PF)}
    s_waitcnt vmcnt(0)""")
    T.add(poll_check("za", None))
    T.e("s_barrier")
    if not cfg.nosync: T.e(f"buffer_store_dword {v(vONE)}, {v(vARR)}, {WS}, {sC} offen sc1")
    if cfg.stamps: T.e("s_memtime s[90:91]")
    if cfg.aux_l2:
        g0, ng = cfg.aux_l2
        T.e(f"""v_mul_u32_u24 {v(PF)}, 896, {v(VL)}
        s_lshr_b32 s56, {sA}, 3
        s_mul_i32 s56, s56, {448*896}
        s_and_b32 s57, s2, 7
        s_add_u32 s57, s57, {g0}""")
        for k in range((7 * ng + 3) // 4):
            T.e(f"""s_add_u32 s58, {sW}, {4*k}
            s_min_u32 s58, s58, {7*ng-1}
            s_mul_i32 s59, s58, 37
            s_lshr_b32 s59, s59, 8
            s_mul_i32 s3, s59, 7
            s_sub_u32 s58, s58, s3
            s_add_u32 s59, s59, s58
            s_add_u32 s59, s59, s57
            s_mul_i32 s3, s59, 37
            s_lshr_b32 s3, s3, 8
            s_mul_i32 s3, s3, 7
            s_sub_u32 s59, s59, s3
            s_mul_i32 s59, s59, {64*896}
            s_lshl_b32 s58, s58, 7
            s_add_u32 s59, s59, s58
            s_add_u32 s59, s59, s56
            buffer_load_dword {v(PF+2+k)}, {v(PF)}, {WD}, s59 offen""")
    if cfg.stamps:
        T.e(f"""s_waitcnt vmcnt(0)
        s_memtime s[4:5]
        s_memrealtime s[6:7]
        s_waitcnt lgkmcnt(0)
        s_sub_u32 s3, s86, s98
        v_mov_b32 v200, s3
        s_sub_u32 s3, s88, s98
        v_mov_b32 v201, s3
        s_sub_u32 s3, s90, s98
        v_mov_b32 v202, s3
        s_sub_u32 s3, s4, s98
        v_mov_b32 v203, s3
        v_mov_b32 v204, s100
        v_mov_b32 v205, s6
        s_lshl_b32 s3, s2, 2
        s_add_u32 s3, s3, {sW}
        s_lshl_b32 s3, s3, 7
        s_add_u32 s3, s3, {WS_STAMP}
        v_mov_b32 v2, 0
        s_mov_b64 exec, 1
        buffer_store_dwordx4 v[200:203], v2, {WS}, s3 offen
        buffer_store_dwordx2 v[204:205], v2, {WS}, s3 offen offset:120""")
        for i_, r_ in enumerate([60, 62, 64, 66, 76, 78, 80, 92]): T.e(f"s_sub_u32 s4, s{r_}, s98\n v_mov_b32 v{208+i_}, s4")
        T.e(f"buffer_store_dwordx4 v[208:211], v2, {WS}, s3 offen offset:16\n buffer_store_dwordx4 v[212:215], v2, {WS}, s3 offen offset:32")
    T.e("s_endpgm")
    return Pg, T

def build():
    global slow_paths, stamp_names, trace_names
    slow_paths = []; stamp_names = []; trace_names = []; arr_n[0] = 0; STAMP_REGS['prewait'] = 74; STAMP_REGS['karg'] = 72
    pro = Prog()
    for reg, off in ((X, 0), (WG, 56), (WU, 64), (WD, 72), (SK, 32), (WS, 104), (OUT, 88), (pDBG, 96), (pD, 40)) + ((("s[94:95]", 8), ("s[96:97]", 16)) if cfg.kv_touch is not None else ()): pro.e(ldptr(reg, off))
    if cfg.sync_start:
        pro.e("""s_memrealtime s[100:101]
        s_waitcnt lgkmcnt(0)
        s_add_u32 s3, s100, 400
        s_and_b32 s3, s3, 0xffffff00
        s_and_b32 s99, s2, %d
        s_mul_i32 s99, s99, %d
        s_add_u32 s3, s3, s99
        L_ss:
        s_memrealtime s[100:101]
        s_waitcnt lgkmcnt(0)
        s_sub_u32 s99, s100, s3
        s_cmp_lt_i32 s99, 0
        s_cbranch_scc1 L_ss""" % cfg.skew)
    if cfg.stamps or cfg.fixdur: pro.e("s_memtime s[98:99]\n s_memrealtime s[100:101]")
    pro.e(f"""
    v_lshrrev_b32 v2, 6, v0
    v_and_b32 v1, 63, v0
    s_cmp_ge_u32 s2, 224
    v_readfirstlane_b32 {sW}, v2
    s_cbranch_scc1 L_aux
    """)
    Pm = Prog(); Pm.items = list(pro.items)
    gen_main(Pm)
    main = Pm.finalize(cfg.verbose)
    if cfg.warm:
        real = [i for i, x in enumerate(main) if x.kind != 'label']
        for k, n in reversed(list(enumerate(cfg.stub_at[:4]))):
            main[real[n]:real[n]] = [Ins("L_pg%d:" % k), Ins("s_cbranch_execz L_pgback")]
    Px = Prog(); Px.items = list(pro.items); Px.e("L_aux:")
    Pg, Pt = gen_aux(Px)
    ax = Px.finalize(); gx = Pg.finalize(); tx = Pt.finalize()
    cut = lambda lst, lab: lst[[i for i, x in enumerate(lst) if x.kind == 'label' and x.text == lab][0]:]
    body = text_of(main) + "\n" + text_of(cut(ax, "L_aux:")) + "\n" + text_of(cut(gx, "L_gate:")) + "\n" + text_of(tx) + "\n" + emit_slow_paths() + "\nL_codeend:"
    hdr = open("gated_mix__ssm_conv_h3__swiglu_ffn__prompt.s.ref").read().split("; Override launch")[0] if cfg.header else ""
    return f"""{hdr}; @launch grid=(256,1,1) block=(256,1,1) lds={LDS_BYTES}
; TRACE={trace_names}
.amdgcn_target "amdgcn-amd-amdhsa--gfx950"
.text
.globl {KNAME}
{'.p2align 12' if cfg.align else ''}
.p2align 8
.type {KNAME},@function
{KNAME}:
{body}
.section .rodata,"a"
.p2align 6
.amdhsa_kernel {KNAME}
  .amdhsa_next_free_vgpr 512
  .amdhsa_next_free_sgpr 102
  .amdhsa_accum_offset 256
  .amdhsa_group_segment_fixed_size 0
  .amdhsa_kernarg_size 112
  .amdhsa_user_sgpr_count 2
  .amdhsa_user_sgpr_kernarg_segment_ptr 1
  .amdhsa_system_sgpr_workgroup_id_x 1
.end_amdhsa_kernel
"""

if __name__ == "__main__":
    import subprocess
    out = sys.argv[1]
    for kv in sys.argv[2:]:
        k_, v_ = kv.split("=", 1)
        assert hasattr(cfg, k_), k_
        setattr(cfg, k_, eval(v_))
    cfg.pf_n = 1; cfg.pf_last = 100
    vb = cfg.verbose; cfg.verbose = False
    open(out, "w").write(build())
    subprocess.check_call(["clang", "-x", "assembler", "-target", "amdgcn-amd-amdhsa", "-mcpu=gfx950", "-c", out, "-o", "_gen.o"])
    sym = subprocess.check_output(["llvm-objdump", "-t", "_gen.o"], text=True)
    ad = {l.split()[-1]: int(l.split()[0], 16) for l in sym.splitlines() if " L_" in l}
    if cfg.code_pf:
        cfg.pf_last = (ad["L_codeend"] - ad["L_pc"] - 64) // 128
        cfg.pf_n = (cfg.pf_last + 112) // 112
    if cfg.warm:
        cfg.stub_at = [600, 1200, 1800, 2300]
        for it in range(3):
            open(out, "w").write(build())
            subprocess.check_call(["clang", "-x", "assembler", "-target", "amdgcn-amd-amdhsa", "-mcpu=gfx950", "-c", out, "-o", "_gen.o"])
            dis = subprocess.check_output(["llvm-objdump", "-d", "--mcpu=gfx950", "_gen.o"], text=True)
            ins = [(int(l.split("//")[1].split(":")[0], 16), l) for l in dis.splitlines() if "//" in l]
            end = [i for i, (a_, l) in enumerate(ins) if "s_endpgm" in l][0]
            a0 = []; ns_ = 0
            for a_, l in ins[:end]:
                if "s_cbranch_execz" in l: ns_ += 1
                else: a0.append(a_ - 4 * ns_)
            new_at = []
            for k in range(1, 5):
                c = [i for i, a_ in enumerate(a0) if a_ + 4 * (k - 1) + 0x300 >= 4096 * k]
                if c: new_at.append(c[0])
            if new_at == cfg.stub_at: break
            cfg.stub_at = new_at
    cfg.verbose = vb
    open(out, "w").write(build())
    print(out, "code bytes", ad["L_codeend"], "aux at", ad["L_aux"], "stubs", cfg.stub_at, "stamps:", stamp_names)
```

```python
import sys, math, re
from fw import *
import fw
KNAME = "gated_mix__ssm_conv_h3__swiglu_ffn__prompt_kernel"

class Cfg: pass
cfg = Cfg()
cfg.stamps = False; cfg.pass_stamps = False; cfg.verbose = False; cfg.header = True; cfg.fixdur = 0
cfg.PD = 5; cfg.NXR = 8; cfg.pair = 2; cfg.bud = 24
cfg.code_pf = True; cfg.n_pre = 9; cfg.nosync = False
cfg.rot_c = True; cfg.rot_t = True; cfg.rot_g = True
cfg.pl_at = -1; cfg.pc0 = 10; cfg.pc1 = 70; cfg.bud1 = 28; cfg.z_load = 80; cfg.z_chk = 104; cfg.x_touch = 0; cfg.align = True; cfg.tlb = False; cfg.sync_start = False; cfg.skew = (0, 0); cfg.gq_sh = 0; cfg.gq_mul = 1; cfg.wd_touch = -1; cfg.warm = True; cfg.stub_at = []; cfg.late_pos = 50; cfg.p_arr = 9; cfg.pst_at = 80; cfg.aux_sk = False; cfg.p_first = True; cfg.sk_at = -1; cfg.hv_at = 50; cfg.c_rd_end = 66; cfg.sleep = 2
cfg.p_load = 196; cfg.p_chk = 214; cfg.hw0 = 100; cfg.hw1 = 186
cfg.g_arrive = 30; cfg.g_poll = 84; cfg.g_chk = 102; cfg.nh_c = 11; cfg.nh_e = 5; cfg.c_wd = (24, 48, 72, 96); cfg.c_tail_in_g2 = True; cfg.b_rev = False; cfg.blk_c = 4; cfg.blk_s3 = 0; cfg.blk_deep = False; cfg.blk_dma = False; cfg.blk_g = 30; cfg.blk_g2 = 0; cfg.hack_sleep = None; cfg.aux_wd = None; cfg.hack_aux = False; cfg.sc_h = 'sc1'; cfg.n_raw = 0; cfg.kv_touch = None; cfg.aux_l2 = None; cfg.hack_wd = False; cfg.hack_p = False; cfg.sc_wd = ''; cfg.sc_g1 = ''; cfg.c_bar = 130; cfg.s3_at = -1; cfg.nwd_t = 5; cfg.g_wd_end = 104
cfg.g2_hpace = 2.1; cfg.q_at = (13, 15, 17, 19); cfg.g2_arrive = 34; cfg.g2_poll = 60; cfg.g2_chk = 74; cfg.g2_pre = 96
cfg.sc_out = ""; cfg.aux_pf = False; cfg.touch = False; cfg.s_early = True; cfg.rt = False; cfg.trace = False; cfg.start_stamps = False

WS_FLAG = 0x0; WS_G = 0x20000; WS_UR = 0x100000; WS_YT = 0x300000; WS_H = 0x500000
WS_STAMP = 0xC00000; WS_SIZE = 0xD00000
NQ = 1835008; NW = 1605632
XB = 4096
SLOT = 28672; PIECE = 7168
HC = 4 * SLOT; CPY = 4160; HCCH = 4 * CPY
UL = HC + 2 * HCCH; UCH = 4608
LDS_BYTES = 163840
YL = HC; QL = UL
assert UL + 2 * UCH <= LDS_BYTES
X, WG, WU, WD, SK, WS, OUT = ["s[%d:%d]" % (b, b + 3) for b in (4, 8, 12, 16, 20, 24, 28)]
pWS = "s[24:25]"; pDBG = "s[32:33]"; pD = "s[34:35]"
sW = "s36"; sT0 = "s37"; sT1 = "s38"; sT2 = "s39"
sCH = ["s%d" % (40 + i) for i in range(7)]
sWC = ["s%d" % (47 + i) for i in range(7)]
sTO = ["s%d" % (54 + i) for i in range(8)]
sHG = sWC
sM0P = "s68"; sXB = "s69"; sWB = "s70"; sDB = "s71"; sHS = "s72"; sHL = ["s73", "s74"]
sNL2E = "s75"; sSO = "s76"; sSO2 = "s77"; sD = "s78"; sI2 = "s79"; sCT = "s80"; sKH = "s81"
sCNT = "s82"; sM = "s83"; sMASK = "s84"; sRG = "s85"
sDG = ["s%d" % (86 + i) for i in range(7)]
sPV = "s93"; sHE = "s70"; sFL = "s67"; sONE = "s66"; sU = "s65"; sPA = "s64"
STAMP_REGS = {'issued': 0, 'setup': 96, 'pdone': 94, 'prewait': 74, 'karg': 72, 'g1start': 34, 'p1end': 12, 'T5': 96, 'T6': 8, 'T7': 10, 'prepoll': 94, 'zpre': 96, 'zpost': 8, 'g1end': 14, 'cstart': 40, 'c_pre': 42, 'c_post': 44, 'g2start': 54, 'g2_pre': 56, 'g2_post': 58, 'g2end': 60}

def v(i, n=1): return "v%d" % i if n == 1 else "v[%d:%d]" % (i, i + n - 1)
def a(i, n=1): return "a%d" % i if n == 1 else "a[%d:%d]" % (i, i + n - 1)
def lines(t): return [l.strip() for l in t.split("\n") if l.strip()]

stamp_names = []
def stamp(name):
    if not cfg.stamps or cfg.stamps == 'min': return []
    if cfg.trace and STAMP_REGS[name] in (94, 96): return []
    stamp_names.append(name); r = STAMP_REGS[name]
    return [Ins("%s s[%d:%d]" % ("s_memrealtime" if cfg.rt else "s_memtime", r, r + 1))]

slow_paths = []
trace_names = []
TR_S = [94, 96, 8, 12]
def add_trace(G, every, name, regs):
    if not cfg.trace: return
    k = 0
    for g in range(0, G.n - 3, every):
        i = len(trace_names); trace_names.append("%s%d" % (name, g)); r = regs[k % len(regs)]; k += 1
        G.f[g].insert(0, Ins("s_memtime s[%d:%d]" % (r, r + 1)))
        G.f[min(g + (3 if G.n != 144 else 6), G.n - 1)].append("v_writelane_b32 v%d, s%d, %d" % (254 + i // 64, r, i % 64))
vARR = 43; vONE = 0; vP8 = 38; vP7 = 39; vPV = 33; vZERO = 44
def poll_text(kind, off):
    if kind == "z": return f"global_load_dword {v(vPV)}, {v(vZERO)}, {pDBG} sc1"
    if kind == "za": return f"global_load_dword {v(vPV)}, {v(vZERO)}, {pDBG} sc1"
    return f"buffer_load_dword {v(vPV)}, {v(vP7 if kind == 'h' else vP8)}, {WS}, {off} offen sc1"
def poll_load(kind, off):
    return [] if cfg.nosync else [poll_text(kind, off)]
def poll_check(kind, off):
    if cfg.nosync: return []
    slow_paths.append((kind, off))
    return [f"v_cmp_gt_u32 vcc, {32 if kind[0] == 'z' else 1}, {v(vPV)}", f"s_cbranch_vccnz L_slow_{kind}\n L_back_{kind}:"]
def emit_slow_paths():
    t = []
    for kind, off in slow_paths:
        t += [f"L_slow_{kind}:", f"s_mov_b32 {sCNT}, 0", f"L_spin_{kind}:", f"s_sleep {cfg.sleep}", poll_text(kind, off),
              f"s_add_u32 {sCNT}, {sCNT}, 1", f"s_cmp_gt_u32 {sCNT}, 0x40000", "s_waitcnt vmcnt(0)", f"s_cbranch_scc1 L_back_{kind}",
              f"v_cmp_gt_u32 vcc, {32 if kind[0] == 'z' else 1}, {v(vPV)}", f"s_cbranch_vccnz L_spin_{kind}"] + ([f"v_writelane_b32 v253, {sCNT}, {'zphy'.index(kind)}"] if cfg.trace and kind != "za" else []) + [f"s_branch L_back_{kind}"]
    return "\n".join(l if l.endswith(":") else "    " + l for l in t)
arr_n = [0]
def arrive(tag, off, bar=True):
    pre = [Ins("s_barrier")] if bar else []
    if cfg.nosync: return pre
    return ([WaitTag('vm', tag)] if bar else []) + pre + [f"buffer_store_dword {v(vONE)}, {v(vARR)}, {WS}, {off} offen sc1"]

def sb(reg): return int(reg[2:reg.index(':')])
def srd_hi(reg, size): return ["s_mov_b32 s%d, 0x%x" % (sb(reg) + 2, size), "s_mov_b32 s%d, 0x20000" % (sb(reg) + 3)]
def ldptr(reg, off): return "s_load_dwordx2 s[%d:%d], s[0:1], %d" % (sb(reg), sb(reg) + 1, off)
def rot_next(r): return [f"s_add_u32 {r}, {r}, 1", f"s_cmp_eq_u32 {r}, 7\n s_cselect_b32 {r}, 0, {r}"]
def mod7(r): return lines(f"s_mul_i32 s3, {r}, 37\n s_lshr_b32 s3, s3, 8\n s_mul_i32 s3, s3, 7\n s_sub_u32 {r}, {r}, s3")

def code_prefetch(P):
    if not cfg.code_pf: return
    P.e(f"""
        s_getpc_b64 s[38:39]
        L_pc:
        s_lshr_b32 s3, s2, 3
        s_lshl_b32 s3, s3, 2
        s_add_u32 s3, s3, {sW}
        s_mul_i32 s3, s3, {cfg.pf_n}
        v_min_u32 v2, {cfg.pf_n-1}, v1
        v_add_u32 v2, s3, v2
        v_min_u32 v2, {cfg.pf_last}, v2
        v_lshlrev_b32 v2, 7, v2
        v_mov_b32 v3, s39
        v_add_co_u32 v2, vcc, s38, v2
        v_addc_co_u32 v3, vcc, 0, v3, vcc
        global_load_dword v255, v[2:3], off
        """)

def gen_main(P):
    PD = cfg.PD; NXR = cfg.NXR
    VL = 1
    VX = [2, 3, 4, 9]; VWg = [5, 6]; VWu = [7, 8]; VSK = [10, 11, 12]; VD = [13, 14, 15, 16]
    XR = [[17, 18, 19, 20], [21, 22, 23, 24]]; WR = [25, 26, 27]; DR = [[28, 29], [30, 31]]
    V16 = 32; T0 = 33; T1 = 34; T2 = 35; T3 = 36; VHZ = 37; CA = 40; CB = 41; VHW = 42; VZ = 44
    ACC = [48, 64, 80, 96]; XRING = 112; ET = 144; PK = [148, 152]; HR = 160; HCP = 176
    assert XRING + 4 * NXR <= ET
    sX = sSO; sQ7 = sSO2; sR = sCNT
    code_prefetch(P)
    P.e(f"""
    s_and_b32 {sX}, s2, 7
    s_lshr_b32 {sT1}, s2, 3
    s_mul_i32 {sQ7}, {sT1}, 37
    s_lshr_b32 {sQ7}, {sQ7}, 8
    s_mul_i32 s3, {sQ7}, 7
    s_sub_u32 {sCT}, {sT1}, s3
    s_lshl_b32 s3, {sX}, 2
    s_add_u32 {sI2}, s3, {sQ7}
    s_and_b32 s3, {sX}, 4
    s_add_u32 {sT2}, s3, {sQ7}
    s_and_b32 {sT0}, {sX}, 3
    s_mul_i32 {sT1}, {sT0}, 7
    s_add_u32 {sT1}, {sT1}, {sCT}
    s_mul_i32 {sM0P}, {sW}, {PIECE}
    s_mul_i32 {sXB}, {sT2}, {256*896}
    s_add_u32 {sXB}, {sXB}, {sM0P}
    s_mul_i32 {sWB}, {sW}, {16*3584}
    s_lshl_b32 s3, {sT1}, 7
    s_add_u32 {sWB}, {sWB}, s3
    s_lshl_b32 {sRG}, {sQ7}, 1
    s_add_u32 {sRG}, {sRG}, {sCT}
    s_lshr_b32 s3, {sX}, 2
    s_add_u32 {sR}, {sRG}, s3
    """)
    P.add(mod7(sR) if cfg.rot_c else f"s_mov_b32 {sR}, 0")
    def ch_tab(i):
        L = lines(f"s_lshl_b32 s3, {sR}, 7\n s_add_u32 {sCH[i]}, s3, {sXB}\n s_mul_i32 s3, {sR}, {64*3584}\n s_add_u32 {sWC[i]}, s3, {sWB}")
        return L + (rot_next(sR) if i < 6 else [])
    def to_tab(t):
        if cfg.rot_t: return lines(f"s_lshl_b32 s3, {sT0}, 1\n s_add_u32 s3, s3, {t}\n s_and_b32 s3, s3, 7\n s_mul_i32 {sTO[t]}, s3, 28672")
        return [f"s_mov_b32 {sTO[t]}, {28672*t}"]
    for i in range(2): P.add(ch_tab(i))
    for t in range(3): P.add(to_tab(t))
    P.add(srd_hi(X, NQ + XB) + srd_hi(WG, NW) + srd_hi(WU, NW))
    P.e(f"""
    v_lshrrev_b32 {v(T0)}, 3, {v(VL)}
    v_and_b32 {v(T1)}, 7, {v(VL)}
    v_lshrrev_b32 {v(T2)}, 4, {v(VL)}
    s_lshl_b32 s3, {sW}, 2
    v_add_u32 {v(T3)}, s3, {v(T2)}
    v_and_b32 {v(T3)}, 7, {v(T3)}
    v_xor_b32 {v(T3)}, {v(T1)}, {v(T3)}
    v_lshlrev_b32 {v(T3)}, 4, {v(T3)}
    v_mul_u32_u24 {v(VX[0])}, 896, {v(T0)}
    v_add_u32 {v(T3)}, {XB}, {v(T3)}
    v_add_u32 {v(VX[0])}, {v(VX[0])}, {v(T3)}
    v_add_u32 {v(VX[1])}, -1024, {v(VX[0])}
    v_add_u32 {v(VX[2])}, -2048, {v(VX[0])}
    v_and_b32 {v(T2)}, 1, {v(T2)}
    v_lshlrev_b32 {v(T2)}, 1, {v(T2)}
    v_xor_b32 {v(T3)}, {v(T1)}, {v(T2)}
    v_lshlrev_b32 {v(T3)}, 4, {v(T3)}
    v_mul_u32_u24 {v(VWg[0])}, 3584, {v(T0)}
    v_add_u32 {v(VWg[0])}, {v(VWg[0])}, {v(T3)}
    v_add_u32 {v(VWg[1])}, {28672-1024}, {v(VWg[0])}
    v_xor_b32 {v(VWu[0])}, 64, {v(VWg[0])}
    v_add_u32 {v(VWu[1])}, {28672-1024}, {v(VWu[0])}
    """)
    if cfg.start_stamps: P.add(stamp("prewait"))
    P.e("s_waitcnt lgkmcnt(0)")
    if cfg.start_stamps: P.add(stamp("karg")); P.e("s_waitcnt lgkmcnt(0)\n v_mov_b32 v156, s74\n v_mov_b32 v157, s72")
    P.e(f"""
    s_sub_u32 s4, s4, {XB}
    s_subb_u32 s5, s5, 0
    """)
    def dma_item(i):
        sl = (i % 4) * SLOT; tag = "it%d" % i; L = []
        xl = lambda T, c, u, pre="": [pre + f"s_add_u32 {sSO}, {sCH[c]}, {sTO[T]}", Ins(f"buffer_load_dwordx4 {v(VX[u])}, {X}, {sSO} offen offset:{1024*u} {cfg.sc_g1} lds", tag)]
        if i < 7:
            L.append([f"s_add_u32 m0, {sM0P}, {sl+3072}", Ins(f"buffer_load_dwordx4 {v(VWg[0])}, {WG}, {sWC[i]} offen offset:0 {cfg.sc_g1} lds", tag)])
            L.append(Ins(f"buffer_load_dwordx4 {v(VWg[1])}, {WG}, {sWC[i]} offen offset:1024 {cfg.sc_g1} lds", tag))
            L.append([f"s_add_u32 m0, {sM0P}, {sl+5120}", Ins(f"buffer_load_dwordx4 {v(VWu[0])}, {WU}, {sWC[i]} offen offset:0 {cfg.sc_g1} lds", tag)])
            L.append(Ins(f"buffer_load_dwordx4 {v(VWu[1])}, {WU}, {sWC[i]} offen offset:1024 {cfg.sc_g1} lds", tag))
            for rt in range(3): L.append(xl(rt, i, rt, f"s_add_u32 m0, {sM0P}, {sl}\n" if rt == 0 else ""))
        else:
            T = i - 4
            for k in range(7): L.append(xl(T, k, k % 4, f"s_add_u32 m0, {sM0P}, {sl+1024*k}\n" if k % 4 == 0 else ""))
        return L
    first = dma_item(0) + dma_item(1)
    P.add(first[:cfg.n_pre]); late_first = first[cfg.n_pre:]
    if not cfg.pass_stamps: P.add(stamp("issued"))
    P.e(f"""
    s_lshl_b32 s3, s2, 2
    s_load_dword {sD}, {pD}, s3
    v_lshlrev_b32 {v(T3)}, 1, {v(T2)}
    v_xor_b32 {v(T3)}, {v(T1)}, {v(T3)}
    v_lshlrev_b32 {v(T3)}, 4, {v(T3)}
    v_mul_u32_u24 {v(VD[0])}, 896, {v(T0)}
    v_add_u32 {v(VD[0])}, {v(VD[0])}, {v(T3)}
    v_add_u32 {v(VX[3])}, -3072, {v(VX[0])}
    v_and_b32 {v(T0)}, 31, {v(VL)}
    v_lshrrev_b32 {v(T1)}, 3, {v(T0)}
    v_mul_u32_u24 {v(T1)}, {PIECE}, {v(T1)}
    v_and_b32 {v(T2)}, 7, {v(T0)}
    v_lshl_add_u32 {v(T1)}, {v(T2)}, 7, {v(T1)}
    v_lshrrev_b32 {v(T2)}, 1, {v(T0)}
    v_and_b32 {v(T2)}, 7, {v(T2)}
    v_lshrrev_b32 {v(T3)}, 5, {v(VL)}
    v_xor_b32 {v(T2)}, {v(T2)}, {v(T3)}
    v_lshl_add_u32 {v(XR[0][0])}, {v(T2)}, 4, {v(T1)}
    """)
    for k in range(1, 4): P.e(f"v_xor_b32 {v(XR[0][k])}, {32*k}, {v(XR[0][0])}")
    for k in range(4): P.e(f"v_add_u32 {v(XR[1][k])}, {3*SLOT}, {v(XR[0][k])}")
    P.e(f"""
    v_bfe_u32 {v(T0)}, {v(VL)}, 2, 2
    v_lshl_add_u32 {v(T1)}, {v(T3)}, 3, {v(T0)}
    v_lshlrev_b32 {v(T1)}, 7, {v(T1)}
    v_bfe_u32 {v(T2)}, {v(VL)}, 1, 1
    v_lshl_add_u32 {v(T1)}, {v(T2)}, 11, {v(T1)}
    v_lshlrev_b32 {v(T2)}, 1, {v(T2)}
    v_lshrrev_b32 {v(T0)}, 1, {v(T0)}
    v_add_u32 {v(T2)}, {v(T2)}, {v(T0)}
    v_xor_b32 {v(T2)}, {sW}, {v(T2)}
    v_lshl_add_u32 {v(T1)}, {v(T2)}, 5, {v(T1)}
    v_bfe_u32 {v(T2)}, {v(VL)}, 4, 1
    v_lshl_add_u32 {v(T1)}, {v(T2)}, 4, {v(T1)}
    v_and_b32 {v(T2)}, 1, {v(VL)}
    v_lshl_add_u32 {v(T1)}, {v(T2)}, 3, {v(T1)}
    v_add_u32 {v(WR[0])}, 3072, {v(T1)}
    v_add_u32 {v(WR[1])}, {2*SLOT}, {v(WR[0])}
    """)
    for i in range(2, 7): P.add(ch_tab(i))
    for t in range(3, 8): P.add(to_tab(t))
    S = []
    S += lines(f"""
    v_bfe_u32 {v(T1)}, {v(VL)}, 2, 2
    v_lshl_add_u32 {v(T1)}, {v(T3)}, 2, {v(T1)}
    v_lshlrev_b32 {v(T1)}, 7, {v(T1)}
    s_lshr_b32 s3, {sW}, 1
    v_xor_b32 {v(T2)}, s3, {v(T0)}
    v_lshl_add_u32 {v(T1)}, {v(T2)}, 6, {v(T1)}
    v_bfe_u32 {v(T2)}, {v(VL)}, 4, 1
    v_lshl_add_u32 {v(T1)}, {v(T2)}, 5, {v(T1)}
    v_and_b32 {v(T2)}, 3, {v(VL)}
    v_lshl_add_u32 {v(T1)}, {v(T2)}, 3, {v(T1)}
    s_and_b32 s3, {sW}, 1
    s_lshl_b32 s3, s3, 5
    v_xor_b32 {v(T1)}, s3, {v(T1)}
    v_add_u32 {v(DR[0][0])}, {sM0P}, {v(T1)}
    v_xor_b32 {v(DR[0][1])}, 64, {v(DR[0][0])}
    v_add_u32 {v(DR[1][0])}, {2*SLOT}, {v(DR[0][0])}
    v_add_u32 {v(DR[1][1])}, {2*SLOT}, {v(DR[0][1])}
    v_add_u32 {v(VD[1])}, 6144, {v(VD[0])}
    v_add_u32 {v(VD[2])}, {2*6144}, {v(VD[0])}
    v_add_u32 {v(VD[3])}, {3*6144}, {v(VD[0])}
    v_lshlrev_b32 {v(V16)}, 4, {v(VL)}
    s_mul_i32 s3, {sT2}, 28
    s_add_u32 s3, s3, {sT1}
    s_add_u32 s3, s3, 256
    s_lshl_b32 {sFL}, s3, 7
    v_mov_b32 {v(vARR)}, -16
    v_cmp_eq_u32 vcc, 0, v0
    v_min_u32 {v(vP8)}, 7, {v(VL)}
    v_min_u32 {v(vP7)}, 6, {v(VL)}
    v_cndmask_b32 {v(vARR)}, {v(vARR)}, 0, vcc
    v_mov_b32 {v(vONE)}, 1
    s_lshl_b32 s3, {sW}, 3
    v_add_lshl_u32 {v(vP8)}, {v(vP8)}, s3, 7
    s_mul_i32 s3, {sW}, 7
    v_add_lshl_u32 {v(vP7)}, {v(vP7)}, s3, 7
    s_mul_i32 {sWB}, {sT2}, {8*112}
    s_lshl_b32 s3, {sT1}, 2
    s_add_u32 {sWB}, {sWB}, s3
    s_add_u32 {sWB}, {sWB}, {sW}
    s_lshl_b32 {sWB}, {sWB}, 10
    s_add_u32 {sWB}, {sWB}, {WS_H}
    s_mul_i32 {sDB}, {sW}, {448*896}
    s_lshl_b32 s3, {sCT}, 7
    s_add_u32 {sDB}, {sDB}, s3
    s_and_b32 s3, s2, 7
    s_add_u32 {sRG}, {sCT}, s3
    s_and_b32 s3, {sI2}, 3
    s_lshr_b32 s3, s3, {cfg.gq_sh}
    s_mul_i32 s3, s3, {cfg.gq_mul}
    s_add_u32 {sRG}, {sRG}, s3
    """)
    S += mod7(sRG) if cfg.rot_g else [f"s_mov_b32 {sRG}, 0"]
    S += [f"s_mov_b32 {sR}, {sRG}"]
    for i in range(7):
        S += [f"s_mul_i32 s3, {sR}, {0 if cfg.hack_wd else 57344}", f"s_add_u32 {sDG[i]}, s3, {sDB}"] + (rot_next(sR) if i < 6 else [])
    S += srd_hi(WD, NW) + srd_hi(WS, WS_SIZE) + srd_hi(SK, 4096) + srd_hi(OUT, NQ)
    S += lines(f"""
    s_lshr_b32 {sT2}, {sW}, 1
    s_and_b32 {sKH}, {sW}, 1
    s_lshl_b32 {sM}, s2, 1
    s_add_u32 {sM}, {sM}, {sT2}
    s_lshl_b32 s3, {sM}, 12""") + [f"s_add_u32 s20, s20, s3\n s_addc_u32 s21, s21, 0"] + lines(f"""
    s_mov_b32 {sNL2E}, 0xbfb8aa3b
    s_mov_b32 {sMASK}, 0xffff0000
    s_mov_b32 {sONE}, 1
    """)
    S2 = lines(f"""
    s_mov_b32 {sHS}, {sWB}
    s_lshl_b32 {sU}, {sKH}, 11
    v_add_u32 {v(VSK[0])}, {sU}, {v(V16)}
    v_add_u32 {v(VSK[1])}, -16, {v(VSK[0])}
    v_add_u32 {v(VSK[2])}, 1008, {v(VSK[0])}
    s_mul_i32 {sT0}, {sT2}, {HCCH}
    s_add_u32 {sT0}, {sT0}, {HC}
    s_mul_i32 {sT1}, {sT2}, {UCH}
    s_add_u32 {sT1}, {sT1}, {UL}
    s_add_u32 s3, {sU}, {sT0}
    s_add_u32 s3, s3, 32
    v_add_u32 {v(VHW)}, s3, {v(V16)}
    v_and_b32 {v(T0)}, 15, {v(VL)}
    v_lshrrev_b32 {v(T1)}, 4, {v(VL)}
    v_sub_u32 {v(T2)}, 3, {v(T0)}
    v_and_b32 {v(T2)}, 3, {v(T2)}
    v_add3_u32 {v(T3)}, {v(T0)}, {v(T2)}, 1
    v_lshl_add_u32 {v(T3)}, {v(T1)}, 3, {v(T3)}
    v_lshlrev_b32 {v(T3)}, 1, {v(T3)}
    v_mul_u32_u24 {v(T2)}, {CPY}, {v(T2)}
    s_lshl_b32 s3, {sKH}, 8
    s_add_u32 {sT0}, {sT0}, s3
    v_add3_u32 {v(CA)}, {v(T2)}, {v(T3)}, {sT0}
    v_lshlrev_b32 {v(T0)}, 5, {v(T0)}
    v_lshlrev_b32 {v(T1)}, 4, {v(T1)}
    v_sub_u32 {v(T1)}, {v(T1)}, {v(T0)}
    s_add_u32 s3, s3, {sT1}
    s_add_u32 s3, s3, 480
    v_add_u32 {v(CB)}, s3, {v(T1)}
    s_add_u32 {sPA}, {sT1}, {sU}
    s_lshl_b32 s3, {sM}, 12
    s_add_u32 {sU}, {sU}, s3
    v_mov_b32 {v(VZ)}, 0
    v_mov_b32 {v(VZ+1)}, 0
    v_mov_b32 {v(VZ+2)}, 0
    v_mov_b32 {v(VZ+3)}, 0
    v_lshrrev_b32 {v(T0)}, 5, {v(VL)}
    v_mul_u32_u24 {v(T0)}, {UCH}, {v(T0)}
    v_and_b32 {v(T1)}, 31, {v(VL)}
    v_lshl_add_u32 {v(T0)}, {v(T1)}, 4, {v(T0)}
    v_add_u32 {v(T0)}, {UL+4096}, {v(T0)}
    ds_write_b128 {v(T0)}, {v(VZ,4)}
    v_and_b32 {v(T0)}, 15, {v(VL)}
    v_lshrrev_b32 {v(T1)}, 1, {v(T0)}
    v_mul_u32_u24 {v(T1)}, {CPY}, {v(T1)}
    v_and_b32 {v(T0)}, 1, {v(T0)}
    v_lshl_add_u32 {v(T0)}, {v(T0)}, 4, {v(T1)}
    v_add_u32 {v(VHZ)}, {HC}, {v(T0)}
    s_mul_i32 {sT0}, {sI2}, 224
    s_mul_i32 s3, {sW}, 28
    s_add_u32 {sT0}, {sT0}, s3
    s_lshl_b32 {sT0}, {sT0}, 10
    s_add_u32 {sHL[0]}, {sT0}, {WS_H}
    s_add_u32 {sHL[1]}, {sT0}, {WS_H + 112*1024}
    """)
    skl = [f"buffer_load_dwordx4 {v(HR,4)}, {v(VSK[1])}, {SK}, 0 offen", f"buffer_load_dwordx4 {v(HR+4,4)}, {v(VSK[0])}, {SK}, 0 offen",
           f"buffer_load_dwordx4 {v(HR+8,4)}, {v(VSK[2])}, {SK}, 0 offen", f"buffer_load_dwordx4 {v(HR+12,4)}, {v(VSK[0])}, {SK}, 0 offen offset:1024"]

    VRW = 224; VRR = 225; VUR = 226; VYS = 227; VY = [228, 229]; VQ = [230, 231]; VGA = 232
    EWA = 233; ERA = [234, 235, 236]; EWB = 237; ERB = [238, 239, 240]; EY = 241; EQ = [242, 243]; EO = 244
    VG = [14, 15]; OMG = [8, 9]; RA = HC + 8192; sO = ["s62", "s63"]; sQS = "s66"; sYS = "s93"
    S3 = lines(f"""
    s_lshl_b32 s3, {sW}, 12
    s_add_u32 s3, s3, {HC}
    v_add_u32 {v(VRW)}, s3, {v(V16)}
    v_xor_b32 {v(VRR)}, 4096, {v(VRW)}
    v_and_b32 {v(T3)}, 15, {v(VL)}
    v_lshlrev_b32 {v(T3)}, 5, {v(T3)}
    v_lshrrev_b32 {v(T2)}, 4, {v(VL)}
    v_lshl_add_u32 {v(T3)}, {v(T2)}, 3, {v(T3)}
    s_lshr_b32 s3, {sW}, 1
    s_mul_i32 s3, s3, {UCH}
    s_lshl_b32 {sT0}, {sKH}, 11
    s_sub_u32 s3, s3, {sT0}
    s_add_u32 s3, s3, {UL+504+2048}
    v_sub_u32 {v(VUR)}, s3, {v(T3)}
    v_and_b32 {v(T1)}, 3, {v(VL)}
    v_lshlrev_b32 {v(T1)}, 4, {v(T1)}
    v_bfe_u32 {v(T3)}, {v(VL)}, 2, 2
    v_lshl_add_u32 {v(T1)}, {v(T3)}, 7, {v(T1)}
    v_bfe_u32 {v(T3)}, {v(VL)}, 4, 1
    v_lshl_add_u32 {v(T1)}, {v(T3)}, 9, {v(T1)}
    v_lshrrev_b32 {v(T3)}, 5, {v(VL)}
    v_lshl_add_u32 {v(VYS)}, {v(T3)}, 6, {v(T1)}
    """)
    S3_marks = [0, len(S3)]
    S3 += lines(f"""
    v_lshrrev_b32 {v(T1)}, 3, {v(VL)}
    v_and_b32 {v(T2)}, 7, {v(VL)}
    v_lshlrev_b32 {v(T3)}, 12, {v(T1)}
    v_lshl_add_u32 {v(VY[0])}, {v(T2)}, 4, {v(T3)}
    v_add_u32 {v(VY[1])}, {32768-1024}, {v(VY[0])}
    v_lshrrev_b32 {v(T3)}, 4, {v(VL)}
    v_xor_b32 {v(T2)}, {v(T2)}, {v(T3)}
    v_lshlrev_b32 {v(T2)}, 4, {v(T2)}
    v_mul_u32_u24 {v(T1)}, 896, {v(T1)}
    v_add_u32 {v(VQ[0])}, {v(T1)}, {v(T2)}
    v_xor_b32 {v(T2)}, 64, {v(T2)}
    v_add_u32 {v(T1)}, {7168-1024}, {v(T1)}
    v_add_u32 {v(VQ[1])}, {v(T1)}, {v(T2)}
    s_lshl_b32 s3, {sI2}, 8
    s_add_u32 s3, s3, {WS_G}
    v_and_b32 {v(T1)}, 31, {v(VL)}
    v_lshl_add_u32 {v(VGA)}, {v(T1)}, 2, s3
    s_lshl_b32 s3, {sI2}, 2
    s_add_u32 s3, s3, {sW}
    s_mul_i32 s3, s3, {16*896}
    s_lshl_b32 {sQS}, {sCT}, 7
    s_add_u32 {sQS}, {sQS}, s3
    s_add_u32 {sQS}, {sQS}, {XB}
    """)
    ea = [f"s_mul_i32 {sT0}, {sW}, 6144", f"s_add_u32 s3, {sT0}, {RA}", f"v_add_u32 {v(EWA)}, s3, {v(V16)}", f"v_add_u32 {v(EWB)}, {sM0P}, {v(V16)}"]
    for sg in range(1, 4):
        ea += [f"s_xor_b32 {sT0}, {sW}, {sg}", f"s_mul_i32 s3, {sT0}, 6144", f"s_add_u32 s3, s3, {RA + 2048*(sg-1)}", f"v_add_u32 {v(ERA[sg-1])}, s3, {v(V16)}",
               f"s_mul_i32 s3, {sT0}, {PIECE}", f"s_add_u32 s3, s3, {(sg-1)*SLOT}", f"v_add_u32 {v(ERB[sg-1])}, s3, {v(V16)}"]
    ea += lines(f"""v_bfe_u32 {v(T1)}, {v(VL)}, 2, 2
    v_lshrrev_b32 {v(T2)}, 5, {v(VL)}
    v_lshl_add_u32 {v(T1)}, {v(T2)}, 2, {v(T1)}
    v_lshlrev_b32 {v(T1)}, 7, {v(T1)}
    v_bfe_u32 {v(T3)}, {v(VL)}, 1, 1
    v_lshl_add_u32 {v(T1)}, {v(T3)}, 6, {v(T1)}
    v_bfe_u32 {v(T3)}, {v(VL)}, 4, 1
    v_lshl_add_u32 {v(T1)}, {v(T3)}, 4, {v(T1)}
    v_and_b32 {v(T3)}, 1, {v(VL)}
    v_lshl_add_u32 {v(T1)}, {v(T3)}, 3, {v(T1)}
    s_lshl_b32 s3, {sW}, 11
    s_add_u32 s3, s3, {YL}
    v_add_u32 {v(EY)}, s3, {v(T1)}
    v_and_b32 {v(T1)}, 31, {v(VL)}
    v_bfe_u32 {v(T3)}, {v(VL)}, 1, 3
    s_lshl_b32 s3, {sW}, 1
    v_xor_b32 {v(T3)}, s3, {v(T3)}
    v_lshlrev_b32 {v(T3)}, 4, {v(T3)}
    v_lshl_add_u32 {v(T3)}, {v(T1)}, 7, {v(T3)}
    v_lshl_add_u32 {v(T3)}, {v(T2)}, 3, {v(T3)}
    v_add_u32 {v(EQ[0])}, {QL}, {v(T3)}
    v_xor_b32 {v(EQ[1])}, 16, {v(EQ[0])}
    v_mul_u32_u24 {v(T1)}, 896, {v(T1)}
    v_lshl_add_u32 {v(EO)}, {v(T2)}, 4, {v(T1)}
    s_mul_i32 {sO[0]}, {sI2}, {64*896}
    s_lshl_b32 s3, {sCT}, 2
    s_add_u32 s3, s3, {sW}
    s_lshl_b32 {sT0}, s3, 5
    s_add_u32 {sO[0]}, {sO[0]}, {sT0}
    s_add_u32 {sO[1]}, {sO[0]}, {32*896}
    s_lshl_b32 s3, s3, 16
    s_lshl_b32 {sYS}, {sI2}, 7
    s_add_u32 {sYS}, {sYS}, s3
    s_add_u32 {sYS}, {sYS}, {WS_YT}""")
    S3_marks.append(len(S3))
    S3 += ea + [f"v_add_u32 {v(245)}, 57344, {v(EWB)}"]
    NG = 224
    G = Gaps(NG)
    def item_start(i): return 12 * i if i <= 7 else 84 + 28 * (i - 7)
    gT = lambda T: item_start(T + 4)
    def xread(g):
        if g < 84: c = g // 12; ks = (g % 12) // 3; unit = g % 3; it = c
        else: it = 7 + (g - 84) // 28; k = (g - 84) % 28; ks = k % 4; unit = k // 4
        sl = it % 4; hi = 1 if sl >= 3 else 0
        off = (sl - 3 * hi) * SLOT + 1024 * unit
        return f"ds_read_b128 {v(XRING+4*(g%NXR),4)}, {v(XR[hi][ks])} offset:{off}"
    def wread(c, ks):
        sl = c % 4; var = sl // 2; off = (sl - 2 * var) * SLOT + PIECE * ks; f = 4 * (4 * c + ks)
        return [f"ds_read_b64_tr_b16 {a(f+2*rd,2)}, {v(WR[var])} offset:{off+512*rd}" for rd in range(2)]
    tile_acc = {0: 0, 1: 1, 2: 2, 3: 3, 4: 0, 5: 1, 6: 2, 7: 3}
    for g in range(NG):
        if g < 84: c = g // 12; ks = 4 * c + (g % 12) // 3; T = g % 3
        else: T = 3 + (g - 84) // 28; ks = (g - 84) % 28
        A = v(ACC[tile_acc[T]], 16)
        G.m[g] = f"v_mfma_f32_32x32x16_bf16 {A}, {a(4*ks,4)}, {v(XRING+4*(g%NXR),4)}, {'0' if ks == 0 else A}"
    pre = []
    def at(g, item):
        if g < 0: pre.append(item)
        else: G.put(g, item)
    gB = lambda i: item_start(i) - PD - 1
    if not cfg.hack_p: G.put(cfg.p_load, poll_load("p", "0"))
    G.put(cfg.p_chk, [stamp("prepoll") if not (cfg.pass_stamps or cfg.start_stamps) else [], [] if cfg.hack_p else poll_check("p", "0"), [] if cfg.p_chk in (gB(10), gB(11)) else Ins("s_barrier")])
    for i in range(12):
        at(gB(i), [WaitTag('vm', "it%d" % i), Ins("s_barrier")])
    assert cfg.z_chk < cfg.p_load
    G.put(cfg.z_load, poll_load("z", None))
    G.f[cfg.z_chk].insert(0, [stamp("zpre") if not (cfg.pass_stamps or cfg.start_stamps) else [], poll_check("z", None), stamp("zpost") if not (cfg.pass_stamps or cfg.start_stamps) else []])
    for g in range(NG):
        if g < 84 and g % 3 == 0:
            for s_ in wread(g // 12, (g % 12) // 3): at(g - PD - 1, s_)
        at(g - PD - 1, xread(g))
    cb = cfg.blk_c; deep = cfg.blk_deep and cb is not None
    for c in range(7):
        if deep:
            if c < cb: G.spread(dma_item(c + 2), max(gB(c) + 1, 0), gB(c + 1) + 1)
            if c > cb: G.put(12 * c, Ins("s_barrier")); G.spread(dma_item(c + 3), 12 * c + 1, 12 * c + 12)
        elif c != cb or not cfg.blk_dma: G.spread(dma_item(c + 2), max(gB(c) + 1, 0), gB(c + 1) + 1)
    for T in range(3, 8): G.put(gT(T), ([WaitTag('lgkm', "hcw")] if T == 7 else []) + [Ins("s_barrier")])
    if deep: G.spread(dma_item(10), gT(3) + 1, gT(3) + 20)
    else: G.spread(dma_item(9) + dma_item(10), gB(7) + 1, gB(8) + 1)
    G.spread(dma_item(11), gT(4) + 1, gT(4) + (9 if cfg.n_raw else 20))
    if cfg.wd_touch >= 0: G.put(cfg.wd_touch, f"buffer_load_dword {v(202)}, {v(200)}, {WD}, 0 offen {cfg.sc_wd}")
    if cfg.hack_sleep: G.put(cfg.hack_sleep[0], "s_sleep %d" % cfg.hack_sleep[1])
    if cfg.sk_at >= 0: G.spread(skl, cfg.sk_at, cfg.sk_at + 8)
    hv = []
    for rho in range(2):
        R = HR + 8 * rho; C_ = HCP + 12 * rho
        for k in range(4): hv.append(f"v_alignbit_b32 {v(C_+k)}, {v(R+4+k)}, {v(R+3+k)}, 16")
        for k in range(4): hv.append(f"v_mov_b32 {v(C_+4+k)}, {v(R+3+k)}")
        for k in range(4): hv.append(f"v_alignbit_b32 {v(C_+8+k)}, {v(R+3+k)}, {v(R+2+k)}, 16")
    hw = [Ins(f"ds_write_b128 {v(VHZ)}, {v(VZ,4)}", "hcw")]
    for rho in range(2):
        R = HR + 8 * rho; C_ = HCP + 12 * rho
        for cpy, src in enumerate((R + 4, C_, C_ + 4, C_ + 8)):
            hw.append(Ins(f"ds_write_b128 {v(VHW)}, {v(src,4)} offset:{cpy*CPY+1024*rho}", "hcw"))
    def epi(T, packed=False):
        A = ACC[tile_acc[T]]; Pk = PK[T % 2]; L = []
        for grp in range(2):
            g_ = A + 8 * grp; u_ = g_ + 4; E = ET
            if packed:
                E = ET if grp == 0 else HR
                L += [f"v_mul_f32 {v(E+i)}, {sNL2E}, {v(g_+i)}" for i in range(4)]
                L += [f"v_exp_f32 {v(E+i)}, {v(E+i)}" for i in range(4)]
                L += [f"v_pk_mul_f32 {v(u_+2*i,2)}, {v(g_+2*i,2)}, {v(u_+2*i,2)}" for i in range(2)]
                L += [f"v_pk_add_f32 {v(E+2*i,2)}, {v(E+2*i,2)}, 1.0 op_sel_hi:[1,0]" for i in range(2)]
                L += [f"v_rcp_f32 {v(E+i)}, {v(E+i)}" for i in range(4)]
                L += [f"v_pk_mul_f32 {v(u_+2*i,2)}, {v(u_+2*i,2)}, {v(E+2*i,2)}" for i in range(2)]
            else:
                L += [f"v_mul_f32 {v(E+i)}, {sNL2E}, {v(g_+i)}" for i in range(4)]
                L += [f"v_exp_f32 {v(E+i)}, {v(E+i)}" for i in range(4)]
                L += [f"v_mul_f32 {v(u_+i)}, {v(g_+i)}, {v(u_+i)}" for i in range(2)]
                L += [f"v_add_f32 {v(E+i)}, 1.0, {v(E+i)}" for i in range(4)]
                L += [f"v_rcp_f32 {v(E+i)}, {v(E+i)}" for i in range(4)]
                L += [f"v_mul_f32 {v(u_+i)}, {v(g_+i)}, {v(u_+i)}" for i in range(2, 4)]
                L += [f"v_mul_f32 {v(u_+i)}, {v(u_+i)}, {v(E+i)}" for i in range(4)]
            L += [f"v_cvt_pk_bf16_f32 {v(Pk+2*grp+i)}, {v(u_+2*i)}, {v(u_+2*i+1)}" for i in range(2)]
        L.append(f"s_lshl2_add_u32 {sSO2}, {sTO[T]}, {sHS}")
        L.append(Ins(f"buffer_store_dwordx4 {v(Pk,4)}, {v(V16)}, {WS}, {sSO2} offen {cfg.sc_h}", "hst"))
        return L
    page_slot = [0, 1, 2, 3]
    def wd_page(n): return n if n < 21 else (n - 21 if n < 28 else (n - 7 if n < 35 else (n - 28 if n < 49 else n - 49)))
    def wd_prev(n): return n - 21 if 21 <= n < 28 else (n - 28 if n >= 35 else None)
    def wd_dma(n0, n1):
        L = []; n = n0
        while n < n1:
            p = wd_page(n); cnt = min(4, n1 - n, 7 - p % 7, 8 - n % 8)
            lds = page_slot[p // 7] * SLOT + 1024 * (p % 7)
            for k in range(cnt):
                it = [Ins(f"buffer_load_dwordx4 {v(VD[k])}, {WD}, {sSO} offen offset:{1024*k} {cfg.sc_wd} lds", "wd%d" % (n + k))]
                if wd_prev(n + k) is not None: it = [WaitTag('lgkm', "wr%d" % wd_prev(n + k))] + it
                if k == 0: L.append(f"s_add_u32 m0, {sM0P}, {lds}\n s_add_u32 {sSO}, {sDG[n >> 3]}, {7168*(n % 8)}")
                L.append(it)
            n += cnt
        return L
    def wd_read(n, dst):
        p = wd_page(n); sl = page_slot[p // 7]; hi = 1 if sl >= 2 else 0
        off = (sl - 2 * hi) * SLOT + 1024 * (p % 7)
        return [[WaitTag('vm', "wd%d" % n)] * (dt == 0 and not 28 <= n < 28 + cfg.n_raw) + [Ins(f"ds_read_b64_tr_b16 {dst(dt)}, {v(DR[hi][dt])} offset:{off}", "wr%d" % n)] for dt in range(2)]
    WD1 = 112
    NR = cfg.n_raw; RAW0 = 224 - 4 * NR; EWH = 245
    def raw_reg(n): return RAW0 + 4 * (NR - 1 - (n - 28))
    def raw_loads(n0, n1):
        L = []; n = n0
        while n < n1:
            cnt = min(4, n1 - n, 8 - n % 8)
            L.append(f"s_add_u32 {sSO}, {sDG[n >> 3]}, {7168*(n % 8)}")
            L += [f"buffer_load_dwordx4 {v(raw_reg(n+k),4)}, {v(VD[k])}, {WD}, {sSO} offen offset:{1024*k}" for k in range(cnt)]
            n += cnt
        return L
    def raw_write(n):
        p = wd_page(n); off = page_slot[p // 7] * SLOT + 1024 * (p % 7)
        it = [Ins(f"ds_write_b128 {v(EWB if off < 57344 else EWH)}, {v(raw_reg(n),4)} offset:{off if off < 57344 else off - 57344}", "ww%d" % n)]
        return [it]
    def fill_units(n0, n1):
        m = min(max(28 + NR, n0), n1)
        return [x for n in range(n0, m) for x in raw_write(n)] + wd_dma(m, n1)
    def wd1(n): return lambda dt: a(WD1 + 8 * (n >> 1) + 4 * dt + 2 * (n & 1), 2)
    def wd_reads(n0, n1): return [x for n in range(n0, n1) for x in wd_read(n, wd1(n))]
    if cfg.blk_c is None:
        if cfg.s3_at >= 0: l3_ = G.pour(S3, cfg.s3_at, cfg.hv_at, cfg.bud1); assert l3_ < 80
        lh = G.pour(hv, cfg.hv_at, max(80, cfg.hv_at + 24), cfg.bud1 if cfg.hv_at < 70 else 20); assert lh < cfg.hw0
        G.spread(hw, cfg.hw0, cfg.hw1)
    else:
        n3 = len(S3) - (S3_marks + [len(S3)])[3 - cfg.blk_s3]; S3b = S3[len(S3) - n3:]; del S3[len(S3) - n3:]
        work = [hw[0], hv[0:4], hw[1], hv[4:8], hw[2], hv[8:12], hw[3], hv[12:16], hw[4], hv[16:20], hw[5], hv[20:24], hw[6], S3b[:5], hw[7], S3b[5:10], hw[8], S3b[10:]]
        d_ = dma_item(cfg.blk_c + 2) if cfg.blk_dma else []; blk = []
        if deep:
            G.spread(d_[:4], gB(cb) + 1, 12 * cb); d_ = d_[4:] + dma_item(cb + 3); blk = [Ins("s_barrier")]
        step_ = max(len(work) // (len(d_) + 1), 1)
        for j, it in enumerate(work):
            if j % step_ == 0 and d_: blk.append(d_.pop(0))
            blk.append(it)
        if cfg.blk_g2: G.put(cfg.blk_g, blk[:9]); G.put(cfg.blk_g2, blk[9:])
        else: G.put(12 * cb if deep else (gB(cb) + 1 if cfg.blk_dma else cfg.blk_g), blk + d_)
    if NR:
        r0, r1, r2 = 28, 28 + min(NR, 6), 28 + min(NR, 6 + (NR - 6 + 1) // 2)
        assert cfg.hw1 <= gT(5) + 8 or NR <= 6
        G.spread(raw_loads(r0, r1), gT(4) + 21 - 12, gT(5))
        G.spread(wd_dma(0, 7), gT(5) + 1, gT(5) + 15); G.spread(raw_loads(r1, r2), gT(5) + 15, gT(6))
        G.spread(wd_dma(7, 14), gT(6) + 1, gT(6) + 15); G.spread(raw_loads(r2, 28 + NR), gT(6) + 15, gT(7))
    else:
        G.spread(wd_dma(0, 7), gT(5) + 1, gT(5) + 22)
        G.spread(wd_dma(7, 14), gT(6) + 1, gT(6) + 20)
    UD = ([f"s_mov_b32 m0, {sPA}\n s_add_u32 {sSO}, {sU}, {WS_UR if not cfg.hack_p else 0x900000}"] + [Ins(f"buffer_load_dwordx4 {v(V16)}, {WS}, {sSO} offen offset:{1024*j} sc1 lds", "u") for j in range(2)])
    G.spread(wd_reads(0, 7), gB(11) + 2, gT(7) + 12)
    if cfg.p_chk > gT(7) + 8:
        G.spread(wd_dma(14, 21), gT(7) + 1, cfg.p_chk)
        G.put(cfg.p_chk + 1, UD)
        G.spread(wd_dma(21, 28), cfg.p_chk + 2, NG - 1)
    else:
        assert cfg.p_chk in (gB(10), gB(11))
        G.put(cfg.p_chk + 4, UD)
        G.spread(wd_dma(14, 28), gT(7) + 1, NG - 1)
    bounds = [84 + 2 + (140 - 4) * k // 7 for k in range(8)]
    last = 0
    for T in range(7):
        g0 = max(bounds[T], (84 if T < 3 else gT(T + 1)) + 2, last)
        last = G.pour(epi(T), g0, max(bounds[T + 1], g0 + 1), cfg.bud)
        nxt = [t for t in range(T + 1, 8) if tile_acc[t] == tile_acc[T]]
        if nxt: assert last < gT(nxt[0]), (T, last)
    check_m0(G)
    SS = S + S2; k0 = len(SS) * min(cfg.late_pos, 100) // 100
    touch = []
    if cfg.x_touch:
        touch = lines(f"""v_min_u32 {v(200)}, {8*cfg.x_touch-1}, {v(VL)}
        v_lshrrev_b32 {v(201)}, 3, {v(200)}
        s_lshl_b32 s3, {sFQ}, 1
        s_add_u32 s3, s3, 3
        v_add_u32 {v(201)}, {'s3' if cfg.rot_t else '3'}, {v(201)}
        v_and_b32 {v(201)}, 7, {v(201)}
        v_mul_u32_u24 {v(201)}, 28672, {v(201)}
        v_and_b32 {v(200)}, 7, {v(200)}
        v_mul_u32_u24 {v(200)}, 896, {v(200)}
        v_add3_u32 {v(200)}, {v(200)}, {v(201)}, {sXBc}
        buffer_load_dword {v(202)}, {v(200)}, {X}, {sCH[0]} offen""")
    kvt = lines(f"""s_lshl_b32 s3, s2, 2
    s_add_u32 s3, s3, {sW}
    s_lshl_b32 s3, s3, 4
    v_min_u32 {v(203)}, 15, {v(VL)}
    v_add_lshl_u32 {v(203)}, {v(203)}, s3, 7
    global_load_dword {v(204)}, {v(203)}, s[94:95]
    global_load_dword {v(205)}, {v(203)}, s[96:97]""")
    if cfg.kv_touch == 0: P.add(kvt)
    P.add(SS[:k0])
    if cfg.late_pos <= 100: P.add(late_first)
    P.add(SS[k0:])
    if cfg.kv_touch == 1: P.add(kvt)
    if cfg.s3_at < 0: P.add(S3)
    if cfg.late_pos > 100: P.add(late_first)
    if cfg.kv_touch == 2: P.add(kvt)
    if cfg.trace: P.e('v_mov_b32 v253, 0')
    P.e(f"""s_lshl_b32 s3, s2, 2
    s_add_u32 s3, s3, {sW}
    s_mul_i32 s3, s3, 14
    v_min_u32 {v(200)}, 13, {v(VL)}
    v_add_lshl_u32 {v(200)}, {v(200)}, s3, 7""")
    if cfg.sk_at < 0: P.add(skl)
    if cfg.tlb:
        P.e(f"""v_min_u32 {v(203)}, 12, {v(VL)}
        v_lshlrev_b32 {v(203)}, 20, {v(203)}
        v_add_u32 {v(203)}, 0x1f000, {v(203)}
        buffer_load_dword {v(204)}, {v(203)}, {WS}, 0 offen
        buffer_load_dword {v(205)}, {v(VZ)}, {OUT}, 0 offen
        buffer_load_dword {v(206)}, {v(VZ)}, {WD}, 0 offen""")
    if cfg.wd_touch == -2: P.e(f"buffer_load_dword {v(202)}, {v(200)}, {WD}, 0 offen {cfg.sc_wd}")
    if cfg.warm and cfg.stub_at:
        P.e("s_mov_b64 exec, 0")
        for k in range(min(4, len(cfg.stub_at))): P.e(f"s_cmp_eq_u32 {sW}, {k}\n s_cbranch_scc1 L_pg{k}")
        P.e("L_pgback:\n s_mov_b64 exec, -1")
    if cfg.start_stamps: P.add(stamp("setup"))
    P.e(f"""s_waitcnt lgkmcnt(0)
    s_lshl_b32 s3, {sD}, 16
    s_and_b32 {sD}, {sD}, 0xffff0000
    s_cmp_lt_u32 {sW}, 2
    s_cselect_b32 {sD}, s3, {sD}""")
    P.add(pre)
    P.add(stamp("g1start"))
    G.put(83, stamp("p1end"))
    if cfg.pass_stamps:
        for T in (5, 6, 7): G.put(gT(T) - 1, stamp("T%d" % T))
    add_trace(G, 6, 'g', [94, 96])
    G.emit(P, cfg.pair)
    if cfg.verbose: print("G1 gap costs", G.costs())
    if cfg.start_stamps: P.e("v_readfirstlane_b32 s8, v156\n v_readfirstlane_b32 s10, v157"); STAMP_REGS['prewait'] = 8; STAMP_REGS['karg'] = 10
    P.add(stamp("g1end"))
    CACC = 48
    def cA(buf, a_): return (0 if buf == 0 else 64) + 4 * a_
    def cB(buf, b_):
        i = 32 + 4 * b_ if buf == 0 else 96 + 4 * b_
        return i if i < 112 else 224 + (i - 112)
    def crA(st, k): return [f"ds_read_b64 {a(cA(st&1,k)+2*rd,2)}, {v(CA)} offset:{512*k+64*st+8*rd}" for rd in range(2)]
    def crB(st, k): return [f"ds_read_b128 {a(cB(st&1,k),4)}, {v(CB)} offset:{64*st+512*(7-k)}"]
    def creads(st): return [x for k in range(8) for x in crB(st, k) + crA(st, k)]
    e7 = epi(7, True); ra = [x for k in range(8) for x in crA(0, k)]
    P.add(ra[:10]); k = 10
    for j, it in enumerate(e7):
        P.add(it)
        if j % 6 == 5 and k < 16: P.add(ra[k]); k += 1
    P.add(ra[k:])
    P.vmwait("u"); P.e("s_barrier")
    for k in range(8): P.add(crB(0, k))
    hg = [f"s_lshr_b32 s3, {sI2}, 2", "s_mul_i32 s3, s3, 28", f"s_add_u32 s3, s3, 256", f"s_lshl_b32 {sPA}, s3, 7",
          f"s_lshl_b32 {sRG}, {sRG}, 12", f"s_add_u32 {sXB}, {sHL[0]}, {sRG}", f"s_add_u32 {sHE}, {sHL[0]}, {28*1024}"]
    d0 = fill_units(28, 35)
    npre = 0 if NR else 3
    P.add(d0[:npre])
    P.add(stamp("cstart"))
    C = Gaps(144)
    pairs = [(t, a_) for t in range(8) for a_ in range(t + 1)]
    for st in range(4):
        for j, (t, a_) in enumerate(pairs):
            A = v(CACC + 4 * t, 4)
            C.m[36 * st + j] = f"v_mfma_f32_16x16x32_bf16 {A}, {a(cA(st&1,a_),4)}, {a(cB(st&1,t-a_),4)}, {'0' if (st == 0 and a_ == 0) else A}"
        if st < 3: C.spread(creads(st + 1), 36 * st + 1, 36 * st + 33)
    HRING = 96; NHR = 32
    horder = [(0, ks) for ks in range(28)] + [(1, ks) for ks in (list(range(14, 28)) + list(range(14)) if cfg.b_rev else range(28))]
    def hload(n):
        st, ks = horder[n]; L = []
        if n == 28: L += [f"s_add_u32 {sXB}, {sHL[1]}, {sRG}", f"s_add_u32 {sHE}, {sHL[1]}, {28*1024}"]
        elif n > 0 and ks % 4 == 0: L += [f"s_add_u32 {sXB}, {sXB}, 4096", f"s_cmp_eq_u32 {sXB}, {sHE}\n s_cselect_b32 {sXB}, {sHL[st]}, {sXB}"]
        L.append(f"buffer_load_dwordx4 {v(HRING+4*(n%NHR),4)}, {v(V16)}, {WS}, {sXB} offen offset:{1024*(ks%4)} sc1")
        return L
    w0, w1, w2, w3 = cfg.c_wd
    C.spread(d0[npre:], 0, w0)
    C.spread(wd_reads(7, 14), 2, w0 - 2); C.spread(fill_units(35, 42), w0, w1)
    C.spread(wd_reads(14, 21), w0, w1 - 2); C.spread(fill_units(42, 49), w1, w2)
    C.spread(wd_reads(21, 28), w1, w2 - 2); C.spread(wd_dma(49, 56), w2, w3)
    C.put(cfg.g_arrive, arrive("hst", sFL))
    lh_ = C.pour(hg, 40, cfg.g_poll - 4, 10); assert lh_ < cfg.g_poll
    C.put(cfg.g_poll, poll_load("h", sPA))
    C.put(cfg.g_chk, [stamp("c_pre"), poll_check("h", sPA), stamp("c_post")])
    NH = cfg.nh_c
    C.spread([hload(n) for n in range(NH)], cfg.g_chk + 1, 144)
    RR = 48; UU = 18; DU = 80
    ce = [f"s_add_u32 {sU}, {sU}, {WS_YT}"]
    ce += [f"ds_read_b64 {v(UU+2*tau,2)}, {v(VUR)} offset:{512*(3-tau)}" for tau in range(4)]
    for tau in range(4):
        ce += lines(f"""
        v_and_b32 {v(DU+4*tau+0)}, {sMASK}, {v(UU+2*tau+1)}
        v_lshlrev_b32 {v(DU+4*tau+1)}, 16, {v(UU+2*tau+1)}
        v_and_b32 {v(DU+4*tau+2)}, {sMASK}, {v(UU+2*tau)}
        v_lshlrev_b32 {v(DU+4*tau+3)}, 16, {v(UU+2*tau)}""")
    lr = C.pour(ce[:5], max(lh_ + 1, 104), 112, 8); assert lr < cfg.c_bar - 4
    lc = C.pour(ce[5:], lr + 6, 140, 8)
    assert lc < 140
    C.put(cfg.c_bar, [WaitRegs(a(cA(1, 7), 4)), WaitRegs(v(UU, 8)), Ins("s_barrier")])
    check_m0(C, 1024)
    add_trace(C, 12, 'c', [94, 96])
    C.emit(P)
    if cfg.verbose: print("C gap costs", C.costs())
    hq = [hload(n) for n in range(NH, NH + cfg.nh_e)]; NH += cfg.nh_e
    def hnext():
        if hq: P.add(hq.pop(0))
    hnext()
    dfma = lambda base: [f"v_pk_fma_f32 {v(DU+2*k,2)}, s[78:79], {v(DU+2*k,2)}, {v(base+2*k,2)} op_sel_hi:[0,1,1]" for k in range(8)]
    P.e(f"s_cmp_eq_u32 {sKH}, 0\n s_cbranch_scc1 L_cw0")
    for tau in range(4): P.e(f"ds_write_b128 {v(VRW)}, {v(CACC+4*tau,4)} offset:{1024*tau}", nocount=True)
    P.add(dfma(CACC + 16))
    P.e("s_branch L_cw1\n L_cw0:\n s_nop 2")
    for tau in range(4): P.e(f"ds_write_b128 {v(VRW)}, {v(CACC+16+4*tau,4)} offset:{1024*tau}")
    P.add(dfma(CACC))
    P.e("L_cw1:")
    while hq: hnext()
    P.e("s_waitcnt lgkmcnt(0)\n s_barrier")
    ct_ = [f"ds_read_b128 {v(RR+4*tau,4)}, {v(VRR)} offset:{1024*tau}" for tau in range(4)]
    P.add(ct_); ct_ = []
    for pi in range(2):
        if cfg.c_tail_in_g2: ct_ += [f"v_add_f32 {v(DU+8*pi+k)}, {v(DU+8*pi+k)}, {v(RR+8*pi+k)}" for k in range(8)]
        else: ct_ += [f"v_pk_add_f32 {v(DU+8*pi+2*k,2)}, {v(DU+8*pi+2*k,2)}, {v(RR+8*pi+2*k,2)}" for k in range(4)]
        ct_ += [f"v_cvt_pk_bf16_f32 {v(UU+4*pi+k)}, {v(DU+8*pi+2*k)}, {v(DU+8*pi+2*k+1)}" for k in range(4)]
    for pi in range(2):
        ct_ += [f"v_permlane16_swap_b32 {v(UU+4*pi)}, {v(UU+4*pi+2)}", f"v_permlane16_swap_b32 {v(UU+4*pi+1)}, {v(UU+4*pi+3)}"]
        ct_ += [Ins(f"buffer_store_dwordx4 {v(UU+4*pi,4)}, {v(VYS)}, {WS}, {sU} offen offset:{1024*pi} sc1", "yst")]
    if not cfg.c_tail_in_g2: P.add(ct_); ct_ = []
    P.add(stamp("g2start"))
    GACC = 0; JIT = 64; NJ = 8
    G2 = Gaps(112)
    jn = 0
    for n in range(56):
        st, ks = horder[n]
        for dt in range(2):
            A = a(GACC + 32 * st + 16 * dt, 16)
            if ks < 14: W_ = a(WD1 + 8 * ks + 4 * dt, 4)
            else:
                r_ = JIT + 4 * (jn % NJ); jn += 1; W_ = a(r_, 4)
                for rd in range(2):
                    G2.put(2 * n + dt - 6, wd_read(2 * ks + rd, lambda d_, r_=r_, rd=rd: a(r_ + 2 * rd, 2))[dt])
            G2.m[2 * n + dt] = f"v_mfma_f32_32x32x16_bf16 {A}, {W_}, {v(HRING+4*(n%NHR),4)}, {'0' if n in (0, 28) else A}"
    reserved = sorted([8, 10] * bool(cfg.c_tail_in_g2) + list(cfg.q_at[:2]) + [cfg.g2_chk + 2, cfg.g2_chk + 4])
    t_ = 0.0; n = NH; la = []
    while n < 56:
        if reserved and reserved[0] <= t_ + cfg.g2_hpace / 2: reserved.pop(0); t_ += cfg.g2_hpace; continue
        g = int(t_)
        if n >= NHR: assert g >= 2 * (n - NHR) + 1
        la.append(2 * n - g); G2.put(g, hload(n)); n += 1; t_ += cfg.g2_hpace
    if cfg.verbose: print("H lookahead (gaps)", la)
    assert min(la) >= 8, la
    lt = G2.pour(ct_, 1, 10, 24) if ct_ else 0
    e1 = lines(f"""
    s_lshl_b32 s3, s2, 7
    s_add_u32 {sFL}, s3, {512*128}
    s_lshl_b32 s3, {sCT}, 12
    s_add_u32 {sPA}, s3, {512*128}
    """)
    l1 = G2.pour(e1, lt, lt + 8, 24); assert l1 <= cfg.g2_arrive
    G2.put(cfg.g2_arrive, [WaitTag('vm', "q"), arrive("yst", sFL)])
    qd = [f"s_lshl_b32 {sT1}, {sW}, 11\n s_add_u32 m0, {sT1}, {QL}"]
    qd += [Ins(f"buffer_load_dwordx4 {v(VQ[j])}, {X}, {sQS} offen offset:{1024*j} lds", "q") for j in range(2)]
    qd += [f"buffer_load_dword {v(VG[j])}, {v(VGA)}, {WS}, 0 offen offset:{128*j} sc1" for j in range(2)]
    G2.put(cfg.q_at[0] - 1, qd[0])
    for q_, g_ in zip(qd[1:], cfg.q_at): G2.put(g_, q_)
    def sends(st, addr):
        return [Ins(f"ds_write_b128 {addr(sg, jj)[0]}, {a(GACC+32*st+16*(sg>>1)+8*(sg&1)+4*jj,4)} offset:{addr(sg, jj)[1]}", "rw%d" % st) for sg in range(1, 4) for jj in range(2)]
    G2.spread(sends(0, lambda sg, jj: (v(EWA), 2048 * (sg - 1) + 1024 * jj)), 59, cfg.g2_chk - 1)
    G2.put(cfg.g2_poll, poll_load("y", sPA))
    G2.put(cfg.g2_chk, [stamp("g2_pre"), poll_check("y", sPA), WaitTag('lgkm', "rw0"), Ins("s_barrier"), [] if cfg.pass_stamps else stamp("g2_post")])
    yd = [f"s_add_u32 m0, {sT1}, {YL}"]
    yd += [Ins(f"buffer_load_dwordx4 {v(VY[j])}, {WS}, {sYS} offen offset:{1024*j} sc1 lds", "y") for j in range(2)]
    G2.put(cfg.g2_chk + 1, yd[0]); G2.put(cfg.g2_chk + 2, yd[1]); G2.put(cfg.g2_chk + 4, yd[2])
    QQ = 48; TT = 56; BB = 72; RX = 80; YY = 18; O = 48
    RP = [80, 84, 88, 92, 28 + 0, 28 + 0]
    un = lambda i, d, s_: (f"v_lshlrev_b32 {d}, 16, {s_}" if i % 2 == 0 else f"v_and_b32 {d}, {sMASK}, {s_}")
    p0 = [f"ds_read_b64 {v(QQ+4*st+2*J,2)}, {v(EQ[J])} offset:{4096*st}" for st in range(2) for J in range(2)]
    p0 += [f"v_sub_f32 {v(OMG[st])}, 1.0, {v(VG[st])}" for st in range(2)] + [[], []]
    p0 += [un(k, v(TT + k), v(QQ + (k >> 1))) for k in range(16)]
    p0 += [f"v_mul_f32 {v(TT+k)}, {v(TT+k)}, {v(VG[k>>3])}" for k in range(16)]
    l0 = G2.pour(p0, cfg.g2_arrive + 1, 60, 22); assert l0 < cfg.g2_chk
    p1 = [f"ds_read_b128 {v(RX+4*jj,4)}, {v(ERA[0])} offset:{1024*jj}" for jj in range(2)]
    p1 += [f"ds_read_b128 {v(RX+8+4*jj,4)}, {v(ERA[1])} offset:{1024*jj}" for jj in range(2)]
    p1 += [f"v_accvgpr_read_b32 {v(BB+k)}, {a(GACC+k)}" for k in range(8)]
    p1 += [f"v_add_f32 {v(BB+k)}, {v(BB+k)}, {v(RX+k)}" for k in range(8)]
    p1 += [f"ds_read_b128 {v(RX+4*jj,4)}, {v(ERA[2])} offset:{1024*jj}" for jj in range(2)]
    p1 += [f"v_add_f32 {v(BB+k)}, {v(BB+k)}, {v(RX+8+k)}" for k in range(8)]
    p1 += [f"v_add_f32 {v(BB+k)}, {v(BB+k)}, {v(RX+k)}" for k in range(8)]
    p1 += [f"v_mul_f32 {v(BB+k)}, {v(BB+k)}, {v(OMG[0])}" for k in range(8)]
    l3 = G2.pour(p1, cfg.g2_chk + 1, cfg.g2_pre - 1, 24); assert l3 <= cfg.g2_pre + 4, l3
    p2 = [[WaitTag('vm', "y"), Ins("s_barrier")]]
    p2 += [f"ds_read_b64_tr_b16 {v(YY+4*st+2*J,2)}, {v(EY)} offset:{1024*J+32*st}" for st in range(2) for J in range(2)]
    p2 += [[], [], []]
    p2 += [un(k, v(RX + k), v(YY + (k >> 1))) for k in range(8)]
    p2 += [f"v_fmac_f32 {v(BB+k)}, {v(TT+k)}, {v(RX+k)}" for k in range(8)]
    p2 += [f"v_cvt_pk_bf16_f32 {v(O+k)}, {v(BB+2*k)}, {v(BB+2*k+1)}" for k in range(4)]
    p2 += [un(k, v(RX + k), v(YY + (k >> 1))) for k in range(8, 16)]
    p2 += [f"v_permlane32_swap_b32 {v(O)}, {v(O+2)}", f"v_permlane32_swap_b32 {v(O+1)}, {v(O+3)}"]
    p2 += [f"buffer_store_dwordx4 {v(O,4)}, {v(EO)}, {OUT}, {sO[0]} offen {cfg.sc_out}"]
    p2 += [f"v_mul_f32 {v(TT+k)}, {v(TT+k)}, {v(RX+k)}" for k in range(8, 16)]
    p2 += [f"v_mov_b32 {v(T1)}, {v(OMG[1])}", f"v_mov_b32 {v(T2)}, {v(OMG[1])}"]
    G2.pour(p2, max(l3, cfg.g2_pre), 111, 24)
    check_m0(G2)
    add_trace(G2, 8, 'h', [94, 96])
    G2.emit(P, 2)
    if cfg.verbose: print("G2 gap costs", G2.costs())
    P.add(stamp("g2end"))
    R1 = 96; O2 = 52
    w_ = sends(1, lambda sg, jj: (v(EWB), (sg - 1) * SLOT + 1024 * jj))
    P.add(w_[:2])
    for k in range(8): P.e(f"v_accvgpr_read_b32 {v(BB+k)}, {a(GACC+32+k)}")
    P.add(w_[2:])
    P.e("s_waitcnt lgkmcnt(0)\n s_barrier")
    for jj in range(2):
        for sg in range(1, 4): P.e(f"ds_read_b128 {v(R1+8*(sg-1)+4*jj,4)}, {v(ERB[sg-1])} offset:{1024*jj}")
    for jj in range(2):
        for sg in range(3):
            for i in range(2): P.e(f"v_pk_add_f32 {v(BB+4*jj+2*i,2)}, {v(BB+4*jj+2*i,2)}, {v(R1+8*sg+4*jj+2*i,2)}")
        for i in range(2): P.e(f"v_pk_fma_f32 {v(BB+4*jj+2*i,2)}, {v(BB+4*jj+2*i,2)}, {v(T1,2)}, {v(TT+8+4*jj+2*i,2)}")
        for i in range(2): P.e(f"v_cvt_pk_bf16_f32 {v(O2+2*jj+i)}, {v(BB+4*jj+2*i)}, {v(BB+4*jj+2*i+1)}")
    P.e(f"v_permlane32_swap_b32 {v(O2)}, {v(O2+2)}\n v_permlane32_swap_b32 {v(O2+1)}, {v(O2+3)}")
    P.e(f"buffer_store_dwordx4 {v(O2,4)}, {v(EO)}, {OUT}, {sO[1]} offen {cfg.sc_out}")
    if cfg.stamps: emit_stamps(P)
    if cfg.fixdur:
        P.e(f"""L_fix:
        s_memrealtime s[4:5]
        s_waitcnt lgkmcnt(0)
        s_sub_u32 s4, s4, s100
        s_cmp_lt_i32 s4, {cfg.fixdur}
        s_cbranch_scc1 L_fix""")
    P.e("s_endpgm")

def check_m0(G, init=None):
    flat = []
    def fl(it):
        if isinstance(it, str):
            for l in lines(it): flat.append(Ins(l))
        elif isinstance(it, (list, tuple)):
            for x in it: fl(x)
        elif isinstance(it, Ins): flat.append(it)
    for f in G.f:
        for it in f: fl(it)
    last_off = init
    for it in flat:
        if it.kind == 'salu' and ('s', 'm0') in it.w: last_off = -1024
        if it.kind == 'dma':
            m = re.search(r'offset:(\d+)', it.text); off = int(m.group(1)) if m else 0
            assert last_off is not None and off == last_off + 1024, ("m0 group interleaved", it.text)
            last_off = off

def emit_stamps(P):
    P.e("s_waitcnt vmcnt(0)")
    P.e("s_memtime s[4:5]\n s_memrealtime s[6:7]\n s_waitcnt lgkmcnt(0)")
    n = len(stamp_names)
    for k in range(n):
        P.e(f"s_sub_u32 s3, s{STAMP_REGS[stamp_names[k]]}, {'s100' if cfg.rt else 's98'}"); P.e(f"v_mov_b32 v{200+k}, s3")
    P.e(f"s_sub_u32 s3, {'s6, s100' if cfg.rt else 's4, s98'}\n v_mov_b32 v{200+n}, s3")
    P.e(f"""s_lshl_b32 s3, s2, 2
    s_add_u32 s3, s3, {sW}
    s_lshl_b32 s3, s3, 7
    s_add_u32 s3, s3, {WS_STAMP}
    v_mov_b32 v229, 0
    v_mov_b32 v230, s100
    v_mov_b32 v231, s6
    v_mov_b32 v2, 0
    s_mov_b64 exec, 1""")
    for k in range(8): P.e(f"buffer_store_dwordx4 v[{200+4*k}:{203+4*k}], v2, {WS}, s3 offen offset:{16*k}")
    if cfg.trace:
        P.e(f"""s_mov_b64 exec, -1
        v_subrev_u32 v254, s98, v254
        v_subrev_u32 v255, s98, v255
        s_lshl_b32 s3, s2, 2
        s_add_u32 s3, s3, {sW}
        s_lshl_b32 s3, s3, 9
        s_add_u32 s3, s3, {WS_STAMP + 0x40000}
        v_lshlrev_b32 v2, 2, v1
        buffer_store_dword v254, v2, {WS}, s3 offen
        v_readlane_b32 s4, v253, 0
        v_readlane_b32 s5, v253, 1
        v_readlane_b32 s6, v253, 2
        v_readlane_b32 s7, v253, 3
        s_nop 3
        v_writelane_b32 v255, s4, 60
        v_writelane_b32 v255, s5, 61
        v_writelane_b32 v255, s6, 62
        v_writelane_b32 v255, s7, 63
        buffer_store_dword v255, v2, {WS}, s3 offen offset:256""")

def gen_aux(P0):
    P = P0
    K, V_, SH, GW = "s[40:43]", "s[44:47]", "s[48:51]", "s[52:55]"
    sA = "s68"; sST = "s69"; sUS = "s70"; sLO = "s71"; sHI = "s72"; sC = "s73"; sC2 = "s74"; sTA = ["s56", "s57"]; sTW = ["s58", "s59"]
    VL = 1; T0 = 2; T1 = 3; VZA = 4; VB = 5; VB2 = 6; VM = 7; VX = 8; VR = 9; VS = 11; VW = 12; VWt = [13, 14]; VRB = 16; VQ = 20; VQ2 = 21; VGW = 22
    KP = [48, 58]; VP = [68, 76]; WR_ = [84, 86]; WT = [88, 94]; OO = 100; UV = 108; OUT_ = 124; RB = 160; PF = 24
    TS = 17408
    P.e("s_cmp_lt_u32 s2, 256\n s_cbranch_scc1 L_auxgo\n s_endpgm\n L_auxgo:")
    for reg, off in ((K, 8), (V_, 16), (SH, 24), (GW, 80)): P.e(ldptr(reg, off))
    P.add(srd_hi(K, NQ) + srd_hi(V_, NQ) + srd_hi(SH, 3584) + srd_hi(X, NQ) + srd_hi(GW, 896) + srd_hi(WS, WS_SIZE) + srd_hi(WD, NW))
    P.e(f"""
    s_sub_u32 {sA}, s2, 224
    s_mul_i32 {sSO}, {sA}, {64*896}
    s_mul_i32 {sST}, {sW}, 40960
    s_lshl_b32 {sTA[0]}, {sW}, 7
    s_add_u32 {sTA[1]}, {sTA[0]}, 512
    s_lshl_b32 {sTW[0]}, {sW}, 9
    s_add_u32 {sTW[1]}, {sTW[0]}, 2048
    v_lshrrev_b32 {v(T0)}, 3, {v(VL)}
    v_and_b32 {v(T1)}, 7, {v(VL)}
    v_mul_u32_u24 {v(VB)}, 896, {v(T0)}
    v_lshl_add_u32 {v(VB)}, {v(T1)}, 4, {v(VB)}
    v_add_u32 {v(VB)}, {sSO}, {v(VB)}
    v_add_u32 {v(VB2)}, 6144, {v(VB)}
    v_add_u32 {v(VM)}, -7168, {v(VB)}
    v_lshlrev_b32 {v(VX)}, 3, {v(VL)}
    s_mul_i32 s3, {sA}, {24*128}
    v_lshlrev_b32 {v(VZA)}, 7, {v(VL)}
    v_add_u32 {v(VZA)}, s3, {v(VZA)}
    v_mov_b32 {v(vARR)}, -16
    v_cmp_gt_u32 vcc, 24, v0
    v_mov_b32 {v(vZERO)}, 0
    v_cndmask_b32 {v(VZA)}, {v(vARR)}, {v(VZA)}, vcc
    v_cmp_eq_u32 vcc, 0, v0
    v_mov_b32 {v(vONE)}, 1
    s_waitcnt lgkmcnt(0)
    v_cndmask_b32 {v(vARR)}, {v(vARR)}, 0, vcc
    s_mov_b32 s34, 256
    s_mov_b32 s35, 0x20000
    """)
    def dset(k, j):
        b = TS * k; tag = "pin%d%d" % (k, j); L = []
        L.append([f"s_add_u32 {sC}, {sTA[k]}, {14336*j}\n s_add_u32 m0, {sST}, {b+1024+2048*j}", Ins(f"buffer_load_dwordx4 {v(VB)}, {K}, {sC} offen lds", tag)])
        L.append(Ins(f"buffer_load_dwordx4 {v(VB2)}, {K}, {sC} offen offset:1024 lds", tag))
        if j == 0:
            L.append([f"s_add_u32 m0, {sST}, {b}", Ins(f"buffer_load_dwordx4 {v(VM)}, {K}, {sC} offen lds", tag)])
            L.append(f"buffer_load_dwordx2 {v(WR_[k],2)}, {v(VX)}, {SH}, {sTW[k]} offen")
        L.append([f"s_add_u32 m0, {sST}, {b+9216+2048*j}", Ins(f"buffer_load_dwordx4 {v(VB)}, {V_}, {sC} offen lds", tag)])
        L.append(Ins(f"buffer_load_dwordx4 {v(VB2)}, {V_}, {sC} offen offset:1024 lds", tag))
        return L
    P.add(dset(0, 0))
    P.e(f"buffer_store_dword {v(vZERO)}, {v(VZA)}, {WS}, 0 offen sc1", tag="zst")
    P.add(dset(0, 1))
    P.e(f"""
    v_bfe_u32 {v(VR)}, {v(VL)}, 2, 2
    v_lshlrev_b32 {v(VR)}, 7, {v(VR)}
    v_lshrrev_b32 {v(VS)}, 4, {v(VL)}
    v_lshl_add_u32 {v(VR)}, {v(VS)}, 5, {v(VR)}
    v_and_b32 {v(VS)}, 3, {v(VL)}
    v_lshl_add_u32 {v(VR)}, {v(VS)}, 3, {v(VR)}
    v_add_u32 {v(VR)}, {sST}, {v(VR)}
    s_mov_b32 {sLO}, 0xffff
    s_mov_b32 {sMASK}, 0xffff0000
    v_lshlrev_b32 {v(VW)}, 4, {v(T1)}
    v_lshl_add_u32 {v(VW)}, {v(VL)}, 7, {v(VW)}
    v_add_u32 {v(VW)}, {sST}, {v(VW)}
    v_xor_b32 {v(VRB)}, {v(T0)}, {v(T1)}
    v_lshlrev_b32 {v(VRB)}, 4, {v(VRB)}
    v_lshl_add_u32 {v(VRB)}, {v(T0)}, 7, {v(VRB)}
    v_add_u32 {v(VRB)}, {sST}, {v(VRB)}
    v_lshlrev_b32 {v(VGW)}, 4, {v(T1)}
    v_lshl_add_u32 {v(VS)}, {v(T0)}, 12, {v(VGW)}
    v_mul_u32_u24 {v(VQ)}, {8*896}, {v(T0)}
    v_add_u32 {v(VQ)}, {v(VQ)}, {v(VGW)}
    v_add_u32 {v(VQ)}, {sSO}, {v(VQ)}
    v_add_u32 {v(VQ2)}, {4*896}, {v(VQ)}
    s_lshl_b32 s3, {sW}, 18
    s_sub_u32 {sUS}, 31, {sA}
    s_lshl_b32 {sUS}, {sUS}, 7
    s_add_u32 {sUS}, {sUS}, s3
    s_add_u32 {sUS}, {sUS}, {WS_UR}
    """)
    P.add(dset(0, 2))
    P.vmwait("zst")
    P.e(f"buffer_atomic_add {v(vONE)}, {v(vARR)}, s[32:35], 0 offen sc1")
    P.add(dset(0, 3))
    if cfg.hack_aux: P.e("s_sleep 64\n s_sleep 32"); P.add(poll_load("za", None)); P.e("s_branch L_auxdone")
    def reads(k, j):
        b = TS * k; K_ = KP[j & 1]; V2 = VP[j & 1]
        L = [WaitTag('vm', "pin%d%d" % (k, j))]
        L += [f"ds_read_b64_tr_b16 {v(K_+2*m,2)}, {v(VR)} offset:{b+512+2048*j+512*m}" for m in range(5)]
        L += [f"ds_read_b64_tr_b16 {v(V2+2*m,2)}, {v(VR)} offset:{b+9216+2048*j+512*m}" for m in range(4)]
        return L
    def wprep(k):
        W = WR_[k]; T_ = WT[k]
        return lines(f"""v_alignbit_b32 {v(T_)}, {v(W)}, {v(W)}, 16
        v_alignbit_b32 {v(T_+1)}, {v(W+1)}, {v(W+1)}, 16
        v_and_b32 {v(T_+2)}, {sLO}, {v(W)}
        v_bfi_b32 {v(T_+3)}, {sLO}, {v(W+1)}, {v(W)}
        v_and_b32 {v(T_+4)}, {sMASK}, {v(W+1)}""")
    def owrites(k, j):
        return [[f"v_xor_b32 {v(VWt[q&1])}, {16*q}, {v(VW)}", Ins(f"ds_write_b128 {v(VWt[q&1])}, {v(OUT_+4*q,4)} offset:{TS*k}", "ow")] for q in (7 - 2 * j, 6 - 2 * j)]
    def readback(k): return [f"ds_read_b128 {v(RB+4*q,4)}, {v(VRB)} offset:{TS*k+1024*q}" for q in range(8)]
    def stores(k): return [[f"s_add_u32 {sC2}, {sUS}, {(k << 20) + 32768*q}", Ins(f"buffer_store_dwordx4 {v(RB+4*q,4)}, {v(VS)}, {WS}, {sC2} offen sc1", "pst")] for q in range(8)]
    wdt = lines(f"""s_lshl_b32 s3, {sA}, 2
    s_add_u32 s3, s3, {sW}
    s_mul_i32 s75, s3, {98*128}
    v_lshlrev_b32 {v(156)}, 7, {v(VL)}
    v_add_u32 {v(157)}, {34*128}, {v(156)}
    buffer_load_dword {v(158)}, {v(156)}, {WD}, s75 offen
    buffer_load_dword {v(159)}, {v(157)}, {WD}, s75 offen""")
    def step(P, k, j, fill):
        if cfg.aux_wd == (k, j): fill = list(fill) + ["\n".join(wdt)]
        K_ = KP[j & 1]; V2 = VP[j & 1]; T_ = WT[k]; fill = list(fill); per = (len(fill) + 9) // 10
        def nx():
            for _ in range(per):
                if fill: P.add(fill.pop(0))
        P.add(WaitRegs(v(V2 + 6, 2)))
        if cfg.stamps: r_ = [60, 62, 64, 66, 76, 78, 80, 92][4 * k + j]; P.e(f"s_memtime s[{r_}:{r_+1}]")
        for h in range(2):
            J = range(4 * h, 4 * h + 4)
            for i in J: P.e(f"v_dot2_f32_bf16 {v(OO+2*(i%4))}, {v(K_+i+2)}, {v(T_+2)}, 0\n v_dot2_f32_bf16 {v(OO+2*(i%4)+1)}, {v(K_+i+2)}, {v(T_)}, 0")
            nx()
            for i in J: P.e(f"v_dot2_f32_bf16 {v(OO+2*(i%4))}, {v(K_+i+1)}, {v(T_+3)}, {v(OO+2*(i%4))}\n v_dot2_f32_bf16 {v(OO+2*(i%4)+1)}, {v(K_+i+1)}, {v(T_+1)}, {v(OO+2*(i%4)+1)}")
            nx()
            for i in J: P.e(f"v_dot2_f32_bf16 {v(OO+2*(i%4))}, {v(K_+i)}, {v(T_+4)}, {v(OO+2*(i%4))}")
            nx()
            for i in J: P.e(f"v_lshlrev_b32 {v(UV+2*(i%4))}, 16, {v(V2+i)}\n v_and_b32 {v(UV+2*(i%4)+1)}, {sMASK}, {v(V2+i)}")
            nx()
            for i in J: P.e(f"v_pk_mul_f32 {v(UV+2*(i%4),2)}, {v(UV+2*(i%4),2)}, {v(OO+2*(i%4),2)}")
            nx()
            for i in J: P.e(f"v_cvt_pk_bf16_f32 {v(OUT_+31-8*j-i)}, {v(UV+2*(i%4)+1)}, {v(UV+2*(i%4))}")
        while fill: nx()
    P.add(reads(0, 0)); P.add(wprep(0))
    if cfg.stamps: P.e("s_waitcnt lgkmcnt(0)\n s_memtime s[86:87]")
    P.e(f"s_cmp_eq_u32 {sW}, 3\n s_cbranch_scc1 L_gate")
    Pg = Prog(); Pg.items = list(P.items)
    step(P, 0, 0, dset(1, 0) + reads(0, 1))
    step(P, 0, 1, dset(1, 1) + reads(0, 2))
    step(P, 0, 2, dset(1, 2) + reads(0, 3))
    step(P, 0, 3, dset(1, 3) + reads(1, 0) + wprep(1) + owrites(0, 0) + owrites(0, 1) + owrites(0, 2))
    P.add(owrites(0, 3))
    step(P, 1, 0, reads(1, 1) + readback(0))
    step(P, 1, 1, reads(1, 2) + stores(0))
    step(P, 1, 2, poll_load("za", None) + reads(1, 3))
    step(P, 1, 3, owrites(1, 0) + owrites(1, 1) + owrites(1, 2))
    P.add(owrites(1, 3)); P.add(readback(1)); P.add(stores(1))
    P.e("s_branch L_auxdone")
    P = Pg; P.e("L_gate:")
    QB = [192, 224, 48, 80]; GWS = [24, 28, 34, 38]
    def ql(tau):
        b = QB[tau % 4]
        L = [f"buffer_load_dwordx4 {v(b+4*rho,4)}, {v(VQ if rho < 4 else VQ2)}, {X}, 0 offen offset:{896*(rho%4)+128*tau}" for rho in range(8)]
        return L + [f"buffer_load_dwordx4 {v(GWS[tau%4],4)}, {v(VGW)}, {GW}, 0 offen offset:{128*tau}"]
    step(P, 0, 0, reads(0, 1))
    step(P, 0, 1, reads(0, 2) + ql(0))
    step(P, 0, 2, reads(0, 3) + ql(1))
    step(P, 0, 3, owrites(0, 0) + owrites(0, 1) + owrites(0, 2))
    P.add(owrites(0, 3)); P.add(ql(2)); P.add(readback(0)); P.add(ql(3)); P.add(stores(0)); P.add(poll_load("za", None))
    for tau in range(7):
        b = QB[tau % 4]
        for p in range(4):
            for rho in range(8):
                P.e(f"v_dot2_f32_bf16 {v(112+rho)}, {v(b+4*rho+p)}, {v(GWS[tau%4]+p)}, {'0' if (tau == 0 and p == 0) else v(112+rho)}")
        if tau + 4 < 7: P.add(ql(tau + 4))
    AC = 112
    for mod in ("row_half_mirror", "quad_perm:[3,2,1,0]", "quad_perm:[1,0,3,2]"):
        for rho in range(8): P.e(f"v_add_f32_dpp {v(AC+rho)}, {v(AC+rho)}, {v(AC+rho)} {mod} row_mask:0xf bank_mask:0xf")
    P.e("s_mov_b32 s74, 0xaaaaaaaa\n s_mov_b32 s75, 0xaaaaaaaa")
    for k in range(4): P.e(f"v_cndmask_b32 {v(AC+k)}, {v(AC+2*k)}, {v(AC+2*k+1)}, s[74:75]")
    P.e("s_mov_b32 s74, 0xcccccccc\n s_mov_b32 s75, 0xcccccccc")
    for k in range(2): P.e(f"v_cndmask_b32 {v(AC+k)}, {v(AC+2*k)}, {v(AC+2*k+1)}, s[74:75]")
    P.e("s_mov_b32 s74, 0xf0f0f0f0\n s_mov_b32 s75, 0xf0f0f0f0")
    P.e(f"""v_cndmask_b32 {v(AC)}, {v(AC)}, {v(AC+1)}, s[74:75]
    v_mul_f32 {v(AC)}, 0xbfb8aa3b, {v(AC)}
    v_exp_f32 {v(AC)}, {v(AC)}
    v_add_f32 {v(AC)}, 1.0, {v(AC)}
    v_rcp_f32 {v(AC)}, {v(AC)}
    s_lshl_b32 s3, {sA}, 8
    s_add_u32 s3, s3, {WS_G}
    v_lshlrev_b32 {v(T0)}, 2, {v(VL)}
    buffer_store_dword {v(AC)}, {v(T0)}, {WS}, s3 offen sc1""")
    T = Prog(); T.e("L_auxdone:")
    if cfg.stamps: T.e("s_memtime s[88:89]")
    T.e(f"""s_lshl_b32 {sC}, {sA}, 7
    s_lshl_b32 s3, {sA}, 2
    s_add_u32 s3, s3, {sW}
    s_mul_i32 {sSO2}, s3, {98*128}
    v_lshlrev_b32 {v(PF)}, 7, {v(VL)}
    v_add_u32 {v(PF+1)}, {34*128}, {v(PF)}
    s_waitcnt vmcnt(0)""")
    T.add(poll_check("za", None))
    T.e("s_barrier")
    if not cfg.nosync: T.e(f"buffer_store_dword {v(vONE)}, {v(vARR)}, {WS}, {sC} offen sc1")
    if cfg.stamps: T.e("s_memtime s[90:91]")
    if cfg.aux_l2:
        g0, ng = cfg.aux_l2
        T.e(f"""v_mul_u32_u24 {v(PF)}, 896, {v(VL)}
        s_lshr_b32 s56, {sA}, 3
        s_mul_i32 s56, s56, {448*896}
        s_and_b32 s57, s2, 7
        s_add_u32 s57, s57, {g0}""")
        for k in range((7 * ng + 3) // 4):
            T.e(f"""s_add_u32 s58, {sW}, {4*k}
            s_min_u32 s58, s58, {7*ng-1}
            s_mul_i32 s59, s58, 37
            s_lshr_b32 s59, s59, 8
            s_mul_i32 s3, s59, 7
            s_sub_u32 s58, s58, s3
            s_add_u32 s59, s59, s58
            s_add_u32 s59, s59, s57
            s_mul_i32 s3, s59, 37
            s_lshr_b32 s3, s3, 8
            s_mul_i32 s3, s3, 7
            s_sub_u32 s59, s59, s3
            s_mul_i32 s59, s59, {64*896}
            s_lshl_b32 s58, s58, 7
            s_add_u32 s59, s59, s58
            s_add_u32 s59, s59, s56
            buffer_load_dword {v(PF+2+k)}, {v(PF)}, {WD}, s59 offen""")
    if cfg.stamps:
        T.e(f"""s_waitcnt vmcnt(0)
        s_memtime s[4:5]
        s_memrealtime s[6:7]
        s_waitcnt lgkmcnt(0)
        s_sub_u32 s3, s86, s98
        v_mov_b32 v200, s3
        s_sub_u32 s3, s88, s98
        v_mov_b32 v201, s3
        s_sub_u32 s3, s90, s98
        v_mov_b32 v202, s3
        s_sub_u32 s3, s4, s98
        v_mov_b32 v203, s3
        v_mov_b32 v204, s100
        v_mov_b32 v205, s6
        s_lshl_b32 s3, s2, 2
        s_add_u32 s3, s3, {sW}
        s_lshl_b32 s3, s3, 7
        s_add_u32 s3, s3, {WS_STAMP}
        v_mov_b32 v2, 0
        s_mov_b64 exec, 1
        buffer_store_dwordx4 v[200:203], v2, {WS}, s3 offen
        buffer_store_dwordx2 v[204:205], v2, {WS}, s3 offen offset:120""")
        for i_, r_ in enumerate([60, 62, 64, 66, 76, 78, 80, 92]): T.e(f"s_sub_u32 s4, s{r_}, s98\n v_mov_b32 v{208+i_}, s4")
        T.e(f"buffer_store_dwordx4 v[208:211], v2, {WS}, s3 offen offset:16\n buffer_store_dwordx4 v[212:215], v2, {WS}, s3 offen offset:32")
    T.e("s_endpgm")
    return Pg, T

def build():
    global slow_paths, stamp_names, trace_names
    slow_paths = []; stamp_names = []; trace_names = []; arr_n[0] = 0; STAMP_REGS['prewait'] = 74; STAMP_REGS['karg'] = 72
    pro = Prog()
    for reg, off in ((X, 0), (WG, 56), (WU, 64), (WD, 72), (SK, 32), (WS, 104), (OUT, 88), (pDBG, 96), (pD, 40)) + ((("s[94:95]", 8), ("s[96:97]", 16)) if cfg.kv_touch is not None else ()): pro.e(ldptr(reg, off))
    if cfg.sync_start:
        pro.e("""s_memrealtime s[100:101]
        s_waitcnt lgkmcnt(0)
        s_add_u32 s3, s100, 400
        s_and_b32 s3, s3, 0xffffff00
        s_and_b32 s99, s2, %d
        s_mul_i32 s99, s99, %d
        s_add_u32 s3, s3, s99
        L_ss:
        s_memrealtime s[100:101]
        s_waitcnt lgkmcnt(0)
        s_sub_u32 s99, s100, s3
        s_cmp_lt_i32 s99, 0
        s_cbranch_scc1 L_ss""" % cfg.skew)
    if cfg.stamps or cfg.fixdur: pro.e("s_memtime s[98:99]\n s_memrealtime s[100:101]")
    pro.e(f"""
    v_lshrrev_b32 v2, 6, v0
    v_and_b32 v1, 63, v0
    s_cmp_ge_u32 s2, 224
    v_readfirstlane_b32 {sW}, v2
    s_cbranch_scc1 L_aux
    """)
    Pm = Prog(); Pm.items = list(pro.items)
    gen_main(Pm)
    main = Pm.finalize(cfg.verbose)
    if cfg.warm:
        real = [i for i, x in enumerate(main) if x.kind != 'label']
        for k, n in reversed(list(enumerate(cfg.stub_at[:4]))):
            main[real[n]:real[n]] = [Ins("L_pg%d:" % k), Ins("s_cbranch_execz L_pgback")]
    Px = Prog(); Px.items = list(pro.items); Px.e("L_aux:")
    Pg, Pt = gen_aux(Px)
    ax = Px.finalize(); gx = Pg.finalize(); tx = Pt.finalize()
    cut = lambda lst, lab: lst[[i for i, x in enumerate(lst) if x.kind == 'label' and x.text == lab][0]:]
    body = text_of(main) + "\n" + text_of(cut(ax, "L_aux:")) + "\n" + text_of(cut(gx, "L_gate:")) + "\n" + text_of(tx) + "\n" + emit_slow_paths() + "\nL_codeend:"
    hdr = open("gated_mix__ssm_conv_h3__swiglu_ffn__prompt.s.ref").read().split("; Override launch")[0] if cfg.header else ""
    return f"""{hdr}; @launch grid=(256,1,1) block=(256,1,1) lds={LDS_BYTES}
; TRACE={trace_names}
.amdgcn_target "amdgcn-amd-amdhsa--gfx950"
.text
.globl {KNAME}
{'.p2align 12' if cfg.align else ''}
.p2align 8
.type {KNAME},@function
{KNAME}:
{body}
.section .rodata,"a"
.p2align 6
.amdhsa_kernel {KNAME}
  .amdhsa_next_free_vgpr 512
  .amdhsa_next_free_sgpr 102
  .amdhsa_accum_offset 256
  .amdhsa_group_segment_fixed_size 0
  .amdhsa_kernarg_size 112
  .amdhsa_user_sgpr_count 2
  .amdhsa_user_sgpr_kernarg_segment_ptr 1
  .amdhsa_system_sgpr_workgroup_id_x 1
.end_amdhsa_kernel
"""

if __name__ == "__main__":
    import subprocess
    out = sys.argv[1]
    for kv in sys.argv[2:]:
        k_, v_ = kv.split("=", 1)
        assert hasattr(cfg, k_), k_
        setattr(cfg, k_, eval(v_))
    cfg.pf_n = 1; cfg.pf_last = 100
    vb = cfg.verbose; cfg.verbose = False
    open(out, "w").write(build())
    subprocess.check_call(["clang", "-x", "assembler", "-target", "amdgcn-amd-amdhsa", "-mcpu=gfx950", "-c", out, "-o", "_gen.o"])
    sym = subprocess.check_output(["llvm-objdump", "-t", "_gen.o"], text=True)
    ad = {l.split()[-1]: int(l.split()[0], 16) for l in sym.splitlines() if " L_" in l}
    if cfg.code_pf:
        cfg.pf_last = (ad["L_codeend"] - ad["L_pc"] - 64) // 128
        cfg.pf_n = (cfg.pf_last + 112) // 112
    if cfg.warm:
        cfg.stub_at = [600, 1200, 1800, 2300]
        for it in range(3):
            open(out, "w").write(build())
            subprocess.check_call(["clang", "-x", "assembler", "-target", "amdgcn-amd-amdhsa", "-mcpu=gfx950", "-c", out, "-o", "_gen.o"])
            dis = subprocess.check_output(["llvm-objdump", "-d", "--mcpu=gfx950", "_gen.o"], text=True)
            ins = [(int(l.split("//")[1].split(":")[0], 16), l) for l in dis.splitlines() if "//" in l]
            end = [i for i, (a_, l) in enumerate(ins) if "s_endpgm" in l][0]
            a0 = []; ns_ = 0
            for a_, l in ins[:end]:
                if "s_cbranch_execz" in l: ns_ += 1
                else: a0.append(a_ - 4 * ns_)
            new_at = []
            for k in range(1, 5):
                c = [i for i, a_ in enumerate(a0) if a_ + 4 * (k - 1) + 0x300 >= 4096 * k]
                if c: new_at.append(c[0])
            if new_at == cfg.stub_at: break
            cfg.stub_at = new_at
    cfg.verbose = vb
    open(out, "w").write(build())
    print(out, "code bytes", ad["L_codeend"], "aux at", ad["L_aux"], "stubs", cfg.stub_at, "stamps:", stamp_names)
```

```python
import sys, math, re
from fw import *
import fw
KNAME = "gated_mix__ssm_conv_h3__swiglu_ffn__prompt_kernel"

class Cfg: pass
cfg = Cfg()
cfg.stamps = False; cfg.pass_stamps = False; cfg.verbose = False; cfg.header = True; cfg.fixdur = 0
cfg.PD = 5; cfg.NXR = 8; cfg.pair = 2; cfg.bud = 24
cfg.code_pf = True; cfg.n_pre = 9; cfg.nosync = False
cfg.rot_c = True; cfg.rot_t = True; cfg.rot_g = True
cfg.pl_at = -1; cfg.pc0 = 10; cfg.pc1 = 70; cfg.bud1 = 28; cfg.z_load = 80; cfg.z_chk = 104; cfg.x_touch = 0; cfg.align = True; cfg.tlb = False; cfg.sync_start = False; cfg.skew = (0, 0); cfg.gq_sh = 0; cfg.gq_mul = 1; cfg.wd_touch = -1; cfg.warm = True; cfg.stub_at = []; cfg.late_pos = 50; cfg.p_arr = 9; cfg.pst_at = 80; cfg.aux_sk = False; cfg.p_first = True; cfg.sk_at = -1; cfg.hv_at = 50; cfg.c_rd_end = 66; cfg.sleep = 2
cfg.p_load = 196; cfg.p_chk = 214; cfg.hw0 = 100; cfg.hw1 = 186
cfg.g_arrive = 30; cfg.g_poll = 84; cfg.g_chk = 102; cfg.nh_c = 11; cfg.nh_e = 5; cfg.c_wd = (24, 48, 72, 96); cfg.c_tail_in_g2 = True; cfg.b_rev = False; cfg.blk_c = 4; cfg.blk_s3 = 0; cfg.blk_deep = False; cfg.blk_dma = False; cfg.blk_g = 30; cfg.blk_g2 = 0; cfg.blk_list = None; cfg.hack_sleep = None; cfg.aux_wd = None; cfg.hack_aux = False; cfg.sc_h = 'sc1'; cfg.n_raw = 0; cfg.kv_touch = None; cfg.aux_l2 = None; cfg.hack_wd = False; cfg.hack_p = False; cfg.sc_wd = ''; cfg.sc_g1 = ''; cfg.c_bar = 130; cfg.s3_at = -1; cfg.nwd_t = 5; cfg.g_wd_end = 104
cfg.g2_hpace = 2.1; cfg.q_at = (13, 15, 17, 19); cfg.g2_arrive = 34; cfg.g2_poll = 60; cfg.g2_chk = 74; cfg.g2_pre = 96
cfg.sc_out = ""; cfg.aux_pf = False; cfg.touch = False; cfg.s_early = True; cfg.rt = False; cfg.trace = False; cfg.start_stamps = False

WS_FLAG = 0x0; WS_G = 0x20000; WS_UR = 0x100000; WS_YT = 0x300000; WS_H = 0x500000
WS_STAMP = 0xC00000; WS_SIZE = 0xD00000
NQ = 1835008; NW = 1605632
XB = 4096
SLOT = 28672; PIECE = 7168
HC = 4 * SLOT; CPY = 4160; HCCH = 4 * CPY
UL = HC + 2 * HCCH; UCH = 4608
LDS_BYTES = 163840
YL = HC; QL = UL
assert UL + 2 * UCH <= LDS_BYTES
X, WG, WU, WD, SK, WS, OUT = ["s[%d:%d]" % (b, b + 3) for b in (4, 8, 12, 16, 20, 24, 28)]
pWS = "s[24:25]"; pDBG = "s[32:33]"; pD = "s[34:35]"
sW = "s36"; sT0 = "s37"; sT1 = "s38"; sT2 = "s39"
sCH = ["s%d" % (40 + i) for i in range(7)]
sWC = ["s%d" % (47 + i) for i in range(7)]
sTO = ["s%d" % (54 + i) for i in range(8)]
sHG = sWC
sM0P = "s68"; sXB = "s69"; sWB = "s70"; sDB = "s71"; sHS = "s72"; sHL = ["s73", "s74"]
sNL2E = "s75"; sSO = "s76"; sSO2 = "s77"; sD = "s78"; sI2 = "s79"; sCT = "s80"; sKH = "s81"
sCNT = "s82"; sM = "s83"; sMASK = "s84"; sRG = "s85"
sDG = ["s%d" % (86 + i) for i in range(7)]
sPV = "s93"; sHE = "s70"; sFL = "s67"; sONE = "s66"; sU = "s65"; sPA = "s64"
STAMP_REGS = {'issued': 0, 'setup': 96, 'pdone': 94, 'prewait': 74, 'karg': 72, 'g1start': 34, 'p1end': 12, 'T5': 96, 'T6': 8, 'T7': 10, 'prepoll': 94, 'zpre': 96, 'zpost': 8, 'g1end': 14, 'cstart': 40, 'c_pre': 42, 'c_post': 44, 'g2start': 54, 'g2_pre': 56, 'g2_post': 58, 'g2end': 60}

def v(i, n=1): return "v%d" % i if n == 1 else "v[%d:%d]" % (i, i + n - 1)
def a(i, n=1): return "a%d" % i if n == 1 else "a[%d:%d]" % (i, i + n - 1)
def lines(t): return [l.strip() for l in t.split("\n") if l.strip()]

stamp_names = []
def stamp(name):
    if not cfg.stamps or cfg.stamps == 'min': return []
    if cfg.trace and STAMP_REGS[name] in (94, 96): return []
    stamp_names.append(name); r = STAMP_REGS[name]
    return [Ins("%s s[%d:%d]" % ("s_memrealtime" if cfg.rt else "s_memtime", r, r + 1))]

slow_paths = []
trace_names = []
TR_S = [94, 96, 8, 12]
def add_trace(G, every, name, regs):
    if not cfg.trace: return
    k = 0
    for g in range(0, G.n - 3, every):
        i = len(trace_names); trace_names.append("%s%d" % (name, g)); r = regs[k % len(regs)]; k += 1
        G.f[g].insert(0, Ins("s_memtime s[%d:%d]" % (r, r + 1)))
        G.f[min(g + (3 if G.n != 144 else 6), G.n - 1)].append("v_writelane_b32 v%d, s%d, %d" % (254 + i // 64, r, i % 64))
vARR = 43; vONE = 0; vP8 = 38; vP7 = 39; vPV = 33; vZERO = 44
def poll_text(kind, off):
    if kind == "z": return f"global_load_dword {v(vPV)}, {v(vZERO)}, {pDBG} sc1"
    if kind == "za": return f"global_load_dword {v(vPV)}, {v(vZERO)}, {pDBG} sc1"
    return f"buffer_load_dword {v(vPV)}, {v(vP7 if kind == 'h' else vP8)}, {WS}, {off} offen sc1"
def poll_load(kind, off):
    return [] if cfg.nosync else [poll_text(kind, off)]
def poll_check(kind, off):
    if cfg.nosync: return []
    slow_paths.append((kind, off))
    return [f"v_cmp_gt_u32 vcc, {32 if kind[0] == 'z' else 1}, {v(vPV)}", f"s_cbranch_vccnz L_slow_{kind}\n L_back_{kind}:"]
def emit_slow_paths():
    t = []
    for kind, off in slow_paths:
        t += [f"L_slow_{kind}:", f"s_mov_b32 {sCNT}, 0", f"L_spin_{kind}:", f"s_sleep {cfg.sleep}", poll_text(kind, off),
              f"s_add_u32 {sCNT}, {sCNT}, 1", f"s_cmp_gt_u32 {sCNT}, 0x40000", "s_waitcnt vmcnt(0)", f"s_cbranch_scc1 L_back_{kind}",
              f"v_cmp_gt_u32 vcc, {32 if kind[0] == 'z' else 1}, {v(vPV)}", f"s_cbranch_vccnz L_spin_{kind}"] + ([f"v_writelane_b32 v253, {sCNT}, {'zphy'.index(kind)}"] if cfg.trace and kind != "za" else []) + [f"s_branch L_back_{kind}"]
    return "\n".join(l if l.endswith(":") else "    " + l for l in t)
arr_n = [0]
def arrive(tag, off, bar=True):
    pre = [Ins("s_barrier")] if bar else []
    if cfg.nosync: return pre
    return ([WaitTag('vm', tag)] if bar else []) + pre + [f"buffer_store_dword {v(vONE)}, {v(vARR)}, {WS}, {off} offen sc1"]

def sb(reg): return int(reg[2:reg.index(':')])
def srd_hi(reg, size): return ["s_mov_b32 s%d, 0x%x" % (sb(reg) + 2, size), "s_mov_b32 s%d, 0x20000" % (sb(reg) + 3)]
def ldptr(reg, off): return "s_load_dwordx2 s[%d:%d], s[0:1], %d" % (sb(reg), sb(reg) + 1, off)
def rot_next(r): return [f"s_add_u32 {r}, {r}, 1", f"s_cmp_eq_u32 {r}, 7\n s_cselect_b32 {r}, 0, {r}"]
def mod7(r): return lines(f"s_mul_i32 s3, {r}, 37\n s_lshr_b32 s3, s3, 8\n s_mul_i32 s3, s3, 7\n s_sub_u32 {r}, {r}, s3")

def code_prefetch(P):
    if not cfg.code_pf: return
    P.e(f"""
        s_getpc_b64 s[38:39]
        L_pc:
        s_lshr_b32 s3, s2, 3
        s_lshl_b32 s3, s3, 2
        s_add_u32 s3, s3, {sW}
        s_mul_i32 s3, s3, {cfg.pf_n}
        v_min_u32 v2, {cfg.pf_n-1}, v1
        v_add_u32 v2, s3, v2
        v_min_u32 v2, {cfg.pf_last}, v2
        v_lshlrev_b32 v2, 7, v2
        v_mov_b32 v3, s39
        v_add_co_u32 v2, vcc, s38, v2
        v_addc_co_u32 v3, vcc, 0, v3, vcc
        global_load_dword v255, v[2:3], off
        """)

def gen_main(P):
    PD = cfg.PD; NXR = cfg.NXR
    VL = 1
    VX = [2, 3, 4, 9]; VWg = [5, 6]; VWu = [7, 8]; VSK = [10, 11, 12]; VD = [13, 14, 15, 16]
    XR = [[17, 18, 19, 20], [21, 22, 23, 24]]; WR = [25, 26, 27]; DR = [[28, 29], [30, 31]]
    V16 = 32; T0 = 33; T1 = 34; T2 = 35; T3 = 36; VHZ = 37; CA = 40; CB = 41; VHW = 42; VZ = 44
    ACC = [48, 64, 80, 96]; XRING = 112; ET = 144; PK = [148, 152]; HR = 160; HCP = 176
    assert XRING + 4 * NXR <= ET
    sX = sSO; sQ7 = sSO2; sR = sCNT
    code_prefetch(P)
    P.e(f"""
    s_and_b32 {sX}, s2, 7
    s_lshr_b32 {sT1}, s2, 3
    s_mul_i32 {sQ7}, {sT1}, 37
    s_lshr_b32 {sQ7}, {sQ7}, 8
    s_mul_i32 s3, {sQ7}, 7
    s_sub_u32 {sCT}, {sT1}, s3
    s_lshl_b32 s3, {sX}, 2
    s_add_u32 {sI2}, s3, {sQ7}
    s_and_b32 s3, {sX}, 4
    s_add_u32 {sT2}, s3, {sQ7}
    s_and_b32 {sT0}, {sX}, 3
    s_mul_i32 {sT1}, {sT0}, 7
    s_add_u32 {sT1}, {sT1}, {sCT}
    s_mul_i32 {sM0P}, {sW}, {PIECE}
    s_mul_i32 {sXB}, {sT2}, {256*896}
    s_add_u32 {sXB}, {sXB}, {sM0P}
    s_mul_i32 {sWB}, {sW}, {16*3584}
    s_lshl_b32 s3, {sT1}, 7
    s_add_u32 {sWB}, {sWB}, s3
    s_lshl_b32 {sRG}, {sQ7}, 1
    s_add_u32 {sRG}, {sRG}, {sCT}
    s_lshr_b32 s3, {sX}, 2
    s_add_u32 {sR}, {sRG}, s3
    """)
    P.add(mod7(sR) if cfg.rot_c else f"s_mov_b32 {sR}, 0")
    def ch_tab(i):
        L = lines(f"s_lshl_b32 s3, {sR}, 7\n s_add_u32 {sCH[i]}, s3, {sXB}\n s_mul_i32 s3, {sR}, {64*3584}\n s_add_u32 {sWC[i]}, s3, {sWB}")
        return L + (rot_next(sR) if i < 6 else [])
    def to_tab(t):
        if cfg.rot_t: return lines(f"s_lshl_b32 s3, {sT0}, 1\n s_add_u32 s3, s3, {t}\n s_and_b32 s3, s3, 7\n s_mul_i32 {sTO[t]}, s3, 28672")
        return [f"s_mov_b32 {sTO[t]}, {28672*t}"]
    for i in range(2): P.add(ch_tab(i))
    for t in range(3): P.add(to_tab(t))
    P.add(srd_hi(X, NQ + XB) + srd_hi(WG, NW) + srd_hi(WU, NW))
    P.e(f"""
    v_lshrrev_b32 {v(T0)}, 3, {v(VL)}
    v_and_b32 {v(T1)}, 7, {v(VL)}
    v_lshrrev_b32 {v(T2)}, 4, {v(VL)}
    s_lshl_b32 s3, {sW}, 2
    v_add_u32 {v(T3)}, s3, {v(T2)}
    v_and_b32 {v(T3)}, 7, {v(T3)}
    v_xor_b32 {v(T3)}, {v(T1)}, {v(T3)}
    v_lshlrev_b32 {v(T3)}, 4, {v(T3)}
    v_mul_u32_u24 {v(VX[0])}, 896, {v(T0)}
    v_add_u32 {v(T3)}, {XB}, {v(T3)}
    v_add_u32 {v(VX[0])}, {v(VX[0])}, {v(T3)}
    v_add_u32 {v(VX[1])}, -1024, {v(VX[0])}
    v_add_u32 {v(VX[2])}, -2048, {v(VX[0])}
    v_and_b32 {v(T2)}, 1, {v(T2)}
    v_lshlrev_b32 {v(T2)}, 1, {v(T2)}
    v_xor_b32 {v(T3)}, {v(T1)}, {v(T2)}
    v_lshlrev_b32 {v(T3)}, 4, {v(T3)}
    v_mul_u32_u24 {v(VWg[0])}, 3584, {v(T0)}
    v_add_u32 {v(VWg[0])}, {v(VWg[0])}, {v(T3)}
    v_add_u32 {v(VWg[1])}, {28672-1024}, {v(VWg[0])}
    v_xor_b32 {v(VWu[0])}, 64, {v(VWg[0])}
    v_add_u32 {v(VWu[1])}, {28672-1024}, {v(VWu[0])}
    """)
    if cfg.start_stamps: P.add(stamp("prewait"))
    P.e("s_waitcnt lgkmcnt(0)")
    if cfg.start_stamps: P.add(stamp("karg")); P.e("s_waitcnt lgkmcnt(0)\n v_mov_b32 v156, s74\n v_mov_b32 v157, s72")
    P.e(f"""
    s_sub_u32 s4, s4, {XB}
    s_subb_u32 s5, s5, 0
    """)
    def dma_item(i):
        sl = (i % 4) * SLOT; tag = "it%d" % i; L = []
        xl = lambda T, c, u, pre="": [pre + f"s_add_u32 {sSO}, {sCH[c]}, {sTO[T]}", Ins(f"buffer_load_dwordx4 {v(VX[u])}, {X}, {sSO} offen offset:{1024*u} {cfg.sc_g1} lds", tag)]
        if i < 7:
            L.append([f"s_add_u32 m0, {sM0P}, {sl+3072}", Ins(f"buffer_load_dwordx4 {v(VWg[0])}, {WG}, {sWC[i]} offen offset:0 {cfg.sc_g1} lds", tag)])
            L.append(Ins(f"buffer_load_dwordx4 {v(VWg[1])}, {WG}, {sWC[i]} offen offset:1024 {cfg.sc_g1} lds", tag))
            L.append([f"s_add_u32 m0, {sM0P}, {sl+5120}", Ins(f"buffer_load_dwordx4 {v(VWu[0])}, {WU}, {sWC[i]} offen offset:0 {cfg.sc_g1} lds", tag)])
            L.append(Ins(f"buffer_load_dwordx4 {v(VWu[1])}, {WU}, {sWC[i]} offen offset:1024 {cfg.sc_g1} lds", tag))
            for rt in range(3): L.append(xl(rt, i, rt, f"s_add_u32 m0, {sM0P}, {sl}\n" if rt == 0 else ""))
        else:
            T = i - 4
            for k in range(7): L.append(xl(T, k, k % 4, f"s_add_u32 m0, {sM0P}, {sl+1024*k}\n" if k % 4 == 0 else ""))
        return L
    first = dma_item(0) + dma_item(1)
    P.add(first[:cfg.n_pre]); late_first = first[cfg.n_pre:]
    if not cfg.pass_stamps: P.add(stamp("issued"))
    P.e(f"""
    s_lshl_b32 s3, s2, 2
    s_load_dword {sD}, {pD}, s3
    v_lshlrev_b32 {v(T3)}, 1, {v(T2)}
    v_xor_b32 {v(T3)}, {v(T1)}, {v(T3)}
    v_lshlrev_b32 {v(T3)}, 4, {v(T3)}
    v_mul_u32_u24 {v(VD[0])}, 896, {v(T0)}
    v_add_u32 {v(VD[0])}, {v(VD[0])}, {v(T3)}
    v_add_u32 {v(VX[3])}, -3072, {v(VX[0])}
    v_and_b32 {v(T0)}, 31, {v(VL)}
    v_lshrrev_b32 {v(T1)}, 3, {v(T0)}
    v_mul_u32_u24 {v(T1)}, {PIECE}, {v(T1)}
    v_and_b32 {v(T2)}, 7, {v(T0)}
    v_lshl_add_u32 {v(T1)}, {v(T2)}, 7, {v(T1)}
    v_lshrrev_b32 {v(T2)}, 1, {v(T0)}
    v_and_b32 {v(T2)}, 7, {v(T2)}
    v_lshrrev_b32 {v(T3)}, 5, {v(VL)}
    v_xor_b32 {v(T2)}, {v(T2)}, {v(T3)}
    v_lshl_add_u32 {v(XR[0][0])}, {v(T2)}, 4, {v(T1)}
    """)
    for k in range(1, 4): P.e(f"v_xor_b32 {v(XR[0][k])}, {32*k}, {v(XR[0][0])}")
    for k in range(4): P.e(f"v_add_u32 {v(XR[1][k])}, {3*SLOT}, {v(XR[0][k])}")
    P.e(f"""
    v_bfe_u32 {v(T0)}, {v(VL)}, 2, 2
    v_lshl_add_u32 {v(T1)}, {v(T3)}, 3, {v(T0)}
    v_lshlrev_b32 {v(T1)}, 7, {v(T1)}
    v_bfe_u32 {v(T2)}, {v(VL)}, 1, 1
    v_lshl_add_u32 {v(T1)}, {v(T2)}, 11, {v(T1)}
    v_lshlrev_b32 {v(T2)}, 1, {v(T2)}
    v_lshrrev_b32 {v(T0)}, 1, {v(T0)}
    v_add_u32 {v(T2)}, {v(T2)}, {v(T0)}
    v_xor_b32 {v(T2)}, {sW}, {v(T2)}
    v_lshl_add_u32 {v(T1)}, {v(T2)}, 5, {v(T1)}
    v_bfe_u32 {v(T2)}, {v(VL)}, 4, 1
    v_lshl_add_u32 {v(T1)}, {v(T2)}, 4, {v(T1)}
    v_and_b32 {v(T2)}, 1, {v(VL)}
    v_lshl_add_u32 {v(T1)}, {v(T2)}, 3, {v(T1)}
    v_add_u32 {v(WR[0])}, 3072, {v(T1)}
    v_add_u32 {v(WR[1])}, {2*SLOT}, {v(WR[0])}
    """)
    for i in range(2, 7): P.add(ch_tab(i))
    for t in range(3, 8): P.add(to_tab(t))
    S = []
    S += lines(f"""
    v_bfe_u32 {v(T1)}, {v(VL)}, 2, 2
    v_lshl_add_u32 {v(T1)}, {v(T3)}, 2, {v(T1)}
    v_lshlrev_b32 {v(T1)}, 7, {v(T1)}
    s_lshr_b32 s3, {sW}, 1
    v_xor_b32 {v(T2)}, s3, {v(T0)}
    v_lshl_add_u32 {v(T1)}, {v(T2)}, 6, {v(T1)}
    v_bfe_u32 {v(T2)}, {v(VL)}, 4, 1
    v_lshl_add_u32 {v(T1)}, {v(T2)}, 5, {v(T1)}
    v_and_b32 {v(T2)}, 3, {v(VL)}
    v_lshl_add_u32 {v(T1)}, {v(T2)}, 3, {v(T1)}
    s_and_b32 s3, {sW}, 1
    s_lshl_b32 s3, s3, 5
    v_xor_b32 {v(T1)}, s3, {v(T1)}
    v_add_u32 {v(DR[0][0])}, {sM0P}, {v(T1)}
    v_xor_b32 {v(DR[0][1])}, 64, {v(DR[0][0])}
    v_add_u32 {v(DR[1][0])}, {2*SLOT}, {v(DR[0][0])}
    v_add_u32 {v(DR[1][1])}, {2*SLOT}, {v(DR[0][1])}
    v_add_u32 {v(VD[1])}, 6144, {v(VD[0])}
    v_add_u32 {v(VD[2])}, {2*6144}, {v(VD[0])}
    v_add_u32 {v(VD[3])}, {3*6144}, {v(VD[0])}
    v_lshlrev_b32 {v(V16)}, 4, {v(VL)}
    s_mul_i32 s3, {sT2}, 28
    s_add_u32 s3, s3, {sT1}
    s_add_u32 s3, s3, 256
    s_lshl_b32 {sFL}, s3, 7
    v_mov_b32 {v(vARR)}, -16
    v_cmp_eq_u32 vcc, 0, v0
    v_min_u32 {v(vP8)}, 7, {v(VL)}
    v_min_u32 {v(vP7)}, 6, {v(VL)}
    v_cndmask_b32 {v(vARR)}, {v(vARR)}, 0, vcc
    v_mov_b32 {v(vONE)}, 1
    s_lshl_b32 s3, {sW}, 3
    v_add_lshl_u32 {v(vP8)}, {v(vP8)}, s3, 7
    s_mul_i32 s3, {sW}, 7
    v_add_lshl_u32 {v(vP7)}, {v(vP7)}, s3, 7
    s_mul_i32 {sWB}, {sT2}, {8*112}
    s_lshl_b32 s3, {sT1}, 2
    s_add_u32 {sWB}, {sWB}, s3
    s_add_u32 {sWB}, {sWB}, {sW}
    s_lshl_b32 {sWB}, {sWB}, 10
    s_add_u32 {sWB}, {sWB}, {WS_H}
    s_mul_i32 {sDB}, {sW}, {448*896}
    s_lshl_b32 s3, {sCT}, 7
    s_add_u32 {sDB}, {sDB}, s3
    s_and_b32 s3, s2, 7
    s_add_u32 {sRG}, {sCT}, s3
    s_and_b32 s3, {sI2}, 3
    s_lshr_b32 s3, s3, {cfg.gq_sh}
    s_mul_i32 s3, s3, {cfg.gq_mul}
    s_add_u32 {sRG}, {sRG}, s3
    """)
    S += mod7(sRG) if cfg.rot_g else [f"s_mov_b32 {sRG}, 0"]
    S += [f"s_mov_b32 {sR}, {sRG}"]
    for i in range(7):
        S += [f"s_mul_i32 s3, {sR}, {0 if cfg.hack_wd else 57344}", f"s_add_u32 {sDG[i]}, s3, {sDB}"] + (rot_next(sR) if i < 6 else [])
    S += srd_hi(WD, NW) + srd_hi(WS, WS_SIZE) + srd_hi(SK, 4096) + srd_hi(OUT, NQ)
    S += lines(f"""
    s_lshr_b32 {sT2}, {sW}, 1
    s_and_b32 {sKH}, {sW}, 1
    s_lshl_b32 {sM}, s2, 1
    s_add_u32 {sM}, {sM}, {sT2}
    s_lshl_b32 s3, {sM}, 12""") + [f"s_add_u32 s20, s20, s3\n s_addc_u32 s21, s21, 0"] + lines(f"""
    s_mov_b32 {sNL2E}, 0xbfb8aa3b
    s_mov_b32 {sMASK}, 0xffff0000
    s_mov_b32 {sONE}, 1
    """)
    S2 = lines(f"""
    s_mov_b32 {sHS}, {sWB}
    s_lshl_b32 {sU}, {sKH}, 11
    v_add_u32 {v(VSK[0])}, {sU}, {v(V16)}
    v_add_u32 {v(VSK[1])}, -16, {v(VSK[0])}
    v_add_u32 {v(VSK[2])}, 1008, {v(VSK[0])}
    s_mul_i32 {sT0}, {sT2}, {HCCH}
    s_add_u32 {sT0}, {sT0}, {HC}
    s_mul_i32 {sT1}, {sT2}, {UCH}
    s_add_u32 {sT1}, {sT1}, {UL}
    s_add_u32 s3, {sU}, {sT0}
    s_add_u32 s3, s3, 32
    v_add_u32 {v(VHW)}, s3, {v(V16)}
    v_and_b32 {v(T0)}, 15, {v(VL)}
    v_lshrrev_b32 {v(T1)}, 4, {v(VL)}
    v_sub_u32 {v(T2)}, 3, {v(T0)}
    v_and_b32 {v(T2)}, 3, {v(T2)}
    v_add3_u32 {v(T3)}, {v(T0)}, {v(T2)}, 1
    v_lshl_add_u32 {v(T3)}, {v(T1)}, 3, {v(T3)}
    v_lshlrev_b32 {v(T3)}, 1, {v(T3)}
    v_mul_u32_u24 {v(T2)}, {CPY}, {v(T2)}
    s_lshl_b32 s3, {sKH}, 8
    s_add_u32 {sT0}, {sT0}, s3
    v_add3_u32 {v(CA)}, {v(T2)}, {v(T3)}, {sT0}
    v_lshlrev_b32 {v(T0)}, 5, {v(T0)}
    v_lshlrev_b32 {v(T1)}, 4, {v(T1)}
    v_sub_u32 {v(T1)}, {v(T1)}, {v(T0)}
    s_add_u32 s3, s3, {sT1}
    s_add_u32 s3, s3, 480
    v_add_u32 {v(CB)}, s3, {v(T1)}
    s_add_u32 {sPA}, {sT1}, {sU}
    s_lshl_b32 s3, {sM}, 12
    s_add_u32 {sU}, {sU}, s3
    v_mov_b32 {v(VZ)}, 0
    v_mov_b32 {v(VZ+1)}, 0
    v_mov_b32 {v(VZ+2)}, 0
    v_mov_b32 {v(VZ+3)}, 0
    v_lshrrev_b32 {v(T0)}, 5, {v(VL)}
    v_mul_u32_u24 {v(T0)}, {UCH}, {v(T0)}
    v_and_b32 {v(T1)}, 31, {v(VL)}
    v_lshl_add_u32 {v(T0)}, {v(T1)}, 4, {v(T0)}
    v_add_u32 {v(T0)}, {UL+4096}, {v(T0)}
    ds_write_b128 {v(T0)}, {v(VZ,4)}
    v_and_b32 {v(T0)}, 15, {v(VL)}
    v_lshrrev_b32 {v(T1)}, 1, {v(T0)}
    v_mul_u32_u24 {v(T1)}, {CPY}, {v(T1)}
    v_and_b32 {v(T0)}, 1, {v(T0)}
    v_lshl_add_u32 {v(T0)}, {v(T0)}, 4, {v(T1)}
    v_add_u32 {v(VHZ)}, {HC}, {v(T0)}
    s_mul_i32 {sT0}, {sI2}, 224
    s_mul_i32 s3, {sW}, 28
    s_add_u32 {sT0}, {sT0}, s3
    s_lshl_b32 {sT0}, {sT0}, 10
    s_add_u32 {sHL[0]}, {sT0}, {WS_H}
    s_add_u32 {sHL[1]}, {sT0}, {WS_H + 112*1024}
    """)
    skl = [f"buffer_load_dwordx4 {v(HR,4)}, {v(VSK[1])}, {SK}, 0 offen", f"buffer_load_dwordx4 {v(HR+4,4)}, {v(VSK[0])}, {SK}, 0 offen",
           f"buffer_load_dwordx4 {v(HR+8,4)}, {v(VSK[2])}, {SK}, 0 offen", f"buffer_load_dwordx4 {v(HR+12,4)}, {v(VSK[0])}, {SK}, 0 offen offset:1024"]

    VRW = 224; VRR = 225; VUR = 226; VYS = 227; VY = [228, 229]; VQ = [230, 231]; VGA = 232
    EWA = 233; ERA = [234, 235, 236]; EWB = 237; ERB = [238, 239, 240]; EY = 241; EQ = [242, 243]; EO = 244
    VG = [14, 15]; OMG = [8, 9]; RA = HC + 8192; sO = ["s62", "s63"]; sQS = "s66"; sYS = "s93"
    S3 = lines(f"""
    s_lshl_b32 s3, {sW}, 12
    s_add_u32 s3, s3, {HC}
    v_add_u32 {v(VRW)}, s3, {v(V16)}
    v_xor_b32 {v(VRR)}, 4096, {v(VRW)}
    v_and_b32 {v(T3)}, 15, {v(VL)}
    v_lshlrev_b32 {v(T3)}, 5, {v(T3)}
    v_lshrrev_b32 {v(T2)}, 4, {v(VL)}
    v_lshl_add_u32 {v(T3)}, {v(T2)}, 3, {v(T3)}
    s_lshr_b32 s3, {sW}, 1
    s_mul_i32 s3, s3, {UCH}
    s_lshl_b32 {sT0}, {sKH}, 11
    s_sub_u32 s3, s3, {sT0}
    s_add_u32 s3, s3, {UL+504+2048}
    v_sub_u32 {v(VUR)}, s3, {v(T3)}
    v_and_b32 {v(T1)}, 3, {v(VL)}
    v_lshlrev_b32 {v(T1)}, 4, {v(T1)}
    v_bfe_u32 {v(T3)}, {v(VL)}, 2, 2
    v_lshl_add_u32 {v(T1)}, {v(T3)}, 7, {v(T1)}
    v_bfe_u32 {v(T3)}, {v(VL)}, 4, 1
    v_lshl_add_u32 {v(T1)}, {v(T3)}, 9, {v(T1)}
    v_lshrrev_b32 {v(T3)}, 5, {v(VL)}
    v_lshl_add_u32 {v(VYS)}, {v(T3)}, 6, {v(T1)}
    """)
    S3_marks = [0, len(S3)]
    S3 += lines(f"""
    v_lshrrev_b32 {v(T1)}, 3, {v(VL)}
    v_and_b32 {v(T2)}, 7, {v(VL)}
    v_lshlrev_b32 {v(T3)}, 12, {v(T1)}
    v_lshl_add_u32 {v(VY[0])}, {v(T2)}, 4, {v(T3)}
    v_add_u32 {v(VY[1])}, {32768-1024}, {v(VY[0])}
    v_lshrrev_b32 {v(T3)}, 4, {v(VL)}
    v_xor_b32 {v(T2)}, {v(T2)}, {v(T3)}
    v_lshlrev_b32 {v(T2)}, 4, {v(T2)}
    v_mul_u32_u24 {v(T1)}, 896, {v(T1)}
    v_add_u32 {v(VQ[0])}, {v(T1)}, {v(T2)}
    v_xor_b32 {v(T2)}, 64, {v(T2)}
    v_add_u32 {v(T1)}, {7168-1024}, {v(T1)}
    v_add_u32 {v(VQ[1])}, {v(T1)}, {v(T2)}
    s_lshl_b32 s3, {sI2}, 8
    s_add_u32 s3, s3, {WS_G}
    v_and_b32 {v(T1)}, 31, {v(VL)}
    v_lshl_add_u32 {v(VGA)}, {v(T1)}, 2, s3
    s_lshl_b32 s3, {sI2}, 2
    s_add_u32 s3, s3, {sW}
    s_mul_i32 s3, s3, {16*896}
    s_lshl_b32 {sQS}, {sCT}, 7
    s_add_u32 {sQS}, {sQS}, s3
    s_add_u32 {sQS}, {sQS}, {XB}
    """)
    ea = [f"s_mul_i32 {sT0}, {sW}, 6144", f"s_add_u32 s3, {sT0}, {RA}", f"v_add_u32 {v(EWA)}, s3, {v(V16)}", f"v_add_u32 {v(EWB)}, {sM0P}, {v(V16)}"]
    for sg in range(1, 4):
        ea += [f"s_xor_b32 {sT0}, {sW}, {sg}", f"s_mul_i32 s3, {sT0}, 6144", f"s_add_u32 s3, s3, {RA + 2048*(sg-1)}", f"v_add_u32 {v(ERA[sg-1])}, s3, {v(V16)}",
               f"s_mul_i32 s3, {sT0}, {PIECE}", f"s_add_u32 s3, s3, {(sg-1)*SLOT}", f"v_add_u32 {v(ERB[sg-1])}, s3, {v(V16)}"]
    ea += lines(f"""v_bfe_u32 {v(T1)}, {v(VL)}, 2, 2
    v_lshrrev_b32 {v(T2)}, 5, {v(VL)}
    v_lshl_add_u32 {v(T1)}, {v(T2)}, 2, {v(T1)}
    v_lshlrev_b32 {v(T1)}, 7, {v(T1)}
    v_bfe_u32 {v(T3)}, {v(VL)}, 1, 1
    v_lshl_add_u32 {v(T1)}, {v(T3)}, 6, {v(T1)}
    v_bfe_u32 {v(T3)}, {v(VL)}, 4, 1
    v_lshl_add_u32 {v(T1)}, {v(T3)}, 4, {v(T1)}
    v_and_b32 {v(T3)}, 1, {v(VL)}
    v_lshl_add_u32 {v(T1)}, {v(T3)}, 3, {v(T1)}
    s_lshl_b32 s3, {sW}, 11
    s_add_u32 s3, s3, {YL}
    v_add_u32 {v(EY)}, s3, {v(T1)}
    v_and_b32 {v(T1)}, 31, {v(VL)}
    v_bfe_u32 {v(T3)}, {v(VL)}, 1, 3
    s_lshl_b32 s3, {sW}, 1
    v_xor_b32 {v(T3)}, s3, {v(T3)}
    v_lshlrev_b32 {v(T3)}, 4, {v(T3)}
    v_lshl_add_u32 {v(T3)}, {v(T1)}, 7, {v(T3)}
    v_lshl_add_u32 {v(T3)}, {v(T2)}, 3, {v(T3)}
    v_add_u32 {v(EQ[0])}, {QL}, {v(T3)}
    v_xor_b32 {v(EQ[1])}, 16, {v(EQ[0])}
    v_mul_u32_u24 {v(T1)}, 896, {v(T1)}
    v_lshl_add_u32 {v(EO)}, {v(T2)}, 4, {v(T1)}
    s_mul_i32 {sO[0]}, {sI2}, {64*896}
    s_lshl_b32 s3, {sCT}, 2
    s_add_u32 s3, s3, {sW}
    s_lshl_b32 {sT0}, s3, 5
    s_add_u32 {sO[0]}, {sO[0]}, {sT0}
    s_add_u32 {sO[1]}, {sO[0]}, {32*896}
    s_lshl_b32 s3, s3, 16
    s_lshl_b32 {sYS}, {sI2}, 7
    s_add_u32 {sYS}, {sYS}, s3
    s_add_u32 {sYS}, {sYS}, {WS_YT}""")
    S3_marks.append(len(S3))
    S3 += ea + [f"v_add_u32 {v(245)}, 57344, {v(EWB)}"]
    NG = 224
    G = Gaps(NG)
    def item_start(i): return 12 * i if i <= 7 else 84 + 28 * (i - 7)
    gT = lambda T: item_start(T + 4)
    def xread(g):
        if g < 84: c = g // 12; ks = (g % 12) // 3; unit = g % 3; it = c
        else: it = 7 + (g - 84) // 28; k = (g - 84) % 28; ks = k % 4; unit = k // 4
        sl = it % 4; hi = 1 if sl >= 3 else 0
        off = (sl - 3 * hi) * SLOT + 1024 * unit
        return f"ds_read_b128 {v(XRING+4*(g%NXR),4)}, {v(XR[hi][ks])} offset:{off}"
    def wread(c, ks):
        sl = c % 4; var = sl // 2; off = (sl - 2 * var) * SLOT + PIECE * ks; f = 4 * (4 * c + ks)
        return [f"ds_read_b64_tr_b16 {a(f+2*rd,2)}, {v(WR[var])} offset:{off+512*rd}" for rd in range(2)]
    tile_acc = {0: 0, 1: 1, 2: 2, 3: 3, 4: 0, 5: 1, 6: 2, 7: 3}
    for g in range(NG):
        if g < 84: c = g // 12; ks = 4 * c + (g % 12) // 3; T = g % 3
        else: T = 3 + (g - 84) // 28; ks = (g - 84) % 28
        A = v(ACC[tile_acc[T]], 16)
        G.m[g] = f"v_mfma_f32_32x32x16_bf16 {A}, {a(4*ks,4)}, {v(XRING+4*(g%NXR),4)}, {'0' if ks == 0 else A}"
    pre = []
    def at(g, item):
        if g < 0: pre.append(item)
        else: G.put(g, item)
    gB = lambda i: item_start(i) - PD - 1
    if not cfg.hack_p: G.put(cfg.p_load, poll_load("p", "0"))
    G.put(cfg.p_chk, [stamp("prepoll") if not (cfg.pass_stamps or cfg.start_stamps) else [], [] if cfg.hack_p else poll_check("p", "0"), [] if cfg.p_chk in (gB(10), gB(11)) else Ins("s_barrier")])
    for i in range(12):
        at(gB(i), [WaitTag('vm', "it%d" % i), Ins("s_barrier")])
    assert cfg.z_chk < cfg.p_load
    G.put(cfg.z_load, poll_load("z", None))
    G.f[cfg.z_chk].insert(0, [stamp("zpre") if not (cfg.pass_stamps or cfg.start_stamps) else [], poll_check("z", None), stamp("zpost") if not (cfg.pass_stamps or cfg.start_stamps) else []])
    for g in range(NG):
        if g < 84 and g % 3 == 0:
            for s_ in wread(g // 12, (g % 12) // 3): at(g - PD - 1, s_)
        at(g - PD - 1, xread(g))
    cb = cfg.blk_c; deep = cfg.blk_deep and cb is not None
    for c in range(7):
        if deep:
            if c < cb: G.spread(dma_item(c + 2), max(gB(c) + 1, 0), gB(c + 1) + 1)
            if c > cb: G.put(12 * c, Ins("s_barrier")); G.spread(dma_item(c + 3), 12 * c + 1, 12 * c + 12)
        elif c != cb or not cfg.blk_dma: G.spread(dma_item(c + 2), max(gB(c) + 1, 0), gB(c + 1) + 1)
    for T in range(3, 8): G.put(gT(T), ([WaitTag('lgkm', "hcw")] if T == 7 else []) + [Ins("s_barrier")])
    if deep: G.spread(dma_item(10), gT(3) + 1, gT(3) + 20)
    else: G.spread(dma_item(9) + dma_item(10), gB(7) + 1, gB(8) + 1)
    G.spread(dma_item(11), gT(4) + 1, gT(4) + (9 if cfg.n_raw else 20))
    if cfg.wd_touch >= 0: G.put(cfg.wd_touch, f"buffer_load_dword {v(202)}, {v(200)}, {WD}, 0 offen {cfg.sc_wd}")
    for g_, n_ in (cfg.hack_sleep or []): G.put(g_, "s_sleep %d" % n_)
    if cfg.sk_at >= 0: G.spread(skl, cfg.sk_at, cfg.sk_at + 8)
    hv = []
    for rho in range(2):
        R = HR + 8 * rho; C_ = HCP + 12 * rho
        for k in range(4): hv.append(f"v_alignbit_b32 {v(C_+k)}, {v(R+4+k)}, {v(R+3+k)}, 16")
        for k in range(4): hv.append(f"v_mov_b32 {v(C_+4+k)}, {v(R+3+k)}")
        for k in range(4): hv.append(f"v_alignbit_b32 {v(C_+8+k)}, {v(R+3+k)}, {v(R+2+k)}, 16")
    hw = [Ins(f"ds_write_b128 {v(VHZ)}, {v(VZ,4)}", "hcw")]
    for rho in range(2):
        R = HR + 8 * rho; C_ = HCP + 12 * rho
        for cpy, src in enumerate((R + 4, C_, C_ + 4, C_ + 8)):
            hw.append(Ins(f"ds_write_b128 {v(VHW)}, {v(src,4)} offset:{cpy*CPY+1024*rho}", "hcw"))
    def epi(T, packed=False):
        A = ACC[tile_acc[T]]; Pk = PK[T % 2]; L = []
        for grp in range(2):
            g_ = A + 8 * grp; u_ = g_ + 4; E = ET
            if packed:
                E = ET if grp == 0 else HR
                L += [f"v_mul_f32 {v(E+i)}, {sNL2E}, {v(g_+i)}" for i in range(4)]
                L += [f"v_exp_f32 {v(E+i)}, {v(E+i)}" for i in range(4)]
                L += [f"v_pk_mul_f32 {v(u_+2*i,2)}, {v(g_+2*i,2)}, {v(u_+2*i,2)}" for i in range(2)]
                L += [f"v_pk_add_f32 {v(E+2*i,2)}, {v(E+2*i,2)}, 1.0 op_sel_hi:[1,0]" for i in range(2)]
                L += [f"v_rcp_f32 {v(E+i)}, {v(E+i)}" for i in range(4)]
                L += [f"v_pk_mul_f32 {v(u_+2*i,2)}, {v(u_+2*i,2)}, {v(E+2*i,2)}" for i in range(2)]
            else:
                L += [f"v_mul_f32 {v(E+i)}, {sNL2E}, {v(g_+i)}" for i in range(4)]
                L += [f"v_exp_f32 {v(E+i)}, {v(E+i)}" for i in range(4)]
                L += [f"v_mul_f32 {v(u_+i)}, {v(g_+i)}, {v(u_+i)}" for i in range(2)]
                L += [f"v_add_f32 {v(E+i)}, 1.0, {v(E+i)}" for i in range(4)]
                L += [f"v_rcp_f32 {v(E+i)}, {v(E+i)}" for i in range(4)]
                L += [f"v_mul_f32 {v(u_+i)}, {v(g_+i)}, {v(u_+i)}" for i in range(2, 4)]
                L += [f"v_mul_f32 {v(u_+i)}, {v(u_+i)}, {v(E+i)}" for i in range(4)]
            L += [f"v_cvt_pk_bf16_f32 {v(Pk+2*grp+i)}, {v(u_+2*i)}, {v(u_+2*i+1)}" for i in range(2)]
        L.append(f"s_lshl2_add_u32 {sSO2}, {sTO[T]}, {sHS}")
        L.append(Ins(f"buffer_store_dwordx4 {v(Pk,4)}, {v(V16)}, {WS}, {sSO2} offen {cfg.sc_h}", "hst"))
        return L
    page_slot = [0, 1, 2, 3]
    def wd_page(n): return n if n < 21 else (n - 21 if n < 28 else (n - 7 if n < 35 else (n - 28 if n < 49 else n - 49)))
    def wd_prev(n): return n - 21 if 21 <= n < 28 else (n - 28 if n >= 35 else None)
    def wd_dma(n0, n1):
        L = []; n = n0
        while n < n1:
            p = wd_page(n); cnt = min(4, n1 - n, 7 - p % 7, 8 - n % 8)
            lds = page_slot[p // 7] * SLOT + 1024 * (p % 7)
            for k in range(cnt):
                it = [Ins(f"buffer_load_dwordx4 {v(VD[k])}, {WD}, {sSO} offen offset:{1024*k} {cfg.sc_wd} lds", "wd%d" % (n + k))]
                if wd_prev(n + k) is not None: it = [WaitTag('lgkm', "wr%d" % wd_prev(n + k))] + it
                if k == 0: L.append(f"s_add_u32 m0, {sM0P}, {lds}\n s_add_u32 {sSO}, {sDG[n >> 3]}, {7168*(n % 8)}")
                L.append(it)
            n += cnt
        return L
    def wd_read(n, dst):
        p = wd_page(n); sl = page_slot[p // 7]; hi = 1 if sl >= 2 else 0
        off = (sl - 2 * hi) * SLOT + 1024 * (p % 7)
        return [[WaitTag('vm', "wd%d" % n)] * (dt == 0 and not 28 <= n < 28 + cfg.n_raw) + [Ins(f"ds_read_b64_tr_b16 {dst(dt)}, {v(DR[hi][dt])} offset:{off}", "wr%d" % n)] for dt in range(2)]
    WD1 = 112
    NR = cfg.n_raw; RAW0 = 224 - 4 * NR; EWH = 245
    def raw_reg(n): return RAW0 + 4 * (NR - 1 - (n - 28))
    def raw_loads(n0, n1):
        L = []; n = n0
        while n < n1:
            cnt = min(4, n1 - n, 8 - n % 8)
            L.append(f"s_add_u32 {sSO}, {sDG[n >> 3]}, {7168*(n % 8)}")
            L += [f"buffer_load_dwordx4 {v(raw_reg(n+k),4)}, {v(VD[k])}, {WD}, {sSO} offen offset:{1024*k}" for k in range(cnt)]
            n += cnt
        return L
    def raw_write(n):
        p = wd_page(n); off = page_slot[p // 7] * SLOT + 1024 * (p % 7)
        it = [Ins(f"ds_write_b128 {v(EWB if off < 57344 else EWH)}, {v(raw_reg(n),4)} offset:{off if off < 57344 else off - 57344}", "ww%d" % n)]
        return [it]
    def fill_units(n0, n1):
        m = min(max(28 + NR, n0), n1)
        return [x for n in range(n0, m) for x in raw_write(n)] + wd_dma(m, n1)
    def wd1(n): return lambda dt: a(WD1 + 8 * (n >> 1) + 4 * dt + 2 * (n & 1), 2)
    def wd_reads(n0, n1): return [x for n in range(n0, n1) for x in wd_read(n, wd1(n))]
    if cfg.blk_c is None:
        if cfg.s3_at >= 0: l3_ = G.pour(S3, cfg.s3_at, cfg.hv_at, cfg.bud1); assert l3_ < 80
        lh = G.pour(hv, cfg.hv_at, max(80, cfg.hv_at + 24), cfg.bud1 if cfg.hv_at < 70 else 20); assert lh < cfg.hw0
        G.spread(hw, cfg.hw0, cfg.hw1)
    else:
        n3 = len(S3) - (S3_marks + [len(S3)])[3 - cfg.blk_s3]; S3b = S3[len(S3) - n3:]; del S3[len(S3) - n3:]
        work = [hw[0], hv[0:4], hw[1], hv[4:8], hw[2], hv[8:12], hw[3], hv[12:16], hw[4], hv[16:20], hw[5], hv[20:24], hw[6], S3b[:5], hw[7], S3b[5:10], hw[8], S3b[10:]]
        d_ = dma_item(cfg.blk_c + 2) if cfg.blk_dma else []; blk = []
        if deep:
            G.spread(d_[:4], gB(cb) + 1, 12 * cb); d_ = d_[4:] + dma_item(cb + 3); blk = [Ins("s_barrier")]
        step_ = max(len(work) // (len(d_) + 1), 1)
        for j, it in enumerate(work):
            if j % step_ == 0 and d_: blk.append(d_.pop(0))
            blk.append(it)
        if cfg.blk_list:
            done_ = 0
            for g_, nw_ in cfg.blk_list:
                k_ = min(len(blk), done_ + 2 * nw_) if (g_, nw_) != cfg.blk_list[-1] else len(blk)
                G.put(g_, blk[done_:k_]); done_ = k_
        elif cfg.blk_g2: G.put(cfg.blk_g, blk[:9]); G.put(cfg.blk_g2, blk[9:])
        else: G.put(12 * cb if deep else (gB(cb) + 1 if cfg.blk_dma else cfg.blk_g), blk + d_)
    if NR:
        r0, r1, r2 = 28, 28 + min(NR, 6), 28 + min(NR, 6 + (NR - 6 + 1) // 2)
        assert cfg.hw1 <= gT(5) + 8 or NR <= 6
        G.spread(raw_loads(r0, r1), gT(4) + 21 - 12, gT(5))
        G.spread(wd_dma(0, 7), gT(5) + 1, gT(5) + 15); G.spread(raw_loads(r1, r2), gT(5) + 15, gT(6))
        G.spread(wd_dma(7, 14), gT(6) + 1, gT(6) + 15); G.spread(raw_loads(r2, 28 + NR), gT(6) + 15, gT(7))
    else:
        G.spread(wd_dma(0, 7), gT(5) + 1, gT(5) + 22)
        G.spread(wd_dma(7, 14), gT(6) + 1, gT(6) + 20)
    UD = ([f"s_mov_b32 m0, {sPA}\n s_add_u32 {sSO}, {sU}, {WS_UR if not cfg.hack_p else 0x900000}"] + [Ins(f"buffer_load_dwordx4 {v(V16)}, {WS}, {sSO} offen offset:{1024*j} sc1 lds", "u") for j in range(2)])
    G.spread(wd_reads(0, 7), gB(11) + 2, gT(7) + 12)
    if cfg.p_chk > gT(7) + 8:
        G.spread(wd_dma(14, 21), gT(7) + 1, cfg.p_chk)
        G.put(cfg.p_chk + 1, UD)
        G.spread(wd_dma(21, 28), cfg.p_chk + 2, NG - 1)
    else:
        assert cfg.p_chk in (gB(10), gB(11))
        G.put(cfg.p_chk + 4, UD)
        G.spread(wd_dma(14, 28), gT(7) + 1, NG - 1)
    bounds = [84 + 2 + (140 - 4) * k // 7 for k in range(8)]
    last = 0
    for T in range(7):
        g0 = max(bounds[T], (84 if T < 3 else gT(T + 1)) + 2, last)
        last = G.pour(epi(T), g0, max(bounds[T + 1], g0 + 1), cfg.bud)
        nxt = [t for t in range(T + 1, 8) if tile_acc[t] == tile_acc[T]]
        if nxt: assert last < gT(nxt[0]), (T, last)
    check_m0(G)
    SS = S + S2; k0 = len(SS) * min(cfg.late_pos, 100) // 100
    touch = []
    if cfg.x_touch:
        touch = lines(f"""v_min_u32 {v(200)}, {8*cfg.x_touch-1}, {v(VL)}
        v_lshrrev_b32 {v(201)}, 3, {v(200)}
        s_lshl_b32 s3, {sFQ}, 1
        s_add_u32 s3, s3, 3
        v_add_u32 {v(201)}, {'s3' if cfg.rot_t else '3'}, {v(201)}
        v_and_b32 {v(201)}, 7, {v(201)}
        v_mul_u32_u24 {v(201)}, 28672, {v(201)}
        v_and_b32 {v(200)}, 7, {v(200)}
        v_mul_u32_u24 {v(200)}, 896, {v(200)}
        v_add3_u32 {v(200)}, {v(200)}, {v(201)}, {sXBc}
        buffer_load_dword {v(202)}, {v(200)}, {X}, {sCH[0]} offen""")
    kvt = lines(f"""s_lshl_b32 s3, s2, 2
    s_add_u32 s3, s3, {sW}
    s_lshl_b32 s3, s3, 4
    v_min_u32 {v(203)}, 15, {v(VL)}
    v_add_lshl_u32 {v(203)}, {v(203)}, s3, 7
    global_load_dword {v(204)}, {v(203)}, s[94:95]
    global_load_dword {v(205)}, {v(203)}, s[96:97]""")
    if cfg.kv_touch == 0: P.add(kvt)
    P.add(SS[:k0])
    if cfg.late_pos <= 100: P.add(late_first)
    P.add(SS[k0:])
    if cfg.kv_touch == 1: P.add(kvt)
    if cfg.s3_at < 0: P.add(S3)
    if cfg.late_pos > 100: P.add(late_first)
    if cfg.kv_touch == 2: P.add(kvt)
    if cfg.trace: P.e('v_mov_b32 v253, 0')
    P.e(f"""s_lshl_b32 s3, s2, 2
    s_add_u32 s3, s3, {sW}
    s_mul_i32 s3, s3, 14
    v_min_u32 {v(200)}, 13, {v(VL)}
    v_add_lshl_u32 {v(200)}, {v(200)}, s3, 7""")
    if cfg.sk_at < 0: P.add(skl)
    if cfg.tlb:
        P.e(f"""v_min_u32 {v(203)}, 12, {v(VL)}
        v_lshlrev_b32 {v(203)}, 20, {v(203)}
        v_add_u32 {v(203)}, 0x1f000, {v(203)}
        buffer_load_dword {v(204)}, {v(203)}, {WS}, 0 offen
        buffer_load_dword {v(205)}, {v(VZ)}, {OUT}, 0 offen
        buffer_load_dword {v(206)}, {v(VZ)}, {WD}, 0 offen""")
    if cfg.wd_touch == -2: P.e(f"buffer_load_dword {v(202)}, {v(200)}, {WD}, 0 offen {cfg.sc_wd}")
    if cfg.warm and cfg.stub_at:
        P.e("s_mov_b64 exec, 0")
        for k in range(min(4, len(cfg.stub_at))): P.e(f"s_cmp_eq_u32 {sW}, {k}\n s_cbranch_scc1 L_pg{k}")
        P.e("L_pgback:\n s_mov_b64 exec, -1")
    if cfg.start_stamps: P.add(stamp("setup"))
    P.e(f"""s_waitcnt lgkmcnt(0)
    s_lshl_b32 s3, {sD}, 16
    s_and_b32 {sD}, {sD}, 0xffff0000
    s_cmp_lt_u32 {sW}, 2
    s_cselect_b32 {sD}, s3, {sD}""")
    P.add(pre)
    P.add(stamp("g1start"))
    G.put(83, stamp("p1end"))
    if cfg.pass_stamps:
        for T in (5, 6, 7): G.put(gT(T) - 1, stamp("T%d" % T))
    add_trace(G, 6, 'g', [94, 96])
    G.emit(P, cfg.pair)
    if cfg.verbose: print("G1 gap costs", G.costs())
    if cfg.start_stamps: P.e("v_readfirstlane_b32 s8, v156\n v_readfirstlane_b32 s10, v157"); STAMP_REGS['prewait'] = 8; STAMP_REGS['karg'] = 10
    P.add(stamp("g1end"))
    CACC = 48
    def cA(buf, a_): return (0 if buf == 0 else 64) + 4 * a_
    def cB(buf, b_):
        i = 32 + 4 * b_ if buf == 0 else 96 + 4 * b_
        return i if i < 112 else 224 + (i - 112)
    def crA(st, k): return [f"ds_read_b64 {a(cA(st&1,k)+2*rd,2)}, {v(CA)} offset:{512*k+64*st+8*rd}" for rd in range(2)]
    def crB(st, k): return [f"ds_read_b128 {a(cB(st&1,k),4)}, {v(CB)} offset:{64*st+512*(7-k)}"]
    def creads(st): return [x for k in range(8) for x in crB(st, k) + crA(st, k)]
    e7 = epi(7, True); ra = [x for k in range(8) for x in crA(0, k)]
    P.add(ra[:10]); k = 10
    for j, it in enumerate(e7):
        P.add(it)
        if j % 6 == 5 and k < 16: P.add(ra[k]); k += 1
    P.add(ra[k:])
    P.vmwait("u"); P.e("s_barrier")
    for k in range(8): P.add(crB(0, k))
    hg = [f"s_lshr_b32 s3, {sI2}, 2", "s_mul_i32 s3, s3, 28", f"s_add_u32 s3, s3, 256", f"s_lshl_b32 {sPA}, s3, 7",
          f"s_lshl_b32 {sRG}, {sRG}, 12", f"s_add_u32 {sXB}, {sHL[0]}, {sRG}", f"s_add_u32 {sHE}, {sHL[0]}, {28*1024}"]
    d0 = fill_units(28, 35)
    npre = 0 if NR else 3
    P.add(d0[:npre])
    P.add(stamp("cstart"))
    C = Gaps(144)
    pairs = [(t, a_) for t in range(8) for a_ in range(t + 1)]
    for st in range(4):
        for j, (t, a_) in enumerate(pairs):
            A = v(CACC + 4 * t, 4)
            C.m[36 * st + j] = f"v_mfma_f32_16x16x32_bf16 {A}, {a(cA(st&1,a_),4)}, {a(cB(st&1,t-a_),4)}, {'0' if (st == 0 and a_ == 0) else A}"
        if st < 3: C.spread(creads(st + 1), 36 * st + 1, 36 * st + 33)
    HRING = 96; NHR = 32
    horder = [(0, ks) for ks in range(28)] + [(1, ks) for ks in (list(range(14, 28)) + list(range(14)) if cfg.b_rev else range(28))]
    def hload(n):
        st, ks = horder[n]; L = []
        if n == 28: L += [f"s_add_u32 {sXB}, {sHL[1]}, {sRG}", f"s_add_u32 {sHE}, {sHL[1]}, {28*1024}"]
        elif n > 0 and ks % 4 == 0: L += [f"s_add_u32 {sXB}, {sXB}, 4096", f"s_cmp_eq_u32 {sXB}, {sHE}\n s_cselect_b32 {sXB}, {sHL[st]}, {sXB}"]
        L.append(f"buffer_load_dwordx4 {v(HRING+4*(n%NHR),4)}, {v(V16)}, {WS}, {sXB} offen offset:{1024*(ks%4)} sc1")
        return L
    w0, w1, w2, w3 = cfg.c_wd
    C.spread(d0[npre:], 0, w0)
    C.spread(wd_reads(7, 14), 2, w0 - 2); C.spread(fill_units(35, 42), w0, w1)
    C.spread(wd_reads(14, 21), w0, w1 - 2); C.spread(fill_units(42, 49), w1, w2)
    C.spread(wd_reads(21, 28), w1, w2 - 2); C.spread(wd_dma(49, 56), w2, w3)
    C.put(cfg.g_arrive, arrive("hst", sFL))
    lh_ = C.pour(hg, 40, cfg.g_poll - 4, 10); assert lh_ < cfg.g_poll
    C.put(cfg.g_poll, poll_load("h", sPA))
    C.put(cfg.g_chk, [stamp("c_pre"), poll_check("h", sPA), stamp("c_post")])
    NH = cfg.nh_c
    C.spread([hload(n) for n in range(NH)], cfg.g_chk + 1, 144)
    RR = 48; UU = 18; DU = 80
    ce = [f"s_add_u32 {sU}, {sU}, {WS_YT}"]
    ce += [f"ds_read_b64 {v(UU+2*tau,2)}, {v(VUR)} offset:{512*(3-tau)}" for tau in range(4)]
    for tau in range(4):
        ce += lines(f"""
        v_and_b32 {v(DU+4*tau+0)}, {sMASK}, {v(UU+2*tau+1)}
        v_lshlrev_b32 {v(DU+4*tau+1)}, 16, {v(UU+2*tau+1)}
        v_and_b32 {v(DU+4*tau+2)}, {sMASK}, {v(UU+2*tau)}
        v_lshlrev_b32 {v(DU+4*tau+3)}, 16, {v(UU+2*tau)}""")
    lr = C.pour(ce[:5], max(lh_ + 1, 104), 112, 8); assert lr < cfg.c_bar - 4
    lc = C.pour(ce[5:], lr + 6, 140, 8)
    assert lc < 140
    C.put(cfg.c_bar, [WaitRegs(a(cA(1, 7), 4)), WaitRegs(v(UU, 8)), Ins("s_barrier")])
    check_m0(C, 1024)
    add_trace(C, 12, 'c', [94, 96])
    C.emit(P)
    if cfg.verbose: print("C gap costs", C.costs())
    hq = [hload(n) for n in range(NH, NH + cfg.nh_e)]; NH += cfg.nh_e
    def hnext():
        if hq: P.add(hq.pop(0))
    hnext()
    dfma = lambda base: [f"v_pk_fma_f32 {v(DU+2*k,2)}, s[78:79], {v(DU+2*k,2)}, {v(base+2*k,2)} op_sel_hi:[0,1,1]" for k in range(8)]
    P.e(f"s_cmp_eq_u32 {sKH}, 0\n s_cbranch_scc1 L_cw0")
    for tau in range(4): P.e(f"ds_write_b128 {v(VRW)}, {v(CACC+4*tau,4)} offset:{1024*tau}", nocount=True)
    P.add(dfma(CACC + 16))
    P.e("s_branch L_cw1\n L_cw0:\n s_nop 2")
    for tau in range(4): P.e(f"ds_write_b128 {v(VRW)}, {v(CACC+16+4*tau,4)} offset:{1024*tau}")
    P.add(dfma(CACC))
    P.e("L_cw1:")
    while hq: hnext()
    P.e("s_waitcnt lgkmcnt(0)\n s_barrier")
    ct_ = [f"ds_read_b128 {v(RR+4*tau,4)}, {v(VRR)} offset:{1024*tau}" for tau in range(4)]
    P.add(ct_); ct_ = []
    for pi in range(2):
        if cfg.c_tail_in_g2: ct_ += [f"v_add_f32 {v(DU+8*pi+k)}, {v(DU+8*pi+k)}, {v(RR+8*pi+k)}" for k in range(8)]
        else: ct_ += [f"v_pk_add_f32 {v(DU+8*pi+2*k,2)}, {v(DU+8*pi+2*k,2)}, {v(RR+8*pi+2*k,2)}" for k in range(4)]
        ct_ += [f"v_cvt_pk_bf16_f32 {v(UU+4*pi+k)}, {v(DU+8*pi+2*k)}, {v(DU+8*pi+2*k+1)}" for k in range(4)]
    for pi in range(2):
        ct_ += [f"v_permlane16_swap_b32 {v(UU+4*pi)}, {v(UU+4*pi+2)}", f"v_permlane16_swap_b32 {v(UU+4*pi+1)}, {v(UU+4*pi+3)}"]
        ct_ += [Ins(f"buffer_store_dwordx4 {v(UU+4*pi,4)}, {v(VYS)}, {WS}, {sU} offen offset:{1024*pi} sc1", "yst")]
    if not cfg.c_tail_in_g2: P.add(ct_); ct_ = []
    P.add(stamp("g2start"))
    GACC = 0; JIT = 64; NJ = 8
    G2 = Gaps(112)
    jn = 0
    for n in range(56):
        st, ks = horder[n]
        for dt in range(2):
            A = a(GACC + 32 * st + 16 * dt, 16)
            if ks < 14: W_ = a(WD1 + 8 * ks + 4 * dt, 4)
            else:
                r_ = JIT + 4 * (jn % NJ); jn += 1; W_ = a(r_, 4)
                for rd in range(2):
                    G2.put(2 * n + dt - 6, wd_read(2 * ks + rd, lambda d_, r_=r_, rd=rd: a(r_ + 2 * rd, 2))[dt])
            G2.m[2 * n + dt] = f"v_mfma_f32_32x32x16_bf16 {A}, {W_}, {v(HRING+4*(n%NHR),4)}, {'0' if n in (0, 28) else A}"
    reserved = sorted([8, 10] * bool(cfg.c_tail_in_g2) + list(cfg.q_at[:2]) + [cfg.g2_chk + 2, cfg.g2_chk + 4])
    t_ = 0.0; n = NH; la = []
    while n < 56:
        if reserved and reserved[0] <= t_ + cfg.g2_hpace / 2: reserved.pop(0); t_ += cfg.g2_hpace; continue
        g = int(t_)
        if n >= NHR: assert g >= 2 * (n - NHR) + 1
        la.append(2 * n - g); G2.put(g, hload(n)); n += 1; t_ += cfg.g2_hpace
    if cfg.verbose: print("H lookahead (gaps)", la)
    assert min(la) >= 8, la
    lt = G2.pour(ct_, 1, 10, 24) if ct_ else 0
    e1 = lines(f"""
    s_lshl_b32 s3, s2, 7
    s_add_u32 {sFL}, s3, {512*128}
    s_lshl_b32 s3, {sCT}, 12
    s_add_u32 {sPA}, s3, {512*128}
    """)
    l1 = G2.pour(e1, lt, lt + 8, 24); assert l1 <= cfg.g2_arrive
    G2.put(cfg.g2_arrive, [WaitTag('vm', "q"), arrive("yst", sFL)])
    qd = [f"s_lshl_b32 {sT1}, {sW}, 11\n s_add_u32 m0, {sT1}, {QL}"]
    qd += [Ins(f"buffer_load_dwordx4 {v(VQ[j])}, {X}, {sQS} offen offset:{1024*j} lds", "q") for j in range(2)]
    qd += [f"buffer_load_dword {v(VG[j])}, {v(VGA)}, {WS}, 0 offen offset:{128*j} sc1" for j in range(2)]
    G2.put(cfg.q_at[0] - 1, qd[0])
    for q_, g_ in zip(qd[1:], cfg.q_at): G2.put(g_, q_)
    def sends(st, addr):
        return [Ins(f"ds_write_b128 {addr(sg, jj)[0]}, {a(GACC+32*st+16*(sg>>1)+8*(sg&1)+4*jj,4)} offset:{addr(sg, jj)[1]}", "rw%d" % st) for sg in range(1, 4) for jj in range(2)]
    G2.spread(sends(0, lambda sg, jj: (v(EWA), 2048 * (sg - 1) + 1024 * jj)), 59, cfg.g2_chk - 1)
    G2.put(cfg.g2_poll, poll_load("y", sPA))
    G2.put(cfg.g2_chk, [stamp("g2_pre"), poll_check("y", sPA), WaitTag('lgkm', "rw0"), Ins("s_barrier"), [] if cfg.pass_stamps else stamp("g2_post")])
    yd = [f"s_add_u32 m0, {sT1}, {YL}"]
    yd += [Ins(f"buffer_load_dwordx4 {v(VY[j])}, {WS}, {sYS} offen offset:{1024*j} sc1 lds", "y") for j in range(2)]
    G2.put(cfg.g2_chk + 1, yd[0]); G2.put(cfg.g2_chk + 2, yd[1]); G2.put(cfg.g2_chk + 4, yd[2])
    QQ = 48; TT = 56; BB = 72; RX = 80; YY = 18; O = 48
    RP = [80, 84, 88, 92, 28 + 0, 28 + 0]
    un = lambda i, d, s_: (f"v_lshlrev_b32 {d}, 16, {s_}" if i % 2 == 0 else f"v_and_b32 {d}, {sMASK}, {s_}")
    p0 = [f"ds_read_b64 {v(QQ+4*st+2*J,2)}, {v(EQ[J])} offset:{4096*st}" for st in range(2) for J in range(2)]
    p0 += [f"v_sub_f32 {v(OMG[st])}, 1.0, {v(VG[st])}" for st in range(2)] + [[], []]
    p0 += [un(k, v(TT + k), v(QQ + (k >> 1))) for k in range(16)]
    p0 += [f"v_mul_f32 {v(TT+k)}, {v(TT+k)}, {v(VG[k>>3])}" for k in range(16)]
    l0 = G2.pour(p0, cfg.g2_arrive + 1, 60, 22); assert l0 < cfg.g2_chk
    p1 = [f"ds_read_b128 {v(RX+4*jj,4)}, {v(ERA[0])} offset:{1024*jj}" for jj in range(2)]
    p1 += [f"ds_read_b128 {v(RX+8+4*jj,4)}, {v(ERA[1])} offset:{1024*jj}" for jj in range(2)]
    p1 += [f"v_accvgpr_read_b32 {v(BB+k)}, {a(GACC+k)}" for k in range(8)]
    p1 += [f"v_add_f32 {v(BB+k)}, {v(BB+k)}, {v(RX+k)}" for k in range(8)]
    p1 += [f"ds_read_b128 {v(RX+4*jj,4)}, {v(ERA[2])} offset:{1024*jj}" for jj in range(2)]
    p1 += [f"v_add_f32 {v(BB+k)}, {v(BB+k)}, {v(RX+8+k)}" for k in range(8)]
    p1 += [f"v_add_f32 {v(BB+k)}, {v(BB+k)}, {v(RX+k)}" for k in range(8)]
    p1 += [f"v_mul_f32 {v(BB+k)}, {v(BB+k)}, {v(OMG[0])}" for k in range(8)]
    l3 = G2.pour(p1, cfg.g2_chk + 1, cfg.g2_pre - 1, 24); assert l3 <= cfg.g2_pre + 4, l3
    p2 = [[WaitTag('vm', "y"), Ins("s_barrier")]]
    p2 += [f"ds_read_b64_tr_b16 {v(YY+4*st+2*J,2)}, {v(EY)} offset:{1024*J+32*st}" for st in range(2) for J in range(2)]
    p2 += [[], [], []]
    p2 += [un(k, v(RX + k), v(YY + (k >> 1))) for k in range(8)]
    p2 += [f"v_fmac_f32 {v(BB+k)}, {v(TT+k)}, {v(RX+k)}" for k in range(8)]
    p2 += [f"v_cvt_pk_bf16_f32 {v(O+k)}, {v(BB+2*k)}, {v(BB+2*k+1)}" for k in range(4)]
    p2 += [un(k, v(RX + k), v(YY + (k >> 1))) for k in range(8, 16)]
    p2 += [f"v_permlane32_swap_b32 {v(O)}, {v(O+2)}", f"v_permlane32_swap_b32 {v(O+1)}, {v(O+3)}"]
    p2 += [f"buffer_store_dwordx4 {v(O,4)}, {v(EO)}, {OUT}, {sO[0]} offen {cfg.sc_out}"]
    p2 += [f"v_mul_f32 {v(TT+k)}, {v(TT+k)}, {v(RX+k)}" for k in range(8, 16)]
    p2 += [f"v_mov_b32 {v(T1)}, {v(OMG[1])}", f"v_mov_b32 {v(T2)}, {v(OMG[1])}"]
    G2.pour(p2, max(l3, cfg.g2_pre), 111, 24)
    check_m0(G2)
    add_trace(G2, 8, 'h', [94, 96])
    G2.emit(P, 2)
    if cfg.verbose: print("G2 gap costs", G2.costs())
    P.add(stamp("g2end"))
    R1 = 96; O2 = 52
    w_ = sends(1, lambda sg, jj: (v(EWB), (sg - 1) * SLOT + 1024 * jj))
    P.add(w_[:2])
    for k in range(8): P.e(f"v_accvgpr_read_b32 {v(BB+k)}, {a(GACC+32+k)}")
    P.add(w_[2:])
    P.e("s_waitcnt lgkmcnt(0)\n s_barrier")
    for jj in range(2):
        for sg in range(1, 4): P.e(f"ds_read_b128 {v(R1+8*(sg-1)+4*jj,4)}, {v(ERB[sg-1])} offset:{1024*jj}")
    for jj in range(2):
        for sg in range(3):
            for i in range(2): P.e(f"v_pk_add_f32 {v(BB+4*jj+2*i,2)}, {v(BB+4*jj+2*i,2)}, {v(R1+8*sg+4*jj+2*i,2)}")
        for i in range(2): P.e(f"v_pk_fma_f32 {v(BB+4*jj+2*i,2)}, {v(BB+4*jj+2*i,2)}, {v(T1,2)}, {v(TT+8+4*jj+2*i,2)}")
        for i in range(2): P.e(f"v_cvt_pk_bf16_f32 {v(O2+2*jj+i)}, {v(BB+4*jj+2*i)}, {v(BB+4*jj+2*i+1)}")
    P.e(f"v_permlane32_swap_b32 {v(O2)}, {v(O2+2)}\n v_permlane32_swap_b32 {v(O2+1)}, {v(O2+3)}")
    P.e(f"buffer_store_dwordx4 {v(O2,4)}, {v(EO)}, {OUT}, {sO[1]} offen {cfg.sc_out}")
    if cfg.stamps: emit_stamps(P)
    if cfg.fixdur:
        P.e(f"""L_fix:
        s_memrealtime s[4:5]
        s_waitcnt lgkmcnt(0)
        s_sub_u32 s4, s4, s100
        s_cmp_lt_i32 s4, {cfg.fixdur}
        s_cbranch_scc1 L_fix""")
    P.e("s_endpgm")

def check_m0(G, init=None):
    flat = []
    def fl(it):
        if isinstance(it, str):
            for l in lines(it): flat.append(Ins(l))
        elif isinstance(it, (list, tuple)):
            for x in it: fl(x)
        elif isinstance(it, Ins): flat.append(it)
    for f in G.f:
        for it in f: fl(it)
    last_off = init
    for it in flat:
        if it.kind == 'salu' and ('s', 'm0') in it.w: last_off = -1024
        if it.kind == 'dma':
            m = re.search(r'offset:(\d+)', it.text); off = int(m.group(1)) if m else 0
            assert last_off is not None and off == last_off + 1024, ("m0 group interleaved", it.text)
            last_off = off

def emit_stamps(P):
    P.e("s_waitcnt vmcnt(0)")
    P.e("s_memtime s[4:5]\n s_memrealtime s[6:7]\n s_waitcnt lgkmcnt(0)")
    n = len(stamp_names)
    for k in range(n):
        P.e(f"s_sub_u32 s3, s{STAMP_REGS[stamp_names[k]]}, {'s100' if cfg.rt else 's98'}"); P.e(f"v_mov_b32 v{200+k}, s3")
    P.e(f"s_sub_u32 s3, {'s6, s100' if cfg.rt else 's4, s98'}\n v_mov_b32 v{200+n}, s3")
    P.e(f"""s_lshl_b32 s3, s2, 2
    s_add_u32 s3, s3, {sW}
    s_lshl_b32 s3, s3, 7
    s_add_u32 s3, s3, {WS_STAMP}
    v_mov_b32 v229, 0
    v_mov_b32 v230, s100
    v_mov_b32 v231, s6
    v_mov_b32 v2, 0
    s_mov_b64 exec, 1""")
    for k in range(8): P.e(f"buffer_store_dwordx4 v[{200+4*k}:{203+4*k}], v2, {WS}, s3 offen offset:{16*k}")
    if cfg.trace:
        P.e(f"""s_mov_b64 exec, -1
        v_subrev_u32 v254, s98, v254
        v_subrev_u32 v255, s98, v255
        s_lshl_b32 s3, s2, 2
        s_add_u32 s3, s3, {sW}
        s_lshl_b32 s3, s3, 9
        s_add_u32 s3, s3, {WS_STAMP + 0x40000}
        v_lshlrev_b32 v2, 2, v1
        buffer_store_dword v254, v2, {WS}, s3 offen
        v_readlane_b32 s4, v253, 0
        v_readlane_b32 s5, v253, 1
        v_readlane_b32 s6, v253, 2
        v_readlane_b32 s7, v253, 3
        s_nop 3
        v_writelane_b32 v255, s4, 60
        v_writelane_b32 v255, s5, 61
        v_writelane_b32 v255, s6, 62
        v_writelane_b32 v255, s7, 63
        buffer_store_dword v255, v2, {WS}, s3 offen offset:256""")

def gen_aux(P0):
    P = P0
    K, V_, SH, GW = "s[40:43]", "s[44:47]", "s[48:51]", "s[52:55]"
    sA = "s68"; sST = "s69"; sUS = "s70"; sLO = "s71"; sHI = "s72"; sC = "s73"; sC2 = "s74"; sTA = ["s56", "s57"]; sTW = ["s58", "s59"]
    VL = 1; T0 = 2; T1 = 3; VZA = 4; VB = 5; VB2 = 6; VM = 7; VX = 8; VR = 9; VS = 11; VW = 12; VWt = [13, 14]; VRB = 16; VQ = 20; VQ2 = 21; VGW = 22
    KP = [48, 58]; VP = [68, 76]; WR_ = [84, 86]; WT = [88, 94]; OO = 100; UV = 108; OUT_ = 124; RB = 160; PF = 24
    TS = 17408
    P.e("s_cmp_lt_u32 s2, 256\n s_cbranch_scc1 L_auxgo\n s_endpgm\n L_auxgo:")
    for reg, off in ((K, 8), (V_, 16), (SH, 24), (GW, 80)): P.e(ldptr(reg, off))
    P.add(srd_hi(K, NQ) + srd_hi(V_, NQ) + srd_hi(SH, 3584) + srd_hi(X, NQ) + srd_hi(GW, 896) + srd_hi(WS, WS_SIZE) + srd_hi(WD, NW))
    P.e(f"""
    s_sub_u32 {sA}, s2, 224
    s_mul_i32 {sSO}, {sA}, {64*896}
    s_mul_i32 {sST}, {sW}, 40960
    s_lshl_b32 {sTA[0]}, {sW}, 7
    s_add_u32 {sTA[1]}, {sTA[0]}, 512
    s_lshl_b32 {sTW[0]}, {sW}, 9
    s_add_u32 {sTW[1]}, {sTW[0]}, 2048
    v_lshrrev_b32 {v(T0)}, 3, {v(VL)}
    v_and_b32 {v(T1)}, 7, {v(VL)}
    v_mul_u32_u24 {v(VB)}, 896, {v(T0)}
    v_lshl_add_u32 {v(VB)}, {v(T1)}, 4, {v(VB)}
    v_add_u32 {v(VB)}, {sSO}, {v(VB)}
    v_add_u32 {v(VB2)}, 6144, {v(VB)}
    v_add_u32 {v(VM)}, -7168, {v(VB)}
    v_lshlrev_b32 {v(VX)}, 3, {v(VL)}
    s_mul_i32 s3, {sA}, {24*128}
    v_lshlrev_b32 {v(VZA)}, 7, {v(VL)}
    v_add_u32 {v(VZA)}, s3, {v(VZA)}
    v_mov_b32 {v(vARR)}, -16
    v_cmp_gt_u32 vcc, 24, v0
    v_mov_b32 {v(vZERO)}, 0
    v_cndmask_b32 {v(VZA)}, {v(vARR)}, {v(VZA)}, vcc
    v_cmp_eq_u32 vcc, 0, v0
    v_mov_b32 {v(vONE)}, 1
    s_waitcnt lgkmcnt(0)
    v_cndmask_b32 {v(vARR)}, {v(vARR)}, 0, vcc
    s_mov_b32 s34, 256
    s_mov_b32 s35, 0x20000
    """)
    def dset(k, j):
        b = TS * k; tag = "pin%d%d" % (k, j); L = []
        L.append([f"s_add_u32 {sC}, {sTA[k]}, {14336*j}\n s_add_u32 m0, {sST}, {b+1024+2048*j}", Ins(f"buffer_load_dwordx4 {v(VB)}, {K}, {sC} offen lds", tag)])
        L.append(Ins(f"buffer_load_dwordx4 {v(VB2)}, {K}, {sC} offen offset:1024 lds", tag))
        if j == 0:
            L.append([f"s_add_u32 m0, {sST}, {b}", Ins(f"buffer_load_dwordx4 {v(VM)}, {K}, {sC} offen lds", tag)])
            L.append(f"buffer_load_dwordx2 {v(WR_[k],2)}, {v(VX)}, {SH}, {sTW[k]} offen")
        L.append([f"s_add_u32 m0, {sST}, {b+9216+2048*j}", Ins(f"buffer_load_dwordx4 {v(VB)}, {V_}, {sC} offen lds", tag)])
        L.append(Ins(f"buffer_load_dwordx4 {v(VB2)}, {V_}, {sC} offen offset:1024 lds", tag))
        return L
    P.add(dset(0, 0))
    P.e(f"buffer_store_dword {v(vZERO)}, {v(VZA)}, {WS}, 0 offen sc1", tag="zst")
    P.add(dset(0, 1))
    P.e(f"""
    v_bfe_u32 {v(VR)}, {v(VL)}, 2, 2
    v_lshlrev_b32 {v(VR)}, 7, {v(VR)}
    v_lshrrev_b32 {v(VS)}, 4, {v(VL)}
    v_lshl_add_u32 {v(VR)}, {v(VS)}, 5, {v(VR)}
    v_and_b32 {v(VS)}, 3, {v(VL)}
    v_lshl_add_u32 {v(VR)}, {v(VS)}, 3, {v(VR)}
    v_add_u32 {v(VR)}, {sST}, {v(VR)}
    s_mov_b32 {sLO}, 0xffff
    s_mov_b32 {sMASK}, 0xffff0000
    v_lshlrev_b32 {v(VW)}, 4, {v(T1)}
    v_lshl_add_u32 {v(VW)}, {v(VL)}, 7, {v(VW)}
    v_add_u32 {v(VW)}, {sST}, {v(VW)}
    v_xor_b32 {v(VRB)}, {v(T0)}, {v(T1)}
    v_lshlrev_b32 {v(VRB)}, 4, {v(VRB)}
    v_lshl_add_u32 {v(VRB)}, {v(T0)}, 7, {v(VRB)}
    v_add_u32 {v(VRB)}, {sST}, {v(VRB)}
    v_lshlrev_b32 {v(VGW)}, 4, {v(T1)}
    v_lshl_add_u32 {v(VS)}, {v(T0)}, 12, {v(VGW)}
    v_mul_u32_u24 {v(VQ)}, {8*896}, {v(T0)}
    v_add_u32 {v(VQ)}, {v(VQ)}, {v(VGW)}
    v_add_u32 {v(VQ)}, {sSO}, {v(VQ)}
    v_add_u32 {v(VQ2)}, {4*896}, {v(VQ)}
    s_lshl_b32 s3, {sW}, 18
    s_sub_u32 {sUS}, 31, {sA}
    s_lshl_b32 {sUS}, {sUS}, 7
    s_add_u32 {sUS}, {sUS}, s3
    s_add_u32 {sUS}, {sUS}, {WS_UR}
    """)
    P.add(dset(0, 2))
    P.vmwait("zst")
    P.e(f"buffer_atomic_add {v(vONE)}, {v(vARR)}, s[32:35], 0 offen sc1")
    P.add(dset(0, 3))
    if cfg.hack_aux: P.e("s_sleep 64\n s_sleep 32"); P.add(poll_load("za", None)); P.e("s_branch L_auxdone")
    def reads(k, j):
        b = TS * k; K_ = KP[j & 1]; V2 = VP[j & 1]
        L = [WaitTag('vm', "pin%d%d" % (k, j))]
        L += [f"ds_read_b64_tr_b16 {v(K_+2*m,2)}, {v(VR)} offset:{b+512+2048*j+512*m}" for m in range(5)]
        L += [f"ds_read_b64_tr_b16 {v(V2+2*m,2)}, {v(VR)} offset:{b+9216+2048*j+512*m}" for m in range(4)]
        return L
    def wprep(k):
        W = WR_[k]; T_ = WT[k]
        return lines(f"""v_alignbit_b32 {v(T_)}, {v(W)}, {v(W)}, 16
        v_alignbit_b32 {v(T_+1)}, {v(W+1)}, {v(W+1)}, 16
        v_and_b32 {v(T_+2)}, {sLO}, {v(W)}
        v_bfi_b32 {v(T_+3)}, {sLO}, {v(W+1)}, {v(W)}
        v_and_b32 {v(T_+4)}, {sMASK}, {v(W+1)}""")
    def owrites(k, j):
        return [[f"v_xor_b32 {v(VWt[q&1])}, {16*q}, {v(VW)}", Ins(f"ds_write_b128 {v(VWt[q&1])}, {v(OUT_+4*q,4)} offset:{TS*k}", "ow")] for q in (7 - 2 * j, 6 - 2 * j)]
    def readback(k): return [f"ds_read_b128 {v(RB+4*q,4)}, {v(VRB)} offset:{TS*k+1024*q}" for q in range(8)]
    def stores(k): return [[f"s_add_u32 {sC2}, {sUS}, {(k << 20) + 32768*q}", Ins(f"buffer_store_dwordx4 {v(RB+4*q,4)}, {v(VS)}, {WS}, {sC2} offen sc1", "pst")] for q in range(8)]
    wdt = lines(f"""s_lshl_b32 s3, {sA}, 2
    s_add_u32 s3, s3, {sW}
    s_mul_i32 s75, s3, {98*128}
    v_lshlrev_b32 {v(156)}, 7, {v(VL)}
    v_add_u32 {v(157)}, {34*128}, {v(156)}
    buffer_load_dword {v(158)}, {v(156)}, {WD}, s75 offen
    buffer_load_dword {v(159)}, {v(157)}, {WD}, s75 offen""")
    def step(P, k, j, fill):
        if cfg.aux_wd == (k, j): fill = list(fill) + ["\n".join(wdt)]
        K_ = KP[j & 1]; V2 = VP[j & 1]; T_ = WT[k]; fill = list(fill); per = (len(fill) + 9) // 10
        def nx():
            for _ in range(per):
                if fill: P.add(fill.pop(0))
        P.add(WaitRegs(v(V2 + 6, 2)))
        if cfg.stamps: r_ = [60, 62, 64, 66, 76, 78, 80, 92][4 * k + j]; P.e(f"s_memtime s[{r_}:{r_+1}]")
        for h in range(2):
            J = range(4 * h, 4 * h + 4)
            for i in J: P.e(f"v_dot2_f32_bf16 {v(OO+2*(i%4))}, {v(K_+i+2)}, {v(T_+2)}, 0\n v_dot2_f32_bf16 {v(OO+2*(i%4)+1)}, {v(K_+i+2)}, {v(T_)}, 0")
            nx()
            for i in J: P.e(f"v_dot2_f32_bf16 {v(OO+2*(i%4))}, {v(K_+i+1)}, {v(T_+3)}, {v(OO+2*(i%4))}\n v_dot2_f32_bf16 {v(OO+2*(i%4)+1)}, {v(K_+i+1)}, {v(T_+1)}, {v(OO+2*(i%4)+1)}")
            nx()
            for i in J: P.e(f"v_dot2_f32_bf16 {v(OO+2*(i%4))}, {v(K_+i)}, {v(T_+4)}, {v(OO+2*(i%4))}")
            nx()
            for i in J: P.e(f"v_lshlrev_b32 {v(UV+2*(i%4))}, 16, {v(V2+i)}\n v_and_b32 {v(UV+2*(i%4)+1)}, {sMASK}, {v(V2+i)}")
            nx()
            for i in J: P.e(f"v_pk_mul_f32 {v(UV+2*(i%4),2)}, {v(UV+2*(i%4),2)}, {v(OO+2*(i%4),2)}")
            nx()
            for i in J: P.e(f"v_cvt_pk_bf16_f32 {v(OUT_+31-8*j-i)}, {v(UV+2*(i%4)+1)}, {v(UV+2*(i%4))}")
        while fill: nx()
    P.add(reads(0, 0)); P.add(wprep(0))
    if cfg.stamps: P.e("s_waitcnt lgkmcnt(0)\n s_memtime s[86:87]")
    P.e(f"s_cmp_eq_u32 {sW}, 3\n s_cbranch_scc1 L_gate")
    Pg = Prog(); Pg.items = list(P.items)
    step(P, 0, 0, dset(1, 0) + reads(0, 1))
    step(P, 0, 1, dset(1, 1) + reads(0, 2))
    step(P, 0, 2, dset(1, 2) + reads(0, 3))
    step(P, 0, 3, dset(1, 3) + reads(1, 0) + wprep(1) + owrites(0, 0) + owrites(0, 1) + owrites(0, 2))
    P.add(owrites(0, 3))
    step(P, 1, 0, reads(1, 1) + readback(0))
    step(P, 1, 1, reads(1, 2) + stores(0))
    step(P, 1, 2, poll_load("za", None) + reads(1, 3))
    step(P, 1, 3, owrites(1, 0) + owrites(1, 1) + owrites(1, 2))
    P.add(owrites(1, 3)); P.add(readback(1)); P.add(stores(1))
    P.e("s_branch L_auxdone")
    P = Pg; P.e("L_gate:")
    QB = [192, 224, 48, 80]; GWS = [24, 28, 34, 38]
    def ql(tau):
        b = QB[tau % 4]
        L = [f"buffer_load_dwordx4 {v(b+4*rho,4)}, {v(VQ if rho < 4 else VQ2)}, {X}, 0 offen offset:{896*(rho%4)+128*tau}" for rho in range(8)]
        return L + [f"buffer_load_dwordx4 {v(GWS[tau%4],4)}, {v(VGW)}, {GW}, 0 offen offset:{128*tau}"]
    step(P, 0, 0, reads(0, 1))
    step(P, 0, 1, reads(0, 2) + ql(0))
    step(P, 0, 2, reads(0, 3) + ql(1))
    step(P, 0, 3, owrites(0, 0) + owrites(0, 1) + owrites(0, 2))
    P.add(owrites(0, 3)); P.add(ql(2)); P.add(readback(0)); P.add(ql(3)); P.add(stores(0)); P.add(poll_load("za", None))
    for tau in range(7):
        b = QB[tau % 4]
        for p in range(4):
            for rho in range(8):
                P.e(f"v_dot2_f32_bf16 {v(112+rho)}, {v(b+4*rho+p)}, {v(GWS[tau%4]+p)}, {'0' if (tau == 0 and p == 0) else v(112+rho)}")
        if tau + 4 < 7: P.add(ql(tau + 4))
    AC = 112
    for mod in ("row_half_mirror", "quad_perm:[3,2,1,0]", "quad_perm:[1,0,3,2]"):
        for rho in range(8): P.e(f"v_add_f32_dpp {v(AC+rho)}, {v(AC+rho)}, {v(AC+rho)} {mod} row_mask:0xf bank_mask:0xf")
    P.e("s_mov_b32 s74, 0xaaaaaaaa\n s_mov_b32 s75, 0xaaaaaaaa")
    for k in range(4): P.e(f"v_cndmask_b32 {v(AC+k)}, {v(AC+2*k)}, {v(AC+2*k+1)}, s[74:75]")
    P.e("s_mov_b32 s74, 0xcccccccc\n s_mov_b32 s75, 0xcccccccc")
    for k in range(2): P.e(f"v_cndmask_b32 {v(AC+k)}, {v(AC+2*k)}, {v(AC+2*k+1)}, s[74:75]")
    P.e("s_mov_b32 s74, 0xf0f0f0f0\n s_mov_b32 s75, 0xf0f0f0f0")
    P.e(f"""v_cndmask_b32 {v(AC)}, {v(AC)}, {v(AC+1)}, s[74:75]
    v_mul_f32 {v(AC)}, 0xbfb8aa3b, {v(AC)}
    v_exp_f32 {v(AC)}, {v(AC)}
    v_add_f32 {v(AC)}, 1.0, {v(AC)}
    v_rcp_f32 {v(AC)}, {v(AC)}
    s_lshl_b32 s3, {sA}, 8
    s_add_u32 s3, s3, {WS_G}
    v_lshlrev_b32 {v(T0)}, 2, {v(VL)}
    buffer_store_dword {v(AC)}, {v(T0)}, {WS}, s3 offen sc1""")
    T = Prog(); T.e("L_auxdone:")
    if cfg.stamps: T.e("s_memtime s[88:89]")
    T.e(f"""s_lshl_b32 {sC}, {sA}, 7
    s_lshl_b32 s3, {sA}, 2
    s_add_u32 s3, s3, {sW}
    s_mul_i32 {sSO2}, s3, {98*128}
    v_lshlrev_b32 {v(PF)}, 7, {v(VL)}
    v_add_u32 {v(PF+1)}, {34*128}, {v(PF)}
    s_waitcnt vmcnt(0)""")
    T.add(poll_check("za", None))
    T.e("s_barrier")
    if not cfg.nosync: T.e(f"buffer_store_dword {v(vONE)}, {v(vARR)}, {WS}, {sC} offen sc1")
    if cfg.stamps: T.e("s_memtime s[90:91]")
    if cfg.aux_l2:
        g0, ng = cfg.aux_l2
        T.e(f"""v_mul_u32_u24 {v(PF)}, 896, {v(VL)}
        s_lshr_b32 s56, {sA}, 3
        s_mul_i32 s56, s56, {448*896}
        s_and_b32 s57, s2, 7
        s_add_u32 s57, s57, {g0}""")
        for k in range((7 * ng + 3) // 4):
            T.e(f"""s_add_u32 s58, {sW}, {4*k}
            s_min_u32 s58, s58, {7*ng-1}
            s_mul_i32 s59, s58, 37
            s_lshr_b32 s59, s59, 8
            s_mul_i32 s3, s59, 7
            s_sub_u32 s58, s58, s3
            s_add_u32 s59, s59, s58
            s_add_u32 s59, s59, s57
            s_mul_i32 s3, s59, 37
            s_lshr_b32 s3, s3, 8
            s_mul_i32 s3, s3, 7
            s_sub_u32 s59, s59, s3
            s_mul_i32 s59, s59, {64*896}
            s_lshl_b32 s58, s58, 7
            s_add_u32 s59, s59, s58
            s_add_u32 s59, s59, s56
            buffer_load_dword {v(PF+2+k)}, {v(PF)}, {WD}, s59 offen""")
    if cfg.stamps:
        T.e(f"""s_waitcnt vmcnt(0)
        s_memtime s[4:5]
        s_memrealtime s[6:7]
        s_waitcnt lgkmcnt(0)
        s_sub_u32 s3, s86, s98
        v_mov_b32 v200, s3
        s_sub_u32 s3, s88, s98
        v_mov_b32 v201, s3
        s_sub_u32 s3, s90, s98
        v_mov_b32 v202, s3
        s_sub_u32 s3, s4, s98
        v_mov_b32 v203, s3
        v_mov_b32 v204, s100
        v_mov_b32 v205, s6
        s_lshl_b32 s3, s2, 2
        s_add_u32 s3, s3, {sW}
        s_lshl_b32 s3, s3, 7
        s_add_u32 s3, s3, {WS_STAMP}
        v_mov_b32 v2, 0
        s_mov_b64 exec, 1
        buffer_store_dwordx4 v[200:203], v2, {WS}, s3 offen
        buffer_store_dwordx2 v[204:205], v2, {WS}, s3 offen offset:120""")
        for i_, r_ in enumerate([60, 62, 64, 66, 76, 78, 80, 92]): T.e(f"s_sub_u32 s4, s{r_}, s98\n v_mov_b32 v{208+i_}, s4")
        T.e(f"buffer_store_dwordx4 v[208:211], v2, {WS}, s3 offen offset:16\n buffer_store_dwordx4 v[212:215], v2, {WS}, s3 offen offset:32")
    T.e("s_endpgm")
    return Pg, T

def build():
    global slow_paths, stamp_names, trace_names
    slow_paths = []; stamp_names = []; trace_names = []; arr_n[0] = 0; STAMP_REGS['prewait'] = 74; STAMP_REGS['karg'] = 72
    pro = Prog()
    for reg, off in ((X, 0), (WG, 56), (WU, 64), (WD, 72), (SK, 32), (WS, 104), (OUT, 88), (pDBG, 96), (pD, 40)) + ((("s[94:95]", 8), ("s[96:97]", 16)) if cfg.kv_touch is not None else ()): pro.e(ldptr(reg, off))
    if cfg.sync_start:
        pro.e("""s_memrealtime s[100:101]
        s_waitcnt lgkmcnt(0)
        s_add_u32 s3, s100, 400
        s_and_b32 s3, s3, 0xffffff00
        s_and_b32 s99, s2, %d
        s_mul_i32 s99, s99, %d
        s_add_u32 s3, s3, s99
        L_ss:
        s_memrealtime s[100:101]
        s_waitcnt lgkmcnt(0)
        s_sub_u32 s99, s100, s3
        s_cmp_lt_i32 s99, 0
        s_cbranch_scc1 L_ss""" % cfg.skew)
    if cfg.stamps or cfg.fixdur: pro.e("s_memtime s[98:99]\n s_memrealtime s[100:101]")
    pro.e(f"""
    v_lshrrev_b32 v2, 6, v0
    v_and_b32 v1, 63, v0
    s_cmp_ge_u32 s2, 224
    v_readfirstlane_b32 {sW}, v2
    s_cbranch_scc1 L_aux
    """)
    Pm = Prog(); Pm.items = list(pro.items)
    gen_main(Pm)
    main = Pm.finalize(cfg.verbose)
    if cfg.warm:
        real = [i for i, x in enumerate(main) if x.kind != 'label']
        for k, n in reversed(list(enumerate(cfg.stub_at[:4]))):
            main[real[n]:real[n]] = [Ins("L_pg%d:" % k), Ins("s_cbranch_execz L_pgback")]
    Px = Prog(); Px.items = list(pro.items); Px.e("L_aux:")
    Pg, Pt = gen_aux(Px)
    ax = Px.finalize(); gx = Pg.finalize(); tx = Pt.finalize()
    cut = lambda lst, lab: lst[[i for i, x in enumerate(lst) if x.kind == 'label' and x.text == lab][0]:]
    body = text_of(main) + "\n" + text_of(cut(ax, "L_aux:")) + "\n" + text_of(cut(gx, "L_gate:")) + "\n" + text_of(tx) + "\n" + emit_slow_paths() + "\nL_codeend:"
    hdr = open("gated_mix__ssm_conv_h3__swiglu_ffn__prompt.s.ref").read().split("; Override launch")[0] if cfg.header else ""
    return f"""{hdr}; @launch grid=(256,1,1) block=(256,1,1) lds={LDS_BYTES}
; TRACE={trace_names}
.amdgcn_target "amdgcn-amd-amdhsa--gfx950"
.text
.globl {KNAME}
{'.p2align 12' if cfg.align else ''}
.p2align 8
.type {KNAME},@function
{KNAME}:
{body}
.section .rodata,"a"
.p2align 6
.amdhsa_kernel {KNAME}
  .amdhsa_next_free_vgpr 512
  .amdhsa_next_free_sgpr 102
  .amdhsa_accum_offset 256
  .amdhsa_group_segment_fixed_size 0
  .amdhsa_kernarg_size 112
  .amdhsa_user_sgpr_count 2
  .amdhsa_user_sgpr_kernarg_segment_ptr 1
  .amdhsa_system_sgpr_workgroup_id_x 1
.end_amdhsa_kernel
"""

if __name__ == "__main__":
    import subprocess
    out = sys.argv[1]
    for kv in sys.argv[2:]:
        k_, v_ = kv.split("=", 1)
        assert hasattr(cfg, k_), k_
        setattr(cfg, k_, eval(v_))
    cfg.pf_n = 1; cfg.pf_last = 100
    vb = cfg.verbose; cfg.verbose = False
    open(out, "w").write(build())
    subprocess.check_call(["clang", "-x", "assembler", "-target", "amdgcn-amd-amdhsa", "-mcpu=gfx950", "-c", out, "-o", "_gen.o"])
    sym = subprocess.check_output(["llvm-objdump", "-t", "_gen.o"], text=True)
    ad = {l.split()[-1]: int(l.split()[0], 16) for l in sym.splitlines() if " L_" in l}
    if cfg.code_pf:
        cfg.pf_last = (ad["L_codeend"] - ad["L_pc"] - 64) // 128
        cfg.pf_n = (cfg.pf_last + 112) // 112
    if cfg.warm:
        cfg.stub_at = [600, 1200, 1800, 2300]
        for it in range(3):
            open(out, "w").write(build())
            subprocess.check_call(["clang", "-x", "assembler", "-target", "amdgcn-amd-amdhsa", "-mcpu=gfx950", "-c", out, "-o", "_gen.o"])
            dis = subprocess.check_output(["llvm-objdump", "-d", "--mcpu=gfx950", "_gen.o"], text=True)
            ins = [(int(l.split("//")[1].split(":")[0], 16), l) for l in dis.splitlines() if "//" in l]
            end = [i for i, (a_, l) in enumerate(ins) if "s_endpgm" in l][0]
            a0 = []; ns_ = 0
            for a_, l in ins[:end]:
                if "s_cbranch_execz" in l: ns_ += 1
                else: a0.append(a_ - 4 * ns_)
            new_at = []
            for k in range(1, 5):
                c = [i for i, a_ in enumerate(a0) if a_ + 4 * (k - 1) + 0x300 >= 4096 * k]
                if c: new_at.append(c[0])
            if new_at == cfg.stub_at: break
            cfg.stub_at = new_at
    cfg.verbose = vb
    open(out, "w").write(build())
    print(out, "code bytes", ad["L_codeend"], "aux at", ad["L_aux"], "stubs", cfg.stub_at, "stamps:", stamp_names)
```

```python
import sys, math, re
from fw import *
import fw
KNAME = "gated_mix__ssm_conv_h3__swiglu_ffn__prompt_kernel"

class Cfg: pass
cfg = Cfg()
cfg.stamps = False; cfg.pass_stamps = False; cfg.verbose = False; cfg.header = True; cfg.fixdur = 0
cfg.PD = 5; cfg.NXR = 8; cfg.pair = 2; cfg.bud = 24
cfg.code_pf = True; cfg.n_pre = 9; cfg.nosync = False
cfg.rot_c = True; cfg.rot_t = True; cfg.rot_g = True
cfg.pl_at = -1; cfg.pc0 = 10; cfg.pc1 = 70; cfg.bud1 = 28; cfg.z_load = 80; cfg.z_chk = 104; cfg.x_touch = 0; cfg.align = True; cfg.tlb = False; cfg.sync_start = False; cfg.skew = (0, 0); cfg.gq_sh = 0; cfg.gq_mul = 1; cfg.wd_touch = -1; cfg.warm = True; cfg.stub_at = []; cfg.late_pos = 50; cfg.p_arr = 9; cfg.pst_at = 80; cfg.aux_sk = False; cfg.p_first = True; cfg.sk_at = -1; cfg.hv_at = 50; cfg.c_rd_end = 66; cfg.sleep = 2
cfg.p_load = 196; cfg.p_chk = 214; cfg.hw0 = 100; cfg.hw1 = 186
cfg.g_arrive = 30; cfg.g_poll = 84; cfg.g_chk = 102; cfg.nh_c = 11; cfg.nh_e = 5; cfg.c_wd = (24, 48, 72, 96); cfg.c_tail_in_g2 = True; cfg.b_rev = False; cfg.n1 = 3; cfg.blk_c = 4; cfg.blk_s3 = 0; cfg.blk_deep = False; cfg.blk_dma = False; cfg.blk_g = 30; cfg.blk_g2 = 0; cfg.blk_list = [(20, 2), (30, 2), (40, 2), (50, 2), (60, 1)]; cfg.hack_sleep = None; cfg.aux_wd = None; cfg.hack_aux = False; cfg.sc_h = 'sc1'; cfg.n_raw = 0; cfg.kv_touch = None; cfg.aux_l2 = None; cfg.hack_wd = False; cfg.hack_p = False; cfg.sc_wd = ''; cfg.sc_g1 = ''; cfg.c_bar = 130; cfg.s3_at = -1; cfg.nwd_t = 5; cfg.g_wd_end = 104
cfg.g2_hpace = 2.1; cfg.q_at = (13, 15, 17, 19); cfg.g2_arrive = 34; cfg.g2_poll = 60; cfg.g2_chk = 74; cfg.g2_pre = 96
cfg.sc_out = ""; cfg.aux_pf = False; cfg.touch = False; cfg.s_early = True; cfg.rt = False; cfg.trace = False; cfg.start_stamps = False

WS_FLAG = 0x0; WS_G = 0x20000; WS_UR = 0x100000; WS_YT = 0x300000; WS_H = 0x500000
WS_STAMP = 0xC00000; WS_SIZE = 0xD00000
NQ = 1835008; NW = 1605632
XB = 4096
SLOT = 28672; PIECE = 7168
HC = 4 * SLOT; CPY = 4160; HCCH = 4 * CPY
UL = HC + 2 * HCCH; UCH = 4608
LDS_BYTES = 163840
YL = HC; QL = UL
assert UL + 2 * UCH <= LDS_BYTES
X, WG, WU, WD, SK, WS, OUT = ["s[%d:%d]" % (b, b + 3) for b in (4, 8, 12, 16, 20, 24, 28)]
pWS = "s[24:25]"; pDBG = "s[32:33]"; pD = "s[34:35]"
sW = "s36"; sT0 = "s37"; sT1 = "s38"; sT2 = "s39"
sCH = ["s%d" % (40 + i) for i in range(7)]
sWC = ["s%d" % (47 + i) for i in range(7)]
sTO = ["s%d" % (54 + i) for i in range(8)]
sHG = sWC
sM0P = "s68"; sXB = "s69"; sWB = "s70"; sDB = "s71"; sHS = "s72"; sHL = ["s73", "s74"]
sNL2E = "s75"; sSO = "s76"; sSO2 = "s77"; sD = "s78"; sI2 = "s79"; sCT = "s80"; sKH = "s81"
sCNT = "s82"; sM = "s83"; sMASK = "s84"; sRG = "s85"
sDG = ["s%d" % (86 + i) for i in range(7)]
sPV = "s93"; sHE = "s70"; sFL = "s67"; sONE = "s66"; sU = "s65"; sPA = "s64"
STAMP_REGS = {'issued': 0, 'setup': 96, 'pdone': 94, 'prewait': 74, 'karg': 72, 'g1start': 34, 'p1end': 12, 'T5': 96, 'T6': 8, 'T7': 10, 'prepoll': 94, 'zpre': 96, 'zpost': 8, 'g1end': 14, 'cstart': 40, 'c_pre': 42, 'c_post': 44, 'g2start': 54, 'g2_pre': 56, 'g2_post': 58, 'g2end': 60}

def v(i, n=1): return "v%d" % i if n == 1 else "v[%d:%d]" % (i, i + n - 1)
def a(i, n=1): return "a%d" % i if n == 1 else "a[%d:%d]" % (i, i + n - 1)
def lines(t): return [l.strip() for l in t.split("\n") if l.strip()]

stamp_names = []
def stamp(name):
    if not cfg.stamps or cfg.stamps == 'min': return []
    if cfg.trace and STAMP_REGS[name] in (94, 96): return []
    stamp_names.append(name); r = STAMP_REGS[name]
    return [Ins("%s s[%d:%d]" % ("s_memrealtime" if cfg.rt else "s_memtime", r, r + 1))]

slow_paths = []
trace_names = []
TR_S = [94, 96, 8, 12]
def add_trace(G, every, name, regs):
    if not cfg.trace: return
    k = 0
    for g in range(0, G.n - 3, every):
        i = len(trace_names); trace_names.append("%s%d" % (name, g)); r = regs[k % len(regs)]; k += 1
        G.f[g].insert(0, Ins("s_memtime s[%d:%d]" % (r, r + 1)))
        G.f[min(g + (3 if G.n != 144 else 6), G.n - 1)].append("v_writelane_b32 v%d, s%d, %d" % (254 + i // 64, r, i % 64))
vARR = 43; vONE = 0; vP8 = 38; vP7 = 39; vPV = 33; vZERO = 44
def poll_text(kind, off):
    if kind == "z": return f"global_load_dword {v(vPV)}, {v(vZERO)}, {pDBG} sc1"
    if kind == "za": return f"global_load_dword {v(vPV)}, {v(vZERO)}, {pDBG} sc1"
    return f"buffer_load_dword {v(vPV)}, {v(vP7 if kind == 'h' else vP8)}, {WS}, {off} offen sc1"
def poll_load(kind, off):
    return [] if cfg.nosync else [poll_text(kind, off)]
def poll_check(kind, off):
    if cfg.nosync: return []
    slow_paths.append((kind, off))
    return [f"v_cmp_gt_u32 vcc, {32 if kind[0] == 'z' else 1}, {v(vPV)}", f"s_cbranch_vccnz L_slow_{kind}\n L_back_{kind}:"]
def emit_slow_paths():
    t = []
    for kind, off in slow_paths:
        t += [f"L_slow_{kind}:", f"s_mov_b32 {sCNT}, 0", f"L_spin_{kind}:", f"s_sleep {cfg.sleep}", poll_text(kind, off),
              f"s_add_u32 {sCNT}, {sCNT}, 1", f"s_cmp_gt_u32 {sCNT}, 0x40000", "s_waitcnt vmcnt(0)", f"s_cbranch_scc1 L_back_{kind}",
              f"v_cmp_gt_u32 vcc, {32 if kind[0] == 'z' else 1}, {v(vPV)}", f"s_cbranch_vccnz L_spin_{kind}"] + ([f"v_writelane_b32 v253, {sCNT}, {'zphy'.index(kind)}"] if cfg.trace and kind != "za" else []) + [f"s_branch L_back_{kind}"]
    return "\n".join(l if l.endswith(":") else "    " + l for l in t)
arr_n = [0]
def arrive(tag, off, bar=True):
    pre = [Ins("s_barrier")] if bar else []
    if cfg.nosync: return pre
    return ([WaitTag('vm', tag)] if bar else []) + pre + [f"buffer_store_dword {v(vONE)}, {v(vARR)}, {WS}, {off} offen sc1"]

def sb(reg): return int(reg[2:reg.index(':')])
def srd_hi(reg, size): return ["s_mov_b32 s%d, 0x%x" % (sb(reg) + 2, size), "s_mov_b32 s%d, 0x20000" % (sb(reg) + 3)]
def ldptr(reg, off): return "s_load_dwordx2 s[%d:%d], s[0:1], %d" % (sb(reg), sb(reg) + 1, off)
def rot_next(r): return [f"s_add_u32 {r}, {r}, 1", f"s_cmp_eq_u32 {r}, 7\n s_cselect_b32 {r}, 0, {r}"]
def mod7(r): return lines(f"s_mul_i32 s3, {r}, 37\n s_lshr_b32 s3, s3, 8\n s_mul_i32 s3, s3, 7\n s_sub_u32 {r}, {r}, s3")

def code_prefetch(P):
    if not cfg.code_pf: return
    P.e(f"""
        s_getpc_b64 s[38:39]
        L_pc:
        s_lshr_b32 s3, s2, 3
        s_lshl_b32 s3, s3, 2
        s_add_u32 s3, s3, {sW}
        s_mul_i32 s3, s3, {cfg.pf_n}
        v_min_u32 v2, {cfg.pf_n-1}, v1
        v_add_u32 v2, s3, v2
        v_min_u32 v2, {cfg.pf_last}, v2
        v_lshlrev_b32 v2, 7, v2
        v_mov_b32 v3, s39
        v_add_co_u32 v2, vcc, s38, v2
        v_addc_co_u32 v3, vcc, 0, v3, vcc
        global_load_dword v255, v[2:3], off
        """)

def gen_main(P):
    PD = cfg.PD; NXR = cfg.NXR; N1 = cfg.n1; CH = 4 * N1; P1 = 28 * N1; NI = 15 - N1
    VL = 1
    VX = [2, 3, 4, 9]; VWg = [5, 6]; VWu = [7, 8]; VSK = [10, 11, 12]; VD = [13, 14, 15, 16]
    XR = [[17, 18, 19, 20], [21, 22, 23, 24]]; WR = [25, 26, 27]; DR = [[28, 29], [30, 31]]
    V16 = 32; T0 = 33; T1 = 34; T2 = 35; T3 = 36; VHZ = 37; CA = 40; CB = 41; VHW = 42; VZ = 44
    ACC = [48, 64, 80, 96]; XRING = 112; ET = 144; PK = [148, 152]; HR = 160; HCP = 176
    assert XRING + 4 * NXR <= ET
    sX = sSO; sQ7 = sSO2; sR = sCNT
    code_prefetch(P)
    P.e(f"""
    s_and_b32 {sX}, s2, 7
    s_lshr_b32 {sT1}, s2, 3
    s_mul_i32 {sQ7}, {sT1}, 37
    s_lshr_b32 {sQ7}, {sQ7}, 8
    s_mul_i32 s3, {sQ7}, 7
    s_sub_u32 {sCT}, {sT1}, s3
    s_lshl_b32 s3, {sX}, 2
    s_add_u32 {sI2}, s3, {sQ7}
    s_and_b32 s3, {sX}, 4
    s_add_u32 {sT2}, s3, {sQ7}
    s_and_b32 {sT0}, {sX}, 3
    s_mul_i32 {sT1}, {sT0}, 7
    s_add_u32 {sT1}, {sT1}, {sCT}
    s_mul_i32 {sM0P}, {sW}, {PIECE}
    s_mul_i32 {sXB}, {sT2}, {256*896}
    s_add_u32 {sXB}, {sXB}, {sM0P}
    s_mul_i32 {sWB}, {sW}, {16*3584}
    s_lshl_b32 s3, {sT1}, 7
    s_add_u32 {sWB}, {sWB}, s3
    s_lshl_b32 {sRG}, {sQ7}, 1
    s_add_u32 {sRG}, {sRG}, {sCT}
    s_lshr_b32 s3, {sX}, 2
    s_add_u32 {sR}, {sRG}, s3
    """)
    P.add(mod7(sR) if cfg.rot_c else f"s_mov_b32 {sR}, 0")
    def ch_tab(i):
        L = lines(f"s_lshl_b32 s3, {sR}, 7\n s_add_u32 {sCH[i]}, s3, {sXB}\n s_mul_i32 s3, {sR}, {64*3584}\n s_add_u32 {sWC[i]}, s3, {sWB}")
        return L + (rot_next(sR) if i < 6 else [])
    def to_tab(t):
        if cfg.rot_t: return lines(f"s_lshl_b32 s3, {sT0}, 1\n s_add_u32 s3, s3, {t}\n s_and_b32 s3, s3, 7\n s_mul_i32 {sTO[t]}, s3, 28672")
        return [f"s_mov_b32 {sTO[t]}, {28672*t}"]
    for i in range(2): P.add(ch_tab(i))
    for t in range(N1): P.add(to_tab(t))
    P.add(srd_hi(X, NQ + XB) + srd_hi(WG, NW) + srd_hi(WU, NW))
    P.e(f"""
    v_lshrrev_b32 {v(T0)}, 3, {v(VL)}
    v_and_b32 {v(T1)}, 7, {v(VL)}
    v_lshrrev_b32 {v(T2)}, 4, {v(VL)}
    s_lshl_b32 s3, {sW}, 2
    v_add_u32 {v(T3)}, s3, {v(T2)}
    v_and_b32 {v(T3)}, 7, {v(T3)}
    v_xor_b32 {v(T3)}, {v(T1)}, {v(T3)}
    v_lshlrev_b32 {v(T3)}, 4, {v(T3)}
    v_mul_u32_u24 {v(VX[0])}, 896, {v(T0)}
    v_add_u32 {v(T3)}, {XB}, {v(T3)}
    v_add_u32 {v(VX[0])}, {v(VX[0])}, {v(T3)}
    v_add_u32 {v(VX[1])}, -1024, {v(VX[0])}
    v_add_u32 {v(VX[2])}, -2048, {v(VX[0])}
    v_and_b32 {v(T2)}, 1, {v(T2)}
    v_lshlrev_b32 {v(T2)}, 1, {v(T2)}
    v_xor_b32 {v(T3)}, {v(T1)}, {v(T2)}
    v_lshlrev_b32 {v(T3)}, 4, {v(T3)}
    v_mul_u32_u24 {v(VWg[0])}, 3584, {v(T0)}
    v_add_u32 {v(VWg[0])}, {v(VWg[0])}, {v(T3)}
    v_add_u32 {v(VWg[1])}, {28672-1024}, {v(VWg[0])}
    v_xor_b32 {v(VWu[0])}, 64, {v(VWg[0])}
    v_add_u32 {v(VWu[1])}, {28672-1024}, {v(VWu[0])}
    """)
    if cfg.start_stamps: P.add(stamp("prewait"))
    P.e("s_waitcnt lgkmcnt(0)")
    if cfg.start_stamps: P.add(stamp("karg")); P.e("s_waitcnt lgkmcnt(0)\n v_mov_b32 v156, s74\n v_mov_b32 v157, s72")
    P.e(f"""
    s_sub_u32 s4, s4, {XB}
    s_subb_u32 s5, s5, 0
    """)
    def dma_item(i):
        sl = (i % 4) * SLOT; tag = "it%d" % i; L = []
        xl = lambda T, c, u, pre="": [pre + f"s_add_u32 {sSO}, {sCH[c]}, {sTO[T]}", Ins(f"buffer_load_dwordx4 {v(VX[u])}, {X}, {sSO} offen offset:{1024*u} {cfg.sc_g1} lds", tag)]
        if i < 7:
            L.append([f"s_add_u32 m0, {sM0P}, {sl+3072}", Ins(f"buffer_load_dwordx4 {v(VWg[0])}, {WG}, {sWC[i]} offen offset:0 {cfg.sc_g1} lds", tag)])
            L.append(Ins(f"buffer_load_dwordx4 {v(VWg[1])}, {WG}, {sWC[i]} offen offset:1024 {cfg.sc_g1} lds", tag))
            L.append([f"s_add_u32 m0, {sM0P}, {sl+5120}", Ins(f"buffer_load_dwordx4 {v(VWu[0])}, {WU}, {sWC[i]} offen offset:0 {cfg.sc_g1} lds", tag)])
            L.append(Ins(f"buffer_load_dwordx4 {v(VWu[1])}, {WU}, {sWC[i]} offen offset:1024 {cfg.sc_g1} lds", tag))
            for rt in range(N1): L.append(xl(rt, i, rt, f"s_add_u32 m0, {sM0P}, {sl}\n" if rt == 0 else ""))
        else:
            T = i - 7 + N1
            for k in range(7): L.append(xl(T, k, k % 4, f"s_add_u32 m0, {sM0P}, {sl+1024*k}\n" if k % 4 == 0 else ""))
        return L
    first = dma_item(0) + dma_item(1)
    P.add(first[:cfg.n_pre]); late_first = first[cfg.n_pre:]
    if not cfg.pass_stamps: P.add(stamp("issued"))
    P.e(f"""
    s_lshl_b32 s3, s2, 2
    s_load_dword {sD}, {pD}, s3
    v_lshlrev_b32 {v(T3)}, 1, {v(T2)}
    v_xor_b32 {v(T3)}, {v(T1)}, {v(T3)}
    v_lshlrev_b32 {v(T3)}, 4, {v(T3)}
    v_mul_u32_u24 {v(VD[0])}, 896, {v(T0)}
    v_add_u32 {v(VD[0])}, {v(VD[0])}, {v(T3)}
    v_add_u32 {v(VX[3])}, -3072, {v(VX[0])}
    v_and_b32 {v(T0)}, 31, {v(VL)}
    v_lshrrev_b32 {v(T1)}, 3, {v(T0)}
    v_mul_u32_u24 {v(T1)}, {PIECE}, {v(T1)}
    v_and_b32 {v(T2)}, 7, {v(T0)}
    v_lshl_add_u32 {v(T1)}, {v(T2)}, 7, {v(T1)}
    v_lshrrev_b32 {v(T2)}, 1, {v(T0)}
    v_and_b32 {v(T2)}, 7, {v(T2)}
    v_lshrrev_b32 {v(T3)}, 5, {v(VL)}
    v_xor_b32 {v(T2)}, {v(T2)}, {v(T3)}
    v_lshl_add_u32 {v(XR[0][0])}, {v(T2)}, 4, {v(T1)}
    """)
    for k in range(1, 4): P.e(f"v_xor_b32 {v(XR[0][k])}, {32*k}, {v(XR[0][0])}")
    for k in range(4): P.e(f"v_add_u32 {v(XR[1][k])}, {3*SLOT}, {v(XR[0][k])}")
    P.e(f"""
    v_bfe_u32 {v(T0)}, {v(VL)}, 2, 2
    v_lshl_add_u32 {v(T1)}, {v(T3)}, 3, {v(T0)}
    v_lshlrev_b32 {v(T1)}, 7, {v(T1)}
    v_bfe_u32 {v(T2)}, {v(VL)}, 1, 1
    v_lshl_add_u32 {v(T1)}, {v(T2)}, 11, {v(T1)}
    v_lshlrev_b32 {v(T2)}, 1, {v(T2)}
    v_lshrrev_b32 {v(T0)}, 1, {v(T0)}
    v_add_u32 {v(T2)}, {v(T2)}, {v(T0)}
    v_xor_b32 {v(T2)}, {sW}, {v(T2)}
    v_lshl_add_u32 {v(T1)}, {v(T2)}, 5, {v(T1)}
    v_bfe_u32 {v(T2)}, {v(VL)}, 4, 1
    v_lshl_add_u32 {v(T1)}, {v(T2)}, 4, {v(T1)}
    v_and_b32 {v(T2)}, 1, {v(VL)}
    v_lshl_add_u32 {v(T1)}, {v(T2)}, 3, {v(T1)}
    v_add_u32 {v(WR[0])}, 3072, {v(T1)}
    v_add_u32 {v(WR[1])}, {2*SLOT}, {v(WR[0])}
    """)
    for i in range(2, 7): P.add(ch_tab(i))
    for t in range(N1, 8): P.add(to_tab(t))
    S = []
    S += lines(f"""
    v_bfe_u32 {v(T1)}, {v(VL)}, 2, 2
    v_lshl_add_u32 {v(T1)}, {v(T3)}, 2, {v(T1)}
    v_lshlrev_b32 {v(T1)}, 7, {v(T1)}
    s_lshr_b32 s3, {sW}, 1
    v_xor_b32 {v(T2)}, s3, {v(T0)}
    v_lshl_add_u32 {v(T1)}, {v(T2)}, 6, {v(T1)}
    v_bfe_u32 {v(T2)}, {v(VL)}, 4, 1
    v_lshl_add_u32 {v(T1)}, {v(T2)}, 5, {v(T1)}
    v_and_b32 {v(T2)}, 3, {v(VL)}
    v_lshl_add_u32 {v(T1)}, {v(T2)}, 3, {v(T1)}
    s_and_b32 s3, {sW}, 1
    s_lshl_b32 s3, s3, 5
    v_xor_b32 {v(T1)}, s3, {v(T1)}
    v_add_u32 {v(DR[0][0])}, {sM0P}, {v(T1)}
    v_xor_b32 {v(DR[0][1])}, 64, {v(DR[0][0])}
    v_add_u32 {v(DR[1][0])}, {2*SLOT}, {v(DR[0][0])}
    v_add_u32 {v(DR[1][1])}, {2*SLOT}, {v(DR[0][1])}
    v_add_u32 {v(VD[1])}, 6144, {v(VD[0])}
    v_add_u32 {v(VD[2])}, {2*6144}, {v(VD[0])}
    v_add_u32 {v(VD[3])}, {3*6144}, {v(VD[0])}
    v_lshlrev_b32 {v(V16)}, 4, {v(VL)}
    s_mul_i32 s3, {sT2}, 28
    s_add_u32 s3, s3, {sT1}
    s_add_u32 s3, s3, 256
    s_lshl_b32 {sFL}, s3, 7
    v_mov_b32 {v(vARR)}, -16
    v_cmp_eq_u32 vcc, 0, v0
    v_min_u32 {v(vP8)}, 7, {v(VL)}
    v_min_u32 {v(vP7)}, 6, {v(VL)}
    v_cndmask_b32 {v(vARR)}, {v(vARR)}, 0, vcc
    v_mov_b32 {v(vONE)}, 1
    s_lshl_b32 s3, {sW}, 3
    v_add_lshl_u32 {v(vP8)}, {v(vP8)}, s3, 7
    s_mul_i32 s3, {sW}, 7
    v_add_lshl_u32 {v(vP7)}, {v(vP7)}, s3, 7
    s_mul_i32 {sWB}, {sT2}, {8*112}
    s_lshl_b32 s3, {sT1}, 2
    s_add_u32 {sWB}, {sWB}, s3
    s_add_u32 {sWB}, {sWB}, {sW}
    s_lshl_b32 {sWB}, {sWB}, 10
    s_add_u32 {sWB}, {sWB}, {WS_H}
    s_mul_i32 {sDB}, {sW}, {448*896}
    s_lshl_b32 s3, {sCT}, 7
    s_add_u32 {sDB}, {sDB}, s3
    s_and_b32 s3, s2, 7
    s_add_u32 {sRG}, {sCT}, s3
    s_and_b32 s3, {sI2}, 3
    s_lshr_b32 s3, s3, {cfg.gq_sh}
    s_mul_i32 s3, s3, {cfg.gq_mul}
    s_add_u32 {sRG}, {sRG}, s3
    """)
    S += mod7(sRG) if cfg.rot_g else [f"s_mov_b32 {sRG}, 0"]
    S += [f"s_mov_b32 {sR}, {sRG}"]
    for i in range(7):
        S += [f"s_mul_i32 s3, {sR}, {0 if cfg.hack_wd else 57344}", f"s_add_u32 {sDG[i]}, s3, {sDB}"] + (rot_next(sR) if i < 6 else [])
    S += srd_hi(WD, NW) + srd_hi(WS, WS_SIZE) + srd_hi(SK, 4096) + srd_hi(OUT, NQ)
    S += lines(f"""
    s_lshr_b32 {sT2}, {sW}, 1
    s_and_b32 {sKH}, {sW}, 1
    s_lshl_b32 {sM}, s2, 1
    s_add_u32 {sM}, {sM}, {sT2}
    s_lshl_b32 s3, {sM}, 12""") + [f"s_add_u32 s20, s20, s3\n s_addc_u32 s21, s21, 0"] + lines(f"""
    s_mov_b32 {sNL2E}, 0xbfb8aa3b
    s_mov_b32 {sMASK}, 0xffff0000
    s_mov_b32 {sONE}, 1
    """)
    S2 = lines(f"""
    s_mov_b32 {sHS}, {sWB}
    s_lshl_b32 {sU}, {sKH}, 11
    v_add_u32 {v(VSK[0])}, {sU}, {v(V16)}
    v_add_u32 {v(VSK[1])}, -16, {v(VSK[0])}
    v_add_u32 {v(VSK[2])}, 1008, {v(VSK[0])}
    s_mul_i32 {sT0}, {sT2}, {HCCH}
    s_add_u32 {sT0}, {sT0}, {HC}
    s_mul_i32 {sT1}, {sT2}, {UCH}
    s_add_u32 {sT1}, {sT1}, {UL}
    s_add_u32 s3, {sU}, {sT0}
    s_add_u32 s3, s3, 32
    v_add_u32 {v(VHW)}, s3, {v(V16)}
    v_and_b32 {v(T0)}, 15, {v(VL)}
    v_lshrrev_b32 {v(T1)}, 4, {v(VL)}
    v_sub_u32 {v(T2)}, 3, {v(T0)}
    v_and_b32 {v(T2)}, 3, {v(T2)}
    v_add3_u32 {v(T3)}, {v(T0)}, {v(T2)}, 1
    v_lshl_add_u32 {v(T3)}, {v(T1)}, 3, {v(T3)}
    v_lshlrev_b32 {v(T3)}, 1, {v(T3)}
    v_mul_u32_u24 {v(T2)}, {CPY}, {v(T2)}
    s_lshl_b32 s3, {sKH}, 8
    s_add_u32 {sT0}, {sT0}, s3
    v_add3_u32 {v(CA)}, {v(T2)}, {v(T3)}, {sT0}
    v_lshlrev_b32 {v(T0)}, 5, {v(T0)}
    v_lshlrev_b32 {v(T1)}, 4, {v(T1)}
    v_sub_u32 {v(T1)}, {v(T1)}, {v(T0)}
    s_add_u32 s3, s3, {sT1}
    s_add_u32 s3, s3, 480
    v_add_u32 {v(CB)}, s3, {v(T1)}
    s_add_u32 {sPA}, {sT1}, {sU}
    s_lshl_b32 s3, {sM}, 12
    s_add_u32 {sU}, {sU}, s3
    v_mov_b32 {v(VZ)}, 0
    v_mov_b32 {v(VZ+1)}, 0
    v_mov_b32 {v(VZ+2)}, 0
    v_mov_b32 {v(VZ+3)}, 0
    v_lshrrev_b32 {v(T0)}, 5, {v(VL)}
    v_mul_u32_u24 {v(T0)}, {UCH}, {v(T0)}
    v_and_b32 {v(T1)}, 31, {v(VL)}
    v_lshl_add_u32 {v(T0)}, {v(T1)}, 4, {v(T0)}
    v_add_u32 {v(T0)}, {UL+4096}, {v(T0)}
    ds_write_b128 {v(T0)}, {v(VZ,4)}
    v_and_b32 {v(T0)}, 15, {v(VL)}
    v_lshrrev_b32 {v(T1)}, 1, {v(T0)}
    v_mul_u32_u24 {v(T1)}, {CPY}, {v(T1)}
    v_and_b32 {v(T0)}, 1, {v(T0)}
    v_lshl_add_u32 {v(T0)}, {v(T0)}, 4, {v(T1)}
    v_add_u32 {v(VHZ)}, {HC}, {v(T0)}
    s_mul_i32 {sT0}, {sI2}, 224
    s_mul_i32 s3, {sW}, 28
    s_add_u32 {sT0}, {sT0}, s3
    s_lshl_b32 {sT0}, {sT0}, 10
    s_add_u32 {sHL[0]}, {sT0}, {WS_H}
    s_add_u32 {sHL[1]}, {sT0}, {WS_H + 112*1024}
    """)
    skl = [f"buffer_load_dwordx4 {v(HR,4)}, {v(VSK[1])}, {SK}, 0 offen", f"buffer_load_dwordx4 {v(HR+4,4)}, {v(VSK[0])}, {SK}, 0 offen",
           f"buffer_load_dwordx4 {v(HR+8,4)}, {v(VSK[2])}, {SK}, 0 offen", f"buffer_load_dwordx4 {v(HR+12,4)}, {v(VSK[0])}, {SK}, 0 offen offset:1024"]

    VRW = 224; VRR = 225; VUR = 226; VYS = 227; VY = [228, 229]; VQ = [230, 231]; VGA = 232
    EWA = 233; ERA = [234, 235, 236]; EWB = 237; ERB = [238, 239, 240]; EY = 241; EQ = [242, 243]; EO = 244
    VG = [14, 15]; OMG = [8, 9]; RA = HC + 8192; sO = ["s62", "s63"]; sQS = "s66"; sYS = "s93"
    S3 = lines(f"""
    s_lshl_b32 s3, {sW}, 12
    s_add_u32 s3, s3, {HC}
    v_add_u32 {v(VRW)}, s3, {v(V16)}
    v_xor_b32 {v(VRR)}, 4096, {v(VRW)}
    v_and_b32 {v(T3)}, 15, {v(VL)}
    v_lshlrev_b32 {v(T3)}, 5, {v(T3)}
    v_lshrrev_b32 {v(T2)}, 4, {v(VL)}
    v_lshl_add_u32 {v(T3)}, {v(T2)}, 3, {v(T3)}
    s_lshr_b32 s3, {sW}, 1
    s_mul_i32 s3, s3, {UCH}
    s_lshl_b32 {sT0}, {sKH}, 11
    s_sub_u32 s3, s3, {sT0}
    s_add_u32 s3, s3, {UL+504+2048}
    v_sub_u32 {v(VUR)}, s3, {v(T3)}
    v_and_b32 {v(T1)}, 3, {v(VL)}
    v_lshlrev_b32 {v(T1)}, 4, {v(T1)}
    v_bfe_u32 {v(T3)}, {v(VL)}, 2, 2
    v_lshl_add_u32 {v(T1)}, {v(T3)}, 7, {v(T1)}
    v_bfe_u32 {v(T3)}, {v(VL)}, 4, 1
    v_lshl_add_u32 {v(T1)}, {v(T3)}, 9, {v(T1)}
    v_lshrrev_b32 {v(T3)}, 5, {v(VL)}
    v_lshl_add_u32 {v(VYS)}, {v(T3)}, 6, {v(T1)}
    """)
    S3_marks = [0, len(S3)]
    S3 += lines(f"""
    v_lshrrev_b32 {v(T1)}, 3, {v(VL)}
    v_and_b32 {v(T2)}, 7, {v(VL)}
    v_lshlrev_b32 {v(T3)}, 12, {v(T1)}
    v_lshl_add_u32 {v(VY[0])}, {v(T2)}, 4, {v(T3)}
    v_add_u32 {v(VY[1])}, {32768-1024}, {v(VY[0])}
    v_lshrrev_b32 {v(T3)}, 4, {v(VL)}
    v_xor_b32 {v(T2)}, {v(T2)}, {v(T3)}
    v_lshlrev_b32 {v(T2)}, 4, {v(T2)}
    v_mul_u32_u24 {v(T1)}, 896, {v(T1)}
    v_add_u32 {v(VQ[0])}, {v(T1)}, {v(T2)}
    v_xor_b32 {v(T2)}, 64, {v(T2)}
    v_add_u32 {v(T1)}, {7168-1024}, {v(T1)}
    v_add_u32 {v(VQ[1])}, {v(T1)}, {v(T2)}
    s_lshl_b32 s3, {sI2}, 8
    s_add_u32 s3, s3, {WS_G}
    v_and_b32 {v(T1)}, 31, {v(VL)}
    v_lshl_add_u32 {v(VGA)}, {v(T1)}, 2, s3
    s_lshl_b32 s3, {sI2}, 2
    s_add_u32 s3, s3, {sW}
    s_mul_i32 s3, s3, {16*896}
    s_lshl_b32 {sQS}, {sCT}, 7
    s_add_u32 {sQS}, {sQS}, s3
    s_add_u32 {sQS}, {sQS}, {XB}
    """)
    ea = [f"s_mul_i32 {sT0}, {sW}, 6144", f"s_add_u32 s3, {sT0}, {RA}", f"v_add_u32 {v(EWA)}, s3, {v(V16)}", f"v_add_u32 {v(EWB)}, {sM0P}, {v(V16)}"]
    for sg in range(1, 4):
        ea += [f"s_xor_b32 {sT0}, {sW}, {sg}", f"s_mul_i32 s3, {sT0}, 6144", f"s_add_u32 s3, s3, {RA + 2048*(sg-1)}", f"v_add_u32 {v(ERA[sg-1])}, s3, {v(V16)}",
               f"s_mul_i32 s3, {sT0}, {PIECE}", f"s_add_u32 s3, s3, {(sg-1)*SLOT}", f"v_add_u32 {v(ERB[sg-1])}, s3, {v(V16)}"]
    ea += lines(f"""v_bfe_u32 {v(T1)}, {v(VL)}, 2, 2
    v_lshrrev_b32 {v(T2)}, 5, {v(VL)}
    v_lshl_add_u32 {v(T1)}, {v(T2)}, 2, {v(T1)}
    v_lshlrev_b32 {v(T1)}, 7, {v(T1)}
    v_bfe_u32 {v(T3)}, {v(VL)}, 1, 1
    v_lshl_add_u32 {v(T1)}, {v(T3)}, 6, {v(T1)}
    v_bfe_u32 {v(T3)}, {v(VL)}, 4, 1
    v_lshl_add_u32 {v(T1)}, {v(T3)}, 4, {v(T1)}
    v_and_b32 {v(T3)}, 1, {v(VL)}
    v_lshl_add_u32 {v(T1)}, {v(T3)}, 3, {v(T1)}
    s_lshl_b32 s3, {sW}, 11
    s_add_u32 s3, s3, {YL}
    v_add_u32 {v(EY)}, s3, {v(T1)}
    v_and_b32 {v(T1)}, 31, {v(VL)}
    v_bfe_u32 {v(T3)}, {v(VL)}, 1, 3
    s_lshl_b32 s3, {sW}, 1
    v_xor_b32 {v(T3)}, s3, {v(T3)}
    v_lshlrev_b32 {v(T3)}, 4, {v(T3)}
    v_lshl_add_u32 {v(T3)}, {v(T1)}, 7, {v(T3)}
    v_lshl_add_u32 {v(T3)}, {v(T2)}, 3, {v(T3)}
    v_add_u32 {v(EQ[0])}, {QL}, {v(T3)}
    v_xor_b32 {v(EQ[1])}, 16, {v(EQ[0])}
    v_mul_u32_u24 {v(T1)}, 896, {v(T1)}
    v_lshl_add_u32 {v(EO)}, {v(T2)}, 4, {v(T1)}
    s_mul_i32 {sO[0]}, {sI2}, {64*896}
    s_lshl_b32 s3, {sCT}, 2
    s_add_u32 s3, s3, {sW}
    s_lshl_b32 {sT0}, s3, 5
    s_add_u32 {sO[0]}, {sO[0]}, {sT0}
    s_add_u32 {sO[1]}, {sO[0]}, {32*896}
    s_lshl_b32 s3, s3, 16
    s_lshl_b32 {sYS}, {sI2}, 7
    s_add_u32 {sYS}, {sYS}, s3
    s_add_u32 {sYS}, {sYS}, {WS_YT}""")
    S3_marks.append(len(S3))
    S3 += ea + [f"v_add_u32 {v(245)}, 57344, {v(EWB)}"]
    NG = 224
    G = Gaps(NG)
    def item_start(i): return CH * i if i <= 7 else P1 + 28 * (i - 7)
    gT = lambda T: item_start(T + 7 - N1)
    def xread(g):
        if g < P1: c = g // CH; ks = (g % CH) // N1; unit = g % N1; it = c
        else: it = 7 + (g - P1) // 28; k = (g - P1) % 28; ks = k % 4; unit = k // 4
        sl = it % 4; hi = 1 if sl >= 3 else 0
        off = (sl - 3 * hi) * SLOT + 1024 * unit
        return f"ds_read_b128 {v(XRING+4*(g%NXR),4)}, {v(XR[hi][ks])} offset:{off}"
    def wread(c, ks):
        sl = c % 4; var = sl // 2; off = (sl - 2 * var) * SLOT + PIECE * ks; f = 4 * (4 * c + ks)
        return [f"ds_read_b64_tr_b16 {a(f+2*rd,2)}, {v(WR[var])} offset:{off+512*rd}" for rd in range(2)]
    tile_acc = {0: 0, 1: 1, 2: 2, 3: 3, 4: 0, 5: 1, 6: 2, 7: 3}
    for g in range(NG):
        if g < P1: c = g // CH; ks = 4 * c + (g % CH) // N1; T = g % N1
        else: T = N1 + (g - P1) // 28; ks = (g - P1) % 28
        A = v(ACC[tile_acc[T]], 16)
        G.m[g] = f"v_mfma_f32_32x32x16_bf16 {A}, {a(4*ks,4)}, {v(XRING+4*(g%NXR),4)}, {'0' if ks == 0 else A}"
    pre = []
    def at(g, item):
        if g < 0: pre.append(item)
        else: G.put(g, item)
    gB = lambda i: item_start(i) - PD - 1
    if not cfg.hack_p: G.put(cfg.p_load, poll_load("p", "0"))
    G.put(cfg.p_chk, [stamp("prepoll") if not (cfg.pass_stamps or cfg.start_stamps) else [], [] if cfg.hack_p else poll_check("p", "0"), [] if cfg.p_chk in (gB(NI - 2), gB(NI - 1)) else Ins("s_barrier")])
    for i in range(NI):
        at(gB(i), [WaitTag('vm', "it%d" % i), Ins("s_barrier")])
    assert cfg.z_chk < cfg.p_load
    G.put(cfg.z_load, poll_load("z", None))
    G.f[cfg.z_chk].insert(0, [stamp("zpre") if not (cfg.pass_stamps or cfg.start_stamps) else [], poll_check("z", None), stamp("zpost") if not (cfg.pass_stamps or cfg.start_stamps) else []])
    for g in range(NG):
        if g < P1 and g % N1 == 0:
            for s_ in wread(g // CH, (g % CH) // N1): at(g - PD - 1, s_)
        at(g - PD - 1, xread(g))
    cb = cfg.blk_c; deep = cfg.blk_deep and cb is not None
    for c in range(7):
        if deep:
            if c < cb: G.spread(dma_item(c + 2), max(gB(c) + 1, 0), gB(c + 1) + 1)
            if c > cb: G.put(12 * c, Ins("s_barrier")); G.spread(dma_item(c + 3), 12 * c + 1, 12 * c + 12)
        elif c != cb or not cfg.blk_dma: G.spread(dma_item(c + 2), max(gB(c) + 1, 0), gB(c + 1) + 1)
    for T in range(N1, 8): G.put(gT(T), ([WaitTag('lgkm', "hcw")] if T == 7 else []) + [Ins("s_barrier")])
    if deep: G.spread(dma_item(10), gT(3) + 1, gT(3) + 20)
    else: G.spread(dma_item(9) + dma_item(10), gB(7) + 1, gB(8) + 1)
    for i in range(11, NI): G.spread(dma_item(i), item_start(i - 3) + 1, item_start(i - 3) + 20)
    if cfg.wd_touch >= 0: G.put(cfg.wd_touch, f"buffer_load_dword {v(202)}, {v(200)}, {WD}, 0 offen {cfg.sc_wd}")
    for g_, n_ in (cfg.hack_sleep or []): G.put(g_, "s_sleep %d" % n_)
    if cfg.sk_at >= 0: G.spread(skl, cfg.sk_at, cfg.sk_at + 8)
    hv = []
    for rho in range(2):
        R = HR + 8 * rho; C_ = HCP + 12 * rho
        for k in range(4): hv.append(f"v_alignbit_b32 {v(C_+k)}, {v(R+4+k)}, {v(R+3+k)}, 16")
        for k in range(4): hv.append(f"v_mov_b32 {v(C_+4+k)}, {v(R+3+k)}")
        for k in range(4): hv.append(f"v_alignbit_b32 {v(C_+8+k)}, {v(R+3+k)}, {v(R+2+k)}, 16")
    hw = [Ins(f"ds_write_b128 {v(VHZ)}, {v(VZ,4)}", "hcw")]
    for rho in range(2):
        R = HR + 8 * rho; C_ = HCP + 12 * rho
        for cpy, src in enumerate((R + 4, C_, C_ + 4, C_ + 8)):
            hw.append(Ins(f"ds_write_b128 {v(VHW)}, {v(src,4)} offset:{cpy*CPY+1024*rho}", "hcw"))
    def epi(T, packed=False):
        A = ACC[tile_acc[T]]; Pk = PK[T % 2]; L = []
        for grp in range(2):
            g_ = A + 8 * grp; u_ = g_ + 4; E = ET
            if packed:
                E = ET if grp == 0 else HR
                L += [f"v_mul_f32 {v(E+i)}, {sNL2E}, {v(g_+i)}" for i in range(4)]
                L += [f"v_exp_f32 {v(E+i)}, {v(E+i)}" for i in range(4)]
                L += [f"v_pk_mul_f32 {v(u_+2*i,2)}, {v(g_+2*i,2)}, {v(u_+2*i,2)}" for i in range(2)]
                L += [f"v_pk_add_f32 {v(E+2*i,2)}, {v(E+2*i,2)}, 1.0 op_sel_hi:[1,0]" for i in range(2)]
                L += [f"v_rcp_f32 {v(E+i)}, {v(E+i)}" for i in range(4)]
                L += [f"v_pk_mul_f32 {v(u_+2*i,2)}, {v(u_+2*i,2)}, {v(E+2*i,2)}" for i in range(2)]
            else:
                L += [f"v_mul_f32 {v(E+i)}, {sNL2E}, {v(g_+i)}" for i in range(4)]
                L += [f"v_exp_f32 {v(E+i)}, {v(E+i)}" for i in range(4)]
                L += [f"v_mul_f32 {v(u_+i)}, {v(g_+i)}, {v(u_+i)}" for i in range(2)]
                L += [f"v_add_f32 {v(E+i)}, 1.0, {v(E+i)}" for i in range(4)]
                L += [f"v_rcp_f32 {v(E+i)}, {v(E+i)}" for i in range(4)]
                L += [f"v_mul_f32 {v(u_+i)}, {v(g_+i)}, {v(u_+i)}" for i in range(2, 4)]
                L += [f"v_mul_f32 {v(u_+i)}, {v(u_+i)}, {v(E+i)}" for i in range(4)]
            L += [f"v_cvt_pk_bf16_f32 {v(Pk+2*grp+i)}, {v(u_+2*i)}, {v(u_+2*i+1)}" for i in range(2)]
        L.append(f"s_lshl2_add_u32 {sSO2}, {sTO[T]}, {sHS}")
        L.append(Ins(f"buffer_store_dwordx4 {v(Pk,4)}, {v(V16)}, {WS}, {sSO2} offen {cfg.sc_h}", "hst"))
        return L
    page_slot = [(T + 7 - N1) % 4 for T in (4, 5, 6, 7)]
    def wd_page(n): return n if n < 21 else (n - 21 if n < 28 else (n - 7 if n < 35 else (n - 28 if n < 49 else n - 49)))
    def wd_prev(n): return n - 21 if 21 <= n < 28 else (n - 28 if n >= 35 else None)
    def wd_dma(n0, n1):
        L = []; n = n0
        while n < n1:
            p = wd_page(n); cnt = min(4, n1 - n, 7 - p % 7, 8 - n % 8)
            lds = page_slot[p // 7] * SLOT + 1024 * (p % 7)
            for k in range(cnt):
                it = [Ins(f"buffer_load_dwordx4 {v(VD[k])}, {WD}, {sSO} offen offset:{1024*k} {cfg.sc_wd} lds", "wd%d" % (n + k))]
                if wd_prev(n + k) is not None: it = [WaitTag('lgkm', "wr%d" % wd_prev(n + k))] + it
                if k == 0: L.append(f"s_add_u32 m0, {sM0P}, {lds}\n s_add_u32 {sSO}, {sDG[n >> 3]}, {7168*(n % 8)}")
                L.append(it)
            n += cnt
        return L
    def wd_read(n, dst):
        p = wd_page(n); sl = page_slot[p // 7]; hi = 1 if sl >= 2 else 0
        off = (sl - 2 * hi) * SLOT + 1024 * (p % 7)
        return [[WaitTag('vm', "wd%d" % n)] * (dt == 0 and not 28 <= n < 28 + cfg.n_raw) + [Ins(f"ds_read_b64_tr_b16 {dst(dt)}, {v(DR[hi][dt])} offset:{off}", "wr%d" % n)] for dt in range(2)]
    WD1 = 112
    NR = cfg.n_raw; RAW0 = 224 - 4 * NR; EWH = 245
    def raw_reg(n): return RAW0 + 4 * (NR - 1 - (n - 28))
    def raw_loads(n0, n1):
        L = []; n = n0
        while n < n1:
            cnt = min(4, n1 - n, 8 - n % 8)
            L.append(f"s_add_u32 {sSO}, {sDG[n >> 3]}, {7168*(n % 8)}")
            L += [f"buffer_load_dwordx4 {v(raw_reg(n+k),4)}, {v(VD[k])}, {WD}, {sSO} offen offset:{1024*k}" for k in range(cnt)]
            n += cnt
        return L
    def raw_write(n):
        p = wd_page(n); off = page_slot[p // 7] * SLOT + 1024 * (p % 7)
        it = [Ins(f"ds_write_b128 {v(EWB if off < 57344 else EWH)}, {v(raw_reg(n),4)} offset:{off if off < 57344 else off - 57344}", "ww%d" % n)]
        return [it]
    def fill_units(n0, n1):
        m = min(max(28 + NR, n0), n1)
        return [x for n in range(n0, m) for x in raw_write(n)] + wd_dma(m, n1)
    def wd1(n): return lambda dt: a(WD1 + 8 * (n >> 1) + 4 * dt + 2 * (n & 1), 2)
    def wd_reads(n0, n1): return [x for n in range(n0, n1) for x in wd_read(n, wd1(n))]
    if cfg.blk_c is None:
        if cfg.s3_at >= 0: l3_ = G.pour(S3, cfg.s3_at, cfg.hv_at, cfg.bud1); assert l3_ < 80
        lh = G.pour(hv, cfg.hv_at, max(P1 - 4, cfg.hv_at + 24), cfg.bud1 if cfg.hv_at < 70 else 20); assert lh < cfg.hw0
        G.spread(hw, cfg.hw0, cfg.hw1)
    else:
        n3 = len(S3) - (S3_marks + [len(S3)])[3 - cfg.blk_s3]; S3b = S3[len(S3) - n3:]; del S3[len(S3) - n3:]
        work = [hw[0], hv[0:4], hw[1], hv[4:8], hw[2], hv[8:12], hw[3], hv[12:16], hw[4], hv[16:20], hw[5], hv[20:24], hw[6], S3b[:5], hw[7], S3b[5:10], hw[8], S3b[10:]]
        d_ = dma_item(cfg.blk_c + 2) if cfg.blk_dma else []; blk = []
        if deep:
            G.spread(d_[:4], gB(cb) + 1, 12 * cb); d_ = d_[4:] + dma_item(cb + 3); blk = [Ins("s_barrier")]
        step_ = max(len(work) // (len(d_) + 1), 1)
        for j, it in enumerate(work):
            if j % step_ == 0 and d_: blk.append(d_.pop(0))
            blk.append(it)
        if cfg.blk_list:
            done_ = 0
            for g_, nw_ in cfg.blk_list:
                k_ = min(len(blk), done_ + 2 * nw_) if (g_, nw_) != cfg.blk_list[-1] else len(blk)
                G.put(g_, blk[done_:k_]); done_ = k_
        elif cfg.blk_g2: G.put(cfg.blk_g, blk[:9]); G.put(cfg.blk_g2, blk[9:])
        else: G.put(12 * cb if deep else (gB(cb) + 1 if cfg.blk_dma else cfg.blk_g), blk + d_)
    if NR:
        r0, r1, r2 = 28, 28 + min(NR, 6), 28 + min(NR, 6 + (NR - 6 + 1) // 2)
        assert cfg.hw1 <= gT(5) + 8 or NR <= 6
        G.spread(raw_loads(r0, r1), gT(4) + 21 - 12, gT(5))
        G.spread(wd_dma(0, 7), gT(5) + 1, gT(5) + 15); G.spread(raw_loads(r1, r2), gT(5) + 15, gT(6))
        G.spread(wd_dma(7, 14), gT(6) + 1, gT(6) + 15); G.spread(raw_loads(r2, 28 + NR), gT(6) + 15, gT(7))
    else:
        G.spread(wd_dma(0, 7), gT(5) + 1, gT(5) + 22)
        G.spread(wd_dma(7, 14), gT(6) + 1, gT(6) + 20)
    UD = ([f"s_mov_b32 m0, {sPA}\n s_add_u32 {sSO}, {sU}, {WS_UR if not cfg.hack_p else 0x900000}"] + [Ins(f"buffer_load_dwordx4 {v(V16)}, {WS}, {sSO} offen offset:{1024*j} sc1 lds", "u") for j in range(2)])
    G.spread(wd_reads(0, 7), gB(NI - 1) + 2, gT(7) + 12)
    if cfg.p_chk > gT(7) + 8:
        G.spread(wd_dma(14, 21), gT(7) + 1, cfg.p_chk)
        G.put(cfg.p_chk + 1, UD)
        G.spread(wd_dma(21, 28), cfg.p_chk + 2, NG - 1)
    else:
        assert cfg.p_chk in (gB(NI - 2), gB(NI - 1))
        G.put(cfg.p_chk + 4, UD)
        G.spread(wd_dma(14, 28), gT(7) + 1, NG - 1)
    bounds = [P1 + 2 + (NG - P1 - 4) * k // 7 for k in range(8)]
    last = 0
    for T in range(7):
        g0 = max(bounds[T], (P1 if T < N1 else gT(T + 1)) + 2, last)
        last = G.pour(epi(T), g0, max(bounds[T + 1], g0 + 1), cfg.bud)
        nxt = [t for t in range(T + 1, 8) if tile_acc[t] == tile_acc[T]]
        if nxt: assert last < gT(nxt[0]), (T, last)
    check_m0(G)
    SS = S + S2; k0 = len(SS) * min(cfg.late_pos, 100) // 100
    touch = []
    if cfg.x_touch:
        touch = lines(f"""v_min_u32 {v(200)}, {8*cfg.x_touch-1}, {v(VL)}
        v_lshrrev_b32 {v(201)}, 3, {v(200)}
        s_lshl_b32 s3, {sFQ}, 1
        s_add_u32 s3, s3, 3
        v_add_u32 {v(201)}, {'s3' if cfg.rot_t else '3'}, {v(201)}
        v_and_b32 {v(201)}, 7, {v(201)}
        v_mul_u32_u24 {v(201)}, 28672, {v(201)}
        v_and_b32 {v(200)}, 7, {v(200)}
        v_mul_u32_u24 {v(200)}, 896, {v(200)}
        v_add3_u32 {v(200)}, {v(200)}, {v(201)}, {sXBc}
        buffer_load_dword {v(202)}, {v(200)}, {X}, {sCH[0]} offen""")
    kvt = lines(f"""s_lshl_b32 s3, s2, 2
    s_add_u32 s3, s3, {sW}
    s_lshl_b32 s3, s3, 4
    v_min_u32 {v(203)}, 15, {v(VL)}
    v_add_lshl_u32 {v(203)}, {v(203)}, s3, 7
    global_load_dword {v(204)}, {v(203)}, s[94:95]
    global_load_dword {v(205)}, {v(203)}, s[96:97]""")
    if cfg.kv_touch == 0: P.add(kvt)
    P.add(SS[:k0])
    if cfg.late_pos <= 100: P.add(late_first)
    P.add(SS[k0:])
    if cfg.kv_touch == 1: P.add(kvt)
    if cfg.s3_at < 0: P.add(S3)
    if cfg.late_pos > 100: P.add(late_first)
    if cfg.kv_touch == 2: P.add(kvt)
    if cfg.trace: P.e('v_mov_b32 v253, 0')
    P.e(f"""s_lshl_b32 s3, s2, 2
    s_add_u32 s3, s3, {sW}
    s_mul_i32 s3, s3, 14
    v_min_u32 {v(200)}, 13, {v(VL)}
    v_add_lshl_u32 {v(200)}, {v(200)}, s3, 7""")
    if cfg.sk_at < 0: P.add(skl)
    if cfg.tlb:
        P.e(f"""v_min_u32 {v(203)}, 12, {v(VL)}
        v_lshlrev_b32 {v(203)}, 20, {v(203)}
        v_add_u32 {v(203)}, 0x1f000, {v(203)}
        buffer_load_dword {v(204)}, {v(203)}, {WS}, 0 offen
        buffer_load_dword {v(205)}, {v(VZ)}, {OUT}, 0 offen
        buffer_load_dword {v(206)}, {v(VZ)}, {WD}, 0 offen""")
    if cfg.wd_touch == -2: P.e(f"buffer_load_dword {v(202)}, {v(200)}, {WD}, 0 offen {cfg.sc_wd}")
    if cfg.warm and cfg.stub_at:
        P.e("s_mov_b64 exec, 0")
        for k in range(min(4, len(cfg.stub_at))): P.e(f"s_cmp_eq_u32 {sW}, {k}\n s_cbranch_scc1 L_pg{k}")
        P.e("L_pgback:\n s_mov_b64 exec, -1")
    if cfg.start_stamps: P.add(stamp("setup"))
    P.e(f"""s_waitcnt lgkmcnt(0)
    s_lshl_b32 s3, {sD}, 16
    s_and_b32 {sD}, {sD}, 0xffff0000
    s_cmp_lt_u32 {sW}, 2
    s_cselect_b32 {sD}, s3, {sD}""")
    P.add(pre)
    P.add(stamp("g1start"))
    G.put(P1 - 1, stamp("p1end"))
    if cfg.pass_stamps:
        for T in (5, 6, 7): G.put(gT(T) - 1, stamp("T%d" % T))
    add_trace(G, 6, 'g', [94, 96])
    G.emit(P, cfg.pair)
    if cfg.verbose: print("G1 gap costs", G.costs())
    if cfg.start_stamps: P.e("v_readfirstlane_b32 s8, v156\n v_readfirstlane_b32 s10, v157"); STAMP_REGS['prewait'] = 8; STAMP_REGS['karg'] = 10
    P.add(stamp("g1end"))
    CACC = 48
    def cA(buf, a_): return (0 if buf == 0 else 64) + 4 * a_
    def cB(buf, b_):
        i = 32 + 4 * b_ if buf == 0 else 96 + 4 * b_
        return i if i < 112 else 224 + (i - 112)
    def crA(st, k): return [f"ds_read_b64 {a(cA(st&1,k)+2*rd,2)}, {v(CA)} offset:{512*k+64*st+8*rd}" for rd in range(2)]
    def crB(st, k): return [f"ds_read_b128 {a(cB(st&1,k),4)}, {v(CB)} offset:{64*st+512*(7-k)}"]
    def creads(st): return [x for k in range(8) for x in crB(st, k) + crA(st, k)]
    e7 = epi(7, True); ra = [x for k in range(8) for x in crA(0, k)]
    P.add(ra[:10]); k = 10
    for j, it in enumerate(e7):
        P.add(it)
        if j % 6 == 5 and k < 16: P.add(ra[k]); k += 1
    P.add(ra[k:])
    P.vmwait("u"); P.e("s_barrier")
    for k in range(8): P.add(crB(0, k))
    hg = [f"s_lshr_b32 s3, {sI2}, 2", "s_mul_i32 s3, s3, 28", f"s_add_u32 s3, s3, 256", f"s_lshl_b32 s3, s3, 7", f"v_add_u32 {v(vP7)}, s3, {v(vP7)}",
          f"s_add_u32 s3, {sI2}, 32", "s_lshl_b32 s3, s3, 7", f"v_mov_b32 {v(T1)}, s3", f"v_cmp_gt_u32 vcc, 7, {v(VL)}", f"s_mov_b32 {sPA}, 0", "s_nop 0",
          f"v_cndmask_b32 {v(vP7)}, {v(T1)}, {v(vP7)}, vcc",
          f"s_lshl_b32 {sRG}, {sRG}, 12", f"s_add_u32 {sXB}, {sHL[0]}, {sRG}", f"s_add_u32 {sHE}, {sHL[0]}, {28*1024}"]
    d0 = fill_units(28, 35)
    npre = 0 if NR else 3
    P.add(d0[:npre])
    P.add(stamp("cstart"))
    C = Gaps(144)
    pairs = [(t, a_) for t in range(8) for a_ in range(t + 1)]
    for st in range(4):
        for j, (t, a_) in enumerate(pairs):
            A = v(CACC + 4 * t, 4)
            C.m[36 * st + j] = f"v_mfma_f32_16x16x32_bf16 {A}, {a(cA(st&1,a_),4)}, {a(cB(st&1,t-a_),4)}, {'0' if (st == 0 and a_ == 0) else A}"
        if st < 3: C.spread(creads(st + 1), 36 * st + 1, 36 * st + 33)
    HRING = 96; NHR = 32
    horder = [(0, ks) for ks in range(28)] + [(1, ks) for ks in (list(range(14, 28)) + list(range(14)) if cfg.b_rev else range(28))]
    def hload(n):
        st, ks = horder[n]; L = []
        if n == 28: L += [f"s_add_u32 {sXB}, {sHL[1]}, {sRG}", f"s_add_u32 {sHE}, {sHL[1]}, {28*1024}"]
        elif n > 0 and ks % 4 == 0: L += [f"s_add_u32 {sXB}, {sXB}, 4096", f"s_cmp_eq_u32 {sXB}, {sHE}\n s_cselect_b32 {sXB}, {sHL[st]}, {sXB}"]
        L.append(f"buffer_load_dwordx4 {v(HRING+4*(n%NHR),4)}, {v(V16)}, {WS}, {sXB} offen offset:{1024*(ks%4)} sc1")
        return L
    w0, w1, w2, w3 = cfg.c_wd
    C.spread(d0[npre:], 0, w0)
    C.spread(wd_reads(7, 14), 2, w0 - 2); C.spread(fill_units(35, 42), w0, w1)
    C.spread(wd_reads(14, 21), w0, w1 - 2); C.spread(fill_units(42, 49), w1, w2)
    C.spread(wd_reads(21, 28), w1, w2 - 2); C.spread(wd_dma(49, 56), w2, w3)
    C.put(cfg.g_arrive, arrive("hst", sFL))
    lh_ = C.pour(hg, 40, cfg.g_poll - 4, 10); assert lh_ < cfg.g_poll
    C.put(cfg.g_poll, poll_load("h", sPA))
    C.put(cfg.g_chk, [stamp("c_pre"), poll_check("h", sPA), stamp("c_post")])
    NH = cfg.nh_c
    C.spread([hload(n) for n in range(NH)], cfg.g_chk + 1, 144)
    RR = 48; UU = 18; DU = 80
    ce = [f"s_add_u32 {sU}, {sU}, {WS_YT}"]
    ce += [f"ds_read_b64 {v(UU+2*tau,2)}, {v(VUR)} offset:{512*(3-tau)}" for tau in range(4)]
    for tau in range(4):
        ce += lines(f"""
        v_and_b32 {v(DU+4*tau+0)}, {sMASK}, {v(UU+2*tau+1)}
        v_lshlrev_b32 {v(DU+4*tau+1)}, 16, {v(UU+2*tau+1)}
        v_and_b32 {v(DU+4*tau+2)}, {sMASK}, {v(UU+2*tau)}
        v_lshlrev_b32 {v(DU+4*tau+3)}, 16, {v(UU+2*tau)}""")
    lr = C.pour(ce[:5], max(lh_ + 1, 104), 112, 8); assert lr < cfg.c_bar - 4
    lc = C.pour(ce[5:], lr + 6, 140, 8)
    assert lc < 140
    C.put(cfg.c_bar, [WaitRegs(a(cA(1, 7), 4)), WaitRegs(v(UU, 8)), Ins("s_barrier")])
    check_m0(C, 1024)
    add_trace(C, 12, 'c', [94, 96])
    C.emit(P)
    if cfg.verbose: print("C gap costs", C.costs())
    hq = [hload(n) for n in range(NH, NH + cfg.nh_e)]; NH += cfg.nh_e
    def hnext():
        if hq: P.add(hq.pop(0))
    hnext()
    dfma = lambda base: [f"v_pk_fma_f32 {v(DU+2*k,2)}, s[78:79], {v(DU+2*k,2)}, {v(base+2*k,2)} op_sel_hi:[0,1,1]" for k in range(8)]
    P.e(f"s_cmp_eq_u32 {sKH}, 0\n s_cbranch_scc1 L_cw0")
    for tau in range(4): P.e(f"ds_write_b128 {v(VRW)}, {v(CACC+4*tau,4)} offset:{1024*tau}", nocount=True)
    P.add(dfma(CACC + 16))
    P.e("s_branch L_cw1\n L_cw0:\n s_nop 2")
    for tau in range(4): P.e(f"ds_write_b128 {v(VRW)}, {v(CACC+16+4*tau,4)} offset:{1024*tau}")
    P.add(dfma(CACC))
    P.e("L_cw1:")
    while hq: hnext()
    P.e("s_waitcnt lgkmcnt(0)\n s_barrier")
    ct_ = [f"ds_read_b128 {v(RR+4*tau,4)}, {v(VRR)} offset:{1024*tau}" for tau in range(4)]
    P.add(ct_); ct_ = []
    for pi in range(2):
        if cfg.c_tail_in_g2: ct_ += [f"v_add_f32 {v(DU+8*pi+k)}, {v(DU+8*pi+k)}, {v(RR+8*pi+k)}" for k in range(8)]
        else: ct_ += [f"v_pk_add_f32 {v(DU+8*pi+2*k,2)}, {v(DU+8*pi+2*k,2)}, {v(RR+8*pi+2*k,2)}" for k in range(4)]
        ct_ += [f"v_cvt_pk_bf16_f32 {v(UU+4*pi+k)}, {v(DU+8*pi+2*k)}, {v(DU+8*pi+2*k+1)}" for k in range(4)]
    for pi in range(2):
        ct_ += [f"v_permlane16_swap_b32 {v(UU+4*pi)}, {v(UU+4*pi+2)}", f"v_permlane16_swap_b32 {v(UU+4*pi+1)}, {v(UU+4*pi+3)}"]
        ct_ += [Ins(f"buffer_store_dwordx4 {v(UU+4*pi,4)}, {v(VYS)}, {WS}, {sU} offen offset:{1024*pi} sc1", "yst")]
    if not cfg.c_tail_in_g2: P.add(ct_); ct_ = []
    P.add(stamp("g2start"))
    GACC = 0; JIT = 64; NJ = 8
    G2 = Gaps(112)
    jn = 0
    for n in range(56):
        st, ks = horder[n]
        for dt in range(2):
            A = a(GACC + 32 * st + 16 * dt, 16)
            if ks < 14: W_ = a(WD1 + 8 * ks + 4 * dt, 4)
            else:
                r_ = JIT + 4 * (jn % NJ); jn += 1; W_ = a(r_, 4)
                for rd in range(2):
                    G2.put(2 * n + dt - 6, wd_read(2 * ks + rd, lambda d_, r_=r_, rd=rd: a(r_ + 2 * rd, 2))[dt])
            G2.m[2 * n + dt] = f"v_mfma_f32_32x32x16_bf16 {A}, {W_}, {v(HRING+4*(n%NHR),4)}, {'0' if n in (0, 28) else A}"
    reserved = sorted([8, 10] * bool(cfg.c_tail_in_g2) + list(cfg.q_at[:2]) + [cfg.g2_chk + 2, cfg.g2_chk + 4])
    t_ = 0.0; n = NH; la = []
    while n < 56:
        if reserved and reserved[0] <= t_ + cfg.g2_hpace / 2: reserved.pop(0); t_ += cfg.g2_hpace; continue
        g = int(t_)
        if n >= NHR: assert g >= 2 * (n - NHR) + 1
        la.append(2 * n - g); G2.put(g, hload(n)); n += 1; t_ += cfg.g2_hpace
    if cfg.verbose: print("H lookahead (gaps)", la)
    assert min(la) >= 8, la
    lt = G2.pour(ct_, 1, 10, 24) if ct_ else 0
    e1 = lines(f"""
    s_lshl_b32 s3, s2, 7
    s_add_u32 {sFL}, s3, {512*128}
    s_lshl_b32 s3, {sCT}, 12
    s_add_u32 {sPA}, s3, {512*128}
    """)
    l1 = G2.pour(e1, lt, lt + 8, 24); assert l1 <= cfg.g2_arrive
    G2.put(cfg.g2_arrive, [WaitTag('vm', "q"), arrive("yst", sFL)])
    qd = [f"s_lshl_b32 {sT1}, {sW}, 11\n s_add_u32 m0, {sT1}, {QL}"]
    qd += [Ins(f"buffer_load_dwordx4 {v(VQ[j])}, {X}, {sQS} offen offset:{1024*j} lds", "q") for j in range(2)]
    qd += [f"buffer_load_dword {v(VG[j])}, {v(VGA)}, {WS}, 0 offen offset:{128*j} sc1" for j in range(2)]
    G2.put(cfg.q_at[0] - 1, qd[0])
    for q_, g_ in zip(qd[1:], cfg.q_at): G2.put(g_, q_)
    def sends(st, addr):
        return [Ins(f"ds_write_b128 {addr(sg, jj)[0]}, {a(GACC+32*st+16*(sg>>1)+8*(sg&1)+4*jj,4)} offset:{addr(sg, jj)[1]}", "rw%d" % st) for sg in range(1, 4) for jj in range(2)]
    G2.spread(sends(0, lambda sg, jj: (v(EWA), 2048 * (sg - 1) + 1024 * jj)), 59, cfg.g2_chk - 1)
    G2.put(cfg.g2_poll, poll_load("y", sPA))
    G2.put(cfg.g2_chk, [stamp("g2_pre"), poll_check("y", sPA), WaitTag('lgkm', "rw0"), Ins("s_barrier"), [] if cfg.pass_stamps else stamp("g2_post")])
    yd = [f"s_add_u32 m0, {sT1}, {YL}"]
    yd += [Ins(f"buffer_load_dwordx4 {v(VY[j])}, {WS}, {sYS} offen offset:{1024*j} sc1 lds", "y") for j in range(2)]
    G2.put(cfg.g2_chk + 1, yd[0]); G2.put(cfg.g2_chk + 2, yd[1]); G2.put(cfg.g2_chk + 4, yd[2])
    QQ = 48; TT = 56; BB = 72; RX = 80; YY = 18; O = 48
    RP = [80, 84, 88, 92, 28 + 0, 28 + 0]
    un = lambda i, d, s_: (f"v_lshlrev_b32 {d}, 16, {s_}" if i % 2 == 0 else f"v_and_b32 {d}, {sMASK}, {s_}")
    p0 = [f"ds_read_b64 {v(QQ+4*st+2*J,2)}, {v(EQ[J])} offset:{4096*st}" for st in range(2) for J in range(2)]
    p0 += [f"v_sub_f32 {v(OMG[st])}, 1.0, {v(VG[st])}" for st in range(2)] + [[], []]
    p0 += [un(k, v(TT + k), v(QQ + (k >> 1))) for k in range(16)]
    p0 += [f"v_mul_f32 {v(TT+k)}, {v(TT+k)}, {v(VG[k>>3])}" for k in range(16)]
    l0 = G2.pour(p0, cfg.g2_arrive + 1, 60, 22); assert l0 < cfg.g2_chk
    p1 = [f"ds_read_b128 {v(RX+4*jj,4)}, {v(ERA[0])} offset:{1024*jj}" for jj in range(2)]
    p1 += [f"ds_read_b128 {v(RX+8+4*jj,4)}, {v(ERA[1])} offset:{1024*jj}" for jj in range(2)]
    p1 += [f"v_accvgpr_read_b32 {v(BB+k)}, {a(GACC+k)}" for k in range(8)]
    p1 += [f"v_add_f32 {v(BB+k)}, {v(BB+k)}, {v(RX+k)}" for k in range(8)]
    p1 += [f"ds_read_b128 {v(RX+4*jj,4)}, {v(ERA[2])} offset:{1024*jj}" for jj in range(2)]
    p1 += [f"v_add_f32 {v(BB+k)}, {v(BB+k)}, {v(RX+8+k)}" for k in range(8)]
    p1 += [f"v_add_f32 {v(BB+k)}, {v(BB+k)}, {v(RX+k)}" for k in range(8)]
    p1 += [f"v_mul_f32 {v(BB+k)}, {v(BB+k)}, {v(OMG[0])}" for k in range(8)]
    l3 = G2.pour(p1, cfg.g2_chk + 1, cfg.g2_pre - 1, 24); assert l3 <= cfg.g2_pre + 4, l3
    p2 = [[WaitTag('vm', "y"), Ins("s_barrier")]]
    p2 += [f"ds_read_b64_tr_b16 {v(YY+4*st+2*J,2)}, {v(EY)} offset:{1024*J+32*st}" for st in range(2) for J in range(2)]
    p2 += [[], [], []]
    p2 += [un(k, v(RX + k), v(YY + (k >> 1))) for k in range(8)]
    p2 += [f"v_fmac_f32 {v(BB+k)}, {v(TT+k)}, {v(RX+k)}" for k in range(8)]
    p2 += [f"v_cvt_pk_bf16_f32 {v(O+k)}, {v(BB+2*k)}, {v(BB+2*k+1)}" for k in range(4)]
    p2 += [un(k, v(RX + k), v(YY + (k >> 1))) for k in range(8, 16)]
    p2 += [f"v_permlane32_swap_b32 {v(O)}, {v(O+2)}", f"v_permlane32_swap_b32 {v(O+1)}, {v(O+3)}"]
    p2 += [f"buffer_store_dwordx4 {v(O,4)}, {v(EO)}, {OUT}, {sO[0]} offen {cfg.sc_out}"]
    p2 += [f"v_mul_f32 {v(TT+k)}, {v(TT+k)}, {v(RX+k)}" for k in range(8, 16)]
    p2 += [f"v_mov_b32 {v(T1)}, {v(OMG[1])}", f"v_mov_b32 {v(T2)}, {v(OMG[1])}"]
    G2.pour(p2, max(l3, cfg.g2_pre), 111, 24)
    check_m0(G2)
    add_trace(G2, 8, 'h', [94, 96])
    G2.emit(P, 2)
    if cfg.verbose: print("G2 gap costs", G2.costs())
    P.add(stamp("g2end"))
    R1 = 96; O2 = 52
    w_ = sends(1, lambda sg, jj: (v(EWB), (sg - 1) * SLOT + 1024 * jj))
    P.add(w_[:2])
    for k in range(8): P.e(f"v_accvgpr_read_b32 {v(BB+k)}, {a(GACC+32+k)}")
    P.add(w_[2:])
    P.e("s_waitcnt lgkmcnt(0)\n s_barrier")
    for jj in range(2):
        for sg in range(1, 4): P.e(f"ds_read_b128 {v(R1+8*(sg-1)+4*jj,4)}, {v(ERB[sg-1])} offset:{1024*jj}")
    for jj in range(2):
        for sg in range(3):
            for i in range(2): P.e(f"v_pk_add_f32 {v(BB+4*jj+2*i,2)}, {v(BB+4*jj+2*i,2)}, {v(R1+8*sg+4*jj+2*i,2)}")
        for i in range(2): P.e(f"v_pk_fma_f32 {v(BB+4*jj+2*i,2)}, {v(BB+4*jj+2*i,2)}, {v(T1,2)}, {v(TT+8+4*jj+2*i,2)}")
        for i in range(2): P.e(f"v_cvt_pk_bf16_f32 {v(O2+2*jj+i)}, {v(BB+4*jj+2*i)}, {v(BB+4*jj+2*i+1)}")
    P.e(f"v_permlane32_swap_b32 {v(O2)}, {v(O2+2)}\n v_permlane32_swap_b32 {v(O2+1)}, {v(O2+3)}")
    P.e(f"buffer_store_dwordx4 {v(O2,4)}, {v(EO)}, {OUT}, {sO[1]} offen {cfg.sc_out}")
    if cfg.stamps: emit_stamps(P)
    if cfg.fixdur:
        P.e(f"""L_fix:
        s_memrealtime s[4:5]
        s_waitcnt lgkmcnt(0)
        s_sub_u32 s4, s4, s100
        s_cmp_lt_i32 s4, {cfg.fixdur}
        s_cbranch_scc1 L_fix""")
    P.e("s_endpgm")

def check_m0(G, init=None):
    flat = []
    def fl(it):
        if isinstance(it, str):
            for l in lines(it): flat.append(Ins(l))
        elif isinstance(it, (list, tuple)):
            for x in it: fl(x)
        elif isinstance(it, Ins): flat.append(it)
    for f in G.f:
        for it in f: fl(it)
    last_off = init
    for it in flat:
        if it.kind == 'salu' and ('s', 'm0') in it.w: last_off = -1024
        if it.kind == 'dma':
            m = re.search(r'offset:(\d+)', it.text); off = int(m.group(1)) if m else 0
            assert last_off is not None and off == last_off + 1024, ("m0 group interleaved", it.text)
            last_off = off

def emit_stamps(P):
    P.e("s_waitcnt vmcnt(0)")
    P.e("s_memtime s[4:5]\n s_memrealtime s[6:7]\n s_waitcnt lgkmcnt(0)")
    n = len(stamp_names)
    for k in range(n):
        P.e(f"s_sub_u32 s3, s{STAMP_REGS[stamp_names[k]]}, {'s100' if cfg.rt else 's98'}"); P.e(f"v_mov_b32 v{200+k}, s3")
    P.e(f"s_sub_u32 s3, {'s6, s100' if cfg.rt else 's4, s98'}\n v_mov_b32 v{200+n}, s3")
    P.e(f"""s_lshl_b32 s3, s2, 2
    s_add_u32 s3, s3, {sW}
    s_lshl_b32 s3, s3, 7
    s_add_u32 s3, s3, {WS_STAMP}
    v_mov_b32 v229, 0
    v_mov_b32 v230, s100
    v_mov_b32 v231, s6
    v_mov_b32 v2, 0
    s_mov_b64 exec, 1""")
    for k in range(8): P.e(f"buffer_store_dwordx4 v[{200+4*k}:{203+4*k}], v2, {WS}, s3 offen offset:{16*k}")
    if cfg.trace:
        P.e(f"""s_mov_b64 exec, -1
        v_subrev_u32 v254, s98, v254
        v_subrev_u32 v255, s98, v255
        s_lshl_b32 s3, s2, 2
        s_add_u32 s3, s3, {sW}
        s_lshl_b32 s3, s3, 9
        s_add_u32 s3, s3, {WS_STAMP + 0x40000}
        v_lshlrev_b32 v2, 2, v1
        buffer_store_dword v254, v2, {WS}, s3 offen
        v_readlane_b32 s4, v253, 0
        v_readlane_b32 s5, v253, 1
        v_readlane_b32 s6, v253, 2
        v_readlane_b32 s7, v253, 3
        s_nop 3
        v_writelane_b32 v255, s4, 60
        v_writelane_b32 v255, s5, 61
        v_writelane_b32 v255, s6, 62
        v_writelane_b32 v255, s7, 63
        buffer_store_dword v255, v2, {WS}, s3 offen offset:256""")

def gen_aux(P0):
    P = P0
    K, V_, SH, GW = "s[40:43]", "s[44:47]", "s[48:51]", "s[52:55]"
    sA = "s68"; sST = "s69"; sUS = "s70"; sLO = "s71"; sHI = "s72"; sC = "s73"; sC2 = "s74"; sTA = ["s56", "s57"]; sTW = ["s58", "s59"]
    VL = 1; T0 = 2; T1 = 3; VZA = 4; VB = 5; VB2 = 6; VM = 7; VX = 8; VR = 9; VS = 11; VW = 12; VWt = [13, 14]; VRB = 16; VQ = 20; VQ2 = 21; VGW = 22
    KP = [48, 58]; VP = [68, 76]; WR_ = [84, 86]; WT = [88, 94]; OO = 100; UV = 108; OUT_ = 124; RB = 160; PF = 24
    TS = 17408
    P.e("s_cmp_lt_u32 s2, 256\n s_cbranch_scc1 L_auxgo\n s_endpgm\n L_auxgo:")
    for reg, off in ((K, 8), (V_, 16), (SH, 24), (GW, 80)): P.e(ldptr(reg, off))
    P.add(srd_hi(K, NQ) + srd_hi(V_, NQ) + srd_hi(SH, 3584) + srd_hi(X, NQ) + srd_hi(GW, 896) + srd_hi(WS, WS_SIZE) + srd_hi(WD, NW))
    P.e(f"""
    s_sub_u32 {sA}, s2, 224
    s_mul_i32 {sSO}, {sA}, {64*896}
    s_mul_i32 {sST}, {sW}, 40960
    s_lshl_b32 {sTA[0]}, {sW}, 7
    s_add_u32 {sTA[1]}, {sTA[0]}, 512
    s_cmp_eq_u32 {sW}, 3
    s_cselect_b32 {sTA[1]}, {NQ}, {sTA[1]}
    s_lshl_b32 {sTW[0]}, {sW}, 9
    s_add_u32 {sTW[1]}, {sTW[0]}, 2048
    v_lshrrev_b32 {v(T0)}, 3, {v(VL)}
    v_and_b32 {v(T1)}, 7, {v(VL)}
    v_mul_u32_u24 {v(VB)}, 896, {v(T0)}
    v_lshl_add_u32 {v(VB)}, {v(T1)}, 4, {v(VB)}
    v_add_u32 {v(VB)}, {sSO}, {v(VB)}
    v_add_u32 {v(VB2)}, 6144, {v(VB)}
    v_add_u32 {v(VM)}, -7168, {v(VB)}
    v_lshlrev_b32 {v(VX)}, 3, {v(VL)}
    s_mul_i32 s3, {sA}, {24*128}
    v_lshlrev_b32 {v(VZA)}, 7, {v(VL)}
    v_add_u32 {v(VZA)}, s3, {v(VZA)}
    v_mov_b32 {v(vARR)}, -16
    v_cmp_gt_u32 vcc, 24, v0
    v_mov_b32 {v(vZERO)}, 0
    v_cndmask_b32 {v(VZA)}, {v(vARR)}, {v(VZA)}, vcc
    v_cmp_eq_u32 vcc, 0, v0
    v_mov_b32 {v(vONE)}, 1
    s_waitcnt lgkmcnt(0)
    v_cndmask_b32 {v(vARR)}, {v(vARR)}, 0, vcc
    s_mov_b32 s34, 256
    s_mov_b32 s35, 0x20000
    """)
    def dset(k, j):
        b = TS * k; tag = "pin%d%d" % (k, j); L = []
        L.append([f"s_add_u32 {sC}, {sTA[k]}, {14336*j}\n s_add_u32 m0, {sST}, {b+1024+2048*j}", Ins(f"buffer_load_dwordx4 {v(VB)}, {K}, {sC} offen lds", tag)])
        L.append(Ins(f"buffer_load_dwordx4 {v(VB2)}, {K}, {sC} offen offset:1024 lds", tag))
        if j == 0:
            L.append([f"s_add_u32 m0, {sST}, {b}", Ins(f"buffer_load_dwordx4 {v(VM)}, {K}, {sC} offen lds", tag)])
            L.append(f"buffer_load_dwordx2 {v(WR_[k],2)}, {v(VX)}, {SH}, {sTW[k]} offen")
        L.append([f"s_add_u32 m0, {sST}, {b+9216+2048*j}", Ins(f"buffer_load_dwordx4 {v(VB)}, {V_}, {sC} offen lds", tag)])
        L.append(Ins(f"buffer_load_dwordx4 {v(VB2)}, {V_}, {sC} offen offset:1024 lds", tag))
        return L
    P.add(dset(0, 0))
    P.e(f"buffer_store_dword {v(vZERO)}, {v(VZA)}, {WS}, 0 offen sc1", tag="zst")
    P.add(dset(0, 1))
    P.e(f"""
    v_bfe_u32 {v(VR)}, {v(VL)}, 2, 2
    v_lshlrev_b32 {v(VR)}, 7, {v(VR)}
    v_lshrrev_b32 {v(VS)}, 4, {v(VL)}
    v_lshl_add_u32 {v(VR)}, {v(VS)}, 5, {v(VR)}
    v_and_b32 {v(VS)}, 3, {v(VL)}
    v_lshl_add_u32 {v(VR)}, {v(VS)}, 3, {v(VR)}
    v_add_u32 {v(VR)}, {sST}, {v(VR)}
    s_mov_b32 {sLO}, 0xffff
    s_mov_b32 {sMASK}, 0xffff0000
    v_lshlrev_b32 {v(VW)}, 4, {v(T1)}
    v_lshl_add_u32 {v(VW)}, {v(VL)}, 7, {v(VW)}
    v_add_u32 {v(VW)}, {sST}, {v(VW)}
    v_xor_b32 {v(VRB)}, {v(T0)}, {v(T1)}
    v_lshlrev_b32 {v(VRB)}, 4, {v(VRB)}
    v_lshl_add_u32 {v(VRB)}, {v(T0)}, 7, {v(VRB)}
    v_add_u32 {v(VRB)}, {sST}, {v(VRB)}
    v_lshlrev_b32 {v(VGW)}, 4, {v(T1)}
    v_lshl_add_u32 {v(VS)}, {v(T0)}, 12, {v(VGW)}
    s_lshl_b32 s3, {sW}, 18
    s_sub_u32 {sUS}, 31, {sA}
    s_lshl_b32 {sUS}, {sUS}, 7
    s_add_u32 {sUS}, {sUS}, s3
    s_add_u32 {sUS}, {sUS}, {WS_UR}
    """)
    P.add(dset(0, 2))
    P.vmwait("zst")
    P.e(f"buffer_atomic_add {v(vONE)}, {v(vARR)}, s[32:35], 0 offen sc1")
    P.add(dset(0, 3))
    if cfg.hack_aux: P.e("s_sleep 64\n s_sleep 32"); P.add(poll_load("za", None)); P.e("s_branch L_auxdone")
    def reads(k, j):
        b = TS * k; K_ = KP[j & 1]; V2 = VP[j & 1]
        L = [WaitTag('vm', "pin%d%d" % (k, j))]
        L += [f"ds_read_b64_tr_b16 {v(K_+2*m,2)}, {v(VR)} offset:{b+512+2048*j+512*m}" for m in range(5)]
        L += [f"ds_read_b64_tr_b16 {v(V2+2*m,2)}, {v(VR)} offset:{b+9216+2048*j+512*m}" for m in range(4)]
        return L
    def wprep(k):
        W = WR_[k]; T_ = WT[k]
        return lines(f"""v_alignbit_b32 {v(T_)}, {v(W)}, {v(W)}, 16
        v_alignbit_b32 {v(T_+1)}, {v(W+1)}, {v(W+1)}, 16
        v_and_b32 {v(T_+2)}, {sLO}, {v(W)}
        v_bfi_b32 {v(T_+3)}, {sLO}, {v(W+1)}, {v(W)}
        v_and_b32 {v(T_+4)}, {sMASK}, {v(W+1)}""")
    def owrites(k, j):
        return [[f"v_xor_b32 {v(VWt[q&1])}, {16*q}, {v(VW)}", Ins(f"ds_write_b128 {v(VWt[q&1])}, {v(OUT_+4*q,4)} offset:0", "ow")] for q in (7 - 2 * j, 6 - 2 * j)]
    def readback(k): return [f"ds_read_b128 {v(RB+4*q,4)}, {v(VRB)} offset:{1024*q}" for q in range(8)]
    def stores(k): return [[f"s_add_u32 {sC2}, {sUS}, {(k << 20) + 32768*q}", Ins(f"buffer_store_dwordx4 {v(RB+4*q,4)}, {v(VS)}, {WS}, {sC2} offen sc1", "pst")] for q in range(8)]
    wdt = lines(f"""s_lshl_b32 s3, {sA}, 2
    s_add_u32 s3, s3, {sW}
    s_mul_i32 s75, s3, {98*128}
    v_lshlrev_b32 {v(156)}, 7, {v(VL)}
    v_add_u32 {v(157)}, {34*128}, {v(156)}
    buffer_load_dword {v(158)}, {v(156)}, {WD}, s75 offen
    buffer_load_dword {v(159)}, {v(157)}, {WD}, s75 offen""")
    def step(P, k, j, fill):
        if cfg.aux_wd == (k, j): fill = list(fill) + ["\n".join(wdt)]
        K_ = KP[j & 1]; V2 = VP[j & 1]; T_ = WT[k]; fill = list(fill); per = (len(fill) + 9) // 10
        def nx():
            for _ in range(per):
                if fill: P.add(fill.pop(0))
        P.add(WaitRegs(v(V2 + 6, 2)))
        if cfg.stamps: r_ = [60, 62, 64, 66, 76, 78, 80, 92][4 * k + j]; P.e(f"s_memtime s[{r_}:{r_+1}]")
        for h in range(2):
            J = range(4 * h, 4 * h + 4)
            for i in J: P.e(f"v_dot2_f32_bf16 {v(OO+2*(i%4))}, {v(K_+i+2)}, {v(T_+2)}, 0\n v_dot2_f32_bf16 {v(OO+2*(i%4)+1)}, {v(K_+i+2)}, {v(T_)}, 0")
            nx()
            for i in J: P.e(f"v_dot2_f32_bf16 {v(OO+2*(i%4))}, {v(K_+i+1)}, {v(T_+3)}, {v(OO+2*(i%4))}\n v_dot2_f32_bf16 {v(OO+2*(i%4)+1)}, {v(K_+i+1)}, {v(T_+1)}, {v(OO+2*(i%4)+1)}")
            nx()
            for i in J: P.e(f"v_dot2_f32_bf16 {v(OO+2*(i%4))}, {v(K_+i)}, {v(T_+4)}, {v(OO+2*(i%4))}")
            nx()
            for i in J: P.e(f"v_lshlrev_b32 {v(UV+2*(i%4))}, 16, {v(V2+i)}\n v_and_b32 {v(UV+2*(i%4)+1)}, {sMASK}, {v(V2+i)}")
            nx()
            for i in J: P.e(f"v_pk_mul_f32 {v(UV+2*(i%4),2)}, {v(UV+2*(i%4),2)}, {v(OO+2*(i%4),2)}")
            nx()
            for i in J: P.e(f"v_cvt_pk_bf16_f32 {v(OUT_+31-8*j-i)}, {v(UV+2*(i%4)+1)}, {v(UV+2*(i%4))}")
        while fill: nx()
    P.add(reads(0, 0)); P.add(wprep(0))
    if cfg.stamps: P.e("s_waitcnt lgkmcnt(0)\n s_memtime s[86:87]")
    step(P, 0, 0, dset(1, 0) + reads(0, 1))
    step(P, 0, 1, dset(1, 1) + reads(0, 2))
    step(P, 0, 2, dset(1, 2) + reads(0, 3))
    P.e(f"s_cmp_eq_u32 {sW}, 3\n s_cbranch_scc1 L_gate")
    Pg = Prog(); Pg.items = list(P.items)
    st0 = stores(0)
    step(P, 0, 3, dset(1, 3) + reads(1, 0) + wprep(1) + owrites(0, 0) + owrites(0, 1))
    P.add(owrites(0, 2) + owrites(0, 3))
    step(P, 1, 0, reads(1, 1) + readback(0))
    step(P, 1, 1, reads(1, 2) + st0[:4] + owrites(1, 0))
    step(P, 1, 2, poll_load("za", None) + reads(1, 3) + st0[4:] + owrites(1, 1))
    step(P, 1, 3, owrites(1, 2))
    P.add(owrites(1, 3)); P.add(readback(1)); P.add(stores(1))
    P.e("s_branch L_auxdone")
    P = Pg; P.e("L_gate:")
    step(P, 0, 3, owrites(0, 0) + owrites(0, 1) + owrites(0, 2))
    P.add(owrites(0, 3)); P.add(readback(0)); P.add(stores(0)); P.add(poll_load("za", None))
    T = Prog(); T.e("L_auxdone:")
    if cfg.stamps: T.e("s_memtime s[88:89]")
    QB = 48; GWB = 112; AC = 104
    T.e(f"""s_lshl_b32 {sC}, {sA}, 7
    s_add_u32 {sC2}, {sC}, {32*128}
    s_lshl_b32 {sT0}, {sA}, 2
    s_add_u32 {sT0}, {sT0}, {sW}
    s_mul_i32 {sSO}, {sT0}, {16*896}
    v_mul_u32_u24 {v(VQ)}, {2*896}, {v(T0)}
    v_add_u32 {v(VQ)}, {v(VQ)}, {v(VGW)}
    s_waitcnt vmcnt(0)""")
    T.add(poll_check("za", None))
    T.e("s_barrier")
    if not cfg.nosync: T.e(f"buffer_store_dword {v(vONE)}, {v(vARR)}, {WS}, {sC} offen sc1")
    if cfg.stamps: T.e("s_memtime s[90:91]")
    for tau in range(7):
        for rho in range(2): T.e(f"buffer_load_dwordx4 {v(QB+8*tau+4*rho,4)}, {v(VQ)}, {X}, {sSO} offen offset:{896*rho+128*tau}")
        T.e(f"buffer_load_dwordx4 {v(GWB+4*tau,4)}, {v(VGW)}, {GW}, 0 offen offset:{128*tau}")
    for tau in range(7):
        for p in range(4):
            for rho in range(2):
                d = AC + 2 * (p & 1) + rho
                T.e(f"v_dot2_f32_bf16 {v(d)}, {v(QB+8*tau+4*rho+p)}, {v(GWB+4*tau+p)}, {'0' if (tau == 0 and p < 2) else v(d)}")
    for rho in range(2): T.e(f"v_add_f32 {v(AC+rho)}, {v(AC+rho)}, {v(AC+2+rho)}")
    for mod in ("row_half_mirror", "quad_perm:[3,2,1,0]", "quad_perm:[1,0,3,2]"):
        for rho in range(2): T.e(f"v_add_f32_dpp {v(AC+rho)}, {v(AC+rho)}, {v(AC+rho)} {mod} row_mask:0xf bank_mask:0xf")
    T.e(f"""s_mov_b32 s56, 0xaaaaaaaa
    s_mov_b32 s57, 0xaaaaaaaa
    v_cndmask_b32 {v(AC)}, {v(AC)}, {v(AC+1)}, s[56:57]
    v_mul_f32 {v(AC)}, 0xbfb8aa3b, {v(AC)}
    v_exp_f32 {v(AC)}, {v(AC)}
    v_lshl_add_u32 {v(T0)}, {v(T0)}, 1, {v(T1)}
    v_add_f32 {v(AC)}, 1.0, {v(AC)}
    v_rcp_f32 {v(AC)}, {v(AC)}
    v_lshlrev_b32 {v(T0)}, 2, {v(T0)}
    v_mov_b32 {v(VZA)}, -16
    v_cmp_gt_u32 vcc, 2, {v(T1)}
    s_lshl_b32 s3, {sT0}, 6
    s_add_u32 s3, s3, {WS_G}
    v_cndmask_b32 {v(T0)}, {v(VZA)}, {v(T0)}, vcc
    buffer_store_dword {v(AC)}, {v(T0)}, {WS}, s3 offen sc1
    s_waitcnt vmcnt(0)
    s_barrier""")
    if not cfg.nosync: T.e(f"buffer_store_dword {v(vONE)}, {v(vARR)}, {WS}, {sC2} offen sc1")
    if cfg.aux_l2:
        g0, ng = cfg.aux_l2
        T.e(f"""v_mul_u32_u24 {v(PF)}, 896, {v(VL)}
        s_lshr_b32 s56, {sA}, 3
        s_mul_i32 s56, s56, {448*896}
        s_and_b32 s57, s2, 7
        s_add_u32 s57, s57, {g0}""")
        for k in range((7 * ng + 3) // 4):
            T.e(f"""s_add_u32 s58, {sW}, {4*k}
            s_min_u32 s58, s58, {7*ng-1}
            s_mul_i32 s59, s58, 37
            s_lshr_b32 s59, s59, 8
            s_mul_i32 s3, s59, 7
            s_sub_u32 s58, s58, s3
            s_add_u32 s59, s59, s58
            s_add_u32 s59, s59, s57
            s_mul_i32 s3, s59, 37
            s_lshr_b32 s3, s3, 8
            s_mul_i32 s3, s3, 7
            s_sub_u32 s59, s59, s3
            s_mul_i32 s59, s59, {64*896}
            s_lshl_b32 s58, s58, 7
            s_add_u32 s59, s59, s58
            s_add_u32 s59, s59, s56
            buffer_load_dword {v(PF+2+k)}, {v(PF)}, {WD}, s59 offen""")
    if cfg.stamps:
        T.e(f"""s_waitcnt vmcnt(0)
        s_memtime s[4:5]
        s_memrealtime s[6:7]
        s_waitcnt lgkmcnt(0)
        s_sub_u32 s3, s86, s98
        v_mov_b32 v200, s3
        s_sub_u32 s3, s88, s98
        v_mov_b32 v201, s3
        s_sub_u32 s3, s90, s98
        v_mov_b32 v202, s3
        s_sub_u32 s3, s4, s98
        v_mov_b32 v203, s3
        v_mov_b32 v204, s100
        v_mov_b32 v205, s6
        s_lshl_b32 s3, s2, 2
        s_add_u32 s3, s3, {sW}
        s_lshl_b32 s3, s3, 7
        s_add_u32 s3, s3, {WS_STAMP}
        v_mov_b32 v2, 0
        s_mov_b64 exec, 1
        buffer_store_dwordx4 v[200:203], v2, {WS}, s3 offen
        buffer_store_dwordx2 v[204:205], v2, {WS}, s3 offen offset:120""")
        for i_, r_ in enumerate([60, 62, 64, 66, 76, 78, 80, 92]): T.e(f"s_sub_u32 s4, s{r_}, s98\n v_mov_b32 v{208+i_}, s4")
        T.e(f"buffer_store_dwordx4 v[208:211], v2, {WS}, s3 offen offset:16\n buffer_store_dwordx4 v[212:215], v2, {WS}, s3 offen offset:32")
    T.e("s_endpgm")
    return Pg, T

def build():
    global slow_paths, stamp_names, trace_names
    slow_paths = []; stamp_names = []; trace_names = []; arr_n[0] = 0; STAMP_REGS['prewait'] = 74; STAMP_REGS['karg'] = 72
    pro = Prog()
    for reg, off in ((X, 0), (WG, 56), (WU, 64), (WD, 72), (SK, 32), (WS, 104), (OUT, 88), (pDBG, 96), (pD, 40)) + ((("s[94:95]", 8), ("s[96:97]", 16)) if cfg.kv_touch is not None else ()): pro.e(ldptr(reg, off))
    if cfg.sync_start:
        pro.e("""s_memrealtime s[100:101]
        s_waitcnt lgkmcnt(0)
        s_add_u32 s3, s100, 400
        s_and_b32 s3, s3, 0xffffff00
        s_and_b32 s99, s2, %d
        s_mul_i32 s99, s99, %d
        s_add_u32 s3, s3, s99
        L_ss:
        s_memrealtime s[100:101]
        s_waitcnt lgkmcnt(0)
        s_sub_u32 s99, s100, s3
        s_cmp_lt_i32 s99, 0
        s_cbranch_scc1 L_ss""" % cfg.skew)
    if cfg.stamps or cfg.fixdur: pro.e("s_memtime s[98:99]\n s_memrealtime s[100:101]")
    pro.e(f"""
    v_lshrrev_b32 v2, 6, v0
    v_and_b32 v1, 63, v0
    s_cmp_ge_u32 s2, 224
    v_readfirstlane_b32 {sW}, v2
    s_cbranch_scc1 L_aux
    """)
    Pm = Prog(); Pm.items = list(pro.items)
    gen_main(Pm)
    main = Pm.finalize(cfg.verbose)
    if cfg.warm:
        real = [i for i, x in enumerate(main) if x.kind != 'label']
        for k, n in reversed(list(enumerate(cfg.stub_at[:4]))):
            main[real[n]:real[n]] = [Ins("L_pg%d:" % k), Ins("s_cbranch_execz L_pgback")]
    Px = Prog(); Px.items = list(pro.items); Px.e("L_aux:")
    Pg, Pt = gen_aux(Px)
    ax = Px.finalize(); gx = Pg.finalize(); tx = Pt.finalize()
    cut = lambda lst, lab: lst[[i for i, x in enumerate(lst) if x.kind == 'label' and x.text == lab][0]:]
    body = text_of(main) + "\n" + text_of(cut(ax, "L_aux:")) + "\n" + text_of(cut(gx, "L_gate:")) + "\n" + text_of(tx) + "\n" + emit_slow_paths() + "\nL_codeend:"
    hdr = open("gated_mix__ssm_conv_h3__swiglu_ffn__prompt.s.ref").read().split("; Override launch")[0] if cfg.header else ""
    return f"""{hdr}; @launch grid=(256,1,1) block=(256,1,1) lds={LDS_BYTES}
; TRACE={trace_names}
.amdgcn_target "amdgcn-amd-amdhsa--gfx950"
.text
.globl {KNAME}
{'.p2align 12' if cfg.align else ''}
.p2align 8
.type {KNAME},@function
{KNAME}:
{body}
.section .rodata,"a"
.p2align 6
.amdhsa_kernel {KNAME}
  .amdhsa_next_free_vgpr 512
  .amdhsa_next_free_sgpr 102
  .amdhsa_accum_offset 256
  .amdhsa_group_segment_fixed_size 0
  .amdhsa_kernarg_size 112
  .amdhsa_user_sgpr_count 2
  .amdhsa_user_sgpr_kernarg_segment_ptr 1
  .amdhsa_system_sgpr_workgroup_id_x 1
.end_amdhsa_kernel
"""

if __name__ == "__main__":
    import subprocess
    out = sys.argv[1]
    for kv in sys.argv[2:]:
        k_, v_ = kv.split("=", 1)
        assert hasattr(cfg, k_), k_
        setattr(cfg, k_, eval(v_))
    cfg.pf_n = 1; cfg.pf_last = 100
    vb = cfg.verbose; cfg.verbose = False
    open(out, "w").write(build())
    subprocess.check_call(["clang", "-x", "assembler", "-target", "amdgcn-amd-amdhsa", "-mcpu=gfx950", "-c", out, "-o", "_gen.o"])
    sym = subprocess.check_output(["llvm-objdump", "-t", "_gen.o"], text=True)
    ad = {l.split()[-1]: int(l.split()[0], 16) for l in sym.splitlines() if " L_" in l}
    if cfg.code_pf:
        cfg.pf_last = (ad["L_codeend"] - ad["L_pc"] - 64) // 128
        cfg.pf_n = (cfg.pf_last + 112) // 112
    if cfg.warm:
        cfg.stub_at = [600, 1200, 1800, 2300]
        for it in range(3):
            open(out, "w").write(build())
            subprocess.check_call(["clang", "-x", "assembler", "-target", "amdgcn-amd-amdhsa", "-mcpu=gfx950", "-c", out, "-o", "_gen.o"])
            dis = subprocess.check_output(["llvm-objdump", "-d", "--mcpu=gfx950", "_gen.o"], text=True)
            ins = [(int(l.split("//")[1].split(":")[0], 16), l) for l in dis.splitlines() if "//" in l]
            end = [i for i, (a_, l) in enumerate(ins) if "s_endpgm" in l][0]
            a0 = []; ns_ = 0
            for a_, l in ins[:end]:
                if "s_cbranch_execz" in l: ns_ += 1
                else: a0.append(a_ - 4 * ns_)
            new_at = []
            for k in range(1, 5):
                c = [i for i, a_ in enumerate(a0) if a_ + 4 * (k - 1) + 0x300 >= 4096 * k]
                if c: new_at.append(c[0])
            if new_at == cfg.stub_at: break
            cfg.stub_at = new_at
    cfg.verbose = vb
    open(out, "w").write(build())
    print(out, "code bytes", ad["L_codeend"], "aux at", ad["L_aux"], "stubs", cfg.stub_at, "stamps:", stamp_names)
```

```python
import sys, math, re
from fw import *
import fw
KNAME = "gated_mix__ssm_conv_h3__swiglu_ffn__prompt_kernel"

class Cfg: pass
cfg = Cfg()
cfg.stamps = False; cfg.pass_stamps = False; cfg.verbose = False; cfg.header = True; cfg.fixdur = 0
cfg.PD = 5; cfg.NXR = 8; cfg.pair = 2; cfg.bud = 24
cfg.code_pf = True; cfg.n_pre = 8; cfg.nosync = False
cfg.rot_c = True; cfg.rot_t = True; cfg.rot_g = True
cfg.pl_at = -1; cfg.pc0 = 10; cfg.pc1 = 70; cfg.bud1 = 28; cfg.z_load = 60; cfg.z_chk = 84; cfg.x_touch = 0; cfg.align = True; cfg.tlb = False; cfg.sync_start = False; cfg.skew = (0, 0); cfg.gq_sh = 0; cfg.gq_mul = 1; cfg.wd_touch = -1; cfg.warm = True; cfg.stub_at = []; cfg.late_pos = 50; cfg.p_arr = 9; cfg.pst_at = 80; cfg.aux_sk = False; cfg.p_first = True; cfg.sk_at = -1; cfg.hv_at = 24; cfg.c_rd_end = 66; cfg.sleep = 2
cfg.p_load = 170; cfg.p_chk = 196; cfg.hw0 = 70; cfg.hw1 = 180
cfg.g_arrive = 38; cfg.g_poll = 112; cfg.g_chk = 102; cfg.nh_c = 12; cfg.nh_e = 5; cfg.c_wd = (24, 48, 72, 96); cfg.c_tail_in_g2 = True; cfg.b_rev = False; cfg.aux_sleep = None; cfg.watch = 0; cfg.hack_sleep_c = None; cfg.hack_sleep_h = None; cfg.eo = True; cfg.epi_len = 22; cfg.a_arr = 162; cfg.a_load = 210; cfg.a_chk = 30; cfg.h_first = 98; cfg.b_chk = 11; cfg.rw_bar = 74; cfg.y_late = True; cfg.n1 = 2; cfg.blk_c = None; cfg.blk_s3 = 0; cfg.blk_deep = False; cfg.blk_dma = False; cfg.blk_g = 30; cfg.blk_g2 = 0; cfg.blk_list = [(20, 2), (30, 2), (40, 2), (50, 2), (60, 1)]; cfg.hack_sleep = None; cfg.aux_wd = None; cfg.hack_aux = False; cfg.sc_h = 'sc1'; cfg.n_raw = 0; cfg.kv_touch = None; cfg.aux_l2 = None; cfg.hack_wd = False; cfg.hack_p = False; cfg.sc_wd = ''; cfg.sc_g1 = ''; cfg.c_bar = 130; cfg.s3_at = -1; cfg.nwd_t = 5; cfg.g_wd_end = 104
cfg.g2_hpace = 2.1; cfg.q_at = (13, 15, 17, 19); cfg.g2_arrive = 36; cfg.g2_poll = 64; cfg.g2_chk = 92; cfg.g2_pre = 100
cfg.sc_out = ""; cfg.aux_pf = False; cfg.touch = False; cfg.s_early = True; cfg.rt = False; cfg.trace = False; cfg.start_stamps = False

WS_FLAG = 0x0; WS_G = 0x20000; WS_UR = 0x100000; WS_YT = 0x300000; WS_H = 0x500000
WS_STAMP = 0xC00000; WS_SIZE = 0xD00000
NQ = 1835008; NW = 1605632
XB = 4096
SLOT = 28672; PIECE = 7168
HC = 4 * SLOT; CPY = 4160; HCCH = 4 * CPY
UL = HC + 2 * HCCH; UCH = 4608
LDS_BYTES = 163840
YL = HC; QL = UL
assert UL + 2 * UCH <= LDS_BYTES
X, WG, WU, WD, SK, WS, OUT = ["s[%d:%d]" % (b, b + 3) for b in (4, 8, 12, 16, 20, 24, 28)]
pWS = "s[24:25]"; pDBG = "s[32:33]"; pD = "s[34:35]"
sW = "s36"; sT0 = "s37"; sT1 = "s38"; sT2 = "s39"
sCH = ["s%d" % (40 + i) for i in range(7)]
sWC = ["s%d" % (47 + i) for i in range(7)]
sTO = ["s%d" % (54 + i) for i in range(8)]
sHG = sWC
sM0P = "s68"; sXB = "s69"; sWB = "s70"; sDB = "s71"; sHS = "s72"; sHL = ["s73", "s74"]
sNL2E = "s75"; sSO = "s76"; sSO2 = "s77"; sD = "s78"; sI2 = "s79"; sCT = "s80"; sKH = "s81"
sCNT = "s82"; sM = "s83"; sMASK = "s84"; sRG = "s85"
sDG = ["s%d" % (86 + i) for i in range(7)]
sPV = "s93"; sHE = "s70"; sFL = "s67"; sONE = "s66"; sU = "s65"; sPA = "s64"
STAMP_REGS = {'issued': 0, 'setup': 96, 'pdone': 94, 'prewait': 74, 'karg': 72, 'g1start': 34, 'p1end': 12, 'T5': 96, 'T6': 8, 'T7': 10, 'prepoll': 94, 'zpre': 96, 'zpost': 8, 'g1end': 14, 'cstart': 40, 'c_pre': 42, 'c_post': 44, 'g2start': 54, 'g2_pre': 56, 'g2_post': 58, 'g2end': 60}

def v(i, n=1): return "v%d" % i if n == 1 else "v[%d:%d]" % (i, i + n - 1)
def a(i, n=1): return "a%d" % i if n == 1 else "a[%d:%d]" % (i, i + n - 1)
def lines(t): return [l.strip() for l in t.split("\n") if l.strip()]

stamp_names = []
def stamp(name):
    if not cfg.stamps or cfg.stamps == 'min': return []
    if cfg.trace and STAMP_REGS[name] in (94, 96): return []
    stamp_names.append(name); r = STAMP_REGS[name]
    return [Ins("%s s[%d:%d]" % ("s_memrealtime" if cfg.rt else "s_memtime", r, r + 1))]

slow_paths = []
trace_names = []
TR_S = [94, 96, 8, 12]
def add_trace(G, every, name, regs):
    if not cfg.trace: return
    k = 0
    for g in range(0, G.n - 3, every):
        i = len(trace_names); trace_names.append("%s%d" % (name, g)); r = regs[k % len(regs)]; k += 1
        G.f[g].insert(0, Ins("s_memtime s[%d:%d]" % (r, r + 1)))
        G.f[min(g + (3 if G.n != 144 else 6), G.n - 1)].append("v_writelane_b32 v%d, s%d, %d" % (254 + i // 64, r, i % 64))
vARR = 43; vONE = 0; vP8 = 38; vP7 = 39; vPV = 33; vZERO = 44
def poll_text(kind, off):
    if kind == "z": return f"global_load_dword {v(vPV)}, {v(vZERO)}, {pDBG} sc1"
    if kind == "za": return f"global_load_dword {v(vPV)}, {v(vZERO)}, {pDBG} sc1"
    return f"buffer_load_dword {v(vPV)}, {v(vP7 if kind in 'ha' else vP8)}, {WS}, {off} offen sc1"
def poll_load(kind, off):
    return [] if cfg.nosync else [poll_text(kind, off)]
def poll_check(kind, off):
    if cfg.nosync: return []
    slow_paths.append((kind, off))
    return [f"v_cmp_gt_u32 vcc, {32 if kind[0] == 'z' else 1}, {v(vPV)}", f"s_cbranch_vccnz L_slow_{kind}\n L_back_{kind}:"]
def emit_slow_paths():
    t = []
    for kind, off in slow_paths:
        t += [f"L_slow_{kind}:", f"s_mov_b32 {sCNT}, 0", f"L_spin_{kind}:", f"s_sleep {cfg.sleep}", poll_text(kind, off),
              f"s_add_u32 {sCNT}, {sCNT}, 1", f"s_cmp_gt_u32 {sCNT}, 0x40000", "s_waitcnt vmcnt(0)", f"s_cbranch_scc1 L_back_{kind}",
              f"v_cmp_gt_u32 vcc, {32 if kind[0] == 'z' else 1}, {v(vPV)}", f"s_cbranch_vccnz L_spin_{kind}"] + ([f"v_writelane_b32 v253, {sCNT}, {'zphy'.index(kind.replace('a', 'z'))}"] if cfg.trace and kind != "za" else []) + [f"s_branch L_back_{kind}"]
    return "\n".join(l if l.endswith(":") else "    " + l for l in t)
arr_n = [0]
def arrive(tag, off, bar=True):
    pre = [Ins("s_barrier")] if bar else []
    if cfg.nosync: return pre
    return ([WaitTag('vm', tag)] if bar else []) + pre + [f"buffer_store_dword {v(vONE)}, {v(vARR)}, {WS}, {off} offen sc1"]

def sb(reg): return int(reg[2:reg.index(':')])
def srd_hi(reg, size): return ["s_mov_b32 s%d, 0x%x" % (sb(reg) + 2, size), "s_mov_b32 s%d, 0x20000" % (sb(reg) + 3)]
def ldptr(reg, off): return "s_load_dwordx2 s[%d:%d], s[0:1], %d" % (sb(reg), sb(reg) + 1, off)
def rot_next(r): return [f"s_add_u32 {r}, {r}, 1", f"s_cmp_eq_u32 {r}, 7\n s_cselect_b32 {r}, 0, {r}"]
def mod7(r): return lines(f"s_mul_i32 s3, {r}, 37\n s_lshr_b32 s3, s3, 8\n s_mul_i32 s3, s3, 7\n s_sub_u32 {r}, {r}, s3")

def code_prefetch(P):
    if not cfg.code_pf: return
    P.e(f"""
        s_getpc_b64 s[38:39]
        L_pc:
        s_lshr_b32 s3, s2, 3
        s_lshl_b32 s3, s3, 2
        s_add_u32 s3, s3, {sW}
        s_mul_i32 s3, s3, {cfg.pf_n}
        v_min_u32 v2, {cfg.pf_n-1}, v1
        v_add_u32 v2, s3, v2
        v_min_u32 v2, {cfg.pf_last}, v2
        v_lshlrev_b32 v2, 7, v2
        v_mov_b32 v3, s39
        v_add_co_u32 v2, vcc, s38, v2
        v_addc_co_u32 v3, vcc, 0, v3, vcc
        global_load_dword v255, v[2:3], off
        """)

def gen_main(P):
    PD = cfg.PD; NXR = cfg.NXR; N1 = cfg.n1; CH = 4 * N1; P1 = 28 * N1; NI = 15 - N1
    VL = 1
    VX = [2, 3, 4, 9]; VWg = [5, 6]; VWu = [7, 8]; VSK = [10, 11, 12]; VD = [13, 14, 15, 16]
    XR = [[17, 18, 19, 20], [21, 22, 23, 24]]; WR = [25, 26, 27]; DR = [[28, 29], [30, 31]]
    V16 = 32; T0 = 33; T1 = 34; T2 = 35; T3 = 36; VHZ = 37; CA = 40; CB = 41; VHW = 42; VZ = 44
    ACC = [48, 64, 80, 96]; XRING = 112; ET = 144; PK = [148, 152]; HR = 160; HCP = 176
    assert XRING + 4 * NXR <= ET
    sX = sSO; sQ7 = sSO2; sR = sCNT
    code_prefetch(P)
    P.e(f"""
    s_and_b32 {sX}, s2, 7
    s_lshr_b32 {sT1}, s2, 3
    s_mul_i32 {sQ7}, {sT1}, 37
    s_lshr_b32 {sQ7}, {sQ7}, 8
    s_mul_i32 s3, {sQ7}, 7
    s_sub_u32 {sCT}, {sT1}, s3
    s_lshl_b32 s3, {sX}, 2
    s_add_u32 {sI2}, s3, {sQ7}
    s_and_b32 s3, {sX}, 4
    s_add_u32 {sT2}, s3, {sQ7}
    s_and_b32 {sT0}, {sX}, 3
    s_mul_i32 {sT1}, {sT0}, 7
    s_add_u32 {sT1}, {sT1}, {sCT}
    s_mul_i32 {sM0P}, {sW}, {PIECE}
    s_mul_i32 {sXB}, {sT2}, {256*896}
    s_add_u32 {sXB}, {sXB}, {sM0P}
    s_mul_i32 {sWB}, {sW}, {16*3584}
    s_lshl_b32 s3, {sT1}, 7
    s_add_u32 {sWB}, {sWB}, s3
    s_lshl_b32 {sRG}, {sQ7}, 1
    s_add_u32 {sRG}, {sRG}, {sCT}
    s_lshr_b32 s3, {sX}, 2
    s_add_u32 {sR}, {sRG}, s3
    """)
    P.add(mod7(sR) if cfg.rot_c else f"s_mov_b32 {sR}, 0")
    def ch_tab(i):
        L = lines(f"s_lshl_b32 s3, {sR}, 7\n s_add_u32 {sCH[i]}, s3, {sXB}\n s_mul_i32 s3, {sR}, {64*3584}\n s_add_u32 {sWC[i]}, s3, {sWB}")
        return L + (rot_next(sR) if i < 6 else [])
    def to_tab(t):
        if cfg.eo: return lines(f"s_add_u32 s3, {sT0}, {t}\n s_and_b32 s3, s3, 3\n s_mul_i32 s3, s3, {2*28672}\n s_add_u32 {sTO[t]}, s3, {28672*(t >> 2)}")
        if cfg.rot_t: return lines(f"s_lshl_b32 s3, {sT0}, 1\n s_add_u32 s3, s3, {t}\n s_and_b32 s3, s3, 7\n s_mul_i32 {sTO[t]}, s3, 28672")
        return [f"s_mov_b32 {sTO[t]}, {28672*t}"]
    for i in range(2): P.add(ch_tab(i))
    for t in range(N1): P.add(to_tab(t))
    P.add(srd_hi(X, NQ + XB) + srd_hi(WG, NW) + srd_hi(WU, NW))
    P.e(f"""
    v_lshrrev_b32 {v(T0)}, 3, {v(VL)}
    v_and_b32 {v(T1)}, 7, {v(VL)}
    v_lshrrev_b32 {v(T2)}, 4, {v(VL)}
    s_lshl_b32 s3, {sW}, 2
    v_add_u32 {v(T3)}, s3, {v(T2)}
    v_and_b32 {v(T3)}, 7, {v(T3)}
    v_xor_b32 {v(T3)}, {v(T1)}, {v(T3)}
    v_lshlrev_b32 {v(T3)}, 4, {v(T3)}
    v_mul_u32_u24 {v(VX[0])}, 896, {v(T0)}
    v_add_u32 {v(T3)}, {XB}, {v(T3)}
    v_add_u32 {v(VX[0])}, {v(VX[0])}, {v(T3)}
    v_add_u32 {v(VX[1])}, -1024, {v(VX[0])}
    v_add_u32 {v(VX[2])}, -2048, {v(VX[0])}
    v_and_b32 {v(T2)}, 1, {v(T2)}
    v_lshlrev_b32 {v(T2)}, 1, {v(T2)}
    v_xor_b32 {v(T3)}, {v(T1)}, {v(T2)}
    v_lshlrev_b32 {v(T3)}, 4, {v(T3)}
    v_mul_u32_u24 {v(VWg[0])}, 3584, {v(T0)}
    v_add_u32 {v(VWg[0])}, {v(VWg[0])}, {v(T3)}
    v_add_u32 {v(VWg[1])}, {28672-1024}, {v(VWg[0])}
    v_xor_b32 {v(VWu[0])}, 64, {v(VWg[0])}
    v_add_u32 {v(VWu[1])}, {28672-1024}, {v(VWu[0])}
    """)
    if cfg.start_stamps: P.add(stamp("prewait"))
    P.e("s_waitcnt lgkmcnt(0)")
    if cfg.start_stamps: P.add(stamp("karg")); P.e("s_waitcnt lgkmcnt(0)\n v_mov_b32 v156, s74\n v_mov_b32 v157, s72")
    P.e(f"""
    s_sub_u32 s4, s4, {XB}
    s_subb_u32 s5, s5, 0
    """)
    def dma_item(i):
        sl = (i % 4) * SLOT; tag = "it%d" % i; L = []
        xl = lambda T, c, u, pre="": [pre + f"s_add_u32 {sSO}, {sCH[c]}, {sTO[T]}", Ins(f"buffer_load_dwordx4 {v(VX[u])}, {X}, {sSO} offen offset:{1024*u} {cfg.sc_g1} lds", tag)]
        if i < 7:
            L.append([f"s_add_u32 m0, {sM0P}, {sl+3072}", Ins(f"buffer_load_dwordx4 {v(VWg[0])}, {WG}, {sWC[i]} offen offset:0 {cfg.sc_g1} lds", tag)])
            L.append(Ins(f"buffer_load_dwordx4 {v(VWg[1])}, {WG}, {sWC[i]} offen offset:1024 {cfg.sc_g1} lds", tag))
            L.append([f"s_add_u32 m0, {sM0P}, {sl+5120}", Ins(f"buffer_load_dwordx4 {v(VWu[0])}, {WU}, {sWC[i]} offen offset:0 {cfg.sc_g1} lds", tag)])
            L.append(Ins(f"buffer_load_dwordx4 {v(VWu[1])}, {WU}, {sWC[i]} offen offset:1024 {cfg.sc_g1} lds", tag))
            for rt in range(N1): L.append(xl(rt, i, rt, f"s_add_u32 m0, {sM0P}, {sl}\n" if rt == 0 else ""))
        else:
            T = i - 7 + N1
            for k in range(7): L.append(xl(T, k, k % 4, f"s_add_u32 m0, {sM0P}, {sl+1024*k}\n" if k % 4 == 0 else ""))
        return L
    first = dma_item(0) + dma_item(1)
    P.add(first[:cfg.n_pre]); late_first = first[cfg.n_pre:]
    if not cfg.pass_stamps: P.add(stamp("issued"))
    P.e(f"""
    s_lshl_b32 s3, s2, 2
    s_load_dword {sD}, {pD}, s3
    v_lshlrev_b32 {v(T3)}, 1, {v(T2)}
    v_xor_b32 {v(T3)}, {v(T1)}, {v(T3)}
    v_lshlrev_b32 {v(T3)}, 4, {v(T3)}
    v_mul_u32_u24 {v(VD[0])}, 896, {v(T0)}
    v_add_u32 {v(VD[0])}, {v(VD[0])}, {v(T3)}
    v_add_u32 {v(VX[3])}, -3072, {v(VX[0])}
    v_and_b32 {v(T0)}, 31, {v(VL)}
    v_lshrrev_b32 {v(T1)}, 3, {v(T0)}
    v_mul_u32_u24 {v(T1)}, {PIECE}, {v(T1)}
    v_and_b32 {v(T2)}, 7, {v(T0)}
    v_lshl_add_u32 {v(T1)}, {v(T2)}, 7, {v(T1)}
    v_lshrrev_b32 {v(T2)}, 1, {v(T0)}
    v_and_b32 {v(T2)}, 7, {v(T2)}
    v_lshrrev_b32 {v(T3)}, 5, {v(VL)}
    v_xor_b32 {v(T2)}, {v(T2)}, {v(T3)}
    v_lshl_add_u32 {v(XR[0][0])}, {v(T2)}, 4, {v(T1)}
    """)
    for k in range(1, 4): P.e(f"v_xor_b32 {v(XR[0][k])}, {32*k}, {v(XR[0][0])}")
    for k in range(4): P.e(f"v_add_u32 {v(XR[1][k])}, {3*SLOT}, {v(XR[0][k])}")
    P.e(f"""
    v_bfe_u32 {v(T0)}, {v(VL)}, 2, 2
    v_lshl_add_u32 {v(T1)}, {v(T3)}, 3, {v(T0)}
    v_lshlrev_b32 {v(T1)}, 7, {v(T1)}
    v_bfe_u32 {v(T2)}, {v(VL)}, 1, 1
    v_lshl_add_u32 {v(T1)}, {v(T2)}, 11, {v(T1)}
    v_lshlrev_b32 {v(T2)}, 1, {v(T2)}
    v_lshrrev_b32 {v(T0)}, 1, {v(T0)}
    v_add_u32 {v(T2)}, {v(T2)}, {v(T0)}
    v_xor_b32 {v(T2)}, {sW}, {v(T2)}
    v_lshl_add_u32 {v(T1)}, {v(T2)}, 5, {v(T1)}
    v_bfe_u32 {v(T2)}, {v(VL)}, 4, 1
    v_lshl_add_u32 {v(T1)}, {v(T2)}, 4, {v(T1)}
    v_and_b32 {v(T2)}, 1, {v(VL)}
    v_lshl_add_u32 {v(T1)}, {v(T2)}, 3, {v(T1)}
    v_add_u32 {v(WR[0])}, 3072, {v(T1)}
    v_add_u32 {v(WR[1])}, {2*SLOT}, {v(WR[0])}
    """)
    for i in range(2, 7): P.add(ch_tab(i))
    for t in range(N1, 8): P.add(to_tab(t))
    S = []
    S += lines(f"""
    v_bfe_u32 {v(T1)}, {v(VL)}, 2, 2
    v_lshl_add_u32 {v(T1)}, {v(T3)}, 2, {v(T1)}
    v_lshlrev_b32 {v(T1)}, 7, {v(T1)}
    s_lshr_b32 s3, {sW}, 1
    v_xor_b32 {v(T2)}, s3, {v(T0)}
    v_lshl_add_u32 {v(T1)}, {v(T2)}, 6, {v(T1)}
    v_bfe_u32 {v(T2)}, {v(VL)}, 4, 1
    v_lshl_add_u32 {v(T1)}, {v(T2)}, 5, {v(T1)}
    v_and_b32 {v(T2)}, 3, {v(VL)}
    v_lshl_add_u32 {v(T1)}, {v(T2)}, 3, {v(T1)}
    s_and_b32 s3, {sW}, 1
    s_lshl_b32 s3, s3, 5
    v_xor_b32 {v(T1)}, s3, {v(T1)}
    v_add_u32 {v(DR[0][0])}, {sM0P}, {v(T1)}
    v_xor_b32 {v(DR[0][1])}, 64, {v(DR[0][0])}
    v_add_u32 {v(DR[1][0])}, {2*SLOT}, {v(DR[0][0])}
    v_add_u32 {v(DR[1][1])}, {2*SLOT}, {v(DR[0][1])}
    v_add_u32 {v(VD[1])}, 6144, {v(VD[0])}
    v_add_u32 {v(VD[2])}, {2*6144}, {v(VD[0])}
    v_add_u32 {v(VD[3])}, {3*6144}, {v(VD[0])}
    v_lshlrev_b32 {v(V16)}, 4, {v(VL)}
    s_mul_i32 s3, {sT2}, 28
    s_add_u32 s3, s3, {sT1}
    s_add_u32 s3, s3, 256
    s_lshl_b32 {sFL}, s3, 7
    v_mov_b32 {v(vARR)}, -16
    v_cmp_eq_u32 vcc, 0, v0
    v_min_u32 {v(vP8)}, 7, {v(VL)}
    v_min_u32 {v(vP7)}, 6, {v(VL)}
    v_cndmask_b32 {v(vARR)}, {v(vARR)}, 0, vcc
    v_mov_b32 {v(vONE)}, 1
    s_lshl_b32 s3, {sW}, 3
    v_add_lshl_u32 {v(vP8)}, {v(vP8)}, s3, 7
    s_mul_i32 s3, {sW}, 7
    v_add_lshl_u32 {v(vP7)}, {v(vP7)}, s3, 7
    s_mul_i32 {sWB}, {sT2}, {8*112}
    s_lshl_b32 s3, {sT1}, 2
    s_add_u32 {sWB}, {sWB}, s3
    s_add_u32 {sWB}, {sWB}, {sW}
    s_lshl_b32 {sWB}, {sWB}, 10
    s_add_u32 {sWB}, {sWB}, {WS_H}
    s_mul_i32 {sDB}, {sW}, {448*896}
    s_lshl_b32 s3, {sCT}, 7
    s_add_u32 {sDB}, {sDB}, s3
    s_and_b32 s3, s2, 7
    s_add_u32 {sRG}, {sCT}, s3
    s_and_b32 s3, {sI2}, 3
    s_lshr_b32 s3, s3, {cfg.gq_sh}
    s_mul_i32 s3, s3, {cfg.gq_mul}
    s_add_u32 {sRG}, {sRG}, s3
    """)
    S += mod7(sRG) if cfg.rot_g else [f"s_mov_b32 {sRG}, 0"]
    S += [f"s_mov_b32 {sR}, {sRG}"]
    for i in range(7):
        S += [f"s_mul_i32 s3, {sR}, {0 if cfg.hack_wd else 57344}", f"s_add_u32 {sDG[i]}, s3, {sDB}"] + (rot_next(sR) if i < 6 else [])
    S += srd_hi(WD, NW) + srd_hi(WS, WS_SIZE) + srd_hi(SK, 4096) + srd_hi(OUT, NQ)
    S += lines(f"""
    s_lshr_b32 {sT2}, {sW}, 1
    s_and_b32 {sKH}, {sW}, 1
    s_lshl_b32 {sM}, s2, 1
    s_add_u32 {sM}, {sM}, {sT2}
    s_lshl_b32 s3, {sM}, 12""") + [f"s_add_u32 s20, s20, s3\n s_addc_u32 s21, s21, 0"] + lines(f"""
    s_mov_b32 {sNL2E}, 0xbfb8aa3b
    s_mov_b32 {sMASK}, 0xffff0000
    s_mov_b32 {sONE}, 1
    """)
    S2 = lines(f"""
    s_mov_b32 {sHS}, {sWB}
    s_lshl_b32 {sU}, {sKH}, 11
    v_add_u32 {v(VSK[0])}, {sU}, {v(V16)}
    v_add_u32 {v(VSK[1])}, -16, {v(VSK[0])}
    v_add_u32 {v(VSK[2])}, 1008, {v(VSK[0])}
    s_mul_i32 {sT0}, {sT2}, {HCCH}
    s_add_u32 {sT0}, {sT0}, {HC}
    s_mul_i32 {sT1}, {sT2}, {UCH}
    s_add_u32 {sT1}, {sT1}, {UL}
    s_add_u32 s3, {sU}, {sT0}
    s_add_u32 s3, s3, 32
    v_add_u32 {v(VHW)}, s3, {v(V16)}
    v_and_b32 {v(T0)}, 15, {v(VL)}
    v_lshrrev_b32 {v(T1)}, 4, {v(VL)}
    v_sub_u32 {v(T2)}, 3, {v(T0)}
    v_and_b32 {v(T2)}, 3, {v(T2)}
    v_add3_u32 {v(T3)}, {v(T0)}, {v(T2)}, 1
    v_lshl_add_u32 {v(T3)}, {v(T1)}, 3, {v(T3)}
    v_lshlrev_b32 {v(T3)}, 1, {v(T3)}
    v_mul_u32_u24 {v(T2)}, {CPY}, {v(T2)}
    s_lshl_b32 s3, {sKH}, 8
    s_add_u32 {sT0}, {sT0}, s3
    v_add3_u32 {v(CA)}, {v(T2)}, {v(T3)}, {sT0}
    v_lshlrev_b32 {v(T0)}, 5, {v(T0)}
    v_lshlrev_b32 {v(T1)}, 4, {v(T1)}
    v_sub_u32 {v(T1)}, {v(T1)}, {v(T0)}
    s_add_u32 s3, s3, {sT1}
    s_add_u32 s3, s3, 480
    v_add_u32 {v(CB)}, s3, {v(T1)}
    s_add_u32 {sPA}, {sT1}, {sU}
    s_lshl_b32 s3, {sM}, 12
    s_add_u32 {sU}, {sU}, s3
    v_mov_b32 {v(VZ)}, 0
    v_mov_b32 {v(VZ+1)}, 0
    v_mov_b32 {v(VZ+2)}, 0
    v_mov_b32 {v(VZ+3)}, 0
    v_lshrrev_b32 {v(T0)}, 5, {v(VL)}
    v_mul_u32_u24 {v(T0)}, {UCH}, {v(T0)}
    v_and_b32 {v(T1)}, 31, {v(VL)}
    v_lshl_add_u32 {v(T0)}, {v(T1)}, 4, {v(T0)}
    v_add_u32 {v(T0)}, {UL+4096}, {v(T0)}
    ds_write_b128 {v(T0)}, {v(VZ,4)}
    v_and_b32 {v(T0)}, 15, {v(VL)}
    v_lshrrev_b32 {v(T1)}, 1, {v(T0)}
    v_mul_u32_u24 {v(T1)}, {CPY}, {v(T1)}
    v_and_b32 {v(T0)}, 1, {v(T0)}
    v_lshl_add_u32 {v(T0)}, {v(T0)}, 4, {v(T1)}
    v_add_u32 {v(VHZ)}, {HC}, {v(T0)}
    s_mul_i32 {sT0}, {sI2}, 224
    s_mul_i32 s3, {sW}, 28
    s_add_u32 {sT0}, {sT0}, s3
    s_lshl_b32 {sT0}, {sT0}, 10
    s_add_u32 {sHL[0]}, {sT0}, {WS_H}
    s_add_u32 {sHL[1]}, {sT0}, {WS_H + 112*1024}
    """)
    skl = [f"buffer_load_dwordx4 {v(HR,4)}, {v(VSK[1])}, {SK}, 0 offen", f"buffer_load_dwordx4 {v(HR+4,4)}, {v(VSK[0])}, {SK}, 0 offen",
           f"buffer_load_dwordx4 {v(HR+8,4)}, {v(VSK[2])}, {SK}, 0 offen", f"buffer_load_dwordx4 {v(HR+12,4)}, {v(VSK[0])}, {SK}, 0 offen offset:1024"]

    VRW = 224; VRR = 225; VUR = 226; VYS = 227; VY = [228, 229]; VQ = [230, 231]; VGA = 232
    EWA = 233; ERA = [234, 235, 236]; EWB = 237; ERB = [238, 239, 240]; EY = 241; EQ = [242, 243]; EO = 244
    VG = [14, 15]; OMG = [8, 9]; RA = HC + 8192; sO = ["s62", "s63"]; sQS = "s66"; sYS = "s93"
    S3 = lines(f"""
    s_lshl_b32 s3, {sW}, 12
    s_add_u32 s3, s3, {HC}
    v_add_u32 {v(VRW)}, s3, {v(V16)}
    v_xor_b32 {v(VRR)}, 4096, {v(VRW)}
    v_and_b32 {v(T3)}, 15, {v(VL)}
    v_lshlrev_b32 {v(T3)}, 5, {v(T3)}
    v_lshrrev_b32 {v(T2)}, 4, {v(VL)}
    v_lshl_add_u32 {v(T3)}, {v(T2)}, 3, {v(T3)}
    s_lshr_b32 s3, {sW}, 1
    s_mul_i32 s3, s3, {UCH}
    s_lshl_b32 {sT0}, {sKH}, 11
    s_sub_u32 s3, s3, {sT0}
    s_add_u32 s3, s3, {UL+504+2048}
    v_sub_u32 {v(VUR)}, s3, {v(T3)}
    v_and_b32 {v(T1)}, 3, {v(VL)}
    v_lshlrev_b32 {v(T1)}, 4, {v(T1)}
    v_bfe_u32 {v(T3)}, {v(VL)}, 2, 2
    v_lshl_add_u32 {v(T1)}, {v(T3)}, 7, {v(T1)}
    v_bfe_u32 {v(T3)}, {v(VL)}, 4, 1
    v_lshl_add_u32 {v(T1)}, {v(T3)}, 9, {v(T1)}
    v_lshrrev_b32 {v(T3)}, 5, {v(VL)}
    v_lshl_add_u32 {v(VYS)}, {v(T3)}, 6, {v(T1)}
    """)
    S3_marks = [0, len(S3)]
    S3 += lines(f"""
    v_lshrrev_b32 {v(T1)}, 3, {v(VL)}
    v_and_b32 {v(T2)}, 7, {v(VL)}
    v_lshlrev_b32 {v(T3)}, 12, {v(T1)}
    v_lshl_add_u32 {v(VY[0])}, {v(T2)}, 4, {v(T3)}
    v_add_u32 {v(VY[1])}, {32768-1024}, {v(VY[0])}
    v_lshrrev_b32 {v(T3)}, 4, {v(VL)}
    v_xor_b32 {v(T2)}, {v(T2)}, {v(T3)}
    v_lshlrev_b32 {v(T2)}, 4, {v(T2)}
    v_mul_u32_u24 {v(T1)}, 896, {v(T1)}
    v_add_u32 {v(VQ[0])}, {v(T1)}, {v(T2)}
    v_xor_b32 {v(T2)}, 64, {v(T2)}
    v_add_u32 {v(T1)}, {7168-1024}, {v(T1)}
    v_add_u32 {v(VQ[1])}, {v(T1)}, {v(T2)}
    s_lshl_b32 s3, {sI2}, 8
    s_add_u32 s3, s3, {WS_G}
    v_and_b32 {v(T1)}, 31, {v(VL)}
    v_lshl_add_u32 {v(VGA)}, {v(T1)}, 2, s3
    s_lshl_b32 s3, {sI2}, 2
    s_add_u32 s3, s3, {sW}
    s_mul_i32 s3, s3, {16*896}
    s_lshl_b32 {sQS}, {sCT}, 7
    s_add_u32 {sQS}, {sQS}, s3
    s_add_u32 {sQS}, {sQS}, {XB}
    """)
    ea = [f"s_mul_i32 {sT0}, {sW}, 6144", f"s_add_u32 s3, {sT0}, {RA}", f"v_add_u32 {v(EWA)}, s3, {v(V16)}", f"v_add_u32 {v(EWB)}, {sM0P}, {v(V16)}"]
    for sg in range(1, 4):
        ea += [f"s_xor_b32 {sT0}, {sW}, {sg}", f"s_mul_i32 s3, {sT0}, 6144", f"s_add_u32 s3, s3, {RA + 2048*(sg-1)}", f"v_add_u32 {v(ERA[sg-1])}, s3, {v(V16)}",
               f"s_mul_i32 s3, {sT0}, {PIECE}", f"s_add_u32 s3, s3, {(sg-1)*SLOT}", f"v_add_u32 {v(ERB[sg-1])}, s3, {v(V16)}"]
    ea += lines(f"""v_bfe_u32 {v(T1)}, {v(VL)}, 2, 2
    v_lshrrev_b32 {v(T2)}, 5, {v(VL)}
    v_lshl_add_u32 {v(T1)}, {v(T2)}, 2, {v(T1)}
    v_lshlrev_b32 {v(T1)}, 7, {v(T1)}
    v_bfe_u32 {v(T3)}, {v(VL)}, 1, 1
    v_lshl_add_u32 {v(T1)}, {v(T3)}, 6, {v(T1)}
    v_bfe_u32 {v(T3)}, {v(VL)}, 4, 1
    v_lshl_add_u32 {v(T1)}, {v(T3)}, 4, {v(T1)}
    v_and_b32 {v(T3)}, 1, {v(VL)}
    v_lshl_add_u32 {v(T1)}, {v(T3)}, 3, {v(T1)}
    s_lshl_b32 s3, {sW}, 11
    s_add_u32 s3, s3, {YL}
    v_add_u32 {v(EY)}, s3, {v(T1)}
    v_and_b32 {v(T1)}, 31, {v(VL)}
    v_bfe_u32 {v(T3)}, {v(VL)}, 1, 3
    s_lshl_b32 s3, {sW}, 1
    v_xor_b32 {v(T3)}, s3, {v(T3)}
    v_lshlrev_b32 {v(T3)}, 4, {v(T3)}
    v_lshl_add_u32 {v(T3)}, {v(T1)}, 7, {v(T3)}
    v_lshl_add_u32 {v(T3)}, {v(T2)}, 3, {v(T3)}
    v_add_u32 {v(EQ[0])}, {QL}, {v(T3)}
    v_xor_b32 {v(EQ[1])}, 16, {v(EQ[0])}
    v_mul_u32_u24 {v(T1)}, 896, {v(T1)}
    v_lshl_add_u32 {v(EO)}, {v(T2)}, 4, {v(T1)}
    s_mul_i32 {sO[0]}, {sI2}, {64*896}
    s_lshl_b32 s3, {sCT}, 2
    s_add_u32 s3, s3, {sW}
    s_lshl_b32 {sT0}, s3, 5
    s_add_u32 {sO[0]}, {sO[0]}, {sT0}
    s_add_u32 {sO[1]}, {sO[0]}, {32*896}
    s_lshl_b32 s3, s3, 16
    s_lshl_b32 {sYS}, {sI2}, 7
    s_add_u32 {sYS}, {sYS}, s3
    s_add_u32 {sYS}, {sYS}, {WS_YT}""")
    S3_marks.append(len(S3))
    S3 += ea + [f"v_add_u32 {v(245)}, 57344, {v(EWB)}"]
    NG = 224
    G = Gaps(NG)
    def item_start(i): return CH * i if i <= 7 else P1 + 28 * (i - 7)
    gT = lambda T: item_start(T + 7 - N1)
    def xread(g):
        if g < P1: c = g // CH; ks = (g % CH) // N1; unit = g % N1; it = c
        else: it = 7 + (g - P1) // 28; k = (g - P1) % 28; ks = k % 4; unit = k // 4
        sl = it % 4; hi = 1 if sl >= 3 else 0
        off = (sl - 3 * hi) * SLOT + 1024 * unit
        return f"ds_read_b128 {v(XRING+4*(g%NXR),4)}, {v(XR[hi][ks])} offset:{off}"
    def wread(c, ks):
        sl = c % 4; var = sl // 2; off = (sl - 2 * var) * SLOT + PIECE * ks; f = 4 * (4 * c + ks)
        return [f"ds_read_b64_tr_b16 {a(f+2*rd,2)}, {v(WR[var])} offset:{off+512*rd}" for rd in range(2)]
    tile_acc = {0: 0, 1: 1, 2: 2, 3: 3, 4: 0, 5: 1, 6: 2, 7: 3}
    for g in range(NG):
        if g < P1: c = g // CH; ks = 4 * c + (g % CH) // N1; T = g % N1
        else: T = N1 + (g - P1) // 28; ks = (g - P1) % 28
        A = v(ACC[tile_acc[T]], 16)
        G.m[g] = f"v_mfma_f32_32x32x16_bf16 {A}, {a(4*ks,4)}, {v(XRING+4*(g%NXR),4)}, {'0' if ks == 0 else A}"
    pre = []
    def at(g, item):
        if g < 0: pre.append(item)
        else: G.put(g, item)
    gB = lambda i: item_start(i) - PD - 1
    if not cfg.hack_p: G.put(cfg.p_load, poll_load("p", "0"))
    G.put(cfg.p_chk, [stamp("prepoll") if not (cfg.pass_stamps or cfg.start_stamps) else [], [] if cfg.hack_p else poll_check("p", "0"), [] if cfg.p_chk in (gB(NI - 2), gB(NI - 1), gT(7)) else Ins("s_barrier")])
    for i in range(NI):
        at(gB(i), [WaitTag('vm', "it%d" % i), Ins("s_barrier")])
    assert cfg.z_chk < cfg.p_load
    G.put(cfg.z_load, poll_load("z", None))
    G.f[cfg.z_chk].insert(0, [stamp("zpre") if not (cfg.pass_stamps or cfg.start_stamps) else [], poll_check("z", None), stamp("zpost") if not (cfg.pass_stamps or cfg.start_stamps) else []])
    for g in range(NG):
        if g < P1 and g % N1 == 0:
            for s_ in wread(g // CH, (g % CH) // N1): at(g - PD - 1, s_)
        at(g - PD - 1, xread(g))
    cb = cfg.blk_c; deep = cfg.blk_deep and cb is not None
    for c in range(7):
        if deep:
            if c < cb: G.spread(dma_item(c + 2), max(gB(c) + 1, 0), gB(c + 1) + 1)
            if c > cb: G.put(12 * c, Ins("s_barrier")); G.spread(dma_item(c + 3), 12 * c + 1, 12 * c + 12)
        elif c != cb or not cfg.blk_dma: G.spread(dma_item(c + 2), max(gB(c) + 1, 0), gB(c + 1) + 1)
    for T in range(N1, 8): G.put(gT(T), ([WaitTag('lgkm', "hcw")] if T == 7 else []) + [Ins("s_barrier")])
    if deep: G.spread(dma_item(10), gT(3) + 1, gT(3) + 20)
    else: G.spread(dma_item(9) + dma_item(10), gB(7) + 1, gB(8) + 1)
    for i in range(11, NI): G.spread(dma_item(i), item_start(i - 3) + 1, item_start(i - 3) + 20)
    if cfg.wd_touch >= 0: G.put(cfg.wd_touch, f"buffer_load_dword {v(202)}, {v(200)}, {WD}, 0 offen {cfg.sc_wd}")
    for g_, n_ in (cfg.hack_sleep or []): G.put(g_, "s_sleep %d" % n_)
    if cfg.sk_at >= 0: G.spread(skl, cfg.sk_at, cfg.sk_at + 8)
    hv = []
    for rho in range(2):
        R = HR + 8 * rho; C_ = HCP + 12 * rho
        for k in range(4): hv.append(f"v_alignbit_b32 {v(C_+k)}, {v(R+4+k)}, {v(R+3+k)}, 16")
        for k in range(4): hv.append(f"v_mov_b32 {v(C_+4+k)}, {v(R+3+k)}")
        for k in range(4): hv.append(f"v_alignbit_b32 {v(C_+8+k)}, {v(R+3+k)}, {v(R+2+k)}, 16")
    hw = [Ins(f"ds_write_b128 {v(VHZ)}, {v(VZ,4)}", "hcw")]
    for rho in range(2):
        R = HR + 8 * rho; C_ = HCP + 12 * rho
        for cpy, src in enumerate((R + 4, C_, C_ + 4, C_ + 8)):
            hw.append(Ins(f"ds_write_b128 {v(VHW)}, {v(src,4)} offset:{cpy*CPY+1024*rho}", "hcw"))
    def epi(T, packed=False):
        A = ACC[tile_acc[T]]; Pk = PK[T % 2]; L = []
        for grp in range(2):
            g_ = A + 8 * grp; u_ = g_ + 4; E = ET
            if packed:
                E = ET if grp == 0 else HR
                L += [f"v_mul_f32 {v(E+i)}, {sNL2E}, {v(g_+i)}" for i in range(4)]
                L += [f"v_exp_f32 {v(E+i)}, {v(E+i)}" for i in range(4)]
                L += [f"v_pk_mul_f32 {v(u_+2*i,2)}, {v(g_+2*i,2)}, {v(u_+2*i,2)}" for i in range(2)]
                L += [f"v_pk_add_f32 {v(E+2*i,2)}, {v(E+2*i,2)}, 1.0 op_sel_hi:[1,0]" for i in range(2)]
                L += [f"v_rcp_f32 {v(E+i)}, {v(E+i)}" for i in range(4)]
                L += [f"v_pk_mul_f32 {v(u_+2*i,2)}, {v(u_+2*i,2)}, {v(E+2*i,2)}" for i in range(2)]
            else:
                L += [f"v_mul_f32 {v(E+i)}, {sNL2E}, {v(g_+i)}" for i in range(4)]
                L += [f"v_exp_f32 {v(E+i)}, {v(E+i)}" for i in range(4)]
                L += [f"v_mul_f32 {v(u_+i)}, {v(g_+i)}, {v(u_+i)}" for i in range(2)]
                L += [f"v_add_f32 {v(E+i)}, 1.0, {v(E+i)}" for i in range(4)]
                L += [f"v_rcp_f32 {v(E+i)}, {v(E+i)}" for i in range(4)]
                L += [f"v_mul_f32 {v(u_+i)}, {v(g_+i)}, {v(u_+i)}" for i in range(2, 4)]
                L += [f"v_mul_f32 {v(u_+i)}, {v(u_+i)}, {v(E+i)}" for i in range(4)]
            L += [f"v_cvt_pk_bf16_f32 {v(Pk+2*grp+i)}, {v(u_+2*i)}, {v(u_+2*i+1)}" for i in range(2)]
        L.append(f"s_lshl2_add_u32 {sSO2}, {sTO[T]}, {sHS}")
        L.append(Ins(f"buffer_store_dwordx4 {v(Pk,4)}, {v(V16)}, {WS}, {sSO2} offen {cfg.sc_h}", "hst%d" % T))
        return L
    page_slot = [(T + 7 - N1) % 4 for T in (4, 5, 6, 7)]
    def wd_page(n): return n if n < 21 else (n - 21 if n < 28 else (n - 7 if n < 35 else (n - 28 if n < 49 else n - 49)))
    def wd_prev(n): return n - 21 if 21 <= n < 28 else (n - 28 if n >= 35 else None)
    def wd_dma(n0, n1):
        L = []; n = n0
        while n < n1:
            p = wd_page(n); cnt = min(4, n1 - n, 7 - p % 7, 8 - n % 8)
            lds = page_slot[p // 7] * SLOT + 1024 * (p % 7)
            for k in range(cnt):
                it = [Ins(f"buffer_load_dwordx4 {v(VD[k])}, {WD}, {sSO} offen offset:{1024*k} {cfg.sc_wd} lds", "wd%d" % (n + k))]
                if wd_prev(n + k) is not None: it = [WaitTag('lgkm', "wr%d" % wd_prev(n + k))] + it
                if k == 0: L.append(f"s_add_u32 m0, {sM0P}, {lds}\n s_add_u32 {sSO}, {sDG[n >> 3]}, {7168*(n % 8)}")
                L.append(it)
            n += cnt
        return L
    def wd_read(n, dst):
        p = wd_page(n); sl = page_slot[p // 7]; hi = 1 if sl >= 2 else 0
        off = (sl - 2 * hi) * SLOT + 1024 * (p % 7)
        return [[WaitTag('vm', "wd%d" % n)] * (dt == 0 and not 28 <= n < 28 + cfg.n_raw) + [Ins(f"ds_read_b64_tr_b16 {dst(dt)}, {v(DR[hi][dt])} offset:{off}", "wr%d" % n)] for dt in range(2)]
    WD1 = 112
    NR = cfg.n_raw; RAW0 = 224 - 4 * NR; EWH = 245
    def raw_reg(n): return RAW0 + 4 * (NR - 1 - (n - 28))
    def raw_loads(n0, n1):
        L = []; n = n0
        while n < n1:
            cnt = min(4, n1 - n, 8 - n % 8)
            L.append(f"s_add_u32 {sSO}, {sDG[n >> 3]}, {7168*(n % 8)}")
            L += [f"buffer_load_dwordx4 {v(raw_reg(n+k),4)}, {v(VD[k])}, {WD}, {sSO} offen offset:{1024*k}" for k in range(cnt)]
            n += cnt
        return L
    def raw_write(n):
        p = wd_page(n); off = page_slot[p // 7] * SLOT + 1024 * (p % 7)
        it = [Ins(f"ds_write_b128 {v(EWB if off < 57344 else EWH)}, {v(raw_reg(n),4)} offset:{off if off < 57344 else off - 57344}", "ww%d" % n)]
        return [it]
    def fill_units(n0, n1):
        m = min(max(28 + NR, n0), n1)
        return [x for n in range(n0, m) for x in raw_write(n)] + wd_dma(m, n1)
    def wd1(n): return lambda dt: a(WD1 + 8 * (n >> 1) + 4 * dt + 2 * (n & 1), 2)
    def wd_reads(n0, n1): return [x for n in range(n0, n1) for x in wd_read(n, wd1(n))]
    if cfg.blk_c is None:
        if cfg.s3_at >= 0: l3_ = G.pour(S3, cfg.s3_at, cfg.hv_at, cfg.bud1); assert l3_ < 80
        lh = G.pour(hv, cfg.hv_at, min(max(P1 - 4, cfg.hv_at + 24), cfg.hw0 - 2), cfg.bud1 if cfg.hv_at < 70 else 20); assert lh < cfg.hw0
        G.spread(hw, cfg.hw0, cfg.hw1)
    else:
        n3 = len(S3) - (S3_marks + [len(S3)])[3 - cfg.blk_s3]; S3b = S3[len(S3) - n3:]; del S3[len(S3) - n3:]
        work = [hw[0], hv[0:4], hw[1], hv[4:8], hw[2], hv[8:12], hw[3], hv[12:16], hw[4], hv[16:20], hw[5], hv[20:24], hw[6], S3b[:5], hw[7], S3b[5:10], hw[8], S3b[10:]]
        d_ = dma_item(cfg.blk_c + 2) if cfg.blk_dma else []; blk = []
        if deep:
            G.spread(d_[:4], gB(cb) + 1, 12 * cb); d_ = d_[4:] + dma_item(cb + 3); blk = [Ins("s_barrier")]
        step_ = max(len(work) // (len(d_) + 1), 1)
        for j, it in enumerate(work):
            if j % step_ == 0 and d_: blk.append(d_.pop(0))
            blk.append(it)
        if cfg.blk_list:
            done_ = 0
            for g_, nw_ in cfg.blk_list:
                k_ = min(len(blk), done_ + 2 * nw_) if (g_, nw_) != cfg.blk_list[-1] else len(blk)
                G.put(g_, blk[done_:k_]); done_ = k_
        elif cfg.blk_g2: G.put(cfg.blk_g, blk[:9]); G.put(cfg.blk_g2, blk[9:])
        else: G.put(12 * cb if deep else (gB(cb) + 1 if cfg.blk_dma else cfg.blk_g), blk + d_)
    if NR:
        r0, r1, r2 = 28, 28 + min(NR, 6), 28 + min(NR, 6 + (NR - 6 + 1) // 2)
        assert cfg.hw1 <= gT(5) + 8 or NR <= 6
        G.spread(raw_loads(r0, r1), gT(4) + 21 - 12, gT(5))
        G.spread(wd_dma(0, 7), gT(5) + 1, gT(5) + 15); G.spread(raw_loads(r1, r2), gT(5) + 15, gT(6))
        G.spread(wd_dma(7, 14), gT(6) + 1, gT(6) + 15); G.spread(raw_loads(r2, 28 + NR), gT(6) + 15, gT(7))
    else:
        G.spread(wd_dma(0, 7), gT(5) + 1, gT(5) + 22)
        G.spread(wd_dma(7, 14), gT(6) + 1, gT(6) + 20)
    UD = ([f"s_mov_b32 m0, {sPA}\n s_add_u32 {sSO}, {sU}, {WS_UR if not cfg.hack_p else 0x900000}"] + [Ins(f"buffer_load_dwordx4 {v(V16)}, {WS}, {sSO} offen offset:{1024*j} sc1 lds", "u") for j in range(2)])
    G.spread(wd_reads(0, 7), gB(NI - 1) + 2, gT(7) + 12)
    if cfg.p_chk > gT(7) + 8:
        G.spread(wd_dma(14, 21), gT(7) + 1, cfg.p_chk)
        G.put(cfg.p_chk + 1, UD)
        G.spread(wd_dma(21, 28), cfg.p_chk + 2, NG - 1)
    elif cfg.p_chk == gT(7):
        G.put(gT(7) + 1, UD)
        G.spread(wd_dma(14, 28), gT(7) + 2, NG - 1)
    else:
        assert cfg.p_chk in (gB(NI - 2), gB(NI - 1))
        G.put(cfg.p_chk + 4, UD)
        G.spread(wd_dma(14, 28), gT(7) + 1, NG - 1)
    bounds = [P1 + 2 + (NG - P1 - 4) * k // 7 for k in range(8)]
    last = 0
    for T in range(7):
        avail = (P1 if T < N1 else gT(T + 1)) + 2
        if cfg.epi_len: g0 = max(avail, last); g1_ = min(g0 + cfg.epi_len, NG - 1)
        else: g0 = max(bounds[T], avail, last); g1_ = max(bounds[T + 1], g0 + 1)
        last = G.pour(epi(T), g0, g1_, cfg.bud)
        if T == 3 and cfg.eo: assert last < cfg.a_arr - 4, last
        nxt = [t for t in range(T + 1, 8) if tile_acc[t] == tile_acc[T]]
        if nxt: assert last < gT(nxt[0]), (T, last)
    if cfg.eo:
        k_ = [i for i, it in enumerate(G.f[cfg.a_arr]) if isinstance(it, list) and any(isinstance(x, Ins) and x.op == "s_barrier" for x in it)][0]
        if not cfg.nosync: G.f[cfg.a_arr].insert(k_, WaitTag('vm', "hst3")); k_ += 1
        G.f[cfg.a_arr].insert(k_ + 1, [f"s_add_u32 {sT1}, {sFL}, {512*128}", arrive("hst3", sT1, False)])
        G.put(cfg.a_load - 2, f"s_lshr_b32 {sT1}, {sI2}, 2\n s_mul_i32 {sT1}, {sT1}, {28*128}")
        G.put(cfg.a_load - 1, f"s_add_u32 {sT1}, {sT1}, {768*128}")
        G.put(cfg.a_load, poll_load("a", sT1))
    check_m0(G)
    SS = S + S2; k0 = len(SS) * min(cfg.late_pos, 100) // 100
    touch = []
    if cfg.x_touch:
        touch = lines(f"""v_min_u32 {v(200)}, {8*cfg.x_touch-1}, {v(VL)}
        v_lshrrev_b32 {v(201)}, 3, {v(200)}
        s_lshl_b32 s3, {sFQ}, 1
        s_add_u32 s3, s3, 3
        v_add_u32 {v(201)}, {'s3' if cfg.rot_t else '3'}, {v(201)}
        v_and_b32 {v(201)}, 7, {v(201)}
        v_mul_u32_u24 {v(201)}, 28672, {v(201)}
        v_and_b32 {v(200)}, 7, {v(200)}
        v_mul_u32_u24 {v(200)}, 896, {v(200)}
        v_add3_u32 {v(200)}, {v(200)}, {v(201)}, {sXBc}
        buffer_load_dword {v(202)}, {v(200)}, {X}, {sCH[0]} offen""")
    kvt = lines(f"""s_lshl_b32 s3, s2, 2
    s_add_u32 s3, s3, {sW}
    s_lshl_b32 s3, s3, 4
    v_min_u32 {v(203)}, 15, {v(VL)}
    v_add_lshl_u32 {v(203)}, {v(203)}, s3, 7
    global_load_dword {v(204)}, {v(203)}, s[94:95]
    global_load_dword {v(205)}, {v(203)}, s[96:97]""")
    if cfg.kv_touch == 0: P.add(kvt)
    P.add(SS[:k0])
    if cfg.late_pos <= 100: P.add(late_first)
    P.add(SS[k0:])
    if cfg.kv_touch == 1: P.add(kvt)
    if cfg.s3_at < 0: P.add(S3)
    if cfg.late_pos > 100: P.add(late_first)
    if cfg.kv_touch == 2: P.add(kvt)
    if cfg.trace: P.e('v_mov_b32 v253, 0')
    P.e(f"""s_lshl_b32 s3, s2, 2
    s_add_u32 s3, s3, {sW}
    s_mul_i32 s3, s3, 14
    v_min_u32 {v(200)}, 13, {v(VL)}
    v_add_lshl_u32 {v(200)}, {v(200)}, s3, 7""")
    if cfg.sk_at < 0: P.add(skl)
    if cfg.tlb:
        P.e(f"""v_min_u32 {v(203)}, 12, {v(VL)}
        v_lshlrev_b32 {v(203)}, 20, {v(203)}
        v_add_u32 {v(203)}, 0x1f000, {v(203)}
        buffer_load_dword {v(204)}, {v(203)}, {WS}, 0 offen
        buffer_load_dword {v(205)}, {v(VZ)}, {OUT}, 0 offen
        buffer_load_dword {v(206)}, {v(VZ)}, {WD}, 0 offen""")
    if cfg.wd_touch == -2: P.e(f"buffer_load_dword {v(202)}, {v(200)}, {WD}, 0 offen {cfg.sc_wd}")
    if cfg.warm and cfg.stub_at:
        P.e("s_mov_b64 exec, 0")
        for k in range(min(4, len(cfg.stub_at))): P.e(f"s_cmp_eq_u32 {sW}, {k}\n s_cbranch_scc1 L_pg{k}")
        P.e("L_pgback:\n s_mov_b64 exec, -1")
    if cfg.start_stamps: P.add(stamp("setup"))
    P.e(f"""s_waitcnt lgkmcnt(0)
    s_lshl_b32 s3, {sD}, 16
    s_and_b32 {sD}, {sD}, 0xffff0000
    s_cmp_lt_u32 {sW}, 2
    s_cselect_b32 {sD}, s3, {sD}""")
    P.add(pre)
    P.add(stamp("g1start"))
    G.put(P1 - 1, stamp("p1end"))
    if cfg.pass_stamps:
        for T in (5, 6, 7): G.put(gT(T) - 1, stamp("T%d" % T))
    add_trace(G, 6, 'g', [94, 96])
    G.emit(P, cfg.pair)
    if cfg.verbose: print("G1 gap costs", G.costs())
    if cfg.start_stamps: P.e("v_readfirstlane_b32 s8, v156\n v_readfirstlane_b32 s10, v157"); STAMP_REGS['prewait'] = 8; STAMP_REGS['karg'] = 10
    P.add(stamp("g1end"))
    CACC = 48
    def cA(buf, a_): return (0 if buf == 0 else 64) + 4 * a_
    def cB(buf, b_):
        i = 32 + 4 * b_ if buf == 0 else 96 + 4 * b_
        return i if i < 112 else 224 + (i - 112)
    def crA(st, k): return [f"ds_read_b64 {a(cA(st&1,k)+2*rd,2)}, {v(CA)} offset:{512*k+64*st+8*rd}" for rd in range(2)]
    def crB(st, k): return [f"ds_read_b128 {a(cB(st&1,k),4)}, {v(CB)} offset:{64*st+512*(7-k)}"]
    def creads(st): return [x for k in range(8) for x in crB(st, k) + crA(st, k)]
    e7 = epi(7, True); ra = [x for k in range(8) for x in crA(0, k)]
    P.add(ra[:10]); k = 10
    for j, it in enumerate(e7):
        P.add(it)
        if j % 6 == 5 and k < 16: P.add(ra[k]); k += 1
    P.add(ra[k:])
    P.vmwait("u"); P.e("s_barrier")
    for k in range(8): P.add(crB(0, k))
    hg = [f"s_lshr_b32 s3, {sI2}, 2", "s_mul_i32 s3, s3, 28", f"s_add_u32 s3, s3, 256", f"s_lshl_b32 s3, s3, 7", f"v_add_u32 {v(vP7)}, s3, {v(vP7)}",
          f"s_add_u32 s3, {sI2}, 32", "s_lshl_b32 s3, s3, 7", f"v_mov_b32 {v(T1)}, s3", f"v_cmp_gt_u32 vcc, 7, {v(VL)}", f"s_mov_b32 {sPA}, 0", "s_nop 0",
          f"v_cndmask_b32 {v(vP7)}, {v(T1)}, {v(vP7)}, vcc",
          f"s_lshl_b32 {sRG}, {sRG}, 12", f"s_add_u32 {sXB}, {sHL[0]}, {sRG}", f"s_add_u32 {sHE}, {sHL[0]}, {28*1024}"]
    d0 = fill_units(28, 35)
    npre = 0 if NR else 3
    P.add(d0[:npre])
    P.add(stamp("cstart"))
    C = Gaps(144)
    pairs = [(t, a_) for t in range(8) for a_ in range(t + 1)]
    for st in range(4):
        for j, (t, a_) in enumerate(pairs):
            A = v(CACC + 4 * t, 4)
            C.m[36 * st + j] = f"v_mfma_f32_16x16x32_bf16 {A}, {a(cA(st&1,a_),4)}, {a(cB(st&1,t-a_),4)}, {'0' if (st == 0 and a_ == 0) else A}"
        if st < 3: C.spread(creads(st + 1), 36 * st + 1, 36 * st + 33)
    HRING = 96; NHR = 32
    horder = [(0, ks) for ks in range(28)] + [(1, ks) for ks in (list(range(14, 28)) + list(range(14)) if cfg.b_rev else range(28))]
    def hload(n):
        st, ks = horder[n]; L = []
        if n == 28: L += [f"s_add_u32 {sXB}, {sHL[1]}, {sRG}", f"s_add_u32 {sHE}, {sHL[1]}, {28*1024}"]
        elif n > 0 and ks % 4 == 0: L += [f"s_add_u32 {sXB}, {sXB}, 4096", f"s_cmp_eq_u32 {sXB}, {sHE}\n s_cselect_b32 {sXB}, {sHL[st]}, {sXB}"]
        L.append(f"buffer_load_dwordx4 {v(HRING+4*(n%NHR),4)}, {v(V16)}, {WS}, {sXB} offen offset:{1024*(ks%4)} sc1")
        return L
    w0, w1, w2, w3 = cfg.c_wd
    C.spread(d0[npre:], 0, w0)
    C.spread(wd_reads(7, 14), 2, w0 - 2); C.spread(fill_units(35, 42), w0, w1)
    C.spread(wd_reads(14, 21), w0, w1 - 2); C.spread(fill_units(42, 49), w1, w2)
    C.spread(wd_reads(21, 28), w1, w2 - 2); C.spread(wd_dma(49, 56), w2, w3)
    C.put(cfg.g_arrive, arrive("hst7", sFL))
    if cfg.eo: C.put(cfg.a_chk, poll_check("a", sT1))
    lh_ = C.pour(hg, cfg.a_chk + 1 if cfg.eo else 40, min(cfg.g_poll, cfg.h_first) - 4, 10); assert lh_ < min(cfg.g_poll, cfg.h_first)
    C.put(cfg.g_poll, poll_load("h", sPA))
    HCHK = [stamp("c_pre"), poll_check("h", sPA), stamp("c_post")]
    if not cfg.eo: C.put(cfg.g_chk, HCHK)
    NH = cfg.nh_c
    C.spread([hload(n) for n in range(NH)], cfg.h_first if cfg.eo else cfg.g_chk + 1, 144)
    RR = 48; UU = 18; DU = 80
    ce = [f"s_add_u32 {sU}, {sU}, {WS_YT}"]
    ce += [f"ds_read_b64 {v(UU+2*tau,2)}, {v(VUR)} offset:{512*(3-tau)}" for tau in range(4)]
    for tau in range(4):
        ce += lines(f"""
        v_and_b32 {v(DU+4*tau+0)}, {sMASK}, {v(UU+2*tau+1)}
        v_lshlrev_b32 {v(DU+4*tau+1)}, 16, {v(UU+2*tau+1)}
        v_and_b32 {v(DU+4*tau+2)}, {sMASK}, {v(UU+2*tau)}
        v_lshlrev_b32 {v(DU+4*tau+3)}, 16, {v(UU+2*tau)}""")
    lr = C.pour(ce[:5], max(lh_ + 1, 104), 112, 8); assert lr < cfg.c_bar - 4
    lc = C.pour(ce[5:], lr + 6, 140, 8)
    assert lc < 140
    C.put(cfg.c_bar, [WaitRegs(a(cA(1, 7), 4)), WaitRegs(v(UU, 8)), Ins("s_barrier")])
    for g_, n_ in (cfg.hack_sleep_c or []): C.put(g_, 's_sleep %d' % n_)
    check_m0(C, 1024)
    add_trace(C, 12, 'c', [94, 96])
    C.emit(P)
    if cfg.verbose: print("C gap costs", C.costs())
    hq = [hload(n) for n in range(NH, NH + cfg.nh_e)]; NH += cfg.nh_e
    def hnext():
        if hq: P.add(hq.pop(0))
    hnext()
    dfma = lambda base: [f"v_pk_fma_f32 {v(DU+2*k,2)}, s[78:79], {v(DU+2*k,2)}, {v(base+2*k,2)} op_sel_hi:[0,1,1]" for k in range(8)]
    P.e(f"s_cmp_eq_u32 {sKH}, 0\n s_cbranch_scc1 L_cw0")
    for tau in range(4): P.e(f"ds_write_b128 {v(VRW)}, {v(CACC+4*tau,4)} offset:{1024*tau}", nocount=True)
    P.add(dfma(CACC + 16))
    P.e("s_branch L_cw1\n L_cw0:\n s_nop 2")
    for tau in range(4): P.e(f"ds_write_b128 {v(VRW)}, {v(CACC+16+4*tau,4)} offset:{1024*tau}")
    P.add(dfma(CACC))
    P.e("L_cw1:")
    while hq: hnext()
    P.e("s_waitcnt lgkmcnt(0)\n s_barrier")
    ct_ = [f"ds_read_b128 {v(RR+4*tau,4)}, {v(VRR)} offset:{1024*tau}" for tau in range(4)]
    P.add(ct_); ct_ = []
    for pi in range(2):
        if cfg.c_tail_in_g2: ct_ += [f"v_add_f32 {v(DU+8*pi+k)}, {v(DU+8*pi+k)}, {v(RR+8*pi+k)}" for k in range(8)]
        else: ct_ += [f"v_pk_add_f32 {v(DU+8*pi+2*k,2)}, {v(DU+8*pi+2*k,2)}, {v(RR+8*pi+2*k,2)}" for k in range(4)]
        ct_ += [f"v_cvt_pk_bf16_f32 {v(UU+4*pi+k)}, {v(DU+8*pi+2*k)}, {v(DU+8*pi+2*k+1)}" for k in range(4)]
    for pi in range(2):
        ct_ += [f"v_permlane16_swap_b32 {v(UU+4*pi)}, {v(UU+4*pi+2)}", f"v_permlane16_swap_b32 {v(UU+4*pi+1)}, {v(UU+4*pi+3)}"]
        ct_ += [Ins(f"buffer_store_dwordx4 {v(UU+4*pi,4)}, {v(VYS)}, {WS}, {sU} offen offset:{1024*pi} sc1", "yst")]
    if not cfg.c_tail_in_g2: P.add(ct_); ct_ = []
    P.add(stamp("g2start"))
    GACC = 0; JIT = 64; NJ = 8
    G2 = Gaps(112)
    jn = 0
    for n in range(56):
        st, ks = horder[n]
        for dt in range(2):
            A = a(GACC + 32 * st + 16 * dt, 16)
            if ks < 14: W_ = a(WD1 + 8 * ks + 4 * dt, 4)
            else:
                r_ = JIT + 4 * (jn % NJ); jn += 1; W_ = a(r_, 4)
                for rd in range(2):
                    G2.put(2 * n + dt - 6, wd_read(2 * ks + rd, lambda d_, r_=r_, rd=rd: a(r_ + 2 * rd, 2))[dt])
            G2.m[2 * n + dt] = f"v_mfma_f32_32x32x16_bf16 {A}, {W_}, {v(HRING+4*(n%NHR),4)}, {'0' if n in (0, 28) else A}"
    reserved = sorted([8, 10] * bool(cfg.c_tail_in_g2) + list(cfg.q_at[:2]) + [cfg.g2_chk + 2, cfg.g2_chk + 4])
    t_ = 0.0; n = NH; la = []
    while n < 56:
        if reserved and reserved[0] <= t_ + cfg.g2_hpace / 2: reserved.pop(0); t_ += cfg.g2_hpace; continue
        g = int(t_)
        if n >= NHR: assert g >= 2 * (n - NHR) + 1
        if n == 28 and cfg.eo: assert g > cfg.b_chk
        la.append(2 * n - g); G2.put(g, hload(n)); n += 1; t_ += cfg.g2_hpace
    if cfg.verbose: print("H lookahead (gaps)", la)
    assert min(la) >= 8, la
    if cfg.eo: G2.put(cfg.b_chk, HCHK)
    lt = G2.pour(ct_, 1, 10, 24) if ct_ else 0
    e1 = lines(f"""
    s_lshl_b32 s3, s2, 7
    s_add_u32 {sFL}, s3, {512*128}
    s_lshl_b32 s3, {sCT}, 12
    s_add_u32 {sPA}, s3, {512*128}
    """)
    l1 = G2.pour(e1, max(lt, cfg.b_chk + 1 if cfg.eo else 0), max(lt, cfg.b_chk) + 8, 24); assert l1 <= cfg.g2_arrive
    G2.put(cfg.g2_arrive, [WaitTag('vm', "q"), arrive("yst", sFL)])
    qd = [f"s_lshl_b32 {sT1}, {sW}, 11\n s_add_u32 m0, {sT1}, {QL}"]
    qd += [Ins(f"buffer_load_dwordx4 {v(VQ[j])}, {X}, {sQS} offen offset:{1024*j} lds", "q") for j in range(2)]
    qd += [f"buffer_load_dword {v(VG[j])}, {v(VGA)}, {WS}, 0 offen offset:{128*j} sc1" for j in range(2)]
    assert not cfg.eo or min(cfg.q_at) - 1 > cfg.b_chk
    G2.put(cfg.q_at[0] - 1, qd[0])
    for q_, g_ in zip(qd[1:], cfg.q_at): G2.put(g_, q_)
    def sends(st, addr):
        return [Ins(f"ds_write_b128 {addr(sg, jj)[0]}, {a(GACC+32*st+16*(sg>>1)+8*(sg&1)+4*jj,4)} offset:{addr(sg, jj)[1]}", "rw%d" % st) for sg in range(1, 4) for jj in range(2)]
    G2.spread(sends(0, lambda sg, jj: (v(EWA), 2048 * (sg - 1) + 1024 * jj)), 59, cfg.rw_bar - 1)
    G2.put(cfg.g2_poll, poll_load("y", sPA))
    G2.put(cfg.g2_chk, [stamp("g2_pre"), poll_check("y", sPA), [WaitTag('lgkm', "rw0")] if cfg.rw_bar == cfg.g2_chk else [], Ins("s_barrier"), [] if cfg.pass_stamps else stamp("g2_post")])
    if cfg.rw_bar != cfg.g2_chk: G2.put(cfg.rw_bar, [WaitTag('lgkm', "rw0"), Ins("s_barrier")])
    yd = [f"s_add_u32 m0, {sT1}, {YL}"]
    yd += [Ins(f"buffer_load_dwordx4 {v(VY[j])}, {WS}, {sYS} offen offset:{1024*j} sc1 lds", "y") for j in range(2)]
    G2.put(cfg.g2_chk + 1, yd[0]); G2.put(cfg.g2_chk + 2, yd[1]); G2.put(cfg.g2_chk + 4, yd[2])
    QQ = 48; TT = 56; BB = 72; RX = 80; YY = 18; O = 48
    RP = [80, 84, 88, 92, 28 + 0, 28 + 0]
    un = lambda i, d, s_: (f"v_lshlrev_b32 {d}, 16, {s_}" if i % 2 == 0 else f"v_and_b32 {d}, {sMASK}, {s_}")
    p0 = [f"ds_read_b64 {v(QQ+4*st+2*J,2)}, {v(EQ[J])} offset:{4096*st}" for st in range(2) for J in range(2)]
    p0 += [f"v_sub_f32 {v(OMG[st])}, 1.0, {v(VG[st])}" for st in range(2)] + [[], []]
    p0 += [un(k, v(TT + k), v(QQ + (k >> 1))) for k in range(16)]
    p0 += [f"v_mul_f32 {v(TT+k)}, {v(TT+k)}, {v(VG[k>>3])}" for k in range(16)]
    l0 = G2.pour(p0, cfg.g2_arrive + 1, 62, 22); assert l0 < cfg.rw_bar
    p1 = [f"ds_read_b128 {v(RX+4*jj,4)}, {v(ERA[0])} offset:{1024*jj}" for jj in range(2)]
    p1 += [f"ds_read_b128 {v(RX+8+4*jj,4)}, {v(ERA[1])} offset:{1024*jj}" for jj in range(2)]
    p1 += [f"v_accvgpr_read_b32 {v(BB+k)}, {a(GACC+k)}" for k in range(8)]
    p1 += [f"v_add_f32 {v(BB+k)}, {v(BB+k)}, {v(RX+k)}" for k in range(8)]
    p1 += [f"ds_read_b128 {v(RX+4*jj,4)}, {v(ERA[2])} offset:{1024*jj}" for jj in range(2)]
    p1 += [f"v_add_f32 {v(BB+k)}, {v(BB+k)}, {v(RX+8+k)}" for k in range(8)]
    p1 += [f"v_add_f32 {v(BB+k)}, {v(BB+k)}, {v(RX+k)}" for k in range(8)]
    p1 += [f"v_mul_f32 {v(BB+k)}, {v(BB+k)}, {v(OMG[0])}" for k in range(8)]
    l3 = G2.pour(p1, cfg.rw_bar + 1, cfg.g2_pre - 1, 24); assert l3 <= cfg.g2_pre + 4, l3
    p2 = [[WaitTag('vm', "y"), Ins("s_barrier")]]
    p2 += [f"ds_read_b64_tr_b16 {v(YY+4*st+2*J,2)}, {v(EY)} offset:{1024*J+32*st}" for st in range(2) for J in range(2)]
    p2 += [[], [], []]
    p2 += [un(k, v(RX + k), v(YY + (k >> 1))) for k in range(8)]
    p2 += [f"v_fmac_f32 {v(BB+k)}, {v(TT+k)}, {v(RX+k)}" for k in range(8)]
    p2 += [f"v_cvt_pk_bf16_f32 {v(O+k)}, {v(BB+2*k)}, {v(BB+2*k+1)}" for k in range(4)]
    p2 += [un(k, v(RX + k), v(YY + (k >> 1))) for k in range(8, 16)]
    p2 += [f"v_permlane32_swap_b32 {v(O)}, {v(O+2)}", f"v_permlane32_swap_b32 {v(O+1)}, {v(O+3)}"]
    p2 += [f"buffer_store_dwordx4 {v(O,4)}, {v(EO)}, {OUT}, {sO[0]} offen {cfg.sc_out}"]
    p2 += [f"v_mul_f32 {v(TT+k)}, {v(TT+k)}, {v(RX+k)}" for k in range(8, 16)]
    p2 += [f"v_mov_b32 {v(T1)}, {v(OMG[1])}", f"v_mov_b32 {v(T2)}, {v(OMG[1])}"]
    if cfg.y_late: G2.pour(p2[-2:], l3, 111, 24)
    else: G2.pour(p2, max(l3, cfg.g2_pre), 111, 24)
    for g_, n_ in (cfg.hack_sleep_h or []): G2.put(g_, 's_sleep %d' % n_)
    check_m0(G2)
    add_trace(G2, 8, 'h', [94, 96])
    G2.emit(P, 2)
    if cfg.verbose: print("G2 gap costs", G2.costs())
    P.add(stamp("g2end"))
    R1 = 96; O2 = 52; B2 = 120 if cfg.y_late else BB
    w_ = sends(1, lambda sg, jj: (v(EWB), (sg - 1) * SLOT + 1024 * jj))
    P.add(w_[:2])
    for k in range(8): P.e(f"v_accvgpr_read_b32 {v(B2+k)}, {a(GACC+32+k)}")
    P.add(w_[2:])
    if cfg.y_late: P.vmwait("y")
    P.e("s_waitcnt lgkmcnt(0)\n s_barrier")
    if cfg.y_late: P.add(p2[1:5])
    for jj in range(2):
        for sg in range(1, 4): P.e(f"ds_read_b128 {v(R1+8*(sg-1)+4*jj,4)}, {v(ERB[sg-1])} offset:{1024*jj}")
    if cfg.y_late:
        for k in range(8): P.e(un(k, v(RX + k), v(YY + (k >> 1))))
        for k in range(4): P.e(f"v_pk_fma_f32 {v(BB+2*k,2)}, {v(TT+2*k,2)}, {v(RX+2*k,2)}, {v(BB+2*k,2)}")
        for k in range(4): P.e(f"v_cvt_pk_bf16_f32 {v(O+k)}, {v(BB+2*k)}, {v(BB+2*k+1)}")
        for k in range(8, 10): P.e(un(k, v(RX + k), v(YY + (k >> 1))))
        P.e(f"v_permlane32_swap_b32 {v(O)}, {v(O+2)}\n v_permlane32_swap_b32 {v(O+1)}, {v(O+3)}")
        P.e(f"buffer_store_dwordx4 {v(O,4)}, {v(EO)}, {OUT}, {sO[0]} offen {cfg.sc_out}")
        for k in range(10, 16): P.e(un(k, v(RX + k), v(YY + (k >> 1))))
        for k in range(4, 8): P.e(f"v_pk_mul_f32 {v(TT+2*k,2)}, {v(TT+2*k,2)}, {v(RX+2*k,2)}")
    for jj in range(2):
        for sg in range(3):
            for i in range(2): P.e(f"v_pk_add_f32 {v(B2+4*jj+2*i,2)}, {v(B2+4*jj+2*i,2)}, {v(R1+8*sg+4*jj+2*i,2)}")
        for i in range(2): P.e(f"v_pk_fma_f32 {v(B2+4*jj+2*i,2)}, {v(B2+4*jj+2*i,2)}, {v(T1,2)}, {v(TT+8+4*jj+2*i,2)}")
        for i in range(2): P.e(f"v_cvt_pk_bf16_f32 {v(O2+2*jj+i)}, {v(B2+4*jj+2*i)}, {v(B2+4*jj+2*i+1)}")
    P.e(f"v_permlane32_swap_b32 {v(O2)}, {v(O2+2)}\n v_permlane32_swap_b32 {v(O2+1)}, {v(O2+3)}")
    P.e(f"buffer_store_dwordx4 {v(O2,4)}, {v(EO)}, {OUT}, {sO[1]} offen {cfg.sc_out}")
    if cfg.stamps: emit_stamps(P)
    if cfg.fixdur:
        P.e(f"""L_fix:
        s_memrealtime s[4:5]
        s_waitcnt lgkmcnt(0)
        s_sub_u32 s4, s4, s100
        s_cmp_lt_i32 s4, {cfg.fixdur}
        s_cbranch_scc1 L_fix""")
    P.e("s_endpgm")

def check_m0(G, init=None):
    flat = []
    def fl(it):
        if isinstance(it, str):
            for l in lines(it): flat.append(Ins(l))
        elif isinstance(it, (list, tuple)):
            for x in it: fl(x)
        elif isinstance(it, Ins): flat.append(it)
    for f in G.f:
        for it in f: fl(it)
    last_off = init
    for it in flat:
        if it.kind == 'salu' and ('s', 'm0') in it.w: last_off = -1024
        if it.kind == 'dma':
            m = re.search(r'offset:(\d+)', it.text); off = int(m.group(1)) if m else 0
            assert last_off is not None and off == last_off + 1024, ("m0 group interleaved", it.text)
            last_off = off

def emit_stamps(P):
    P.e("s_waitcnt vmcnt(0)")
    P.e("s_memtime s[4:5]\n s_memrealtime s[6:7]\n s_waitcnt lgkmcnt(0)")
    n = len(stamp_names)
    for k in range(n):
        P.e(f"s_sub_u32 s3, s{STAMP_REGS[stamp_names[k]]}, {'s100' if cfg.rt else 's98'}"); P.e(f"v_mov_b32 v{200+k}, s3")
    P.e(f"s_sub_u32 s3, {'s6, s100' if cfg.rt else 's4, s98'}\n v_mov_b32 v{200+n}, s3")
    P.e(f"""s_lshl_b32 s3, s2, 2
    s_add_u32 s3, s3, {sW}
    s_lshl_b32 s3, s3, 7
    s_add_u32 s3, s3, {WS_STAMP}
    v_mov_b32 v229, 0
    v_mov_b32 v230, s100
    v_mov_b32 v231, s6
    v_mov_b32 v2, 0
    s_mov_b64 exec, 1""")
    for k in range(8): P.e(f"buffer_store_dwordx4 v[{200+4*k}:{203+4*k}], v2, {WS}, s3 offen offset:{16*k}")
    if cfg.trace:
        P.e(f"""s_mov_b64 exec, -1
        v_subrev_u32 v254, s98, v254
        v_subrev_u32 v255, s98, v255
        s_lshl_b32 s3, s2, 2
        s_add_u32 s3, s3, {sW}
        s_lshl_b32 s3, s3, 9
        s_add_u32 s3, s3, {WS_STAMP + 0x40000}
        v_lshlrev_b32 v2, 2, v1
        buffer_store_dword v254, v2, {WS}, s3 offen
        v_readlane_b32 s4, v253, 0
        v_readlane_b32 s5, v253, 1
        v_readlane_b32 s6, v253, 2
        v_readlane_b32 s7, v253, 3
        s_nop 3
        v_writelane_b32 v255, s4, 60
        v_writelane_b32 v255, s5, 61
        v_writelane_b32 v255, s6, 62
        v_writelane_b32 v255, s7, 63
        buffer_store_dword v255, v2, {WS}, s3 offen offset:256""")

def gen_aux(P0):
    P = P0
    K, V_, SH, GW = "s[40:43]", "s[44:47]", "s[48:51]", "s[52:55]"
    sA = "s68"; sST = "s69"; sUS = "s70"; sLO = "s71"; sHI = "s72"; sC = "s73"; sC2 = "s74"; sTA = ["s56", "s57"]; sTW = ["s58", "s59"]
    VL = 1; T0 = 2; T1 = 3; VZA = 4; VB = 5; VB2 = 6; VM = 7; VX = 8; VR = 9; VS = 11; VW = 12; VWt = [13, 14]; VRB = 16; VQ = 20; VQ2 = 21; VGW = 22
    KP = [48, 58]; VP = [68, 76]; WR_ = [84, 86]; WT = [88, 94]; OO = 100; UV = 108; OUT_ = 124; RB = 160; PF = 24
    TS = 17408
    P.e("s_cmp_lt_u32 s2, 256\n s_cbranch_scc1 L_auxgo\n s_endpgm\n L_auxgo:")
    for reg, off in ((K, 8), (V_, 16), (SH, 24), (GW, 80)): P.e(ldptr(reg, off))
    P.add(srd_hi(K, NQ) + srd_hi(V_, NQ) + srd_hi(SH, 3584) + srd_hi(X, NQ) + srd_hi(GW, 896) + srd_hi(WS, WS_SIZE) + srd_hi(WD, NW))
    P.e(f"""
    s_sub_u32 {sA}, s2, 224
    s_mul_i32 {sSO}, {sA}, {64*896}
    s_mul_i32 {sST}, {sW}, 40960
    s_lshl_b32 {sTA[0]}, {sW}, 7
    s_add_u32 {sTA[1]}, {sTA[0]}, 512
    s_cmp_eq_u32 {sW}, 3
    s_cselect_b32 {sTA[1]}, {NQ}, {sTA[1]}
    s_lshl_b32 {sTW[0]}, {sW}, 9
    s_add_u32 {sTW[1]}, {sTW[0]}, 2048
    v_lshrrev_b32 {v(T0)}, 3, {v(VL)}
    v_and_b32 {v(T1)}, 7, {v(VL)}
    v_mul_u32_u24 {v(VB)}, 896, {v(T0)}
    v_lshl_add_u32 {v(VB)}, {v(T1)}, 4, {v(VB)}
    v_add_u32 {v(VB)}, {sSO}, {v(VB)}
    v_add_u32 {v(VB2)}, 6144, {v(VB)}
    v_add_u32 {v(VM)}, -7168, {v(VB)}
    v_lshlrev_b32 {v(VX)}, 3, {v(VL)}
    s_mul_i32 s3, {sA}, {32*128}
    v_lshlrev_b32 {v(VZA)}, 7, {v(VL)}
    v_add_u32 {v(VZA)}, s3, {v(VZA)}
    v_mov_b32 {v(vARR)}, -16
    v_cmp_gt_u32 vcc, 32, v0
    v_mov_b32 {v(vZERO)}, 0
    v_cndmask_b32 {v(VZA)}, {v(vARR)}, {v(VZA)}, vcc
    v_cmp_eq_u32 vcc, 0, v0
    v_mov_b32 {v(vONE)}, 1
    s_waitcnt lgkmcnt(0)
    v_cndmask_b32 {v(vARR)}, {v(vARR)}, 0, vcc
    s_mov_b32 s34, 256
    s_mov_b32 s35, 0x20000
    """)
    def dset(k, j):
        b = TS * k; tag = "pin%d%d" % (k, j); L = []
        L.append([f"s_add_u32 {sC}, {sTA[k]}, {14336*j}\n s_add_u32 m0, {sST}, {b+1024+2048*j}", Ins(f"buffer_load_dwordx4 {v(VB)}, {K}, {sC} offen lds", tag)])
        L.append(Ins(f"buffer_load_dwordx4 {v(VB2)}, {K}, {sC} offen offset:1024 lds", tag))
        if j == 0:
            L.append([f"s_add_u32 m0, {sST}, {b}", Ins(f"buffer_load_dwordx4 {v(VM)}, {K}, {sC} offen lds", tag)])
            L.append(f"buffer_load_dwordx2 {v(WR_[k],2)}, {v(VX)}, {SH}, {sTW[k]} offen")
        L.append([f"s_add_u32 m0, {sST}, {b+9216+2048*j}", Ins(f"buffer_load_dwordx4 {v(VB)}, {V_}, {sC} offen lds", tag)])
        L.append(Ins(f"buffer_load_dwordx4 {v(VB2)}, {V_}, {sC} offen offset:1024 lds", tag))
        return L
    P.add(dset(0, 0))
    P.e(f"buffer_store_dword {v(vZERO)}, {v(VZA)}, {WS}, 0 offen sc1", tag="zst")
    P.add(dset(0, 1))
    P.e(f"""
    v_bfe_u32 {v(VR)}, {v(VL)}, 2, 2
    v_lshlrev_b32 {v(VR)}, 7, {v(VR)}
    v_lshrrev_b32 {v(VS)}, 4, {v(VL)}
    v_lshl_add_u32 {v(VR)}, {v(VS)}, 5, {v(VR)}
    v_and_b32 {v(VS)}, 3, {v(VL)}
    v_lshl_add_u32 {v(VR)}, {v(VS)}, 3, {v(VR)}
    v_add_u32 {v(VR)}, {sST}, {v(VR)}
    s_mov_b32 {sLO}, 0xffff
    s_mov_b32 {sMASK}, 0xffff0000
    v_lshlrev_b32 {v(VW)}, 4, {v(T1)}
    v_lshl_add_u32 {v(VW)}, {v(VL)}, 7, {v(VW)}
    v_add_u32 {v(VW)}, {sST}, {v(VW)}
    v_xor_b32 {v(VRB)}, {v(T0)}, {v(T1)}
    v_lshlrev_b32 {v(VRB)}, 4, {v(VRB)}
    v_lshl_add_u32 {v(VRB)}, {v(T0)}, 7, {v(VRB)}
    v_add_u32 {v(VRB)}, {sST}, {v(VRB)}
    v_lshlrev_b32 {v(VGW)}, 4, {v(T1)}
    v_lshl_add_u32 {v(VS)}, {v(T0)}, 12, {v(VGW)}
    s_lshl_b32 s3, {sW}, 18
    s_sub_u32 {sUS}, 31, {sA}
    s_lshl_b32 {sUS}, {sUS}, 7
    s_add_u32 {sUS}, {sUS}, s3
    s_add_u32 {sUS}, {sUS}, {WS_UR}
    """)
    P.add(dset(0, 2))
    P.vmwait("zst")
    P.e(f"buffer_atomic_add {v(vONE)}, {v(vARR)}, s[32:35], 0 offen sc1")
    P.add(dset(0, 3))
    if cfg.hack_aux: P.e("s_sleep 64\n s_sleep 32"); P.add(poll_load("za", None)); P.e("s_branch L_auxdone")
    def reads(k, j):
        b = TS * k; K_ = KP[j & 1]; V2 = VP[j & 1]
        L = [WaitTag('vm', "pin%d%d" % (k, j))]
        L += [f"ds_read_b64_tr_b16 {v(K_+2*m,2)}, {v(VR)} offset:{b+512+2048*j+512*m}" for m in range(5)]
        L += [f"ds_read_b64_tr_b16 {v(V2+2*m,2)}, {v(VR)} offset:{b+9216+2048*j+512*m}" for m in range(4)]
        return L
    def wprep(k):
        W = WR_[k]; T_ = WT[k]
        return lines(f"""v_alignbit_b32 {v(T_)}, {v(W)}, {v(W)}, 16
        v_alignbit_b32 {v(T_+1)}, {v(W+1)}, {v(W+1)}, 16
        v_and_b32 {v(T_+2)}, {sLO}, {v(W)}
        v_bfi_b32 {v(T_+3)}, {sLO}, {v(W+1)}, {v(W)}
        v_and_b32 {v(T_+4)}, {sMASK}, {v(W+1)}""")
    def owrites(k, j):
        return [[f"v_xor_b32 {v(VWt[q&1])}, {16*q}, {v(VW)}", Ins(f"ds_write_b128 {v(VWt[q&1])}, {v(OUT_+4*q,4)} offset:0", "ow")] for q in (7 - 2 * j, 6 - 2 * j)]
    def readback(k): return [f"ds_read_b128 {v(RB+4*q,4)}, {v(VRB)} offset:{1024*q}" for q in range(8)]
    def stores(k): return [[f"s_add_u32 {sC2}, {sUS}, {(k << 20) + 32768*q}", Ins(f"buffer_store_dwordx4 {v(RB+4*q,4)}, {v(VS)}, {WS}, {sC2} offen sc1", "pst")] for q in range(8)]
    wdt = lines(f"""s_lshl_b32 s3, {sA}, 2
    s_add_u32 s3, s3, {sW}
    s_mul_i32 s75, s3, {98*128}
    v_lshlrev_b32 {v(156)}, 7, {v(VL)}
    v_add_u32 {v(157)}, {34*128}, {v(156)}
    buffer_load_dword {v(158)}, {v(156)}, {WD}, s75 offen
    buffer_load_dword {v(159)}, {v(157)}, {WD}, s75 offen""")
    def step(P, k, j, fill):
        if cfg.aux_sleep and cfg.aux_sleep[:2] == (k, j): P.e('s_sleep %d' % cfg.aux_sleep[2])
        if cfg.aux_wd == (k, j): fill = list(fill) + ["\n".join(wdt)]
        K_ = KP[j & 1]; V2 = VP[j & 1]; T_ = WT[k]; fill = list(fill); per = (len(fill) + 9) // 10
        def nx():
            for _ in range(per):
                if fill: P.add(fill.pop(0))
        P.add(WaitRegs(v(V2 + 6, 2)))
        if cfg.stamps: r_ = [60, 62, 64, 66, 94, 78, 80, 92][4 * k + j]; P.e(f"s_memtime s[{r_}:{r_+1}]")
        for h in range(2):
            J = range(4 * h, 4 * h + 4)
            for i in J: P.e(f"v_dot2_f32_bf16 {v(OO+2*(i%4))}, {v(K_+i+2)}, {v(T_+2)}, 0\n v_dot2_f32_bf16 {v(OO+2*(i%4)+1)}, {v(K_+i+2)}, {v(T_)}, 0")
            nx()
            for i in J: P.e(f"v_dot2_f32_bf16 {v(OO+2*(i%4))}, {v(K_+i+1)}, {v(T_+3)}, {v(OO+2*(i%4))}\n v_dot2_f32_bf16 {v(OO+2*(i%4)+1)}, {v(K_+i+1)}, {v(T_+1)}, {v(OO+2*(i%4)+1)}")
            nx()
            for i in J: P.e(f"v_dot2_f32_bf16 {v(OO+2*(i%4))}, {v(K_+i)}, {v(T_+4)}, {v(OO+2*(i%4))}")
            nx()
            for i in J: P.e(f"v_lshlrev_b32 {v(UV+2*(i%4))}, 16, {v(V2+i)}\n v_and_b32 {v(UV+2*(i%4)+1)}, {sMASK}, {v(V2+i)}")
            nx()
            for i in J: P.e(f"v_pk_mul_f32 {v(UV+2*(i%4),2)}, {v(UV+2*(i%4),2)}, {v(OO+2*(i%4),2)}")
            nx()
            for i in J: P.e(f"v_cvt_pk_bf16_f32 {v(OUT_+31-8*j-i)}, {v(UV+2*(i%4)+1)}, {v(UV+2*(i%4))}")
        while fill: nx()
    P.add(reads(0, 0)); P.add(wprep(0))
    if cfg.stamps: P.e("s_waitcnt lgkmcnt(0)\n s_memtime s[86:87]")
    step(P, 0, 0, dset(1, 0) + reads(0, 1))
    step(P, 0, 1, dset(1, 1) + reads(0, 2))
    step(P, 0, 2, dset(1, 2) + reads(0, 3))
    P.e(f"s_cmp_eq_u32 {sW}, 3\n s_cbranch_scc1 L_gate")
    Pg = Prog(); Pg.items = list(P.items)
    st0 = stores(0)
    step(P, 0, 3, dset(1, 3) + reads(1, 0) + wprep(1) + owrites(0, 0) + owrites(0, 1))
    P.add(owrites(0, 2) + owrites(0, 3))
    step(P, 1, 0, reads(1, 1) + readback(0))
    step(P, 1, 1, reads(1, 2) + st0[:4] + owrites(1, 0))
    step(P, 1, 2, poll_load("za", None) + reads(1, 3) + st0[4:] + owrites(1, 1))
    step(P, 1, 3, owrites(1, 2))
    P.add(owrites(1, 3)); P.add(readback(1)); P.add(stores(1))
    P.e("s_branch L_auxdone")
    P = Pg; P.e("L_gate:")
    step(P, 0, 3, owrites(0, 0) + owrites(0, 1) + owrites(0, 2))
    P.add(owrites(0, 3)); P.add(readback(0)); P.add(stores(0)); P.add(poll_load("za", None))
    QB = 48; GWB = 112; AC = 104
    def gate(T):
        T.e(f"""s_lshl_b32 {sT0}, {sA}, 2
        s_add_u32 {sT0}, {sT0}, {sW}
        s_mul_i32 {sSO}, {sT0}, {16*896}
        v_mul_u32_u24 {v(VQ)}, {2*896}, {v(T0)}
        v_add_u32 {v(VQ)}, {v(VQ)}, {v(VGW)}""")
        for tau in range(7):
            for rho in range(2): T.e(f"buffer_load_dwordx4 {v(QB+8*tau+4*rho,4)}, {v(VQ)}, {X}, {sSO} offen offset:{896*rho+128*tau}")
            T.e(f"buffer_load_dwordx4 {v(GWB+4*tau,4)}, {v(VGW)}, {GW}, 0 offen offset:{128*tau}")
        for tau in range(7):
            for p in range(4):
                for rho in range(2):
                    d = AC + 2 * (p & 1) + rho
                    T.e(f"v_dot2_f32_bf16 {v(d)}, {v(QB+8*tau+4*rho+p)}, {v(GWB+4*tau+p)}, {'0' if (tau == 0 and p < 2) else v(d)}")
        for rho in range(2): T.e(f"v_add_f32 {v(AC+rho)}, {v(AC+rho)}, {v(AC+2+rho)}")
        for mod in ("row_half_mirror", "quad_perm:[3,2,1,0]", "quad_perm:[1,0,3,2]"):
            for rho in range(2): T.e(f"v_add_f32_dpp {v(AC+rho)}, {v(AC+rho)}, {v(AC+rho)} {mod} row_mask:0xf bank_mask:0xf")
        T.e(f"""s_mov_b32 s56, 0xaaaaaaaa
        s_mov_b32 s57, 0xaaaaaaaa
        v_cndmask_b32 {v(AC)}, {v(AC)}, {v(AC+1)}, s[56:57]
        v_mul_f32 {v(AC)}, 0xbfb8aa3b, {v(AC)}
        v_exp_f32 {v(AC)}, {v(AC)}
        v_lshl_add_u32 {v(T0)}, {v(T0)}, 1, {v(T1)}
        v_add_f32 {v(AC)}, 1.0, {v(AC)}
        v_rcp_f32 {v(AC)}, {v(AC)}
        v_lshlrev_b32 {v(T0)}, 2, {v(T0)}
        v_mov_b32 {v(VZA)}, -16
        v_cmp_gt_u32 vcc, 2, {v(T1)}
        s_lshl_b32 s3, {sT0}, 6
        s_add_u32 s3, s3, {WS_G}
        v_cndmask_b32 {v(T0)}, {v(VZA)}, {v(T0)}, vcc
        buffer_store_dword {v(AC)}, {v(T0)}, {WS}, s3 offen sc1""")
    def watch(T, name, nl, off):
        if cfg.nosync or not cfg.watch: return
        T.e(f"""v_min_u32 {v(24)}, {nl-1}, {v(VL)}
        v_lshlrev_b32 {v(24)}, 7, {v(24)}
        s_mov_b32 {sCNT}, 0
        L_w{name}:
        buffer_load_dword {v(25)}, {v(24)}, {WS}, {off} offen sc1
        s_add_u32 {sCNT}, {sCNT}, 1
        s_cmp_gt_u32 {sCNT}, 256
        s_waitcnt vmcnt(0)
        s_cbranch_scc1 L_x{name}
        v_cmp_gt_u32 vcc, 1, {v(25)}
        s_sleep {cfg.watch}
        s_cbranch_vccnz L_w{name}
        L_x{name}:""")
    gate(P)
    T = Prog(); T.e("L_auxdone:")
    if cfg.stamps: T.e("s_memtime s[88:89]")
    T.e(f"""s_lshl_b32 {sC}, {sA}, 7
    s_add_u32 {sC2}, {sC}, {32*128}
    s_waitcnt vmcnt(0)""")
    T.add(poll_check("za", None))
    T.e("s_barrier")
    if not cfg.nosync: T.e(f"buffer_store_dword {v(vONE)}, {v(vARR)}, {WS}, {sC} offen sc1")
    if cfg.stamps: T.e("s_memtime s[90:91]")
    T.e(f"s_cmp_eq_u32 {sW}, 3\n s_cbranch_scc0 L_g012")
    watch(T, "p", 32, "0")
    T.e("s_branch L_gdone\n L_g012:")
    gate(T)
    T.e("s_waitcnt vmcnt(0)\n L_gdone:\n s_barrier")
    if not cfg.nosync: T.e(f"buffer_store_dword {v(vONE)}, {v(vARR)}, {WS}, {sC2} offen sc1")
    T.e(f"""s_and_b32 s3, s2, 7
    s_mul_i32 s58, s3, {28*128}
    s_lshr_b32 s59, {sA}, 3
    s_cmp_lg_u32 {sW}, 0
    s_cbranch_scc1 L_wn0
    s_add_u32 s60, s58, {768*128}""")
    watch(T, "a", 28, "s60")
    T.e(f"s_add_u32 s60, s58, {256*128}")
    watch(T, "b", 28, "s60")
    T.e(f"""s_branch L_wend
    L_wn0:
    s_cmp_eq_u32 {sW}, 1
    s_cbranch_scc0 L_wn1
    s_lshl_b32 s60, s3, 9
    s_add_u32 s60, s60, {32*128}""")
    watch(T, "g", 4, "s60")
    T.e(f"""s_branch L_wend
    L_wn1:
    s_lshl_b32 s59, s59, 1
    s_add_u32 s59, s59, {sW}
    s_sub_u32 s59, s59, 2
    s_mul_i32 s60, s59, {28*128}
    s_add_u32 s60, s60, {512*128}""")
    watch(T, "y", 28, "s60")
    T.e("L_wend:")
    if cfg.aux_l2:
        g0, ng = cfg.aux_l2
        T.e(f"""v_mul_u32_u24 {v(PF)}, 896, {v(VL)}
        s_lshr_b32 s56, {sA}, 3
        s_mul_i32 s56, s56, {448*896}
        s_and_b32 s57, s2, 7
        s_add_u32 s57, s57, {g0}""")
        for k in range((7 * ng + 3) // 4):
            T.e(f"""s_add_u32 s58, {sW}, {4*k}
            s_min_u32 s58, s58, {7*ng-1}
            s_mul_i32 s59, s58, 37
            s_lshr_b32 s59, s59, 8
            s_mul_i32 s3, s59, 7
            s_sub_u32 s58, s58, s3
            s_add_u32 s59, s59, s58
            s_add_u32 s59, s59, s57
            s_mul_i32 s3, s59, 37
            s_lshr_b32 s3, s3, 8
            s_mul_i32 s3, s3, 7
            s_sub_u32 s59, s59, s3
            s_mul_i32 s59, s59, {64*896}
            s_lshl_b32 s58, s58, 7
            s_add_u32 s59, s59, s58
            s_add_u32 s59, s59, s56
            buffer_load_dword {v(PF+2+k)}, {v(PF)}, {WD}, s59 offen""")
    if cfg.stamps:
        T.e(f"""s_waitcnt vmcnt(0)
        s_memtime s[4:5]
        s_memrealtime s[6:7]
        s_waitcnt lgkmcnt(0)
        s_sub_u32 s3, s86, s98
        v_mov_b32 v200, s3
        s_sub_u32 s3, s88, s98
        v_mov_b32 v201, s3
        s_sub_u32 s3, s90, s98
        v_mov_b32 v202, s3
        s_sub_u32 s3, s4, s98
        v_mov_b32 v203, s3
        v_mov_b32 v204, s100
        v_mov_b32 v205, s6
        s_lshl_b32 s3, s2, 2
        s_add_u32 s3, s3, {sW}
        s_lshl_b32 s3, s3, 7
        s_add_u32 s3, s3, {WS_STAMP}
        v_mov_b32 v2, 0
        s_mov_b64 exec, 1
        buffer_store_dwordx4 v[200:203], v2, {WS}, s3 offen
        buffer_store_dwordx2 v[204:205], v2, {WS}, s3 offen offset:120""")
        for i_, r_ in enumerate([60, 62, 64, 66, 94, 78, 80, 92]): T.e(f"s_sub_u32 s4, s{r_}, s98\n v_mov_b32 v{208+i_}, s4")
        T.e(f"buffer_store_dwordx4 v[208:211], v2, {WS}, s3 offen offset:16\n buffer_store_dwordx4 v[212:215], v2, {WS}, s3 offen offset:32")
    T.e("s_endpgm")
    return Pg, T

def build():
    global slow_paths, stamp_names, trace_names
    slow_paths = []; stamp_names = []; trace_names = []; arr_n[0] = 0; STAMP_REGS['prewait'] = 74; STAMP_REGS['karg'] = 72
    pro = Prog()
    for reg, off in ((X, 0), (WG, 56), (WU, 64), (WD, 72), (SK, 32), (WS, 104), (OUT, 88), (pDBG, 96), (pD, 40)) + ((("s[94:95]", 8), ("s[96:97]", 16)) if cfg.kv_touch is not None else ()): pro.e(ldptr(reg, off))
    if cfg.sync_start:
        pro.e("""s_memrealtime s[100:101]
        s_waitcnt lgkmcnt(0)
        s_add_u32 s3, s100, 400
        s_and_b32 s3, s3, 0xffffff00
        s_and_b32 s99, s2, %d
        s_mul_i32 s99, s99, %d
        s_add_u32 s3, s3, s99
        L_ss:
        s_memrealtime s[100:101]
        s_waitcnt lgkmcnt(0)
        s_sub_u32 s99, s100, s3
        s_cmp_lt_i32 s99, 0
        s_cbranch_scc1 L_ss""" % cfg.skew)
    if cfg.stamps or cfg.fixdur: pro.e("s_memtime s[98:99]\n s_memrealtime s[100:101]")
    pro.e(f"""
    v_lshrrev_b32 v2, 6, v0
    v_and_b32 v1, 63, v0
    s_cmp_ge_u32 s2, 224
    v_readfirstlane_b32 {sW}, v2
    s_cbranch_scc1 L_aux
    """)
    Pm = Prog(); Pm.items = list(pro.items)
    gen_main(Pm)
    main = Pm.finalize(cfg.verbose)
    if cfg.warm:
        real = [i for i, x in enumerate(main) if x.kind != 'label']
        for k, n in reversed(list(enumerate(cfg.stub_at[:4]))):
            main[real[n]:real[n]] = [Ins("L_pg%d:" % k), Ins("s_cbranch_execz L_pgback")]
    Px = Prog(); Px.items = list(pro.items); Px.e("L_aux:")
    Pg, Pt = gen_aux(Px)
    ax = Px.finalize(); gx = Pg.finalize(); tx = Pt.finalize()
    cut = lambda lst, lab: lst[[i for i, x in enumerate(lst) if x.kind == 'label' and x.text == lab][0]:]
    body = text_of(main) + "\n" + text_of(cut(ax, "L_aux:")) + "\n" + text_of(cut(gx, "L_gate:")) + "\n" + text_of(tx) + "\n" + emit_slow_paths() + "\nL_codeend:"
    hdr = open("gated_mix__ssm_conv_h3__swiglu_ffn__prompt.s.ref").read().split("; Override launch")[0] if cfg.header else ""
    return f"""{hdr}; @launch grid=(256,1,1) block=(256,1,1) lds={LDS_BYTES}
; TRACE={trace_names}
.amdgcn_target "amdgcn-amd-amdhsa--gfx950"
.text
.globl {KNAME}
{'.p2align 12' if cfg.align else ''}
.p2align 8
.type {KNAME},@function
{KNAME}:
{body}
.section .rodata,"a"
.p2align 6
.amdhsa_kernel {KNAME}
  .amdhsa_next_free_vgpr 512
  .amdhsa_next_free_sgpr 102
  .amdhsa_accum_offset 256
  .amdhsa_group_segment_fixed_size 0
  .amdhsa_kernarg_size 112
  .amdhsa_user_sgpr_count 2
  .amdhsa_user_sgpr_kernarg_segment_ptr 1
  .amdhsa_system_sgpr_workgroup_id_x 1
.end_amdhsa_kernel
"""

if __name__ == "__main__":
    import subprocess
    out = sys.argv[1]
    for kv in sys.argv[2:]:
        k_, v_ = kv.split("=", 1)
        assert hasattr(cfg, k_), k_
        setattr(cfg, k_, eval(v_))
    cfg.pf_n = 1; cfg.pf_last = 100
    vb = cfg.verbose; cfg.verbose = False
    open(out, "w").write(build())
    subprocess.check_call(["clang", "-x", "assembler", "-target", "amdgcn-amd-amdhsa", "-mcpu=gfx950", "-c", out, "-o", "_gen.o"])
    sym = subprocess.check_output(["llvm-objdump", "-t", "_gen.o"], text=True)
    ad = {l.split()[-1]: int(l.split()[0], 16) for l in sym.splitlines() if " L_" in l}
    if cfg.code_pf:
        cfg.pf_last = (ad["L_codeend"] - ad["L_pc"] - 64) // 128
        cfg.pf_n = (cfg.pf_last + 112) // 112
    if cfg.warm:
        cfg.stub_at = [600, 1200, 1800, 2300]
        for it in range(3):
            open(out, "w").write(build())
            subprocess.check_call(["clang", "-x", "assembler", "-target", "amdgcn-amd-amdhsa", "-mcpu=gfx950", "-c", out, "-o", "_gen.o"])
            dis = subprocess.check_output(["llvm-objdump", "-d", "--mcpu=gfx950", "_gen.o"], text=True)
            ins = [(int(l.split("//")[1].split(":")[0], 16), l) for l in dis.splitlines() if "//" in l]
            end = [i for i, (a_, l) in enumerate(ins) if "s_endpgm" in l][0]
            a0 = []; ns_ = 0
            for a_, l in ins[:end]:
                if "s_cbranch_execz" in l: ns_ += 1
                else: a0.append(a_ - 4 * ns_)
            new_at = []
            for k in range(1, 5):
                c = [i for i, a_ in enumerate(a0) if a_ + 4 * (k - 1) + 0x300 >= 4096 * k]
                if c: new_at.append(c[0])
            if new_at == cfg.stub_at: break
            cfg.stub_at = new_at
    cfg.verbose = vb
    open(out, "w").write(build())
    print(out, "code bytes", ad["L_codeend"], "aux at", ad["L_aux"], "stubs", cfg.stub_at, "stamps:", stamp_names)
```

```python
import sys, math, re
from fw import *
import fw
KNAME = "gated_mix__ssm_conv_h3__swiglu_ffn__prompt_kernel"

class Cfg: pass
cfg = Cfg()
cfg.stamps = False; cfg.pass_stamps = False; cfg.verbose = False; cfg.header = True; cfg.fixdur = 0
cfg.PD = 5; cfg.NXR = 8; cfg.pair = 2; cfg.bud = 24
cfg.code_pf = True; cfg.n_pre = 6; cfg.nosync = False
cfg.rot_c = True; cfg.rot_t = True; cfg.rot_g = True
cfg.pl_at = -1; cfg.pc0 = 10; cfg.pc1 = 70; cfg.bud1 = 28; cfg.z_load = 60; cfg.z_chk = 84; cfg.x_touch = 0; cfg.align = True; cfg.tlb = False; cfg.sync_start = False; cfg.skew = (0, 0); cfg.gq_sh = 0; cfg.gq_mul = 1; cfg.wd_touch = -1; cfg.warm = True; cfg.stub_at = []; cfg.late_pos = 100; cfg.p_arr = 9; cfg.pst_at = 80; cfg.aux_sk = False; cfg.p_first = True; cfg.sk_at = -1; cfg.hv_at = 24; cfg.c_rd_end = 66; cfg.sleep = 2
cfg.p_load = 180; cfg.p_chk = 208; cfg.hw0 = 70; cfg.hw1 = 180
cfg.g_arrive = 38; cfg.g_poll = 112; cfg.g_chk = 102; cfg.nh_c = 12; cfg.nh_e = 5; cfg.c_wd = (24, 48, 72, 96); cfg.c_tail_in_g2 = True; cfg.b_rev = False; cfg.sk_early = True; cfg.aux_head = True; cfg.aux_fl = False; cfg.pg0 = 1; cfg.aux_sleep = None; cfg.watch = 0; cfg.hack_sleep_c = None; cfg.hack_sleep_h = None; cfg.eo = True; cfg.epi_len = 22; cfg.a_arr = 162; cfg.a_load = 210; cfg.a_chk = 30; cfg.h_first = 98; cfg.b_chk = 11; cfg.rw_bar = 74; cfg.y_late = True; cfg.n1 = 2; cfg.blk_c = 4; cfg.blk_s3 = 0; cfg.blk_deep = False; cfg.blk_dma = False; cfg.blk_g = 1; cfg.blk_g2 = 0; cfg.blk_list = None; cfg.hack_sleep = None; cfg.aux_wd = None; cfg.hack_aux = False; cfg.sc_h = 'sc1'; cfg.n_raw = 0; cfg.kv_touch = None; cfg.aux_l2 = None; cfg.hack_wd = False; cfg.hack_p = False; cfg.sc_wd = ''; cfg.sc_g1 = ''; cfg.c_bar = 130; cfg.s3_at = -1; cfg.nwd_t = 5; cfg.g_wd_end = 104
cfg.g2_hpace = 2.1; cfg.q_at = (13, 15, 17, 19); cfg.g2_arrive = 36; cfg.g2_poll = 64; cfg.g2_chk = 92; cfg.g2_pre = 100
cfg.sc_out = ""; cfg.aux_pf = False; cfg.touch = False; cfg.s_early = True; cfg.rt = False; cfg.trace = False; cfg.start_stamps = False

WS_FLAG = 0x0; WS_G = 0x20000; WS_UR = 0x100000; WS_YT = 0x300000; WS_H = 0x500000
WS_STAMP = 0xC00000; WS_SIZE = 0xD00000
NQ = 1835008; NW = 1605632
XB = 4096
SLOT = 28672; PIECE = 7168
HC = 4 * SLOT; CPY = 4160; HCCH = 4 * CPY
UL = HC + 2 * HCCH; UCH = 4608
LDS_BYTES = 163840
YL = HC; QL = UL
assert UL + 2 * UCH <= LDS_BYTES
X, WG, WU, WD, SK, WS, OUT = ["s[%d:%d]" % (b, b + 3) for b in (4, 8, 12, 16, 20, 24, 28)]
pWS = "s[24:25]"; pDBG = "s[32:33]"; pD = "s[34:35]"
sW = "s36"; sT0 = "s37"; sT1 = "s38"; sT2 = "s39"
sCH = ["s%d" % (40 + i) for i in range(7)]
sWC = ["s%d" % (47 + i) for i in range(7)]
sTO = ["s%d" % (54 + i) for i in range(8)]
sHG = sWC
sM0P = "s68"; sXB = "s69"; sWB = "s70"; sDB = "s71"; sHS = "s72"; sHL = ["s73", "s74"]
sNL2E = "s75"; sSO = "s76"; sSO2 = "s77"; sD = "s78"; sI2 = "s79"; sCT = "s80"; sKH = "s81"
sCNT = "s82"; sM = "s83"; sMASK = "s84"; sRG = "s85"
sDG = ["s%d" % (86 + i) for i in range(7)]
sPV = "s93"; sHE = "s70"; sFL = "s67"; sONE = "s66"; sU = "s65"; sPA = "s64"
STAMP_REGS = {'issued': 0, 'setup': 96, 'pdone': 94, 'prewait': 74, 'karg': 72, 'g1start': 34, 'p1end': 12, 'T5': 96, 'T6': 8, 'T7': 10, 'prepoll': 94, 'zpre': 96, 'zpost': 8, 'g1end': 14, 'cstart': 40, 'c_pre': 42, 'c_post': 44, 'g2start': 54, 'g2_pre': 56, 'g2_post': 58, 'g2end': 60}

def v(i, n=1): return "v%d" % i if n == 1 else "v[%d:%d]" % (i, i + n - 1)
def a(i, n=1): return "a%d" % i if n == 1 else "a[%d:%d]" % (i, i + n - 1)
def lines(t): return [l.strip() for l in t.split("\n") if l.strip()]

stamp_names = []
def stamp(name):
    if not cfg.stamps or cfg.stamps == 'min': return []
    if cfg.trace and STAMP_REGS[name] in (94, 96): return []
    stamp_names.append(name); r = STAMP_REGS[name]
    return [Ins("%s s[%d:%d]" % ("s_memrealtime" if cfg.rt else "s_memtime", r, r + 1))]

slow_paths = []
trace_names = []
TR_S = [94, 96, 8, 12]
def add_trace(G, every, name, regs):
    if not cfg.trace: return
    k = 0
    for g in range(0, G.n - 3, every):
        i = len(trace_names); trace_names.append("%s%d" % (name, g)); r = regs[k % len(regs)]; k += 1
        G.f[g].insert(0, Ins("s_memtime s[%d:%d]" % (r, r + 1)))
        G.f[min(g + (3 if G.n != 144 else 6), G.n - 1)].append("v_writelane_b32 v%d, s%d, %d" % (254 + i // 64, r, i % 64))
vARR = 43; vONE = 0; vP8 = 38; vP7 = 39; vPV = 33; vZERO = 44
def poll_text(kind, off):
    if kind == "z": return f"global_load_dword {v(vPV)}, {v(vZERO)}, {pDBG} sc1"
    if kind == "za": return f"global_load_dword {v(vPV)}, {v(vZERO)}, {pDBG} sc1"
    return f"buffer_load_dword {v(vPV)}, {v(vP7 if kind in 'ha' else vP8)}, {WS}, {off} offen sc1"
def poll_load(kind, off):
    return [] if cfg.nosync else [poll_text(kind, off)]
def poll_check(kind, off):
    if cfg.nosync: return []
    slow_paths.append((kind, off))
    return [f"v_cmp_gt_u32 vcc, {32 if kind[0] == 'z' else 1}, {v(vPV)}", f"s_cbranch_vccnz L_slow_{kind}\n L_back_{kind}:"]
def emit_slow_paths():
    t = []
    for kind, off in slow_paths:
        t += [f"L_slow_{kind}:", f"s_mov_b32 {sCNT}, 0", f"L_spin_{kind}:", f"s_sleep {cfg.sleep}", poll_text(kind, off),
              f"s_add_u32 {sCNT}, {sCNT}, 1", f"s_cmp_gt_u32 {sCNT}, 0x40000", "s_waitcnt vmcnt(0)", f"s_cbranch_scc1 L_back_{kind}",
              f"v_cmp_gt_u32 vcc, {32 if kind[0] == 'z' else 1}, {v(vPV)}", f"s_cbranch_vccnz L_spin_{kind}"] + ([f"v_writelane_b32 v253, {sCNT}, {'zphy'.index(kind.replace('a', 'z'))}"] if cfg.trace and kind != "za" else []) + [f"s_branch L_back_{kind}"]
    return "\n".join(l if l.endswith(":") else "    " + l for l in t)
arr_n = [0]
def arrive(tag, off, bar=True):
    pre = [Ins("s_barrier")] if bar else []
    if cfg.nosync: return pre
    return ([WaitTag('vm', tag)] if bar else []) + pre + [f"buffer_store_dword {v(vONE)}, {v(vARR)}, {WS}, {off} offen sc1"]

def sb(reg): return int(reg[2:reg.index(':')])
def srd_hi(reg, size): return ["s_mov_b32 s%d, 0x%x" % (sb(reg) + 2, size), "s_mov_b32 s%d, 0x20000" % (sb(reg) + 3)]
def ldptr(reg, off): return "s_load_dwordx2 s[%d:%d], s[0:1], %d" % (sb(reg), sb(reg) + 1, off)
def rot_next(r): return [f"s_add_u32 {r}, {r}, 1", f"s_cmp_eq_u32 {r}, 7\n s_cselect_b32 {r}, 0, {r}"]
def mod7(r): return lines(f"s_mul_i32 s3, {r}, 37\n s_lshr_b32 s3, s3, 8\n s_mul_i32 s3, s3, 7\n s_sub_u32 {r}, {r}, s3")

def code_prefetch(P):
    if not cfg.code_pf: return
    P.e(f"""
        s_getpc_b64 s[38:39]
        L_pc:
        s_lshr_b32 s3, s2, 3
        s_lshl_b32 s3, s3, 2
        s_add_u32 s3, s3, {sW}
        s_mul_i32 s3, s3, {cfg.pf_n}
        v_min_u32 v2, {cfg.pf_n-1}, v1
        v_add_u32 v2, s3, v2
        v_min_u32 v2, {cfg.pf_last}, v2
        v_lshlrev_b32 v2, 7, v2
        v_mov_b32 v3, s39
        v_add_co_u32 v2, vcc, s38, v2
        v_addc_co_u32 v3, vcc, 0, v3, vcc
        global_load_dword v255, v[2:3], off
        """)

def gen_main(P):
    PD = cfg.PD; NXR = cfg.NXR; N1 = cfg.n1; CH = 4 * N1; P1 = 28 * N1; NI = 15 - N1
    VL = 1
    VX = [2, 3, 4, 9]; VWg = [5, 6]; VWu = [7, 8]; VSK = [10, 11, 12]; VD = [13, 14, 15, 16]
    XR = [[17, 18, 19, 20], [21, 22, 23, 24]]; WR = [25, 26, 27]; DR = [[28, 29], [30, 31]]
    V16 = 32; T0 = 33; T1 = 34; T2 = 35; T3 = 36; VHZ = 37; CA = 40; CB = 41; VHW = 42; VZ = 44
    ACC = [48, 64, 80, 96]; XRING = 112; ET = 144; PK = [148, 152]; HR = 160; HCP = 176
    assert XRING + 4 * NXR <= ET
    sX = sSO; sQ7 = sSO2; sR = sCNT
    code_prefetch(P)
    P.e(f"""
    s_and_b32 {sX}, s2, 7
    s_lshr_b32 {sT1}, s2, 3
    s_mul_i32 {sQ7}, {sT1}, 37
    s_lshr_b32 {sQ7}, {sQ7}, 8
    s_mul_i32 s3, {sQ7}, 7
    s_sub_u32 {sCT}, {sT1}, s3
    s_lshl_b32 s3, {sX}, 2
    s_add_u32 {sI2}, s3, {sQ7}
    s_and_b32 s3, {sX}, 4
    s_add_u32 {sT2}, s3, {sQ7}
    s_and_b32 {sT0}, {sX}, 3
    s_mul_i32 {sT1}, {sT0}, 7
    s_add_u32 {sT1}, {sT1}, {sCT}
    s_mul_i32 {sM0P}, {sW}, {PIECE}
    s_mul_i32 {sXB}, {sT2}, {256*896}
    s_add_u32 {sXB}, {sXB}, {sM0P}
    s_mul_i32 {sWB}, {sW}, {16*3584}
    s_lshl_b32 s3, {sT1}, 7
    s_add_u32 {sWB}, {sWB}, s3
    s_lshl_b32 {sRG}, {sQ7}, 1
    s_add_u32 {sRG}, {sRG}, {sCT}
    s_lshr_b32 s3, {sX}, 2
    s_add_u32 {sR}, {sRG}, s3
    """)
    P.add(mod7(sR) if cfg.rot_c else f"s_mov_b32 {sR}, 0")
    def ch_tab(i):
        L = lines(f"s_lshl_b32 s3, {sR}, 7\n s_add_u32 {sCH[i]}, s3, {sXB}\n s_mul_i32 s3, {sR}, {64*3584}\n s_add_u32 {sWC[i]}, s3, {sWB}")
        return L + (rot_next(sR) if i < 6 else [])
    def to_tab(t):
        if cfg.eo: return lines(f"s_add_u32 s3, {sT0}, {t}\n s_and_b32 s3, s3, 3\n s_mul_i32 s3, s3, {2*28672}\n s_add_u32 {sTO[t]}, s3, {28672*(t >> 2)}")
        if cfg.rot_t: return lines(f"s_lshl_b32 s3, {sT0}, 1\n s_add_u32 s3, s3, {t}\n s_and_b32 s3, s3, 7\n s_mul_i32 {sTO[t]}, s3, 28672")
        return [f"s_mov_b32 {sTO[t]}, {28672*t}"]
    for i in range(2): P.add(ch_tab(i))
    for t in range(N1): P.add(to_tab(t))
    P.add(srd_hi(X, NQ + XB) + srd_hi(WG, NW) + srd_hi(WU, NW))
    P.e(f"""
    v_lshrrev_b32 {v(T0)}, 3, {v(VL)}
    v_and_b32 {v(T1)}, 7, {v(VL)}
    v_lshrrev_b32 {v(T2)}, 4, {v(VL)}
    s_lshl_b32 s3, {sW}, 2
    v_add_u32 {v(T3)}, s3, {v(T2)}
    v_and_b32 {v(T3)}, 7, {v(T3)}
    v_xor_b32 {v(T3)}, {v(T1)}, {v(T3)}
    v_lshlrev_b32 {v(T3)}, 4, {v(T3)}
    v_mul_u32_u24 {v(VX[0])}, 896, {v(T0)}
    v_add_u32 {v(T3)}, {XB}, {v(T3)}
    v_add_u32 {v(VX[0])}, {v(VX[0])}, {v(T3)}
    v_add_u32 {v(VX[1])}, -1024, {v(VX[0])}
    v_add_u32 {v(VX[2])}, -2048, {v(VX[0])}
    v_and_b32 {v(T2)}, 1, {v(T2)}
    v_lshlrev_b32 {v(T2)}, 1, {v(T2)}
    v_xor_b32 {v(T3)}, {v(T1)}, {v(T2)}
    v_lshlrev_b32 {v(T3)}, 4, {v(T3)}
    v_mul_u32_u24 {v(VWg[0])}, 3584, {v(T0)}
    v_add_u32 {v(VWg[0])}, {v(VWg[0])}, {v(T3)}
    v_add_u32 {v(VWg[1])}, {28672-1024}, {v(VWg[0])}
    v_xor_b32 {v(VWu[0])}, 64, {v(VWg[0])}
    v_add_u32 {v(VWu[1])}, {28672-1024}, {v(VWu[0])}
    """)
    if cfg.start_stamps: P.add(stamp("prewait"))
    P.e("s_waitcnt lgkmcnt(0)")
    if cfg.start_stamps: P.add(stamp("karg")); P.e("s_waitcnt lgkmcnt(0)\n v_mov_b32 v156, s74\n v_mov_b32 v157, s72")
    P.e(f"""
    s_sub_u32 s4, s4, {XB}
    s_subb_u32 s5, s5, 0
    """)
    def dma_item(i):
        sl = (i % 4) * SLOT; tag = "it%d" % i; L = []
        xl = lambda T, c, u, pre="": [pre + f"s_add_u32 {sSO}, {sCH[c]}, {sTO[T]}", Ins(f"buffer_load_dwordx4 {v(VX[u])}, {X}, {sSO} offen offset:{1024*u} {cfg.sc_g1} lds", tag)]
        if i < 7:
            L.append([f"s_add_u32 m0, {sM0P}, {sl+3072}", Ins(f"buffer_load_dwordx4 {v(VWg[0])}, {WG}, {sWC[i]} offen offset:0 {cfg.sc_g1} lds", tag)])
            L.append(Ins(f"buffer_load_dwordx4 {v(VWg[1])}, {WG}, {sWC[i]} offen offset:1024 {cfg.sc_g1} lds", tag))
            L.append([f"s_add_u32 m0, {sM0P}, {sl+5120}", Ins(f"buffer_load_dwordx4 {v(VWu[0])}, {WU}, {sWC[i]} offen offset:0 {cfg.sc_g1} lds", tag)])
            L.append(Ins(f"buffer_load_dwordx4 {v(VWu[1])}, {WU}, {sWC[i]} offen offset:1024 {cfg.sc_g1} lds", tag))
            for rt in range(N1): L.append(xl(rt, i, rt, f"s_add_u32 m0, {sM0P}, {sl}\n" if rt == 0 else ""))
        else:
            T = i - 7 + N1
            for k in range(7): L.append(xl(T, k, k % 4, f"s_add_u32 m0, {sM0P}, {sl+1024*k}\n" if k % 4 == 0 else ""))
        return L
    first = dma_item(0) + dma_item(1)
    P.add(first[:cfg.n_pre]); late_first = first[cfg.n_pre:]
    if cfg.sk_early:
        P.add(srd_hi(SK, 4096))
        P.e(f"""s_lshr_b32 s3, {sW}, 1
        s_lshl_b32 {sM}, s2, 1
        s_add_u32 {sM}, {sM}, s3
        s_lshl_b32 s3, {sM}, 12
        s_add_u32 s20, s20, s3
        s_addc_u32 s21, s21, 0
        s_and_b32 s3, {sW}, 1
        s_lshl_b32 s3, s3, 11
        v_lshl_add_u32 {v(VSK[0])}, {v(VL)}, 4, s3
        v_add_u32 {v(VSK[1])}, -16, {v(VSK[0])}
        v_add_u32 {v(VSK[2])}, 1008, {v(VSK[0])}
        buffer_load_dwordx4 {v(HR,4)}, {v(VSK[1])}, {SK}, 0 offen
        buffer_load_dwordx4 {v(HR+4,4)}, {v(VSK[0])}, {SK}, 0 offen
        buffer_load_dwordx4 {v(HR+8,4)}, {v(VSK[2])}, {SK}, 0 offen
        buffer_load_dwordx4 {v(HR+12,4)}, {v(VSK[0])}, {SK}, 0 offen offset:1024""")
    if cfg.aux_head: P.e("s_branch L_mainc\n L_auxhead:\n L_mainc:")
    if not cfg.pass_stamps: P.add(stamp("issued"))
    P.e(f"""
    s_lshl_b32 s3, s2, 2
    s_load_dword {sD}, {pD}, s3
    v_lshlrev_b32 {v(T3)}, 1, {v(T2)}
    v_xor_b32 {v(T3)}, {v(T1)}, {v(T3)}
    v_lshlrev_b32 {v(T3)}, 4, {v(T3)}
    v_mul_u32_u24 {v(VD[0])}, 896, {v(T0)}
    v_add_u32 {v(VD[0])}, {v(VD[0])}, {v(T3)}
    v_add_u32 {v(VX[3])}, -3072, {v(VX[0])}
    v_and_b32 {v(T0)}, 31, {v(VL)}
    v_lshrrev_b32 {v(T1)}, 3, {v(T0)}
    v_mul_u32_u24 {v(T1)}, {PIECE}, {v(T1)}
    v_and_b32 {v(T2)}, 7, {v(T0)}
    v_lshl_add_u32 {v(T1)}, {v(T2)}, 7, {v(T1)}
    v_lshrrev_b32 {v(T2)}, 1, {v(T0)}
    v_and_b32 {v(T2)}, 7, {v(T2)}
    v_lshrrev_b32 {v(T3)}, 5, {v(VL)}
    v_xor_b32 {v(T2)}, {v(T2)}, {v(T3)}
    v_lshl_add_u32 {v(XR[0][0])}, {v(T2)}, 4, {v(T1)}
    """)
    for k in range(1, 4): P.e(f"v_xor_b32 {v(XR[0][k])}, {32*k}, {v(XR[0][0])}")
    for k in range(4): P.e(f"v_add_u32 {v(XR[1][k])}, {3*SLOT}, {v(XR[0][k])}")
    P.e(f"""
    v_bfe_u32 {v(T0)}, {v(VL)}, 2, 2
    v_lshl_add_u32 {v(T1)}, {v(T3)}, 3, {v(T0)}
    v_lshlrev_b32 {v(T1)}, 7, {v(T1)}
    v_bfe_u32 {v(T2)}, {v(VL)}, 1, 1
    v_lshl_add_u32 {v(T1)}, {v(T2)}, 11, {v(T1)}
    v_lshlrev_b32 {v(T2)}, 1, {v(T2)}
    v_lshrrev_b32 {v(T0)}, 1, {v(T0)}
    v_add_u32 {v(T2)}, {v(T2)}, {v(T0)}
    v_xor_b32 {v(T2)}, {sW}, {v(T2)}
    v_lshl_add_u32 {v(T1)}, {v(T2)}, 5, {v(T1)}
    v_bfe_u32 {v(T2)}, {v(VL)}, 4, 1
    v_lshl_add_u32 {v(T1)}, {v(T2)}, 4, {v(T1)}
    v_and_b32 {v(T2)}, 1, {v(VL)}
    v_lshl_add_u32 {v(T1)}, {v(T2)}, 3, {v(T1)}
    v_add_u32 {v(WR[0])}, 3072, {v(T1)}
    v_add_u32 {v(WR[1])}, {2*SLOT}, {v(WR[0])}
    """)
    for i in range(2, 7): P.add(ch_tab(i))
    for t in range(N1, 8): P.add(to_tab(t))
    S = []
    S += lines(f"""
    v_bfe_u32 {v(T1)}, {v(VL)}, 2, 2
    v_lshl_add_u32 {v(T1)}, {v(T3)}, 2, {v(T1)}
    v_lshlrev_b32 {v(T1)}, 7, {v(T1)}
    s_lshr_b32 s3, {sW}, 1
    v_xor_b32 {v(T2)}, s3, {v(T0)}
    v_lshl_add_u32 {v(T1)}, {v(T2)}, 6, {v(T1)}
    v_bfe_u32 {v(T2)}, {v(VL)}, 4, 1
    v_lshl_add_u32 {v(T1)}, {v(T2)}, 5, {v(T1)}
    v_and_b32 {v(T2)}, 3, {v(VL)}
    v_lshl_add_u32 {v(T1)}, {v(T2)}, 3, {v(T1)}
    s_and_b32 s3, {sW}, 1
    s_lshl_b32 s3, s3, 5
    v_xor_b32 {v(T1)}, s3, {v(T1)}
    v_add_u32 {v(DR[0][0])}, {sM0P}, {v(T1)}
    v_xor_b32 {v(DR[0][1])}, 64, {v(DR[0][0])}
    v_add_u32 {v(DR[1][0])}, {2*SLOT}, {v(DR[0][0])}
    v_add_u32 {v(DR[1][1])}, {2*SLOT}, {v(DR[0][1])}
    v_add_u32 {v(VD[1])}, 6144, {v(VD[0])}
    v_add_u32 {v(VD[2])}, {2*6144}, {v(VD[0])}
    v_add_u32 {v(VD[3])}, {3*6144}, {v(VD[0])}
    v_lshlrev_b32 {v(V16)}, 4, {v(VL)}
    s_mul_i32 s3, {sT2}, 28
    s_add_u32 s3, s3, {sT1}
    s_add_u32 s3, s3, 256
    s_lshl_b32 {sFL}, s3, 7
    v_mov_b32 {v(vARR)}, -16
    v_cmp_eq_u32 vcc, 0, v0
    v_min_u32 {v(vP8)}, 7, {v(VL)}
    v_min_u32 {v(vP7)}, 6, {v(VL)}
    v_cndmask_b32 {v(vARR)}, {v(vARR)}, 0, vcc
    v_mov_b32 {v(vONE)}, 1
    s_lshl_b32 s3, {sW}, 3
    v_add_lshl_u32 {v(vP8)}, {v(vP8)}, s3, 7
    s_mul_i32 s3, {sW}, 7
    v_add_lshl_u32 {v(vP7)}, {v(vP7)}, s3, 7
    s_mul_i32 {sWB}, {sT2}, {8*112}
    s_lshl_b32 s3, {sT1}, 2
    s_add_u32 {sWB}, {sWB}, s3
    s_add_u32 {sWB}, {sWB}, {sW}
    s_lshl_b32 {sWB}, {sWB}, 10
    s_add_u32 {sWB}, {sWB}, {WS_H}
    s_mul_i32 {sDB}, {sW}, {448*896}
    s_lshl_b32 s3, {sCT}, 7
    s_add_u32 {sDB}, {sDB}, s3
    s_and_b32 s3, s2, 7
    s_add_u32 {sRG}, {sCT}, s3
    s_and_b32 s3, {sI2}, 3
    s_lshr_b32 s3, s3, {cfg.gq_sh}
    s_mul_i32 s3, s3, {cfg.gq_mul}
    s_add_u32 {sRG}, {sRG}, s3
    """)
    S += mod7(sRG) if cfg.rot_g else [f"s_mov_b32 {sRG}, 0"]
    S += [f"s_mov_b32 {sR}, {sRG}"]
    for i in range(7):
        S += [f"s_mul_i32 s3, {sR}, {0 if cfg.hack_wd else 57344}", f"s_add_u32 {sDG[i]}, s3, {sDB}"] + (rot_next(sR) if i < 6 else [])
    S += srd_hi(WD, NW) + srd_hi(WS, WS_SIZE) + srd_hi(SK, 4096) + srd_hi(OUT, NQ)
    S += lines(f"""
    s_lshr_b32 {sT2}, {sW}, 1
    s_and_b32 {sKH}, {sW}, 1
    s_lshl_b32 {sM}, s2, 1
    s_add_u32 {sM}, {sM}, {sT2}
    s_lshl_b32 s3, {sM}, 12""") + ([] if cfg.sk_early else [f"s_add_u32 s20, s20, s3\n s_addc_u32 s21, s21, 0"]) + lines(f"""
    s_mov_b32 {sNL2E}, 0xbfb8aa3b
    s_mov_b32 {sMASK}, 0xffff0000
    s_mov_b32 {sONE}, 1
    """)
    S2 = lines(f"""
    s_mov_b32 {sHS}, {sWB}
    s_lshl_b32 {sU}, {sKH}, 11
    v_add_u32 {v(VSK[0])}, {sU}, {v(V16)}
    v_add_u32 {v(VSK[1])}, -16, {v(VSK[0])}
    v_add_u32 {v(VSK[2])}, 1008, {v(VSK[0])}
    s_mul_i32 {sT0}, {sT2}, {HCCH}
    s_add_u32 {sT0}, {sT0}, {HC}
    s_mul_i32 {sT1}, {sT2}, {UCH}
    s_add_u32 {sT1}, {sT1}, {UL}
    s_add_u32 s3, {sU}, {sT0}
    s_add_u32 s3, s3, 32
    v_add_u32 {v(VHW)}, s3, {v(V16)}
    v_and_b32 {v(T0)}, 15, {v(VL)}
    v_lshrrev_b32 {v(T1)}, 4, {v(VL)}
    v_sub_u32 {v(T2)}, 3, {v(T0)}
    v_and_b32 {v(T2)}, 3, {v(T2)}
    v_add3_u32 {v(T3)}, {v(T0)}, {v(T2)}, 1
    v_lshl_add_u32 {v(T3)}, {v(T1)}, 3, {v(T3)}
    v_lshlrev_b32 {v(T3)}, 1, {v(T3)}
    v_mul_u32_u24 {v(T2)}, {CPY}, {v(T2)}
    s_lshl_b32 s3, {sKH}, 8
    s_add_u32 {sT0}, {sT0}, s3
    v_add3_u32 {v(CA)}, {v(T2)}, {v(T3)}, {sT0}
    v_lshlrev_b32 {v(T0)}, 5, {v(T0)}
    v_lshlrev_b32 {v(T1)}, 4, {v(T1)}
    v_sub_u32 {v(T1)}, {v(T1)}, {v(T0)}
    s_add_u32 s3, s3, {sT1}
    s_add_u32 s3, s3, 480
    v_add_u32 {v(CB)}, s3, {v(T1)}
    s_add_u32 {sPA}, {sT1}, {sU}
    s_lshl_b32 s3, {sM}, 12
    s_add_u32 {sU}, {sU}, s3
    v_mov_b32 {v(VZ)}, 0
    v_mov_b32 {v(VZ+1)}, 0
    v_mov_b32 {v(VZ+2)}, 0
    v_mov_b32 {v(VZ+3)}, 0
    v_lshrrev_b32 {v(T0)}, 5, {v(VL)}
    v_mul_u32_u24 {v(T0)}, {UCH}, {v(T0)}
    v_and_b32 {v(T1)}, 31, {v(VL)}
    v_lshl_add_u32 {v(T0)}, {v(T1)}, 4, {v(T0)}
    v_add_u32 {v(T0)}, {UL+4096}, {v(T0)}
    ds_write_b128 {v(T0)}, {v(VZ,4)}
    v_and_b32 {v(T0)}, 15, {v(VL)}
    v_lshrrev_b32 {v(T1)}, 1, {v(T0)}
    v_mul_u32_u24 {v(T1)}, {CPY}, {v(T1)}
    v_and_b32 {v(T0)}, 1, {v(T0)}
    v_lshl_add_u32 {v(T0)}, {v(T0)}, 4, {v(T1)}
    v_add_u32 {v(VHZ)}, {HC}, {v(T0)}
    s_mul_i32 {sT0}, {sI2}, 224
    s_mul_i32 s3, {sW}, 28
    s_add_u32 {sT0}, {sT0}, s3
    s_lshl_b32 {sT0}, {sT0}, 10
    s_add_u32 {sHL[0]}, {sT0}, {WS_H}
    s_add_u32 {sHL[1]}, {sT0}, {WS_H + 112*1024}
    """)
    skl = [f"buffer_load_dwordx4 {v(HR,4)}, {v(VSK[1])}, {SK}, 0 offen", f"buffer_load_dwordx4 {v(HR+4,4)}, {v(VSK[0])}, {SK}, 0 offen",
           f"buffer_load_dwordx4 {v(HR+8,4)}, {v(VSK[2])}, {SK}, 0 offen", f"buffer_load_dwordx4 {v(HR+12,4)}, {v(VSK[0])}, {SK}, 0 offen offset:1024"]

    VRW = 224; VRR = 225; VUR = 226; VYS = 227; VY = [228, 229]; VQ = [230, 231]; VGA = 232
    EWA = 233; ERA = [234, 235, 236]; EWB = 237; ERB = [238, 239, 240]; EY = 241; EQ = [242, 243]; EO = 244
    VG = [14, 15]; OMG = [8, 9]; RA = HC + 8192; sO = ["s62", "s63"]; sQS = "s66"; sYS = "s93"
    S3 = lines(f"""
    s_lshl_b32 s3, {sW}, 12
    s_add_u32 s3, s3, {HC}
    v_add_u32 {v(VRW)}, s3, {v(V16)}
    v_xor_b32 {v(VRR)}, 4096, {v(VRW)}
    v_and_b32 {v(T3)}, 15, {v(VL)}
    v_lshlrev_b32 {v(T3)}, 5, {v(T3)}
    v_lshrrev_b32 {v(T2)}, 4, {v(VL)}
    v_lshl_add_u32 {v(T3)}, {v(T2)}, 3, {v(T3)}
    s_lshr_b32 s3, {sW}, 1
    s_mul_i32 s3, s3, {UCH}
    s_lshl_b32 {sT0}, {sKH}, 11
    s_sub_u32 s3, s3, {sT0}
    s_add_u32 s3, s3, {UL+504+2048}
    v_sub_u32 {v(VUR)}, s3, {v(T3)}
    v_and_b32 {v(T1)}, 3, {v(VL)}
    v_lshlrev_b32 {v(T1)}, 4, {v(T1)}
    v_bfe_u32 {v(T3)}, {v(VL)}, 2, 2
    v_lshl_add_u32 {v(T1)}, {v(T3)}, 7, {v(T1)}
    v_bfe_u32 {v(T3)}, {v(VL)}, 4, 1
    v_lshl_add_u32 {v(T1)}, {v(T3)}, 9, {v(T1)}
    v_lshrrev_b32 {v(T3)}, 5, {v(VL)}
    v_lshl_add_u32 {v(VYS)}, {v(T3)}, 6, {v(T1)}
    """)
    S3_marks = [0, len(S3)]
    S3 += lines(f"""
    v_lshrrev_b32 {v(T1)}, 3, {v(VL)}
    v_and_b32 {v(T2)}, 7, {v(VL)}
    v_lshlrev_b32 {v(T3)}, 12, {v(T1)}
    v_lshl_add_u32 {v(VY[0])}, {v(T2)}, 4, {v(T3)}
    v_add_u32 {v(VY[1])}, {32768-1024}, {v(VY[0])}
    v_lshrrev_b32 {v(T3)}, 4, {v(VL)}
    v_xor_b32 {v(T2)}, {v(T2)}, {v(T3)}
    v_lshlrev_b32 {v(T2)}, 4, {v(T2)}
    v_mul_u32_u24 {v(T1)}, 896, {v(T1)}
    v_add_u32 {v(VQ[0])}, {v(T1)}, {v(T2)}
    v_xor_b32 {v(T2)}, 64, {v(T2)}
    v_add_u32 {v(T1)}, {7168-1024}, {v(T1)}
    v_add_u32 {v(VQ[1])}, {v(T1)}, {v(T2)}
    s_lshl_b32 s3, {sI2}, 8
    s_add_u32 s3, s3, {WS_G}
    v_and_b32 {v(T1)}, 31, {v(VL)}
    v_lshl_add_u32 {v(VGA)}, {v(T1)}, 2, s3
    s_lshl_b32 s3, {sI2}, 2
    s_add_u32 s3, s3, {sW}
    s_mul_i32 s3, s3, {16*896}
    s_lshl_b32 {sQS}, {sCT}, 7
    s_add_u32 {sQS}, {sQS}, s3
    s_add_u32 {sQS}, {sQS}, {XB}
    """)
    ea = [f"s_mul_i32 {sT0}, {sW}, 6144", f"s_add_u32 s3, {sT0}, {RA}", f"v_add_u32 {v(EWA)}, s3, {v(V16)}", f"v_add_u32 {v(EWB)}, {sM0P}, {v(V16)}"]
    for sg in range(1, 4):
        ea += [f"s_xor_b32 {sT0}, {sW}, {sg}", f"s_mul_i32 s3, {sT0}, 6144", f"s_add_u32 s3, s3, {RA + 2048*(sg-1)}", f"v_add_u32 {v(ERA[sg-1])}, s3, {v(V16)}",
               f"s_mul_i32 s3, {sT0}, {PIECE}", f"s_add_u32 s3, s3, {(sg-1)*SLOT}", f"v_add_u32 {v(ERB[sg-1])}, s3, {v(V16)}"]
    ea += lines(f"""v_bfe_u32 {v(T1)}, {v(VL)}, 2, 2
    v_lshrrev_b32 {v(T2)}, 5, {v(VL)}
    v_lshl_add_u32 {v(T1)}, {v(T2)}, 2, {v(T1)}
    v_lshlrev_b32 {v(T1)}, 7, {v(T1)}
    v_bfe_u32 {v(T3)}, {v(VL)}, 1, 1
    v_lshl_add_u32 {v(T1)}, {v(T3)}, 6, {v(T1)}
    v_bfe_u32 {v(T3)}, {v(VL)}, 4, 1
    v_lshl_add_u32 {v(T1)}, {v(T3)}, 4, {v(T1)}
    v_and_b32 {v(T3)}, 1, {v(VL)}
    v_lshl_add_u32 {v(T1)}, {v(T3)}, 3, {v(T1)}
    s_lshl_b32 s3, {sW}, 11
    s_add_u32 s3, s3, {YL}
    v_add_u32 {v(EY)}, s3, {v(T1)}
    v_and_b32 {v(T1)}, 31, {v(VL)}
    v_bfe_u32 {v(T3)}, {v(VL)}, 1, 3
    s_lshl_b32 s3, {sW}, 1
    v_xor_b32 {v(T3)}, s3, {v(T3)}
    v_lshlrev_b32 {v(T3)}, 4, {v(T3)}
    v_lshl_add_u32 {v(T3)}, {v(T1)}, 7, {v(T3)}
    v_lshl_add_u32 {v(T3)}, {v(T2)}, 3, {v(T3)}
    v_add_u32 {v(EQ[0])}, {QL}, {v(T3)}
    v_xor_b32 {v(EQ[1])}, 16, {v(EQ[0])}
    v_mul_u32_u24 {v(T1)}, 896, {v(T1)}
    v_lshl_add_u32 {v(EO)}, {v(T2)}, 4, {v(T1)}
    s_mul_i32 {sO[0]}, {sI2}, {64*896}
    s_lshl_b32 s3, {sCT}, 2
    s_add_u32 s3, s3, {sW}
    s_lshl_b32 {sT0}, s3, 5
    s_add_u32 {sO[0]}, {sO[0]}, {sT0}
    s_add_u32 {sO[1]}, {sO[0]}, {32*896}
    s_lshl_b32 s3, s3, 16
    s_lshl_b32 {sYS}, {sI2}, 7
    s_add_u32 {sYS}, {sYS}, s3
    s_add_u32 {sYS}, {sYS}, {WS_YT}""")
    S3_marks.append(len(S3))
    S3 += ea + [f"v_add_u32 {v(245)}, 57344, {v(EWB)}"]
    NG = 224
    G = Gaps(NG)
    def item_start(i): return CH * i if i <= 7 else P1 + 28 * (i - 7)
    gT = lambda T: item_start(T + 7 - N1)
    def xread(g):
        if g < P1: c = g // CH; ks = (g % CH) // N1; unit = g % N1; it = c
        else: it = 7 + (g - P1) // 28; k = (g - P1) % 28; ks = k % 4; unit = k // 4
        sl = it % 4; hi = 1 if sl >= 3 else 0
        off = (sl - 3 * hi) * SLOT + 1024 * unit
        return f"ds_read_b128 {v(XRING+4*(g%NXR),4)}, {v(XR[hi][ks])} offset:{off}"
    def wread(c, ks):
        sl = c % 4; var = sl // 2; off = (sl - 2 * var) * SLOT + PIECE * ks; f = 4 * (4 * c + ks)
        return [f"ds_read_b64_tr_b16 {a(f+2*rd,2)}, {v(WR[var])} offset:{off+512*rd}" for rd in range(2)]
    tile_acc = {0: 0, 1: 1, 2: 2, 3: 3, 4: 0, 5: 1, 6: 2, 7: 3}
    for g in range(NG):
        if g < P1: c = g // CH; ks = 4 * c + (g % CH) // N1; T = g % N1
        else: T = N1 + (g - P1) // 28; ks = (g - P1) % 28
        A = v(ACC[tile_acc[T]], 16)
        G.m[g] = f"v_mfma_f32_32x32x16_bf16 {A}, {a(4*ks,4)}, {v(XRING+4*(g%NXR),4)}, {'0' if ks == 0 else A}"
    pre = []
    def at(g, item):
        if g < 0: pre.append(item)
        else: G.put(g, item)
    gB = lambda i: item_start(i) - PD - 1
    if not cfg.hack_p: G.put(cfg.p_load, poll_load("p", "0"))
    G.put(cfg.p_chk, [stamp("prepoll") if not (cfg.pass_stamps or cfg.start_stamps) else [], [] if cfg.hack_p else poll_check("p", "0"), [] if cfg.p_chk in (gB(NI - 2), gB(NI - 1), gT(7)) else Ins("s_barrier")])
    for i in range(NI):
        at(gB(i), [WaitTag('vm', "it%d" % i), Ins("s_barrier")])
    assert cfg.z_chk < cfg.p_load
    G.put(cfg.z_load, poll_load("z", None))
    G.f[cfg.z_chk].insert(0, [stamp("zpre") if not (cfg.pass_stamps or cfg.start_stamps) else [], poll_check("z", None), stamp("zpost") if not (cfg.pass_stamps or cfg.start_stamps) else []])
    for g in range(NG):
        if g < P1 and g % N1 == 0:
            for s_ in wread(g // CH, (g % CH) // N1): at(g - PD - 1, s_)
        at(g - PD - 1, xread(g))
    cb = cfg.blk_c; deep = cfg.blk_deep and cb is not None
    for c in range(7):
        if deep:
            if c < cb: G.spread(dma_item(c + 2), max(gB(c) + 1, 0), gB(c + 1) + 1)
            if c > cb: G.put(12 * c, Ins("s_barrier")); G.spread(dma_item(c + 3), 12 * c + 1, 12 * c + 12)
        elif c != cb or not cfg.blk_dma: G.spread(dma_item(c + 2), max(gB(c) + 1, 0), gB(c + 1) + 1)
    for T in range(N1, 8): G.put(gT(T), ([WaitTag('lgkm', "hcw")] if T == 7 else []) + [Ins("s_barrier")])
    if deep: G.spread(dma_item(10), gT(3) + 1, gT(3) + 20)
    else: G.spread(dma_item(9) + dma_item(10), gB(7) + 1, gB(8) + 1)
    for i in range(11, NI): G.spread(dma_item(i), item_start(i - 3) + 1, item_start(i - 3) + 20)
    if cfg.wd_touch >= 0: G.put(cfg.wd_touch, f"buffer_load_dword {v(202)}, {v(200)}, {WD}, 0 offen {cfg.sc_wd}")
    for g_, n_ in (cfg.hack_sleep or []): G.put(g_, "s_sleep %d" % n_)
    if cfg.sk_at >= 0: G.spread(skl, cfg.sk_at, cfg.sk_at + 8)
    hv = []
    for rho in range(2):
        R = HR + 8 * rho; C_ = HCP + 12 * rho
        for k in range(4): hv.append(f"v_alignbit_b32 {v(C_+k)}, {v(R+4+k)}, {v(R+3+k)}, 16")
        for k in range(4): hv.append(f"v_mov_b32 {v(C_+4+k)}, {v(R+3+k)}")
        for k in range(4): hv.append(f"v_alignbit_b32 {v(C_+8+k)}, {v(R+3+k)}, {v(R+2+k)}, 16")
    hw = [Ins(f"ds_write_b128 {v(VHZ)}, {v(VZ,4)}", "hcw")]
    for rho in range(2):
        R = HR + 8 * rho; C_ = HCP + 12 * rho
        for cpy, src in enumerate((R + 4, C_, C_ + 4, C_ + 8)):
            hw.append(Ins(f"ds_write_b128 {v(VHW)}, {v(src,4)} offset:{cpy*CPY+1024*rho}", "hcw"))
    def epi(T, packed=False):
        A = ACC[tile_acc[T]]; Pk = PK[T % 2]; L = []
        for grp in range(2):
            g_ = A + 8 * grp; u_ = g_ + 4; E = ET
            if packed:
                E = ET if grp == 0 else HR
                L += [f"v_mul_f32 {v(E+i)}, {sNL2E}, {v(g_+i)}" for i in range(4)]
                L += [f"v_exp_f32 {v(E+i)}, {v(E+i)}" for i in range(4)]
                L += [f"v_pk_mul_f32 {v(u_+2*i,2)}, {v(g_+2*i,2)}, {v(u_+2*i,2)}" for i in range(2)]
                L += [f"v_pk_add_f32 {v(E+2*i,2)}, {v(E+2*i,2)}, 1.0 op_sel_hi:[1,0]" for i in range(2)]
                L += [f"v_rcp_f32 {v(E+i)}, {v(E+i)}" for i in range(4)]
                L += [f"v_pk_mul_f32 {v(u_+2*i,2)}, {v(u_+2*i,2)}, {v(E+2*i,2)}" for i in range(2)]
            else:
                L += [f"v_mul_f32 {v(E+i)}, {sNL2E}, {v(g_+i)}" for i in range(4)]
                L += [f"v_exp_f32 {v(E+i)}, {v(E+i)}" for i in range(4)]
                L += [f"v_mul_f32 {v(u_+i)}, {v(g_+i)}, {v(u_+i)}" for i in range(2)]
                L += [f"v_add_f32 {v(E+i)}, 1.0, {v(E+i)}" for i in range(4)]
                L += [f"v_rcp_f32 {v(E+i)}, {v(E+i)}" for i in range(4)]
                L += [f"v_mul_f32 {v(u_+i)}, {v(g_+i)}, {v(u_+i)}" for i in range(2, 4)]
                L += [f"v_mul_f32 {v(u_+i)}, {v(u_+i)}, {v(E+i)}" for i in range(4)]
            L += [f"v_cvt_pk_bf16_f32 {v(Pk+2*grp+i)}, {v(u_+2*i)}, {v(u_+2*i+1)}" for i in range(2)]
        L.append(f"s_lshl2_add_u32 {sSO2}, {sTO[T]}, {sHS}")
        L.append(Ins(f"buffer_store_dwordx4 {v(Pk,4)}, {v(V16)}, {WS}, {sSO2} offen {cfg.sc_h}", "hst%d" % T))
        return L
    page_slot = [(T + 7 - N1) % 4 for T in (4, 5, 6, 7)]
    def wd_page(n): return n if n < 21 else (n - 21 if n < 28 else (n - 7 if n < 35 else (n - 28 if n < 49 else n - 49)))
    def wd_prev(n): return n - 21 if 21 <= n < 28 else (n - 28 if n >= 35 else None)
    def wd_dma(n0, n1):
        L = []; n = n0
        while n < n1:
            p = wd_page(n); cnt = min(4, n1 - n, 7 - p % 7, 8 - n % 8)
            lds = page_slot[p // 7] * SLOT + 1024 * (p % 7)
            for k in range(cnt):
                it = [Ins(f"buffer_load_dwordx4 {v(VD[k])}, {WD}, {sSO} offen offset:{1024*k} {cfg.sc_wd} lds", "wd%d" % (n + k))]
                if wd_prev(n + k) is not None: it = [WaitTag('lgkm', "wr%d" % wd_prev(n + k))] + it
                if k == 0: L.append(f"s_add_u32 m0, {sM0P}, {lds}\n s_add_u32 {sSO}, {sDG[n >> 3]}, {7168*(n % 8)}")
                L.append(it)
            n += cnt
        return L
    def wd_read(n, dst):
        p = wd_page(n); sl = page_slot[p // 7]; hi = 1 if sl >= 2 else 0
        off = (sl - 2 * hi) * SLOT + 1024 * (p % 7)
        return [[WaitTag('vm', "wd%d" % n)] * (dt == 0 and not 28 <= n < 28 + cfg.n_raw) + [Ins(f"ds_read_b64_tr_b16 {dst(dt)}, {v(DR[hi][dt])} offset:{off}", "wr%d" % n)] for dt in range(2)]
    WD1 = 112
    NR = cfg.n_raw; RAW0 = 224 - 4 * NR; EWH = 245
    def raw_reg(n): return RAW0 + 4 * (NR - 1 - (n - 28))
    def raw_loads(n0, n1):
        L = []; n = n0
        while n < n1:
            cnt = min(4, n1 - n, 8 - n % 8)
            L.append(f"s_add_u32 {sSO}, {sDG[n >> 3]}, {7168*(n % 8)}")
            L += [f"buffer_load_dwordx4 {v(raw_reg(n+k),4)}, {v(VD[k])}, {WD}, {sSO} offen offset:{1024*k}" for k in range(cnt)]
            n += cnt
        return L
    def raw_write(n):
        p = wd_page(n); off = page_slot[p // 7] * SLOT + 1024 * (p % 7)
        it = [Ins(f"ds_write_b128 {v(EWB if off < 57344 else EWH)}, {v(raw_reg(n),4)} offset:{off if off < 57344 else off - 57344}", "ww%d" % n)]
        return [it]
    def fill_units(n0, n1):
        m = min(max(28 + NR, n0), n1)
        return [x for n in range(n0, m) for x in raw_write(n)] + wd_dma(m, n1)
    def wd1(n): return lambda dt: a(WD1 + 8 * (n >> 1) + 4 * dt + 2 * (n & 1), 2)
    def wd_reads(n0, n1): return [x for n in range(n0, n1) for x in wd_read(n, wd1(n))]
    preblk = []
    if cfg.blk_c is None:
        if cfg.s3_at >= 0: l3_ = G.pour(S3, cfg.s3_at, cfg.hv_at, cfg.bud1); assert l3_ < 80
        lh = G.pour(hv, cfg.hv_at, min(max(P1 - 4, cfg.hv_at + 24), cfg.hw0 - 2), cfg.bud1 if cfg.hv_at < 70 else 20); assert lh < cfg.hw0
        G.spread(hw, cfg.hw0, cfg.hw1)
    else:
        n3 = len(S3) - (S3_marks + [len(S3)])[3 - cfg.blk_s3]; S3b = S3[len(S3) - n3:]; del S3[len(S3) - n3:]
        work = [hw[0], hv[0:4], hw[1], hv[4:8], hw[2], hv[8:12], hw[3], hv[12:16], hw[4], hv[16:20], hw[5], hv[20:24], hw[6], S3b[:5], hw[7], S3b[5:10], hw[8], S3b[10:]]
        d_ = dma_item(cfg.blk_c + 2) if cfg.blk_dma else []; blk = []
        if deep:
            G.spread(d_[:4], gB(cb) + 1, 12 * cb); d_ = d_[4:] + dma_item(cb + 3); blk = [Ins("s_barrier")]
        step_ = max(len(work) // (len(d_) + 1), 1)
        for j, it in enumerate(work):
            if j % step_ == 0 and d_: blk.append(d_.pop(0))
            blk.append(it)
        if cfg.blk_list:
            done_ = 0
            for g_, nw_ in cfg.blk_list:
                k_ = min(len(blk), done_ + 2 * nw_) if (g_, nw_) != cfg.blk_list[-1] else len(blk)
                G.put(g_, blk[done_:k_]); done_ = k_
        elif cfg.blk_g2: G.put(cfg.blk_g, blk[:9]); G.put(cfg.blk_g2, blk[9:])
        elif cfg.blk_g < 0: preblk = blk
        else: G.put(12 * cb if deep else (gB(cb) + 1 if cfg.blk_dma else cfg.blk_g), blk + d_)
    if NR:
        r0, r1, r2 = 28, 28 + min(NR, 6), 28 + min(NR, 6 + (NR - 6 + 1) // 2)
        assert cfg.hw1 <= gT(5) + 8 or NR <= 6
        G.spread(raw_loads(r0, r1), gT(4) + 21 - 12, gT(5))
        G.spread(wd_dma(0, 7), gT(5) + 1, gT(5) + 15); G.spread(raw_loads(r1, r2), gT(5) + 15, gT(6))
        G.spread(wd_dma(7, 14), gT(6) + 1, gT(6) + 15); G.spread(raw_loads(r2, 28 + NR), gT(6) + 15, gT(7))
    else:
        G.spread(wd_dma(0, 7), gT(5) + 1, gT(5) + 22)
        G.spread(wd_dma(7, 14), gT(6) + 1, gT(6) + 20)
    UD = ([f"s_mov_b32 m0, {sPA}\n s_add_u32 {sSO}, {sU}, {WS_UR if not cfg.hack_p else 0x900000}"] + [Ins(f"buffer_load_dwordx4 {v(V16)}, {WS}, {sSO} offen offset:{1024*j} sc1 lds", "u") for j in range(2)])
    G.spread(wd_reads(0, 7), gB(NI - 1) + 2, gT(7) + 12)
    if cfg.p_chk > gT(7) + 8:
        G.spread(wd_dma(14, 21), gT(7) + 1, cfg.p_chk)
        G.put(cfg.p_chk + 1, UD)
        G.spread(wd_dma(21, 28), cfg.p_chk + 2, NG - 1)
    elif cfg.p_chk == gT(7):
        G.put(gT(7) + 1, UD)
        G.spread(wd_dma(14, 28), gT(7) + 2, NG - 1)
    else:
        assert cfg.p_chk in (gB(NI - 2), gB(NI - 1))
        G.put(cfg.p_chk + 4, UD)
        G.spread(wd_dma(14, 28), gT(7) + 1, NG - 1)
    bounds = [P1 + 2 + (NG - P1 - 4) * k // 7 for k in range(8)]
    last = 0
    for T in range(7):
        avail = (P1 if T < N1 else gT(T + 1)) + 2
        if cfg.epi_len: g0 = max(avail, last); g1_ = min(g0 + cfg.epi_len, NG - 1)
        else: g0 = max(bounds[T], avail, last); g1_ = max(bounds[T + 1], g0 + 1)
        last = G.pour(epi(T), g0, g1_, cfg.bud)
        if T == 3 and cfg.eo: assert last < cfg.a_arr - 4, last
        nxt = [t for t in range(T + 1, 8) if tile_acc[t] == tile_acc[T]]
        if nxt: assert last < gT(nxt[0]), (T, last)
    if cfg.eo:
        k_ = [i for i, it in enumerate(G.f[cfg.a_arr]) if isinstance(it, list) and any(isinstance(x, Ins) and x.op == "s_barrier" for x in it)][0]
        if not cfg.nosync: G.f[cfg.a_arr].insert(k_, WaitTag('vm', "hst3")); k_ += 1
        G.f[cfg.a_arr].insert(k_ + 1, [f"s_add_u32 {sT1}, {sFL}, {512*128}", arrive("hst3", sT1, False)])
        G.put(cfg.a_load - 2, f"s_lshr_b32 {sT1}, {sI2}, 2\n s_mul_i32 {sT1}, {sT1}, {28*128}")
        G.put(cfg.a_load - 1, f"s_add_u32 {sT1}, {sT1}, {768*128}")
        G.put(cfg.a_load, poll_load("a", sT1))
    check_m0(G)
    SS = S + S2; k0 = len(SS) * min(cfg.late_pos, 100) // 100
    touch = []
    if cfg.x_touch:
        touch = lines(f"""v_min_u32 {v(200)}, {8*cfg.x_touch-1}, {v(VL)}
        v_lshrrev_b32 {v(201)}, 3, {v(200)}
        s_lshl_b32 s3, {sFQ}, 1
        s_add_u32 s3, s3, 3
        v_add_u32 {v(201)}, {'s3' if cfg.rot_t else '3'}, {v(201)}
        v_and_b32 {v(201)}, 7, {v(201)}
        v_mul_u32_u24 {v(201)}, 28672, {v(201)}
        v_and_b32 {v(200)}, 7, {v(200)}
        v_mul_u32_u24 {v(200)}, 896, {v(200)}
        v_add3_u32 {v(200)}, {v(200)}, {v(201)}, {sXBc}
        buffer_load_dword {v(202)}, {v(200)}, {X}, {sCH[0]} offen""")
    kvt = lines(f"""s_lshl_b32 s3, s2, 2
    s_add_u32 s3, s3, {sW}
    s_lshl_b32 s3, s3, 4
    v_min_u32 {v(203)}, 15, {v(VL)}
    v_add_lshl_u32 {v(203)}, {v(203)}, s3, 7
    global_load_dword {v(204)}, {v(203)}, s[94:95]
    global_load_dword {v(205)}, {v(203)}, s[96:97]""")
    if cfg.kv_touch == 0: P.add(kvt)
    P.add(SS[:k0])
    if cfg.late_pos <= 100: P.add(late_first)
    P.add(SS[k0:])
    if cfg.kv_touch == 1: P.add(kvt)
    if cfg.s3_at < 0: P.add(S3)
    if cfg.late_pos > 100: P.add(late_first)
    if cfg.kv_touch == 2: P.add(kvt)
    if cfg.trace: P.e('v_mov_b32 v253, 0')
    P.e(f"""s_lshl_b32 s3, s2, 2
    s_add_u32 s3, s3, {sW}
    s_mul_i32 s3, s3, 14
    v_min_u32 {v(200)}, 13, {v(VL)}
    v_add_lshl_u32 {v(200)}, {v(200)}, s3, 7""")
    if cfg.sk_at < 0 and not cfg.sk_early: P.add(skl)
    if cfg.tlb:
        P.e(f"""v_min_u32 {v(203)}, 12, {v(VL)}
        v_lshlrev_b32 {v(203)}, 20, {v(203)}
        v_add_u32 {v(203)}, 0x1f000, {v(203)}
        buffer_load_dword {v(204)}, {v(203)}, {WS}, 0 offen
        buffer_load_dword {v(205)}, {v(VZ)}, {OUT}, 0 offen
        buffer_load_dword {v(206)}, {v(VZ)}, {WD}, 0 offen""")
    if cfg.wd_touch == -2: P.e(f"buffer_load_dword {v(202)}, {v(200)}, {WD}, 0 offen {cfg.sc_wd}")
    if cfg.warm and cfg.stub_at:
        P.e("s_mov_b64 exec, 0")
        for k in range(min(4, len(cfg.stub_at))): P.e(f"s_cmp_eq_u32 {sW}, {k}\n s_cbranch_scc1 L_pg{k}")
        P.e("L_pgback:\n s_mov_b64 exec, -1")
    if cfg.start_stamps: P.add(stamp("setup"))
    P.e(f"""s_waitcnt lgkmcnt(0)
    s_lshl_b32 s3, {sD}, 16
    s_and_b32 {sD}, {sD}, 0xffff0000
    s_cmp_lt_u32 {sW}, 2
    s_cselect_b32 {sD}, s3, {sD}""")
    P.add(preblk)
    P.add(pre)
    P.add(stamp("g1start"))
    G.put(P1 - 1, stamp("p1end"))
    if cfg.pass_stamps:
        for T in (5, 6, 7): G.put(gT(T) - 1, stamp("T%d" % T))
    add_trace(G, 6, 'g', [94, 96])
    G.emit(P, cfg.pair)
    if cfg.verbose: print("G1 gap costs", G.costs())
    if cfg.start_stamps: P.e("v_readfirstlane_b32 s8, v156\n v_readfirstlane_b32 s10, v157"); STAMP_REGS['prewait'] = 8; STAMP_REGS['karg'] = 10
    P.add(stamp("g1end"))
    CACC = 48
    def cA(buf, a_): return (0 if buf == 0 else 64) + 4 * a_
    def cB(buf, b_):
        i = 32 + 4 * b_ if buf == 0 else 96 + 4 * b_
        return i if i < 112 else 224 + (i - 112)
    def crA(st, k): return [f"ds_read_b64 {a(cA(st&1,k)+2*rd,2)}, {v(CA)} offset:{512*k+64*st+8*rd}" for rd in range(2)]
    def crB(st, k): return [f"ds_read_b128 {a(cB(st&1,k),4)}, {v(CB)} offset:{64*st+512*(7-k)}"]
    def creads(st): return [x for k in range(8) for x in crB(st, k) + crA(st, k)]
    e7 = epi(7, True); ra = [x for k in range(8) for x in crA(0, k)]
    P.add(ra[:10]); k = 10
    for j, it in enumerate(e7):
        P.add(it)
        if j % 6 == 5 and k < 16: P.add(ra[k]); k += 1
    P.add(ra[k:])
    P.vmwait("u"); P.e("s_barrier")
    for k in range(8): P.add(crB(0, k))
    hg = [f"s_lshr_b32 s3, {sI2}, 2", "s_mul_i32 s3, s3, 28", f"s_add_u32 s3, s3, 256", f"s_lshl_b32 s3, s3, 7", f"v_add_u32 {v(vP7)}, s3, {v(vP7)}",
          f"s_add_u32 s3, {sI2}, 32", "s_lshl_b32 s3, s3, 7", f"v_mov_b32 {v(T1)}, s3", f"v_cmp_gt_u32 vcc, 7, {v(VL)}", f"s_mov_b32 {sPA}, 0", "s_nop 0",
          f"v_cndmask_b32 {v(vP7)}, {v(T1)}, {v(vP7)}, vcc",
          f"s_lshl_b32 {sRG}, {sRG}, 12", f"s_add_u32 {sXB}, {sHL[0]}, {sRG}", f"s_add_u32 {sHE}, {sHL[0]}, {28*1024}"]
    d0 = fill_units(28, 35)
    npre = 0 if NR else 3
    P.add(d0[:npre])
    P.add(stamp("cstart"))
    C = Gaps(144)
    pairs = [(t, a_) for t in range(8) for a_ in range(t + 1)]
    for st in range(4):
        for j, (t, a_) in enumerate(pairs):
            A = v(CACC + 4 * t, 4)
            C.m[36 * st + j] = f"v_mfma_f32_16x16x32_bf16 {A}, {a(cA(st&1,a_),4)}, {a(cB(st&1,t-a_),4)}, {'0' if (st == 0 and a_ == 0) else A}"
        if st < 3: C.spread(creads(st + 1), 36 * st + 1, 36 * st + 33)
    HRING = 96; NHR = 32
    horder = [(0, ks) for ks in range(28)] + [(1, ks) for ks in (list(range(14, 28)) + list(range(14)) if cfg.b_rev else range(28))]
    def hload(n):
        st, ks = horder[n]; L = []
        if n == 28: L += [f"s_add_u32 {sXB}, {sHL[1]}, {sRG}", f"s_add_u32 {sHE}, {sHL[1]}, {28*1024}"]
        elif n > 0 and ks % 4 == 0: L += [f"s_add_u32 {sXB}, {sXB}, 4096", f"s_cmp_eq_u32 {sXB}, {sHE}\n s_cselect_b32 {sXB}, {sHL[st]}, {sXB}"]
        L.append(f"buffer_load_dwordx4 {v(HRING+4*(n%NHR),4)}, {v(V16)}, {WS}, {sXB} offen offset:{1024*(ks%4)} sc1")
        return L
    w0, w1, w2, w3 = cfg.c_wd
    C.spread(d0[npre:], 0, w0)
    C.spread(wd_reads(7, 14), 2, w0 - 2); C.spread(fill_units(35, 42), w0, w1)
    C.spread(wd_reads(14, 21), w0, w1 - 2); C.spread(fill_units(42, 49), w1, w2)
    C.spread(wd_reads(21, 28), w1, w2 - 2); C.spread(wd_dma(49, 56), w2, w3)
    C.put(cfg.g_arrive, arrive("hst7", sFL))
    if cfg.eo: C.put(cfg.a_chk, poll_check("a", sT1))
    lh_ = C.pour(hg, cfg.a_chk + 1 if cfg.eo else 40, min(cfg.g_poll, cfg.h_first) - 4, 10); assert lh_ < min(cfg.g_poll, cfg.h_first)
    C.put(cfg.g_poll, poll_load("h", sPA))
    HCHK = [stamp("c_pre"), poll_check("h", sPA), stamp("c_post")]
    if not cfg.eo: C.put(cfg.g_chk, HCHK)
    NH = cfg.nh_c
    C.spread([hload(n) for n in range(NH)], cfg.h_first if cfg.eo else cfg.g_chk + 1, 144)
    RR = 48; UU = 18; DU = 80
    ce = [f"s_add_u32 {sU}, {sU}, {WS_YT}"]
    ce += [f"ds_read_b64 {v(UU+2*tau,2)}, {v(VUR)} offset:{512*(3-tau)}" for tau in range(4)]
    for tau in range(4):
        ce += lines(f"""
        v_and_b32 {v(DU+4*tau+0)}, {sMASK}, {v(UU+2*tau+1)}
        v_lshlrev_b32 {v(DU+4*tau+1)}, 16, {v(UU+2*tau+1)}
        v_and_b32 {v(DU+4*tau+2)}, {sMASK}, {v(UU+2*tau)}
        v_lshlrev_b32 {v(DU+4*tau+3)}, 16, {v(UU+2*tau)}""")
    lr = C.pour(ce[:5], max(lh_ + 1, 104), 112, 8); assert lr < cfg.c_bar - 4
    lc = C.pour(ce[5:], lr + 6, 140, 8)
    assert lc < 140
    C.put(cfg.c_bar, [WaitRegs(a(cA(1, 7), 4)), WaitRegs(v(UU, 8)), Ins("s_barrier")])
    for g_, n_ in (cfg.hack_sleep_c or []): C.put(g_, 's_sleep %d' % n_)
    check_m0(C, 1024)
    add_trace(C, 12, 'c', [94, 96])
    C.emit(P)
    if cfg.verbose: print("C gap costs", C.costs())
    hq = [hload(n) for n in range(NH, NH + cfg.nh_e)]; NH += cfg.nh_e
    def hnext():
        if hq: P.add(hq.pop(0))
    hnext()
    dfma = lambda base: [f"v_pk_fma_f32 {v(DU+2*k,2)}, s[78:79], {v(DU+2*k,2)}, {v(base+2*k,2)} op_sel_hi:[0,1,1]" for k in range(8)]
    P.e(f"s_cmp_eq_u32 {sKH}, 0\n s_cbranch_scc1 L_cw0")
    for tau in range(4): P.e(f"ds_write_b128 {v(VRW)}, {v(CACC+4*tau,4)} offset:{1024*tau}", nocount=True)
    P.add(dfma(CACC + 16))
    P.e("s_branch L_cw1\n L_cw0:\n s_nop 2")
    for tau in range(4): P.e(f"ds_write_b128 {v(VRW)}, {v(CACC+16+4*tau,4)} offset:{1024*tau}")
    P.add(dfma(CACC))
    P.e("L_cw1:")
    while hq: hnext()
    P.e("s_waitcnt lgkmcnt(0)\n s_barrier")
    ct_ = [f"ds_read_b128 {v(RR+4*tau,4)}, {v(VRR)} offset:{1024*tau}" for tau in range(4)]
    P.add(ct_); ct_ = []
    for pi in range(2):
        if cfg.c_tail_in_g2: ct_ += [f"v_add_f32 {v(DU+8*pi+k)}, {v(DU+8*pi+k)}, {v(RR+8*pi+k)}" for k in range(8)]
        else: ct_ += [f"v_pk_add_f32 {v(DU+8*pi+2*k,2)}, {v(DU+8*pi+2*k,2)}, {v(RR+8*pi+2*k,2)}" for k in range(4)]
        ct_ += [f"v_cvt_pk_bf16_f32 {v(UU+4*pi+k)}, {v(DU+8*pi+2*k)}, {v(DU+8*pi+2*k+1)}" for k in range(4)]
    for pi in range(2):
        ct_ += [f"v_permlane16_swap_b32 {v(UU+4*pi)}, {v(UU+4*pi+2)}", f"v_permlane16_swap_b32 {v(UU+4*pi+1)}, {v(UU+4*pi+3)}"]
        ct_ += [Ins(f"buffer_store_dwordx4 {v(UU+4*pi,4)}, {v(VYS)}, {WS}, {sU} offen offset:{1024*pi} sc1", "yst")]
    if not cfg.c_tail_in_g2: P.add(ct_); ct_ = []
    P.add(stamp("g2start"))
    GACC = 0; JIT = 64; NJ = 8
    G2 = Gaps(112)
    jn = 0
    for n in range(56):
        st, ks = horder[n]
        for dt in range(2):
            A = a(GACC + 32 * st + 16 * dt, 16)
            if ks < 14: W_ = a(WD1 + 8 * ks + 4 * dt, 4)
            else:
                r_ = JIT + 4 * (jn % NJ); jn += 1; W_ = a(r_, 4)
                for rd in range(2):
                    G2.put(2 * n + dt - 6, wd_read(2 * ks + rd, lambda d_, r_=r_, rd=rd: a(r_ + 2 * rd, 2))[dt])
            G2.m[2 * n + dt] = f"v_mfma_f32_32x32x16_bf16 {A}, {W_}, {v(HRING+4*(n%NHR),4)}, {'0' if n in (0, 28) else A}"
    reserved = sorted([8, 10] * bool(cfg.c_tail_in_g2) + list(cfg.q_at[:2]) + [cfg.g2_chk + 2, cfg.g2_chk + 4])
    t_ = 0.0; n = NH; la = []
    while n < 56:
        if reserved and reserved[0] <= t_ + cfg.g2_hpace / 2: reserved.pop(0); t_ += cfg.g2_hpace; continue
        g = int(t_)
        if n >= NHR: assert g >= 2 * (n - NHR) + 1
        if n == 28 and cfg.eo: assert g > cfg.b_chk
        la.append(2 * n - g); G2.put(g, hload(n)); n += 1; t_ += cfg.g2_hpace
    if cfg.verbose: print("H lookahead (gaps)", la)
    assert min(la) >= 8, la
    if cfg.eo: G2.put(cfg.b_chk, HCHK)
    lt = G2.pour(ct_, 1, 10, 24) if ct_ else 0
    e1 = lines(f"""
    s_lshl_b32 s3, s2, 7
    s_add_u32 {sFL}, s3, {512*128}
    s_lshl_b32 s3, {sCT}, 12
    s_add_u32 {sPA}, s3, {512*128}
    """)
    l1 = G2.pour(e1, max(lt, cfg.b_chk + 1 if cfg.eo else 0), max(lt, cfg.b_chk) + 8, 24); assert l1 <= cfg.g2_arrive
    G2.put(cfg.g2_arrive, [WaitTag('vm', "q"), arrive("yst", sFL)])
    qd = [f"s_lshl_b32 {sT1}, {sW}, 11\n s_add_u32 m0, {sT1}, {QL}"]
    qd += [Ins(f"buffer_load_dwordx4 {v(VQ[j])}, {X}, {sQS} offen offset:{1024*j} lds", "q") for j in range(2)]
    qd += [f"buffer_load_dword {v(VG[j])}, {v(VGA)}, {WS}, 0 offen offset:{128*j} sc1" for j in range(2)]
    assert not cfg.eo or min(cfg.q_at) - 1 > cfg.b_chk
    G2.put(cfg.q_at[0] - 1, qd[0])
    for q_, g_ in zip(qd[1:], cfg.q_at): G2.put(g_, q_)
    def sends(st, addr):
        return [Ins(f"ds_write_b128 {addr(sg, jj)[0]}, {a(GACC+32*st+16*(sg>>1)+8*(sg&1)+4*jj,4)} offset:{addr(sg, jj)[1]}", "rw%d" % st) for sg in range(1, 4) for jj in range(2)]
    G2.spread(sends(0, lambda sg, jj: (v(EWA), 2048 * (sg - 1) + 1024 * jj)), 59, cfg.rw_bar - 1)
    G2.put(cfg.g2_poll, poll_load("y", sPA))
    G2.put(cfg.g2_chk, [stamp("g2_pre"), poll_check("y", sPA), [WaitTag('lgkm', "rw0")] if cfg.rw_bar == cfg.g2_chk else [], Ins("s_barrier"), [] if cfg.pass_stamps else stamp("g2_post")])
    if cfg.rw_bar != cfg.g2_chk: G2.put(cfg.rw_bar, [WaitTag('lgkm', "rw0"), Ins("s_barrier")])
    yd = [f"s_add_u32 m0, {sT1}, {YL}"]
    yd += [Ins(f"buffer_load_dwordx4 {v(VY[j])}, {WS}, {sYS} offen offset:{1024*j} sc1 lds", "y") for j in range(2)]
    G2.put(cfg.g2_chk + 1, yd[0]); G2.put(cfg.g2_chk + 2, yd[1]); G2.put(cfg.g2_chk + 4, yd[2])
    QQ = 48; TT = 56; BB = 72; RX = 80; YY = 18; O = 48
    RP = [80, 84, 88, 92, 28 + 0, 28 + 0]
    un = lambda i, d, s_: (f"v_lshlrev_b32 {d}, 16, {s_}" if i % 2 == 0 else f"v_and_b32 {d}, {sMASK}, {s_}")
    p0 = [f"ds_read_b64 {v(QQ+4*st+2*J,2)}, {v(EQ[J])} offset:{4096*st}" for st in range(2) for J in range(2)]
    p0 += [f"v_sub_f32 {v(OMG[st])}, 1.0, {v(VG[st])}" for st in range(2)] + [[], []]
    p0 += [un(k, v(TT + k), v(QQ + (k >> 1))) for k in range(16)]
    p0 += [f"v_mul_f32 {v(TT+k)}, {v(TT+k)}, {v(VG[k>>3])}" for k in range(16)]
    l0 = G2.pour(p0, cfg.g2_arrive + 1, 62, 22); assert l0 < cfg.rw_bar
    p1 = [f"ds_read_b128 {v(RX+4*jj,4)}, {v(ERA[0])} offset:{1024*jj}" for jj in range(2)]
    p1 += [f"ds_read_b128 {v(RX+8+4*jj,4)}, {v(ERA[1])} offset:{1024*jj}" for jj in range(2)]
    p1 += [f"v_accvgpr_read_b32 {v(BB+k)}, {a(GACC+k)}" for k in range(8)]
    p1 += [f"v_add_f32 {v(BB+k)}, {v(BB+k)}, {v(RX+k)}" for k in range(8)]
    p1 += [f"ds_read_b128 {v(RX+4*jj,4)}, {v(ERA[2])} offset:{1024*jj}" for jj in range(2)]
    p1 += [f"v_add_f32 {v(BB+k)}, {v(BB+k)}, {v(RX+8+k)}" for k in range(8)]
    p1 += [f"v_add_f32 {v(BB+k)}, {v(BB+k)}, {v(RX+k)}" for k in range(8)]
    p1 += [f"v_mul_f32 {v(BB+k)}, {v(BB+k)}, {v(OMG[0])}" for k in range(8)]
    l3 = G2.pour(p1, cfg.rw_bar + 1, cfg.g2_pre - 1, 24); assert l3 <= cfg.g2_pre + 4, l3
    p2 = [[WaitTag('vm', "y"), Ins("s_barrier")]]
    p2 += [f"ds_read_b64_tr_b16 {v(YY+4*st+2*J,2)}, {v(EY)} offset:{1024*J+32*st}" for st in range(2) for J in range(2)]
    p2 += [[], [], []]
    p2 += [un(k, v(RX + k), v(YY + (k >> 1))) for k in range(8)]
    p2 += [f"v_fmac_f32 {v(BB+k)}, {v(TT+k)}, {v(RX+k)}" for k in range(8)]
    p2 += [f"v_cvt_pk_bf16_f32 {v(O+k)}, {v(BB+2*k)}, {v(BB+2*k+1)}" for k in range(4)]
    p2 += [un(k, v(RX + k), v(YY + (k >> 1))) for k in range(8, 16)]
    p2 += [f"v_permlane32_swap_b32 {v(O)}, {v(O+2)}", f"v_permlane32_swap_b32 {v(O+1)}, {v(O+3)}"]
    p2 += [f"buffer_store_dwordx4 {v(O,4)}, {v(EO)}, {OUT}, {sO[0]} offen {cfg.sc_out}"]
    p2 += [f"v_mul_f32 {v(TT+k)}, {v(TT+k)}, {v(RX+k)}" for k in range(8, 16)]
    p2 += [f"v_mov_b32 {v(T1)}, {v(OMG[1])}", f"v_mov_b32 {v(T2)}, {v(OMG[1])}"]
    if cfg.y_late: G2.pour(p2[-2:], l3, 111, 24)
    else: G2.pour(p2, max(l3, cfg.g2_pre), 111, 24)
    for g_, n_ in (cfg.hack_sleep_h or []): G2.put(g_, 's_sleep %d' % n_)
    check_m0(G2)
    add_trace(G2, 8, 'h', [94, 96])
    G2.emit(P, 2)
    if cfg.verbose: print("G2 gap costs", G2.costs())
    P.add(stamp("g2end"))
    R1 = 96; O2 = 52; B2 = 120 if cfg.y_late else BB
    w_ = sends(1, lambda sg, jj: (v(EWB), (sg - 1) * SLOT + 1024 * jj))
    P.add(w_[:2])
    for k in range(8): P.e(f"v_accvgpr_read_b32 {v(B2+k)}, {a(GACC+32+k)}")
    P.add(w_[2:])
    if cfg.y_late: P.vmwait("y")
    P.e("s_waitcnt lgkmcnt(0)\n s_barrier")
    if cfg.y_late: P.add(p2[1:5])
    for jj in range(2):
        for sg in range(1, 4): P.e(f"ds_read_b128 {v(R1+8*(sg-1)+4*jj,4)}, {v(ERB[sg-1])} offset:{1024*jj}")
    if cfg.y_late:
        for k in range(8): P.e(un(k, v(RX + k), v(YY + (k >> 1))))
        for k in range(4): P.e(f"v_pk_fma_f32 {v(BB+2*k,2)}, {v(TT+2*k,2)}, {v(RX+2*k,2)}, {v(BB+2*k,2)}")
        for k in range(4): P.e(f"v_cvt_pk_bf16_f32 {v(O+k)}, {v(BB+2*k)}, {v(BB+2*k+1)}")
        for k in range(8, 10): P.e(un(k, v(RX + k), v(YY + (k >> 1))))
        P.e(f"v_permlane32_swap_b32 {v(O)}, {v(O+2)}\n v_permlane32_swap_b32 {v(O+1)}, {v(O+3)}")
        P.e(f"buffer_store_dwordx4 {v(O,4)}, {v(EO)}, {OUT}, {sO[0]} offen {cfg.sc_out}")
        for k in range(10, 16): P.e(un(k, v(RX + k), v(YY + (k >> 1))))
        for k in range(4, 8): P.e(f"v_pk_mul_f32 {v(TT+2*k,2)}, {v(TT+2*k,2)}, {v(RX+2*k,2)}")
    for jj in range(2):
        for sg in range(3):
            for i in range(2): P.e(f"v_pk_add_f32 {v(B2+4*jj+2*i,2)}, {v(B2+4*jj+2*i,2)}, {v(R1+8*sg+4*jj+2*i,2)}")
        for i in range(2): P.e(f"v_pk_fma_f32 {v(B2+4*jj+2*i,2)}, {v(B2+4*jj+2*i,2)}, {v(T1,2)}, {v(TT+8+4*jj+2*i,2)}")
        for i in range(2): P.e(f"v_cvt_pk_bf16_f32 {v(O2+2*jj+i)}, {v(B2+4*jj+2*i)}, {v(B2+4*jj+2*i+1)}")
    P.e(f"v_permlane32_swap_b32 {v(O2)}, {v(O2+2)}\n v_permlane32_swap_b32 {v(O2+1)}, {v(O2+3)}")
    P.e(f"buffer_store_dwordx4 {v(O2,4)}, {v(EO)}, {OUT}, {sO[1]} offen {cfg.sc_out}")
    if cfg.stamps: emit_stamps(P)
    if cfg.fixdur:
        P.e(f"""L_fix:
        s_memrealtime s[4:5]
        s_waitcnt lgkmcnt(0)
        s_sub_u32 s4, s4, s100
        s_cmp_lt_i32 s4, {cfg.fixdur}
        s_cbranch_scc1 L_fix""")
    P.e("s_endpgm")

def check_m0(G, init=None):
    flat = []
    def fl(it):
        if isinstance(it, str):
            for l in lines(it): flat.append(Ins(l))
        elif isinstance(it, (list, tuple)):
            for x in it: fl(x)
        elif isinstance(it, Ins): flat.append(it)
    for f in G.f:
        for it in f: fl(it)
    last_off = init
    for it in flat:
        if it.kind == 'salu' and ('s', 'm0') in it.w: last_off = -1024
        if it.kind == 'dma':
            m = re.search(r'offset:(\d+)', it.text); off = int(m.group(1)) if m else 0
            assert last_off is not None and off == last_off + 1024, ("m0 group interleaved", it.text)
            last_off = off

def emit_stamps(P):
    P.e("s_waitcnt vmcnt(0)")
    P.e("s_memtime s[4:5]\n s_memrealtime s[6:7]\n s_waitcnt lgkmcnt(0)")
    n = len(stamp_names)
    for k in range(n):
        P.e(f"s_sub_u32 s3, s{STAMP_REGS[stamp_names[k]]}, {'s100' if cfg.rt else 's98'}"); P.e(f"v_mov_b32 v{200+k}, s3")
    P.e(f"s_sub_u32 s3, {'s6, s100' if cfg.rt else 's4, s98'}\n v_mov_b32 v{200+n}, s3")
    P.e(f"""s_lshl_b32 s3, s2, 2
    s_add_u32 s3, s3, {sW}
    s_lshl_b32 s3, s3, 7
    s_add_u32 s3, s3, {WS_STAMP}
    v_mov_b32 v229, 0
    v_mov_b32 v230, s100
    v_mov_b32 v231, s6
    v_mov_b32 v2, 0
    s_mov_b64 exec, 1""")
    for k in range(8): P.e(f"buffer_store_dwordx4 v[{200+4*k}:{203+4*k}], v2, {WS}, s3 offen offset:{16*k}")
    if cfg.trace:
        P.e(f"""s_mov_b64 exec, -1
        v_subrev_u32 v254, s98, v254
        v_subrev_u32 v255, s98, v255
        s_lshl_b32 s3, s2, 2
        s_add_u32 s3, s3, {sW}
        s_lshl_b32 s3, s3, 9
        s_add_u32 s3, s3, {WS_STAMP + 0x40000}
        v_lshlrev_b32 v2, 2, v1
        buffer_store_dword v254, v2, {WS}, s3 offen
        v_readlane_b32 s4, v253, 0
        v_readlane_b32 s5, v253, 1
        v_readlane_b32 s6, v253, 2
        v_readlane_b32 s7, v253, 3
        s_nop 3
        v_writelane_b32 v255, s4, 60
        v_writelane_b32 v255, s5, 61
        v_writelane_b32 v255, s6, 62
        v_writelane_b32 v255, s7, 63
        buffer_store_dword v255, v2, {WS}, s3 offen offset:256""")

def gen_aux(P0):
    P = P0
    K, V_, SH, GW = "s[40:43]", "s[44:47]", "s[48:51]", "s[52:55]"
    sA = "s68"; sST = "s69"; sUS = "s70"; sLO = "s71"; sHI = "s72"; sC = "s73"; sC2 = "s74"; sTA = ["s56", "s57"]; sTW = ["s58", "s59"]
    VL = 1; T0 = 2; T1 = 3; VZA = 4; VB = 5; VB2 = 6; VM = 7; VX = 8; VR = 9; VS = 11; VW = 12; VWt = [13, 14]; VRB = 16; VQ = 20; VQ2 = 21; VGW = 22
    KP = [48, 58]; VP = [68, 76]; WR_ = [84, 86]; WT = [88, 94]; OO = 100; UV = 108; OUT_ = 124; RB = 160; PF = 24
    TS = 17408
    P.e("s_cmp_lt_u32 s2, 256\n s_cbranch_scc1 L_auxgo\n s_endpgm\n L_auxgo:")
    for reg, off in ((K, 8), (V_, 16), (SH, 24), (GW, 80)): P.e(ldptr(reg, off))
    P.add(srd_hi(K, NQ) + srd_hi(V_, NQ) + srd_hi(SH, 3584) + srd_hi(X, NQ) + srd_hi(GW, 896) + srd_hi(WS, WS_SIZE) + srd_hi(WD, NW))
    P.e(f"""
    s_sub_u32 {sA}, s2, 224
    s_mul_i32 {sSO}, {sA}, {64*896}
    s_mul_i32 {sST}, {sW}, 40960
    s_lshl_b32 {sTA[0]}, {sW}, 7
    s_add_u32 {sTA[1]}, {sTA[0]}, 512
    s_cmp_eq_u32 {sW}, 3
    s_cselect_b32 {sTA[1]}, {NQ}, {sTA[1]}
    s_lshl_b32 {sTW[0]}, {sW}, 9
    s_add_u32 {sTW[1]}, {sTW[0]}, 2048
    v_lshrrev_b32 {v(T0)}, 3, {v(VL)}
    v_and_b32 {v(T1)}, 7, {v(VL)}
    v_mul_u32_u24 {v(VB)}, 896, {v(T0)}
    v_lshl_add_u32 {v(VB)}, {v(T1)}, 4, {v(VB)}
    v_add_u32 {v(VB)}, {sSO}, {v(VB)}
    v_add_u32 {v(VB2)}, 6144, {v(VB)}
    v_add_u32 {v(VM)}, -7168, {v(VB)}
    v_lshlrev_b32 {v(VX)}, 3, {v(VL)}
    s_mul_i32 s3, {sA}, {32*128}
    v_lshlrev_b32 {v(VZA)}, 7, {v(VL)}
    v_add_u32 {v(VZA)}, s3, {v(VZA)}
    v_mov_b32 {v(vARR)}, -16
    v_cmp_gt_u32 vcc, 32, v0
    v_mov_b32 {v(vZERO)}, 0
    v_cndmask_b32 {v(VZA)}, {v(vARR)}, {v(VZA)}, vcc
    v_cmp_eq_u32 vcc, 0, v0
    v_mov_b32 {v(vONE)}, 1
    s_waitcnt lgkmcnt(0)
    v_cndmask_b32 {v(vARR)}, {v(vARR)}, 0, vcc
    s_mov_b32 s34, 256
    s_mov_b32 s35, 0x20000
    """)
    def dset(k, j):
        b = TS * k; tag = "pin%d%d" % (k, j); L = []
        L.append([f"s_add_u32 {sC}, {sTA[k]}, {14336*j}\n s_add_u32 m0, {sST}, {b+1024+2048*j}", Ins(f"buffer_load_dwordx4 {v(VB)}, {K}, {sC} offen lds", tag)])
        L.append(Ins(f"buffer_load_dwordx4 {v(VB2)}, {K}, {sC} offen offset:1024 lds", tag))
        if j == 0:
            L.append([f"s_add_u32 m0, {sST}, {b}", Ins(f"buffer_load_dwordx4 {v(VM)}, {K}, {sC} offen lds", tag)])
            L.append(f"buffer_load_dwordx2 {v(WR_[k],2)}, {v(VX)}, {SH}, {sTW[k]} offen")
        L.append([f"s_add_u32 m0, {sST}, {b+9216+2048*j}", Ins(f"buffer_load_dwordx4 {v(VB)}, {V_}, {sC} offen lds", tag)])
        L.append(Ins(f"buffer_load_dwordx4 {v(VB2)}, {V_}, {sC} offen offset:1024 lds", tag))
        return L
    P.add(dset(0, 0))
    P.e(f"buffer_store_dword {v(vZERO)}, {v(VZA)}, {WS}, 0 offen sc1", tag="zst")
    P.add(dset(0, 1))
    if cfg.aux_head: P.e('s_branch L_aux2\n L_aux2:')
    P.e(f"""
    v_bfe_u32 {v(VR)}, {v(VL)}, 2, 2
    v_lshlrev_b32 {v(VR)}, 7, {v(VR)}
    v_lshrrev_b32 {v(VS)}, 4, {v(VL)}
    v_lshl_add_u32 {v(VR)}, {v(VS)}, 5, {v(VR)}
    v_and_b32 {v(VS)}, 3, {v(VL)}
    v_lshl_add_u32 {v(VR)}, {v(VS)}, 3, {v(VR)}
    v_add_u32 {v(VR)}, {sST}, {v(VR)}
    s_mov_b32 {sLO}, 0xffff
    s_mov_b32 {sMASK}, 0xffff0000
    v_lshlrev_b32 {v(VW)}, 4, {v(T1)}
    v_lshl_add_u32 {v(VW)}, {v(VL)}, 7, {v(VW)}
    v_add_u32 {v(VW)}, {sST}, {v(VW)}
    v_xor_b32 {v(VRB)}, {v(T0)}, {v(T1)}
    v_lshlrev_b32 {v(VRB)}, 4, {v(VRB)}
    v_lshl_add_u32 {v(VRB)}, {v(T0)}, 7, {v(VRB)}
    v_add_u32 {v(VRB)}, {sST}, {v(VRB)}
    v_lshlrev_b32 {v(VGW)}, 4, {v(T1)}
    v_lshl_add_u32 {v(VS)}, {v(T0)}, 12, {v(VGW)}
    s_lshl_b32 s3, {sW}, 18
    s_sub_u32 {sUS}, 31, {sA}
    s_lshl_b32 {sUS}, {sUS}, 7
    s_add_u32 {sUS}, {sUS}, s3
    s_add_u32 {sUS}, {sUS}, {WS_UR}
    """)
    P.add(dset(0, 2))
    zat = [WaitTag('vm', "zst"), f"buffer_atomic_add {v(vONE)}, {v(vARR)}, s[32:35], 0 offen sc1"]
    if not cfg.aux_fl: P.add(zat)
    P.add(dset(0, 3))
    if cfg.hack_aux: P.e("s_sleep 64\n s_sleep 32"); P.add(poll_load("za", None)); P.e("s_branch L_auxdone")
    def reads(k, j):
        b = TS * k; K_ = KP[j & 1]; V2 = VP[j & 1]
        L = [WaitTag('vm', "pin%d%d" % (k, j))]
        L += [f"ds_read_b64_tr_b16 {v(K_+2*m,2)}, {v(VR)} offset:{b+512+2048*j+512*m}" for m in range(5)]
        L += [f"ds_read_b64_tr_b16 {v(V2+2*m,2)}, {v(VR)} offset:{b+9216+2048*j+512*m}" for m in range(4)]
        return L
    def wprep(k):
        W = WR_[k]; T_ = WT[k]
        return lines(f"""v_alignbit_b32 {v(T_)}, {v(W)}, {v(W)}, 16
        v_alignbit_b32 {v(T_+1)}, {v(W+1)}, {v(W+1)}, 16
        v_and_b32 {v(T_+2)}, {sLO}, {v(W)}
        v_bfi_b32 {v(T_+3)}, {sLO}, {v(W+1)}, {v(W)}
        v_and_b32 {v(T_+4)}, {sMASK}, {v(W+1)}""")
    def owrites(k, j):
        return [[f"v_xor_b32 {v(VWt[q&1])}, {16*q}, {v(VW)}", Ins(f"ds_write_b128 {v(VWt[q&1])}, {v(OUT_+4*q,4)} offset:0", "ow")] for q in (7 - 2 * j, 6 - 2 * j)]
    def readback(k): return [f"ds_read_b128 {v(RB+4*q,4)}, {v(VRB)} offset:{1024*q}" for q in range(8)]
    def stores(k): return [[f"s_add_u32 {sC2}, {sUS}, {(k << 20) + 32768*q}", Ins(f"buffer_store_dwordx4 {v(RB+4*q,4)}, {v(VS)}, {WS}, {sC2} offen sc1", "pst")] for q in range(8)]
    wdt = lines(f"""s_lshl_b32 s3, {sA}, 2
    s_add_u32 s3, s3, {sW}
    s_mul_i32 s75, s3, {98*128}
    v_lshlrev_b32 {v(156)}, 7, {v(VL)}
    v_add_u32 {v(157)}, {34*128}, {v(156)}
    buffer_load_dword {v(158)}, {v(156)}, {WD}, s75 offen
    buffer_load_dword {v(159)}, {v(157)}, {WD}, s75 offen""")
    def step(P, k, j, fill):
        if cfg.aux_sleep and cfg.aux_sleep[:2] == (k, j): P.e('s_sleep %d' % cfg.aux_sleep[2])
        if cfg.aux_wd == (k, j): fill = list(fill) + ["\n".join(wdt)]
        K_ = KP[j & 1]; V2 = VP[j & 1]; T_ = WT[k]; fill = list(fill); per = (len(fill) + 9) // 10
        def nx():
            for _ in range(per):
                if fill: P.add(fill.pop(0))
        P.add(WaitRegs(v(V2 + 6, 2)))
        if cfg.stamps: r_ = [60, 62, 64, 66, 94, 78, 80, 92][4 * k + j]; P.e(f"s_memtime s[{r_}:{r_+1}]")
        for h in range(2):
            J = range(4 * h, 4 * h + 4)
            for i in J: P.e(f"v_dot2_f32_bf16 {v(OO+2*(i%4))}, {v(K_+i+2)}, {v(T_+2)}, 0\n v_dot2_f32_bf16 {v(OO+2*(i%4)+1)}, {v(K_+i+2)}, {v(T_)}, 0")
            nx()
            for i in J: P.e(f"v_dot2_f32_bf16 {v(OO+2*(i%4))}, {v(K_+i+1)}, {v(T_+3)}, {v(OO+2*(i%4))}\n v_dot2_f32_bf16 {v(OO+2*(i%4)+1)}, {v(K_+i+1)}, {v(T_+1)}, {v(OO+2*(i%4)+1)}")
            nx()
            for i in J: P.e(f"v_dot2_f32_bf16 {v(OO+2*(i%4))}, {v(K_+i)}, {v(T_+4)}, {v(OO+2*(i%4))}")
            nx()
            for i in J: P.e(f"v_lshlrev_b32 {v(UV+2*(i%4))}, 16, {v(V2+i)}\n v_and_b32 {v(UV+2*(i%4)+1)}, {sMASK}, {v(V2+i)}")
            nx()
            for i in J: P.e(f"v_pk_mul_f32 {v(UV+2*(i%4),2)}, {v(UV+2*(i%4),2)}, {v(OO+2*(i%4),2)}")
            nx()
            for i in J: P.e(f"v_cvt_pk_bf16_f32 {v(OUT_+31-8*j-i)}, {v(UV+2*(i%4)+1)}, {v(UV+2*(i%4))}")
        while fill: nx()
    P.add(reads(0, 0)); P.add(wprep(0))
    if cfg.stamps: P.e("s_waitcnt lgkmcnt(0)\n s_memtime s[86:87]")
    if cfg.aux_fl:
        P.add(zat); P.add(dset(1, 0))
        step(P, 0, 0, dset(1, 1) + reads(0, 1))
        step(P, 0, 1, dset(1, 2) + reads(0, 2) + dset(1, 3))
        step(P, 0, 2, reads(0, 3))
    else:
        step(P, 0, 0, dset(1, 0) + reads(0, 1))
        step(P, 0, 1, dset(1, 1) + reads(0, 2))
        step(P, 0, 2, dset(1, 2) + reads(0, 3))
    P.e(f"s_cmp_eq_u32 {sW}, 3\n s_cbranch_scc1 L_gate")
    Pg = Prog(); Pg.items = list(P.items)
    st0 = stores(0)
    step(P, 0, 3, ([] if cfg.aux_fl else dset(1, 3)) + reads(1, 0) + wprep(1) + owrites(0, 0) + owrites(0, 1))
    P.add(owrites(0, 2) + owrites(0, 3))
    step(P, 1, 0, reads(1, 1) + readback(0))
    step(P, 1, 1, reads(1, 2) + st0[:4] + owrites(1, 0))
    step(P, 1, 2, poll_load("za", None) + reads(1, 3) + st0[4:] + owrites(1, 1))
    step(P, 1, 3, owrites(1, 2))
    P.add(owrites(1, 3)); P.add(readback(1)); P.add(stores(1))
    P.e("s_branch L_auxdone")
    P = Pg; P.e("L_gate:")
    step(P, 0, 3, owrites(0, 0) + owrites(0, 1) + owrites(0, 2))
    P.add(owrites(0, 3)); P.add(readback(0)); P.add(stores(0)); P.add(poll_load("za", None))
    QB = 48; GWB = 112; AC = 104
    def gate(T):
        T.e(f"""s_lshl_b32 {sT0}, {sA}, 2
        s_add_u32 {sT0}, {sT0}, {sW}
        s_mul_i32 {sSO}, {sT0}, {16*896}
        v_mul_u32_u24 {v(VQ)}, {2*896}, {v(T0)}
        v_add_u32 {v(VQ)}, {v(VQ)}, {v(VGW)}""")
        for tau in range(7):
            for rho in range(2): T.e(f"buffer_load_dwordx4 {v(QB+8*tau+4*rho,4)}, {v(VQ)}, {X}, {sSO} offen offset:{896*rho+128*tau}")
            T.e(f"buffer_load_dwordx4 {v(GWB+4*tau,4)}, {v(VGW)}, {GW}, 0 offen offset:{128*tau}")
        for tau in range(7):
            for p in range(4):
                for rho in range(2):
                    d = AC + 2 * (p & 1) + rho
                    T.e(f"v_dot2_f32_bf16 {v(d)}, {v(QB+8*tau+4*rho+p)}, {v(GWB+4*tau+p)}, {'0' if (tau == 0 and p < 2) else v(d)}")
        for rho in range(2): T.e(f"v_add_f32 {v(AC+rho)}, {v(AC+rho)}, {v(AC+2+rho)}")
        for mod in ("row_half_mirror", "quad_perm:[3,2,1,0]", "quad_perm:[1,0,3,2]"):
            for rho in range(2): T.e(f"v_add_f32_dpp {v(AC+rho)}, {v(AC+rho)}, {v(AC+rho)} {mod} row_mask:0xf bank_mask:0xf")
        T.e(f"""s_mov_b32 s56, 0xaaaaaaaa
        s_mov_b32 s57, 0xaaaaaaaa
        v_cndmask_b32 {v(AC)}, {v(AC)}, {v(AC+1)}, s[56:57]
        v_mul_f32 {v(AC)}, 0xbfb8aa3b, {v(AC)}
        v_exp_f32 {v(AC)}, {v(AC)}
        v_lshl_add_u32 {v(T0)}, {v(T0)}, 1, {v(T1)}
        v_add_f32 {v(AC)}, 1.0, {v(AC)}
        v_rcp_f32 {v(AC)}, {v(AC)}
        v_lshlrev_b32 {v(T0)}, 2, {v(T0)}
        v_mov_b32 {v(VZA)}, -16
        v_cmp_gt_u32 vcc, 2, {v(T1)}
        s_lshl_b32 s3, {sT0}, 6
        s_add_u32 s3, s3, {WS_G}
        v_cndmask_b32 {v(T0)}, {v(VZA)}, {v(T0)}, vcc
        buffer_store_dword {v(AC)}, {v(T0)}, {WS}, s3 offen sc1""")
    def watch(T, name, nl, off):
        if cfg.nosync or not cfg.watch: return
        T.e(f"""v_min_u32 {v(24)}, {nl-1}, {v(VL)}
        v_lshlrev_b32 {v(24)}, 7, {v(24)}
        s_mov_b32 {sCNT}, 0
        L_w{name}:
        buffer_load_dword {v(25)}, {v(24)}, {WS}, {off} offen sc1
        s_add_u32 {sCNT}, {sCNT}, 1
        s_cmp_gt_u32 {sCNT}, 256
        s_waitcnt vmcnt(0)
        s_cbranch_scc1 L_x{name}
        v_cmp_gt_u32 vcc, 1, {v(25)}
        s_sleep {cfg.watch}
        s_cbranch_vccnz L_w{name}
        L_x{name}:""")
    gate(P)
    T = Prog(); T.e("L_auxdone:")
    if cfg.stamps: T.e("s_memtime s[88:89]")
    T.e(f"""s_lshl_b32 {sC}, {sA}, 7
    s_add_u32 {sC2}, {sC}, {32*128}
    s_waitcnt vmcnt(0)""")
    T.add(poll_check("za", None))
    T.e("s_barrier")
    if not cfg.nosync: T.e(f"buffer_store_dword {v(vONE)}, {v(vARR)}, {WS}, {sC} offen sc1")
    if cfg.stamps: T.e("s_memtime s[90:91]")
    T.e(f"s_cmp_eq_u32 {sW}, 3\n s_cbranch_scc0 L_g012")
    watch(T, "p", 32, "0")
    T.e("s_branch L_gdone\n L_g012:")
    gate(T)
    T.e("s_waitcnt vmcnt(0)\n L_gdone:\n s_barrier")
    if not cfg.nosync: T.e(f"buffer_store_dword {v(vONE)}, {v(vARR)}, {WS}, {sC2} offen sc1")
    T.e(f"""s_and_b32 s3, s2, 7
    s_mul_i32 s58, s3, {28*128}
    s_lshr_b32 s59, {sA}, 3
    s_cmp_lg_u32 {sW}, 0
    s_cbranch_scc1 L_wn0
    s_add_u32 s60, s58, {768*128}""")
    watch(T, "a", 28, "s60")
    T.e(f"s_add_u32 s60, s58, {256*128}")
    watch(T, "b", 28, "s60")
    T.e(f"""s_branch L_wend
    L_wn0:
    s_cmp_eq_u32 {sW}, 1
    s_cbranch_scc0 L_wn1
    s_lshl_b32 s60, s3, 9
    s_add_u32 s60, s60, {32*128}""")
    watch(T, "g", 4, "s60")
    T.e(f"""s_branch L_wend
    L_wn1:
    s_lshl_b32 s59, s59, 1
    s_add_u32 s59, s59, {sW}
    s_sub_u32 s59, s59, 2
    s_mul_i32 s60, s59, {28*128}
    s_add_u32 s60, s60, {512*128}""")
    watch(T, "y", 28, "s60")
    T.e("L_wend:")
    if cfg.aux_l2:
        g0, ng = cfg.aux_l2
        T.e(f"""v_mul_u32_u24 {v(PF)}, 896, {v(VL)}
        s_lshr_b32 s56, {sA}, 3
        s_mul_i32 s56, s56, {448*896}
        s_and_b32 s57, s2, 7
        s_add_u32 s57, s57, {g0}""")
        for k in range((7 * ng + 3) // 4):
            T.e(f"""s_add_u32 s58, {sW}, {4*k}
            s_min_u32 s58, s58, {7*ng-1}
            s_mul_i32 s59, s58, 37
            s_lshr_b32 s59, s59, 8
            s_mul_i32 s3, s59, 7
            s_sub_u32 s58, s58, s3
            s_add_u32 s59, s59, s58
            s_add_u32 s59, s59, s57
            s_mul_i32 s3, s59, 37
            s_lshr_b32 s3, s3, 8
            s_mul_i32 s3, s3, 7
            s_sub_u32 s59, s59, s3
            s_mul_i32 s59, s59, {64*896}
            s_lshl_b32 s58, s58, 7
            s_add_u32 s59, s59, s58
            s_add_u32 s59, s59, s56
            buffer_load_dword {v(PF+2+k)}, {v(PF)}, {WD}, s59 offen""")
    if cfg.stamps:
        T.e(f"""s_waitcnt vmcnt(0)
        s_memtime s[4:5]
        s_memrealtime s[6:7]
        s_waitcnt lgkmcnt(0)
        s_sub_u32 s3, s86, s98
        v_mov_b32 v200, s3
        s_sub_u32 s3, s88, s98
        v_mov_b32 v201, s3
        s_sub_u32 s3, s90, s98
        v_mov_b32 v202, s3
        s_sub_u32 s3, s4, s98
        v_mov_b32 v203, s3
        v_mov_b32 v204, s100
        v_mov_b32 v205, s6
        s_lshl_b32 s3, s2, 2
        s_add_u32 s3, s3, {sW}
        s_lshl_b32 s3, s3, 7
        s_add_u32 s3, s3, {WS_STAMP}
        v_mov_b32 v2, 0
        s_mov_b64 exec, 1
        buffer_store_dwordx4 v[200:203], v2, {WS}, s3 offen
        buffer_store_dwordx2 v[204:205], v2, {WS}, s3 offen offset:120""")
        for i_, r_ in enumerate([60, 62, 64, 66, 94, 78, 80, 92]): T.e(f"s_sub_u32 s4, s{r_}, s98\n v_mov_b32 v{208+i_}, s4")
        T.e(f"buffer_store_dwordx4 v[208:211], v2, {WS}, s3 offen offset:16\n buffer_store_dwordx4 v[212:215], v2, {WS}, s3 offen offset:32")
    T.e("s_endpgm")
    return Pg, T

def build():
    global slow_paths, stamp_names, trace_names
    slow_paths = []; stamp_names = []; trace_names = []; arr_n[0] = 0; STAMP_REGS['prewait'] = 74; STAMP_REGS['karg'] = 72
    pro = Prog()
    for reg, off in ((X, 0), (WG, 56), (WU, 64), (WD, 72), (SK, 32), (WS, 104), (OUT, 88), (pDBG, 96), (pD, 40)) + ((("s[94:95]", 8), ("s[96:97]", 16)) if cfg.kv_touch is not None else ()): pro.e(ldptr(reg, off))
    if cfg.sync_start:
        pro.e("""s_memrealtime s[100:101]
        s_waitcnt lgkmcnt(0)
        s_add_u32 s3, s100, 400
        s_and_b32 s3, s3, 0xffffff00
        s_and_b32 s99, s2, %d
        s_mul_i32 s99, s99, %d
        s_add_u32 s3, s3, s99
        L_ss:
        s_memrealtime s[100:101]
        s_waitcnt lgkmcnt(0)
        s_sub_u32 s99, s100, s3
        s_cmp_lt_i32 s99, 0
        s_cbranch_scc1 L_ss""" % cfg.skew)
    if cfg.stamps or cfg.fixdur: pro.e("s_memtime s[98:99]\n s_memrealtime s[100:101]")
    pro.e(f"""
    v_lshrrev_b32 v2, 6, v0
    v_and_b32 v1, 63, v0
    s_cmp_ge_u32 s2, 224
    v_readfirstlane_b32 {sW}, v2
    s_cbranch_scc1 L_aux
    """)
    Pm = Prog(); Pm.items = list(pro.items)
    gen_main(Pm)
    main = Pm.finalize(cfg.verbose)
    Px = Prog(); Px.items = list(pro.items); Px.e("L_aux:")
    Pg, Pt = gen_aux(Px)
    ax = Px.finalize(); gx = Pg.finalize(); tx = Pt.finalize()
    cut = lambda lst, lab: lst[[i for i, x in enumerate(lst) if x.kind == 'label' and x.text == lab][0]:]
    axl = cut(ax, "L_aux:")
    if cfg.aux_head:
        k_ = [i for i, x in enumerate(axl) if x.kind == 'label' and x.text == "L_aux2:"][0]
        m_ = [i for i, x in enumerate(main) if x.kind == 'label' and x.text == "L_auxhead:"][0]
        main[m_:m_ + 1] = axl[:k_]; axl = axl[k_:]
    if cfg.warm:
        real = [i for i, x in enumerate(main) if x.kind != 'label']
        for k, n in reversed(list(enumerate(cfg.stub_at[:4]))):
            main[real[n]:real[n]] = [Ins("L_pg%d:" % k), Ins("s_cbranch_execz L_pgback")]
    body = text_of(main) + "\n" + text_of(axl) + "\n" + text_of(cut(gx, "L_gate:")) + "\n" + text_of(tx) + "\n" + emit_slow_paths() + "\nL_codeend:"
    hdr = open("gated_mix__ssm_conv_h3__swiglu_ffn__prompt.s.ref").read().split("; Override launch")[0] if cfg.header else ""
    return f"""{hdr}; @launch grid=(256,1,1) block=(256,1,1) lds={LDS_BYTES}
; TRACE={trace_names}
.amdgcn_target "amdgcn-amd-amdhsa--gfx950"
.text
.globl {KNAME}
{'.p2align 12' if cfg.align else ''}
.p2align 8
.type {KNAME},@function
{KNAME}:
{body}
.section .rodata,"a"
.p2align 6
.amdhsa_kernel {KNAME}
  .amdhsa_next_free_vgpr 512
  .amdhsa_next_free_sgpr 102
  .amdhsa_accum_offset 256
  .amdhsa_group_segment_fixed_size 0
  .amdhsa_kernarg_size 112
  .amdhsa_user_sgpr_count 2
  .amdhsa_user_sgpr_kernarg_segment_ptr 1
  .amdhsa_system_sgpr_workgroup_id_x 1
.end_amdhsa_kernel
"""

if __name__ == "__main__":
    import subprocess
    out = sys.argv[1]
    for kv in sys.argv[2:]:
        k_, v_ = kv.split("=", 1)
        assert hasattr(cfg, k_), k_
        setattr(cfg, k_, eval(v_))
    cfg.pf_n = 1; cfg.pf_last = 100
    vb = cfg.verbose; cfg.verbose = False
    open(out, "w").write(build())
    subprocess.check_call(["clang", "-x", "assembler", "-target", "amdgcn-amd-amdhsa", "-mcpu=gfx950", "-c", out, "-o", "_gen.o"])
    sym = subprocess.check_output(["llvm-objdump", "-t", "_gen.o"], text=True)
    ad = {l.split()[-1]: int(l.split()[0], 16) for l in sym.splitlines() if " L_" in l}
    if cfg.code_pf:
        cfg.pf_last = (ad["L_codeend"] - ad["L_pc"] - 64) // 128
        cfg.pf_n = (cfg.pf_last + 112) // 112
    if cfg.warm:
        cfg.stub_at = [600, 1200, 1800, 2300]
        for it in range(3):
            open(out, "w").write(build())
            subprocess.check_call(["clang", "-x", "assembler", "-target", "amdgcn-amd-amdhsa", "-mcpu=gfx950", "-c", out, "-o", "_gen.o"])
            dis = subprocess.check_output(["llvm-objdump", "-d", "--mcpu=gfx950", "_gen.o"], text=True)
            ins = [(int(l.split("//")[1].split(":")[0], 16), l) for l in dis.splitlines() if "//" in l]
            end = [i for i, (a_, l) in enumerate(ins) if "s_endpgm" in l][1 if cfg.aux_head else 0]
            a0 = []; ns_ = 0
            for a_, l in ins[:end]:
                if "s_cbranch_execz" in l: ns_ += 1
                else: a0.append(a_ - 4 * ns_)
            new_at = []
            for k in range(cfg.pg0, cfg.pg0 + 4):
                c = [i for i, a_ in enumerate(a0) if a_ + 4 * (k - cfg.pg0) + 0x300 >= 4096 * k]
                if c: new_at.append(c[0])
            if new_at == cfg.stub_at: break
            cfg.stub_at = new_at
    cfg.verbose = vb
    open(out, "w").write(build())
    print(out, "code bytes", ad["L_codeend"], "aux at", ad["L_aux"], "stubs", cfg.stub_at, "stamps:", stamp_names)
```

```python
import sys, math, re
from fw import *
import fw
KNAME = "gated_mix__ssm_conv_h3__swiglu_ffn__prompt_kernel"

class Cfg: pass
cfg = Cfg()
cfg.stamps = False; cfg.pass_stamps = False; cfg.verbose = False; cfg.header = True; cfg.fixdur = 0
cfg.PD = 5; cfg.NXR = 8; cfg.pair = 2; cfg.bud = 24
cfg.code_pf = True; cfg.n_pre = 8; cfg.nosync = False
cfg.rot_c = True; cfg.rot_t = True; cfg.rot_g = True
cfg.pl_at = -1; cfg.pc0 = 10; cfg.pc1 = 70; cfg.bud1 = 28; cfg.z_load = 60; cfg.z_chk = 84; cfg.x_touch = 0; cfg.align = True; cfg.tlb = False; cfg.sync_start = False; cfg.skew = (0, 0); cfg.gq_sh = 0; cfg.gq_mul = 1; cfg.wd_touch = -1; cfg.warm = True; cfg.stub_at = []; cfg.late_pos = 50; cfg.p_arr = 9; cfg.pst_at = 80; cfg.aux_sk = False; cfg.p_first = True; cfg.sk_at = -1; cfg.hv_at = 24; cfg.c_rd_end = 66; cfg.sleep = 2
cfg.p_load = 196; cfg.p_chk = 214; cfg.hw0 = 70; cfg.hw1 = 180
cfg.g_arrive = 30; cfg.g_poll = 84; cfg.g_chk = 102; cfg.nh_c = 11; cfg.nh_e = 5; cfg.c_wd = (24, 48, 72, 96); cfg.c_tail_in_g2 = True; cfg.b_rev = False; cfg.hack_nomfma = None; cfg.hack_x = False; cfg.hack_hst = False; cfg.hack_sleep_c = None; cfg.hack_sleep_h = None; cfg.n1 = 2; cfg.blk_c = None; cfg.blk_s3 = 0; cfg.blk_deep = False; cfg.blk_dma = False; cfg.blk_g = 30; cfg.blk_g2 = 0; cfg.blk_list = [(20, 2), (30, 2), (40, 2), (50, 2), (60, 1)]; cfg.hack_sleep = None; cfg.aux_wd = None; cfg.hack_aux = False; cfg.sc_h = 'sc1'; cfg.n_raw = 0; cfg.kv_touch = None; cfg.aux_l2 = None; cfg.hack_wd = False; cfg.hack_p = False; cfg.sc_wd = ''; cfg.sc_g1 = ''; cfg.c_bar = 130; cfg.s3_at = -1; cfg.nwd_t = 5; cfg.g_wd_end = 104
cfg.g2_hpace = 2.1; cfg.q_at = (13, 15, 17, 19); cfg.g2_arrive = 34; cfg.g2_poll = 60; cfg.g2_chk = 74; cfg.g2_pre = 96
cfg.sc_out = ""; cfg.aux_pf = False; cfg.touch = False; cfg.s_early = True; cfg.rt = False; cfg.trace = False; cfg.start_stamps = False

WS_FLAG = 0x0; WS_G = 0x20000; WS_UR = 0x100000; WS_YT = 0x300000; WS_H = 0x500000
WS_STAMP = 0xC00000; WS_SIZE = 0xD00000
NQ = 1835008; NW = 1605632
XB = 4096
SLOT = 28672; PIECE = 7168
HC = 4 * SLOT; CPY = 4160; HCCH = 4 * CPY
UL = HC + 2 * HCCH; UCH = 4608
LDS_BYTES = 163840
YL = HC; QL = UL
assert UL + 2 * UCH <= LDS_BYTES
X, WG, WU, WD, SK, WS, OUT = ["s[%d:%d]" % (b, b + 3) for b in (4, 8, 12, 16, 20, 24, 28)]
pWS = "s[24:25]"; pDBG = "s[32:33]"; pD = "s[34:35]"
sW = "s36"; sT0 = "s37"; sT1 = "s38"; sT2 = "s39"
sCH = ["s%d" % (40 + i) for i in range(7)]
sWC = ["s%d" % (47 + i) for i in range(7)]
sTO = ["s%d" % (54 + i) for i in range(8)]
sHG = sWC
sM0P = "s68"; sXB = "s69"; sWB = "s70"; sDB = "s71"; sHS = "s72"; sHL = ["s73", "s74"]
sNL2E = "s75"; sSO = "s76"; sSO2 = "s77"; sD = "s78"; sI2 = "s79"; sCT = "s80"; sKH = "s81"
sCNT = "s82"; sM = "s83"; sMASK = "s84"; sRG = "s85"
sDG = ["s%d" % (86 + i) for i in range(7)]
sPV = "s93"; sHE = "s70"; sFL = "s67"; sONE = "s66"; sU = "s65"; sPA = "s64"
STAMP_REGS = {'issued': 0, 'setup': 96, 'pdone': 94, 'prewait': 74, 'karg': 72, 'g1start': 34, 'p1end': 12, 'T5': 96, 'T6': 8, 'T7': 10, 'prepoll': 94, 'zpre': 96, 'zpost': 8, 'g1end': 14, 'cstart': 40, 'c_pre': 42, 'c_post': 44, 'g2start': 54, 'g2_pre': 56, 'g2_post': 58, 'g2end': 60}

def v(i, n=1): return "v%d" % i if n == 1 else "v[%d:%d]" % (i, i + n - 1)
def a(i, n=1): return "a%d" % i if n == 1 else "a[%d:%d]" % (i, i + n - 1)
def lines(t): return [l.strip() for l in t.split("\n") if l.strip()]

stamp_names = []
def stamp(name):
    if not cfg.stamps or cfg.stamps == 'min': return []
    if cfg.trace and STAMP_REGS[name] in (94, 96): return []
    stamp_names.append(name); r = STAMP_REGS[name]
    return [Ins("%s s[%d:%d]" % ("s_memrealtime" if cfg.rt else "s_memtime", r, r + 1))]

slow_paths = []
trace_names = []
TR_S = [94, 96, 8, 12]
def add_trace(G, every, name, regs):
    if not cfg.trace: return
    k = 0
    for g in range(0, G.n - 3, every):
        i = len(trace_names); trace_names.append("%s%d" % (name, g)); r = regs[k % len(regs)]; k += 1
        G.f[g].insert(0, Ins("s_memtime s[%d:%d]" % (r, r + 1)))
        G.f[min(g + (3 if G.n != 144 else 6), G.n - 1)].append("v_writelane_b32 v%d, s%d, %d" % (254 + i // 64, r, i % 64))
vARR = 43; vONE = 0; vP8 = 38; vP7 = 39; vPV = 33; vZERO = 44
def poll_text(kind, off):
    if kind == "z": return f"global_load_dword {v(vPV)}, {v(vZERO)}, {pDBG} sc1"
    if kind == "za": return f"global_load_dword {v(vPV)}, {v(vZERO)}, {pDBG} sc1"
    return f"buffer_load_dword {v(vPV)}, {v(vP7 if kind == 'h' else vP8)}, {WS}, {off} offen sc1"
def poll_load(kind, off):
    return [] if cfg.nosync else [poll_text(kind, off)]
def poll_check(kind, off):
    if cfg.nosync: return []
    slow_paths.append((kind, off))
    return [f"v_cmp_gt_u32 vcc, {32 if kind[0] == 'z' else 1}, {v(vPV)}", f"s_cbranch_vccnz L_slow_{kind}\n L_back_{kind}:"]
def emit_slow_paths():
    t = []
    for kind, off in slow_paths:
        t += [f"L_slow_{kind}:", f"s_mov_b32 {sCNT}, 0", f"L_spin_{kind}:", f"s_sleep {cfg.sleep}", poll_text(kind, off),
              f"s_add_u32 {sCNT}, {sCNT}, 1", f"s_cmp_gt_u32 {sCNT}, 0x40000", "s_waitcnt vmcnt(0)", f"s_cbranch_scc1 L_back_{kind}",
              f"v_cmp_gt_u32 vcc, {32 if kind[0] == 'z' else 1}, {v(vPV)}", f"s_cbranch_vccnz L_spin_{kind}"] + ([f"v_writelane_b32 v253, {sCNT}, {'zphy'.index(kind)}"] if cfg.trace and kind != "za" else []) + [f"s_branch L_back_{kind}"]
    return "\n".join(l if l.endswith(":") else "    " + l for l in t)
arr_n = [0]
def arrive(tag, off, bar=True):
    pre = [Ins("s_barrier")] if bar else []
    if cfg.nosync: return pre
    return ([WaitTag('vm', tag)] if bar else []) + pre + [f"buffer_store_dword {v(vONE)}, {v(vARR)}, {WS}, {off} offen sc1"]

def sb(reg): return int(reg[2:reg.index(':')])
def srd_hi(reg, size): return ["s_mov_b32 s%d, 0x%x" % (sb(reg) + 2, size), "s_mov_b32 s%d, 0x20000" % (sb(reg) + 3)]
def ldptr(reg, off): return "s_load_dwordx2 s[%d:%d], s[0:1], %d" % (sb(reg), sb(reg) + 1, off)
def rot_next(r): return [f"s_add_u32 {r}, {r}, 1", f"s_cmp_eq_u32 {r}, 7\n s_cselect_b32 {r}, 0, {r}"]
def mod7(r): return lines(f"s_mul_i32 s3, {r}, 37\n s_lshr_b32 s3, s3, 8\n s_mul_i32 s3, s3, 7\n s_sub_u32 {r}, {r}, s3")

def code_prefetch(P):
    if not cfg.code_pf: return
    P.e(f"""
        s_getpc_b64 s[38:39]
        L_pc:
        s_lshr_b32 s3, s2, 3
        s_lshl_b32 s3, s3, 2
        s_add_u32 s3, s3, {sW}
        s_mul_i32 s3, s3, {cfg.pf_n}
        v_min_u32 v2, {cfg.pf_n-1}, v1
        v_add_u32 v2, s3, v2
        v_min_u32 v2, {cfg.pf_last}, v2
        v_lshlrev_b32 v2, 7, v2
        v_mov_b32 v3, s39
        v_add_co_u32 v2, vcc, s38, v2
        v_addc_co_u32 v3, vcc, 0, v3, vcc
        global_load_dword v255, v[2:3], off
        """)

def gen_main(P):
    PD = cfg.PD; NXR = cfg.NXR; N1 = cfg.n1; CH = 4 * N1; P1 = 28 * N1; NI = 15 - N1
    VL = 1
    VX = [2, 3, 4, 9]; VWg = [5, 6]; VWu = [7, 8]; VSK = [10, 11, 12]; VD = [13, 14, 15, 16]
    XR = [[17, 18, 19, 20], [21, 22, 23, 24]]; WR = [25, 26, 27]; DR = [[28, 29], [30, 31]]
    V16 = 32; T0 = 33; T1 = 34; T2 = 35; T3 = 36; VHZ = 37; CA = 40; CB = 41; VHW = 42; VZ = 44
    ACC = [48, 64, 80, 96]; XRING = 112; ET = 144; PK = [148, 152]; HR = 160; HCP = 176
    assert XRING + 4 * NXR <= ET
    sX = sSO; sQ7 = sSO2; sR = sCNT
    code_prefetch(P)
    P.e(f"""
    s_and_b32 {sX}, s2, 7
    s_lshr_b32 {sT1}, s2, 3
    s_mul_i32 {sQ7}, {sT1}, 37
    s_lshr_b32 {sQ7}, {sQ7}, 8
    s_mul_i32 s3, {sQ7}, 7
    s_sub_u32 {sCT}, {sT1}, s3
    s_lshl_b32 s3, {sX}, 2
    s_add_u32 {sI2}, s3, {sQ7}
    s_and_b32 s3, {sX}, 4
    s_add_u32 {sT2}, s3, {sQ7}
    s_and_b32 {sT0}, {sX}, 3
    s_mul_i32 {sT1}, {sT0}, 7
    s_add_u32 {sT1}, {sT1}, {sCT}
    s_mul_i32 {sM0P}, {sW}, {PIECE}
    s_mul_i32 {sXB}, {sT2}, {256*896}
    s_add_u32 {sXB}, {sXB}, {sM0P}
    s_mul_i32 {sWB}, {sW}, {16*3584}
    s_lshl_b32 s3, {sT1}, 7
    s_add_u32 {sWB}, {sWB}, s3
    s_lshl_b32 {sRG}, {sQ7}, 1
    s_add_u32 {sRG}, {sRG}, {sCT}
    s_lshr_b32 s3, {sX}, 2
    s_add_u32 {sR}, {sRG}, s3
    """)
    P.add(mod7(sR) if cfg.rot_c else f"s_mov_b32 {sR}, 0")
    def ch_tab(i):
        L = lines(f"s_lshl_b32 s3, {sR}, 7\n s_add_u32 {sCH[i]}, s3, {sXB}\n s_mul_i32 s3, {sR}, {64*3584}\n s_add_u32 {sWC[i]}, s3, {sWB}")
        return L + (rot_next(sR) if i < 6 else [])
    def to_tab(t):
        if cfg.rot_t: return lines(f"s_lshl_b32 s3, {sT0}, 1\n s_add_u32 s3, s3, {t}\n s_and_b32 s3, s3, 7\n s_mul_i32 {sTO[t]}, s3, 28672")
        return [f"s_mov_b32 {sTO[t]}, {28672*t}"]
    for i in range(2): P.add(ch_tab(i))
    for t in range(N1): P.add(to_tab(t))
    P.add(srd_hi(X, NQ + XB) + srd_hi(WG, NW) + srd_hi(WU, NW))
    P.e(f"""
    v_lshrrev_b32 {v(T0)}, 3, {v(VL)}
    v_and_b32 {v(T1)}, 7, {v(VL)}
    v_lshrrev_b32 {v(T2)}, 4, {v(VL)}
    s_lshl_b32 s3, {sW}, 2
    v_add_u32 {v(T3)}, s3, {v(T2)}
    v_and_b32 {v(T3)}, 7, {v(T3)}
    v_xor_b32 {v(T3)}, {v(T1)}, {v(T3)}
    v_lshlrev_b32 {v(T3)}, 4, {v(T3)}
    v_mul_u32_u24 {v(VX[0])}, 896, {v(T0)}
    v_add_u32 {v(T3)}, {XB}, {v(T3)}
    v_add_u32 {v(VX[0])}, {v(VX[0])}, {v(T3)}
    v_add_u32 {v(VX[1])}, -1024, {v(VX[0])}
    v_add_u32 {v(VX[2])}, -2048, {v(VX[0])}
    v_and_b32 {v(T2)}, 1, {v(T2)}
    v_lshlrev_b32 {v(T2)}, 1, {v(T2)}
    v_xor_b32 {v(T3)}, {v(T1)}, {v(T2)}
    v_lshlrev_b32 {v(T3)}, 4, {v(T3)}
    v_mul_u32_u24 {v(VWg[0])}, 3584, {v(T0)}
    v_add_u32 {v(VWg[0])}, {v(VWg[0])}, {v(T3)}
    v_add_u32 {v(VWg[1])}, {28672-1024}, {v(VWg[0])}
    v_xor_b32 {v(VWu[0])}, 64, {v(VWg[0])}
    v_add_u32 {v(VWu[1])}, {28672-1024}, {v(VWu[0])}
    """)
    if cfg.start_stamps: P.add(stamp("prewait"))
    P.e("s_waitcnt lgkmcnt(0)")
    if cfg.start_stamps: P.add(stamp("karg")); P.e("s_waitcnt lgkmcnt(0)\n v_mov_b32 v156, s74\n v_mov_b32 v157, s72")
    P.e(f"""
    s_sub_u32 s4, s4, {XB}
    s_subb_u32 s5, s5, 0
    """)
    def dma_item(i):
        sl = (i % 4) * SLOT; tag = "it%d" % i; L = []
        xl = lambda T, c, u, pre="": [pre + f"s_add_u32 {sSO}, {sCH[c]}, {sTO[0 if cfg.hack_x else T]}", Ins(f"buffer_load_dwordx4 {v(VX[u])}, {X}, {sSO} offen offset:{1024*u} {cfg.sc_g1} lds", tag)]
        if i < 7:
            L.append([f"s_add_u32 m0, {sM0P}, {sl+3072}", Ins(f"buffer_load_dwordx4 {v(VWg[0])}, {WG}, {sWC[i]} offen offset:0 {cfg.sc_g1} lds", tag)])
            L.append(Ins(f"buffer_load_dwordx4 {v(VWg[1])}, {WG}, {sWC[i]} offen offset:1024 {cfg.sc_g1} lds", tag))
            L.append([f"s_add_u32 m0, {sM0P}, {sl+5120}", Ins(f"buffer_load_dwordx4 {v(VWu[0])}, {WU}, {sWC[i]} offen offset:0 {cfg.sc_g1} lds", tag)])
            L.append(Ins(f"buffer_load_dwordx4 {v(VWu[1])}, {WU}, {sWC[i]} offen offset:1024 {cfg.sc_g1} lds", tag))
            for rt in range(N1): L.append(xl(rt, i, rt, f"s_add_u32 m0, {sM0P}, {sl}\n" if rt == 0 else ""))
        else:
            T = i - 7 + N1
            for k in range(7): L.append(xl(T, k, k % 4, f"s_add_u32 m0, {sM0P}, {sl+1024*k}\n" if k % 4 == 0 else ""))
        return L
    first = dma_item(0) + dma_item(1)
    P.add(first[:cfg.n_pre]); late_first = first[cfg.n_pre:]
    if not cfg.pass_stamps: P.add(stamp("issued"))
    P.e(f"""
    s_lshl_b32 s3, s2, 2
    s_load_dword {sD}, {pD}, s3
    v_lshlrev_b32 {v(T3)}, 1, {v(T2)}
    v_xor_b32 {v(T3)}, {v(T1)}, {v(T3)}
    v_lshlrev_b32 {v(T3)}, 4, {v(T3)}
    v_mul_u32_u24 {v(VD[0])}, 896, {v(T0)}
    v_add_u32 {v(VD[0])}, {v(VD[0])}, {v(T3)}
    v_add_u32 {v(VX[3])}, -3072, {v(VX[0])}
    v_and_b32 {v(T0)}, 31, {v(VL)}
    v_lshrrev_b32 {v(T1)}, 3, {v(T0)}
    v_mul_u32_u24 {v(T1)}, {PIECE}, {v(T1)}
    v_and_b32 {v(T2)}, 7, {v(T0)}
    v_lshl_add_u32 {v(T1)}, {v(T2)}, 7, {v(T1)}
    v_lshrrev_b32 {v(T2)}, 1, {v(T0)}
    v_and_b32 {v(T2)}, 7, {v(T2)}
    v_lshrrev_b32 {v(T3)}, 5, {v(VL)}
    v_xor_b32 {v(T2)}, {v(T2)}, {v(T3)}
    v_lshl_add_u32 {v(XR[0][0])}, {v(T2)}, 4, {v(T1)}
    """)
    for k in range(1, 4): P.e(f"v_xor_b32 {v(XR[0][k])}, {32*k}, {v(XR[0][0])}")
    for k in range(4): P.e(f"v_add_u32 {v(XR[1][k])}, {3*SLOT}, {v(XR[0][k])}")
    P.e(f"""
    v_bfe_u32 {v(T0)}, {v(VL)}, 2, 2
    v_lshl_add_u32 {v(T1)}, {v(T3)}, 3, {v(T0)}
    v_lshlrev_b32 {v(T1)}, 7, {v(T1)}
    v_bfe_u32 {v(T2)}, {v(VL)}, 1, 1
    v_lshl_add_u32 {v(T1)}, {v(T2)}, 11, {v(T1)}
    v_lshlrev_b32 {v(T2)}, 1, {v(T2)}
    v_lshrrev_b32 {v(T0)}, 1, {v(T0)}
    v_add_u32 {v(T2)}, {v(T2)}, {v(T0)}
    v_xor_b32 {v(T2)}, {sW}, {v(T2)}
    v_lshl_add_u32 {v(T1)}, {v(T2)}, 5, {v(T1)}
    v_bfe_u32 {v(T2)}, {v(VL)}, 4, 1
    v_lshl_add_u32 {v(T1)}, {v(T2)}, 4, {v(T1)}
    v_and_b32 {v(T2)}, 1, {v(VL)}
    v_lshl_add_u32 {v(T1)}, {v(T2)}, 3, {v(T1)}
    v_add_u32 {v(WR[0])}, 3072, {v(T1)}
    v_add_u32 {v(WR[1])}, {2*SLOT}, {v(WR[0])}
    """)
    for i in range(2, 7): P.add(ch_tab(i))
    for t in range(N1, 8): P.add(to_tab(t))
    S = []
    S += lines(f"""
    v_bfe_u32 {v(T1)}, {v(VL)}, 2, 2
    v_lshl_add_u32 {v(T1)}, {v(T3)}, 2, {v(T1)}
    v_lshlrev_b32 {v(T1)}, 7, {v(T1)}
    s_lshr_b32 s3, {sW}, 1
    v_xor_b32 {v(T2)}, s3, {v(T0)}
    v_lshl_add_u32 {v(T1)}, {v(T2)}, 6, {v(T1)}
    v_bfe_u32 {v(T2)}, {v(VL)}, 4, 1
    v_lshl_add_u32 {v(T1)}, {v(T2)}, 5, {v(T1)}
    v_and_b32 {v(T2)}, 3, {v(VL)}
    v_lshl_add_u32 {v(T1)}, {v(T2)}, 3, {v(T1)}
    s_and_b32 s3, {sW}, 1
    s_lshl_b32 s3, s3, 5
    v_xor_b32 {v(T1)}, s3, {v(T1)}
    v_add_u32 {v(DR[0][0])}, {sM0P}, {v(T1)}
    v_xor_b32 {v(DR[0][1])}, 64, {v(DR[0][0])}
    v_add_u32 {v(DR[1][0])}, {2*SLOT}, {v(DR[0][0])}
    v_add_u32 {v(DR[1][1])}, {2*SLOT}, {v(DR[0][1])}
    v_add_u32 {v(VD[1])}, 6144, {v(VD[0])}
    v_add_u32 {v(VD[2])}, {2*6144}, {v(VD[0])}
    v_add_u32 {v(VD[3])}, {3*6144}, {v(VD[0])}
    v_lshlrev_b32 {v(V16)}, 4, {v(VL)}
    s_mul_i32 s3, {sT2}, 28
    s_add_u32 s3, s3, {sT1}
    s_add_u32 s3, s3, 256
    s_lshl_b32 {sFL}, s3, 7
    v_mov_b32 {v(vARR)}, -16
    v_cmp_eq_u32 vcc, 0, v0
    v_min_u32 {v(vP8)}, 7, {v(VL)}
    v_min_u32 {v(vP7)}, 6, {v(VL)}
    v_cndmask_b32 {v(vARR)}, {v(vARR)}, 0, vcc
    v_mov_b32 {v(vONE)}, 1
    s_lshl_b32 s3, {sW}, 3
    v_add_lshl_u32 {v(vP8)}, {v(vP8)}, s3, 7
    s_mul_i32 s3, {sW}, 7
    v_add_lshl_u32 {v(vP7)}, {v(vP7)}, s3, 7
    s_mul_i32 {sWB}, {sT2}, {8*112}
    s_lshl_b32 s3, {sT1}, 2
    s_add_u32 {sWB}, {sWB}, s3
    s_add_u32 {sWB}, {sWB}, {sW}
    s_lshl_b32 {sWB}, {sWB}, 10
    s_add_u32 {sWB}, {sWB}, {WS_H}
    s_mul_i32 {sDB}, {sW}, {448*896}
    s_lshl_b32 s3, {sCT}, 7
    s_add_u32 {sDB}, {sDB}, s3
    s_and_b32 s3, s2, 7
    s_add_u32 {sRG}, {sCT}, s3
    s_and_b32 s3, {sI2}, 3
    s_lshr_b32 s3, s3, {cfg.gq_sh}
    s_mul_i32 s3, s3, {cfg.gq_mul}
    s_add_u32 {sRG}, {sRG}, s3
    """)
    S += mod7(sRG) if cfg.rot_g else [f"s_mov_b32 {sRG}, 0"]
    S += [f"s_mov_b32 {sR}, {sRG}"]
    for i in range(7):
        S += [f"s_mul_i32 s3, {sR}, {0 if cfg.hack_wd else 57344}", f"s_add_u32 {sDG[i]}, s3, {sDB}"] + (rot_next(sR) if i < 6 else [])
    S += srd_hi(WD, NW) + srd_hi(WS, WS_SIZE) + srd_hi(SK, 4096) + srd_hi(OUT, NQ)
    S += lines(f"""
    s_lshr_b32 {sT2}, {sW}, 1
    s_and_b32 {sKH}, {sW}, 1
    s_lshl_b32 {sM}, s2, 1
    s_add_u32 {sM}, {sM}, {sT2}
    s_lshl_b32 s3, {sM}, 12""") + [f"s_add_u32 s20, s20, s3\n s_addc_u32 s21, s21, 0"] + lines(f"""
    s_mov_b32 {sNL2E}, 0xbfb8aa3b
    s_mov_b32 {sMASK}, 0xffff0000
    s_mov_b32 {sONE}, 1
    """)
    S2 = lines(f"""
    s_mov_b32 {sHS}, {sWB}
    s_lshl_b32 {sU}, {sKH}, 11
    v_add_u32 {v(VSK[0])}, {sU}, {v(V16)}
    v_add_u32 {v(VSK[1])}, -16, {v(VSK[0])}
    v_add_u32 {v(VSK[2])}, 1008, {v(VSK[0])}
    s_mul_i32 {sT0}, {sT2}, {HCCH}
    s_add_u32 {sT0}, {sT0}, {HC}
    s_mul_i32 {sT1}, {sT2}, {UCH}
    s_add_u32 {sT1}, {sT1}, {UL}
    s_add_u32 s3, {sU}, {sT0}
    s_add_u32 s3, s3, 32
    v_add_u32 {v(VHW)}, s3, {v(V16)}
    v_and_b32 {v(T0)}, 15, {v(VL)}
    v_lshrrev_b32 {v(T1)}, 4, {v(VL)}
    v_sub_u32 {v(T2)}, 3, {v(T0)}
    v_and_b32 {v(T2)}, 3, {v(T2)}
    v_add3_u32 {v(T3)}, {v(T0)}, {v(T2)}, 1
    v_lshl_add_u32 {v(T3)}, {v(T1)}, 3, {v(T3)}
    v_lshlrev_b32 {v(T3)}, 1, {v(T3)}
    v_mul_u32_u24 {v(T2)}, {CPY}, {v(T2)}
    s_lshl_b32 s3, {sKH}, 8
    s_add_u32 {sT0}, {sT0}, s3
    v_add3_u32 {v(CA)}, {v(T2)}, {v(T3)}, {sT0}
    v_lshlrev_b32 {v(T0)}, 5, {v(T0)}
    v_lshlrev_b32 {v(T1)}, 4, {v(T1)}
    v_sub_u32 {v(T1)}, {v(T1)}, {v(T0)}
    s_add_u32 s3, s3, {sT1}
    s_add_u32 s3, s3, 480
    v_add_u32 {v(CB)}, s3, {v(T1)}
    s_add_u32 {sPA}, {sT1}, {sU}
    s_lshl_b32 s3, {sM}, 12
    s_add_u32 {sU}, {sU}, s3
    v_mov_b32 {v(VZ)}, 0
    v_mov_b32 {v(VZ+1)}, 0
    v_mov_b32 {v(VZ+2)}, 0
    v_mov_b32 {v(VZ+3)}, 0
    v_lshrrev_b32 {v(T0)}, 5, {v(VL)}
    v_mul_u32_u24 {v(T0)}, {UCH}, {v(T0)}
    v_and_b32 {v(T1)}, 31, {v(VL)}
    v_lshl_add_u32 {v(T0)}, {v(T1)}, 4, {v(T0)}
    v_add_u32 {v(T0)}, {UL+4096}, {v(T0)}
    ds_write_b128 {v(T0)}, {v(VZ,4)}
    v_and_b32 {v(T0)}, 15, {v(VL)}
    v_lshrrev_b32 {v(T1)}, 1, {v(T0)}
    v_mul_u32_u24 {v(T1)}, {CPY}, {v(T1)}
    v_and_b32 {v(T0)}, 1, {v(T0)}
    v_lshl_add_u32 {v(T0)}, {v(T0)}, 4, {v(T1)}
    v_add_u32 {v(VHZ)}, {HC}, {v(T0)}
    s_mul_i32 {sT0}, {sI2}, 224
    s_mul_i32 s3, {sW}, 28
    s_add_u32 {sT0}, {sT0}, s3
    s_lshl_b32 {sT0}, {sT0}, 10
    s_add_u32 {sHL[0]}, {sT0}, {WS_H}
    s_add_u32 {sHL[1]}, {sT0}, {WS_H + 112*1024}
    """)
    skl = [f"buffer_load_dwordx4 {v(HR,4)}, {v(VSK[1])}, {SK}, 0 offen", f"buffer_load_dwordx4 {v(HR+4,4)}, {v(VSK[0])}, {SK}, 0 offen",
           f"buffer_load_dwordx4 {v(HR+8,4)}, {v(VSK[2])}, {SK}, 0 offen", f"buffer_load_dwordx4 {v(HR+12,4)}, {v(VSK[0])}, {SK}, 0 offen offset:1024"]

    VRW = 224; VRR = 225; VUR = 226; VYS = 227; VY = [228, 229]; VQ = [230, 231]; VGA = 232
    EWA = 233; ERA = [234, 235, 236]; EWB = 237; ERB = [238, 239, 240]; EY = 241; EQ = [242, 243]; EO = 244
    VG = [14, 15]; OMG = [8, 9]; RA = HC + 8192; sO = ["s62", "s63"]; sQS = "s66"; sYS = "s93"
    S3 = lines(f"""
    s_lshl_b32 s3, {sW}, 12
    s_add_u32 s3, s3, {HC}
    v_add_u32 {v(VRW)}, s3, {v(V16)}
    v_xor_b32 {v(VRR)}, 4096, {v(VRW)}
    v_and_b32 {v(T3)}, 15, {v(VL)}
    v_lshlrev_b32 {v(T3)}, 5, {v(T3)}
    v_lshrrev_b32 {v(T2)}, 4, {v(VL)}
    v_lshl_add_u32 {v(T3)}, {v(T2)}, 3, {v(T3)}
    s_lshr_b32 s3, {sW}, 1
    s_mul_i32 s3, s3, {UCH}
    s_lshl_b32 {sT0}, {sKH}, 11
    s_sub_u32 s3, s3, {sT0}
    s_add_u32 s3, s3, {UL+504+2048}
    v_sub_u32 {v(VUR)}, s3, {v(T3)}
    v_and_b32 {v(T1)}, 3, {v(VL)}
    v_lshlrev_b32 {v(T1)}, 4, {v(T1)}
    v_bfe_u32 {v(T3)}, {v(VL)}, 2, 2
    v_lshl_add_u32 {v(T1)}, {v(T3)}, 7, {v(T1)}
    v_bfe_u32 {v(T3)}, {v(VL)}, 4, 1
    v_lshl_add_u32 {v(T1)}, {v(T3)}, 9, {v(T1)}
    v_lshrrev_b32 {v(T3)}, 5, {v(VL)}
    v_lshl_add_u32 {v(VYS)}, {v(T3)}, 6, {v(T1)}
    """)
    S3_marks = [0, len(S3)]
    S3 += lines(f"""
    v_lshrrev_b32 {v(T1)}, 3, {v(VL)}
    v_and_b32 {v(T2)}, 7, {v(VL)}
    v_lshlrev_b32 {v(T3)}, 12, {v(T1)}
    v_lshl_add_u32 {v(VY[0])}, {v(T2)}, 4, {v(T3)}
    v_add_u32 {v(VY[1])}, {32768-1024}, {v(VY[0])}
    v_lshrrev_b32 {v(T3)}, 4, {v(VL)}
    v_xor_b32 {v(T2)}, {v(T2)}, {v(T3)}
    v_lshlrev_b32 {v(T2)}, 4, {v(T2)}
    v_mul_u32_u24 {v(T1)}, 896, {v(T1)}
    v_add_u32 {v(VQ[0])}, {v(T1)}, {v(T2)}
    v_xor_b32 {v(T2)}, 64, {v(T2)}
    v_add_u32 {v(T1)}, {7168-1024}, {v(T1)}
    v_add_u32 {v(VQ[1])}, {v(T1)}, {v(T2)}
    s_lshl_b32 s3, {sI2}, 8
    s_add_u32 s3, s3, {WS_G}
    v_and_b32 {v(T1)}, 31, {v(VL)}
    v_lshl_add_u32 {v(VGA)}, {v(T1)}, 2, s3
    s_lshl_b32 s3, {sI2}, 2
    s_add_u32 s3, s3, {sW}
    s_mul_i32 s3, s3, {16*896}
    s_lshl_b32 {sQS}, {sCT}, 7
    s_add_u32 {sQS}, {sQS}, s3
    s_add_u32 {sQS}, {sQS}, {XB}
    """)
    ea = [f"s_mul_i32 {sT0}, {sW}, 6144", f"s_add_u32 s3, {sT0}, {RA}", f"v_add_u32 {v(EWA)}, s3, {v(V16)}", f"v_add_u32 {v(EWB)}, {sM0P}, {v(V16)}"]
    for sg in range(1, 4):
        ea += [f"s_xor_b32 {sT0}, {sW}, {sg}", f"s_mul_i32 s3, {sT0}, 6144", f"s_add_u32 s3, s3, {RA + 2048*(sg-1)}", f"v_add_u32 {v(ERA[sg-1])}, s3, {v(V16)}",
               f"s_mul_i32 s3, {sT0}, {PIECE}", f"s_add_u32 s3, s3, {(sg-1)*SLOT}", f"v_add_u32 {v(ERB[sg-1])}, s3, {v(V16)}"]
    ea += lines(f"""v_bfe_u32 {v(T1)}, {v(VL)}, 2, 2
    v_lshrrev_b32 {v(T2)}, 5, {v(VL)}
    v_lshl_add_u32 {v(T1)}, {v(T2)}, 2, {v(T1)}
    v_lshlrev_b32 {v(T1)}, 7, {v(T1)}
    v_bfe_u32 {v(T3)}, {v(VL)}, 1, 1
    v_lshl_add_u32 {v(T1)}, {v(T3)}, 6, {v(T1)}
    v_bfe_u32 {v(T3)}, {v(VL)}, 4, 1
    v_lshl_add_u32 {v(T1)}, {v(T3)}, 4, {v(T1)}
    v_and_b32 {v(T3)}, 1, {v(VL)}
    v_lshl_add_u32 {v(T1)}, {v(T3)}, 3, {v(T1)}
    s_lshl_b32 s3, {sW}, 11
    s_add_u32 s3, s3, {YL}
    v_add_u32 {v(EY)}, s3, {v(T1)}
    v_and_b32 {v(T1)}, 31, {v(VL)}
    v_bfe_u32 {v(T3)}, {v(VL)}, 1, 3
    s_lshl_b32 s3, {sW}, 1
    v_xor_b32 {v(T3)}, s3, {v(T3)}
    v_lshlrev_b32 {v(T3)}, 4, {v(T3)}
    v_lshl_add_u32 {v(T3)}, {v(T1)}, 7, {v(T3)}
    v_lshl_add_u32 {v(T3)}, {v(T2)}, 3, {v(T3)}
    v_add_u32 {v(EQ[0])}, {QL}, {v(T3)}
    v_xor_b32 {v(EQ[1])}, 16, {v(EQ[0])}
    v_mul_u32_u24 {v(T1)}, 896, {v(T1)}
    v_lshl_add_u32 {v(EO)}, {v(T2)}, 4, {v(T1)}
    s_mul_i32 {sO[0]}, {sI2}, {64*896}
    s_lshl_b32 s3, {sCT}, 2
    s_add_u32 s3, s3, {sW}
    s_lshl_b32 {sT0}, s3, 5
    s_add_u32 {sO[0]}, {sO[0]}, {sT0}
    s_add_u32 {sO[1]}, {sO[0]}, {32*896}
    s_lshl_b32 s3, s3, 16
    s_lshl_b32 {sYS}, {sI2}, 7
    s_add_u32 {sYS}, {sYS}, s3
    s_add_u32 {sYS}, {sYS}, {WS_YT}""")
    S3_marks.append(len(S3))
    S3 += ea + [f"v_add_u32 {v(245)}, 57344, {v(EWB)}"]
    NG = 224
    G = Gaps(NG)
    def item_start(i): return CH * i if i <= 7 else P1 + 28 * (i - 7)
    gT = lambda T: item_start(T + 7 - N1)
    def xread(g):
        if g < P1: c = g // CH; ks = (g % CH) // N1; unit = g % N1; it = c
        else: it = 7 + (g - P1) // 28; k = (g - P1) % 28; ks = k % 4; unit = k // 4
        sl = it % 4; hi = 1 if sl >= 3 else 0
        off = (sl - 3 * hi) * SLOT + 1024 * unit
        return f"ds_read_b128 {v(XRING+4*(g%NXR),4)}, {v(XR[hi][ks])} offset:{off}"
    def wread(c, ks):
        sl = c % 4; var = sl // 2; off = (sl - 2 * var) * SLOT + PIECE * ks; f = 4 * (4 * c + ks)
        return [f"ds_read_b64_tr_b16 {a(f+2*rd,2)}, {v(WR[var])} offset:{off+512*rd}" for rd in range(2)]
    tile_acc = {0: 0, 1: 1, 2: 2, 3: 3, 4: 0, 5: 1, 6: 2, 7: 3}
    for g in range(NG):
        if g < P1: c = g // CH; ks = 4 * c + (g % CH) // N1; T = g % N1
        else: T = N1 + (g - P1) // 28; ks = (g - P1) % 28
        A = v(ACC[tile_acc[T]], 16)
        G.m[g] = f"v_mfma_f32_32x32x16_bf16 {A}, {a(4*ks,4)}, {v(XRING+4*(g%NXR),4)}, {'0' if ks == 0 else A}"
    if cfg.hack_nomfma:
        for g in range(*cfg.hack_nomfma): G.m[g] = 's_nop 7'
    pre = []
    def at(g, item):
        if g < 0: pre.append(item)
        else: G.put(g, item)
    gB = lambda i: item_start(i) - PD - 1
    if not cfg.hack_p: G.put(cfg.p_load, poll_load("p", "0"))
    G.put(cfg.p_chk, [stamp("prepoll") if not (cfg.pass_stamps or cfg.start_stamps) else [], [] if cfg.hack_p else poll_check("p", "0"), [] if cfg.p_chk in (gB(NI - 2), gB(NI - 1)) else Ins("s_barrier")])
    for i in range(NI):
        at(gB(i), [WaitTag('vm', "it%d" % i), Ins("s_barrier")])
    assert cfg.z_chk < cfg.p_load
    G.put(cfg.z_load, poll_load("z", None))
    G.f[cfg.z_chk].insert(0, [stamp("zpre") if not (cfg.pass_stamps or cfg.start_stamps) else [], poll_check("z", None), stamp("zpost") if not (cfg.pass_stamps or cfg.start_stamps) else []])
    for g in range(NG):
        if g < P1 and g % N1 == 0:
            for s_ in wread(g // CH, (g % CH) // N1): at(g - PD - 1, s_)
        at(g - PD - 1, xread(g))
    cb = cfg.blk_c; deep = cfg.blk_deep and cb is not None
    for c in range(7):
        if deep:
            if c < cb: G.spread(dma_item(c + 2), max(gB(c) + 1, 0), gB(c + 1) + 1)
            if c > cb: G.put(12 * c, Ins("s_barrier")); G.spread(dma_item(c + 3), 12 * c + 1, 12 * c + 12)
        elif c != cb or not cfg.blk_dma: G.spread(dma_item(c + 2), max(gB(c) + 1, 0), gB(c + 1) + 1)
    for T in range(N1, 8): G.put(gT(T), ([WaitTag('lgkm', "hcw")] if T == 7 else []) + [Ins("s_barrier")])
    if deep: G.spread(dma_item(10), gT(3) + 1, gT(3) + 20)
    else: G.spread(dma_item(9) + dma_item(10), gB(7) + 1, gB(8) + 1)
    for i in range(11, NI): G.spread(dma_item(i), item_start(i - 3) + 1, item_start(i - 3) + 20)
    if cfg.wd_touch >= 0: G.put(cfg.wd_touch, f"buffer_load_dword {v(202)}, {v(200)}, {WD}, 0 offen {cfg.sc_wd}")
    for g_, n_ in (cfg.hack_sleep or []): G.put(g_, "s_sleep %d" % n_)
    if cfg.sk_at >= 0: G.spread(skl, cfg.sk_at, cfg.sk_at + 8)
    hv = []
    for rho in range(2):
        R = HR + 8 * rho; C_ = HCP + 12 * rho
        for k in range(4): hv.append(f"v_alignbit_b32 {v(C_+k)}, {v(R+4+k)}, {v(R+3+k)}, 16")
        for k in range(4): hv.append(f"v_mov_b32 {v(C_+4+k)}, {v(R+3+k)}")
        for k in range(4): hv.append(f"v_alignbit_b32 {v(C_+8+k)}, {v(R+3+k)}, {v(R+2+k)}, 16")
    hw = [Ins(f"ds_write_b128 {v(VHZ)}, {v(VZ,4)}", "hcw")]
    for rho in range(2):
        R = HR + 8 * rho; C_ = HCP + 12 * rho
        for cpy, src in enumerate((R + 4, C_, C_ + 4, C_ + 8)):
            hw.append(Ins(f"ds_write_b128 {v(VHW)}, {v(src,4)} offset:{cpy*CPY+1024*rho}", "hcw"))
    def epi(T, packed=False):
        A = ACC[tile_acc[T]]; Pk = PK[T % 2]; L = []
        for grp in range(2):
            g_ = A + 8 * grp; u_ = g_ + 4; E = ET
            if packed:
                E = ET if grp == 0 else HR
                L += [f"v_mul_f32 {v(E+i)}, {sNL2E}, {v(g_+i)}" for i in range(4)]
                L += [f"v_exp_f32 {v(E+i)}, {v(E+i)}" for i in range(4)]
                L += [f"v_pk_mul_f32 {v(u_+2*i,2)}, {v(g_+2*i,2)}, {v(u_+2*i,2)}" for i in range(2)]
                L += [f"v_pk_add_f32 {v(E+2*i,2)}, {v(E+2*i,2)}, 1.0 op_sel_hi:[1,0]" for i in range(2)]
                L += [f"v_rcp_f32 {v(E+i)}, {v(E+i)}" for i in range(4)]
                L += [f"v_pk_mul_f32 {v(u_+2*i,2)}, {v(u_+2*i,2)}, {v(E+2*i,2)}" for i in range(2)]
            else:
                L += [f"v_mul_f32 {v(E+i)}, {sNL2E}, {v(g_+i)}" for i in range(4)]
                L += [f"v_exp_f32 {v(E+i)}, {v(E+i)}" for i in range(4)]
                L += [f"v_mul_f32 {v(u_+i)}, {v(g_+i)}, {v(u_+i)}" for i in range(2)]
                L += [f"v_add_f32 {v(E+i)}, 1.0, {v(E+i)}" for i in range(4)]
                L += [f"v_rcp_f32 {v(E+i)}, {v(E+i)}" for i in range(4)]
                L += [f"v_mul_f32 {v(u_+i)}, {v(g_+i)}, {v(u_+i)}" for i in range(2, 4)]
                L += [f"v_mul_f32 {v(u_+i)}, {v(u_+i)}, {v(E+i)}" for i in range(4)]
            L += [f"v_cvt_pk_bf16_f32 {v(Pk+2*grp+i)}, {v(u_+2*i)}, {v(u_+2*i+1)}" for i in range(2)]
        L.append(f"s_lshl2_add_u32 {sSO2}, {sTO[T]}, {sHS}")
        if cfg.hack_hst and T < 7: return L
        L.append(Ins(f"buffer_store_dwordx4 {v(Pk,4)}, {v(V16)}, {WS}, {sSO2} offen {cfg.sc_h}", "hst"))
        return L
    page_slot = [(T + 7 - N1) % 4 for T in (4, 5, 6, 7)]
    def wd_page(n): return n if n < 21 else (n - 21 if n < 28 else (n - 7 if n < 35 else (n - 28 if n < 49 else n - 49)))
    def wd_prev(n): return n - 21 if 21 <= n < 28 else (n - 28 if n >= 35 else None)
    def wd_dma(n0, n1):
        L = []; n = n0
        while n < n1:
            p = wd_page(n); cnt = min(4, n1 - n, 7 - p % 7, 8 - n % 8)
            lds = page_slot[p // 7] * SLOT + 1024 * (p % 7)
            for k in range(cnt):
                it = [Ins(f"buffer_load_dwordx4 {v(VD[k])}, {WD}, {sSO} offen offset:{1024*k} {cfg.sc_wd} lds", "wd%d" % (n + k))]
                if wd_prev(n + k) is not None: it = [WaitTag('lgkm', "wr%d" % wd_prev(n + k))] + it
                if k == 0: L.append(f"s_add_u32 m0, {sM0P}, {lds}\n s_add_u32 {sSO}, {sDG[n >> 3]}, {7168*(n % 8)}")
                L.append(it)
            n += cnt
        return L
    def wd_read(n, dst):
        p = wd_page(n); sl = page_slot[p // 7]; hi = 1 if sl >= 2 else 0
        off = (sl - 2 * hi) * SLOT + 1024 * (p % 7)
        return [[WaitTag('vm', "wd%d" % n)] * (dt == 0 and not 28 <= n < 28 + cfg.n_raw) + [Ins(f"ds_read_b64_tr_b16 {dst(dt)}, {v(DR[hi][dt])} offset:{off}", "wr%d" % n)] for dt in range(2)]
    WD1 = 112
    NR = cfg.n_raw; RAW0 = 224 - 4 * NR; EWH = 245
    def raw_reg(n): return RAW0 + 4 * (NR - 1 - (n - 28))
    def raw_loads(n0, n1):
        L = []; n = n0
        while n < n1:
            cnt = min(4, n1 - n, 8 - n % 8)
            L.append(f"s_add_u32 {sSO}, {sDG[n >> 3]}, {7168*(n % 8)}")
            L += [f"buffer_load_dwordx4 {v(raw_reg(n+k),4)}, {v(VD[k])}, {WD}, {sSO} offen offset:{1024*k}" for k in range(cnt)]
            n += cnt
        return L
    def raw_write(n):
        p = wd_page(n); off = page_slot[p // 7] * SLOT + 1024 * (p % 7)
        it = [Ins(f"ds_write_b128 {v(EWB if off < 57344 else EWH)}, {v(raw_reg(n),4)} offset:{off if off < 57344 else off - 57344}", "ww%d" % n)]
        return [it]
    def fill_units(n0, n1):
        m = min(max(28 + NR, n0), n1)
        return [x for n in range(n0, m) for x in raw_write(n)] + wd_dma(m, n1)
    def wd1(n): return lambda dt: a(WD1 + 8 * (n >> 1) + 4 * dt + 2 * (n & 1), 2)
    def wd_reads(n0, n1): return [x for n in range(n0, n1) for x in wd_read(n, wd1(n))]
    if cfg.blk_c is None:
        if cfg.s3_at >= 0: l3_ = G.pour(S3, cfg.s3_at, cfg.hv_at, cfg.bud1); assert l3_ < 80
        lh = G.pour(hv, cfg.hv_at, max(P1 - 4, cfg.hv_at + 24), cfg.bud1 if cfg.hv_at < 70 else 20); assert lh < cfg.hw0
        G.spread(hw, cfg.hw0, cfg.hw1)
    else:
        n3 = len(S3) - (S3_marks + [len(S3)])[3 - cfg.blk_s3]; S3b = S3[len(S3) - n3:]; del S3[len(S3) - n3:]
        work = [hw[0], hv[0:4], hw[1], hv[4:8], hw[2], hv[8:12], hw[3], hv[12:16], hw[4], hv[16:20], hw[5], hv[20:24], hw[6], S3b[:5], hw[7], S3b[5:10], hw[8], S3b[10:]]
        d_ = dma_item(cfg.blk_c + 2) if cfg.blk_dma else []; blk = []
        if deep:
            G.spread(d_[:4], gB(cb) + 1, 12 * cb); d_ = d_[4:] + dma_item(cb + 3); blk = [Ins("s_barrier")]
        step_ = max(len(work) // (len(d_) + 1), 1)
        for j, it in enumerate(work):
            if j % step_ == 0 and d_: blk.append(d_.pop(0))
            blk.append(it)
        if cfg.blk_list:
            done_ = 0
            for g_, nw_ in cfg.blk_list:
                k_ = min(len(blk), done_ + 2 * nw_) if (g_, nw_) != cfg.blk_list[-1] else len(blk)
                G.put(g_, blk[done_:k_]); done_ = k_
        elif cfg.blk_g2: G.put(cfg.blk_g, blk[:9]); G.put(cfg.blk_g2, blk[9:])
        else: G.put(12 * cb if deep else (gB(cb) + 1 if cfg.blk_dma else cfg.blk_g), blk + d_)
    if NR:
        r0, r1, r2 = 28, 28 + min(NR, 6), 28 + min(NR, 6 + (NR - 6 + 1) // 2)
        assert cfg.hw1 <= gT(5) + 8 or NR <= 6
        G.spread(raw_loads(r0, r1), gT(4) + 21 - 12, gT(5))
        G.spread(wd_dma(0, 7), gT(5) + 1, gT(5) + 15); G.spread(raw_loads(r1, r2), gT(5) + 15, gT(6))
        G.spread(wd_dma(7, 14), gT(6) + 1, gT(6) + 15); G.spread(raw_loads(r2, 28 + NR), gT(6) + 15, gT(7))
    else:
        G.spread(wd_dma(0, 7), gT(5) + 1, gT(5) + 22)
        G.spread(wd_dma(7, 14), gT(6) + 1, gT(6) + 20)
    UD = ([f"s_mov_b32 m0, {sPA}\n s_add_u32 {sSO}, {sU}, {WS_UR if not cfg.hack_p else 0x900000}"] + [Ins(f"buffer_load_dwordx4 {v(V16)}, {WS}, {sSO} offen offset:{1024*j} sc1 lds", "u") for j in range(2)])
    G.spread(wd_reads(0, 7), gB(NI - 1) + 2, gT(7) + 12)
    if cfg.p_chk > gT(7) + 8:
        G.spread(wd_dma(14, 21), gT(7) + 1, cfg.p_chk)
        G.put(cfg.p_chk + 1, UD)
        G.spread(wd_dma(21, 28), cfg.p_chk + 2, NG - 1)
    else:
        assert cfg.p_chk in (gB(NI - 2), gB(NI - 1))
        G.put(cfg.p_chk + 4, UD)
        G.spread(wd_dma(14, 28), gT(7) + 1, NG - 1)
    bounds = [P1 + 2 + (NG - P1 - 4) * k // 7 for k in range(8)]
    last = 0
    for T in range(7):
        g0 = max(bounds[T], (P1 if T < N1 else gT(T + 1)) + 2, last)
        last = G.pour(epi(T), g0, max(bounds[T + 1], g0 + 1), cfg.bud)
        nxt = [t for t in range(T + 1, 8) if tile_acc[t] == tile_acc[T]]
        if nxt: assert last < gT(nxt[0]), (T, last)
    check_m0(G)
    SS = S + S2; k0 = len(SS) * min(cfg.late_pos, 100) // 100
    touch = []
    if cfg.x_touch:
        touch = lines(f"""v_min_u32 {v(200)}, {8*cfg.x_touch-1}, {v(VL)}
        v_lshrrev_b32 {v(201)}, 3, {v(200)}
        s_lshl_b32 s3, {sFQ}, 1
        s_add_u32 s3, s3, 3
        v_add_u32 {v(201)}, {'s3' if cfg.rot_t else '3'}, {v(201)}
        v_and_b32 {v(201)}, 7, {v(201)}
        v_mul_u32_u24 {v(201)}, 28672, {v(201)}
        v_and_b32 {v(200)}, 7, {v(200)}
        v_mul_u32_u24 {v(200)}, 896, {v(200)}
        v_add3_u32 {v(200)}, {v(200)}, {v(201)}, {sXBc}
        buffer_load_dword {v(202)}, {v(200)}, {X}, {sCH[0]} offen""")
    kvt = lines(f"""s_lshl_b32 s3, s2, 2
    s_add_u32 s3, s3, {sW}
    s_lshl_b32 s3, s3, 4
    v_min_u32 {v(203)}, 15, {v(VL)}
    v_add_lshl_u32 {v(203)}, {v(203)}, s3, 7
    global_load_dword {v(204)}, {v(203)}, s[94:95]
    global_load_dword {v(205)}, {v(203)}, s[96:97]""")
    if cfg.kv_touch == 0: P.add(kvt)
    P.add(SS[:k0])
    if cfg.late_pos <= 100: P.add(late_first)
    P.add(SS[k0:])
    if cfg.kv_touch == 1: P.add(kvt)
    if cfg.s3_at < 0: P.add(S3)
    if cfg.late_pos > 100: P.add(late_first)
    if cfg.kv_touch == 2: P.add(kvt)
    if cfg.trace: P.e('v_mov_b32 v253, 0')
    P.e(f"""s_lshl_b32 s3, s2, 2
    s_add_u32 s3, s3, {sW}
    s_mul_i32 s3, s3, 14
    v_min_u32 {v(200)}, 13, {v(VL)}
    v_add_lshl_u32 {v(200)}, {v(200)}, s3, 7""")
    if cfg.sk_at < 0: P.add(skl)
    if cfg.tlb:
        P.e(f"""v_min_u32 {v(203)}, 12, {v(VL)}
        v_lshlrev_b32 {v(203)}, 20, {v(203)}
        v_add_u32 {v(203)}, 0x1f000, {v(203)}
        buffer_load_dword {v(204)}, {v(203)}, {WS}, 0 offen
        buffer_load_dword {v(205)}, {v(VZ)}, {OUT}, 0 offen
        buffer_load_dword {v(206)}, {v(VZ)}, {WD}, 0 offen""")
    if cfg.wd_touch == -2: P.e(f"buffer_load_dword {v(202)}, {v(200)}, {WD}, 0 offen {cfg.sc_wd}")
    if cfg.warm and cfg.stub_at:
        P.e("s_mov_b64 exec, 0")
        for k in range(min(4, len(cfg.stub_at))): P.e(f"s_cmp_eq_u32 {sW}, {k}\n s_cbranch_scc1 L_pg{k}")
        P.e("L_pgback:\n s_mov_b64 exec, -1")
    if cfg.start_stamps: P.add(stamp("setup"))
    P.e(f"""s_waitcnt lgkmcnt(0)
    s_lshl_b32 s3, {sD}, 16
    s_and_b32 {sD}, {sD}, 0xffff0000
    s_cmp_lt_u32 {sW}, 2
    s_cselect_b32 {sD}, s3, {sD}""")
    P.add(pre)
    P.add(stamp("g1start"))
    G.put(P1 - 1, stamp("p1end"))
    if cfg.pass_stamps:
        for T in (5, 6, 7): G.put(gT(T) - 1, stamp("T%d" % T))
    add_trace(G, 6, 'g', [94, 96])
    G.emit(P, cfg.pair)
    if cfg.verbose: print("G1 gap costs", G.costs())
    if cfg.start_stamps: P.e("v_readfirstlane_b32 s8, v156\n v_readfirstlane_b32 s10, v157"); STAMP_REGS['prewait'] = 8; STAMP_REGS['karg'] = 10
    P.add(stamp("g1end"))
    CACC = 48
    def cA(buf, a_): return (0 if buf == 0 else 64) + 4 * a_
    def cB(buf, b_):
        i = 32 + 4 * b_ if buf == 0 else 96 + 4 * b_
        return i if i < 112 else 224 + (i - 112)
    def crA(st, k): return [f"ds_read_b64 {a(cA(st&1,k)+2*rd,2)}, {v(CA)} offset:{512*k+64*st+8*rd}" for rd in range(2)]
    def crB(st, k): return [f"ds_read_b128 {a(cB(st&1,k),4)}, {v(CB)} offset:{64*st+512*(7-k)}"]
    def creads(st): return [x for k in range(8) for x in crB(st, k) + crA(st, k)]
    e7 = epi(7, True); ra = [x for k in range(8) for x in crA(0, k)]
    P.add(ra[:10]); k = 10
    for j, it in enumerate(e7):
        P.add(it)
        if j % 6 == 5 and k < 16: P.add(ra[k]); k += 1
    P.add(ra[k:])
    P.vmwait("u"); P.e("s_barrier")
    for k in range(8): P.add(crB(0, k))
    hg = [f"s_lshr_b32 s3, {sI2}, 2", "s_mul_i32 s3, s3, 28", f"s_add_u32 s3, s3, 256", f"s_lshl_b32 s3, s3, 7", f"v_add_u32 {v(vP7)}, s3, {v(vP7)}",
          f"s_add_u32 s3, {sI2}, 32", "s_lshl_b32 s3, s3, 7", f"v_mov_b32 {v(T1)}, s3", f"v_cmp_gt_u32 vcc, 7, {v(VL)}", f"s_mov_b32 {sPA}, 0", "s_nop 0",
          f"v_cndmask_b32 {v(vP7)}, {v(T1)}, {v(vP7)}, vcc",
          f"s_lshl_b32 {sRG}, {sRG}, 12", f"s_add_u32 {sXB}, {sHL[0]}, {sRG}", f"s_add_u32 {sHE}, {sHL[0]}, {28*1024}"]
    d0 = fill_units(28, 35)
    npre = 0 if NR else 3
    P.add(d0[:npre])
    P.add(stamp("cstart"))
    C = Gaps(144)
    pairs = [(t, a_) for t in range(8) for a_ in range(t + 1)]
    for st in range(4):
        for j, (t, a_) in enumerate(pairs):
            A = v(CACC + 4 * t, 4)
            C.m[36 * st + j] = f"v_mfma_f32_16x16x32_bf16 {A}, {a(cA(st&1,a_),4)}, {a(cB(st&1,t-a_),4)}, {'0' if (st == 0 and a_ == 0) else A}"
        if st < 3: C.spread(creads(st + 1), 36 * st + 1, 36 * st + 33)
    HRING = 96; NHR = 32
    horder = [(0, ks) for ks in range(28)] + [(1, ks) for ks in (list(range(14, 28)) + list(range(14)) if cfg.b_rev else range(28))]
    def hload(n):
        st, ks = horder[n]; L = []
        if n == 28: L += [f"s_add_u32 {sXB}, {sHL[1]}, {sRG}", f"s_add_u32 {sHE}, {sHL[1]}, {28*1024}"]
        elif n > 0 and ks % 4 == 0: L += [f"s_add_u32 {sXB}, {sXB}, 4096", f"s_cmp_eq_u32 {sXB}, {sHE}\n s_cselect_b32 {sXB}, {sHL[st]}, {sXB}"]
        L.append(f"buffer_load_dwordx4 {v(HRING+4*(n%NHR),4)}, {v(V16)}, {WS}, {sXB} offen offset:{1024*(ks%4)} sc1")
        return L
    w0, w1, w2, w3 = cfg.c_wd
    C.spread(d0[npre:], 0, w0)
    C.spread(wd_reads(7, 14), 2, w0 - 2); C.spread(fill_units(35, 42), w0, w1)
    C.spread(wd_reads(14, 21), w0, w1 - 2); C.spread(fill_units(42, 49), w1, w2)
    C.spread(wd_reads(21, 28), w1, w2 - 2); C.spread(wd_dma(49, 56), w2, w3)
    C.put(cfg.g_arrive, arrive("hst", sFL))
    lh_ = C.pour(hg, 40, cfg.g_poll - 4, 10); assert lh_ < cfg.g_poll
    C.put(cfg.g_poll, poll_load("h", sPA))
    C.put(cfg.g_chk, [stamp("c_pre"), poll_check("h", sPA), stamp("c_post")])
    NH = cfg.nh_c
    C.spread([hload(n) for n in range(NH)], cfg.g_chk + 1, 144)
    RR = 48; UU = 18; DU = 80
    ce = [f"s_add_u32 {sU}, {sU}, {WS_YT}"]
    ce += [f"ds_read_b64 {v(UU+2*tau,2)}, {v(VUR)} offset:{512*(3-tau)}" for tau in range(4)]
    for tau in range(4):
        ce += lines(f"""
        v_and_b32 {v(DU+4*tau+0)}, {sMASK}, {v(UU+2*tau+1)}
        v_lshlrev_b32 {v(DU+4*tau+1)}, 16, {v(UU+2*tau+1)}
        v_and_b32 {v(DU+4*tau+2)}, {sMASK}, {v(UU+2*tau)}
        v_lshlrev_b32 {v(DU+4*tau+3)}, 16, {v(UU+2*tau)}""")
    lr = C.pour(ce[:5], max(lh_ + 1, 104), 112, 8); assert lr < cfg.c_bar - 4
    lc = C.pour(ce[5:], lr + 6, 140, 8)
    assert lc < 140
    C.put(cfg.c_bar, [WaitRegs(a(cA(1, 7), 4)), WaitRegs(v(UU, 8)), Ins("s_barrier")])
    for g_, n_ in (cfg.hack_sleep_c or []): C.put(g_, 's_sleep %d' % n_)
    check_m0(C, 1024)
    add_trace(C, 12, 'c', [94, 96])
    C.emit(P)
    if cfg.verbose: print("C gap costs", C.costs())
    hq = [hload(n) for n in range(NH, NH + cfg.nh_e)]; NH += cfg.nh_e
    def hnext():
        if hq: P.add(hq.pop(0))
    hnext()
    dfma = lambda base: [f"v_pk_fma_f32 {v(DU+2*k,2)}, s[78:79], {v(DU+2*k,2)}, {v(base+2*k,2)} op_sel_hi:[0,1,1]" for k in range(8)]
    P.e(f"s_cmp_eq_u32 {sKH}, 0\n s_cbranch_scc1 L_cw0")
    for tau in range(4): P.e(f"ds_write_b128 {v(VRW)}, {v(CACC+4*tau,4)} offset:{1024*tau}", nocount=True)
    P.add(dfma(CACC + 16))
    P.e("s_branch L_cw1\n L_cw0:\n s_nop 2")
    for tau in range(4): P.e(f"ds_write_b128 {v(VRW)}, {v(CACC+16+4*tau,4)} offset:{1024*tau}")
    P.add(dfma(CACC))
    P.e("L_cw1:")
    while hq: hnext()
    P.e("s_waitcnt lgkmcnt(0)\n s_barrier")
    ct_ = [f"ds_read_b128 {v(RR+4*tau,4)}, {v(VRR)} offset:{1024*tau}" for tau in range(4)]
    P.add(ct_); ct_ = []
    for pi in range(2):
        if cfg.c_tail_in_g2: ct_ += [f"v_add_f32 {v(DU+8*pi+k)}, {v(DU+8*pi+k)}, {v(RR+8*pi+k)}" for k in range(8)]
        else: ct_ += [f"v_pk_add_f32 {v(DU+8*pi+2*k,2)}, {v(DU+8*pi+2*k,2)}, {v(RR+8*pi+2*k,2)}" for k in range(4)]
        ct_ += [f"v_cvt_pk_bf16_f32 {v(UU+4*pi+k)}, {v(DU+8*pi+2*k)}, {v(DU+8*pi+2*k+1)}" for k in range(4)]
    for pi in range(2):
        ct_ += [f"v_permlane16_swap_b32 {v(UU+4*pi)}, {v(UU+4*pi+2)}", f"v_permlane16_swap_b32 {v(UU+4*pi+1)}, {v(UU+4*pi+3)}"]
        ct_ += [Ins(f"buffer_store_dwordx4 {v(UU+4*pi,4)}, {v(VYS)}, {WS}, {sU} offen offset:{1024*pi} sc1", "yst")]
    if not cfg.c_tail_in_g2: P.add(ct_); ct_ = []
    P.add(stamp("g2start"))
    GACC = 0; JIT = 64; NJ = 8
    G2 = Gaps(112)
    jn = 0
    for n in range(56):
        st, ks = horder[n]
        for dt in range(2):
            A = a(GACC + 32 * st + 16 * dt, 16)
            if ks < 14: W_ = a(WD1 + 8 * ks + 4 * dt, 4)
            else:
                r_ = JIT + 4 * (jn % NJ); jn += 1; W_ = a(r_, 4)
                for rd in range(2):
                    G2.put(2 * n + dt - 6, wd_read(2 * ks + rd, lambda d_, r_=r_, rd=rd: a(r_ + 2 * rd, 2))[dt])
            G2.m[2 * n + dt] = f"v_mfma_f32_32x32x16_bf16 {A}, {W_}, {v(HRING+4*(n%NHR),4)}, {'0' if n in (0, 28) else A}"
    reserved = sorted([8, 10] * bool(cfg.c_tail_in_g2) + list(cfg.q_at[:2]) + [cfg.g2_chk + 2, cfg.g2_chk + 4])
    t_ = 0.0; n = NH; la = []
    while n < 56:
        if reserved and reserved[0] <= t_ + cfg.g2_hpace / 2: reserved.pop(0); t_ += cfg.g2_hpace; continue
        g = int(t_)
        if n >= NHR: assert g >= 2 * (n - NHR) + 1
        la.append(2 * n - g); G2.put(g, hload(n)); n += 1; t_ += cfg.g2_hpace
    if cfg.verbose: print("H lookahead (gaps)", la)
    assert min(la) >= 8, la
    lt = G2.pour(ct_, 1, 10, 24) if ct_ else 0
    e1 = lines(f"""
    s_lshl_b32 s3, s2, 7
    s_add_u32 {sFL}, s3, {512*128}
    s_lshl_b32 s3, {sCT}, 12
    s_add_u32 {sPA}, s3, {512*128}
    """)
    l1 = G2.pour(e1, lt, lt + 8, 24); assert l1 <= cfg.g2_arrive
    G2.put(cfg.g2_arrive, [WaitTag('vm', "q"), arrive("yst", sFL)])
    qd = [f"s_lshl_b32 {sT1}, {sW}, 11\n s_add_u32 m0, {sT1}, {QL}"]
    qd += [Ins(f"buffer_load_dwordx4 {v(VQ[j])}, {X}, {sQS} offen offset:{1024*j} lds", "q") for j in range(2)]
    qd += [f"buffer_load_dword {v(VG[j])}, {v(VGA)}, {WS}, 0 offen offset:{128*j} sc1" for j in range(2)]
    G2.put(cfg.q_at[0] - 1, qd[0])
    for q_, g_ in zip(qd[1:], cfg.q_at): G2.put(g_, q_)
    def sends(st, addr):
        return [Ins(f"ds_write_b128 {addr(sg, jj)[0]}, {a(GACC+32*st+16*(sg>>1)+8*(sg&1)+4*jj,4)} offset:{addr(sg, jj)[1]}", "rw%d" % st) for sg in range(1, 4) for jj in range(2)]
    G2.spread(sends(0, lambda sg, jj: (v(EWA), 2048 * (sg - 1) + 1024 * jj)), 59, cfg.g2_chk - 1)
    G2.put(cfg.g2_poll, poll_load("y", sPA))
    G2.put(cfg.g2_chk, [stamp("g2_pre"), poll_check("y", sPA), WaitTag('lgkm', "rw0"), Ins("s_barrier"), [] if cfg.pass_stamps else stamp("g2_post")])
    yd = [f"s_add_u32 m0, {sT1}, {YL}"]
    yd += [Ins(f"buffer_load_dwordx4 {v(VY[j])}, {WS}, {sYS} offen offset:{1024*j} sc1 lds", "y") for j in range(2)]
    G2.put(cfg.g2_chk + 1, yd[0]); G2.put(cfg.g2_chk + 2, yd[1]); G2.put(cfg.g2_chk + 4, yd[2])
    QQ = 48; TT = 56; BB = 72; RX = 80; YY = 18; O = 48
    RP = [80, 84, 88, 92, 28 + 0, 28 + 0]
    un = lambda i, d, s_: (f"v_lshlrev_b32 {d}, 16, {s_}" if i % 2 == 0 else f"v_and_b32 {d}, {sMASK}, {s_}")
    p0 = [f"ds_read_b64 {v(QQ+4*st+2*J,2)}, {v(EQ[J])} offset:{4096*st}" for st in range(2) for J in range(2)]
    p0 += [f"v_sub_f32 {v(OMG[st])}, 1.0, {v(VG[st])}" for st in range(2)] + [[], []]
    p0 += [un(k, v(TT + k), v(QQ + (k >> 1))) for k in range(16)]
    p0 += [f"v_mul_f32 {v(TT+k)}, {v(TT+k)}, {v(VG[k>>3])}" for k in range(16)]
    l0 = G2.pour(p0, cfg.g2_arrive + 1, 60, 22); assert l0 < cfg.g2_chk
    p1 = [f"ds_read_b128 {v(RX+4*jj,4)}, {v(ERA[0])} offset:{1024*jj}" for jj in range(2)]
    p1 += [f"ds_read_b128 {v(RX+8+4*jj,4)}, {v(ERA[1])} offset:{1024*jj}" for jj in range(2)]
    p1 += [f"v_accvgpr_read_b32 {v(BB+k)}, {a(GACC+k)}" for k in range(8)]
    p1 += [f"v_add_f32 {v(BB+k)}, {v(BB+k)}, {v(RX+k)}" for k in range(8)]
    p1 += [f"ds_read_b128 {v(RX+4*jj,4)}, {v(ERA[2])} offset:{1024*jj}" for jj in range(2)]
    p1 += [f"v_add_f32 {v(BB+k)}, {v(BB+k)}, {v(RX+8+k)}" for k in range(8)]
    p1 += [f"v_add_f32 {v(BB+k)}, {v(BB+k)}, {v(RX+k)}" for k in range(8)]
    p1 += [f"v_mul_f32 {v(BB+k)}, {v(BB+k)}, {v(OMG[0])}" for k in range(8)]
    l3 = G2.pour(p1, cfg.g2_chk + 1, cfg.g2_pre - 1, 24); assert l3 <= cfg.g2_pre + 4, l3
    p2 = [[WaitTag('vm', "y"), Ins("s_barrier")]]
    p2 += [f"ds_read_b64_tr_b16 {v(YY+4*st+2*J,2)}, {v(EY)} offset:{1024*J+32*st}" for st in range(2) for J in range(2)]
    p2 += [[], [], []]
    p2 += [un(k, v(RX + k), v(YY + (k >> 1))) for k in range(8)]
    p2 += [f"v_fmac_f32 {v(BB+k)}, {v(TT+k)}, {v(RX+k)}" for k in range(8)]
    p2 += [f"v_cvt_pk_bf16_f32 {v(O+k)}, {v(BB+2*k)}, {v(BB+2*k+1)}" for k in range(4)]
    p2 += [un(k, v(RX + k), v(YY + (k >> 1))) for k in range(8, 16)]
    p2 += [f"v_permlane32_swap_b32 {v(O)}, {v(O+2)}", f"v_permlane32_swap_b32 {v(O+1)}, {v(O+3)}"]
    p2 += [f"buffer_store_dwordx4 {v(O,4)}, {v(EO)}, {OUT}, {sO[0]} offen {cfg.sc_out}"]
    p2 += [f"v_mul_f32 {v(TT+k)}, {v(TT+k)}, {v(RX+k)}" for k in range(8, 16)]
    p2 += [f"v_mov_b32 {v(T1)}, {v(OMG[1])}", f"v_mov_b32 {v(T2)}, {v(OMG[1])}"]
    G2.pour(p2, max(l3, cfg.g2_pre), 111, 24)
    for g_, n_ in (cfg.hack_sleep_h or []): G2.put(g_, 's_sleep %d' % n_)
    check_m0(G2)
    add_trace(G2, 8, 'h', [94, 96])
    G2.emit(P, 2)
    if cfg.verbose: print("G2 gap costs", G2.costs())
    P.add(stamp("g2end"))
    R1 = 96; O2 = 52
    w_ = sends(1, lambda sg, jj: (v(EWB), (sg - 1) * SLOT + 1024 * jj))
    P.add(w_[:2])
    for k in range(8): P.e(f"v_accvgpr_read_b32 {v(BB+k)}, {a(GACC+32+k)}")
    P.add(w_[2:])
    P.e("s_waitcnt lgkmcnt(0)\n s_barrier")
    for jj in range(2):
        for sg in range(1, 4): P.e(f"ds_read_b128 {v(R1+8*(sg-1)+4*jj,4)}, {v(ERB[sg-1])} offset:{1024*jj}")
    for jj in range(2):
        for sg in range(3):
            for i in range(2): P.e(f"v_pk_add_f32 {v(BB+4*jj+2*i,2)}, {v(BB+4*jj+2*i,2)}, {v(R1+8*sg+4*jj+2*i,2)}")
        for i in range(2): P.e(f"v_pk_fma_f32 {v(BB+4*jj+2*i,2)}, {v(BB+4*jj+2*i,2)}, {v(T1,2)}, {v(TT+8+4*jj+2*i,2)}")
        for i in range(2): P.e(f"v_cvt_pk_bf16_f32 {v(O2+2*jj+i)}, {v(BB+4*jj+2*i)}, {v(BB+4*jj+2*i+1)}")
    P.e(f"v_permlane32_swap_b32 {v(O2)}, {v(O2+2)}\n v_permlane32_swap_b32 {v(O2+1)}, {v(O2+3)}")
    P.e(f"buffer_store_dwordx4 {v(O2,4)}, {v(EO)}, {OUT}, {sO[1]} offen {cfg.sc_out}")
    if cfg.stamps: emit_stamps(P)
    if cfg.fixdur:
        P.e(f"""L_fix:
        s_memrealtime s[4:5]
        s_waitcnt lgkmcnt(0)
        s_sub_u32 s4, s4, s100
        s_cmp_lt_i32 s4, {cfg.fixdur}
        s_cbranch_scc1 L_fix""")
    P.e("s_endpgm")

def check_m0(G, init=None):
    flat = []
    def fl(it):
        if isinstance(it, str):
            for l in lines(it): flat.append(Ins(l))
        elif isinstance(it, (list, tuple)):
            for x in it: fl(x)
        elif isinstance(it, Ins): flat.append(it)
    for f in G.f:
        for it in f: fl(it)
    last_off = init
    for it in flat:
        if it.kind == 'salu' and ('s', 'm0') in it.w: last_off = -1024
        if it.kind == 'dma':
            m = re.search(r'offset:(\d+)', it.text); off = int(m.group(1)) if m else 0
            assert last_off is not None and off == last_off + 1024, ("m0 group interleaved", it.text)
            last_off = off

def emit_stamps(P):
    P.e("s_waitcnt vmcnt(0)")
    P.e("s_memtime s[4:5]\n s_memrealtime s[6:7]\n s_waitcnt lgkmcnt(0)")
    n = len(stamp_names)
    for k in range(n):
        P.e(f"s_sub_u32 s3, s{STAMP_REGS[stamp_names[k]]}, {'s100' if cfg.rt else 's98'}"); P.e(f"v_mov_b32 v{200+k}, s3")
    P.e(f"s_sub_u32 s3, {'s6, s100' if cfg.rt else 's4, s98'}\n v_mov_b32 v{200+n}, s3")
    P.e(f"""s_lshl_b32 s3, s2, 2
    s_add_u32 s3, s3, {sW}
    s_lshl_b32 s3, s3, 7
    s_add_u32 s3, s3, {WS_STAMP}
    v_mov_b32 v229, 0
    v_mov_b32 v230, s100
    v_mov_b32 v231, s6
    v_mov_b32 v2, 0
    s_mov_b64 exec, 1""")
    for k in range(8): P.e(f"buffer_store_dwordx4 v[{200+4*k}:{203+4*k}], v2, {WS}, s3 offen offset:{16*k}")
    if cfg.trace:
        P.e(f"""s_mov_b64 exec, -1
        v_subrev_u32 v254, s98, v254
        v_subrev_u32 v255, s98, v255
        s_lshl_b32 s3, s2, 2
        s_add_u32 s3, s3, {sW}
        s_lshl_b32 s3, s3, 9
        s_add_u32 s3, s3, {WS_STAMP + 0x40000}
        v_lshlrev_b32 v2, 2, v1
        buffer_store_dword v254, v2, {WS}, s3 offen
        v_readlane_b32 s4, v253, 0
        v_readlane_b32 s5, v253, 1
        v_readlane_b32 s6, v253, 2
        v_readlane_b32 s7, v253, 3
        s_nop 3
        v_writelane_b32 v255, s4, 60
        v_writelane_b32 v255, s5, 61
        v_writelane_b32 v255, s6, 62
        v_writelane_b32 v255, s7, 63
        buffer_store_dword v255, v2, {WS}, s3 offen offset:256""")

def gen_aux(P0):
    P = P0
    K, V_, SH, GW = "s[40:43]", "s[44:47]", "s[48:51]", "s[52:55]"
    sA = "s68"; sST = "s69"; sUS = "s70"; sLO = "s71"; sHI = "s72"; sC = "s73"; sC2 = "s74"; sTA = ["s56", "s57"]; sTW = ["s58", "s59"]
    VL = 1; T0 = 2; T1 = 3; VZA = 4; VB = 5; VB2 = 6; VM = 7; VX = 8; VR = 9; VS = 11; VW = 12; VWt = [13, 14]; VRB = 16; VQ = 20; VQ2 = 21; VGW = 22
    KP = [48, 58]; VP = [68, 76]; WR_ = [84, 86]; WT = [88, 94]; OO = 100; UV = 108; OUT_ = 124; RB = 160; PF = 24
    TS = 17408
    P.e("s_cmp_lt_u32 s2, 256\n s_cbranch_scc1 L_auxgo\n s_endpgm\n L_auxgo:")
    for reg, off in ((K, 8), (V_, 16), (SH, 24), (GW, 80)): P.e(ldptr(reg, off))
    P.add(srd_hi(K, NQ) + srd_hi(V_, NQ) + srd_hi(SH, 3584) + srd_hi(X, NQ) + srd_hi(GW, 896) + srd_hi(WS, WS_SIZE) + srd_hi(WD, NW))
    P.e(f"""
    s_sub_u32 {sA}, s2, 224
    s_mul_i32 {sSO}, {sA}, {64*896}
    s_mul_i32 {sST}, {sW}, 40960
    s_lshl_b32 {sTA[0]}, {sW}, 7
    s_add_u32 {sTA[1]}, {sTA[0]}, 512
    s_cmp_eq_u32 {sW}, 3
    s_cselect_b32 {sTA[1]}, {NQ}, {sTA[1]}
    s_lshl_b32 {sTW[0]}, {sW}, 9
    s_add_u32 {sTW[1]}, {sTW[0]}, 2048
    v_lshrrev_b32 {v(T0)}, 3, {v(VL)}
    v_and_b32 {v(T1)}, 7, {v(VL)}
    v_mul_u32_u24 {v(VB)}, 896, {v(T0)}
    v_lshl_add_u32 {v(VB)}, {v(T1)}, 4, {v(VB)}
    v_add_u32 {v(VB)}, {sSO}, {v(VB)}
    v_add_u32 {v(VB2)}, 6144, {v(VB)}
    v_add_u32 {v(VM)}, -7168, {v(VB)}
    v_lshlrev_b32 {v(VX)}, 3, {v(VL)}
    s_mul_i32 s3, {sA}, {24*128}
    v_lshlrev_b32 {v(VZA)}, 7, {v(VL)}
    v_add_u32 {v(VZA)}, s3, {v(VZA)}
    v_mov_b32 {v(vARR)}, -16
    v_cmp_gt_u32 vcc, 24, v0
    v_mov_b32 {v(vZERO)}, 0
    v_cndmask_b32 {v(VZA)}, {v(vARR)}, {v(VZA)}, vcc
    v_cmp_eq_u32 vcc, 0, v0
    v_mov_b32 {v(vONE)}, 1
    s_waitcnt lgkmcnt(0)
    v_cndmask_b32 {v(vARR)}, {v(vARR)}, 0, vcc
    s_mov_b32 s34, 256
    s_mov_b32 s35, 0x20000
    """)
    def dset(k, j):
        b = TS * k; tag = "pin%d%d" % (k, j); L = []
        L.append([f"s_add_u32 {sC}, {sTA[k]}, {14336*j}\n s_add_u32 m0, {sST}, {b+1024+2048*j}", Ins(f"buffer_load_dwordx4 {v(VB)}, {K}, {sC} offen lds", tag)])
        L.append(Ins(f"buffer_load_dwordx4 {v(VB2)}, {K}, {sC} offen offset:1024 lds", tag))
        if j == 0:
            L.append([f"s_add_u32 m0, {sST}, {b}", Ins(f"buffer_load_dwordx4 {v(VM)}, {K}, {sC} offen lds", tag)])
            L.append(f"buffer_load_dwordx2 {v(WR_[k],2)}, {v(VX)}, {SH}, {sTW[k]} offen")
        L.append([f"s_add_u32 m0, {sST}, {b+9216+2048*j}", Ins(f"buffer_load_dwordx4 {v(VB)}, {V_}, {sC} offen lds", tag)])
        L.append(Ins(f"buffer_load_dwordx4 {v(VB2)}, {V_}, {sC} offen offset:1024 lds", tag))
        return L
    P.add(dset(0, 0))
    P.e(f"buffer_store_dword {v(vZERO)}, {v(VZA)}, {WS}, 0 offen sc1", tag="zst")
    P.add(dset(0, 1))
    P.e(f"""
    v_bfe_u32 {v(VR)}, {v(VL)}, 2, 2
    v_lshlrev_b32 {v(VR)}, 7, {v(VR)}
    v_lshrrev_b32 {v(VS)}, 4, {v(VL)}
    v_lshl_add_u32 {v(VR)}, {v(VS)}, 5, {v(VR)}
    v_and_b32 {v(VS)}, 3, {v(VL)}
    v_lshl_add_u32 {v(VR)}, {v(VS)}, 3, {v(VR)}
    v_add_u32 {v(VR)}, {sST}, {v(VR)}
    s_mov_b32 {sLO}, 0xffff
    s_mov_b32 {sMASK}, 0xffff0000
    v_lshlrev_b32 {v(VW)}, 4, {v(T1)}
    v_lshl_add_u32 {v(VW)}, {v(VL)}, 7, {v(VW)}
    v_add_u32 {v(VW)}, {sST}, {v(VW)}
    v_xor_b32 {v(VRB)}, {v(T0)}, {v(T1)}
    v_lshlrev_b32 {v(VRB)}, 4, {v(VRB)}
    v_lshl_add_u32 {v(VRB)}, {v(T0)}, 7, {v(VRB)}
    v_add_u32 {v(VRB)}, {sST}, {v(VRB)}
    v_lshlrev_b32 {v(VGW)}, 4, {v(T1)}
    v_lshl_add_u32 {v(VS)}, {v(T0)}, 12, {v(VGW)}
    s_lshl_b32 s3, {sW}, 18
    s_sub_u32 {sUS}, 31, {sA}
    s_lshl_b32 {sUS}, {sUS}, 7
    s_add_u32 {sUS}, {sUS}, s3
    s_add_u32 {sUS}, {sUS}, {WS_UR}
    """)
    P.add(dset(0, 2))
    P.vmwait("zst")
    P.e(f"buffer_atomic_add {v(vONE)}, {v(vARR)}, s[32:35], 0 offen sc1")
    P.add(dset(0, 3))
    if cfg.hack_aux: P.e("s_sleep 64\n s_sleep 32"); P.add(poll_load("za", None)); P.e("s_branch L_auxdone")
    def reads(k, j):
        b = TS * k; K_ = KP[j & 1]; V2 = VP[j & 1]
        L = [WaitTag('vm', "pin%d%d" % (k, j))]
        L += [f"ds_read_b64_tr_b16 {v(K_+2*m,2)}, {v(VR)} offset:{b+512+2048*j+512*m}" for m in range(5)]
        L += [f"ds_read_b64_tr_b16 {v(V2+2*m,2)}, {v(VR)} offset:{b+9216+2048*j+512*m}" for m in range(4)]
        return L
    def wprep(k):
        W = WR_[k]; T_ = WT[k]
        return lines(f"""v_alignbit_b32 {v(T_)}, {v(W)}, {v(W)}, 16
        v_alignbit_b32 {v(T_+1)}, {v(W+1)}, {v(W+1)}, 16
        v_and_b32 {v(T_+2)}, {sLO}, {v(W)}
        v_bfi_b32 {v(T_+3)}, {sLO}, {v(W+1)}, {v(W)}
        v_and_b32 {v(T_+4)}, {sMASK}, {v(W+1)}""")
    def owrites(k, j):
        return [[f"v_xor_b32 {v(VWt[q&1])}, {16*q}, {v(VW)}", Ins(f"ds_write_b128 {v(VWt[q&1])}, {v(OUT_+4*q,4)} offset:0", "ow")] for q in (7 - 2 * j, 6 - 2 * j)]
    def readback(k): return [f"ds_read_b128 {v(RB+4*q,4)}, {v(VRB)} offset:{1024*q}" for q in range(8)]
    def stores(k): return [[f"s_add_u32 {sC2}, {sUS}, {(k << 20) + 32768*q}", Ins(f"buffer_store_dwordx4 {v(RB+4*q,4)}, {v(VS)}, {WS}, {sC2} offen sc1", "pst")] for q in range(8)]
    wdt = lines(f"""s_lshl_b32 s3, {sA}, 2
    s_add_u32 s3, s3, {sW}
    s_mul_i32 s75, s3, {98*128}
    v_lshlrev_b32 {v(156)}, 7, {v(VL)}
    v_add_u32 {v(157)}, {34*128}, {v(156)}
    buffer_load_dword {v(158)}, {v(156)}, {WD}, s75 offen
    buffer_load_dword {v(159)}, {v(157)}, {WD}, s75 offen""")
    def step(P, k, j, fill):
        if cfg.aux_wd == (k, j): fill = list(fill) + ["\n".join(wdt)]
        K_ = KP[j & 1]; V2 = VP[j & 1]; T_ = WT[k]; fill = list(fill); per = (len(fill) + 9) // 10
        def nx():
            for _ in range(per):
                if fill: P.add(fill.pop(0))
        P.add(WaitRegs(v(V2 + 6, 2)))
        if cfg.stamps: r_ = [60, 62, 64, 66, 76, 78, 80, 92][4 * k + j]; P.e(f"s_memtime s[{r_}:{r_+1}]")
        for h in range(2):
            J = range(4 * h, 4 * h + 4)
            for i in J: P.e(f"v_dot2_f32_bf16 {v(OO+2*(i%4))}, {v(K_+i+2)}, {v(T_+2)}, 0\n v_dot2_f32_bf16 {v(OO+2*(i%4)+1)}, {v(K_+i+2)}, {v(T_)}, 0")
            nx()
            for i in J: P.e(f"v_dot2_f32_bf16 {v(OO+2*(i%4))}, {v(K_+i+1)}, {v(T_+3)}, {v(OO+2*(i%4))}\n v_dot2_f32_bf16 {v(OO+2*(i%4)+1)}, {v(K_+i+1)}, {v(T_+1)}, {v(OO+2*(i%4)+1)}")
            nx()
            for i in J: P.e(f"v_dot2_f32_bf16 {v(OO+2*(i%4))}, {v(K_+i)}, {v(T_+4)}, {v(OO+2*(i%4))}")
            nx()
            for i in J: P.e(f"v_lshlrev_b32 {v(UV+2*(i%4))}, 16, {v(V2+i)}\n v_and_b32 {v(UV+2*(i%4)+1)}, {sMASK}, {v(V2+i)}")
            nx()
            for i in J: P.e(f"v_pk_mul_f32 {v(UV+2*(i%4),2)}, {v(UV+2*(i%4),2)}, {v(OO+2*(i%4),2)}")
            nx()
            for i in J: P.e(f"v_cvt_pk_bf16_f32 {v(OUT_+31-8*j-i)}, {v(UV+2*(i%4)+1)}, {v(UV+2*(i%4))}")
        while fill: nx()
    P.add(reads(0, 0)); P.add(wprep(0))
    if cfg.stamps: P.e("s_waitcnt lgkmcnt(0)\n s_memtime s[86:87]")
    step(P, 0, 0, dset(1, 0) + reads(0, 1))
    step(P, 0, 1, dset(1, 1) + reads(0, 2))
    step(P, 0, 2, dset(1, 2) + reads(0, 3))
    P.e(f"s_cmp_eq_u32 {sW}, 3\n s_cbranch_scc1 L_gate")
    Pg = Prog(); Pg.items = list(P.items)
    st0 = stores(0)
    step(P, 0, 3, dset(1, 3) + reads(1, 0) + wprep(1) + owrites(0, 0) + owrites(0, 1))
    P.add(owrites(0, 2) + owrites(0, 3))
    step(P, 1, 0, reads(1, 1) + readback(0))
    step(P, 1, 1, reads(1, 2) + st0[:4] + owrites(1, 0))
    step(P, 1, 2, poll_load("za", None) + reads(1, 3) + st0[4:] + owrites(1, 1))
    step(P, 1, 3, owrites(1, 2))
    P.add(owrites(1, 3)); P.add(readback(1)); P.add(stores(1))
    P.e("s_branch L_auxdone")
    P = Pg; P.e("L_gate:")
    step(P, 0, 3, owrites(0, 0) + owrites(0, 1) + owrites(0, 2))
    P.add(owrites(0, 3)); P.add(readback(0)); P.add(stores(0)); P.add(poll_load("za", None))
    T = Prog(); T.e("L_auxdone:")
    if cfg.stamps: T.e("s_memtime s[88:89]")
    QB = 48; GWB = 112; AC = 104
    T.e(f"""s_lshl_b32 {sC}, {sA}, 7
    s_add_u32 {sC2}, {sC}, {32*128}
    s_lshl_b32 {sT0}, {sA}, 2
    s_add_u32 {sT0}, {sT0}, {sW}
    s_mul_i32 {sSO}, {sT0}, {16*896}
    v_mul_u32_u24 {v(VQ)}, {2*896}, {v(T0)}
    v_add_u32 {v(VQ)}, {v(VQ)}, {v(VGW)}
    s_waitcnt vmcnt(0)""")
    T.add(poll_check("za", None))
    T.e("s_barrier")
    if not cfg.nosync: T.e(f"buffer_store_dword {v(vONE)}, {v(vARR)}, {WS}, {sC} offen sc1")
    if cfg.stamps: T.e("s_memtime s[90:91]")
    for tau in range(7):
        for rho in range(2): T.e(f"buffer_load_dwordx4 {v(QB+8*tau+4*rho,4)}, {v(VQ)}, {X}, {sSO} offen offset:{896*rho+128*tau}")
        T.e(f"buffer_load_dwordx4 {v(GWB+4*tau,4)}, {v(VGW)}, {GW}, 0 offen offset:{128*tau}")
    for tau in range(7):
        for p in range(4):
            for rho in range(2):
                d = AC + 2 * (p & 1) + rho
                T.e(f"v_dot2_f32_bf16 {v(d)}, {v(QB+8*tau+4*rho+p)}, {v(GWB+4*tau+p)}, {'0' if (tau == 0 and p < 2) else v(d)}")
    for rho in range(2): T.e(f"v_add_f32 {v(AC+rho)}, {v(AC+rho)}, {v(AC+2+rho)}")
    for mod in ("row_half_mirror", "quad_perm:[3,2,1,0]", "quad_perm:[1,0,3,2]"):
        for rho in range(2): T.e(f"v_add_f32_dpp {v(AC+rho)}, {v(AC+rho)}, {v(AC+rho)} {mod} row_mask:0xf bank_mask:0xf")
    T.e(f"""s_mov_b32 s56, 0xaaaaaaaa
    s_mov_b32 s57, 0xaaaaaaaa
    v_cndmask_b32 {v(AC)}, {v(AC)}, {v(AC+1)}, s[56:57]
    v_mul_f32 {v(AC)}, 0xbfb8aa3b, {v(AC)}
    v_exp_f32 {v(AC)}, {v(AC)}
    v_lshl_add_u32 {v(T0)}, {v(T0)}, 1, {v(T1)}
    v_add_f32 {v(AC)}, 1.0, {v(AC)}
    v_rcp_f32 {v(AC)}, {v(AC)}
    v_lshlrev_b32 {v(T0)}, 2, {v(T0)}
    v_mov_b32 {v(VZA)}, -16
    v_cmp_gt_u32 vcc, 2, {v(T1)}
    s_lshl_b32 s3, {sT0}, 6
    s_add_u32 s3, s3, {WS_G}
    v_cndmask_b32 {v(T0)}, {v(VZA)}, {v(T0)}, vcc
    buffer_store_dword {v(AC)}, {v(T0)}, {WS}, s3 offen sc1
    s_waitcnt vmcnt(0)
    s_barrier""")
    if not cfg.nosync: T.e(f"buffer_store_dword {v(vONE)}, {v(vARR)}, {WS}, {sC2} offen sc1")
    if cfg.aux_l2:
        g0, ng = cfg.aux_l2
        T.e(f"""v_mul_u32_u24 {v(PF)}, 896, {v(VL)}
        s_lshr_b32 s56, {sA}, 3
        s_mul_i32 s56, s56, {448*896}
        s_and_b32 s57, s2, 7
        s_add_u32 s57, s57, {g0}""")
        for k in range((7 * ng + 3) // 4):
            T.e(f"""s_add_u32 s58, {sW}, {4*k}
            s_min_u32 s58, s58, {7*ng-1}
            s_mul_i32 s59, s58, 37
            s_lshr_b32 s59, s59, 8
            s_mul_i32 s3, s59, 7
            s_sub_u32 s58, s58, s3
            s_add_u32 s59, s59, s58
            s_add_u32 s59, s59, s57
            s_mul_i32 s3, s59, 37
            s_lshr_b32 s3, s3, 8
            s_mul_i32 s3, s3, 7
            s_sub_u32 s59, s59, s3
            s_mul_i32 s59, s59, {64*896}
            s_lshl_b32 s58, s58, 7
            s_add_u32 s59, s59, s58
            s_add_u32 s59, s59, s56
            buffer_load_dword {v(PF+2+k)}, {v(PF)}, {WD}, s59 offen""")
    if cfg.stamps:
        T.e(f"""s_waitcnt vmcnt(0)
        s_memtime s[4:5]
        s_memrealtime s[6:7]
        s_waitcnt lgkmcnt(0)
        s_sub_u32 s3, s86, s98
        v_mov_b32 v200, s3
        s_sub_u32 s3, s88, s98
        v_mov_b32 v201, s3
        s_sub_u32 s3, s90, s98
        v_mov_b32 v202, s3
        s_sub_u32 s3, s4, s98
        v_mov_b32 v203, s3
        v_mov_b32 v204, s100
        v_mov_b32 v205, s6
        s_lshl_b32 s3, s2, 2
        s_add_u32 s3, s3, {sW}
        s_lshl_b32 s3, s3, 7
        s_add_u32 s3, s3, {WS_STAMP}
        v_mov_b32 v2, 0
        s_mov_b64 exec, 1
        buffer_store_dwordx4 v[200:203], v2, {WS}, s3 offen
        buffer_store_dwordx2 v[204:205], v2, {WS}, s3 offen offset:120""")
        for i_, r_ in enumerate([60, 62, 64, 66, 76, 78, 80, 92]): T.e(f"s_sub_u32 s4, s{r_}, s98\n v_mov_b32 v{208+i_}, s4")
        T.e(f"buffer_store_dwordx4 v[208:211], v2, {WS}, s3 offen offset:16\n buffer_store_dwordx4 v[212:215], v2, {WS}, s3 offen offset:32")
    T.e("s_endpgm")
    return Pg, T

def build():
    global slow_paths, stamp_names, trace_names
    slow_paths = []; stamp_names = []; trace_names = []; arr_n[0] = 0; STAMP_REGS['prewait'] = 74; STAMP_REGS['karg'] = 72
    pro = Prog()
    for reg, off in ((X, 0), (WG, 56), (WU, 64), (WD, 72), (SK, 32), (WS, 104), (OUT, 88), (pDBG, 96), (pD, 40)) + ((("s[94:95]", 8), ("s[96:97]", 16)) if cfg.kv_touch is not None else ()): pro.e(ldptr(reg, off))
    if cfg.sync_start:
        pro.e("""s_memrealtime s[100:101]
        s_waitcnt lgkmcnt(0)
        s_add_u32 s3, s100, 400
        s_and_b32 s3, s3, 0xffffff00
        s_and_b32 s99, s2, %d
        s_mul_i32 s99, s99, %d
        s_add_u32 s3, s3, s99
        L_ss:
        s_memrealtime s[100:101]
        s_waitcnt lgkmcnt(0)
        s_sub_u32 s99, s100, s3
        s_cmp_lt_i32 s99, 0
        s_cbranch_scc1 L_ss""" % cfg.skew)
    if cfg.stamps or cfg.fixdur: pro.e("s_memtime s[98:99]\n s_memrealtime s[100:101]")
    pro.e(f"""
    v_lshrrev_b32 v2, 6, v0
    v_and_b32 v1, 63, v0
    s_cmp_ge_u32 s2, 224
    v_readfirstlane_b32 {sW}, v2
    s_cbranch_scc1 L_aux
    """)
    Pm = Prog(); Pm.items = list(pro.items)
    gen_main(Pm)
    main = Pm.finalize(cfg.verbose)
    if cfg.warm:
        real = [i for i, x in enumerate(main) if x.kind != 'label']
        for k, n in reversed(list(enumerate(cfg.stub_at[:4]))):
            main[real[n]:real[n]] = [Ins("L_pg%d:" % k), Ins("s_cbranch_execz L_pgback")]
    Px = Prog(); Px.items = list(pro.items); Px.e("L_aux:")
    Pg, Pt = gen_aux(Px)
    ax = Px.finalize(); gx = Pg.finalize(); tx = Pt.finalize()
    cut = lambda lst, lab: lst[[i for i, x in enumerate(lst) if x.kind == 'label' and x.text == lab][0]:]
    body = text_of(main) + "\n" + text_of(cut(ax, "L_aux:")) + "\n" + text_of(cut(gx, "L_gate:")) + "\n" + text_of(tx) + "\n" + emit_slow_paths() + "\nL_codeend:"
    hdr = open("gated_mix__ssm_conv_h3__swiglu_ffn__prompt.s.ref").read().split("; Override launch")[0] if cfg.header else ""
    return f"""{hdr}; @launch grid=(256,1,1) block=(256,1,1) lds={LDS_BYTES}
; TRACE={trace_names}
.amdgcn_target "amdgcn-amd-amdhsa--gfx950"
.text
.globl {KNAME}
{'.p2align 12' if cfg.align else ''}
.p2align 8
.type {KNAME},@function
{KNAME}:
{body}
.section .rodata,"a"
.p2align 6
.amdhsa_kernel {KNAME}
  .amdhsa_next_free_vgpr 512
  .amdhsa_next_free_sgpr 102
  .amdhsa_accum_offset 256
  .amdhsa_group_segment_fixed_size 0
  .amdhsa_kernarg_size 112
  .amdhsa_user_sgpr_count 2
  .amdhsa_user_sgpr_kernarg_segment_ptr 1
  .amdhsa_system_sgpr_workgroup_id_x 1
.end_amdhsa_kernel
"""

if __name__ == "__main__":
    import subprocess
    out = sys.argv[1]
    for kv in sys.argv[2:]:
        k_, v_ = kv.split("=", 1)
        assert hasattr(cfg, k_), k_
        setattr(cfg, k_, eval(v_))
    cfg.pf_n = 1; cfg.pf_last = 100
    vb = cfg.verbose; cfg.verbose = False
    open(out, "w").write(build())
    subprocess.check_call(["clang", "-x", "assembler", "-target", "amdgcn-amd-amdhsa", "-mcpu=gfx950", "-c", out, "-o", "_gen.o"])
    sym = subprocess.check_output(["llvm-objdump", "-t", "_gen.o"], text=True)
    ad = {l.split()[-1]: int(l.split()[0], 16) for l in sym.splitlines() if " L_" in l}
    if cfg.code_pf:
        cfg.pf_last = (ad["L_codeend"] - ad["L_pc"] - 64) // 128
        cfg.pf_n = (cfg.pf_last + 112) // 112
    if cfg.warm:
        cfg.stub_at = [600, 1200, 1800, 2300]
        for it in range(3):
            open(out, "w").write(build())
            subprocess.check_call(["clang", "-x", "assembler", "-target", "amdgcn-amd-amdhsa", "-mcpu=gfx950", "-c", out, "-o", "_gen.o"])
            dis = subprocess.check_output(["llvm-objdump", "-d", "--mcpu=gfx950", "_gen.o"], text=True)
            ins = [(int(l.split("//")[1].split(":")[0], 16), l) for l in dis.splitlines() if "//" in l]
            end = [i for i, (a_, l) in enumerate(ins) if "s_endpgm" in l][0]
            a0 = []; ns_ = 0
            for a_, l in ins[:end]:
                if "s_cbranch_execz" in l: ns_ += 1
                else: a0.append(a_ - 4 * ns_)
            new_at = []
            for k in range(1, 5):
                c = [i for i, a_ in enumerate(a0) if a_ + 4 * (k - 1) + 0x300 >= 4096 * k]
                if c: new_at.append(c[0])
            if new_at == cfg.stub_at: break
            cfg.stub_at = new_at
    cfg.verbose = vb
    open(out, "w").write(build())
    print(out, "code bytes", ad["L_codeend"], "aux at", ad["L_aux"], "stubs", cfg.stub_at, "stamps:", stamp_names)
```

```python
import sys, math, re
from fw import *
import fw
KNAME = "gated_mix__ssm_conv_h3__swiglu_ffn__prompt_kernel"

class Cfg: pass
cfg = Cfg()
cfg.stamps = False; cfg.pass_stamps = False; cfg.verbose = False; cfg.header = True; cfg.fixdur = 0
cfg.PD = 5; cfg.NXR = 8; cfg.pair = 2; cfg.bud = 24
cfg.code_pf = True; cfg.n_pre = 6; cfg.nosync = False
cfg.rot_c = True; cfg.rot_t = True; cfg.rot_g = True
cfg.pl_at = -1; cfg.pc0 = 10; cfg.pc1 = 70; cfg.bud1 = 28; cfg.z_load = 60; cfg.z_chk = 84; cfg.x_touch = 0; cfg.align = True; cfg.tlb = False; cfg.sync_start = False; cfg.skew = (0, 0); cfg.gq_sh = 0; cfg.gq_mul = 1; cfg.wd_touch = -1; cfg.warm = True; cfg.stub_at = []; cfg.late_pos = 100; cfg.p_arr = 9; cfg.pst_at = 80; cfg.aux_sk = False; cfg.p_first = True; cfg.sk_at = -1; cfg.hv_at = 24; cfg.c_rd_end = 66; cfg.sleep = 2
cfg.p_load = 180; cfg.p_chk = 208; cfg.hw0 = 70; cfg.hw1 = 180
cfg.g_arrive = 38; cfg.g_poll = 112; cfg.g_chk = 102; cfg.nh_c = 12; cfg.nh_e = 5; cfg.c_wd = (24, 48, 72, 96); cfg.c_tail_in_g2 = True; cfg.b_rev = False; cfg.no_x = False; cfg.sk_early = True; cfg.sk_pos = 0; cfg.aux_head = True; cfg.aux_fl = False; cfg.pg0 = 1; cfg.aux_sleep = None; cfg.watch = 0; cfg.hack_sleep_c = None; cfg.hack_sleep_h = None; cfg.eo = True; cfg.epi_len = 22; cfg.a_arr = 162; cfg.a_load = 210; cfg.a_chk = 30; cfg.h_first = 98; cfg.b_chk = 11; cfg.rw_bar = 74; cfg.y_late = True; cfg.n1 = 2; cfg.blk_c = 4; cfg.blk_s3 = 0; cfg.blk_deep = False; cfg.blk_dma = False; cfg.blk_g = 1; cfg.blk_g2 = 0; cfg.blk_list = None; cfg.hack_sleep = None; cfg.aux_wd = None; cfg.hack_aux = False; cfg.sc_h = 'sc1'; cfg.n_raw = 0; cfg.kv_touch = None; cfg.aux_l2 = None; cfg.hack_wd = False; cfg.hack_p = False; cfg.sc_wd = ''; cfg.sc_g1 = ''; cfg.c_bar = 130; cfg.s3_at = -1; cfg.nwd_t = 5; cfg.g_wd_end = 104
cfg.g2_hpace = 2.1; cfg.q_at = (13, 15, 17, 19); cfg.g2_arrive = 36; cfg.g2_poll = 64; cfg.g2_chk = 92; cfg.g2_pre = 100
cfg.sc_out = ""; cfg.aux_pf = False; cfg.touch = False; cfg.s_early = True; cfg.rt = False; cfg.trace = False; cfg.start_stamps = False

WS_FLAG = 0x0; WS_G = 0x20000; WS_UR = 0x100000; WS_YT = 0x300000; WS_H = 0x500000
WS_STAMP = 0xC00000; WS_SIZE = 0xD00000
NQ = 1835008; NW = 1605632
XB = 4096
SLOT = 28672; PIECE = 7168
HC = 4 * SLOT; CPY = 4160; HCCH = 4 * CPY
UL = HC + 2 * HCCH; UCH = 4608
LDS_BYTES = 163840
YL = HC; QL = UL
assert UL + 2 * UCH <= LDS_BYTES
X, WG, WU, WD, SK, WS, OUT = ["s[%d:%d]" % (b, b + 3) for b in (4, 8, 12, 16, 20, 24, 28)]
pWS = "s[24:25]"; pDBG = "s[32:33]"; pD = "s[34:35]"
sW = "s36"; sT0 = "s37"; sT1 = "s38"; sT2 = "s39"
sCH = ["s%d" % (40 + i) for i in range(7)]
sWC = ["s%d" % (47 + i) for i in range(7)]
sTO = ["s%d" % (54 + i) for i in range(8)]
sHG = sWC
sM0P = "s68"; sXB = "s69"; sWB = "s70"; sDB = "s71"; sHS = "s72"; sHL = ["s73", "s74"]
sNL2E = "s75"; sSO = "s76"; sSO2 = "s77"; sD = "s78"; sI2 = "s79"; sCT = "s80"; sKH = "s81"
sCNT = "s82"; sM = "s83"; sMASK = "s84"; sRG = "s85"
sDG = ["s%d" % (86 + i) for i in range(7)]
sPV = "s93"; sHE = "s70"; sFL = "s67"; sONE = "s66"; sU = "s65"; sPA = "s64"
STAMP_REGS = {'issued': 0, 'setup': 96, 'pdone': 94, 'prewait': 74, 'karg': 72, 'g1start': 34, 'p1end': 12, 'T5': 96, 'T6': 8, 'T7': 10, 'prepoll': 94, 'zpre': 96, 'zpost': 8, 'g1end': 14, 'cstart': 40, 'c_pre': 42, 'c_post': 44, 'g2start': 54, 'g2_pre': 56, 'g2_post': 58, 'g2end': 60}

def v(i, n=1): return "v%d" % i if n == 1 else "v[%d:%d]" % (i, i + n - 1)
def a(i, n=1): return "a%d" % i if n == 1 else "a[%d:%d]" % (i, i + n - 1)
def lines(t): return [l.strip() for l in t.split("\n") if l.strip()]

stamp_names = []
def stamp(name):
    if not cfg.stamps or cfg.stamps == 'min': return []
    if cfg.trace and STAMP_REGS[name] in (94, 96): return []
    stamp_names.append(name); r = STAMP_REGS[name]
    return [Ins("%s s[%d:%d]" % ("s_memrealtime" if cfg.rt else "s_memtime", r, r + 1))]

slow_paths = []
trace_names = []
TR_S = [94, 96, 8, 12]
def add_trace(G, every, name, regs):
    if not cfg.trace: return
    k = 0
    for g in range(0, G.n - 3, every):
        i = len(trace_names); trace_names.append("%s%d" % (name, g)); r = regs[k % len(regs)]; k += 1
        G.f[g].insert(0, Ins("s_memtime s[%d:%d]" % (r, r + 1)))
        G.f[min(g + (3 if G.n != 144 else 6), G.n - 1)].append("v_writelane_b32 v%d, s%d, %d" % (254 + i // 64, r, i % 64))
vARR = 43; vONE = 0; vP8 = 38; vP7 = 39; vPV = 33; vZERO = 44
def poll_text(kind, off):
    if kind == "z": return f"global_load_dword {v(vPV)}, {v(vZERO)}, {pDBG} sc1"
    if kind == "za": return f"global_load_dword {v(vPV)}, {v(vZERO)}, {pDBG} sc1"
    return f"buffer_load_dword {v(vPV)}, {v(vP7 if kind in 'ha' else vP8)}, {WS}, {off} offen sc1"
def poll_load(kind, off):
    return [] if cfg.nosync else [poll_text(kind, off)]
def poll_check(kind, off):
    if cfg.nosync: return []
    slow_paths.append((kind, off))
    return [f"v_cmp_gt_u32 vcc, {32 if kind[0] == 'z' else 1}, {v(vPV)}", f"s_cbranch_vccnz L_slow_{kind}\n L_back_{kind}:"]
def emit_slow_paths():
    t = []
    for kind, off in slow_paths:
        t += [f"L_slow_{kind}:", f"s_mov_b32 {sCNT}, 0", f"L_spin_{kind}:", f"s_sleep {cfg.sleep}", poll_text(kind, off),
              f"s_add_u32 {sCNT}, {sCNT}, 1", f"s_cmp_gt_u32 {sCNT}, 0x40000", "s_waitcnt vmcnt(0)", f"s_cbranch_scc1 L_back_{kind}",
              f"v_cmp_gt_u32 vcc, {32 if kind[0] == 'z' else 1}, {v(vPV)}", f"s_cbranch_vccnz L_spin_{kind}"] + ([f"v_writelane_b32 v253, {sCNT}, {'zphy'.index(kind.replace('a', 'z'))}"] if cfg.trace and kind != "za" else []) + [f"s_branch L_back_{kind}"]
    return "\n".join(l if l.endswith(":") else "    " + l for l in t)
arr_n = [0]
def arrive(tag, off, bar=True):
    pre = [Ins("s_barrier")] if bar else []
    if cfg.nosync: return pre
    return ([WaitTag('vm', tag)] if bar else []) + pre + [f"buffer_store_dword {v(vONE)}, {v(vARR)}, {WS}, {off} offen sc1"]

def sb(reg): return int(reg[2:reg.index(':')])
def srd_hi(reg, size): return ["s_mov_b32 s%d, 0x%x" % (sb(reg) + 2, size), "s_mov_b32 s%d, 0x20000" % (sb(reg) + 3)]
def ldptr(reg, off): return "s_load_dwordx2 s[%d:%d], s[0:1], %d" % (sb(reg), sb(reg) + 1, off)
def rot_next(r): return [f"s_add_u32 {r}, {r}, 1", f"s_cmp_eq_u32 {r}, 7\n s_cselect_b32 {r}, 0, {r}"]
def mod7(r): return lines(f"s_mul_i32 s3, {r}, 37\n s_lshr_b32 s3, s3, 8\n s_mul_i32 s3, s3, 7\n s_sub_u32 {r}, {r}, s3")

def code_prefetch(P):
    if not cfg.code_pf: return
    P.e(f"""
        s_getpc_b64 s[38:39]
        L_pc:
        s_lshr_b32 s3, s2, 3
        s_lshl_b32 s3, s3, 2
        s_add_u32 s3, s3, {sW}
        s_mul_i32 s3, s3, {cfg.pf_n}
        v_min_u32 v2, {cfg.pf_n-1}, v1
        v_add_u32 v2, s3, v2
        v_min_u32 v2, {cfg.pf_last}, v2
        v_lshlrev_b32 v2, 7, v2
        v_mov_b32 v3, s39
        v_add_co_u32 v2, vcc, s38, v2
        v_addc_co_u32 v3, vcc, 0, v3, vcc
        global_load_dword v255, v[2:3], off
        """)

def gen_main(P):
    PD = cfg.PD; NXR = cfg.NXR; N1 = cfg.n1; CH = 4 * N1; P1 = 28 * N1; NI = 15 - N1
    VL = 1
    VX = [2, 3, 4, 9]; VWg = [5, 6]; VWu = [7, 8]; VSK = [10, 11, 12]; VD = [13, 14, 15, 16]
    XR = [[17, 18, 19, 20], [21, 22, 23, 24]]; WR = [25, 26, 27]; DR = [[28, 29], [30, 31]]
    V16 = 32; T0 = 33; T1 = 34; T2 = 35; T3 = 36; VHZ = 37; CA = 40; CB = 41; VHW = 42; VZ = 44
    ACC = [48, 64, 80, 96]; XRING = 112; ET = 144; PK = [148, 152]; HR = 160; HCP = 176
    assert XRING + 4 * NXR <= ET
    sX = sSO; sQ7 = sSO2; sR = sCNT
    code_prefetch(P)
    P.e(f"""
    s_and_b32 {sX}, s2, 7
    s_lshr_b32 {sT1}, s2, 3
    s_mul_i32 {sQ7}, {sT1}, 37
    s_lshr_b32 {sQ7}, {sQ7}, 8
    s_mul_i32 s3, {sQ7}, 7
    s_sub_u32 {sCT}, {sT1}, s3
    s_lshl_b32 s3, {sX}, 2
    s_add_u32 {sI2}, s3, {sQ7}
    s_and_b32 s3, {sX}, 4
    s_add_u32 {sT2}, s3, {sQ7}
    s_and_b32 {sT0}, {sX}, 3
    s_mul_i32 {sT1}, {sT0}, 7
    s_add_u32 {sT1}, {sT1}, {sCT}
    s_mul_i32 {sM0P}, {sW}, {PIECE}
    s_mul_i32 {sXB}, {sT2}, {256*896}
    s_add_u32 {sXB}, {sXB}, {sM0P}
    s_mul_i32 {sWB}, {sW}, {16*3584}
    s_lshl_b32 s3, {sT1}, 7
    s_add_u32 {sWB}, {sWB}, s3
    s_lshl_b32 {sRG}, {sQ7}, 1
    s_add_u32 {sRG}, {sRG}, {sCT}
    s_lshr_b32 s3, {sX}, {2 if cfg.rot_c == True else 3}
    s_add_u32 {sR}, {sRG}, s3
    """)
    P.add(mod7(sR) if cfg.rot_c else f"s_mov_b32 {sR}, 0")
    def ch_tab(i):
        L = lines(f"s_lshl_b32 s3, {sR}, 7\n s_add_u32 {sCH[i]}, s3, {sXB}\n s_mul_i32 s3, {sR}, {64*3584}\n s_add_u32 {sWC[i]}, s3, {sWB}")
        return L + (rot_next(sR) if i < 6 else [])
    def to_tab(t):
        if cfg.eo: return lines(f"s_add_u32 s3, {sT0}, {t}\n s_and_b32 s3, s3, 3\n s_mul_i32 s3, s3, {2*28672}\n s_add_u32 {sTO[t]}, s3, {28672*(t >> 2)}")
        if cfg.rot_t: return lines(f"s_lshl_b32 s3, {sT0}, 1\n s_add_u32 s3, s3, {t}\n s_and_b32 s3, s3, 7\n s_mul_i32 {sTO[t]}, s3, 28672")
        return [f"s_mov_b32 {sTO[t]}, {28672*t}"]
    for i in range(2): P.add(ch_tab(i))
    for t in range(N1): P.add(to_tab(t))
    P.add(srd_hi(X, NQ + XB) + srd_hi(WG, NW) + srd_hi(WU, NW))
    P.e(f"""
    v_lshrrev_b32 {v(T0)}, 3, {v(VL)}
    v_and_b32 {v(T1)}, 7, {v(VL)}
    v_lshrrev_b32 {v(T2)}, 4, {v(VL)}
    s_lshl_b32 s3, {sW}, 2
    v_add_u32 {v(T3)}, s3, {v(T2)}
    v_and_b32 {v(T3)}, 7, {v(T3)}
    v_xor_b32 {v(T3)}, {v(T1)}, {v(T3)}
    v_lshlrev_b32 {v(T3)}, 4, {v(T3)}
    v_mul_u32_u24 {v(VX[0])}, 896, {v(T0)}
    v_add_u32 {v(T3)}, {XB}, {v(T3)}
    v_add_u32 {v(VX[0])}, {v(VX[0])}, {v(T3)}
    v_add_u32 {v(VX[1])}, -1024, {v(VX[0])}
    v_add_u32 {v(VX[2])}, -2048, {v(VX[0])}
    v_and_b32 {v(T2)}, 1, {v(T2)}
    v_lshlrev_b32 {v(T2)}, 1, {v(T2)}
    v_xor_b32 {v(T3)}, {v(T1)}, {v(T2)}
    v_lshlrev_b32 {v(T3)}, 4, {v(T3)}
    v_mul_u32_u24 {v(VWg[0])}, 3584, {v(T0)}
    v_add_u32 {v(VWg[0])}, {v(VWg[0])}, {v(T3)}
    v_add_u32 {v(VWg[1])}, {28672-1024}, {v(VWg[0])}
    v_xor_b32 {v(VWu[0])}, 64, {v(VWg[0])}
    v_add_u32 {v(VWu[1])}, {28672-1024}, {v(VWu[0])}
    """)
    if cfg.start_stamps: P.add(stamp("prewait"))
    P.e("s_waitcnt lgkmcnt(0)")
    if cfg.start_stamps: P.add(stamp("karg")); P.e("s_waitcnt lgkmcnt(0)\n v_mov_b32 v156, s74\n v_mov_b32 v157, s72")
    P.e(f"""
    s_sub_u32 s4, s4, {XB}
    s_subb_u32 s5, s5, 0
    """)
    def dma_item(i):
        sl = (i % 4) * SLOT; tag = "it%d" % i; L = []
        xl = lambda T, c, u, pre="": [pre + f"s_add_u32 {sSO}, {sCH[c]}, {sTO[T]}", Ins(f"buffer_load_dwordx4 {v(VX[u])}, {X}, {sSO} offen offset:{1024*u} {cfg.sc_g1} lds", tag)]
        if i < 7:
            L.append([f"s_add_u32 m0, {sM0P}, {sl+3072}", Ins(f"buffer_load_dwordx4 {v(VWg[0])}, {WG}, {sWC[i]} offen offset:0 {cfg.sc_g1} lds", tag)])
            L.append(Ins(f"buffer_load_dwordx4 {v(VWg[1])}, {WG}, {sWC[i]} offen offset:1024 {cfg.sc_g1} lds", tag))
            L.append([f"s_add_u32 m0, {sM0P}, {sl+5120}", Ins(f"buffer_load_dwordx4 {v(VWu[0])}, {WU}, {sWC[i]} offen offset:0 {cfg.sc_g1} lds", tag)])
            L.append(Ins(f"buffer_load_dwordx4 {v(VWu[1])}, {WU}, {sWC[i]} offen offset:1024 {cfg.sc_g1} lds", tag))
            for rt in range(N1): L.append(xl(rt, i, rt, f"s_add_u32 m0, {sM0P}, {sl}\n" if rt == 0 else ""))
        else:
            T = i - 7 + N1
            for k in range(7): L.append(xl(T, k, k % 4, f"s_add_u32 m0, {sM0P}, {sl+1024*k}\n" if k % 4 == 0 else ""))
        return L
    first = dma_item(0) + dma_item(1)
    P.add(first[:cfg.n_pre]); late_first = first[cfg.n_pre:]
    ske = srd_hi(SK, 4096) + lines(f"""s_lshr_b32 s3, {sW}, 1
        s_lshl_b32 {sM}, s2, 1
        s_add_u32 {sM}, {sM}, s3
        s_lshl_b32 s3, {sM}, 12
        s_add_u32 s20, s20, s3
        s_addc_u32 s21, s21, 0
        s_and_b32 s3, {sW}, 1
        s_lshl_b32 s3, s3, 11
        v_lshl_add_u32 {v(VSK[0])}, {v(VL)}, 4, s3
        v_add_u32 {v(VSK[1])}, -16, {v(VSK[0])}
        v_add_u32 {v(VSK[2])}, 1008, {v(VSK[0])}
        buffer_load_dwordx4 {v(HR,4)}, {v(VSK[1])}, {SK}, 0 offen
        buffer_load_dwordx4 {v(HR+4,4)}, {v(VSK[0])}, {SK}, 0 offen
        buffer_load_dwordx4 {v(HR+8,4)}, {v(VSK[2])}, {SK}, 0 offen
        buffer_load_dwordx4 {v(HR+12,4)}, {v(VSK[0])}, {SK}, 0 offen offset:1024""")
    if cfg.sk_early and cfg.sk_pos == 0: P.add(ske)
    if cfg.aux_head: P.e("s_branch L_mainc\n L_auxhead:\n L_mainc:")
    if not cfg.pass_stamps: P.add(stamp("issued"))
    P.e(f"""
    s_lshl_b32 s3, s2, 2
    s_load_dword {sD}, {pD}, s3
    v_lshlrev_b32 {v(T3)}, 1, {v(T2)}
    v_xor_b32 {v(T3)}, {v(T1)}, {v(T3)}
    v_lshlrev_b32 {v(T3)}, 4, {v(T3)}
    v_mul_u32_u24 {v(VD[0])}, 896, {v(T0)}
    v_add_u32 {v(VD[0])}, {v(VD[0])}, {v(T3)}
    v_add_u32 {v(VX[3])}, -3072, {v(VX[0])}
    v_and_b32 {v(T0)}, 31, {v(VL)}
    v_lshrrev_b32 {v(T1)}, 3, {v(T0)}
    v_mul_u32_u24 {v(T1)}, {PIECE}, {v(T1)}
    v_and_b32 {v(T2)}, 7, {v(T0)}
    v_lshl_add_u32 {v(T1)}, {v(T2)}, 7, {v(T1)}
    v_lshrrev_b32 {v(T2)}, 1, {v(T0)}
    v_and_b32 {v(T2)}, 7, {v(T2)}
    v_lshrrev_b32 {v(T3)}, 5, {v(VL)}
    v_xor_b32 {v(T2)}, {v(T2)}, {v(T3)}
    v_lshl_add_u32 {v(XR[0][0])}, {v(T2)}, 4, {v(T1)}
    """)
    for k in range(1, 4): P.e(f"v_xor_b32 {v(XR[0][k])}, {32*k}, {v(XR[0][0])}")
    for k in range(4): P.e(f"v_add_u32 {v(XR[1][k])}, {3*SLOT}, {v(XR[0][k])}")
    P.e(f"""
    v_bfe_u32 {v(T0)}, {v(VL)}, 2, 2
    v_lshl_add_u32 {v(T1)}, {v(T3)}, 3, {v(T0)}
    v_lshlrev_b32 {v(T1)}, 7, {v(T1)}
    v_bfe_u32 {v(T2)}, {v(VL)}, 1, 1
    v_lshl_add_u32 {v(T1)}, {v(T2)}, 11, {v(T1)}
    v_lshlrev_b32 {v(T2)}, 1, {v(T2)}
    v_lshrrev_b32 {v(T0)}, 1, {v(T0)}
    v_add_u32 {v(T2)}, {v(T2)}, {v(T0)}
    v_xor_b32 {v(T2)}, {sW}, {v(T2)}
    v_lshl_add_u32 {v(T1)}, {v(T2)}, 5, {v(T1)}
    v_bfe_u32 {v(T2)}, {v(VL)}, 4, 1
    v_lshl_add_u32 {v(T1)}, {v(T2)}, 4, {v(T1)}
    v_and_b32 {v(T2)}, 1, {v(VL)}
    v_lshl_add_u32 {v(T1)}, {v(T2)}, 3, {v(T1)}
    v_add_u32 {v(WR[0])}, 3072, {v(T1)}
    v_add_u32 {v(WR[1])}, {2*SLOT}, {v(WR[0])}
    """)
    if cfg.sk_early and cfg.sk_pos == 1: P.add(ske)
    for i in range(2, 7): P.add(ch_tab(i))
    for t in range(N1, 8): P.add(to_tab(t))
    S = []
    S += lines(f"""
    v_bfe_u32 {v(T1)}, {v(VL)}, 2, 2
    v_lshl_add_u32 {v(T1)}, {v(T3)}, 2, {v(T1)}
    v_lshlrev_b32 {v(T1)}, 7, {v(T1)}
    s_lshr_b32 s3, {sW}, 1
    v_xor_b32 {v(T2)}, s3, {v(T0)}
    v_lshl_add_u32 {v(T1)}, {v(T2)}, 6, {v(T1)}
    v_bfe_u32 {v(T2)}, {v(VL)}, 4, 1
    v_lshl_add_u32 {v(T1)}, {v(T2)}, 5, {v(T1)}
    v_and_b32 {v(T2)}, 3, {v(VL)}
    v_lshl_add_u32 {v(T1)}, {v(T2)}, 3, {v(T1)}
    s_and_b32 s3, {sW}, 1
    s_lshl_b32 s3, s3, 5
    v_xor_b32 {v(T1)}, s3, {v(T1)}
    v_add_u32 {v(DR[0][0])}, {sM0P}, {v(T1)}
    v_xor_b32 {v(DR[0][1])}, 64, {v(DR[0][0])}
    v_add_u32 {v(DR[1][0])}, {2*SLOT}, {v(DR[0][0])}
    v_add_u32 {v(DR[1][1])}, {2*SLOT}, {v(DR[0][1])}
    v_add_u32 {v(VD[1])}, 6144, {v(VD[0])}
    v_add_u32 {v(VD[2])}, {2*6144}, {v(VD[0])}
    v_add_u32 {v(VD[3])}, {3*6144}, {v(VD[0])}
    v_lshlrev_b32 {v(V16)}, 4, {v(VL)}
    s_mul_i32 s3, {sT2}, 28
    s_add_u32 s3, s3, {sT1}
    s_add_u32 s3, s3, 256
    s_lshl_b32 {sFL}, s3, 7
    v_mov_b32 {v(vARR)}, -16
    v_cmp_eq_u32 vcc, 0, v0
    v_min_u32 {v(vP8)}, 7, {v(VL)}
    v_min_u32 {v(vP7)}, 6, {v(VL)}
    v_cndmask_b32 {v(vARR)}, {v(vARR)}, 0, vcc
    v_mov_b32 {v(vONE)}, 1
    s_lshl_b32 s3, {sW}, 3
    v_add_lshl_u32 {v(vP8)}, {v(vP8)}, s3, 7
    s_mul_i32 s3, {sW}, 7
    v_add_lshl_u32 {v(vP7)}, {v(vP7)}, s3, 7
    s_mul_i32 {sWB}, {sT2}, {8*112}
    s_lshl_b32 s3, {sT1}, 2
    s_add_u32 {sWB}, {sWB}, s3
    s_add_u32 {sWB}, {sWB}, {sW}
    s_lshl_b32 {sWB}, {sWB}, 10
    s_add_u32 {sWB}, {sWB}, {WS_H}
    s_mul_i32 {sDB}, {sW}, {448*896}
    s_lshl_b32 s3, {sCT}, 7
    s_add_u32 {sDB}, {sDB}, s3
    s_and_b32 s3, s2, 7
    s_add_u32 {sRG}, {sCT}, s3
    s_and_b32 s3, {sI2}, 3
    s_lshr_b32 s3, s3, {cfg.gq_sh}
    s_mul_i32 s3, s3, {cfg.gq_mul}
    s_add_u32 {sRG}, {sRG}, s3
    """)
    S += mod7(sRG) if cfg.rot_g else [f"s_mov_b32 {sRG}, 0"]
    S += [f"s_mov_b32 {sR}, {sRG}"]
    for i in range(7):
        S += [f"s_mul_i32 s3, {sR}, {0 if cfg.hack_wd else 57344}", f"s_add_u32 {sDG[i]}, s3, {sDB}"] + (rot_next(sR) if i < 6 else [])
    S += srd_hi(WD, NW) + srd_hi(WS, WS_SIZE) + srd_hi(SK, 4096) + srd_hi(OUT, NQ)
    S += lines(f"""
    s_lshr_b32 {sT2}, {sW}, 1
    s_and_b32 {sKH}, {sW}, 1
    s_lshl_b32 {sM}, s2, 1
    s_add_u32 {sM}, {sM}, {sT2}
    s_lshl_b32 s3, {sM}, 12""") + ([] if cfg.sk_early else [f"s_add_u32 s20, s20, s3\n s_addc_u32 s21, s21, 0"]) + lines(f"""
    s_mov_b32 {sNL2E}, 0xbfb8aa3b
    s_mov_b32 {sMASK}, 0xffff0000
    s_mov_b32 {sONE}, 1
    """)
    S2 = lines(f"""
    s_mov_b32 {sHS}, {sWB}
    s_lshl_b32 {sU}, {sKH}, 11
    v_add_u32 {v(VSK[0])}, {sU}, {v(V16)}
    v_add_u32 {v(VSK[1])}, -16, {v(VSK[0])}
    v_add_u32 {v(VSK[2])}, 1008, {v(VSK[0])}
    s_mul_i32 {sT0}, {sT2}, {HCCH}
    s_add_u32 {sT0}, {sT0}, {HC}
    s_mul_i32 {sT1}, {sT2}, {UCH}
    s_add_u32 {sT1}, {sT1}, {UL}
    s_add_u32 s3, {sU}, {sT0}
    s_add_u32 s3, s3, 32
    v_add_u32 {v(VHW)}, s3, {v(V16)}
    v_and_b32 {v(T0)}, 15, {v(VL)}
    v_lshrrev_b32 {v(T1)}, 4, {v(VL)}
    v_sub_u32 {v(T2)}, 3, {v(T0)}
    v_and_b32 {v(T2)}, 3, {v(T2)}
    v_add3_u32 {v(T3)}, {v(T0)}, {v(T2)}, 1
    v_lshl_add_u32 {v(T3)}, {v(T1)}, 3, {v(T3)}
    v_lshlrev_b32 {v(T3)}, 1, {v(T3)}
    v_mul_u32_u24 {v(T2)}, {CPY}, {v(T2)}
    s_lshl_b32 s3, {sKH}, 8
    s_add_u32 {sT0}, {sT0}, s3
    v_add3_u32 {v(CA)}, {v(T2)}, {v(T3)}, {sT0}
    v_lshlrev_b32 {v(T0)}, 5, {v(T0)}
    v_lshlrev_b32 {v(T1)}, 4, {v(T1)}
    v_sub_u32 {v(T1)}, {v(T1)}, {v(T0)}
    s_add_u32 s3, s3, {sT1}
    s_add_u32 s3, s3, 480
    v_add_u32 {v(CB)}, s3, {v(T1)}
    s_add_u32 {sPA}, {sT1}, {sU}
    s_lshl_b32 s3, {sM}, 12
    s_add_u32 {sU}, {sU}, s3
    v_mov_b32 {v(VZ)}, 0
    v_mov_b32 {v(VZ+1)}, 0
    v_mov_b32 {v(VZ+2)}, 0
    v_mov_b32 {v(VZ+3)}, 0
    v_lshrrev_b32 {v(T0)}, 5, {v(VL)}
    v_mul_u32_u24 {v(T0)}, {UCH}, {v(T0)}
    v_and_b32 {v(T1)}, 31, {v(VL)}
    v_lshl_add_u32 {v(T0)}, {v(T1)}, 4, {v(T0)}
    v_add_u32 {v(T0)}, {UL+4096}, {v(T0)}
    ds_write_b128 {v(T0)}, {v(VZ,4)}
    v_and_b32 {v(T0)}, 15, {v(VL)}
    v_lshrrev_b32 {v(T1)}, 1, {v(T0)}
    v_mul_u32_u24 {v(T1)}, {CPY}, {v(T1)}
    v_and_b32 {v(T0)}, 1, {v(T0)}
    v_lshl_add_u32 {v(T0)}, {v(T0)}, 4, {v(T1)}
    v_add_u32 {v(VHZ)}, {HC}, {v(T0)}
    s_mul_i32 {sT0}, {sI2}, 224
    s_mul_i32 s3, {sW}, 28
    s_add_u32 {sT0}, {sT0}, s3
    s_lshl_b32 {sT0}, {sT0}, 10
    s_add_u32 {sHL[0]}, {sT0}, {WS_H}
    s_add_u32 {sHL[1]}, {sT0}, {WS_H + 112*1024}
    """)
    skl = [f"buffer_load_dwordx4 {v(HR,4)}, {v(VSK[1])}, {SK}, 0 offen", f"buffer_load_dwordx4 {v(HR+4,4)}, {v(VSK[0])}, {SK}, 0 offen",
           f"buffer_load_dwordx4 {v(HR+8,4)}, {v(VSK[2])}, {SK}, 0 offen", f"buffer_load_dwordx4 {v(HR+12,4)}, {v(VSK[0])}, {SK}, 0 offen offset:1024"]

    VRW = 224; VRR = 225; VUR = 226; VYS = 227; VY = [228, 229]; VQ = [230, 231]; VGA = 232
    EWA = 233; ERA = [234, 235, 236]; EWB = 237; ERB = [238, 239, 240]; EY = 241; EQ = [242, 243]; EO = 244
    VG = [14, 15]; OMG = [8, 9]; RA = HC + 8192; sO = ["s62", "s63"]; sQS = "s66"; sYS = "s93"
    S3 = lines(f"""
    s_lshl_b32 s3, {sW}, 12
    s_add_u32 s3, s3, {HC}
    v_add_u32 {v(VRW)}, s3, {v(V16)}
    v_xor_b32 {v(VRR)}, 4096, {v(VRW)}
    v_and_b32 {v(T3)}, 15, {v(VL)}
    v_lshlrev_b32 {v(T3)}, 5, {v(T3)}
    v_lshrrev_b32 {v(T2)}, 4, {v(VL)}
    v_lshl_add_u32 {v(T3)}, {v(T2)}, 3, {v(T3)}
    s_lshr_b32 s3, {sW}, 1
    s_mul_i32 s3, s3, {UCH}
    s_lshl_b32 {sT0}, {sKH}, 11
    s_sub_u32 s3, s3, {sT0}
    s_add_u32 s3, s3, {UL+504+2048}
    v_sub_u32 {v(VUR)}, s3, {v(T3)}
    v_and_b32 {v(T1)}, 3, {v(VL)}
    v_lshlrev_b32 {v(T1)}, 4, {v(T1)}
    v_bfe_u32 {v(T3)}, {v(VL)}, 2, 2
    v_lshl_add_u32 {v(T1)}, {v(T3)}, 7, {v(T1)}
    v_bfe_u32 {v(T3)}, {v(VL)}, 4, 1
    v_lshl_add_u32 {v(T1)}, {v(T3)}, 9, {v(T1)}
    v_lshrrev_b32 {v(T3)}, 5, {v(VL)}
    v_lshl_add_u32 {v(VYS)}, {v(T3)}, 6, {v(T1)}
    """)
    S3_marks = [0, len(S3)]
    S3 += lines(f"""
    v_lshrrev_b32 {v(T1)}, 3, {v(VL)}
    v_and_b32 {v(T2)}, 7, {v(VL)}
    v_lshlrev_b32 {v(T3)}, 12, {v(T1)}
    v_lshl_add_u32 {v(VY[0])}, {v(T2)}, 4, {v(T3)}
    v_add_u32 {v(VY[1])}, {32768-1024}, {v(VY[0])}
    v_lshrrev_b32 {v(T3)}, 4, {v(VL)}
    v_xor_b32 {v(T2)}, {v(T2)}, {v(T3)}
    v_lshlrev_b32 {v(T2)}, 4, {v(T2)}
    v_mul_u32_u24 {v(T1)}, 896, {v(T1)}
    v_add_u32 {v(VQ[0])}, {v(T1)}, {v(T2)}
    v_xor_b32 {v(T2)}, 64, {v(T2)}
    v_add_u32 {v(T1)}, {7168-1024}, {v(T1)}
    v_add_u32 {v(VQ[1])}, {v(T1)}, {v(T2)}
    s_lshl_b32 s3, {sI2}, 8
    s_add_u32 s3, s3, {WS_G}
    v_and_b32 {v(T1)}, 31, {v(VL)}
    v_lshl_add_u32 {v(VGA)}, {v(T1)}, 2, s3
    s_lshl_b32 s3, {sI2}, 2
    s_add_u32 s3, s3, {sW}
    s_mul_i32 s3, s3, {16*896}
    s_lshl_b32 {sQS}, {sCT}, 7
    s_add_u32 {sQS}, {sQS}, s3
    s_add_u32 {sQS}, {sQS}, {XB}
    """)
    ea = [f"s_mul_i32 {sT0}, {sW}, 6144", f"s_add_u32 s3, {sT0}, {RA}", f"v_add_u32 {v(EWA)}, s3, {v(V16)}", f"v_add_u32 {v(EWB)}, {sM0P}, {v(V16)}"]
    for sg in range(1, 4):
        ea += [f"s_xor_b32 {sT0}, {sW}, {sg}", f"s_mul_i32 s3, {sT0}, 6144", f"s_add_u32 s3, s3, {RA + 2048*(sg-1)}", f"v_add_u32 {v(ERA[sg-1])}, s3, {v(V16)}",
               f"s_mul_i32 s3, {sT0}, {PIECE}", f"s_add_u32 s3, s3, {(sg-1)*SLOT}", f"v_add_u32 {v(ERB[sg-1])}, s3, {v(V16)}"]
    ea += lines(f"""v_bfe_u32 {v(T1)}, {v(VL)}, 2, 2
    v_lshrrev_b32 {v(T2)}, 5, {v(VL)}
    v_lshl_add_u32 {v(T1)}, {v(T2)}, 2, {v(T1)}
    v_lshlrev_b32 {v(T1)}, 7, {v(T1)}
    v_bfe_u32 {v(T3)}, {v(VL)}, 1, 1
    v_lshl_add_u32 {v(T1)}, {v(T3)}, 6, {v(T1)}
    v_bfe_u32 {v(T3)}, {v(VL)}, 4, 1
    v_lshl_add_u32 {v(T1)}, {v(T3)}, 4, {v(T1)}
    v_and_b32 {v(T3)}, 1, {v(VL)}
    v_lshl_add_u32 {v(T1)}, {v(T3)}, 3, {v(T1)}
    s_lshl_b32 s3, {sW}, 11
    s_add_u32 s3, s3, {YL}
    v_add_u32 {v(EY)}, s3, {v(T1)}
    v_and_b32 {v(T1)}, 31, {v(VL)}
    v_bfe_u32 {v(T3)}, {v(VL)}, 1, 3
    s_lshl_b32 s3, {sW}, 1
    v_xor_b32 {v(T3)}, s3, {v(T3)}
    v_lshlrev_b32 {v(T3)}, 4, {v(T3)}
    v_lshl_add_u32 {v(T3)}, {v(T1)}, 7, {v(T3)}
    v_lshl_add_u32 {v(T3)}, {v(T2)}, 3, {v(T3)}
    v_add_u32 {v(EQ[0])}, {QL}, {v(T3)}
    v_xor_b32 {v(EQ[1])}, 16, {v(EQ[0])}
    v_mul_u32_u24 {v(T1)}, 896, {v(T1)}
    v_lshl_add_u32 {v(EO)}, {v(T2)}, 4, {v(T1)}
    s_mul_i32 {sO[0]}, {sI2}, {64*896}
    s_lshl_b32 s3, {sCT}, 2
    s_add_u32 s3, s3, {sW}
    s_lshl_b32 {sT0}, s3, 5
    s_add_u32 {sO[0]}, {sO[0]}, {sT0}
    s_add_u32 {sO[1]}, {sO[0]}, {32*896}
    s_lshl_b32 s3, s3, 16
    s_lshl_b32 {sYS}, {sI2}, 7
    s_add_u32 {sYS}, {sYS}, s3
    s_add_u32 {sYS}, {sYS}, {WS_YT}""")
    S3_marks.append(len(S3))
    S3 += ea + [f"v_add_u32 {v(245)}, 57344, {v(EWB)}"]
    NG = 224
    G = Gaps(NG)
    def item_start(i): return CH * i if i <= 7 else P1 + 28 * (i - 7)
    gT = lambda T: item_start(T + 7 - N1)
    def xread(g):
        if g < P1: c = g // CH; ks = (g % CH) // N1; unit = g % N1; it = c
        else: it = 7 + (g - P1) // 28; k = (g - P1) % 28; ks = k % 4; unit = k // 4
        sl = it % 4; hi = 1 if sl >= 3 else 0
        off = (sl - 3 * hi) * SLOT + 1024 * unit
        return f"ds_read_b128 {v(XRING+4*(g%NXR),4)}, {v(XR[hi][ks])} offset:{off}"
    def wread(c, ks):
        sl = c % 4; var = sl // 2; off = (sl - 2 * var) * SLOT + PIECE * ks; f = 4 * (4 * c + ks)
        return [f"ds_read_b64_tr_b16 {a(f+2*rd,2)}, {v(WR[var])} offset:{off+512*rd}" for rd in range(2)]
    tile_acc = {0: 0, 1: 1, 2: 2, 3: 3, 4: 0, 5: 1, 6: 2, 7: 3}
    for g in range(NG):
        if g < P1: c = g // CH; ks = 4 * c + (g % CH) // N1; T = g % N1
        else: T = N1 + (g - P1) // 28; ks = (g - P1) % 28
        A = v(ACC[tile_acc[T]], 16)
        G.m[g] = f"v_mfma_f32_32x32x16_bf16 {A}, {a(4*ks,4)}, {v(XRING+4*(g%NXR),4)}, {'0' if ks == 0 else A}"
    pre = []
    def at(g, item):
        if g < 0: pre.append(item)
        else: G.put(g, item)
    gB = lambda i: item_start(i) - PD - 1
    if not cfg.hack_p: G.put(cfg.p_load, poll_load("p", "0"))
    G.put(cfg.p_chk, [stamp("prepoll") if not (cfg.pass_stamps or cfg.start_stamps) else [], [] if cfg.hack_p else poll_check("p", "0"), [] if cfg.p_chk in (gB(NI - 2), gB(NI - 1), gT(7)) else Ins("s_barrier")])
    for i in range(NI):
        at(gB(i), [WaitTag('vm', "it%d" % i), Ins("s_barrier")])
    assert cfg.z_chk < cfg.p_load
    G.put(cfg.z_load, poll_load("z", None))
    G.f[cfg.z_chk].insert(0, [stamp("zpre") if not (cfg.pass_stamps or cfg.start_stamps) else [], poll_check("z", None), stamp("zpost") if not (cfg.pass_stamps or cfg.start_stamps) else []])
    for g in range(NG):
        if g < P1 and g % N1 == 0:
            for s_ in wread(g // CH, (g % CH) // N1): at(g - PD - 1, s_)
        at(g - PD - 1, xread(g))
    cb = cfg.blk_c; deep = cfg.blk_deep and cb is not None
    for c in range(7):
        if deep:
            if c < cb: G.spread(dma_item(c + 2), max(gB(c) + 1, 0), gB(c + 1) + 1)
            if c > cb: G.put(12 * c, Ins("s_barrier")); G.spread(dma_item(c + 3), 12 * c + 1, 12 * c + 12)
        elif c != cb or not cfg.blk_dma: G.spread(dma_item(c + 2), max(gB(c) + 1, 0), gB(c + 1) + 1)
    for T in range(5 if cfg.no_x else N1, 8): G.put(gT(T), ([WaitTag('lgkm', "hcw")] if T == 7 else []) + [Ins("s_barrier")])
    if deep: G.spread(dma_item(10), gT(3) + 1, gT(3) + 20)
    elif cfg.no_x:
        for i in range(9, NI): G.spread(dma_item(i), gB(i - 2) + 1, gB(i - 2) + 22)
    else: G.spread(dma_item(9) + dma_item(10), gB(7) + 1, gB(8) + 1)
    if not cfg.no_x:
        for i in range(11, NI): G.spread(dma_item(i), item_start(i - 3) + 1, item_start(i - 3) + 20)
    if cfg.wd_touch >= 0: G.put(cfg.wd_touch, f"buffer_load_dword {v(202)}, {v(200)}, {WD}, 0 offen {cfg.sc_wd}")
    for g_, n_ in (cfg.hack_sleep or []): G.put(g_, "s_sleep %d" % n_)
    if cfg.sk_at >= 0: G.spread(skl, cfg.sk_at, cfg.sk_at + 8)
    hv = []
    for rho in range(2):
        R = HR + 8 * rho; C_ = HCP + 12 * rho
        for k in range(4): hv.append(f"v_alignbit_b32 {v(C_+k)}, {v(R+4+k)}, {v(R+3+k)}, 16")
        for k in range(4): hv.append(f"v_mov_b32 {v(C_+4+k)}, {v(R+3+k)}")
        for k in range(4): hv.append(f"v_alignbit_b32 {v(C_+8+k)}, {v(R+3+k)}, {v(R+2+k)}, 16")
    hw = [Ins(f"ds_write_b128 {v(VHZ)}, {v(VZ,4)}", "hcw")]
    for rho in range(2):
        R = HR + 8 * rho; C_ = HCP + 12 * rho
        for cpy, src in enumerate((R + 4, C_, C_ + 4, C_ + 8)):
            hw.append(Ins(f"ds_write_b128 {v(VHW)}, {v(src,4)} offset:{cpy*CPY+1024*rho}", "hcw"))
    def epi(T, packed=False):
        A = ACC[tile_acc[T]]; Pk = PK[T % 2]; L = []
        for grp in range(2):
            g_ = A + 8 * grp; u_ = g_ + 4; E = ET
            if packed:
                E = ET if grp == 0 else HR
                L += [f"v_mul_f32 {v(E+i)}, {sNL2E}, {v(g_+i)}" for i in range(4)]
                L += [f"v_exp_f32 {v(E+i)}, {v(E+i)}" for i in range(4)]
                L += [f"v_pk_mul_f32 {v(u_+2*i,2)}, {v(g_+2*i,2)}, {v(u_+2*i,2)}" for i in range(2)]
                L += [f"v_pk_add_f32 {v(E+2*i,2)}, {v(E+2*i,2)}, 1.0 op_sel_hi:[1,0]" for i in range(2)]
                L += [f"v_rcp_f32 {v(E+i)}, {v(E+i)}" for i in range(4)]
                L += [f"v_pk_mul_f32 {v(u_+2*i,2)}, {v(u_+2*i,2)}, {v(E+2*i,2)}" for i in range(2)]
            else:
                L += [f"v_mul_f32 {v(E+i)}, {sNL2E}, {v(g_+i)}" for i in range(4)]
                L += [f"v_exp_f32 {v(E+i)}, {v(E+i)}" for i in range(4)]
                L += [f"v_mul_f32 {v(u_+i)}, {v(g_+i)}, {v(u_+i)}" for i in range(2)]
                L += [f"v_add_f32 {v(E+i)}, 1.0, {v(E+i)}" for i in range(4)]
                L += [f"v_rcp_f32 {v(E+i)}, {v(E+i)}" for i in range(4)]
                L += [f"v_mul_f32 {v(u_+i)}, {v(g_+i)}, {v(u_+i)}" for i in range(2, 4)]
                L += [f"v_mul_f32 {v(u_+i)}, {v(u_+i)}, {v(E+i)}" for i in range(4)]
            L += [f"v_cvt_pk_bf16_f32 {v(Pk+2*grp+i)}, {v(u_+2*i)}, {v(u_+2*i+1)}" for i in range(2)]
        L.append(f"s_lshl2_add_u32 {sSO2}, {sTO[T]}, {sHS}")
        L.append(Ins(f"buffer_store_dwordx4 {v(Pk,4)}, {v(V16)}, {WS}, {sSO2} offen {cfg.sc_h}", "hst%d" % T))
        return L
    page_slot = [(T + 7 - N1) % 4 for T in (4, 5, 6, 7)]
    def wd_page(n): return n if n < 21 else (n - 21 if n < 28 else (n - 7 if n < 35 else (n - 28 if n < 49 else n - 49)))
    def wd_prev(n): return n - 21 if 21 <= n < 28 else (n - 28 if n >= 35 else None)
    def wd_dma(n0, n1):
        L = []; n = n0
        while n < n1:
            p = wd_page(n); cnt = min(4, n1 - n, 7 - p % 7, 8 - n % 8)
            lds = page_slot[p // 7] * SLOT + 1024 * (p % 7)
            for k in range(cnt):
                it = [Ins(f"buffer_load_dwordx4 {v(VD[k])}, {WD}, {sSO} offen offset:{1024*k} {cfg.sc_wd} lds", "wd%d" % (n + k))]
                if wd_prev(n + k) is not None: it = [WaitTag('lgkm', "wr%d" % wd_prev(n + k))] + it
                if k == 0: L.append(f"s_add_u32 m0, {sM0P}, {lds}\n s_add_u32 {sSO}, {sDG[n >> 3]}, {7168*(n % 8)}")
                L.append(it)
            n += cnt
        return L
    def wd_read(n, dst):
        p = wd_page(n); sl = page_slot[p // 7]; hi = 1 if sl >= 2 else 0
        off = (sl - 2 * hi) * SLOT + 1024 * (p % 7)
        return [[WaitTag('vm', "wd%d" % n)] * (dt == 0 and not 28 <= n < 28 + cfg.n_raw) + [Ins(f"ds_read_b64_tr_b16 {dst(dt)}, {v(DR[hi][dt])} offset:{off}", "wr%d" % n)] for dt in range(2)]
    WD1 = 112
    NR = cfg.n_raw; RAW0 = 224 - 4 * NR; EWH = 245
    def raw_reg(n): return RAW0 + 4 * (NR - 1 - (n - 28))
    def raw_loads(n0, n1):
        L = []; n = n0
        while n < n1:
            cnt = min(4, n1 - n, 8 - n % 8)
            L.append(f"s_add_u32 {sSO}, {sDG[n >> 3]}, {7168*(n % 8)}")
            L += [f"buffer_load_dwordx4 {v(raw_reg(n+k),4)}, {v(VD[k])}, {WD}, {sSO} offen offset:{1024*k}" for k in range(cnt)]
            n += cnt
        return L
    def raw_write(n):
        p = wd_page(n); off = page_slot[p // 7] * SLOT + 1024 * (p % 7)
        it = [Ins(f"ds_write_b128 {v(EWB if off < 57344 else EWH)}, {v(raw_reg(n),4)} offset:{off if off < 57344 else off - 57344}", "ww%d" % n)]
        return [it]
    def fill_units(n0, n1):
        m = min(max(28 + NR, n0), n1)
        return [x for n in range(n0, m) for x in raw_write(n)] + wd_dma(m, n1)
    def wd1(n): return lambda dt: a(WD1 + 8 * (n >> 1) + 4 * dt + 2 * (n & 1), 2)
    def wd_reads(n0, n1): return [x for n in range(n0, n1) for x in wd_read(n, wd1(n))]
    preblk = []
    if cfg.blk_c is None:
        if cfg.s3_at >= 0: l3_ = G.pour(S3, cfg.s3_at, cfg.hv_at, cfg.bud1); assert l3_ < 80
        lh = G.pour(hv, cfg.hv_at, min(max(P1 - 4, cfg.hv_at + 24), cfg.hw0 - 2), cfg.bud1 if cfg.hv_at < 70 else 20); assert lh < cfg.hw0
        G.spread(hw, cfg.hw0, cfg.hw1)
    else:
        n3 = len(S3) - (S3_marks + [len(S3)])[3 - cfg.blk_s3]; S3b = S3[len(S3) - n3:]; del S3[len(S3) - n3:]
        work = [hw[0], hv[0:4], hw[1], hv[4:8], hw[2], hv[8:12], hw[3], hv[12:16], hw[4], hv[16:20], hw[5], hv[20:24], hw[6], S3b[:5], hw[7], S3b[5:10], hw[8], S3b[10:]]
        d_ = dma_item(cfg.blk_c + 2) if cfg.blk_dma else []; blk = []
        if deep:
            G.spread(d_[:4], gB(cb) + 1, 12 * cb); d_ = d_[4:] + dma_item(cb + 3); blk = [Ins("s_barrier")]
        step_ = max(len(work) // (len(d_) + 1), 1)
        for j, it in enumerate(work):
            if j % step_ == 0 and d_: blk.append(d_.pop(0))
            blk.append(it)
        if cfg.blk_list:
            done_ = 0
            for g_, nw_ in cfg.blk_list:
                k_ = min(len(blk), done_ + 2 * nw_) if (g_, nw_) != cfg.blk_list[-1] else len(blk)
                G.put(g_, blk[done_:k_]); done_ = k_
        elif cfg.blk_g2: G.put(cfg.blk_g, blk[:9]); G.put(cfg.blk_g2, blk[9:])
        elif cfg.blk_g < 0: preblk = blk
        else: G.put(12 * cb if deep else (gB(cb) + 1 if cfg.blk_dma else cfg.blk_g), blk + d_)
    if NR:
        r0, r1, r2 = 28, 28 + min(NR, 6), 28 + min(NR, 6 + (NR - 6 + 1) // 2)
        assert cfg.hw1 <= gT(5) + 8 or NR <= 6
        G.spread(raw_loads(r0, r1), gT(4) + 21 - 12, gT(5))
        G.spread(wd_dma(0, 7), gT(5) + 1, gT(5) + 15); G.spread(raw_loads(r1, r2), gT(5) + 15, gT(6))
        G.spread(wd_dma(7, 14), gT(6) + 1, gT(6) + 15); G.spread(raw_loads(r2, 28 + NR), gT(6) + 15, gT(7))
    else:
        G.spread(wd_dma(0, 7), gT(5) + (17 if cfg.no_x else 1), gT(5) + (28 if cfg.no_x else 22))
        G.spread(wd_dma(7, 14), gT(6) + 1, gT(6) + 20)
    UD = ([f"s_mov_b32 m0, {sPA}\n s_add_u32 {sSO}, {sU}, {WS_UR if not cfg.hack_p else 0x900000}"] + [Ins(f"buffer_load_dwordx4 {v(V16)}, {WS}, {sSO} offen offset:{1024*j} sc1 lds", "u") for j in range(2)])
    G.spread(wd_reads(0, 7), gB(NI - 1) + 2, gT(7) + 12)
    if cfg.p_chk > gT(7) + 8:
        G.spread(wd_dma(14, 21), gT(7) + 1, cfg.p_chk)
        G.put(cfg.p_chk + 1, UD)
        G.spread(wd_dma(21, 28), cfg.p_chk + 2, NG - 1)
    elif cfg.p_chk == gT(7):
        G.put(gT(7) + 1, UD)
        G.spread(wd_dma(14, 28), gT(7) + 2, NG - 1)
    else:
        assert cfg.p_chk in (gB(NI - 2), gB(NI - 1))
        G.put(cfg.p_chk + 4, UD)
        G.spread(wd_dma(14, 28), gT(7) + 1, NG - 1)
    bounds = [P1 + 2 + (NG - P1 - 4) * k // 7 for k in range(8)]
    last = 0
    for T in range(7):
        avail = (P1 if T < N1 else gT(T + 1)) + 2
        if cfg.epi_len: g0 = max(avail, last); g1_ = min(g0 + cfg.epi_len, NG - 1)
        else: g0 = max(bounds[T], avail, last); g1_ = max(bounds[T + 1], g0 + 1)
        last = G.pour(epi(T), g0, g1_, cfg.bud)
        if T == 3 and cfg.eo: assert last < cfg.a_arr - 4, last
        nxt = [t for t in range(T + 1, 8) if tile_acc[t] == tile_acc[T]]
        if nxt: assert last < gT(nxt[0]), (T, last)
    if cfg.eo:
        k_ = [i for i, it in enumerate(G.f[cfg.a_arr]) if isinstance(it, list) and any(isinstance(x, Ins) and x.op == "s_barrier" for x in it)][0]
        if not cfg.nosync: G.f[cfg.a_arr].insert(k_, WaitTag('vm', "hst3")); k_ += 1
        G.f[cfg.a_arr].insert(k_ + 1, [f"s_add_u32 {sT1}, {sFL}, {512*128}", arrive("hst3", sT1, False)])
        G.put(cfg.a_load - 2, f"s_lshr_b32 {sT1}, {sI2}, 2\n s_mul_i32 {sT1}, {sT1}, {28*128}")
        G.put(cfg.a_load - 1, f"s_add_u32 {sT1}, {sT1}, {768*128}")
        G.put(cfg.a_load, poll_load("a", sT1))
    check_m0(G)
    SS = S + S2; k0 = len(SS) * min(cfg.late_pos, 100) // 100
    touch = []
    if cfg.x_touch:
        touch = lines(f"""v_min_u32 {v(200)}, {8*cfg.x_touch-1}, {v(VL)}
        v_lshrrev_b32 {v(201)}, 3, {v(200)}
        s_lshl_b32 s3, {sFQ}, 1
        s_add_u32 s3, s3, 3
        v_add_u32 {v(201)}, {'s3' if cfg.rot_t else '3'}, {v(201)}
        v_and_b32 {v(201)}, 7, {v(201)}
        v_mul_u32_u24 {v(201)}, 28672, {v(201)}
        v_and_b32 {v(200)}, 7, {v(200)}
        v_mul_u32_u24 {v(200)}, 896, {v(200)}
        v_add3_u32 {v(200)}, {v(200)}, {v(201)}, {sXBc}
        buffer_load_dword {v(202)}, {v(200)}, {X}, {sCH[0]} offen""")
    kvt = lines(f"""s_lshl_b32 s3, s2, 2
    s_add_u32 s3, s3, {sW}
    s_lshl_b32 s3, s3, 4
    v_min_u32 {v(203)}, 15, {v(VL)}
    v_add_lshl_u32 {v(203)}, {v(203)}, s3, 7
    global_load_dword {v(204)}, {v(203)}, s[94:95]
    global_load_dword {v(205)}, {v(203)}, s[96:97]""")
    if cfg.sk_early and cfg.sk_pos == 2: P.add(ske)
    P.add(SS[:k0])
    if cfg.sk_early and cfg.sk_pos == 3: P.add(ske)
    if cfg.late_pos <= 100: P.add(late_first)
    P.add(SS[k0:])
    if cfg.kv_touch == 1: P.add(kvt)
    if cfg.s3_at < 0: P.add(S3)
    if cfg.late_pos > 100: P.add(late_first)
    if cfg.kv_touch == 2: P.add(kvt)
    if cfg.trace: P.e('v_mov_b32 v253, 0')
    P.e(f"""s_lshl_b32 s3, s2, 2
    s_add_u32 s3, s3, {sW}
    s_mul_i32 s3, s3, 14
    v_min_u32 {v(200)}, 13, {v(VL)}
    v_add_lshl_u32 {v(200)}, {v(200)}, s3, 7""")
    if cfg.sk_at < 0 and not cfg.sk_early: P.add(skl)
    if cfg.tlb:
        P.e(f"""v_min_u32 {v(203)}, 12, {v(VL)}
        v_lshlrev_b32 {v(203)}, 20, {v(203)}
        v_add_u32 {v(203)}, 0x1f000, {v(203)}
        buffer_load_dword {v(204)}, {v(203)}, {WS}, 0 offen
        buffer_load_dword {v(205)}, {v(VZ)}, {OUT}, 0 offen
        buffer_load_dword {v(206)}, {v(VZ)}, {WD}, 0 offen""")
    if cfg.wd_touch == -2: P.e(f"buffer_load_dword {v(202)}, {v(200)}, {WD}, 0 offen {cfg.sc_wd}")
    if cfg.warm and cfg.stub_at:
        P.e("s_mov_b64 exec, 0")
        for k in range(min(4, len(cfg.stub_at))): P.e(f"s_cmp_eq_u32 {sW}, {k}\n s_cbranch_scc1 L_pg{k}")
        P.e("L_pgback:\n s_mov_b64 exec, -1")
    if cfg.start_stamps: P.add(stamp("setup"))
    P.e(f"""s_waitcnt lgkmcnt(0)
    s_lshl_b32 s3, {sD}, 16
    s_and_b32 {sD}, {sD}, 0xffff0000
    s_cmp_lt_u32 {sW}, 2
    s_cselect_b32 {sD}, s3, {sD}""")
    P.add(preblk)
    P.add(pre)
    P.add(stamp("g1start"))
    G.put(P1 - 1, stamp("p1end"))
    if cfg.pass_stamps:
        for T in (5, 6, 7): G.put(gT(T) - 1, stamp("T%d" % T))
    add_trace(G, 6, 'g', [94, 96])
    G.emit(P, cfg.pair)
    if cfg.verbose: print("G1 gap costs", G.costs())
    if cfg.start_stamps: P.e("v_readfirstlane_b32 s8, v156\n v_readfirstlane_b32 s10, v157"); STAMP_REGS['prewait'] = 8; STAMP_REGS['karg'] = 10
    P.add(stamp("g1end"))
    CACC = 48
    def cA(buf, a_): return (0 if buf == 0 else 64) + 4 * a_
    def cB(buf, b_):
        i = 32 + 4 * b_ if buf == 0 else 96 + 4 * b_
        return i if i < 112 else 224 + (i - 112)
    def crA(st, k): return [f"ds_read_b64 {a(cA(st&1,k)+2*rd,2)}, {v(CA)} offset:{512*k+64*st+8*rd}" for rd in range(2)]
    def crB(st, k): return [f"ds_read_b128 {a(cB(st&1,k),4)}, {v(CB)} offset:{64*st+512*(7-k)}"]
    def creads(st): return [x for k in range(8) for x in crB(st, k) + crA(st, k)]
    e7 = epi(7, True); ra = [x for k in range(8) for x in crA(0, k)]
    P.add(ra[:10]); k = 10
    for j, it in enumerate(e7):
        P.add(it)
        if j % 6 == 5 and k < 16: P.add(ra[k]); k += 1
    P.add(ra[k:])
    P.vmwait("u"); P.e("s_barrier")
    for k in range(8): P.add(crB(0, k))
    hg = [f"s_lshr_b32 s3, {sI2}, 2", "s_mul_i32 s3, s3, 28", f"s_add_u32 s3, s3, 256", f"s_lshl_b32 s3, s3, 7", f"v_add_u32 {v(vP7)}, s3, {v(vP7)}",
          f"s_add_u32 s3, {sI2}, 32", "s_lshl_b32 s3, s3, 7", f"v_mov_b32 {v(T1)}, s3", f"v_cmp_gt_u32 vcc, 7, {v(VL)}", f"s_mov_b32 {sPA}, 0", "s_nop 0",
          f"v_cndmask_b32 {v(vP7)}, {v(T1)}, {v(vP7)}, vcc",
          f"s_lshl_b32 {sRG}, {sRG}, 12", f"s_add_u32 {sXB}, {sHL[0]}, {sRG}", f"s_add_u32 {sHE}, {sHL[0]}, {28*1024}"]
    d0 = fill_units(28, 35)
    npre = 0 if NR else 3
    P.add(d0[:npre])
    P.add(stamp("cstart"))
    C = Gaps(144)
    pairs = [(t, a_) for t in range(8) for a_ in range(t + 1)]
    for st in range(4):
        for j, (t, a_) in enumerate(pairs):
            A = v(CACC + 4 * t, 4)
            C.m[36 * st + j] = f"v_mfma_f32_16x16x32_bf16 {A}, {a(cA(st&1,a_),4)}, {a(cB(st&1,t-a_),4)}, {'0' if (st == 0 and a_ == 0) else A}"
        if st < 3: C.spread(creads(st + 1), 36 * st + 1, 36 * st + 33)
    HRING = 96; NHR = 32
    horder = [(0, ks) for ks in range(28)] + [(1, ks) for ks in (list(range(14, 28)) + list(range(14)) if cfg.b_rev else range(28))]
    def hload(n):
        st, ks = horder[n]; L = []
        if n == 28: L += [f"s_add_u32 {sXB}, {sHL[1]}, {sRG}", f"s_add_u32 {sHE}, {sHL[1]}, {28*1024}"]
        elif n > 0 and ks % 4 == 0: L += [f"s_add_u32 {sXB}, {sXB}, 4096", f"s_cmp_eq_u32 {sXB}, {sHE}\n s_cselect_b32 {sXB}, {sHL[st]}, {sXB}"]
        L.append(f"buffer_load_dwordx4 {v(HRING+4*(n%NHR),4)}, {v(V16)}, {WS}, {sXB} offen offset:{1024*(ks%4)} sc1")
        return L
    w0, w1, w2, w3 = cfg.c_wd
    C.spread(d0[npre:], 0, w0)
    C.spread(wd_reads(7, 14), 2, w0 - 2); C.spread(fill_units(35, 42), w0, w1)
    C.spread(wd_reads(14, 21), w0, w1 - 2); C.spread(fill_units(42, 49), w1, w2)
    C.spread(wd_reads(21, 28), w1, w2 - 2); C.spread(wd_dma(49, 56), w2, w3)
    C.put(cfg.g_arrive, arrive("hst7", sFL))
    if cfg.eo: C.put(cfg.a_chk, poll_check("a", sT1))
    lh_ = C.pour(hg, cfg.a_chk + 1 if cfg.eo else 40, min(cfg.g_poll, cfg.h_first) - 4, 10); assert lh_ < min(cfg.g_poll, cfg.h_first)
    C.put(cfg.g_poll, poll_load("h", sPA))
    HCHK = [stamp("c_pre"), poll_check("h", sPA), stamp("c_post")]
    if not cfg.eo: C.put(cfg.g_chk, HCHK)
    NH = cfg.nh_c
    C.spread([hload(n) for n in range(NH)], cfg.h_first if cfg.eo else cfg.g_chk + 1, 144)
    RR = 48; UU = 18; DU = 80
    ce = [f"s_add_u32 {sU}, {sU}, {WS_YT}"]
    ce += [f"ds_read_b64 {v(UU+2*tau,2)}, {v(VUR)} offset:{512*(3-tau)}" for tau in range(4)]
    for tau in range(4):
        ce += lines(f"""
        v_and_b32 {v(DU+4*tau+0)}, {sMASK}, {v(UU+2*tau+1)}
        v_lshlrev_b32 {v(DU+4*tau+1)}, 16, {v(UU+2*tau+1)}
        v_and_b32 {v(DU+4*tau+2)}, {sMASK}, {v(UU+2*tau)}
        v_lshlrev_b32 {v(DU+4*tau+3)}, 16, {v(UU+2*tau)}""")
    lr = C.pour(ce[:5], max(lh_ + 1, 104), 112, 8); assert lr < cfg.c_bar - 4
    lc = C.pour(ce[5:], lr + 6, 140, 8)
    assert lc < 140
    C.put(cfg.c_bar, [WaitRegs(a(cA(1, 7), 4)), WaitRegs(v(UU, 8)), Ins("s_barrier")])
    for g_, n_ in (cfg.hack_sleep_c or []): C.put(g_, 's_sleep %d' % n_)
    check_m0(C, 1024)
    add_trace(C, 12, 'c', [94, 96])
    C.emit(P)
    if cfg.verbose: print("C gap costs", C.costs())
    hq = [hload(n) for n in range(NH, NH + cfg.nh_e)]; NH += cfg.nh_e
    def hnext():
        if hq: P.add(hq.pop(0))
    hnext()
    dfma = lambda base: [f"v_pk_fma_f32 {v(DU+2*k,2)}, s[78:79], {v(DU+2*k,2)}, {v(base+2*k,2)} op_sel_hi:[0,1,1]" for k in range(8)]
    P.e(f"s_cmp_eq_u32 {sKH}, 0\n s_cbranch_scc1 L_cw0")
    for tau in range(4): P.e(f"ds_write_b128 {v(VRW)}, {v(CACC+4*tau,4)} offset:{1024*tau}", nocount=True)
    P.add(dfma(CACC + 16))
    P.e("s_branch L_cw1\n L_cw0:\n s_nop 2")
    for tau in range(4): P.e(f"ds_write_b128 {v(VRW)}, {v(CACC+16+4*tau,4)} offset:{1024*tau}")
    P.add(dfma(CACC))
    P.e("L_cw1:")
    while hq: hnext()
    P.e("s_waitcnt lgkmcnt(0)\n s_barrier")
    ct_ = [f"ds_read_b128 {v(RR+4*tau,4)}, {v(VRR)} offset:{1024*tau}" for tau in range(4)]
    P.add(ct_); ct_ = []
    for pi in range(2):
        if cfg.c_tail_in_g2: ct_ += [f"v_add_f32 {v(DU+8*pi+k)}, {v(DU+8*pi+k)}, {v(RR+8*pi+k)}" for k in range(8)]
        else: ct_ += [f"v_pk_add_f32 {v(DU+8*pi+2*k,2)}, {v(DU+8*pi+2*k,2)}, {v(RR+8*pi+2*k,2)}" for k in range(4)]
        ct_ += [f"v_cvt_pk_bf16_f32 {v(UU+4*pi+k)}, {v(DU+8*pi+2*k)}, {v(DU+8*pi+2*k+1)}" for k in range(4)]
    for pi in range(2):
        ct_ += [f"v_permlane16_swap_b32 {v(UU+4*pi)}, {v(UU+4*pi+2)}", f"v_permlane16_swap_b32 {v(UU+4*pi+1)}, {v(UU+4*pi+3)}"]
        ct_ += [Ins(f"buffer_store_dwordx4 {v(UU+4*pi,4)}, {v(VYS)}, {WS}, {sU} offen offset:{1024*pi} sc1", "yst")]
    if not cfg.c_tail_in_g2: P.add(ct_); ct_ = []
    P.add(stamp("g2start"))
    GACC = 0; JIT = 64; NJ = 8
    G2 = Gaps(112)
    jn = 0
    for n in range(56):
        st, ks = horder[n]
        for dt in range(2):
            A = a(GACC + 32 * st + 16 * dt, 16)
            if ks < 14: W_ = a(WD1 + 8 * ks + 4 * dt, 4)
            else:
                r_ = JIT + 4 * (jn % NJ); jn += 1; W_ = a(r_, 4)
                for rd in range(2):
                    G2.put(2 * n + dt - 6, wd_read(2 * ks + rd, lambda d_, r_=r_, rd=rd: a(r_ + 2 * rd, 2))[dt])
            G2.m[2 * n + dt] = f"v_mfma_f32_32x32x16_bf16 {A}, {W_}, {v(HRING+4*(n%NHR),4)}, {'0' if n in (0, 28) else A}"
    reserved = sorted([8, 10] * bool(cfg.c_tail_in_g2) + list(cfg.q_at[:2]) + [cfg.g2_chk + 2, cfg.g2_chk + 4])
    t_ = 0.0; n = NH; la = []
    while n < 56:
        if reserved and reserved[0] <= t_ + cfg.g2_hpace / 2: reserved.pop(0); t_ += cfg.g2_hpace; continue
        g = int(t_)
        if n >= NHR: assert g >= 2 * (n - NHR) + 1
        if n == 28 and cfg.eo: assert g > cfg.b_chk
        la.append(2 * n - g); G2.put(g, hload(n)); n += 1; t_ += cfg.g2_hpace
    if cfg.verbose: print("H lookahead (gaps)", la)
    assert min(la) >= 8, la
    if cfg.eo: G2.put(cfg.b_chk, HCHK)
    lt = G2.pour(ct_, 1, 10, 24) if ct_ else 0
    e1 = lines(f"""
    s_lshl_b32 s3, s2, 7
    s_add_u32 {sFL}, s3, {512*128}
    s_lshl_b32 s3, {sCT}, 12
    s_add_u32 {sPA}, s3, {512*128}
    """)
    l1 = G2.pour(e1, max(lt, cfg.b_chk + 1 if cfg.eo else 0), max(lt, cfg.b_chk) + 8, 24); assert l1 <= cfg.g2_arrive
    G2.put(cfg.g2_arrive, [WaitTag('vm', "q"), arrive("yst", sFL)])
    qd = [f"s_lshl_b32 {sT1}, {sW}, 11\n s_add_u32 m0, {sT1}, {QL}"]
    qd += [Ins(f"buffer_load_dwordx4 {v(VQ[j])}, {X}, {sQS} offen offset:{1024*j} lds", "q") for j in range(2)]
    qd += [f"buffer_load_dword {v(VG[j])}, {v(VGA)}, {WS}, 0 offen offset:{128*j} sc1" for j in range(2)]
    assert not cfg.eo or min(cfg.q_at) - 1 > cfg.b_chk
    G2.put(cfg.q_at[0] - 1, qd[0])
    for q_, g_ in zip(qd[1:], cfg.q_at): G2.put(g_, q_)
    def sends(st, addr):
        return [Ins(f"ds_write_b128 {addr(sg, jj)[0]}, {a(GACC+32*st+16*(sg>>1)+8*(sg&1)+4*jj,4)} offset:{addr(sg, jj)[1]}", "rw%d" % st) for sg in range(1, 4) for jj in range(2)]
    G2.spread(sends(0, lambda sg, jj: (v(EWA), 2048 * (sg - 1) + 1024 * jj)), 59, cfg.rw_bar - 1)
    G2.put(cfg.g2_poll, poll_load("y", sPA))
    G2.put(cfg.g2_chk, [stamp("g2_pre"), poll_check("y", sPA), [WaitTag('lgkm', "rw0")] if cfg.rw_bar == cfg.g2_chk else [], Ins("s_barrier"), [] if cfg.pass_stamps else stamp("g2_post")])
    if cfg.rw_bar != cfg.g2_chk: G2.put(cfg.rw_bar, [WaitTag('lgkm', "rw0"), Ins("s_barrier")])
    yd = [f"s_add_u32 m0, {sT1}, {YL}"]
    yd += [Ins(f"buffer_load_dwordx4 {v(VY[j])}, {WS}, {sYS} offen offset:{1024*j} sc1 lds", "y") for j in range(2)]
    G2.put(cfg.g2_chk + 1, yd[0]); G2.put(cfg.g2_chk + 2, yd[1]); G2.put(cfg.g2_chk + 4, yd[2])
    QQ = 48; TT = 56; BB = 72; RX = 80; YY = 18; O = 48
    RP = [80, 84, 88, 92, 28 + 0, 28 + 0]
    un = lambda i, d, s_: (f"v_lshlrev_b32 {d}, 16, {s_}" if i % 2 == 0 else f"v_and_b32 {d}, {sMASK}, {s_}")
    p0 = [f"ds_read_b64 {v(QQ+4*st+2*J,2)}, {v(EQ[J])} offset:{4096*st}" for st in range(2) for J in range(2)]
    p0 += [f"v_sub_f32 {v(OMG[st])}, 1.0, {v(VG[st])}" for st in range(2)] + [[], []]
    p0 += [un(k, v(TT + k), v(QQ + (k >> 1))) for k in range(16)]
    p0 += [f"v_mul_f32 {v(TT+k)}, {v(TT+k)}, {v(VG[k>>3])}" for k in range(16)]
    l0 = G2.pour(p0, cfg.g2_arrive + 1, 62, 22); assert l0 < cfg.rw_bar
    p1 = [f"ds_read_b128 {v(RX+4*jj,4)}, {v(ERA[0])} offset:{1024*jj}" for jj in range(2)]
    p1 += [f"ds_read_b128 {v(RX+8+4*jj,4)}, {v(ERA[1])} offset:{1024*jj}" for jj in range(2)]
    p1 += [f"v_accvgpr_read_b32 {v(BB+k)}, {a(GACC+k)}" for k in range(8)]
    p1 += [f"v_add_f32 {v(BB+k)}, {v(BB+k)}, {v(RX+k)}" for k in range(8)]
    p1 += [f"ds_read_b128 {v(RX+4*jj,4)}, {v(ERA[2])} offset:{1024*jj}" for jj in range(2)]
    p1 += [f"v_add_f32 {v(BB+k)}, {v(BB+k)}, {v(RX+8+k)}" for k in range(8)]
    p1 += [f"v_add_f32 {v(BB+k)}, {v(BB+k)}, {v(RX+k)}" for k in range(8)]
    p1 += [f"v_mul_f32 {v(BB+k)}, {v(BB+k)}, {v(OMG[0])}" for k in range(8)]
    l3 = G2.pour(p1, cfg.rw_bar + 1, cfg.g2_pre - 1, 24); assert l3 <= cfg.g2_pre + 4, l3
    p2 = [[WaitTag('vm', "y"), Ins("s_barrier")]]
    p2 += [f"ds_read_b64_tr_b16 {v(YY+4*st+2*J,2)}, {v(EY)} offset:{1024*J+32*st}" for st in range(2) for J in range(2)]
    p2 += [[], [], []]
    p2 += [un(k, v(RX + k), v(YY + (k >> 1))) for k in range(8)]
    p2 += [f"v_fmac_f32 {v(BB+k)}, {v(TT+k)}, {v(RX+k)}" for k in range(8)]
    p2 += [f"v_cvt_pk_bf16_f32 {v(O+k)}, {v(BB+2*k)}, {v(BB+2*k+1)}" for k in range(4)]
    p2 += [un(k, v(RX + k), v(YY + (k >> 1))) for k in range(8, 16)]
    p2 += [f"v_permlane32_swap_b32 {v(O)}, {v(O+2)}", f"v_permlane32_swap_b32 {v(O+1)}, {v(O+3)}"]
    p2 += [f"buffer_store_dwordx4 {v(O,4)}, {v(EO)}, {OUT}, {sO[0]} offen {cfg.sc_out}"]
    p2 += [f"v_mul_f32 {v(TT+k)}, {v(TT+k)}, {v(RX+k)}" for k in range(8, 16)]
    p2 += [f"v_mov_b32 {v(T1)}, {v(OMG[1])}", f"v_mov_b32 {v(T2)}, {v(OMG[1])}"]
    if cfg.y_late: G2.pour(p2[-2:], l3, 111, 24)
    else: G2.pour(p2, max(l3, cfg.g2_pre), 111, 24)
    for g_, n_ in (cfg.hack_sleep_h or []): G2.put(g_, 's_sleep %d' % n_)
    check_m0(G2)
    add_trace(G2, 8, 'h', [94, 96])
    G2.emit(P, 2)
    if cfg.verbose: print("G2 gap costs", G2.costs())
    P.add(stamp("g2end"))
    R1 = 96; O2 = 52; B2 = 120 if cfg.y_late else BB
    w_ = sends(1, lambda sg, jj: (v(EWB), (sg - 1) * SLOT + 1024 * jj))
    P.add(w_[:2])
    for k in range(8): P.e(f"v_accvgpr_read_b32 {v(B2+k)}, {a(GACC+32+k)}")
    P.add(w_[2:])
    if cfg.y_late: P.vmwait("y")
    P.e("s_waitcnt lgkmcnt(0)\n s_barrier")
    if cfg.y_late: P.add(p2[1:5])
    for jj in range(2):
        for sg in range(1, 4): P.e(f"ds_read_b128 {v(R1+8*(sg-1)+4*jj,4)}, {v(ERB[sg-1])} offset:{1024*jj}")
    if cfg.y_late:
        for k in range(8): P.e(un(k, v(RX + k), v(YY + (k >> 1))))
        for k in range(4): P.e(f"v_pk_fma_f32 {v(BB+2*k,2)}, {v(TT+2*k,2)}, {v(RX+2*k,2)}, {v(BB+2*k,2)}")
        for k in range(4): P.e(f"v_cvt_pk_bf16_f32 {v(O+k)}, {v(BB+2*k)}, {v(BB+2*k+1)}")
        for k in range(8, 10): P.e(un(k, v(RX + k), v(YY + (k >> 1))))
        P.e(f"v_permlane32_swap_b32 {v(O)}, {v(O+2)}\n v_permlane32_swap_b32 {v(O+1)}, {v(O+3)}")
        P.e(f"buffer_store_dwordx4 {v(O,4)}, {v(EO)}, {OUT}, {sO[0]} offen {cfg.sc_out}")
        for k in range(10, 16): P.e(un(k, v(RX + k), v(YY + (k >> 1))))
        for k in range(4, 8): P.e(f"v_pk_mul_f32 {v(TT+2*k,2)}, {v(TT+2*k,2)}, {v(RX+2*k,2)}")
    for jj in range(2):
        for sg in range(3):
            for i in range(2): P.e(f"v_pk_add_f32 {v(B2+4*jj+2*i,2)}, {v(B2+4*jj+2*i,2)}, {v(R1+8*sg+4*jj+2*i,2)}")
        for i in range(2): P.e(f"v_pk_fma_f32 {v(B2+4*jj+2*i,2)}, {v(B2+4*jj+2*i,2)}, {v(T1,2)}, {v(TT+8+4*jj+2*i,2)}")
        for i in range(2): P.e(f"v_cvt_pk_bf16_f32 {v(O2+2*jj+i)}, {v(B2+4*jj+2*i)}, {v(B2+4*jj+2*i+1)}")
    P.e(f"v_permlane32_swap_b32 {v(O2)}, {v(O2+2)}\n v_permlane32_swap_b32 {v(O2+1)}, {v(O2+3)}")
    P.e(f"buffer_store_dwordx4 {v(O2,4)}, {v(EO)}, {OUT}, {sO[1]} offen {cfg.sc_out}")
    if cfg.stamps: emit_stamps(P)
    if cfg.fixdur:
        P.e(f"""L_fix:
        s_memrealtime s[4:5]
        s_waitcnt lgkmcnt(0)
        s_sub_u32 s4, s4, s100
        s_cmp_lt_i32 s4, {cfg.fixdur}
        s_cbranch_scc1 L_fix""")
    P.e("s_endpgm")

def check_m0(G, init=None):
    flat = []
    def fl(it):
        if isinstance(it, str):
            for l in lines(it): flat.append(Ins(l))
        elif isinstance(it, (list, tuple)):
            for x in it: fl(x)
        elif isinstance(it, Ins): flat.append(it)
    for f in G.f:
        for it in f: fl(it)
    last_off = init
    for it in flat:
        if it.kind == 'salu' and ('s', 'm0') in it.w: last_off = -1024
        if it.kind == 'dma':
            m = re.search(r'offset:(\d+)', it.text); off = int(m.group(1)) if m else 0
            assert last_off is not None and off == last_off + 1024, ("m0 group interleaved", it.text)
            last_off = off

def emit_stamps(P):
    P.e("s_waitcnt vmcnt(0)")
    P.e("s_memtime s[4:5]\n s_memrealtime s[6:7]\n s_waitcnt lgkmcnt(0)")
    n = len(stamp_names)
    for k in range(n):
        P.e(f"s_sub_u32 s3, s{STAMP_REGS[stamp_names[k]]}, {'s100' if cfg.rt else 's98'}"); P.e(f"v_mov_b32 v{200+k}, s3")
    P.e(f"s_sub_u32 s3, {'s6, s100' if cfg.rt else 's4, s98'}\n v_mov_b32 v{200+n}, s3")
    P.e(f"""s_lshl_b32 s3, s2, 2
    s_add_u32 s3, s3, {sW}
    s_lshl_b32 s3, s3, 7
    s_add_u32 s3, s3, {WS_STAMP}
    v_mov_b32 v229, 0
    v_mov_b32 v230, s100
    v_mov_b32 v231, s6
    v_mov_b32 v2, 0
    s_mov_b64 exec, 1""")
    for k in range(8): P.e(f"buffer_store_dwordx4 v[{200+4*k}:{203+4*k}], v2, {WS}, s3 offen offset:{16*k}")
    if cfg.trace:
        P.e(f"""s_mov_b64 exec, -1
        v_subrev_u32 v254, s98, v254
        v_subrev_u32 v255, s98, v255
        s_lshl_b32 s3, s2, 2
        s_add_u32 s3, s3, {sW}
        s_lshl_b32 s3, s3, 9
        s_add_u32 s3, s3, {WS_STAMP + 0x40000}
        v_lshlrev_b32 v2, 2, v1
        buffer_store_dword v254, v2, {WS}, s3 offen
        v_readlane_b32 s4, v253, 0
        v_readlane_b32 s5, v253, 1
        v_readlane_b32 s6, v253, 2
        v_readlane_b32 s7, v253, 3
        s_nop 3
        v_writelane_b32 v255, s4, 60
        v_writelane_b32 v255, s5, 61
        v_writelane_b32 v255, s6, 62
        v_writelane_b32 v255, s7, 63
        buffer_store_dword v255, v2, {WS}, s3 offen offset:256""")

def gen_aux(P0):
    P = P0
    K, V_, SH, GW = "s[40:43]", "s[44:47]", "s[48:51]", "s[52:55]"
    sA = "s68"; sST = "s69"; sUS = "s70"; sLO = "s71"; sHI = "s72"; sC = "s73"; sC2 = "s74"; sTA = ["s56", "s57"]; sTW = ["s58", "s59"]
    VL = 1; T0 = 2; T1 = 3; VZA = 4; VB = 5; VB2 = 6; VM = 7; VX = 8; VR = 9; VS = 11; VW = 12; VWt = [13, 14]; VRB = 16; VQ = 20; VQ2 = 21; VGW = 22
    KP = [48, 58]; VP = [68, 76]; WR_ = [84, 86]; WT = [88, 94]; OO = 100; UV = 108; OUT_ = 124; RB = 160; PF = 24
    TS = 17408
    P.e("s_cmp_lt_u32 s2, 256\n s_cbranch_scc1 L_auxgo\n s_endpgm\n L_auxgo:")
    for reg, off in ((K, 8), (V_, 16), (SH, 24), (GW, 80)): P.e(ldptr(reg, off))
    P.add(srd_hi(K, NQ) + srd_hi(V_, NQ) + srd_hi(SH, 3584) + srd_hi(X, NQ) + srd_hi(GW, 896) + srd_hi(WS, WS_SIZE) + srd_hi(WD, NW))
    P.e(f"""
    s_sub_u32 {sA}, s2, 224
    s_mul_i32 {sSO}, {sA}, {64*896}
    s_mul_i32 {sST}, {sW}, 40960
    s_lshl_b32 {sTA[0]}, {sW}, 7
    s_add_u32 {sTA[1]}, {sTA[0]}, 512
    s_cmp_eq_u32 {sW}, 3
    s_cselect_b32 {sTA[1]}, {NQ}, {sTA[1]}
    s_lshl_b32 {sTW[0]}, {sW}, 9
    s_add_u32 {sTW[1]}, {sTW[0]}, 2048
    v_lshrrev_b32 {v(T0)}, 3, {v(VL)}
    v_and_b32 {v(T1)}, 7, {v(VL)}
    v_mul_u32_u24 {v(VB)}, 896, {v(T0)}
    v_lshl_add_u32 {v(VB)}, {v(T1)}, 4, {v(VB)}
    v_add_u32 {v(VB)}, {sSO}, {v(VB)}
    v_add_u32 {v(VB2)}, 6144, {v(VB)}
    v_add_u32 {v(VM)}, -7168, {v(VB)}
    v_lshlrev_b32 {v(VX)}, 3, {v(VL)}
    s_mul_i32 s3, {sA}, {32*128}
    v_lshlrev_b32 {v(VZA)}, 7, {v(VL)}
    v_add_u32 {v(VZA)}, s3, {v(VZA)}
    v_mov_b32 {v(vARR)}, -16
    v_cmp_gt_u32 vcc, 32, v0
    v_mov_b32 {v(vZERO)}, 0
    v_cndmask_b32 {v(VZA)}, {v(vARR)}, {v(VZA)}, vcc
    v_cmp_eq_u32 vcc, 0, v0
    v_mov_b32 {v(vONE)}, 1
    s_waitcnt lgkmcnt(0)
    v_cndmask_b32 {v(vARR)}, {v(vARR)}, 0, vcc
    s_mov_b32 s34, 256
    s_mov_b32 s35, 0x20000
    """)
    def dset(k, j):
        b = TS * k; tag = "pin%d%d" % (k, j); L = []
        L.append([f"s_add_u32 {sC}, {sTA[k]}, {14336*j}\n s_add_u32 m0, {sST}, {b+1024+2048*j}", Ins(f"buffer_load_dwordx4 {v(VB)}, {K}, {sC} offen lds", tag)])
        L.append(Ins(f"buffer_load_dwordx4 {v(VB2)}, {K}, {sC} offen offset:1024 lds", tag))
        if j == 0:
            L.append([f"s_add_u32 m0, {sST}, {b}", Ins(f"buffer_load_dwordx4 {v(VM)}, {K}, {sC} offen lds", tag)])
            L.append(f"buffer_load_dwordx2 {v(WR_[k],2)}, {v(VX)}, {SH}, {sTW[k]} offen")
        L.append([f"s_add_u32 m0, {sST}, {b+9216+2048*j}", Ins(f"buffer_load_dwordx4 {v(VB)}, {V_}, {sC} offen lds", tag)])
        L.append(Ins(f"buffer_load_dwordx4 {v(VB2)}, {V_}, {sC} offen offset:1024 lds", tag))
        return L
    P.add(dset(0, 0))
    P.e(f"buffer_store_dword {v(vZERO)}, {v(VZA)}, {WS}, 0 offen sc1", tag="zst")
    P.add(dset(0, 1))
    if cfg.aux_head: P.e('s_branch L_aux2\n L_aux2:')
    P.e(f"""
    v_bfe_u32 {v(VR)}, {v(VL)}, 2, 2
    v_lshlrev_b32 {v(VR)}, 7, {v(VR)}
    v_lshrrev_b32 {v(VS)}, 4, {v(VL)}
    v_lshl_add_u32 {v(VR)}, {v(VS)}, 5, {v(VR)}
    v_and_b32 {v(VS)}, 3, {v(VL)}
    v_lshl_add_u32 {v(VR)}, {v(VS)}, 3, {v(VR)}
    v_add_u32 {v(VR)}, {sST}, {v(VR)}
    s_mov_b32 {sLO}, 0xffff
    s_mov_b32 {sMASK}, 0xffff0000
    v_lshlrev_b32 {v(VW)}, 4, {v(T1)}
    v_lshl_add_u32 {v(VW)}, {v(VL)}, 7, {v(VW)}
    v_add_u32 {v(VW)}, {sST}, {v(VW)}
    v_xor_b32 {v(VRB)}, {v(T0)}, {v(T1)}
    v_lshlrev_b32 {v(VRB)}, 4, {v(VRB)}
    v_lshl_add_u32 {v(VRB)}, {v(T0)}, 7, {v(VRB)}
    v_add_u32 {v(VRB)}, {sST}, {v(VRB)}
    v_lshlrev_b32 {v(VGW)}, 4, {v(T1)}
    v_lshl_add_u32 {v(VS)}, {v(T0)}, 12, {v(VGW)}
    s_lshl_b32 s3, {sW}, 18
    s_sub_u32 {sUS}, 31, {sA}
    s_lshl_b32 {sUS}, {sUS}, 7
    s_add_u32 {sUS}, {sUS}, s3
    s_add_u32 {sUS}, {sUS}, {WS_UR}
    """)
    P.add(dset(0, 2))
    zat = [WaitTag('vm', "zst"), f"buffer_atomic_add {v(vONE)}, {v(vARR)}, s[32:35], 0 offen sc1"]
    if not cfg.aux_fl: P.add(zat)
    P.add(dset(0, 3))
    if cfg.hack_aux: P.e("s_sleep 64\n s_sleep 32"); P.add(poll_load("za", None)); P.e("s_branch L_auxdone")
    def reads(k, j):
        b = TS * k; K_ = KP[j & 1]; V2 = VP[j & 1]
        L = [WaitTag('vm', "pin%d%d" % (k, j))]
        L += [f"ds_read_b64_tr_b16 {v(K_+2*m,2)}, {v(VR)} offset:{b+512+2048*j+512*m}" for m in range(5)]
        L += [f"ds_read_b64_tr_b16 {v(V2+2*m,2)}, {v(VR)} offset:{b+9216+2048*j+512*m}" for m in range(4)]
        return L
    def wprep(k):
        W = WR_[k]; T_ = WT[k]
        return lines(f"""v_alignbit_b32 {v(T_)}, {v(W)}, {v(W)}, 16
        v_alignbit_b32 {v(T_+1)}, {v(W+1)}, {v(W+1)}, 16
        v_and_b32 {v(T_+2)}, {sLO}, {v(W)}
        v_bfi_b32 {v(T_+3)}, {sLO}, {v(W+1)}, {v(W)}
        v_and_b32 {v(T_+4)}, {sMASK}, {v(W+1)}""")
    def owrites(k, j):
        return [[f"v_xor_b32 {v(VWt[q&1])}, {16*q}, {v(VW)}", Ins(f"ds_write_b128 {v(VWt[q&1])}, {v(OUT_+4*q,4)} offset:0", "ow")] for q in (7 - 2 * j, 6 - 2 * j)]
    def readback(k): return [f"ds_read_b128 {v(RB+4*q,4)}, {v(VRB)} offset:{1024*q}" for q in range(8)]
    def stores(k): return [[f"s_add_u32 {sC2}, {sUS}, {(k << 20) + 32768*q}", Ins(f"buffer_store_dwordx4 {v(RB+4*q,4)}, {v(VS)}, {WS}, {sC2} offen sc1", "pst")] for q in range(8)]
    wdt = lines(f"""s_lshl_b32 s3, {sA}, 2
    s_add_u32 s3, s3, {sW}
    s_mul_i32 s75, s3, {98*128}
    v_lshlrev_b32 {v(156)}, 7, {v(VL)}
    v_add_u32 {v(157)}, {34*128}, {v(156)}
    buffer_load_dword {v(158)}, {v(156)}, {WD}, s75 offen
    buffer_load_dword {v(159)}, {v(157)}, {WD}, s75 offen""")
    def step(P, k, j, fill):
        if cfg.aux_sleep and cfg.aux_sleep[:2] == (k, j): P.e('s_sleep %d' % cfg.aux_sleep[2])
        if cfg.aux_wd == (k, j): fill = list(fill) + ["\n".join(wdt)]
        K_ = KP[j & 1]; V2 = VP[j & 1]; T_ = WT[k]; fill = list(fill); per = (len(fill) + 9) // 10
        def nx():
            for _ in range(per):
                if fill: P.add(fill.pop(0))
        P.add(WaitRegs(v(V2 + 6, 2)))
        if cfg.stamps: r_ = [60, 62, 64, 66, 94, 78, 80, 92][4 * k + j]; P.e(f"s_memtime s[{r_}:{r_+1}]")
        for h in range(2):
            J = range(4 * h, 4 * h + 4)
            for i in J: P.e(f"v_dot2_f32_bf16 {v(OO+2*(i%4))}, {v(K_+i+2)}, {v(T_+2)}, 0\n v_dot2_f32_bf16 {v(OO+2*(i%4)+1)}, {v(K_+i+2)}, {v(T_)}, 0")
            nx()
            for i in J: P.e(f"v_dot2_f32_bf16 {v(OO+2*(i%4))}, {v(K_+i+1)}, {v(T_+3)}, {v(OO+2*(i%4))}\n v_dot2_f32_bf16 {v(OO+2*(i%4)+1)}, {v(K_+i+1)}, {v(T_+1)}, {v(OO+2*(i%4)+1)}")
            nx()
            for i in J: P.e(f"v_dot2_f32_bf16 {v(OO+2*(i%4))}, {v(K_+i)}, {v(T_+4)}, {v(OO+2*(i%4))}")
            nx()
            for i in J: P.e(f"v_lshlrev_b32 {v(UV+2*(i%4))}, 16, {v(V2+i)}\n v_and_b32 {v(UV+2*(i%4)+1)}, {sMASK}, {v(V2+i)}")
            nx()
            for i in J: P.e(f"v_pk_mul_f32 {v(UV+2*(i%4),2)}, {v(UV+2*(i%4),2)}, {v(OO+2*(i%4),2)}")
            nx()
            for i in J: P.e(f"v_cvt_pk_bf16_f32 {v(OUT_+31-8*j-i)}, {v(UV+2*(i%4)+1)}, {v(UV+2*(i%4))}")
        while fill: nx()
    P.add(reads(0, 0)); P.add(wprep(0))
    if cfg.stamps: P.e("s_waitcnt lgkmcnt(0)\n s_memtime s[86:87]")
    if cfg.aux_fl:
        P.add(zat); P.add(dset(1, 0))
        step(P, 0, 0, dset(1, 1) + reads(0, 1))
        step(P, 0, 1, dset(1, 2) + reads(0, 2) + dset(1, 3))
        step(P, 0, 2, reads(0, 3))
    else:
        step(P, 0, 0, dset(1, 0) + reads(0, 1))
        step(P, 0, 1, dset(1, 1) + reads(0, 2))
        step(P, 0, 2, dset(1, 2) + reads(0, 3))
    P.e(f"s_cmp_eq_u32 {sW}, 3\n s_cbranch_scc1 L_gate")
    Pg = Prog(); Pg.items = list(P.items)
    st0 = stores(0)
    step(P, 0, 3, ([] if cfg.aux_fl else dset(1, 3)) + reads(1, 0) + wprep(1) + owrites(0, 0) + owrites(0, 1))
    P.add(owrites(0, 2) + owrites(0, 3))
    step(P, 1, 0, reads(1, 1) + readback(0))
    step(P, 1, 1, reads(1, 2) + st0[:4] + owrites(1, 0))
    step(P, 1, 2, poll_load("za", None) + reads(1, 3) + st0[4:] + owrites(1, 1))
    step(P, 1, 3, owrites(1, 2))
    P.add(owrites(1, 3)); P.add(readback(1)); P.add(stores(1))
    P.e("s_branch L_auxdone")
    P = Pg; P.e("L_gate:")
    step(P, 0, 3, owrites(0, 0) + owrites(0, 1) + owrites(0, 2))
    P.add(owrites(0, 3)); P.add(readback(0)); P.add(stores(0)); P.add(poll_load("za", None))
    QB = 48; GWB = 112; AC = 104
    def gate(T):
        T.e(f"""s_lshl_b32 {sT0}, {sA}, 2
        s_add_u32 {sT0}, {sT0}, {sW}
        s_mul_i32 {sSO}, {sT0}, {16*896}
        v_mul_u32_u24 {v(VQ)}, {2*896}, {v(T0)}
        v_add_u32 {v(VQ)}, {v(VQ)}, {v(VGW)}""")
        for tau in range(7):
            for rho in range(2): T.e(f"buffer_load_dwordx4 {v(QB+8*tau+4*rho,4)}, {v(VQ)}, {X}, {sSO} offen offset:{896*rho+128*tau}")
            T.e(f"buffer_load_dwordx4 {v(GWB+4*tau,4)}, {v(VGW)}, {GW}, 0 offen offset:{128*tau}")
        for tau in range(7):
            for p in range(4):
                for rho in range(2):
                    d = AC + 2 * (p & 1) + rho
                    T.e(f"v_dot2_f32_bf16 {v(d)}, {v(QB+8*tau+4*rho+p)}, {v(GWB+4*tau+p)}, {'0' if (tau == 0 and p < 2) else v(d)}")
        for rho in range(2): T.e(f"v_add_f32 {v(AC+rho)}, {v(AC+rho)}, {v(AC+2+rho)}")
        for mod in ("row_half_mirror", "quad_perm:[3,2,1,0]", "quad_perm:[1,0,3,2]"):
            for rho in range(2): T.e(f"v_add_f32_dpp {v(AC+rho)}, {v(AC+rho)}, {v(AC+rho)} {mod} row_mask:0xf bank_mask:0xf")
        T.e(f"""s_mov_b32 s56, 0xaaaaaaaa
        s_mov_b32 s57, 0xaaaaaaaa
        v_cndmask_b32 {v(AC)}, {v(AC)}, {v(AC+1)}, s[56:57]
        v_mul_f32 {v(AC)}, 0xbfb8aa3b, {v(AC)}
        v_exp_f32 {v(AC)}, {v(AC)}
        v_lshl_add_u32 {v(T0)}, {v(T0)}, 1, {v(T1)}
        v_add_f32 {v(AC)}, 1.0, {v(AC)}
        v_rcp_f32 {v(AC)}, {v(AC)}
        v_lshlrev_b32 {v(T0)}, 2, {v(T0)}
        v_mov_b32 {v(VZA)}, -16
        v_cmp_gt_u32 vcc, 2, {v(T1)}
        s_lshl_b32 s3, {sT0}, 6
        s_add_u32 s3, s3, {WS_G}
        v_cndmask_b32 {v(T0)}, {v(VZA)}, {v(T0)}, vcc
        buffer_store_dword {v(AC)}, {v(T0)}, {WS}, s3 offen sc1""")
    def watch(T, name, nl, off):
        if cfg.nosync or not cfg.watch: return
        T.e(f"""v_min_u32 {v(24)}, {nl-1}, {v(VL)}
        v_lshlrev_b32 {v(24)}, 7, {v(24)}
        s_mov_b32 {sCNT}, 0
        L_w{name}:
        buffer_load_dword {v(25)}, {v(24)}, {WS}, {off} offen sc1
        s_add_u32 {sCNT}, {sCNT}, 1
        s_cmp_gt_u32 {sCNT}, 256
        s_waitcnt vmcnt(0)
        s_cbranch_scc1 L_x{name}
        v_cmp_gt_u32 vcc, 1, {v(25)}
        s_sleep {cfg.watch}
        s_cbranch_vccnz L_w{name}
        L_x{name}:""")
    gate(P)
    T = Prog(); T.e("L_auxdone:")
    if cfg.stamps: T.e("s_memtime s[88:89]")
    T.e(f"""s_lshl_b32 {sC}, {sA}, 7
    s_add_u32 {sC2}, {sC}, {32*128}
    s_waitcnt vmcnt(0)""")
    T.add(poll_check("za", None))
    T.e("s_barrier")
    if not cfg.nosync: T.e(f"buffer_store_dword {v(vONE)}, {v(vARR)}, {WS}, {sC} offen sc1")
    if cfg.stamps: T.e("s_memtime s[90:91]")
    T.e(f"s_cmp_eq_u32 {sW}, 3\n s_cbranch_scc0 L_g012")
    watch(T, "p", 32, "0")
    T.e("s_branch L_gdone\n L_g012:")
    gate(T)
    T.e("s_waitcnt vmcnt(0)\n L_gdone:\n s_barrier")
    if not cfg.nosync: T.e(f"buffer_store_dword {v(vONE)}, {v(vARR)}, {WS}, {sC2} offen sc1")
    T.e(f"""s_and_b32 s3, s2, 7
    s_mul_i32 s58, s3, {28*128}
    s_lshr_b32 s59, {sA}, 3
    s_cmp_lg_u32 {sW}, 0
    s_cbranch_scc1 L_wn0
    s_add_u32 s60, s58, {768*128}""")
    watch(T, "a", 28, "s60")
    T.e(f"s_add_u32 s60, s58, {256*128}")
    watch(T, "b", 28, "s60")
    T.e(f"""s_branch L_wend
    L_wn0:
    s_cmp_eq_u32 {sW}, 1
    s_cbranch_scc0 L_wn1
    s_lshl_b32 s60, s3, 9
    s_add_u32 s60, s60, {32*128}""")
    watch(T, "g", 4, "s60")
    T.e(f"""s_branch L_wend
    L_wn1:
    s_lshl_b32 s59, s59, 1
    s_add_u32 s59, s59, {sW}
    s_sub_u32 s59, s59, 2
    s_mul_i32 s60, s59, {28*128}
    s_add_u32 s60, s60, {512*128}""")
    watch(T, "y", 28, "s60")
    T.e("L_wend:")
    if cfg.aux_l2:
        g0, ng = cfg.aux_l2
        T.e(f"""v_mul_u32_u24 {v(PF)}, 896, {v(VL)}
        s_lshr_b32 s56, {sA}, 3
        s_mul_i32 s56, s56, {448*896}
        s_and_b32 s57, s2, 7
        s_add_u32 s57, s57, {g0}""")
        for k in range((7 * ng + 3) // 4):
            T.e(f"""s_add_u32 s58, {sW}, {4*k}
            s_min_u32 s58, s58, {7*ng-1}
            s_mul_i32 s59, s58, 37
            s_lshr_b32 s59, s59, 8
            s_mul_i32 s3, s59, 7
            s_sub_u32 s58, s58, s3
            s_add_u32 s59, s59, s58
            s_add_u32 s59, s59, s57
            s_mul_i32 s3, s59, 37
            s_lshr_b32 s3, s3, 8
            s_mul_i32 s3, s3, 7
            s_sub_u32 s59, s59, s3
            s_mul_i32 s59, s59, {64*896}
            s_lshl_b32 s58, s58, 7
            s_add_u32 s59, s59, s58
            s_add_u32 s59, s59, s56
            buffer_load_dword {v(PF+2+k)}, {v(PF)}, {WD}, s59 offen""")
    if cfg.stamps:
        T.e(f"""s_waitcnt vmcnt(0)
        s_memtime s[4:5]
        s_memrealtime s[6:7]
        s_waitcnt lgkmcnt(0)
        s_sub_u32 s3, s86, s98
        v_mov_b32 v200, s3
        s_sub_u32 s3, s88, s98
        v_mov_b32 v201, s3
        s_sub_u32 s3, s90, s98
        v_mov_b32 v202, s3
        s_sub_u32 s3, s4, s98
        v_mov_b32 v203, s3
        v_mov_b32 v204, s100
        v_mov_b32 v205, s6
        s_lshl_b32 s3, s2, 2
        s_add_u32 s3, s3, {sW}
        s_lshl_b32 s3, s3, 7
        s_add_u32 s3, s3, {WS_STAMP}
        v_mov_b32 v2, 0
        s_mov_b64 exec, 1
        buffer_store_dwordx4 v[200:203], v2, {WS}, s3 offen
        buffer_store_dwordx2 v[204:205], v2, {WS}, s3 offen offset:120""")
        for i_, r_ in enumerate([60, 62, 64, 66, 94, 78, 80, 92]): T.e(f"s_sub_u32 s4, s{r_}, s98\n v_mov_b32 v{208+i_}, s4")
        T.e(f"buffer_store_dwordx4 v[208:211], v2, {WS}, s3 offen offset:16\n buffer_store_dwordx4 v[212:215], v2, {WS}, s3 offen offset:32")
    T.e("s_endpgm")
    return Pg, T

def build():
    global slow_paths, stamp_names, trace_names
    slow_paths = []; stamp_names = []; trace_names = []; arr_n[0] = 0; STAMP_REGS['prewait'] = 74; STAMP_REGS['karg'] = 72
    pro = Prog()
    for reg, off in ((X, 0), (WG, 56), (WU, 64), (WD, 72), (SK, 32), (WS, 104), (OUT, 88), (pDBG, 96), (pD, 40)) + ((("s[94:95]", 8), ("s[96:97]", 16)) if cfg.kv_touch is not None else ()): pro.e(ldptr(reg, off))
    if cfg.sync_start:
        pro.e("""s_memrealtime s[100:101]
        s_waitcnt lgkmcnt(0)
        s_add_u32 s3, s100, 400
        s_and_b32 s3, s3, 0xffffff00
        s_and_b32 s99, s2, %d
        s_mul_i32 s99, s99, %d
        s_add_u32 s3, s3, s99
        L_ss:
        s_memrealtime s[100:101]
        s_waitcnt lgkmcnt(0)
        s_sub_u32 s99, s100, s3
        s_cmp_lt_i32 s99, 0
        s_cbranch_scc1 L_ss""" % cfg.skew)
    if cfg.stamps or cfg.fixdur: pro.e("s_memtime s[98:99]\n s_memrealtime s[100:101]")
    pro.e(f"""
    v_lshrrev_b32 v2, 6, v0
    v_and_b32 v1, 63, v0
    s_cmp_ge_u32 s2, 224
    v_readfirstlane_b32 {sW}, v2
    s_cbranch_scc1 L_aux
    """)
    Pm = Prog(); Pm.items = list(pro.items)
    gen_main(Pm)
    main = Pm.finalize(cfg.verbose)
    Px = Prog(); Px.items = list(pro.items); Px.e("L_aux:")
    Pg, Pt = gen_aux(Px)
    ax = Px.finalize(); gx = Pg.finalize(); tx = Pt.finalize()
    cut = lambda lst, lab: lst[[i for i, x in enumerate(lst) if x.kind == 'label' and x.text == lab][0]:]
    axl = cut(ax, "L_aux:")
    if cfg.aux_head:
        k_ = [i for i, x in enumerate(axl) if x.kind == 'label' and x.text == "L_aux2:"][0]
        m_ = [i for i, x in enumerate(main) if x.kind == 'label' and x.text == "L_auxhead:"][0]
        main[m_:m_ + 1] = axl[:k_]; axl = axl[k_:]
    if cfg.warm:
        real = [i for i, x in enumerate(main) if x.kind != 'label']
        for k, n in reversed(list(enumerate(cfg.stub_at[:4]))):
            main[real[n]:real[n]] = [Ins("L_pg%d:" % k), Ins("s_cbranch_execz L_pgback")]
    body = text_of(main) + "\n" + text_of(axl) + "\n" + text_of(cut(gx, "L_gate:")) + "\n" + text_of(tx) + "\n" + emit_slow_paths() + "\nL_codeend:"
    hdr = open("gated_mix__ssm_conv_h3__swiglu_ffn__prompt.s.ref").read().split("; Override launch")[0] if cfg.header else ""
    return f"""{hdr}; @launch grid=(256,1,1) block=(256,1,1) lds={LDS_BYTES}
; TRACE={trace_names}
.amdgcn_target "amdgcn-amd-amdhsa--gfx950"
.text
.globl {KNAME}
{'.p2align 12' if cfg.align else ''}
.p2align 8
.type {KNAME},@function
{KNAME}:
{body}
.section .rodata,"a"
.p2align 6
.amdhsa_kernel {KNAME}
  .amdhsa_next_free_vgpr 512
  .amdhsa_next_free_sgpr 102
  .amdhsa_accum_offset 256
  .amdhsa_group_segment_fixed_size 0
  .amdhsa_kernarg_size 112
  .amdhsa_user_sgpr_count 2
  .amdhsa_user_sgpr_kernarg_segment_ptr 1
  .amdhsa_system_sgpr_workgroup_id_x 1
.end_amdhsa_kernel
"""

if __name__ == "__main__":
    import subprocess
    out = sys.argv[1]
    for kv in sys.argv[2:]:
        k_, v_ = kv.split("=", 1)
        assert hasattr(cfg, k_), k_
        setattr(cfg, k_, eval(v_))
    cfg.pf_n = 1; cfg.pf_last = 100
    vb = cfg.verbose; cfg.verbose = False
    open(out, "w").write(build())
    subprocess.check_call(["clang", "-x", "assembler", "-target", "amdgcn-amd-amdhsa", "-mcpu=gfx950", "-c", out, "-o", "_gen.o"])
    sym = subprocess.check_output(["llvm-objdump", "-t", "_gen.o"], text=True)
    ad = {l.split()[-1]: int(l.split()[0], 16) for l in sym.splitlines() if " L_" in l}
    if cfg.code_pf:
        cfg.pf_last = (ad["L_codeend"] - ad["L_pc"] - 64) // 128
        cfg.pf_n = (cfg.pf_last + 112) // 112
    if cfg.warm:
        cfg.stub_at = [600, 1200, 1800, 2300]
        for it in range(3):
            open(out, "w").write(build())
            subprocess.check_call(["clang", "-x", "assembler", "-target", "amdgcn-amd-amdhsa", "-mcpu=gfx950", "-c", out, "-o", "_gen.o"])
            dis = subprocess.check_output(["llvm-objdump", "-d", "--mcpu=gfx950", "_gen.o"], text=True)
            ins = [(int(l.split("//")[1].split(":")[0], 16), l) for l in dis.splitlines() if "//" in l]
            end = [i for i, (a_, l) in enumerate(ins) if "s_endpgm" in l][1 if cfg.aux_head else 0]
            a0 = []; ns_ = 0
            for a_, l in ins[:end]:
                if "s_cbranch_execz" in l: ns_ += 1
                else: a0.append(a_ - 4 * ns_)
            new_at = []
            for k in range(cfg.pg0, cfg.pg0 + 4):
                c = [i for i, a_ in enumerate(a0) if a_ + 4 * (k - cfg.pg0) + 0x300 >= 4096 * k]
                if c: new_at.append(c[0])
            if new_at == cfg.stub_at: break
            cfg.stub_at = new_at
    cfg.verbose = vb
    open(out, "w").write(build())
    print(out, "code bytes", ad["L_codeend"], "aux at", ad["L_aux"], "stubs", cfg.stub_at, "stamps:", stamp_names)
```

```python
import sys, math, re
from fw import *
import fw
KNAME = "gated_mix__ssm_conv_h3__swiglu_ffn__prompt_kernel"

class Cfg: pass
cfg = Cfg()
cfg.stamps = False; cfg.pass_stamps = False; cfg.verbose = False; cfg.header = True; cfg.fixdur = 0
cfg.PD = 5; cfg.NXR = 8; cfg.pair = 2; cfg.bud = 24
cfg.code_pf = True; cfg.n_pre = 6; cfg.nosync = False
cfg.rot_c = True; cfg.rot_t = True; cfg.rot_g = True
cfg.pl_at = -1; cfg.pc0 = 10; cfg.pc1 = 70; cfg.bud1 = 28; cfg.z_load = 60; cfg.z_chk = 84; cfg.x_touch = 0; cfg.align = True; cfg.tlb = False; cfg.sync_start = False; cfg.skew = (0, 0); cfg.gq_sh = 0; cfg.gq_mul = 1; cfg.wd_touch = -1; cfg.warm = True; cfg.stub_at = []; cfg.late_pos = 100; cfg.p_arr = 9; cfg.pst_at = 80; cfg.aux_sk = False; cfg.p_first = True; cfg.sk_at = -1; cfg.hv_at = 24; cfg.c_rd_end = 66; cfg.sleep = 2
cfg.p_load = 180; cfg.p_chk = 208; cfg.hw0 = 70; cfg.hw1 = 180
cfg.g_arrive = 38; cfg.g_poll = 112; cfg.g_chk = 102; cfg.nh_c = 12; cfg.nh_e = 5; cfg.c_wd = (24, 48, 72, 96); cfg.c_tail_in_g2 = True; cfg.b_rev = False; cfg.ytag = False; cfg.odd_touch = False; cfg.pz_at = 90; cfg.y_nobar = True; cfg.ct_end = 10; cfg.no_x = False; cfg.sk_early = True; cfg.sk_pos = 0; cfg.aux_head = True; cfg.aux_fl = False; cfg.pg0 = 1; cfg.aux_sleep = None; cfg.watch = 0; cfg.hack_sleep_c = None; cfg.hack_sleep_h = None; cfg.eo = True; cfg.epi_len = 22; cfg.a_arr = 162; cfg.a_load = 210; cfg.a_chk = 30; cfg.h_first = 98; cfg.b_chk = 11; cfg.rw_bar = 74; cfg.y_late = True; cfg.n1 = 2; cfg.blk_c = 4; cfg.blk_s3 = 0; cfg.blk_deep = False; cfg.blk_dma = False; cfg.blk_g = 1; cfg.blk_g2 = 0; cfg.blk_list = None; cfg.hack_sleep = None; cfg.aux_wd = None; cfg.hack_aux = False; cfg.sc_h = 'sc1'; cfg.n_raw = 0; cfg.kv_touch = None; cfg.aux_l2 = None; cfg.hack_wd = False; cfg.hack_p = False; cfg.sc_wd = ''; cfg.sc_g1 = ''; cfg.c_bar = 130; cfg.s3_at = -1; cfg.nwd_t = 5; cfg.g_wd_end = 104
cfg.g2_hpace = 2.1; cfg.q_at = (13, 15, 17, 19); cfg.g2_arrive = 36; cfg.g2_poll = 64; cfg.g2_chk = 92; cfg.g2_pre = 100
cfg.sc_out = ""; cfg.sc_out0 = ""; cfg.aux_pf = False; cfg.touch = False; cfg.s_early = True; cfg.rt = False; cfg.trace = False; cfg.start_stamps = False

WS_FLAG = 0x0; WS_G = 0x20000; WS_UR = 0x100000; WS_YT = 0x300000; WS_H = 0x500000
WS_STAMP = 0xC00000; WS_SIZE = 0xD00000
NQ = 1835008; NW = 1605632
XB = 4096
SLOT = 28672; PIECE = 7168
HC = 4 * SLOT; CPY = 4160; HCCH = 4 * CPY
UL = HC + 2 * HCCH; UCH = 4608
LDS_BYTES = 163840
YL = HC; QL = UL
assert UL + 2 * UCH <= LDS_BYTES
X, WG, WU, WD, SK, WS, OUT = ["s[%d:%d]" % (b, b + 3) for b in (4, 8, 12, 16, 20, 24, 28)]
pWS = "s[24:25]"; pDBG = "s[32:33]"; pD = "s[34:35]"
sW = "s36"; sT0 = "s37"; sT1 = "s38"; sT2 = "s39"
sCH = ["s%d" % (40 + i) for i in range(7)]
sWC = ["s%d" % (47 + i) for i in range(7)]
sTO = ["s%d" % (54 + i) for i in range(8)]
sHG = sWC
sM0P = "s68"; sXB = "s69"; sWB = "s70"; sDB = "s71"; sHS = "s72"; sHL = ["s73", "s74"]
sNL2E = "s75"; sSO = "s76"; sSO2 = "s77"; sD = "s78"; sI2 = "s79"; sCT = "s80"; sKH = "s81"
sCNT = "s82"; sM = "s83"; sMASK = "s84"; sRG = "s85"
sDG = ["s%d" % (86 + i) for i in range(7)]
sPV = "s93"; sHE = "s70"; sFL = "s67"; sONE = "s66"; sU = "s65"; sPA = "s64"
STAMP_REGS = {'issued': 0, 'setup': 96, 'pdone': 94, 'prewait': 74, 'karg': 72, 'g1start': 34, 'p1end': 12, 'T5': 96, 'T6': 8, 'T7': 10, 'prepoll': 94, 'zpre': 96, 'zpost': 8, 'g1end': 14, 'cstart': 40, 'c_pre': 42, 'c_post': 44, 'g2start': 54, 'g2_pre': 56, 'g2_post': 58, 'g2end': 60}

def v(i, n=1): return "v%d" % i if n == 1 else "v[%d:%d]" % (i, i + n - 1)
def a(i, n=1): return "a%d" % i if n == 1 else "a[%d:%d]" % (i, i + n - 1)
def lines(t): return [l.strip() for l in t.split("\n") if l.strip()]

stamp_names = []
def stamp(name):
    if not cfg.stamps or cfg.stamps == 'min': return []
    if cfg.trace and STAMP_REGS[name] in (94, 96): return []
    stamp_names.append(name); r = STAMP_REGS[name]
    return [Ins("%s s[%d:%d]" % ("s_memrealtime" if cfg.rt else "s_memtime", r, r + 1))]

slow_paths = []; custom_slow = []
trace_names = []
TR_S = [94, 96, 8, 12]
def add_trace(G, every, name, regs):
    if not cfg.trace: return
    k = 0
    for g in range(0, G.n - 3, every):
        i = len(trace_names); trace_names.append("%s%d" % (name, g)); r = regs[k % len(regs)]; k += 1
        G.f[g].insert(0, Ins("s_memtime s[%d:%d]" % (r, r + 1)))
        G.f[min(g + (3 if G.n != 144 else 6), G.n - 1)].append("v_writelane_b32 v%d, s%d, %d" % (254 + i // 64, r, i % 64))
vARR = 43; vONE = 0; vP8 = 38; vP7 = 39; vPV = 33; vZERO = 44
def poll_text(kind, off):
    if kind == "z": return f"global_load_dword {v(vPV)}, {v(vZERO)}, {pDBG} sc1"
    if kind == "za": return f"global_load_dword {v(vPV)}, {v(vZERO)}, {pDBG} sc1"
    return f"buffer_load_dword {v(vPV)}, {v(246 if (kind == 'a' and cfg.ytag) else vP7 if kind in 'ha' else vP8)}, {WS}, {off} offen sc1"
def poll_load(kind, off):
    return [] if cfg.nosync else [poll_text(kind, off)]
def poll_check(kind, off):
    if cfg.nosync: return []
    slow_paths.append((kind, off))
    return [f"v_cmp_gt_u32 vcc, {32 if kind[0] == 'z' else 1}, {v(vPV)}", f"s_cbranch_vccnz L_slow_{kind}\n L_back_{kind}:"]
def emit_slow_paths():
    t = []
    for kind, off in slow_paths:
        t += [f"L_slow_{kind}:", f"s_mov_b32 {sCNT}, 0", f"L_spin_{kind}:", f"s_sleep {cfg.sleep}", poll_text(kind, off),
              f"s_add_u32 {sCNT}, {sCNT}, 1", f"s_cmp_gt_u32 {sCNT}, 0x40000", "s_waitcnt vmcnt(0)", f"s_cbranch_scc1 L_back_{kind}",
              f"v_cmp_gt_u32 vcc, {32 if kind[0] == 'z' else 1}, {v(vPV)}", f"s_cbranch_vccnz L_spin_{kind}"] + ([f"v_writelane_b32 v253, {sCNT}, {'zphy'.index(kind.replace('a', 'z'))}"] if cfg.trace and kind != "za" else []) + [f"s_branch L_back_{kind}"]
    for c in custom_slow: t += lines(c)
    return "\n".join(l if l.endswith(":") else "    " + l for l in t)
arr_n = [0]
def arrive(tag, off, bar=True):
    pre = [Ins("s_barrier")] if bar else []
    if cfg.nosync: return pre
    return ([WaitTag('vm', tag)] if bar else []) + pre + [f"buffer_store_dword {v(vONE)}, {v(vARR)}, {WS}, {off} offen sc1"]

def sb(reg): return int(reg[2:reg.index(':')])
def srd_hi(reg, size): return ["s_mov_b32 s%d, 0x%x" % (sb(reg) + 2, size), "s_mov_b32 s%d, 0x20000" % (sb(reg) + 3)]
def ldptr(reg, off): return "s_load_dwordx2 s[%d:%d], s[0:1], %d" % (sb(reg), sb(reg) + 1, off)
def rot_next(r): return [f"s_add_u32 {r}, {r}, 1", f"s_cmp_eq_u32 {r}, 7\n s_cselect_b32 {r}, 0, {r}"]
def mod7(r): return lines(f"s_mul_i32 s3, {r}, 37\n s_lshr_b32 s3, s3, 8\n s_mul_i32 s3, s3, 7\n s_sub_u32 {r}, {r}, s3")

def code_prefetch(P):
    if not cfg.code_pf: return
    P.e(f"""
        s_getpc_b64 s[38:39]
        L_pc:
        s_lshr_b32 s3, s2, 3
        s_lshl_b32 s3, s3, 2
        s_add_u32 s3, s3, {sW}
        s_mul_i32 s3, s3, {cfg.pf_n}
        v_min_u32 v2, {cfg.pf_n-1}, v1
        v_add_u32 v2, s3, v2
        v_min_u32 v2, {cfg.pf_last}, v2
        v_lshlrev_b32 v2, 7, v2
        v_mov_b32 v3, s39
        v_add_co_u32 v2, vcc, s38, v2
        v_addc_co_u32 v3, vcc, 0, v3, vcc
        global_load_dword v255, v[2:3], off
        """)

def gen_main(P):
    PD = cfg.PD; NXR = cfg.NXR; N1 = cfg.n1; CH = 4 * N1; P1 = 28 * N1; NI = 15 - N1
    VL = 1
    VX = [2, 3, 4, 9]; VWg = [5, 6]; VWu = [7, 8]; VSK = [10, 11, 12]; VD = [13, 14, 15, 16]
    XR = [[17, 18, 19, 20], [21, 22, 23, 24]]; WR = [25, 26, 27]; DR = [[28, 29], [30, 31]]
    V16 = 32; T0 = 33; T1 = 34; T2 = 35; T3 = 36; VHZ = 37; CA = 40; CB = 41; VHW = 42; VZ = 44
    ACC = [48, 64, 80, 96]; XRING = 112; ET = 144; PK = [148, 152]; HR = 160; HCP = 176
    assert XRING + 4 * NXR <= ET
    sX = sSO; sQ7 = sSO2; sR = sCNT
    code_prefetch(P)
    P.e(f"""
    s_and_b32 {sX}, s2, 7
    s_lshr_b32 {sT1}, s2, 3
    s_mul_i32 {sQ7}, {sT1}, 37
    s_lshr_b32 {sQ7}, {sQ7}, 8
    s_mul_i32 s3, {sQ7}, 7
    s_sub_u32 {sCT}, {sT1}, s3
    s_lshl_b32 s3, {sX}, 2
    s_add_u32 {sI2}, s3, {sQ7}
    s_and_b32 s3, {sX}, 4
    s_add_u32 {sT2}, s3, {sQ7}
    s_and_b32 {sT0}, {sX}, 3
    s_mul_i32 {sT1}, {sT0}, 7
    s_add_u32 {sT1}, {sT1}, {sCT}
    s_mul_i32 {sM0P}, {sW}, {PIECE}
    s_mul_i32 {sXB}, {sT2}, {256*896}
    s_add_u32 {sXB}, {sXB}, {sM0P}
    s_mul_i32 {sWB}, {sW}, {16*3584}
    s_lshl_b32 s3, {sT1}, 7
    s_add_u32 {sWB}, {sWB}, s3
    s_lshl_b32 {sRG}, {sQ7}, 1
    s_add_u32 {sRG}, {sRG}, {sCT}
    s_lshr_b32 s3, {sX}, {2 if cfg.rot_c == True else 3}
    s_add_u32 {sR}, {sRG}, s3
    """)
    P.add(mod7(sR) if cfg.rot_c else f"s_mov_b32 {sR}, 0")
    def ch_tab(i):
        L = lines(f"s_lshl_b32 s3, {sR}, 7\n s_add_u32 {sCH[i]}, s3, {sXB}\n s_mul_i32 s3, {sR}, {64*3584}\n s_add_u32 {sWC[i]}, s3, {sWB}")
        return L + (rot_next(sR) if i < 6 else [])
    def to_tab(t):
        if cfg.eo: return lines(f"s_add_u32 s3, {sT0}, {t}\n s_and_b32 s3, s3, 3\n s_mul_i32 s3, s3, {2*28672}\n s_add_u32 {sTO[t]}, s3, {28672*(t >> 2)}")
        if cfg.rot_t: return lines(f"s_lshl_b32 s3, {sT0}, 1\n s_add_u32 s3, s3, {t}\n s_and_b32 s3, s3, 7\n s_mul_i32 {sTO[t]}, s3, 28672")
        return [f"s_mov_b32 {sTO[t]}, {28672*t}"]
    for i in range(2): P.add(ch_tab(i))
    for t in range(N1): P.add(to_tab(t))
    P.add(srd_hi(X, NQ + XB) + srd_hi(WG, NW) + srd_hi(WU, NW))
    P.e(f"""
    v_lshrrev_b32 {v(T0)}, 3, {v(VL)}
    v_and_b32 {v(T1)}, 7, {v(VL)}
    v_lshrrev_b32 {v(T2)}, 4, {v(VL)}
    s_lshl_b32 s3, {sW}, 2
    v_add_u32 {v(T3)}, s3, {v(T2)}
    v_and_b32 {v(T3)}, 7, {v(T3)}
    v_xor_b32 {v(T3)}, {v(T1)}, {v(T3)}
    v_lshlrev_b32 {v(T3)}, 4, {v(T3)}
    v_mul_u32_u24 {v(VX[0])}, 896, {v(T0)}
    v_add_u32 {v(T3)}, {XB}, {v(T3)}
    v_add_u32 {v(VX[0])}, {v(VX[0])}, {v(T3)}
    v_add_u32 {v(VX[1])}, -1024, {v(VX[0])}
    v_add_u32 {v(VX[2])}, -2048, {v(VX[0])}
    v_and_b32 {v(T2)}, 1, {v(T2)}
    v_lshlrev_b32 {v(T2)}, 1, {v(T2)}
    v_xor_b32 {v(T3)}, {v(T1)}, {v(T2)}
    v_lshlrev_b32 {v(T3)}, 4, {v(T3)}
    v_mul_u32_u24 {v(VWg[0])}, 3584, {v(T0)}
    v_add_u32 {v(VWg[0])}, {v(VWg[0])}, {v(T3)}
    v_add_u32 {v(VWg[1])}, {28672-1024}, {v(VWg[0])}
    v_xor_b32 {v(VWu[0])}, 64, {v(VWg[0])}
    v_add_u32 {v(VWu[1])}, {28672-1024}, {v(VWu[0])}
    """)
    if cfg.start_stamps: P.add(stamp("prewait"))
    P.e("s_waitcnt lgkmcnt(0)")
    if cfg.start_stamps: P.add(stamp("karg")); P.e("s_waitcnt lgkmcnt(0)\n v_mov_b32 v156, s74\n v_mov_b32 v157, s72")
    P.e(f"""
    s_sub_u32 s4, s4, {XB}
    s_subb_u32 s5, s5, 0
    """)
    def dma_item(i):
        sl = (i % 4) * SLOT; tag = "it%d" % i; L = []
        xl = lambda T, c, u, pre="": [pre + f"s_add_u32 {sSO}, {sCH[c]}, {sTO[T]}", Ins(f"buffer_load_dwordx4 {v(VX[u])}, {X}, {sSO} offen offset:{1024*u} {cfg.sc_g1} lds", tag)]
        if i < 7:
            L.append([f"s_add_u32 m0, {sM0P}, {sl+3072}", Ins(f"buffer_load_dwordx4 {v(VWg[0])}, {WG}, {sWC[i]} offen offset:0 {cfg.sc_g1} lds", tag)])
            L.append(Ins(f"buffer_load_dwordx4 {v(VWg[1])}, {WG}, {sWC[i]} offen offset:1024 {cfg.sc_g1} lds", tag))
            L.append([f"s_add_u32 m0, {sM0P}, {sl+5120}", Ins(f"buffer_load_dwordx4 {v(VWu[0])}, {WU}, {sWC[i]} offen offset:0 {cfg.sc_g1} lds", tag)])
            L.append(Ins(f"buffer_load_dwordx4 {v(VWu[1])}, {WU}, {sWC[i]} offen offset:1024 {cfg.sc_g1} lds", tag))
            for rt in range(N1): L.append(xl(rt, i, rt, f"s_add_u32 m0, {sM0P}, {sl}\n" if rt == 0 else ""))
        else:
            T = i - 7 + N1
            for k in range(7): L.append(xl(T, k, k % 4, f"s_add_u32 m0, {sM0P}, {sl+1024*k}\n" if k % 4 == 0 else ""))
        return L
    first = dma_item(0) + dma_item(1)
    P.add(first[:cfg.n_pre]); late_first = first[cfg.n_pre:]
    ske = srd_hi(SK, 4096) + lines(f"""s_lshr_b32 s3, {sW}, 1
        s_lshl_b32 {sM}, s2, 1
        s_add_u32 {sM}, {sM}, s3
        s_lshl_b32 s3, {sM}, 12
        s_add_u32 s20, s20, s3
        s_addc_u32 s21, s21, 0
        s_and_b32 s3, {sW}, 1
        s_lshl_b32 s3, s3, 11
        v_lshl_add_u32 {v(VSK[0])}, {v(VL)}, 4, s3
        v_add_u32 {v(VSK[1])}, -16, {v(VSK[0])}
        v_add_u32 {v(VSK[2])}, 1008, {v(VSK[0])}
        buffer_load_dwordx4 {v(HR,4)}, {v(VSK[1])}, {SK}, 0 offen
        buffer_load_dwordx4 {v(HR+4,4)}, {v(VSK[0])}, {SK}, 0 offen
        buffer_load_dwordx4 {v(HR+8,4)}, {v(VSK[2])}, {SK}, 0 offen
        buffer_load_dwordx4 {v(HR+12,4)}, {v(VSK[0])}, {SK}, 0 offen offset:1024""")
    if cfg.sk_early and cfg.sk_pos == 0: P.add(ske)
    if cfg.aux_head: P.e("s_branch L_mainc\n L_auxhead:\n L_mainc:")
    if not cfg.pass_stamps: P.add(stamp("issued"))
    P.e(f"""
    s_lshl_b32 s3, s2, 2
    s_load_dword {sD}, {pD}, s3
    v_lshlrev_b32 {v(T3)}, 1, {v(T2)}
    v_xor_b32 {v(T3)}, {v(T1)}, {v(T3)}
    v_lshlrev_b32 {v(T3)}, 4, {v(T3)}
    v_mul_u32_u24 {v(VD[0])}, 896, {v(T0)}
    v_add_u32 {v(VD[0])}, {v(VD[0])}, {v(T3)}
    v_add_u32 {v(VX[3])}, -3072, {v(VX[0])}
    v_and_b32 {v(T0)}, 31, {v(VL)}
    v_lshrrev_b32 {v(T1)}, 3, {v(T0)}
    v_mul_u32_u24 {v(T1)}, {PIECE}, {v(T1)}
    v_and_b32 {v(T2)}, 7, {v(T0)}
    v_lshl_add_u32 {v(T1)}, {v(T2)}, 7, {v(T1)}
    v_lshrrev_b32 {v(T2)}, 1, {v(T0)}
    v_and_b32 {v(T2)}, 7, {v(T2)}
    v_lshrrev_b32 {v(T3)}, 5, {v(VL)}
    v_xor_b32 {v(T2)}, {v(T2)}, {v(T3)}
    v_lshl_add_u32 {v(XR[0][0])}, {v(T2)}, 4, {v(T1)}
    """)
    for k in range(1, 4): P.e(f"v_xor_b32 {v(XR[0][k])}, {32*k}, {v(XR[0][0])}")
    for k in range(4): P.e(f"v_add_u32 {v(XR[1][k])}, {3*SLOT}, {v(XR[0][k])}")
    P.e(f"""
    v_bfe_u32 {v(T0)}, {v(VL)}, 2, 2
    v_lshl_add_u32 {v(T1)}, {v(T3)}, 3, {v(T0)}
    v_lshlrev_b32 {v(T1)}, 7, {v(T1)}
    v_bfe_u32 {v(T2)}, {v(VL)}, 1, 1
    v_lshl_add_u32 {v(T1)}, {v(T2)}, 11, {v(T1)}
    v_lshlrev_b32 {v(T2)}, 1, {v(T2)}
    v_lshrrev_b32 {v(T0)}, 1, {v(T0)}
    v_add_u32 {v(T2)}, {v(T2)}, {v(T0)}
    v_xor_b32 {v(T2)}, {sW}, {v(T2)}
    v_lshl_add_u32 {v(T1)}, {v(T2)}, 5, {v(T1)}
    v_bfe_u32 {v(T2)}, {v(VL)}, 4, 1
    v_lshl_add_u32 {v(T1)}, {v(T2)}, 4, {v(T1)}
    v_and_b32 {v(T2)}, 1, {v(VL)}
    v_lshl_add_u32 {v(T1)}, {v(T2)}, 3, {v(T1)}
    v_add_u32 {v(WR[0])}, 3072, {v(T1)}
    v_add_u32 {v(WR[1])}, {2*SLOT}, {v(WR[0])}
    """)
    if cfg.sk_early and cfg.sk_pos == 1: P.add(ske)
    for i in range(2, 7): P.add(ch_tab(i))
    for t in range(N1, 8): P.add(to_tab(t))
    S = []
    S += lines(f"""
    v_bfe_u32 {v(T1)}, {v(VL)}, 2, 2
    v_lshl_add_u32 {v(T1)}, {v(T3)}, 2, {v(T1)}
    v_lshlrev_b32 {v(T1)}, 7, {v(T1)}
    s_lshr_b32 s3, {sW}, 1
    v_xor_b32 {v(T2)}, s3, {v(T0)}
    v_lshl_add_u32 {v(T1)}, {v(T2)}, 6, {v(T1)}
    v_bfe_u32 {v(T2)}, {v(VL)}, 4, 1
    v_lshl_add_u32 {v(T1)}, {v(T2)}, 5, {v(T1)}
    v_and_b32 {v(T2)}, 3, {v(VL)}
    v_lshl_add_u32 {v(T1)}, {v(T2)}, 3, {v(T1)}
    s_and_b32 s3, {sW}, 1
    s_lshl_b32 s3, s3, 5
    v_xor_b32 {v(T1)}, s3, {v(T1)}
    v_add_u32 {v(DR[0][0])}, {sM0P}, {v(T1)}
    v_xor_b32 {v(DR[0][1])}, 64, {v(DR[0][0])}
    v_add_u32 {v(DR[1][0])}, {2*SLOT}, {v(DR[0][0])}
    v_add_u32 {v(DR[1][1])}, {2*SLOT}, {v(DR[0][1])}
    v_add_u32 {v(VD[1])}, 6144, {v(VD[0])}
    v_add_u32 {v(VD[2])}, {2*6144}, {v(VD[0])}
    v_add_u32 {v(VD[3])}, {3*6144}, {v(VD[0])}
    v_lshlrev_b32 {v(V16)}, 4, {v(VL)}
    s_mul_i32 s3, {sT2}, 28
    s_add_u32 s3, s3, {sT1}
    s_add_u32 s3, s3, 256
    s_lshl_b32 {sFL}, s3, 7
    v_mov_b32 {v(vARR)}, -16
    v_cmp_eq_u32 vcc, 0, v0
    v_min_u32 {v(vP8)}, 7, {v(VL)}
    v_min_u32 {v(vP7)}, 6, {v(VL)}
    v_cndmask_b32 {v(vARR)}, {v(vARR)}, 0, vcc
    v_mov_b32 {v(vONE)}, 1
    s_lshl_b32 s3, {sW}, 3
    v_add_lshl_u32 {v(vP8)}, {v(vP8)}, s3, 7
    s_mul_i32 s3, {sW}, 7
    v_add_lshl_u32 {v(vP7)}, {v(vP7)}, s3, 7
    s_mul_i32 {sWB}, {sT2}, {8*112}
    s_lshl_b32 s3, {sT1}, 2
    s_add_u32 {sWB}, {sWB}, s3
    s_add_u32 {sWB}, {sWB}, {sW}
    s_lshl_b32 {sWB}, {sWB}, 10
    s_add_u32 {sWB}, {sWB}, {WS_H}
    s_mul_i32 {sDB}, {sW}, {448*896}
    s_lshl_b32 s3, {sCT}, 7
    s_add_u32 {sDB}, {sDB}, s3
    s_and_b32 s3, s2, 7
    s_add_u32 {sRG}, {sCT}, s3
    s_and_b32 s3, {sI2}, 3
    s_lshr_b32 s3, s3, {cfg.gq_sh}
    s_mul_i32 s3, s3, {cfg.gq_mul}
    s_add_u32 {sRG}, {sRG}, s3
    """)
    S += mod7(sRG) if cfg.rot_g else [f"s_mov_b32 {sRG}, 0"]
    S += [f"s_mov_b32 {sR}, {sRG}"]
    for i in range(7):
        S += [f"s_mul_i32 s3, {sR}, {0 if cfg.hack_wd else 57344}", f"s_add_u32 {sDG[i]}, s3, {sDB}"] + (rot_next(sR) if i < 6 else [])
    S += srd_hi(WD, NW) + srd_hi(WS, WS_SIZE) + srd_hi(SK, 4096) + srd_hi(OUT, NQ)
    S += lines(f"""
    s_lshr_b32 {sT2}, {sW}, 1
    s_and_b32 {sKH}, {sW}, 1
    s_lshl_b32 {sM}, s2, 1
    s_add_u32 {sM}, {sM}, {sT2}
    s_lshl_b32 s3, {sM}, 12""") + ([] if cfg.sk_early else [f"s_add_u32 s20, s20, s3\n s_addc_u32 s21, s21, 0"]) + lines(f"""
    s_mov_b32 {sNL2E}, 0xbfb8aa3b
    s_mov_b32 {sMASK}, 0xffff0000
    s_mov_b32 {sONE}, 1
    """)
    S2 = lines(f"""
    s_mov_b32 {sHS}, {sWB}
    s_lshl_b32 {sU}, {sKH}, 11
    v_add_u32 {v(VSK[0])}, {sU}, {v(V16)}
    v_add_u32 {v(VSK[1])}, -16, {v(VSK[0])}
    v_add_u32 {v(VSK[2])}, 1008, {v(VSK[0])}
    s_mul_i32 {sT0}, {sT2}, {HCCH}
    s_add_u32 {sT0}, {sT0}, {HC}
    s_mul_i32 {sT1}, {sT2}, {UCH}
    s_add_u32 {sT1}, {sT1}, {UL}
    s_add_u32 s3, {sU}, {sT0}
    s_add_u32 s3, s3, 32
    v_add_u32 {v(VHW)}, s3, {v(V16)}
    v_and_b32 {v(T0)}, 15, {v(VL)}
    v_lshrrev_b32 {v(T1)}, 4, {v(VL)}
    v_sub_u32 {v(T2)}, 3, {v(T0)}
    v_and_b32 {v(T2)}, 3, {v(T2)}
    v_add3_u32 {v(T3)}, {v(T0)}, {v(T2)}, 1
    v_lshl_add_u32 {v(T3)}, {v(T1)}, 3, {v(T3)}
    v_lshlrev_b32 {v(T3)}, 1, {v(T3)}
    v_mul_u32_u24 {v(T2)}, {CPY}, {v(T2)}
    s_lshl_b32 s3, {sKH}, 8
    s_add_u32 {sT0}, {sT0}, s3
    v_add3_u32 {v(CA)}, {v(T2)}, {v(T3)}, {sT0}
    v_lshlrev_b32 {v(T0)}, 5, {v(T0)}
    v_lshlrev_b32 {v(T1)}, 4, {v(T1)}
    v_sub_u32 {v(T1)}, {v(T1)}, {v(T0)}
    s_add_u32 s3, s3, {sT1}
    s_add_u32 s3, s3, 480
    v_add_u32 {v(CB)}, s3, {v(T1)}
    s_add_u32 {sPA}, {sT1}, {sU}
    s_lshl_b32 s3, {sM}, 12
    s_add_u32 {sU}, {sU}, s3
    v_mov_b32 {v(VZ)}, 0
    v_mov_b32 {v(VZ+1)}, 0
    v_mov_b32 {v(VZ+2)}, 0
    v_mov_b32 {v(VZ+3)}, 0
    v_lshrrev_b32 {v(T0)}, 5, {v(VL)}
    v_mul_u32_u24 {v(T0)}, {UCH}, {v(T0)}
    v_and_b32 {v(T1)}, 31, {v(VL)}
    v_lshl_add_u32 {v(T0)}, {v(T1)}, 4, {v(T0)}
    v_add_u32 {v(T0)}, {UL+4096}, {v(T0)}
    ds_write_b128 {v(T0)}, {v(VZ,4)}
    v_and_b32 {v(T0)}, 15, {v(VL)}
    v_lshrrev_b32 {v(T1)}, 1, {v(T0)}
    v_mul_u32_u24 {v(T1)}, {CPY}, {v(T1)}
    v_and_b32 {v(T0)}, 1, {v(T0)}
    v_lshl_add_u32 {v(T0)}, {v(T0)}, 4, {v(T1)}
    v_add_u32 {v(VHZ)}, {HC}, {v(T0)}
    s_mul_i32 {sT0}, {sI2}, 224
    s_mul_i32 s3, {sW}, 28
    s_add_u32 {sT0}, {sT0}, s3
    s_lshl_b32 {sT0}, {sT0}, 10
    s_add_u32 {sHL[0]}, {sT0}, {WS_H}
    s_add_u32 {sHL[1]}, {sT0}, {WS_H + 112*1024}
    """)
    skl = [f"buffer_load_dwordx4 {v(HR,4)}, {v(VSK[1])}, {SK}, 0 offen", f"buffer_load_dwordx4 {v(HR+4,4)}, {v(VSK[0])}, {SK}, 0 offen",
           f"buffer_load_dwordx4 {v(HR+8,4)}, {v(VSK[2])}, {SK}, 0 offen", f"buffer_load_dwordx4 {v(HR+12,4)}, {v(VSK[0])}, {SK}, 0 offen offset:1024"]

    VRW = 224; VRR = 225; VUR = 226; VYS = 227; VY = [228, 229]; VQ = [230, 231]; VGA = 232
    EWA = 233; ERA = [234, 235, 236]; EWB = 237; ERB = [238, 239, 240]; EY = 241; EQ = [242, 243]; EO = 244
    VG = [14, 15]; OMG = [8, 9]; RA = HC + 8192; sO = ["s62", "s63"]; sQS = "s66"; sYS = "s93"
    S3 = lines(f"""
    s_lshl_b32 s3, {sW}, 12
    s_add_u32 s3, s3, {HC}
    v_add_u32 {v(VRW)}, s3, {v(V16)}
    v_xor_b32 {v(VRR)}, 4096, {v(VRW)}
    v_and_b32 {v(T3)}, 15, {v(VL)}
    v_lshlrev_b32 {v(T3)}, 5, {v(T3)}
    v_lshrrev_b32 {v(T2)}, 4, {v(VL)}
    v_lshl_add_u32 {v(T3)}, {v(T2)}, 3, {v(T3)}
    s_lshr_b32 s3, {sW}, 1
    s_mul_i32 s3, s3, {UCH}
    s_lshl_b32 {sT0}, {sKH}, 11
    s_sub_u32 s3, s3, {sT0}
    s_add_u32 s3, s3, {UL+504+2048}
    v_sub_u32 {v(VUR)}, s3, {v(T3)}
    v_and_b32 {v(T1)}, 3, {v(VL)}
    v_lshlrev_b32 {v(T1)}, 4, {v(T1)}
    v_bfe_u32 {v(T3)}, {v(VL)}, 2, 2
    v_lshl_add_u32 {v(T1)}, {v(T3)}, 7, {v(T1)}
    v_bfe_u32 {v(T3)}, {v(VL)}, 4, 1
    v_lshl_add_u32 {v(T1)}, {v(T3)}, 9, {v(T1)}
    v_lshrrev_b32 {v(T3)}, 5, {v(VL)}
    v_lshl_add_u32 {v(VYS)}, {v(T3)}, 6, {v(T1)}
    """)
    S3_marks = [0, len(S3)]
    S3 += lines(f"""
    v_lshrrev_b32 {v(T1)}, 3, {v(VL)}
    v_and_b32 {v(T2)}, 7, {v(VL)}
    v_lshlrev_b32 {v(T3)}, 12, {v(T1)}
    v_lshl_add_u32 {v(VY[0])}, {v(T2)}, 4, {v(T3)}
    v_add_u32 {v(VY[1])}, {32768-1024}, {v(VY[0])}
    v_lshrrev_b32 {v(T3)}, 4, {v(VL)}
    v_xor_b32 {v(T2)}, {v(T2)}, {v(T3)}
    v_lshlrev_b32 {v(T2)}, 4, {v(T2)}
    v_mul_u32_u24 {v(T1)}, 896, {v(T1)}
    v_add_u32 {v(VQ[0])}, {v(T1)}, {v(T2)}
    v_xor_b32 {v(T2)}, 64, {v(T2)}
    v_add_u32 {v(T1)}, {7168-1024}, {v(T1)}
    v_add_u32 {v(VQ[1])}, {v(T1)}, {v(T2)}
    s_lshl_b32 s3, {sI2}, 8
    s_add_u32 s3, s3, {WS_G}
    v_and_b32 {v(T1)}, 31, {v(VL)}
    v_lshl_add_u32 {v(VGA)}, {v(T1)}, 2, s3
    s_lshl_b32 s3, {sI2}, 2
    s_add_u32 s3, s3, {sW}
    s_mul_i32 s3, s3, {16*896}
    s_lshl_b32 {sQS}, {sCT}, 7
    s_add_u32 {sQS}, {sQS}, s3
    s_add_u32 {sQS}, {sQS}, {XB}
    """)
    ea = [f"s_mul_i32 {sT0}, {sW}, 6144", f"s_add_u32 s3, {sT0}, {RA}", f"v_add_u32 {v(EWA)}, s3, {v(V16)}", f"v_add_u32 {v(EWB)}, {sM0P}, {v(V16)}"]
    for sg in range(1, 4):
        ea += [f"s_xor_b32 {sT0}, {sW}, {sg}", f"s_mul_i32 s3, {sT0}, 6144", f"s_add_u32 s3, s3, {RA + 2048*(sg-1)}", f"v_add_u32 {v(ERA[sg-1])}, s3, {v(V16)}",
               f"s_mul_i32 s3, {sT0}, {PIECE}", f"s_add_u32 s3, s3, {(sg-1)*SLOT}", f"v_add_u32 {v(ERB[sg-1])}, s3, {v(V16)}"]
    ea += lines(f"""v_bfe_u32 {v(T1)}, {v(VL)}, 2, 2
    v_lshrrev_b32 {v(T2)}, 5, {v(VL)}
    v_lshl_add_u32 {v(T1)}, {v(T2)}, 2, {v(T1)}
    v_lshlrev_b32 {v(T1)}, 7, {v(T1)}
    v_bfe_u32 {v(T3)}, {v(VL)}, 1, 1
    v_lshl_add_u32 {v(T1)}, {v(T3)}, 6, {v(T1)}
    v_bfe_u32 {v(T3)}, {v(VL)}, 4, 1
    v_lshl_add_u32 {v(T1)}, {v(T3)}, 4, {v(T1)}
    v_and_b32 {v(T3)}, 1, {v(VL)}
    v_lshl_add_u32 {v(T1)}, {v(T3)}, 3, {v(T1)}
    s_lshl_b32 s3, {sW}, 11
    s_add_u32 s3, s3, {YL}
    v_add_u32 {v(EY)}, s3, {v(T1)}
    v_and_b32 {v(T1)}, 31, {v(VL)}
    v_bfe_u32 {v(T3)}, {v(VL)}, 1, 3
    s_lshl_b32 s3, {sW}, 1
    v_xor_b32 {v(T3)}, s3, {v(T3)}
    v_lshlrev_b32 {v(T3)}, 4, {v(T3)}
    v_lshl_add_u32 {v(T3)}, {v(T1)}, 7, {v(T3)}
    v_lshl_add_u32 {v(T3)}, {v(T2)}, 3, {v(T3)}
    v_add_u32 {v(EQ[0])}, {QL}, {v(T3)}
    v_xor_b32 {v(EQ[1])}, 16, {v(EQ[0])}
    v_mul_u32_u24 {v(T1)}, 896, {v(T1)}
    v_lshl_add_u32 {v(EO)}, {v(T2)}, 4, {v(T1)}
    s_mul_i32 {sO[0]}, {sI2}, {64*896}
    s_lshl_b32 s3, {sCT}, 2
    s_add_u32 s3, s3, {sW}
    s_lshl_b32 {sT0}, s3, 5
    s_add_u32 {sO[0]}, {sO[0]}, {sT0}
    s_add_u32 {sO[1]}, {sO[0]}, {32*896}
    s_lshl_b32 s3, s3, 16
    s_lshl_b32 {sYS}, {sI2}, 7
    s_add_u32 {sYS}, {sYS}, s3
    s_add_u32 {sYS}, {sYS}, {WS_YT}""")
    if cfg.ytag:
        S3 += lines(f"""s_lshr_b32 s3, {sI2}, 2
        s_mul_i32 s3, s3, {28*128}
        s_add_u32 s3, s3, {768*128}
        v_add_u32 {v(246)}, s3, {v(vP7)}
        v_subrev_u32 {v(T1)}, 8, {v(VL)}
        v_min_u32 {v(T1)}, 7, {v(T1)}
        s_lshl_b32 s3, {sCT}, 2
        s_add_u32 s3, s3, {sW}
        s_lshl_b32 s3, s3, 3
        s_add_u32 s3, s3, 512
        v_add_lshl_u32 {v(T1)}, {v(T1)}, s3, 7
        v_cmp_gt_u32 vcc, 8, {v(VL)}
        v_mov_b32 {v(204)}, -1
        v_mov_b32 {v(205)}, -1
        v_cndmask_b32 {v(246)}, {v(T1)}, {v(246)}, vcc
        v_mov_b32 {v(206)}, -1
        v_mov_b32 {v(207)}, -1""")
    S3_marks.append(len(S3))
    S3 += ea + [f"v_add_u32 {v(245)}, 57344, {v(EWB)}"]
    NG = 224
    G = Gaps(NG)
    def item_start(i): return CH * i if i <= 7 else P1 + 28 * (i - 7)
    gT = lambda T: item_start(T + 7 - N1)
    def xread(g):
        if g < P1: c = g // CH; ks = (g % CH) // N1; unit = g % N1; it = c
        else: it = 7 + (g - P1) // 28; k = (g - P1) % 28; ks = k % 4; unit = k // 4
        sl = it % 4; hi = 1 if sl >= 3 else 0
        off = (sl - 3 * hi) * SLOT + 1024 * unit
        return f"ds_read_b128 {v(XRING+4*(g%NXR),4)}, {v(XR[hi][ks])} offset:{off}"
    def wread(c, ks):
        sl = c % 4; var = sl // 2; off = (sl - 2 * var) * SLOT + PIECE * ks; f = 4 * (4 * c + ks)
        return [f"ds_read_b64_tr_b16 {a(f+2*rd,2)}, {v(WR[var])} offset:{off+512*rd}" for rd in range(2)]
    tile_acc = {0: 0, 1: 1, 2: 2, 3: 3, 4: 0, 5: 1, 6: 2, 7: 3}
    for g in range(NG):
        if g < P1: c = g // CH; ks = 4 * c + (g % CH) // N1; T = g % N1
        else: T = N1 + (g - P1) // 28; ks = (g - P1) % 28
        A = v(ACC[tile_acc[T]], 16)
        G.m[g] = f"v_mfma_f32_32x32x16_bf16 {A}, {a(4*ks,4)}, {v(XRING+4*(g%NXR),4)}, {'0' if ks == 0 else A}"
    pre = []
    def at(g, item):
        if g < 0: pre.append(item)
        else: G.put(g, item)
    gB = lambda i: item_start(i) - PD - 1
    if not cfg.hack_p: G.put(cfg.p_load, poll_load("p", "0"))
    G.put(cfg.p_chk, [stamp("prepoll") if not (cfg.pass_stamps or cfg.start_stamps) else [], [] if cfg.hack_p else poll_check("p", "0"), [] if cfg.p_chk in (gB(NI - 2), gB(NI - 1), gT(7)) else Ins("s_barrier")])
    for i in range(NI):
        at(gB(i), [WaitTag('vm', "it%d" % i), Ins("s_barrier")])
    assert cfg.z_chk < cfg.p_load
    G.put(cfg.z_load, poll_load("z", None))
    G.f[cfg.z_chk].insert(0, [stamp("zpre") if not (cfg.pass_stamps or cfg.start_stamps) else [], poll_check("z", None), stamp("zpost") if not (cfg.pass_stamps or cfg.start_stamps) else []])
    for g in range(NG):
        if g < P1 and g % N1 == 0:
            for s_ in wread(g // CH, (g % CH) // N1): at(g - PD - 1, s_)
        at(g - PD - 1, xread(g))
    cb = cfg.blk_c; deep = cfg.blk_deep and cb is not None
    for c in range(7):
        if deep:
            if c < cb: G.spread(dma_item(c + 2), max(gB(c) + 1, 0), gB(c + 1) + 1)
            if c > cb: G.put(12 * c, Ins("s_barrier")); G.spread(dma_item(c + 3), 12 * c + 1, 12 * c + 12)
        elif c != cb or not cfg.blk_dma: G.spread(dma_item(c + 2), max(gB(c) + 1, 0), gB(c + 1) + 1)
    for T in range(5 if cfg.no_x else N1, 8): G.put(gT(T), ([WaitTag('lgkm', "hcw")] if T == 7 else []) + [Ins("s_barrier")])
    if deep: G.spread(dma_item(10), gT(3) + 1, gT(3) + 20)
    elif cfg.no_x:
        for i in range(9, NI): G.spread(dma_item(i), gB(i - 2) + 1, gB(i - 2) + 22)
    else: G.spread(dma_item(9) + dma_item(10), gB(7) + 1, gB(8) + 1)
    if not cfg.no_x:
        for i in range(11, NI): G.spread(dma_item(i), item_start(i - 3) + 1, item_start(i - 3) + 20)
    if cfg.wd_touch >= 0: G.put(cfg.wd_touch, f"buffer_load_dword {v(202)}, {v(200)}, {WD}, 0 offen {cfg.sc_wd}")
    for g_, n_ in (cfg.hack_sleep or []): G.put(g_, "s_sleep %d" % n_)
    if cfg.sk_at >= 0: G.spread(skl, cfg.sk_at, cfg.sk_at + 8)
    hv = []
    for rho in range(2):
        R = HR + 8 * rho; C_ = HCP + 12 * rho
        for k in range(4): hv.append(f"v_alignbit_b32 {v(C_+k)}, {v(R+4+k)}, {v(R+3+k)}, 16")
        for k in range(4): hv.append(f"v_mov_b32 {v(C_+4+k)}, {v(R+3+k)}")
        for k in range(4): hv.append(f"v_alignbit_b32 {v(C_+8+k)}, {v(R+3+k)}, {v(R+2+k)}, 16")
    hw = [Ins(f"ds_write_b128 {v(VHZ)}, {v(VZ,4)}", "hcw")]
    for rho in range(2):
        R = HR + 8 * rho; C_ = HCP + 12 * rho
        for cpy, src in enumerate((R + 4, C_, C_ + 4, C_ + 8)):
            hw.append(Ins(f"ds_write_b128 {v(VHW)}, {v(src,4)} offset:{cpy*CPY+1024*rho}", "hcw"))
    def epi(T, packed=False):
        A = ACC[tile_acc[T]]; Pk = PK[T % 2]; L = []
        for grp in range(2):
            g_ = A + 8 * grp; u_ = g_ + 4; E = ET
            if packed:
                E = ET if grp == 0 else HR
                L += [f"v_mul_f32 {v(E+i)}, {sNL2E}, {v(g_+i)}" for i in range(4)]
                L += [f"v_exp_f32 {v(E+i)}, {v(E+i)}" for i in range(4)]
                L += [f"v_pk_mul_f32 {v(u_+2*i,2)}, {v(g_+2*i,2)}, {v(u_+2*i,2)}" for i in range(2)]
                L += [f"v_pk_add_f32 {v(E+2*i,2)}, {v(E+2*i,2)}, 1.0 op_sel_hi:[1,0]" for i in range(2)]
                L += [f"v_rcp_f32 {v(E+i)}, {v(E+i)}" for i in range(4)]
                L += [f"v_pk_mul_f32 {v(u_+2*i,2)}, {v(u_+2*i,2)}, {v(E+2*i,2)}" for i in range(2)]
            else:
                L += [f"v_mul_f32 {v(E+i)}, {sNL2E}, {v(g_+i)}" for i in range(4)]
                L += [f"v_exp_f32 {v(E+i)}, {v(E+i)}" for i in range(4)]
                L += [f"v_mul_f32 {v(u_+i)}, {v(g_+i)}, {v(u_+i)}" for i in range(2)]
                L += [f"v_add_f32 {v(E+i)}, 1.0, {v(E+i)}" for i in range(4)]
                L += [f"v_rcp_f32 {v(E+i)}, {v(E+i)}" for i in range(4)]
                L += [f"v_mul_f32 {v(u_+i)}, {v(g_+i)}, {v(u_+i)}" for i in range(2, 4)]
                L += [f"v_mul_f32 {v(u_+i)}, {v(u_+i)}, {v(E+i)}" for i in range(4)]
            L += [f"v_cvt_pk_bf16_f32 {v(Pk+2*grp+i)}, {v(u_+2*i)}, {v(u_+2*i+1)}" for i in range(2)]
        L.append(f"s_lshl2_add_u32 {sSO2}, {sTO[T]}, {sHS}")
        L.append(Ins(f"buffer_store_dwordx4 {v(Pk,4)}, {v(V16)}, {WS}, {sSO2} offen {cfg.sc_h}", "hst%d" % T))
        return L
    page_slot = [(T + 7 - N1) % 4 for T in (4, 5, 6, 7)]
    def wd_page(n): return n if n < 21 else (n - 21 if n < 28 else (n - 7 if n < 35 else (n - 28 if n < 49 else n - 49)))
    def wd_prev(n): return n - 21 if 21 <= n < 28 else (n - 28 if n >= 35 else None)
    def wd_dma(n0, n1):
        L = []; n = n0
        while n < n1:
            p = wd_page(n); cnt = min(4, n1 - n, 7 - p % 7, 8 - n % 8)
            lds = page_slot[p // 7] * SLOT + 1024 * (p % 7)
            for k in range(cnt):
                it = [Ins(f"buffer_load_dwordx4 {v(VD[k])}, {WD}, {sSO} offen offset:{1024*k} {cfg.sc_wd} lds", "wd%d" % (n + k))]
                if wd_prev(n + k) is not None: it = [WaitTag('lgkm', "wr%d" % wd_prev(n + k))] + it
                if k == 0: L.append(f"s_add_u32 m0, {sM0P}, {lds}\n s_add_u32 {sSO}, {sDG[n >> 3]}, {7168*(n % 8)}")
                L.append(it)
            n += cnt
        return L
    def wd_read(n, dst):
        p = wd_page(n); sl = page_slot[p // 7]; hi = 1 if sl >= 2 else 0
        off = (sl - 2 * hi) * SLOT + 1024 * (p % 7)
        return [[WaitTag('vm', "wd%d" % n)] * (dt == 0 and not 28 <= n < 28 + cfg.n_raw) + [Ins(f"ds_read_b64_tr_b16 {dst(dt)}, {v(DR[hi][dt])} offset:{off}", "wr%d" % n)] for dt in range(2)]
    WD1 = 112
    NR = cfg.n_raw; RAW0 = 224 - 4 * NR; EWH = 245
    def raw_reg(n): return RAW0 + 4 * (NR - 1 - (n - 28))
    def raw_loads(n0, n1):
        L = []; n = n0
        while n < n1:
            cnt = min(4, n1 - n, 8 - n % 8)
            L.append(f"s_add_u32 {sSO}, {sDG[n >> 3]}, {7168*(n % 8)}")
            L += [f"buffer_load_dwordx4 {v(raw_reg(n+k),4)}, {v(VD[k])}, {WD}, {sSO} offen offset:{1024*k}" for k in range(cnt)]
            n += cnt
        return L
    def raw_write(n):
        p = wd_page(n); off = page_slot[p // 7] * SLOT + 1024 * (p % 7)
        it = [Ins(f"ds_write_b128 {v(EWB if off < 57344 else EWH)}, {v(raw_reg(n),4)} offset:{off if off < 57344 else off - 57344}", "ww%d" % n)]
        return [it]
    def fill_units(n0, n1):
        m = min(max(28 + NR, n0), n1)
        return [x for n in range(n0, m) for x in raw_write(n)] + wd_dma(m, n1)
    def wd1(n): return lambda dt: a(WD1 + 8 * (n >> 1) + 4 * dt + 2 * (n & 1), 2)
    def wd_reads(n0, n1): return [x for n in range(n0, n1) for x in wd_read(n, wd1(n))]
    preblk = []
    if cfg.blk_c is None:
        if cfg.s3_at >= 0: l3_ = G.pour(S3, cfg.s3_at, cfg.hv_at, cfg.bud1); assert l3_ < 80
        lh = G.pour(hv, cfg.hv_at, min(max(P1 - 4, cfg.hv_at + 24), cfg.hw0 - 2), cfg.bud1 if cfg.hv_at < 70 else 20); assert lh < cfg.hw0
        G.spread(hw, cfg.hw0, cfg.hw1)
    else:
        n3 = len(S3) - (S3_marks + [len(S3)])[3 - cfg.blk_s3]; S3b = S3[len(S3) - n3:]; del S3[len(S3) - n3:]
        work = [hw[0], hv[0:4], hw[1], hv[4:8], hw[2], hv[8:12], hw[3], hv[12:16], hw[4], hv[16:20], hw[5], hv[20:24], hw[6], S3b[:5], hw[7], S3b[5:10], hw[8], S3b[10:]]
        d_ = dma_item(cfg.blk_c + 2) if cfg.blk_dma else []; blk = []
        if deep:
            G.spread(d_[:4], gB(cb) + 1, 12 * cb); d_ = d_[4:] + dma_item(cb + 3); blk = [Ins("s_barrier")]
        step_ = max(len(work) // (len(d_) + 1), 1)
        for j, it in enumerate(work):
            if j % step_ == 0 and d_: blk.append(d_.pop(0))
            blk.append(it)
        if cfg.blk_list:
            done_ = 0
            for g_, nw_ in cfg.blk_list:
                k_ = min(len(blk), done_ + 2 * nw_) if (g_, nw_) != cfg.blk_list[-1] else len(blk)
                G.put(g_, blk[done_:k_]); done_ = k_
        elif cfg.blk_g2: G.put(cfg.blk_g, blk[:9]); G.put(cfg.blk_g2, blk[9:])
        elif cfg.blk_g < 0: preblk = blk
        else: G.put(12 * cb if deep else (gB(cb) + 1 if cfg.blk_dma else cfg.blk_g), blk + d_)
    if NR:
        r0, r1, r2 = 28, 28 + min(NR, 6), 28 + min(NR, 6 + (NR - 6 + 1) // 2)
        assert cfg.hw1 <= gT(5) + 8 or NR <= 6
        G.spread(raw_loads(r0, r1), gT(4) + 21 - 12, gT(5))
        G.spread(wd_dma(0, 7), gT(5) + 1, gT(5) + 15); G.spread(raw_loads(r1, r2), gT(5) + 15, gT(6))
        G.spread(wd_dma(7, 14), gT(6) + 1, gT(6) + 15); G.spread(raw_loads(r2, 28 + NR), gT(6) + 15, gT(7))
    else:
        G.spread(wd_dma(0, 7), gT(5) + (17 if cfg.no_x else 1), gT(5) + (28 if cfg.no_x else 22))
        G.spread(wd_dma(7, 14), gT(6) + 1, gT(6) + 20)
    UD = ([f"s_mov_b32 m0, {sPA}\n s_add_u32 {sSO}, {sU}, {WS_UR if not cfg.hack_p else 0x900000}"] + [Ins(f"buffer_load_dwordx4 {v(V16)}, {WS}, {sSO} offen offset:{1024*j} sc1 lds", "u") for j in range(2)])
    G.spread(wd_reads(0, 7), gB(NI - 1) + 2, gT(7) + 12)
    if cfg.p_chk > gT(7) + 8:
        G.spread(wd_dma(14, 21), gT(7) + 1, cfg.p_chk)
        G.put(cfg.p_chk + 1, UD)
        G.spread(wd_dma(21, 28), cfg.p_chk + 2, NG - 1)
    elif cfg.p_chk == gT(7):
        G.put(gT(7) + 1, UD)
        G.spread(wd_dma(14, 28), gT(7) + 2, NG - 1)
    else:
        assert cfg.p_chk in (gB(NI - 2), gB(NI - 1))
        G.put(cfg.p_chk + 4, UD)
        G.spread(wd_dma(14, 28), gT(7) + 1, NG - 1)
    bounds = [P1 + 2 + (NG - P1 - 4) * k // 7 for k in range(8)]
    last = 0
    for T in range(7):
        avail = (P1 if T < N1 else gT(T + 1)) + 2
        if cfg.epi_len: g0 = max(avail, last); g1_ = min(g0 + cfg.epi_len, NG - 1)
        else: g0 = max(bounds[T], avail, last); g1_ = max(bounds[T + 1], g0 + 1)
        last = G.pour(epi(T), g0, g1_, cfg.bud)
        if T == 3 and cfg.eo: assert last < cfg.a_arr - 4, last
        nxt = [t for t in range(T + 1, 8) if tile_acc[t] == tile_acc[T]]
        if nxt: assert last < gT(nxt[0]), (T, last)
    if cfg.eo:
        k_ = [i for i, it in enumerate(G.f[cfg.a_arr]) if isinstance(it, list) and any(isinstance(x, Ins) and x.op == "s_barrier" for x in it)][0]
        if not cfg.nosync: G.f[cfg.a_arr].insert(k_, WaitTag('vm', "hst3")); k_ += 1
        G.f[cfg.a_arr].insert(k_ + 1, [f"s_add_u32 {sT1}, {sFL}, {512*128}", arrive("hst3", sT1, False)])
        if cfg.ytag:
            G.put(cfg.pz_at, [f"s_add_u32 {sT0}, {sU}, {WS_YT}", f"buffer_store_dwordx4 {v(204,4)}, {v(V16)}, {WS}, {sT0} offen sc1"])
            G.put(cfg.pz_at + 3, f"buffer_store_dwordx4 {v(204,4)}, {v(V16)}, {WS}, {sT0} offen offset:1024 sc1")
            assert cfg.pz_at + 3 < gT(4)
            G.put(cfg.a_arr + 2, [f"s_lshl_b32 {sT0}, s2, 7\n s_add_u32 {sT0}, {sT0}, {512*128}", arrive("hst3", sT0, False)])
        if cfg.ytag: G.put(cfg.a_load - 1, f"s_mov_b32 {sT1}, 0")
        else:
            G.put(cfg.a_load - 2, f"s_lshr_b32 {sT1}, {sI2}, 2\n s_mul_i32 {sT1}, {sT1}, {28*128}")
            G.put(cfg.a_load - 1, f"s_add_u32 {sT1}, {sT1}, {768*128}")
        G.put(cfg.a_load, poll_load("a", sT1))
    check_m0(G)
    SS = S + S2; k0 = len(SS) * min(cfg.late_pos, 100) // 100
    touch = []
    if cfg.x_touch:
        touch = lines(f"""v_min_u32 {v(200)}, {8*cfg.x_touch-1}, {v(VL)}
        v_lshrrev_b32 {v(201)}, 3, {v(200)}
        s_lshl_b32 s3, {sFQ}, 1
        s_add_u32 s3, s3, 3
        v_add_u32 {v(201)}, {'s3' if cfg.rot_t else '3'}, {v(201)}
        v_and_b32 {v(201)}, 7, {v(201)}
        v_mul_u32_u24 {v(201)}, 28672, {v(201)}
        v_and_b32 {v(200)}, 7, {v(200)}
        v_mul_u32_u24 {v(200)}, 896, {v(200)}
        v_add3_u32 {v(200)}, {v(200)}, {v(201)}, {sXBc}
        buffer_load_dword {v(202)}, {v(200)}, {X}, {sCH[0]} offen""")
    kvt = lines(f"""s_lshl_b32 s3, s2, 2
    s_add_u32 s3, s3, {sW}
    s_lshl_b32 s3, s3, 4
    v_min_u32 {v(203)}, 15, {v(VL)}
    v_add_lshl_u32 {v(203)}, {v(203)}, s3, 7
    global_load_dword {v(204)}, {v(203)}, s[94:95]
    global_load_dword {v(205)}, {v(203)}, s[96:97]""")
    if cfg.sk_early and cfg.sk_pos == 2: P.add(ske)
    P.add(SS[:k0])
    if cfg.sk_early and cfg.sk_pos == 3: P.add(ske)
    if cfg.late_pos <= 100: P.add(late_first)
    if cfg.odd_touch:
        P.e(f"""v_and_b32 {v(203)}, 7, {v(VL)}
        v_mul_u32_u24 {v(203)}, 896, {v(203)}
        s_add_u32 s3, {sTO[4]}, {XB}
        v_add_u32 {v(203)}, s3, {v(203)}
        buffer_load_dword {v(208)}, {v(203)}, {X}, {sCH[0]} offen""")
    P.add(SS[k0:])
    if cfg.kv_touch == 1: P.add(kvt)
    if cfg.s3_at < 0: P.add(S3)
    if cfg.late_pos > 100: P.add(late_first)
    if cfg.kv_touch == 2: P.add(kvt)
    if cfg.trace: P.e('v_mov_b32 v253, 0')
    P.e(f"""s_lshl_b32 s3, s2, 2
    s_add_u32 s3, s3, {sW}
    s_mul_i32 s3, s3, 14
    v_min_u32 {v(200)}, 13, {v(VL)}
    v_add_lshl_u32 {v(200)}, {v(200)}, s3, 7""")
    if cfg.sk_at < 0 and not cfg.sk_early: P.add(skl)
    if cfg.tlb:
        P.e(f"""v_min_u32 {v(203)}, 12, {v(VL)}
        v_lshlrev_b32 {v(203)}, 20, {v(203)}
        v_add_u32 {v(203)}, 0x1f000, {v(203)}
        buffer_load_dword {v(204)}, {v(203)}, {WS}, 0 offen
        buffer_load_dword {v(205)}, {v(VZ)}, {OUT}, 0 offen
        buffer_load_dword {v(206)}, {v(VZ)}, {WD}, 0 offen""")
    if cfg.wd_touch == -2: P.e(f"buffer_load_dword {v(202)}, {v(200)}, {WD}, 0 offen {cfg.sc_wd}")
    if cfg.warm and cfg.stub_at:
        P.e("s_mov_b64 exec, 0")
        for k in range(min(4, len(cfg.stub_at))): P.e(f"s_cmp_eq_u32 {sW}, {k}\n s_cbranch_scc1 L_pg{k}")
        P.e("L_pgback:\n s_mov_b64 exec, -1")
    if cfg.start_stamps: P.add(stamp("setup"))
    P.e(f"""s_waitcnt lgkmcnt(0)
    s_lshl_b32 s3, {sD}, 16
    s_and_b32 {sD}, {sD}, 0xffff0000
    s_cmp_lt_u32 {sW}, 2
    s_cselect_b32 {sD}, s3, {sD}""")
    P.add(preblk)
    P.add(pre)
    P.add(stamp("g1start"))
    G.put(P1 - 1, stamp("p1end"))
    if cfg.pass_stamps:
        for T in (5, 6, 7): G.put(gT(T) - 1, stamp("T%d" % T))
    add_trace(G, 6, 'g', [94, 96])
    G.emit(P, cfg.pair)
    if cfg.verbose: print("G1 gap costs", G.costs())
    if cfg.start_stamps: P.e("v_readfirstlane_b32 s8, v156\n v_readfirstlane_b32 s10, v157"); STAMP_REGS['prewait'] = 8; STAMP_REGS['karg'] = 10
    P.add(stamp("g1end"))
    CACC = 48
    def cA(buf, a_): return (0 if buf == 0 else 64) + 4 * a_
    def cB(buf, b_):
        i = 32 + 4 * b_ if buf == 0 else 96 + 4 * b_
        return i if i < 112 else 224 + (i - 112)
    def crA(st, k): return [f"ds_read_b64 {a(cA(st&1,k)+2*rd,2)}, {v(CA)} offset:{512*k+64*st+8*rd}" for rd in range(2)]
    def crB(st, k): return [f"ds_read_b128 {a(cB(st&1,k),4)}, {v(CB)} offset:{64*st+512*(7-k)}"]
    def creads(st): return [x for k in range(8) for x in crB(st, k) + crA(st, k)]
    e7 = epi(7, True); ra = [x for k in range(8) for x in crA(0, k)]
    P.add(ra[:10]); k = 10
    for j, it in enumerate(e7):
        P.add(it)
        if j % 6 == 5 and k < 16: P.add(ra[k]); k += 1
    P.add(ra[k:])
    P.vmwait("u"); P.e("s_barrier")
    for k in range(8): P.add(crB(0, k))
    hg = [f"s_lshr_b32 s3, {sI2}, 2", "s_mul_i32 s3, s3, 28", f"s_add_u32 s3, s3, 256", f"s_lshl_b32 s3, s3, 7", f"v_add_u32 {v(vP7)}, s3, {v(vP7)}",
          f"s_add_u32 s3, {sI2}, 32", "s_lshl_b32 s3, s3, 7", f"v_mov_b32 {v(T1)}, s3", f"v_cmp_gt_u32 vcc, 7, {v(VL)}", f"s_mov_b32 {sPA}, 0", "s_nop 0",
          f"v_cndmask_b32 {v(vP7)}, {v(T1)}, {v(vP7)}, vcc",
          f"s_lshl_b32 {sRG}, {sRG}, 12", f"s_add_u32 {sXB}, {sHL[0]}, {sRG}", f"s_add_u32 {sHE}, {sHL[0]}, {28*1024}"]
    d0 = fill_units(28, 35)
    npre = 0 if NR else 3
    P.add(d0[:npre])
    P.add(stamp("cstart"))
    C = Gaps(144)
    pairs = [(t, a_) for t in range(8) for a_ in range(t + 1)]
    for st in range(4):
        for j, (t, a_) in enumerate(pairs):
            A = v(CACC + 4 * t, 4)
            C.m[36 * st + j] = f"v_mfma_f32_16x16x32_bf16 {A}, {a(cA(st&1,a_),4)}, {a(cB(st&1,t-a_),4)}, {'0' if (st == 0 and a_ == 0) else A}"
        if st < 3: C.spread(creads(st + 1), 36 * st + 1, 36 * st + 33)
    HRING = 96; NHR = 32
    horder = [(0, ks) for ks in range(28)] + [(1, ks) for ks in (list(range(14, 28)) + list(range(14)) if cfg.b_rev else range(28))]
    def hload(n):
        st, ks = horder[n]; L = []
        if n == 28: L += [f"s_add_u32 {sXB}, {sHL[1]}, {sRG}", f"s_add_u32 {sHE}, {sHL[1]}, {28*1024}"]
        elif n > 0 and ks % 4 == 0: L += [f"s_add_u32 {sXB}, {sXB}, 4096", f"s_cmp_eq_u32 {sXB}, {sHE}\n s_cselect_b32 {sXB}, {sHL[st]}, {sXB}"]
        L.append(f"buffer_load_dwordx4 {v(HRING+4*(n%NHR),4)}, {v(V16)}, {WS}, {sXB} offen offset:{1024*(ks%4)} sc1")
        return L
    w0, w1, w2, w3 = cfg.c_wd
    C.spread(d0[npre:], 0, w0)
    C.spread(wd_reads(7, 14), 2, w0 - 2); C.spread(fill_units(35, 42), w0, w1)
    C.spread(wd_reads(14, 21), w0, w1 - 2); C.spread(fill_units(42, 49), w1, w2)
    C.spread(wd_reads(21, 28), w1, w2 - 2); C.spread(wd_dma(49, 56), w2, w3)
    C.put(cfg.g_arrive, arrive("hst7", sFL))
    if cfg.eo: C.put(cfg.a_chk, poll_check("a", sT1))
    lh_ = C.pour(hg, cfg.a_chk + 1 if cfg.eo else 40, min(cfg.g_poll, cfg.h_first) - 4, 10); assert lh_ < min(cfg.g_poll, cfg.h_first)
    C.put(cfg.g_poll, poll_load("h", sPA))
    HCHK = [stamp("c_pre"), poll_check("h", sPA), stamp("c_post")]
    if not cfg.eo: C.put(cfg.g_chk, HCHK)
    NH = cfg.nh_c
    C.spread([hload(n) for n in range(NH)], cfg.h_first if cfg.eo else cfg.g_chk + 1, 144)
    RR = 48; UU = 18; DU = 80
    ce = [f"s_add_u32 {sU}, {sU}, {WS_YT}\n s_mov_b32 {sHS}, 0xfffefffe"]
    ce += [f"ds_read_b64 {v(UU+2*tau,2)}, {v(VUR)} offset:{512*(3-tau)}" for tau in range(4)]
    for tau in range(4):
        ce += lines(f"""
        v_and_b32 {v(DU+4*tau+0)}, {sMASK}, {v(UU+2*tau+1)}
        v_lshlrev_b32 {v(DU+4*tau+1)}, 16, {v(UU+2*tau+1)}
        v_and_b32 {v(DU+4*tau+2)}, {sMASK}, {v(UU+2*tau)}
        v_lshlrev_b32 {v(DU+4*tau+3)}, 16, {v(UU+2*tau)}""")
    lr = C.pour(ce[:5], max(lh_ + 1, 104), 112, 8); assert lr < cfg.c_bar - 4
    lc = C.pour(ce[5:], lr + 6, 140, 8)
    assert lc < 140
    C.put(cfg.c_bar, [WaitRegs(a(cA(1, 7), 4)), WaitRegs(v(UU, 8)), Ins("s_barrier")])
    for g_, n_ in (cfg.hack_sleep_c or []): C.put(g_, 's_sleep %d' % n_)
    check_m0(C, 1024)
    add_trace(C, 12, 'c', [94, 96])
    C.emit(P)
    if cfg.verbose: print("C gap costs", C.costs())
    hq = [hload(n) for n in range(NH, NH + cfg.nh_e)]; NH += cfg.nh_e
    def hnext():
        if hq: P.add(hq.pop(0))
    hnext()
    dfma = lambda base: [f"v_pk_fma_f32 {v(DU+2*k,2)}, s[78:79], {v(DU+2*k,2)}, {v(base+2*k,2)} op_sel_hi:[0,1,1]" for k in range(8)]
    P.e(f"s_cmp_eq_u32 {sKH}, 0\n s_cbranch_scc1 L_cw0")
    for tau in range(4): P.e(f"ds_write_b128 {v(VRW)}, {v(CACC+4*tau,4)} offset:{1024*tau}", nocount=True)
    P.add(dfma(CACC + 16))
    P.e("s_branch L_cw1\n L_cw0:\n s_nop 2")
    for tau in range(4): P.e(f"ds_write_b128 {v(VRW)}, {v(CACC+16+4*tau,4)} offset:{1024*tau}")
    P.add(dfma(CACC))
    P.e("L_cw1:")
    while hq: hnext()
    P.e("s_waitcnt lgkmcnt(0)\n s_barrier")
    ct_ = [f"ds_read_b128 {v(RR+4*tau,4)}, {v(VRR)} offset:{1024*tau}" for tau in range(4)]
    P.add(ct_); ct_ = []
    for pi in range(2):
        if cfg.c_tail_in_g2: ct_ += [f"v_add_f32 {v(DU+8*pi+k)}, {v(DU+8*pi+k)}, {v(RR+8*pi+k)}" for k in range(8)]
        else: ct_ += [f"v_pk_add_f32 {v(DU+8*pi+2*k,2)}, {v(DU+8*pi+2*k,2)}, {v(RR+8*pi+2*k,2)}" for k in range(4)]
        ct_ += [f"v_cvt_pk_bf16_f32 {v(UU+4*pi+k)}, {v(DU+8*pi+2*k)}, {v(DU+8*pi+2*k+1)}" for k in range(4)]
    if cfg.ytag: ct_ += [f"v_pk_min_u16 {v(UU+k)}, {v(UU+k)}, {sHS}" for k in range(8)]
    for pi in range(2):
        ct_ += [f"v_permlane16_swap_b32 {v(UU+4*pi)}, {v(UU+4*pi+2)}", f"v_permlane16_swap_b32 {v(UU+4*pi+1)}, {v(UU+4*pi+3)}"]
        ct_ += [Ins(f"buffer_store_dwordx4 {v(UU+4*pi,4)}, {v(VYS)}, {WS}, {sU} offen offset:{1024*pi} sc1", "yst")]
    if not cfg.c_tail_in_g2: P.add(ct_); ct_ = []
    P.add(stamp("g2start"))
    GACC = 0; JIT = 64; NJ = 8
    G2 = Gaps(112)
    jn = 0
    for n in range(56):
        st, ks = horder[n]
        for dt in range(2):
            A = a(GACC + 32 * st + 16 * dt, 16)
            if ks < 14: W_ = a(WD1 + 8 * ks + 4 * dt, 4)
            else:
                r_ = JIT + 4 * (jn % NJ); jn += 1; W_ = a(r_, 4)
                for rd in range(2):
                    G2.put(2 * n + dt - 6, wd_read(2 * ks + rd, lambda d_, r_=r_, rd=rd: a(r_ + 2 * rd, 2))[dt])
            G2.m[2 * n + dt] = f"v_mfma_f32_32x32x16_bf16 {A}, {W_}, {v(HRING+4*(n%NHR),4)}, {'0' if n in (0, 28) else A}"
    reserved = sorted([cfg.ct_end - 2, cfg.ct_end] * bool(cfg.c_tail_in_g2) + list(cfg.q_at[:2]) + [cfg.g2_chk + 2, cfg.g2_chk + 4])
    t_ = 0.0; n = NH; la = []
    while n < 56:
        if reserved and reserved[0] <= t_ + cfg.g2_hpace / 2: reserved.pop(0); t_ += cfg.g2_hpace; continue
        g = int(t_)
        if n >= NHR: assert g >= 2 * (n - NHR) + 1
        if n == 28 and cfg.eo: assert g > cfg.b_chk
        la.append(2 * n - g); G2.put(g, hload(n)); n += 1; t_ += cfg.g2_hpace
    if cfg.verbose: print("H lookahead (gaps)", la)
    assert min(la) >= 8, la
    if cfg.eo: G2.put(cfg.b_chk, HCHK)
    QD_LATER = True
    lt = G2.pour(ct_, 1, cfg.ct_end, 24) if ct_ else 0
    e1 = lines(f"""
    s_lshl_b32 s3, s2, 7
    s_add_u32 {sFL}, s3, {512*128}
    s_lshl_b32 s3, {sCT}, 12
    s_add_u32 {sPA}, s3, {512*128}
    """)
    l1 = G2.pour(e1, max(lt, cfg.b_chk + 1 if cfg.eo else 0), max(lt, cfg.b_chk) + 8, 24); assert l1 <= cfg.g2_arrive
    G2.put(cfg.g2_arrive, [WaitTag('vm', "q"), Ins("s_barrier") if cfg.ytag else arrive("yst", sFL)])
    qd = [f"s_lshl_b32 {sT1}, {sW}, 11\n s_add_u32 m0, {sT1}, {QL}"]
    qd += [Ins(f"buffer_load_dwordx4 {v(VQ[j])}, {X}, {sQS} offen offset:{1024*j} lds", "q") for j in range(2)]
    qd += [f"buffer_load_dword {v(VG[j])}, {v(VGA)}, {WS}, 0 offen offset:{128*j} sc1" for j in range(2)]
    assert not cfg.eo or min(cfg.q_at) - 1 > cfg.b_chk
    G2.put(cfg.q_at[0] - 1, qd[0])
    for q_, g_ in zip(qd[1:], cfg.q_at): G2.put(g_, q_)
    def sends(st, addr):
        return [Ins(f"ds_write_b128 {addr(sg, jj)[0]}, {a(GACC+32*st+16*(sg>>1)+8*(sg&1)+4*jj,4)} offset:{addr(sg, jj)[1]}", "rw%d" % st) for sg in range(1, 4) for jj in range(2)]
    G2.spread(sends(0, lambda sg, jj: (v(EWA), 2048 * (sg - 1) + 1024 * jj)), 59, cfg.rw_bar - 1)
    if not cfg.ytag:
        G2.put(cfg.g2_poll, poll_load("y", sPA))
        G2.put(cfg.g2_chk, [stamp("g2_pre"), poll_check("y", sPA), [] if cfg.y_nobar else Ins("s_barrier"), [] if cfg.pass_stamps else stamp("g2_post")])
    G2.put(cfg.rw_bar, [WaitTag('lgkm', "rw0"), Ins("s_barrier")])
    yd = [f"s_add_u32 m0, {sT1}, {YL}"]
    yd += [Ins(f"buffer_load_dwordx4 {v(VY[j])}, {WS}, {sYS} offen offset:{1024*j} sc1 lds", "y") for j in range(2)]
    G2.put(cfg.g2_chk + 1, yd[0]); G2.put(cfg.g2_chk + 2, yd[1]); G2.put(cfg.g2_chk + 4, yd[2])
    QQ = 48; TT = 56; BB = 72; RX = 80; YY = 18; O = 48
    RP = [80, 84, 88, 92, 28 + 0, 28 + 0]
    un = lambda i, d, s_: (f"v_lshlrev_b32 {d}, 16, {s_}" if i % 2 == 0 else f"v_and_b32 {d}, {sMASK}, {s_}")
    p0 = [f"ds_read_b64 {v(QQ+4*st+2*J,2)}, {v(EQ[J])} offset:{4096*st}" for st in range(2) for J in range(2)]
    p0 += [f"v_sub_f32 {v(OMG[st])}, 1.0, {v(VG[st])}" for st in range(2)] + [[], []]
    p0 += [un(k, v(TT + k), v(QQ + (k >> 1))) for k in range(16)]
    p0 += [f"v_mul_f32 {v(TT+k)}, {v(TT+k)}, {v(VG[k>>3])}" for k in range(16)]
    l0 = G2.pour(p0, cfg.g2_arrive + 1, 62, 22); assert l0 < cfg.rw_bar
    p1 = [f"ds_read_b128 {v(RX+4*jj,4)}, {v(ERA[0])} offset:{1024*jj}" for jj in range(2)]
    p1 += [f"ds_read_b128 {v(RX+8+4*jj,4)}, {v(ERA[1])} offset:{1024*jj}" for jj in range(2)]
    p1 += [f"v_accvgpr_read_b32 {v(BB+k)}, {a(GACC+k)}" for k in range(8)]
    p1 += [f"v_add_f32 {v(BB+k)}, {v(BB+k)}, {v(RX+k)}" for k in range(8)]
    p1 += [f"ds_read_b128 {v(RX+4*jj,4)}, {v(ERA[2])} offset:{1024*jj}" for jj in range(2)]
    p1 += [f"v_add_f32 {v(BB+k)}, {v(BB+k)}, {v(RX+8+k)}" for k in range(8)]
    p1 += [f"v_add_f32 {v(BB+k)}, {v(BB+k)}, {v(RX+k)}" for k in range(8)]
    p1 += [f"v_mul_f32 {v(BB+k)}, {v(BB+k)}, {v(OMG[0])}" for k in range(8)]
    l3 = G2.pour(p1, cfg.rw_bar + 1, cfg.g2_pre - 1, 24); assert l3 <= cfg.g2_pre + 4, l3
    p2 = [[WaitTag('vm', "y")]]
    p2 += [f"ds_read_b64_tr_b16 {v(YY+4*st+2*J,2)}, {v(EY)} offset:{1024*J+32*st}" for st in range(2) for J in range(2)]
    ychk = []
    if cfg.ytag and not cfg.nosync:
        mx = lines(f"""v_pk_max_u16 {v(T3)}, {v(YY)}, {v(YY+1)}
        v_pk_max_u16 {v(vPV)}, {v(YY+2)}, {v(YY+3)}
        v_pk_max_u16 {v(T3)}, {v(T3)}, {v(YY+4)}
        v_pk_max_u16 {v(vPV)}, {v(vPV)}, {v(YY+5)}
        v_pk_max_u16 {v(T3)}, {v(T3)}, {v(YY+6)}
        v_pk_max_u16 {v(vPV)}, {v(vPV)}, {v(YY+7)}
        v_pk_max_u16 {v(T3)}, {v(T3)}, {v(vPV)}
        v_lshlrev_b32 {v(vPV)}, 16, {v(T3)}
        v_max_u32 {v(T3)}, {v(T3)}, {v(vPV)}
        v_cmp_le_u32 vcc, {sMASK}, {v(T3)}""")
        ychk = mx + [[stamp("g2_pre"), "s_cbranch_vccnz L_slow_yt\n L_back_yt:", stamp("g2_post")]]
        custom_slow.append("\n".join(["L_slow_yt:", f"s_mov_b32 {sCNT}, 0", "L_spin_yt:", f"s_sleep {cfg.sleep}", yd[0], "s_nop 0", yd[1].text, yd[2].text,
            f"s_add_u32 {sCNT}, {sCNT}, 1", "s_waitcnt vmcnt(0)"] + p2[1:5] + ["s_waitcnt lgkmcnt(0)"] + mx +
            ([f"v_writelane_b32 v253, {sCNT}, 3"] if cfg.trace else []) +
            [f"s_cmp_gt_u32 {sCNT}, 0x40000", "s_cbranch_scc1 L_back_yt", "s_cbranch_vccnz L_spin_yt", "s_branch L_back_yt"]))
    p2 += [[], [], []] + ychk
    p2 += [un(k, v(RX + k), v(YY + (k >> 1))) for k in range(8)]
    p2 += [f"v_fmac_f32 {v(BB+k)}, {v(TT+k)}, {v(RX+k)}" for k in range(8)]
    p2 += [f"v_cvt_pk_bf16_f32 {v(O+k)}, {v(BB+2*k)}, {v(BB+2*k+1)}" for k in range(4)]
    p2 += [un(k, v(RX + k), v(YY + (k >> 1))) for k in range(8, 16)]
    p2 += [f"v_permlane32_swap_b32 {v(O)}, {v(O+2)}", f"v_permlane32_swap_b32 {v(O+1)}, {v(O+3)}"]
    p2 += [f"buffer_store_dwordx4 {v(O,4)}, {v(EO)}, {OUT}, {sO[0]} offen {cfg.sc_out0}"]
    p2 += [f"v_mul_f32 {v(TT+k)}, {v(TT+k)}, {v(RX+k)}" for k in range(8, 16)]
    p2 += [f"v_mov_b32 {v(T1)}, {v(OMG[1])}", f"v_mov_b32 {v(T2)}, {v(OMG[1])}"]
    if cfg.y_late: G2.pour(p2[-2:], l3, 111, 24)
    else: G2.pour(p2, max(l3, cfg.g2_pre), 111, 24)
    for g_, n_ in (cfg.hack_sleep_h or []): G2.put(g_, 's_sleep %d' % n_)
    check_m0(G2)
    add_trace(G2, 8, 'h', [94, 96])
    G2.emit(P, 2)
    if cfg.verbose: print("G2 gap costs", G2.costs())
    P.add(stamp("g2end"))
    R1 = 96; O2 = 52; B2 = 120 if cfg.y_late else BB
    w_ = sends(1, lambda sg, jj: (v(EWB), (sg - 1) * SLOT + 1024 * jj))
    P.add(w_[:2])
    for k in range(8): P.e(f"v_accvgpr_read_b32 {v(B2+k)}, {a(GACC+32+k)}")
    P.add(w_[2:])
    if cfg.y_late: P.vmwait("y")
    P.e("s_waitcnt lgkmcnt(0)\n s_barrier")
    if cfg.y_late: P.add(p2[1:5])
    for jj in range(2):
        for sg in range(1, 4): P.e(f"ds_read_b128 {v(R1+8*(sg-1)+4*jj,4)}, {v(ERB[sg-1])} offset:{1024*jj}")
    if cfg.y_late:
        P.add(ychk)
        for k in range(8): P.e(un(k, v(RX + k), v(YY + (k >> 1))))
        for k in range(4): P.e(f"v_pk_fma_f32 {v(BB+2*k,2)}, {v(TT+2*k,2)}, {v(RX+2*k,2)}, {v(BB+2*k,2)}")
        for k in range(4): P.e(f"v_cvt_pk_bf16_f32 {v(O+k)}, {v(BB+2*k)}, {v(BB+2*k+1)}")
        for k in range(8, 10): P.e(un(k, v(RX + k), v(YY + (k >> 1))))
        P.e(f"v_permlane32_swap_b32 {v(O)}, {v(O+2)}\n v_permlane32_swap_b32 {v(O+1)}, {v(O+3)}")
        P.e(f"buffer_store_dwordx4 {v(O,4)}, {v(EO)}, {OUT}, {sO[0]} offen {cfg.sc_out}")
        for k in range(10, 16): P.e(un(k, v(RX + k), v(YY + (k >> 1))))
        for k in range(4, 8): P.e(f"v_pk_mul_f32 {v(TT+2*k,2)}, {v(TT+2*k,2)}, {v(RX+2*k,2)}")
    for jj in range(2):
        for sg in range(3):
            for i in range(2): P.e(f"v_pk_add_f32 {v(B2+4*jj+2*i,2)}, {v(B2+4*jj+2*i,2)}, {v(R1+8*sg+4*jj+2*i,2)}")
        for i in range(2): P.e(f"v_pk_fma_f32 {v(B2+4*jj+2*i,2)}, {v(B2+4*jj+2*i,2)}, {v(T1,2)}, {v(TT+8+4*jj+2*i,2)}")
        for i in range(2): P.e(f"v_cvt_pk_bf16_f32 {v(O2+2*jj+i)}, {v(B2+4*jj+2*i)}, {v(B2+4*jj+2*i+1)}")
    P.e(f"v_permlane32_swap_b32 {v(O2)}, {v(O2+2)}\n v_permlane32_swap_b32 {v(O2+1)}, {v(O2+3)}")
    P.e(f"buffer_store_dwordx4 {v(O2,4)}, {v(EO)}, {OUT}, {sO[1]} offen {cfg.sc_out}")
    if cfg.stamps: emit_stamps(P)
    if cfg.fixdur:
        P.e(f"""L_fix:
        s_memrealtime s[4:5]
        s_waitcnt lgkmcnt(0)
        s_sub_u32 s4, s4, s100
        s_cmp_lt_i32 s4, {cfg.fixdur}
        s_cbranch_scc1 L_fix""")
    P.e("s_endpgm")

def check_m0(G, init=None):
    flat = []
    def fl(it):
        if isinstance(it, str):
            for l in lines(it): flat.append(Ins(l))
        elif isinstance(it, (list, tuple)):
            for x in it: fl(x)
        elif isinstance(it, Ins): flat.append(it)
    for f in G.f:
        for it in f: fl(it)
    last_off = init
    for it in flat:
        if it.kind == 'salu' and ('s', 'm0') in it.w: last_off = -1024
        if it.kind == 'dma':
            m = re.search(r'offset:(\d+)', it.text); off = int(m.group(1)) if m else 0
            assert last_off is not None and off == last_off + 1024, ("m0 group interleaved", it.text)
            last_off = off

def emit_stamps(P):
    P.e("s_waitcnt vmcnt(0)")
    P.e("s_memtime s[4:5]\n s_memrealtime s[6:7]\n s_waitcnt lgkmcnt(0)")
    n = len(stamp_names)
    for k in range(n):
        P.e(f"s_sub_u32 s3, s{STAMP_REGS[stamp_names[k]]}, {'s100' if cfg.rt else 's98'}"); P.e(f"v_mov_b32 v{200+k}, s3")
    P.e(f"s_sub_u32 s3, {'s6, s100' if cfg.rt else 's4, s98'}\n v_mov_b32 v{200+n}, s3")
    P.e(f"""s_lshl_b32 s3, s2, 2
    s_add_u32 s3, s3, {sW}
    s_lshl_b32 s3, s3, 7
    s_add_u32 s3, s3, {WS_STAMP}
    v_mov_b32 v229, 0
    v_mov_b32 v230, s100
    v_mov_b32 v231, s6
    v_mov_b32 v2, 0
    s_mov_b64 exec, 1""")
    for k in range(8): P.e(f"buffer_store_dwordx4 v[{200+4*k}:{203+4*k}], v2, {WS}, s3 offen offset:{16*k}")
    if cfg.trace:
        P.e(f"""s_mov_b64 exec, -1
        v_subrev_u32 v254, s98, v254
        v_subrev_u32 v255, s98, v255
        s_lshl_b32 s3, s2, 2
        s_add_u32 s3, s3, {sW}
        s_lshl_b32 s3, s3, 9
        s_add_u32 s3, s3, {WS_STAMP + 0x40000}
        v_lshlrev_b32 v2, 2, v1
        buffer_store_dword v254, v2, {WS}, s3 offen
        v_readlane_b32 s4, v253, 0
        v_readlane_b32 s5, v253, 1
        v_readlane_b32 s6, v253, 2
        v_readlane_b32 s7, v253, 3
        s_nop 3
        v_writelane_b32 v255, s4, 60
        v_writelane_b32 v255, s5, 61
        v_writelane_b32 v255, s6, 62
        v_writelane_b32 v255, s7, 63
        buffer_store_dword v255, v2, {WS}, s3 offen offset:256""")

def gen_aux(P0):
    P = P0
    K, V_, SH, GW = "s[40:43]", "s[44:47]", "s[48:51]", "s[52:55]"
    sA = "s68"; sST = "s69"; sUS = "s70"; sLO = "s71"; sHI = "s72"; sC = "s73"; sC2 = "s74"; sTA = ["s56", "s57"]; sTW = ["s58", "s59"]
    VL = 1; T0 = 2; T1 = 3; VZA = 4; VB = 5; VB2 = 6; VM = 7; VX = 8; VR = 9; VS = 11; VW = 12; VWt = [13, 14]; VRB = 16; VQ = 20; VQ2 = 21; VGW = 22
    KP = [48, 58]; VP = [68, 76]; WR_ = [84, 86]; WT = [88, 94]; OO = 100; UV = 108; OUT_ = 124; RB = 160; PF = 24
    TS = 17408
    P.e("s_cmp_lt_u32 s2, 256\n s_cbranch_scc1 L_auxgo\n s_endpgm\n L_auxgo:")
    for reg, off in ((K, 8), (V_, 16), (SH, 24), (GW, 80)): P.e(ldptr(reg, off))
    P.add(srd_hi(K, NQ) + srd_hi(V_, NQ) + srd_hi(SH, 3584) + srd_hi(X, NQ) + srd_hi(GW, 896) + srd_hi(WS, WS_SIZE) + srd_hi(WD, NW))
    P.e(f"""
    s_sub_u32 {sA}, s2, 224
    s_mul_i32 {sSO}, {sA}, {64*896}
    s_mul_i32 {sST}, {sW}, 40960
    s_lshl_b32 {sTA[0]}, {sW}, 7
    s_add_u32 {sTA[1]}, {sTA[0]}, 512
    s_cmp_eq_u32 {sW}, 3
    s_cselect_b32 {sTA[1]}, {NQ}, {sTA[1]}
    s_lshl_b32 {sTW[0]}, {sW}, 9
    s_add_u32 {sTW[1]}, {sTW[0]}, 2048
    v_lshrrev_b32 {v(T0)}, 3, {v(VL)}
    v_and_b32 {v(T1)}, 7, {v(VL)}
    v_mul_u32_u24 {v(VB)}, 896, {v(T0)}
    v_lshl_add_u32 {v(VB)}, {v(T1)}, 4, {v(VB)}
    v_add_u32 {v(VB)}, {sSO}, {v(VB)}
    v_add_u32 {v(VB2)}, 6144, {v(VB)}
    v_add_u32 {v(VM)}, -7168, {v(VB)}
    v_lshlrev_b32 {v(VX)}, 3, {v(VL)}
    s_mul_i32 s3, {sA}, {32*128}
    v_lshlrev_b32 {v(VZA)}, 7, {v(VL)}
    v_add_u32 {v(VZA)}, s3, {v(VZA)}
    v_mov_b32 {v(vARR)}, -16
    v_cmp_gt_u32 vcc, 32, v0
    v_mov_b32 {v(vZERO)}, 0
    v_cndmask_b32 {v(VZA)}, {v(vARR)}, {v(VZA)}, vcc
    v_cmp_eq_u32 vcc, 0, v0
    v_mov_b32 {v(vONE)}, 1
    s_waitcnt lgkmcnt(0)
    v_cndmask_b32 {v(vARR)}, {v(vARR)}, 0, vcc
    s_mov_b32 s34, 256
    s_mov_b32 s35, 0x20000
    """)
    def dset(k, j):
        b = TS * k; tag = "pin%d%d" % (k, j); L = []
        L.append([f"s_add_u32 {sC}, {sTA[k]}, {14336*j}\n s_add_u32 m0, {sST}, {b+1024+2048*j}", Ins(f"buffer_load_dwordx4 {v(VB)}, {K}, {sC} offen lds", tag)])
        L.append(Ins(f"buffer_load_dwordx4 {v(VB2)}, {K}, {sC} offen offset:1024 lds", tag))
        if j == 0:
            L.append([f"s_add_u32 m0, {sST}, {b}", Ins(f"buffer_load_dwordx4 {v(VM)}, {K}, {sC} offen lds", tag)])
            L.append(f"buffer_load_dwordx2 {v(WR_[k],2)}, {v(VX)}, {SH}, {sTW[k]} offen")
        L.append([f"s_add_u32 m0, {sST}, {b+9216+2048*j}", Ins(f"buffer_load_dwordx4 {v(VB)}, {V_}, {sC} offen lds", tag)])
        L.append(Ins(f"buffer_load_dwordx4 {v(VB2)}, {V_}, {sC} offen offset:1024 lds", tag))
        return L
    P.add(dset(0, 0))
    P.e(f"buffer_store_dword {v(vZERO)}, {v(VZA)}, {WS}, 0 offen sc1", tag="zst")
    P.add(dset(0, 1))
    if cfg.aux_head: P.e('s_branch L_aux2\n L_aux2:')
    P.e(f"""
    v_bfe_u32 {v(VR)}, {v(VL)}, 2, 2
    v_lshlrev_b32 {v(VR)}, 7, {v(VR)}
    v_lshrrev_b32 {v(VS)}, 4, {v(VL)}
    v_lshl_add_u32 {v(VR)}, {v(VS)}, 5, {v(VR)}
    v_and_b32 {v(VS)}, 3, {v(VL)}
    v_lshl_add_u32 {v(VR)}, {v(VS)}, 3, {v(VR)}
    v_add_u32 {v(VR)}, {sST}, {v(VR)}
    s_mov_b32 {sLO}, 0xffff
    s_mov_b32 {sMASK}, 0xffff0000
    v_lshlrev_b32 {v(VW)}, 4, {v(T1)}
    v_lshl_add_u32 {v(VW)}, {v(VL)}, 7, {v(VW)}
    v_add_u32 {v(VW)}, {sST}, {v(VW)}
    v_xor_b32 {v(VRB)}, {v(T0)}, {v(T1)}
    v_lshlrev_b32 {v(VRB)}, 4, {v(VRB)}
    v_lshl_add_u32 {v(VRB)}, {v(T0)}, 7, {v(VRB)}
    v_add_u32 {v(VRB)}, {sST}, {v(VRB)}
    v_lshlrev_b32 {v(VGW)}, 4, {v(T1)}
    v_lshl_add_u32 {v(VS)}, {v(T0)}, 12, {v(VGW)}
    s_lshl_b32 s3, {sW}, 18
    s_sub_u32 {sUS}, 31, {sA}
    s_lshl_b32 {sUS}, {sUS}, 7
    s_add_u32 {sUS}, {sUS}, s3
    s_add_u32 {sUS}, {sUS}, {WS_UR}
    """)
    P.add(dset(0, 2))
    zat = [WaitTag('vm', "zst"), f"buffer_atomic_add {v(vONE)}, {v(vARR)}, s[32:35], 0 offen sc1"]
    if not cfg.aux_fl: P.add(zat)
    P.add(dset(0, 3))
    if cfg.hack_aux: P.e("s_sleep 64\n s_sleep 32"); P.add(poll_load("za", None)); P.e("s_branch L_auxdone")
    def reads(k, j):
        b = TS * k; K_ = KP[j & 1]; V2 = VP[j & 1]
        L = [WaitTag('vm', "pin%d%d" % (k, j))]
        L += [f"ds_read_b64_tr_b16 {v(K_+2*m,2)}, {v(VR)} offset:{b+512+2048*j+512*m}" for m in range(5)]
        L += [f"ds_read_b64_tr_b16 {v(V2+2*m,2)}, {v(VR)} offset:{b+9216+2048*j+512*m}" for m in range(4)]
        return L
    def wprep(k):
        W = WR_[k]; T_ = WT[k]
        return lines(f"""v_alignbit_b32 {v(T_)}, {v(W)}, {v(W)}, 16
        v_alignbit_b32 {v(T_+1)}, {v(W+1)}, {v(W+1)}, 16
        v_and_b32 {v(T_+2)}, {sLO}, {v(W)}
        v_bfi_b32 {v(T_+3)}, {sLO}, {v(W+1)}, {v(W)}
        v_and_b32 {v(T_+4)}, {sMASK}, {v(W+1)}""")
    def owrites(k, j):
        return [[f"v_xor_b32 {v(VWt[q&1])}, {16*q}, {v(VW)}", Ins(f"ds_write_b128 {v(VWt[q&1])}, {v(OUT_+4*q,4)} offset:0", "ow")] for q in (7 - 2 * j, 6 - 2 * j)]
    def readback(k): return [f"ds_read_b128 {v(RB+4*q,4)}, {v(VRB)} offset:{1024*q}" for q in range(8)]
    def stores(k): return [[f"s_add_u32 {sC2}, {sUS}, {(k << 20) + 32768*q}", Ins(f"buffer_store_dwordx4 {v(RB+4*q,4)}, {v(VS)}, {WS}, {sC2} offen sc1", "pst")] for q in range(8)]
    wdt = lines(f"""s_lshl_b32 s3, {sA}, 2
    s_add_u32 s3, s3, {sW}
    s_mul_i32 s75, s3, {98*128}
    v_lshlrev_b32 {v(156)}, 7, {v(VL)}
    v_add_u32 {v(157)}, {34*128}, {v(156)}
    buffer_load_dword {v(158)}, {v(156)}, {WD}, s75 offen
    buffer_load_dword {v(159)}, {v(157)}, {WD}, s75 offen""")
    def step(P, k, j, fill):
        if cfg.aux_sleep and cfg.aux_sleep[:2] == (k, j): P.e('s_sleep %d' % cfg.aux_sleep[2])
        if cfg.aux_wd == (k, j): fill = list(fill) + ["\n".join(wdt)]
        K_ = KP[j & 1]; V2 = VP[j & 1]; T_ = WT[k]; fill = list(fill); per = (len(fill) + 9) // 10
        def nx():
            for _ in range(per):
                if fill: P.add(fill.pop(0))
        P.add(WaitRegs(v(V2 + 6, 2)))
        if cfg.stamps: r_ = [60, 62, 64, 66, 94, 78, 80, 92][4 * k + j]; P.e(f"s_memtime s[{r_}:{r_+1}]")
        for h in range(2):
            J = range(4 * h, 4 * h + 4)
            for i in J: P.e(f"v_dot2_f32_bf16 {v(OO+2*(i%4))}, {v(K_+i+2)}, {v(T_+2)}, 0\n v_dot2_f32_bf16 {v(OO+2*(i%4)+1)}, {v(K_+i+2)}, {v(T_)}, 0")
            nx()
            for i in J: P.e(f"v_dot2_f32_bf16 {v(OO+2*(i%4))}, {v(K_+i+1)}, {v(T_+3)}, {v(OO+2*(i%4))}\n v_dot2_f32_bf16 {v(OO+2*(i%4)+1)}, {v(K_+i+1)}, {v(T_+1)}, {v(OO+2*(i%4)+1)}")
            nx()
            for i in J: P.e(f"v_dot2_f32_bf16 {v(OO+2*(i%4))}, {v(K_+i)}, {v(T_+4)}, {v(OO+2*(i%4))}")
            nx()
            for i in J: P.e(f"v_lshlrev_b32 {v(UV+2*(i%4))}, 16, {v(V2+i)}\n v_and_b32 {v(UV+2*(i%4)+1)}, {sMASK}, {v(V2+i)}")
            nx()
            for i in J: P.e(f"v_pk_mul_f32 {v(UV+2*(i%4),2)}, {v(UV+2*(i%4),2)}, {v(OO+2*(i%4),2)}")
            nx()
            for i in J: P.e(f"v_cvt_pk_bf16_f32 {v(OUT_+31-8*j-i)}, {v(UV+2*(i%4)+1)}, {v(UV+2*(i%4))}")
        while fill: nx()
    P.add(reads(0, 0)); P.add(wprep(0))
    if cfg.stamps: P.e("s_waitcnt lgkmcnt(0)\n s_memtime s[86:87]")
    if cfg.aux_fl:
        P.add(zat); P.add(dset(1, 0))
        step(P, 0, 0, dset(1, 1) + reads(0, 1))
        step(P, 0, 1, dset(1, 2) + reads(0, 2) + dset(1, 3))
        step(P, 0, 2, reads(0, 3))
    else:
        step(P, 0, 0, dset(1, 0) + reads(0, 1))
        step(P, 0, 1, dset(1, 1) + reads(0, 2))
        step(P, 0, 2, dset(1, 2) + reads(0, 3))
    P.e(f"s_cmp_eq_u32 {sW}, 3\n s_cbranch_scc1 L_gate")
    Pg = Prog(); Pg.items = list(P.items)
    st0 = stores(0)
    step(P, 0, 3, ([] if cfg.aux_fl else dset(1, 3)) + reads(1, 0) + wprep(1) + owrites(0, 0) + owrites(0, 1))
    P.add(owrites(0, 2) + owrites(0, 3))
    step(P, 1, 0, reads(1, 1) + readback(0))
    step(P, 1, 1, reads(1, 2) + st0[:4] + owrites(1, 0))
    step(P, 1, 2, poll_load("za", None) + reads(1, 3) + st0[4:] + owrites(1, 1))
    step(P, 1, 3, owrites(1, 2))
    P.add(owrites(1, 3)); P.add(readback(1)); P.add(stores(1))
    P.e("s_branch L_auxdone")
    P = Pg; P.e("L_gate:")
    step(P, 0, 3, owrites(0, 0) + owrites(0, 1) + owrites(0, 2))
    P.add(owrites(0, 3)); P.add(readback(0)); P.add(stores(0)); P.add(poll_load("za", None))
    QB = 48; GWB = 112; AC = 104
    def gate(T):
        T.e(f"""s_lshl_b32 {sT0}, {sA}, 2
        s_add_u32 {sT0}, {sT0}, {sW}
        s_mul_i32 {sSO}, {sT0}, {16*896}
        v_mul_u32_u24 {v(VQ)}, {2*896}, {v(T0)}
        v_add_u32 {v(VQ)}, {v(VQ)}, {v(VGW)}""")
        for tau in range(7):
            for rho in range(2): T.e(f"buffer_load_dwordx4 {v(QB+8*tau+4*rho,4)}, {v(VQ)}, {X}, {sSO} offen offset:{896*rho+128*tau}")
            T.e(f"buffer_load_dwordx4 {v(GWB+4*tau,4)}, {v(VGW)}, {GW}, 0 offen offset:{128*tau}")
        for tau in range(7):
            for p in range(4):
                for rho in range(2):
                    d = AC + 2 * (p & 1) + rho
                    T.e(f"v_dot2_f32_bf16 {v(d)}, {v(QB+8*tau+4*rho+p)}, {v(GWB+4*tau+p)}, {'0' if (tau == 0 and p < 2) else v(d)}")
        for rho in range(2): T.e(f"v_add_f32 {v(AC+rho)}, {v(AC+rho)}, {v(AC+2+rho)}")
        for mod in ("row_half_mirror", "quad_perm:[3,2,1,0]", "quad_perm:[1,0,3,2]"):
            for rho in range(2): T.e(f"v_add_f32_dpp {v(AC+rho)}, {v(AC+rho)}, {v(AC+rho)} {mod} row_mask:0xf bank_mask:0xf")
        T.e(f"""s_mov_b32 s56, 0xaaaaaaaa
        s_mov_b32 s57, 0xaaaaaaaa
        v_cndmask_b32 {v(AC)}, {v(AC)}, {v(AC+1)}, s[56:57]
        v_mul_f32 {v(AC)}, 0xbfb8aa3b, {v(AC)}
        v_exp_f32 {v(AC)}, {v(AC)}
        v_lshl_add_u32 {v(T0)}, {v(T0)}, 1, {v(T1)}
        v_add_f32 {v(AC)}, 1.0, {v(AC)}
        v_rcp_f32 {v(AC)}, {v(AC)}
        v_lshlrev_b32 {v(T0)}, 2, {v(T0)}
        v_mov_b32 {v(VZA)}, -16
        v_cmp_gt_u32 vcc, 2, {v(T1)}
        s_lshl_b32 s3, {sT0}, 6
        s_add_u32 s3, s3, {WS_G}
        v_cndmask_b32 {v(T0)}, {v(VZA)}, {v(T0)}, vcc
        buffer_store_dword {v(AC)}, {v(T0)}, {WS}, s3 offen sc1""")
    def watch(T, name, nl, off):
        if cfg.nosync or not cfg.watch: return
        T.e(f"""v_min_u32 {v(24)}, {nl-1}, {v(VL)}
        v_lshlrev_b32 {v(24)}, 7, {v(24)}
        s_mov_b32 {sCNT}, 0
        L_w{name}:
        buffer_load_dword {v(25)}, {v(24)}, {WS}, {off} offen sc1
        s_add_u32 {sCNT}, {sCNT}, 1
        s_cmp_gt_u32 {sCNT}, 256
        s_waitcnt vmcnt(0)
        s_cbranch_scc1 L_x{name}
        v_cmp_gt_u32 vcc, 1, {v(25)}
        s_sleep {cfg.watch}
        s_cbranch_vccnz L_w{name}
        L_x{name}:""")
    gate(P)
    T = Prog(); T.e("L_auxdone:")
    if cfg.stamps: T.e("s_memtime s[88:89]")
    T.e(f"""s_lshl_b32 {sC}, {sA}, 7
    s_add_u32 {sC2}, {sC}, {32*128}
    s_waitcnt vmcnt(0)""")
    T.add(poll_check("za", None))
    T.e("s_barrier")
    if not cfg.nosync: T.e(f"buffer_store_dword {v(vONE)}, {v(vARR)}, {WS}, {sC} offen sc1")
    if cfg.stamps: T.e("s_memtime s[90:91]")
    T.e(f"s_cmp_eq_u32 {sW}, 3\n s_cbranch_scc0 L_g012")
    watch(T, "p", 32, "0")
    T.e("s_branch L_gdone\n L_g012:")
    gate(T)
    T.e("s_waitcnt vmcnt(0)\n L_gdone:\n s_barrier")
    if not cfg.nosync: T.e(f"buffer_store_dword {v(vONE)}, {v(vARR)}, {WS}, {sC2} offen sc1")
    T.e(f"""s_and_b32 s3, s2, 7
    s_mul_i32 s58, s3, {28*128}
    s_lshr_b32 s59, {sA}, 3
    s_cmp_lg_u32 {sW}, 0
    s_cbranch_scc1 L_wn0
    s_add_u32 s60, s58, {768*128}""")
    watch(T, "a", 28, "s60")
    T.e(f"s_add_u32 s60, s58, {256*128}")
    watch(T, "b", 28, "s60")
    T.e(f"""s_branch L_wend
    L_wn0:
    s_cmp_eq_u32 {sW}, 1
    s_cbranch_scc0 L_wn1
    s_lshl_b32 s60, s3, 9
    s_add_u32 s60, s60, {32*128}""")
    watch(T, "g", 4, "s60")
    T.e(f"""s_branch L_wend
    L_wn1:
    s_lshl_b32 s59, s59, 1
    s_add_u32 s59, s59, {sW}
    s_sub_u32 s59, s59, 2
    s_mul_i32 s60, s59, {28*128}
    s_add_u32 s60, s60, {512*128}""")
    watch(T, "y", 28, "s60")
    T.e("L_wend:")
    if cfg.aux_l2:
        g0, ng = cfg.aux_l2
        T.e(f"""v_mul_u32_u24 {v(PF)}, 896, {v(VL)}
        s_lshr_b32 s56, {sA}, 3
        s_mul_i32 s56, s56, {448*896}
        s_and_b32 s57, s2, 7
        s_add_u32 s57, s57, {g0}""")
        for k in range((7 * ng + 3) // 4):
            T.e(f"""s_add_u32 s58, {sW}, {4*k}
            s_min_u32 s58, s58, {7*ng-1}
            s_mul_i32 s59, s58, 37
            s_lshr_b32 s59, s59, 8
            s_mul_i32 s3, s59, 7
            s_sub_u32 s58, s58, s3
            s_add_u32 s59, s59, s58
            s_add_u32 s59, s59, s57
            s_mul_i32 s3, s59, 37
            s_lshr_b32 s3, s3, 8
            s_mul_i32 s3, s3, 7
            s_sub_u32 s59, s59, s3
            s_mul_i32 s59, s59, {64*896}
            s_lshl_b32 s58, s58, 7
            s_add_u32 s59, s59, s58
            s_add_u32 s59, s59, s56
            buffer_load_dword {v(PF+2+k)}, {v(PF)}, {WD}, s59 offen""")
    if cfg.stamps:
        T.e(f"""s_waitcnt vmcnt(0)
        s_memtime s[4:5]
        s_memrealtime s[6:7]
        s_waitcnt lgkmcnt(0)
        s_sub_u32 s3, s86, s98
        v_mov_b32 v200, s3
        s_sub_u32 s3, s88, s98
        v_mov_b32 v201, s3
        s_sub_u32 s3, s90, s98
        v_mov_b32 v202, s3
        s_sub_u32 s3, s4, s98
        v_mov_b32 v203, s3
        v_mov_b32 v204, s100
        v_mov_b32 v205, s6
        s_lshl_b32 s3, s2, 2
        s_add_u32 s3, s3, {sW}
        s_lshl_b32 s3, s3, 7
        s_add_u32 s3, s3, {WS_STAMP}
        v_mov_b32 v2, 0
        s_mov_b64 exec, 1
        buffer_store_dwordx4 v[200:203], v2, {WS}, s3 offen
        buffer_store_dwordx2 v[204:205], v2, {WS}, s3 offen offset:120""")
        for i_, r_ in enumerate([60, 62, 64, 66, 94, 78, 80, 92]): T.e(f"s_sub_u32 s4, s{r_}, s98\n v_mov_b32 v{208+i_}, s4")
        T.e(f"buffer_store_dwordx4 v[208:211], v2, {WS}, s3 offen offset:16\n buffer_store_dwordx4 v[212:215], v2, {WS}, s3 offen offset:32")
    T.e("s_endpgm")
    return Pg, T

def build():
    global slow_paths, stamp_names, trace_names, custom_slow
    slow_paths = []; custom_slow = []; stamp_names = []; trace_names = []; arr_n[0] = 0; STAMP_REGS['prewait'] = 74; STAMP_REGS['karg'] = 72
    pro = Prog()
    for reg, off in ((X, 0), (WG, 56), (WU, 64), (WD, 72), (SK, 32), (WS, 104), (OUT, 88), (pDBG, 96), (pD, 40)) + ((("s[94:95]", 8), ("s[96:97]", 16)) if cfg.kv_touch is not None else ()): pro.e(ldptr(reg, off))
    if cfg.sync_start:
        pro.e("""s_memrealtime s[100:101]
        s_waitcnt lgkmcnt(0)
        s_add_u32 s3, s100, 400
        s_and_b32 s3, s3, 0xffffff00
        s_and_b32 s99, s2, %d
        s_mul_i32 s99, s99, %d
        s_add_u32 s3, s3, s99
        L_ss:
        s_memrealtime s[100:101]
        s_waitcnt lgkmcnt(0)
        s_sub_u32 s99, s100, s3
        s_cmp_lt_i32 s99, 0
        s_cbranch_scc1 L_ss""" % cfg.skew)
    if cfg.stamps or cfg.fixdur: pro.e("s_memtime s[98:99]\n s_memrealtime s[100:101]")
    pro.e(f"""
    v_lshrrev_b32 v2, 6, v0
    v_and_b32 v1, 63, v0
    s_cmp_ge_u32 s2, 224
    v_readfirstlane_b32 {sW}, v2
    s_cbranch_scc1 L_aux
    """)
    Pm = Prog(); Pm.items = list(pro.items)
    gen_main(Pm)
    main = Pm.finalize(cfg.verbose)
    Px = Prog(); Px.items = list(pro.items); Px.e("L_aux:")
    Pg, Pt = gen_aux(Px)
    ax = Px.finalize(); gx = Pg.finalize(); tx = Pt.finalize()
    cut = lambda lst, lab: lst[[i for i, x in enumerate(lst) if x.kind == 'label' and x.text == lab][0]:]
    axl = cut(ax, "L_aux:")
    if cfg.aux_head:
        k_ = [i for i, x in enumerate(axl) if x.kind == 'label' and x.text == "L_aux2:"][0]
        m_ = [i for i, x in enumerate(main) if x.kind == 'label' and x.text == "L_auxhead:"][0]
        main[m_:m_ + 1] = axl[:k_]; axl = axl[k_:]
    if cfg.warm:
        real = [i for i, x in enumerate(main) if x.kind != 'label']
        for k, n in reversed(list(enumerate(cfg.stub_at[:4]))):
            main[real[n]:real[n]] = [Ins("L_pg%d:" % k), Ins("s_cbranch_execz L_pgback")]
    body = text_of(main) + "\n" + text_of(axl) + "\n" + text_of(cut(gx, "L_gate:")) + "\n" + text_of(tx) + "\n" + emit_slow_paths() + "\nL_codeend:"
    hdr = open("gated_mix__ssm_conv_h3__swiglu_ffn__prompt.s.ref").read().split("; Override launch")[0] if cfg.header else ""
    return f"""{hdr}; @launch grid=(256,1,1) block=(256,1,1) lds={LDS_BYTES}
; TRACE={trace_names}
.amdgcn_target "amdgcn-amd-amdhsa--gfx950"
.text
.globl {KNAME}
{'.p2align 12' if cfg.align else ''}
.p2align 8
.type {KNAME},@function
{KNAME}:
{body}
.section .rodata,"a"
.p2align 6
.amdhsa_kernel {KNAME}
  .amdhsa_next_free_vgpr 512
  .amdhsa_next_free_sgpr 102
  .amdhsa_accum_offset 256
  .amdhsa_group_segment_fixed_size 0
  .amdhsa_kernarg_size 112
  .amdhsa_user_sgpr_count 2
  .amdhsa_user_sgpr_kernarg_segment_ptr 1
  .amdhsa_system_sgpr_workgroup_id_x 1
.end_amdhsa_kernel
"""

if __name__ == "__main__":
    import subprocess
    out = sys.argv[1]
    for kv in sys.argv[2:]:
        k_, v_ = kv.split("=", 1)
        assert hasattr(cfg, k_), k_
        setattr(cfg, k_, eval(v_))
    cfg.pf_n = 1; cfg.pf_last = 100
    vb = cfg.verbose; cfg.verbose = False
    open(out, "w").write(build())
    subprocess.check_call(["clang", "-x", "assembler", "-target", "amdgcn-amd-amdhsa", "-mcpu=gfx950", "-c", out, "-o", "_gen.o"])
    sym = subprocess.check_output(["llvm-objdump", "-t", "_gen.o"], text=True)
    ad = {l.split()[-1]: int(l.split()[0], 16) for l in sym.splitlines() if " L_" in l}
    if cfg.code_pf:
        cfg.pf_last = (ad["L_codeend"] - ad["L_pc"] - 64) // 128
        cfg.pf_n = (cfg.pf_last + 112) // 112
    if cfg.warm:
        cfg.stub_at = [600, 1200, 1800, 2300]
        for it in range(3):
            open(out, "w").write(build())
            subprocess.check_call(["clang", "-x", "assembler", "-target", "amdgcn-amd-amdhsa", "-mcpu=gfx950", "-c", out, "-o", "_gen.o"])
            dis = subprocess.check_output(["llvm-objdump", "-d", "--mcpu=gfx950", "_gen.o"], text=True)
            ins = [(int(l.split("//")[1].split(":")[0], 16), l) for l in dis.splitlines() if "//" in l]
            end = [i for i, (a_, l) in enumerate(ins) if "s_endpgm" in l][1 if cfg.aux_head else 0]
            a0 = []; ns_ = 0
            for a_, l in ins[:end]:
                if "s_cbranch_execz" in l: ns_ += 1
                else: a0.append(a_ - 4 * ns_)
            new_at = []
            for k in range(cfg.pg0, cfg.pg0 + 4):
                c = [i for i, a_ in enumerate(a0) if a_ + 4 * (k - cfg.pg0) + 0x300 >= 4096 * k]
                if c: new_at.append(c[0])
            if new_at == cfg.stub_at: break
            cfg.stub_at = new_at
    cfg.verbose = vb
    open(out, "w").write(build())
    print(out, "code bytes", ad["L_codeend"], "aux at", ad["L_aux"], "stubs", cfg.stub_at, "stamps:", stamp_names)
```

```python
import sys, math, re
from fw import *
import fw
KNAME = "gated_mix__ssm_conv_h3__swiglu_ffn__prompt_kernel"

class Cfg: pass
cfg = Cfg()
cfg.stamps = False; cfg.pass_stamps = False; cfg.verbose = False; cfg.header = True; cfg.fixdur = 0
cfg.PD = 5; cfg.NXR = 8; cfg.pair = 2; cfg.bud = 24
cfg.code_pf = True; cfg.n_pre = 6; cfg.nosync = False
cfg.rot_c = True; cfg.rot_t = True; cfg.rot_g = True
cfg.pl_at = -1; cfg.pc0 = 10; cfg.pc1 = 70; cfg.bud1 = 28; cfg.z_load = 60; cfg.z_chk = 84; cfg.x_touch = 0; cfg.align = True; cfg.tlb = False; cfg.sync_start = False; cfg.skew = (0, 0); cfg.gq_sh = 0; cfg.gq_mul = 0; cfg.wd_touch = -2; cfg.warm = True; cfg.stub_at = []; cfg.late_pos = 100; cfg.p_arr = 9; cfg.pst_at = 80; cfg.aux_sk = False; cfg.p_first = True; cfg.sk_at = -1; cfg.hv_at = 24; cfg.c_rd_end = 66; cfg.sleep = 2
cfg.p_load = 180; cfg.p_chk = 208; cfg.hw0 = 70; cfg.hw1 = 180
cfg.g_arrive = 38; cfg.g_poll = 112; cfg.g_chk = 102; cfg.nh_c = 15; cfg.nh_e = 3; cfg.c_wd = (28, 56, 84, 0); cfg.c_tail_in_g2 = True; cfg.b_rev = False; cfg.ytag = True; cfg.e7i = True; cfg.odd_touch = False; cfg.more = 1; cfg.i910 = None; cfg.nb0 = 3; cfg.reslot = True; cfg.p_nobar = True; cfg.pz_at = 90; cfg.y_nobar = True; cfg.ct_end = 13; cfg.no_x = False; cfg.sk_early = True; cfg.sk_pos = 0; cfg.aux_head = True; cfg.aux_fl = False; cfg.pg0 = 1; cfg.aux_sleep = None; cfg.watch = 0; cfg.hack_sleep_c = None; cfg.hack_sleep_h = None; cfg.eo = True; cfg.epi_len = 22; cfg.a_arr = 168; cfg.a_load = 210; cfg.a_chk = 30; cfg.h_first = 86; cfg.b_chk = 0; cfg.rw_bar = 70; cfg.y_late = False; cfg.n1 = 2; cfg.blk_c = 4; cfg.blk_s3 = 0; cfg.blk_deep = False; cfg.blk_dma = False; cfg.blk_g = 1; cfg.blk_g2 = 0; cfg.blk_list = [(1, 3), (30, 6)]; cfg.hack_sleep = None; cfg.aux_wd = None; cfg.hack_aux = False; cfg.sc_h = 'sc1'; cfg.n_raw = 0; cfg.kv_touch = None; cfg.aux_l2 = None; cfg.hack_wd = False; cfg.hack_p = False; cfg.sc_wd = ''; cfg.sc_g1 = ''; cfg.c_bar = 130; cfg.s3_at = -1; cfg.nwd_t = 5; cfg.g_wd_end = 104
cfg.g2_hpace = 2.1; cfg.q_at = (2, 4, 5, 6); cfg.g2_arrive = 26; cfg.g2_poll = 64; cfg.g2_chk = 62; cfg.g2_pre = 92
cfg.sc_out = ""; cfg.aux_pf = False; cfg.touch = False; cfg.s_early = True; cfg.rt = False; cfg.trace = False; cfg.start_stamps = False

WS_FLAG = 0x0; WS_G = 0x20000; WS_UR = 0x100000; WS_YT = 0x300000; WS_H = 0x500000
WS_STAMP = 0xC00000; WS_SIZE = 0xD00000
NQ = 1835008; NW = 1605632
XB = 4096
SLOT = 28672; PIECE = 7168
HC = 4 * SLOT; CPY = 4160; HCCH = 4 * CPY
UL = HC + 2 * HCCH; UCH = 4608
LDS_BYTES = 163840
YL = HC; QL = UL
assert UL + 2 * UCH <= LDS_BYTES
X, WG, WU, WD, SK, WS, OUT = ["s[%d:%d]" % (b, b + 3) for b in (4, 8, 12, 16, 20, 24, 28)]
pWS = "s[24:25]"; pDBG = "s[32:33]"; pD = "s[34:35]"
sW = "s36"; sT0 = "s37"; sT1 = "s38"; sT2 = "s39"
sCH = ["s%d" % (40 + i) for i in range(7)]
sWC = ["s%d" % (47 + i) for i in range(7)]
sTO = ["s%d" % (54 + i) for i in range(8)]
sHG = sWC
sM0P = "s68"; sXB = "s69"; sWB = "s70"; sDB = "s71"; sHS = "s72"; sHL = ["s73", "s74"]
sNL2E = "s75"; sSO = "s76"; sSO2 = "s77"; sD = "s78"; sI2 = "s79"; sCT = "s80"; sKH = "s81"
sCNT = "s82"; sM = "s83"; sMASK = "s84"; sRG = "s85"
sDG = ["s%d" % (86 + i) for i in range(7)]
sPV = "s93"; sHE = "s70"; sFL = "s67"; sONE = "s66"; sU = "s65"; sPA = "s64"
STAMP_REGS = {'issued': 0, 'setup': 96, 'pdone': 94, 'prewait': 74, 'karg': 72, 'g1start': 34, 'p1end': 12, 'T5': 96, 'T6': 8, 'T7': 10, 'prepoll': 94, 'zpre': 96, 'zpost': 8, 'g1end': 14, 'cstart': 40, 'c_pre': 42, 'c_post': 44, 'g2start': 54, 'g2_pre': 56, 'g2_post': 58, 'g2end': 60}

def v(i, n=1): return "v%d" % i if n == 1 else "v[%d:%d]" % (i, i + n - 1)
def a(i, n=1): return "a%d" % i if n == 1 else "a[%d:%d]" % (i, i + n - 1)
def lines(t): return [l.strip() for l in t.split("\n") if l.strip()]

stamp_names = []
def stamp(name):
    if not cfg.stamps or cfg.stamps == 'min': return []
    if cfg.trace and STAMP_REGS[name] in (94, 96): return []
    stamp_names.append(name); r = STAMP_REGS[name]
    return [Ins("%s s[%d:%d]" % ("s_memrealtime" if cfg.rt else "s_memtime", r, r + 1))]

slow_paths = []; custom_slow = []
trace_names = []
TR_S = [94, 96, 8, 12]
def add_trace(G, every, name, regs):
    if not cfg.trace: return
    k = 0
    for g in range(0, G.n - 3, every):
        i = len(trace_names); trace_names.append("%s%d" % (name, g)); r = regs[k % len(regs)]; k += 1
        G.f[g].insert(0, Ins("s_memtime s[%d:%d]" % (r, r + 1)))
        G.f[min(g + (3 if G.n != 144 else 6), G.n - 1)].append("v_writelane_b32 v%d, s%d, %d" % (254 + i // 64, r, i % 64))
vARR = 43; vONE = 0; vP8 = 38; vP7 = 39; vPV = 33; vZERO = 44
def poll_text(kind, off):
    if kind == "z": return f"global_load_dword {v(vPV)}, {v(vZERO)}, {pDBG} sc1"
    if kind == "za": return f"global_load_dword {v(vPV)}, {v(vZERO)}, {pDBG} sc1"
    return f"buffer_load_dword {v(vPV)}, {v(247 if (kind == 'p' and cfg.p_nobar) else 246 if (kind == 'a' and cfg.ytag) else vP7 if kind in 'ha' else vP8)}, {WS}, {off} offen sc1"
def poll_load(kind, off):
    return [] if cfg.nosync else [poll_text(kind, off)]
def poll_check(kind, off):
    if cfg.nosync: return []
    slow_paths.append((kind, off))
    return [f"v_cmp_gt_u32 vcc, {32 if kind[0] == 'z' else 1}, {v(vPV)}", f"s_cbranch_vccnz L_slow_{kind}\n L_back_{kind}:"]
def emit_slow_paths():
    t = []
    for kind, off in slow_paths:
        t += [f"L_slow_{kind}:", f"s_mov_b32 {sCNT}, 0", f"L_spin_{kind}:", f"s_sleep {cfg.sleep}", poll_text(kind, off),
              f"s_add_u32 {sCNT}, {sCNT}, 1", f"s_cmp_gt_u32 {sCNT}, 0x40000", "s_waitcnt vmcnt(0)", f"s_cbranch_scc1 L_back_{kind}",
              f"v_cmp_gt_u32 vcc, {32 if kind[0] == 'z' else 1}, {v(vPV)}", f"s_cbranch_vccnz L_spin_{kind}"] + ([f"v_writelane_b32 v253, {sCNT}, {'zphy'.index(kind.replace('a', 'z'))}"] if cfg.trace and kind != "za" else []) + [f"s_branch L_back_{kind}"]
    for c in custom_slow: t += lines(c)
    return "\n".join(l if l.endswith(":") else "    " + l for l in t)
arr_n = [0]
def arrive(tag, off, bar=True):
    pre = [Ins("s_barrier")] if bar else []
    if cfg.nosync: return pre
    return ([WaitTag('vm', tag)] if bar else []) + pre + [f"buffer_store_dword {v(vONE)}, {v(vARR)}, {WS}, {off} offen sc1"]

def sb(reg): return int(reg[2:reg.index(':')])
def srd_hi(reg, size): return ["s_mov_b32 s%d, 0x%x" % (sb(reg) + 2, size), "s_mov_b32 s%d, 0x20000" % (sb(reg) + 3)]
def ldptr(reg, off): return "s_load_dwordx2 s[%d:%d], s[0:1], %d" % (sb(reg), sb(reg) + 1, off)
def rot_next(r): return [f"s_add_u32 {r}, {r}, 1", f"s_cmp_eq_u32 {r}, 7\n s_cselect_b32 {r}, 0, {r}"]
def mod7(r): return lines(f"s_mul_i32 s3, {r}, 37\n s_lshr_b32 s3, s3, 8\n s_mul_i32 s3, s3, 7\n s_sub_u32 {r}, {r}, s3")

def code_prefetch(P):
    if not cfg.code_pf: return
    P.e(f"""
        s_getpc_b64 s[38:39]
        L_pc:
        s_lshr_b32 s3, s2, 3
        s_lshl_b32 s3, s3, 2
        s_add_u32 s3, s3, {sW}
        s_mul_i32 s3, s3, {cfg.pf_n}
        v_min_u32 v2, {cfg.pf_n-1}, v1
        v_add_u32 v2, s3, v2
        v_min_u32 v2, {cfg.pf_last}, v2
        v_lshlrev_b32 v2, 7, v2
        v_mov_b32 v3, s39
        v_add_co_u32 v2, vcc, s38, v2
        v_addc_co_u32 v3, vcc, 0, v3, vcc
        global_load_dword v255, v[2:3], off
        """)

def gen_main(P):
    PD = cfg.PD; NXR = cfg.NXR; N1 = cfg.n1; CH = 4 * N1; P1 = 28 * N1; NI = 15 - N1
    VL = 1
    VX = [2, 3, 4, 9]; VWg = [5, 6]; VWu = [7, 8]; VSK = [10, 11, 12]; VD = [13, 14, 15, 16]
    XR = [[17, 18, 19, 20], [21, 22, 23, 24]]; WR = [25, 26, 27]; DR = [[28, 29], [30, 31]]
    V16 = 32; T0 = 33; T1 = 34; T2 = 35; T3 = 36; VHZ = 37; CA = 40; CB = 41; VHW = 42; VZ = 44
    ACC = [48, 64, 80, 96]; XRING = 112; ET = 144; PK = [148, 152]; HR = 160; HCP = 176
    assert XRING + 4 * NXR <= ET
    sX = sSO; sQ7 = sSO2; sR = sCNT
    slot_of = lambda i: (i + 1) % 4 if (cfg.reslot and i == NI - 1) else i % 4
    code_prefetch(P)
    P.e(f"""
    s_and_b32 {sX}, s2, 7
    s_lshr_b32 {sT1}, s2, 3
    s_mul_i32 {sQ7}, {sT1}, 37
    s_lshr_b32 {sQ7}, {sQ7}, 8
    s_mul_i32 s3, {sQ7}, 7
    s_sub_u32 {sCT}, {sT1}, s3
    s_lshl_b32 s3, {sX}, 2
    s_add_u32 {sI2}, s3, {sQ7}
    s_and_b32 s3, {sX}, 4
    s_add_u32 {sT2}, s3, {sQ7}
    s_and_b32 {sT0}, {sX}, 3
    s_mul_i32 {sT1}, {sT0}, 7
    s_add_u32 {sT1}, {sT1}, {sCT}
    s_mul_i32 {sM0P}, {sW}, {PIECE}
    s_mul_i32 {sXB}, {sT2}, {256*896}
    s_add_u32 {sXB}, {sXB}, {sM0P}
    s_mul_i32 {sWB}, {sW}, {16*3584}
    s_lshl_b32 s3, {sT1}, 7
    s_add_u32 {sWB}, {sWB}, s3
    s_lshl_b32 {sRG}, {sQ7}, 1
    s_add_u32 {sRG}, {sRG}, {sCT}
    s_lshr_b32 s3, {sX}, {2 if cfg.rot_c == True else 3}
    s_add_u32 {sR}, {sRG}, s3
    """)
    P.add(mod7(sR) if cfg.rot_c else f"s_mov_b32 {sR}, 0")
    def ch_tab(i):
        L = lines(f"s_lshl_b32 s3, {sR}, 7\n s_add_u32 {sCH[i]}, s3, {sXB}\n s_mul_i32 s3, {sR}, {64*3584}\n s_add_u32 {sWC[i]}, s3, {sWB}")
        return L + (rot_next(sR) if i < 6 else [])
    def to_tab(t):
        if cfg.eo: return lines(f"s_add_u32 s3, {sT0}, {t}\n s_and_b32 s3, s3, 3\n s_mul_i32 s3, s3, {2*28672}\n s_add_u32 {sTO[t]}, s3, {28672*(t >> 2)}")
        if cfg.rot_t: return lines(f"s_lshl_b32 s3, {sT0}, 1\n s_add_u32 s3, s3, {t}\n s_and_b32 s3, s3, 7\n s_mul_i32 {sTO[t]}, s3, 28672")
        return [f"s_mov_b32 {sTO[t]}, {28672*t}"]
    for i in range(2): P.add(ch_tab(i))
    for t in range(N1): P.add(to_tab(t))
    P.add(srd_hi(X, NQ + XB) + srd_hi(WG, NW) + srd_hi(WU, NW))
    P.e(f"""
    v_lshrrev_b32 {v(T0)}, 3, {v(VL)}
    v_and_b32 {v(T1)}, 7, {v(VL)}
    v_lshrrev_b32 {v(T2)}, 4, {v(VL)}
    s_lshl_b32 s3, {sW}, 2
    v_add_u32 {v(T3)}, s3, {v(T2)}
    v_and_b32 {v(T3)}, 7, {v(T3)}
    v_xor_b32 {v(T3)}, {v(T1)}, {v(T3)}
    v_lshlrev_b32 {v(T3)}, 4, {v(T3)}
    v_mul_u32_u24 {v(VX[0])}, 896, {v(T0)}
    v_add_u32 {v(T3)}, {XB}, {v(T3)}
    v_add_u32 {v(VX[0])}, {v(VX[0])}, {v(T3)}
    v_add_u32 {v(VX[1])}, -1024, {v(VX[0])}
    v_add_u32 {v(VX[2])}, -2048, {v(VX[0])}
    v_and_b32 {v(T2)}, 1, {v(T2)}
    v_lshlrev_b32 {v(T2)}, 1, {v(T2)}
    v_xor_b32 {v(T3)}, {v(T1)}, {v(T2)}
    v_lshlrev_b32 {v(T3)}, 4, {v(T3)}
    v_mul_u32_u24 {v(VWg[0])}, 3584, {v(T0)}
    v_add_u32 {v(VWg[0])}, {v(VWg[0])}, {v(T3)}
    v_add_u32 {v(VWg[1])}, {28672-1024}, {v(VWg[0])}
    v_xor_b32 {v(VWu[0])}, 64, {v(VWg[0])}
    v_add_u32 {v(VWu[1])}, {28672-1024}, {v(VWu[0])}
    """)
    if cfg.start_stamps: P.add(stamp("prewait"))
    P.e("s_waitcnt lgkmcnt(0)")
    if cfg.start_stamps: P.add(stamp("karg")); P.e("s_waitcnt lgkmcnt(0)\n v_mov_b32 v156, s74\n v_mov_b32 v157, s72")
    P.e(f"""
    s_sub_u32 s4, s4, {XB}
    s_subb_u32 s5, s5, 0
    """)
    def dma_item(i):
        sl = slot_of(i) * SLOT; tag = "it%d" % i; L = []
        xl = lambda T, c, u, pre="": [pre + f"s_add_u32 {sSO}, {sCH[c]}, {sTO[T]}", Ins(f"buffer_load_dwordx4 {v(VX[u])}, {X}, {sSO} offen offset:{1024*u} {cfg.sc_g1} lds", tag)]
        if i < 7:
            L.append([f"s_add_u32 m0, {sM0P}, {sl+3072}", Ins(f"buffer_load_dwordx4 {v(VWg[0])}, {WG}, {sWC[i]} offen offset:0 {cfg.sc_g1} lds", tag)])
            L.append(Ins(f"buffer_load_dwordx4 {v(VWg[1])}, {WG}, {sWC[i]} offen offset:1024 {cfg.sc_g1} lds", tag))
            L.append([f"s_add_u32 m0, {sM0P}, {sl+5120}", Ins(f"buffer_load_dwordx4 {v(VWu[0])}, {WU}, {sWC[i]} offen offset:0 {cfg.sc_g1} lds", tag)])
            L.append(Ins(f"buffer_load_dwordx4 {v(VWu[1])}, {WU}, {sWC[i]} offen offset:1024 {cfg.sc_g1} lds", tag))
            for rt in range(N1): L.append(xl(rt, i, rt, f"s_add_u32 m0, {sM0P}, {sl}\n" if rt == 0 else ""))
        else:
            T = i - 7 + N1
            for k in range(7): L.append(xl(T, k, k % 4, f"s_add_u32 m0, {sM0P}, {sl+1024*k}\n" if k % 4 == 0 else ""))
        return L
    first = dma_item(0) + dma_item(1)
    P.add(first[:cfg.n_pre]); late_first = first[cfg.n_pre:]
    ske = srd_hi(SK, 4096) + lines(f"""s_lshr_b32 s3, {sW}, 1
        s_lshl_b32 {sM}, s2, 1
        s_add_u32 {sM}, {sM}, s3
        s_lshl_b32 s3, {sM}, 12
        s_add_u32 s20, s20, s3
        s_addc_u32 s21, s21, 0
        s_and_b32 s3, {sW}, 1
        s_lshl_b32 s3, s3, 11
        v_lshl_add_u32 {v(VSK[0])}, {v(VL)}, 4, s3
        v_add_u32 {v(VSK[1])}, -16, {v(VSK[0])}
        v_add_u32 {v(VSK[2])}, 1008, {v(VSK[0])}
        buffer_load_dwordx4 {v(HR,4)}, {v(VSK[1])}, {SK}, 0 offen
        buffer_load_dwordx4 {v(HR+4,4)}, {v(VSK[0])}, {SK}, 0 offen
        buffer_load_dwordx4 {v(HR+8,4)}, {v(VSK[2])}, {SK}, 0 offen
        buffer_load_dwordx4 {v(HR+12,4)}, {v(VSK[0])}, {SK}, 0 offen offset:1024""")
    if cfg.sk_early and cfg.sk_pos == 0: P.add(ske)
    if cfg.aux_head: P.e("s_branch L_mainc\n L_auxhead:\n L_mainc:")
    if not cfg.pass_stamps: P.add(stamp("issued"))
    P.e(f"""
    s_lshl_b32 s3, s2, 2
    s_load_dword {sD}, {pD}, s3
    v_lshlrev_b32 {v(T3)}, 1, {v(T2)}
    v_xor_b32 {v(T3)}, {v(T1)}, {v(T3)}
    v_lshlrev_b32 {v(T3)}, 4, {v(T3)}
    v_mul_u32_u24 {v(VD[0])}, 896, {v(T0)}
    v_add_u32 {v(VD[0])}, {v(VD[0])}, {v(T3)}
    v_add_u32 {v(VX[3])}, -3072, {v(VX[0])}
    v_and_b32 {v(T0)}, 31, {v(VL)}
    v_lshrrev_b32 {v(T1)}, 3, {v(T0)}
    v_mul_u32_u24 {v(T1)}, {PIECE}, {v(T1)}
    v_and_b32 {v(T2)}, 7, {v(T0)}
    v_lshl_add_u32 {v(T1)}, {v(T2)}, 7, {v(T1)}
    v_lshrrev_b32 {v(T2)}, 1, {v(T0)}
    v_and_b32 {v(T2)}, 7, {v(T2)}
    v_lshrrev_b32 {v(T3)}, 5, {v(VL)}
    v_xor_b32 {v(T2)}, {v(T2)}, {v(T3)}
    v_lshl_add_u32 {v(XR[0][0])}, {v(T2)}, 4, {v(T1)}
    """)
    for k in range(1, 4): P.e(f"v_xor_b32 {v(XR[0][k])}, {32*k}, {v(XR[0][0])}")
    for k in range(4): P.e(f"v_add_u32 {v(XR[1][k])}, {3*SLOT}, {v(XR[0][k])}")
    P.e(f"""
    v_bfe_u32 {v(T0)}, {v(VL)}, 2, 2
    v_lshl_add_u32 {v(T1)}, {v(T3)}, 3, {v(T0)}
    v_lshlrev_b32 {v(T1)}, 7, {v(T1)}
    v_bfe_u32 {v(T2)}, {v(VL)}, 1, 1
    v_lshl_add_u32 {v(T1)}, {v(T2)}, 11, {v(T1)}
    v_lshlrev_b32 {v(T2)}, 1, {v(T2)}
    v_lshrrev_b32 {v(T0)}, 1, {v(T0)}
    v_add_u32 {v(T2)}, {v(T2)}, {v(T0)}
    v_xor_b32 {v(T2)}, {sW}, {v(T2)}
    v_lshl_add_u32 {v(T1)}, {v(T2)}, 5, {v(T1)}
    v_bfe_u32 {v(T2)}, {v(VL)}, 4, 1
    v_lshl_add_u32 {v(T1)}, {v(T2)}, 4, {v(T1)}
    v_and_b32 {v(T2)}, 1, {v(VL)}
    v_lshl_add_u32 {v(T1)}, {v(T2)}, 3, {v(T1)}
    v_add_u32 {v(WR[0])}, 3072, {v(T1)}
    v_add_u32 {v(WR[1])}, {2*SLOT}, {v(WR[0])}
    """)
    if cfg.sk_early and cfg.sk_pos == 1: P.add(ske)
    for i in range(2, 7): P.add(ch_tab(i))
    for t in range(N1, 8): P.add(to_tab(t))
    S = []
    S += lines(f"""
    v_bfe_u32 {v(T1)}, {v(VL)}, 2, 2
    v_lshl_add_u32 {v(T1)}, {v(T3)}, 2, {v(T1)}
    v_lshlrev_b32 {v(T1)}, 7, {v(T1)}
    s_lshr_b32 s3, {sW}, 1
    v_xor_b32 {v(T2)}, s3, {v(T0)}
    v_lshl_add_u32 {v(T1)}, {v(T2)}, 6, {v(T1)}
    v_bfe_u32 {v(T2)}, {v(VL)}, 4, 1
    v_lshl_add_u32 {v(T1)}, {v(T2)}, 5, {v(T1)}
    v_and_b32 {v(T2)}, 3, {v(VL)}
    v_lshl_add_u32 {v(T1)}, {v(T2)}, 3, {v(T1)}
    s_and_b32 s3, {sW}, 1
    s_lshl_b32 s3, s3, 5
    v_xor_b32 {v(T1)}, s3, {v(T1)}
    v_add_u32 {v(DR[0][0])}, {sM0P}, {v(T1)}
    v_xor_b32 {v(DR[0][1])}, 64, {v(DR[0][0])}
    v_add_u32 {v(DR[1][0])}, {2*SLOT}, {v(DR[0][0])}
    v_add_u32 {v(DR[1][1])}, {2*SLOT}, {v(DR[0][1])}
    v_add_u32 {v(VD[1])}, 6144, {v(VD[0])}
    v_add_u32 {v(VD[2])}, {2*6144}, {v(VD[0])}
    v_add_u32 {v(VD[3])}, {3*6144}, {v(VD[0])}
    v_lshlrev_b32 {v(V16)}, 4, {v(VL)}
    s_mul_i32 s3, {sT2}, 28
    s_add_u32 s3, s3, {sT1}
    s_add_u32 s3, s3, 256
    s_lshl_b32 {sFL}, s3, 7
    v_mov_b32 {v(vARR)}, -16
    v_cmp_eq_u32 vcc, 0, v0
    v_min_u32 {v(vP8)}, 7, {v(VL)}
    v_min_u32 {v(vP7)}, 6, {v(VL)}
    v_cndmask_b32 {v(vARR)}, {v(vARR)}, 0, vcc
    v_mov_b32 {v(vONE)}, 1
    s_lshl_b32 s3, {sW}, 3
    v_add_lshl_u32 {v(vP8)}, {v(vP8)}, s3, 7
    s_mul_i32 s3, {sW}, 7
    v_add_lshl_u32 {v(vP7)}, {v(vP7)}, s3, 7
    s_mul_i32 {sWB}, {sT2}, {8*112}
    s_lshl_b32 s3, {sT1}, 2
    s_add_u32 {sWB}, {sWB}, s3
    s_add_u32 {sWB}, {sWB}, {sW}
    s_lshl_b32 {sWB}, {sWB}, 10
    s_add_u32 {sWB}, {sWB}, {WS_H}
    s_mul_i32 {sDB}, {sW}, {448*896}
    s_lshl_b32 s3, {sCT}, 7
    s_add_u32 {sDB}, {sDB}, s3
    s_and_b32 s3, s2, 7
    s_add_u32 {sRG}, {sCT}, s3
    s_and_b32 s3, {sI2}, 3
    s_lshr_b32 s3, s3, {cfg.gq_sh}
    s_mul_i32 s3, s3, {cfg.gq_mul}
    s_add_u32 {sRG}, {sRG}, s3
    """)
    S += mod7(sRG) if cfg.rot_g else [f"s_mov_b32 {sRG}, 0"]
    S += [f"s_mov_b32 {sR}, {sRG}"]
    for i in range(7):
        S += [f"s_mul_i32 s3, {sR}, {0 if cfg.hack_wd else 57344}", f"s_add_u32 {sDG[i]}, s3, {sDB}"] + (rot_next(sR) if i < 6 else [])
    S += srd_hi(WD, NW) + srd_hi(WS, WS_SIZE) + srd_hi(SK, 4096) + srd_hi(OUT, NQ)
    S += lines(f"""
    s_lshr_b32 {sT2}, {sW}, 1
    s_and_b32 {sKH}, {sW}, 1
    s_lshl_b32 {sM}, s2, 1
    s_add_u32 {sM}, {sM}, {sT2}
    s_lshl_b32 s3, {sM}, 12""") + ([] if cfg.sk_early else [f"s_add_u32 s20, s20, s3\n s_addc_u32 s21, s21, 0"]) + lines(f"""
    s_mov_b32 {sNL2E}, 0xbfb8aa3b
    s_mov_b32 {sMASK}, 0xffff0000
    s_mov_b32 {sONE}, 1
    """)
    S2 = lines(f"""
    s_mov_b32 {sHS}, {sWB}
    s_lshl_b32 {sU}, {sKH}, 11
    v_add_u32 {v(VSK[0])}, {sU}, {v(V16)}
    v_add_u32 {v(VSK[1])}, -16, {v(VSK[0])}
    v_add_u32 {v(VSK[2])}, 1008, {v(VSK[0])}
    s_mul_i32 {sT0}, {sT2}, {HCCH}
    s_add_u32 {sT0}, {sT0}, {HC}
    s_mul_i32 {sT1}, {sT2}, {UCH}
    s_add_u32 {sT1}, {sT1}, {UL}
    s_add_u32 s3, {sU}, {sT0}
    s_add_u32 s3, s3, 32
    v_add_u32 {v(VHW)}, s3, {v(V16)}
    v_and_b32 {v(T0)}, 15, {v(VL)}
    v_lshrrev_b32 {v(T1)}, 4, {v(VL)}
    v_sub_u32 {v(T2)}, 3, {v(T0)}
    v_and_b32 {v(T2)}, 3, {v(T2)}
    v_add3_u32 {v(T3)}, {v(T0)}, {v(T2)}, 1
    v_lshl_add_u32 {v(T3)}, {v(T1)}, 3, {v(T3)}
    v_lshlrev_b32 {v(T3)}, 1, {v(T3)}
    v_mul_u32_u24 {v(T2)}, {CPY}, {v(T2)}
    s_lshl_b32 s3, {sKH}, 8
    s_add_u32 {sT0}, {sT0}, s3
    v_add3_u32 {v(CA)}, {v(T2)}, {v(T3)}, {sT0}
    v_lshlrev_b32 {v(T0)}, 5, {v(T0)}
    v_lshlrev_b32 {v(T1)}, 4, {v(T1)}
    v_sub_u32 {v(T1)}, {v(T1)}, {v(T0)}
    s_add_u32 s3, s3, {sT1}
    s_add_u32 s3, s3, 480
    v_add_u32 {v(CB)}, s3, {v(T1)}
    s_add_u32 {sPA}, {sT1}, {sU}
    s_lshl_b32 s3, {sM}, 12
    s_add_u32 {sU}, {sU}, s3
    v_mov_b32 {v(VZ)}, 0
    v_mov_b32 {v(VZ+1)}, 0
    v_mov_b32 {v(VZ+2)}, 0
    v_mov_b32 {v(VZ+3)}, 0
    v_lshrrev_b32 {v(T0)}, 5, {v(VL)}
    v_mul_u32_u24 {v(T0)}, {UCH}, {v(T0)}
    v_and_b32 {v(T1)}, 31, {v(VL)}
    v_lshl_add_u32 {v(T0)}, {v(T1)}, 4, {v(T0)}
    v_add_u32 {v(T0)}, {UL+4096}, {v(T0)}
    ds_write_b128 {v(T0)}, {v(VZ,4)}
    v_and_b32 {v(T0)}, 15, {v(VL)}
    v_lshrrev_b32 {v(T1)}, 1, {v(T0)}
    v_mul_u32_u24 {v(T1)}, {CPY}, {v(T1)}
    v_and_b32 {v(T0)}, 1, {v(T0)}
    v_lshl_add_u32 {v(T0)}, {v(T0)}, 4, {v(T1)}
    v_add_u32 {v(VHZ)}, {HC}, {v(T0)}
    s_mul_i32 {sT0}, {sI2}, 224
    s_mul_i32 s3, {sW}, 28
    s_add_u32 {sT0}, {sT0}, s3
    s_lshl_b32 {sT0}, {sT0}, 10
    s_add_u32 {sHL[0]}, {sT0}, {WS_H}
    s_add_u32 {sHL[1]}, {sT0}, {WS_H + 112*1024}
    """)
    skl = [f"buffer_load_dwordx4 {v(HR,4)}, {v(VSK[1])}, {SK}, 0 offen", f"buffer_load_dwordx4 {v(HR+4,4)}, {v(VSK[0])}, {SK}, 0 offen",
           f"buffer_load_dwordx4 {v(HR+8,4)}, {v(VSK[2])}, {SK}, 0 offen", f"buffer_load_dwordx4 {v(HR+12,4)}, {v(VSK[0])}, {SK}, 0 offen offset:1024"]

    VRW = 224; VRR = 225; VUR = 226; VYS = 227; VY = [228, 229]; VQ = [230, 231]; VGA = 232
    EWA = 233; ERA = [234, 235, 236]; EWB = 237; ERB = [238, 239, 240]; EY = 241; EQ = [242, 243]; EO = 244
    VG = [14, 15]; OMG = [8, 9]; RA = HC + 8192; sO = ["s62", "s63"]; sQS = "s66"; sYS = "s93"
    S3 = lines(f"""
    s_lshl_b32 s3, {sW}, 12
    s_add_u32 s3, s3, {HC}
    v_add_u32 {v(VRW)}, s3, {v(V16)}
    v_xor_b32 {v(VRR)}, 4096, {v(VRW)}
    v_and_b32 {v(T3)}, 15, {v(VL)}
    v_lshlrev_b32 {v(T3)}, 5, {v(T3)}
    v_lshrrev_b32 {v(T2)}, 4, {v(VL)}
    v_lshl_add_u32 {v(T3)}, {v(T2)}, 3, {v(T3)}
    s_lshr_b32 s3, {sW}, 1
    s_mul_i32 s3, s3, {UCH}
    s_lshl_b32 {sT0}, {sKH}, 11
    s_sub_u32 s3, s3, {sT0}
    s_add_u32 s3, s3, {UL+504+2048}
    v_sub_u32 {v(VUR)}, s3, {v(T3)}
    v_and_b32 {v(T1)}, 3, {v(VL)}
    v_lshlrev_b32 {v(T1)}, 4, {v(T1)}
    v_bfe_u32 {v(T3)}, {v(VL)}, 2, 2
    v_lshl_add_u32 {v(T1)}, {v(T3)}, 7, {v(T1)}
    v_bfe_u32 {v(T3)}, {v(VL)}, 4, 1
    v_lshl_add_u32 {v(T1)}, {v(T3)}, 9, {v(T1)}
    v_lshrrev_b32 {v(T3)}, 5, {v(VL)}
    v_lshl_add_u32 {v(VYS)}, {v(T3)}, 6, {v(T1)}
    """)
    S3_marks = [0, len(S3)]
    S3 += lines(f"""
    v_lshrrev_b32 {v(T1)}, 3, {v(VL)}
    v_and_b32 {v(T2)}, 7, {v(VL)}
    v_lshlrev_b32 {v(T3)}, 12, {v(T1)}
    v_lshl_add_u32 {v(VY[0])}, {v(T2)}, 4, {v(T3)}
    v_add_u32 {v(VY[1])}, {32768-1024}, {v(VY[0])}
    v_lshrrev_b32 {v(T3)}, 4, {v(VL)}
    v_xor_b32 {v(T2)}, {v(T2)}, {v(T3)}
    v_lshlrev_b32 {v(T2)}, 4, {v(T2)}
    v_mul_u32_u24 {v(T1)}, 896, {v(T1)}
    v_add_u32 {v(VQ[0])}, {v(T1)}, {v(T2)}
    v_xor_b32 {v(T2)}, 64, {v(T2)}
    v_add_u32 {v(T1)}, {7168-1024}, {v(T1)}
    v_add_u32 {v(VQ[1])}, {v(T1)}, {v(T2)}
    s_lshl_b32 s3, {sI2}, 8
    s_add_u32 s3, s3, {WS_G}
    v_and_b32 {v(T1)}, 31, {v(VL)}
    v_lshl_add_u32 {v(VGA)}, {v(T1)}, 2, s3
    s_lshl_b32 s3, {sI2}, 2
    s_add_u32 s3, s3, {sW}
    s_mul_i32 s3, s3, {16*896}
    s_lshl_b32 {sQS}, {sCT}, 7
    s_add_u32 {sQS}, {sQS}, s3
    s_add_u32 {sQS}, {sQS}, {XB}
    """)
    ea = [f"s_mul_i32 {sT0}, {sW}, 6144", f"s_add_u32 s3, {sT0}, {RA}", f"v_add_u32 {v(EWA)}, s3, {v(V16)}", f"v_add_u32 {v(EWB)}, {sM0P}, {v(V16)}"]
    for sg in range(1, 4):
        ea += [f"s_xor_b32 {sT0}, {sW}, {sg}", f"s_mul_i32 s3, {sT0}, 6144", f"s_add_u32 s3, s3, {RA + 2048*(sg-1)}", f"v_add_u32 {v(ERA[sg-1])}, s3, {v(V16)}",
               f"s_mul_i32 s3, {sT0}, {PIECE}", f"s_add_u32 s3, s3, {(sg-1)*SLOT}", f"v_add_u32 {v(ERB[sg-1])}, s3, {v(V16)}"]
    ea += lines(f"""v_bfe_u32 {v(T1)}, {v(VL)}, 2, 2
    v_lshrrev_b32 {v(T2)}, 5, {v(VL)}
    v_lshl_add_u32 {v(T1)}, {v(T2)}, 2, {v(T1)}
    v_lshlrev_b32 {v(T1)}, 7, {v(T1)}
    v_bfe_u32 {v(T3)}, {v(VL)}, 1, 1
    v_lshl_add_u32 {v(T1)}, {v(T3)}, 6, {v(T1)}
    v_bfe_u32 {v(T3)}, {v(VL)}, 4, 1
    v_lshl_add_u32 {v(T1)}, {v(T3)}, 4, {v(T1)}
    v_and_b32 {v(T3)}, 1, {v(VL)}
    v_lshl_add_u32 {v(T1)}, {v(T3)}, 3, {v(T1)}
    s_lshl_b32 s3, {sW}, 11
    s_add_u32 s3, s3, {YL}
    v_add_u32 {v(EY)}, s3, {v(T1)}
    v_and_b32 {v(T1)}, 31, {v(VL)}
    v_bfe_u32 {v(T3)}, {v(VL)}, 1, 3
    s_lshl_b32 s3, {sW}, 1
    v_xor_b32 {v(T3)}, s3, {v(T3)}
    v_lshlrev_b32 {v(T3)}, 4, {v(T3)}
    v_lshl_add_u32 {v(T3)}, {v(T1)}, 7, {v(T3)}
    v_lshl_add_u32 {v(T3)}, {v(T2)}, 3, {v(T3)}
    v_add_u32 {v(EQ[0])}, {QL}, {v(T3)}
    v_xor_b32 {v(EQ[1])}, 16, {v(EQ[0])}
    v_mul_u32_u24 {v(T1)}, 896, {v(T1)}
    v_lshl_add_u32 {v(EO)}, {v(T2)}, 4, {v(T1)}
    s_mul_i32 {sO[0]}, {sI2}, {64*896}
    s_lshl_b32 s3, {sCT}, 2
    s_add_u32 s3, s3, {sW}
    s_lshl_b32 {sT0}, s3, 5
    s_add_u32 {sO[0]}, {sO[0]}, {sT0}
    s_add_u32 {sO[1]}, {sO[0]}, {32*896}
    s_lshl_b32 s3, s3, 16
    s_lshl_b32 {sYS}, {sI2}, 7
    s_add_u32 {sYS}, {sYS}, s3
    s_add_u32 {sYS}, {sYS}, {WS_YT}""")
    if cfg.ytag:
        S3 += lines(f"""s_lshr_b32 s3, {sI2}, 2
        s_mul_i32 s3, s3, {28*128}
        s_add_u32 s3, s3, {768*128}
        v_add_u32 {v(246)}, s3, {v(vP7)}
        v_subrev_u32 {v(T1)}, 8, {v(VL)}
        v_min_u32 {v(T1)}, 7, {v(T1)}
        s_lshl_b32 s3, {sCT}, 2
        s_add_u32 s3, s3, {sW}
        s_lshl_b32 s3, s3, 3
        s_add_u32 s3, s3, 512
        v_add_lshl_u32 {v(T1)}, {v(T1)}, s3, 7
        v_cmp_gt_u32 vcc, 8, {v(VL)}
        v_mov_b32 {v(204)}, -1
        v_mov_b32 {v(205)}, -1
        v_cndmask_b32 {v(246)}, {v(T1)}, {v(246)}, vcc
        v_mov_b32 {v(206)}, -1
        v_mov_b32 {v(207)}, -1""")
    S3 += lines(f"""s_xor_b32 s3, {sKH}, 1
    s_lshl_b32 s3, s3, 4
    v_min_u32 {v(247)}, 15, {v(VL)}
    v_add_lshl_u32 {v(247)}, {v(247)}, s3, 7""")
    S3_marks.append(len(S3))
    S3 += ea + [f"v_add_u32 {v(245)}, 57344, {v(EWB)}"]
    NG = 224
    G = Gaps(NG)
    def item_start(i): return CH * i if i <= 7 else P1 + 28 * (i - 7)
    gT = lambda T: item_start(T + 7 - N1)
    def xread(g):
        if g < P1: c = g // CH; ks = (g % CH) // N1; unit = g % N1; it = c
        else: it = 7 + (g - P1) // 28; k = (g - P1) % 28; ks = k % 4; unit = k // 4
        sl = slot_of(it); hi = 1 if sl >= 3 else 0
        off = (sl - 3 * hi) * SLOT + 1024 * unit
        return f"ds_read_b128 {v(XRING+4*(g%NXR),4)}, {v(XR[hi][ks])} offset:{off}"
    def wread(c, ks):
        sl = c % 4; var = sl // 2; off = (sl - 2 * var) * SLOT + PIECE * ks; f = 4 * (4 * c + ks)
        return [f"ds_read_b64_tr_b16 {a(f+2*rd,2)}, {v(WR[var])} offset:{off+512*rd}" for rd in range(2)]
    tile_acc = {0: 0, 1: 1, 2: 2, 3: 3, 4: 0, 5: 1, 6: 2, 7: 3}
    for g in range(NG):
        if g < P1: c = g // CH; ks = 4 * c + (g % CH) // N1; T = g % N1
        else: T = N1 + (g - P1) // 28; ks = (g - P1) % 28
        A = v(ACC[tile_acc[T]], 16)
        G.m[g] = f"v_mfma_f32_32x32x16_bf16 {A}, {a(4*ks,4)}, {v(XRING+4*(g%NXR),4)}, {'0' if ks == 0 else A}"
    pre = []
    def at(g, item):
        if g < 0: pre.append(item)
        else: G.put(g, item)
    gB = lambda i: item_start(i) - PD - 1
    if not cfg.hack_p: G.put(cfg.p_load, poll_load("p", "0"))
    G.put(cfg.p_chk, [stamp("prepoll") if not (cfg.pass_stamps or cfg.start_stamps) else [], [] if cfg.hack_p else poll_check("p", "0"), [] if cfg.p_nobar else Ins("s_barrier")])
    for i in range(NI):
        at(gB(i), [WaitTag('vm', "it%d" % i), Ins("s_barrier")])
    assert cfg.z_chk < cfg.p_load
    G.put(cfg.z_load, poll_load("z", None))
    G.f[cfg.z_chk].insert(0, [stamp("zpre") if not (cfg.pass_stamps or cfg.start_stamps) else [], poll_check("z", None), stamp("zpost") if not (cfg.pass_stamps or cfg.start_stamps) else []])
    for g in range(NG):
        if g < P1 and g % N1 == 0:
            for s_ in wread(g // CH, (g % CH) // N1): at(g - PD - 1, s_)
        at(g - PD - 1, xread(g))
    cb = cfg.blk_c; deep = cfg.blk_deep and cb is not None
    for c in range(7):
        if deep:
            if c < cb: G.spread(dma_item(c + 2), max(gB(c) + 1, 0), gB(c + 1) + 1)
            if c > cb: G.put(12 * c, Ins("s_barrier")); G.spread(dma_item(c + 3), 12 * c + 1, 12 * c + 12)
        elif c != cb or not cfg.blk_dma: G.spread(dma_item(c + 2), max(gB(c) + 1, 0), gB(c + 1) + 1)
    for T in range(5 if cfg.no_x else N1, 8): G.put(gT(T), ([WaitTag('lgkm', "hcw")] if T == 7 else []) + [Ins("s_barrier")])
    if deep: G.spread(dma_item(10), gT(3) + 1, gT(3) + 20)
    elif cfg.no_x:
        for i in range(9, NI): G.spread(dma_item(i), gB(i - 2) + 1, gB(i - 2) + 22)
    else: G.spread(dma_item(9) + dma_item(10), *(cfg.i910 or (gB(7) + 1, gB(8) + 1)))
    if not cfg.no_x:
        for i in range(11, NI):
            j_ = i - 2 if (cfg.reslot and i == NI - 1) else i - 3
            g0_ = max(item_start(j_) + 1, cfg.i910[1] if cfg.i910 else 0)
            G.spread(dma_item(i), g0_, min(g0_ + 19, item_start(j_ + 1)))
    if cfg.odd_touch and cfg.odd_touch is not True: G.put(cfg.odd_touch, f"buffer_load_dword {v(208)}, {v(203)}, {X}, {sCH[0]} offen")
    if cfg.wd_touch >= 0: G.put(cfg.wd_touch, f"buffer_load_dword {v(202)}, {v(200)}, {WD}, 0 offen {cfg.sc_wd}")
    for g_, n_ in (cfg.hack_sleep or []): G.put(g_, "s_sleep %d" % n_)
    if cfg.sk_at >= 0: G.spread(skl, cfg.sk_at, cfg.sk_at + 8)
    hv = []
    for rho in range(2):
        R = HR + 8 * rho; C_ = HCP + 12 * rho
        for k in range(4): hv.append(f"v_alignbit_b32 {v(C_+k)}, {v(R+4+k)}, {v(R+3+k)}, 16")
        for k in range(4): hv.append(f"v_mov_b32 {v(C_+4+k)}, {v(R+3+k)}")
        for k in range(4): hv.append(f"v_alignbit_b32 {v(C_+8+k)}, {v(R+3+k)}, {v(R+2+k)}, 16")
    hw = [Ins(f"ds_write_b128 {v(VHZ)}, {v(VZ,4)}", "hcw")]
    for rho in range(2):
        R = HR + 8 * rho; C_ = HCP + 12 * rho
        for cpy, src in enumerate((R + 4, C_, C_ + 4, C_ + 8)):
            hw.append(Ins(f"ds_write_b128 {v(VHW)}, {v(src,4)} offset:{cpy*CPY+1024*rho}", "hcw"))
    def epi(T, packed=False):
        A = ACC[tile_acc[T]]; Pk = PK[T % 2]; L = []
        for grp in range(2):
            g_ = A + 8 * grp; u_ = g_ + 4; E = ET
            if packed:
                E = ET if grp == 0 else HR
                L += [f"v_mul_f32 {v(E+i)}, {sNL2E}, {v(g_+i)}" for i in range(4)]
                L += [f"v_exp_f32 {v(E+i)}, {v(E+i)}" for i in range(4)]
                L += [f"v_pk_mul_f32 {v(u_+2*i,2)}, {v(g_+2*i,2)}, {v(u_+2*i,2)}" for i in range(2)]
                L += [f"v_pk_add_f32 {v(E+2*i,2)}, {v(E+2*i,2)}, 1.0 op_sel_hi:[1,0]" for i in range(2)]
                L += [f"v_rcp_f32 {v(E+i)}, {v(E+i)}" for i in range(4)]
                L += [f"v_pk_mul_f32 {v(u_+2*i,2)}, {v(u_+2*i,2)}, {v(E+2*i,2)}" for i in range(2)]
            else:
                L += [f"v_mul_f32 {v(E+i)}, {sNL2E}, {v(g_+i)}" for i in range(4)]
                L += [f"v_exp_f32 {v(E+i)}, {v(E+i)}" for i in range(4)]
                L += [f"v_mul_f32 {v(u_+i)}, {v(g_+i)}, {v(u_+i)}" for i in range(2)]
                L += [f"v_add_f32 {v(E+i)}, 1.0, {v(E+i)}" for i in range(4)]
                L += [f"v_rcp_f32 {v(E+i)}, {v(E+i)}" for i in range(4)]
                L += [f"v_mul_f32 {v(u_+i)}, {v(g_+i)}, {v(u_+i)}" for i in range(2, 4)]
                L += [f"v_mul_f32 {v(u_+i)}, {v(u_+i)}, {v(E+i)}" for i in range(4)]
            L += [f"v_cvt_pk_bf16_f32 {v(Pk+2*grp+i)}, {v(u_+2*i)}, {v(u_+2*i+1)}" for i in range(2)]
        L.append(f"s_lshl2_add_u32 {sSO2}, {sTO[T]}, {sHS}")
        L.append(Ins(f"buffer_store_dwordx4 {v(Pk,4)}, {v(V16)}, {WS}, {sSO2} offen {cfg.sc_h}", "hst%d" % T))
        return L
    page_slot = [(T + 7 - N1) % 4 for T in ((3, 5, 6, 4) if cfg.reslot else (4, 5, 6, 7))]
    WG_ = ({0: (0, None), 1: (1, None), 2: (0, 0), 3: (2, None), 4: (3, None), 5: (1, 1), 6: (0, 2), 7: (2, 3)} if cfg.reslot else
           {0: (0, None), 1: (1, None), 2: (2, None), 3: (0, 0), 4: (3, None), 5: (1, 1), 6: (2, 2), 7: (0, 3)})
    if cfg.more: WG_ = {0: (0, None), 1: (0, 0), 2: (1, None), 3: (2, None), 4: (0, 1), 5: (3, None), 6: (1, 2), 7: (2, 3)}
    def wd_page(n): return 7 * WG_[n // 7][0] + n % 7
    def wd_prev(n): return None if WG_[n // 7][1] is None else 7 * WG_[n // 7][1] + n % 7
    def wd_dma(n0, n1):
        L = []; n = n0
        while n < n1:
            p = wd_page(n); cnt = min(4, n1 - n, 7 - p % 7, 8 - n % 8)
            lds = page_slot[p // 7] * SLOT + 1024 * (p % 7)
            for k in range(cnt):
                it = [Ins(f"buffer_load_dwordx4 {v(VD[k])}, {WD}, {sSO} offen offset:{1024*k} {cfg.sc_wd} lds", "wd%d" % (n + k))]
                if wd_prev(n + k) is not None: it = [WaitTag('lgkm', "wr%d" % wd_prev(n + k))] + it
                if k == 0: L.append(f"s_add_u32 m0, {sM0P}, {lds}\n s_add_u32 {sSO}, {sDG[n >> 3]}, {7168*(n % 8)}")
                L.append(it)
            n += cnt
        return L
    def wd_read(n, dst):
        p = wd_page(n); sl = page_slot[p // 7]; hi = 1 if sl >= 2 else 0
        off = (sl - 2 * hi) * SLOT + 1024 * (p % 7)
        return [[WaitTag('vm', "wd%d" % n)] * (dt == 0 and not 28 <= n < 28 + cfg.n_raw) + [Ins(f"ds_read_b64_tr_b16 {dst(dt)}, {v(DR[hi][dt])} offset:{off}", "wr%d" % n)] for dt in range(2)]
    WD1 = 112
    NR = cfg.n_raw; RAW0 = 224 - 4 * NR; EWH = 245
    def raw_reg(n): return RAW0 + 4 * (NR - 1 - (n - 28))
    def raw_loads(n0, n1):
        L = []; n = n0
        while n < n1:
            cnt = min(4, n1 - n, 8 - n % 8)
            L.append(f"s_add_u32 {sSO}, {sDG[n >> 3]}, {7168*(n % 8)}")
            L += [f"buffer_load_dwordx4 {v(raw_reg(n+k),4)}, {v(VD[k])}, {WD}, {sSO} offen offset:{1024*k}" for k in range(cnt)]
            n += cnt
        return L
    def raw_write(n):
        p = wd_page(n); off = page_slot[p // 7] * SLOT + 1024 * (p % 7)
        it = [Ins(f"ds_write_b128 {v(EWB if off < 57344 else EWH)}, {v(raw_reg(n),4)} offset:{off if off < 57344 else off - 57344}", "ww%d" % n)]
        return [it]
    def fill_units(n0, n1):
        m = min(max(28 + NR, n0), n1)
        return [x for n in range(n0, m) for x in raw_write(n)] + wd_dma(m, n1)
    def wd1(n): return lambda dt: a(WD1 + 8 * (n >> 1) + 4 * dt + 2 * (n & 1), 2)
    def wd_reads(n0, n1): return [x for n in range(n0, n1) for x in wd_read(n, wd1(n))]
    preblk = []
    if cfg.blk_c is None:
        if cfg.s3_at >= 0: l3_ = G.pour(S3, cfg.s3_at, cfg.hv_at, cfg.bud1); assert l3_ < 80
        lh = G.pour(hv, cfg.hv_at, min(max(P1 - 4, cfg.hv_at + 24), cfg.hw0 - 2), cfg.bud1 if cfg.hv_at < 70 else 20); assert lh < cfg.hw0
        G.spread(hw, cfg.hw0, cfg.hw1)
    else:
        n3 = len(S3) - (S3_marks + [len(S3)])[3 - cfg.blk_s3]; S3b = S3[len(S3) - n3:]; del S3[len(S3) - n3:]
        work = [hw[0], hv[0:4], hw[1], hv[4:8], hw[2], hv[8:12], hw[3], hv[12:16], hw[4], hv[16:20], hw[5], hv[20:24], hw[6], S3b[:5], hw[7], S3b[5:10], hw[8], S3b[10:]]
        d_ = dma_item(cfg.blk_c + 2) if cfg.blk_dma else []; blk = []
        if deep:
            G.spread(d_[:4], gB(cb) + 1, 12 * cb); d_ = d_[4:] + dma_item(cb + 3); blk = [Ins("s_barrier")]
        step_ = max(len(work) // (len(d_) + 1), 1)
        for j, it in enumerate(work):
            if j % step_ == 0 and d_: blk.append(d_.pop(0))
            blk.append(it)
        if cfg.blk_list:
            done_ = 0
            for g_, nw_ in cfg.blk_list:
                k_ = min(len(blk), done_ + 2 * nw_) if (g_, nw_) != cfg.blk_list[-1] else len(blk)
                G.put(g_, blk[done_:k_]); done_ = k_
        elif cfg.blk_g2: G.put(cfg.blk_g, blk[:9]); G.put(cfg.blk_g2, blk[9:])
        elif cfg.blk_g < 0: preblk = blk
        else: G.put(12 * cb if deep else (gB(cb) + 1 if cfg.blk_dma else cfg.blk_g), blk + d_)
    if NR:
        r0, r1, r2 = 28, 28 + min(NR, 6), 28 + min(NR, 6 + (NR - 6 + 1) // 2)
        assert cfg.hw1 <= gT(5) + 8 or NR <= 6
        G.spread(raw_loads(r0, r1), gT(4) + 21 - 12, gT(5))
        G.spread(wd_dma(0, 7), gT(5) + 1, gT(5) + 15); G.spread(raw_loads(r1, r2), gT(5) + 15, gT(6))
        G.spread(wd_dma(7, 14), gT(6) + 1, gT(6) + 15); G.spread(raw_loads(r2, 28 + NR), gT(6) + 15, gT(7))
    elif cfg.more:
        G.spread(wd_dma(0, 7), gT(4) + 1, gT(4) + 18)
        G.spread(wd_reads(0, 7), gT(5) + 6, gT(5) + 20); G.spread(wd_dma(7, 14), gT(5) + 21, gT(6) + 8)
        G.spread(wd_dma(14, 21), gT(6) + 8, gT(7))
        G.spread(wd_reads(7, 14), gT(7) - 4, gT(7) + 10)
    elif cfg.reslot:
        G.spread(wd_dma(0, 7), gT(4) + 1, gT(4) + 24)
        G.spread(wd_reads(0, 7), gT(6) - 8, gT(6) + 8)
        G.spread(wd_dma(7, 17), gT(6) + 1, gT(7))
    else:
        G.spread(wd_dma(0, 7), gT(5) + 1, gT(5) + 22)
        G.spread(wd_dma(7, 14), gT(6) + 1, gT(6) + 20)
    UD = ([f"s_mov_b32 m0, {sPA}\n s_add_u32 {sSO}, {sU}, {WS_UR}"] + [Ins(f"buffer_load_dwordx4 {v(V16)}, {WS}, {sSO} offen offset:{1024*j} sc1 lds", "u") for j in range(2)])
    if not cfg.reslot: G.spread(wd_reads(0, 7), gB(NI - 1) + 2, gT(7) + 12)
    assert cfg.p_chk > gT(7) + 8
    if cfg.more: G.spread(wd_dma(21, 28), gT(7) + 1, cfg.p_chk)
    else: G.spread(wd_dma(17 if cfg.reslot else 14, 21), gT(7) + 1, cfg.p_chk)
    G.put(cfg.p_chk + 1, UD)
    G.spread(wd_dma(28, 35) if cfg.more else wd_dma(21, 28), cfg.p_chk + 2, NG - 1)
    bounds = [P1 + 2 + (NG - P1 - 4) * k // 7 for k in range(8)]
    last = 0
    for T in range(7):
        avail = (P1 if T < N1 else gT(T + 1)) + 2
        if cfg.epi_len: g0 = max(avail, last); g1_ = min(g0 + cfg.epi_len, NG - 1)
        else: g0 = max(bounds[T], avail, last); g1_ = max(bounds[T + 1], g0 + 1)
        last = G.pour(epi(T), g0, g1_, cfg.bud)
        if T == 3 and cfg.eo: assert last < cfg.a_arr - 4, last
        nxt = [t for t in range(T + 1, 8) if tile_acc[t] == tile_acc[T]]
        if nxt: assert last < gT(nxt[0]), (T, last)
    if cfg.eo:
        k_ = [i for i, it in enumerate(G.f[cfg.a_arr]) if isinstance(it, list) and any(isinstance(x, Ins) and x.op == "s_barrier" for x in it)][0]
        if not cfg.nosync: G.f[cfg.a_arr].insert(k_, WaitTag('vm', "hst3")); k_ += 1
        G.f[cfg.a_arr].insert(k_ + 1, [f"s_add_u32 {sT1}, {sFL}, {512*128}", arrive("hst3", sT1, False)])
        if cfg.ytag:
            G.put(cfg.pz_at, [f"s_add_u32 {sT0}, {sU}, {WS_YT}", f"buffer_store_dwordx4 {v(204,4)}, {v(V16)}, {WS}, {sT0} offen sc1"])
            G.put(cfg.pz_at + 3, f"buffer_store_dwordx4 {v(204,4)}, {v(V16)}, {WS}, {sT0} offen offset:1024 sc1")
            assert cfg.pz_at + 3 < gT(4)
            G.put(cfg.a_arr + 2, [f"s_lshl_b32 {sT0}, s2, 7\n s_add_u32 {sT0}, {sT0}, {512*128}", arrive("hst3", sT0, False)])
        if cfg.ytag: G.put(cfg.a_load - 1, f"s_mov_b32 {sT1}, 0")
        else:
            G.put(cfg.a_load - 2, f"s_lshr_b32 {sT1}, {sI2}, 2\n s_mul_i32 {sT1}, {sT1}, {28*128}")
            G.put(cfg.a_load - 1, f"s_add_u32 {sT1}, {sT1}, {768*128}")
        G.put(cfg.a_load, poll_load("a", sT1))
    check_m0(G)
    SS = S + S2; k0 = len(SS) * min(cfg.late_pos, 100) // 100
    touch = []
    if cfg.x_touch:
        touch = lines(f"""v_min_u32 {v(200)}, {8*cfg.x_touch-1}, {v(VL)}
        v_lshrrev_b32 {v(201)}, 3, {v(200)}
        s_lshl_b32 s3, {sFQ}, 1
        s_add_u32 s3, s3, 3
        v_add_u32 {v(201)}, {'s3' if cfg.rot_t else '3'}, {v(201)}
        v_and_b32 {v(201)}, 7, {v(201)}
        v_mul_u32_u24 {v(201)}, 28672, {v(201)}
        v_and_b32 {v(200)}, 7, {v(200)}
        v_mul_u32_u24 {v(200)}, 896, {v(200)}
        v_add3_u32 {v(200)}, {v(200)}, {v(201)}, {sXBc}
        buffer_load_dword {v(202)}, {v(200)}, {X}, {sCH[0]} offen""")
    kvt = lines(f"""s_lshl_b32 s3, s2, 2
    s_add_u32 s3, s3, {sW}
    s_lshl_b32 s3, s3, 4
    v_min_u32 {v(203)}, 15, {v(VL)}
    v_add_lshl_u32 {v(203)}, {v(203)}, s3, 7
    global_load_dword {v(204)}, {v(203)}, s[94:95]
    global_load_dword {v(205)}, {v(203)}, s[96:97]""")
    if cfg.sk_early and cfg.sk_pos == 2: P.add(ske)
    P.add(SS[:k0])
    if cfg.sk_early and cfg.sk_pos == 3: P.add(ske)
    if cfg.late_pos <= 100: P.add(late_first)
    if cfg.odd_touch:
        P.e(f"""v_and_b32 {v(203)}, 7, {v(VL)}
        v_mul_u32_u24 {v(203)}, 896, {v(203)}
        s_add_u32 s3, {sTO[4]}, {XB}
        v_add_u32 {v(203)}, s3, {v(203)}""")
        if cfg.odd_touch is True: P.e(f"buffer_load_dword {v(208)}, {v(203)}, {X}, {sCH[0]} offen")
    P.add(SS[k0:])
    if cfg.kv_touch == 1: P.add(kvt)
    if cfg.s3_at < 0: P.add(S3)
    if cfg.late_pos > 100: P.add(late_first)
    if cfg.kv_touch == 2: P.add(kvt)
    if cfg.trace: P.e('v_mov_b32 v253, 0')
    P.e(f"""s_lshl_b32 s3, s2, 2
    s_add_u32 s3, s3, {sW}
    s_mul_i32 s3, s3, 14
    v_min_u32 {v(200)}, 13, {v(VL)}
    v_add_lshl_u32 {v(200)}, {v(200)}, s3, 7""")
    if cfg.sk_at < 0 and not cfg.sk_early: P.add(skl)
    if cfg.tlb:
        P.e(f"""v_min_u32 {v(203)}, 12, {v(VL)}
        v_lshlrev_b32 {v(203)}, 20, {v(203)}
        v_add_u32 {v(203)}, 0x1f000, {v(203)}
        buffer_load_dword {v(204)}, {v(203)}, {WS}, 0 offen
        buffer_load_dword {v(205)}, {v(VZ)}, {OUT}, 0 offen
        buffer_load_dword {v(206)}, {v(VZ)}, {WD}, 0 offen""")
    if cfg.wd_touch == -2: P.e(f"buffer_load_dword {v(202)}, {v(200)}, {WD}, 0 offen {cfg.sc_wd}")
    if cfg.warm and cfg.stub_at:
        P.e("s_mov_b64 exec, 0")
        for k in range(min(4, len(cfg.stub_at))): P.e(f"s_cmp_eq_u32 {sW}, {k}\n s_cbranch_scc1 L_pg{k}")
        P.e("L_pgback:\n s_mov_b64 exec, -1")
    if cfg.start_stamps: P.add(stamp("setup"))
    P.e(f"""s_waitcnt lgkmcnt(0)
    s_lshl_b32 s3, {sD}, 16
    s_and_b32 {sD}, {sD}, 0xffff0000
    s_cmp_lt_u32 {sW}, 2
    s_cselect_b32 {sD}, s3, {sD}""")
    P.add(preblk)
    P.add(pre)
    P.add(stamp("g1start"))
    G.put(P1 - 1, stamp("p1end"))
    if cfg.pass_stamps:
        for T in (5, 6, 7): G.put(gT(T) - 1, stamp("T%d" % T))
    add_trace(G, 6, 'g', [94, 96])
    G.emit(P, cfg.pair)
    if cfg.verbose: print("G1 gap costs", G.costs())
    if cfg.start_stamps: P.e("v_readfirstlane_b32 s8, v156\n v_readfirstlane_b32 s10, v157"); STAMP_REGS['prewait'] = 8; STAMP_REGS['karg'] = 10
    P.add(stamp("g1end"))
    CACC = 48
    def cA(buf, a_): return (0 if buf == 0 else 64) + 4 * a_
    def cB(buf, b_):
        i = 32 + 4 * b_ if buf == 0 else 96 + 4 * b_
        return i if i < 112 else 224 + (i - 112)
    def crA(st, k): return [f"ds_read_b64 {a(cA(st&1,k)+2*rd,2)}, {v(CA)} offset:{512*k+64*st+8*rd}" for rd in range(2)]
    def crB(st, k): return [f"ds_read_b128 {a(cB(st&1,k),4)}, {v(CB)} offset:{64*st+512*(7-k)}"]
    def creads(st): return [x for k in range(8) for x in crB(st, k) + crA(st, k)]
    e7 = epi(7, True)
    if cfg.e7i:
        a_, b_ = e7[:20], e7[20:40]; e7n = []
        for lo, hi in ((0, 4), (4, 8), (8, 10), (10, 12), (12, 16), (16, 18), (18, 20)): e7n += a_[lo:hi] + b_[lo:hi]
        e7 = e7n + e7[40:]
    ra = [x for k in range(8) for x in crA(0, k)]
    P.add(ra[:10]); k = 10
    for j, it in enumerate(e7):
        P.add(it)
        if j % 6 == 5 and k < 16: P.add(ra[k]); k += 1
    P.add(ra[k:])
    P.vmwait("u"); P.e("s_barrier")
    for k in range(cfg.nb0): P.add(crB(0, k))
    hg = [f"s_lshr_b32 s3, {sI2}, 2", "s_mul_i32 s3, s3, 28", f"s_add_u32 s3, s3, 256", f"s_lshl_b32 s3, s3, 7", f"v_add_u32 {v(vP7)}, s3, {v(vP7)}",
          f"s_add_u32 s3, {sI2}, 32", "s_lshl_b32 s3, s3, 7", f"v_mov_b32 {v(T1)}, s3", f"v_cmp_gt_u32 vcc, 7, {v(VL)}", f"s_mov_b32 {sPA}, 0", "s_nop 0",
          f"v_cndmask_b32 {v(vP7)}, {v(T1)}, {v(vP7)}, vcc",
          f"s_lshl_b32 {sRG}, {sRG}, 12", f"s_add_u32 {sXB}, {sHL[0]}, {sRG}", f"s_add_u32 {sHE}, {sHL[0]}, {28*1024}"]
    d0 = wd_dma(35, 42) if cfg.more else fill_units(28, 35)
    npre = 0 if NR else 3
    P.add(d0[:npre])
    P.add(stamp("cstart"))
    C = Gaps(144)
    for k in range(cfg.nb0, 8): C.put(k - cfg.nb0, crB(0, k))
    pairs = [(t, a_) for t in range(8) for a_ in range(t + 1)]
    for st in range(4):
        for j, (t, a_) in enumerate(pairs):
            A = v(CACC + 4 * t, 4)
            C.m[36 * st + j] = f"v_mfma_f32_16x16x32_bf16 {A}, {a(cA(st&1,a_),4)}, {a(cB(st&1,t-a_),4)}, {'0' if (st == 0 and a_ == 0) else A}"
        if st < 3: C.spread(creads(st + 1), 36 * st + 1, 36 * st + 33)
    HRING = 96; NHR = 32
    horder = [(0, ks) for ks in range(28)] + [(1, ks) for ks in (list(range(14, 28)) + list(range(14)) if cfg.b_rev else range(28))]
    def hload(n):
        st, ks = horder[n]; L = []
        if n == 28: L += [f"s_add_u32 {sXB}, {sHL[1]}, {sRG}", f"s_add_u32 {sHE}, {sHL[1]}, {28*1024}"]
        elif n > 0 and ks % 4 == 0: L += [f"s_add_u32 {sXB}, {sXB}, 4096", f"s_cmp_eq_u32 {sXB}, {sHE}\n s_cselect_b32 {sXB}, {sHL[st]}, {sXB}"]
        L.append(f"buffer_load_dwordx4 {v(HRING+4*(n%NHR),4)}, {v(V16)}, {WS}, {sXB} offen offset:{1024*(ks%4)} sc1")
        return L
    w0, w1, w2, w3 = cfg.c_wd
    C.spread(d0[npre:], 0, w0)
    if cfg.more:
        C.spread(wd_reads(14, 21), 2, w0 - 2); C.spread(wd_dma(42, 49), w0, w1)
        C.spread(wd_reads(21, 28), w0, w1 - 2); C.spread(wd_dma(49, 56), w1, w2)
    else:
        C.spread(wd_reads(7, 14), 2, w0 - 2); C.spread(fill_units(35, 42), w0, w1)
        C.spread(wd_reads(14, 21), w0, w1 - 2); C.spread(fill_units(42, 49), w1, w2)
        C.spread(wd_reads(21, 28), w1, w2 - 2); C.spread(wd_dma(49, 56), w2, w3)
    C.put(cfg.g_arrive, arrive("hst7", sFL))
    if cfg.eo: C.put(cfg.a_chk, poll_check("a", sT1))
    lh_ = C.pour(hg, cfg.a_chk + 1 if cfg.eo else 40, min(cfg.g_poll, cfg.h_first) - 4, 10); assert lh_ < min(cfg.g_poll, cfg.h_first)
    C.put(cfg.g_poll, poll_load("h", sPA))
    HCHK = [stamp("c_pre"), poll_check("h", sPA), stamp("c_post")]
    if not cfg.eo: C.put(cfg.g_chk, HCHK)
    NH = cfg.nh_c
    C.spread([hload(n) for n in range(NH)], cfg.h_first if cfg.eo else cfg.g_chk + 1, 144)
    RR = 48; UU = 18; DU = 80
    ce = [f"s_add_u32 {sU}, {sU}, {WS_YT}" + (f"\n s_mov_b32 {sHS}, 0xfffefffe" if cfg.ytag else "")]
    ce += [f"ds_read_b64 {v(UU+2*tau,2)}, {v(VUR)} offset:{512*(3-tau)}" for tau in range(4)]
    for tau in range(4):
        ce += lines(f"""
        v_and_b32 {v(DU+4*tau+0)}, {sMASK}, {v(UU+2*tau+1)}
        v_lshlrev_b32 {v(DU+4*tau+1)}, 16, {v(UU+2*tau+1)}
        v_and_b32 {v(DU+4*tau+2)}, {sMASK}, {v(UU+2*tau)}
        v_lshlrev_b32 {v(DU+4*tau+3)}, 16, {v(UU+2*tau)}""")
    lr = C.pour(ce[:5], max(lh_ + 1, 104), 112, 8); assert lr < cfg.c_bar - 4
    lc = C.pour(ce[5:], lr + 6, 140, 8)
    assert lc < 140
    C.put(cfg.c_bar, [WaitRegs(a(cA(1, 7), 4)), WaitRegs(v(UU, 8)), Ins("s_barrier")])
    for g_, n_ in (cfg.hack_sleep_c or []): C.put(g_, 's_sleep %d' % n_)
    check_m0(C, 1024)
    add_trace(C, 12, 'c', [94, 96])
    C.emit(P)
    if cfg.verbose: print("C gap costs", C.costs())
    hq = [hload(n) for n in range(NH, NH + cfg.nh_e)]; NH += cfg.nh_e
    def hnext():
        if hq: P.add(hq.pop(0))
    hnext()
    dfma = lambda base: [f"v_pk_fma_f32 {v(DU+2*k,2)}, s[78:79], {v(DU+2*k,2)}, {v(base+2*k,2)} op_sel_hi:[0,1,1]" for k in range(8)]
    P.e(f"s_cmp_eq_u32 {sKH}, 0\n s_cbranch_scc1 L_cw0")
    for tau in range(4): P.e(f"ds_write_b128 {v(VRW)}, {v(CACC+4*tau,4)} offset:{1024*tau}", nocount=True)
    P.add(dfma(CACC + 16))
    P.e("s_branch L_cw1\n L_cw0:\n s_nop 2")
    for tau in range(4): P.e(f"ds_write_b128 {v(VRW)}, {v(CACC+16+4*tau,4)} offset:{1024*tau}")
    P.add(dfma(CACC))
    P.e("L_cw1:")
    while hq: hnext()
    P.e("s_waitcnt lgkmcnt(0)\n s_barrier")
    ct_ = [f"ds_read_b128 {v(RR+4*tau,4)}, {v(VRR)} offset:{1024*tau}" for tau in range(4)]
    P.add(ct_); ct_ = []
    for pi in range(2):
        if cfg.c_tail_in_g2: ct_ += [f"v_add_f32 {v(DU+8*pi+k)}, {v(DU+8*pi+k)}, {v(RR+8*pi+k)}" for k in range(8)]
        else: ct_ += [f"v_pk_add_f32 {v(DU+8*pi+2*k,2)}, {v(DU+8*pi+2*k,2)}, {v(RR+8*pi+2*k,2)}" for k in range(4)]
        ct_ += [f"v_cvt_pk_bf16_f32 {v(UU+4*pi+k)}, {v(DU+8*pi+2*k)}, {v(DU+8*pi+2*k+1)}" for k in range(4)]
    if cfg.ytag: ct_ += [f"v_pk_min_u16 {v(UU+k)}, {v(UU+k)}, {sHS}" for k in range(8)]
    for pi in range(2):
        ct_ += [f"v_permlane16_swap_b32 {v(UU+4*pi)}, {v(UU+4*pi+2)}", f"v_permlane16_swap_b32 {v(UU+4*pi+1)}, {v(UU+4*pi+3)}"]
        ct_ += [Ins(f"buffer_store_dwordx4 {v(UU+4*pi,4)}, {v(VYS)}, {WS}, {sU} offen offset:{1024*pi} sc1", "yst")]
    if not cfg.c_tail_in_g2: P.add(ct_); ct_ = []
    P.add(stamp("g2start"))
    GACC = 0; JIT = 64; NJ = 8
    G2 = Gaps(112)
    jn = 0
    for n in range(56):
        st, ks = horder[n]
        for dt in range(2):
            A = a(GACC + 32 * st + 16 * dt, 16)
            if ks < 14: W_ = a(WD1 + 8 * ks + 4 * dt, 4)
            else:
                r_ = JIT + 4 * (jn % NJ); jn += 1; W_ = a(r_, 4)
                for rd in range(2):
                    G2.put(2 * n + dt - 6, wd_read(2 * ks + rd, lambda d_, r_=r_, rd=rd: a(r_ + 2 * rd, 2))[dt])
            G2.m[2 * n + dt] = f"v_mfma_f32_32x32x16_bf16 {A}, {W_}, {v(HRING+4*(n%NHR),4)}, {'0' if n in (0, 28) else A}"
    reserved = sorted([cfg.ct_end - 2, cfg.ct_end] * bool(cfg.c_tail_in_g2) + list(cfg.q_at[:2]) + [cfg.g2_chk + 2, cfg.g2_chk + 4])
    t_ = 0.0; n = NH; la = []
    while n < 56:
        if reserved and reserved[0] <= t_ + cfg.g2_hpace / 2: reserved.pop(0); t_ += cfg.g2_hpace; continue
        g = int(t_)
        if n >= NHR: assert g >= 2 * (n - NHR) + 1
        if n == 28 and cfg.eo: assert g > cfg.b_chk
        la.append(2 * n - g); G2.put(g, hload(n)); n += 1; t_ += cfg.g2_hpace
    if cfg.verbose: print("H lookahead (gaps)", la)
    assert min(la) >= 8, la
    if cfg.eo: G2.put(cfg.b_chk, HCHK)
    QD_LATER = True
    lt = G2.pour(ct_, 1, cfg.ct_end, 24) if ct_ else 0
    e1 = lines(f"""
    s_lshl_b32 s3, s2, 7
    s_add_u32 {sFL}, s3, {512*128}
    s_lshl_b32 s3, {sCT}, 12
    s_add_u32 {sPA}, s3, {512*128}
    """)
    l1 = G2.pour(e1, max(lt, cfg.b_chk + 1 if cfg.eo else 0), max(lt, cfg.b_chk) + 8, 24); assert l1 <= cfg.g2_arrive
    G2.put(cfg.g2_arrive, [WaitTag('vm', "q"), Ins("s_barrier") if cfg.ytag else arrive("yst", sFL)])
    qd = [f"s_lshl_b32 {sT1}, {sW}, 11\n s_add_u32 m0, {sT1}, {QL}"]
    qd += [Ins(f"buffer_load_dwordx4 {v(VQ[j])}, {X}, {sQS} offen offset:{1024*j} lds", "q") for j in range(2)]
    qd += [f"buffer_load_dword {v(VG[j])}, {v(VGA)}, {WS}, 0 offen offset:{128*j} sc1" for j in range(2)]
    assert not cfg.eo or min(cfg.q_at) - 1 > cfg.b_chk
    G2.put(cfg.q_at[0] - 1, qd[0])
    for q_, g_ in zip(qd[1:], cfg.q_at): G2.put(g_, q_)
    def sends(st, addr):
        return [Ins(f"ds_write_b128 {addr(sg, jj)[0]}, {a(GACC+32*st+16*(sg>>1)+8*(sg&1)+4*jj,4)} offset:{addr(sg, jj)[1]}", "rw%d" % st) for sg in range(1, 4) for jj in range(2)]
    G2.spread(sends(0, lambda sg, jj: (v(EWA), 2048 * (sg - 1) + 1024 * jj)), 59, cfg.rw_bar - 1)
    if not cfg.ytag:
        G2.put(cfg.g2_poll, poll_load("y", sPA))
        G2.put(cfg.g2_chk, [stamp("g2_pre"), poll_check("y", sPA), [] if cfg.y_nobar else Ins("s_barrier"), [] if cfg.pass_stamps else stamp("g2_post")])
    G2.put(cfg.rw_bar, [WaitTag('lgkm', "rw0"), Ins("s_barrier")])
    yd = [f"s_add_u32 m0, {sT1}, {YL}"]
    yd += [Ins(f"buffer_load_dwordx4 {v(VY[j])}, {WS}, {sYS} offen offset:{1024*j} sc1 lds", "y") for j in range(2)]
    G2.put(cfg.g2_chk + 1, yd[0]); G2.put(cfg.g2_chk + 2, yd[1]); G2.put(cfg.g2_chk + 4, yd[2])
    QQ = 48; TT = 56; BB = 72; RX = 80; YY = 18; O = 48
    RP = [80, 84, 88, 92, 28 + 0, 28 + 0]
    un = lambda i, d, s_: (f"v_lshlrev_b32 {d}, 16, {s_}" if i % 2 == 0 else f"v_and_b32 {d}, {sMASK}, {s_}")
    p0 = [f"ds_read_b64 {v(QQ+4*st+2*J,2)}, {v(EQ[J])} offset:{4096*st}" for st in range(2) for J in range(2)]
    p0 += [f"v_sub_f32 {v(OMG[st])}, 1.0, {v(VG[st])}" for st in range(2)] + [[], []]
    p0 += [un(k, v(TT + k), v(QQ + (k >> 1))) for k in range(16)]
    p0 += [f"v_mul_f32 {v(TT+k)}, {v(TT+k)}, {v(VG[k>>3])}" for k in range(16)]
    l0 = G2.pour(p0, cfg.g2_arrive + 1, 62, 22); assert l0 < cfg.rw_bar
    p1 = [f"ds_read_b128 {v(RX+4*jj,4)}, {v(ERA[0])} offset:{1024*jj}" for jj in range(2)]
    p1 += [f"ds_read_b128 {v(RX+8+4*jj,4)}, {v(ERA[1])} offset:{1024*jj}" for jj in range(2)]
    p1 += [f"v_accvgpr_read_b32 {v(BB+k)}, {a(GACC+k)}" for k in range(8)]
    p1 += [f"v_add_f32 {v(BB+k)}, {v(BB+k)}, {v(RX+k)}" for k in range(8)]
    p1 += [f"ds_read_b128 {v(RX+4*jj,4)}, {v(ERA[2])} offset:{1024*jj}" for jj in range(2)]
    p1 += [f"v_add_f32 {v(BB+k)}, {v(BB+k)}, {v(RX+8+k)}" for k in range(8)]
    p1 += [f"v_add_f32 {v(BB+k)}, {v(BB+k)}, {v(RX+k)}" for k in range(8)]
    p1 += [f"v_mul_f32 {v(BB+k)}, {v(BB+k)}, {v(OMG[0])}" for k in range(8)]
    l3 = G2.pour(p1, cfg.rw_bar + 1, cfg.g2_pre - 1, 24); assert l3 <= cfg.g2_pre + 4, l3
    p2 = [[WaitTag('vm', "y")]]
    p2 += [f"ds_read_b64_tr_b16 {v(YY+4*st+2*J,2)}, {v(EY)} offset:{1024*J+32*st}" for st in range(2) for J in range(2)]
    ychk = []
    if cfg.ytag and not cfg.nosync:
        mx = lines(f"""v_pk_max_u16 {v(T3)}, {v(YY)}, {v(YY+1)}
        v_pk_max_u16 {v(vPV)}, {v(YY+2)}, {v(YY+3)}
        v_pk_max_u16 {v(T3)}, {v(T3)}, {v(YY+4)}
        v_pk_max_u16 {v(vPV)}, {v(vPV)}, {v(YY+5)}
        v_pk_max_u16 {v(T3)}, {v(T3)}, {v(YY+6)}
        v_pk_max_u16 {v(vPV)}, {v(vPV)}, {v(YY+7)}
        v_pk_max_u16 {v(T3)}, {v(T3)}, {v(vPV)}
        v_lshlrev_b32 {v(vPV)}, 16, {v(T3)}
        v_max_u32 {v(T3)}, {v(T3)}, {v(vPV)}
        v_cmp_le_u32 vcc, {sMASK}, {v(T3)}""")
        ychk = mx + [[stamp("g2_pre"), "s_cbranch_vccnz L_slow_yt\n L_back_yt:", stamp("g2_post")]]
        custom_slow.append("\n".join(["L_slow_yt:", f"s_mov_b32 {sCNT}, 0", "L_spin_yt:", f"s_sleep {cfg.sleep}", yd[0], "s_nop 0", yd[1].text, yd[2].text,
            f"s_add_u32 {sCNT}, {sCNT}, 1", "s_waitcnt vmcnt(0)"] + p2[1:5] + ["s_waitcnt lgkmcnt(0)"] + mx +
            ([f"v_writelane_b32 v253, {sCNT}, 3"] if cfg.trace else []) +
            [f"s_cmp_gt_u32 {sCNT}, 0x40000", "s_cbranch_scc1 L_back_yt", "s_cbranch_vccnz L_spin_yt", "s_branch L_back_yt"]))
    p2 += [[], [], []] + ychk
    p2 += [un(k, v(RX + k), v(YY + (k >> 1))) for k in range(8)]
    p2 += [f"v_fmac_f32 {v(BB+k)}, {v(TT+k)}, {v(RX+k)}" for k in range(8)]
    p2 += [f"v_cvt_pk_bf16_f32 {v(O+k)}, {v(BB+2*k)}, {v(BB+2*k+1)}" for k in range(4)]
    p2 += [un(k, v(RX + k), v(YY + (k >> 1))) for k in range(8, 16)]
    p2 += [f"v_permlane32_swap_b32 {v(O)}, {v(O+2)}", f"v_permlane32_swap_b32 {v(O+1)}, {v(O+3)}"]
    p2 += [f"buffer_store_dwordx4 {v(O,4)}, {v(EO)}, {OUT}, {sO[0]} offen {cfg.sc_out}"]
    p2 += [f"v_mul_f32 {v(TT+k)}, {v(TT+k)}, {v(RX+k)}" for k in range(8, 16)]
    p2 += [f"v_mov_b32 {v(T1)}, {v(OMG[1])}", f"v_mov_b32 {v(T2)}, {v(OMG[1])}"]
    if cfg.y_late: G2.pour(p2[-2:], l3, 111, 24)
    else: G2.pour(p2, max(l3, cfg.g2_pre), 111, 24)
    for g_, n_ in (cfg.hack_sleep_h or []): G2.put(g_, 's_sleep %d' % n_)
    check_m0(G2)
    add_trace(G2, 8, 'h', [94, 96])
    G2.emit(P, 2)
    if cfg.verbose: print("G2 gap costs", G2.costs())
    P.add(stamp("g2end"))
    R1 = 96; O2 = 52; B2 = 120 if cfg.y_late else BB
    w_ = sends(1, lambda sg, jj: (v(EWB), (sg - 1) * SLOT + 1024 * jj))
    P.add(w_[:2])
    for k in range(8): P.e(f"v_accvgpr_read_b32 {v(B2+k)}, {a(GACC+32+k)}")
    P.add(w_[2:])
    if cfg.y_late: P.vmwait("y")
    P.e("s_waitcnt lgkmcnt(0)\n s_barrier")
    if cfg.y_late: P.add(p2[1:5])
    for jj in range(2):
        for sg in range(1, 4): P.e(f"ds_read_b128 {v(R1+8*(sg-1)+4*jj,4)}, {v(ERB[sg-1])} offset:{1024*jj}")
    if cfg.y_late:
        P.add(ychk)
        for k in range(8): P.e(un(k, v(RX + k), v(YY + (k >> 1))))
        for k in range(4): P.e(f"v_pk_fma_f32 {v(BB+2*k,2)}, {v(TT+2*k,2)}, {v(RX+2*k,2)}, {v(BB+2*k,2)}")
        for k in range(4): P.e(f"v_cvt_pk_bf16_f32 {v(O+k)}, {v(BB+2*k)}, {v(BB+2*k+1)}")
        for k in range(8, 10): P.e(un(k, v(RX + k), v(YY + (k >> 1))))
        P.e(f"v_permlane32_swap_b32 {v(O)}, {v(O+2)}\n v_permlane32_swap_b32 {v(O+1)}, {v(O+3)}")
        P.e(f"buffer_store_dwordx4 {v(O,4)}, {v(EO)}, {OUT}, {sO[0]} offen {cfg.sc_out}")
        for k in range(10, 16): P.e(un(k, v(RX + k), v(YY + (k >> 1))))
        for k in range(4, 8): P.e(f"v_pk_mul_f32 {v(TT+2*k,2)}, {v(TT+2*k,2)}, {v(RX+2*k,2)}")
    for jj in range(2):
        for sg in range(3):
            for i in range(2): P.e(f"v_pk_add_f32 {v(B2+4*jj+2*i,2)}, {v(B2+4*jj+2*i,2)}, {v(R1+8*sg+4*jj+2*i,2)}")
        for i in range(2): P.e(f"v_pk_fma_f32 {v(B2+4*jj+2*i,2)}, {v(B2+4*jj+2*i,2)}, {v(T1,2)}, {v(TT+8+4*jj+2*i,2)}")
        for i in range(2): P.e(f"v_cvt_pk_bf16_f32 {v(O2+2*jj+i)}, {v(B2+4*jj+2*i)}, {v(B2+4*jj+2*i+1)}")
    P.e(f"v_permlane32_swap_b32 {v(O2)}, {v(O2+2)}\n v_permlane32_swap_b32 {v(O2+1)}, {v(O2+3)}")
    P.e(f"buffer_store_dwordx4 {v(O2,4)}, {v(EO)}, {OUT}, {sO[1]} offen {cfg.sc_out}")
    if cfg.stamps: emit_stamps(P)
    if cfg.fixdur:
        P.e(f"""L_fix:
        s_memrealtime s[4:5]
        s_waitcnt lgkmcnt(0)
        s_sub_u32 s4, s4, s100
        s_cmp_lt_i32 s4, {cfg.fixdur}
        s_cbranch_scc1 L_fix""")
    P.e("s_endpgm")

def check_m0(G, init=None):
    flat = []
    def fl(it):
        if isinstance(it, str):
            for l in lines(it): flat.append(Ins(l))
        elif isinstance(it, (list, tuple)):
            for x in it: fl(x)
        elif isinstance(it, Ins): flat.append(it)
    for f in G.f:
        for it in f: fl(it)
    last_off = init
    for it in flat:
        if it.kind == 'salu' and ('s', 'm0') in it.w: last_off = -1024
        if it.kind == 'dma':
            m = re.search(r'offset:(\d+)', it.text); off = int(m.group(1)) if m else 0
            assert last_off is not None and off == last_off + 1024, ("m0 group interleaved", it.text)
            last_off = off

def emit_stamps(P):
    P.e("s_waitcnt vmcnt(0)")
    P.e("s_memtime s[4:5]\n s_memrealtime s[6:7]\n s_waitcnt lgkmcnt(0)")
    n = len(stamp_names)
    for k in range(n):
        P.e(f"s_sub_u32 s3, s{STAMP_REGS[stamp_names[k]]}, {'s100' if cfg.rt else 's98'}"); P.e(f"v_mov_b32 v{200+k}, s3")
    P.e(f"s_sub_u32 s3, {'s6, s100' if cfg.rt else 's4, s98'}\n v_mov_b32 v{200+n}, s3")
    P.e(f"""s_lshl_b32 s3, s2, 2
    s_add_u32 s3, s3, {sW}
    s_lshl_b32 s3, s3, 7
    s_add_u32 s3, s3, {WS_STAMP}
    v_mov_b32 v229, 0
    v_mov_b32 v230, s100
    v_mov_b32 v231, s6
    v_mov_b32 v2, 0
    s_mov_b64 exec, 1""")
    for k in range(8): P.e(f"buffer_store_dwordx4 v[{200+4*k}:{203+4*k}], v2, {WS}, s3 offen offset:{16*k}")
    if cfg.trace:
        P.e(f"""s_mov_b64 exec, -1
        v_subrev_u32 v254, s98, v254
        v_subrev_u32 v255, s98, v255
        s_lshl_b32 s3, s2, 2
        s_add_u32 s3, s3, {sW}
        s_lshl_b32 s3, s3, 9
        s_add_u32 s3, s3, {WS_STAMP + 0x40000}
        v_lshlrev_b32 v2, 2, v1
        buffer_store_dword v254, v2, {WS}, s3 offen
        v_readlane_b32 s4, v253, 0
        v_readlane_b32 s5, v253, 1
        v_readlane_b32 s6, v253, 2
        v_readlane_b32 s7, v253, 3
        s_nop 3
        v_writelane_b32 v255, s4, 60
        v_writelane_b32 v255, s5, 61
        v_writelane_b32 v255, s6, 62
        v_writelane_b32 v255, s7, 63
        buffer_store_dword v255, v2, {WS}, s3 offen offset:256""")

def gen_aux(P0):
    P = P0
    K, V_, SH, GW = "s[40:43]", "s[44:47]", "s[48:51]", "s[52:55]"
    sA = "s68"; sST = "s69"; sUS = "s70"; sLO = "s71"; sHI = "s72"; sC = "s73"; sC2 = "s74"; sTA = ["s56", "s57"]; sTW = ["s58", "s59"]
    VL = 1; T0 = 2; T1 = 3; VZA = 4; VB = 5; VB2 = 6; VM = 7; VX = 8; VR = 9; VS = 11; VW = 12; VWt = [13, 14]; VRB = 16; VQ = 20; VQ2 = 21; VGW = 22
    KP = [48, 58]; VP = [68, 76]; WR_ = [84, 86]; WT = [88, 94]; OO = 100; UV = 108; OUT_ = 124; RB = 160; PF = 24
    TS = 17408
    P.e("s_cmp_lt_u32 s2, 256\n s_cbranch_scc1 L_auxgo\n s_endpgm\n L_auxgo:")
    for reg, off in ((K, 8), (V_, 16), (SH, 24), (GW, 80)): P.e(ldptr(reg, off))
    P.add(srd_hi(K, NQ) + srd_hi(V_, NQ) + srd_hi(SH, 3584) + srd_hi(X, NQ) + srd_hi(GW, 896) + srd_hi(WS, WS_SIZE) + srd_hi(WD, NW))
    P.e(f"""
    s_sub_u32 {sA}, s2, 224
    s_mul_i32 {sSO}, {sA}, {64*896}
    s_mul_i32 {sST}, {sW}, 40960
    s_lshl_b32 {sTA[0]}, {sW}, 7
    s_add_u32 {sTA[1]}, {sTA[0]}, 512
    s_cmp_eq_u32 {sW}, 3
    s_cselect_b32 {sTA[1]}, {NQ}, {sTA[1]}
    s_lshl_b32 {sTW[0]}, {sW}, 9
    s_add_u32 {sTW[1]}, {sTW[0]}, 2048
    v_lshrrev_b32 {v(T0)}, 3, {v(VL)}
    v_and_b32 {v(T1)}, 7, {v(VL)}
    v_mul_u32_u24 {v(VB)}, 896, {v(T0)}
    v_lshl_add_u32 {v(VB)}, {v(T1)}, 4, {v(VB)}
    v_add_u32 {v(VB)}, {sSO}, {v(VB)}
    v_add_u32 {v(VB2)}, 6144, {v(VB)}
    v_add_u32 {v(VM)}, -7168, {v(VB)}
    v_lshlrev_b32 {v(VX)}, 3, {v(VL)}
    s_mul_i32 s3, {sA}, {32*128}
    v_lshlrev_b32 {v(VZA)}, 7, {v(VL)}
    v_add_u32 {v(VZA)}, s3, {v(VZA)}
    v_mov_b32 {v(vARR)}, -16
    v_cmp_gt_u32 vcc, 32, v0
    v_mov_b32 {v(vZERO)}, 0
    v_cndmask_b32 {v(VZA)}, {v(vARR)}, {v(VZA)}, vcc
    v_cmp_eq_u32 vcc, 0, v0
    v_mov_b32 {v(vONE)}, 1
    s_waitcnt lgkmcnt(0)
    v_cndmask_b32 {v(vARR)}, {v(vARR)}, 0, vcc
    s_mov_b32 s34, 256
    s_mov_b32 s35, 0x20000
    """)
    def dset(k, j):
        b = TS * k; tag = "pin%d%d" % (k, j); L = []
        L.append([f"s_add_u32 {sC}, {sTA[k]}, {14336*j}\n s_add_u32 m0, {sST}, {b+1024+2048*j}", Ins(f"buffer_load_dwordx4 {v(VB)}, {K}, {sC} offen lds", tag)])
        L.append(Ins(f"buffer_load_dwordx4 {v(VB2)}, {K}, {sC} offen offset:1024 lds", tag))
        if j == 0:
            L.append([f"s_add_u32 m0, {sST}, {b}", Ins(f"buffer_load_dwordx4 {v(VM)}, {K}, {sC} offen lds", tag)])
            L.append(f"buffer_load_dwordx2 {v(WR_[k],2)}, {v(VX)}, {SH}, {sTW[k]} offen")
        L.append([f"s_add_u32 m0, {sST}, {b+9216+2048*j}", Ins(f"buffer_load_dwordx4 {v(VB)}, {V_}, {sC} offen lds", tag)])
        L.append(Ins(f"buffer_load_dwordx4 {v(VB2)}, {V_}, {sC} offen offset:1024 lds", tag))
        return L
    P.add(dset(0, 0))
    P.e(f"buffer_store_dword {v(vZERO)}, {v(VZA)}, {WS}, 0 offen sc1", tag="zst")
    P.add(dset(0, 1))
    if cfg.aux_head: P.e('s_branch L_aux2\n L_aux2:')
    P.e(f"""
    v_bfe_u32 {v(VR)}, {v(VL)}, 2, 2
    v_lshlrev_b32 {v(VR)}, 7, {v(VR)}
    v_lshrrev_b32 {v(VS)}, 4, {v(VL)}
    v_lshl_add_u32 {v(VR)}, {v(VS)}, 5, {v(VR)}
    v_and_b32 {v(VS)}, 3, {v(VL)}
    v_lshl_add_u32 {v(VR)}, {v(VS)}, 3, {v(VR)}
    v_add_u32 {v(VR)}, {sST}, {v(VR)}
    s_mov_b32 {sLO}, 0xffff
    s_mov_b32 {sMASK}, 0xffff0000
    v_lshlrev_b32 {v(VW)}, 4, {v(T1)}
    v_lshl_add_u32 {v(VW)}, {v(VL)}, 7, {v(VW)}
    v_add_u32 {v(VW)}, {sST}, {v(VW)}
    v_xor_b32 {v(VRB)}, {v(T0)}, {v(T1)}
    v_lshlrev_b32 {v(VRB)}, 4, {v(VRB)}
    v_lshl_add_u32 {v(VRB)}, {v(T0)}, 7, {v(VRB)}
    v_add_u32 {v(VRB)}, {sST}, {v(VRB)}
    v_lshlrev_b32 {v(VGW)}, 4, {v(T1)}
    v_lshl_add_u32 {v(VS)}, {v(T0)}, 12, {v(VGW)}
    s_lshl_b32 s3, {sW}, 18
    s_sub_u32 {sUS}, 31, {sA}
    s_lshl_b32 {sUS}, {sUS}, 7
    s_add_u32 {sUS}, {sUS}, s3
    s_add_u32 {sUS}, {sUS}, {WS_UR}
    """)
    P.add(dset(0, 2))
    zat = [WaitTag('vm', "zst"), f"buffer_atomic_add {v(vONE)}, {v(vARR)}, s[32:35], 0 offen sc1"]
    if not cfg.aux_fl: P.add(zat)
    P.add(dset(0, 3))
    if cfg.hack_aux: P.e("s_sleep 64\n s_sleep 32"); P.add(poll_load("za", None)); P.e("s_branch L_auxdone")
    def reads(k, j):
        b = TS * k; K_ = KP[j & 1]; V2 = VP[j & 1]
        L = [WaitTag('vm', "pin%d%d" % (k, j))]
        L += [f"ds_read_b64_tr_b16 {v(K_+2*m,2)}, {v(VR)} offset:{b+512+2048*j+512*m}" for m in range(5)]
        L += [f"ds_read_b64_tr_b16 {v(V2+2*m,2)}, {v(VR)} offset:{b+9216+2048*j+512*m}" for m in range(4)]
        return L
    def wprep(k):
        W = WR_[k]; T_ = WT[k]
        return lines(f"""v_alignbit_b32 {v(T_)}, {v(W)}, {v(W)}, 16
        v_alignbit_b32 {v(T_+1)}, {v(W+1)}, {v(W+1)}, 16
        v_and_b32 {v(T_+2)}, {sLO}, {v(W)}
        v_bfi_b32 {v(T_+3)}, {sLO}, {v(W+1)}, {v(W)}
        v_and_b32 {v(T_+4)}, {sMASK}, {v(W+1)}""")
    def owrites(k, j):
        return [[f"v_xor_b32 {v(VWt[q&1])}, {16*q}, {v(VW)}", Ins(f"ds_write_b128 {v(VWt[q&1])}, {v(OUT_+4*q,4)} offset:0", "ow")] for q in (7 - 2 * j, 6 - 2 * j)]
    def readback(k): return [f"ds_read_b128 {v(RB+4*q,4)}, {v(VRB)} offset:{1024*q}" for q in range(8)]
    def stores(k): return [[f"s_add_u32 {sC2}, {sUS}, {(k << 20) + 32768*q}", Ins(f"buffer_store_dwordx4 {v(RB+4*q,4)}, {v(VS)}, {WS}, {sC2} offen sc1", "pst")] for q in range(8)]
    wdt = lines(f"""s_lshl_b32 s3, {sA}, 2
    s_add_u32 s3, s3, {sW}
    s_mul_i32 s75, s3, {98*128}
    v_lshlrev_b32 {v(156)}, 7, {v(VL)}
    v_add_u32 {v(157)}, {34*128}, {v(156)}
    buffer_load_dword {v(158)}, {v(156)}, {WD}, s75 offen
    buffer_load_dword {v(159)}, {v(157)}, {WD}, s75 offen""")
    def step(P, k, j, fill):
        if cfg.aux_sleep and cfg.aux_sleep[:2] == (k, j): P.e('s_sleep %d' % cfg.aux_sleep[2])
        if cfg.aux_wd == (k, j): fill = list(fill) + ["\n".join(wdt)]
        K_ = KP[j & 1]; V2 = VP[j & 1]; T_ = WT[k]; fill = list(fill); per = (len(fill) + 9) // 10
        def nx():
            for _ in range(per):
                if fill: P.add(fill.pop(0))
        P.add(WaitRegs(v(V2 + 6, 2)))
        if cfg.stamps: r_ = [60, 62, 64, 66, 94, 78, 80, 92][4 * k + j]; P.e(f"s_memtime s[{r_}:{r_+1}]")
        for h in range(2):
            J = range(4 * h, 4 * h + 4)
            for i in J: P.e(f"v_dot2_f32_bf16 {v(OO+2*(i%4))}, {v(K_+i+2)}, {v(T_+2)}, 0\n v_dot2_f32_bf16 {v(OO+2*(i%4)+1)}, {v(K_+i+2)}, {v(T_)}, 0")
            nx()
            for i in J: P.e(f"v_dot2_f32_bf16 {v(OO+2*(i%4))}, {v(K_+i+1)}, {v(T_+3)}, {v(OO+2*(i%4))}\n v_dot2_f32_bf16 {v(OO+2*(i%4)+1)}, {v(K_+i+1)}, {v(T_+1)}, {v(OO+2*(i%4)+1)}")
            nx()
            for i in J: P.e(f"v_dot2_f32_bf16 {v(OO+2*(i%4))}, {v(K_+i)}, {v(T_+4)}, {v(OO+2*(i%4))}")
            nx()
            for i in J: P.e(f"v_lshlrev_b32 {v(UV+2*(i%4))}, 16, {v(V2+i)}\n v_and_b32 {v(UV+2*(i%4)+1)}, {sMASK}, {v(V2+i)}")
            nx()
            for i in J: P.e(f"v_pk_mul_f32 {v(UV+2*(i%4),2)}, {v(UV+2*(i%4),2)}, {v(OO+2*(i%4),2)}")
            nx()
            for i in J: P.e(f"v_cvt_pk_bf16_f32 {v(OUT_+31-8*j-i)}, {v(UV+2*(i%4)+1)}, {v(UV+2*(i%4))}")
        while fill: nx()
    P.add(reads(0, 0)); P.add(wprep(0))
    if cfg.stamps: P.e("s_waitcnt lgkmcnt(0)\n s_memtime s[86:87]")
    if cfg.aux_fl:
        P.add(zat); P.add(dset(1, 0))
        step(P, 0, 0, dset(1, 1) + reads(0, 1))
        step(P, 0, 1, dset(1, 2) + reads(0, 2) + dset(1, 3))
        step(P, 0, 2, reads(0, 3))
    else:
        step(P, 0, 0, dset(1, 0) + reads(0, 1))
        step(P, 0, 1, dset(1, 1) + reads(0, 2))
        step(P, 0, 2, dset(1, 2) + reads(0, 3))
    P.e(f"s_cmp_eq_u32 {sW}, 3\n s_cbranch_scc1 L_gate")
    Pg = Prog(); Pg.items = list(P.items)
    st0 = stores(0)
    step(P, 0, 3, ([] if cfg.aux_fl else dset(1, 3)) + reads(1, 0) + wprep(1) + owrites(0, 0) + owrites(0, 1))
    P.add(owrites(0, 2) + owrites(0, 3))
    step(P, 1, 0, reads(1, 1) + readback(0))
    step(P, 1, 1, reads(1, 2) + st0[:4] + owrites(1, 0))
    step(P, 1, 2, poll_load("za", None) + reads(1, 3) + st0[4:] + owrites(1, 1))
    step(P, 1, 3, owrites(1, 2))
    P.add(owrites(1, 3)); P.add(readback(1)); P.add(stores(1))
    P.e("s_branch L_auxdone")
    P = Pg; P.e("L_gate:")
    step(P, 0, 3, owrites(0, 0) + owrites(0, 1) + owrites(0, 2))
    P.add(owrites(0, 3)); P.add(readback(0)); P.add(stores(0)); P.add(poll_load("za", None))
    QB = 48; GWB = 112; AC = 104
    def gate(T):
        T.e(f"""s_lshl_b32 {sT0}, {sA}, 2
        s_add_u32 {sT0}, {sT0}, {sW}
        s_mul_i32 {sSO}, {sT0}, {16*896}
        v_mul_u32_u24 {v(VQ)}, {2*896}, {v(T0)}
        v_add_u32 {v(VQ)}, {v(VQ)}, {v(VGW)}""")
        for tau in range(7):
            for rho in range(2): T.e(f"buffer_load_dwordx4 {v(QB+8*tau+4*rho,4)}, {v(VQ)}, {X}, {sSO} offen offset:{896*rho+128*tau}")
            T.e(f"buffer_load_dwordx4 {v(GWB+4*tau,4)}, {v(VGW)}, {GW}, 0 offen offset:{128*tau}")
        for tau in range(7):
            for p in range(4):
                for rho in range(2):
                    d = AC + 2 * (p & 1) + rho
                    T.e(f"v_dot2_f32_bf16 {v(d)}, {v(QB+8*tau+4*rho+p)}, {v(GWB+4*tau+p)}, {'0' if (tau == 0 and p < 2) else v(d)}")
        for rho in range(2): T.e(f"v_add_f32 {v(AC+rho)}, {v(AC+rho)}, {v(AC+2+rho)}")
        for mod in ("row_half_mirror", "quad_perm:[3,2,1,0]", "quad_perm:[1,0,3,2]"):
            for rho in range(2): T.e(f"v_add_f32_dpp {v(AC+rho)}, {v(AC+rho)}, {v(AC+rho)} {mod} row_mask:0xf bank_mask:0xf")
        T.e(f"""s_mov_b32 s56, 0xaaaaaaaa
        s_mov_b32 s57, 0xaaaaaaaa
        v_cndmask_b32 {v(AC)}, {v(AC)}, {v(AC+1)}, s[56:57]
        v_mul_f32 {v(AC)}, 0xbfb8aa3b, {v(AC)}
        v_exp_f32 {v(AC)}, {v(AC)}
        v_lshl_add_u32 {v(T0)}, {v(T0)}, 1, {v(T1)}
        v_add_f32 {v(AC)}, 1.0, {v(AC)}
        v_rcp_f32 {v(AC)}, {v(AC)}
        v_lshlrev_b32 {v(T0)}, 2, {v(T0)}
        v_mov_b32 {v(VZA)}, -16
        v_cmp_gt_u32 vcc, 2, {v(T1)}
        s_lshl_b32 s3, {sT0}, 6
        s_add_u32 s3, s3, {WS_G}
        v_cndmask_b32 {v(T0)}, {v(VZA)}, {v(T0)}, vcc
        buffer_store_dword {v(AC)}, {v(T0)}, {WS}, s3 offen sc1""")
    def watch(T, name, nl, off):
        if cfg.nosync or not cfg.watch: return
        T.e(f"""v_min_u32 {v(24)}, {nl-1}, {v(VL)}
        v_lshlrev_b32 {v(24)}, 7, {v(24)}
        s_mov_b32 {sCNT}, 0
        L_w{name}:
        buffer_load_dword {v(25)}, {v(24)}, {WS}, {off} offen sc1
        s_add_u32 {sCNT}, {sCNT}, 1
        s_cmp_gt_u32 {sCNT}, 256
        s_waitcnt vmcnt(0)
        s_cbranch_scc1 L_x{name}
        v_cmp_gt_u32 vcc, 1, {v(25)}
        s_sleep {cfg.watch}
        s_cbranch_vccnz L_w{name}
        L_x{name}:""")
    gate(P)
    T = Prog(); T.e("L_auxdone:")
    if cfg.stamps: T.e("s_memtime s[88:89]")
    T.e(f"""s_lshl_b32 {sC}, {sA}, 7
    s_add_u32 {sC2}, {sC}, {32*128}
    s_waitcnt vmcnt(0)""")
    T.add(poll_check("za", None))
    T.e("s_barrier")
    if not cfg.nosync: T.e(f"buffer_store_dword {v(vONE)}, {v(vARR)}, {WS}, {sC} offen sc1")
    if cfg.stamps: T.e("s_memtime s[90:91]")
    T.e(f"s_cmp_eq_u32 {sW}, 3\n s_cbranch_scc0 L_g012")
    watch(T, "p", 32, "0")
    T.e("s_branch L_gdone\n L_g012:")
    gate(T)
    T.e("s_waitcnt vmcnt(0)\n L_gdone:\n s_barrier")
    if not cfg.nosync: T.e(f"buffer_store_dword {v(vONE)}, {v(vARR)}, {WS}, {sC2} offen sc1")
    T.e(f"""s_and_b32 s3, s2, 7
    s_mul_i32 s58, s3, {28*128}
    s_lshr_b32 s59, {sA}, 3
    s_cmp_lg_u32 {sW}, 0
    s_cbranch_scc1 L_wn0
    s_add_u32 s60, s58, {768*128}""")
    watch(T, "a", 28, "s60")
    T.e(f"s_add_u32 s60, s58, {256*128}")
    watch(T, "b", 28, "s60")
    T.e(f"""s_branch L_wend
    L_wn0:
    s_cmp_eq_u32 {sW}, 1
    s_cbranch_scc0 L_wn1
    s_lshl_b32 s60, s3, 9
    s_add_u32 s60, s60, {32*128}""")
    watch(T, "g", 4, "s60")
    T.e(f"""s_branch L_wend
    L_wn1:
    s_lshl_b32 s59, s59, 1
    s_add_u32 s59, s59, {sW}
    s_sub_u32 s59, s59, 2
    s_mul_i32 s60, s59, {28*128}
    s_add_u32 s60, s60, {512*128}""")
    watch(T, "y", 28, "s60")
    T.e("L_wend:")
    if cfg.aux_l2:
        g0, ng = cfg.aux_l2
        T.e(f"""v_mul_u32_u24 {v(PF)}, 896, {v(VL)}
        s_lshr_b32 s56, {sA}, 3
        s_mul_i32 s56, s56, {448*896}
        s_and_b32 s57, s2, 7
        s_add_u32 s57, s57, {g0}""")
        for k in range((7 * ng + 3) // 4):
            T.e(f"""s_add_u32 s58, {sW}, {4*k}
            s_min_u32 s58, s58, {7*ng-1}
            s_mul_i32 s59, s58, 37
            s_lshr_b32 s59, s59, 8
            s_mul_i32 s3, s59, 7
            s_sub_u32 s58, s58, s3
            s_add_u32 s59, s59, s58
            s_add_u32 s59, s59, s57
            s_mul_i32 s3, s59, 37
            s_lshr_b32 s3, s3, 8
            s_mul_i32 s3, s3, 7
            s_sub_u32 s59, s59, s3
            s_mul_i32 s59, s59, {64*896}
            s_lshl_b32 s58, s58, 7
            s_add_u32 s59, s59, s58
            s_add_u32 s59, s59, s56
            buffer_load_dword {v(PF+2+k)}, {v(PF)}, {WD}, s59 offen""")
    if cfg.stamps:
        T.e(f"""s_waitcnt vmcnt(0)
        s_memtime s[4:5]
        s_memrealtime s[6:7]
        s_waitcnt lgkmcnt(0)
        s_sub_u32 s3, s86, s98
        v_mov_b32 v200, s3
        s_sub_u32 s3, s88, s98
        v_mov_b32 v201, s3
        s_sub_u32 s3, s90, s98
        v_mov_b32 v202, s3
        s_sub_u32 s3, s4, s98
        v_mov_b32 v203, s3
        v_mov_b32 v204, s100
        v_mov_b32 v205, s6
        s_lshl_b32 s3, s2, 2
        s_add_u32 s3, s3, {sW}
        s_lshl_b32 s3, s3, 7
        s_add_u32 s3, s3, {WS_STAMP}
        v_mov_b32 v2, 0
        s_mov_b64 exec, 1
        buffer_store_dwordx4 v[200:203], v2, {WS}, s3 offen
        buffer_store_dwordx2 v[204:205], v2, {WS}, s3 offen offset:120""")
        for i_, r_ in enumerate([60, 62, 64, 66, 94, 78, 80, 92]): T.e(f"s_sub_u32 s4, s{r_}, s98\n v_mov_b32 v{208+i_}, s4")
        T.e(f"buffer_store_dwordx4 v[208:211], v2, {WS}, s3 offen offset:16\n buffer_store_dwordx4 v[212:215], v2, {WS}, s3 offen offset:32")
    T.e("s_endpgm")
    return Pg, T

def build():
    global slow_paths, stamp_names, trace_names, custom_slow
    slow_paths = []; custom_slow = []; stamp_names = []; trace_names = []; arr_n[0] = 0; STAMP_REGS['prewait'] = 74; STAMP_REGS['karg'] = 72
    pro = Prog()
    for reg, off in ((X, 0), (WG, 56), (WU, 64), (WD, 72), (SK, 32), (WS, 104), (OUT, 88), (pDBG, 96), (pD, 40)) + ((("s[94:95]", 8), ("s[96:97]", 16)) if cfg.kv_touch is not None else ()): pro.e(ldptr(reg, off))
    if cfg.sync_start:
        pro.e("""s_memrealtime s[100:101]
        s_waitcnt lgkmcnt(0)
        s_add_u32 s3, s100, 400
        s_and_b32 s3, s3, 0xffffff00
        s_and_b32 s99, s2, %d
        s_mul_i32 s99, s99, %d
        s_add_u32 s3, s3, s99
        L_ss:
        s_memrealtime s[100:101]
        s_waitcnt lgkmcnt(0)
        s_sub_u32 s99, s100, s3
        s_cmp_lt_i32 s99, 0
        s_cbranch_scc1 L_ss""" % cfg.skew)
    if cfg.stamps or cfg.fixdur: pro.e("s_memtime s[98:99]\n s_memrealtime s[100:101]")
    pro.e(f"""
    v_lshrrev_b32 v2, 6, v0
    v_and_b32 v1, 63, v0
    s_cmp_ge_u32 s2, 224
    v_readfirstlane_b32 {sW}, v2
    s_cbranch_scc1 L_aux
    """)
    Pm = Prog(); Pm.items = list(pro.items)
    gen_main(Pm)
    main = Pm.finalize(cfg.verbose)
    Px = Prog(); Px.items = list(pro.items); Px.e("L_aux:")
    Pg, Pt = gen_aux(Px)
    ax = Px.finalize(); gx = Pg.finalize(); tx = Pt.finalize()
    cut = lambda lst, lab: lst[[i for i, x in enumerate(lst) if x.kind == 'label' and x.text == lab][0]:]
    axl = cut(ax, "L_aux:")
    if cfg.aux_head:
        k_ = [i for i, x in enumerate(axl) if x.kind == 'label' and x.text == "L_aux2:"][0]
        m_ = [i for i, x in enumerate(main) if x.kind == 'label' and x.text == "L_auxhead:"][0]
        main[m_:m_ + 1] = axl[:k_]; axl = axl[k_:]
    if cfg.warm:
        real = [i for i, x in enumerate(main) if x.kind != 'label']
        for k, n in reversed(list(enumerate(cfg.stub_at[:4]))):
            main[real[n]:real[n]] = [Ins("L_pg%d:" % k), Ins("s_cbranch_execz L_pgback")]
    body = text_of(main) + "\n" + text_of(axl) + "\n" + text_of(cut(gx, "L_gate:")) + "\n" + text_of(tx) + "\n" + emit_slow_paths() + "\nL_codeend:"
    hdr = open("gated_mix__ssm_conv_h3__swiglu_ffn__prompt.s.ref").read().split("; Override launch")[0] if cfg.header else ""
    return f"""{hdr}; @launch grid=(256,1,1) block=(256,1,1) lds={LDS_BYTES}
; TRACE={trace_names}
.amdgcn_target "amdgcn-amd-amdhsa--gfx950"
.text
.globl {KNAME}
{'.p2align 12' if cfg.align else ''}
.p2align 8
.type {KNAME},@function
{KNAME}:
{body}
.section .rodata,"a"
.p2align 6
.amdhsa_kernel {KNAME}
  .amdhsa_next_free_vgpr 512
  .amdhsa_next_free_sgpr 102
  .amdhsa_accum_offset 256
  .amdhsa_group_segment_fixed_size 0
  .amdhsa_kernarg_size 112
  .amdhsa_user_sgpr_count 2
  .amdhsa_user_sgpr_kernarg_segment_ptr 1
  .amdhsa_system_sgpr_workgroup_id_x 1
.end_amdhsa_kernel
"""

if __name__ == "__main__":
    import subprocess
    out = sys.argv[1]
    for kv in sys.argv[2:]:
        k_, v_ = kv.split("=", 1)
        assert hasattr(cfg, k_), k_
        setattr(cfg, k_, eval(v_))
    cfg.pf_n = 1; cfg.pf_last = 100
    vb = cfg.verbose; cfg.verbose = False
    open(out, "w").write(build())
    subprocess.check_call(["clang", "-x", "assembler", "-target", "amdgcn-amd-amdhsa", "-mcpu=gfx950", "-c", out, "-o", "_gen.o"])
    sym = subprocess.check_output(["llvm-objdump", "-t", "_gen.o"], text=True)
    ad = {l.split()[-1]: int(l.split()[0], 16) for l in sym.splitlines() if " L_" in l}
    if cfg.code_pf:
        cfg.pf_last = (ad["L_codeend"] - ad["L_pc"] - 64) // 128
        cfg.pf_n = (cfg.pf_last + 112) // 112
    if cfg.warm:
        cfg.stub_at = [600, 1200, 1800, 2300]
        for it in range(3):
            open(out, "w").write(build())
            subprocess.check_call(["clang", "-x", "assembler", "-target", "amdgcn-amd-amdhsa", "-mcpu=gfx950", "-c", out, "-o", "_gen.o"])
            dis = subprocess.check_output(["llvm-objdump", "-d", "--mcpu=gfx950", "_gen.o"], text=True)
            ins = [(int(l.split("//")[1].split(":")[0], 16), l) for l in dis.splitlines() if "//" in l]
            end = [i for i, (a_, l) in enumerate(ins) if "s_endpgm" in l][1 if cfg.aux_head else 0]
            a0 = []; ns_ = 0
            for a_, l in ins[:end]:
                if "s_cbranch_execz" in l: ns_ += 1
                else: a0.append(a_ - 4 * ns_)
            new_at = []
            for k in range(cfg.pg0, cfg.pg0 + 4):
                c = [i for i, a_ in enumerate(a0) if a_ + 4 * (k - cfg.pg0) + 0x300 >= 4096 * k]
                if c: new_at.append(c[0])
            if new_at == cfg.stub_at: break
            cfg.stub_at = new_at
    cfg.verbose = vb
    open(out, "w").write(build())
    print(out, "code bytes", ad["L_codeend"], "aux at", ad["L_aux"], "stubs", cfg.stub_at, "stamps:", stamp_names)
```

```python
import sys, math, re
from fw import *
import fw
KNAME = "gated_mix__ssm_conv_h3__swiglu_ffn__prompt_kernel"

class Cfg: pass
cfg = Cfg()
cfg.stamps = False; cfg.pass_stamps = False; cfg.verbose = False; cfg.header = True; cfg.fixdur = 0
cfg.PD = 5; cfg.NXR = 8; cfg.pair = 2; cfg.bud = 24
cfg.code_pf = True; cfg.n_pre = 6; cfg.nosync = False
cfg.rot_c = True; cfg.rot_t = True; cfg.rot_g = True
cfg.pl_at = -1; cfg.pc0 = 10; cfg.pc1 = 70; cfg.bud1 = 28; cfg.z_load = 60; cfg.z_chk = 84; cfg.x_touch = 0; cfg.align = True; cfg.tlb = False; cfg.sync_start = False; cfg.skew = (0, 0); cfg.gq_sh = 0; cfg.gq_mul = 0; cfg.wd_touch = -2; cfg.warm = True; cfg.stub_at = []; cfg.late_pos = 100; cfg.p_arr = 9; cfg.pst_at = 80; cfg.aux_sk = False; cfg.p_first = True; cfg.sk_at = -1; cfg.hv_at = 24; cfg.c_rd_end = 66; cfg.sleep = 2
cfg.p_load = 180; cfg.p_chk = 208; cfg.hw0 = 70; cfg.hw1 = 180
cfg.g_arrive = 38; cfg.g_poll = 112; cfg.g_chk = 102; cfg.nh_c = 15; cfg.nh_e = 3; cfg.c_wd = (28, 56, 84, 0); cfg.c_tail_in_g2 = True; cfg.b_rev = False; cfg.ytag = True; cfg.e7i = True; cfg.odd_touch = False; cfg.more = 1; cfg.i910 = None; cfg.nb0 = 3; cfg.reslot = True; cfg.p_nobar = True; cfg.pz_at = 90; cfg.y_nobar = True; cfg.ct_end = 13; cfg.no_x = False; cfg.sk_early = True; cfg.sk_pos = 0; cfg.aux_head = True; cfg.aux_fl = False; cfg.pg0 = 1; cfg.aux_sleep = None; cfg.watch = 0; cfg.hack_sleep_c = None; cfg.hack_sleep_h = None; cfg.eo = True; cfg.epi_len = 22; cfg.a_arr = 168; cfg.a_load = 210; cfg.a_chk = 30; cfg.h_first = 86; cfg.b_chk = 0; cfg.rw_bar = 70; cfg.y_late = False; cfg.n1 = 2; cfg.blk_c = 4; cfg.blk_s3 = 0; cfg.blk_deep = False; cfg.blk_dma = False; cfg.blk_g = 1; cfg.blk_g2 = 0; cfg.blk_list = [(1, 3), (34, 6)]; cfg.ovl = False; cfg.m2 = None; cfg.kh = 0; cfg.ov_bar = 8; cfg.hack_sleep = None; cfg.aux_wd = None; cfg.hack_aux = False; cfg.sc_h = 'sc1'; cfg.n_raw = 0; cfg.kv_touch = None; cfg.aux_l2 = None; cfg.hack_wd = False; cfg.hack_p = False; cfg.sc_wd = ''; cfg.sc_g1 = ''; cfg.c_bar = 130; cfg.s3_at = -1; cfg.nwd_t = 5; cfg.g_wd_end = 104
cfg.g2_hpace = 2.1; cfg.q_at = (2, 4, 5, 6); cfg.g2_arrive = 26; cfg.g2_poll = 64; cfg.g2_chk = 62; cfg.g2_pre = 92
cfg.sc_out = ""; cfg.aux_pf = False; cfg.touch = False; cfg.s_early = True; cfg.rt = False; cfg.trace = False; cfg.start_stamps = False

WS_FLAG = 0x0; WS_G = 0x20000; WS_UR = 0x100000; WS_YT = 0x300000; WS_H = 0x500000
WS_STAMP = 0xC00000; WS_SIZE = 0xD00000
NQ = 1835008; NW = 1605632
XB = 4096
SLOT = 28672; PIECE = 7168
HC = 4 * SLOT; CPY = 4160; HCCH = 4 * CPY
UL = HC + 2 * HCCH; UCH = 4608
LDS_BYTES = 163840
YL = HC; QL = UL
assert UL + 2 * UCH <= LDS_BYTES
X, WG, WU, WD, SK, WS, OUT = ["s[%d:%d]" % (b, b + 3) for b in (4, 8, 12, 16, 20, 24, 28)]
pWS = "s[24:25]"; pDBG = "s[32:33]"; pD = "s[34:35]"
sW = "s36"; sT0 = "s37"; sT1 = "s38"; sT2 = "s39"
sCH = ["s%d" % (40 + i) for i in range(7)]
sWC = ["s%d" % (47 + i) for i in range(7)]
sTO = ["s%d" % (54 + i) for i in range(8)]
sHG = sWC
sM0P = "s68"; sXB = "s69"; sWB = "s70"; sDB = "s71"; sHS = "s72"; sHL = ["s73", "s74"]
sNL2E = "s75"; sSO = "s76"; sSO2 = "s77"; sD = "s78"; sI2 = "s79"; sCT = "s80"; sKH = "s81"
sCNT = "s82"; sM = "s83"; sMASK = "s84"; sRG = "s85"
sDG = ["s%d" % (86 + i) for i in range(7)]
sPV = "s93"; sHE = "s70"; sFL = "s67"; sONE = "s66"; sU = "s65"; sPA = "s64"
STAMP_REGS = {'issued': 0, 'setup': 96, 'pdone': 94, 'prewait': 74, 'karg': 72, 'g1start': 34, 'p1end': 12, 'T5': 96, 'T6': 8, 'T7': 10, 'prepoll': 94, 'zpre': 96, 'zpost': 8, 'g1end': 14, 'cstart': 40, 'c_pre': 42, 'c_post': 44, 'g2start': 54, 'g2_pre': 56, 'g2_post': 58, 'g2end': 60}

def v(i, n=1): return "v%d" % i if n == 1 else "v[%d:%d]" % (i, i + n - 1)
def a(i, n=1): return "a%d" % i if n == 1 else "a[%d:%d]" % (i, i + n - 1)
def lines(t): return [l.strip() for l in t.split("\n") if l.strip()]

stamp_names = []
def stamp(name):
    if not cfg.stamps or cfg.stamps == 'min': return []
    if cfg.trace and STAMP_REGS[name] in (94, 96): return []
    stamp_names.append(name); r = STAMP_REGS[name]
    return [Ins("%s s[%d:%d]" % ("s_memrealtime" if cfg.rt else "s_memtime", r, r + 1))]

slow_paths = []; custom_slow = []
trace_names = []
TR_S = [94, 96, 8, 12]
def add_trace(G, every, name, regs):
    if not cfg.trace: return
    k = 0
    for g in range(0, G.n - 3, every):
        i = len(trace_names); trace_names.append("%s%d" % (name, g)); r = regs[k % len(regs)]; k += 1
        G.f[g].insert(0, Ins("s_memtime s[%d:%d]" % (r, r + 1)))
        G.f[min(g + (3 if G.n != 144 else 6), G.n - 1)].append("v_writelane_b32 v%d, s%d, %d" % (254 + i // 64, r, i % 64))
vARR = 43; vONE = 0; vP8 = 38; vP7 = 39; vPV = 33; vZERO = 44
def poll_text(kind, off):
    if kind == "z": return f"global_load_dword {v(vPV)}, {v(vZERO)}, {pDBG} sc1"
    if kind == "za": return f"global_load_dword {v(vPV)}, {v(vZERO)}, {pDBG} sc1"
    return f"buffer_load_dword {v(vPV)}, {v(247 if (kind == 'p' and cfg.p_nobar) else 246 if (kind == 'a' and cfg.ytag) else vP7 if kind in 'ha' else vP8)}, {WS}, {off} offen sc1"
def poll_load(kind, off):
    return [] if cfg.nosync else [poll_text(kind, off)]
def poll_check(kind, off):
    if cfg.nosync: return []
    slow_paths.append((kind, off))
    return [f"v_cmp_gt_u32 vcc, {32 if kind[0] == 'z' else 1}, {v(vPV)}", f"s_cbranch_vccnz L_slow_{kind}\n L_back_{kind}:"]
def emit_slow_paths():
    t = []
    for kind, off in slow_paths:
        t += [f"L_slow_{kind}:", f"s_mov_b32 {sCNT}, 0", f"L_spin_{kind}:", f"s_sleep {cfg.sleep}", poll_text(kind, off),
              f"s_add_u32 {sCNT}, {sCNT}, 1", f"s_cmp_gt_u32 {sCNT}, 0x40000", "s_waitcnt vmcnt(0)", f"s_cbranch_scc1 L_back_{kind}",
              f"v_cmp_gt_u32 vcc, {32 if kind[0] == 'z' else 1}, {v(vPV)}", f"s_cbranch_vccnz L_spin_{kind}"] + ([f"v_writelane_b32 v253, {sCNT}, {'zphy'.index(kind.replace('a', 'z'))}"] if cfg.trace and kind != "za" else []) + [f"s_branch L_back_{kind}"]
    for c in custom_slow: t += lines(c)
    return "\n".join(l if l.endswith(":") else "    " + l for l in t)
arr_n = [0]
def arrive(tag, off, bar=True):
    pre = [Ins("s_barrier")] if bar else []
    if cfg.nosync: return pre
    return ([WaitTag('vm', tag)] if bar else []) + pre + [f"buffer_store_dword {v(vONE)}, {v(vARR)}, {WS}, {off} offen sc1"]

def sb(reg): return int(reg[2:reg.index(':')])
def srd_hi(reg, size): return ["s_mov_b32 s%d, 0x%x" % (sb(reg) + 2, size), "s_mov_b32 s%d, 0x20000" % (sb(reg) + 3)]
def ldptr(reg, off): return "s_load_dwordx2 s[%d:%d], s[0:1], %d" % (sb(reg), sb(reg) + 1, off)
def rot_next(r): return [f"s_add_u32 {r}, {r}, 1", f"s_cmp_eq_u32 {r}, 7\n s_cselect_b32 {r}, 0, {r}"]
def mod7(r): return lines(f"s_mul_i32 s3, {r}, 37\n s_lshr_b32 s3, s3, 8\n s_mul_i32 s3, s3, 7\n s_sub_u32 {r}, {r}, s3")

def code_prefetch(P):
    if not cfg.code_pf: return
    P.e(f"""
        s_getpc_b64 s[38:39]
        L_pc:
        s_lshr_b32 s3, s2, 3
        s_lshl_b32 s3, s3, 2
        s_add_u32 s3, s3, {sW}
        s_mul_i32 s3, s3, {cfg.pf_n}
        v_min_u32 v2, {cfg.pf_n-1}, v1
        v_add_u32 v2, s3, v2
        v_min_u32 v2, {cfg.pf_last}, v2
        v_lshlrev_b32 v2, 7, v2
        v_mov_b32 v3, s39
        v_add_co_u32 v2, vcc, s38, v2
        v_addc_co_u32 v3, vcc, 0, v3, vcc
        global_load_dword v255, v[2:3], off
        """)

def gen_main(P):
    PD = cfg.PD; NXR = cfg.NXR; N1 = cfg.n1; CH = 4 * N1; P1 = 28 * N1; NI = 15 - N1
    VL = 1
    VX = [2, 3, 4, 9]; VWg = [5, 6]; VWu = [7, 8]; VSK = [10, 11, 12]; VD = [13, 14, 15, 16]
    XR = [[17, 18, 19, 20], [21, 22, 23, 24]]; WR = [25, 26, 27]; DR = [[28, 29], [30, 31]]
    V16 = 32; T0 = 33; T1 = 34; T2 = 35; T3 = 36; VHZ = 37; CA = 40; CB = 41; VHW = 42; VZ = 44
    ACC = [48, 64, 80, 96]; XRING = 112; ET = 144; PK = [148, 152]; HR = 160; HCP = 176
    assert XRING + 4 * NXR <= ET
    sX = sSO; sQ7 = sSO2; sR = sCNT
    slot_of = lambda i: {10: 3, 11: 0, 12: 1}[i] if (cfg.more >= 2 and i >= 10) else (i + 1) % 4 if (cfg.reslot and i == NI - 1) else i % 4
    code_prefetch(P)
    P.e(f"""
    s_and_b32 {sX}, s2, 7
    s_lshr_b32 {sT1}, s2, 3
    s_mul_i32 {sQ7}, {sT1}, 37
    s_lshr_b32 {sQ7}, {sQ7}, 8
    s_mul_i32 s3, {sQ7}, 7
    s_sub_u32 {sCT}, {sT1}, s3
    s_lshl_b32 s3, {sX}, 2
    s_add_u32 {sI2}, s3, {sQ7}
    s_and_b32 s3, {sX}, 4
    s_add_u32 {sT2}, s3, {sQ7}
    s_and_b32 {sT0}, {sX}, 3
    s_mul_i32 {sT1}, {sT0}, 7
    s_add_u32 {sT1}, {sT1}, {sCT}
    s_mul_i32 {sM0P}, {sW}, {PIECE}
    s_mul_i32 {sXB}, {sT2}, {256*896}
    s_add_u32 {sXB}, {sXB}, {sM0P}
    s_mul_i32 {sWB}, {sW}, {16*3584}
    s_lshl_b32 s3, {sT1}, 7
    s_add_u32 {sWB}, {sWB}, s3
    s_lshl_b32 {sRG}, {sQ7}, 1
    s_add_u32 {sRG}, {sRG}, {sCT}
    s_lshr_b32 s3, {sX}, {2 if cfg.rot_c == True else 3}
    s_add_u32 {sR}, {sRG}, s3
    """)
    P.add(mod7(sR) if cfg.rot_c else f"s_mov_b32 {sR}, 0")
    def ch_tab(i):
        L = lines(f"s_lshl_b32 s3, {sR}, 7\n s_add_u32 {sCH[i]}, s3, {sXB}\n s_mul_i32 s3, {sR}, {64*3584}\n s_add_u32 {sWC[i]}, s3, {sWB}")
        return L + (rot_next(sR) if i < 6 else [])
    def to_tab(t):
        if cfg.eo: return lines(f"s_add_u32 s3, {sT0}, {t}\n s_and_b32 s3, s3, 3\n s_mul_i32 s3, s3, {2*28672}\n s_add_u32 {sTO[t]}, s3, {28672*(t >> 2)}")
        if cfg.rot_t: return lines(f"s_lshl_b32 s3, {sT0}, 1\n s_add_u32 s3, s3, {t}\n s_and_b32 s3, s3, 7\n s_mul_i32 {sTO[t]}, s3, 28672")
        return [f"s_mov_b32 {sTO[t]}, {28672*t}"]
    for i in range(2): P.add(ch_tab(i))
    for t in range(N1): P.add(to_tab(t))
    P.add(srd_hi(X, NQ + XB) + srd_hi(WG, NW) + srd_hi(WU, NW))
    P.e(f"""
    v_lshrrev_b32 {v(T0)}, 3, {v(VL)}
    v_and_b32 {v(T1)}, 7, {v(VL)}
    v_lshrrev_b32 {v(T2)}, 4, {v(VL)}
    s_lshl_b32 s3, {sW}, 2
    v_add_u32 {v(T3)}, s3, {v(T2)}
    v_and_b32 {v(T3)}, 7, {v(T3)}
    v_xor_b32 {v(T3)}, {v(T1)}, {v(T3)}
    v_lshlrev_b32 {v(T3)}, 4, {v(T3)}
    v_mul_u32_u24 {v(VX[0])}, 896, {v(T0)}
    v_add_u32 {v(T3)}, {XB}, {v(T3)}
    v_add_u32 {v(VX[0])}, {v(VX[0])}, {v(T3)}
    v_add_u32 {v(VX[1])}, -1024, {v(VX[0])}
    v_add_u32 {v(VX[2])}, -2048, {v(VX[0])}
    v_and_b32 {v(T2)}, 1, {v(T2)}
    v_lshlrev_b32 {v(T2)}, 1, {v(T2)}
    v_xor_b32 {v(T3)}, {v(T1)}, {v(T2)}
    v_lshlrev_b32 {v(T3)}, 4, {v(T3)}
    v_mul_u32_u24 {v(VWg[0])}, 3584, {v(T0)}
    v_add_u32 {v(VWg[0])}, {v(VWg[0])}, {v(T3)}
    v_add_u32 {v(VWg[1])}, {28672-1024}, {v(VWg[0])}
    v_xor_b32 {v(VWu[0])}, 64, {v(VWg[0])}
    v_add_u32 {v(VWu[1])}, {28672-1024}, {v(VWu[0])}
    """)
    if cfg.start_stamps: P.add(stamp("prewait"))
    P.e("s_waitcnt lgkmcnt(0)")
    if cfg.start_stamps: P.add(stamp("karg")); P.e("s_waitcnt lgkmcnt(0)\n v_mov_b32 v156, s74\n v_mov_b32 v157, s72")
    P.e(f"""
    s_sub_u32 s4, s4, {XB}
    s_subb_u32 s5, s5, 0
    """)
    def dma_item(i):
        sl = slot_of(i) * SLOT; tag = "it%d" % i; L = []
        xl = lambda T, c, u, pre="": [pre + f"s_add_u32 {sSO}, {sCH[c]}, {sTO[T]}", Ins(f"buffer_load_dwordx4 {v(VX[u])}, {X}, {sSO} offen offset:{1024*u} {cfg.sc_g1} lds", tag)]
        if i < 7:
            L.append([f"s_add_u32 m0, {sM0P}, {sl+3072}", Ins(f"buffer_load_dwordx4 {v(VWg[0])}, {WG}, {sWC[i]} offen offset:0 {cfg.sc_g1} lds", tag)])
            L.append(Ins(f"buffer_load_dwordx4 {v(VWg[1])}, {WG}, {sWC[i]} offen offset:1024 {cfg.sc_g1} lds", tag))
            L.append([f"s_add_u32 m0, {sM0P}, {sl+5120}", Ins(f"buffer_load_dwordx4 {v(VWu[0])}, {WU}, {sWC[i]} offen offset:0 {cfg.sc_g1} lds", tag)])
            L.append(Ins(f"buffer_load_dwordx4 {v(VWu[1])}, {WU}, {sWC[i]} offen offset:1024 {cfg.sc_g1} lds", tag))
            for rt in range(N1): L.append(xl(rt, i, rt, f"s_add_u32 m0, {sM0P}, {sl}\n" if rt == 0 else ""))
        else:
            T = i - 7 + N1
            for k in range(7): L.append(xl(T, k, k % 4, f"s_add_u32 m0, {sM0P}, {sl+1024*k}\n" if k % 4 == 0 else ""))
        return L
    first = dma_item(0) + dma_item(1)
    P.add(first[:cfg.n_pre]); late_first = first[cfg.n_pre:]
    ske = srd_hi(SK, 4096) + lines(f"""s_lshr_b32 s3, {sW}, 1
        s_lshl_b32 {sM}, s2, 1
        s_add_u32 {sM}, {sM}, s3
        s_lshl_b32 s3, {sM}, 12
        s_add_u32 s20, s20, s3
        s_addc_u32 s21, s21, 0
        s_and_b32 s3, {sW}, 1
        s_lshl_b32 s3, s3, 11
        v_lshl_add_u32 {v(VSK[0])}, {v(VL)}, 4, s3
        v_add_u32 {v(VSK[1])}, -16, {v(VSK[0])}
        v_add_u32 {v(VSK[2])}, 1008, {v(VSK[0])}
        buffer_load_dwordx4 {v(HR,4)}, {v(VSK[1])}, {SK}, 0 offen
        buffer_load_dwordx4 {v(HR+4,4)}, {v(VSK[0])}, {SK}, 0 offen
        buffer_load_dwordx4 {v(HR+8,4)}, {v(VSK[2])}, {SK}, 0 offen
        buffer_load_dwordx4 {v(HR+12,4)}, {v(VSK[0])}, {SK}, 0 offen offset:1024""")
    if cfg.sk_early and cfg.sk_pos == 0: P.add(ske)
    if cfg.aux_head: P.e("s_branch L_mainc\n L_auxhead:\n L_mainc:")
    if not cfg.pass_stamps: P.add(stamp("issued"))
    P.e(f"""
    s_lshl_b32 s3, s2, 2
    s_load_dword {sD}, {pD}, s3
    v_lshlrev_b32 {v(T3)}, 1, {v(T2)}
    v_xor_b32 {v(T3)}, {v(T1)}, {v(T3)}
    v_lshlrev_b32 {v(T3)}, 4, {v(T3)}
    v_mul_u32_u24 {v(VD[0])}, 896, {v(T0)}
    v_add_u32 {v(VD[0])}, {v(VD[0])}, {v(T3)}
    v_add_u32 {v(VX[3])}, -3072, {v(VX[0])}
    v_and_b32 {v(T0)}, 31, {v(VL)}
    v_lshrrev_b32 {v(T1)}, 3, {v(T0)}
    v_mul_u32_u24 {v(T1)}, {PIECE}, {v(T1)}
    v_and_b32 {v(T2)}, 7, {v(T0)}
    v_lshl_add_u32 {v(T1)}, {v(T2)}, 7, {v(T1)}
    v_lshrrev_b32 {v(T2)}, 1, {v(T0)}
    v_and_b32 {v(T2)}, 7, {v(T2)}
    v_lshrrev_b32 {v(T3)}, 5, {v(VL)}
    v_xor_b32 {v(T2)}, {v(T2)}, {v(T3)}
    v_lshl_add_u32 {v(XR[0][0])}, {v(T2)}, 4, {v(T1)}
    """)
    for k in range(1, 4): P.e(f"v_xor_b32 {v(XR[0][k])}, {32*k}, {v(XR[0][0])}")
    for k in range(4): P.e(f"v_add_u32 {v(XR[1][k])}, {3*SLOT}, {v(XR[0][k])}")
    P.e(f"""
    v_bfe_u32 {v(T0)}, {v(VL)}, 2, 2
    v_lshl_add_u32 {v(T1)}, {v(T3)}, 3, {v(T0)}
    v_lshlrev_b32 {v(T1)}, 7, {v(T1)}
    v_bfe_u32 {v(T2)}, {v(VL)}, 1, 1
    v_lshl_add_u32 {v(T1)}, {v(T2)}, 11, {v(T1)}
    v_lshlrev_b32 {v(T2)}, 1, {v(T2)}
    v_lshrrev_b32 {v(T0)}, 1, {v(T0)}
    v_add_u32 {v(T2)}, {v(T2)}, {v(T0)}
    v_xor_b32 {v(T2)}, {sW}, {v(T2)}
    v_lshl_add_u32 {v(T1)}, {v(T2)}, 5, {v(T1)}
    v_bfe_u32 {v(T2)}, {v(VL)}, 4, 1
    v_lshl_add_u32 {v(T1)}, {v(T2)}, 4, {v(T1)}
    v_and_b32 {v(T2)}, 1, {v(VL)}
    v_lshl_add_u32 {v(T1)}, {v(T2)}, 3, {v(T1)}
    v_add_u32 {v(WR[0])}, 3072, {v(T1)}
    v_add_u32 {v(WR[1])}, {2*SLOT}, {v(WR[0])}
    """)
    if cfg.sk_early and cfg.sk_pos == 1: P.add(ske)
    for i in range(2, 7): P.add(ch_tab(i))
    for t in range(N1, 8): P.add(to_tab(t))
    S = []
    S += lines(f"""
    v_bfe_u32 {v(T1)}, {v(VL)}, 2, 2
    v_lshl_add_u32 {v(T1)}, {v(T3)}, 2, {v(T1)}
    v_lshlrev_b32 {v(T1)}, 7, {v(T1)}
    s_lshr_b32 s3, {sW}, 1
    v_xor_b32 {v(T2)}, s3, {v(T0)}
    v_lshl_add_u32 {v(T1)}, {v(T2)}, 6, {v(T1)}
    v_bfe_u32 {v(T2)}, {v(VL)}, 4, 1
    v_lshl_add_u32 {v(T1)}, {v(T2)}, 5, {v(T1)}
    v_and_b32 {v(T2)}, 3, {v(VL)}
    v_lshl_add_u32 {v(T1)}, {v(T2)}, 3, {v(T1)}
    s_and_b32 s3, {sW}, 1
    s_lshl_b32 s3, s3, 5
    v_xor_b32 {v(T1)}, s3, {v(T1)}
    v_add_u32 {v(DR[0][0])}, {sM0P}, {v(T1)}
    v_xor_b32 {v(DR[0][1])}, 64, {v(DR[0][0])}
    v_add_u32 {v(DR[1][0])}, {2*SLOT}, {v(DR[0][0])}
    v_add_u32 {v(DR[1][1])}, {2*SLOT}, {v(DR[0][1])}
    v_add_u32 {v(VD[1])}, 6144, {v(VD[0])}
    v_add_u32 {v(VD[2])}, {2*6144}, {v(VD[0])}
    v_add_u32 {v(VD[3])}, {3*6144}, {v(VD[0])}
    v_lshlrev_b32 {v(V16)}, 4, {v(VL)}
    s_mul_i32 s3, {sT2}, 28
    s_add_u32 s3, s3, {sT1}
    s_add_u32 s3, s3, 256
    s_lshl_b32 {sFL}, s3, 7
    v_mov_b32 {v(vARR)}, -16
    v_cmp_eq_u32 vcc, 0, v0
    v_min_u32 {v(vP8)}, 7, {v(VL)}
    v_min_u32 {v(vP7)}, 6, {v(VL)}
    v_cndmask_b32 {v(vARR)}, {v(vARR)}, 0, vcc
    v_mov_b32 {v(vONE)}, 1
    s_lshl_b32 s3, {sW}, 3
    v_add_lshl_u32 {v(vP8)}, {v(vP8)}, s3, 7
    s_mul_i32 s3, {sW}, 7
    v_add_lshl_u32 {v(vP7)}, {v(vP7)}, s3, 7
    s_mul_i32 {sWB}, {sT2}, {8*112}
    s_lshl_b32 s3, {sT1}, 2
    s_add_u32 {sWB}, {sWB}, s3
    s_add_u32 {sWB}, {sWB}, {sW}
    s_lshl_b32 {sWB}, {sWB}, 10
    s_add_u32 {sWB}, {sWB}, {WS_H}
    s_mul_i32 {sDB}, {sW}, {448*896}
    s_lshl_b32 s3, {sCT}, 7
    s_add_u32 {sDB}, {sDB}, s3
    s_and_b32 s3, s2, 7
    s_add_u32 {sRG}, {sCT}, s3
    s_and_b32 s3, {sI2}, 3
    s_lshr_b32 s3, s3, {cfg.gq_sh}
    s_mul_i32 s3, s3, {cfg.gq_mul}
    s_add_u32 {sRG}, {sRG}, s3
    """)
    S += mod7(sRG) if cfg.rot_g else [f"s_mov_b32 {sRG}, 0"]
    S += [f"s_mov_b32 {sR}, {sRG}"]
    for i in range(7):
        S += [f"s_mul_i32 s3, {sR}, {0 if cfg.hack_wd else 57344}", f"s_add_u32 {sDG[i]}, s3, {sDB}"] + (rot_next(sR) if i < 6 else [])
    S += srd_hi(WD, NW) + srd_hi(WS, WS_SIZE) + srd_hi(SK, 4096) + srd_hi(OUT, NQ)
    S += lines(f"""
    s_lshr_b32 {sT2}, {sW}, 1
    s_and_b32 {sKH}, {sW}, 1
    s_lshl_b32 {sM}, s2, 1
    s_add_u32 {sM}, {sM}, {sT2}
    s_lshl_b32 s3, {sM}, 12""") + ([] if cfg.sk_early else [f"s_add_u32 s20, s20, s3\n s_addc_u32 s21, s21, 0"]) + lines(f"""
    s_mov_b32 {sNL2E}, 0xbfb8aa3b
    s_mov_b32 {sMASK}, 0xffff0000
    s_mov_b32 {sONE}, 1
    """)
    S2 = lines(f"""
    s_mov_b32 {sHS}, {sWB}
    s_lshl_b32 {sU}, {sKH}, 11
    v_add_u32 {v(VSK[0])}, {sU}, {v(V16)}
    v_add_u32 {v(VSK[1])}, -16, {v(VSK[0])}
    v_add_u32 {v(VSK[2])}, 1008, {v(VSK[0])}
    s_mul_i32 {sT0}, {sT2}, {HCCH}
    s_add_u32 {sT0}, {sT0}, {HC}
    s_mul_i32 {sT1}, {sT2}, {UCH}
    s_add_u32 {sT1}, {sT1}, {UL}
    s_add_u32 s3, {sU}, {sT0}
    s_add_u32 s3, s3, 32
    v_add_u32 {v(VHW)}, s3, {v(V16)}
    v_and_b32 {v(T0)}, 15, {v(VL)}
    v_lshrrev_b32 {v(T1)}, 4, {v(VL)}
    v_sub_u32 {v(T2)}, 3, {v(T0)}
    v_and_b32 {v(T2)}, 3, {v(T2)}
    v_add3_u32 {v(T3)}, {v(T0)}, {v(T2)}, 1
    v_lshl_add_u32 {v(T3)}, {v(T1)}, 3, {v(T3)}
    v_lshlrev_b32 {v(T3)}, 1, {v(T3)}
    v_mul_u32_u24 {v(T2)}, {CPY}, {v(T2)}
    s_lshl_b32 s3, {sKH}, 8
    s_add_u32 {sT0}, {sT0}, s3
    v_add3_u32 {v(CA)}, {v(T2)}, {v(T3)}, {sT0}
    v_lshlrev_b32 {v(T0)}, 5, {v(T0)}
    v_lshlrev_b32 {v(T1)}, 4, {v(T1)}
    v_sub_u32 {v(T1)}, {v(T1)}, {v(T0)}
    s_add_u32 s3, s3, {sT1}
    s_add_u32 s3, s3, 480
    v_add_u32 {v(CB)}, s3, {v(T1)}
    s_add_u32 {sPA}, {sT1}, {sU}
    s_lshl_b32 s3, {sM}, 12
    s_add_u32 {sU}, {sU}, s3
    v_mov_b32 {v(VZ)}, 0
    v_mov_b32 {v(VZ+1)}, 0
    v_mov_b32 {v(VZ+2)}, 0
    v_mov_b32 {v(VZ+3)}, 0
    v_lshrrev_b32 {v(T0)}, 5, {v(VL)}
    v_mul_u32_u24 {v(T0)}, {UCH}, {v(T0)}
    v_and_b32 {v(T1)}, 31, {v(VL)}
    v_lshl_add_u32 {v(T0)}, {v(T1)}, 4, {v(T0)}
    v_add_u32 {v(T0)}, {UL+4096}, {v(T0)}
    ds_write_b128 {v(T0)}, {v(VZ,4)}
    v_and_b32 {v(T0)}, 15, {v(VL)}
    v_lshrrev_b32 {v(T1)}, 1, {v(T0)}
    v_mul_u32_u24 {v(T1)}, {CPY}, {v(T1)}
    v_and_b32 {v(T0)}, 1, {v(T0)}
    v_lshl_add_u32 {v(T0)}, {v(T0)}, 4, {v(T1)}
    v_add_u32 {v(VHZ)}, {HC}, {v(T0)}
    s_mul_i32 {sT0}, {sI2}, 224
    s_mul_i32 s3, {sW}, 28
    s_add_u32 {sT0}, {sT0}, s3
    s_lshl_b32 {sT0}, {sT0}, 10
    s_add_u32 {sHL[0]}, {sT0}, {WS_H}
    s_add_u32 {sHL[1]}, {sT0}, {WS_H + 112*1024}
    """)
    skl = [f"buffer_load_dwordx4 {v(HR,4)}, {v(VSK[1])}, {SK}, 0 offen", f"buffer_load_dwordx4 {v(HR+4,4)}, {v(VSK[0])}, {SK}, 0 offen",
           f"buffer_load_dwordx4 {v(HR+8,4)}, {v(VSK[2])}, {SK}, 0 offen", f"buffer_load_dwordx4 {v(HR+12,4)}, {v(VSK[0])}, {SK}, 0 offen offset:1024"]

    VRW = 224; VRR = 225; VUR = 226; VYS = 227; VY = [228, 229]; VQ = [230, 231]; VGA = 232
    EWA = 233; ERA = [234, 235, 236]; EWB = 237; ERB = [238, 239, 240]; EY = 241; EQ = [242, 243]; EO = 244
    VG = [26, 27]; OMG = [40, 41]; RA = HC + 8192; sO = ["s62", "s63"]; sQS = "s66"; sYS = "s93"
    S3 = lines(f"""
    s_lshl_b32 s3, {sW}, 12
    s_add_u32 s3, s3, {HC}
    v_add_u32 {v(VRW)}, s3, {v(V16)}
    v_xor_b32 {v(VRR)}, 4096, {v(VRW)}
    v_and_b32 {v(T3)}, 15, {v(VL)}
    v_lshlrev_b32 {v(T3)}, 5, {v(T3)}
    v_lshrrev_b32 {v(T2)}, 4, {v(VL)}
    v_lshl_add_u32 {v(T3)}, {v(T2)}, 3, {v(T3)}
    s_lshr_b32 s3, {sW}, 1
    s_mul_i32 s3, s3, {UCH}
    s_lshl_b32 {sT0}, {sKH}, 11
    s_sub_u32 s3, s3, {sT0}
    s_add_u32 s3, s3, {UL+504+2048}
    v_sub_u32 {v(VUR)}, s3, {v(T3)}
    v_and_b32 {v(T1)}, 3, {v(VL)}
    v_lshlrev_b32 {v(T1)}, 4, {v(T1)}
    v_bfe_u32 {v(T3)}, {v(VL)}, 2, 2
    v_lshl_add_u32 {v(T1)}, {v(T3)}, 7, {v(T1)}
    v_bfe_u32 {v(T3)}, {v(VL)}, 4, 1
    v_lshl_add_u32 {v(T1)}, {v(T3)}, 9, {v(T1)}
    v_lshrrev_b32 {v(T3)}, 5, {v(VL)}
    v_lshl_add_u32 {v(VYS)}, {v(T3)}, 6, {v(T1)}
    """)
    S3_marks = [0, len(S3)]
    S3 += lines(f"""
    v_lshrrev_b32 {v(T1)}, 3, {v(VL)}
    v_and_b32 {v(T2)}, 7, {v(VL)}
    v_lshlrev_b32 {v(T3)}, 12, {v(T1)}
    v_lshl_add_u32 {v(VY[0])}, {v(T2)}, 4, {v(T3)}
    v_add_u32 {v(VY[1])}, {32768-1024}, {v(VY[0])}
    v_lshrrev_b32 {v(T3)}, 4, {v(VL)}
    v_xor_b32 {v(T2)}, {v(T2)}, {v(T3)}
    v_lshlrev_b32 {v(T2)}, 4, {v(T2)}
    v_mul_u32_u24 {v(T1)}, 896, {v(T1)}
    v_add_u32 {v(VQ[0])}, {v(T1)}, {v(T2)}
    v_xor_b32 {v(T2)}, 64, {v(T2)}
    v_add_u32 {v(T1)}, {7168-1024}, {v(T1)}
    v_add_u32 {v(VQ[1])}, {v(T1)}, {v(T2)}
    s_lshl_b32 s3, {sI2}, 8
    s_add_u32 s3, s3, {WS_G}
    v_and_b32 {v(T1)}, 31, {v(VL)}
    v_lshl_add_u32 {v(VGA)}, {v(T1)}, 2, s3
    s_lshl_b32 s3, {sI2}, 2
    s_add_u32 s3, s3, {sW}
    s_mul_i32 s3, s3, {16*896}
    s_lshl_b32 {sQS}, {sCT}, 7
    s_add_u32 {sQS}, {sQS}, s3
    s_add_u32 {sQS}, {sQS}, {XB}
    """)
    ea = [f"s_mul_i32 {sT0}, {sW}, 6144", f"s_add_u32 s3, {sT0}, {RA}", f"v_add_u32 {v(EWA)}, s3, {v(V16)}", f"v_add_u32 {v(EWB)}, {sM0P}, {v(V16)}"]
    for sg in range(1, 4):
        ea += [f"s_xor_b32 {sT0}, {sW}, {sg}", f"s_mul_i32 s3, {sT0}, 6144", f"s_add_u32 s3, s3, {RA + 2048*(sg-1)}", f"v_add_u32 {v(ERA[sg-1])}, s3, {v(V16)}",
               f"s_mul_i32 s3, {sT0}, {PIECE}", f"s_add_u32 s3, s3, {(sg-1)*SLOT}", f"v_add_u32 {v(ERB[sg-1])}, s3, {v(V16)}"]
    ea += lines(f"""v_bfe_u32 {v(T1)}, {v(VL)}, 2, 2
    v_lshrrev_b32 {v(T2)}, 5, {v(VL)}
    v_lshl_add_u32 {v(T1)}, {v(T2)}, 2, {v(T1)}
    v_lshlrev_b32 {v(T1)}, 7, {v(T1)}
    v_bfe_u32 {v(T3)}, {v(VL)}, 1, 1
    v_lshl_add_u32 {v(T1)}, {v(T3)}, 6, {v(T1)}
    v_bfe_u32 {v(T3)}, {v(VL)}, 4, 1
    v_lshl_add_u32 {v(T1)}, {v(T3)}, 4, {v(T1)}
    v_and_b32 {v(T3)}, 1, {v(VL)}
    v_lshl_add_u32 {v(T1)}, {v(T3)}, 3, {v(T1)}
    s_lshl_b32 s3, {sW}, 11
    s_add_u32 s3, s3, {YL}
    v_add_u32 {v(EY)}, s3, {v(T1)}
    v_and_b32 {v(T1)}, 31, {v(VL)}
    v_bfe_u32 {v(T3)}, {v(VL)}, 1, 3
    s_lshl_b32 s3, {sW}, 1
    v_xor_b32 {v(T3)}, s3, {v(T3)}
    v_lshlrev_b32 {v(T3)}, 4, {v(T3)}
    v_lshl_add_u32 {v(T3)}, {v(T1)}, 7, {v(T3)}
    v_lshl_add_u32 {v(T3)}, {v(T2)}, 3, {v(T3)}
    v_add_u32 {v(EQ[0])}, {QL}, {v(T3)}
    v_xor_b32 {v(EQ[1])}, 16, {v(EQ[0])}
    v_mul_u32_u24 {v(T1)}, 896, {v(T1)}
    v_lshl_add_u32 {v(EO)}, {v(T2)}, 4, {v(T1)}
    s_mul_i32 {sO[0]}, {sI2}, {64*896}
    s_lshl_b32 s3, {sCT}, 2
    s_add_u32 s3, s3, {sW}
    s_lshl_b32 {sT0}, s3, 5
    s_add_u32 {sO[0]}, {sO[0]}, {sT0}
    s_add_u32 {sO[1]}, {sO[0]}, {32*896}
    s_lshl_b32 s3, s3, 16
    s_lshl_b32 {sYS}, {sI2}, 7
    s_add_u32 {sYS}, {sYS}, s3
    s_add_u32 {sYS}, {sYS}, {WS_YT}""")
    if cfg.ytag:
        S3 += lines(f"""s_lshr_b32 s3, {sI2}, 2
        s_mul_i32 s3, s3, {28*128}
        s_add_u32 s3, s3, {768*128}
        v_add_u32 {v(246)}, s3, {v(vP7)}
        v_subrev_u32 {v(T1)}, 8, {v(VL)}
        v_min_u32 {v(T1)}, 7, {v(T1)}
        s_lshl_b32 s3, {sCT}, 2
        s_add_u32 s3, s3, {sW}
        s_lshl_b32 s3, s3, 3
        s_add_u32 s3, s3, 512
        v_add_lshl_u32 {v(T1)}, {v(T1)}, s3, 7
        v_cmp_gt_u32 vcc, 8, {v(VL)}
        v_mov_b32 {v(204)}, -1
        v_mov_b32 {v(205)}, -1
        v_cndmask_b32 {v(246)}, {v(T1)}, {v(246)}, vcc
        v_mov_b32 {v(206)}, -1
        v_mov_b32 {v(207)}, -1""")
    S3 += lines(f"""s_xor_b32 s3, {sKH}, 1
    s_lshl_b32 s3, s3, 4
    v_min_u32 {v(247)}, 15, {v(VL)}
    v_add_lshl_u32 {v(247)}, {v(247)}, s3, 7""")
    S3_marks.append(len(S3))
    S3 += ea + [f"v_add_u32 {v(245)}, 57344, {v(EWB)}"]
    NG = 224
    G = Gaps(NG)
    def item_start(i): return CH * i if i <= 7 else P1 + 28 * (i - 7)
    gT = lambda T: item_start(T + 7 - N1)
    def xread(g):
        if g < P1: c = g // CH; ks = (g % CH) // N1; unit = g % N1; it = c
        else: it = 7 + (g - P1) // 28; k = (g - P1) % 28; ks = k % 4; unit = k // 4
        sl = slot_of(it); hi = 1 if sl >= 3 else 0
        off = (sl - 3 * hi) * SLOT + 1024 * unit
        return f"ds_read_b128 {v(XRING+4*(g%NXR),4)}, {v(XR[hi][ks])} offset:{off}"
    def wread(c, ks):
        sl = c % 4; var = sl // 2; off = (sl - 2 * var) * SLOT + PIECE * ks; f = 4 * (4 * c + ks)
        return [f"ds_read_b64_tr_b16 {a(f+2*rd,2)}, {v(WR[var])} offset:{off+512*rd}" for rd in range(2)]
    tile_acc = {0: 0, 1: 1, 2: 2, 3: 3, 4: 0, 5: 1, 6: 2, 7: 3}
    for g in range(NG):
        if g < P1: c = g // CH; ks = 4 * c + (g % CH) // N1; T = g % N1
        else: T = N1 + (g - P1) // 28; ks = (g - P1) % 28
        A = v(ACC[tile_acc[T]], 16)
        G.m[g] = f"v_mfma_f32_32x32x16_bf16 {A}, {a(4*ks,4)}, {v(XRING+4*(g%NXR),4)}, {'0' if ks == 0 else A}"
    pre = []
    def at(g, item):
        if g < 0: pre.append(item)
        else: G.put(g, item)
    gB = lambda i: item_start(i) - PD - 1
    if not cfg.hack_p: G.put(cfg.p_load, poll_load("p", "0"))
    G.put(cfg.p_chk, [stamp("prepoll") if not (cfg.pass_stamps or cfg.start_stamps) else [], [] if cfg.hack_p else poll_check("p", "0"), [] if cfg.p_nobar else Ins("s_barrier")])
    for i in range(NI):
        at(gB(i), [WaitTag('vm', "it%d" % i), Ins("s_barrier")])
    assert cfg.z_chk < cfg.p_load
    G.put(cfg.z_load, poll_load("z", None))
    G.f[cfg.z_chk].insert(0, [stamp("zpre") if not (cfg.pass_stamps or cfg.start_stamps) else [], poll_check("z", None), stamp("zpost") if not (cfg.pass_stamps or cfg.start_stamps) else []])
    for g in range(NG):
        if g < P1 and g % N1 == 0:
            for s_ in wread(g // CH, (g % CH) // N1): at(g - PD - 1, s_)
        at(g - PD - 1, xread(g))
    cb = cfg.blk_c; deep = cfg.blk_deep and cb is not None
    for c in range(7):
        if deep:
            if c < cb: G.spread(dma_item(c + 2), max(gB(c) + 1, 0), gB(c + 1) + 1)
            if c > cb: G.put(12 * c, Ins("s_barrier")); G.spread(dma_item(c + 3), 12 * c + 1, 12 * c + 12)
        elif c != cb or not cfg.blk_dma: G.spread(dma_item(c + 2), max(gB(c) + 1, 0), gB(c + 1) + 1)
    for T in range(5 if cfg.no_x else N1, 8): G.put(gT(T), ([WaitTag('lgkm', "hcw")] if T == 7 else []) + [Ins("s_barrier")])
    if deep: G.spread(dma_item(10), gT(3) + 1, gT(3) + 20)
    elif cfg.more >= 2:
        for i, r_ in zip(range(9, 13), cfg.m2['x']): G.spread(dma_item(i), *r_)
    elif cfg.no_x:
        for i in range(9, NI): G.spread(dma_item(i), gB(i - 2) + 1, gB(i - 2) + 22)
    else: G.spread(dma_item(9) + dma_item(10), *(cfg.i910 or (gB(7) + 1, gB(8) + 1)))
    if not cfg.no_x and cfg.more < 2:
        for i in range(11, NI):
            j_ = i - 2 if (cfg.reslot and i == NI - 1) else i - 3
            g0_ = max(item_start(j_) + 1, cfg.i910[1] if cfg.i910 else 0)
            G.spread(dma_item(i), g0_, min(g0_ + 19, item_start(j_ + 1)))
    if cfg.odd_touch and cfg.odd_touch is not True: G.put(cfg.odd_touch, f"buffer_load_dword {v(208)}, {v(203)}, {X}, {sCH[0]} offen")
    if cfg.wd_touch >= 0: G.put(cfg.wd_touch, f"buffer_load_dword {v(202)}, {v(200)}, {WD}, 0 offen {cfg.sc_wd}")
    for g_, n_ in (cfg.hack_sleep or []): G.put(g_, "s_sleep %d" % n_)
    if cfg.sk_at >= 0: G.spread(skl, cfg.sk_at, cfg.sk_at + 8)
    hv = []
    for rho in range(2):
        R = HR + 8 * rho; C_ = HCP + 12 * rho
        for k in range(4): hv.append(f"v_alignbit_b32 {v(C_+k)}, {v(R+4+k)}, {v(R+3+k)}, 16")
        for k in range(4): hv.append(f"v_mov_b32 {v(C_+4+k)}, {v(R+3+k)}")
        for k in range(4): hv.append(f"v_alignbit_b32 {v(C_+8+k)}, {v(R+3+k)}, {v(R+2+k)}, 16")
    hw = [Ins(f"ds_write_b128 {v(VHZ)}, {v(VZ,4)}", "hcw")]
    for rho in range(2):
        R = HR + 8 * rho; C_ = HCP + 12 * rho
        for cpy, src in enumerate((R + 4, C_, C_ + 4, C_ + 8)):
            hw.append(Ins(f"ds_write_b128 {v(VHW)}, {v(src,4)} offset:{cpy*CPY+1024*rho}", "hcw"))
    def epi(T, packed=False):
        A = ACC[tile_acc[T]]; Pk = PK[T % 2]; L = []
        for grp in range(2):
            g_ = A + 8 * grp; u_ = g_ + 4; E = ET
            if packed:
                E = ET if grp == 0 else HR
                L += [f"v_mul_f32 {v(E+i)}, {sNL2E}, {v(g_+i)}" for i in range(4)]
                L += [f"v_exp_f32 {v(E+i)}, {v(E+i)}" for i in range(4)]
                L += [f"v_pk_mul_f32 {v(u_+2*i,2)}, {v(g_+2*i,2)}, {v(u_+2*i,2)}" for i in range(2)]
                L += [f"v_pk_add_f32 {v(E+2*i,2)}, {v(E+2*i,2)}, 1.0 op_sel_hi:[1,0]" for i in range(2)]
                L += [f"v_rcp_f32 {v(E+i)}, {v(E+i)}" for i in range(4)]
                L += [f"v_pk_mul_f32 {v(u_+2*i,2)}, {v(u_+2*i,2)}, {v(E+2*i,2)}" for i in range(2)]
            else:
                L += [f"v_mul_f32 {v(E+i)}, {sNL2E}, {v(g_+i)}" for i in range(4)]
                L += [f"v_exp_f32 {v(E+i)}, {v(E+i)}" for i in range(4)]
                L += [f"v_mul_f32 {v(u_+i)}, {v(g_+i)}, {v(u_+i)}" for i in range(2)]
                L += [f"v_add_f32 {v(E+i)}, 1.0, {v(E+i)}" for i in range(4)]
                L += [f"v_rcp_f32 {v(E+i)}, {v(E+i)}" for i in range(4)]
                L += [f"v_mul_f32 {v(u_+i)}, {v(g_+i)}, {v(u_+i)}" for i in range(2, 4)]
                L += [f"v_mul_f32 {v(u_+i)}, {v(u_+i)}, {v(E+i)}" for i in range(4)]
            L += [f"v_cvt_pk_bf16_f32 {v(Pk+2*grp+i)}, {v(u_+2*i)}, {v(u_+2*i+1)}" for i in range(2)]
        L.append(f"s_lshl2_add_u32 {sSO2}, {sTO[T]}, {sHS}")
        L.append(Ins(f"buffer_store_dwordx4 {v(Pk,4)}, {v(V16)}, {WS}, {sSO2} offen {cfg.sc_h}", "hst%d" % T))
        return L
    page_slot = [(T + 7 - N1) % 4 for T in ((3, 5, 6, 4) if cfg.reslot else (4, 5, 6, 7))]
    if cfg.more >= 2: page_slot = [2, 3, 0, 1]
    WG_ = ({0: (0, None), 1: (1, None), 2: (0, 0), 3: (2, None), 4: (3, None), 5: (1, 1), 6: (0, 2), 7: (2, 3)} if cfg.reslot else
           {0: (0, None), 1: (1, None), 2: (2, None), 3: (0, 0), 4: (3, None), 5: (1, 1), 6: (2, 2), 7: (0, 3)})
    if cfg.more: WG_ = {0: (0, None), 1: (0, 0), 2: (1, None), 3: (2, None), 4: (0, 1), 5: (3, None), 6: (1, 2), 7: (2, 3)}
    if cfg.more >= 2: WG_ = {0: (0, None), 1: (0, 0), 2: (0, 1), 3: (0, 2), 4: (1, None), 5: (2, None), 6: (0, 3), 7: (3, None)}
    def wd_page(n): return 7 * WG_[n // 7][0] + n % 7
    def wd_prev(n): return None if WG_[n // 7][1] is None else 7 * WG_[n // 7][1] + n % 7
    def wd_dma(n0, n1):
        L = []; n = n0
        while n < n1:
            p = wd_page(n); cnt = min(4, n1 - n, 7 - p % 7, 8 - n % 8)
            lds = page_slot[p // 7] * SLOT + 1024 * (p % 7)
            for k in range(cnt):
                it = [Ins(f"buffer_load_dwordx4 {v(VD[k])}, {WD}, {sSO} offen offset:{1024*k} {cfg.sc_wd} lds", "wd%d" % (n + k))]
                if wd_prev(n + k) is not None: it = [WaitTag('lgkm', "wr%d" % wd_prev(n + k))] + it
                if k == 0: L.append(f"s_add_u32 m0, {sM0P}, {lds}\n s_add_u32 {sSO}, {sDG[n >> 3]}, {7168*(n % 8)}")
                L.append(it)
            n += cnt
        return L
    def wd_read(n, dst):
        p = wd_page(n); sl = page_slot[p // 7]; hi = 1 if sl >= 2 else 0
        off = (sl - 2 * hi) * SLOT + 1024 * (p % 7)
        return [[WaitTag('vm', "wd%d" % n)] * (dt == 0 and not 28 <= n < 28 + cfg.n_raw) + [Ins(f"ds_read_b64_tr_b16 {dst(dt)}, {v(DR[hi][dt])} offset:{off}", "wr%d" % n)] for dt in range(2)]
    WD1 = 112
    NR = cfg.n_raw; RAW0 = 224 - 4 * NR; EWH = 245
    def raw_reg(n): return RAW0 + 4 * (NR - 1 - (n - 28))
    def raw_loads(n0, n1):
        L = []; n = n0
        while n < n1:
            cnt = min(4, n1 - n, 8 - n % 8)
            L.append(f"s_add_u32 {sSO}, {sDG[n >> 3]}, {7168*(n % 8)}")
            L += [f"buffer_load_dwordx4 {v(raw_reg(n+k),4)}, {v(VD[k])}, {WD}, {sSO} offen offset:{1024*k}" for k in range(cnt)]
            n += cnt
        return L
    def raw_write(n):
        p = wd_page(n); off = page_slot[p // 7] * SLOT + 1024 * (p % 7)
        it = [Ins(f"ds_write_b128 {v(EWB if off < 57344 else EWH)}, {v(raw_reg(n),4)} offset:{off if off < 57344 else off - 57344}", "ww%d" % n)]
        return [it]
    def fill_units(n0, n1):
        m = min(max(28 + NR, n0), n1)
        return [x for n in range(n0, m) for x in raw_write(n)] + wd_dma(m, n1)
    def wd1(n): return lambda dt: a(WD1 + 8 * (n >> 1) + 4 * dt + 2 * (n & 1), 2)
    def wd_reads(n0, n1): return [x for n in range(n0, n1) for x in wd_read(n, wd1(n))]
    preblk = []
    if cfg.blk_c is None:
        if cfg.s3_at >= 0: l3_ = G.pour(S3, cfg.s3_at, cfg.hv_at, cfg.bud1); assert l3_ < 80
        lh = G.pour(hv, cfg.hv_at, min(max(P1 - 4, cfg.hv_at + 24), cfg.hw0 - 2), cfg.bud1 if cfg.hv_at < 70 else 20); assert lh < cfg.hw0
        G.spread(hw, cfg.hw0, cfg.hw1)
    else:
        n3 = len(S3) - (S3_marks + [len(S3)])[3 - cfg.blk_s3]; S3b = S3[len(S3) - n3:]; del S3[len(S3) - n3:]
        work = [hw[0], hv[0:4], hw[1], hv[4:8], hw[2], hv[8:12], hw[3], hv[12:16], hw[4], hv[16:20], hw[5], hv[20:24], hw[6], S3b[:5], hw[7], S3b[5:10], hw[8], S3b[10:]]
        d_ = dma_item(cfg.blk_c + 2) if cfg.blk_dma else []; blk = []
        if deep:
            G.spread(d_[:4], gB(cb) + 1, 12 * cb); d_ = d_[4:] + dma_item(cb + 3); blk = [Ins("s_barrier")]
        step_ = max(len(work) // (len(d_) + 1), 1)
        for j, it in enumerate(work):
            if j % step_ == 0 and d_: blk.append(d_.pop(0))
            blk.append(it)
        if cfg.blk_list:
            done_ = 0
            for g_, nw_ in cfg.blk_list:
                k_ = min(len(blk), done_ + 2 * nw_) if (g_, nw_) != cfg.blk_list[-1] else len(blk)
                G.put(g_, blk[done_:k_]); done_ = k_
        elif cfg.blk_g2: G.put(cfg.blk_g, blk[:9]); G.put(cfg.blk_g2, blk[9:])
        elif cfg.blk_g < 0: preblk = blk
        else: G.put(12 * cb if deep else (gB(cb) + 1 if cfg.blk_dma else cfg.blk_g), blk + d_)
    if NR:
        r0, r1, r2 = 28, 28 + min(NR, 6), 28 + min(NR, 6 + (NR - 6 + 1) // 2)
        assert cfg.hw1 <= gT(5) + 8 or NR <= 6
        G.spread(raw_loads(r0, r1), gT(4) + 21 - 12, gT(5))
        G.spread(wd_dma(0, 7), gT(5) + 1, gT(5) + 15); G.spread(raw_loads(r1, r2), gT(5) + 15, gT(6))
        G.spread(wd_dma(7, 14), gT(6) + 1, gT(6) + 15); G.spread(raw_loads(r2, 28 + NR), gT(6) + 15, gT(7))
    elif cfg.more >= 2:
        for k_, r_ in cfg.m2['r'].items(): G.spread(wd_reads(7 * k_, 7 * k_ + 7), *r_)
        for k_, r_ in cfg.m2['d'].items(): G.spread(wd_dma(7 * k_, 7 * k_ + 7), *r_)
    elif cfg.more:
        G.spread(wd_dma(0, 7), gT(4) + 1, gT(4) + 18)
        G.spread(wd_reads(0, 7), gT(5) + 6, gT(5) + 20); G.spread(wd_dma(7, 14), gT(5) + 21, gT(6) + 8)
        G.spread(wd_dma(14, 21), gT(6) + 8, gT(7))
        G.spread(wd_reads(7, 14), gT(7) - 4, gT(7) + 10)
    elif cfg.reslot:
        G.spread(wd_dma(0, 7), gT(4) + 1, gT(4) + 24)
        G.spread(wd_reads(0, 7), gT(6) - 8, gT(6) + 8)
        G.spread(wd_dma(7, 17), gT(6) + 1, gT(7))
    else:
        G.spread(wd_dma(0, 7), gT(5) + 1, gT(5) + 22)
        G.spread(wd_dma(7, 14), gT(6) + 1, gT(6) + 20)
    UD = ([f"s_mov_b32 m0, {sPA}\n s_add_u32 {sSO}, {sU}, {WS_UR}"] + [Ins(f"buffer_load_dwordx4 {v(V16)}, {WS}, {sSO} offen offset:{1024*j} sc1 lds", "u") for j in range(2)])
    if not cfg.reslot: G.spread(wd_reads(0, 7), gB(NI - 1) + 2, gT(7) + 12)
    assert cfg.p_chk > gT(7) + 8
    if cfg.more >= 2: pass
    elif cfg.more: G.spread(wd_dma(21, 28), gT(7) + 1, cfg.p_chk)
    else: G.spread(wd_dma(17 if cfg.reslot else 14, 21), gT(7) + 1, cfg.p_chk)
    G.put(cfg.p_chk + 1, UD)
    if cfg.more < 2: G.spread(wd_dma(28, 35) if cfg.more else wd_dma(21, 28), cfg.p_chk + 2, NG - 1)
    bounds = [P1 + 2 + (NG - P1 - 4) * k // 7 for k in range(8)]
    last = 0
    for T in range(7):
        avail = (P1 if T < N1 else gT(T + 1)) + 2
        if cfg.epi_len: g0 = max(avail, last); g1_ = min(g0 + cfg.epi_len, NG - 1)
        else: g0 = max(bounds[T], avail, last); g1_ = max(bounds[T + 1], g0 + 1)
        last = G.pour(epi(T), g0, g1_, cfg.bud)
        if T == 3 and cfg.eo: assert last < cfg.a_arr - 4, last
        nxt = [t for t in range(T + 1, 8) if tile_acc[t] == tile_acc[T]]
        if nxt: assert last < gT(nxt[0]), (T, last)
    if cfg.eo:
        k_ = [i for i, it in enumerate(G.f[cfg.a_arr]) if isinstance(it, list) and any(isinstance(x, Ins) and x.op == "s_barrier" for x in it)][0]
        if not cfg.nosync: G.f[cfg.a_arr].insert(k_, WaitTag('vm', "hst3")); k_ += 1
        G.f[cfg.a_arr].insert(k_ + 1, [f"s_add_u32 {sT1}, {sFL}, {512*128}", arrive("hst3", sT1, False)])
        if cfg.ytag:
            G.put(cfg.pz_at, [f"s_add_u32 {sT0}, {sU}, {WS_YT}", f"buffer_store_dwordx4 {v(204,4)}, {v(V16)}, {WS}, {sT0} offen sc1"])
            G.put(cfg.pz_at + 3, f"buffer_store_dwordx4 {v(204,4)}, {v(V16)}, {WS}, {sT0} offen offset:1024 sc1")
            assert cfg.pz_at + 3 < gT(4)
            G.put(cfg.a_arr + 2, [f"s_lshl_b32 {sT0}, s2, 7\n s_add_u32 {sT0}, {sT0}, {512*128}", arrive("hst3", sT0, False)])
        if cfg.ytag: G.put(cfg.a_load - 1, f"s_mov_b32 {sT1}, 0")
        else:
            G.put(cfg.a_load - 2, f"s_lshr_b32 {sT1}, {sI2}, 2\n s_mul_i32 {sT1}, {sT1}, {28*128}")
            G.put(cfg.a_load - 1, f"s_add_u32 {sT1}, {sT1}, {768*128}")
        G.put(cfg.a_load, poll_load("a", sT1))
    check_m0(G)
    SS = S + S2; k0 = len(SS) * min(cfg.late_pos, 100) // 100
    touch = []
    if cfg.x_touch:
        touch = lines(f"""v_min_u32 {v(200)}, {8*cfg.x_touch-1}, {v(VL)}
        v_lshrrev_b32 {v(201)}, 3, {v(200)}
        s_lshl_b32 s3, {sFQ}, 1
        s_add_u32 s3, s3, 3
        v_add_u32 {v(201)}, {'s3' if cfg.rot_t else '3'}, {v(201)}
        v_and_b32 {v(201)}, 7, {v(201)}
        v_mul_u32_u24 {v(201)}, 28672, {v(201)}
        v_and_b32 {v(200)}, 7, {v(200)}
        v_mul_u32_u24 {v(200)}, 896, {v(200)}
        v_add3_u32 {v(200)}, {v(200)}, {v(201)}, {sXBc}
        buffer_load_dword {v(202)}, {v(200)}, {X}, {sCH[0]} offen""")
    kvt = lines(f"""s_lshl_b32 s3, s2, 2
    s_add_u32 s3, s3, {sW}
    s_lshl_b32 s3, s3, 4
    v_min_u32 {v(203)}, 15, {v(VL)}
    v_add_lshl_u32 {v(203)}, {v(203)}, s3, 7
    global_load_dword {v(204)}, {v(203)}, s[94:95]
    global_load_dword {v(205)}, {v(203)}, s[96:97]""")
    if cfg.sk_early and cfg.sk_pos == 2: P.add(ske)
    P.add(SS[:k0])
    if cfg.sk_early and cfg.sk_pos == 3: P.add(ske)
    if cfg.late_pos <= 100: P.add(late_first)
    if cfg.odd_touch:
        P.e(f"""v_and_b32 {v(203)}, 7, {v(VL)}
        v_mul_u32_u24 {v(203)}, 896, {v(203)}
        s_add_u32 s3, {sTO[4]}, {XB}
        v_add_u32 {v(203)}, s3, {v(203)}""")
        if cfg.odd_touch is True: P.e(f"buffer_load_dword {v(208)}, {v(203)}, {X}, {sCH[0]} offen")
    P.add(SS[k0:])
    if cfg.kv_touch == 1: P.add(kvt)
    if cfg.s3_at < 0: P.add(S3)
    if cfg.late_pos > 100: P.add(late_first)
    if cfg.kv_touch == 2: P.add(kvt)
    if cfg.trace: P.e('v_mov_b32 v253, 0')
    P.e(f"""s_lshl_b32 s3, s2, 2
    s_add_u32 s3, s3, {sW}
    s_mul_i32 s3, s3, 14
    v_min_u32 {v(200)}, 13, {v(VL)}
    v_add_lshl_u32 {v(200)}, {v(200)}, s3, 7""")
    if cfg.sk_at < 0 and not cfg.sk_early: P.add(skl)
    if cfg.tlb:
        P.e(f"""v_min_u32 {v(203)}, 12, {v(VL)}
        v_lshlrev_b32 {v(203)}, 20, {v(203)}
        v_add_u32 {v(203)}, 0x1f000, {v(203)}
        buffer_load_dword {v(204)}, {v(203)}, {WS}, 0 offen
        buffer_load_dword {v(205)}, {v(VZ)}, {OUT}, 0 offen
        buffer_load_dword {v(206)}, {v(VZ)}, {WD}, 0 offen""")
    if cfg.wd_touch == -2: P.e(f"buffer_load_dword {v(202)}, {v(200)}, {WD}, 0 offen {cfg.sc_wd}")
    if cfg.warm and cfg.stub_at:
        P.e("s_mov_b64 exec, 0")
        for k in range(min(4, len(cfg.stub_at))): P.e(f"s_cmp_eq_u32 {sW}, {k}\n s_cbranch_scc1 L_pg{k}")
        P.e("L_pgback:\n s_mov_b64 exec, -1")
    if cfg.start_stamps: P.add(stamp("setup"))
    P.e(f"""s_waitcnt lgkmcnt(0)
    s_lshl_b32 s3, {sD}, 16
    s_and_b32 {sD}, {sD}, 0xffff0000
    s_cmp_lt_u32 {sW}, 2
    s_cselect_b32 {sD}, s3, {sD}""")
    P.add(preblk)
    P.add(pre)
    P.add(stamp("g1start"))
    G.put(P1 - 1, stamp("p1end"))
    if cfg.pass_stamps:
        for T in (5, 6, 7): G.put(gT(T) - 1, stamp("T%d" % T))
    add_trace(G, 6, 'g', [94, 96])
    G.emit(P, cfg.pair)
    if cfg.verbose: print("G1 gap costs", G.costs())
    if cfg.start_stamps: P.e("v_readfirstlane_b32 s8, v156\n v_readfirstlane_b32 s10, v157"); STAMP_REGS['prewait'] = 8; STAMP_REGS['karg'] = 10
    P.add(stamp("g1end"))
    CACC = 48
    def cA(buf, a_): return (0 if buf == 0 else 64) + 4 * a_
    def cB(buf, b_):
        i = 32 + 4 * b_ if buf == 0 else 96 + 4 * b_
        return i if i < 112 else 224 + (i - 112)
    def crA(st, k): return [f"ds_read_b64 {a(cA(st&1,k)+2*rd,2)}, {v(CA)} offset:{512*k+64*st+8*rd}" for rd in range(2)]
    def crB(st, k): return [f"ds_read_b128 {a(cB(st&1,k),4)}, {v(CB)} offset:{64*st+512*(7-k)}"]
    def creads(st): return [x for k in range(8) for x in crB(st, k) + crA(st, k)]
    e7 = epi(7, True)
    if cfg.e7i:
        a_, b_ = e7[:20], e7[20:40]; e7n = []
        for lo, hi in ((0, 4), (4, 8), (8, 10), (10, 12), (12, 16), (16, 18), (18, 20)): e7n += a_[lo:hi] + b_[lo:hi]
        e7 = e7n + e7[40:]
    ra = [x for k in range(8) for x in crA(0, k)]
    P.add(ra[:10]); k = 10
    for j, it in enumerate(e7):
        P.add(it)
        if j % 6 == 5 and k < 16: P.add(ra[k]); k += 1
    P.add(ra[k:])
    P.vmwait("u"); P.e("s_barrier")
    for k in range(cfg.nb0): P.add(crB(0, k))
    hg = [f"s_lshr_b32 s3, {sI2}, 2", "s_mul_i32 s3, s3, 28", f"s_add_u32 s3, s3, 256", f"s_lshl_b32 s3, s3, 7", f"v_add_u32 {v(vP7)}, s3, {v(vP7)}",
          f"s_add_u32 s3, {sI2}, 32", "s_lshl_b32 s3, s3, 7", f"v_mov_b32 {v(T1)}, s3", f"v_cmp_gt_u32 vcc, 7, {v(VL)}", f"s_mov_b32 {sPA}, 0", "s_nop 0",
          f"v_cndmask_b32 {v(vP7)}, {v(T1)}, {v(vP7)}, vcc",
          f"s_lshl_b32 {sRG}, {sRG}, 12", f"s_add_u32 {sXB}, {sHL[0]}, {sRG}", f"s_add_u32 {sHE}, {sHL[0]}, {28*1024}"]
    d0 = wd_dma(49, 56) if cfg.more >= 2 else wd_dma(35, 42) if cfg.more else fill_units(28, 35)
    npre = 0 if NR else 3
    P.add(d0[:npre])
    P.add(stamp("cstart"))
    C = Gaps(144)
    for k in range(cfg.nb0, 8): C.put(k - cfg.nb0, crB(0, k))
    pairs = [(t, a_) for t in range(8) for a_ in range(t + 1)]
    for st in range(4):
        for j, (t, a_) in enumerate(pairs):
            A = v(CACC + 4 * t, 4)
            C.m[36 * st + j] = f"v_mfma_f32_16x16x32_bf16 {A}, {a(cA(st&1,a_),4)}, {a(cB(st&1,t-a_),4)}, {'0' if (st == 0 and a_ == 0) else A}"
        if st < 3: C.spread(creads(st + 1), 36 * st + 1, 36 * st + 33)
    HRING = 96; NHR = 32
    horder = [(0, ks) for ks in range(28)] + [(1, ks) for ks in (list(range(14, 28)) + list(range(14)) if cfg.b_rev else range(28))]
    def hload(n):
        st, ks = horder[n]; L = []
        if n == 28: L += [f"s_add_u32 {sXB}, {sHL[1]}, {sRG}", f"s_add_u32 {sHE}, {sHL[1]}, {28*1024}"]
        elif n > 0 and ks % 4 == 0: L += [f"s_add_u32 {sXB}, {sXB}, 4096", f"s_cmp_eq_u32 {sXB}, {sHE}\n s_cselect_b32 {sXB}, {sHL[st]}, {sXB}"]
        L.append(f"buffer_load_dwordx4 {v(HRING+4*(n%NHR),4)}, {v(V16)}, {WS}, {sXB} offen offset:{1024*(ks%4)} sc1")
        return L
    w0, w1, w2, w3 = cfg.c_wd
    C.spread(d0[npre:], 0, w0)
    if cfg.more >= 2:
        if 3 not in cfg.m2['r']: C.spread(wd_reads(21, 28), 2, w0 - 2)
        if 6 not in cfg.m2['d']: C.spread(wd_dma(42, 49), w0, w1)
    elif cfg.more:
        C.spread(wd_reads(14, 21), 2, w0 - 2); C.spread(wd_dma(42, 49), w0, w1)
        C.spread(wd_reads(21, 28), w0, w1 - 2); C.spread(wd_dma(49, 56), w1, w2)
    else:
        C.spread(wd_reads(7, 14), 2, w0 - 2); C.spread(fill_units(35, 42), w0, w1)
        C.spread(wd_reads(14, 21), w0, w1 - 2); C.spread(fill_units(42, 49), w1, w2)
        C.spread(wd_reads(21, 28), w1, w2 - 2); C.spread(wd_dma(49, 56), w2, w3)
    C.put(cfg.g_arrive, arrive("hst7", sFL))
    if cfg.eo: C.put(cfg.a_chk, poll_check("a", sT1))
    lh_ = C.pour(hg, cfg.a_chk + 1 if cfg.eo else 40, min(cfg.g_poll, cfg.h_first) - 4, 10); assert lh_ < min(cfg.g_poll, cfg.h_first)
    C.put(cfg.g_poll, poll_load("h", sPA))
    HCHK = [stamp("c_pre"), poll_check("h", sPA), stamp("c_post")]
    if not cfg.eo: C.put(cfg.g_chk, HCHK)
    NH = cfg.nh_c
    C.spread([hload(n) for n in range(NH)], cfg.h_first if cfg.eo else cfg.g_chk + 1, 144)
    RR = 48; UU = 18; DU = 80
    ce = [f"s_add_u32 {sU}, {sU}, {WS_YT}" + (f"\n s_mov_b32 {sHS}, 0xfffefffe" if cfg.ytag else "")]
    ce += [f"ds_read_b64 {v(UU+2*tau,2)}, {v(VUR)} offset:{512*(3-tau)}" for tau in range(4)]
    for tau in range(4):
        ce += lines(f"""
        v_and_b32 {v(DU+4*tau+0)}, {sMASK}, {v(UU+2*tau+1)}
        v_lshlrev_b32 {v(DU+4*tau+1)}, 16, {v(UU+2*tau+1)}
        v_and_b32 {v(DU+4*tau+2)}, {sMASK}, {v(UU+2*tau)}
        v_lshlrev_b32 {v(DU+4*tau+3)}, 16, {v(UU+2*tau)}""")
    lr = C.pour(ce[:5], max(lh_ + 1, 104), 112, 8); assert lr < cfg.c_bar - 4
    lc = C.pour(ce[5:], lr + 6, 140, 8)
    assert lc < 140
    C.put(cfg.c_bar, [WaitRegs(a(cA(1, 7), 4)), WaitRegs(v(UU, 8)), Ins("s_barrier")])
    for g_, n_ in (cfg.hack_sleep_c or []): C.put(g_, 's_sleep %d' % n_)
    check_m0(C, 1024)
    add_trace(C, 12, 'c', [94, 96])
    C.emit(P)
    if cfg.verbose: print("C gap costs", C.costs())
    hq = [hload(n) for n in range(NH, NH + cfg.nh_e)]; NH += cfg.nh_e
    def hnext():
        if hq: P.add(hq.pop(0))
    if cfg.ovl:
        while hq: hnext()
        snd = CACC + (16 if cfg.kh == 0 else 0); own = CACC + (0 if cfg.kh == 0 else 16); RR = snd
        ov1 = [Ins(f"ds_write_b128 {v(VRW)}, {v(snd+4*tau,4)} offset:{1024*tau}", "cx") for tau in range(4)]
        ov2 = [f"v_fma_f32 {v(DU+k)}, {sD}, {v(DU+k)}, {v(own+k)}" for k in range(16)]
        RR = 64 if cfg.kh == 0 else 48
        RR = 2
        ct_ = [f"ds_read_b128 {v(RR+4*tau,4)}, {v(VRR)} offset:{1024*tau}" for tau in range(4)] + [[], []]
        P.e("L_kseg:")
    else:
        hnext()
        dfma = lambda base: [f"v_pk_fma_f32 {v(DU+2*k,2)}, s[78:79], {v(DU+2*k,2)}, {v(base+2*k,2)} op_sel_hi:[0,1,1]" for k in range(8)]
        P.e(f"s_cmp_eq_u32 {sKH}, 0\n s_cbranch_scc1 L_cw0")
        for tau in range(4): P.e(f"ds_write_b128 {v(VRW)}, {v(CACC+4*tau,4)} offset:{1024*tau}", nocount=True)
        P.add(dfma(CACC + 16))
        P.e("s_branch L_cw1\n L_cw0:\n s_nop 2")
        for tau in range(4): P.e(f"ds_write_b128 {v(VRW)}, {v(CACC+16+4*tau,4)} offset:{1024*tau}")
        P.add(dfma(CACC))
        P.e("L_cw1:")
        while hq: hnext()
        P.e("s_waitcnt lgkmcnt(0)\n s_barrier")
        ct_ = [f"ds_read_b128 {v(RR+4*tau,4)}, {v(VRR)} offset:{1024*tau}" for tau in range(4)]
        P.add(ct_); ct_ = []
    for pi in range(2):
        if cfg.c_tail_in_g2: ct_ += [f"v_add_f32 {v(DU+8*pi+k)}, {v(DU+8*pi+k)}, {v(RR+8*pi+k)}" for k in range(8)]
        else: ct_ += [f"v_pk_add_f32 {v(DU+8*pi+2*k,2)}, {v(DU+8*pi+2*k,2)}, {v(RR+8*pi+2*k,2)}" for k in range(4)]
        ct_ += [f"v_cvt_pk_bf16_f32 {v(UU+4*pi+k)}, {v(DU+8*pi+2*k)}, {v(DU+8*pi+2*k+1)}" for k in range(4)]
    if cfg.ytag: ct_ += [f"v_pk_min_u16 {v(UU+k)}, {v(UU+k)}, {sHS}" for k in range(8)]
    for pi in range(2):
        ct_ += [f"v_permlane16_swap_b32 {v(UU+4*pi)}, {v(UU+4*pi+2)}", f"v_permlane16_swap_b32 {v(UU+4*pi+1)}, {v(UU+4*pi+3)}"]
        ct_ += [Ins(f"buffer_store_dwordx4 {v(UU+4*pi,4)}, {v(VYS)}, {WS}, {sU} offen offset:{1024*pi} sc1", "yst")]
    if not cfg.c_tail_in_g2: P.add(ct_); ct_ = []
    P.add(stamp("g2start"))
    GACC = 0; JIT = 64; NJ = 8
    G2 = Gaps(112)
    jn = 0
    for n in range(56):
        st, ks = horder[n]
        for dt in range(2):
            A = a(GACC + 32 * st + 16 * dt, 16)
            if ks < 14: W_ = a(WD1 + 8 * ks + 4 * dt, 4)
            else:
                r_ = JIT + 4 * (jn % NJ); jn += 1; W_ = a(r_, 4)
                for rd in range(2):
                    G2.put(2 * n + dt - 6, wd_read(2 * ks + rd, lambda d_, r_=r_, rd=rd: a(r_ + 2 * rd, 2))[dt])
            G2.m[2 * n + dt] = f"v_mfma_f32_32x32x16_bf16 {A}, {W_}, {v(HRING+4*(n%NHR),4)}, {'0' if n in (0, 28) else A}"
    reserved = sorted([cfg.ct_end - 2, cfg.ct_end] * bool(cfg.c_tail_in_g2) + list(cfg.q_at[:2]) + [cfg.g2_chk + 2, cfg.g2_chk + 4])
    t_ = 0.0; n = NH; la = []
    while n < 56:
        if reserved and reserved[0] <= t_ + cfg.g2_hpace / 2: reserved.pop(0); t_ += cfg.g2_hpace; continue
        g = int(t_)
        if n >= NHR: assert g >= 2 * (n - NHR) + 1
        if n == 28 and cfg.eo: assert g > cfg.b_chk
        la.append(2 * n - g); G2.put(g, hload(n)); n += 1; t_ += cfg.g2_hpace
    if cfg.verbose: print("H lookahead (gaps)", la)
    assert min(la) >= 8, la
    if cfg.ovl:
        G2.spread(ov1, 1, cfg.ov_bar - 2); G2.spread(ov2, 1, cfg.ov_bar - 1)
        G2.put(cfg.ov_bar - 1, "L_kend:")
        G2.put(cfg.ov_bar, [WaitTag('lgkm', "cx"), Ins("s_barrier")])
        assert cfg.b_chk >= cfg.ov_bar
        G2.put(cfg.b_chk, HCHK)
    elif cfg.eo: G2.put(cfg.b_chk, HCHK)
    QD_LATER = True
    lt = G2.pour(ct_, cfg.ov_bar if cfg.ovl else 1, cfg.ct_end, 24) if ct_ else 0
    e1 = lines(f"""
    s_lshl_b32 s3, s2, 7
    s_add_u32 {sFL}, s3, {512*128}
    s_lshl_b32 s3, {sCT}, 12
    s_add_u32 {sPA}, s3, {512*128}
    """)
    l1 = G2.pour(e1, max(lt, cfg.b_chk + 1 if cfg.eo else 0), max(lt, cfg.b_chk) + 8, 24); assert l1 <= cfg.g2_arrive
    G2.put(cfg.g2_arrive, [WaitTag('vm', "q"), Ins("s_barrier") if cfg.ytag else arrive("yst", sFL)])
    qd = [f"s_lshl_b32 {sT1}, {sW}, 11\n s_add_u32 m0, {sT1}, {QL}"]
    qd += [Ins(f"buffer_load_dwordx4 {v(VQ[j])}, {X}, {sQS} offen offset:{1024*j} lds", "q") for j in range(2)]
    qd += [f"buffer_load_dword {v(VG[j])}, {v(VGA)}, {WS}, 0 offen offset:{128*j} sc1" for j in range(2)]
    assert not cfg.eo or min(cfg.q_at[2:]) > cfg.b_chk
    G2.put(cfg.q_at[0] - 1, qd[0])
    for q_, g_ in zip(qd[1:], cfg.q_at): G2.put(g_, q_)
    def sends(st, addr):
        return [Ins(f"ds_write_b128 {addr(sg, jj)[0]}, {a(GACC+32*st+16*(sg>>1)+8*(sg&1)+4*jj,4)} offset:{addr(sg, jj)[1]}", "rw%d" % st) for sg in range(1, 4) for jj in range(2)]
    G2.spread(sends(0, lambda sg, jj: (v(EWA), 2048 * (sg - 1) + 1024 * jj)), 59, cfg.rw_bar - 1)
    if not cfg.ytag:
        G2.put(cfg.g2_poll, poll_load("y", sPA))
        G2.put(cfg.g2_chk, [stamp("g2_pre"), poll_check("y", sPA), [] if cfg.y_nobar else Ins("s_barrier"), [] if cfg.pass_stamps else stamp("g2_post")])
    G2.put(cfg.rw_bar, [WaitTag('lgkm', "rw0"), Ins("s_barrier")])
    yd = [f"s_add_u32 m0, {sT1}, {YL}"]
    yd += [Ins(f"buffer_load_dwordx4 {v(VY[j])}, {WS}, {sYS} offen offset:{1024*j} sc1 lds", "y") for j in range(2)]
    G2.put(cfg.g2_chk + 1, yd[0]); G2.put(cfg.g2_chk + 2, yd[1]); G2.put(cfg.g2_chk + 4, yd[2])
    QQ = 48; TT = 56; BB = 72; RX = 80; YY = 18; O = 48
    RP = [80, 84, 88, 92, 28 + 0, 28 + 0]
    un = lambda i, d, s_: (f"v_lshlrev_b32 {d}, 16, {s_}" if i % 2 == 0 else f"v_and_b32 {d}, {sMASK}, {s_}")
    p0 = [f"ds_read_b64 {v(QQ+4*st+2*J,2)}, {v(EQ[J])} offset:{4096*st}" for st in range(2) for J in range(2)]
    p0 += [f"v_sub_f32 {v(OMG[st])}, 1.0, {v(VG[st])}" for st in range(2)] + [[], []]
    p0 += [un(k, v(TT + k), v(QQ + (k >> 1))) for k in range(16)]
    p0 += [f"v_mul_f32 {v(TT+k)}, {v(TT+k)}, {v(VG[k>>3])}" for k in range(16)]
    l0 = G2.pour(p0, cfg.g2_arrive + 1, 62, 22); assert l0 < cfg.rw_bar
    p1 = [f"ds_read_b128 {v(RX+4*jj,4)}, {v(ERA[0])} offset:{1024*jj}" for jj in range(2)]
    p1 += [f"ds_read_b128 {v(RX+8+4*jj,4)}, {v(ERA[1])} offset:{1024*jj}" for jj in range(2)]
    p1 += [f"v_accvgpr_read_b32 {v(BB+k)}, {a(GACC+k)}" for k in range(8)]
    p1 += [f"v_add_f32 {v(BB+k)}, {v(BB+k)}, {v(RX+k)}" for k in range(8)]
    p1 += [f"ds_read_b128 {v(RX+4*jj,4)}, {v(ERA[2])} offset:{1024*jj}" for jj in range(2)]
    p1 += [f"v_add_f32 {v(BB+k)}, {v(BB+k)}, {v(RX+8+k)}" for k in range(8)]
    p1 += [f"v_add_f32 {v(BB+k)}, {v(BB+k)}, {v(RX+k)}" for k in range(8)]
    p1 += [f"v_mul_f32 {v(BB+k)}, {v(BB+k)}, {v(OMG[0])}" for k in range(8)]
    l3 = G2.pour(p1, cfg.rw_bar + 1, cfg.g2_pre - 1, 24); assert l3 <= cfg.g2_pre + 4, l3
    p2 = [[WaitTag('vm', "y")]]
    p2 += [f"ds_read_b64_tr_b16 {v(YY+4*st+2*J,2)}, {v(EY)} offset:{1024*J+32*st}" for st in range(2) for J in range(2)]
    ychk = []
    if cfg.ytag and not cfg.nosync:
        mx = lines(f"""v_pk_max_u16 {v(T3)}, {v(YY)}, {v(YY+1)}
        v_pk_max_u16 {v(vPV)}, {v(YY+2)}, {v(YY+3)}
        v_pk_max_u16 {v(T3)}, {v(T3)}, {v(YY+4)}
        v_pk_max_u16 {v(vPV)}, {v(vPV)}, {v(YY+5)}
        v_pk_max_u16 {v(T3)}, {v(T3)}, {v(YY+6)}
        v_pk_max_u16 {v(vPV)}, {v(vPV)}, {v(YY+7)}
        v_pk_max_u16 {v(T3)}, {v(T3)}, {v(vPV)}
        v_lshlrev_b32 {v(vPV)}, 16, {v(T3)}
        v_max_u32 {v(T3)}, {v(T3)}, {v(vPV)}
        v_cmp_le_u32 vcc, {sMASK}, {v(T3)}""")
        ychk = mx + [[stamp("g2_pre"), "s_cbranch_vccnz L_slow_yt\n L_back_yt:", stamp("g2_post")]]
        custom_slow.append("\n".join(["L_slow_yt:", f"s_mov_b32 {sCNT}, 0", "L_spin_yt:", f"s_sleep {cfg.sleep}", yd[0], "s_nop 0", yd[1].text, yd[2].text,
            f"s_add_u32 {sCNT}, {sCNT}, 1", "s_waitcnt vmcnt(0)"] + p2[1:5] + ["s_waitcnt lgkmcnt(0)"] + mx +
            ([f"v_writelane_b32 v253, {sCNT}, 3"] if cfg.trace else []) +
            [f"s_cmp_gt_u32 {sCNT}, 0x40000", "s_cbranch_scc1 L_back_yt", "s_cbranch_vccnz L_spin_yt", "s_branch L_back_yt"]))
    p2 += [[], [], []] + ychk
    p2 += [un(k, v(RX + k), v(YY + (k >> 1))) for k in range(8)]
    p2 += [f"v_fmac_f32 {v(BB+k)}, {v(TT+k)}, {v(RX+k)}" for k in range(8)]
    p2 += [f"v_cvt_pk_bf16_f32 {v(O+k)}, {v(BB+2*k)}, {v(BB+2*k+1)}" for k in range(4)]
    p2 += [un(k, v(RX + k), v(YY + (k >> 1))) for k in range(8, 16)]
    p2 += [f"v_permlane32_swap_b32 {v(O)}, {v(O+2)}", f"v_permlane32_swap_b32 {v(O+1)}, {v(O+3)}"]
    p2 += [f"buffer_store_dwordx4 {v(O,4)}, {v(EO)}, {OUT}, {sO[0]} offen {cfg.sc_out}"]
    p2 += [f"v_mul_f32 {v(TT+k)}, {v(TT+k)}, {v(RX+k)}" for k in range(8, 16)]
    p2 += [f"v_mov_b32 {v(T1)}, {v(OMG[1])}", f"v_mov_b32 {v(T2)}, {v(OMG[1])}"]
    if cfg.y_late: G2.pour(p2[-2:], l3, 111, 24)
    else: G2.pour(p2, max(l3, cfg.g2_pre), 111, 24)
    for g_, n_ in (cfg.hack_sleep_h or []): G2.put(g_, 's_sleep %d' % n_)
    check_m0(G2)
    add_trace(G2, 8, 'h', [94, 96])
    G2.emit(P, 2)
    if cfg.verbose: print("G2 gap costs", G2.costs())
    P.add(stamp("g2end"))
    R1 = 96; O2 = 52; B2 = 120 if cfg.y_late else BB
    w_ = sends(1, lambda sg, jj: (v(EWB), (sg - 1) * SLOT + 1024 * jj))
    P.add(w_[:2])
    for k in range(8): P.e(f"v_accvgpr_read_b32 {v(B2+k)}, {a(GACC+32+k)}")
    P.add(w_[2:])
    if cfg.y_late: P.vmwait("y")
    P.e("s_waitcnt lgkmcnt(0)\n s_barrier")
    if cfg.y_late: P.add(p2[1:5])
    for jj in range(2):
        for sg in range(1, 4): P.e(f"ds_read_b128 {v(R1+8*(sg-1)+4*jj,4)}, {v(ERB[sg-1])} offset:{1024*jj}")
    if cfg.y_late:
        P.add(ychk)
        for k in range(8): P.e(un(k, v(RX + k), v(YY + (k >> 1))))
        for k in range(4): P.e(f"v_pk_fma_f32 {v(BB+2*k,2)}, {v(TT+2*k,2)}, {v(RX+2*k,2)}, {v(BB+2*k,2)}")
        for k in range(4): P.e(f"v_cvt_pk_bf16_f32 {v(O+k)}, {v(BB+2*k)}, {v(BB+2*k+1)}")
        for k in range(8, 10): P.e(un(k, v(RX + k), v(YY + (k >> 1))))
        P.e(f"v_permlane32_swap_b32 {v(O)}, {v(O+2)}\n v_permlane32_swap_b32 {v(O+1)}, {v(O+3)}")
        P.e(f"buffer_store_dwordx4 {v(O,4)}, {v(EO)}, {OUT}, {sO[0]} offen {cfg.sc_out}")
        for k in range(10, 16): P.e(un(k, v(RX + k), v(YY + (k >> 1))))
        for k in range(4, 8): P.e(f"v_pk_mul_f32 {v(TT+2*k,2)}, {v(TT+2*k,2)}, {v(RX+2*k,2)}")
    for jj in range(2):
        for sg in range(3):
            for i in range(2): P.e(f"v_pk_add_f32 {v(B2+4*jj+2*i,2)}, {v(B2+4*jj+2*i,2)}, {v(R1+8*sg+4*jj+2*i,2)}")
        for i in range(2): P.e(f"v_pk_fma_f32 {v(B2+4*jj+2*i,2)}, {v(B2+4*jj+2*i,2)}, {v(T1,2)}, {v(TT+8+4*jj+2*i,2)}")
        for i in range(2): P.e(f"v_cvt_pk_bf16_f32 {v(O2+2*jj+i)}, {v(B2+4*jj+2*i)}, {v(B2+4*jj+2*i+1)}")
    P.e(f"v_permlane32_swap_b32 {v(O2)}, {v(O2+2)}\n v_permlane32_swap_b32 {v(O2+1)}, {v(O2+3)}")
    P.e(f"buffer_store_dwordx4 {v(O2,4)}, {v(EO)}, {OUT}, {sO[1]} offen {cfg.sc_out}")
    if cfg.stamps: emit_stamps(P)
    if cfg.fixdur:
        P.e(f"""L_fix:
        s_memrealtime s[4:5]
        s_waitcnt lgkmcnt(0)
        s_sub_u32 s4, s4, s100
        s_cmp_lt_i32 s4, {cfg.fixdur}
        s_cbranch_scc1 L_fix""")
    P.e("s_endpgm")

def check_m0(G, init=None):
    flat = []
    def fl(it):
        if isinstance(it, str):
            for l in lines(it): flat.append(Ins(l))
        elif isinstance(it, (list, tuple)):
            for x in it: fl(x)
        elif isinstance(it, Ins): flat.append(it)
    for f in G.f:
        for it in f: fl(it)
    last_off = init
    for it in flat:
        if it.kind == 'salu' and ('s', 'm0') in it.w: last_off = -1024
        if it.kind == 'dma':
            m = re.search(r'offset:(\d+)', it.text); off = int(m.group(1)) if m else 0
            assert last_off is not None and off == last_off + 1024, ("m0 group interleaved", it.text)
            last_off = off

def emit_stamps(P):
    P.e("s_waitcnt vmcnt(0)")
    P.e("s_memtime s[4:5]\n s_memrealtime s[6:7]\n s_waitcnt lgkmcnt(0)")
    n = len(stamp_names)
    for k in range(n):
        P.e(f"s_sub_u32 s3, s{STAMP_REGS[stamp_names[k]]}, {'s100' if cfg.rt else 's98'}"); P.e(f"v_mov_b32 v{200+k}, s3")
    P.e(f"s_sub_u32 s3, {'s6, s100' if cfg.rt else 's4, s98'}\n v_mov_b32 v{200+n}, s3")
    P.e(f"""s_lshl_b32 s3, s2, 2
    s_add_u32 s3, s3, {sW}
    s_lshl_b32 s3, s3, 7
    s_add_u32 s3, s3, {WS_STAMP}
    v_mov_b32 v229, 0
    v_mov_b32 v230, s100
    v_mov_b32 v231, s6
    v_mov_b32 v2, 0
    s_mov_b64 exec, 1""")
    for k in range(8): P.e(f"buffer_store_dwordx4 v[{200+4*k}:{203+4*k}], v2, {WS}, s3 offen offset:{16*k}")
    if cfg.trace:
        P.e(f"""s_mov_b64 exec, -1
        v_subrev_u32 v254, s98, v254
        v_subrev_u32 v255, s98, v255
        s_lshl_b32 s3, s2, 2
        s_add_u32 s3, s3, {sW}
        s_lshl_b32 s3, s3, 9
        s_add_u32 s3, s3, {WS_STAMP + 0x40000}
        v_lshlrev_b32 v2, 2, v1
        buffer_store_dword v254, v2, {WS}, s3 offen
        v_readlane_b32 s4, v253, 0
        v_readlane_b32 s5, v253, 1
        v_readlane_b32 s6, v253, 2
        v_readlane_b32 s7, v253, 3
        s_nop 3
        v_writelane_b32 v255, s4, 60
        v_writelane_b32 v255, s5, 61
        v_writelane_b32 v255, s6, 62
        v_writelane_b32 v255, s7, 63
        buffer_store_dword v255, v2, {WS}, s3 offen offset:256""")

def gen_aux(P0):
    P = P0
    K, V_, SH, GW = "s[40:43]", "s[44:47]", "s[48:51]", "s[52:55]"
    sA = "s68"; sST = "s69"; sUS = "s70"; sLO = "s71"; sHI = "s72"; sC = "s73"; sC2 = "s74"; sTA = ["s56", "s57"]; sTW = ["s58", "s59"]
    VL = 1; T0 = 2; T1 = 3; VZA = 4; VB = 5; VB2 = 6; VM = 7; VX = 8; VR = 9; VS = 11; VW = 12; VWt = [13, 14]; VRB = 16; VQ = 20; VQ2 = 21; VGW = 22
    KP = [48, 58]; VP = [68, 76]; WR_ = [84, 86]; WT = [88, 94]; OO = 100; UV = 108; OUT_ = 124; RB = 160; PF = 24
    TS = 17408
    P.e("s_cmp_lt_u32 s2, 256\n s_cbranch_scc1 L_auxgo\n s_endpgm\n L_auxgo:")
    for reg, off in ((K, 8), (V_, 16), (SH, 24), (GW, 80)): P.e(ldptr(reg, off))
    P.add(srd_hi(K, NQ) + srd_hi(V_, NQ) + srd_hi(SH, 3584) + srd_hi(X, NQ) + srd_hi(GW, 896) + srd_hi(WS, WS_SIZE) + srd_hi(WD, NW))
    P.e(f"""
    s_sub_u32 {sA}, s2, 224
    s_mul_i32 {sSO}, {sA}, {64*896}
    s_mul_i32 {sST}, {sW}, 40960
    s_lshl_b32 {sTA[0]}, {sW}, 7
    s_add_u32 {sTA[1]}, {sTA[0]}, 512
    s_cmp_eq_u32 {sW}, 3
    s_cselect_b32 {sTA[1]}, {NQ}, {sTA[1]}
    s_lshl_b32 {sTW[0]}, {sW}, 9
    s_add_u32 {sTW[1]}, {sTW[0]}, 2048
    v_lshrrev_b32 {v(T0)}, 3, {v(VL)}
    v_and_b32 {v(T1)}, 7, {v(VL)}
    v_mul_u32_u24 {v(VB)}, 896, {v(T0)}
    v_lshl_add_u32 {v(VB)}, {v(T1)}, 4, {v(VB)}
    v_add_u32 {v(VB)}, {sSO}, {v(VB)}
    v_add_u32 {v(VB2)}, 6144, {v(VB)}
    v_add_u32 {v(VM)}, -7168, {v(VB)}
    v_lshlrev_b32 {v(VX)}, 3, {v(VL)}
    s_mul_i32 s3, {sA}, {32*128}
    v_lshlrev_b32 {v(VZA)}, 7, {v(VL)}
    v_add_u32 {v(VZA)}, s3, {v(VZA)}
    v_mov_b32 {v(vARR)}, -16
    v_cmp_gt_u32 vcc, 32, v0
    v_mov_b32 {v(vZERO)}, 0
    v_cndmask_b32 {v(VZA)}, {v(vARR)}, {v(VZA)}, vcc
    v_cmp_eq_u32 vcc, 0, v0
    v_mov_b32 {v(vONE)}, 1
    s_waitcnt lgkmcnt(0)
    v_cndmask_b32 {v(vARR)}, {v(vARR)}, 0, vcc
    s_mov_b32 s34, 256
    s_mov_b32 s35, 0x20000
    """)
    def dset(k, j):
        b = TS * k; tag = "pin%d%d" % (k, j); L = []
        L.append([f"s_add_u32 {sC}, {sTA[k]}, {14336*j}\n s_add_u32 m0, {sST}, {b+1024+2048*j}", Ins(f"buffer_load_dwordx4 {v(VB)}, {K}, {sC} offen lds", tag)])
        L.append(Ins(f"buffer_load_dwordx4 {v(VB2)}, {K}, {sC} offen offset:1024 lds", tag))
        if j == 0:
            L.append([f"s_add_u32 m0, {sST}, {b}", Ins(f"buffer_load_dwordx4 {v(VM)}, {K}, {sC} offen lds", tag)])
            L.append(f"buffer_load_dwordx2 {v(WR_[k],2)}, {v(VX)}, {SH}, {sTW[k]} offen")
        L.append([f"s_add_u32 m0, {sST}, {b+9216+2048*j}", Ins(f"buffer_load_dwordx4 {v(VB)}, {V_}, {sC} offen lds", tag)])
        L.append(Ins(f"buffer_load_dwordx4 {v(VB2)}, {V_}, {sC} offen offset:1024 lds", tag))
        return L
    P.add(dset(0, 0))
    P.e(f"buffer_store_dword {v(vZERO)}, {v(VZA)}, {WS}, 0 offen sc1", tag="zst")
    P.add(dset(0, 1))
    if cfg.aux_head: P.e('s_branch L_aux2\n L_aux2:')
    P.e(f"""
    v_bfe_u32 {v(VR)}, {v(VL)}, 2, 2
    v_lshlrev_b32 {v(VR)}, 7, {v(VR)}
    v_lshrrev_b32 {v(VS)}, 4, {v(VL)}
    v_lshl_add_u32 {v(VR)}, {v(VS)}, 5, {v(VR)}
    v_and_b32 {v(VS)}, 3, {v(VL)}
    v_lshl_add_u32 {v(VR)}, {v(VS)}, 3, {v(VR)}
    v_add_u32 {v(VR)}, {sST}, {v(VR)}
    s_mov_b32 {sLO}, 0xffff
    s_mov_b32 {sMASK}, 0xffff0000
    v_lshlrev_b32 {v(VW)}, 4, {v(T1)}
    v_lshl_add_u32 {v(VW)}, {v(VL)}, 7, {v(VW)}
    v_add_u32 {v(VW)}, {sST}, {v(VW)}
    v_xor_b32 {v(VRB)}, {v(T0)}, {v(T1)}
    v_lshlrev_b32 {v(VRB)}, 4, {v(VRB)}
    v_lshl_add_u32 {v(VRB)}, {v(T0)}, 7, {v(VRB)}
    v_add_u32 {v(VRB)}, {sST}, {v(VRB)}
    v_lshlrev_b32 {v(VGW)}, 4, {v(T1)}
    v_lshl_add_u32 {v(VS)}, {v(T0)}, 12, {v(VGW)}
    s_lshl_b32 s3, {sW}, 18
    s_sub_u32 {sUS}, 31, {sA}
    s_lshl_b32 {sUS}, {sUS}, 7
    s_add_u32 {sUS}, {sUS}, s3
    s_add_u32 {sUS}, {sUS}, {WS_UR}
    """)
    P.add(dset(0, 2))
    zat = [WaitTag('vm', "zst"), f"buffer_atomic_add {v(vONE)}, {v(vARR)}, s[32:35], 0 offen sc1"]
    if not cfg.aux_fl: P.add(zat)
    P.add(dset(0, 3))
    if cfg.hack_aux: P.e("s_sleep 64\n s_sleep 32"); P.add(poll_load("za", None)); P.e("s_branch L_auxdone")
    def reads(k, j):
        b = TS * k; K_ = KP[j & 1]; V2 = VP[j & 1]
        L = [WaitTag('vm', "pin%d%d" % (k, j))]
        L += [f"ds_read_b64_tr_b16 {v(K_+2*m,2)}, {v(VR)} offset:{b+512+2048*j+512*m}" for m in range(5)]
        L += [f"ds_read_b64_tr_b16 {v(V2+2*m,2)}, {v(VR)} offset:{b+9216+2048*j+512*m}" for m in range(4)]
        return L
    def wprep(k):
        W = WR_[k]; T_ = WT[k]
        return lines(f"""v_alignbit_b32 {v(T_)}, {v(W)}, {v(W)}, 16
        v_alignbit_b32 {v(T_+1)}, {v(W+1)}, {v(W+1)}, 16
        v_and_b32 {v(T_+2)}, {sLO}, {v(W)}
        v_bfi_b32 {v(T_+3)}, {sLO}, {v(W+1)}, {v(W)}
        v_and_b32 {v(T_+4)}, {sMASK}, {v(W+1)}""")
    def owrites(k, j):
        return [[f"v_xor_b32 {v(VWt[q&1])}, {16*q}, {v(VW)}", Ins(f"ds_write_b128 {v(VWt[q&1])}, {v(OUT_+4*q,4)} offset:0", "ow")] for q in (7 - 2 * j, 6 - 2 * j)]
    def readback(k): return [f"ds_read_b128 {v(RB+4*q,4)}, {v(VRB)} offset:{1024*q}" for q in range(8)]
    def stores(k): return [[f"s_add_u32 {sC2}, {sUS}, {(k << 20) + 32768*q}", Ins(f"buffer_store_dwordx4 {v(RB+4*q,4)}, {v(VS)}, {WS}, {sC2} offen sc1", "pst")] for q in range(8)]
    wdt = lines(f"""s_lshl_b32 s3, {sA}, 2
    s_add_u32 s3, s3, {sW}
    s_mul_i32 s75, s3, {98*128}
    v_lshlrev_b32 {v(156)}, 7, {v(VL)}
    v_add_u32 {v(157)}, {34*128}, {v(156)}
    buffer_load_dword {v(158)}, {v(156)}, {WD}, s75 offen
    buffer_load_dword {v(159)}, {v(157)}, {WD}, s75 offen""")
    def step(P, k, j, fill):
        if cfg.aux_sleep and cfg.aux_sleep[:2] == (k, j): P.e('s_sleep %d' % cfg.aux_sleep[2])
        if cfg.aux_wd == (k, j): fill = list(fill) + ["\n".join(wdt)]
        K_ = KP[j & 1]; V2 = VP[j & 1]; T_ = WT[k]; fill = list(fill); per = (len(fill) + 9) // 10
        def nx():
            for _ in range(per):
                if fill: P.add(fill.pop(0))
        P.add(WaitRegs(v(V2 + 6, 2)))
        if cfg.stamps: r_ = [60, 62, 64, 66, 94, 78, 80, 92][4 * k + j]; P.e(f"s_memtime s[{r_}:{r_+1}]")
        for h in range(2):
            J = range(4 * h, 4 * h + 4)
            for i in J: P.e(f"v_dot2_f32_bf16 {v(OO+2*(i%4))}, {v(K_+i+2)}, {v(T_+2)}, 0\n v_dot2_f32_bf16 {v(OO+2*(i%4)+1)}, {v(K_+i+2)}, {v(T_)}, 0")
            nx()
            for i in J: P.e(f"v_dot2_f32_bf16 {v(OO+2*(i%4))}, {v(K_+i+1)}, {v(T_+3)}, {v(OO+2*(i%4))}\n v_dot2_f32_bf16 {v(OO+2*(i%4)+1)}, {v(K_+i+1)}, {v(T_+1)}, {v(OO+2*(i%4)+1)}")
            nx()
            for i in J: P.e(f"v_dot2_f32_bf16 {v(OO+2*(i%4))}, {v(K_+i)}, {v(T_+4)}, {v(OO+2*(i%4))}")
            nx()
            for i in J: P.e(f"v_lshlrev_b32 {v(UV+2*(i%4))}, 16, {v(V2+i)}\n v_and_b32 {v(UV+2*(i%4)+1)}, {sMASK}, {v(V2+i)}")
            nx()
            for i in J: P.e(f"v_pk_mul_f32 {v(UV+2*(i%4),2)}, {v(UV+2*(i%4),2)}, {v(OO+2*(i%4),2)}")
            nx()
            for i in J: P.e(f"v_cvt_pk_bf16_f32 {v(OUT_+31-8*j-i)}, {v(UV+2*(i%4)+1)}, {v(UV+2*(i%4))}")
        while fill: nx()
    P.add(reads(0, 0)); P.add(wprep(0))
    if cfg.stamps: P.e("s_waitcnt lgkmcnt(0)\n s_memtime s[86:87]")
    if cfg.aux_fl:
        P.add(zat); P.add(dset(1, 0))
        step(P, 0, 0, dset(1, 1) + reads(0, 1))
        step(P, 0, 1, dset(1, 2) + reads(0, 2) + dset(1, 3))
        step(P, 0, 2, reads(0, 3))
    else:
        step(P, 0, 0, dset(1, 0) + reads(0, 1))
        step(P, 0, 1, dset(1, 1) + reads(0, 2))
        step(P, 0, 2, dset(1, 2) + reads(0, 3))
    P.e(f"s_cmp_eq_u32 {sW}, 3\n s_cbranch_scc1 L_gate")
    Pg = Prog(); Pg.items = list(P.items)
    st0 = stores(0)
    step(P, 0, 3, ([] if cfg.aux_fl else dset(1, 3)) + reads(1, 0) + wprep(1) + owrites(0, 0) + owrites(0, 1))
    P.add(owrites(0, 2) + owrites(0, 3))
    step(P, 1, 0, reads(1, 1) + readback(0))
    step(P, 1, 1, reads(1, 2) + st0[:4] + owrites(1, 0))
    step(P, 1, 2, poll_load("za", None) + reads(1, 3) + st0[4:] + owrites(1, 1))
    step(P, 1, 3, owrites(1, 2))
    P.add(owrites(1, 3)); P.add(readback(1)); P.add(stores(1))
    P.e("s_branch L_auxdone")
    P = Pg; P.e("L_gate:")
    step(P, 0, 3, owrites(0, 0) + owrites(0, 1) + owrites(0, 2))
    P.add(owrites(0, 3)); P.add(readback(0)); P.add(stores(0)); P.add(poll_load("za", None))
    QB = 48; GWB = 112; AC = 104
    def gate(T):
        T.e(f"""s_lshl_b32 {sT0}, {sA}, 2
        s_add_u32 {sT0}, {sT0}, {sW}
        s_mul_i32 {sSO}, {sT0}, {16*896}
        v_mul_u32_u24 {v(VQ)}, {2*896}, {v(T0)}
        v_add_u32 {v(VQ)}, {v(VQ)}, {v(VGW)}""")
        for tau in range(7):
            for rho in range(2): T.e(f"buffer_load_dwordx4 {v(QB+8*tau+4*rho,4)}, {v(VQ)}, {X}, {sSO} offen offset:{896*rho+128*tau}")
            T.e(f"buffer_load_dwordx4 {v(GWB+4*tau,4)}, {v(VGW)}, {GW}, 0 offen offset:{128*tau}")
        for tau in range(7):
            for p in range(4):
                for rho in range(2):
                    d = AC + 2 * (p & 1) + rho
                    T.e(f"v_dot2_f32_bf16 {v(d)}, {v(QB+8*tau+4*rho+p)}, {v(GWB+4*tau+p)}, {'0' if (tau == 0 and p < 2) else v(d)}")
        for rho in range(2): T.e(f"v_add_f32 {v(AC+rho)}, {v(AC+rho)}, {v(AC+2+rho)}")
        for mod in ("row_half_mirror", "quad_perm:[3,2,1,0]", "quad_perm:[1,0,3,2]"):
            for rho in range(2): T.e(f"v_add_f32_dpp {v(AC+rho)}, {v(AC+rho)}, {v(AC+rho)} {mod} row_mask:0xf bank_mask:0xf")
        T.e(f"""s_mov_b32 s56, 0xaaaaaaaa
        s_mov_b32 s57, 0xaaaaaaaa
        v_cndmask_b32 {v(AC)}, {v(AC)}, {v(AC+1)}, s[56:57]
        v_mul_f32 {v(AC)}, 0xbfb8aa3b, {v(AC)}
        v_exp_f32 {v(AC)}, {v(AC)}
        v_lshl_add_u32 {v(T0)}, {v(T0)}, 1, {v(T1)}
        v_add_f32 {v(AC)}, 1.0, {v(AC)}
        v_rcp_f32 {v(AC)}, {v(AC)}
        v_lshlrev_b32 {v(T0)}, 2, {v(T0)}
        v_mov_b32 {v(VZA)}, -16
        v_cmp_gt_u32 vcc, 2, {v(T1)}
        s_lshl_b32 s3, {sT0}, 6
        s_add_u32 s3, s3, {WS_G}
        v_cndmask_b32 {v(T0)}, {v(VZA)}, {v(T0)}, vcc
        buffer_store_dword {v(AC)}, {v(T0)}, {WS}, s3 offen sc1""")
    def watch(T, name, nl, off):
        if cfg.nosync or not cfg.watch: return
        T.e(f"""v_min_u32 {v(24)}, {nl-1}, {v(VL)}
        v_lshlrev_b32 {v(24)}, 7, {v(24)}
        s_mov_b32 {sCNT}, 0
        L_w{name}:
        buffer_load_dword {v(25)}, {v(24)}, {WS}, {off} offen sc1
        s_add_u32 {sCNT}, {sCNT}, 1
        s_cmp_gt_u32 {sCNT}, 256
        s_waitcnt vmcnt(0)
        s_cbranch_scc1 L_x{name}
        v_cmp_gt_u32 vcc, 1, {v(25)}
        s_sleep {cfg.watch}
        s_cbranch_vccnz L_w{name}
        L_x{name}:""")
    gate(P)
    T = Prog(); T.e("L_auxdone:")
    if cfg.stamps: T.e("s_memtime s[88:89]")
    T.e(f"""s_lshl_b32 {sC}, {sA}, 7
    s_add_u32 {sC2}, {sC}, {32*128}
    s_waitcnt vmcnt(0)""")
    T.add(poll_check("za", None))
    T.e("s_barrier")
    if not cfg.nosync: T.e(f"buffer_store_dword {v(vONE)}, {v(vARR)}, {WS}, {sC} offen sc1")
    if cfg.stamps: T.e("s_memtime s[90:91]")
    T.e(f"s_cmp_eq_u32 {sW}, 3\n s_cbranch_scc0 L_g012")
    watch(T, "p", 32, "0")
    T.e("s_branch L_gdone\n L_g012:")
    gate(T)
    T.e("s_waitcnt vmcnt(0)\n L_gdone:\n s_barrier")
    if not cfg.nosync: T.e(f"buffer_store_dword {v(vONE)}, {v(vARR)}, {WS}, {sC2} offen sc1")
    T.e(f"""s_and_b32 s3, s2, 7
    s_mul_i32 s58, s3, {28*128}
    s_lshr_b32 s59, {sA}, 3
    s_cmp_lg_u32 {sW}, 0
    s_cbranch_scc1 L_wn0
    s_add_u32 s60, s58, {768*128}""")
    watch(T, "a", 28, "s60")
    T.e(f"s_add_u32 s60, s58, {256*128}")
    watch(T, "b", 28, "s60")
    T.e(f"""s_branch L_wend
    L_wn0:
    s_cmp_eq_u32 {sW}, 1
    s_cbranch_scc0 L_wn1
    s_lshl_b32 s60, s3, 9
    s_add_u32 s60, s60, {32*128}""")
    watch(T, "g", 4, "s60")
    T.e(f"""s_branch L_wend
    L_wn1:
    s_lshl_b32 s59, s59, 1
    s_add_u32 s59, s59, {sW}
    s_sub_u32 s59, s59, 2
    s_mul_i32 s60, s59, {28*128}
    s_add_u32 s60, s60, {512*128}""")
    watch(T, "y", 28, "s60")
    T.e("L_wend:")
    if cfg.aux_l2:
        g0, ng = cfg.aux_l2
        T.e(f"""v_mul_u32_u24 {v(PF)}, 896, {v(VL)}
        s_lshr_b32 s56, {sA}, 3
        s_mul_i32 s56, s56, {448*896}
        s_and_b32 s57, s2, 7
        s_add_u32 s57, s57, {g0}""")
        for k in range((7 * ng + 3) // 4):
            T.e(f"""s_add_u32 s58, {sW}, {4*k}
            s_min_u32 s58, s58, {7*ng-1}
            s_mul_i32 s59, s58, 37
            s_lshr_b32 s59, s59, 8
            s_mul_i32 s3, s59, 7
            s_sub_u32 s58, s58, s3
            s_add_u32 s59, s59, s58
            s_add_u32 s59, s59, s57
            s_mul_i32 s3, s59, 37
            s_lshr_b32 s3, s3, 8
            s_mul_i32 s3, s3, 7
            s_sub_u32 s59, s59, s3
            s_mul_i32 s59, s59, {64*896}
            s_lshl_b32 s58, s58, 7
            s_add_u32 s59, s59, s58
            s_add_u32 s59, s59, s56
            buffer_load_dword {v(PF+2+k)}, {v(PF)}, {WD}, s59 offen""")
    if cfg.stamps:
        T.e(f"""s_waitcnt vmcnt(0)
        s_memtime s[4:5]
        s_memrealtime s[6:7]
        s_waitcnt lgkmcnt(0)
        s_sub_u32 s3, s86, s98
        v_mov_b32 v200, s3
        s_sub_u32 s3, s88, s98
        v_mov_b32 v201, s3
        s_sub_u32 s3, s90, s98
        v_mov_b32 v202, s3
        s_sub_u32 s3, s4, s98
        v_mov_b32 v203, s3
        v_mov_b32 v204, s100
        v_mov_b32 v205, s6
        s_lshl_b32 s3, s2, 2
        s_add_u32 s3, s3, {sW}
        s_lshl_b32 s3, s3, 7
        s_add_u32 s3, s3, {WS_STAMP}
        v_mov_b32 v2, 0
        s_mov_b64 exec, 1
        buffer_store_dwordx4 v[200:203], v2, {WS}, s3 offen
        buffer_store_dwordx2 v[204:205], v2, {WS}, s3 offen offset:120""")
        for i_, r_ in enumerate([60, 62, 64, 66, 94, 78, 80, 92]): T.e(f"s_sub_u32 s4, s{r_}, s98\n v_mov_b32 v{208+i_}, s4")
        T.e(f"buffer_store_dwordx4 v[208:211], v2, {WS}, s3 offen offset:16\n buffer_store_dwordx4 v[212:215], v2, {WS}, s3 offen offset:32")
    T.e("s_endpgm")
    return Pg, T

def build():
    global slow_paths, stamp_names, trace_names, custom_slow
    slow_paths = []; custom_slow = []; stamp_names = []; trace_names = []; arr_n[0] = 0; STAMP_REGS['prewait'] = 74; STAMP_REGS['karg'] = 72
    pro = Prog()
    for reg, off in ((X, 0), (WG, 56), (WU, 64), (WD, 72), (SK, 32), (WS, 104), (OUT, 88), (pDBG, 96), (pD, 40)) + ((("s[94:95]", 8), ("s[96:97]", 16)) if cfg.kv_touch is not None else ()): pro.e(ldptr(reg, off))
    if cfg.sync_start:
        pro.e("""s_memrealtime s[100:101]
        s_waitcnt lgkmcnt(0)
        s_add_u32 s3, s100, 400
        s_and_b32 s3, s3, 0xffffff00
        s_and_b32 s99, s2, %d
        s_mul_i32 s99, s99, %d
        s_add_u32 s3, s3, s99
        L_ss:
        s_memrealtime s[100:101]
        s_waitcnt lgkmcnt(0)
        s_sub_u32 s99, s100, s3
        s_cmp_lt_i32 s99, 0
        s_cbranch_scc1 L_ss""" % cfg.skew)
    if cfg.stamps or cfg.fixdur: pro.e("s_memtime s[98:99]\n s_memrealtime s[100:101]")
    pro.e(f"""
    v_lshrrev_b32 v2, 6, v0
    v_and_b32 v1, 63, v0
    s_cmp_ge_u32 s2, 224
    v_readfirstlane_b32 {sW}, v2
    s_cbranch_scc1 L_aux
    """)
    Pm = Prog(); Pm.items = list(pro.items)
    cfg.kh = 0
    gen_main(Pm)
    main = Pm.finalize(cfg.verbose)
    if cfg.ovl:
        keep = (slow_paths, custom_slow, stamp_names, trace_names); slow_paths = []; custom_slow = []; stamp_names = []; trace_names = []
        vb_ = cfg.verbose; cfg.verbose = False; cfg.kh = 1
        P1_ = Prog(); P1_.items = list(pro.items); gen_main(P1_); m1 = P1_.finalize()
        cfg.verbose = vb_; slow_paths, custom_slow, stamp_names, trace_names = keep
        pos = lambda lst, lab: [i for i, x in enumerate(lst) if x.kind == 'label' and x.text == lab][0]
        a0, b0, a1, b1 = pos(main, "L_kseg:"), pos(main, "L_kend:"), pos(m1, "L_kseg:"), pos(m1, "L_kend:")
        assert [x.text for x in main[:a0]] == [x.text for x in m1[:a1]] and [x.text for x in main[b0:]] == [x.text for x in m1[b1:]]
        main[a0:a0 + 1] = [Ins(f"s_cmp_eq_u32 {sKH}, 0"), Ins("s_cbranch_scc1 L_kseg")] + m1[a1 + 1:b1] + [Ins("s_branch L_kend"), Ins("L_kseg:")]
    Px = Prog(); Px.items = list(pro.items); Px.e("L_aux:")
    Pg, Pt = gen_aux(Px)
    ax = Px.finalize(); gx = Pg.finalize(); tx = Pt.finalize()
    cut = lambda lst, lab: lst[[i for i, x in enumerate(lst) if x.kind == 'label' and x.text == lab][0]:]
    axl = cut(ax, "L_aux:")
    if cfg.aux_head:
        k_ = [i for i, x in enumerate(axl) if x.kind == 'label' and x.text == "L_aux2:"][0]
        m_ = [i for i, x in enumerate(main) if x.kind == 'label' and x.text == "L_auxhead:"][0]
        main[m_:m_ + 1] = axl[:k_]; axl = axl[k_:]
    if cfg.warm:
        real = [i for i, x in enumerate(main) if x.kind != 'label']
        for k, n in reversed(list(enumerate(cfg.stub_at[:4]))):
            main[real[n]:real[n]] = [Ins("L_pg%d:" % k), Ins("s_cbranch_execz L_pgback")]
    body = text_of(main) + "\n" + text_of(axl) + "\n" + text_of(cut(gx, "L_gate:")) + "\n" + text_of(tx) + "\n" + emit_slow_paths() + "\nL_codeend:"
    hdr = open("gated_mix__ssm_conv_h3__swiglu_ffn__prompt.s.ref").read().split("; Override launch")[0] if cfg.header else ""
    diag = f"; NSTAMPS={len(stamp_names)} {stamp_names}\n; TRACE={trace_names}\n" if cfg.stamps else ""
    doc = """; One persistent launch, one 4-wave workgroup per CU (generated by a hand-written scheduler script).
;                     C   causal long convolution of two channels as block-Toeplitz 16x16x32 MFMAs (4 shifted filter copies in LDS)
;  workgroups 224..255: clear this launch's hand-off words, u = shiftconv(k)*v transposed, mixing gate g
;  hand-offs go through d_ws with write-through stores and one flag line per producer (d_debug[0] says the flags are cleared);
"""
    return f"""{hdr}; @launch grid=(256,1,1) block=(256,1,1) lds={LDS_BYTES}
{diag}{doc}.amdgcn_target "amdgcn-amd-amdhsa--gfx950"
.text
.globl {KNAME}
{'.p2align 12' if cfg.align else ''}
.p2align 8
.type {KNAME},@function
{KNAME}:
{body}
.section .rodata,"a"
.p2align 6
.amdhsa_kernel {KNAME}
  .amdhsa_next_free_vgpr 512
  .amdhsa_next_free_sgpr 102
  .amdhsa_accum_offset 256
  .amdhsa_group_segment_fixed_size 0
  .amdhsa_kernarg_size 112
  .amdhsa_user_sgpr_count 2
  .amdhsa_user_sgpr_kernarg_segment_ptr 1
  .amdhsa_system_sgpr_workgroup_id_x 1
.end_amdhsa_kernel
"""

if __name__ == "__main__":
    import subprocess
    out = sys.argv[1]
    for kv in sys.argv[2:]:
        k_, v_ = kv.split("=", 1)
        assert hasattr(cfg, k_), k_
        setattr(cfg, k_, eval(v_))
    cfg.m2 = {2: {'x': [(51, 63), (85, 97), (113, 125), (141, 152)], 'd': {0: (64, 78), 1: (103, 112), 2: (153, 164), 4: (169, 180), 3: (189, 198), 5: (199, 208)},
                  'r': {0: (92, 102), 1: (128, 138), 2: (178, 188)}},
              3: {'x': [(51, 63), (85, 97), (113, 125), (141, 152)], 'd': {0: (64, 78), 1: (101, 112), 2: (133, 140), 3: (169, 178), 4: (179, 192), 5: (197, 207), 6: (212, 223)},
                  'r': {0: (90, 100), 1: (122, 132), 2: (158, 168), 3: (200, 211)}}}.get(cfg.more)
    cfg.pf_n = 1; cfg.pf_last = 100
    vb = cfg.verbose; cfg.verbose = False
    open(out, "w").write(build())
    subprocess.check_call(["clang", "-x", "assembler", "-target", "amdgcn-amd-amdhsa", "-mcpu=gfx950", "-c", out, "-o", "_gen.o"])
    sym = subprocess.check_output(["llvm-objdump", "-t", "_gen.o"], text=True)
    ad = {l.split()[-1]: int(l.split()[0], 16) for l in sym.splitlines() if " L_" in l}
    if cfg.code_pf:
        cfg.pf_last = (ad["L_codeend"] - ad["L_pc"] - 64) // 128
        cfg.pf_n = (cfg.pf_last + 112) // 112
    if cfg.warm:
        cfg.stub_at = [600, 1200, 1800, 2300]
        for it in range(3):
            open(out, "w").write(build())
            subprocess.check_call(["clang", "-x", "assembler", "-target", "amdgcn-amd-amdhsa", "-mcpu=gfx950", "-c", out, "-o", "_gen.o"])
            dis = subprocess.check_output(["llvm-objdump", "-d", "--mcpu=gfx950", "_gen.o"], text=True)
            ins = [(int(l.split("//")[1].split(":")[0], 16), l) for l in dis.splitlines() if "//" in l]
            end = [i for i, (a_, l) in enumerate(ins) if "s_endpgm" in l][1 if cfg.aux_head else 0]
            a0 = []; ns_ = 0
            for a_, l in ins[:end]:
                if "s_cbranch_execz" in l: ns_ += 1
                else: a0.append(a_ - 4 * ns_)
            new_at = []
            for k in range(cfg.pg0, cfg.pg0 + 4):
                c = [i for i, a_ in enumerate(a0) if a_ + 4 * (k - cfg.pg0) + 0x300 >= 4096 * k]
                if c: new_at.append(c[0])
            if new_at == cfg.stub_at: break
            cfg.stub_at = new_at
    cfg.verbose = vb
    open(out, "w").write(build())
    print(out, "code bytes", ad["L_codeend"], "aux at", ad["L_aux"], "stubs", cfg.stub_at, "stamps:", stamp_names)
```
